```python
import torch

def _softmax(x, axis=-1):
    return torch.softmax(x, dim=axis)

def _gelu(x):
    return torch.nn.functional.gelu(x, approximate='tanh')

def _silu(x):
    return torch.nn.functional.silu(x)

def _sigmoid(x):
    return torch.sigmoid(x)

def _layernorm(x, axis=-1, eps=1e-05):
    m = x.mean(dim=axis, keepdim=True)
    v = x.var(dim=axis, keepdim=True, unbiased=False)
    return (x - m) / torch.sqrt(v + eps)

def _scatter_add(tgt, idx, src, axis=0):
    return tgt.clone().index_add_(axis, idx, src)

def _segment_sum(src, seg, n):
    out = torch.zeros((n,) + src.shape[1:], dtype=src.dtype)
    return out.index_add_(0, seg, src)

def _pad(x, pw):
    flat = tuple((v for pair in reversed(pw) for v in pair))
    return torch.nn.functional.pad(x, flat)
kernel_name = 'concat_heads__memory_aug_recurrent_mem_tr__sliding_block__prompt'

def setup_inputs():

    _w = lambda a: (lambda t: t.to(torch.bfloat16) if t.is_floating_point() else t)(torch.as_tensor(a))

    def _A_setup():
        B, S, Dm = (1, 2048, 1024)
        H, Dh = (32, 128)
        M, seg = (8, 32)
        seg = min(seg, S)
        S = S // seg * seg
        return {'x': _w((lambda *s: torch.randn(*s, dtype=torch.bfloat16) * 0.05)(B, S, Dm)), 'mem0': _w((lambda *s: torch.randn(*s, dtype=torch.bfloat16) * 1.6)(B, M, Dm)), 'Wq': _w((lambda *s: torch.randn(*s, dtype=torch.bfloat16) * 0.8)(Dm, H, Dh) * Dm ** (-0.5)), 'Wk': _w((lambda *s: torch.randn(*s, dtype=torch.bfloat16) * 0.8)(Dm, H, Dh) * Dm ** (-0.5)), 'Wv': _w((lambda *s: torch.randn(*s, dtype=torch.bfloat16) * 1.6)(Dm, H, Dh) * Dm ** (-0.5)), 'Wo': _w((lambda *s: torch.randn(*s, dtype=torch.bfloat16) * 1.6)(H, Dh, Dm) * (H * Dh) ** (-0.5)), 'seg_len': seg}
    _A_in = _A_setup()

    def _B_setup():
        B, S, D = (1, 2048, 1024)
        return {'x': _w((lambda *s: torch.randn(*s, dtype=torch.bfloat16) * 0.2)(B, S, D)), 'wqkv': _w((lambda *s: torch.randn(*s, dtype=torch.bfloat16) * 0.2)(D, 3 * D)), 'wo': _w((lambda *s: torch.randn(*s, dtype=torch.bfloat16) * 0.05)(D, D))}
    _B_in = _B_setup()
    return {'A_x': _A_in['x'], 'A_mem0': _A_in['mem0'], 'A_Wq': _A_in['Wq'], 'A_Wk': _A_in['Wk'], 'A_Wv': _A_in['Wv'], 'A_Wo': _A_in['Wo'], 'A_seg_len': _A_in['seg_len'], 'B_x': _B_in['x'], 'B_wqkv': _B_in['wqkv'], 'B_wo': _B_in['wo']}

def reference(A_x, A_mem0, A_Wq, A_Wk, A_Wv, A_Wo, A_seg_len, B_x, B_wqkv, B_wo):

    def _A_ref(x, mem0, Wq, Wk, Wv, Wo, seg_len):
        B, S, Dm = x.shape
        H, Dh = (Wq.shape[1], Wq.shape[2])
        M = mem0.shape[1]
        scale = Dh ** (-0.5)
        n_seg = S // seg_len
        L = M + seg_len
        idx = torch.arange(L)
        mask = (idx[:, None] < M) | (idx[:, None] >= idx[None, :])
        mem = mem0
        outs = []
        for s in range(n_seg):
            xs = x[:, s * seg_len:(s + 1) * seg_len, :].clone()
            h = torch.concatenate([mem, xs], axis=1)
            q = torch.einsum('btd,dhe->bhte', h, Wq)
            k = torch.einsum('btd,dhe->bhte', h, Wk)
            v = torch.einsum('btd,dhe->bhte', h, Wv)
            scores = torch.einsum('bhqe,bhke->bhqk', q, k) * scale
            scores = torch.where(mask[None, None], scores, -1000000000.0)
            p = _softmax(scores, axis=-1)
            o = torch.einsum('bhqk,bhke->bhqe', p, v)
            o = torch.einsum('bhte,hed->btd', o, Wo)
            mem = o[:, :M, :].clone()
            outs.append(o[:, M:, :])
        return torch.concatenate(outs, axis=1)

    def _B_ref(x, wqkv, wo):
        B, S, D = x.shape
        H = 32
        Dh = D // H
        W = 256
        qkv = (lambda x, *d: x.permute(*d))((x @ wqkv).reshape(B, S, 3, H, Dh), 2, 0, 3, 1, 4)
        q, k, v = (qkv[0], qkv[1], qkv[2])
        scores = torch.einsum('bhqd,bhkd->bhqk', q, k) * Dh ** (-0.5)
        idx = torch.arange(S)
        mask = (idx[:, None] - idx[None, :] >= 0) & (idx[:, None] - idx[None, :] < W)
        scores = torch.where(mask[None, None], scores, -1000000000.0)
        p = _softmax(scores, axis=-1)
        o = torch.einsum('bhqk,bhkd->bhqd', p, v)
        return (lambda x, *d: x.permute(*d))(o, 0, 2, 1, 3).reshape(B, S, D) @ wo
    a = _A_ref(A_x, A_mem0, A_Wq, A_Wk, A_Wv, A_Wo, A_seg_len)
    b = _B_ref(B_x, B_wqkv, B_wo)
    return torch.concatenate([a, b], axis=-1)
```

```python
import re

REG_RE = re.compile(r'^(-?)(abs\()?([vas])(\d+)\)?$|^(-?)(abs\()?([vas])\[(\d+):(\d+)\]\)?$')
TRANS = ('v_exp_f32', 'v_log_f32', 'v_rcp_f32', 'v_rsq_f32', 'v_sqrt_f32', 'v_sin_f32', 'v_cos_f32', 'v_rcp_iflag_f32')


def regs_of(tok):
    tok = tok.strip()
    if tok in ('vcc',):
        return {('s', 106), ('s', 107)}
    if tok == 'vcc_lo':
        return {('s', 106)}
    if tok == 'vcc_hi':
        return {('s', 107)}
    if tok == 'exec':
        return {('s', 126), ('s', 127)}
    if tok == 'exec_lo':
        return {('s', 126)}
    if tok == 'exec_hi':
        return {('s', 127)}
    if tok == 'm0':
        return {('s', 124)}
    m = REG_RE.match(tok)
    if not m:
        return set()
    if m.group(3):
        return {(m.group(3), int(m.group(4)))}
    return {(m.group(7), i) for i in range(int(m.group(8)), int(m.group(9)) + 1)}


def split_ops(s):
    out, depth, cur = [], 0, ''
    for ch in s:
        if ch in '[(':
            depth += 1
        if ch in '])':
            depth -= 1
        if ch == ',' and depth == 0:
            out.append(cur.strip())
            cur = ''
        else:
            cur += ch
    if cur.strip():
        out.append(cur.strip())
    return out


class Ins:
    __slots__ = ('text', 'mn', 'cls', 'rd', 'wr', 'passes', 'srcc', 'ab', 'ws', 'dpp', 'lds', 'wide', 'data', 'target',
                 'trans', 'perm', 'rl', 'opsel', 'dtok', 'ctok', 'lanesel')

    def __init__(self, text):
        self.text = text
        body = text.split(';')[0].strip()
        parts = body.split(None, 1)
        mn = parts[0]
        rest = parts[1] if len(parts) > 1 else ''
        for suf in ('_e32', '_e64', '_dpp', '_sdwa'):
            if mn.endswith(suf):
                mn = mn[:-len(suf)]
        self.mn = mn
        ops = split_ops(rest)
        mods = ''
        if ops:
            last = ops[-1].split(None, 1)
            if len(last) > 1 and not ops[-1].startswith('hwreg'):
                ops[-1] = last[0]
                mods = last[1]
        self.rd, self.wr = set(), set()
        self.passes = 0
        self.srcc = set()
        self.ab = set()
        self.ws = 1
        self.dpp = ('row_' in rest or 'quad_perm' in rest or 'wave_' in rest)
        self.lds = False
        self.wide = False
        self.data = set()
        self.target = None
        self.trans = mn in TRANS
        self.perm = mn.startswith('v_permlane')
        self.rl = mn in ('v_readlane_b32', 'v_readfirstlane_b32')
        self.opsel = 'op_sel' in rest and not mn.startswith('v_pk_')
        self.dtok = self.ctok = None
        self.lanesel = set()
        R = [regs_of(o) for o in ops]
        allr = set().union(*R) if R else set()
        if mn.startswith('v_mfma') or mn.startswith('v_smfmac'):
            self.cls = 'mfma'
            if '32x32x16' in mn or '32x32x8' in mn or '32x32x32' in mn:
                self.passes = 8
            elif '16x16x32' in mn or '16x16x16' in mn or '16x16x64' in mn:
                self.passes = 4
            else:
                raise ValueError('unknown mfma ' + mn)
            self.wr = R[0]
            self.dtok = ops[0]
            if mn.startswith('v_smfmac'):
                self.srcc = R[0]
                self.ctok = ops[0]
                self.ab = R[1] | R[2] | R[3]
            else:
                self.srcc = R[3]
                self.ctok = ops[3]
                self.ab = R[1] | R[2]
            self.rd = self.ab | self.srcc
        elif mn.startswith('v_'):
            self.cls = 'valu'
            if mn == 'v_nop':
                pass
            elif self.perm and 'swap' in mn:
                self.wr = R[0] | R[1]
                self.rd = R[0] | R[1]
            elif mn in ('v_add_co_u32', 'v_sub_co_u32', 'v_subrev_co_u32', 'v_addc_co_u32', 'v_subb_co_u32',
                        'v_mad_u64_u32', 'v_div_scale_f32'):
                self.wr = R[0] | R[1]
                self.rd = set().union(*R[2:])
            else:
                self.wr = R[0]
                self.rd = set().union(*R[1:]) if len(R) > 1 else set()
                if mn.startswith('v_fmac') or mn.startswith('v_pk_fmac') or mn.startswith('v_dot2c') or self.dpp \
                        or mn == 'v_writelane_b32':
                    self.rd |= R[0]
                if mn.startswith('v_cmpx'):
                    self.wr |= regs_of('exec')
                if mn in ('v_readlane_b32', 'v_writelane_b32'):
                    self.lanesel = R[2]
        elif mn.startswith('buffer_') or mn.startswith('global_') or mn.startswith('flat_'):
            self.cls = 'vmem'
            toks = mods.split()
            if mn in ('buffer_inv', 'buffer_wbl2'):
                pass
            elif 'lds' in toks or '_lds_' in mn:
                self.lds = True
                self.rd = allr | {('s', 124)}
            elif '_load' in mn:
                self.wr = R[0]
                self.rd = set().union(*R[1:])
                if 'd16' in mn:
                    self.rd |= R[0]
            elif '_store' in mn:
                self.rd = allr
                if 'x3' in mn or 'x4' in mn:
                    self.wide = True
                    self.data = R[0] if mn.startswith('buffer_') else R[1]
            elif '_atomic' in mn:
                self.rd = allr
                if 'sc0' in toks:
                    self.wr = R[0]
            else:
                raise ValueError('unknown vmem ' + text)
        elif mn.startswith('ds_'):
            self.cls = 'ds'
            if mn.startswith('ds_read') or 'permute' in mn or 'swizzle' in mn or '_rtn' in mn:
                self.wr = R[0]
                self.rd = set().union(*R[1:])
            else:
                self.rd = allr
        elif mn.startswith('s_'):
            self.cls = 'salu'
            if mn == 's_nop':
                self.ws = int(ops[0], 0) + 1
            elif mn.startswith('s_cbranch') or mn == 's_branch':
                self.target = ops[0]
                if 'vcc' in mn:
                    self.rd = regs_of('vcc')
            elif mn.startswith('s_cmp') or mn.startswith('s_bitcmp'):
                self.rd = allr
            elif mn in ('s_waitcnt', 's_barrier', 's_endpgm', 's_setprio', 's_sleep', 's_sethalt', 's_setreg_imm32_b32'):
                pass
            elif mn.startswith('s_load') or mn.startswith('s_mem') or mn.startswith('s_buffer_load') or mn.startswith('s_atomic'):
                self.cls = 'smem'
                self.wr = R[0]
                self.rd = set().union(*R[1:]) if len(R) > 1 else set()
            else:
                self.wr = R[0]
                self.rd = set().union(*R[1:]) if len(R) > 1 else set()
                if 'saveexec' in mn:
                    self.wr |= regs_of('exec')
                if mn in ('s_addk_i32', 's_mulk_i32'):
                    self.rd |= R[0]
        else:
            raise ValueError('unknown instruction class: ' + text)


def need(p, c):
    n = 0
    vec = lambda S: {r for r in S if r[0] in 'va'}
    sca = lambda S: {r for r in S if r[0] == 's'}
    if p.cls == 'valu':
        pw = vec(p.wr)
        if pw:
            if c.cls == 'mfma' and pw & c.rd:
                n = max(n, 2)
            if c.cls == 'valu':
                if (c.perm or c.dpp) and pw & c.rd:
                    n = max(n, 2)
                if c.rl and pw & c.rd:
                    n = max(n, 1)
                if p.trans and not c.trans and pw & c.rd:
                    n = max(n, 1)
                if p.opsel and pw & (c.rd | c.wr):
                    n = max(n, 1)
            if p.trans and c.cls in ('vmem', 'ds') and pw & c.rd:
                n = max(n, 1)
        ps = sca(p.wr)
        if ps:
            if c.cls == 'valu' and ps & c.rd:
                n = max(n, 2)
            if c.cls == 'valu' and ps & c.lanesel:
                n = max(n, 4)
            if c.cls == 'vmem' and ps & c.rd:
                n = max(n, 5)
            if c.cls in ('salu', 'smem') and ps & c.rd:
                n = max(n, 1)
            if ps & regs_of('exec'):
                if c.cls == 'valu' and c.dpp:
                    n = max(n, 5)
                if c.cls == 'mfma' or (c.cls == 'valu' and (c.perm or c.rl)):
                    n = max(n, 4)
    if p.cls == 'mfma':
        P = p.passes
        if c.cls == 'mfma':
            if p.wr & c.ab:
                n = max(n, P + 4)
            if p.wr & c.srcc:
                if c.ctok == p.dtok and c.passes == P:
                    n = max(n, 0)
                else:
                    n = max(n, P + 2)
            elif p.wr & c.wr:
                n = max(n, P + 2)
        elif c.cls == 'valu':
            if p.wr & (c.rd | c.wr):
                n = max(n, P + 4)
            if p.srcc & c.wr:
                n = max(n, P - 1)
        elif c.cls in ('vmem', 'ds'):
            if p.wr & (c.rd | c.wr):
                n = max(n, P + 4)
    if p.cls == 'salu' and ('s', 124) in p.wr:
        if (c.cls == 'vmem' and c.lds) or (c.cls == 'ds' and 'addtid' in c.mn):
            n = max(n, 1)
    if p.cls == 'vmem' and p.wide:
        if p.data & c.wr:
            n = max(n, 2 if c.cls == 'valu' else 1)
    return n


class Asm:
    def __init__(self):
        self.items = []
        self._uid = 0

    def uid(self, base='L'):
        self._uid += 1
        return '%s_%d' % (base, self._uid)

    def __call__(self, text):
        for ln in text.split('\n'):
            s = ln.strip()
            if not s or s.startswith(';'):
                continue
            if s.endswith(':'):
                self.label(s[:-1])
            elif s.startswith('.'):
                self.raw(s)
            else:
                self.items.append(('i', Ins(s)))

    def label(self, name):
        self.items.append(('l', name))

    def raw(self, text):
        self.items.append(('r', text))

    def comment(self, text):
        self.items.append(('r', '; ' + text))

    WIN = 24

    def _fix_linear(self):
        out = []
        hist = []
        for kind, it in self.items:
            if kind == 'r' and (it.startswith('.p2align') or it.startswith('.section') or it.startswith('.text')):
                hist = []
            if kind != 'i':
                out.append((kind, it))
                continue
            dist = 0
            req = 0
            for p in reversed(hist[-self.WIN:]):
                n = need(p, it)
                if n > dist:
                    req = max(req, n - dist)
                dist += p.ws
                if dist >= 20:
                    break
            while req > 0:
                k = min(req, 16)
                nop = Ins('s_nop %d' % (k - 1))
                out.append(('i', nop))
                hist.append(nop)
                req -= k
            out.append((kind, it))
            hist.append(it)
            if it.mn in ('s_branch', 's_endpgm', 's_setpc_b64'):
                hist = []
        self.items = out

    def _check_branches(self):
        labels = {}
        for idx, (kind, it) in enumerate(self.items):
            if kind == 'l':
                labels[it] = idx
        problems = []
        for idx, (kind, it) in enumerate(self.items):
            if kind == 'i' and it.target is not None:
                if it.target not in labels:
                    raise ValueError('unknown label ' + it.target)
                pre = [x for k, x in self.items[max(0, idx - 60):idx + 1] if k == 'i'][-self.WIN:]
                post = []
                for k, x in self.items[labels[it.target]:labels[it.target] + 80]:
                    if k == 'i':
                        post.append(x)
                        if x.mn in ('s_branch', 's_endpgm'):
                            break
                    if len(post) >= self.WIN:
                        break
                d_post = 0
                for c in post:
                    dist = d_post
                    for p in reversed(pre):
                        n = need(p, c)
                        if n > dist:
                            problems.append('branch hazard: [%s] -> (%s) -> [%s] need %d have %d' % (p.text, it.text, c.text, n, dist))
                        dist += p.ws
                        if dist >= 20:
                            break
                    d_post += c.ws
                    if d_post >= 20:
                        break
        return problems

    def text(self):
        self._fix_linear()
        probs = self._check_branches()
        if probs:
            raise RuntimeError('\n'.join(probs))
        out = []
        for kind, it in self.items:
            if kind == 'i':
                out.append('    ' + it.text)
            elif kind == 'l':
                out.append(it + ':')
            else:
                out.append(it)
        return '\n'.join(out) + '\n'


class Regs:
    def __init__(self, kind, start, limit):
        self.kind, self.next, self.limit = kind, start, limit
        self.hi = start

    def alloc(self, n=1, align=1):
        b = (self.next + align - 1) // align * align
        if b + n > self.limit:
            raise RuntimeError('out of %s registers' % self.kind)
        self.next = b + n
        self.hi = max(self.hi, self.next)
        return b

    def mark(self):
        return self.next

    def release(self, m):
        self.next = m


def vr(b, n=1):
    return 'v%d' % b if n == 1 else 'v[%d:%d]' % (b, b + n - 1)


def ar(b, n=1):
    return 'a%d' % b if n == 1 else 'a[%d:%d]' % (b, b + n - 1)


def sr(b, n=1):
    return 's%d' % b if n == 1 else 's[%d:%d]' % (b, b + n - 1)
```

```python
from asmlib import *
from layout import *
import struct

LOG2E = 1.4426950408889634


def f32bits(x):
    return struct.unpack('<I', struct.pack('<f', x))[0]


def tree(A, op3, op2, regs, t0, t1):
    regs = list(regs)
    A('%s %s, %s, %s, %s' % (op3, vr(t0), vr(regs[0]), vr(regs[1]), vr(regs[2])))
    A('%s %s, %s, %s, %s' % (op3, vr(t1), vr(regs[3]), vr(regs[4]), vr(regs[5])))
    i, k = 6, 0
    while i + 1 < len(regs):
        t = (t0, t1)[k & 1]
        A('%s %s, %s, %s, %s' % (op3, vr(t), vr(t), vr(regs[i]), vr(regs[i + 1])))
        i += 2
        k += 1
    if i < len(regs):
        A('%s %s, %s, %s, %s' % (op3, vr(t0), vr(t0), vr(t1), vr(regs[i])))
    else:
        A('%s %s, %s, %s' % (op2, vr(t0), vr(t0), vr(t1)))


def xhalf(A, op, a, b):
    A('v_mov_b32 %s, %s' % (vr(b), vr(a)))
    A('v_permlane32_swap_b32 %s, %s' % (vr(a), vr(b)))
    A('%s %s, %s, %s' % (op, vr(a), vr(a), vr(b)))


def sum_regs(A, regs, t0, t1):
    regs = list(regs)
    A('v_add_f32 %s, %s, %s' % (vr(t0), vr(regs[0]), vr(regs[1])))
    A('v_add_f32 %s, %s, %s' % (vr(t1), vr(regs[2]), vr(regs[3])))
    for i in range(4, len(regs)):
        t = (t0, t1)[i & 1]
        A('v_add_f32 %s, %s, %s' % (vr(t), vr(t), vr(regs[i])))
    A('v_add_f32 %s, %s, %s' % (vr(t0), vr(t0), vr(t1)))


def mask_init(A, S0, v_d, v_neg, causal):
    for r in range(16):
        kr = (r >> 2) * 8 + (r & 3)
        A('v_cmp_%s_i32 vcc, %d, %s' % ('le' if causal else 'gt', kr, vr(v_d)))
        A('v_cndmask_b32 %s, %s, 0, vcc' % (vr(S0 + r), vr(v_neg)))


def attn_a(A, SRD, s_item, st, v_lane, v_l16, V0, ld='', stf=''):
    V = Regs('v', V0, 256)
    s0, s1, s2, s3 = st
    Q = V.alloc(32, 4)
    K = V.alloc(32, 4)
    KM = V.alloc(32, 4)
    VXr = V.alloc(32, 4)
    VMr = V.alloc(16, 4)
    SX = V.alloc(16, 4)
    SM = V.alloc(16, 4)
    v_km, v_d, v_neg, t0, t1 = [V.alloc() for _ in range(5)]
    O = Q
    PX = KM
    PM = KM + 8
    OP = KM + 16
    A('s_lshl_b32 %s, %s, 13' % (sr(s0), sr(s_item)))
    A('s_add_u32 %s, %s, 4096' % (sr(s1), sr(s0)))
    A('v_add_u32 %s, 0x%x, %s' % (vr(t0), KX, vr(v_l16)))
    A('v_add_u32 %s, 0x%x, %s' % (vr(t1), VX, vr(v_l16)))
    assert QX == 0
    for k in range(8):
        so = s0 if k < 4 else s1
        A('buffer_load_dwordx4 %s, %s, %s, %s offen offset:%d%s' % (vr(Q + 4 * k, 4), vr(v_l16), sr(SRD, 4), sr(so), (k & 3) * 1024, ld))
        A('buffer_load_dwordx4 %s, %s, %s, %s offen offset:%d%s' % (vr(K + 4 * k, 4), vr(t0), sr(SRD, 4), sr(so), (k & 3) * 1024, ld))
    A('s_lshl_b32 %s, %s, 12' % (sr(s2), sr(s_item)))
    A('s_add_u32 %s, %s, 0x%x' % (sr(s3), sr(s2), VMO))
    A('s_add_u32 %s, %s, 0x%x' % (sr(s2), sr(s2), KMO))
    A('v_and_b32 %s, 7, %s' % (vr(v_km), vr(v_lane)))
    A('v_lshlrev_b32 %s, 4, %s' % (vr(v_km), vr(v_km)))
    A('v_lshrrev_b32 %s, 5, %s' % (vr(v_d), vr(v_lane)))
    A('v_lshl_add_u32 %s, %s, 8, %s' % (vr(v_km), vr(v_d), vr(v_km)))
    for k in range(8):
        A('buffer_load_dwordx4 %s, %s, %s, %s offen offset:%d%s' % (vr(KM + 4 * k, 4), vr(v_km), sr(SRD, 4), sr(s2), k * 512 + 128, ld))
    for k in range(8):
        so = s0 if k < 4 else s1
        A('buffer_load_dwordx4 %s, %s, %s, %s offen offset:%d%s' % (vr(VXr + 4 * k, 4), vr(t1), sr(SRD, 4), sr(so), (k & 3) * 1024, ld))
    for k in range(4):
        A('buffer_load_dwordx4 %s, %s, %s, %s offen offset:%d%s' % (vr(VMr + 4 * k, 4), vr(v_l16), sr(SRD, 4), sr(s3), k * 1024, ld))
    A('v_lshlrev_b32 %s, 2, %s' % (vr(v_d), vr(v_d)))
    A('v_and_b32 %s, 31, %s' % (vr(v_neg), vr(v_lane)))
    A('v_sub_u32 %s, %s, %s' % (vr(v_d), vr(v_neg), vr(v_d)))
    A('v_mov_b32 %s, 0x%x' % (vr(v_neg), f32bits(-1e30)))
    mask_init(A, SX, v_d, v_neg, True)
    for k in range(8):
        A('s_waitcnt vmcnt(%d)' % (36 - 2 * (k + 1)))
        A('v_mfma_f32_32x32x16_bf16 %s, %s, %s, %s' % (vr(SX, 16), vr(K + 4 * k, 4), vr(Q + 4 * k, 4), vr(SX, 16)))
    for k in range(8):
        A('s_waitcnt vmcnt(%d)' % (20 - (k + 1)))
        A('v_mfma_f32_32x32x16_bf16 %s, %s, %s, %s' % (vr(SM, 16), vr(KM + 4 * k, 4), vr(Q + 4 * k, 4), '0' if k == 0 else vr(SM, 16)))
    regs = [SX + i for i in range(16)] + [SM + i for i in range(4)]
    tree(A, 'v_max3_f32', 'v_max_f32', regs, t0, t1)
    xhalf(A, 'v_max_f32', t0, t1)
    A('s_mov_b32 %s, 0x%x' % (sr(s2), f32bits(128 ** -0.5 * LOG2E)))
    A('v_mul_f32 %s, %s, %s' % (vr(t0), sr(s2), vr(t0)))
    for r in regs:
        A('v_fma_f32 %s, %s, %s, -%s' % (vr(r), vr(r), sr(s2), vr(t0)))
    for r in regs:
        A('v_exp_f32 %s, %s' % (vr(r), vr(r)))
    sum_regs(A, regs, t0, t1)
    xhalf(A, 'v_add_f32', t0, t1)
    A('v_rcp_f32 %s, %s' % (vr(t0), vr(t0)))
    for r in regs:
        A('v_mul_f32 %s, %s, %s' % (vr(r), vr(r), vr(t0)))
    for i in range(8):
        A('v_cvt_pk_bf16_f32 %s, %s, %s' % (vr(PX + i), vr(SX + 2 * i), vr(SX + 2 * i + 1)))
    for i in range(4):
        A('v_cvt_pk_bf16_f32 %s, %s, %s' % (vr(PM + i), vr(SM + 2 * (i & 1)), vr(SM + 2 * (i & 1) + 1)))
    A('s_waitcnt vmcnt(0)')
    for eb in range(4):
        o = vr(O + 16 * eb, 16)
        A('v_mfma_f32_32x32x16_bf16 %s, %s, %s, 0' % (o, vr(VXr + 8 * eb, 4), vr(PX, 4)))
        A('v_mfma_f32_32x32x16_bf16 %s, %s, %s, %s' % (o, vr(VXr + 8 * eb + 4, 4), vr(PX + 4, 4), o))
        A('v_mfma_f32_32x32x16_bf16 %s, %s, %s, %s' % (o, vr(VMr + 4 * eb, 4), vr(PM, 4), o))
    A('v_add_u32 %s, 0x%x, %s' % (vr(t0), OA, vr(v_l16)))
    for eb in range(4):
        d = OP + 8 * (eb & 1)
        for i in range(8):
            A('v_cvt_pk_bf16_f32 %s, %s, %s' % (vr(d + i), vr(O + 16 * eb + 2 * i), vr(O + 16 * eb + 2 * i + 1)))
        so = s0 if eb < 2 else s1
        for j in range(2):
            A('buffer_store_dwordx4 %s, %s, %s, %s offen offset:%d%s' % (vr(d + 4 * j, 4), vr(t0), sr(SRD, 4), sr(so), (eb & 1) * 2048 + j * 1024, stf))
    return V.hi


def attn_b(A, SRD, s_item, st, v_lane, v_l16, V0, ld='', stf=''):
    V = Regs('v', V0, 256)
    s0, s1, s2, s3 = st
    S = V.alloc(144, 4)
    KV = V.alloc(72, 4)
    Q = V.alloc(8, 4)
    v_d, v_neg, t0, t1, v_k, v_v = [V.alloc() for _ in range(6)]
    O = S + 80
    OP = S + 96
    A('s_lshl_b32 %s, %s, 11' % (sr(s0), sr(s_item)))
    A('s_lshr_b32 %s, %s, 5' % (sr(s1), sr(s_item)))
    A('s_and_b32 %s, %s, 31' % (sr(s2), sr(s_item)))
    A('s_lshl_b32 %s, %s, 11' % (sr(s2), sr(s2)))
    A('v_add_u32 %s, 0x%x, %s' % (vr(t0), QB, vr(v_l16)))
    A('v_add_u32 %s, 0x%x, %s' % (vr(v_k), KB, vr(v_l16)))
    A('v_add_u32 %s, %s, %s' % (vr(v_k), sr(s2), vr(v_k)))
    A('v_add_u32 %s, 0x%x, %s' % (vr(v_v), VB - KB, vr(v_k)))
    for j in range(2):
        A('buffer_load_dwordx4 %s, %s, %s, %s offen offset:%d%s' % (vr(Q + 4 * j, 4), vr(t0), sr(SRD, 4), sr(s0), j * 1024, ld))

    def kb_off(i):
        A('s_add_i32 %s, %s, %d' % (sr(s3), sr(s1), i - 8))
        A('s_max_i32 %s, %s, 0' % (sr(s3), sr(s3)))
        A('s_lshl_b32 %s, %s, 16' % (sr(s3), sr(s3)))
    for i in range(9):
        kb_off(i)
        for j in range(2):
            A('buffer_load_dwordx4 %s, %s, %s, %s offen offset:%d%s' % (vr(KV + 8 * i + 4 * j, 4), vr(v_k), sr(SRD, 4), sr(s3), j * 1024, ld))
    A('v_lshrrev_b32 %s, 5, %s' % (vr(v_d), vr(v_lane)))
    A('v_lshlrev_b32 %s, 2, %s' % (vr(v_d), vr(v_d)))
    A('v_and_b32 %s, 31, %s' % (vr(v_neg), vr(v_lane)))
    A('v_sub_u32 %s, %s, %s' % (vr(v_d), vr(v_neg), vr(v_d)))
    A('v_mov_b32 %s, 0x%x' % (vr(v_neg), f32bits(-1e30)))
    mask_init(A, S, v_d, v_neg, False)
    mask_init(A, S + 128, v_d, v_neg, True)
    for i in range(9):
        A('s_waitcnt vmcnt(16)')
        s = vr(S + 16 * i, 16)
        A('v_mfma_f32_32x32x16_bf16 %s, %s, %s, %s' % (s, vr(KV + 8 * i, 4), vr(Q, 4), s if i in (0, 8) else '0'))
        A('v_mfma_f32_32x32x16_bf16 %s, %s, %s, %s' % (s, vr(KV + 8 * i + 4, 4), vr(Q + 4, 4), s))
        kb_off(i)
        for j in range(2):
            A('buffer_load_dwordx4 %s, %s, %s, %s offen offset:%d%s' % (vr(KV + 8 * i + 4 * j, 4), vr(v_v), sr(SRD, 4), sr(s3), j * 1024, ld))
    Lok = A.uid('bok')
    A('s_nop 15')
    for i in range(8):
        A('s_cmp_ge_u32 %s, %d' % (sr(s1), 8 - i))
        A('s_cbranch_scc1 ' + Lok)
        for r in range(16):
            A('v_mov_b32 %s, %s' % (vr(S + 16 * i + r), vr(v_neg)))
    A.label(Lok)
    regs = [S + i for i in range(144)]
    tree(A, 'v_max3_f32', 'v_max_f32', regs, t0, t1)
    xhalf(A, 'v_max_f32', t0, t1)
    A('s_mov_b32 %s, 0x%x' % (sr(s2), f32bits(32 ** -0.5 * LOG2E)))
    A('v_mul_f32 %s, %s, %s' % (vr(t0), sr(s2), vr(t0)))
    la, lb = v_d, v_k
    for i in range(9):
        rr = regs[16 * i:16 * i + 16]
        for r in rr:
            A('v_fma_f32 %s, %s, %s, -%s' % (vr(r), vr(r), sr(s2), vr(t0)))
        for r in rr:
            A('v_exp_f32 %s, %s' % (vr(r), vr(r)))
        for k, r in enumerate(rr):
            d = (la, lb)[k & 1]
            if i == 0 and k < 2:
                A('v_mov_b32 %s, %s' % (vr(d), vr(r)))
            else:
                A('v_add_f32 %s, %s, %s' % (vr(d), vr(d), vr(r)))
        for k in range(8):
            A('v_cvt_pk_bf16_f32 %s, %s, %s' % (vr(S + 8 * i + k), vr(rr[2 * k]), vr(rr[2 * k + 1])))
    A('v_add_f32 %s, %s, %s' % (vr(la), vr(la), vr(lb)))
    xhalf(A, 'v_add_f32', la, lb)
    A('v_rcp_f32 %s, %s' % (vr(la), vr(la)))
    A('s_waitcnt vmcnt(0)')
    o = vr(O, 16)
    for i in range(9):
        for j in range(2):
            A('v_mfma_f32_32x32x16_bf16 %s, %s, %s, %s' % (o, vr(KV + 8 * i + 4 * j, 4), vr(S + 8 * i + 4 * j, 4), '0' if i == 0 and j == 0 else o))
    A('v_add_u32 %s, 0x%x, %s' % (vr(t0), OB, vr(v_l16)))
    for r in range(16):
        A('v_mul_f32 %s, %s, %s' % (vr(O + r), vr(O + r), vr(la)))
    for k in range(8):
        A('v_cvt_pk_bf16_f32 %s, %s, %s' % (vr(OP + k), vr(O + 2 * k), vr(O + 2 * k + 1)))
    for j in range(2):
        A('buffer_store_dwordx4 %s, %s, %s, %s offen offset:%d%s' % (vr(OP + 4 * j, 4), vr(t0), sr(SRD, 4), sr(s0), j * 1024, stf))
    return V.hi
```

```python
from asmlib import *
from layout import *
import struct, os


def f32bits(x):
    return struct.unpack('<I', struct.pack('<f', x))[0]


LDS_MEM = 131072
LDS_O = LDS_MEM + 16384
LDS_ROLE = LDS_O + 8192
NSTEP = int(os.environ.get('NSTEP', '64'))
POLL_LIMIT = 400000
DIAG = int(os.environ.get('DIAG', '0'))
PF = [int(x) for x in os.environ.get('PF', '4,3,1,2,0,0,6,0').split(',')]
PIPE = int(os.environ.get('PIPE', '1'))
E_DEPTH = int(os.environ.get('E_DEPTH', '0'))
E_INT = int(os.environ.get('E_INT', '3'))
E_INT2 = int(os.environ.get('E_INT2', '0'))
EARLY_SIDE = int(os.environ.get('EARLY_SIDE', '0'))
NEARX = int(os.environ.get('NEARX', '1'))
PFB_SPAN = int(os.environ.get('PFB_SPAN', '9'))
DELAY_E = int(os.environ.get('DELAY_E', '0'))
NOCOPY = int(os.environ.get('NOCOPY', '0'))
NOPF = int(os.environ.get('NOPF', '0'))
WARM = int(os.environ.get('WARM', '1'))


def gen_chain(A, name, stamps=False, nsteps=NSTEP, flat=False):
    ISC = ' sc1' if flat else ''
    S = Regs('s', 16, 100)
    V = Regs('v', 1, 256)
    SRD_WS = 8
    SRD_T = 12
    s_ptr = S.alloc(16, 4)
    s_w = S.alloc()
    s_x = S.alloc()
    s_j = S.alloc()
    s_t0 = S.alloc()
    s_t1 = S.alloc()
    s_t2 = S.alloc()
    s_t3 = S.alloc()
    s_step = S.alloc()
    s_slot = S.alloc()
    s_slot1 = S.alloc()
    s_slot2 = S.alloc()
    s_kx = S.alloc()
    s_kx2 = S.alloc()
    s_out = S.alloc()
    s_fffe = S.alloc()
    s_c = S.alloc()
    s_lim = S.alloc()
    s_cnt = S.alloc()
    s_pend = S.alloc()
    s_exlo = S.alloc(2, 2)
    s_hf = S.alloc(2, 2)
    s_tm = S.alloc(2, 2)
    s_stamp = S.alloc()
    s_vxl = S.alloc()
    s_stl = S.alloc()
    s_ps = S.alloc()
    s_ps2 = S.alloc()
    v_lane = V.alloc()
    v_nu = V.alloc()
    v_g = V.alloc()
    v_t = [V.alloc() for _ in range(8)]
    va_memr = V.alloc()
    va_mems = V.alloc()
    va_memz = V.alloc()
    va_ldsw = V.alloc()
    va_rdA = V.alloc()
    va_rdB = V.alloc()
    va_qks = V.alloc()
    va_qko = V.alloc()
    va_vs = V.alloc()
    va_vo = V.alloc()
    va_qkr = V.alloc()
    va_vmr = V.alloc()
    va_kx = V.alloc()
    va_vx = V.alloc()
    va_ow = V.alloc()
    va_or = V.alloc()
    va_pw = V.alloc()
    va_pr = V.alloc()
    va_pw2 = V.alloc()
    va_warm = V.alloc()
    v_idx = V.alloc()
    v_pk1 = V.alloc()
    v_pk2 = V.alloc()
    va_vxr = V.alloc()
    v_m1 = V.alloc(4, 4)
    v_mask = V.alloc(4, 4)
    v_sel = V.alloc(4, 4)
    v_maskx = V.alloc(4, 4)
    v_ones = V.alloc(4, 4)
    v_half = V.alloc(2, 2)
    v_bias = V.alloc()
    v_junk = V.alloc(4, 4)
    acc1 = V.alloc(4, 4)
    acc2 = V.alloc(4, 4)
    KXA = V.alloc(16, 4)
    KXB = V.alloc(16, 4)
    VXR = V.alloc(32, 4)
    VMR = V.alloc(16, 4)
    QK = V.alloc(16, 4)
    F = V.alloc(64, 4)
    M = V.alloc(16, 4)
    PR = V.alloc(8, 4)
    SA, SB, SM = F, F + 4, F + 8
    PX, PXH = F + 12, F + 16
    PM, PMH = F + 20, F + 24
    O = F + 28
    LS = F + 44
    v_mx, v_mx2, v_l = F + 48, F + 49, F + 50
    XY = QK
    G = F
    W1, W2, W3 = 0, 128, 192

    L_exit = name + '_exit'
    nvm = [0]

    def stamp(k):
        if not stamps:
            return
        A('%s %s' % ('s_memrealtime' if stamps == 'rt' else 's_memtime', sr(s_tm, 2)))
        A('s_waitcnt lgkmcnt(0)')
        A('v_mov_b32 %s, %s' % (vr(v_t[7]), sr(s_tm)))
        A('v_mov_b32 %s, %s' % (vr(v_t[6]), sr(s_stl)))
        A('ds_write_b32 %s, %s offset:%d' % (vr(v_t[6]), vr(v_t[7]), 4 * k))
        if k in (0, 2, 6):
            A('v_mov_b32 %s, %s' % (vr(v_t[5]), sr(s_cnt)))
            A('ds_write_b32 %s, %s offset:%d' % (vr(v_t[6]), vr(v_t[5]), 4 * (8 + k)))

    def srd(dst, ptr, nbytes):
        A('s_mov_b32 %s, %s' % (sr(dst), sr(ptr)))
        A('s_and_b32 %s, %s, 0xffff' % (sr(dst + 1), sr(ptr + 1)))
        A('s_mov_b32 %s, 0x%x' % (sr(dst + 2), nbytes))
        A('s_mov_b32 %s, 0x00020000' % sr(dst + 3))

    A.raw('.p2align 8')
    A.label(name)
    A('s_cmp_ge_u32 s2, 256')
    A('s_cbranch_scc1 ' + L_exit)
    A('s_load_dwordx2 %s, s[0:1], 8' % sr(s_ptr, 2))
    A('s_load_dwordx4 %s, s[0:1], 16' % sr(s_ptr + 4, 4))
    A('s_load_dwordx4 %s, s[0:1], 32' % sr(s_ptr + 8, 4))
    A('s_load_dwordx4 %s, s[0:1], 88' % sr(s_ptr + 12, 4))
    P_MEM0, P_WQ, P_WK, P_WV, P_WO, P_DBG, P_WS = s_ptr, s_ptr + 4, s_ptr + 6, s_ptr + 8, s_ptr + 10, s_ptr + 12, s_ptr + 14
    A('v_and_b32 %s, 63, v0' % vr(v_lane))
    A('v_lshrrev_b32 %s, 6, v0' % vr(v_t[0]))
    A('v_readfirstlane_b32 %s, %s' % (sr(s_w), vr(v_t[0])))
    A('v_and_b32 %s, 15, %s' % (vr(v_nu), vr(v_lane)))
    A('v_lshrrev_b32 %s, 4, %s' % (vr(v_g), vr(v_lane)))
    A('s_waitcnt lgkmcnt(0)')
    srd(SRD_WS, P_WS, WS_BYTES)
    srd(SRD_T, P_DBG, 256)
    if flat:
        A('s_and_b32 %s, s2, 7' % sr(s_x))
        A('s_lshr_b32 %s, s2, 3' % sr(s_j))
    else:
        A('s_getreg_b32 %s, hwreg(HW_REG_XCC_ID)' % sr(s_x))
        A('s_and_b32 %s, %s, 7' % (sr(s_x), sr(s_x)))
        L_norole = A.uid('norole')
        A('s_cmp_lg_u32 %s, 0' % sr(s_w))
        A('s_cbranch_scc1 ' + L_norole)
        A('s_lshl_b32 %s, %s, 2' % (sr(s_t0), sr(s_x)))
        A('v_mov_b32 %s, %s' % (vr(v_t[0]), sr(s_t0)))
        A('v_mov_b32 %s, 1' % vr(v_t[1]))
        A('s_mov_b64 exec, 1')
        A('buffer_atomic_add %s, %s, %s, 0 offen sc0 sc1' % (vr(v_t[1]), vr(v_t[0]), sr(SRD_T, 4)))
        A('s_waitcnt vmcnt(0)')
        A('v_mov_b32 %s, %d' % (vr(v_t[0]), LDS_ROLE))
        A('ds_write_b32 %s, %s' % (vr(v_t[0]), vr(v_t[1])))
        A('s_waitcnt lgkmcnt(0)')
        A('s_mov_b64 exec, -1')
        A.label(L_norole)
        A('s_barrier')
        A('v_mov_b32 %s, %d' % (vr(v_t[0]), LDS_ROLE))
        A('ds_read_b32 %s, %s' % (vr(v_t[1]), vr(v_t[0])))
        A('s_waitcnt lgkmcnt(0)')
        A('v_readfirstlane_b32 %s, %s' % (sr(s_j), vr(v_t[1])))
    A('s_cmp_ge_u32 %s, 16' % sr(s_j))
    A('s_cbranch_scc1 ' + L_exit)

    A('s_mov_b32 %s, 0xfffefffe' % sr(s_fffe))
    A('s_mov_b32 %s, 0x%x' % (sr(s_c), f32bits(128 ** -0.5 * 1.4426950408889634)))
    A('s_mov_b32 %s, %d' % (sr(s_lim), POLL_LIMIT))
    A('s_mov_b32 %s, 0x00ff00ff' % sr(s_exlo))
    A('s_mov_b32 %s, 0x00ff00ff' % sr(s_exlo + 1))
    A('s_mov_b32 %s, 0xff00ff00' % sr(s_hf))
    A('s_mov_b32 %s, 0xff00ff00' % sr(s_hf + 1))
    for i in range(4):
        A('v_mov_b32 %s, -1' % vr(v_m1 + i))
    A('v_mov_b32 %s, 0x%x' % (vr(v_t[0]), f32bits(-1e30)))
    for i in range(4):
        A('v_cndmask_b32 %s, 0, %s, %s' % (vr(v_maskx + i), vr(v_t[0]), sr(s_hf, 2)))
    A('v_cmp_gt_u32 vcc, 32, %s' % vr(v_lane))
    for i in range(4):
        A('v_cndmask_b32 %s, %s, %s, vcc' % (vr(v_mask + i), vr(v_maskx), vr(v_t[0])))
    A('v_mov_b32 %s, 0x%x' % (vr(v_t[0]), f32bits(-3e38)))
    A('v_cndmask_b32 %s, %s, 0, %s' % (vr(v_bias), vr(v_t[0]), sr(s_hf, 2)))
    for i in range(4):
        A('v_mov_b32 %s, 0x3f803f80' % vr(v_ones + i))
    for i in range(2):
        A('v_mov_b32 %s, 0x3f003f00' % vr(v_half + i))
    A('v_mov_b32 %s, 0x4444' % vr(v_t[0]))
    A('v_mov_b32 %s, 0xeeee' % vr(v_t[1]))
    A('v_cmp_gt_u32 vcc, 8, %s' % vr(v_nu))
    A('v_cndmask_b32 %s, %s, %s, vcc' % (vr(v_idx), vr(v_t[1]), vr(v_t[0])))
    A('v_bfe_u32 %s, %s, 2, 1' % (vr(v_t[0]), vr(v_nu)))
    A('v_bfe_u32 %s, %s, 1, 1' % (vr(v_t[1]), vr(v_nu)))
    A('v_lshl_add_u32 %s, %s, 1, %s' % (vr(v_t[0]), vr(v_t[1]), vr(v_t[0])))
    A('v_and_b32 %s, 1, %s' % (vr(v_t[1]), vr(v_nu)))
    A('v_lshlrev_b32 %s, 4, %s' % (vr(v_t[1]), vr(v_t[1])))
    A('v_mov_b32 %s, 0x3f80' % vr(v_t[2]))
    A('v_lshlrev_b32 %s, %s, %s' % (vr(v_t[1]), vr(v_t[1]), vr(v_t[2])))
    for d in range(4):
        A('v_cmp_eq_u32 vcc, %d, %s' % (d, vr(v_t[0])))
        A('v_cndmask_b32 %s, 0, %s, vcc' % (vr(v_sel + d), vr(v_t[1])))

    l16 = v_t[2]
    A('v_lshlrev_b32 %s, 4, %s' % (vr(l16), vr(v_lane)))

    s_ob = s_t3
    A('s_lshl_b32 %s, %s, 4' % (sr(s_ob), sr(s_x)))
    A('s_add_u32 %s, %s, %s' % (sr(s_ob), sr(s_ob), sr(s_j)))
    A('s_lshl_b32 %s, %s, 10' % (sr(s_ob), sr(s_ob)))

    A('s_lshl_b32 %s, %s, 17' % (sr(s_t0), sr(s_w)))
    A('s_add_u32 %s, %s, %s' % (sr(s_t0), sr(s_t0), sr(s_ob)))
    for base in (QKI, VMI, MEMI):
        A('s_add_u32 %s, %s, 0x%x' % (sr(s_t1), sr(s_t0), base))
        A('buffer_store_dwordx4 %s, %s, %s, %s offen%s' % (vr(v_m1, 4), vr(l16), sr(SRD_WS, 4), sr(s_t1), ISC))
    A('s_lshl_b32 %s, %s, 2' % (sr(s_t0), sr(s_j)))
    A('s_add_u32 %s, %s, %s' % (sr(s_t0), sr(s_t0), sr(s_w)))
    A('s_lshl_b32 %s, %s, 14' % (sr(s_t0), sr(s_t0)))
    A('s_add_u32 %s, %s, 0x%x' % (sr(s_t0), sr(s_t0), PART))
    A('v_add_u32 %s, %s, %s' % (vr(va_pr), sr(s_t0), vr(l16)))
    A('s_lshl_b32 %s, %s, 8' % (sr(s_t1), sr(s_x)))
    A('v_add_u32 %s, %s, %s' % (vr(va_pw), sr(s_t1), vr(va_pr)))
    A('v_add_u32 %s, 8192, %s' % (vr(va_pw2), vr(va_pw)))
    A('s_mov_b64 exec, 0xffff')
    for sl in range(4):
        A('s_mov_b32 %s, 0x%x' % (sr(s_t1), sl * 2048))
        A('buffer_store_dwordx4 %s, %s, %s, %s offen sc1' % (vr(v_m1, 4), vr(va_pw), sr(SRD_WS, 4), sr(s_t1)))
        A('buffer_store_dwordx4 %s, %s, %s, %s offen sc1' % (vr(v_m1, 4), vr(va_pw2), sr(SRD_WS, 4), sr(s_t1)))
    A('s_mov_b64 exec, -1')
    A('s_waitcnt vmcnt(0)')
    A('s_barrier')
    L_nord = A.uid('nord')
    A('s_cmp_lg_u32 %s, 0' % sr(s_w))
    A('s_cbranch_scc1 ' + L_nord)
    A('v_mov_b32 %s, 32' % vr(v_t[0]))
    A('v_mov_b32 %s, 1' % vr(v_t[1]))
    A('s_mov_b64 exec, 1')
    A('buffer_atomic_add %s, %s, %s, 0 offen sc1' % (vr(v_t[1]), vr(v_t[0]), sr(SRD_T, 4)))
    A('s_mov_b64 exec, -1')
    A.label(L_nord)

    s_col = s_t2
    A('s_lshr_b32 %s, %s, 4' % (sr(s_col), sr(s_ob)))
    vw = v_t[4]
    A('v_lshrrev_b32 %s, 2, %s' % (vr(vw), vr(v_lane)))
    A('v_lshlrev_b32 %s, 13, %s' % (vr(vw), vr(vw)))
    A('v_and_b32 %s, 3, %s' % (vr(v_t[5]), vr(v_lane)))
    A('v_lshl_add_u32 %s, %s, 4, %s' % (vr(vw), vr(v_t[5]), vr(vw)))
    SRD_A = S.alloc(4, 4)
    SRD_B = S.alloc(4, 4)
    A('s_lshl_b32 %s, %s, 21' % (sr(s_t0), sr(s_w)))
    A('s_add_u32 %s, %s, %s' % (sr(s_col), sr(s_col), sr(s_t0)))
    A('s_lshl_b32 %s, %s, 14' % (sr(s_t0), sr(s_w)))
    for mi, P in enumerate((P_WQ, P_WK)):
        srd(SRD_A, P, 1024 * 4096 * 2)
        for i in range(16):
            A('s_add_u32 m0, %s, %d' % (sr(s_t0), mi * 65536 + i * 1024))
            A('s_add_u32 %s, %s, %d' % (sr(s_t1), sr(s_col), i * 131072))
            A('buffer_load_dwordx4 %s, %s, %s offen lds' % (vr(vw), sr(SRD_A, 4), sr(s_t1)))
        if mi == 0:
            A('s_nop 4')
    LV = KXA
    assert KXB == KXA + 16 and VXR == KXA + 32
    srd(SRD_B, P_WV, 1024 * 4096 * 2)
    for i in range(16):
        A('s_add_u32 %s, %s, %d' % (sr(s_t1), sr(s_col), i * 131072))
        A('buffer_load_dwordx4 %s, %s, %s, %s offen' % (vr(LV + 4 * i, 4), vr(vw), sr(SRD_B, 4), sr(s_t1)))
    LO = F
    SRD_C = S.alloc(4, 4)
    srd(SRD_C, P_WO, 4096 * 1024 * 2)
    vo = v_t[5]
    A('v_lshrrev_b32 %s, 3, %s' % (vr(vo), vr(v_lane)))
    A('v_lshlrev_b32 %s, 11, %s' % (vr(vo), vr(vo)))
    A('v_and_b32 %s, 7, %s' % (vr(v_t[6]), vr(v_lane)))
    A('v_lshl_add_u32 %s, %s, 4, %s' % (vr(vo), vr(v_t[6]), vr(vo)))
    A('s_lshl_b32 %s, %s, 20' % (sr(s_t1), sr(s_x)))
    A('s_lshl_b32 %s, %s, 18' % (sr(s_t2), sr(s_w)))
    A('s_add_u32 %s, %s, %s' % (sr(s_t1), sr(s_t1), sr(s_t2)))
    A('s_lshl_b32 %s, %s, 7' % (sr(s_t2), sr(s_j)))
    A('s_add_u32 %s, %s, %s' % (sr(s_t2), sr(s_t1), sr(s_t2)))
    for i in range(16):
        A('s_add_u32 %s, %s, %d' % (sr(s_t1), sr(s_t2), i * 16384))
        A('buffer_load_dwordx4 %s, %s, %s, %s offen' % (vr(LO + 4 * i, 4), vr(vo), sr(SRD_C, 4), sr(s_t1)))
    SRD_D = S.alloc(4, 4)
    srd(SRD_D, P_MEM0, 8 * 1024 * 2)
    vm0 = v_t[6]
    A('v_and_b32 %s, 7, %s' % (vr(vm0), vr(v_nu)))
    A('v_lshlrev_b32 %s, 11, %s' % (vr(vm0), vr(vm0)))
    A('v_lshl_add_u32 %s, %s, 5, %s' % (vr(vm0), vr(v_g), vr(vm0)))
    A('v_lshrrev_b32 %s, 3, %s' % (vr(v_t[7]), vr(v_nu)))
    A('v_lshl_add_u32 %s, %s, 2, %s' % (vr(vm0), vr(v_t[7]), vr(vm0)))
    A('s_lshl_b32 %s, %s, 9' % (sr(s_t1), sr(s_w)))
    for k in range(4):
        for a in range(4):
            A('buffer_load_dword %s, %s, %s, %s offen offset:%d' % (vr(M + 4 * k + a), vr(vm0), sr(SRD_D, 4), sr(s_t1), k * 128 + a * 8))

    s_p = s_t0
    s_wh = s_t1
    A('s_and_b32 %s, %s, 1' % (sr(s_p), sr(s_w)))
    A('s_lshr_b32 %s, %s, 1' % (sr(s_wh), sr(s_w)))
    ta, tb, tc = v_t[0], v_t[1], v_t[7]
    A('s_lshl_b32 %s, %s, 14' % (sr(s_t2), sr(s_x)))
    A('s_add_u32 %s, %s, 0x%x' % (sr(s_t2), sr(s_t2), MEMI))
    A('v_add_u32 %s, %s, %s' % (vr(va_memr), sr(s_t2), vr(l16)))
    A('s_lshl_b32 %s, %s, 12' % (sr(s_t2), sr(s_w)))
    A('v_add_u32 %s, %s, %s' % (vr(va_memr), sr(s_t2), vr(va_memr)))
    A('v_add_u32 %s, %s, %s' % (vr(va_ldsw), sr(s_t2), vr(l16)))
    A('v_add_u32 %s, %d, %s' % (vr(va_ldsw), LDS_MEM, vr(va_ldsw)))
    A('v_subrev_u32 %s, 0x%x, %s' % (vr(va_qkr), MEMI - QKI, vr(va_memr)))
    A('v_subrev_u32 %s, 0x%x, %s' % (vr(va_vmr), MEMI - VMI, vr(va_memr)))
    A('s_xor_b32 %s, %s, 1' % (sr(s_t2), sr(s_w)))
    A('s_lshl_b32 %s, %s, 12' % (sr(s_t2), sr(s_t2)))
    A('v_add_u32 %s, %s, %s' % (vr(va_rdA), sr(s_t2), vr(l16)))
    A('v_add_u32 %s, %d, %s' % (vr(va_rdA), LDS_MEM, vr(va_rdA)))
    A('s_xor_b32 %s, %s, 1' % (sr(s_t2), sr(s_wh)))
    A('s_lshl_b32 %s, %s, 13' % (sr(s_t2), sr(s_t2)))
    A('v_add_u32 %s, %s, %s' % (vr(va_rdB), sr(s_t2), vr(l16)))
    A('v_add_u32 %s, %d, %s' % (vr(va_rdB), LDS_MEM, vr(va_rdB)))
    vR = tc
    A('v_and_b32 %s, 1, %s' % (vr(ta), vr(v_g)))
    A('v_lshlrev_b32 %s, 2, %s' % (vr(vR), vr(ta)))
    A('v_lshrrev_b32 %s, 1, %s' % (vr(tb), vr(v_g)))
    A('v_lshl_add_u32 %s, %s, 1, %s' % (vr(vR), vr(tb), vr(vR)))
    A('v_lshlrev_b32 %s, 9, %s' % (vr(va_vo), vr(ta)))
    A('v_lshl_add_u32 %s, %s, 4, %s' % (vr(va_vo), vr(v_nu), vr(va_vo)))
    A('v_lshl_add_u32 %s, %s, 2, %s' % (vr(va_vo), vr(tb), vr(va_vo)))
    A('s_lshl_b32 %s, %s, 8' % (sr(s_t2), sr(s_p)))
    A('v_add_u32 %s, %s, %s' % (vr(va_vo), sr(s_t2), vr(va_vo)))
    A('s_lshl_b32 %s, %s, 3' % (sr(s_t2), sr(s_wh)))
    A('s_add_u32 %s, %s, %s' % (sr(s_t2), sr(s_t2), sr(s_ob)))
    A('s_add_u32 %s, %s, 0x%x' % (sr(s_t2), sr(s_t2), VMO))
    A('v_add_u32 %s, %s, %s' % (vr(va_vo), sr(s_t2), vr(va_vo)))
    A('v_lshlrev_b32 %s, 8, %s' % (vr(va_vs), vr(ta)))
    A('v_lshl_add_u32 %s, %s, 4, %s' % (vr(va_vs), vr(v_nu), vr(va_vs)))
    A('v_lshl_add_u32 %s, %s, 2, %s' % (vr(va_vs), vr(tb), vr(va_vs)))
    A('s_lshl_b32 %s, %s, 9' % (sr(s_t2), sr(s_wh)))
    A('v_add_u32 %s, %s, %s' % (vr(va_vs), sr(s_t2), vr(va_vs)))
    A('s_lshl_b32 %s, %s, 3' % (sr(s_t2), sr(s_p)))
    A('s_add_u32 %s, %s, %s' % (sr(s_t2), sr(s_t2), sr(s_ob)))
    A('s_add_u32 %s, %s, 0x%x' % (sr(s_t2), sr(s_t2), VMI))
    A('v_add_u32 %s, %s, %s' % (vr(va_vs), sr(s_t2), vr(va_vs)))
    A('v_bfe_u32 %s, %s, 2, 1' % (vr(ta), vr(v_nu)))
    A('v_lshlrev_b32 %s, 8, %s' % (vr(va_qks), vr(ta)))
    A('v_lshl_add_u32 %s, %s, 4, %s' % (vr(va_qks), vr(vR), vr(va_qks)))
    A('v_lshrrev_b32 %s, 3, %s' % (vr(ta), vr(v_nu)))
    A('v_lshl_add_u32 %s, %s, 3, %s' % (vr(va_qks), vr(ta), vr(va_qks)))
    A('v_and_b32 %s, 3, %s' % (vr(ta), vr(v_nu)))
    A('v_lshl_add_u32 %s, %s, 1, %s' % (vr(va_qks), vr(ta), vr(va_qks)))
    A('s_lshl_b32 %s, %s, 9' % (sr(s_t2), sr(s_p)))
    A('v_add_u32 %s, %s, %s' % (vr(va_qks), sr(s_t2), vr(va_qks)))
    A('s_lshl_b32 %s, %s, 7' % (sr(s_t2), sr(s_wh)))
    A('s_add_u32 %s, %s, %s' % (sr(s_t2), sr(s_t2), sr(s_ob)))
    A('v_add_u32 %s, %s, %s' % (vr(va_qks), sr(s_t2), vr(va_qks)))
    A('v_add_u32 %s, 0x%x, %s' % (vr(va_qko), KMO, vr(va_qks)))
    A('v_add_u32 %s, 0x%x, %s' % (vr(va_qks), QKI, vr(va_qks)))
    A('v_lshlrev_b32 %s, 4, %s' % (vr(va_mems), vr(v_nu)))
    A('v_lshl_add_u32 %s, %s, 2, %s' % (vr(va_mems), vr(v_g), vr(va_mems)))
    A('s_lshl_b32 %s, %s, 8' % (sr(s_t2), sr(s_w)))
    A('s_add_u32 %s, %s, %s' % (sr(s_t2), sr(s_t2), sr(s_ob)))
    A('s_add_u32 %s, %s, 0x%x' % (sr(s_t2), sr(s_t2), MEMI))
    A('v_add_u32 %s, %s, %s' % (vr(va_mems), sr(s_t2), vr(va_mems)))
    A('s_lshl_b32 %s, %s, 19' % (sr(s_t2), sr(s_w)))
    A('s_add_u32 %s, %s, %s' % (sr(s_t2), sr(s_t2), sr(s_ob)))
    A('s_add_u32 %s, %s, 0x%x' % (sr(s_t2), sr(s_t2), QKI))
    A('s_cmp_eq_u32 %s, 3' % sr(s_w))
    A('s_cselect_b32 %s, 0x%x, %s' % (sr(s_t2), WS_BYTES, sr(s_t2)))
    A('v_add_u32 %s, %s, %s' % (vr(va_memz), sr(s_t2), vr(l16)))
    s_h = s_t2
    A('s_lshl_b32 %s, %s, 2' % (sr(s_h), sr(s_x)))
    A('s_add_u32 %s, %s, %s' % (sr(s_h), sr(s_h), sr(s_w)))
    A('s_lshl_b32 %s, %s, 13' % (sr(s_h), sr(s_h)))
    A('v_and_b32 %s, 1, %s' % (vr(ta), vr(v_g)))
    A('v_lshrrev_b32 %s, 1, %s' % (vr(tb), vr(v_g)))
    A('v_lshlrev_b32 %s, 9, %s' % (vr(va_kx), vr(ta)))
    A('v_lshl_add_u32 %s, %s, 10, %s' % (vr(va_kx), vr(tb), vr(va_kx)))
    A('v_add_u32 %s, %s, %s' % (vr(va_kx), sr(s_h), vr(va_kx)))
    A('v_lshl_add_u32 %s, %s, 4, %s' % (vr(va_vx), vr(v_nu), vr(va_kx)))
    A('v_add_u32 %s, 0x%x, %s' % (vr(va_vx), VX, vr(va_vx)))
    A('v_lshrrev_b32 %s, 3, %s' % (vr(ta), vr(v_nu)))
    A('v_lshl_add_u32 %s, %s, 8, %s' % (vr(va_kx), vr(ta), vr(va_kx)))
    A('v_and_b32 %s, 7, %s' % (vr(ta), vr(v_nu)))
    A('v_lshl_add_u32 %s, %s, 4, %s' % (vr(va_kx), vr(ta), vr(va_kx)))
    A('v_add_u32 %s, 0x%x, %s' % (vr(va_kx), KX, vr(va_kx)))
    A('s_lshl_b32 %s, %s, 2' % (sr(s_t2), sr(s_j)))
    A('s_add_u32 %s, %s, %s' % (sr(s_t2), sr(s_t2), sr(s_w)))
    A('s_and_b32 %s, %s, 31' % (sr(s_cnt), sr(s_t2)))
    A('s_lshl_b32 %s, %s, 10' % (sr(s_cnt), sr(s_cnt)))
    A('s_lshr_b32 %s, %s, 5' % (sr(s_t2), sr(s_t2)))
    A('s_lshl_b32 %s, %s, 24' % (sr(s_t2), sr(s_t2)))
    assert VX - KX == 1 << 24
    A('s_add_u32 %s, %s, %s' % (sr(s_t2), sr(s_t2), sr(s_cnt)))
    A('s_lshl_b32 %s, %s, 15' % (sr(s_cnt), sr(s_x)))
    A('s_add_u32 %s, %s, %s' % (sr(s_t2), sr(s_t2), sr(s_cnt)))
    A('s_add_u32 %s, %s, 0x%x' % (sr(s_t2), sr(s_t2), KX + 0x40000))
    A('v_add_u32 %s, %s, %s' % (vr(va_warm), sr(s_t2), vr(l16)))
    A('v_add_u32 %s, %d, %s' % (vr(va_or), LDS_O, vr(l16)))
    A('v_lshrrev_b32 %s, 3, %s' % (vr(ta), vr(v_nu)))
    A('v_mul_u32_u24 %s, %d, %s' % (vr(ta), 1024 - 128, vr(ta)))
    A('s_lshl_b32 %s, %s, 11' % (sr(s_t2), sr(s_w)))
    A('v_add3_u32 %s, %s, %s, %s' % (vr(va_ow), sr(s_t2), vr(va_or), vr(ta)))
    A('s_lshl_b32 %s, %s, 13' % (sr(s_vxl), sr(s_w)))
    A('v_add_u32 %s, %s, %s' % (vr(va_vxr), sr(s_vxl), vr(l16)))
    if stamps:
        A('s_lshl_b32 %s, %s, 4' % (sr(s_stamp), sr(s_ob)))
        A('s_lshl_b32 %s, %s, 12' % (sr(s_t2), sr(s_w)))
        A('s_add_u32 %s, %s, %s' % (sr(s_stamp), sr(s_stamp), sr(s_t2)))
        A('s_add_u32 %s, %s, 0x%x' % (sr(s_stamp), sr(s_stamp), STAMP))
        A('s_add_u32 %s, %s, 65536' % (sr(s_stl), sr(s_t2)))

    vq1, vq2, vr_, vcq = acc1, acc1 + 1, acc1 + 2, acc1 + 3
    A('v_bfe_u32 %s, %s, 2, 2' % (vr(vr_), vr(v_lane)))
    A('v_and_b32 %s, 3, %s' % (vr(vcq), vr(v_lane)))
    A('v_lshl_add_u32 %s, %s, 3, %s' % (vr(vq1), vr(v_g), vr(vr_)))
    A('v_lshlrev_b32 %s, 6, %s' % (vr(vq1), vr(vq1)))
    A('v_lshl_add_u32 %s, %s, 3, %s' % (vr(vq1), vr(vcq), vr(vq1)))
    vq3 = acc2
    A('s_lshl_b32 %s, %s, 16' % (sr(s_t2), sr(s_wh)))
    A('s_lshl_b32 %s, %s, 5' % (sr(s_t3), sr(s_p)))
    A('s_add_u32 %s, %s, %s' % (sr(s_t2), sr(s_t2), sr(s_t3)))
    A('v_add_u32 %s, %s, %s' % (vr(vq3), sr(s_t2), vr(vq1)))
    A('s_lshl_b32 %s, %s, 14' % (sr(s_t2), sr(s_w)))
    A('v_add_u32 %s, %s, %s' % (vr(ta), sr(s_t2), vr(vq3)))
    A('v_xor_b32 %s, 16384, %s' % (vr(tb), vr(ta)))
    A('s_xor_b32 %s, %s, 1' % (sr(s_t2), sr(s_wh)))
    A('s_lshl_b32 %s, %s, 15' % (sr(s_t2), sr(s_t2)))
    A('v_add_u32 %s, %s, %s' % (vr(vq3), sr(s_t2), vr(vq3)))
    A('s_waitcnt vmcnt(0)')
    A('s_barrier')
    for i in range(16):
        base, o = (ta, i) if i < 4 else ((tb, i - 4) if i < 8 else (vq3, i - 8))
        for bh in range(2):
            for q in range(2):
                A('ds_read_b64_tr_b16 %s, %s offset:%d' % (ar(W1 + 8 * i + 4 * bh + 2 * q, 2), vr(base), o * 4096 + bh * 2048 + q * 256))
        A('s_waitcnt lgkmcnt(8)')
    A('s_waitcnt lgkmcnt(0)')
    A('s_barrier')
    A('s_lshl_b32 %s, %s, 14' % (sr(s_t2), sr(s_w)))
    A('v_add_u32 %s, %s, %s' % (vr(ta), sr(s_t2), vr(l16)))
    A('v_add_u32 %s, 65536, %s' % (vr(tb), vr(ta)))
    for i in range(16):
        A('ds_write_b128 %s, %s offset:%d' % (vr(ta), vr(LV + 4 * i, 4), i * 1024))
        A('ds_write_b128 %s, %s offset:%d' % (vr(tb), vr(LO + 4 * i, 4), i * 1024))
        A('s_waitcnt lgkmcnt(8)')
    A('s_waitcnt lgkmcnt(0)')
    A('s_barrier')
    A('s_lshl_b32 %s, %s, 5' % (sr(s_t2), sr(s_p)))
    A('s_lshl_b32 %s, %s, 14' % (sr(s_t3), sr(s_w)))
    A('s_add_u32 %s, %s, %s' % (sr(s_t2), sr(s_t2), sr(s_t3)))
    A('v_add_u32 %s, %s, %s' % (vr(ta), sr(s_t2), vr(vq1)))
    A('v_xor_b32 %s, 16384, %s' % (vr(vq3), vr(ta)))
    for i in range(8):
        base, o = (ta, i) if i < 4 else (vq3, i - 4)
        for bh in range(2):
            for q in range(2):
                A('ds_read_b64_tr_b16 %s, %s offset:%d' % (ar(W2 + 8 * i + 4 * bh + 2 * q, 2), vr(base), o * 4096 + bh * 2048 + q * 256))
        A('s_waitcnt lgkmcnt(8)')
    A('v_and_b32 %s, 1, %s' % (vr(vq2), vr(v_g)))
    A('v_lshl_add_u32 %s, %s, 5, %s' % (vr(vq2), vr(vq2), vr(vr_)))
    A('v_lshrrev_b32 %s, 1, %s' % (vr(tb), vr(v_g)))
    A('v_lshl_add_u32 %s, %s, 2, %s' % (vr(vq2), vr(tb), vr(vq2)))
    A('v_lshlrev_b32 %s, 7, %s' % (vr(vq2), vr(vq2)))
    A('v_lshl_add_u32 %s, %s, 3, %s' % (vr(vq2), vr(vcq), vr(vq2)))
    A('s_lshl_b32 %s, %s, 5' % (sr(s_t2), sr(s_w)))
    A('s_add_u32 %s, %s, 65536' % (sr(s_t2), sr(s_t2)))
    A('v_add_u32 %s, %s, %s' % (vr(vq2), sr(s_t2), vr(vq2)))
    for k in range(8):
        for bh in range(2):
            for q in range(2):
                A('ds_read_b64_tr_b16 %s, %s offset:%d' % (ar(W3 + 8 * k + 4 * bh + 2 * q, 2), vr(vq2), k * 8192 + q * 2048 + bh * 1024))
        A('s_waitcnt lgkmcnt(8)')
    A('s_waitcnt lgkmcnt(0)')
    A('s_barrier')
    s_ta = S.alloc(2, 2)
    s_m0 = S.alloc()
    s_m1 = S.alloc()
    L_nocal = A.uid('nocal')
    A('s_cmp_lg_u32 %s, 0' % sr(s_w))
    A('s_cbranch_scc1 ' + L_nocal)
    A('s_mov_b32 %s, -1' % sr(s_m0))
    A('s_mov_b32 %s, -1' % sr(s_m1))
    A('s_mov_b64 exec, 0xffff')
    for rep in range(2):
        for c in range(2):
            A('s_mov_b32 %s, %d' % (sr(s_t1), 4096 + rep * 2048))
            A('s_memtime %s' % sr(s_ta, 2))
            A('s_waitcnt lgkmcnt(0)')
            A('buffer_store_dwordx4 %s, %s, %s, %s offen sc1' % (vr(v_m1, 4), vr(va_pw2 if c else va_pw), sr(SRD_WS, 4), sr(s_t1)))
            A('s_waitcnt vmcnt(0)')
            A('s_memtime %s' % sr(s_tm, 2))
            A('s_waitcnt lgkmcnt(0)')
            A('s_sub_u32 %s, %s, %s' % (sr(s_t2), sr(s_tm), sr(s_ta)))
            A('s_min_u32 %s, %s, %s' % (sr(s_m1 if c else s_m0), sr(s_m1 if c else s_m0), sr(s_t2)))
    A('s_cmp_lt_u32 %s, %s' % (sr(s_m1), sr(s_m0)))
    A('s_cselect_b32 %s, %d, %d' % (sr(s_t2), 8192 if NEARX else 0, 0 if NEARX else 8192))
    A('v_mov_b32 %s, %s' % (vr(v_t[1]), sr(s_t2)))
    A('v_mov_b32 %s, %d' % (vr(v_t[0]), LDS_ROLE))
    A('ds_write_b32 %s, %s' % (vr(v_t[0]), vr(v_t[1])))
    A('s_waitcnt lgkmcnt(0)')
    A('s_mov_b64 exec, -1')
    A.label(L_nocal)
    A('s_barrier')
    A('v_mov_b32 %s, %d' % (vr(v_t[0]), LDS_ROLE))
    A('ds_read_b32 %s, %s' % (vr(v_t[1]), vr(v_t[0])))
    A('s_waitcnt lgkmcnt(0)')
    A('v_add_u32 %s, %s, %s' % (vr(va_pr), vr(va_pr), vr(v_t[1])))

    def kx_ops():
        o = []
        for eb in range(4):
            so = s_kx if eb < 2 else s_kx2
            o.append(['buffer_load_dwordx4 %s, %s, %s, %s offen offset:%d' % (vr(KXA + 4 * eb, 4), vr(va_kx), sr(SRD_WS, 4), sr(so), (eb & 1) * 2048)])
            o.append(['buffer_load_dwordx4 %s, %s, %s, %s offen offset:%d' % (vr(KXB + 4 * eb, 4), vr(va_kx), sr(SRD_WS, 4), sr(so), (eb & 1) * 2048 + 128)])
        return o

    def vx_ops():
        o = []
        for T in range(8):
            eb = T >> 1
            so = s_kx if eb < 2 else s_kx2
            off = (eb & 1) * 2048 + (T & 1) * 256
            o.append(['s_add_u32 m0, %s, %d' % (sr(s_vxl), 4096 + T * 1024 - off), 's_nop 0',
                      'buffer_load_dwordx4 %s, %s, %s offen offset:%d lds' % (vr(va_vx), sr(SRD_WS, 4), sr(so), off)])
        return o

    def emit(it):
        for t in (it if isinstance(it, list) else [it]):
            A(t)
            if t.startswith('buffer_'):
                nvm[0] += 1

    A('s_mov_b32 %s, 0' % sr(s_step))
    A('s_mov_b32 %s, 0' % sr(s_slot))
    A('s_mov_b32 %s, 0x20000' % sr(s_slot1))
    A('s_mov_b32 %s, 0x40000' % sr(s_slot2))
    A('s_mov_b32 %s, 0' % sr(s_kx))
    A('s_mov_b32 %s, 4096' % sr(s_kx2))
    A('s_mov_b32 %s, 0' % sr(s_out))
    A('s_mov_b32 %s, 0' % sr(s_ps))
    A('s_mov_b32 %s, 4096' % sr(s_ps2))
    pf_all = kx_ops() + vx_ops()
    n_late = PF[6] + PF[7]
    for it in pf_all[:16 - n_late]:
        emit(it)
    L_rdy = A.uid('rdy')
    L_rdy_done = A.uid('rdyd')
    A('v_mov_b32 %s, 32' % vr(v_t[0]))
    A('s_mov_b32 %s, 0' % sr(s_cnt))
    A.label(L_rdy)
    A('buffer_load_dword %s, %s, %s, 0 offen sc1' % (vr(v_t[1]), vr(v_t[0]), sr(SRD_T, 4)))
    A('s_add_u32 %s, %s, 1' % (sr(s_cnt), sr(s_cnt)))
    A('s_cmp_gt_u32 %s, %s' % (sr(s_cnt), sr(s_lim)))
    A('s_cbranch_scc1 ' + L_rdy_done)
    A('s_waitcnt vmcnt(0)')
    A('v_cmp_gt_u32 vcc, 128, %s' % vr(v_t[1]))
    A('s_cbranch_vccnz ' + L_rdy)
    A.label(L_rdy_done)
    A('s_waitcnt vmcnt(0)')

    L_step = name + '_step'
    L_havemem = name + '_havemem'
    A('s_branch ' + L_havemem)

    def chk_piece(base, bits16, t0, t1):
        if bits16:
            A('v_pk_max_u16 %s, %s, %s' % (vr(t0), vr(base), vr(base + 1)))
            A('v_pk_max_u16 %s, %s, %s' % (vr(t1), vr(base + 2), vr(base + 3)))
            A('v_pk_max_u16 %s, %s, %s' % (vr(t0), vr(t0), vr(t1)))
            A('v_pk_max_u16 %s, %s, %s op_sel:[0,1] op_sel_hi:[1,0]' % (vr(t0), vr(t0), vr(t0)))
        else:
            A('v_max3_u32 %s, %s, %s, %s' % (vr(t0), vr(base), vr(base + 1), vr(base + 2)))
            A('v_max_u32 %s, %s, %s' % (vr(t0), vr(t0), vr(base + 3)))
        A('v_cmp_eq_u32 vcc, -1, %s' % vr(t0))

    ool = []

    def poll(n, load, base, bits16, tag, on_ok=None):
        Ld = A.uid('polld' + tag)
        Lf = A.uid('pollf' + tag)
        Lk = [A.uid('poll%s%d' % (tag, k)) for k in range(n)]
        Lc = [A.uid('chk%s%d' % (tag, k)) for k in range(n)]
        Lo = [A.uid('ok%s%d' % (tag, k)) for k in range(n)]
        Lfs = [A.uid('pollf%s%d' % (tag, k)) for k in range(n)]

        def issue(m):
            A.label(Lk[m])
            for k in range(m, n):
                A(load(k))
            A('s_add_u32 %s, %s, 1' % (sr(s_cnt), sr(s_cnt)))
            A('s_cmp_gt_u32 %s, %s' % (sr(s_cnt), sr(s_lim)))
            A('s_cbranch_scc1 ' + Lfs[m])
        A('s_mov_b32 %s, 0' % sr(s_cnt))
        issue(0)
        for m in range(n):
            A.label(Lc[m])
            A('s_waitcnt vmcnt(%d)' % (n - 1 - m if PIPE else 0))
            chk_piece(base + 4 * m, bits16, v_t[0], v_t[1])
            A('s_cbranch_vccnz ' + Lk[m])
            A.label(Lo[m])
            if on_ok:
                on_ok(m)
        A.label(Ld)

        def tail():
            for m in range(1, n):
                issue(m)
                A('s_branch ' + Lc[m])
            for m in range(n):
                A.label(Lfs[m])
                A('s_mov_b32 %s, 0' % sr(s_lim))
                A('s_waitcnt vmcnt(0)')
                A('s_branch ' + Lo[m])
        ool.append(tail)

    def halfadd(acc, d0, d1):
        A('v_permlane32_swap_b32 %s, %s' % (vr(acc), vr(acc + 2)))
        A('v_permlane32_swap_b32 %s, %s' % (vr(acc + 1), vr(acc + 3)))
        A('v_add_f32 %s, %s, %s' % (vr(d0), vr(acc), vr(acc + 2)))
        A('v_add_f32 %s, %s, %s' % (vr(d1), vr(acc + 1), vr(acc + 3)))

    def spread(main, side, n):
        pos = set()
        if n:
            for k in range(n):
                pos.add(int((k + 0.5) * len(main) / n))
        for i, m in enumerate(main):
            emit(m)
            if i in pos:
                emit(side.pop(0))

    def smf(acc, a, w):
        return 'v_smfmac_f32_16x16x64_bf16 %s, %s, %s, %s' % (vr(acc, 4), vr(a, 4), ar(w, 8), vr(v_idx))

    def frag(i):
        return M + 4 * i if i < 4 else F + 4 * (i - 4)

    if NOPF:
        for it in pf_all[16 - n_late:]:
            pass
        pf_all = [['s_nop 0'] for _ in pf_all]
    late = pf_all[16 - n_late:]
    assert PF[7] == 0

    def okA(k):
        A('ds_write_b128 %s, %s offset:%d' % (vr(va_ldsw), vr(M + 4 * k, 4), k * 1024))
        A(smf(acc1, frag(k), W1 + 8 * k))

    def zero_acc():
        for i in range(4):
            A('v_mov_b32 %s, 0' % vr(acc1 + i))
        for i in range(4):
            A('v_mov_b32 %s, 0' % vr(acc2 + i))

    A.label(L_havemem)
    zero_acc()
    for k in range(4):
        okA(k)
    L_B = name + '_B'
    A('s_branch ' + L_B)
    A.label(L_step)
    zero_acc()
    poll(4, lambda k: 'buffer_load_dwordx4 %s, %s, %s, %s offen offset:%d sc1' % (vr(M + 4 * k, 4), vr(va_memr), sr(SRD_WS, 4), sr(s_slot), k * 1024), M, False, 'A', okA)
    A.label(L_B)
    stamp(0)
    A(smf(acc2, frag(0), W2))
    A('s_waitcnt lgkmcnt(0)')
    A('s_barrier')
    for i in range(4, 16):
        base, o = (va_rdA, i - 4) if i < 8 else (va_rdB, i - 8)
        A('ds_read_b128 %s, %s offset:%d' % (vr(frag(i), 4), vr(base), o * 1024))
    mainB = [smf(acc2, frag(i), W2 + 8 * i) for i in range(1, 4)]
    for i in range(4, 16):
        mainB.append(['s_waitcnt lgkmcnt(%d)' % (15 - i), smf(acc1, frag(i), W1 + 8 * i)])
    spread(mainB[:PFB_SPAN], late, PF[6])
    spread(mainB[PFB_SPAN:], late, 0)
    assert not late
    for i in range(4, 6):
        A(smf(acc2, frag(i), W2 + 8 * i))
    halfadd(acc1, v_t[0], v_t[1])
    A('v_cvt_pk_bf16_f32 %s, %s, %s' % (vr(v_pk1), vr(v_t[0]), vr(v_t[1])))
    A('v_pk_min_u16 %s, %s, %s' % (vr(v_pk1), vr(v_pk1), sr(s_fffe)))
    A('buffer_store_short %s, %s, %s, %s offen%s' % (vr(v_pk1), vr(va_qks), sr(SRD_WS, 4), sr(s_slot), ISC))
    A('buffer_store_short_d16_hi %s, %s, %s, %s offen offset:16%s' % (vr(v_pk1), vr(va_qks), sr(SRD_WS, 4), sr(s_slot), ISC))
    for i in range(6, 8):
        A(smf(acc2, frag(i), W2 + 8 * i))
    for T in range(8 - n_late):
        A('ds_read_b128 %s, %s offset:%d' % (vr(VXR + 4 * T, 4), vr(va_vxr), 4096 + T * 1024))
    halfadd(acc2, v_t[0], v_t[1])
    A('v_cvt_pk_bf16_f32 %s, %s, %s' % (vr(v_pk2), vr(v_t[0]), vr(v_t[1])))
    A('v_pk_min_u16 %s, %s, %s' % (vr(v_pk2), vr(v_pk2), sr(s_fffe)))
    A('buffer_store_dword %s, %s, %s, %s offen%s' % (vr(v_pk2), vr(va_vs), sr(SRD_WS, 4), sr(s_slot), ISC))
    copies = ['buffer_store_short %s, %s, %s, %s offen' % (vr(v_pk1), vr(va_qko), sr(SRD_WS, 4), sr(s_out)),
              'buffer_store_short_d16_hi %s, %s, %s, %s offen offset:16' % (vr(v_pk1), vr(va_qko), sr(SRD_WS, 4), sr(s_out)),
              'buffer_store_dword %s, %s, %s, %s offen' % (vr(v_pk2), vr(va_vo), sr(SRD_WS, 4), sr(s_out))]
    stamp(1)
    L_last = name + '_last'
    A('s_cmp_ge_u32 %s, %d' % (sr(s_step), nsteps - 1))
    A('s_cbranch_scc1 ' + L_last)
    A('s_add_u32 %s, %s, 0x40000' % (sr(s_kx), sr(s_kx)))
    A('s_add_u32 %s, %s, 0x40000' % (sr(s_kx2), sr(s_kx2)))
    A('s_waitcnt lgkmcnt(0)')

    def okC(t):
        A('v_mfma_f32_16x16x32_bf16 %s, %s, %s, %s' % (vr(SA, 4), vr(KXA + 4 * t, 4), vr(QK + 4 * t, 4), vr(v_maskx, 4) if t == 0 else vr(SA, 4)))
        A('v_mfma_f32_16x16x32_bf16 %s, %s, %s, %s' % (vr(SB, 4), vr(KXB + 4 * t, 4), vr(QK + 4 * t, 4), vr(v_maskx, 4) if t == 0 else vr(SB, 4)))
        A('v_mfma_f32_16x16x32_bf16 %s, %s, %s, %s' % (vr(SM, 4), vr(QK + 4 * t, 4), vr(QK + 4 * t, 4), vr(v_mask, 4) if t == 0 else vr(SM, 4)))
    poll(4, lambda k: 'buffer_load_dwordx4 %s, %s, %s, %s offen offset:%d sc1' % (vr(QK + 4 * k, 4), vr(va_qkr), sr(SRD_WS, 4), sr(s_slot), k * 1024), QK, True, 'C', okC)
    stamp(2)

    def vload(k):
        return 'buffer_load_dwordx4 %s, %s, %s, %s offen offset:%d sc1' % (vr(VMR + 4 * k, 4), vr(va_vmr), sr(SRD_WS, 4), sr(s_slot), k * 1024)
    for k in range(4):
        A(vload(k))
    for T in range(8 - n_late, 8):
        A('ds_read_b128 %s, %s offset:%d' % (vr(VXR + 4 * T, 4), vr(va_vxr), 4096 + T * 1024))
    nvm[0] = 0
    side = list(pf_all[:16 - n_late])
    s = [SA + i for i in range(12)]
    sm = []
    sm.append('v_max3_f32 %s, %s, %s, %s' % (vr(v_mx), vr(s[0]), vr(s[1]), vr(s[2])))
    sm.append('v_max3_f32 %s, %s, %s, %s' % (vr(v_mx2), vr(s[3]), vr(s[4]), vr(v_bias)))
    sm.append('v_max3_f32 %s, %s, %s, %s' % (vr(v_mx), vr(v_mx), vr(s[5]), vr(s[6])))
    sm.append('v_max3_f32 %s, %s, %s, %s' % (vr(v_mx2), vr(v_mx2), vr(s[7]), vr(s[8])))
    sm.append('v_max3_f32 %s, %s, %s, %s' % (vr(v_mx), vr(v_mx), vr(s[9]), vr(s[10])))
    sm.append('v_max3_f32 %s, %s, %s, %s' % (vr(v_mx), vr(v_mx), vr(v_mx2), vr(s[11])))

    def xlane(op, a, b):
        o = []
        for sw in ('v_permlane32_swap_b32', 'v_permlane16_swap_b32'):
            o.append('v_mov_b32 %s, %s' % (vr(b), vr(a)))
            o.append('%s %s, %s' % (sw, vr(a), vr(b)))
            o.append('%s %s, %s, %s' % (op, vr(a), vr(a), vr(b)))
        return o
    sm += xlane('v_max_f32', v_mx, v_mx2)
    sm.append('v_mul_f32 %s, %s, %s' % (vr(v_mx), sr(s_c), vr(v_mx)))
    for i in range(8):
        sm.append('v_fma_f32 %s, %s, %s, -%s' % (vr(s[i]), vr(s[i]), sr(s_c), vr(v_mx)))
    for i in range(8):
        sm.append('v_exp_f32 %s, %s' % (vr(s[i]), vr(s[i])))
        if i >= 2 and i % 2 == 0:
            sm.append('v_cvt_pk_bf16_f32 %s, %s, %s' % (vr(PX + i // 2 - 1), vr(s[i - 2]), vr(s[i - 1])))
    sm.append('v_fma_f32 %s, %s, %s, -%s' % (vr(s[8]), vr(s[8]), sr(s_c), vr(v_mx)))
    sm.append('v_cvt_pk_bf16_f32 %s, %s, %s' % (vr(PX + 3), vr(s[6]), vr(s[7])))
    for i in range(9, 12):
        sm.append('v_fma_f32 %s, %s, %s, -%s' % (vr(s[i]), vr(s[i]), sr(s_c), vr(v_mx)))
    spread(sm, side, PF[0])
    A('s_waitcnt lgkmcnt(0)')
    stamp(3)

    def dpp8(d, srcr):
        return 'v_mov_b32_dpp %s, %s row_shr:8 row_mask:0xf bank_mask:0xf bound_ctrl:0' % (vr(d), vr(srcr))
    sh = []
    for i in range(4):
        sh.append(dpp8(PXH + i, PX + i))
    for i in range(8, 12):
        sh.append('v_exp_f32 %s, %s' % (vr(s[i]), vr(s[i])))
    for i in range(4):
        sh.append('v_cvt_pk_bf16_f32 %s, %s, %s' % (vr(PM + i), vr(s[8 + 2 * (i & 1)]), vr(s[9 + 2 * (i & 1)])))
    t = v_t
    chk = ['s_waitcnt vmcnt(VMCNT)',
           'v_max3_u32 %s, %s, %s, %s' % (vr(t[0]), vr(VMR), vr(VMR + 1), vr(VMR + 2)),
           'v_max3_u32 %s, %s, %s, %s' % (vr(t[1]), vr(VMR + 3), vr(VMR + 4), vr(VMR + 5))]
    for i in range(6, 16, 2):
        chk.append('v_max3_u32 %s, %s, %s, %s' % (vr(t[(i >> 1) & 1]), vr(t[(i >> 1) & 1]), vr(VMR + i), vr(VMR + i + 1)))
    chk.append('v_max_u32 %s, %s, %s' % (vr(t[0]), vr(t[0]), vr(t[1])))
    sh += chk[:3]
    sh.append('v_permlane32_swap_b32 %s, %s' % (vr(PM + 2), vr(PM)))
    sh.append('v_permlane32_swap_b32 %s, %s' % (vr(PM + 3), vr(PM + 1)))
    sh += chk[3:5]
    sh.append(dpp8(PMH, PM))
    sh.append(dpp8(PMH + 1, PM + 1))
    sh += chk[5:]
    mf = ['v_mfma_f32_16x16x32_bf16 %s, %s, %s, 0' % (vr(LS, 4), vr(v_ones, 4), vr(PX, 4))]
    for a in range(4):
        mf.append('v_mfma_f32_16x16x32_bf16 %s, %s, %s, 0' % (vr(O + 4 * a, 4), vr(VXR + 4 * a, 4), vr(PX, 4)))
    for a in range(4):
        mf.append('v_mfma_f32_16x16x32_bf16 %s, %s, %s, %s' % (vr(O + 4 * a, 4), vr(VXR + 4 * (a + 4), 4), vr(PXH, 4), vr(O + 4 * a, 4)))
    per = [2, 2, 2, 2, 3, 3, 3, 3, 3]
    npf = PF[1]
    for i, m in enumerate(mf):
        A(m)
        for _ in range(per[i]):
            if sh:
                x = sh.pop(0)
                if 'VMCNT' in x:
                    A(x.replace('VMCNT', str(nvm[0])))
                    x = sh.pop(0)
                A(x)
        if npf and i in (1, 3, 6, 8):
            emit(side.pop(0))
            npf -= 1
    for x in sh:
        A(x)
    Lv_ok = A.uid('vok')
    A('v_cmp_eq_u32 vcc, -1, %s' % vr(t[0]))
    A('s_cbranch_vccz ' + Lv_ok)
    poll(4, vload, VMR, False, 'V')
    A.label(Lv_ok)
    A('v_mfma_f32_16x16x16_bf16 %s, %s, %s, %s' % (vr(LS, 4), vr(v_half, 2), vr(PM, 2), vr(LS, 4)))
    pm = []
    for a in range(4):
        pm.append('v_mfma_f32_16x16x16_bf16 %s, %s, %s, %s' % (vr(O + 4 * a, 4), vr(VMR + 2 * a, 2), vr(PM, 2), vr(O + 4 * a, 4)))
        pm.append('v_mfma_f32_16x16x16_bf16 %s, %s, %s, %s' % (vr(O + 4 * a, 4), vr(VMR + 2 * (a + 4), 2), vr(PMH, 2), vr(O + 4 * a, 4)))

    def nrm(a):
        g = []
        for r in range(4):
            g.append('v_mul_f32 %s, %s, %s' % (vr(O + 4 * a + r), vr(O + 4 * a + r), vr(v_l)))
        g.append('v_cvt_pk_bf16_f32 %s, %s, %s' % (vr(XY + a), vr(O + 4 * a), vr(O + 4 * a + 1)))
        g.append('v_cvt_pk_bf16_f32 %s, %s, %s' % (vr(XY + 4 + a), vr(O + 4 * a + 2), vr(O + 4 * a + 3)))
        return g
    for i in range(4):
        A(pm[i])
        A('v_mov_b32 %s, 0' % vr(acc1 + i))
    for _ in range(PF[2]):
        emit(side.pop(0))
    A('v_rcp_f32 %s, %s' % (vr(v_l), vr(LS)))
    A(pm[4])
    A(pm[5])
    A('v_mov_b32_dpp %s, %s row_shr:8 row_mask:0xf bank_mask:0xc' % (vr(v_l), vr(v_l)))
    A(pm[6])
    n0 = nrm(0)
    for x in n0[:2]:
        A(x)
    A(pm[7])
    for x in n0[2:]:
        A(x)
    npf = PF[3]
    for a in range(1, 4):
        if npf:
            emit(side.pop(0))
            npf -= 1
        for x in nrm(a):
            A(x)
    assert npf == 0
    A('ds_write_b128 %s, %s' % (vr(va_ow), vr(XY, 4)))
    A('ds_write_b128 %s, %s offset:128' % (vr(va_ow), vr(XY + 4, 4)))
    A('s_waitcnt lgkmcnt(0)')
    stamp(4)
    A('s_barrier')
    for k in range(8):
        A('ds_read_b128 %s, %s offset:%d' % (vr(G + 4 * k, 4), vr(va_or), k * 1024))
    for c in copies:
        if not NOCOPY:
            A(c)
    A('buffer_store_dwordx4 %s, %s, %s, %s offen%s' % (vr(v_m1, 4), vr(va_memz), sr(SRD_WS, 4), sr(s_slot2), ISC))
    A('s_mov_b64 exec, 0xffff')
    A('buffer_store_dwordx4 %s, %s, %s, %s offen sc1' % (vr(v_m1, 4), vr(va_pw), sr(SRD_WS, 4), sr(s_ps2)))
    A('buffer_store_dwordx4 %s, %s, %s, %s offen sc1' % (vr(v_m1, 4), vr(va_pw2), sr(SRD_WS, 4), sr(s_ps2)))
    A('s_mov_b64 exec, -1')
    if WARM:
        A('buffer_load_dword %s, %s, %s, %s offen' % (vr(v_junk), vr(va_warm), sr(SRD_WS, 4), sr(s_kx)))
    for k in range(8):
        A('s_waitcnt lgkmcnt(%d)' % (7 - k))
        A(smf(acc1, G + 4 * k, W3 + 8 * k))
    halfadd(acc1, v_t[0], v_t[1])
    A('v_cvt_pk_bf16_f32 %s, %s, %s' % (vr(acc2), vr(v_t[0]), vr(v_t[1])))
    A('v_pk_min_u16 %s, %s, %s' % (vr(acc2), vr(acc2), sr(s_fffe)))
    A('v_permlane16_swap_b32 %s, %s' % (vr(acc2), vr(acc2 + 1)))
    A('v_permlane32_swap_b32 %s, %s' % (vr(acc2), vr(acc2 + 2)))
    A('v_permlane32_swap_b32 %s, %s' % (vr(acc2 + 1), vr(acc2 + 3)))
    A('s_mov_b64 exec, 0xffff')
    A('buffer_store_dwordx4 %s, %s, %s, %s offen sc1' % (vr(acc2, 4), vr(va_pw), sr(SRD_WS, 4), sr(s_ps)))
    A('buffer_store_dwordx4 %s, %s, %s, %s offen sc1' % (vr(acc2, 4), vr(va_pw2), sr(SRD_WS, 4), sr(s_ps)))
    A('s_mov_b64 exec, -1')
    stamp(5)
    for _ in range(PF[4]):
        emit(side.pop(0))
    if DELAY_E:
        A('s_sleep %d' % DELAY_E)

    def okE(k):
        A('v_mfma_f32_16x16x32_bf16 %s, %s, %s, %s' % (vr(LS, 4), vr(PR + 4 * k, 4), vr(v_sel, 4), '0' if k == 0 else vr(LS, 4)))
    ldE = lambda k: 'buffer_load_dwordx4 %s, %s, %s, %s offen offset:%d sc1' % (vr(PR + 4 * k, 4), vr(va_pr), sr(SRD_WS, 4), sr(s_ps), k * 1024)
    if E_DEPTH == 0:
        poll(2, ldE, PR, False, 'E', okE)
    else:
        Lp, Lf, Ld = A.uid('pE'), A.uid('pEf'), A.uid('pEd')
        A('s_mov_b32 %s, 0' % sr(s_cnt))
        for r in range(E_DEPTH - 1):
            A(ldE(0))
            A(ldE(1))
            A('s_sleep %d' % E_INT)
        A.label(Lp)
        A(ldE(0))
        A(ldE(1))
        A('s_add_u32 %s, %s, 1' % (sr(s_cnt), sr(s_cnt)))
        A('s_cmp_gt_u32 %s, %s' % (sr(s_cnt), sr(s_lim)))
        A('s_cbranch_scc1 ' + Lf)
        if E_INT2:
            A('s_sleep %d' % E_INT2)
        A('s_waitcnt vmcnt(%d)' % (2 * (E_DEPTH - 1)))
        A('v_max3_u32 %s, %s, %s, %s' % (vr(v_t[0]), vr(PR), vr(PR + 1), vr(PR + 2)))
        A('v_max3_u32 %s, %s, %s, %s' % (vr(v_t[1]), vr(PR + 3), vr(PR + 4), vr(PR + 5)))
        A('v_max3_u32 %s, %s, %s, %s' % (vr(v_t[0]), vr(v_t[0]), vr(PR + 6), vr(PR + 7)))
        A('v_max_u32 %s, %s, %s' % (vr(v_t[0]), vr(v_t[0]), vr(v_t[1])))
        A('v_cmp_eq_u32 vcc, -1, %s' % vr(v_t[0]))
        A('s_cbranch_vccnz ' + Lp)
        A.label(Ld)
        okE(0)
        okE(1)

        def tailE():
            A.label(Lf)
            A('s_mov_b32 %s, 0' % sr(s_lim))
            A('s_waitcnt vmcnt(0)')
            A('s_branch ' + Ld)
        ool.append(tailE)
    stamp(6)
    A('s_add_u32 %s, %s, 1' % (sr(s_step), sr(s_step)))
    A('s_mov_b32 %s, %s' % (sr(s_slot), sr(s_slot1)))
    A('s_mov_b32 %s, %s' % (sr(s_slot1), sr(s_slot2)))
    A('s_add_u32 %s, %s, 0x20000' % (sr(s_slot2), sr(s_slot2)))
    A('s_and_b32 %s, %s, 0x7ffff' % (sr(s_slot2), sr(s_slot2)))
    A('s_add_u32 %s, %s, 0x20000' % (sr(s_out), sr(s_out)))
    A('s_lshr_b32 %s, %s, 6' % (sr(s_ps), sr(s_slot)))
    A('s_lshr_b32 %s, %s, 6' % (sr(s_ps2), sr(s_slot2)))
    if stamps:
        A('s_add_u32 %s, %s, 64' % (sr(s_stl), sr(s_stl)))
    A('v_cvt_pk_bf16_f32 %s, %s, %s' % (vr(v_t[2]), vr(LS), vr(LS + 1)))
    A('v_cvt_pk_bf16_f32 %s, %s, %s' % (vr(v_t[3]), vr(LS + 2), vr(LS + 3)))
    A('v_cndmask_b32 %s, %s, %s, %s' % (vr(v_t[2]), vr(v_t[2]), vr(v_t[3]), sr(s_hf, 2)))
    A('v_pk_min_u16 %s, %s, %s' % (vr(v_t[2]), vr(v_t[2]), sr(s_fffe)))
    A('buffer_store_dword %s, %s, %s, %s offen%s' % (vr(v_t[2]), vr(va_mems), sr(SRD_WS, 4), sr(s_slot), ISC))
    for _ in range(PF[5]):
        emit(side.pop(0))
    assert not side, len(side)
    A('s_branch ' + L_step)
    for f in ool:
        f()
    A.label(L_last)
    for c in copies:
        A(c)
    if stamps:
        A('s_waitcnt lgkmcnt(0)')
        A('v_lshlrev_b32 %s, 4, %s' % (vr(v_t[0]), vr(v_lane)))
        A('s_lshl_b32 %s, %s, 12' % (sr(s_t2), sr(s_w)))
        A('s_add_u32 %s, %s, 65536' % (sr(s_t2), sr(s_t2)))
        A('v_add_u32 %s, %s, %s' % (vr(v_t[1]), sr(s_t2), vr(v_t[0])))
        for k in range(4):
            A('ds_read_b128 %s, %s offset:%d' % (vr(F + 4 * k, 4), vr(v_t[1]), k * 1024))
        A('s_waitcnt lgkmcnt(0)')
        for k in range(4):
            A('buffer_store_dwordx4 %s, %s, %s, %s offen offset:%d' % (vr(F + 4 * k, 4), vr(v_t[0]), sr(SRD_WS, 4), sr(s_stamp), k * 1024))
    A.label(L_exit)
    A('s_endpgm')
    return dict(vgpr=512, accum=256, sgpr=S.hi)
```

```python
from asmlib import *
from layout import *


class Gemm:
    def __init__(self, A, S, V, mb, nb):
        self.A, self.mb, self.nb = A, mb, nb
        self.TM, self.TN = 64 * mb, 64 * nb
        self.nX, self.nW = self.TM // 32, self.TN // 32
        self.XB = self.TM * 128
        self.WB = self.TN * 128
        self.STG = self.XB + self.WB
        self.wrow = self.TN * 2
        self.SRD_X = S.alloc(4, 4)
        self.SRD_W = S.alloc(4, 4)
        self.s_xo = S.alloc()
        self.s_wo = S.alloc()
        self.s_xs = S.alloc()
        self.s_ws = S.alloc()
        self.s_n = S.alloc()
        self.s_lx = S.alloc()
        self.s_lw = S.alloc()
        self.vx = [V.alloc() for _ in range(self.nX)]
        self.vw = [V.alloc() for _ in range(self.nW)]
        self.rx = [[V.alloc() for _ in range(4)] for _ in range(2)]
        self.rw = [[[V.alloc() for _ in range(2)] for _ in range(nb)] for _ in range(2)]
        self.FX = [V.alloc(4 * mb, 4) for _ in range(2)]
        self.FW = [V.alloc(4 * nb, 4) for _ in range(2)]
        self.t = [V.alloc() for _ in range(6)]
        self.E = V.alloc(24, 4)

    def acc(self, m, n):
        return 16 * (m * self.nb + n)

    def setup(self, v_lane, s_w, s_tmp, xmode, xpitch, wpitch):
        A, t = self.A, self.t
        nX, nW = self.nX, self.nW
        s0, s1 = s_tmp
        A('s_mul_i32 %s, %s, %d' % (sr(self.s_lx), sr(s_w), nX * 1024))
        A('s_mul_i32 %s, %s, %d' % (sr(self.s_lw), sr(s_w), nW * 1024))
        A('s_add_u32 %s, %s, %d' % (sr(self.s_lw), sr(self.s_lw), self.XB))
        if xmode == 'nat':
            A('v_lshrrev_b32 %s, 3, %s' % (vr(t[0]), vr(v_lane)))
            A('s_mul_i32 %s, %s, %d' % (sr(s0), sr(s_w), nX * 8))
            A('v_add_u32 %s, %s, %s' % (vr(t[0]), sr(s0), vr(t[0])))
            A('v_and_b32 %s, 7, %s' % (vr(t[1]), vr(v_lane)))
            A('s_mov_b32 %s, %d' % (sr(s1), xpitch))
            for i in range(nX):
                A('v_add_u32 %s, %d, %s' % (vr(t[2]), 8 * i, vr(t[0])))
                A('v_bfe_u32 %s, %s, 1, 3' % (vr(t[3]), vr(t[2])))
                A('v_xor_b32 %s, %s, %s' % (vr(t[3]), vr(t[3]), vr(t[1])))
                A('v_mul_lo_u32 %s, %s, %s' % (vr(t[2]), vr(t[2]), sr(s1)))
                A('v_lshl_add_u32 %s, %s, 4, %s' % (vr(self.vx[i]), vr(t[3]), vr(t[2])))
        else:
            A('v_lshlrev_b32 %s, 4, %s' % (vr(t[0]), vr(v_lane)))
            for i in range(nX):
                A('s_mul_i32 %s, %s, %d' % (sr(s0), sr(s_w), nX))
                A('s_add_u32 %s, %s, %d' % (sr(s0), sr(s0), i))
                A('s_lshr_b32 %s, %s, 2' % (sr(s1), sr(s0)))
                A('s_mul_i32 %s, %s, %d' % (sr(s1), sr(s1), xpitch))
                A('s_and_b32 %s, %s, 3' % (sr(s0), sr(s0)))
                A('s_lshl_b32 %s, %s, 10' % (sr(s0), sr(s0)))
                A('s_add_u32 %s, %s, %s' % (sr(s0), sr(s0), sr(s1)))
                A('v_add_u32 %s, %s, %s' % (vr(self.vx[i]), sr(s0), vr(t[0])))
        upr = self.wrow // 16
        rpi = 64 // upr
        sh = upr.bit_length() - 1
        A('v_lshrrev_b32 %s, %d, %s' % (vr(t[0]), sh, vr(v_lane)))
        A('s_mul_i32 %s, %s, %d' % (sr(s0), sr(s_w), nW * rpi))
        A('v_add_u32 %s, %s, %s' % (vr(t[0]), sr(s0), vr(t[0])))
        A('v_and_b32 %s, %d, %s' % (vr(t[1]), upr - 1, vr(v_lane)))
        A('s_mov_b32 %s, %d' % (sr(s1), wpitch))
        for i in range(nW):
            A('v_add_u32 %s, %d, %s' % (vr(t[2]), rpi * i, vr(t[0])))
            A('v_and_b32 %s, 3, %s' % (vr(t[3]), vr(t[2])))
            A('v_lshlrev_b32 %s, 2, %s' % (vr(t[3]), vr(t[3])))
            A('v_xor_b32 %s, %s, %s' % (vr(t[3]), vr(t[3]), vr(t[1])))
            A('v_mul_lo_u32 %s, %s, %s' % (vr(t[2]), vr(t[2]), sr(s1)))
            A('v_lshl_add_u32 %s, %s, 4, %s' % (vr(self.vw[i]), vr(t[3]), vr(t[2])))
        A('s_lshr_b32 %s, %s, 1' % (sr(s0), sr(s_w)))
        A('s_mul_i32 %s, %s, %d' % (sr(s0), sr(s0), self.mb * 4096))
        if xmode == 'nat':
            A('v_and_b32 %s, 31, %s' % (vr(t[0]), vr(v_lane)))
            A('v_lshrrev_b32 %s, 5, %s' % (vr(t[1]), vr(v_lane)))
            A('v_bfe_u32 %s, %s, 1, 3' % (vr(t[2]), vr(t[0])))
            A('v_lshlrev_b32 %s, 7, %s' % (vr(t[0]), vr(t[0])))
            A('v_add_u32 %s, %s, %s' % (vr(t[0]), sr(s0), vr(t[0])))
            for ks in range(4):
                A('v_add_u32 %s, %d, %s' % (vr(t[3]), 2 * ks, vr(t[1])))
                A('v_xor_b32 %s, %s, %s' % (vr(t[3]), vr(t[3]), vr(t[2])))
                A('v_lshl_add_u32 %s, %s, 4, %s' % (vr(self.rx[0][ks]), vr(t[3]), vr(t[0])))
                A('v_add_u32 %s, %d, %s' % (vr(self.rx[1][ks]), self.STG, vr(self.rx[0][ks])))
        else:
            A('v_lshlrev_b32 %s, 4, %s' % (vr(t[0]), vr(v_lane)))
            A('v_add_u32 %s, %s, %s' % (vr(t[0]), sr(s0), vr(t[0])))
            for ks in range(4):
                A('v_add_u32 %s, %d, %s' % (vr(self.rx[0][ks]), ks * 1024, vr(t[0])))
                A('v_add_u32 %s, %d, %s' % (vr(self.rx[1][ks]), ks * 1024 + self.STG, vr(t[0])))
        hmul, qmul = (8, 4) if xmode == 'nat' else (4, 8)
        A('v_bfe_u32 %s, %s, 2, 2' % (vr(t[0]), vr(v_lane)))
        A('v_lshrrev_b32 %s, 5, %s' % (vr(t[1]), vr(v_lane)))
        A('v_mul_u32_u24 %s, %d, %s' % (vr(t[1]), hmul, vr(t[1])))
        A('v_add_u32 %s, %s, %s' % (vr(t[1]), vr(t[1]), vr(t[0])))
        A('v_mul_u32_u24 %s, %d, %s' % (vr(t[1]), self.wrow, vr(t[1])))
        A('v_bfe_u32 %s, %s, 4, 1' % (vr(t[2]), vr(v_lane)))
        A('v_lshl_add_u32 %s, %s, 5, %s' % (vr(t[1]), vr(t[2]), vr(t[1])))
        A('v_and_b32 %s, 3, %s' % (vr(t[2]), vr(v_lane)))
        A('v_lshl_add_u32 %s, %s, 3, %s' % (vr(t[1]), vr(t[2]), vr(t[1])))
        A('s_and_b32 %s, %s, 1' % (sr(s0), sr(s_w)))
        A('s_mul_i32 %s, %s, %d' % (sr(s0), sr(s0), self.nb))
        for i in range(self.nb):
            A('s_add_u32 %s, %s, %d' % (sr(s1), sr(s0), i))
            A('v_xor_b32 %s, %s, %s' % (vr(t[2]), sr(s1), vr(t[0])))
            A('v_lshl_add_u32 %s, %s, 6, %s' % (vr(t[2]), vr(t[2]), vr(t[1])))
            for q in range(2):
                for st in range(2):
                    A('v_add_u32 %s, %d, %s' % (vr(self.rw[st][i][q]), self.XB + st * self.STG + q * qmul * self.wrow, vr(t[2])))

    def dma_ops(self, st):
        o = []
        for i in range(self.nX):
            o.append(['s_add_u32 m0, %s, %d' % (sr(self.s_lx), st * self.STG + i * 1024), 's_nop 0',
                      'buffer_load_dwordx4 %s, %s, %s offen lds' % (vr(self.vx[i]), sr(self.SRD_X, 4), sr(self.s_xo))])
        for i in range(self.nW):
            o.append(['s_add_u32 m0, %s, %d' % (sr(self.s_lw), st * self.STG + i * 1024), 's_nop 0',
                      'buffer_load_dwordx4 %s, %s, %s offen lds' % (vr(self.vw[i]), sr(self.SRD_W, 4), sr(self.s_wo))])
        return o

    def adv(self):
        return ['s_add_u32 %s, %s, %s' % (sr(self.s_xo), sr(self.s_xo), sr(self.s_xs)),
                's_add_u32 %s, %s, %s' % (sr(self.s_wo), sr(self.s_wo), sr(self.s_ws))]

    def read_ops(self, st, ks, fs):
        o = []
        xs = ['ds_read_b128 %s, %s offset:%d' % (vr(self.FX[fs] + 4 * m, 4), vr(self.rx[st][ks]), m * 4096) for m in range(self.mb)]
        wsr = []
        for i in range(self.nb):
            for q in range(2):
                wsr.append('ds_read_b64_tr_b16 %s, %s offset:%d' % (vr(self.FW[fs] + 4 * i + 2 * q, 2), vr(self.rw[st][i][q]), ks * 16 * self.wrow))
        while xs or wsr:
            if xs:
                o.append(xs.pop(0))
            for _ in range(2):
                if wsr:
                    o.append(wsr.pop(0))
        return o

    def mfmas(self, fs, orient, first):
        o = []
        for m in range(self.mb):
            for n in range(self.nb):
                a = ar(self.acc(m, n), 16)
                x, w = vr(self.FX[fs] + 4 * m, 4), vr(self.FW[fs] + 4 * n, 4)
                p, q = (w, x) if orient == 'T' else (x, w)
                o.append('v_mfma_f32_32x32x16_bf16 %s, %s, %s, %s' % (a, p, q, '0' if first else a))
        return o

    def _weave(self, mf, side):
        A = self.A
        n = len(mf)
        k = len(side)
        per = [0] * n
        slots = max(1, n - 2)
        for j in range(k):
            per[min(n - 1, j * slots // max(k, 1))] += 1
        idx = 0
        for i, m in enumerate(mf):
            A(m)
            for _ in range(per[i]):
                it = side[idx]
                idx += 1
                for t in (it if isinstance(it, list) else [it]):
                    A(t)

    def body(self, st, orient, dma, first=False, last=False):
        A = self.A
        pend = self.pending
        self.pending = []
        for ks in range(4):
            fs = ks & 1
            A('s_waitcnt lgkmcnt(0)')
            if ks == 3 and not last:
                A('s_waitcnt vmcnt(0)')
                A('s_barrier')
            side = []
            if ks < 3:
                side += self.read_ops(st, ks + 1, fs ^ 1)
            elif not last:
                side += self.read_ops(st ^ 1, 0, fs ^ 1)
            if ks == 0:
                side = self._mix(side, pend)
            if ks == 3 and dma:
                d = self.dma_ops(st)
                h = len(d) // 2
                side = self._mix(side, d[:h])
                self.pending = d[h:] + [self.adv()]
            self._weave(self.mfmas(fs, orient, first and ks == 0), side)

    @staticmethod
    def _mix(a, b):
        o = []
        a, b = list(a), list(b)
        while a or b:
            for _ in range(2):
                if a:
                    o.append(a.pop(0))
            if b:
                o.append(b.pop(0))
        return o

    def prologue(self):
        A = self.A
        for st in range(2):
            for g in self.dma_ops(st):
                for t in g:
                    A(t)
            for t in self.adv():
                A(t)
        A('s_waitcnt vmcnt(%d)' % (self.nX + self.nW))
        A('s_barrier')
        for t in self.read_ops(0, 0, 0):
            A(t)
        self.pending = []

    def mainloop(self, orient, tag):
        A = self.A
        L = A.uid('gl' + tag)
        Lx = A.uid('gx' + tag)
        self.body(0, orient, True, first=True)
        self.body(1, orient, True)
        p0 = self.pending
        A('s_sub_u32 %s, %s, 1' % (sr(self.s_n), sr(self.s_n)))
        A('s_cmp_eq_u32 %s, 0' % sr(self.s_n))
        A('s_cbranch_scc1 ' + Lx)
        A.label(L)
        self.body(0, orient, True)
        self.body(1, orient, True)
        A('s_sub_u32 %s, %s, 1' % (sr(self.s_n), sr(self.s_n)))
        A('s_cmp_lg_u32 %s, 0' % sr(self.s_n))
        A('s_cbranch_scc1 ' + L)
        A.label(Lx)
        self.body(0, orient, False)
        self.body(1, orient, False, last=True)

    def pack_tile(self, m, n, dst):
        A = self.A
        E = self.E
        a = self.acc(m, n)
        for r in range(16):
            A('v_accvgpr_read_b32 %s, %s' % (vr(E + r), ar(a + r)))
        for r in range(8):
            A('v_cvt_pk_bf16_f32 %s, %s, %s' % (vr(dst + r), vr(E + 2 * r), vr(E + 2 * r + 1)))

    def epi_blk(self, SRD, v_l16, s_base, s_tbstride, s_tmp, sc=''):
        A = self.A
        bufs = [self.FX[0], self.FW[0]] if self.mb >= 2 and self.nb >= 2 else [self.E + 16, self.E + 16]
        k = 0
        A('s_mov_b32 %s, %s' % (sr(s_tmp), sr(s_base)))
        for m in range(self.mb):
            for n in range(self.nb):
                d = bufs[k & 1]
                k += 1
                self.pack_tile(m, n, d)
                if n and n % 2 == 0:
                    A('s_add_u32 %s, %s, 4096' % (sr(s_tmp), sr(s_tmp)))
                for j in range(2):
                    A('buffer_store_dwordx4 %s, %s, %s, %s offen offset:%d%s' % (vr(d + 4 * j, 4), vr(v_l16), sr(SRD, 4), sr(s_tmp), (n & 1) * 2048 + j * 1024, sc))
            if m + 1 < self.mb:
                A('s_add_u32 %s, %s, %s' % (sr(s_base), sr(s_base), sr(s_tbstride)))
                A('s_mov_b32 %s, %s' % (sr(s_tmp), sr(s_base)))

    def epi_out(self, SRD, v_off, s_base):
        A = self.A
        bufs = [self.FX[0], self.FW[0]] if self.mb >= 2 and self.nb >= 2 else [self.E + 16, self.E + 16]
        k = 0
        for m in range(self.mb):
            for n in range(self.nb):
                d = bufs[k & 1]
                k += 1
                self.pack_tile(m, n, d)
                for p in range(2):
                    A('v_permlane32_swap_b32 %s, %s' % (vr(d + 4 * p), vr(d + 4 * p + 2)))
                    A('v_permlane32_swap_b32 %s, %s' % (vr(d + 4 * p + 1), vr(d + 4 * p + 3)))
                for p in range(2):
                    A('buffer_store_dwordx4 %s, %s, %s, %s offen offset:%d' % (vr(d + 4 * p, 4), vr(v_off), sr(SRD, 4), sr(s_base), n * 64 + p * 32))
            if m + 1 < self.mb:
                A('s_add_u32 %s, %s, %d' % (sr(s_base), sr(s_base), 32 * 4096))
```

```python
from asmlib import *
from layout import *
from gemm import Gemm
import struct


def f32bits(x):
    return struct.unpack('<I', struct.pack('<f', x))[0]


def mk_srd(A, dst, ptr, nbytes):
    A('s_mov_b32 %s, %s' % (sr(dst), sr(ptr)))
    A('s_and_b32 %s, %s, 0xffff' % (sr(dst + 1), sr(ptr + 1)))
    A('s_mov_b32 %s, 0x%x' % (sr(dst + 2), nbytes))
    A('s_mov_b32 %s, 0x00020000' % sr(dst + 3))


def load_ptrs(A, S):
    P = S.alloc(28, 4)
    A('s_load_dwordx16 %s, s[0:1], 0' % sr(P, 16))
    A('s_load_dwordx8 %s, s[0:1], 64' % sr(P + 16, 8))
    A('s_load_dwordx2 %s, s[0:1], 96' % sr(P + 24, 2))
    return {k: P + v // 4 for k, v in KA.items()}


def gen_qkv(A, name):
    S = Regs('s', 4, 100)
    V = Regs('v', 1, 256)
    A.raw('.p2align 8')
    A.label(name)
    L_exit = name + '_exit'
    A('s_cmp_ge_u32 s2, 480')
    A('s_cbranch_scc1 ' + L_exit)
    P = load_ptrs(A, S)
    G = Gemm(A, S, V, 4, 4)
    SRD_WS = S.alloc(4, 4)
    s_w, s_nt, s_mt, s0, s1, s2_, s_base, s_tbs, s_or = [S.alloc() for _ in range(9)]
    s_pp = S.alloc(2, 2)
    v_lane, v_l16 = V.alloc(), V.alloc()
    A('v_and_b32 %s, 63, v0' % vr(v_lane))
    A('v_lshrrev_b32 %s, 6, v0' % vr(v_l16))
    A('v_readfirstlane_b32 %s, %s' % (sr(s_w), vr(v_l16)))
    A('v_lshlrev_b32 %s, 4, %s' % (vr(v_l16), vr(v_lane)))
    A('s_and_b32 %s, s2, 7' % sr(s0))
    A('s_lshr_b32 %s, s2, 3' % sr(s1))
    A('s_and_b32 %s, %s, 7' % (sr(s_mt), sr(s1)))
    A('s_and_b32 %s, %s, 0xf8' % (sr(s_nt), sr(s1)))
    A('s_add_u32 %s, %s, %s' % (sr(s_nt), sr(s_nt), sr(s0)))
    L1 = A.uid('dec')
    A('s_cmp_lt_u32 %s, 56' % sr(s1))
    A('s_cbranch_scc1 ' + L1)
    A('s_lshr_b32 %s, %s, 1' % (sr(s_nt), sr(s0)))
    A('s_add_u32 %s, %s, 56' % (sr(s_nt), sr(s_nt)))
    A('s_and_b32 %s, %s, 1' % (sr(s0), sr(s0)))
    A('s_lshl_b32 %s, %s, 2' % (sr(s0), sr(s0)))
    A('s_add_u32 %s, %s, %s' % (sr(s_mt), sr(s_mt), sr(s0)))
    A.label(L1)
    A('s_waitcnt lgkmcnt(0)')
    mk_srd(A, SRD_WS, P['ws'], WS_BYTES)
    A('s_lshl_b32 %s, %s, 19' % (sr(G.s_xo), sr(s_mt)))
    A('s_mov_b32 %s, 128' % sr(G.s_xs))
    A('s_mov_b32 %s, 7' % sr(G.s_n))
    LB, LJ = A.uid('isB'), A.uid('join')
    A('s_cmp_ge_u32 %s, 48' % sr(s_nt))
    A('s_cbranch_scc1 ' + LB)
    A('s_lshr_b32 %s, %s, 4' % (sr(s0), sr(s_nt)))
    A('s_and_b32 %s, %s, 15' % (sr(s1), sr(s_nt)))
    A('s_cmp_eq_u32 %s, 1' % sr(s0))
    A('s_cselect_b32 %s, 1, 0' % sr(s_or))
    A('s_cselect_b64 %s, %s, %s' % (sr(s_pp, 2), sr(P['A_Wv'], 2), sr(P['A_Wk'], 2)))
    A('s_cselect_b32 %s, 0x%x, 0x%x' % (sr(s_base), VX, KX) if False else 's_mov_b32 %s, 0x%x' % (sr(s_base), KX))
    A('s_cselect_b32 %s, 0x%x, %s' % (sr(s_base), VX, sr(s_base)))
    A('s_cmp_eq_u32 %s, 2' % sr(s0))
    A('s_cselect_b64 %s, %s, %s' % (sr(s_pp, 2), sr(P['A_Wq'], 2), sr(s_pp, 2)))
    A('s_cselect_b32 %s, 0x%x, %s' % (sr(s_base), QX, sr(s_base)))
    mk_srd(A, G.SRD_W, s_pp, 1024 * 4096 * 2)
    mk_srd(A, G.SRD_X, P['A_x'], 2048 * 1024 * 2)
    A('s_lshl_b32 %s, %s, 9' % (sr(G.s_wo), sr(s1)))
    A('s_mov_b32 %s, %d' % (sr(G.s_ws), 64 * 8192))
    A('s_mov_b32 %s, %d' % (sr(s_tbs), 128 * 2048))
    A('s_mov_b32 %s, %s' % (sr(s2_), sr(s1)))
    G.setup(v_lane, s_w, (s0, s1), 'nat', 2048, 8192)
    A('s_branch ' + LJ)
    A.label(LB)
    A('s_sub_u32 %s, %s, 48' % (sr(s1), sr(s_nt)))
    A('s_lshr_b32 %s, %s, 2' % (sr(s0), sr(s1)))
    A('s_cmp_eq_u32 %s, 2' % sr(s0))
    A('s_cselect_b32 %s, 1, 0' % sr(s_or))
    A('s_lshl_b32 %s, %s, 22' % (sr(s_base), sr(s0)))
    A('s_add_u32 %s, %s, 0x%x' % (sr(s_base), sr(s_base), QB))
    mk_srd(A, G.SRD_W, P['B_wqkv'], 1024 * 3072 * 2)
    mk_srd(A, G.SRD_X, P['B_x'], 2048 * 1024 * 2)
    A('s_lshl_b32 %s, %s, 9' % (sr(G.s_wo), sr(s1)))
    A('s_mov_b32 %s, %d' % (sr(G.s_ws), 64 * 6144))
    A('s_mov_b32 %s, %d' % (sr(s_tbs), 32 * 2048))
    A('s_and_b32 %s, %s, 3' % (sr(s2_), sr(s1)))
    G.setup(v_lane, s_w, (s0, s1), 'nat', 2048, 6144)
    A.label(LJ)
    A('s_lshr_b32 %s, %s, 1' % (sr(s0), sr(s_w)))
    A('s_lshl_b32 %s, %s, 2' % (sr(s0), sr(s0)))
    A('s_lshl_b32 %s, %s, 3' % (sr(s1), sr(s_mt)))
    A('s_add_u32 %s, %s, %s' % (sr(s0), sr(s0), sr(s1)))
    A('s_mul_i32 %s, %s, %s' % (sr(s0), sr(s0), sr(s_tbs)))
    A('s_add_u32 %s, %s, %s' % (sr(s_base), sr(s_base), sr(s0)))
    A('s_and_b32 %s, %s, 1' % (sr(s0), sr(s_w)))
    A('s_lshl_b32 %s, %s, 13' % (sr(s0), sr(s0)))
    A('s_lshl_b32 %s, %s, 14' % (sr(s1), sr(s2_)))
    A('s_add_u32 %s, %s, %s' % (sr(s_base), sr(s_base), sr(s0)))
    A('s_add_u32 %s, %s, %s' % (sr(s_base), sr(s_base), sr(s1)))
    G.prologue()
    LN, LE = A.uid('orN'), A.uid('epi')
    A('s_cmp_eq_u32 %s, 1' % sr(s_or))
    A('s_cbranch_scc1 ' + LN)
    G.mainloop('T', 't')
    A('s_nop 15')
    A('s_branch ' + LE)
    A.label(LN)
    G.pending = []
    G.mainloop('N', 'n')
    A.label(LE)
    G.epi_blk(SRD_WS, v_l16, s_base, s_tbs, s0)
    A.label(L_exit)
    A('s_endpgm')
    return dict(vgpr=512, accum=256, sgpr=S.hi)


def gen_out(A, name, mb=2, nb=1):
    S = Regs('s', 4, 100)
    V = Regs('v', 1, 128)
    TM, TN = 64 * mb, 64 * nb
    nM, nN = 2048 // TM, 1024 // TN
    nT = nM * nN
    A.raw('.p2align 8')
    A.label(name)
    L_exit = name + '_exit'
    A('s_cmp_ge_u32 s2, %d' % (2 * nT))
    A('s_cbranch_scc1 ' + L_exit)
    P = load_ptrs(A, S)
    G = Gemm(A, S, V, mb, nb)
    SRD_O = S.alloc(4, 4)
    s_w, s_nt, s_mt, s0, s1, s_id, s_base = [S.alloc() for _ in range(7)]
    v_lane, v_off = V.alloc(), V.alloc()
    A('v_and_b32 %s, 63, v0' % vr(v_lane))
    A('v_lshrrev_b32 %s, 6, v0' % vr(v_off))
    A('v_readfirstlane_b32 %s, %s' % (sr(s_w), vr(v_off)))
    A('v_and_b32 %s, 31, %s' % (vr(v_off), vr(v_lane)))
    A('v_lshlrev_b32 %s, 12, %s' % (vr(v_off), vr(v_off)))
    A('v_lshrrev_b32 %s, 5, %s' % (vr(G.t[0]), vr(v_lane)))
    A('v_lshl_add_u32 %s, %s, 4, %s' % (vr(v_off), vr(G.t[0]), vr(v_off)))
    A('s_and_b32 %s, s2, %d' % (sr(s_id), nT - 1))
    mper = nM // 8
    A('s_and_b32 %s, %s, 7' % (sr(s0), sr(s_id)))
    A('s_lshr_b32 %s, %s, 3' % (sr(s1), sr(s_id)))
    A('s_and_b32 %s, %s, %d' % (sr(s_nt), sr(s1), nN - 1))
    A('s_lshr_b32 %s, %s, %d' % (sr(s_mt), sr(s1), nN.bit_length() - 1))
    A('s_lshl_b32 %s, %s, 3' % (sr(s_mt), sr(s_mt)))
    A('s_add_u32 %s, %s, %s' % (sr(s_mt), sr(s_mt), sr(s0)))
    A('s_waitcnt lgkmcnt(0)')
    mk_srd(A, SRD_O, P['out'], 2048 * 2048 * 2)
    mk_srd(A, G.SRD_X, P['ws'], WS_BYTES)
    A('s_mov_b32 %s, 4096' % sr(G.s_xs))
    A('s_mov_b32 %s, %d' % (sr(G.s_ws), 64 * 2048))
    A('s_mul_i32 %s, %s, %d' % (sr(G.s_wo), sr(s_nt), TN * 2))
    A('s_lshr_b32 %s, %s, 1' % (sr(s0), sr(s_w)))
    A('s_mul_i32 %s, %s, %d' % (sr(s0), sr(s0), 32 * mb * 4096))
    A('s_mul_i32 %s, %s, %d' % (sr(s_base), sr(s_mt), TM * 4096))
    A('s_add_u32 %s, %s, %s' % (sr(s_base), sr(s_base), sr(s0)))
    A('s_and_b32 %s, %s, 1' % (sr(s0), sr(s_w)))
    A('s_mul_i32 %s, %s, %d' % (sr(s0), sr(s0), 64 * nb))
    A('s_add_u32 %s, %s, %s' % (sr(s_base), sr(s_base), sr(s0)))
    A('s_add_u32 %s, %s, %s' % (sr(s_base), sr(s_base), sr(G.s_wo)))
    LB, LJ = A.uid('isB'), A.uid('join')
    A('s_cmp_ge_u32 s2, %d' % nT)
    A('s_cbranch_scc1 ' + LB)
    mk_srd(A, G.SRD_W, P['A_Wo'], 4096 * 1024 * 2)
    A('s_mul_i32 %s, %s, %d' % (sr(G.s_xo), sr(s_mt), (TM // 32) * 128 * 2048))
    A('s_add_u32 %s, %s, 0x%x' % (sr(G.s_xo), sr(G.s_xo), OA))
    A('s_mov_b32 %s, 31' % sr(G.s_n))
    G.setup(v_lane, s_w, (s0, s1), 'blk', 128 * 2048, 2048)
    A('s_branch ' + LJ)
    A.label(LB)
    mk_srd(A, G.SRD_W, P['B_wo'], 1024 * 1024 * 2)
    A('s_mul_i32 %s, %s, %d' % (sr(G.s_xo), sr(s_mt), (TM // 32) * 32 * 2048))
    A('s_add_u32 %s, %s, 0x%x' % (sr(G.s_xo), sr(G.s_xo), OB))
    A('s_mov_b32 %s, 7' % sr(G.s_n))
    A('s_add_u32 %s, %s, 2048' % (sr(s_base), sr(s_base)))
    G.setup(v_lane, s_w, (s0, s1), 'blk', 32 * 2048, 2048)
    A.label(LJ)
    G.prologue()
    G.mainloop('T', 't')
    G.epi_out(SRD_O, v_off, s_base)
    A.label(L_exit)
    A('s_endpgm')
    nacc = 16 * mb * nb
    acc_off = (V.hi + 3) // 4 * 4
    return dict(vgpr=acc_off + nacc, accum=acc_off, sgpr=S.hi, grid=2 * nT, lds=2 * G.STG)


import attn


def gen_attn(A, name):
    S = Regs('s', 4, 100)
    A.raw('.p2align 8')
    A.label(name)
    L_exit = name + '_exit'
    A('s_cmp_ge_u32 s2, 1024')
    A('s_cbranch_scc1 ' + L_exit)
    p = S.alloc(2, 2)
    SRD = S.alloc(4, 4)
    s_w, s_item = S.alloc(), S.alloc()
    st = [S.alloc() for _ in range(4)]
    A('s_load_dwordx2 %s, s[0:1], 96' % sr(p, 2))
    v_lane, v_l16 = 1, 2
    A('v_and_b32 %s, 63, v0' % vr(v_lane))
    A('v_lshrrev_b32 %s, 6, v0' % vr(v_l16))
    A('v_readfirstlane_b32 %s, %s' % (sr(s_w), vr(v_l16)))
    A('v_lshlrev_b32 %s, 4, %s' % (vr(v_l16), vr(v_lane)))
    A('s_and_b32 %s, s2, 511' % sr(s_item))
    A('s_lshl_b32 %s, %s, 2' % (sr(s_item), sr(s_item)))
    A('s_add_u32 %s, %s, %s' % (sr(s_item), sr(s_item), sr(s_w)))
    A('s_waitcnt lgkmcnt(0)')
    mk_srd(A, SRD, p, WS_BYTES)
    LA = A.uid('attnA')
    A('s_cmp_ge_u32 s2, 512')
    A('s_cbranch_scc1 ' + LA)
    h1 = attn.attn_b(A, SRD, s_item, st, v_lane, v_l16, 4)
    A('s_endpgm')
    A.label(LA)
    h2 = attn.attn_a(A, SRD, s_item, st, v_lane, v_l16, 4)
    A.label(L_exit)
    A('s_endpgm')
    hi = (max(h1, h2) + 3) // 4 * 4
    return dict(vgpr=hi, accum=hi, sgpr=S.hi)
```

```python
QX = 0x0000000
KX = 0x1000000
VX = 0x2000000
OA = 0x3000000
QB = 0x4000000
KB = 0x4400000
VB = 0x4800000
OB = 0x4C00000
KMO = 0x5000000
VMO = 0x5800000
QKI = 0x6000000
VMI = 0x6080000
MEMI = 0x6100000
PART = 0x6200000
STAMP = 0x7000000
WS_BYTES = 0x10000000
KA = dict(A_x=0, A_mem0=8, A_Wq=16, A_Wk=24, A_Wv=32, A_Wo=40, A_seg=48, B_x=56, B_wqkv=64, B_wo=72, out=80, dbg=88, ws=96)
```

```python
import sys
from asmlib import *
from layout import *
import chain
import kernels

HEADER = open('concat_heads__memory_aug_recurrent_mem_tr__sliding_block__prompt.s.ref').read().split('; Override launch')[0]


def build(kernels, launches):
    A = Asm()
    infos = {}
    for name, fn in kernels:
        A.raw('.globl %s' % name)
        A.raw('.type %s,@function' % name)
        infos[name] = fn(A, name)
    out = HEADER
    for name, grid, block, lds in launches:
        out += '; @launch kernel=%s grid=(%d,1,1) block=(%d,1,1) lds=%d\n' % (name, grid, block, lds)
    out += '.amdgcn_target "amdgcn-amd-amdhsa--gfx950"\n.text\n'
    out += A.text()
    out += '.section .rodata,"a"\n'
    for name, _ in kernels:
        i = infos[name]
        out += '.p2align 6\n.amdhsa_kernel %s\n' % name
        out += '  .amdhsa_next_free_vgpr %d\n  .amdhsa_next_free_sgpr %d\n  .amdhsa_accum_offset %d\n' % (i['vgpr'], max(i['sgpr'], 16), i['accum'])
        out += '  .amdhsa_group_segment_fixed_size 0\n  .amdhsa_kernarg_size 104\n  .amdhsa_user_sgpr_count 2\n'
        out += '  .amdhsa_user_sgpr_kernarg_segment_ptr 1\n  .amdhsa_system_sgpr_workgroup_id_x 1\n'
        out += '  .amdhsa_float_denorm_mode_32 3\n'
        out += '.end_amdhsa_kernel\n'
    return out


if __name__ == '__main__':
    mode = sys.argv[1]
    outp = sys.argv[2]
    if mode.startswith('chain'):
        st = 'rt' if 'stamprt' in mode else ('stamp' in mode)
        fl = 'flat' in mode
        txt = build([('chain_kernel', lambda A, n: chain.gen_chain(A, n, stamps=st, flat=fl))],
                    [('chain_kernel', 256, 256, 163840)])
    if mode == 'qkv':
        txt = build([('qkv_kernel', kernels.gen_qkv)], [('qkv_kernel', 480, 256, 131072)])
    if mode == 'full1':
        txt = build([('qkv_kernel', kernels.gen_qkv), ('chain_kernel', lambda A, n: chain.gen_chain(A, n)),
                     ('attn_kernel', kernels.gen_attn), ('out_kernel', lambda A, n: kernels.gen_out(A, n, 2, 2))],
                    [('qkv_kernel', 480, 256, 131072), ('chain_kernel', 256, 256, 163840), ('attn_kernel', 1024, 256, 0),
                     ('out_kernel', 256, 256, 65536)])
    open(outp, 'w').write(txt)
    print('wrote', outp, len(txt), 'bytes')
```

```python
from asmlib import *
from layout import *
import struct

LOG2E = 1.4426950408889634


def f32bits(x):
    return struct.unpack('<I', struct.pack('<f', x))[0]


def tree(A, op3, op2, regs, t0, t1):
    regs = list(regs)
    A('%s %s, %s, %s, %s' % (op3, vr(t0), vr(regs[0]), vr(regs[1]), vr(regs[2])))
    A('%s %s, %s, %s, %s' % (op3, vr(t1), vr(regs[3]), vr(regs[4]), vr(regs[5])))
    i, k = 6, 0
    while i + 1 < len(regs):
        t = (t0, t1)[k & 1]
        A('%s %s, %s, %s, %s' % (op3, vr(t), vr(t), vr(regs[i]), vr(regs[i + 1])))
        i += 2
        k += 1
    if i < len(regs):
        A('%s %s, %s, %s, %s' % (op3, vr(t0), vr(t0), vr(t1), vr(regs[i])))
    else:
        A('%s %s, %s, %s' % (op2, vr(t0), vr(t0), vr(t1)))


def xhalf(A, op, a, b):
    A('v_mov_b32 %s, %s' % (vr(b), vr(a)))
    A('v_permlane32_swap_b32 %s, %s' % (vr(a), vr(b)))
    A('%s %s, %s, %s' % (op, vr(a), vr(a), vr(b)))


def sum_regs(A, regs, t0, t1):
    regs = list(regs)
    A('v_add_f32 %s, %s, %s' % (vr(t0), vr(regs[0]), vr(regs[1])))
    A('v_add_f32 %s, %s, %s' % (vr(t1), vr(regs[2]), vr(regs[3])))
    for i in range(4, len(regs)):
        t = (t0, t1)[i & 1]
        A('v_add_f32 %s, %s, %s' % (vr(t), vr(t), vr(regs[i])))
    A('v_add_f32 %s, %s, %s' % (vr(t0), vr(t0), vr(t1)))


def mask_init(A, S0, v_d, v_neg, causal):
    for r in range(16):
        kr = (r >> 2) * 8 + (r & 3)
        A('v_cmp_%s_i32 vcc, %d, %s' % ('le' if causal else 'gt', kr, vr(v_d)))
        A('v_cndmask_b32 %s, %s, 0, vcc' % (vr(S0 + r), vr(v_neg)))


def attn_a(A, SRD, s_item, st, v_lane, v_l16, V0, ld='', stf='', pre_wait=None):
    V = Regs('v', V0, 256)
    s0, s1, s2, s3 = st
    Q = V.alloc(32, 4)
    K = V.alloc(32, 4)
    KM = V.alloc(32, 4)
    VXr = V.alloc(32, 4)
    VMr = V.alloc(8, 4)
    SX = V.alloc(16, 4)
    SM = V.alloc(16, 4)
    v_km, v_d, v_neg, t0, t1, v_vm = [V.alloc() for _ in range(6)]
    O = Q
    PX = KM
    PM = KM + 8
    OP = KM + 16
    A('s_lshl_b32 %s, %s, 13' % (sr(s0), sr(s_item)))
    A('s_add_u32 %s, %s, 4096' % (sr(s1), sr(s0)))
    A('v_add_u32 %s, 0x%x, %s' % (vr(t0), KX, vr(v_l16)))
    A('v_add_u32 %s, 0x%x, %s' % (vr(t1), VX, vr(v_l16)))
    assert QX == 0
    for k in range(8):
        so = s0 if k < 4 else s1
        A('buffer_load_dwordx4 %s, %s, %s, %s offen offset:%d%s' % (vr(Q + 4 * k, 4), vr(v_l16), sr(SRD, 4), sr(so), (k & 3) * 1024, ld))
        A('buffer_load_dwordx4 %s, %s, %s, %s offen offset:%d%s' % (vr(K + 4 * k, 4), vr(t0), sr(SRD, 4), sr(so), (k & 3) * 1024, ld))
    for k in range(8):
        so = s0 if k < 4 else s1
        A('buffer_load_dwordx4 %s, %s, %s, %s offen offset:%d%s' % (vr(VXr + 4 * k, 4), vr(t1), sr(SRD, 4), sr(so), (k & 3) * 1024, ld))
    A('v_and_b32 %s, 7, %s' % (vr(v_km), vr(v_lane)))
    A('v_lshlrev_b32 %s, 4, %s' % (vr(v_km), vr(v_km)))
    A('v_lshrrev_b32 %s, 5, %s' % (vr(v_d), vr(v_lane)))
    A('v_lshl_add_u32 %s, %s, 8, %s' % (vr(v_km), vr(v_d), vr(v_km)))
    A('v_and_b32 %s, 15, %s' % (vr(v_vm), vr(v_lane)))
    A('v_lshlrev_b32 %s, 4, %s' % (vr(v_vm), vr(v_vm)))
    A('v_lshl_add_u32 %s, %s, 8, %s' % (vr(v_vm), vr(v_d), vr(v_vm)))
    A('v_bfe_u32 %s, %s, 4, 1' % (vr(v_neg), vr(v_lane)))
    A('v_lshl_add_u32 %s, %s, 3, %s' % (vr(v_vm), vr(v_neg), vr(v_vm)))
    A('v_lshlrev_b32 %s, 2, %s' % (vr(v_d), vr(v_d)))
    A('v_and_b32 %s, 31, %s' % (vr(v_neg), vr(v_lane)))
    A('v_sub_u32 %s, %s, %s' % (vr(v_d), vr(v_neg), vr(v_d)))
    A('v_mov_b32 %s, 0x%x' % (vr(v_neg), f32bits(-1e30)))
    mask_init(A, SX, v_d, v_neg, True)
    for k in range(8):
        A('s_waitcnt vmcnt(%d)' % (24 - 2 * (k + 1)))
        A('v_mfma_f32_32x32x16_bf16 %s, %s, %s, %s' % (vr(SX, 16), vr(K + 4 * k, 4), vr(Q + 4 * k, 4), vr(SX, 16)))
    if pre_wait:
        pre_wait()
    A('s_lshl_b32 %s, %s, 12' % (sr(s2), sr(s_item)))
    A('s_add_u32 %s, %s, 0x%x' % (sr(s3), sr(s2), VMO))
    A('s_add_u32 %s, %s, 0x%x' % (sr(s2), sr(s2), KMO))
    for k in range(8):
        A('buffer_load_dwordx4 %s, %s, %s, %s offen offset:%d%s' % (vr(KM + 4 * k, 4), vr(v_km), sr(SRD, 4), sr(s2), k * 512 + 128, ld))
    for k in range(4):
        A('buffer_load_dwordx2 %s, %s, %s, %s offen offset:%d%s' % (vr(VMr + 2 * k, 2), vr(v_vm), sr(SRD, 4), sr(s3), k * 1024, ld))
    for k in range(8):
        A('s_waitcnt vmcnt(%d)' % (12 - (k + 1)))
        A('v_mfma_f32_32x32x16_bf16 %s, %s, %s, %s' % (vr(SM, 16), vr(KM + 4 * k, 4), vr(Q + 4 * k, 4), '0' if k == 0 else vr(SM, 16)))
    regs = [SX + i for i in range(16)] + [SM + i for i in range(4)]
    tree(A, 'v_max3_f32', 'v_max_f32', regs, t0, t1)
    xhalf(A, 'v_max_f32', t0, t1)
    A('s_mov_b32 %s, 0x%x' % (sr(s2), f32bits(128 ** -0.5 * LOG2E)))
    A('v_mul_f32 %s, %s, %s' % (vr(t0), sr(s2), vr(t0)))
    for r in regs:
        A('v_fma_f32 %s, %s, %s, -%s' % (vr(r), vr(r), sr(s2), vr(t0)))
    for r in regs:
        A('v_exp_f32 %s, %s' % (vr(r), vr(r)))
    sum_regs(A, regs, t0, t1)
    xhalf(A, 'v_add_f32', t0, t1)
    A('v_rcp_f32 %s, %s' % (vr(t0), vr(t0)))
    for r in regs:
        A('v_mul_f32 %s, %s, %s' % (vr(r), vr(r), vr(t0)))
    for i in range(8):
        A('v_cvt_pk_bf16_f32 %s, %s, %s' % (vr(PX + i), vr(SX + 2 * i), vr(SX + 2 * i + 1)))
    for i in range(2):
        A('v_cvt_pk_bf16_f32 %s, %s, %s' % (vr(PM + i), vr(SM + 2 * i), vr(SM + 2 * i + 1)))
    A('s_waitcnt vmcnt(0)')
    for eb in range(4):
        o = vr(O + 16 * eb, 16)
        A('v_mfma_f32_32x32x16_bf16 %s, %s, %s, 0' % (o, vr(VXr + 8 * eb, 4), vr(PX, 4)))
        A('v_mfma_f32_32x32x16_bf16 %s, %s, %s, %s' % (o, vr(VXr + 8 * eb + 4, 4), vr(PX + 4, 4), o))
        A('v_mfma_f32_32x32x8_bf16 %s, %s, %s, %s' % (o, vr(VMr + 2 * eb, 2), vr(PM, 2), o))
    A('v_add_u32 %s, 0x%x, %s' % (vr(t0), OA, vr(v_l16)))
    for eb in range(4):
        d = OP + 8 * (eb & 1)
        for i in range(8):
            A('v_cvt_pk_bf16_f32 %s, %s, %s' % (vr(d + i), vr(O + 16 * eb + 2 * i), vr(O + 16 * eb + 2 * i + 1)))
        so = s0 if eb < 2 else s1
        for j in range(2):
            A('buffer_store_dwordx4 %s, %s, %s, %s offen offset:%d%s' % (vr(d + 4 * j, 4), vr(t0), sr(SRD, 4), sr(so), (eb & 1) * 2048 + j * 1024, stf))
    return V.hi


def attn_b(A, SRD, s_item, st, v_lane, v_l16, V0, ld='', stf=''):
    V = Regs('v', V0, 256)
    s0, s1, s2, s3 = st
    S = V.alloc(144, 4)
    KV = V.alloc(72, 4)
    Q = V.alloc(8, 4)
    v_d, v_neg, t0, t1, v_k, v_v = [V.alloc() for _ in range(6)]
    O = S + 80
    OP = S + 96
    A('s_lshl_b32 %s, %s, 11' % (sr(s0), sr(s_item)))
    A('s_lshr_b32 %s, %s, 5' % (sr(s1), sr(s_item)))
    A('s_and_b32 %s, %s, 31' % (sr(s2), sr(s_item)))
    A('s_lshl_b32 %s, %s, 11' % (sr(s2), sr(s2)))
    A('v_add_u32 %s, 0x%x, %s' % (vr(t0), QB, vr(v_l16)))
    A('v_add_u32 %s, 0x%x, %s' % (vr(v_k), KB, vr(v_l16)))
    A('v_add_u32 %s, %s, %s' % (vr(v_k), sr(s2), vr(v_k)))
    A('v_add_u32 %s, 0x%x, %s' % (vr(v_v), VB - KB, vr(v_k)))
    for j in range(2):
        A('buffer_load_dwordx4 %s, %s, %s, %s offen offset:%d%s' % (vr(Q + 4 * j, 4), vr(t0), sr(SRD, 4), sr(s0), j * 1024, ld))

    def kb_off(i):
        A('s_add_i32 %s, %s, %d' % (sr(s3), sr(s1), i - 8))
        A('s_max_i32 %s, %s, 0' % (sr(s3), sr(s3)))
        A('s_lshl_b32 %s, %s, 16' % (sr(s3), sr(s3)))
    for i in range(9):
        kb_off(i)
        for j in range(2):
            A('buffer_load_dwordx4 %s, %s, %s, %s offen offset:%d%s' % (vr(KV + 8 * i + 4 * j, 4), vr(v_k), sr(SRD, 4), sr(s3), j * 1024, ld))
    A('v_lshrrev_b32 %s, 5, %s' % (vr(v_d), vr(v_lane)))
    A('v_lshlrev_b32 %s, 2, %s' % (vr(v_d), vr(v_d)))
    A('v_and_b32 %s, 31, %s' % (vr(v_neg), vr(v_lane)))
    A('v_sub_u32 %s, %s, %s' % (vr(v_d), vr(v_neg), vr(v_d)))
    A('v_mov_b32 %s, 0x%x' % (vr(v_neg), f32bits(-1e30)))
    mask_init(A, S, v_d, v_neg, False)
    mask_init(A, S + 128, v_d, v_neg, True)
    for i in range(9):
        A('s_waitcnt vmcnt(16)')
        s = vr(S + 16 * i, 16)
        A('v_mfma_f32_32x32x16_bf16 %s, %s, %s, %s' % (s, vr(KV + 8 * i, 4), vr(Q, 4), s if i in (0, 8) else '0'))
        A('v_mfma_f32_32x32x16_bf16 %s, %s, %s, %s' % (s, vr(KV + 8 * i + 4, 4), vr(Q + 4, 4), s))
        kb_off(i)
        for j in range(2):
            A('buffer_load_dwordx4 %s, %s, %s, %s offen offset:%d%s' % (vr(KV + 8 * i + 4 * j, 4), vr(v_v), sr(SRD, 4), sr(s3), j * 1024, ld))
    Lok = A.uid('bok')
    A('s_nop 15')
    for i in range(8):
        A('s_cmp_ge_u32 %s, %d' % (sr(s1), 8 - i))
        A('s_cbranch_scc1 ' + Lok)
        for r in range(16):
            A('v_mov_b32 %s, %s' % (vr(S + 16 * i + r), vr(v_neg)))
    A.label(Lok)
    regs = [S + i for i in range(144)]
    tree(A, 'v_max3_f32', 'v_max_f32', regs, t0, t1)
    xhalf(A, 'v_max_f32', t0, t1)
    A('s_mov_b32 %s, 0x%x' % (sr(s2), f32bits(32 ** -0.5 * LOG2E)))
    A('v_mul_f32 %s, %s, %s' % (vr(t0), sr(s2), vr(t0)))
    la, lb = v_d, v_k
    for i in range(9):
        rr = regs[16 * i:16 * i + 16]
        for r in rr:
            A('v_fma_f32 %s, %s, %s, -%s' % (vr(r), vr(r), sr(s2), vr(t0)))
        for r in rr:
            A('v_exp_f32 %s, %s' % (vr(r), vr(r)))
        for k, r in enumerate(rr):
            d = (la, lb)[k & 1]
            if i == 0 and k < 2:
                A('v_mov_b32 %s, %s' % (vr(d), vr(r)))
            else:
                A('v_add_f32 %s, %s, %s' % (vr(d), vr(d), vr(r)))
        for k in range(8):
            A('v_cvt_pk_bf16_f32 %s, %s, %s' % (vr(S + 8 * i + k), vr(rr[2 * k]), vr(rr[2 * k + 1])))
    A('v_add_f32 %s, %s, %s' % (vr(la), vr(la), vr(lb)))
    xhalf(A, 'v_add_f32', la, lb)
    A('v_rcp_f32 %s, %s' % (vr(la), vr(la)))
    A('s_waitcnt vmcnt(0)')
    o = vr(O, 16)
    for i in range(9):
        for j in range(2):
            A('v_mfma_f32_32x32x16_bf16 %s, %s, %s, %s' % (o, vr(KV + 8 * i + 4 * j, 4), vr(S + 8 * i + 4 * j, 4), '0' if i == 0 and j == 0 else o))
    A('v_add_u32 %s, 0x%x, %s' % (vr(t0), OB, vr(v_l16)))
    for r in range(16):
        A('v_mul_f32 %s, %s, %s' % (vr(O + r), vr(O + r), vr(la)))
    for k in range(8):
        A('v_cvt_pk_bf16_f32 %s, %s, %s' % (vr(OP + k), vr(O + 2 * k), vr(O + 2 * k + 1)))
    for j in range(2):
        A('buffer_store_dwordx4 %s, %s, %s, %s offen offset:%d%s' % (vr(OP + 4 * j, 4), vr(t0), sr(SRD, 4), sr(s0), j * 1024, stf))
    return V.hi


def attn_b4(A, SRD, s_item, st, v_lane, v_l16, V0, ld='', stf=''):
    V = Regs('v', V0, 256)
    s0, s1, s2, s3 = st
    S = V.alloc(144, 4)
    MA = V.alloc(16, 4)
    MC = V.alloc(16, 4)
    O = V.alloc(16, 4)
    OP = V.alloc(8, 4)
    LP = V.alloc(4, 2)
    CM = V.alloc(4, 2)
    v_d, v_neg, t0, t1, v_k, v_v, v_o = [V.alloc() for _ in range(7)]
    KA, VA, QA = 0, 96, 192
    A('s_lshl_b32 %s, %s, 11' % (sr(s0), sr(s_item)))
    A('s_lshr_b32 %s, %s, 5' % (sr(s1), sr(s_item)))
    A('s_and_b32 %s, %s, 31' % (sr(s2), sr(s_item)))
    A('s_lshl_b32 %s, %s, 11' % (sr(s2), sr(s2)))
    A('v_add_u32 %s, 0x%x, %s' % (vr(t0), QB, vr(v_l16)))
    A('v_add_u32 %s, 0x%x, %s' % (vr(v_k), KB, vr(v_l16)))
    A('v_add_u32 %s, %s, %s' % (vr(v_k), sr(s2), vr(v_k)))
    A('v_add_u32 %s, 0x%x, %s' % (vr(v_v), VB - KB, vr(v_k)))
    A('v_add_u32 %s, 0x%x, %s' % (vr(v_o), OB, vr(v_l16)))

    def kb_off(i):
        A('s_add_i32 %s, %s, %d' % (sr(s3), sr(s1), i - 8))
        A('s_max_i32 %s, %s, 0' % (sr(s3), sr(s3)))
        A('s_lshl_b32 %s, %s, 16' % (sr(s3), sr(s3)))
    order = []
    order += [('q', 0)] + [('k', i) for i in range(9)] + [('v', i) for i in range(9)]
    for it in range(1, 4):
        order += [('q', it), ('k', 8 + it), ('v', 8 + it)]
    pos = {}
    for n, (kind, i) in enumerate(order):
        pos[(kind, i)] = n
        if kind == 'q':
            A('s_add_u32 %s, %s, %d' % (sr(s3), sr(s0), i * 65536))
            for j in range(2):
                A('buffer_load_dwordx4 %s, %s, %s, %s offen offset:%d%s' % (ar(QA + 8 * i + 4 * j, 4), vr(t0), sr(SRD, 4), sr(s3), j * 1024, ld))
        else:
            kb_off(i)
            for j in range(2):
                A('buffer_load_dwordx4 %s, %s, %s, %s offen offset:%d%s' % (ar((KA if kind == 'k' else VA) + 8 * i + 4 * j, 4), vr(v_k if kind == 'k' else v_v), sr(SRD, 4), sr(s3), j * 1024, ld))
    total = 2 * len(order)
    nst = [0]

    def need_(kind, i):
        A('s_waitcnt vmcnt(%d)' % min(63, total - 2 * (pos[(kind, i)] + 1) + nst[0]))
    A('v_lshrrev_b32 %s, 5, %s' % (vr(v_d), vr(v_lane)))
    A('v_lshlrev_b32 %s, 2, %s' % (vr(v_d), vr(v_d)))
    A('v_and_b32 %s, 31, %s' % (vr(v_neg), vr(v_lane)))
    A('v_sub_u32 %s, %s, %s' % (vr(v_d), vr(v_neg), vr(v_d)))
    A('v_mov_b32 %s, 0x%x' % (vr(v_neg), f32bits(-1e30)))
    mask_init(A, MA, v_d, v_neg, False)
    mask_init(A, MC, v_d, v_neg, True)
    A('v_mov_b32 %s, 0x%x' % (vr(CM), f32bits(32 ** -0.5 * LOG2E)))
    regs = [S + i for i in range(144)]
    for it in range(4):
        for i in range(9):
            if it == 0 or i == 8:
                need_('k', it + i)
            s = vr(S + 16 * i, 16)
            c = vr(MA, 16) if i == 0 else (vr(MC, 16) if i == 8 else '0')
            A('v_mfma_f32_32x32x16_bf16 %s, %s, %s, %s' % (s, ar(KA + 8 * (it + i), 4), ar(QA + 8 * it, 4), c))
            A('v_mfma_f32_32x32x16_bf16 %s, %s, %s, %s' % (s, ar(KA + 8 * (it + i) + 4, 4), ar(QA + 8 * it + 4, 4), s))
            if i >= 2:
                rr = regs[16 * (i - 2):16 * (i - 1)]
                _maxtile(A, rr, t0, t1, i == 2)
        Lok, Lfix = A.uid('bok'), A.uid('bfix')
        A('s_cmp_lt_u32 %s, 8' % sr(s1))
        A('s_cbranch_scc1 ' + Lfix)
        _maxtile(A, regs[112:128], t0, t1, False)
        _maxtile(A, regs[128:144], t0, t1, False)
        A('v_max_f32 %s, %s, %s' % (vr(t0), vr(t0), vr(t1)))
        A('s_branch ' + Lok)
        A.label(Lfix)
        A('s_nop 15')
        Lf2 = A.uid('bf2')
        for i in range(8):
            A('s_cmp_ge_u32 %s, %d' % (sr(s1), max(0, 8 - i - it)))
            A('s_cbranch_scc1 ' + Lf2)
            for r in range(16):
                A('v_mov_b32 %s, %s' % (vr(S + 16 * i + r), vr(v_neg)))
        A.label(Lf2)
        tree(A, 'v_max3_f32', 'v_max_f32', regs, t0, t1)
        A.label(Lok)
        xhalf(A, 'v_max_f32', t0, t1)
        A('v_mul_f32 %s, %s, -%s' % (vr(CM + 2), vr(CM), vr(t0)))
        o = vr(O, 16)
        for i in range(9):
            rr = regs[16 * i:16 * i + 16]
            for k in range(0, 16, 2):
                A('v_pk_fma_f32 %s, %s, %s, %s op_sel_hi:[1,0,0]' % (vr(rr[k], 2), vr(rr[k], 2), vr(CM, 2), vr(CM + 2, 2)))
            if i >= 1:
                if it == 0:
                    need_('v', it + i - 1)
                A('v_mfma_f32_32x32x16_bf16 %s, %s, %s, %s' % (o, ar(VA + 8 * (it + i - 1), 4), vr(S + 16 * (i - 1), 4), '0' if i == 1 else o))
            for r in rr[:8]:
                A('v_exp_f32 %s, %s' % (vr(r), vr(r)))
            if i >= 1:
                A('v_mfma_f32_32x32x16_bf16 %s, %s, %s, %s' % (o, ar(VA + 8 * (it + i - 1) + 4, 4), vr(S + 16 * (i - 1) + 4, 4), o))
            for r in rr[8:]:
                A('v_exp_f32 %s, %s' % (vr(r), vr(r)))
            for k in range(0, 16, 2):
                d = LP + 2 * ((k >> 1) & 1)
                if i == 0 and k < 4:
                    A('v_pk_add_f32 %s, %s, 0' % (vr(d, 2), vr(rr[k], 2)))
                else:
                    A('v_pk_add_f32 %s, %s, %s' % (vr(d, 2), vr(d, 2), vr(rr[k], 2)))
            for k in range(8):
                A('v_cvt_pk_bf16_f32 %s, %s, %s' % (vr(S + 16 * i + k), vr(rr[2 * k]), vr(rr[2 * k + 1])))
        need_('v', it + 8)
        A('v_pk_add_f32 %s, %s, %s' % (vr(LP, 2), vr(LP, 2), vr(LP + 2, 2)))
        A('v_mfma_f32_32x32x16_bf16 %s, %s, %s, %s' % (o, ar(VA + 8 * (it + 8), 4), vr(S + 128, 4), o))
        A('v_mfma_f32_32x32x16_bf16 %s, %s, %s, %s' % (o, ar(VA + 8 * (it + 8) + 4, 4), vr(S + 132, 4), o))
        A('v_add_f32 %s, %s, %s' % (vr(LP), vr(LP), vr(LP + 1)))
        xhalf(A, 'v_add_f32', LP, LP + 1)
        A('v_rcp_f32 %s, %s' % (vr(LP), vr(LP)))
        A('s_add_u32 %s, %s, %d' % (sr(s3), sr(s0), it * 65536))
        for r in range(0, 16, 2):
            A('v_pk_mul_f32 %s, %s, %s op_sel_hi:[1,0]' % (vr(O + r, 2), vr(O + r, 2), vr(LP, 2)))
        for k in range(8):
            A('v_cvt_pk_bf16_f32 %s, %s, %s' % (vr(OP + k), vr(O + 2 * k), vr(O + 2 * k + 1)))
        for j in range(2):
            A('buffer_store_dwordx4 %s, %s, %s, %s offen offset:%d%s' % (vr(OP + 4 * j, 4), vr(v_o), sr(SRD, 4), sr(s3), j * 1024, stf))
            nst[0] += 1
        if it < 3:
            need_('q', it + 1)
    return V.hi


def _maxtile(A, rr, t0, t1, first):
    i = 0
    if first:
        A('v_max3_f32 %s, %s, %s, %s' % (vr(t0), vr(rr[0]), vr(rr[1]), vr(rr[2])))
        A('v_max3_f32 %s, %s, %s, %s' % (vr(t1), vr(rr[3]), vr(rr[4]), vr(rr[5])))
        i = 6
    k = 0
    while i < 16:
        t = (t0, t1)[k & 1]
        A('v_max3_f32 %s, %s, %s, %s' % (vr(t), vr(t), vr(rr[i]), vr(rr[i + 1])))
        i += 2
        k += 1


def attn_a_n(A, SRD, s_item, st, v_lane, v_l16, V0, n, ld='', stf=''):
    V = Regs('v', V0, 256)
    s0, s1, s2, s3 = st
    SET_V = V.alloc(136, 4)
    SX = V.alloc(16, 4)
    SM = V.alloc(16, 4)
    MC = V.alloc(16, 4)
    O = V.alloc(32, 4)
    PX = V.alloc(12, 4)
    PM = PX + 8
    v_km, v_d, v_neg, t0, t1, v_vm, v_k, v_v, v_o = [V.alloc() for _ in range(9)]
    OP = SM + 8
    A('v_add_u32 %s, 0x%x, %s' % (vr(v_k), KX, vr(v_l16)))
    A('v_add_u32 %s, 0x%x, %s' % (vr(v_v), VX, vr(v_l16)))
    A('v_add_u32 %s, 0x%x, %s' % (vr(v_o), OA, vr(v_l16)))
    A('v_and_b32 %s, 7, %s' % (vr(v_km), vr(v_lane)))
    A('v_lshlrev_b32 %s, 4, %s' % (vr(v_km), vr(v_km)))
    A('v_lshrrev_b32 %s, 5, %s' % (vr(v_d), vr(v_lane)))
    A('v_lshl_add_u32 %s, %s, 8, %s' % (vr(v_km), vr(v_d), vr(v_km)))
    A('v_add_u32 %s, 0x%x, %s' % (vr(v_km), KMO + 128, vr(v_km)))
    A('v_and_b32 %s, 15, %s' % (vr(v_vm), vr(v_lane)))
    A('v_lshlrev_b32 %s, 4, %s' % (vr(v_vm), vr(v_vm)))
    A('v_lshl_add_u32 %s, %s, 8, %s' % (vr(v_vm), vr(v_d), vr(v_vm)))
    A('v_bfe_u32 %s, %s, 4, 1' % (vr(v_neg), vr(v_lane)))
    A('v_lshl_add_u32 %s, %s, 3, %s' % (vr(v_vm), vr(v_neg), vr(v_vm)))
    A('v_add_u32 %s, 0x%x, %s' % (vr(v_vm), VMO, vr(v_vm)))

    def R(setn, off, cnt):
        return vr(SET_V + off, cnt) if setn == 0 else ar(off, cnt)
    Qo, Ko, KMo, VXo, VMo = 0, 32, 64, 96, 128

    def loads(it):
        sn = it & 1
        A('s_add_u32 %s, %s, %d' % (sr(s2), sr(s_item), 32 * it))
        A('s_lshl_b32 %s, %s, 13' % (sr(s0), sr(s2)))
        A('s_add_u32 %s, %s, 4096' % (sr(s1), sr(s0)))
        A('s_lshl_b32 %s, %s, 12' % (sr(s2), sr(s2)))
        for k in range(8):
            so = s0 if k < 4 else s1
            A('buffer_load_dwordx4 %s, %s, %s, %s offen offset:%d%s' % (R(sn, Qo + 4 * k, 4), vr(v_l16), sr(SRD, 4), sr(so), (k & 3) * 1024, ld))
            A('buffer_load_dwordx4 %s, %s, %s, %s offen offset:%d%s' % (R(sn, Ko + 4 * k, 4), vr(v_k), sr(SRD, 4), sr(so), (k & 3) * 1024, ld))
        for k in range(8):
            A('buffer_load_dwordx4 %s, %s, %s, %s offen offset:%d%s' % (R(sn, KMo + 4 * k, 4), vr(v_km), sr(SRD, 4), sr(s2), k * 512, ld))
        for k in range(8):
            so = s0 if k < 4 else s1
            A('buffer_load_dwordx4 %s, %s, %s, %s offen offset:%d%s' % (R(sn, VXo + 4 * k, 4), vr(v_v), sr(SRD, 4), sr(so), (k & 3) * 1024, ld))
        for k in range(4):
            A('buffer_load_dwordx2 %s, %s, %s, %s offen offset:%d%s' % (R(sn, VMo + 2 * k, 2), vr(v_vm), sr(SRD, 4), sr(s2), k * 1024, ld))
    loads(0)
    A('v_lshlrev_b32 %s, 2, %s' % (vr(v_d), vr(v_d)))
    A('v_and_b32 %s, 31, %s' % (vr(v_neg), vr(v_lane)))
    A('v_sub_u32 %s, %s, %s' % (vr(v_d), vr(v_neg), vr(v_d)))
    A('v_mov_b32 %s, 0x%x' % (vr(v_neg), f32bits(-1e30)))
    mask_init(A, MC, v_d, v_neg, True)
    A('s_mov_b32 %s, 0x%x' % (sr(s3), f32bits(128 ** -0.5 * LOG2E)))
    for it in range(n):
        sn = it & 1
        A('s_waitcnt vmcnt(12)' if it == 0 else 's_waitcnt vmcnt(8)')
        for k in range(8):
            A('v_mfma_f32_32x32x16_bf16 %s, %s, %s, %s' % (vr(SX, 16), R(sn, Ko + 4 * k, 4), R(sn, Qo + 4 * k, 4), vr(MC, 16) if k == 0 else vr(SX, 16)))
        for k in range(8):
            A('v_mfma_f32_32x32x16_bf16 %s, %s, %s, %s' % (vr(SM, 16), R(sn, KMo + 4 * k, 4), R(sn, Qo + 4 * k, 4), '0' if k == 0 else vr(SM, 16)))
        if it + 1 < n:
            loads(it + 1)
        regs = [SX + i for i in range(16)] + [SM + i for i in range(4)]
        tree(A, 'v_max3_f32', 'v_max_f32', regs, t0, t1)
        xhalf(A, 'v_max_f32', t0, t1)
        A('v_mul_f32 %s, %s, %s' % (vr(t0), sr(s3), vr(t0)))
        for r in regs:
            A('v_fma_f32 %s, %s, %s, -%s' % (vr(r), vr(r), sr(s3), vr(t0)))
        for r in regs:
            A('v_exp_f32 %s, %s' % (vr(r), vr(r)))
        sum_regs(A, regs, t0, t1)
        xhalf(A, 'v_add_f32', t0, t1)
        A('v_rcp_f32 %s, %s' % (vr(t0), vr(t0)))
        for r in regs:
            A('v_mul_f32 %s, %s, %s' % (vr(r), vr(r), vr(t0)))
        for i in range(8):
            A('v_cvt_pk_bf16_f32 %s, %s, %s' % (vr(PX + i), vr(SX + 2 * i), vr(SX + 2 * i + 1)))
        for i in range(2):
            A('v_cvt_pk_bf16_f32 %s, %s, %s' % (vr(PM + i), vr(SM + 2 * i), vr(SM + 2 * i + 1)))
        A('s_add_u32 %s, %s, %d' % (sr(s2), sr(s_item), 32 * it))
        A('s_lshl_b32 %s, %s, 13' % (sr(s0), sr(s2)))
        A('s_add_u32 %s, %s, 4096' % (sr(s1), sr(s0)))

        def pv(eb):
            o = vr(O + 16 * (eb & 1), 16)
            A('v_mfma_f32_32x32x16_bf16 %s, %s, %s, 0' % (o, R(sn, VXo + 8 * eb, 4), vr(PX, 4)))
            A('v_mfma_f32_32x32x16_bf16 %s, %s, %s, %s' % (o, R(sn, VXo + 8 * eb + 4, 4), vr(PX + 4, 4), o))
            A('v_mfma_f32_32x32x8_bf16 %s, %s, %s, %s' % (o, R(sn, VMo + 2 * eb, 2), vr(PM, 2), o))

        def st_(eb):
            d = (SX if eb & 1 else SX + 8)
            ob = O + 16 * (eb & 1)
            for i in range(8):
                A('v_cvt_pk_bf16_f32 %s, %s, %s' % (vr(d + i), vr(ob + 2 * i), vr(ob + 2 * i + 1)))
            so = s0 if eb < 2 else s1
            for j in range(2):
                A('buffer_store_dwordx4 %s, %s, %s, %s offen offset:%d%s' % (vr(d + 4 * j, 4), vr(v_o), sr(SRD, 4), sr(so), (eb & 1) * 2048 + j * 1024, stf))
        if it == 0:
            A('s_waitcnt vmcnt(%d)' % (36 if n > 1 else 0))
        pv(0)
        pv(1)
        st_(0)
        pv(2)
        st_(1)
        pv(3)
        st_(2)
        st_(3)
    return V.hi
```

```python
from asmlib import *
from layout import *
import struct, os


def f32bits(x):
    return struct.unpack('<I', struct.pack('<f', x))[0]


LDS_MEM = 131072
LDS_O = LDS_MEM + 16384
LDS_ROLE = LDS_O + 8192
NSTEP = int(os.environ.get('NSTEP', '64'))
POLL_LIMIT = 400000
DIAG = int(os.environ.get('DIAG', '0'))
PF = [int(x) for x in os.environ.get('PF', '4,4,1,3,0,0,4,0').split(',')]
PIPE = int(os.environ.get('PIPE', '1'))
E_DEPTH = int(os.environ.get('E_DEPTH', '0'))
E_INT = int(os.environ.get('E_INT', '3'))
E_INT2 = int(os.environ.get('E_INT2', '0'))
EARLY_SIDE = int(os.environ.get('EARLY_SIDE', '0'))
NEARX = int(os.environ.get('NEARX', '1'))
PFB_SPAN = int(os.environ.get('PFB_SPAN', '9'))
NOE_SLEEP = int(os.environ.get('NOE_SLEEP', '0'))
FINE = os.environ.get('FINE', '')
DELAY_C = int(os.environ.get('DELAY_C', '0'))
TOUCH = int(os.environ.get('TOUCH', '1'))
PRET = int(os.environ.get('PRET', '0'))
DELAY_E = int(os.environ.get('DELAY_E', '5'))
NOCOPY = int(os.environ.get('NOCOPY', '0'))
NOPF = int(os.environ.get('NOPF', '0'))
WARM = int(os.environ.get('WARM', '1'))


def gen_chain(A, name, stamps=False, nsteps=NSTEP, flat=False, four=True, worker=None):
    ISC = ' sc1' if flat else ''
    S = Regs('s', 16, 100)
    V = Regs('v', 1, 256)
    SRD_WS = 8
    SRD_T = 12
    s_ptr = S.alloc(16, 4)
    s_w = S.alloc()
    s_x = S.alloc()
    s_j = S.alloc()
    s_t0 = S.alloc()
    s_t1 = S.alloc()
    s_t2 = S.alloc()
    s_t3 = S.alloc()
    s_step = S.alloc()
    s_slot = S.alloc()
    s_slot1 = S.alloc()
    s_slot2 = S.alloc()
    s_kx = S.alloc()
    s_kx2 = S.alloc()
    s_out = S.alloc()
    s_fffe = S.alloc()
    s_c = S.alloc()
    s_lim = S.alloc()
    s_cnt = S.alloc()
    s_pend = S.alloc()
    s_exlo = S.alloc(2, 2)
    s_hf = S.alloc(2, 2)
    s_tm = S.alloc(2, 2)
    s_stamp = S.alloc()
    s_vxl = S.alloc()
    s_kvo = S.alloc()
    s_red = S.alloc()
    s_obm = S.alloc()
    s_stl = S.alloc()
    s_ps = S.alloc()
    s_ps2 = S.alloc()
    v_lane = V.alloc()
    v_nu = V.alloc()
    v_g = V.alloc()
    v_t = [V.alloc() for _ in range(8)]
    va_memr = V.alloc()
    va_mems = V.alloc()
    va_memz = V.alloc()
    va_rw = V.alloc()
    va_rr = V.alloc()
    va_rrv = V.alloc()
    va_qks = V.alloc()
    va_rb = V.alloc()
    va_vs = V.alloc()
    va_cp = V.alloc()
    va_prog = V.alloc()
    va_qkr = V.alloc()
    va_vmr = V.alloc()
    va_kx = V.alloc()
    va_vx = V.alloc()
    va_ow = V.alloc()
    va_or = V.alloc()
    va_pw = V.alloc()
    va_pr = V.alloc()
    va_pw2 = V.alloc()
    va_pd = V.alloc()
    va_warm = V.alloc()
    v_idx = V.alloc()
    va_vxr = V.alloc()
    v_m1 = V.alloc(4, 4)
    v_mask = V.alloc(4, 4)
    v_sel = V.alloc(4, 4)
    v_maskx = V.alloc(4, 4)
    v_ones = V.alloc(4, 4)
    v_bias = V.alloc()
    v_junk = V.alloc()
    v_kvf = V.alloc()
    v_junk2 = V.alloc()
    v_zero = V.alloc()
    acc1 = V.alloc(4, 4)
    acc2 = V.alloc(4, 4)
    KXA = V.alloc(16, 4)
    KXB = V.alloc(16, 4)
    VXR = V.alloc(32, 4)
    VMR = V.alloc(8, 4)
    QK = V.alloc(16, 4)
    F = V.alloc(64, 4)
    M = V.alloc(16, 4)
    PR = F + 52
    RB = F + 60
    SA, SB, SM = F, F + 4, F + 8
    PX, PXH = F + 12, F + 16
    PM, PMH = F + 20, F + 22
    AC = F
    HA = F + 24
    RD = F + 36
    O = F + 28
    LS = F + 44
    v_mx, v_mx2, v_l = F + 48, F + 49, F + 50
    XY = QK
    G = F
    W1, W2, W3 = 0, 128, 192

    L_exit = name + '_exit'
    nvm = [0]

    def stamp(k):
        if not stamps:
            return
        A('%s %s' % ('s_memrealtime' if stamps == 'rt' else 's_memtime', sr(s_tm, 2)))
        A('s_waitcnt lgkmcnt(0)')
        A('v_mov_b32 %s, %s' % (vr(v_t[7]), sr(s_tm)))
        A('v_mov_b32 %s, %s' % (vr(v_t[6]), sr(s_stl)))
        A('ds_write_b32 %s, %s offset:%d' % (vr(v_t[6]), vr(v_t[7]), 4 * k))
        if k in (0, 2, 6):
            A('v_mov_b32 %s, %s' % (vr(v_t[5]), sr(s_cnt)))
            A('ds_write_b32 %s, %s offset:%d' % (vr(v_t[6]), vr(v_t[5]), 4 * (8 + k)))

    def srd(dst, ptr, nbytes):
        A('s_mov_b32 %s, %s' % (sr(dst), sr(ptr)))
        A('s_and_b32 %s, %s, 0xffff' % (sr(dst + 1), sr(ptr + 1)))
        A('s_mov_b32 %s, 0x%x' % (sr(dst + 2), nbytes))
        A('s_mov_b32 %s, 0x00020000' % sr(dst + 3))

    A.raw('.p2align 8')
    A.label(name)
    A('s_cmp_ge_u32 s2, 256')
    A('s_cbranch_scc1 ' + L_exit)
    A('s_load_dwordx2 %s, s[0:1], 8' % sr(s_ptr, 2))
    A('s_load_dwordx4 %s, s[0:1], 16' % sr(s_ptr + 4, 4))
    A('s_load_dwordx4 %s, s[0:1], 32' % sr(s_ptr + 8, 4))
    A('s_load_dwordx4 %s, s[0:1], 88' % sr(s_ptr + 12, 4))
    P_MEM0, P_WQ, P_WK, P_WV, P_WO, P_DBG, P_WS = s_ptr, s_ptr + 4, s_ptr + 6, s_ptr + 8, s_ptr + 10, s_ptr + 12, s_ptr + 14
    A('v_and_b32 %s, 63, v0' % vr(v_lane))
    A('v_lshrrev_b32 %s, 6, v0' % vr(v_t[0]))
    A('v_readfirstlane_b32 %s, %s' % (sr(s_w), vr(v_t[0])))
    A('v_and_b32 %s, 15, %s' % (vr(v_nu), vr(v_lane)))
    A('v_lshrrev_b32 %s, 4, %s' % (vr(v_g), vr(v_lane)))
    A('s_waitcnt lgkmcnt(0)')
    srd(SRD_WS, P_WS, WS_BYTES)
    srd(SRD_T, P_DBG, 256)
    if flat:
        A('s_and_b32 %s, s2, 7' % sr(s_x))
        A('s_lshr_b32 %s, s2, 3' % sr(s_j))
    else:
        A('s_getreg_b32 %s, hwreg(HW_REG_XCC_ID)' % sr(s_x))
        A('s_and_b32 %s, %s, 7' % (sr(s_x), sr(s_x)))
        L_norole = A.uid('norole')
        A('s_cmp_lg_u32 %s, 0' % sr(s_w))
        A('s_cbranch_scc1 ' + L_norole)
        A('s_lshl_b32 %s, %s, 2' % (sr(s_t0), sr(s_x)))
        A('v_mov_b32 %s, %s' % (vr(v_t[0]), sr(s_t0)))
        A('v_mov_b32 %s, 1' % vr(v_t[1]))
        A('s_mov_b64 exec, 1')
        A('buffer_atomic_add %s, %s, %s, 0 offen sc0 sc1' % (vr(v_t[1]), vr(v_t[0]), sr(SRD_T, 4)))
        A('s_waitcnt vmcnt(0)')
        A('v_mov_b32 %s, %d' % (vr(v_t[0]), LDS_ROLE))
        A('ds_write_b32 %s, %s' % (vr(v_t[0]), vr(v_t[1])))
        A('s_waitcnt lgkmcnt(0)')
        A('s_mov_b64 exec, -1')
        A.label(L_norole)
        A('s_barrier')
        A('v_mov_b32 %s, %d' % (vr(v_t[0]), LDS_ROLE))
        A('ds_read_b32 %s, %s' % (vr(v_t[1]), vr(v_t[0])))
        A('s_waitcnt lgkmcnt(0)')
        A('v_readfirstlane_b32 %s, %s' % (sr(s_j), vr(v_t[1])))
    L_work = name + '_worker' if worker else L_exit
    TESTW = int(os.environ.get('TESTW', '0'))
    if TESTW:
        A('s_cmp_ge_u32 %s, %d' % (sr(s_j), 32 - TESTW))
        A('s_cbranch_scc1 ' + L_work)
        A('s_branch ' + L_exit)
    if four and not flat:
        A('s_mov_b32 s3, %s' % sr(s_j))
        A('s_cmp_ge_u32 %s, 4' % sr(s_x))
        A('s_cbranch_scc1 ' + L_work)
        A('s_mov_b32 s3, -1')
        A('s_cmp_ge_u32 %s, 32' % sr(s_j))
        A('s_cbranch_scc1 ' + L_work)
        A('s_lshl_b32 %s, %s, 1' % (sr(s_x), sr(s_x)))
        A('s_lshr_b32 %s, %s, 4' % (sr(s_t0), sr(s_j)))
        A('s_add_u32 %s, %s, %s' % (sr(s_x), sr(s_x), sr(s_t0)))
        A('s_and_b32 %s, %s, 15' % (sr(s_j), sr(s_j)))
    else:
        A('s_cmp_ge_u32 %s, 16' % sr(s_j))
        A('s_cbranch_scc1 ' + L_work)
    A('s_xor_b32 %s, %s, %s' % (sr(s_red), sr(s_x), sr(s_j)))
    A('s_and_b32 %s, %s, 1' % (sr(s_red), sr(s_red)))
    A('s_lshr_b32 %s, %s, 1' % (sr(s_obm), sr(s_x)))
    A('s_lshl_b32 %s, %s, 4' % (sr(s_obm), sr(s_obm)))
    A('s_add_u32 %s, %s, %s' % (sr(s_obm), sr(s_obm), sr(s_j)))
    A('s_lshl_b32 %s, %s, 10' % (sr(s_obm), sr(s_obm)))

    if stamps:
        s_e = S.alloc(6, 2)
        A('s_memrealtime %s' % sr(s_e, 2))
    if worker:
        L_noz = A.uid('noz')
        A('s_or_b32 %s, %s, %s' % (sr(s_t0), sr(s_x), sr(s_j)))
        A('s_xor_b32 %s, %s, 1' % (sr(s_t1), sr(s_w)))
        A('s_or_b32 %s, %s, %s' % (sr(s_t0), sr(s_t0), sr(s_t1)))
        A('s_cmp_lg_u32 %s, 0' % sr(s_t0))
        A('s_cbranch_scc1 ' + L_noz)
        A('v_lshlrev_b32 %s, 7, %s' % (vr(v_t[0]), vr(v_lane)))
        A('v_mov_b32 %s, 0' % vr(v_t[1]))
        for i in range(4):
            A('s_mov_b32 %s, 0x%x' % (sr(s_t0), CTR + i * 8192))
            A('buffer_store_dword %s, %s, %s, %s offen sc1' % (vr(v_t[1]), vr(v_t[0]), sr(SRD_WS, 4), sr(s_t0)))
        A('s_waitcnt vmcnt(0)')
        A('v_mov_b32 %s, %d' % (vr(v_t[0]), DBG_INIT))
        A('v_mov_b32 %s, 1' % vr(v_t[1]))
        A('s_mov_b64 exec, 1')
        A('buffer_store_dword %s, %s, %s, 0 offen sc1' % (vr(v_t[1]), vr(v_t[0]), sr(SRD_T, 4)))
        A('s_mov_b64 exec, -1')
        A.label(L_noz)
    A('s_mov_b32 %s, 0xfffefffe' % sr(s_fffe))
    A('s_mov_b32 %s, 0x%x' % (sr(s_c), f32bits(128 ** -0.5 * 1.4426950408889634)))
    A('s_mov_b32 %s, %d' % (sr(s_lim), POLL_LIMIT))
    A('s_mov_b32 %s, 0x00ff00ff' % sr(s_exlo))
    A('s_mov_b32 %s, 0x00ff00ff' % sr(s_exlo + 1))
    A('s_mov_b32 %s, 0xff00ff00' % sr(s_hf))
    A('s_mov_b32 %s, 0xff00ff00' % sr(s_hf + 1))
    for i in range(4):
        A('v_mov_b32 %s, -1' % vr(v_m1 + i))
    A('v_mov_b32 %s, 0x%x' % (vr(v_t[0]), f32bits(-1e30)))
    for i in range(4):
        A('v_cndmask_b32 %s, 0, %s, %s' % (vr(v_maskx + i), vr(v_t[0]), sr(s_hf, 2)))
    A('v_cmp_gt_u32 vcc, 32, %s' % vr(v_lane))
    for i in range(4):
        A('v_cndmask_b32 %s, %s, %s, vcc' % (vr(v_mask + i), vr(v_maskx), vr(v_t[0])))
    A('v_mov_b32 %s, 0x%x' % (vr(v_t[0]), f32bits(-3e38)))
    A('v_cndmask_b32 %s, %s, 0, %s' % (vr(v_bias), vr(v_t[0]), sr(s_hf, 2)))
    for i in range(4):
        A('v_mov_b32 %s, 0x3f803f80' % vr(v_ones + i))
    A('v_mov_b32 %s, 0x4444' % vr(v_t[0]))
    A('v_mov_b32 %s, 0xeeee' % vr(v_t[1]))
    A('v_cmp_gt_u32 vcc, 8, %s' % vr(v_nu))
    A('v_cndmask_b32 %s, %s, %s, vcc' % (vr(v_idx), vr(v_t[1]), vr(v_t[0])))
    A('v_bfe_u32 %s, %s, 2, 1' % (vr(v_t[0]), vr(v_nu)))
    A('v_bfe_u32 %s, %s, 1, 1' % (vr(v_t[1]), vr(v_nu)))
    A('v_lshl_add_u32 %s, %s, 1, %s' % (vr(v_t[0]), vr(v_t[1]), vr(v_t[0])))
    A('v_and_b32 %s, 1, %s' % (vr(v_t[1]), vr(v_nu)))
    A('v_lshlrev_b32 %s, 4, %s' % (vr(v_t[1]), vr(v_t[1])))
    A('v_mov_b32 %s, 0x3f80' % vr(v_t[2]))
    A('v_lshlrev_b32 %s, %s, %s' % (vr(v_t[1]), vr(v_t[1]), vr(v_t[2])))
    for d in range(4):
        A('v_cmp_eq_u32 vcc, %d, %s' % (d, vr(v_t[0])))
        A('v_cndmask_b32 %s, 0, %s, vcc' % (vr(v_sel + d), vr(v_t[1])))

    l16 = v_t[2]
    A('v_lshlrev_b32 %s, 4, %s' % (vr(l16), vr(v_lane)))

    s_ob = s_t3
    A('s_lshl_b32 %s, %s, 4' % (sr(s_ob), sr(s_x)))
    A('s_add_u32 %s, %s, %s' % (sr(s_ob), sr(s_ob), sr(s_j)))
    A('s_lshl_b32 %s, %s, 10' % (sr(s_ob), sr(s_ob)))

    SRD_A = S.alloc(4, 4)
    if PRET:
        A('s_lshr_b32 %s, %s, 4' % (sr(s_t2), sr(s_ob)))
        A('s_lshl_b32 %s, %s, 21' % (sr(s_t0), sr(s_w)))
        A('s_add_u32 %s, %s, %s' % (sr(s_t2), sr(s_t2), sr(s_t0)))
        A('v_lshlrev_b32 %s, 13, %s' % (vr(v_t[4]), vr(v_lane)))
        for P in (P_WQ, P_WK, P_WV):
            srd(SRD_A, P, 1024 * 4096 * 2)
            for i in range(4):
                A('s_add_u32 %s, %s, %d' % (sr(s_t1), sr(s_t2), i * 64 * 8192))
                A('buffer_load_dword %s, %s, %s, %s offen' % (vr(v_junk), vr(v_t[4]), sr(SRD_A, 4), sr(s_t1)))
            A('s_nop 4')
        srd(SRD_A, P_WO, 4096 * 1024 * 2)
        A('v_lshlrev_b32 %s, 11, %s' % (vr(v_t[4]), vr(v_lane)))
        A('s_lshl_b32 %s, %s, 20' % (sr(s_t1), sr(s_x)))
        A('s_lshl_b32 %s, %s, 18' % (sr(s_t2), sr(s_w)))
        A('s_add_u32 %s, %s, %s' % (sr(s_t1), sr(s_t1), sr(s_t2)))
        A('s_lshl_b32 %s, %s, 7' % (sr(s_t2), sr(s_j)))
        A('s_add_u32 %s, %s, %s' % (sr(s_t2), sr(s_t1), sr(s_t2)))
        for i in range(2):
            A('s_add_u32 %s, %s, %d' % (sr(s_t1), sr(s_t2), i * 64 * 2048))
            A('buffer_load_dword %s, %s, %s, %s offen' % (vr(v_junk), vr(v_t[4]), sr(SRD_A, 4), sr(s_t1)))
        A('s_nop 4')

    A('s_lshl_b32 %s, %s, 17' % (sr(s_t0), sr(s_w)))
    A('s_add_u32 %s, %s, %s' % (sr(s_t0), sr(s_t0), sr(s_ob)))
    for base in (QKI, VMI):
        A('s_add_u32 %s, %s, 0x%x' % (sr(s_t1), sr(s_t0), base))
        A('buffer_store_dwordx4 %s, %s, %s, %s offen%s' % (vr(v_m1, 4), vr(l16), sr(SRD_WS, 4), sr(s_t1), ISC))
    A('s_lshl_b32 %s, %s, 17' % (sr(s_t0), sr(s_w)))
    A('s_add_u32 %s, %s, %s' % (sr(s_t0), sr(s_t0), sr(s_obm)))
    A('s_add_u32 %s, %s, 0x%x' % (sr(s_t1), sr(s_t0), MEMI))
    A('buffer_store_dwordx4 %s, %s, %s, %s offen%s' % (vr(v_m1, 4), vr(l16), sr(SRD_WS, 4), sr(s_t1), ISC))
    A('s_lshl_b32 %s, %s, 14' % (sr(s_t0), sr(s_j)))
    A('s_lshl_b32 %s, %s, 11' % (sr(s_t1), sr(s_w)))
    A('s_add_u32 %s, %s, %s' % (sr(s_t0), sr(s_t0), sr(s_t1)))
    A('s_add_u32 %s, %s, 0x%x' % (sr(s_t0), sr(s_t0), PART))
    A('v_add_u32 %s, %s, %s' % (vr(va_pr), sr(s_t0), vr(l16)))
    A('s_lshl_b32 %s, %s, 8' % (sr(s_t1), sr(s_x)))
    A('v_add_u32 %s, %s, %s' % (vr(va_pw), sr(s_t1), vr(va_pr)))
    A('v_add_u32 %s, 8192, %s' % (vr(va_pw2), vr(va_pw)))
    A('s_mov_b64 exec, 0xffff')
    for sl in range(4):
        A('s_mov_b32 %s, 0x%x' % (sr(s_t1), sl * 0x40000))
        A('buffer_store_dwordx4 %s, %s, %s, %s offen sc1' % (vr(v_m1, 4), vr(va_pw), sr(SRD_WS, 4), sr(s_t1)))
        A('buffer_store_dwordx4 %s, %s, %s, %s offen sc1' % (vr(v_m1, 4), vr(va_pw2), sr(SRD_WS, 4), sr(s_t1)))
    A('s_mov_b64 exec, -1')
    s_col = s_t2
    A('s_lshr_b32 %s, %s, 4' % (sr(s_col), sr(s_ob)))
    vw = v_t[4]
    A('v_lshrrev_b32 %s, 2, %s' % (vr(vw), vr(v_lane)))
    A('v_lshlrev_b32 %s, 13, %s' % (vr(vw), vr(vw)))
    A('v_and_b32 %s, 3, %s' % (vr(v_t[5]), vr(v_lane)))
    A('v_lshl_add_u32 %s, %s, 4, %s' % (vr(vw), vr(v_t[5]), vr(vw)))
    SRD_B = S.alloc(4, 4)
    A('s_lshl_b32 %s, %s, 21' % (sr(s_t0), sr(s_w)))
    A('s_add_u32 %s, %s, %s' % (sr(s_col), sr(s_col), sr(s_t0)))
    A('s_lshl_b32 %s, %s, 14' % (sr(s_t0), sr(s_w)))
    for mi, P in enumerate((P_WQ, P_WK)):
        srd(SRD_A, P, 1024 * 4096 * 2)
        for i in range(16):
            A('s_add_u32 m0, %s, %d' % (sr(s_t0), mi * 65536 + i * 1024))
            A('s_add_u32 %s, %s, %d' % (sr(s_t1), sr(s_col), i * 131072))
            A('buffer_load_dwordx4 %s, %s, %s offen lds' % (vr(vw), sr(SRD_A, 4), sr(s_t1)))
        if mi == 0:
            A('s_nop 4')
    LV = KXA
    assert KXB == KXA + 16 and VXR == KXA + 32
    srd(SRD_B, P_WV, 1024 * 4096 * 2)
    for i in range(16):
        A('s_add_u32 %s, %s, %d' % (sr(s_t1), sr(s_col), i * 131072))
        A('buffer_load_dwordx4 %s, %s, %s, %s offen' % (vr(LV + 4 * i, 4), vr(vw), sr(SRD_B, 4), sr(s_t1)))
    LO = F
    SRD_C = S.alloc(4, 4)
    srd(SRD_C, P_WO, 4096 * 1024 * 2)
    vo = v_t[5]
    A('v_lshrrev_b32 %s, 3, %s' % (vr(vo), vr(v_lane)))
    A('v_lshlrev_b32 %s, 11, %s' % (vr(vo), vr(vo)))
    A('v_and_b32 %s, 7, %s' % (vr(v_t[6]), vr(v_lane)))
    A('v_lshl_add_u32 %s, %s, 4, %s' % (vr(vo), vr(v_t[6]), vr(vo)))
    A('s_lshl_b32 %s, %s, 20' % (sr(s_t1), sr(s_x)))
    A('s_lshl_b32 %s, %s, 18' % (sr(s_t2), sr(s_w)))
    A('s_add_u32 %s, %s, %s' % (sr(s_t1), sr(s_t1), sr(s_t2)))
    A('s_lshl_b32 %s, %s, 7' % (sr(s_t2), sr(s_j)))
    A('s_add_u32 %s, %s, %s' % (sr(s_t2), sr(s_t1), sr(s_t2)))
    for i in range(16):
        A('s_add_u32 %s, %s, %d' % (sr(s_t1), sr(s_t2), i * 16384))
        A('buffer_load_dwordx4 %s, %s, %s, %s offen' % (vr(LO + 4 * i, 4), vr(vo), sr(SRD_C, 4), sr(s_t1)))
    SRD_D = S.alloc(4, 4)
    srd(SRD_D, P_MEM0, 8 * 1024 * 2)
    vm0 = v_t[6]
    A('v_and_b32 %s, 7, %s' % (vr(vm0), vr(v_nu)))
    A('v_lshlrev_b32 %s, 11, %s' % (vr(vm0), vr(vm0)))
    A('v_lshl_add_u32 %s, %s, 5, %s' % (vr(vm0), vr(v_g), vr(vm0)))
    A('v_lshrrev_b32 %s, 3, %s' % (vr(v_t[7]), vr(v_nu)))
    A('v_lshl_add_u32 %s, %s, 2, %s' % (vr(vm0), vr(v_t[7]), vr(vm0)))
    A('s_lshl_b32 %s, %s, 9' % (sr(s_t1), sr(s_w)))
    for k in range(4):
        for a in range(4):
            A('buffer_load_dword %s, %s, %s, %s offen offset:%d' % (vr(M + 4 * k + a), vr(vm0), sr(SRD_D, 4), sr(s_t1), k * 128 + a * 8))

    s_p = s_t0
    s_wh = s_t1
    A('s_and_b32 %s, %s, 1' % (sr(s_p), sr(s_w)))
    A('s_lshr_b32 %s, %s, 1' % (sr(s_wh), sr(s_w)))
    ta, tb, tc = v_t[0], v_t[1], v_t[7]
    A('s_lshl_b32 %s, %s, 12' % (sr(s_t2), sr(s_w)))
    A('v_add_u32 %s, %s, %s' % (vr(ta), sr(s_t2), vr(l16)))
    A('s_lshr_b32 %s, %s, 1' % (sr(s_t2), sr(s_x)))
    A('s_lshl_b32 %s, %s, 14' % (sr(s_t2), sr(s_t2)))
    A('s_add_u32 %s, %s, 0x%x' % (sr(s_t2), sr(s_t2), MEMI))
    A('v_add_u32 %s, %s, %s' % (vr(va_memr), sr(s_t2), vr(ta)))
    A('s_lshl_b32 %s, %s, 14' % (sr(s_t2), sr(s_x)))
    A('s_add_u32 %s, %s, 0x%x' % (sr(s_t2), sr(s_t2), QKI))
    A('v_add_u32 %s, %s, %s' % (vr(va_qkr), sr(s_t2), vr(ta)))
    A('s_lshl_b32 %s, %s, 12' % (sr(s_cnt), sr(s_w)))
    A('s_add_u32 %s, %s, %s' % (sr(s_t2), sr(s_t2), sr(s_cnt)))
    A('s_add_u32 %s, %s, 0x%x' % (sr(s_t2), sr(s_t2), VMI - QKI))
    A('v_and_b32 %s, 31, %s' % (vr(va_vmr), vr(v_lane)))
    A('v_lshlrev_b32 %s, 4, %s' % (vr(va_vmr), vr(va_vmr)))
    A('v_lshrrev_b32 %s, 5, %s' % (vr(ta), vr(v_lane)))
    A('v_xor_b32 %s, 1, %s' % (vr(ta), vr(ta)))
    A('v_lshl_add_u32 %s, %s, 11, %s' % (vr(va_vmr), vr(ta), vr(va_vmr)))
    A('v_add_u32 %s, %s, %s' % (vr(va_vmr), sr(s_t2), vr(va_vmr)))
    A('s_mul_i32 %s, %s, 3072' % (sr(s_t2), sr(s_w)))
    A('s_add_u32 %s, %s, %d' % (sr(s_t2), sr(s_t2), LDS_MEM))
    A('v_lshl_add_u32 %s, %s, 3, %s' % (vr(va_rw), vr(v_lane), sr(s_t2)))
    A('v_lshrrev_b32 %s, 5, %s' % (vr(ta), vr(v_lane)))
    A('v_mul_u32_u24 %s, 6144, %s' % (vr(ta), vr(ta)))
    A('v_and_b32 %s, 31, %s' % (vr(tb), vr(v_lane)))
    A('v_lshl_add_u32 %s, %s, 4, %s' % (vr(ta), vr(tb), vr(ta)))
    A('s_lshl_b32 %s, %s, 9' % (sr(s_t2), sr(s_w)))
    A('s_add_u32 %s, %s, %d' % (sr(s_t2), sr(s_t2), LDS_MEM))
    A('v_add_u32 %s, %s, %s' % (vr(va_rr), sr(s_t2), vr(ta)))
    A('s_lshl_b32 %s, %s, 9' % (sr(s_t2), sr(s_p)))
    A('s_add_u32 %s, %s, %d' % (sr(s_t2), sr(s_t2), LDS_MEM + 2048))
    A('v_add_u32 %s, %s, %s' % (vr(va_rrv), sr(s_t2), vr(ta)))
    vR, vcp, vH = tc, acc1, acc1 + 1
    A('v_bfe_u32 %s, %s, 3, 1' % (vr(ta), vr(v_lane)))
    A('v_bfe_u32 %s, %s, 4, 1' % (vr(tb), vr(v_lane)))
    A('v_lshlrev_b32 %s, 2, %s' % (vr(vR), vr(ta)))
    A('v_lshl_add_u32 %s, %s, 1, %s' % (vr(vR), vr(tb), vr(vR)))
    A('v_and_b32 %s, 7, %s' % (vr(vcp), vr(v_lane)))
    A('v_lshrrev_b32 %s, 5, %s' % (vr(vH), vr(v_lane)))
    A('v_lshlrev_b32 %s, 8, %s' % (vr(va_vs), vr(ta)))
    A('v_lshl_add_u32 %s, %s, 5, %s' % (vr(va_vs), vr(vcp), vr(va_vs)))
    A('v_lshl_add_u32 %s, %s, 4, %s' % (vr(va_vs), vr(vH), vr(va_vs)))
    A('v_lshl_add_u32 %s, %s, 2, %s' % (vr(va_vs), vr(tb), vr(va_vs)))
    A('s_lshl_b32 %s, %s, 3' % (sr(s_t2), sr(s_p)))
    A('s_add_u32 %s, %s, %s' % (sr(s_t2), sr(s_t2), sr(s_ob)))
    A('s_add_u32 %s, %s, 0x%x' % (sr(s_t2), sr(s_t2), VMI))
    A('s_cmp_ge_u32 %s, 2' % sr(s_w))
    A('s_cselect_b32 %s, 0x%x, %s' % (sr(s_t2), WS_BYTES, sr(s_t2)))
    A('v_add_u32 %s, %s, %s' % (vr(va_vs), sr(s_t2), vr(va_vs)))
    A('v_bfe_u32 %s, %s, 1, 1' % (vr(ta), vr(vcp)))
    A('v_lshlrev_b32 %s, 8, %s' % (vr(va_qks), vr(ta)))
    A('v_add_u32 %s, %s, %s' % (vr(vR), vr(vR), vr(vH)))
    A('v_lshl_add_u32 %s, %s, 4, %s' % (vr(va_qks), vr(vR), vr(va_qks)))
    A('v_lshrrev_b32 %s, 2, %s' % (vr(ta), vr(vcp)))
    A('v_lshl_add_u32 %s, %s, 3, %s' % (vr(va_qks), vr(ta), vr(va_qks)))
    A('v_and_b32 %s, 1, %s' % (vr(ta), vr(vcp)))
    A('v_lshl_add_u32 %s, %s, 2, %s' % (vr(va_qks), vr(ta), vr(va_qks)))
    A('s_lshl_b32 %s, %s, 9' % (sr(s_t2), sr(s_p)))
    A('v_add_u32 %s, %s, %s' % (vr(va_qks), sr(s_t2), vr(va_qks)))
    A('s_lshl_b32 %s, %s, 7' % (sr(s_t2), sr(s_wh)))
    A('s_add_u32 %s, %s, %s' % (sr(s_t2), sr(s_t2), sr(s_ob)))
    A('s_add_u32 %s, %s, 0x%x' % (sr(s_t2), sr(s_t2), QKI))
    A('v_add_u32 %s, %s, %s' % (vr(va_qks), sr(s_t2), vr(va_qks)))
    A('v_lshlrev_b32 %s, 4, %s' % (vr(va_mems), vr(v_nu)))
    A('v_lshl_add_u32 %s, %s, 2, %s' % (vr(va_mems), vr(v_g), vr(va_mems)))
    A('s_lshl_b32 %s, %s, 8' % (sr(s_t2), sr(s_w)))
    A('s_add_u32 %s, %s, %s' % (sr(s_t2), sr(s_t2), sr(s_obm)))
    A('s_add_u32 %s, %s, 0x%x' % (sr(s_t2), sr(s_t2), MEMI))
    A('v_add_u32 %s, %s, %s' % (vr(va_mems), sr(s_t2), vr(va_mems)))
    A('s_lshl_b32 %s, %s, 19' % (sr(s_t2), sr(s_w)))
    A('s_add_u32 %s, %s, %s' % (sr(s_t2), sr(s_t2), sr(s_ob)))
    A('s_add_u32 %s, %s, 0x%x' % (sr(s_t2), sr(s_t2), QKI))
    A('s_add_u32 %s, %s, 0x%x' % (sr(s_cnt), sr(s_obm), MEMI))
    A('s_cmp_eq_u32 %s, 0' % sr(s_red))
    A('s_cselect_b32 %s, %s, 0x%x' % (sr(s_cnt), sr(s_cnt), WS_BYTES))
    A('s_cmp_eq_u32 %s, 2' % sr(s_w))
    A('s_cselect_b32 %s, %s, %s' % (sr(s_t2), sr(s_cnt), sr(s_t2)))
    A('s_cmp_eq_u32 %s, 3' % sr(s_w))
    A('s_cselect_b32 %s, 0x%x, %s' % (sr(s_t2), WS_BYTES, sr(s_t2)))
    A('v_add_u32 %s, %s, %s' % (vr(va_memz), sr(s_t2), vr(l16)))
    A('s_lshr_b32 %s, %s, 1' % (sr(s_t2), sr(s_w)))
    A('s_lshl_b32 %s, %s, 10' % (sr(s_t2), sr(s_t2)))
    A('s_xor_b32 %s, %s, %s' % (sr(s_kvo), sr(s_t2), sr(s_ob)))
    A('s_and_b32 %s, %s, 1' % (sr(s_cnt), sr(s_w)))
    A('s_lshl_b32 %s, %s, 19' % (sr(s_t2), sr(s_cnt)))
    A('s_add_u32 %s, %s, %s' % (sr(s_t2), sr(s_t2), sr(s_kvo)))
    A('s_add_u32 %s, %s, 0x%x' % (sr(s_t2), sr(s_t2), QKI))
    A('s_lshl_b32 %s, %s, 23' % (sr(s_cnt), sr(s_cnt)))
    A('s_add_u32 %s, %s, %s' % (sr(s_cnt), sr(s_cnt), sr(s_kvo)))
    A('s_add_u32 %s, %s, 0x%x' % (sr(s_cnt), sr(s_cnt), KMO))
    assert VMO - KMO == 1 << 23
    A('v_add_u32 %s, %s, %s' % (vr(va_rb), sr(s_t2), vr(l16)))
    A('v_add_u32 %s, %s, %s' % (vr(va_cp), sr(s_cnt), vr(l16)))
    A('s_xor_b32 %s, %s, 1' % (sr(s_t2), sr(s_j)))
    A('s_or_b32 %s, %s, %s' % (sr(s_t2), sr(s_x), sr(s_t2)))
    A('s_xor_b32 %s, %s, 3' % (sr(s_cnt), sr(s_w)))
    A('s_or_b32 %s, %s, %s' % (sr(s_t2), sr(s_t2), sr(s_cnt)))
    A('s_cmp_eq_u32 %s, 0' % sr(s_t2))
    A('s_cselect_b32 %s, 0x%x, 0x%x' % (sr(s_t2), CTR + DBG_PROG * 128, WS_BYTES) if False else 's_mov_b32 %s, 0x%x' % (sr(s_cnt), CTR + DBG_PROG * 128))
    A('s_cselect_b32 %s, %s, 0x%x' % (sr(s_t2), sr(s_cnt), WS_BYTES))
    A('v_and_b32 %s, 3, %s' % (vr(v_zero), vr(v_lane)))
    A('v_lshlrev_b32 %s, 7, %s' % (vr(v_zero), vr(v_zero)))
    A('v_add_u32 %s, %s, %s' % (vr(va_prog), sr(s_t2), vr(v_zero)))
    A('v_add_u32 %s, 0x%x, %s' % (vr(v_zero), CTR, vr(v_zero)))
    s_h = s_t2
    A('s_lshl_b32 %s, %s, 2' % (sr(s_h), sr(s_x)))
    A('s_add_u32 %s, %s, %s' % (sr(s_h), sr(s_h), sr(s_w)))
    A('s_lshl_b32 %s, %s, 13' % (sr(s_h), sr(s_h)))
    A('v_and_b32 %s, 1, %s' % (vr(ta), vr(v_g)))
    A('v_lshrrev_b32 %s, 1, %s' % (vr(tb), vr(v_g)))
    A('v_lshlrev_b32 %s, 9, %s' % (vr(va_kx), vr(ta)))
    A('v_lshl_add_u32 %s, %s, 10, %s' % (vr(va_kx), vr(tb), vr(va_kx)))
    A('v_add_u32 %s, %s, %s' % (vr(va_kx), sr(s_h), vr(va_kx)))
    A('v_lshl_add_u32 %s, %s, 4, %s' % (vr(va_vx), vr(v_nu), vr(va_kx)))
    A('v_add_u32 %s, 0x%x, %s' % (vr(va_vx), VX, vr(va_vx)))
    A('v_lshrrev_b32 %s, 3, %s' % (vr(ta), vr(v_nu)))
    A('v_lshl_add_u32 %s, %s, 8, %s' % (vr(va_kx), vr(ta), vr(va_kx)))
    A('v_and_b32 %s, 7, %s' % (vr(ta), vr(v_nu)))
    A('v_lshl_add_u32 %s, %s, 4, %s' % (vr(va_kx), vr(ta), vr(va_kx)))
    A('v_add_u32 %s, 0x%x, %s' % (vr(va_kx), KX, vr(va_kx)))
    A('s_lshr_b32 %s, %s, 1' % (sr(s_t2), sr(s_j)))
    A('s_lshl_b32 %s, %s, 2' % (sr(s_t2), sr(s_t2)))
    A('s_add_u32 %s, %s, %s' % (sr(s_t2), sr(s_t2), sr(s_w)))
    A('s_and_b32 %s, %s, 15' % (sr(s_cnt), sr(s_t2)))
    A('s_lshl_b32 %s, %s, 11' % (sr(s_cnt), sr(s_cnt)))
    A('s_lshr_b32 %s, %s, 4' % (sr(s_t2), sr(s_t2)))
    A('s_lshl_b32 %s, %s, 24' % (sr(s_t2), sr(s_t2)))
    assert VX - KX == 1 << 24
    A('s_add_u32 %s, %s, %s' % (sr(s_t2), sr(s_t2), sr(s_cnt)))
    A('s_lshl_b32 %s, %s, 15' % (sr(s_cnt), sr(s_x)))
    A('s_add_u32 %s, %s, %s' % (sr(s_t2), sr(s_t2), sr(s_cnt)))
    A('s_add_u32 %s, %s, 0x%x' % (sr(s_t2), sr(s_t2), KX + 0x40000))
    A('v_lshl_add_u32 %s, %s, 5, %s' % (vr(va_warm), vr(v_lane), sr(s_t2)))
    A('v_add_u32 %s, %d, %s' % (vr(va_or), LDS_O, vr(l16)))
    A('v_lshrrev_b32 %s, 3, %s' % (vr(ta), vr(v_nu)))
    A('v_mul_u32_u24 %s, %d, %s' % (vr(ta), 1024 - 128, vr(ta)))
    A('s_lshl_b32 %s, %s, 11' % (sr(s_t2), sr(s_w)))
    A('v_add3_u32 %s, %s, %s, %s' % (vr(va_ow), sr(s_t2), vr(va_or), vr(ta)))
    A('s_lshl_b32 %s, %s, 13' % (sr(s_vxl), sr(s_w)))
    A('v_add_u32 %s, %s, %s' % (vr(va_vxr), sr(s_vxl), vr(l16)))
    if stamps:
        A('s_lshl_b32 %s, %s, 4' % (sr(s_stamp), sr(s_ob)))
        A('s_lshl_b32 %s, %s, 12' % (sr(s_t2), sr(s_w)))
        A('s_add_u32 %s, %s, %s' % (sr(s_stamp), sr(s_stamp), sr(s_t2)))
        A('s_add_u32 %s, %s, 0x%x' % (sr(s_stamp), sr(s_stamp), STAMP))
        A('s_add_u32 %s, %s, 65536' % (sr(s_stl), sr(s_t2)))

    vq1, vq2, vr_, vcq = acc1, acc1 + 1, acc1 + 2, acc1 + 3
    A('v_bfe_u32 %s, %s, 2, 2' % (vr(vr_), vr(v_lane)))
    A('v_and_b32 %s, 3, %s' % (vr(vcq), vr(v_lane)))
    A('v_lshl_add_u32 %s, %s, 3, %s' % (vr(vq1), vr(v_g), vr(vr_)))
    A('v_lshlrev_b32 %s, 6, %s' % (vr(vq1), vr(vq1)))
    A('v_lshl_add_u32 %s, %s, 3, %s' % (vr(vq1), vr(vcq), vr(vq1)))
    A('s_lshl_b32 %s, %s, 14' % (sr(s_t2), sr(s_w)))
    A('v_add_u32 %s, %s, %s' % (vr(vq1), sr(s_t2), vr(vq1)))
    A('v_add_u32 %s, 65536, %s' % (vr(tb), vr(vq1)))
    if stamps:
        A('s_memrealtime %s' % sr(s_e + 2, 2))
    A('s_waitcnt vmcnt(0)')
    if stamps:
        A('s_memrealtime %s' % sr(s_e + 4, 2))
    A('s_barrier')
    L_nord = A.uid('nord')
    A('s_cmp_lg_u32 %s, 0' % sr(s_w))
    A('s_cbranch_scc1 ' + L_nord)
    A('v_mov_b32 %s, 32' % vr(acc2))
    A('v_mov_b32 %s, 1' % vr(acc2 + 1))
    A('s_mov_b64 exec, 1')
    A('buffer_atomic_add %s, %s, %s, 0 offen sc1' % (vr(acc2 + 1), vr(acc2), sr(SRD_T, 4)))
    A('s_mov_b64 exec, -1')
    A.label(L_nord)
    for kk in range(4):
        for tl in range(4):
            for bh in range(2):
                for q in range(2):
                    A('ds_read_b64_tr_b16 %s, %s offset:%d' % (ar(W1 + 8 * (kk * 6 + tl) + 4 * bh + 2 * q, 2), vr(tb if tl >= 2 else vq1), kk * 4096 + bh * 2048 + q * 256 + (tl & 1) * 32))
            A('s_waitcnt lgkmcnt(8)')
    A('s_waitcnt lgkmcnt(0)')
    A('s_barrier')
    A('s_lshl_b32 %s, %s, 14' % (sr(s_t2), sr(s_w)))
    A('v_add_u32 %s, %s, %s' % (vr(ta), sr(s_t2), vr(l16)))
    A('v_add_u32 %s, 65536, %s' % (vr(tb), vr(ta)))
    for i in range(16):
        A('ds_write_b128 %s, %s offset:%d' % (vr(ta), vr(LV + 4 * i, 4), i * 1024))
        A('ds_write_b128 %s, %s offset:%d' % (vr(tb), vr(LO + 4 * i, 4), i * 1024))
        A('s_waitcnt lgkmcnt(8)')
    A('s_waitcnt lgkmcnt(0)')
    A('s_barrier')
    for kk in range(4):
        for tl in range(2):
            for bh in range(2):
                for q in range(2):
                    A('ds_read_b64_tr_b16 %s, %s offset:%d' % (ar(W1 + 8 * (kk * 6 + 4 + tl) + 4 * bh + 2 * q, 2), vr(vq1), kk * 4096 + bh * 2048 + q * 256 + tl * 32))
            A('s_waitcnt lgkmcnt(8)')
    A('v_and_b32 %s, 1, %s' % (vr(vq2), vr(v_g)))
    A('v_lshl_add_u32 %s, %s, 5, %s' % (vr(vq2), vr(vq2), vr(vr_)))
    A('v_lshrrev_b32 %s, 1, %s' % (vr(tb), vr(v_g)))
    A('v_lshl_add_u32 %s, %s, 2, %s' % (vr(vq2), vr(tb), vr(vq2)))
    A('v_lshlrev_b32 %s, 7, %s' % (vr(vq2), vr(vq2)))
    A('v_lshl_add_u32 %s, %s, 3, %s' % (vr(vq2), vr(vcq), vr(vq2)))
    A('s_lshl_b32 %s, %s, 5' % (sr(s_t2), sr(s_w)))
    A('s_add_u32 %s, %s, 65536' % (sr(s_t2), sr(s_t2)))
    A('v_add_u32 %s, %s, %s' % (vr(vq2), sr(s_t2), vr(vq2)))
    for k in range(8):
        for bh in range(2):
            for q in range(2):
                A('ds_read_b64_tr_b16 %s, %s offset:%d' % (ar(W3 + 8 * k + 4 * bh + 2 * q, 2), vr(vq2), k * 8192 + q * 2048 + bh * 1024))
        A('s_waitcnt lgkmcnt(8)')
    A('s_waitcnt lgkmcnt(0)')
    A('s_barrier')
    s_ta = S.alloc(2, 2)
    s_m0 = S.alloc()
    s_m1 = S.alloc()
    L_nocal = A.uid('nocal')
    A('s_or_b32 %s, %s, %s' % (sr(s_t2), sr(s_x), sr(s_j)))
    A('s_or_b32 %s, %s, %s' % (sr(s_t2), sr(s_t2), sr(s_w)))
    A('s_cmp_lg_u32 %s, 0' % sr(s_t2))
    A('s_cbranch_scc1 ' + L_nocal)
    A('s_mov_b32 %s, -1' % sr(s_m0))
    A('s_mov_b32 %s, -1' % sr(s_m1))
    A('s_mov_b64 exec, 0xffff')
    for rep in range(2):
        for c in range(2):
            A('s_mov_b32 %s, %d' % (sr(s_t1), 0x80000 + rep * 0x40000))
            A('s_memtime %s' % sr(s_ta, 2))
            A('s_waitcnt lgkmcnt(0)')
            A('buffer_store_dwordx4 %s, %s, %s, %s offen sc1' % (vr(v_m1, 4), vr(va_pw2 if c else va_pw), sr(SRD_WS, 4), sr(s_t1)))
            A('s_waitcnt vmcnt(0)')
            A('s_memtime %s' % sr(s_tm, 2))
            A('s_waitcnt lgkmcnt(0)')
            A('s_sub_u32 %s, %s, %s' % (sr(s_t2), sr(s_tm), sr(s_ta)))
            A('s_min_u32 %s, %s, %s' % (sr(s_m1 if c else s_m0), sr(s_m1 if c else s_m0), sr(s_t2)))
    A('s_cmp_lt_u32 %s, %s' % (sr(s_m1), sr(s_m0)))
    A('s_cselect_b32 %s, %d, %d' % (sr(s_t2), 2 if NEARX else 1, 1 if NEARX else 2))
    A('v_mov_b32 %s, %s' % (vr(v_t[1]), sr(s_t2)))
    A('v_mov_b32 %s, 36' % vr(v_t[0]))
    A('s_mov_b64 exec, 1')
    A('buffer_store_dword %s, %s, %s, 0 offen sc1' % (vr(v_t[1]), vr(v_t[0]), sr(SRD_T, 4)))
    A('s_mov_b64 exec, -1')
    A.label(L_nocal)
    A('s_barrier')

    def kx_ops():
        o = []
        for eb in range(4):
            so = s_kx if eb < 2 else s_kx2
            o.append(['buffer_load_dwordx4 %s, %s, %s, %s offen offset:%d' % (vr(KXA + 4 * eb, 4), vr(va_kx), sr(SRD_WS, 4), sr(so), (eb & 1) * 2048) + ' sc1'])
            o.append(['buffer_load_dwordx4 %s, %s, %s, %s offen offset:%d' % (vr(KXB + 4 * eb, 4), vr(va_kx), sr(SRD_WS, 4), sr(so), (eb & 1) * 2048 + 128) + ' sc1'])
        return o

    def vx_ops():
        o = []
        for T in range(8):
            eb = T >> 1
            so = s_kx if eb < 2 else s_kx2
            off = (eb & 1) * 2048 + (T & 1) * 256
            o.append(['s_add_u32 m0, %s, %d' % (sr(s_vxl), 4096 + T * 1024 - off), 's_nop 0',
                      'buffer_load_dwordx4 %s, %s, %s offen offset:%d sc1 lds' % (vr(va_vx), sr(SRD_WS, 4), sr(so), off)])
        return o

    def emit(it):
        for t in (it if isinstance(it, list) else [it]):
            A(t)
            if t.startswith('buffer_'):
                nvm[0] += 1

    A('s_mov_b32 %s, 0' % sr(s_step))
    A('s_mov_b32 %s, 0' % sr(s_slot))
    A('s_mov_b32 %s, 0x20000' % sr(s_slot1))
    A('s_mov_b32 %s, 0x40000' % sr(s_slot2))
    A('s_mov_b32 %s, 0' % sr(s_kx))
    A('s_mov_b32 %s, 4096' % sr(s_kx2))
    A('s_mov_b32 %s, 0' % sr(s_out))
    A('s_mov_b32 %s, 0' % sr(s_ps))
    A('s_mov_b32 %s, 0x80000' % sr(s_ps2))
    A('s_mov_b32 %s, %d' % (sr(s_kvo), DBG_KV * 128))

    def kv_wait(tag):
        Lw, Ld = A.uid('kvw' + tag), A.uid('kvd' + tag)
        A('s_mov_b32 %s, 0' % sr(s_cnt))
        A.label(Lw)
        A('s_sleep 4')
        A('buffer_load_dword %s, %s, %s, %s offen sc1' % (vr(v_kvf), vr(v_zero), sr(SRD_WS, 4), sr(s_kvo)))
        A('s_add_u32 %s, %s, 1' % (sr(s_cnt), sr(s_cnt)))
        A('s_cmp_gt_u32 %s, %s' % (sr(s_cnt), sr(s_lim)))
        A('s_cbranch_scc1 ' + Ld)
        A('s_waitcnt vmcnt(0)')
        A('v_cmp_gt_u32 vcc, 32, %s' % vr(v_kvf))
        A('s_cbranch_vccnz ' + Lw)
        A.label(Ld)
        A('s_waitcnt vmcnt(0)')
    stamp(7)
    if stamps:
        for i_, k_ in enumerate((11, 12, 13)):
            A('v_mov_b32 %s, %s' % (vr(v_t[7]), sr(s_e + 2 * i_)))
            A('ds_write_b32 %s, %s offset:%d' % (vr(v_t[6]), vr(v_t[7]), 4 * k_))
    if worker and TOUCH:
        s_tp = s_ptr
        SRD_E = SRD_A
        A('s_load_dwordx2 %s, s[0:1], 0' % sr(s_tp, 2))
        A('s_load_dwordx2 %s, s[0:1], 56' % sr(s_tp + 2, 2))
        A('s_load_dwordx4 %s, s[0:1], 64' % sr(s_tp + 4, 4))
        A('v_lshlrev_b32 %s, 7, %s' % (vr(v_t[7]), vr(v_lane)))
        A('s_lshl_b32 %s, %s, 4' % (sr(s_t1), sr(s_x)))
        A('s_add_u32 %s, %s, %s' % (sr(s_t1), sr(s_t1), sr(s_j)))
        A('s_lshl_b32 %s, %s, 2' % (sr(s_t1), sr(s_t1)))
        A('s_add_u32 %s, %s, %s' % (sr(s_t1), sr(s_t1), sr(s_w)))
        A('s_lshl_b32 %s, %s, 13' % (sr(s_t1), sr(s_t1)))
        A('s_waitcnt lgkmcnt(0)')
        for pi, nbytes in ((0, 4 << 20), (4, 6 << 20), (2, 4 << 20), (6, 2 << 20)):
            srd(SRD_E, s_tp + pi, nbytes)
            A('buffer_load_dword %s, %s, %s, %s offen' % (vr(v_junk), vr(v_t[7]), sr(SRD_E, 4), sr(s_t1)))
            if nbytes > (4 << 20):
                A('s_add_u32 %s, %s, 0x400000' % (sr(s_t2), sr(s_t1)))
                A('buffer_load_dword %s, %s, %s, %s offen' % (vr(v_junk), vr(v_t[7]), sr(SRD_E, 4), sr(s_t2)))
            A('s_nop 4')

    L_rdy = A.uid('rdy')
    L_rdy_done = A.uid('rdyd')
    A('v_mov_b32 %s, 32' % vr(v_t[0]))
    A('s_mov_b32 %s, 0' % sr(s_cnt))
    A.label(L_rdy)
    A('s_sleep 6')
    A('buffer_load_dwordx2 %s, %s, %s, 0 offen sc1' % (vr(acc1, 2), vr(v_t[0]), sr(SRD_T, 4)))
    A('s_add_u32 %s, %s, 1' % (sr(s_cnt), sr(s_cnt)))
    A('s_cmp_gt_u32 %s, %s' % (sr(s_cnt), sr(s_lim)))
    A('s_cbranch_scc1 ' + L_rdy_done)
    A('s_waitcnt vmcnt(0)')
    A('v_cmp_gt_u32 vcc, 128, %s' % vr(acc1))
    A('s_cbranch_vccnz ' + L_rdy)
    A('v_cmp_eq_u32 vcc, 0, %s' % vr(acc1 + 1))
    A('s_cbranch_vccnz ' + L_rdy)
    A.label(L_rdy_done)
    A('s_waitcnt vmcnt(0)')
    A('v_and_b32 %s, 2, %s' % (vr(acc1), vr(acc1 + 1)))
    A('v_lshlrev_b32 %s, 12, %s' % (vr(acc1), vr(acc1)))
    A('v_add_u32 %s, %s, %s' % (vr(va_pr), vr(va_pr), vr(acc1)))
    A('v_add_u32 %s, %s, %s' % (vr(va_pw), vr(va_pw), vr(acc1)))
    A('v_mul_u32_u24 %s, 252, %s' % (vr(acc1), vr(v_g)))
    A('v_sub_u32 %s, %s, %s' % (vr(va_pd), vr(va_pw), vr(acc1)))

    if worker:
        kv_wait('0')
    stamp(9)
    pf_all = kx_ops() + vx_ops()
    n_late = PF[6] + PF[7]
    for it in pf_all[:16 - n_late]:
        emit(it)
    A('s_waitcnt vmcnt(0)')
    L_step = name + '_step'
    L_havemem = name + '_havemem'
    A('s_branch ' + L_havemem)

    def chk_piece(base, bits16, t0, t1):
        if bits16:
            A('v_pk_max_u16 %s, %s, %s' % (vr(t0), vr(base), vr(base + 1)))
            A('v_pk_max_u16 %s, %s, %s' % (vr(t1), vr(base + 2), vr(base + 3)))
            A('v_pk_max_u16 %s, %s, %s' % (vr(t0), vr(t0), vr(t1)))
            A('v_pk_max_u16 %s, %s, %s op_sel:[0,1] op_sel_hi:[1,0]' % (vr(t0), vr(t0), vr(t0)))
        else:
            A('v_max3_u32 %s, %s, %s, %s' % (vr(t0), vr(base), vr(base + 1), vr(base + 2)))
            A('v_max_u32 %s, %s, %s' % (vr(t0), vr(t0), vr(base + 3)))
        A('v_cmp_eq_u32 vcc, -1, %s' % vr(t0))

    ool = []

    def poll(n, load, base, bits16, tag, on_ok=None):
        Ld = A.uid('polld' + tag)
        Lf = A.uid('pollf' + tag)
        Lk = [A.uid('poll%s%d' % (tag, k)) for k in range(n)]
        Lc = [A.uid('chk%s%d' % (tag, k)) for k in range(n)]
        Lo = [A.uid('ok%s%d' % (tag, k)) for k in range(n)]
        Lfs = [A.uid('pollf%s%d' % (tag, k)) for k in range(n)]

        def issue(m):
            A.label(Lk[m])
            for k in range(m, n):
                A(load(k))
            A('s_add_u32 %s, %s, 1' % (sr(s_cnt), sr(s_cnt)))
            A('s_cmp_gt_u32 %s, %s' % (sr(s_cnt), sr(s_lim)))
            A('s_cbranch_scc1 ' + Lfs[m])
        A('s_mov_b32 %s, 0' % sr(s_cnt))
        issue(0)
        for m in range(n):
            A.label(Lc[m])
            A('s_waitcnt vmcnt(%d)' % (n - 1 - m if PIPE else 0))
            if FINE == tag:
                stamp([7, 9, 11, 12][m])
            chk_piece(base + 4 * m, bits16, v_t[0], v_t[1])
            A('s_cbranch_vccnz ' + Lk[m])
            A.label(Lo[m])
            if on_ok:
                on_ok(m)
        A.label(Ld)

        def tail():
            for m in range(1, n):
                issue(m)
                A('s_branch ' + Lc[m])
            for m in range(n):
                A.label(Lfs[m])
                A('s_mov_b32 %s, 0' % sr(s_lim))
                A('s_waitcnt vmcnt(0)')
                A('s_branch ' + Lo[m])
        ool.append(tail)

    def halfadd(acc, d0, d1):
        A('v_permlane32_swap_b32 %s, %s' % (vr(acc), vr(acc + 2)))
        A('v_permlane32_swap_b32 %s, %s' % (vr(acc + 1), vr(acc + 3)))
        A('v_add_f32 %s, %s, %s' % (vr(d0), vr(acc), vr(acc + 2)))
        A('v_add_f32 %s, %s, %s' % (vr(d1), vr(acc + 1), vr(acc + 3)))

    def spread(main, side, n):
        pos = set()
        if n:
            for k in range(n):
                pos.add(int((k + 0.5) * len(main) / n))
        for i, m in enumerate(main):
            emit(m)
            if i in pos:
                emit(side.pop(0))

    def smf(acc, a, w):
        return 'v_smfmac_f32_16x16x64_bf16 %s, %s, %s, %s' % (vr(acc, 4), vr(a, 4), ar(w, 8), vr(v_idx))

    def frag(i):
        return M + 4 * i if i < 4 else F + 4 * (i - 4)

    if NOPF:
        for it in pf_all[16 - n_late:]:
            pass
        pf_all = [['s_nop 0'] for _ in pf_all]
    late = pf_all[16 - n_late:]
    assert PF[7] == 0

    def okA(k):
        for tl in range(6):
            A(smf(AC + 4 * tl, M + 4 * k, W1 + 8 * (k * 6 + tl)))

    def zero_acc():
        for i in range(24):
            A('v_mov_b32 %s, 0' % vr(AC + i))

    A.label(L_havemem)
    zero_acc()
    for k in range(4):
        okA(k)
    L_B = name + '_B'
    A('s_branch ' + L_B)
    A.label(L_step)
    zero_acc()
    poll(4, lambda k: 'buffer_load_dwordx4 %s, %s, %s, %s offen offset:%d sc1' % (vr(M + 4 * k, 4), vr(va_memr), sr(SRD_WS, 4), sr(s_slot), k * 1024), M, False, 'A', okA)
    A.label(L_B)
    stamp(0)
    for tl in range(6):
        if late:
            emit(late.pop(0))
        halfadd(AC + 4 * tl, HA + 2 * tl, HA + 2 * tl + 1)
        A('ds_write_b64 %s, %s offset:%d' % (vr(va_rw), vr(HA + 2 * tl, 2), tl * 512))
    assert not late
    A('s_waitcnt lgkmcnt(0)')
    A('s_barrier')
    if FINE:
        stamp(15)
    A('ds_read_b128 %s, %s' % (vr(RD, 4), vr(va_rr)))
    A('ds_read_b128 %s, %s offset:3072' % (vr(RD + 4, 4), vr(va_rr)))
    A('ds_read_b128 %s, %s' % (vr(RD + 8, 4), vr(va_rrv)))
    A('ds_read_b128 %s, %s offset:3072' % (vr(RD + 12, 4), vr(va_rrv)))
    A('s_waitcnt lgkmcnt(2)')
    A('v_pk_add_f32 %s, %s, %s' % (vr(RD, 2), vr(RD, 2), vr(RD + 4, 2)))
    A('v_pk_add_f32 %s, %s, %s' % (vr(RD + 2, 2), vr(RD + 2, 2), vr(RD + 6, 2)))
    A('v_permlane32_swap_b32 %s, %s' % (vr(RD), vr(RD + 1)))
    A('v_permlane32_swap_b32 %s, %s' % (vr(RD + 2), vr(RD + 3)))
    A('v_add_f32 %s, %s, %s' % (vr(v_t[0]), vr(RD), vr(RD + 1)))
    A('v_add_f32 %s, %s, %s' % (vr(v_t[1]), vr(RD + 2), vr(RD + 3)))
    A('v_cvt_pk_bf16_f32 %s, %s, %s' % (vr(v_t[2]), vr(v_t[0]), vr(v_t[1])))
    A('v_pk_min_u16 %s, %s, %s' % (vr(v_t[2]), vr(v_t[2]), sr(s_fffe)))
    A('buffer_store_dword %s, %s, %s, %s offen%s' % (vr(v_t[2]), vr(va_qks), sr(SRD_WS, 4), sr(s_slot), ISC))
    if FINE:
        stamp(13)
    A('s_waitcnt lgkmcnt(0)')
    A('v_pk_add_f32 %s, %s, %s' % (vr(RD + 8, 2), vr(RD + 8, 2), vr(RD + 12, 2)))
    A('v_pk_add_f32 %s, %s, %s' % (vr(RD + 10, 2), vr(RD + 10, 2), vr(RD + 14, 2)))
    for T in range(8 - n_late):
        A('ds_read_b128 %s, %s offset:%d' % (vr(VXR + 4 * T, 4), vr(va_vxr), 4096 + T * 1024))
    halfadd(RD + 8, v_t[0], v_t[1])
    A('v_cvt_pk_bf16_f32 %s, %s, %s' % (vr(v_t[3]), vr(v_t[0]), vr(v_t[1])))
    A('v_pk_min_u16 %s, %s, %s' % (vr(v_t[3]), vr(v_t[3]), sr(s_fffe)))
    A('buffer_store_dword %s, %s, %s, %s offen%s' % (vr(v_t[3]), vr(va_vs), sr(SRD_WS, 4), sr(s_slot), ISC))
    stamp(1)
    L_last = name + '_last'
    A('s_cmp_ge_u32 %s, %d' % (sr(s_step), nsteps - 1))
    A('s_cbranch_scc1 ' + L_last)
    A('s_add_u32 %s, %s, 0x40000' % (sr(s_kx), sr(s_kx)))
    A('s_add_u32 %s, %s, 0x40000' % (sr(s_kx2), sr(s_kx2)))
    if DELAY_C:
        A('s_sleep %d' % DELAY_C)

    Lc, Lcf, Lcd = A.uid('pC'), A.uid('pCf'), A.uid('pCd')
    A('s_mov_b32 %s, 0' % sr(s_cnt))
    A.label(Lc)
    for k in range(4):
        A('buffer_load_dwordx4 %s, %s, %s, %s offen offset:%d sc1' % (vr(QK + 4 * k, 4), vr(va_qkr), sr(SRD_WS, 4), sr(s_slot), k * 1024))
    A('s_add_u32 %s, %s, 1' % (sr(s_cnt), sr(s_cnt)))
    for t in range(4):
        A('s_waitcnt vmcnt(%d)' % (3 - t))
        if FINE == 'C':
            stamp([7, 9, 11, 12][t])
        q = QK + 4 * t
        A('v_mfma_f32_16x16x32_bf16 %s, %s, %s, %s' % (vr(SA, 4), vr(KXA + 4 * t, 4), vr(q, 4), vr(v_maskx, 4) if t == 0 else vr(SA, 4)))
        if t == 0:
            A('v_max3_u32 %s, %s, %s, %s' % (vr(v_t[0]), vr(q), vr(q + 1), vr(q + 2)))
        else:
            A('v_max3_u32 %s, %s, %s, %s' % (vr(v_t[0]), vr(v_t[0]), vr(q), vr(q + 1)))
        A('v_mfma_f32_16x16x32_bf16 %s, %s, %s, %s' % (vr(SB, 4), vr(KXB + 4 * t, 4), vr(q, 4), vr(v_maskx, 4) if t == 0 else vr(SB, 4)))
        if t == 0:
            A('v_max_u32 %s, %s, %s' % (vr(v_t[0]), vr(v_t[0]), vr(q + 3)))
        else:
            A('v_max3_u32 %s, %s, %s, %s' % (vr(v_t[0]), vr(v_t[0]), vr(q + 2), vr(q + 3)))
        if t == 3:
            A('v_cmp_eq_u32 vcc, -1, %s' % vr(v_t[0]))
        A('v_mfma_f32_16x16x32_bf16 %s, %s, %s, %s' % (vr(SM, 4), vr(q, 4), vr(q, 4), vr(v_mask, 4) if t == 0 else vr(SM, 4)))
    A('s_cbranch_vccnz ' + Lcf)
    A.label(Lcd)

    def tailC():
        A.label(Lcf)
        A('s_cmp_le_u32 %s, %s' % (sr(s_cnt), sr(s_lim)))
        A('s_cbranch_scc1 ' + Lc)
        A('s_mov_b32 %s, 0' % sr(s_lim))
        A('s_branch ' + Lcd)
    ool.append(tailC)
    stamp(2)

    def vload(k):
        return 'buffer_load_dwordx4 %s, %s, %s, %s offen offset:%d sc1' % (vr(VMR + 4 * k, 4), vr(va_vmr), sr(SRD_WS, 4), sr(s_slot), k * 1024)
    for k in range(2):
        A(vload(k))
    for T in range(8 - n_late, 8):
        A('ds_read_b128 %s, %s offset:%d' % (vr(VXR + 4 * T, 4), vr(va_vxr), 4096 + T * 1024))
    nvm[0] = 0
    side = list(pf_all[:16 - n_late])
    s = [SA + i for i in range(12)]
    sm = []
    sm.append('v_max3_f32 %s, %s, %s, %s' % (vr(v_mx), vr(s[0]), vr(s[1]), vr(s[2])))
    sm.append('v_max3_f32 %s, %s, %s, %s' % (vr(v_mx2), vr(s[3]), vr(s[4]), vr(v_bias)))
    sm.append('v_max3_f32 %s, %s, %s, %s' % (vr(v_mx), vr(v_mx), vr(s[5]), vr(s[6])))
    sm.append('v_max3_f32 %s, %s, %s, %s' % (vr(v_mx2), vr(v_mx2), vr(s[7]), vr(s[8])))
    sm.append('v_max3_f32 %s, %s, %s, %s' % (vr(v_mx), vr(v_mx), vr(s[9]), vr(s[10])))
    sm.append('v_max3_f32 %s, %s, %s, %s' % (vr(v_mx), vr(v_mx), vr(v_mx2), vr(s[11])))

    def xlane(op, a, b):
        o = []
        for sw in ('v_permlane32_swap_b32', 'v_permlane16_swap_b32'):
            o.append('v_mov_b32 %s, %s' % (vr(b), vr(a)))
            o.append('%s %s, %s' % (sw, vr(a), vr(b)))
            o.append('%s %s, %s, %s' % (op, vr(a), vr(a), vr(b)))
        return o
    sm += xlane('v_max_f32', v_mx, v_mx2)
    sm.append('v_mul_f32 %s, %s, %s' % (vr(v_mx), sr(s_c), vr(v_mx)))
    for i in range(8):
        sm.append('v_fma_f32 %s, %s, %s, -%s' % (vr(s[i]), vr(s[i]), sr(s_c), vr(v_mx)))
    for i in range(8):
        sm.append('v_exp_f32 %s, %s' % (vr(s[i]), vr(s[i])))
        if i >= 2 and i % 2 == 0:
            sm.append('v_cvt_pk_bf16_f32 %s, %s, %s' % (vr(PX + i // 2 - 1), vr(s[i - 2]), vr(s[i - 1])))
    sm.append('v_fma_f32 %s, %s, %s, -%s' % (vr(s[8]), vr(s[8]), sr(s_c), vr(v_mx)))
    sm.append('v_cvt_pk_bf16_f32 %s, %s, %s' % (vr(PX + 3), vr(s[6]), vr(s[7])))
    sm.append('v_fma_f32 %s, %s, %s, -%s' % (vr(s[9]), vr(s[9]), sr(s_c), vr(v_mx)))
    spread(sm, side, PF[0])
    A('s_waitcnt lgkmcnt(0)')
    stamp(3)

    def dpp8(d, srcr):
        return 'v_mov_b32_dpp %s, %s row_shr:8 row_mask:0xf bank_mask:0xf bound_ctrl:0' % (vr(d), vr(srcr))
    t = v_t
    sh = []
    for i in range(10, 12):
        sh.append('v_fma_f32 %s, %s, %s, -%s' % (vr(s[i]), vr(s[i]), sr(s_c), vr(v_mx)))
    for i in range(4):
        sh.append(dpp8(PXH + i, PX + i))
    for i in range(8, 12):
        sh.append('v_exp_f32 %s, %s' % (vr(s[i]), vr(s[i])))
    for i in range(2):
        sh.append('v_cvt_pk_bf16_f32 %s, %s, %s' % (vr(PM + i), vr(s[8 + 2 * i]), vr(s[9 + 2 * i])))
    sh.append('s_waitcnt vmcnt(VMCNT)')
    sh.append('v_max3_u32 %s, %s, %s, %s' % (vr(t[0]), vr(VMR), vr(VMR + 1), vr(VMR + 2)))
    sh.append('v_max3_u32 %s, %s, %s, %s' % (vr(t[1]), vr(VMR + 3), vr(VMR + 4), vr(VMR + 5)))
    sh.append(dpp8(PMH, PM))
    sh.append(dpp8(PMH + 1, PM + 1))
    sh.append('v_max3_u32 %s, %s, %s, %s' % (vr(t[0]), vr(t[0]), vr(VMR + 6), vr(VMR + 7)))
    sh.append('v_max_u32 %s, %s, %s' % (vr(t[0]), vr(t[0]), vr(t[1])))
    sh.append('v_permlane32_swap_b32 %s, %s' % (vr(PMH), vr(PM)))
    sh.append('v_permlane32_swap_b32 %s, %s' % (vr(PMH + 1), vr(PM + 1)))
    sh.append('v_cmp_eq_u32 vcc, -1, %s' % vr(t[0]))
    mf = ['v_mfma_f32_16x16x32_bf16 %s, %s, %s, 0' % (vr(LS, 4), vr(v_ones, 4), vr(PX, 4))]
    for a in range(4):
        mf.append('v_mfma_f32_16x16x32_bf16 %s, %s, %s, 0' % (vr(O + 4 * a, 4), vr(VXR + 4 * a, 4), vr(PX, 4)))
    for a in range(4):
        mf.append('v_mfma_f32_16x16x32_bf16 %s, %s, %s, %s' % (vr(O + 4 * a, 4), vr(VXR + 4 * (a + 4), 4), vr(PXH, 4), vr(O + 4 * a, 4)))
    per = [3, 3, 2, 2, 2, 2, 3, 3, 1]
    npf = PF[1]
    for i, m in enumerate(mf):
        A(m)
        for _ in range(per[i]):
            if sh:
                x = sh.pop(0)
                if 'VMCNT' in x:
                    A(x.replace('VMCNT', str(nvm[0])))
                    x = sh.pop(0)
                A(x)
        if npf and i in (1, 3, 6, 8):
            emit(side.pop(0))
            npf -= 1
    assert not sh
    Lv_ok, Lv_slow = A.uid('vok'), A.uid('vslow')
    A('s_cbranch_vccnz ' + Lv_slow)
    A.label(Lv_ok)

    def tailV():
        A.label(Lv_slow)
        poll(2, vload, VMR, False, 'V')
        A('s_branch ' + Lv_ok)
    ool.append(tailV)
    A('v_mfma_f32_16x16x16_bf16 %s, %s, %s, %s' % (vr(LS, 4), vr(v_ones, 2), vr(PM, 2), vr(LS, 4)))
    pm = ['v_mfma_f32_16x16x16_bf16 %s, %s, %s, %s' % (vr(O + 4 * a, 4), vr(VMR + 2 * a, 2), vr(PM, 2), vr(O + 4 * a, 4)) for a in range(4)]

    def nrm(a):
        g = []
        for r in range(0, 4, 2):
            g.append('v_pk_mul_f32 %s, %s, %s op_sel_hi:[1,0]' % (vr(O + 4 * a + r, 2), vr(O + 4 * a + r, 2), vr(v_l, 2)))
        g.append('v_cvt_pk_bf16_f32 %s, %s, %s' % (vr(XY + a), vr(O + 4 * a), vr(O + 4 * a + 1)))
        g.append('v_cvt_pk_bf16_f32 %s, %s, %s' % (vr(XY + 4 + a), vr(O + 4 * a + 2), vr(O + 4 * a + 3)))
        return g
    for i in range(4):
        A(pm[i])
        A('v_mov_b32 %s, 0' % vr(acc1 + i))
    for _ in range(PF[2]):
        emit(side.pop(0))
    A('v_rcp_f32 %s, %s' % (vr(v_l), vr(LS)))
    A('v_mov_b32_dpp %s, %s row_shr:8 row_mask:0xf bank_mask:0xc' % (vr(v_l), vr(v_l)))
    npf = PF[3]
    for a in range(4):
        for x in nrm(a):
            A(x)
        if npf and a < 3:
            emit(side.pop(0))
            npf -= 1
    assert npf == 0
    A('ds_write_b128 %s, %s' % (vr(va_ow), vr(XY, 4)))
    A('ds_write_b128 %s, %s offset:128' % (vr(va_ow), vr(XY + 4, 4)))
    A('s_waitcnt lgkmcnt(0)')
    stamp(4)
    A('s_barrier')
    for k in range(8):
        A('ds_read_b128 %s, %s offset:%d' % (vr(G + 4 * k, 4), vr(va_or), k * 1024))
    L_d1 = A.uid('d1')
    A('s_cmp_eq_u32 %s, 0' % sr(s_red))
    A('s_cbranch_scc1 ' + L_d1)
    A('buffer_load_dwordx4 %s, %s, %s, %s offen sc1' % (vr(RB, 4), vr(va_rb), sr(SRD_WS, 4), sr(s_slot)))
    A.label(L_d1)
    A('buffer_store_dwordx4 %s, %s, %s, %s offen%s' % (vr(v_m1, 4), vr(va_memz), sr(SRD_WS, 4), sr(s_slot2), ISC))
    A('s_mov_b64 exec, 0xffff')
    A('buffer_store_dwordx4 %s, %s, %s, %s offen sc1' % (vr(v_m1, 4), vr(va_pw), sr(SRD_WS, 4), sr(s_ps2)))
    A('s_mov_b64 exec, -1')
    if worker:
        L_kvok, L_kvslow = A.uid('kvok'), A.uid('kvslow')
        A('v_cmp_gt_u32 vcc, 32, %s' % vr(v_kvf))
        A('s_cbranch_vccnz ' + L_kvslow)
        A.label(L_kvok)

        def kvtail():
            A.label(L_kvslow)
            kv_wait('s')
            A('s_branch ' + L_kvok)
        ool.append(kvtail)
        L_nokv = A.uid('nokv')
        A('s_add_u32 %s, %s, 3' % (sr(s_t0), sr(s_step)))
        A('s_and_b32 %s, %s, 7' % (sr(s_t1), sr(s_t0)))
        A('s_cbranch_scc1 ' + L_nokv)
        A('s_lshr_b32 %s, %s, 3' % (sr(s_kvo), sr(s_t0)))
        A('s_min_u32 %s, %s, 7' % (sr(s_kvo), sr(s_kvo)))
        A('s_lshl_b32 %s, %s, 9' % (sr(s_kvo), sr(s_kvo)))
        A('s_add_u32 %s, %s, %d' % (sr(s_kvo), sr(s_kvo), DBG_KV * 128))
        A('buffer_load_dword %s, %s, %s, %s offen sc1' % (vr(v_kvf), vr(v_zero), sr(SRD_WS, 4), sr(s_kvo)))
        A.label(L_nokv)
    for k in range(8):
        A('s_waitcnt lgkmcnt(%d)' % (7 - k))
        A(smf(acc1, G + 4 * k, W3 + 8 * k))
    halfadd(acc1, v_t[0], v_t[1])
    A('v_cvt_pk_bf16_f32 %s, %s, %s' % (vr(acc2), vr(v_t[0]), vr(v_t[1])))
    A('v_pk_min_u16 %s, %s, %s' % (vr(acc2), vr(acc2), sr(s_fffe)))
    A('buffer_store_dword %s, %s, %s, %s offen sc1' % (vr(acc2), vr(va_pd), sr(SRD_WS, 4), sr(s_ps)))
    stamp(5)
    for _ in range(PF[4]):
        emit(side.pop(0))

    L_noE = A.uid('noE')
    A('s_cmp_lg_u32 %s, 0' % sr(s_red))
    A('s_cbranch_scc1 ' + L_noE)
    if DELAY_E:
        A('s_sleep %d' % DELAY_E)

    def okE(k):
        A('v_mfma_f32_16x16x32_bf16 %s, %s, %s, %s' % (vr(LS, 4), vr(PR + 4 * k, 4), vr(v_sel, 4), '0' if k == 0 else vr(LS, 4)))
    ldE = lambda k: 'buffer_load_dwordx4 %s, %s, %s, %s offen offset:%d sc1' % (vr(PR + 4 * k, 4), vr(va_pr), sr(SRD_WS, 4), sr(s_ps), k * 1024)
    if E_DEPTH == 0:
        poll(2, ldE, PR, False, 'E', okE)
    else:
        Lp, Lf, Ld = A.uid('pE'), A.uid('pEf'), A.uid('pEd')
        A('s_mov_b32 %s, 0' % sr(s_cnt))
        for r in range(E_DEPTH - 1):
            A(ldE(0))
            A(ldE(1))
            A('s_sleep %d' % E_INT)
        A.label(Lp)
        A(ldE(0))
        A(ldE(1))
        A('s_add_u32 %s, %s, 1' % (sr(s_cnt), sr(s_cnt)))
        A('s_cmp_gt_u32 %s, %s' % (sr(s_cnt), sr(s_lim)))
        A('s_cbranch_scc1 ' + Lf)
        if E_INT2:
            A('s_sleep %d' % E_INT2)
        A('s_waitcnt vmcnt(%d)' % (2 * (E_DEPTH - 1)))
        A('v_max3_u32 %s, %s, %s, %s' % (vr(v_t[0]), vr(PR), vr(PR + 1), vr(PR + 2)))
        A('v_max3_u32 %s, %s, %s, %s' % (vr(v_t[1]), vr(PR + 3), vr(PR + 4), vr(PR + 5)))
        A('v_max3_u32 %s, %s, %s, %s' % (vr(v_t[0]), vr(v_t[0]), vr(PR + 6), vr(PR + 7)))
        A('v_max_u32 %s, %s, %s' % (vr(v_t[0]), vr(v_t[0]), vr(v_t[1])))
        A('v_cmp_eq_u32 vcc, -1, %s' % vr(v_t[0]))
        A('s_cbranch_vccnz ' + Lp)
        A.label(Ld)
        okE(0)
        okE(1)

        def tailE():
            A.label(Lf)
            A('s_mov_b32 %s, 0' % sr(s_lim))
            A('s_waitcnt vmcnt(0)')
            A('s_branch ' + Ld)
        ool.append(tailE)
    stamp(6)
    def advance():
        A('s_add_u32 %s, %s, 1' % (sr(s_step), sr(s_step)))
        A('s_mov_b32 %s, %s' % (sr(s_slot), sr(s_slot1)))
        A('s_mov_b32 %s, %s' % (sr(s_slot1), sr(s_slot2)))
        A('s_add_u32 %s, %s, 0x20000' % (sr(s_slot2), sr(s_slot2)))
        A('s_and_b32 %s, %s, 0x7ffff' % (sr(s_slot2), sr(s_slot2)))
        A('s_add_u32 %s, %s, 0x20000' % (sr(s_out), sr(s_out)))
        A('s_lshl_b32 %s, %s, 1' % (sr(s_ps), sr(s_slot)))
        A('s_lshl_b32 %s, %s, 1' % (sr(s_ps2), sr(s_slot2)))
        if stamps:
            A('s_add_u32 %s, %s, 64' % (sr(s_stl), sr(s_stl)))
    advance()
    A('v_cvt_pk_bf16_f32 %s, %s, %s' % (vr(v_t[2]), vr(LS), vr(LS + 1)))
    A('v_cvt_pk_bf16_f32 %s, %s, %s' % (vr(v_t[3]), vr(LS + 2), vr(LS + 3)))
    A('v_cndmask_b32 %s, %s, %s, %s' % (vr(v_t[2]), vr(v_t[2]), vr(v_t[3]), sr(s_hf, 2)))
    A('v_pk_min_u16 %s, %s, %s' % (vr(v_t[2]), vr(v_t[2]), sr(s_fffe)))
    A('buffer_store_dword %s, %s, %s, %s offen%s' % (vr(v_t[2]), vr(va_mems), sr(SRD_WS, 4), sr(s_slot), ISC))
    assert PF[5] == 0
    assert not side, len(side)
    A('s_branch ' + L_step)
    A.label(L_noE)
    A('s_waitcnt vmcnt(3)')
    A('buffer_store_dwordx4 %s, %s, %s, %s offen sc1' % (vr(RB, 4), vr(va_cp), sr(SRD_WS, 4), sr(s_out)))
    if WARM:
        A('buffer_load_dword %s, %s, %s, %s offen sc1' % (vr(v_junk), vr(va_warm), sr(SRD_WS, 4), sr(s_kx)))
    if worker:
        A('v_mov_b32 %s, %s' % (vr(v_junk2), sr(s_step)))
        A('s_mov_b64 exec, 15')
        A('buffer_store_dword %s, %s, %s, 0 offen sc1' % (vr(v_junk2), vr(va_prog), sr(SRD_WS, 4)))
        A('s_mov_b64 exec, -1')
    stamp(6)
    advance()
    if NOE_SLEEP:
        A('s_sleep %d' % NOE_SLEEP)
    A('s_branch ' + L_step)
    while ool:
        ool.pop(0)()
    A.label(L_last)
    A('s_waitcnt vmcnt(0)')
    A('s_barrier')
    L_l1 = A.uid('l1')
    A('s_cmp_ge_u32 %s, 2' % sr(s_w))
    A('s_cbranch_scc1 ' + L_l1)
    A('buffer_load_dwordx4 %s, %s, %s, %s offen sc1' % (vr(RB, 4), vr(va_rb), sr(SRD_WS, 4), sr(s_slot)))
    A('s_waitcnt vmcnt(0)')
    A('buffer_store_dwordx4 %s, %s, %s, %s offen sc1' % (vr(RB, 4), vr(va_cp), sr(SRD_WS, 4), sr(s_out)))
    A.label(L_l1)
    if stamps:
        A('s_waitcnt lgkmcnt(0)')
        A('v_lshlrev_b32 %s, 4, %s' % (vr(v_t[0]), vr(v_lane)))
        A('s_lshl_b32 %s, %s, 12' % (sr(s_t2), sr(s_w)))
        A('s_add_u32 %s, %s, 65536' % (sr(s_t2), sr(s_t2)))
        A('v_add_u32 %s, %s, %s' % (vr(v_t[1]), sr(s_t2), vr(v_t[0])))
        for k in range(4):
            A('ds_read_b128 %s, %s offset:%d' % (vr(F + 4 * k, 4), vr(v_t[1]), k * 1024))
        A('s_waitcnt lgkmcnt(0)')
        for k in range(4):
            A('buffer_store_dwordx4 %s, %s, %s, %s offen offset:%d' % (vr(F + 4 * k, 4), vr(v_t[0]), sr(SRD_WS, 4), sr(s_stamp), k * 1024))
    if worker:
        A('s_waitcnt vmcnt(0) lgkmcnt(0)')
        A('s_barrier')
        A('s_cmp_lg_u32 %s, 0' % sr(s_w))
        A('s_cbranch_scc1 ' + L_work)
        A('s_lshr_b32 %s, %s, 1' % (sr(s_t0), sr(s_x)))
        A('s_lshl_b32 %s, %s, 7' % (sr(s_t0), sr(s_t0)))
        A('s_add_u32 %s, %s, 0x%x' % (sr(s_t0), sr(s_t0), CTR + DBG_FIN * 128))
        A('v_mov_b32 %s, %s' % (vr(v_t[0]), sr(s_t0)))
        A('v_mov_b32 %s, 1' % vr(v_t[1]))
        A('s_mov_b64 exec, 1')
        A('buffer_atomic_add %s, %s, %s, 0 offen sc1' % (vr(v_t[1]), vr(v_t[0]), sr(SRD_WS, 4)))
        A('s_mov_b64 exec, -1')
        A('s_branch ' + L_work)
    A.label(L_exit)
    A('s_endpgm')
    hi = S.hi
    if worker:
        A.label(L_work)
        hi = max(hi, worker(A, name))
    return dict(vgpr=512, accum=256, sgpr=hi)
```

```python
from asmlib import *
from layout import *


import os
FAKE16 = int(os.environ.get('FAKE16', '0'))


class Gemm:
    def __init__(self, A, S, V, mb, nb, xsc='', nst=2):
        self.A, self.mb, self.nb = A, mb, nb
        self.nst = nst
        self.xsc = xsc
        self.TM, self.TN = 64 * mb, 64 * nb
        self.nX, self.nW = self.TM // 32, self.TN // 32
        self.XB = self.TM * 128
        self.WB = self.TN * 128
        self.STG = self.XB + self.WB
        self.wrow = self.TN * 2
        self.SRD_X = S.alloc(4, 4)
        self.SRD_W = S.alloc(4, 4)
        self.s_xo = S.alloc()
        self.s_wo = S.alloc()
        self.s_xs = S.alloc()
        self.s_ws = S.alloc()
        self.s_n = S.alloc()
        self.s_lx = S.alloc()
        self.s_lw = S.alloc()
        self.vx = [V.alloc() for _ in range(self.nX)]
        self.vw = [V.alloc() for _ in range(self.nW)]
        self.rx = [[V.alloc() for _ in range(4)] for _ in range(nst)]
        self.rw = [[[V.alloc() for _ in range(2)] for _ in range(nb)] for _ in range(nst)]
        self.FX = [V.alloc(4 * mb, 4) for _ in range(2)]
        self.FW = [V.alloc(4 * nb, 4) for _ in range(2)]
        self.t = [V.alloc() for _ in range(6)]
        self.E = V.alloc(24, 4)

    def acc(self, m, n):
        return 16 * (m * self.nb + n)

    def setup(self, v_lane, s_w, s_tmp, xmode, xpitch, wpitch):
        A, t = self.A, self.t
        nX, nW = self.nX, self.nW
        s0, s1 = s_tmp
        A('s_mul_i32 %s, %s, %d' % (sr(self.s_lx), sr(s_w), nX * 1024))
        A('s_mul_i32 %s, %s, %d' % (sr(self.s_lw), sr(s_w), nW * 1024))
        A('s_add_u32 %s, %s, %d' % (sr(self.s_lw), sr(self.s_lw), self.XB))
        if xmode == 'nat':
            A('v_lshrrev_b32 %s, 3, %s' % (vr(t[0]), vr(v_lane)))
            A('s_mul_i32 %s, %s, %d' % (sr(s0), sr(s_w), nX * 8))
            A('v_add_u32 %s, %s, %s' % (vr(t[0]), sr(s0), vr(t[0])))
            A('v_and_b32 %s, 7, %s' % (vr(t[1]), vr(v_lane)))
            A('s_mov_b32 %s, %d' % (sr(s1), xpitch))
            for i in range(nX):
                A('v_add_u32 %s, %d, %s' % (vr(t[2]), 8 * i, vr(t[0])))
                A('v_bfe_u32 %s, %s, 1, 3' % (vr(t[3]), vr(t[2])))
                A('v_xor_b32 %s, %s, %s' % (vr(t[3]), vr(t[3]), vr(t[1])))
                A('v_mul_lo_u32 %s, %s, %s' % (vr(t[2]), vr(t[2]), sr(s1)))
                A('v_lshl_add_u32 %s, %s, 4, %s' % (vr(self.vx[i]), vr(t[3]), vr(t[2])))
        else:
            A('v_lshlrev_b32 %s, 4, %s' % (vr(t[0]), vr(v_lane)))
            for i in range(nX):
                A('s_mul_i32 %s, %s, %d' % (sr(s0), sr(s_w), nX))
                A('s_add_u32 %s, %s, %d' % (sr(s0), sr(s0), i))
                A('s_lshr_b32 %s, %s, 2' % (sr(s1), sr(s0)))
                A('s_mul_i32 %s, %s, %d' % (sr(s1), sr(s1), xpitch))
                A('s_and_b32 %s, %s, 3' % (sr(s0), sr(s0)))
                A('s_lshl_b32 %s, %s, 10' % (sr(s0), sr(s0)))
                A('s_add_u32 %s, %s, %s' % (sr(s0), sr(s0), sr(s1)))
                A('v_add_u32 %s, %s, %s' % (vr(self.vx[i]), sr(s0), vr(t[0])))
        upr = self.wrow // 16
        rpi = 64 // upr
        sh = upr.bit_length() - 1
        A('v_lshrrev_b32 %s, %d, %s' % (vr(t[0]), sh, vr(v_lane)))
        A('s_mul_i32 %s, %s, %d' % (sr(s0), sr(s_w), nW * rpi))
        A('v_add_u32 %s, %s, %s' % (vr(t[0]), sr(s0), vr(t[0])))
        A('v_and_b32 %s, %d, %s' % (vr(t[1]), upr - 1, vr(v_lane)))
        A('s_mov_b32 %s, %d' % (sr(s1), wpitch))
        for i in range(nW):
            A('v_add_u32 %s, %d, %s' % (vr(t[2]), rpi * i, vr(t[0])))
            A('v_and_b32 %s, 3, %s' % (vr(t[3]), vr(t[2])))
            A('v_lshlrev_b32 %s, 2, %s' % (vr(t[3]), vr(t[3])))
            A('v_xor_b32 %s, %s, %s' % (vr(t[3]), vr(t[3]), vr(t[1])))
            A('v_mul_lo_u32 %s, %s, %s' % (vr(t[2]), vr(t[2]), sr(s1)))
            A('v_lshl_add_u32 %s, %s, 4, %s' % (vr(self.vw[i]), vr(t[3]), vr(t[2])))
        A('s_lshr_b32 %s, %s, 1' % (sr(s0), sr(s_w)))
        A('s_mul_i32 %s, %s, %d' % (sr(s0), sr(s0), self.mb * 4096))
        if xmode == 'nat':
            A('v_and_b32 %s, 31, %s' % (vr(t[0]), vr(v_lane)))
            A('v_lshrrev_b32 %s, 5, %s' % (vr(t[1]), vr(v_lane)))
            A('v_bfe_u32 %s, %s, 1, 3' % (vr(t[2]), vr(t[0])))
            A('v_lshlrev_b32 %s, 7, %s' % (vr(t[0]), vr(t[0])))
            A('v_add_u32 %s, %s, %s' % (vr(t[0]), sr(s0), vr(t[0])))
            for ks in range(4):
                A('v_add_u32 %s, %d, %s' % (vr(t[3]), 2 * ks, vr(t[1])))
                A('v_xor_b32 %s, %s, %s' % (vr(t[3]), vr(t[3]), vr(t[2])))
                A('v_lshl_add_u32 %s, %s, 4, %s' % (vr(self.rx[0][ks]), vr(t[3]), vr(t[0])))
                for st in range(1, self.nst):
                    A('v_add_u32 %s, %d, %s' % (vr(self.rx[st][ks]), st * self.STG, vr(self.rx[0][ks])))
        else:
            A('v_lshlrev_b32 %s, 4, %s' % (vr(t[0]), vr(v_lane)))
            A('v_add_u32 %s, %s, %s' % (vr(t[0]), sr(s0), vr(t[0])))
            for ks in range(4):
                for st in range(self.nst):
                    A('v_add_u32 %s, %d, %s' % (vr(self.rx[st][ks]), ks * 1024 + st * self.STG, vr(t[0])))
        hmul, qmul = (8, 4) if xmode == 'nat' else (4, 8)
        A('v_bfe_u32 %s, %s, 2, 2' % (vr(t[0]), vr(v_lane)))
        A('v_lshrrev_b32 %s, 5, %s' % (vr(t[1]), vr(v_lane)))
        A('v_mul_u32_u24 %s, %d, %s' % (vr(t[1]), hmul, vr(t[1])))
        A('v_add_u32 %s, %s, %s' % (vr(t[1]), vr(t[1]), vr(t[0])))
        A('v_mul_u32_u24 %s, %d, %s' % (vr(t[1]), self.wrow, vr(t[1])))
        A('v_bfe_u32 %s, %s, 4, 1' % (vr(t[2]), vr(v_lane)))
        A('v_lshl_add_u32 %s, %s, 5, %s' % (vr(t[1]), vr(t[2]), vr(t[1])))
        A('v_and_b32 %s, 3, %s' % (vr(t[2]), vr(v_lane)))
        A('v_lshl_add_u32 %s, %s, 3, %s' % (vr(t[1]), vr(t[2]), vr(t[1])))
        A('s_and_b32 %s, %s, 1' % (sr(s0), sr(s_w)))
        A('s_mul_i32 %s, %s, %d' % (sr(s0), sr(s0), self.nb))
        for i in range(self.nb):
            A('s_add_u32 %s, %s, %d' % (sr(s1), sr(s0), i))
            A('v_xor_b32 %s, %s, %s' % (vr(t[2]), sr(s1), vr(t[0])))
            A('v_lshl_add_u32 %s, %s, 6, %s' % (vr(t[2]), vr(t[2]), vr(t[1])))
            for q in range(2):
                for st in range(self.nst):
                    A('v_add_u32 %s, %d, %s' % (vr(self.rw[st][i][q]), self.XB + st * self.STG + q * qmul * self.wrow, vr(t[2])))

    def dma_ops(self, st):
        o = []
        for i in range(self.nX):
            o.append(['s_add_u32 m0, %s, %d' % (sr(self.s_lx), st * self.STG + i * 1024), 's_nop 0',
                      'buffer_load_dwordx4 %s, %s, %s offen%s lds' % (vr(self.vx[i]), sr(self.SRD_X, 4), sr(self.s_xo), self.xsc)])
        for i in range(self.nW):
            o.append(['s_add_u32 m0, %s, %d' % (sr(self.s_lw), st * self.STG + i * 1024), 's_nop 0',
                      'buffer_load_dwordx4 %s, %s, %s offen lds' % (vr(self.vw[i]), sr(self.SRD_W, 4), sr(self.s_wo))])
        return o

    def adv(self):
        return ['s_add_u32 %s, %s, %s' % (sr(self.s_xo), sr(self.s_xo), sr(self.s_xs)),
                's_add_u32 %s, %s, %s' % (sr(self.s_wo), sr(self.s_wo), sr(self.s_ws))]

    def read_ops(self, st, ks, fs):
        o = []
        xs = ['ds_read_b128 %s, %s offset:%d' % (vr(self.FX[fs] + 4 * m, 4), vr(self.rx[st][ks]), m * 4096) for m in range(self.mb)]
        wsr = []
        for i in range(self.nb):
            for q in range(2):
                wsr.append('ds_read_b64_tr_b16 %s, %s offset:%d' % (vr(self.FW[fs] + 4 * i + 2 * q, 2), vr(self.rw[st][i][q]), ks * 16 * self.wrow))
        while xs or wsr:
            if xs:
                o.append(xs.pop(0))
            for _ in range(2):
                if wsr:
                    o.append(wsr.pop(0))
        return o

    def mfmas(self, fs, orient, first):
        o = []
        for m in range(self.mb):
            for n in range(self.nb):
                a = ar(self.acc(m, n), 16)
                x, w = vr(self.FX[fs] + 4 * m, 4), vr(self.FW[fs] + 4 * n, 4)
                p, q = (w, x) if orient == 'T' else (x, w)
                if FAKE16:
                    for h in range(2):
                        a4 = ar(self.acc(m, n) + fs * 8 + 4 * h, 4)
                        x2 = vr(self.FX[fs] + 4 * ((m + h) % self.mb), 4)
                        o.append('v_mfma_f32_16x16x32_bf16 %s, %s, %s, %s' % (a4, w, x2, '0' if first else a4))
                    continue
                o.append('v_mfma_f32_32x32x16_bf16 %s, %s, %s, %s' % (a, p, q, '0' if first else a))
        return o

    def _weave(self, mf, side):
        A = self.A
        n = len(mf)
        k = len(side)
        per = [0] * n
        slots = max(1, n - 2)
        for j in range(k):
            per[min(n - 1, j * slots // max(k, 1))] += 1
        idx = 0
        for i, m in enumerate(mf):
            A(m)
            for _ in range(per[i]):
                it = side[idx]
                idx += 1
                for t in (it if isinstance(it, list) else [it]):
                    A(t)

    def body(self, st, orient, dma, first=False, last=False, ahead=None):
        A = self.A
        pend = self.pending
        self.pending = [[], [], []]
        per = self.nX + self.nW
        if ahead is None:
            ahead = self.nst - 2
        nxt = (st + 1) % self.nst
        for ks in range(4):
            fs = ks & 1
            A('s_waitcnt lgkmcnt(0)')
            if ks == 3 and not last:
                A('s_waitcnt vmcnt(%d)' % (ahead * per))
                A('s_barrier')
            side = []
            if ks < 3:
                side += self.read_ops(st, ks + 1, fs ^ 1)
                side = self._mix(side, pend[ks])
            elif not last:
                side += self.read_ops(nxt, 0, fs ^ 1)
            if ks == 3 and dma:
                d = self.dma_ops(st)
                if self.nst == 2:
                    h = len(d) // 2
                    parts = [d[:h], d[h:] + [self.adv()], [], []]
                else:
                    q = (len(d) + 3) // 4
                    parts = [d[i * q:(i + 1) * q] for i in range(4)]
                    parts[3] = parts[3] + [self.adv()]
                side = self._mix(side, parts[0])
                self.pending = parts[1:]
            self._weave(self.mfmas(fs, orient, first and ks == 0), side)

    @staticmethod
    def _mix(a, b):
        o = []
        a, b = list(a), list(b)
        while a or b:
            for _ in range(2):
                if a:
                    o.append(a.pop(0))
            if b:
                o.append(b.pop(0))
        return o

    def prologue(self):
        A = self.A
        for st in range(self.nst):
            for g in self.dma_ops(st):
                for t in g:
                    A(t)
            for t in self.adv():
                A(t)
        A('s_waitcnt vmcnt(%d)' % ((self.nst - 1) * (self.nX + self.nW)))
        A('s_barrier')
        for t in self.read_ops(0, 0, 0):
            A(t)
        self.pending = [[], [], []]

    def mainloop(self, orient, tag):
        A = self.A
        n = self.nst
        L = A.uid('gl' + tag)
        Lx = A.uid('gx' + tag)
        self.pending = [[], [], []]
        for st in range(n):
            self.body(st, orient, True, first=(st == 0))
        A('s_sub_u32 %s, %s, 1' % (sr(self.s_n), sr(self.s_n)))
        A('s_cmp_eq_u32 %s, 0' % sr(self.s_n))
        A('s_cbranch_scc1 ' + Lx)
        A.label(L)
        for st in range(n):
            self.body(st, orient, True)
        A('s_sub_u32 %s, %s, 1' % (sr(self.s_n), sr(self.s_n)))
        A('s_cmp_lg_u32 %s, 0' % sr(self.s_n))
        A('s_cbranch_scc1 ' + L)
        A.label(Lx)
        for st in range(n):
            self.body(st, orient, False, last=(st == n - 1), ahead=max(0, n - 2 - st))

    def pack_tile(self, m, n, dst):
        A = self.A
        E = self.E
        a = self.acc(m, n)
        for r in range(16):
            A('v_accvgpr_read_b32 %s, %s' % (vr(E + r), ar(a + r)))
        for r in range(8):
            A('v_cvt_pk_bf16_f32 %s, %s, %s' % (vr(dst + r), vr(E + 2 * r), vr(E + 2 * r + 1)))

    def epi_blk(self, SRD, v_l16, s_base, s_tbstride, s_tmp, sc=''):
        A = self.A
        bufs = [self.FX[0], self.FW[0]] if self.mb >= 2 and self.nb >= 2 else [self.E + 16, self.E + 16]
        k = 0
        A('s_mov_b32 %s, %s' % (sr(s_tmp), sr(s_base)))
        for m in range(self.mb):
            for n in range(self.nb):
                d = bufs[k & 1]
                k += 1
                self.pack_tile(m, n, d)
                if n and n % 2 == 0:
                    A('s_add_u32 %s, %s, 4096' % (sr(s_tmp), sr(s_tmp)))
                for j in range(2):
                    A('buffer_store_dwordx4 %s, %s, %s, %s offen offset:%d%s' % (vr(d + 4 * j, 4), vr(v_l16), sr(SRD, 4), sr(s_tmp), (n & 1) * 2048 + j * 1024, sc))
            if m + 1 < self.mb:
                A('s_add_u32 %s, %s, %s' % (sr(s_base), sr(s_base), sr(s_tbstride)))
                A('s_mov_b32 %s, %s' % (sr(s_tmp), sr(s_base)))

    def epi_out(self, SRD, v_off, s_base):
        A = self.A
        bufs = [self.FX[0], self.FW[0]] if self.mb >= 2 and self.nb >= 2 else [self.E + 16, self.E + 16]
        k = 0
        for m in range(self.mb):
            for n in range(self.nb):
                d = bufs[k & 1]
                k += 1
                self.pack_tile(m, n, d)
                for p in range(2):
                    A('v_permlane32_swap_b32 %s, %s' % (vr(d + 4 * p), vr(d + 4 * p + 2)))
                    A('v_permlane32_swap_b32 %s, %s' % (vr(d + 4 * p + 1), vr(d + 4 * p + 3)))
                for p in range(2):
                    A('buffer_store_dwordx4 %s, %s, %s, %s offen offset:%d' % (vr(d + 4 * p, 4), vr(v_off), sr(SRD, 4), sr(s_base), n * 64 + p * 32))
            if m + 1 < self.mb:
                A('s_add_u32 %s, %s, %d' % (sr(s_base), sr(s_base), 32 * 4096))
```

```python
from asmlib import *
from layout import *
from gemm import Gemm
import struct


def f32bits(x):
    return struct.unpack('<I', struct.pack('<f', x))[0]


def mk_srd(A, dst, ptr, nbytes):
    A('s_mov_b32 %s, %s' % (sr(dst), sr(ptr)))
    A('s_and_b32 %s, %s, 0xffff' % (sr(dst + 1), sr(ptr + 1)))
    A('s_mov_b32 %s, 0x%x' % (sr(dst + 2), nbytes))
    A('s_mov_b32 %s, 0x00020000' % sr(dst + 3))


def load_ptrs(A, S):
    P = S.alloc(28, 4)
    A('s_load_dwordx16 %s, s[0:1], 0' % sr(P, 16))
    A('s_load_dwordx8 %s, s[0:1], 64' % sr(P + 16, 8))
    A('s_load_dwordx2 %s, s[0:1], 96' % sr(P + 24, 2))
    return {k: P + v // 4 for k, v in KA.items()}


def gen_qkv(A, name):
    S = Regs('s', 4, 100)
    V = Regs('v', 1, 256)
    A.raw('.p2align 8')
    A.label(name)
    L_exit = name + '_exit'
    A('s_cmp_ge_u32 s2, 480')
    A('s_cbranch_scc1 ' + L_exit)
    P = load_ptrs(A, S)
    G = Gemm(A, S, V, 4, 4)
    SRD_WS = S.alloc(4, 4)
    s_w, s_nt, s_mt, s0, s1, s2_, s_base, s_tbs, s_or = [S.alloc() for _ in range(9)]
    s_pp = S.alloc(2, 2)
    v_lane, v_l16 = V.alloc(), V.alloc()
    A('v_and_b32 %s, 63, v0' % vr(v_lane))
    A('v_lshrrev_b32 %s, 6, v0' % vr(v_l16))
    A('v_readfirstlane_b32 %s, %s' % (sr(s_w), vr(v_l16)))
    A('v_lshlrev_b32 %s, 4, %s' % (vr(v_l16), vr(v_lane)))
    A('s_and_b32 %s, s2, 7' % sr(s0))
    A('s_lshr_b32 %s, s2, 3' % sr(s1))
    A('s_and_b32 %s, %s, 7' % (sr(s_mt), sr(s1)))
    A('s_and_b32 %s, %s, 0xf8' % (sr(s_nt), sr(s1)))
    A('s_add_u32 %s, %s, %s' % (sr(s_nt), sr(s_nt), sr(s0)))
    L1 = A.uid('dec')
    A('s_cmp_lt_u32 %s, 56' % sr(s1))
    A('s_cbranch_scc1 ' + L1)
    A('s_lshr_b32 %s, %s, 1' % (sr(s_nt), sr(s0)))
    A('s_add_u32 %s, %s, 56' % (sr(s_nt), sr(s_nt)))
    A('s_and_b32 %s, %s, 1' % (sr(s0), sr(s0)))
    A('s_lshl_b32 %s, %s, 2' % (sr(s0), sr(s0)))
    A('s_add_u32 %s, %s, %s' % (sr(s_mt), sr(s_mt), sr(s0)))
    A.label(L1)
    A('s_waitcnt lgkmcnt(0)')
    mk_srd(A, SRD_WS, P['ws'], WS_BYTES)
    A('s_lshl_b32 %s, %s, 19' % (sr(G.s_xo), sr(s_mt)))
    A('s_mov_b32 %s, 128' % sr(G.s_xs))
    A('s_mov_b32 %s, 7' % sr(G.s_n))
    LB, LJ = A.uid('isB'), A.uid('join')
    A('s_cmp_ge_u32 %s, 48' % sr(s_nt))
    A('s_cbranch_scc1 ' + LB)
    A('s_lshr_b32 %s, %s, 4' % (sr(s0), sr(s_nt)))
    A('s_and_b32 %s, %s, 15' % (sr(s1), sr(s_nt)))
    A('s_cmp_eq_u32 %s, 1' % sr(s0))
    A('s_cselect_b32 %s, 1, 0' % sr(s_or))
    A('s_cselect_b64 %s, %s, %s' % (sr(s_pp, 2), sr(P['A_Wv'], 2), sr(P['A_Wk'], 2)))
    A('s_cselect_b32 %s, 0x%x, 0x%x' % (sr(s_base), VX, KX) if False else 's_mov_b32 %s, 0x%x' % (sr(s_base), KX))
    A('s_cselect_b32 %s, 0x%x, %s' % (sr(s_base), VX, sr(s_base)))
    A('s_cmp_eq_u32 %s, 2' % sr(s0))
    A('s_cselect_b64 %s, %s, %s' % (sr(s_pp, 2), sr(P['A_Wq'], 2), sr(s_pp, 2)))
    A('s_cselect_b32 %s, 0x%x, %s' % (sr(s_base), QX, sr(s_base)))
    mk_srd(A, G.SRD_W, s_pp, 1024 * 4096 * 2)
    mk_srd(A, G.SRD_X, P['A_x'], 2048 * 1024 * 2)
    A('s_lshl_b32 %s, %s, 9' % (sr(G.s_wo), sr(s1)))
    A('s_mov_b32 %s, %d' % (sr(G.s_ws), 64 * 8192))
    A('s_mov_b32 %s, %d' % (sr(s_tbs), 128 * 2048))
    A('s_mov_b32 %s, %s' % (sr(s2_), sr(s1)))
    G.setup(v_lane, s_w, (s0, s1), 'nat', 2048, 8192)
    A('s_branch ' + LJ)
    A.label(LB)
    A('s_sub_u32 %s, %s, 48' % (sr(s1), sr(s_nt)))
    A('s_lshr_b32 %s, %s, 2' % (sr(s0), sr(s1)))
    A('s_cmp_eq_u32 %s, 2' % sr(s0))
    A('s_cselect_b32 %s, 1, 0' % sr(s_or))
    A('s_lshl_b32 %s, %s, 22' % (sr(s_base), sr(s0)))
    A('s_add_u32 %s, %s, 0x%x' % (sr(s_base), sr(s_base), QB))
    mk_srd(A, G.SRD_W, P['B_wqkv'], 1024 * 3072 * 2)
    mk_srd(A, G.SRD_X, P['B_x'], 2048 * 1024 * 2)
    A('s_lshl_b32 %s, %s, 9' % (sr(G.s_wo), sr(s1)))
    A('s_mov_b32 %s, %d' % (sr(G.s_ws), 64 * 6144))
    A('s_mov_b32 %s, %d' % (sr(s_tbs), 32 * 2048))
    A('s_and_b32 %s, %s, 3' % (sr(s2_), sr(s1)))
    G.setup(v_lane, s_w, (s0, s1), 'nat', 2048, 6144)
    A.label(LJ)
    A('s_lshr_b32 %s, %s, 1' % (sr(s0), sr(s_w)))
    A('s_lshl_b32 %s, %s, 2' % (sr(s0), sr(s0)))
    A('s_lshl_b32 %s, %s, 3' % (sr(s1), sr(s_mt)))
    A('s_add_u32 %s, %s, %s' % (sr(s0), sr(s0), sr(s1)))
    A('s_mul_i32 %s, %s, %s' % (sr(s0), sr(s0), sr(s_tbs)))
    A('s_add_u32 %s, %s, %s' % (sr(s_base), sr(s_base), sr(s0)))
    A('s_and_b32 %s, %s, 1' % (sr(s0), sr(s_w)))
    A('s_lshl_b32 %s, %s, 13' % (sr(s0), sr(s0)))
    A('s_lshl_b32 %s, %s, 14' % (sr(s1), sr(s2_)))
    A('s_add_u32 %s, %s, %s' % (sr(s_base), sr(s_base), sr(s0)))
    A('s_add_u32 %s, %s, %s' % (sr(s_base), sr(s_base), sr(s1)))
    G.prologue()
    LN, LE = A.uid('orN'), A.uid('epi')
    A('s_cmp_eq_u32 %s, 1' % sr(s_or))
    A('s_cbranch_scc1 ' + LN)
    G.mainloop('T', 't')
    A('s_nop 15')
    A('s_branch ' + LE)
    A.label(LN)
    G.mainloop('N', 'n')
    A.label(LE)
    G.epi_blk(SRD_WS, v_l16, s_base, s_tbs, s0)
    A.label(L_exit)
    A('s_endpgm')
    return dict(vgpr=512, accum=256, sgpr=S.hi)


def gen_out(A, name, mb=2, nb=1, a_only=False, nst=2):
    S = Regs('s', 4, 100)
    V = Regs('v', 1, 128)
    TM, TN = 64 * mb, 64 * nb
    nM, nN = 2048 // TM, 1024 // TN
    nT = nM * nN
    A.raw('.p2align 8')
    A.label(name)
    L_exit = name + '_exit'
    A('s_cmp_ge_u32 s2, %d' % (nT if a_only else 2 * nT))
    A('s_cbranch_scc1 ' + L_exit)
    P = load_ptrs(A, S)
    G = Gemm(A, S, V, mb, nb, nst=nst)
    SRD_O = S.alloc(4, 4)
    s_w, s_nt, s_mt, s0, s1, s_id, s_base = [S.alloc() for _ in range(7)]
    v_lane, v_off = V.alloc(), V.alloc()
    A('v_and_b32 %s, 63, v0' % vr(v_lane))
    A('v_lshrrev_b32 %s, 6, v0' % vr(v_off))
    A('v_readfirstlane_b32 %s, %s' % (sr(s_w), vr(v_off)))
    A('v_and_b32 %s, 31, %s' % (vr(v_off), vr(v_lane)))
    A('v_lshlrev_b32 %s, 12, %s' % (vr(v_off), vr(v_off)))
    A('v_lshrrev_b32 %s, 5, %s' % (vr(G.t[0]), vr(v_lane)))
    A('v_lshl_add_u32 %s, %s, 4, %s' % (vr(v_off), vr(G.t[0]), vr(v_off)))
    A('s_and_b32 %s, s2, %d' % (sr(s_id), nT - 1))
    mper = nM // 8
    A('s_and_b32 %s, %s, 7' % (sr(s0), sr(s_id)))
    A('s_lshr_b32 %s, %s, 3' % (sr(s1), sr(s_id)))
    A('s_and_b32 %s, %s, %d' % (sr(s_nt), sr(s1), nN - 1))
    A('s_lshr_b32 %s, %s, %d' % (sr(s_mt), sr(s1), nN.bit_length() - 1))
    A('s_lshl_b32 %s, %s, 3' % (sr(s_mt), sr(s_mt)))
    A('s_add_u32 %s, %s, %s' % (sr(s_mt), sr(s_mt), sr(s0)))
    A('s_waitcnt lgkmcnt(0)')
    mk_srd(A, SRD_O, P['out'], 2048 * 2048 * 2)
    mk_srd(A, G.SRD_X, P['ws'], WS_BYTES)
    A('s_mov_b32 %s, 4096' % sr(G.s_xs))
    A('s_mov_b32 %s, %d' % (sr(G.s_ws), 64 * 2048))
    A('s_mul_i32 %s, %s, %d' % (sr(G.s_wo), sr(s_nt), TN * 2))
    A('s_lshr_b32 %s, %s, 1' % (sr(s0), sr(s_w)))
    A('s_mul_i32 %s, %s, %d' % (sr(s0), sr(s0), 32 * mb * 4096))
    A('s_mul_i32 %s, %s, %d' % (sr(s_base), sr(s_mt), TM * 4096))
    A('s_add_u32 %s, %s, %s' % (sr(s_base), sr(s_base), sr(s0)))
    A('s_and_b32 %s, %s, 1' % (sr(s0), sr(s_w)))
    A('s_mul_i32 %s, %s, %d' % (sr(s0), sr(s0), 64 * nb))
    A('s_add_u32 %s, %s, %s' % (sr(s_base), sr(s_base), sr(s0)))
    A('s_add_u32 %s, %s, %s' % (sr(s_base), sr(s_base), sr(G.s_wo)))
    LB, LJ = A.uid('isB'), A.uid('join')
    A('s_cmp_ge_u32 s2, %d' % nT)
    A('s_cbranch_scc1 ' + LB)
    mk_srd(A, G.SRD_W, P['A_Wo'], 4096 * 1024 * 2)
    A('s_mul_i32 %s, %s, %d' % (sr(G.s_xo), sr(s_mt), (TM // 32) * 128 * 2048))
    A('s_add_u32 %s, %s, 0x%x' % (sr(G.s_xo), sr(G.s_xo), OA))
    A('s_mov_b32 %s, %d' % (sr(G.s_n), 64 // nst - 1))
    G.setup(v_lane, s_w, (s0, s1), 'blk', 128 * 2048, 2048)
    A('s_branch ' + LJ)
    A.label(LB)
    mk_srd(A, G.SRD_W, P['B_wo'], 1024 * 1024 * 2)
    A('s_mul_i32 %s, %s, %d' % (sr(G.s_xo), sr(s_mt), (TM // 32) * 32 * 2048))
    A('s_add_u32 %s, %s, 0x%x' % (sr(G.s_xo), sr(G.s_xo), OB))
    A('s_mov_b32 %s, %d' % (sr(G.s_n), 16 // nst - 1))
    A('s_add_u32 %s, %s, 2048' % (sr(s_base), sr(s_base)))
    G.setup(v_lane, s_w, (s0, s1), 'blk', 32 * 2048, 2048)
    A.label(LJ)
    G.prologue()
    G.mainloop('T', 't')
    G.epi_out(SRD_O, v_off, s_base)
    A.label(L_exit)
    A('s_endpgm')
    nacc = 16 * mb * nb
    acc_off = (V.hi + 3) // 4 * 4
    return dict(vgpr=acc_off + nacc, accum=acc_off, sgpr=S.hi, grid=2 * nT, lds=2 * G.STG)


import attn


def gen_attn(A, name, a_only=False):
    S = Regs('s', 4, 100)
    A.raw('.p2align 8')
    A.label(name)
    L_exit = name + '_exit'
    A('s_cmp_ge_u32 s2, %d' % (512 if a_only else 1024))
    A('s_cbranch_scc1 ' + L_exit)
    p = S.alloc(2, 2)
    SRD = S.alloc(4, 4)
    s_w, s_item = S.alloc(), S.alloc()
    st = [S.alloc() for _ in range(4)]
    A('s_load_dwordx2 %s, s[0:1], 96' % sr(p, 2))
    v_lane, v_l16 = 1, 2
    A('v_and_b32 %s, 63, v0' % vr(v_lane))
    A('v_lshrrev_b32 %s, 6, v0' % vr(v_l16))
    A('v_readfirstlane_b32 %s, %s' % (sr(s_w), vr(v_l16)))
    A('v_lshlrev_b32 %s, 4, %s' % (vr(v_l16), vr(v_lane)))
    A('s_and_b32 %s, s2, 511' % sr(s_item))
    A('s_lshl_b32 %s, %s, 2' % (sr(s_item), sr(s_item)))
    A('s_add_u32 %s, %s, %s' % (sr(s_item), sr(s_item), sr(s_w)))
    A('s_waitcnt lgkmcnt(0)')
    mk_srd(A, SRD, p, WS_BYTES)
    LA = A.uid('attnA')
    h1 = 0
    if not a_only:
        A('s_cmp_ge_u32 s2, 512')
        A('s_cbranch_scc1 ' + LA)
        h1 = attn.attn_b(A, SRD, s_item, st, v_lane, v_l16, 4)
        A('s_endpgm')
    A.label(LA)
    h2 = attn.attn_a(A, SRD, s_item, st, v_lane, v_l16, 4)
    A.label(L_exit)
    A('s_endpgm')
    hi = (max(h1, h2) + 3) // 4 * 4
    return dict(vgpr=hi, accum=hi, sgpr=S.hi)


def gen_attn_tail(A, name, item0, nitems):
    S = Regs('s', 4, 100)
    A.raw('.p2align 8')
    A.label(name)
    L_exit = name + '_exit'
    A('s_cmp_ge_u32 s2, %d' % nitems)
    A('s_cbranch_scc1 ' + L_exit)
    p = S.alloc(2, 2)
    SRD = S.alloc(4, 4)
    s_item = S.alloc()
    st = [S.alloc() for _ in range(4)]
    A('s_load_dwordx2 %s, s[0:1], 96' % sr(p, 2))
    v_lane, v_l16 = 1, 2
    A('v_and_b32 %s, 63, v0' % vr(v_lane))
    A('v_lshlrev_b32 %s, 4, %s' % (vr(v_l16), vr(v_lane)))
    A('s_add_u32 %s, s2, %d' % (sr(s_item), item0))
    A('s_waitcnt lgkmcnt(0)')
    mk_srd(A, SRD, p, WS_BYTES)
    h2 = attn.attn_a(A, SRD, s_item, st, v_lane, v_l16, 4)
    A.label(L_exit)
    A('s_endpgm')
    hi = (h2 + 3) // 4 * 4
    return dict(vgpr=hi, accum=hi, sgpr=S.hi)


def out_direct(A, SRD, SRD_O, s_w, s_tb, s_nb, st, v_lane, v_l16, v_off, V0, mtiles=2, ld='', pre=None):
    V = Regs('v', V0, 256)
    s_x0, s_x1, s_wb, s0, s1 = st
    v_t = V.alloc()
    ACC = V.alloc(16 * mtiles, 4)
    NB = 4
    per = 1 + mtiles
    BUF = [V.alloc(4 * per * NB, 4) for _ in range(4)]
    A('s_lshl_b32 %s, %s, 16' % (sr(s0), sr(s_w)))
    A('s_lshl_b32 %s, %s, 18' % (sr(s_x0), sr(s_tb)))
    A('s_add_u32 %s, %s, %s' % (sr(s_x0), sr(s_x0), sr(s0)))
    A('s_add_u32 %s, %s, 0x%x' % (sr(s_x0), sr(s_x0), OA))
    A('s_add_u32 %s, %s, %d' % (sr(s_x1), sr(s_x0), 128 * 2048))
    A('s_lshl_b32 %s, %s, 18' % (sr(s_wb), sr(s_nb)))
    A('s_add_u32 %s, %s, %s' % (sr(s_wb), sr(s_wb), sr(s0)))
    A('s_add_u32 %s, %s, 0x%x' % (sr(s_wb), sr(s_wb), WOT))
    srcs = (s_wb, s_x0, s_x1)[:per]

    def loads(b):
        for kk in range(NB):
            for i, so in enumerate(srcs):
                A('buffer_load_dwordx4 %s, %s, %s, %s offen offset:%d%s' % (vr(BUF[b] + 4 * per * kk + 4 * i, 4), vr(v_l16), sr(SRD, 4), sr(so), kk * 1024, ld))
        for so in srcs:
            A('s_add_u32 %s, %s, %d' % (sr(so), sr(so), NB * 1024))

    def comp(b, first):
        for kk in range(NB):
            for m in range(mtiles):
                a = vr(ACC + 16 * m, 16)
                A('v_mfma_f32_32x32x16_bf16 %s, %s, %s, %s' % (a, vr(BUF[b] + 4 * per * kk, 4), vr(BUF[b] + 4 * per * kk + 4 + 4 * m, 4), '0' if first and kk == 0 else a))
    nbat = 64 // NB
    for b in range(3):
        loads(b)
    for i in range(nbat):
        if i + 3 < nbat:
            loads((i + 3) % 4)
            A('s_waitcnt vmcnt(%d)' % (3 * per * NB))
        else:
            A('s_waitcnt vmcnt(%d)' % ((nbat - 1 - i) * per * NB))
        comp(i % 4, i == 0)
    nq = 4 * mtiles
    A('s_mul_i32 %s, %s, %d' % (sr(s0), sr(s_w), nq * 1024))
    A('v_add_u32 %s, %s, %s' % (vr(v_t), sr(s0), vr(v_l16)))
    for r in range(nq):
        A('ds_write_b128 %s, %s offset:%d' % (vr(v_t), vr(ACC + 4 * r, 4), r * 1024))
    assert mtiles == 2
    A('s_lshl_b32 %s, %s, 11' % (sr(s0), sr(s_w)))
    A('v_add_u32 %s, %s, %s' % (vr(v_t), sr(s0), vr(v_l16)))
    A('s_waitcnt lgkmcnt(0)')
    A('s_barrier')
    R = BUF[0]
    for w in range(4):
        for h in range(2):
            A('ds_read_b128 %s, %s offset:%d' % (vr(R + 8 * w + 4 * h, 4), vr(v_t), w * 8192 + h * 1024))
    A('s_lshr_b32 %s, %s, 1' % (sr(s1), sr(s_w)))
    A('s_add_u32 %s, %s, %s' % (sr(s0), sr(s_tb), sr(s1)))
    A('s_lshl_b32 %s, %s, 17' % (sr(s0), sr(s0)))
    A('s_lshl_b32 %s, %s, 6' % (sr(s1), sr(s_nb)))
    A('s_add_u32 %s, %s, %s' % (sr(s0), sr(s0), sr(s1)))
    A('s_and_b32 %s, %s, 1' % (sr(s1), sr(s_w)))
    A('s_lshl_b32 %s, %s, 5' % (sr(s1), sr(s1)))
    A('s_add_u32 %s, %s, %s' % (sr(s0), sr(s0), sr(s1)))
    A('s_waitcnt lgkmcnt(0)')
    for r in range(8):
        A('v_add_f32 %s, %s, %s' % (vr(R + r), vr(R + r), vr(R + 8 + r)))
        A('v_add_f32 %s, %s, %s' % (vr(R + 16 + r), vr(R + 16 + r), vr(R + 24 + r)))
    for r in range(8):
        A('v_add_f32 %s, %s, %s' % (vr(R + r), vr(R + r), vr(R + 16 + r)))
    D = R + 32
    for r in range(4):
        A('v_cvt_pk_bf16_f32 %s, %s, %s' % (vr(D + r), vr(R + 2 * r), vr(R + 2 * r + 1)))
    A('v_permlane32_swap_b32 %s, %s' % (vr(D), vr(D + 2)))
    A('v_permlane32_swap_b32 %s, %s' % (vr(D + 1), vr(D + 3)))
    A('buffer_store_dwordx4 %s, %s, %s, %s offen' % (vr(D, 4), vr(v_off), sr(SRD_O, 4), sr(s0)))
    return V.hi


def out_direct32(A, SRD, SRD_O, s_w, s_tb, s_nb, st, v_lane, v_l16, V0, ld, pre_wait):
    V = Regs('v', V0, 256)
    s_x, s_wb, s0 = st
    v_t, v_o = V.alloc(), V.alloc()
    ACC = V.alloc(16, 4)
    NX = 56
    XB = V.alloc(4 * NX, 4)
    A('s_lshl_b32 %s, %s, 16' % (sr(s0), sr(s_w)))
    A('s_lshl_b32 %s, %s, 18' % (sr(s_x), sr(s_tb)))
    A('s_add_u32 %s, %s, %s' % (sr(s_x), sr(s_x), sr(s0)))
    A('s_add_u32 %s, %s, 0x%x' % (sr(s_x), sr(s_x), OA))
    A('s_lshl_b32 %s, %s, 18' % (sr(s_wb), sr(s_nb)))
    A('s_add_u32 %s, %s, %s' % (sr(s_wb), sr(s_wb), sr(s0)))
    A('s_add_u32 %s, %s, 0x%x' % (sr(s_wb), sr(s_wb), WOT))
    for kk in range(64):
        A('buffer_load_dwordx4 %s, %s, %s, %s offen offset:%d%s' % (ar(4 * kk, 4), vr(v_l16), sr(SRD, 4), sr(s_wb), (kk & 3) * 1024, ld))
        if kk & 3 == 3:
            A('s_add_u32 %s, %s, 4096' % (sr(s_wb), sr(s_wb)))
    A('v_and_b32 %s, 31, %s' % (vr(v_o), vr(v_lane)))
    A('v_lshlrev_b32 %s, 12, %s' % (vr(v_o), vr(v_o)))
    A('v_lshrrev_b32 %s, 5, %s' % (vr(v_t), vr(v_lane)))
    A('v_lshl_add_u32 %s, %s, 3, %s' % (vr(v_o), vr(v_t), vr(v_o)))
    A('s_waitcnt vmcnt(0)')
    pre_wait()

    def xl(kk):
        A('buffer_load_dwordx4 %s, %s, %s, %s offen offset:%d%s' % (vr(XB + 4 * (kk % NX), 4), vr(v_l16), sr(SRD, 4), sr(s_x), (kk & 3) * 1024, ld))
        if kk & 3 == 3:
            A('s_add_u32 %s, %s, 4096' % (sr(s_x), sr(s_x)))
    for kk in range(NX):
        xl(kk)
    a = vr(ACC, 16)
    issued = NX
    for kk in range(64):
        A('s_waitcnt vmcnt(%d)' % (issued - kk - 1))
        A('v_mfma_f32_32x32x16_bf16 %s, %s, %s, %s' % (a, ar(4 * kk, 4), vr(XB + 4 * (kk % NX), 4), '0' if kk == 0 else a))
        if issued < 64:
            xl(issued)
            issued += 1
    A('s_lshl_b32 %s, %s, 12' % (sr(s0), sr(s_w)))
    A('v_add_u32 %s, %s, %s' % (vr(v_t), sr(s0), vr(v_l16)))
    for r in range(4):
        A('ds_write_b128 %s, %s offset:%d' % (vr(v_t), vr(ACC + 4 * r, 4), r * 1024))
    A('s_lshl_b32 %s, %s, 10' % (sr(s0), sr(s_w)))
    A('v_add_u32 %s, %s, %s' % (vr(v_t), sr(s0), vr(v_l16)))
    A('s_waitcnt lgkmcnt(0)')
    A('s_barrier')
    R = XB
    for w in range(4):
        A('ds_read_b128 %s, %s offset:%d' % (vr(R + 4 * w, 4), vr(v_t), w * 4096))
    A('s_lshl_b32 %s, %s, 17' % (sr(s0), sr(s_tb)))
    A('s_lshl_b32 %s, %s, 6' % (sr(s_x), sr(s_nb)))
    A('s_add_u32 %s, %s, %s' % (sr(s0), sr(s0), sr(s_x)))
    A('s_lshl_b32 %s, %s, 4' % (sr(s_x), sr(s_w)))
    A('s_add_u32 %s, %s, %s' % (sr(s0), sr(s0), sr(s_x)))
    A('s_waitcnt lgkmcnt(0)')
    for r in range(0, 4, 2):
        A('v_pk_add_f32 %s, %s, %s' % (vr(R + r, 2), vr(R + r, 2), vr(R + 4 + r, 2)))
        A('v_pk_add_f32 %s, %s, %s' % (vr(R + 8 + r, 2), vr(R + 8 + r, 2), vr(R + 12 + r, 2)))
    for r in range(0, 4, 2):
        A('v_pk_add_f32 %s, %s, %s' % (vr(R + r, 2), vr(R + r, 2), vr(R + 8 + r, 2)))
    D = R + 16
    for r in range(2):
        A('v_cvt_pk_bf16_f32 %s, %s, %s' % (vr(D + r), vr(R + 2 * r), vr(R + 2 * r + 1)))
    A('buffer_store_dwordx2 %s, %s, %s, %s offen' % (vr(D, 2), vr(v_o), sr(SRD_O, 4), sr(s0)))
```

```python
QX = 0x0000000
KX = 0x1000000
VX = 0x2000000
OA = 0x3000000
QB = 0x4000000
KB = 0x4400000
VB = 0x4800000
OB = 0x4C00000
KMO = 0x5000000
VMO = 0x5800000
QKI = 0x6000000
VMI = 0x6080000
MEMI = 0x6100000
FLG = 0x6180000
PART = 0x6200000
CTR = 0x6400000
WOT = 0x6800000
STAMP = 0x7000000
WS_BYTES = 0x10000000
KA = dict(A_x=0, A_mem0=8, A_Wq=16, A_Wk=24, A_Wv=32, A_Wo=40, A_seg=48, B_x=56, B_wqkv=64, B_wo=72, out=80, dbg=88, ws=96)
DBG_Q = 64
DBG_KV = 80
DBG_BQ = 112
DBG_BA = 144
DBG_QR = 176
DBG_AA = 208
DBG_PROG = 40
DBG_FIN = 44
DBG_WT = 48
DBG_INIT = 52
DBG_KV0 = 56
WS_HALF = 0x8000000
S_MODE, S_VX = 100, 101
```

```python
from asmlib import *
from layout import *
from gemm import Gemm
from kernels import mk_srd, load_ptrs, out_direct, out_direct32
import attn
import os, json

LDS_JOB = 131072 + 64
LIM = 200000
WTOUCH = os.environ.get('WTOUCH', '')
WST = int(os.environ.get('WST', '0'))

SEGS = [('skv', 64, 0), ('bkv', 48, 2), ('q', 16, 0), ('aattn', 8, 0), ('bq', 24, 0), ('aout', 8, 0), ('q', 16, 4),
        ('aattn', 4, 2), ('battn', 32, 0), ('aattn', 4, 3), ('aout', 8, 2), ('wot', 32, 0), ('aattn', 4, 4),
        ('bout', 32, 0), ('aout', 4, 4), ('aattn', 4, 5), ('aattn1', 4, 24), ('aout', 4, 5)]
for _mp in range(24, 30):
    SEGS += [('aattn1', 4, _mp + 1), ('aoutd', 8, _mp)]
SEGS += [('aattn1', 4, 31), ('aoute', 32, 60)]
if os.environ.get('SEGS'):
    SEGS = [tuple(x) for x in json.loads(os.environ['SEGS'])]


def seg_bounds():
    o, a = [], 0
    for k, n, p in SEGS:
        o.append((a, a + n, '%s%d' % (k, p)))
        a += n
    return o


def gen_worker(A, name):
    S = Regs('s', 4, 100)
    P = load_ptrs(A, S)
    SRD_WS = S.alloc(4, 4)
    SRD_D = S.alloc(4, 4)
    SRD_O = S.alloc(4, 4)
    s_w, s_q, s_qn, s_job, s_cfg, s0, s1, s2_, s3, s_base, s_tbs, s_or, s_ctr, s_inc, s_mt, s_nt, s_it, s_k, s_p = [S.alloc() for _ in range(19)]
    s_pp = S.alloc(2, 2)
    s_tm = S.alloc(2, 2)
    s_sa = S.alloc()

    def wstamp(k):
        if not WST:
            return
        A('s_memrealtime %s' % sr(s_tm, 2))
        A('s_waitcnt lgkmcnt(0)')
        A('v_mov_b32 v4, %s' % sr(s_tm))
        A('v_mov_b32 v5, %s' % sr(s_sa))
        A('s_mov_b64 exec, 1')
        A('buffer_store_dword v4, v5, %s, 0 offen offset:%d' % (sr(SRD_WS, 4), 4 * k))
        if k in (2, 3):
            A('s_memtime %s' % sr(s_tm, 2))
            A('s_waitcnt lgkmcnt(0)')
            A('v_mov_b32 v4, %s' % sr(s_tm))
            A('buffer_store_dword v4, v5, %s, 0 offen offset:%d' % (sr(SRD_WS, 4), 4 * (k + 4)))
        A('s_mov_b64 exec, -1')
    v_lane, v_l16, v_off, v_a, v_b, v_sh = 1, 2, 3, 4, 5, 6
    s_init = S.alloc()
    s_wo = S.alloc()
    smark = S.mark()
    V4 = Regs('v', 7, 256)
    G4 = Gemm(A, S, V4, 4, 4)
    hi = S.mark()
    S.release(smark)
    V2 = Regs('v', 7, 256)
    G2 = Gemm(A, S, V2, 2, 2, xsc=' sc1', nst=4)
    assert (G2.SRD_X, G2.SRD_W, G2.s_xo, G2.s_n) == (G4.SRD_X, G4.SRD_W, G4.s_xo, G4.s_n)
    G = G4
    L_next, L_done = name + '_wnext', name + '_wdone'

    A('v_and_b32 %s, 63, v0' % vr(v_lane))
    A('v_lshrrev_b32 %s, 6, v0' % vr(v_l16))
    A('v_readfirstlane_b32 %s, %s' % (sr(s_w), vr(v_l16)))
    A('v_lshlrev_b32 %s, 4, %s' % (vr(v_l16), vr(v_lane)))
    A('v_and_b32 %s, 31, %s' % (vr(v_off), vr(v_lane)))
    A('v_lshlrev_b32 %s, 12, %s' % (vr(v_off), vr(v_off)))
    A('v_lshrrev_b32 %s, 5, %s' % (vr(v_a), vr(v_lane)))
    A('v_lshl_add_u32 %s, %s, 4, %s' % (vr(v_off), vr(v_a), vr(v_off)))
    A('s_getreg_b32 %s, hwreg(HW_REG_XCC_ID)' % sr(s_q))
    A('s_and_b32 %s, %s, 3' % (sr(s_q), sr(s_q)))
    A('s_mov_b32 %s, 0' % sr(s_qn))
    A('s_mov_b32 %s, 0' % sr(s_cfg))
    A('s_mov_b32 %s, %d' % (sr(s_ctr), DBG_WT))
    A('s_waitcnt lgkmcnt(0)')
    mk_srd(A, SRD_WS, P['ws'], WS_BYTES)
    mk_srd(A, SRD_D, P['dbg'], 256)
    mk_srd(A, SRD_O, P['out'], 2048 * 2048 * 2)

    A('v_and_b32 %s, 3, %s' % (vr(v_sh), vr(v_lane)))
    A('v_lshlrev_b32 %s, 7, %s' % (vr(v_sh), vr(v_sh)))
    A('v_add_u32 %s, 0x%x, %s' % (vr(v_sh), CTR, vr(v_sh)))
    A('s_mov_b32 %s, 0' % sr(s_init))

    def wait_init():
        Lw, Ld = A.uid('iw'), A.uid('id')
        A('s_cmp_lg_u32 %s, 0' % sr(s_init))
        A('s_cbranch_scc1 ' + Ld)
        A('s_mov_b32 %s, 1' % sr(s_init))
        A('v_mov_b32 %s, %d' % (vr(v_a), DBG_INIT))
        A('s_mov_b32 %s, 0' % sr(s3))
        A.label(Lw)
        A('buffer_load_dword %s, %s, %s, 0 offen sc1' % (vr(v_b), vr(v_a), sr(SRD_D, 4)))
        A('s_add_u32 %s, %s, 1' % (sr(s3), sr(s3)))
        A('s_waitcnt vmcnt(0)')
        A('v_cmp_ne_u32 vcc, 0, %s' % vr(v_b))
        A('s_cbranch_vccnz ' + Ld)
        A('s_sleep 4')
        A('s_cmp_lt_u32 %s, %d' % (sr(s3), LIM))
        A('s_cbranch_scc1 ' + Lw)
        A.label(Ld)
    L_have = A.uid('havejob')
    A('s_mov_b32 %s, s3' % sr(s_job))
    def touch(ptrs_sizes, per_wave_log2):
        A('s_lshl_b32 %s, %s, 5' % (sr(s0), sr(s_q)))
        A('s_add_u32 %s, %s, s3' % (sr(s0), sr(s0)))
        A('s_lshl_b32 %s, %s, 2' % (sr(s0), sr(s0)))
        A('s_add_u32 %s, %s, %s' % (sr(s0), sr(s0), sr(s_w)))
        A('s_lshl_b32 %s, %s, %d' % (sr(s0), sr(s0), per_wave_log2))
        A('v_lshlrev_b32 %s, 7, %s' % (vr(v_a), vr(v_lane)))
        for p, nbytes in ptrs_sizes:
            mk_srd(A, G.SRD_W, P[p], nbytes)
            for i in range(1 << (per_wave_log2 - 13)):
                A('s_add_u32 %s, %s, %d' % (sr(s1), sr(s0), i * 8192))
                A('buffer_load_dword %s, %s, %s, %s offen' % (vr(v_b), vr(v_a), sr(G.SRD_W, 4), sr(s1)))
            A('s_nop 4')
    A('s_cmp_ge_u32 s3, 32')
    A('s_cbranch_scc1 ' + L_next)
    if WTOUCH:
        touch([(k, 8 << 20) for k in WTOUCH.split(',')], 14)
    A('s_branch ' + L_have)
    A.label(L_next)
    Lnf = A.uid('nofetch')
    A('s_cmp_lg_u32 %s, 0' % sr(s_w))
    A('s_cbranch_scc1 ' + Lnf)
    wait_init()
    A('s_lshl_b32 %s, %s, 7' % (sr(s0), sr(s_q)))
    A('s_add_u32 %s, %s, 0x%x' % (sr(s0), sr(s0), CTR + DBG_Q * 128))
    A('v_mov_b32 %s, %s' % (vr(v_a), sr(s0)))
    A('v_mov_b32 %s, 1' % vr(v_b))
    A('s_mov_b64 exec, 1')
    A('buffer_atomic_add %s, %s, %s, 0 offen sc0 sc1' % (vr(v_b), vr(v_a), sr(SRD_WS, 4)))
    A('s_waitcnt vmcnt(0)')
    A('v_mov_b32 %s, %d' % (vr(v_a), LDS_JOB))
    A('ds_write_b32 %s, %s' % (vr(v_a), vr(v_b)))
    A('s_waitcnt lgkmcnt(0)')
    A('s_mov_b64 exec, -1')
    A.label(Lnf)
    A('s_barrier')
    A('v_mov_b32 %s, %d' % (vr(v_a), LDS_JOB))
    A('ds_read_b32 %s, %s' % (vr(v_b), vr(v_a)))
    A('s_waitcnt lgkmcnt(0)')
    A('v_readfirstlane_b32 %s, %s' % (sr(s_job), vr(v_b)))
    A('s_barrier')
    A('s_add_u32 %s, %s, 32' % (sr(s_job), sr(s_job)))
    A.label(L_have)
    if WST:
        A('s_min_u32 %s, %s, 511' % (sr(s0), sr(s_job)))
        A('s_lshl_b32 %s, %s, 9' % (sr(s_sa), sr(s_q)))
        A('s_add_u32 %s, %s, %s' % (sr(s_sa), sr(s_sa), sr(s0)))
        A('s_lshl_b32 %s, %s, 2' % (sr(s_sa), sr(s_sa)))
        A('s_add_u32 %s, %s, %s' % (sr(s_sa), sr(s_sa), sr(s_w)))
        A('s_lshl_b32 %s, %s, 5' % (sr(s_sa), sr(s_sa)))
        A('s_add_u32 %s, %s, 0x%x' % (sr(s_sa), sr(s_sa), STAMP + 0x400000))
        wstamp(0)
    kinds = ('skv', 'bkv', 'bq', 'q', 'battn', 'bout', 'wot', 'aattn', 'aout', 'aattn1', 'aoutd', 'aoute', 'big', 'bigA', 'small', 'outc')
    L = {k: A.uid('job' + k) for k in kinds}
    for k, n, p in SEGS:
        A('s_mov_b32 %s, %d' % (sr(s_p), p))
        A('s_cmp_lt_u32 %s, %d' % (sr(s_job), n))
        A('s_cbranch_scc1 ' + L[k])
        A('s_sub_u32 %s, %s, %d' % (sr(s_job), sr(s_job), n))
    QLEN = sum(n for _, n, _ in SEGS)
    L_peek = name + '_wpeek'
    A.label(L_peek)
    A('s_mov_b32 %s, %d' % (sr(s0), DBG_Q * 128))
    A('buffer_load_dword %s, %s, %s, %s offen sc1' % (vr(v_b), vr(v_sh), sr(SRD_WS, 4), sr(s0)))
    A('v_lshlrev_b32 %s, 2, %s' % (vr(v_a), vr(v_lane)))
    A('v_add_u32 %s, %d, %s' % (vr(v_a), LDS_JOB + 64, vr(v_a)))
    A('s_waitcnt vmcnt(0)')
    Lp1 = A.uid('pk')
    A('s_cmp_lg_u32 %s, 0' % sr(s_w))
    A('s_cbranch_scc1 ' + Lp1)
    A('ds_write_b32 %s, %s' % (vr(v_a), vr(v_b)))
    A('s_waitcnt lgkmcnt(0)')
    A.label(Lp1)
    A('s_barrier')
    A('ds_read_b32 %s, %s' % (vr(v_b), vr(v_a)))
    A('s_waitcnt lgkmcnt(0)')
    A('s_barrier')
    for k in range(4):
        A('v_readlane_b32 %s, %s, %d' % (sr(s0), vr(v_b), k))
        A('s_mov_b32 %s, %d' % (sr(s_q), k))
        A('s_cmp_lt_u32 %s, %d' % (sr(s0), QLEN - 32))
        A('s_cbranch_scc1 ' + L_next)
    A('s_endpgm')

    def wait_ctr(s_off, thr, s_shift=None, bits=8, slp=12):
        Lw, Ld = A.uid('dw'), A.uid('dd')
        A('s_cmp_lg_u32 %s, 0' % sr(s_w))
        A('s_cbranch_scc1 ' + Ld)
        A('s_lshl_b32 %s, %s, 7' % (sr(s_wo), sr(s_off) if isinstance(s_off, int) else s_off))
        A('s_mov_b32 %s, 0' % sr(s3))
        A.label(Lw)
        A('buffer_load_dword %s, %s, %s, %s offen sc1' % (vr(v_b), vr(v_sh), sr(SRD_WS, 4), sr(s_wo)))
        A('s_add_u32 %s, %s, 1' % (sr(s3), sr(s3)))
        A('s_waitcnt vmcnt(0)')
        if s_shift is not None:
            A('v_bfe_u32 %s, %s, %s, %d' % (vr(v_b), vr(v_b), sr(s_shift), bits))
        A('v_cmp_gt_u32 vcc, %s, %s' % (thr, vr(v_b)))
        A('s_cbranch_vccz ' + Ld)
        A('s_sleep %d' % slp)
        A('s_cmp_lt_u32 %s, %d' % (sr(s3), LIM))
        A('s_cbranch_scc1 ' + Lw)
        A.label(Ld)
        A('s_barrier')

    def cfg(Gx, cid, *args):
        Ls = A.uid('cfg')
        A('s_cmp_eq_u32 %s, %d' % (sr(s_cfg), cid))
        A('s_cbranch_scc1 ' + Ls)
        Gx.setup(v_lane, s_w, (s0, s1), *args)
        A('s_mov_b32 %s, %d' % (sr(s_cfg), cid))
        A.label(Ls)

    def blk_base(mbk, nbk):
        A('s_lshr_b32 %s, %s, 1' % (sr(s0), sr(s_w)))
        A('s_lshl_b32 %s, %s, 1' % (sr(s1), sr(s_mt)))
        A('s_add_u32 %s, %s, %s' % (sr(s0), sr(s0), sr(s1)))
        A('s_mul_i32 %s, %s, %d' % (sr(s0), sr(s0), mbk))
        A('s_mul_i32 %s, %s, %s' % (sr(s0), sr(s0), sr(s_tbs)))
        A('s_add_u32 %s, %s, %s' % (sr(s_base), sr(s_base), sr(s0)))
        A('s_and_b32 %s, %s, 1' % (sr(s0), sr(s_w)))
        A('s_lshl_b32 %s, %s, 1' % (sr(s1), sr(s_nt)))
        A('s_add_u32 %s, %s, %s' % (sr(s0), sr(s0), sr(s1)))
        A('s_mul_i32 %s, %s, %d' % (sr(s0), sr(s0), nbk * 2048))
        A('s_add_u32 %s, %s, %s' % (sr(s_base), sr(s_base), sr(s0)))

    def sel_kv(thr):
        A('s_cmp_ge_u32 %s, %d' % (sr(s_nt), thr))
        A('s_cselect_b32 %s, 1, 0' % sr(s_or))
        A('s_cselect_b64 %s, %s, %s' % (sr(s_pp, 2), sr(P['A_Wv'], 2), sr(P['A_Wk'], 2)))
        A('s_mov_b32 %s, 0x%x' % (sr(s_base), KX))
        A('s_cselect_b32 %s, 0x%x, %s' % (sr(s_base), VX, sr(s_base)))
        A('s_and_b32 %s, %s, %d' % (sr(s_nt), sr(s_nt), thr - 1))

    def ctr(base, s_idx, inc):
        A('s_lshl_b32 %s, %s, 2' % (sr(s_ctr), sr(s_idx)))
        A('s_add_u32 %s, %s, %d' % (sr(s_ctr), sr(s_ctr), base))
        A('s_mov_b32 %s, %d' % (sr(s_inc), inc))

    def nt_q(mask_bits_shift, mask):
        A('s_lshr_b32 %s, %s, %d' % (sr(s_nt), sr(s_job), mask_bits_shift))
        A('s_and_b32 %s, %s, %d' % (sr(s_nt), sr(s_nt), mask))
        A('s_lshl_b32 %s, %s, 2' % (sr(s_nt), sr(s_nt)))
        A('s_add_u32 %s, %s, %s' % (sr(s_nt), sr(s_nt), sr(s_q)))

    A.label(L['skv'])
    A('s_lshr_b32 %s, %s, 5' % (sr(s0), sr(s_job)))
    ctr(DBG_KV, s0, 1)
    A('s_lshl_b32 %s, %s, 1' % (sr(s0), sr(s0)))
    A('s_and_b32 %s, %s, 1' % (sr(s_mt), sr(s_job)))
    A('s_add_u32 %s, %s, %s' % (sr(s_mt), sr(s_mt), sr(s0)))
    nt_q(1, 15)
    sel_kv(32)
    mk_srd(A, G.SRD_W, s_pp, 1024 * 4096 * 2)
    mk_srd(A, G.SRD_X, P['A_x'], 2048 * 1024 * 2)
    A('s_lshl_b32 %s, %s, 18' % (sr(G.s_xo), sr(s_mt)))
    A('s_mov_b32 %s, 128' % sr(G.s_xs))
    A('s_lshl_b32 %s, %s, 8' % (sr(G.s_wo), sr(s_nt)))
    A('s_mov_b32 %s, %d' % (sr(G.s_ws), 64 * 8192))
    A('s_mov_b32 %s, %d' % (sr(s_tbs), 128 * 2048))
    A('s_mov_b32 %s, 3' % sr(G.s_n))
    blk_base(2, 2)
    cfg(G2, 3, 'nat', 2048, 8192)
    A('s_mov_b32 %s, 0' % sr(s_k))
    A('s_branch ' + L['small'])

    A.label(L['aout'])
    A('s_lshr_b32 %s, %s, 2' % (sr(s_mt), sr(s_job)))
    A('s_add_u32 %s, %s, %s' % (sr(s_mt), sr(s_mt), sr(s_p)))
    A('s_lshl_b32 %s, %s, 1' % (sr(s_mt), sr(s_mt)))
    A('s_lshr_b32 %s, %s, 1' % (sr(s0), sr(s_q)))
    A('s_add_u32 %s, %s, %s' % (sr(s_mt), sr(s_mt), sr(s0)))
    A('s_and_b32 %s, %s, 1' % (sr(s_nt), sr(s_q)))
    A('s_lshl_b32 %s, %s, 2' % (sr(s_nt), sr(s_nt)))
    A('s_and_b32 %s, %s, 3' % (sr(s0), sr(s_job)))
    A('s_add_u32 %s, %s, %s' % (sr(s_nt), sr(s_nt), sr(s0)))
    mk_srd(A, G.SRD_W, P['A_Wo'], 4096 * 1024 * 2)
    A('s_mul_i32 %s, %s, %d' % (sr(G.s_xo), sr(s_mt), 4 * 128 * 2048))
    A('s_add_u32 %s, %s, 0x%x' % (sr(G.s_xo), sr(G.s_xo), OA))
    A('s_mov_b32 %s, 15' % sr(G.s_n))
    A('s_mov_b32 %s, 0' % sr(s_base))
    A('s_mov_b32 %s, %d' % (sr(s2_), DBG_AA))
    cfg(G2, 5, 'blk', 128 * 2048, 2048)
    A('s_branch ' + L['outc'])
    A.label(L['bout'])
    A('s_lshr_b32 %s, %s, 1' % (sr(s_mt), sr(s_job)))
    nt_q(0, 1)
    mk_srd(A, G.SRD_W, P['B_wo'], 1024 * 1024 * 2)
    A('s_mul_i32 %s, %s, %d' % (sr(G.s_xo), sr(s_mt), 4 * 32 * 2048))
    A('s_add_u32 %s, %s, 0x%x' % (sr(G.s_xo), sr(G.s_xo), OB))
    A('s_mov_b32 %s, 3' % sr(G.s_n))
    A('s_mov_b32 %s, 2048' % sr(s_base))
    A('s_mov_b32 %s, %d' % (sr(s2_), DBG_BA))
    cfg(G2, 4, 'blk', 32 * 2048, 2048)
    A.label(L['outc'])
    mk_srd(A, G.SRD_X, P['ws'], WS_BYTES)
    A('s_mov_b32 %s, 4096' % sr(G.s_xs))
    A('s_lshl_b32 %s, %s, 8' % (sr(G.s_wo), sr(s_nt)))
    A('s_mov_b32 %s, %d' % (sr(G.s_ws), 64 * 2048))
    A('s_mov_b32 %s, 0' % sr(s_or))
    A('s_mov_b32 %s, 0' % sr(s_inc))
    A('s_lshr_b32 %s, %s, 1' % (sr(s0), sr(s_w)))
    A('s_lshl_b32 %s, %s, 18' % (sr(s0), sr(s0)))
    A('s_add_u32 %s, %s, %s' % (sr(s_base), sr(s_base), sr(s0)))
    A('s_lshl_b32 %s, %s, 19' % (sr(s0), sr(s_mt)))
    A('s_add_u32 %s, %s, %s' % (sr(s_base), sr(s_base), sr(s0)))
    A('s_and_b32 %s, %s, 1' % (sr(s0), sr(s_w)))
    A('s_lshl_b32 %s, %s, 7' % (sr(s0), sr(s0)))
    A('s_add_u32 %s, %s, %s' % (sr(s_base), sr(s_base), sr(s0)))
    A('s_add_u32 %s, %s, %s' % (sr(s_base), sr(s_base), sr(G.s_wo)))
    A('s_lshr_b32 %s, %s, 1' % (sr(s0), sr(s_mt)))
    A('s_lshl_b32 %s, %s, 2' % (sr(s0), sr(s0)))
    A('s_add_u32 %s, %s, %s' % (sr(s0), sr(s0), sr(s2_)))
    wait_ctr(s0, 4)
    A('s_mov_b32 %s, 1' % sr(s_k))
    A.label(L['small'])
    wstamp(1)
    G2.prologue()
    wstamp(2)
    LN, LE, LO = A.uid('sN'), A.uid('sE'), A.uid('sO')
    A('s_cmp_eq_u32 %s, 1' % sr(s_or))
    A('s_cbranch_scc1 ' + LN)
    G2.mainloop('T', 'st')
    A('s_nop 15')
    A('s_cmp_eq_u32 %s, 1' % sr(s_k))
    A('s_cbranch_scc1 ' + LO)
    A('s_branch ' + LE)
    A.label(LN)
    G2.mainloop('N', 'sn')
    A.label(LE)
    wstamp(3)
    G2.epi_blk(SRD_WS, v_l16, s_base, s_tbs, s0, ' sc1')
    A('s_branch ' + L_done)
    A.label(LO)
    wstamp(3)
    G2.epi_out(SRD_O, v_off, s_base)
    A('s_branch ' + L_done)

    A.label(L['wot'])
    nt_q(0, 1)
    A('s_lshr_b32 %s, %s, 1' % (sr(s_mt), sr(s_job)))
    mk_srd(A, G.SRD_W, P['A_Wo'], 4096 * 1024 * 2)
    cfg(G2, 5, 'blk', 128 * 2048, 2048)
    A('s_lshl_b32 %s, %s, 8' % (sr(G.s_wo), sr(s_nt)))
    A('s_lshl_b32 %s, %s, 19' % (sr(s0), sr(s_mt)))
    A('s_add_u32 %s, %s, %s' % (sr(G.s_wo), sr(G.s_wo), sr(s0)))
    A('s_mov_b32 %s, 1' % sr(s_inc))
    A('s_mov_b32 %s, %d' % (sr(s_ctr), DBG_WT))
    wstamp(1)
    for st in range(4):
        for g in G2.dma_ops(st)[G2.nX:]:
            for t in g:
                A(t)
        A('s_add_u32 %s, %s, %d' % (sr(G.s_wo), sr(G.s_wo), 64 * 2048))
    A('s_and_b32 %s, %s, 1' % (sr(s0), sr(s_w)))
    A('s_lshl_b32 %s, %s, 1' % (sr(s0), sr(s0)))
    A('s_lshl_b32 %s, %s, 2' % (sr(s1), sr(s_nt)))
    A('s_add_u32 %s, %s, %s' % (sr(s0), sr(s0), sr(s1)))
    A('s_lshl_b32 %s, %s, 18' % (sr(s_base), sr(s0)))
    A('s_lshl_b32 %s, %s, 14' % (sr(s0), sr(s_mt)))
    A('s_add_u32 %s, %s, %s' % (sr(s_base), sr(s_base), sr(s0)))
    A('s_lshr_b32 %s, %s, 1' % (sr(s0), sr(s_w)))
    A('s_lshl_b32 %s, %s, 13' % (sr(s1), sr(s0)))
    A('s_add_u32 %s, %s, %s' % (sr(s_base), sr(s_base), sr(s1)))
    A('s_add_u32 %s, %s, 0x%x' % (sr(s_base), sr(s_base), WOT))
    A('s_mul_i32 %s, %s, %d' % (sr(s0), sr(s0), 2 * G2.STG))
    T = V2.alloc(64, 4)
    ta = [V2.alloc() for _ in range(4)]
    for i in range(2):
        for q in range(2):
            A('v_add_u32 %s, %s, %s' % (vr(ta[2 * i + q]), sr(s0), vr(G2.rw[0][i][q])))
    A('s_waitcnt vmcnt(0)')
    A('s_barrier')
    for i in range(2):
        for st in range(2):
            for ks in range(4):
                d = T + 4 * ((i * 2 + st) * 4 + ks)
                for q in range(2):
                    A('ds_read_b64_tr_b16 %s, %s offset:%d' % (vr(d + 2 * q, 2), vr(ta[2 * i + q]), st * G2.STG + ks * 16 * G2.wrow))
            A('s_waitcnt lgkmcnt(0)')
    for i in range(2):
        for st in range(2):
            A('s_add_u32 %s, %s, %d' % (sr(s0), sr(s_base), i * 262144 + st * 4096))
            for ks in range(4):
                d = T + 4 * ((i * 2 + st) * 4 + ks)
                A('buffer_store_dwordx4 %s, %s, %s, %s offen offset:%d' % (vr(d, 4), vr(v_l16), sr(SRD_WS, 4), sr(s0), ks * 1024) + ' sc1')
    A('s_branch ' + L_done)

    A.label(L['bkv'])
    A('s_lshr_b32 %s, %s, 3' % (sr(s_mt), sr(s_job)))
    A('s_add_u32 %s, %s, %s' % (sr(s_mt), sr(s_mt), sr(s_p)))
    nt_q(0, 7)
    sel_kv(16)
    ctr(DBG_KV, s_mt, 4)
    A('s_branch ' + L['bigA'])
    A.label(L['q'])
    A('s_lshr_b32 %s, %s, 2' % (sr(s_mt), sr(s_job)))
    A('s_add_u32 %s, %s, %s' % (sr(s_mt), sr(s_mt), sr(s_p)))
    nt_q(0, 3)
    A('s_mov_b64 %s, %s' % (sr(s_pp, 2), sr(P['A_Wq'], 2)))
    A('s_mov_b32 %s, 0x%x' % (sr(s_base), QX))
    A('s_mov_b32 %s, 0' % sr(s_or))
    ctr(DBG_QR, s_mt, 1)
    A.label(L['bigA'])
    mk_srd(A, G.SRD_W, s_pp, 1024 * 4096 * 2)
    mk_srd(A, G.SRD_X, P['A_x'], 2048 * 1024 * 2)
    A('s_lshl_b32 %s, %s, 9' % (sr(G.s_wo), sr(s_nt)))
    A('s_mov_b32 %s, %d' % (sr(G.s_ws), 64 * 8192))
    A('s_mov_b32 %s, %d' % (sr(s_tbs), 128 * 2048))
    cfg(G4, 1, 'nat', 2048, 8192)
    A('s_branch ' + L['big'])
    A.label(L['bq'])
    A('s_mul_i32 %s, %s, 43' % (sr(s_mt), sr(s_job)))
    A('s_lshr_b32 %s, %s, 7' % (sr(s_mt), sr(s_mt)))
    A('s_mul_i32 %s, %s, 3' % (sr(s0), sr(s_mt)))
    A('s_sub_u32 %s, %s, %s' % (sr(s0), sr(s_job), sr(s0)))
    A('s_cmp_eq_u32 %s, 2' % sr(s0))
    A('s_cselect_b32 %s, 1, 0' % sr(s_or))
    A('s_lshl_b32 %s, %s, 22' % (sr(s_base), sr(s0)))
    A('s_add_u32 %s, %s, 0x%x' % (sr(s_base), sr(s_base), QB))
    A('s_lshl_b32 %s, %s, 2' % (sr(s0), sr(s0)))
    A('s_add_u32 %s, %s, %s' % (sr(s0), sr(s0), sr(s_q)))
    A('s_lshl_b32 %s, %s, 9' % (sr(G.s_wo), sr(s0)))
    A('s_mov_b32 %s, %s' % (sr(s_nt), sr(s_q)))
    mk_srd(A, G.SRD_W, P['B_wqkv'], 1024 * 3072 * 2)
    mk_srd(A, G.SRD_X, P['B_x'], 2048 * 1024 * 2)
    A('s_mov_b32 %s, %d' % (sr(G.s_ws), 64 * 6144))
    A('s_mov_b32 %s, %d' % (sr(s_tbs), 32 * 2048))
    ctr(DBG_BQ, s_mt, 1)
    cfg(G4, 2, 'nat', 2048, 6144)
    A.label(L['big'])
    A('s_lshl_b32 %s, %s, 19' % (sr(G.s_xo), sr(s_mt)))
    A('s_mov_b32 %s, 128' % sr(G.s_xs))
    A('s_mov_b32 %s, 7' % sr(G.s_n))
    blk_base(4, 4)
    wstamp(1)
    G4.prologue()
    wstamp(2)
    LN, LE = A.uid('bN'), A.uid('bE')
    A('s_cmp_eq_u32 %s, 1' % sr(s_or))
    A('s_cbranch_scc1 ' + LN)
    G4.mainloop('T', 'bt')
    A('s_nop 15')
    A('s_branch ' + LE)
    A.label(LN)
    G4.mainloop('N', 'bn')
    A.label(LE)
    wstamp(3)
    G4.epi_blk(SRD_WS, v_l16, s_base, s_tbs, s0, ' sc1')
    A('s_branch ' + L_done)

    def attn_items():
        A('s_mov_b32 %s, 0' % sr(s_cfg))
        A('s_and_b32 %s, %s, 3' % (sr(s0), sr(s_job)))
        A('s_lshl_b32 %s, %s, 2' % (sr(s1), sr(s_q)))
        A('s_add_u32 %s, %s, %s' % (sr(s0), sr(s0), sr(s1)))
        A('s_lshl_b32 %s, %s, 1' % (sr(s0), sr(s0)))
        A('s_and_b32 %s, %s, 1' % (sr(s1), sr(s_w)))
        A('s_add_u32 %s, %s, %s' % (sr(s_it), sr(s0), sr(s1)))
        A('s_lshl_b32 %s, %s, 8' % (sr(s0), sr(s_mt)))
        A('s_add_u32 %s, %s, %s' % (sr(s_it), sr(s_it), sr(s0)))
        A('s_lshr_b32 %s, %s, 1' % (sr(s0), sr(s_w)))
        A('s_lshl_b32 %s, %s, 7' % (sr(s0), sr(s0)))
        A('s_add_u32 %s, %s, %s' % (sr(s_it), sr(s_it), sr(s0)))
        A('s_mov_b32 %s, 4' % sr(s_k))
        wstamp(1)

    def attn_loop(fn, tag):
        Lb = A.uid(tag)
        A.label(Lb)
        fn(A, SRD_WS, s_it, (s0, s1, s2_, s3), v_lane, v_l16, 8, ld=' sc1', stf=' sc1')
        A('s_add_u32 %s, %s, 32' % (sr(s_it), sr(s_it)))
        A('s_sub_u32 %s, %s, 1' % (sr(s_k), sr(s_k)))
        A('s_cmp_lg_u32 %s, 0' % sr(s_k))
        A('s_waitcnt vmcnt(0)')
        A('s_cbranch_scc1 ' + Lb)

    A.label(L['aattn'])
    A('s_lshr_b32 %s, %s, 2' % (sr(s_mt), sr(s_job)))
    A('s_add_u32 %s, %s, %s' % (sr(s_mt), sr(s_mt), sr(s_p)))
    A('s_lshl_b32 %s, %s, 2' % (sr(s_ctr), sr(s_mt)))
    A('s_add_u32 %s, %s, %d' % (sr(s0), sr(s_ctr), DBG_QR))
    wait_ctr(s0, 4)
    A('s_lshl_b32 %s, %s, 3' % (sr(s1), sr(s_mt)))
    A('s_add_u32 %s, %s, 9' % (sr(s1), sr(s1)))
    wait_ctr(str(DBG_PROG), sr(s1))
    ctr(DBG_AA, s_mt, 1)
    attn_items()
    attn.attn_a_n(A, SRD_WS, s_it, (s0, s1, s2_, s3), v_lane, v_l16, 8, 4, ld=' sc1', stf=' sc1')
    A('s_branch ' + L_done)

    A.label(L['aattn1'])
    A('s_lshr_b32 %s, %s, 2' % (sr(s_mt), sr(s_p)))
    A('s_lshl_b32 %s, %s, 2' % (sr(s_ctr), sr(s_mt)))
    A('s_add_u32 %s, %s, %d' % (sr(s0), sr(s_ctr), DBG_QR))
    wait_ctr(s0, 4)
    A('s_lshl_b32 %s, %s, 1' % (sr(s_it), sr(s_p)))
    A('s_lshr_b32 %s, %s, 1' % (sr(s0), sr(s_job)))
    A('s_add_u32 %s, %s, %s' % (sr(s_it), sr(s_it), sr(s0)))
    A('s_add_u32 %s, %s, 2' % (sr(s_tbs), sr(s_it)))
    A('s_mov_b32 %s, %d' % (sr(s_base), DBG_PROG))
    A('s_cmp_gt_u32 %s, 60' % sr(s_it))
    A('s_cselect_b32 %s, 32, %s' % (sr(s_tbs), sr(s_tbs)))
    A('s_cselect_b32 %s, %d, %s' % (sr(s_base), DBG_FIN, sr(s_base)))
    A('s_add_u32 %s, %s, %d' % (sr(s0), sr(s_ctr), DBG_KV))
    wait_ctr(s0, 32)
    A('s_add_u32 %s, %s, %d' % (sr(s_ctr), sr(s_ctr), DBG_AA))
    A('s_and_b32 %s, %s, 7' % (sr(s0), sr(s_it)))
    A('s_lshl_b32 %s, %s, 2' % (sr(s0), sr(s0)))
    A('s_lshl_b32 %s, 1, %s' % (sr(s_inc), sr(s0)))
    A('s_lshl_b32 %s, %s, 5' % (sr(s_it), sr(s_it)))
    A('s_lshl_b32 %s, %s, 3' % (sr(s0), sr(s_q)))
    A('s_add_u32 %s, %s, %s' % (sr(s_it), sr(s_it), sr(s0)))
    A('s_and_b32 %s, %s, 1' % (sr(s0), sr(s_job)))
    A('s_lshl_b32 %s, %s, 2' % (sr(s0), sr(s0)))
    A('s_add_u32 %s, %s, %s' % (sr(s_it), sr(s_it), sr(s0)))
    A('s_add_u32 %s, %s, %s' % (sr(s_it), sr(s_it), sr(s_w)))
    A('s_mov_b32 %s, 0' % sr(s_cfg))

    def pw1():
        wait_ctr(s_base, sr(s_tbs), slp=4)
        wstamp(1)
    attn.attn_a(A, SRD_WS, s_it, (s0, s1, s2_, s3), v_lane, v_l16, 8, ld=' sc1', stf=' sc1', pre_wait=pw1)
    A('s_branch ' + L_done)

    A.label(L['aoute'])
    wait_ctr(str(DBG_WT), 32)
    A('s_lshr_b32 %s, %s, 3' % (sr(s_mt), sr(s_job)))
    A('s_add_u32 %s, %s, %s' % (sr(s_mt), sr(s_mt), sr(s_p)))
    A('s_lshl_b32 %s, %s, 3' % (sr(s_nt), sr(s_q)))
    A('s_and_b32 %s, %s, 7' % (sr(s0), sr(s_job)))
    A('s_add_u32 %s, %s, %s' % (sr(s_nt), sr(s_nt), sr(s0)))
    A('s_mov_b32 %s, 0' % sr(s_inc))
    A('s_mov_b32 %s, 0' % sr(s_cfg))

    def pw2():
        A('s_lshr_b32 %s, %s, 3' % (sr(s0), sr(s_mt)))
        A('s_lshl_b32 %s, %s, 2' % (sr(s0), sr(s0)))
        A('s_add_u32 %s, %s, %d' % (sr(s0), sr(s0), DBG_AA))
        A('s_and_b32 %s, %s, 7' % (sr(s1), sr(s_mt)))
        A('s_lshl_b32 %s, %s, 2' % (sr(s1), sr(s1)))
        wait_ctr(s0, 2, s1, bits=4, slp=4)
        wstamp(1)
    out_direct32(A, SRD_WS, SRD_O, s_w, s_mt, s_nt, (s_base, s_tbs, s0), v_lane, v_l16, 8, ' sc1', pw2)
    A('s_branch ' + L_done)

    A.label(L['aoutd'])
    wait_ctr(str(DBG_WT), 32)
    A('s_lshr_b32 %s, %s, 2' % (sr(s0), sr(s_p)))
    A('s_lshl_b32 %s, %s, 2' % (sr(s0), sr(s0)))
    A('s_add_u32 %s, %s, %d' % (sr(s0), sr(s0), DBG_AA))
    A('s_and_b32 %s, %s, 3' % (sr(s1), sr(s_p)))
    A('s_lshl_b32 %s, %s, 3' % (sr(s1), sr(s1)))
    wait_ctr(s0, '0x22', s1)
    A('s_lshl_b32 %s, %s, 1' % (sr(s_mt), sr(s_p)))
    A('s_lshl_b32 %s, %s, 3' % (sr(s_nt), sr(s_q)))
    A('s_add_u32 %s, %s, %s' % (sr(s_nt), sr(s_nt), sr(s_job)))
    A('s_mov_b32 %s, 0' % sr(s_inc))
    A('s_mov_b32 %s, 0' % sr(s_cfg))
    wstamp(1)
    out_direct(A, SRD_WS, SRD_O, s_w, s_mt, s_nt, (s_base, s_tbs, s_it, s0, s1), v_lane, v_l16, v_off, 8, ld=' sc1')
    A('s_branch ' + L_done)

    A.label(L['battn'])
    A('s_lshr_b32 %s, %s, 2' % (sr(s_mt), sr(s_job)))
    A('s_lshl_b32 %s, %s, 2' % (sr(s_ctr), sr(s_mt)))
    A('s_add_u32 %s, %s, %d' % (sr(s0), sr(s_ctr), DBG_BQ))
    wait_ctr(s0, 3)
    A('s_add_u32 %s, %s, %d' % (sr(s0), sr(s_ctr), DBG_BQ - 4))
    A('s_max_u32 %s, %s, %d' % (sr(s0), sr(s0), DBG_BQ))
    wait_ctr(s0, 3)
    ctr(DBG_BA, s_mt, 1)
    attn_items()
    attn.attn_b4(A, SRD_WS, s_it, (s0, s1, s2_, s3), v_lane, v_l16, 8, ld=' sc1', stf=' sc1')

    A.label(L_done)
    wstamp(4)
    A('s_waitcnt vmcnt(0)')
    wstamp(5)
    A('s_barrier')
    A('s_cmp_lg_u32 %s, 0' % sr(s_w))
    A('s_cbranch_scc1 ' + L_next)
    A('s_cmp_eq_u32 %s, 0' % sr(s_inc))
    A('s_cbranch_scc1 ' + L_next)
    wait_init()
    A('s_add_u32 %s, %s, %s' % (sr(s0), sr(s_ctr), sr(s_q)))
    A('s_lshl_b32 %s, %s, 7' % (sr(s0), sr(s0)))
    A('s_add_u32 %s, %s, 0x%x' % (sr(s0), sr(s0), CTR))
    A('v_mov_b32 %s, %s' % (vr(v_a), sr(s0)))
    A('v_mov_b32 %s, %s' % (vr(v_b), sr(s_inc)))
    A('s_mov_b64 exec, 1')
    A('buffer_atomic_add %s, %s, %s, 0 offen sc1' % (vr(v_b), vr(v_a), sr(SRD_WS, 4)))
    A('s_mov_b64 exec, -1')
    A('s_branch ' + L_next)
    return hi
```

```python
import sys
from asmlib import *
from layout import *
import chain
import kernels
import worker

HEADER = open('concat_heads__memory_aug_recurrent_mem_tr__sliding_block__prompt.s.ref').read().split('; Override launch')[0]


def build(kernels, launches):
    A = Asm()
    infos = {}
    for name, fn in kernels:
        A.raw('.globl %s' % name)
        A.raw('.type %s,@function' % name)
        infos[name] = fn(A, name)
    out = HEADER
    for name, grid, block, lds in launches:
        out += '; @launch kernel=%s grid=(%d,1,1) block=(%d,1,1) lds=%d\n' % (name, grid, block, lds)
    out += '.amdgcn_target "amdgcn-amd-amdhsa--gfx950"\n.text\n'
    out += A.text()
    out += '.section .rodata,"a"\n'
    for name, _ in kernels:
        i = infos[name]
        out += '.p2align 6\n.amdhsa_kernel %s\n' % name
        out += '  .amdhsa_next_free_vgpr %d\n  .amdhsa_next_free_sgpr %d\n  .amdhsa_accum_offset %d\n' % (i['vgpr'], max(i['sgpr'], 16), i['accum'])
        out += '  .amdhsa_group_segment_fixed_size 0\n  .amdhsa_kernarg_size 104\n  .amdhsa_user_sgpr_count 2\n'
        out += '  .amdhsa_user_sgpr_kernarg_segment_ptr 1\n  .amdhsa_system_sgpr_workgroup_id_x 1\n'
        out += '  .amdhsa_float_denorm_mode_32 3\n'
        out += '.end_amdhsa_kernel\n'
    return out


if __name__ == '__main__':
    mode = sys.argv[1]
    outp = sys.argv[2]
    if mode.startswith('chain'):
        st = 'rt' if 'stamprt' in mode else ('stamp' in mode)
        fl = 'flat' in mode
        txt = build([('chain_kernel', lambda A, n: chain.gen_chain(A, n, stamps=st, flat=fl))],
                    [('chain_kernel', 256, 256, 163840)])
    if mode == 'qkv':
        txt = build([('qkv_kernel', kernels.gen_qkv)], [('qkv_kernel', 480, 256, 131072)])
    if mode == 'full1':
        txt = build([('qkv_kernel', kernels.gen_qkv), ('chain_kernel', lambda A, n: chain.gen_chain(A, n)),
                     ('attn_kernel', kernels.gen_attn), ('out_kernel', lambda A, n: kernels.gen_out(A, n, 2, 2))],
                    [('qkv_kernel', 480, 256, 131072), ('chain_kernel', 256, 256, 163840), ('attn_kernel', 1024, 256, 0),
                     ('out_kernel', 256, 256, 65536)])
    if mode.startswith('m1'):
        st = 'rt' if 'stamprt' in mode else False
        txt = build([('mega_kernel', lambda A, n: chain.gen_chain(A, n, stamps=st, worker=worker.gen_worker)),
                     ('attn_kernel', lambda A, n: kernels.gen_attn(A, n, True)), ('out_kernel', lambda A, n: kernels.gen_out(A, n, 1, 2, True, 4))],
                    [('mega_kernel', 256, 256, 163840), ('attn_kernel', 512, 256, 0),
                     ('out_kernel', 256, 256, 98304)])
    if mode.startswith('m2'):
        st = 'rt' if 'stamprt' in mode else ('stamp' in mode)
        txt = build([('mega_kernel', lambda A, n: chain.gen_chain(A, n, stamps=st, worker=worker.gen_worker))],
                    [('mega_kernel', 256, 256, 163840)])
    open(outp, 'w').write(txt)
    print('wrote', outp, len(txt), 'bytes')
```

```python
from asmlib import *
from layout import *
import struct, os


def f32bits(x):
    return struct.unpack('<I', struct.pack('<f', x))[0]


LDS_MEM = 131072
LDS_O = LDS_MEM + 16384
LDS_ROLE = LDS_O + 8192
NSTEP = int(os.environ.get('NSTEP', '64'))
POLL_LIMIT = 400000
DIAG = int(os.environ.get('DIAG', '0'))
PF = [int(x) for x in os.environ.get('PF', '4,4,1,3,0,0,4,0').split(',')]
PFN = [int(x) for x in os.environ.get('PFN', '2,2,1,1,10,0,0,0').split(',')]
OOO = int(os.environ.get('OOO', '0'))
C2 = int(os.environ.get('C2', '0'))
C2B = int(os.environ.get('C2B', '1'))
HK_D = os.environ.get('HK_D', '')
HK_P = os.environ.get('HK_P', 'crw')
HK_L = os.environ.get('HK_L', '')
A_BACK = int(os.environ.get('A_BACK', '0'))
RED_SLEEP = int(os.environ.get('RED_SLEEP', '3'))
PIPE = int(os.environ.get('PIPE', '1'))
E_DEPTH = int(os.environ.get('E_DEPTH', '0'))
E_INT = int(os.environ.get('E_INT', '3'))
E_INT2 = int(os.environ.get('E_INT2', '0'))
EARLY_SIDE = int(os.environ.get('EARLY_SIDE', '0'))
NEARX = int(os.environ.get('NEARX', '1'))
PFB_SPAN = int(os.environ.get('PFB_SPAN', '9'))
NOE_SLEEP = int(os.environ.get('NOE_SLEEP', '0'))
FINE = os.environ.get('FINE', '')
DELAY_C = int(os.environ.get('DELAY_C', '0'))
TOUCH = int(os.environ.get('TOUCH', '0'))
PRET = int(os.environ.get('PRET', '0'))
LITE = [int(x) for x in os.environ.get('LITE', '').split(',') if x]
DELAY_E = int(os.environ.get('DELAY_E', '5'))
NOCOPY = int(os.environ.get('NOCOPY', '0'))
NOPF = int(os.environ.get('NOPF', '0'))
WARM = int(os.environ.get('WARM', '1'))


def gen_chain(A, name, stamps=False, nsteps=NSTEP, flat=False, four=True, worker=None):
    ISC = ' sc1' if flat else ''
    S = Regs('s', 16, 100)
    V = Regs('v', 1, 256)
    SRD_WS = 8
    SRD_T = 12
    s_ptr = S.alloc(16, 4)
    s_w = S.alloc()
    s_x = S.alloc()
    s_j = S.alloc()
    s_t0 = S.alloc()
    s_t1 = S.alloc()
    s_t2 = S.alloc()
    s_t3 = S.alloc()
    s_step = S.alloc()
    s_slot = S.alloc()
    s_slot1 = S.alloc()
    s_slot2 = S.alloc()
    s_kx = S.alloc()
    s_kx2 = S.alloc()
    s_out = S.alloc()
    s_outp = S.alloc()
    s_slotp = S.alloc()
    s_fffe = S.alloc()
    s_c = S.alloc()
    s_lim = S.alloc()
    s_cnt = S.alloc()
    s_pend = S.alloc()
    s_exlo = S.alloc(2, 2)
    s_hf = S.alloc(2, 2)
    s_tm = S.alloc(2, 2)
    s_kvm = S.alloc(2, 2)
    s_bad = S.alloc(8, 2) if OOO else None
    s_stamp = S.alloc()
    s_vxl = S.alloc()
    s_kvo = S.alloc()
    s_red = S.alloc()
    s_obm = S.alloc()
    s_stl = S.alloc()
    s_ps = S.alloc()
    s_ps2 = S.alloc()
    v_lane = V.alloc()
    v_nu = V.alloc()
    v_g = V.alloc()
    v_t = [V.alloc() for _ in range(8)]
    va_memr = V.alloc()
    va_mems = V.alloc()
    va_memz = V.alloc()
    va_rw = V.alloc()
    va_rr = V.alloc()
    va_rrv = V.alloc()
    va_qks = V.alloc()
    va_rb = V.alloc()
    va_vs = V.alloc()
    va_cp = V.alloc()
    va_prog = V.alloc()
    va_qkr = V.alloc()
    va_vmr = V.alloc()
    va_kx = V.alloc()
    va_vx = V.alloc()
    va_ow = V.alloc()
    va_or = V.alloc()
    va_pw = V.alloc()
    va_pr = V.alloc()
    va_pw2 = V.alloc()
    va_pd = V.alloc()
    va_warm = V.alloc()
    v_idx = V.alloc()
    va_vxr = V.alloc()
    v_m1 = V.alloc(4, 4)
    v_mask = V.alloc(4, 4)
    v_sel = V.alloc(4, 4)
    v_maskx = V.alloc(4, 4)
    v_ones = V.alloc(4, 4)
    v_bias = V.alloc()
    v_junk = V.alloc()
    v_kvf = V.alloc()
    v_junk2 = V.alloc()
    v_zero = V.alloc()
    acc1 = V.alloc(4, 4)
    acc2 = V.alloc(4, 4)
    KXA = V.alloc(16, 4)
    KXB = V.alloc(16, 4)
    VXR = V.alloc(32, 4)
    VMR = V.alloc(8, 4)
    QK = V.alloc(16, 4)
    F = V.alloc(64, 4)
    M = V.alloc(16, 4)
    PR = F + 52
    RB = F + 60
    SA, SB, SM = F, F + 4, F + 8
    PX, PXH = F + 12, F + 16
    PM, PMH = F + 20, F + 22
    AC = F
    HA = F + 24
    RD = F + 36
    O = F + 28
    LS = F + 44
    v_mx, v_mx2, v_l = F + 48, F + 49, F + 50
    XY = QK
    G = F
    W1, W2, W3 = 0, 128, 192

    L_exit = name + '_exit'
    nvm = [0]

    def stamp(k):
        if not stamps or (LITE and k not in LITE):
            return
        A('%s %s' % ('s_memrealtime' if stamps == 'rt' else 's_memtime', sr(s_tm, 2)))
        A('s_waitcnt lgkmcnt(0)')
        A('v_mov_b32 %s, %s' % (vr(v_t[7]), sr(s_tm)))
        A('v_mov_b32 %s, %s' % (vr(v_t[6]), sr(s_stl)))
        A('ds_write_b32 %s, %s offset:%d' % (vr(v_t[6]), vr(v_t[7]), 4 * k))
        if k in (0, 2, 6):
            A('v_mov_b32 %s, %s' % (vr(v_t[5]), sr(s_cnt)))
            A('ds_write_b32 %s, %s offset:%d' % (vr(v_t[6]), vr(v_t[5]), 4 * (8 + k)))

    def srd(dst, ptr, nbytes):
        A('s_mov_b32 %s, %s' % (sr(dst), sr(ptr)))
        A('s_and_b32 %s, %s, 0xffff' % (sr(dst + 1), sr(ptr + 1)))
        A('s_mov_b32 %s, 0x%x' % (sr(dst + 2), nbytes))
        A('s_mov_b32 %s, 0x00020000' % sr(dst + 3))

    A.raw('.p2align 8')
    A.label(name)
    A('s_cmp_ge_u32 s2, 256')
    A('s_cbranch_scc1 ' + L_exit)
    A('s_load_dwordx2 %s, s[0:1], 8' % sr(s_ptr, 2))
    A('s_load_dwordx4 %s, s[0:1], 16' % sr(s_ptr + 4, 4))
    A('s_load_dwordx4 %s, s[0:1], 32' % sr(s_ptr + 8, 4))
    A('s_load_dwordx4 %s, s[0:1], 88' % sr(s_ptr + 12, 4))
    P_MEM0, P_WQ, P_WK, P_WV, P_WO, P_DBG, P_WS = s_ptr, s_ptr + 4, s_ptr + 6, s_ptr + 8, s_ptr + 10, s_ptr + 12, s_ptr + 14
    A('v_and_b32 %s, 63, v0' % vr(v_lane))
    A('v_lshrrev_b32 %s, 6, v0' % vr(v_t[0]))
    A('v_readfirstlane_b32 %s, %s' % (sr(s_w), vr(v_t[0])))
    A('v_and_b32 %s, 15, %s' % (vr(v_nu), vr(v_lane)))
    A('v_lshrrev_b32 %s, 4, %s' % (vr(v_g), vr(v_lane)))
    A('s_waitcnt lgkmcnt(0)')
    srd(SRD_WS, P_WS, WS_BYTES)
    srd(SRD_T, P_DBG, 256)
    if flat:
        A('s_and_b32 %s, s2, 7' % sr(s_x))
        A('s_lshr_b32 %s, s2, 3' % sr(s_j))
    else:
        A('s_getreg_b32 %s, hwreg(HW_REG_XCC_ID)' % sr(s_x))
        A('s_and_b32 %s, %s, 7' % (sr(s_x), sr(s_x)))
        L_norole = A.uid('norole')
        A('s_cmp_lg_u32 %s, 0' % sr(s_w))
        A('s_cbranch_scc1 ' + L_norole)
        A('s_lshl_b32 %s, %s, 2' % (sr(s_t0), sr(s_x)))
        A('v_mov_b32 %s, %s' % (vr(v_t[0]), sr(s_t0)))
        A('v_mov_b32 %s, 1' % vr(v_t[1]))
        A('s_mov_b64 exec, 1')
        A('buffer_atomic_add %s, %s, %s, 0 offen sc0 sc1' % (vr(v_t[1]), vr(v_t[0]), sr(SRD_T, 4)))
        A('s_waitcnt vmcnt(0)')
        A('v_mov_b32 %s, %d' % (vr(v_t[0]), LDS_ROLE))
        A('ds_write_b32 %s, %s' % (vr(v_t[0]), vr(v_t[1])))
        A('s_waitcnt lgkmcnt(0)')
        A('s_mov_b64 exec, -1')
        A.label(L_norole)
        A('s_barrier')
        A('v_mov_b32 %s, %d' % (vr(v_t[0]), LDS_ROLE))
        A('ds_read_b32 %s, %s' % (vr(v_t[1]), vr(v_t[0])))
        A('s_waitcnt lgkmcnt(0)')
        A('v_readfirstlane_b32 %s, %s' % (sr(s_j), vr(v_t[1])))
    L_work = name + '_worker' if worker else L_exit
    TESTW = int(os.environ.get('TESTW', '0'))
    if TESTW:
        A('s_cmp_ge_u32 %s, %d' % (sr(s_j), 32 - TESTW))
        A('s_cbranch_scc1 ' + L_work)
        A('s_branch ' + L_exit)
    if four and not flat:
        A('s_mov_b32 s3, %s' % sr(s_j))
        A('s_cmp_ge_u32 %s, 4' % sr(s_x))
        A('s_cbranch_scc1 ' + L_work)
        A('s_mov_b32 s3, -1')
        A('s_cmp_ge_u32 %s, 32' % sr(s_j))
        A('s_cbranch_scc1 ' + L_work)
        A('s_lshl_b32 %s, %s, 1' % (sr(s_x), sr(s_x)))
        A('s_lshr_b32 %s, %s, 4' % (sr(s_t0), sr(s_j)))
        A('s_add_u32 %s, %s, %s' % (sr(s_x), sr(s_x), sr(s_t0)))
        A('s_and_b32 %s, %s, 15' % (sr(s_j), sr(s_j)))
    else:
        A('s_cmp_ge_u32 %s, 16' % sr(s_j))
        A('s_cbranch_scc1 ' + L_work)
    A('s_xor_b32 %s, %s, %s' % (sr(s_red), sr(s_x), sr(s_j)))
    A('s_and_b32 %s, %s, 1' % (sr(s_red), sr(s_red)))
    A('s_lshr_b32 %s, %s, 1' % (sr(s_obm), sr(s_x)))
    A('s_lshl_b32 %s, %s, 4' % (sr(s_obm), sr(s_obm)))
    A('s_add_u32 %s, %s, %s' % (sr(s_obm), sr(s_obm), sr(s_j)))
    A('s_lshl_b32 %s, %s, 10' % (sr(s_obm), sr(s_obm)))

    if stamps:
        s_e = S.alloc(6, 2)
        A('s_memrealtime %s' % sr(s_e, 2))
    if worker:
        L_noz = A.uid('noz')
        A('s_or_b32 %s, %s, %s' % (sr(s_t0), sr(s_x), sr(s_j)))
        A('s_xor_b32 %s, %s, 1' % (sr(s_t1), sr(s_w)))
        A('s_or_b32 %s, %s, %s' % (sr(s_t0), sr(s_t0), sr(s_t1)))
        A('s_cmp_lg_u32 %s, 0' % sr(s_t0))
        A('s_cbranch_scc1 ' + L_noz)
        A('v_lshlrev_b32 %s, 7, %s' % (vr(v_t[0]), vr(v_lane)))
        A('v_mov_b32 %s, 0' % vr(v_t[1]))
        for i in range(4):
            A('s_mov_b32 %s, 0x%x' % (sr(s_t0), CTR + i * 8192))
            A('buffer_store_dword %s, %s, %s, %s offen sc1' % (vr(v_t[1]), vr(v_t[0]), sr(SRD_WS, 4), sr(s_t0)))
        A('s_waitcnt vmcnt(0)')
        A('v_mov_b32 %s, %d' % (vr(v_t[0]), DBG_INIT))
        A('v_mov_b32 %s, 1' % vr(v_t[1]))
        A('s_mov_b64 exec, 1')
        A('buffer_store_dword %s, %s, %s, 0 offen sc1' % (vr(v_t[1]), vr(v_t[0]), sr(SRD_T, 4)))
        A('s_mov_b64 exec, -1')
        A.label(L_noz)
    A('s_mov_b32 %s, 0xfffefffe' % sr(s_fffe))
    A('s_mov_b32 %s, 0x%x' % (sr(s_c), f32bits(128 ** -0.5 * 1.4426950408889634)))
    A('s_mov_b32 %s, %d' % (sr(s_lim), POLL_LIMIT))
    A('s_mov_b32 %s, 0x00ff00ff' % sr(s_exlo))
    A('s_mov_b32 %s, 0x00ff00ff' % sr(s_exlo + 1))
    A('s_mov_b32 %s, 0xff00ff00' % sr(s_hf))
    A('s_mov_b32 %s, 0xff00ff00' % sr(s_hf + 1))
    for i in range(4):
        A('v_mov_b32 %s, -1' % vr(v_m1 + i))
    A('v_mov_b32 %s, 0x%x' % (vr(v_t[0]), f32bits(-1e30)))
    for i in range(4):
        A('v_cndmask_b32 %s, 0, %s, %s' % (vr(v_maskx + i), vr(v_t[0]), sr(s_hf, 2)))
    A('v_cmp_gt_u32 vcc, 32, %s' % vr(v_lane))
    for i in range(4):
        A('v_cndmask_b32 %s, %s, %s, vcc' % (vr(v_mask + i), vr(v_maskx), vr(v_t[0])))
    A('v_mov_b32 %s, 0x%x' % (vr(v_t[0]), f32bits(-3e38)))
    A('v_cndmask_b32 %s, %s, 0, %s' % (vr(v_bias), vr(v_t[0]), sr(s_hf, 2)))
    for i in range(4):
        A('v_mov_b32 %s, 0x3f803f80' % vr(v_ones + i))
    A('v_mov_b32 %s, 0x4444' % vr(v_t[0]))
    A('v_mov_b32 %s, 0xeeee' % vr(v_t[1]))
    A('v_cmp_gt_u32 vcc, 8, %s' % vr(v_nu))
    A('v_cndmask_b32 %s, %s, %s, vcc' % (vr(v_idx), vr(v_t[1]), vr(v_t[0])))
    A('v_bfe_u32 %s, %s, 2, 1' % (vr(v_t[0]), vr(v_nu)))
    A('v_bfe_u32 %s, %s, 1, 1' % (vr(v_t[1]), vr(v_nu)))
    A('v_lshl_add_u32 %s, %s, 1, %s' % (vr(v_t[0]), vr(v_t[1]), vr(v_t[0])))
    A('v_and_b32 %s, 1, %s' % (vr(v_t[1]), vr(v_nu)))
    A('v_lshlrev_b32 %s, 4, %s' % (vr(v_t[1]), vr(v_t[1])))
    A('v_mov_b32 %s, 0x3f80' % vr(v_t[2]))
    A('v_lshlrev_b32 %s, %s, %s' % (vr(v_t[1]), vr(v_t[1]), vr(v_t[2])))
    for d in range(4):
        A('v_cmp_eq_u32 vcc, %d, %s' % (d, vr(v_t[0])))
        A('v_cndmask_b32 %s, 0, %s, vcc' % (vr(v_sel + d), vr(v_t[1])))

    l16 = v_t[2]
    A('v_lshlrev_b32 %s, 4, %s' % (vr(l16), vr(v_lane)))

    s_ob = s_t3
    A('s_lshl_b32 %s, %s, 4' % (sr(s_ob), sr(s_x)))
    A('s_add_u32 %s, %s, %s' % (sr(s_ob), sr(s_ob), sr(s_j)))
    A('s_lshl_b32 %s, %s, 10' % (sr(s_ob), sr(s_ob)))

    SRD_A = S.alloc(4, 4)
    if PRET:
        A('s_lshr_b32 %s, %s, 4' % (sr(s_t2), sr(s_ob)))
        A('s_lshl_b32 %s, %s, 21' % (sr(s_t0), sr(s_w)))
        A('s_add_u32 %s, %s, %s' % (sr(s_t2), sr(s_t2), sr(s_t0)))
        A('v_lshlrev_b32 %s, 13, %s' % (vr(v_t[4]), vr(v_lane)))
        for P in (P_WQ, P_WK, P_WV):
            srd(SRD_A, P, 1024 * 4096 * 2)
            for i in range(4):
                A('s_add_u32 %s, %s, %d' % (sr(s_t1), sr(s_t2), i * 64 * 8192))
                A('buffer_load_dword %s, %s, %s, %s offen' % (vr(v_junk), vr(v_t[4]), sr(SRD_A, 4), sr(s_t1)))
            A('s_nop 4')
        srd(SRD_A, P_WO, 4096 * 1024 * 2)
        A('v_lshlrev_b32 %s, 11, %s' % (vr(v_t[4]), vr(v_lane)))
        A('s_lshl_b32 %s, %s, 20' % (sr(s_t1), sr(s_x)))
        A('s_lshl_b32 %s, %s, 18' % (sr(s_t2), sr(s_w)))
        A('s_add_u32 %s, %s, %s' % (sr(s_t1), sr(s_t1), sr(s_t2)))
        A('s_lshl_b32 %s, %s, 7' % (sr(s_t2), sr(s_j)))
        A('s_add_u32 %s, %s, %s' % (sr(s_t2), sr(s_t1), sr(s_t2)))
        for i in range(2):
            A('s_add_u32 %s, %s, %d' % (sr(s_t1), sr(s_t2), i * 64 * 2048))
            A('buffer_load_dword %s, %s, %s, %s offen' % (vr(v_junk), vr(v_t[4]), sr(SRD_A, 4), sr(s_t1)))
        A('s_nop 4')

    A('s_lshl_b32 %s, %s, 17' % (sr(s_t0), sr(s_w)))
    A('s_add_u32 %s, %s, %s' % (sr(s_t0), sr(s_t0), sr(s_ob)))
    for base in (QKI, VMI):
        A('s_add_u32 %s, %s, 0x%x' % (sr(s_t1), sr(s_t0), base))
        A('buffer_store_dwordx4 %s, %s, %s, %s offen%s' % (vr(v_m1, 4), vr(l16), sr(SRD_WS, 4), sr(s_t1), ISC))
    A('s_lshl_b32 %s, %s, 17' % (sr(s_t0), sr(s_w)))
    A('s_add_u32 %s, %s, %s' % (sr(s_t0), sr(s_t0), sr(s_obm)))
    A('s_add_u32 %s, %s, 0x%x' % (sr(s_t1), sr(s_t0), MEMI))
    A('buffer_store_dwordx4 %s, %s, %s, %s offen%s' % (vr(v_m1, 4), vr(l16), sr(SRD_WS, 4), sr(s_t1), ISC))
    A('s_lshl_b32 %s, %s, 14' % (sr(s_t0), sr(s_j)))
    A('s_lshl_b32 %s, %s, 11' % (sr(s_t1), sr(s_w)))
    A('s_add_u32 %s, %s, %s' % (sr(s_t0), sr(s_t0), sr(s_t1)))
    A('s_add_u32 %s, %s, 0x%x' % (sr(s_t0), sr(s_t0), PART))
    A('v_add_u32 %s, %s, %s' % (vr(va_pr), sr(s_t0), vr(l16)))
    A('s_lshl_b32 %s, %s, 8' % (sr(s_t1), sr(s_x)))
    A('v_add_u32 %s, %s, %s' % (vr(va_pw), sr(s_t1), vr(va_pr)))
    A('v_add_u32 %s, 8192, %s' % (vr(va_pw2), vr(va_pw)))
    A('s_mov_b64 exec, 0xffff')
    for sl in range(4):
        A('s_mov_b32 %s, 0x%x' % (sr(s_t1), sl * 0x40000))
        A('buffer_store_dwordx4 %s, %s, %s, %s offen sc1' % (vr(v_m1, 4), vr(va_pw), sr(SRD_WS, 4), sr(s_t1)))
        A('buffer_store_dwordx4 %s, %s, %s, %s offen sc1' % (vr(v_m1, 4), vr(va_pw2), sr(SRD_WS, 4), sr(s_t1)))
    A('s_mov_b64 exec, -1')
    s_ta = S.alloc(2, 2)
    s_m0 = S.alloc()
    s_m1 = S.alloc()
    L_nocal = A.uid('nocal')
    L_nocal2 = A.uid('nocal2')
    A('s_mov_b32 %s, 1' % sr(s_pend))
    A('s_cmp_ge_u32 %s, 4' % sr(s_j))
    A('s_cbranch_scc1 ' + L_nocal2)
    A('s_waitcnt vmcnt(0)')
    A('s_barrier')
    A('s_cmp_lg_u32 %s, 0' % sr(s_w))
    A('s_cbranch_scc1 ' + L_nocal)
    A('s_waitcnt vmcnt(0)')
    A('s_mov_b32 %s, -1' % sr(s_m0))
    A('s_mov_b32 %s, -1' % sr(s_m1))
    A('s_mov_b64 exec, 0xffff')
    for rep in range(2):
        for c in range(2):
            A('s_mov_b32 %s, %d' % (sr(s_t1), 0x80000 + rep * 0x40000))
            A('s_memtime %s' % sr(s_ta, 2))
            A('s_waitcnt lgkmcnt(0)')
            A('buffer_store_dwordx4 %s, %s, %s, %s offen sc1' % (vr(v_m1, 4), vr(va_pw2 if c else va_pw), sr(SRD_WS, 4), sr(s_t1)))
            A('s_waitcnt vmcnt(0)')
            A('s_memtime %s' % sr(s_tm, 2))
            A('s_waitcnt lgkmcnt(0)')
            A('s_sub_u32 %s, %s, %s' % (sr(s_t2), sr(s_tm), sr(s_ta)))
            A('s_min_u32 %s, %s, %s' % (sr(s_m1 if c else s_m0), sr(s_m1 if c else s_m0), sr(s_t2)))
    A('s_cmp_lt_u32 %s, %s' % (sr(s_m1), sr(s_m0)))
    A('s_cselect_b32 %s, 0x10001, 1' % sr(s_pend))
    A('s_mov_b64 exec, -1')
    A.label(L_nocal)
    A('s_barrier')
    A.label(L_nocal2)

    s_col = s_t2
    A('s_lshr_b32 %s, %s, 4' % (sr(s_col), sr(s_ob)))
    vw = v_t[4]
    A('v_lshrrev_b32 %s, 2, %s' % (vr(vw), vr(v_lane)))
    A('v_lshlrev_b32 %s, 13, %s' % (vr(vw), vr(vw)))
    A('v_and_b32 %s, 3, %s' % (vr(v_t[5]), vr(v_lane)))
    A('v_lshl_add_u32 %s, %s, 4, %s' % (vr(vw), vr(v_t[5]), vr(vw)))
    SRD_B = S.alloc(4, 4)
    A('s_lshl_b32 %s, %s, 21' % (sr(s_t0), sr(s_w)))
    A('s_add_u32 %s, %s, %s' % (sr(s_col), sr(s_col), sr(s_t0)))
    A('s_lshl_b32 %s, %s, 14' % (sr(s_t0), sr(s_w)))
    for mi, P in enumerate((P_WQ, P_WK)):
        srd(SRD_A, P, 1024 * 4096 * 2)
        for i in range(16):
            A('s_add_u32 m0, %s, %d' % (sr(s_t0), mi * 65536 + i * 1024))
            A('s_add_u32 %s, %s, %d' % (sr(s_t1), sr(s_col), i * 131072))
            A('buffer_load_dwordx4 %s, %s, %s offen lds' % (vr(vw), sr(SRD_A, 4), sr(s_t1)))
        if mi == 0:
            A('s_waitcnt vmcnt(16)')
            A('s_barrier')
            L_nord = A.uid('nord')
            A('s_cmp_lg_u32 %s, 0' % sr(s_w))
            A('s_cbranch_scc1 ' + L_nord)
            A('v_mov_b32 %s, 32' % vr(acc2))
            A('v_mov_b32 %s, %s' % (vr(acc2 + 1), sr(s_pend)))
            A('s_mov_b64 exec, 1')
            A('buffer_atomic_add %s, %s, %s, 0 offen sc1' % (vr(acc2 + 1), vr(acc2), sr(SRD_T, 4)))
            A('s_mov_b64 exec, -1')
            A.label(L_nord)
            A('s_nop 4')
    LV = KXA
    assert KXB == KXA + 16 and VXR == KXA + 32
    srd(SRD_B, P_WV, 1024 * 4096 * 2)
    for i in range(16):
        A('s_add_u32 %s, %s, %d' % (sr(s_t1), sr(s_col), i * 131072))
        A('buffer_load_dwordx4 %s, %s, %s, %s offen' % (vr(LV + 4 * i, 4), vr(vw), sr(SRD_B, 4), sr(s_t1)))
    LO = F
    SRD_C = S.alloc(4, 4)
    srd(SRD_C, P_WO, 4096 * 1024 * 2)
    vo = v_t[5]
    A('v_lshrrev_b32 %s, 3, %s' % (vr(vo), vr(v_lane)))
    A('v_lshlrev_b32 %s, 11, %s' % (vr(vo), vr(vo)))
    A('v_and_b32 %s, 7, %s' % (vr(v_t[6]), vr(v_lane)))
    A('v_lshl_add_u32 %s, %s, 4, %s' % (vr(vo), vr(v_t[6]), vr(vo)))
    A('s_lshl_b32 %s, %s, 20' % (sr(s_t1), sr(s_x)))
    A('s_lshl_b32 %s, %s, 18' % (sr(s_t2), sr(s_w)))
    A('s_add_u32 %s, %s, %s' % (sr(s_t1), sr(s_t1), sr(s_t2)))
    A('s_lshl_b32 %s, %s, 7' % (sr(s_t2), sr(s_j)))
    A('s_add_u32 %s, %s, %s' % (sr(s_t2), sr(s_t1), sr(s_t2)))
    for i in range(16):
        A('s_add_u32 %s, %s, %d' % (sr(s_t1), sr(s_t2), i * 16384))
        A('buffer_load_dwordx4 %s, %s, %s, %s offen' % (vr(LO + 4 * i, 4), vr(vo), sr(SRD_C, 4), sr(s_t1)))
    SRD_D = S.alloc(4, 4)
    srd(SRD_D, P_MEM0, 8 * 1024 * 2)
    vm0 = v_t[6]
    A('v_and_b32 %s, 7, %s' % (vr(vm0), vr(v_nu)))
    A('v_lshlrev_b32 %s, 11, %s' % (vr(vm0), vr(vm0)))
    A('v_lshl_add_u32 %s, %s, 5, %s' % (vr(vm0), vr(v_g), vr(vm0)))
    A('v_lshrrev_b32 %s, 3, %s' % (vr(v_t[7]), vr(v_nu)))
    A('v_lshl_add_u32 %s, %s, 2, %s' % (vr(vm0), vr(v_t[7]), vr(vm0)))
    A('s_lshl_b32 %s, %s, 9' % (sr(s_t1), sr(s_w)))
    for k in range(4):
        for a in range(4):
            A('buffer_load_dword %s, %s, %s, %s offen offset:%d' % (vr(M + 4 * k + a), vr(vm0), sr(SRD_D, 4), sr(s_t1), k * 128 + a * 8))

    s_p = s_t0
    s_wh = s_t1
    A('s_and_b32 %s, %s, 1' % (sr(s_p), sr(s_w)))
    A('s_lshr_b32 %s, %s, 1' % (sr(s_wh), sr(s_w)))
    ta, tb, tc = v_t[0], v_t[1], v_t[7]
    A('s_lshl_b32 %s, %s, 12' % (sr(s_t2), sr(s_w)))
    A('v_add_u32 %s, %s, %s' % (vr(ta), sr(s_t2), vr(l16)))
    A('s_lshr_b32 %s, %s, 1' % (sr(s_t2), sr(s_x)))
    A('s_lshl_b32 %s, %s, 14' % (sr(s_t2), sr(s_t2)))
    A('s_add_u32 %s, %s, 0x%x' % (sr(s_t2), sr(s_t2), MEMI))
    A('v_add_u32 %s, %s, %s' % (vr(va_memr), sr(s_t2), vr(ta)))
    A('s_lshl_b32 %s, %s, 14' % (sr(s_t2), sr(s_x)))
    A('s_add_u32 %s, %s, 0x%x' % (sr(s_t2), sr(s_t2), QKI))
    A('v_add_u32 %s, %s, %s' % (vr(va_qkr), sr(s_t2), vr(ta)))
    A('s_lshl_b32 %s, %s, 12' % (sr(s_cnt), sr(s_w)))
    A('s_add_u32 %s, %s, %s' % (sr(s_t2), sr(s_t2), sr(s_cnt)))
    A('s_add_u32 %s, %s, 0x%x' % (sr(s_t2), sr(s_t2), VMI - QKI))
    A('v_and_b32 %s, 31, %s' % (vr(va_vmr), vr(v_lane)))
    A('v_lshlrev_b32 %s, 4, %s' % (vr(va_vmr), vr(va_vmr)))
    A('v_lshrrev_b32 %s, 5, %s' % (vr(ta), vr(v_lane)))
    A('v_xor_b32 %s, 1, %s' % (vr(ta), vr(ta)))
    A('v_lshl_add_u32 %s, %s, 11, %s' % (vr(va_vmr), vr(ta), vr(va_vmr)))
    A('v_add_u32 %s, %s, %s' % (vr(va_vmr), sr(s_t2), vr(va_vmr)))
    A('s_mul_i32 %s, %s, 3072' % (sr(s_t2), sr(s_w)))
    A('s_add_u32 %s, %s, %d' % (sr(s_t2), sr(s_t2), LDS_MEM))
    A('v_lshl_add_u32 %s, %s, 3, %s' % (vr(va_rw), vr(v_lane), sr(s_t2)))
    A('v_lshrrev_b32 %s, 5, %s' % (vr(ta), vr(v_lane)))
    A('v_mul_u32_u24 %s, 6144, %s' % (vr(ta), vr(ta)))
    A('v_and_b32 %s, 31, %s' % (vr(tb), vr(v_lane)))
    A('v_lshl_add_u32 %s, %s, 4, %s' % (vr(ta), vr(tb), vr(ta)))
    A('s_lshl_b32 %s, %s, 9' % (sr(s_t2), sr(s_w)))
    A('s_add_u32 %s, %s, %d' % (sr(s_t2), sr(s_t2), LDS_MEM))
    A('v_add_u32 %s, %s, %s' % (vr(va_rr), sr(s_t2), vr(ta)))
    A('s_lshl_b32 %s, %s, 9' % (sr(s_t2), sr(s_p)))
    A('s_add_u32 %s, %s, %d' % (sr(s_t2), sr(s_t2), LDS_MEM + 2048))
    A('v_add_u32 %s, %s, %s' % (vr(va_rrv), sr(s_t2), vr(ta)))
    vR, vcp, vH = tc, acc1, acc1 + 1
    A('v_bfe_u32 %s, %s, 3, 1' % (vr(ta), vr(v_lane)))
    A('v_bfe_u32 %s, %s, 4, 1' % (vr(tb), vr(v_lane)))
    A('v_lshlrev_b32 %s, 2, %s' % (vr(vR), vr(ta)))
    A('v_lshl_add_u32 %s, %s, 1, %s' % (vr(vR), vr(tb), vr(vR)))
    A('v_and_b32 %s, 7, %s' % (vr(vcp), vr(v_lane)))
    A('v_lshrrev_b32 %s, 5, %s' % (vr(vH), vr(v_lane)))
    A('v_lshlrev_b32 %s, 8, %s' % (vr(va_vs), vr(ta)))
    A('v_lshl_add_u32 %s, %s, 5, %s' % (vr(va_vs), vr(vcp), vr(va_vs)))
    A('v_lshl_add_u32 %s, %s, 4, %s' % (vr(va_vs), vr(vH), vr(va_vs)))
    A('v_lshl_add_u32 %s, %s, 2, %s' % (vr(va_vs), vr(tb), vr(va_vs)))
    A('s_lshl_b32 %s, %s, 3' % (sr(s_t2), sr(s_p)))
    A('s_add_u32 %s, %s, %s' % (sr(s_t2), sr(s_t2), sr(s_ob)))
    A('s_add_u32 %s, %s, 0x%x' % (sr(s_t2), sr(s_t2), VMI))
    A('s_cmp_ge_u32 %s, 2' % sr(s_w))
    A('s_cselect_b32 %s, 0x%x, %s' % (sr(s_t2), WS_BYTES, sr(s_t2)))
    A('v_add_u32 %s, %s, %s' % (vr(va_vs), sr(s_t2), vr(va_vs)))
    A('v_bfe_u32 %s, %s, 1, 1' % (vr(ta), vr(vcp)))
    A('v_lshlrev_b32 %s, 8, %s' % (vr(va_qks), vr(ta)))
    A('v_add_u32 %s, %s, %s' % (vr(vR), vr(vR), vr(vH)))
    A('v_lshl_add_u32 %s, %s, 4, %s' % (vr(va_qks), vr(vR), vr(va_qks)))
    A('v_lshrrev_b32 %s, 2, %s' % (vr(ta), vr(vcp)))
    A('v_lshl_add_u32 %s, %s, 3, %s' % (vr(va_qks), vr(ta), vr(va_qks)))
    A('v_and_b32 %s, 1, %s' % (vr(ta), vr(vcp)))
    A('v_lshl_add_u32 %s, %s, 2, %s' % (vr(va_qks), vr(ta), vr(va_qks)))
    A('s_lshl_b32 %s, %s, 9' % (sr(s_t2), sr(s_p)))
    A('v_add_u32 %s, %s, %s' % (vr(va_qks), sr(s_t2), vr(va_qks)))
    A('s_lshl_b32 %s, %s, 7' % (sr(s_t2), sr(s_wh)))
    A('s_add_u32 %s, %s, %s' % (sr(s_t2), sr(s_t2), sr(s_ob)))
    A('s_add_u32 %s, %s, 0x%x' % (sr(s_t2), sr(s_t2), QKI))
    A('v_add_u32 %s, %s, %s' % (vr(va_qks), sr(s_t2), vr(va_qks)))
    A('v_lshlrev_b32 %s, 4, %s' % (vr(va_mems), vr(v_nu)))
    A('v_lshl_add_u32 %s, %s, 2, %s' % (vr(va_mems), vr(v_g), vr(va_mems)))
    A('s_lshl_b32 %s, %s, 8' % (sr(s_t2), sr(s_w)))
    A('s_add_u32 %s, %s, %s' % (sr(s_t2), sr(s_t2), sr(s_obm)))
    A('s_add_u32 %s, %s, 0x%x' % (sr(s_t2), sr(s_t2), MEMI))
    A('v_add_u32 %s, %s, %s' % (vr(va_mems), sr(s_t2), vr(va_mems)))
    A('s_lshl_b32 %s, %s, 19' % (sr(s_t2), sr(s_w)))
    A('s_add_u32 %s, %s, %s' % (sr(s_t2), sr(s_t2), sr(s_ob)))
    A('s_add_u32 %s, %s, 0x%x' % (sr(s_t2), sr(s_t2), QKI))
    A('s_add_u32 %s, %s, 0x%x' % (sr(s_cnt), sr(s_obm), MEMI))
    A('s_cmp_eq_u32 %s, 0' % sr(s_red))
    A('s_cselect_b32 %s, %s, 0x%x' % (sr(s_cnt), sr(s_cnt), WS_BYTES))
    A('s_cmp_eq_u32 %s, 2' % sr(s_w))
    A('s_cselect_b32 %s, %s, %s' % (sr(s_t2), sr(s_cnt), sr(s_t2)))
    A('s_cmp_eq_u32 %s, 3' % sr(s_w))
    A('s_cselect_b32 %s, 0x%x, %s' % (sr(s_t2), WS_BYTES, sr(s_t2)))
    A('v_add_u32 %s, %s, %s' % (vr(va_memz), sr(s_t2), vr(l16)))
    A('s_lshr_b32 %s, %s, 1' % (sr(s_t2), sr(s_w)))
    A('s_lshl_b32 %s, %s, 10' % (sr(s_t2), sr(s_t2)))
    A('s_xor_b32 %s, %s, %s' % (sr(s_kvo), sr(s_t2), sr(s_ob)))
    A('s_and_b32 %s, %s, 1' % (sr(s_cnt), sr(s_w)))
    A('s_lshl_b32 %s, %s, 19' % (sr(s_t2), sr(s_cnt)))
    A('s_add_u32 %s, %s, %s' % (sr(s_t2), sr(s_t2), sr(s_kvo)))
    A('s_add_u32 %s, %s, 0x%x' % (sr(s_t2), sr(s_t2), QKI))
    A('s_lshl_b32 %s, %s, 23' % (sr(s_cnt), sr(s_cnt)))
    A('s_add_u32 %s, %s, %s' % (sr(s_cnt), sr(s_cnt), sr(s_kvo)))
    A('s_add_u32 %s, %s, 0x%x' % (sr(s_cnt), sr(s_cnt), KMO))
    assert VMO - KMO == 1 << 23
    A('v_add_u32 %s, %s, %s' % (vr(va_rb), sr(s_t2), vr(l16)))
    A('v_add_u32 %s, %s, %s' % (vr(va_cp), sr(s_cnt), vr(l16)))
    A('s_xor_b32 %s, %s, 1' % (sr(s_t2), sr(s_j)))
    A('s_or_b32 %s, %s, %s' % (sr(s_t2), sr(s_x), sr(s_t2)))
    A('s_xor_b32 %s, %s, 3' % (sr(s_cnt), sr(s_w)))
    A('s_or_b32 %s, %s, %s' % (sr(s_t2), sr(s_t2), sr(s_cnt)))
    A('s_cmp_eq_u32 %s, 0' % sr(s_t2))
    A('s_cselect_b32 %s, 0x%x, 0x%x' % (sr(s_t2), CTR + DBG_PROG * 128, WS_BYTES) if False else 's_mov_b32 %s, 0x%x' % (sr(s_cnt), CTR + DBG_PROG * 128))
    A('s_cselect_b32 %s, %s, 0x%x' % (sr(s_t2), sr(s_cnt), WS_BYTES))
    A('v_and_b32 %s, 3, %s' % (vr(v_zero), vr(v_lane)))
    A('v_lshlrev_b32 %s, 7, %s' % (vr(v_zero), vr(v_zero)))
    A('v_add_u32 %s, %s, %s' % (vr(va_prog), sr(s_t2), vr(v_zero)))
    A('v_cmp_lt_u32 vcc, 3, %s' % vr(v_lane))
    A('v_mov_b32 %s, 0x%x' % (vr(ta), WS_BYTES))
    A('v_cndmask_b32 %s, %s, %s, vcc' % (vr(va_prog), vr(va_prog), vr(ta)))
    A('v_add_u32 %s, 0x%x, %s' % (vr(v_zero), CTR, vr(v_zero)))
    s_h = s_t2
    A('s_lshl_b32 %s, %s, 2' % (sr(s_h), sr(s_x)))
    A('s_add_u32 %s, %s, %s' % (sr(s_h), sr(s_h), sr(s_w)))
    A('s_lshl_b32 %s, %s, 13' % (sr(s_h), sr(s_h)))
    A('v_and_b32 %s, 1, %s' % (vr(ta), vr(v_g)))
    A('v_lshrrev_b32 %s, 1, %s' % (vr(tb), vr(v_g)))
    A('v_lshlrev_b32 %s, 9, %s' % (vr(va_kx), vr(ta)))
    A('v_lshl_add_u32 %s, %s, 10, %s' % (vr(va_kx), vr(tb), vr(va_kx)))
    A('v_add_u32 %s, %s, %s' % (vr(va_kx), sr(s_h), vr(va_kx)))
    A('v_lshl_add_u32 %s, %s, 4, %s' % (vr(va_vx), vr(v_nu), vr(va_kx)))
    A('v_add_u32 %s, 0x%x, %s' % (vr(va_vx), VX, vr(va_vx)))
    A('v_lshrrev_b32 %s, 3, %s' % (vr(ta), vr(v_nu)))
    A('v_lshl_add_u32 %s, %s, 8, %s' % (vr(va_kx), vr(ta), vr(va_kx)))
    A('v_and_b32 %s, 7, %s' % (vr(ta), vr(v_nu)))
    A('v_lshl_add_u32 %s, %s, 4, %s' % (vr(va_kx), vr(ta), vr(va_kx)))
    A('v_add_u32 %s, 0x%x, %s' % (vr(va_kx), KX, vr(va_kx)))
    A('s_lshr_b32 %s, %s, 1' % (sr(s_t2), sr(s_j)))
    A('s_lshl_b32 %s, %s, 2' % (sr(s_t2), sr(s_t2)))
    A('s_add_u32 %s, %s, %s' % (sr(s_t2), sr(s_t2), sr(s_w)))
    A('s_and_b32 %s, %s, 15' % (sr(s_cnt), sr(s_t2)))
    A('s_lshl_b32 %s, %s, 11' % (sr(s_cnt), sr(s_cnt)))
    A('s_lshr_b32 %s, %s, 4' % (sr(s_t2), sr(s_t2)))
    A('s_lshl_b32 %s, %s, 24' % (sr(s_t2), sr(s_t2)))
    assert VX - KX == 1 << 24
    A('s_add_u32 %s, %s, %s' % (sr(s_t2), sr(s_t2), sr(s_cnt)))
    A('s_lshl_b32 %s, %s, 15' % (sr(s_cnt), sr(s_x)))
    A('s_add_u32 %s, %s, %s' % (sr(s_t2), sr(s_t2), sr(s_cnt)))
    A('s_add_u32 %s, %s, 0x%x' % (sr(s_t2), sr(s_t2), KX + 0x40000))
    A('v_lshl_add_u32 %s, %s, 5, %s' % (vr(va_warm), vr(v_lane), sr(s_t2)))
    A('v_add_u32 %s, %d, %s' % (vr(va_or), LDS_O, vr(l16)))
    A('v_lshrrev_b32 %s, 3, %s' % (vr(ta), vr(v_nu)))
    A('v_mul_u32_u24 %s, %d, %s' % (vr(ta), 1024 - 128, vr(ta)))
    A('s_lshl_b32 %s, %s, 11' % (sr(s_t2), sr(s_w)))
    A('v_add3_u32 %s, %s, %s, %s' % (vr(va_ow), sr(s_t2), vr(va_or), vr(ta)))
    A('s_lshl_b32 %s, %s, 13' % (sr(s_vxl), sr(s_w)))
    A('v_add_u32 %s, %s, %s' % (vr(va_vxr), sr(s_vxl), vr(l16)))
    if stamps:
        A('s_lshl_b32 %s, %s, 4' % (sr(s_stamp), sr(s_ob)))
        A('s_lshl_b32 %s, %s, 12' % (sr(s_t2), sr(s_w)))
        A('s_add_u32 %s, %s, %s' % (sr(s_stamp), sr(s_stamp), sr(s_t2)))
        A('s_add_u32 %s, %s, 0x%x' % (sr(s_stamp), sr(s_stamp), STAMP))
        A('s_add_u32 %s, %s, 65536' % (sr(s_stl), sr(s_t2)))

    vq1, vq2, vr_, vcq = acc1, acc1 + 1, acc1 + 2, acc1 + 3
    A('v_bfe_u32 %s, %s, 2, 2' % (vr(vr_), vr(v_lane)))
    A('v_and_b32 %s, 3, %s' % (vr(vcq), vr(v_lane)))
    A('v_lshl_add_u32 %s, %s, 3, %s' % (vr(vq1), vr(v_g), vr(vr_)))
    A('v_lshlrev_b32 %s, 6, %s' % (vr(vq1), vr(vq1)))
    A('v_lshl_add_u32 %s, %s, 3, %s' % (vr(vq1), vr(vcq), vr(vq1)))
    A('s_lshl_b32 %s, %s, 14' % (sr(s_t2), sr(s_w)))
    A('v_add_u32 %s, %s, %s' % (vr(vq1), sr(s_t2), vr(vq1)))
    A('v_add_u32 %s, 65536, %s' % (vr(tb), vr(vq1)))
    if stamps:
        A('s_memrealtime %s' % sr(s_e + 2, 2))
    A('s_waitcnt vmcnt(0)')
    if stamps:
        A('s_memrealtime %s' % sr(s_e + 4, 2))
    A('s_barrier')
    for kk in range(4):
        for tl in range(4):
            for bh in range(2):
                for q in range(2):
                    A('ds_read_b64_tr_b16 %s, %s offset:%d' % (ar(W1 + 8 * (kk * 6 + tl) + 4 * bh + 2 * q, 2), vr(tb if tl >= 2 else vq1), kk * 4096 + bh * 2048 + q * 256 + (tl & 1) * 32))
            A('s_waitcnt lgkmcnt(8)')
    A('s_waitcnt lgkmcnt(0)')
    A('s_barrier')
    A('s_lshl_b32 %s, %s, 14' % (sr(s_t2), sr(s_w)))
    A('v_add_u32 %s, %s, %s' % (vr(ta), sr(s_t2), vr(l16)))
    A('v_add_u32 %s, 65536, %s' % (vr(tb), vr(ta)))
    for i in range(16):
        A('ds_write_b128 %s, %s offset:%d' % (vr(ta), vr(LV + 4 * i, 4), i * 1024))
        A('ds_write_b128 %s, %s offset:%d' % (vr(tb), vr(LO + 4 * i, 4), i * 1024))
        A('s_waitcnt lgkmcnt(8)')
    A('s_waitcnt lgkmcnt(0)')
    A('s_barrier')
    for kk in range(4):
        for tl in range(2):
            for bh in range(2):
                for q in range(2):
                    A('ds_read_b64_tr_b16 %s, %s offset:%d' % (ar(W1 + 8 * (kk * 6 + 4 + tl) + 4 * bh + 2 * q, 2), vr(vq1), kk * 4096 + bh * 2048 + q * 256 + tl * 32))
            A('s_waitcnt lgkmcnt(8)')
    A('v_and_b32 %s, 1, %s' % (vr(vq2), vr(v_g)))
    A('v_lshl_add_u32 %s, %s, 5, %s' % (vr(vq2), vr(vq2), vr(vr_)))
    A('v_lshrrev_b32 %s, 1, %s' % (vr(tb), vr(v_g)))
    A('v_lshl_add_u32 %s, %s, 2, %s' % (vr(vq2), vr(tb), vr(vq2)))
    A('v_lshlrev_b32 %s, 7, %s' % (vr(vq2), vr(vq2)))
    A('v_lshl_add_u32 %s, %s, 3, %s' % (vr(vq2), vr(vcq), vr(vq2)))
    A('s_lshl_b32 %s, %s, 5' % (sr(s_t2), sr(s_w)))
    A('s_add_u32 %s, %s, 65536' % (sr(s_t2), sr(s_t2)))
    A('v_add_u32 %s, %s, %s' % (vr(vq2), sr(s_t2), vr(vq2)))
    for k in range(8):
        for bh in range(2):
            for q in range(2):
                A('ds_read_b64_tr_b16 %s, %s offset:%d' % (ar(W3 + 8 * k + 4 * bh + 2 * q, 2), vr(vq2), k * 8192 + q * 2048 + bh * 1024))
        A('s_waitcnt lgkmcnt(8)')
    A('s_waitcnt lgkmcnt(0)')
    A('s_barrier')

    def kx_ops():
        o = []
        for eb in range(4):
            so = s_kx if eb < 2 else s_kx2
            o.append(['buffer_load_dwordx4 %s, %s, %s, %s offen offset:%d' % (vr(KXA + 4 * eb, 4), vr(va_kx), sr(SRD_WS, 4), sr(so), (eb & 1) * 2048) + ' sc1'])
            o.append(['buffer_load_dwordx4 %s, %s, %s, %s offen offset:%d' % (vr(KXB + 4 * eb, 4), vr(va_kx), sr(SRD_WS, 4), sr(so), (eb & 1) * 2048 + 128) + ' sc1'])
        return o

    def vx_ops(nstage):
        o = []
        for T in range(8):
            eb = T >> 1
            so = s_kx if eb < 2 else s_kx2
            off = (eb & 1) * 2048 + (T & 1) * 256
            if T < nstage:
                o.append(['s_add_u32 m0, %s, %d' % (sr(s_vxl), 4096 + T * 1024 - off), 's_nop 0',
                          'buffer_load_dwordx4 %s, %s, %s offen offset:%d sc1 lds' % (vr(va_vx), sr(SRD_WS, 4), sr(so), off)])
            else:
                o.append(['buffer_load_dwordx4 %s, %s, %s, %s offen offset:%d sc1' % (vr(VXR + 4 * T, 4), vr(va_vx), sr(SRD_WS, 4), sr(so), off)])
        return o

    def emit(it):
        for t in (it if isinstance(it, list) else [it]):
            A(t)
            if t.startswith('buffer_'):
                nvm[0] += 1

    A('s_mov_b32 %s, 0' % sr(s_step))
    A('s_mov_b32 %s, 0x20202022' % sr(s_kvm))
    A('s_mov_b32 %s, 0x00202020' % sr(s_kvm + 1))
    A('s_mov_b32 %s, 0' % sr(s_slot))
    A('s_mov_b32 %s, 0x20000' % sr(s_slot1))
    A('s_mov_b32 %s, 0x40000' % sr(s_slot2))
    A('s_mov_b32 %s, 0' % sr(s_kx))
    A('s_mov_b32 %s, 4096' % sr(s_kx2))
    A('s_mov_b32 %s, 0' % sr(s_out))
    A('s_mov_b32 %s, 0x%x' % (sr(s_outp), WS_BYTES))
    A('s_mov_b32 %s, 0' % sr(s_slotp))
    A('s_mov_b32 %s, 0' % sr(s_ps))
    A('s_mov_b32 %s, 0x80000' % sr(s_ps2))
    A('s_mov_b32 %s, %d' % (sr(s_kvo), DBG_KV0 * 128))

    def kv_wait(tag):
        Lw, Ld = A.uid('kvw' + tag), A.uid('kvd' + tag)
        A('s_mov_b32 %s, 0' % sr(s_cnt))
        A.label(Lw)
        A('s_sleep 4')
        A('buffer_load_dword %s, %s, %s, %s offen sc1' % (vr(v_kvf), vr(v_zero), sr(SRD_WS, 4), sr(s_kvo)))
        A('s_add_u32 %s, %s, 1' % (sr(s_cnt), sr(s_cnt)))
        A('s_cmp_gt_u32 %s, %s' % (sr(s_cnt), sr(s_lim)))
        A('s_cbranch_scc1 ' + Ld)
        A('s_waitcnt vmcnt(0)')
        A('v_cmp_gt_u32 vcc, 32, %s' % vr(v_kvf))
        A('s_cbranch_vccnz ' + Lw)
        A.label(Ld)
        A('s_waitcnt vmcnt(0)')
    stamp(7)
    if stamps and not LITE and not FINE:
        for i_, k_ in enumerate((11, 12, 13)):
            A('v_mov_b32 %s, %s' % (vr(v_t[7]), sr(s_e + 2 * i_)))
            A('ds_write_b32 %s, %s offset:%d' % (vr(v_t[6]), vr(v_t[7]), 4 * k_))
    if worker and TOUCH:
        s_tp = s_ptr
        SRD_E = SRD_A
        A('s_load_dwordx2 %s, s[0:1], 0' % sr(s_tp, 2))
        A('s_load_dwordx2 %s, s[0:1], 56' % sr(s_tp + 2, 2))
        A('s_load_dwordx4 %s, s[0:1], 64' % sr(s_tp + 4, 4))
        A('v_lshlrev_b32 %s, 7, %s' % (vr(v_t[7]), vr(v_lane)))
        A('s_lshl_b32 %s, %s, 4' % (sr(s_t1), sr(s_x)))
        A('s_add_u32 %s, %s, %s' % (sr(s_t1), sr(s_t1), sr(s_j)))
        A('s_lshl_b32 %s, %s, 2' % (sr(s_t1), sr(s_t1)))
        A('s_add_u32 %s, %s, %s' % (sr(s_t1), sr(s_t1), sr(s_w)))
        A('s_lshl_b32 %s, %s, 13' % (sr(s_t1), sr(s_t1)))
        A('s_waitcnt lgkmcnt(0)')
        for pi, nbytes in ((0, 4 << 20), (4, 6 << 20), (2, 4 << 20), (6, 2 << 20)):
            srd(SRD_E, s_tp + pi, nbytes)
            A('buffer_load_dword %s, %s, %s, %s offen' % (vr(v_junk), vr(v_t[7]), sr(SRD_E, 4), sr(s_t1)))
            if nbytes > (4 << 20):
                A('s_add_u32 %s, %s, 0x400000' % (sr(s_t2), sr(s_t1)))
                A('buffer_load_dword %s, %s, %s, %s offen' % (vr(v_junk), vr(v_t[7]), sr(SRD_E, 4), sr(s_t2)))
            A('s_nop 4')

    L_rdy = A.uid('rdy')
    L_rdy_done = A.uid('rdyd')
    A('v_mov_b32 %s, 32' % vr(v_t[0]))
    A('s_mov_b32 %s, 0' % sr(s_cnt))
    L_rdy0 = A.uid('rdy0')
    A('s_branch ' + L_rdy0)
    A.label(L_rdy)
    A('s_sleep 6')
    A.label(L_rdy0)
    A('buffer_load_dword %s, %s, %s, 0 offen sc1' % (vr(acc1 + 1), vr(v_t[0]), sr(SRD_T, 4)))
    A('s_add_u32 %s, %s, 1' % (sr(s_cnt), sr(s_cnt)))
    A('s_cmp_gt_u32 %s, %s' % (sr(s_cnt), sr(s_lim)))
    A('s_cbranch_scc1 ' + L_rdy_done)
    A('s_waitcnt vmcnt(0)')
    A('v_and_b32 %s, 0xffff, %s' % (vr(acc1), vr(acc1 + 1)))
    A('v_cmp_gt_u32 vcc, 128, %s' % vr(acc1))
    A('s_cbranch_vccnz ' + L_rdy)
    A.label(L_rdy_done)
    A('s_waitcnt vmcnt(0)')
    A('v_lshrrev_b32 %s, 16, %s' % (vr(acc1), vr(acc1 + 1)))
    A('v_cmp_%s_u32 vcc, 16, %s' % ('lt' if NEARX else 'ge', vr(acc1)))
    A('v_mov_b32 %s, 8192' % vr(acc1 + 1))
    A('v_cndmask_b32 %s, 0, %s, vcc' % (vr(acc1), vr(acc1 + 1)))
    A('v_add_u32 %s, %s, %s' % (vr(va_pr), vr(va_pr), vr(acc1)))
    A('v_add_u32 %s, %s, %s' % (vr(va_pw), vr(va_pw), vr(acc1)))
    A('v_mul_u32_u24 %s, 252, %s' % (vr(acc1), vr(v_g)))
    A('v_sub_u32 %s, %s, %s' % (vr(va_pd), vr(va_pw), vr(acc1)))
    A('v_lshlrev_b32 %s, 8, %s' % (vr(acc1), vr(v_g)))
    A('v_sub_u32 %s, %s, %s' % (vr(va_pw2), vr(va_pw), vr(acc1)))
    A('v_and_b32 %s, 1, %s' % (vr(acc1), vr(v_g)))
    A('v_lshlrev_b32 %s, 14, %s' % (vr(acc1), vr(acc1)))
    A('v_xor_b32 %s, %s, %s' % (vr(va_pw2), vr(va_pw2), vr(acc1)))
    A('v_lshrrev_b32 %s, 1, %s' % (vr(acc1), vr(v_g)))
    A('v_lshl_add_u32 %s, %s, 28, %s' % (vr(va_pw2), vr(acc1), vr(va_pw2)))

    if worker:
        kv_wait('0')
    stamp(9)

    def chk_piece(base, bits16, t0, t1):
        if bits16:
            A('v_pk_max_u16 %s, %s, %s' % (vr(t0), vr(base), vr(base + 1)))
            A('v_pk_max_u16 %s, %s, %s' % (vr(t1), vr(base + 2), vr(base + 3)))
            A('v_pk_max_u16 %s, %s, %s' % (vr(t0), vr(t0), vr(t1)))
            A('v_pk_max_u16 %s, %s, %s op_sel:[0,1] op_sel_hi:[1,0]' % (vr(t0), vr(t0), vr(t0)))
        else:
            A('v_max3_u32 %s, %s, %s, %s' % (vr(t0), vr(base), vr(base + 1), vr(base + 2)))
            A('v_max_u32 %s, %s, %s' % (vr(t0), vr(t0), vr(base + 3)))
        A('v_cmp_eq_u32 vcc, -1, %s' % vr(t0))

    ool = []

    def poll(n, load, base, bits16, tag, on_ok=None):
        Ld = A.uid('polld' + tag)
        Lf = A.uid('pollf' + tag)
        Lk = [A.uid('poll%s%d' % (tag, k)) for k in range(n)]
        Lc = [A.uid('chk%s%d' % (tag, k)) for k in range(n)]
        Lo = [A.uid('ok%s%d' % (tag, k)) for k in range(n)]
        Lfs = [A.uid('pollf%s%d' % (tag, k)) for k in range(n)]

        def issue(m, first=False):
            if first and tag == 'A' and A_BACK:
                Lsk = A.uid('sk')
                A('s_branch ' + Lsk)
            A.label(Lk[m])
            if tag == 'A' and A_BACK:
                A('s_sleep %d' % A_BACK)
                if first:
                    A.label(Lsk)
            for k in range(m, n):
                A(load(k))
            A('s_add_u32 %s, %s, 1' % (sr(s_cnt), sr(s_cnt)))
            A('s_cmp_gt_u32 %s, %s' % (sr(s_cnt), sr(s_lim)))
            A('s_cbranch_scc1 ' + Lfs[m])
        A('s_mov_b32 %s, 0' % sr(s_cnt))
        issue(0, True)
        for m in range(n):
            A.label(Lc[m])
            A('s_waitcnt vmcnt(%d)' % (n - 1 - m if PIPE else 0))
            if FINE == tag:
                stamp([7, 9, 11, 12][m])
            chk_piece(base + 4 * m, bits16, v_t[0], v_t[1])
            A('s_cbranch_vccnz ' + Lk[m])
            A.label(Lo[m])
            if on_ok:
                on_ok(m)
        A.label(Ld)

        def tail():
            for m in range(1, n):
                issue(m)
                A('s_branch ' + Lc[m])
            for m in range(n):
                A.label(Lfs[m])
                A('s_mov_b32 %s, 0' % sr(s_lim))
                A('s_waitcnt vmcnt(0)')
                A('s_branch ' + Lo[m])
        ool.append(tail)

    def halfadd(acc, d0, d1):
        A('v_permlane32_swap_b32 %s, %s' % (vr(acc), vr(acc + 2)))
        A('v_permlane32_swap_b32 %s, %s' % (vr(acc + 1), vr(acc + 3)))
        A('v_add_f32 %s, %s, %s' % (vr(d0), vr(acc), vr(acc + 2)))
        A('v_add_f32 %s, %s, %s' % (vr(d1), vr(acc + 1), vr(acc + 3)))

    def spread(main, side, n):
        pos = set()
        if n:
            for k in range(n):
                pos.add(int((k + 0.5) * len(main) / n))
        for i, m in enumerate(main):
            emit(m)
            if i in pos:
                emit(side.pop(0))

    def smf(acc, a, w):
        return 'v_smfmac_f32_16x16x64_bf16 %s, %s, %s, %s' % (vr(acc, 4), vr(a, 4), ar(w, 8), vr(v_idx))

    def frag(i):
        return M + 4 * i if i < 4 else F + 4 * (i - 4)

    L_last = name + '_last'

    def okA(k):
        for tl in range(4):
            A(smf(AC + 4 * tl, M + 4 * k, W1 + 8 * (k * 6 + tl)))

    def zero_acc():
        for i in range(24):
            A('v_mov_b32 %s, 0' % vr(AC + i))

    def advance():
        A('s_add_u32 %s, %s, 1' % (sr(s_step), sr(s_step)))
        A('s_mov_b32 %s, %s' % (sr(s_slotp), sr(s_slot)))
        A('s_mov_b32 %s, %s' % (sr(s_outp), sr(s_out)))
        A('s_mov_b32 %s, %s' % (sr(s_slot), sr(s_slot1)))
        A('s_mov_b32 %s, %s' % (sr(s_slot1), sr(s_slot2)))
        A('s_add_u32 %s, %s, 0x20000' % (sr(s_slot2), sr(s_slot2)))
        A('s_and_b32 %s, %s, 0x7ffff' % (sr(s_slot2), sr(s_slot2)))
        A('s_add_u32 %s, %s, 0x20000' % (sr(s_out), sr(s_out)))
        A('s_lshl_b32 %s, %s, 1' % (sr(s_ps), sr(s_slot)))
        A('s_lshl_b32 %s, %s, 1' % (sr(s_ps2), sr(s_slot2)))
        if stamps:
            A('s_add_u32 %s, %s, 64' % (sr(s_stl), sr(s_stl)))

    def ldA(k):
        return 'buffer_load_dwordx4 %s, %s, %s, %s offen offset:%d sc1' % (vr(M + 4 * k, 4), vr(va_memr), sr(SRD_WS, 4), sr(s_slot), k * 1024)

    def pollA():
        Lr, Lf, Lgo = A.uid('pA'), A.uid('pAf'), A.uid('pAg')
        for k in range(4):
            A(ldA(k))
        zero_acc()
        A('s_mov_b32 %s, 15' % sr(s_pend))
        A('s_mov_b32 %s, 0' % sr(s_cnt))
        A.label(Lr)
        A('s_add_u32 %s, %s, 1' % (sr(s_cnt), sr(s_cnt)))
        A('s_mov_b32 %s, 0' % sr(s_t0))
        A('s_cmp_gt_u32 %s, %s' % (sr(s_cnt), sr(s_lim)))
        A('s_cbranch_scc1 ' + Lf)
        A('s_waitcnt vmcnt(0)')
        for k in range(4):
            A('v_max3_u32 %s, %s, %s, %s' % (vr(v_t[k]), vr(M + 4 * k), vr(M + 4 * k + 1), vr(M + 4 * k + 2)))
        for k in range(4):
            A('v_max_u32 %s, %s, %s' % (vr(v_t[k]), vr(v_t[k]), vr(M + 4 * k + 3)))
        for k in range(4):
            A('v_cmp_eq_u32 %s, -1, %s' % (sr(s_bad + 2 * k, 2), vr(v_t[k])))
        for k in range(4):
            Ls = A.uid('pAs')
            A('s_cmp_eq_u64 %s, 0' % sr(s_bad + 2 * k, 2))
            A('s_cbranch_scc1 ' + Ls)
            A(ldA(k))
            A('s_bitset1_b32 %s, %d' % (sr(s_t0), k))
            A.label(Ls)
        A.label(Lgo)
        A('s_andn2_b32 %s, %s, %s' % (sr(s_t1), sr(s_pend), sr(s_t0)))
        A('s_mov_b32 %s, %s' % (sr(s_pend), sr(s_t0)))
        for k in range(4):
            Ls = A.uid('pAt')
            A('s_bitcmp1_b32 %s, %d' % (sr(s_t1), k))
            A('s_cbranch_scc0 ' + Ls)
            okA(k)
            A.label(Ls)
        A('s_cmp_lg_u32 %s, 0' % sr(s_pend))
        A('s_cbranch_scc1 ' + Lr)

        def tail():
            A.label(Lf)
            A('s_mov_b32 %s, 0' % sr(s_lim))
            A('s_waitcnt vmcnt(0)')
            A('s_branch ' + Lgo)
        ool.append(tail)

    def loop(red):
        tg = 'r' if red else 'n'
        pf = PF if red else PFN
        nl = pf[6]
        nstage = 8 if red else max(0, sum(pf[:4]) - 8)
        pfl = kx_ops() + vx_ops(nstage)
        if NOPF == 1 or (NOPF == 2 and red) or (NOPF == 3 and not red):
            pfl = [['s_nop 0'] for _ in pfl]
        late = pfl[16 - nl:]
        L_st, L_B = name + '_step' + tg, name + '_B' + tg
        A.label(name + '_first' + tg)
        for it in (kx_ops() + vx_ops(nstage))[:16 - nl]:
            emit(it)
        zero_acc()
        for k in range(4):
            okA(k)
        A('s_waitcnt vmcnt(0)')
        A('s_branch ' + L_B)
        A.label(L_st)
        if OOO:
            pollA()
        else:
            zero_acc()
            poll(4, ldA, M, False, 'A', okA)
        A.label(L_B)
        stamp(0)
        vs = [smf(AC + 4 * tl, M + 4 * k, W1 + 8 * (k * 6 + tl)) for tl in (4, 5) for k in range(4)]
        for tl in range(4):
            A(vs.pop(0))
            if late:
                emit(late.pop(0))
            A('v_permlane32_swap_b32 %s, %s' % (vr(AC + 4 * tl), vr(AC + 4 * tl + 2)))
            A('v_permlane32_swap_b32 %s, %s' % (vr(AC + 4 * tl + 1), vr(AC + 4 * tl + 3)))
            A(vs.pop(0))
            A('v_pk_add_f32 %s, %s, %s' % (vr(HA + 2 * tl, 2), vr(AC + 4 * tl, 2), vr(AC + 4 * tl + 2, 2)))
            A('ds_write_b64 %s, %s offset:%d' % (vr(va_rw), vr(HA + 2 * tl, 2), tl * 512))
        assert not late
        A('s_waitcnt lgkmcnt(0)')
        A('s_barrier')
        if FINE:
            stamp(15)
        A('ds_read_b128 %s, %s' % (vr(RD, 4), vr(va_rr)))
        A('ds_read_b128 %s, %s offset:3072' % (vr(RD + 4, 4), vr(va_rr)))
        for tl in (4, 5):
            A('v_permlane32_swap_b32 %s, %s' % (vr(AC + 4 * tl), vr(AC + 4 * tl + 2)))
            A('v_permlane32_swap_b32 %s, %s' % (vr(AC + 4 * tl + 1), vr(AC + 4 * tl + 3)))
            A('v_pk_add_f32 %s, %s, %s' % (vr(HA + 2 * tl, 2), vr(AC + 4 * tl, 2), vr(AC + 4 * tl + 2, 2)))
            A('ds_write_b64 %s, %s offset:%d' % (vr(va_rw), vr(HA + 2 * tl, 2), tl * 512))
        A('s_waitcnt lgkmcnt(2)')
        A('v_pk_add_f32 %s, %s, %s' % (vr(RD, 2), vr(RD, 2), vr(RD + 4, 2)))
        A('v_pk_add_f32 %s, %s, %s' % (vr(RD + 2, 2), vr(RD + 2, 2), vr(RD + 6, 2)))
        A('v_permlane32_swap_b32 %s, %s' % (vr(RD), vr(RD + 1)))
        A('v_permlane32_swap_b32 %s, %s' % (vr(RD + 2), vr(RD + 3)))
        A('v_add_f32 %s, %s, %s' % (vr(v_t[0]), vr(RD), vr(RD + 1)))
        A('v_add_f32 %s, %s, %s' % (vr(v_t[1]), vr(RD + 2), vr(RD + 3)))
        A('v_cvt_pk_bf16_f32 %s, %s, %s' % (vr(v_t[2]), vr(v_t[0]), vr(v_t[1])))
        A('v_pk_min_u16 %s, %s, %s' % (vr(v_t[2]), vr(v_t[2]), sr(s_fffe)))
        A('buffer_store_dword %s, %s, %s, %s offen%s' % (vr(v_t[2]), vr(va_qks), sr(SRD_WS, 4), sr(s_slot), ISC))
        if FINE:
            stamp(13)

        def ldC(st_):
            for k in range(4):
                A('buffer_load_dwordx4 %s, %s, %s, %s offen offset:%d sc1' % (vr(st_ + 4 * k, 4), vr(va_qkr), sr(SRD_WS, 4), sr(s_slot), k * 1024))

        def procC(st_, younger):
            for t in range(4):
                A('s_waitcnt vmcnt(%d)' % (3 - t + younger))
                q = st_ + 4 * t
                A('v_mfma_f32_16x16x32_bf16 %s, %s, %s, %s' % (vr(SA, 4), vr(KXA + 4 * t, 4), vr(q, 4), vr(v_maskx, 4) if t == 0 else vr(SA, 4)))
                if t == 0:
                    A('v_max3_u32 %s, %s, %s, %s' % (vr(v_t[0]), vr(q), vr(q + 1), vr(q + 2)))
                else:
                    A('v_max3_u32 %s, %s, %s, %s' % (vr(v_t[0]), vr(v_t[0]), vr(q), vr(q + 1)))
                A('v_mfma_f32_16x16x32_bf16 %s, %s, %s, %s' % (vr(SB, 4), vr(KXB + 4 * t, 4), vr(q, 4), vr(v_maskx, 4) if t == 0 else vr(SB, 4)))
                if t == 0:
                    A('v_max_u32 %s, %s, %s' % (vr(v_t[0]), vr(v_t[0]), vr(q + 3)))
                else:
                    A('v_max3_u32 %s, %s, %s, %s' % (vr(v_t[0]), vr(v_t[0]), vr(q + 2), vr(q + 3)))
                if t == 3:
                    A('v_cmp_eq_u32 vcc, -1, %s' % vr(v_t[0]))
                A('v_mfma_f32_16x16x32_bf16 %s, %s, %s, %s' % (vr(SM, 4), vr(q, 4), vr(q, 4), vr(v_mask, 4) if t == 0 else vr(SM, 4)))
        if C2 == 1:
            ldC(QK)
        A('s_waitcnt lgkmcnt(0)')
        A('s_barrier')
        A('ds_read_b128 %s, %s' % (vr(RD + 8, 4), vr(va_rrv)))
        A('ds_read_b128 %s, %s offset:3072' % (vr(RD + 12, 4), vr(va_rrv)))
        if C2 == 2:
            ldC(QK)
        A('s_waitcnt lgkmcnt(0)')
        A('v_pk_add_f32 %s, %s, %s' % (vr(RD + 8, 2), vr(RD + 8, 2), vr(RD + 12, 2)))
        A('v_pk_add_f32 %s, %s, %s' % (vr(RD + 10, 2), vr(RD + 10, 2), vr(RD + 14, 2)))
        for T in range(8 - nl):
            if T < nstage:
                A('ds_read_b128 %s, %s offset:%d' % (vr(VXR + 4 * T, 4), vr(va_vxr), 4096 + T * 1024))
        halfadd(RD + 8, v_t[0], v_t[1])
        A('v_cvt_pk_bf16_f32 %s, %s, %s' % (vr(v_t[3]), vr(v_t[0]), vr(v_t[1])))
        A('v_pk_min_u16 %s, %s, %s' % (vr(v_t[3]), vr(v_t[3]), sr(s_fffe)))
        A('buffer_store_dword %s, %s, %s, %s offen%s' % (vr(v_t[3]), vr(va_vs), sr(SRD_WS, 4), sr(s_slot), ISC))
        stamp(1)
        A('s_cmp_ge_u32 %s, %d' % (sr(s_step), nsteps - 1))
        A('s_cbranch_scc1 ' + L_last)
        A('s_add_u32 %s, %s, 0x40000' % (sr(s_kx), sr(s_kx)))
        A('s_add_u32 %s, %s, 0x40000' % (sr(s_kx2), sr(s_kx2)))
        if DELAY_C:
            A('s_sleep %d' % DELAY_C)

        Lc, Lcf, Lcd = A.uid('pC'), A.uid('pCf'), A.uid('pCd')
        A('s_mov_b32 %s, 1' % sr(s_cnt))
        if C2:
            if C2B:
                ldC(M)
            procC(QK, 1 + (4 if C2B else 0))
            A('s_cbranch_vccnz ' + Lcf)
            A.label(Lcd)

            def tailC():
                A.label(Lcf)
                if C2B:
                    A('s_add_u32 %s, %s, 1' % (sr(s_cnt), sr(s_cnt)))
                    procC(M, 0)
                    A('s_cbranch_vccz ' + Lcd)
                A.label(Lc)
                ldC(QK)
                A('s_add_u32 %s, %s, 1' % (sr(s_cnt), sr(s_cnt)))
                procC(QK, 0)
                A('s_cbranch_vccz ' + Lcd)
                A('s_cmp_le_u32 %s, %s' % (sr(s_cnt), sr(s_lim)))
                A('s_cbranch_scc1 ' + Lc)
                A('s_mov_b32 %s, 0' % sr(s_lim))
                A('s_branch ' + Lcd)
            ool.append(tailC)
        else:
            A.label(Lc)
            ldC(QK)
            procC(QK, 0)
            A('s_cbranch_vccnz ' + Lcf)
            A.label(Lcd)

            def tailC():
                A.label(Lcf)
                A('s_add_u32 %s, %s, 1' % (sr(s_cnt), sr(s_cnt)))
                A('s_cmp_le_u32 %s, %s' % (sr(s_cnt), sr(s_lim)))
                A('s_cbranch_scc1 ' + Lc)
                A('s_mov_b32 %s, 0' % sr(s_lim))
                A('s_branch ' + Lcd)
            ool.append(tailC)
        stamp(2)

        def vload(k):
            return 'buffer_load_dwordx4 %s, %s, %s, %s offen offset:%d sc1' % (vr(VMR + 4 * k, 4), vr(va_vmr), sr(SRD_WS, 4), sr(s_slot), k * 1024)
        for k in range(2):
            A(vload(k))
        for T in range(8 - nl, 8):
            A('ds_read_b128 %s, %s offset:%d' % (vr(VXR + 4 * T, 4), vr(va_vxr), 4096 + T * 1024))
        if not red:
            A('buffer_load_dwordx4 %s, %s, %s, %s offen sc1' % (vr(RB, 4), vr(va_rb), sr(SRD_WS, 4), sr(s_slotp)))
        nvm[0] = 0
        side = list(pfl[:16 - nl])
        s = [SA + i for i in range(12)]
        sm = []
        sm.append('v_max3_f32 %s, %s, %s, %s' % (vr(v_mx), vr(s[0]), vr(s[1]), vr(s[2])))
        sm.append('v_max3_f32 %s, %s, %s, %s' % (vr(v_mx2), vr(s[3]), vr(s[4]), vr(v_bias)))
        sm.append('v_max3_f32 %s, %s, %s, %s' % (vr(v_mx), vr(v_mx), vr(s[5]), vr(s[6])))
        sm.append('v_max3_f32 %s, %s, %s, %s' % (vr(v_mx2), vr(v_mx2), vr(s[7]), vr(s[8])))
        sm.append('v_max3_f32 %s, %s, %s, %s' % (vr(v_mx), vr(v_mx), vr(s[9]), vr(s[10])))
        sm.append('v_max3_f32 %s, %s, %s, %s' % (vr(v_mx), vr(v_mx), vr(v_mx2), vr(s[11])))

        def xlane(op, a, b):
            o = []
            for sw in ('v_permlane32_swap_b32', 'v_permlane16_swap_b32'):
                o.append('v_mov_b32 %s, %s' % (vr(b), vr(a)))
                o.append('%s %s, %s' % (sw, vr(a), vr(b)))
                o.append('%s %s, %s, %s' % (op, vr(a), vr(a), vr(b)))
            return o
        sm += xlane('v_max_f32', v_mx, v_mx2)
        sm.append('v_mul_f32 %s, %s, %s' % (vr(v_mx), sr(s_c), vr(v_mx)))
        for i in range(8):
            sm.append('v_fma_f32 %s, %s, %s, -%s' % (vr(s[i]), vr(s[i]), sr(s_c), vr(v_mx)))
        for i in range(8):
            sm.append('v_exp_f32 %s, %s' % (vr(s[i]), vr(s[i])))
            if i >= 2 and i % 2 == 0:
                sm.append('v_cvt_pk_bf16_f32 %s, %s, %s' % (vr(PX + i // 2 - 1), vr(s[i - 2]), vr(s[i - 1])))
        sm.append('v_fma_f32 %s, %s, %s, -%s' % (vr(s[8]), vr(s[8]), sr(s_c), vr(v_mx)))
        sm.append('v_cvt_pk_bf16_f32 %s, %s, %s' % (vr(PX + 3), vr(s[6]), vr(s[7])))
        sm.append('v_fma_f32 %s, %s, %s, -%s' % (vr(s[9]), vr(s[9]), sr(s_c), vr(v_mx)))
        spread(sm, side, pf[0])
        A('s_waitcnt lgkmcnt(0)')
        stamp(3)

        def dpp8(d, srcr):
            return 'v_mov_b32_dpp %s, %s row_shr:8 row_mask:0xf bank_mask:0xf bound_ctrl:0' % (vr(d), vr(srcr))
        t = v_t
        sh = []
        for i in range(10, 12):
            sh.append('v_fma_f32 %s, %s, %s, -%s' % (vr(s[i]), vr(s[i]), sr(s_c), vr(v_mx)))
        for i in range(4):
            sh.append(dpp8(PXH + i, PX + i))
        for i in range(8, 12):
            sh.append('v_exp_f32 %s, %s' % (vr(s[i]), vr(s[i])))
        for i in range(2):
            sh.append('v_cvt_pk_bf16_f32 %s, %s, %s' % (vr(PM + i), vr(s[8 + 2 * i]), vr(s[9 + 2 * i])))
        sh.append('s_waitcnt vmcnt(VMCNT)')
        sh.append('v_max3_u32 %s, %s, %s, %s' % (vr(t[0]), vr(VMR), vr(VMR + 1), vr(VMR + 2)))
        sh.append('v_max3_u32 %s, %s, %s, %s' % (vr(t[1]), vr(VMR + 3), vr(VMR + 4), vr(VMR + 5)))
        sh.append(dpp8(PMH, PM))
        sh.append(dpp8(PMH + 1, PM + 1))
        sh.append('v_max3_u32 %s, %s, %s, %s' % (vr(t[0]), vr(t[0]), vr(VMR + 6), vr(VMR + 7)))
        sh.append('v_max_u32 %s, %s, %s' % (vr(t[0]), vr(t[0]), vr(t[1])))
        sh.append('v_permlane32_swap_b32 %s, %s' % (vr(PMH), vr(PM)))
        sh.append('v_permlane32_swap_b32 %s, %s' % (vr(PMH + 1), vr(PM + 1)))
        sh.append('v_cmp_eq_u32 vcc, -1, %s' % vr(t[0]))
        mf = ['v_mfma_f32_16x16x32_bf16 %s, %s, %s, 0' % (vr(LS, 4), vr(v_ones, 4), vr(PX, 4))]
        for a in range(4):
            mf.append('v_mfma_f32_16x16x32_bf16 %s, %s, %s, 0' % (vr(O + 4 * a, 4), vr(VXR + 4 * a, 4), vr(PX, 4)))
        for a in range(4):
            mf.append('v_mfma_f32_16x16x32_bf16 %s, %s, %s, %s' % (vr(O + 4 * a, 4), vr(VXR + 4 * (a + 4), 4), vr(PXH, 4), vr(O + 4 * a, 4)))
        per = [3, 3, 2, 2, 2, 2, 3, 3, 1]
        npf = pf[1]
        for i, m in enumerate(mf):
            A(m)
            for _ in range(per[i]):
                if sh:
                    x = sh.pop(0)
                    if 'VMCNT' in x:
                        A(x.replace('VMCNT', str(nvm[0])))
                        x = sh.pop(0)
                    A(x)
            if npf and i in (1, 3, 6, 8):
                emit(side.pop(0))
                npf -= 1
        assert not sh
        Lv_ok, Lv_slow = A.uid('vok'), A.uid('vslow')
        A('s_cbranch_vccnz ' + Lv_slow)
        A.label(Lv_ok)

        def tailV():
            A.label(Lv_slow)
            poll(2, vload, VMR, False, 'V')
            A('s_branch ' + Lv_ok)
        ool.append(tailV)
        A('v_mfma_f32_16x16x16_bf16 %s, %s, %s, %s' % (vr(LS, 4), vr(v_ones, 2), vr(PM, 2), vr(LS, 4)))
        pm = ['v_mfma_f32_16x16x16_bf16 %s, %s, %s, %s' % (vr(O + 4 * a, 4), vr(VMR + 2 * a, 2), vr(PM, 2), vr(O + 4 * a, 4)) for a in range(4)]

        def nrm(a):
            g = []
            for r in range(0, 4, 2):
                g.append('v_pk_mul_f32 %s, %s, %s op_sel_hi:[1,0]' % (vr(O + 4 * a + r, 2), vr(O + 4 * a + r, 2), vr(v_l, 2)))
            g.append('v_cvt_pk_bf16_f32 %s, %s, %s' % (vr(XY + a), vr(O + 4 * a), vr(O + 4 * a + 1)))
            g.append('v_cvt_pk_bf16_f32 %s, %s, %s' % (vr(XY + 4 + a), vr(O + 4 * a + 2), vr(O + 4 * a + 3)))
            return g
        for i in range(4):
            A(pm[i])
            A('v_mov_b32 %s, 0' % vr(acc1 + i))
        for _ in range(pf[2]):
            emit(side.pop(0))
        A('v_rcp_f32 %s, %s' % (vr(v_l), vr(LS)))
        A('v_mov_b32_dpp %s, %s row_shr:8 row_mask:0xf bank_mask:0xc' % (vr(v_l), vr(v_l)))
        npf = pf[3]
        for a in range(4):
            for x in nrm(a):
                A(x)
            if npf and a < 3:
                emit(side.pop(0))
                npf -= 1
        assert npf == 0
        A('ds_write_b128 %s, %s' % (vr(va_ow), vr(XY, 4)))
        A('ds_write_b128 %s, %s offset:128' % (vr(va_ow), vr(XY + 4, 4)))
        A('s_waitcnt lgkmcnt(0)')
        stamp(4)
        A('s_barrier')
        for k in range(8):
            A('ds_read_b128 %s, %s offset:%d' % (vr(G + 4 * k, 4), vr(va_or), k * 1024))
        hk = {'w': 'buffer_load_dword %s, %s, %s, %s offen sc1' % (vr(v_junk), vr(va_warm), sr(SRD_WS, 4), sr(s_kx)),
              'c': 'buffer_store_dwordx4 %s, %s, %s, %s offen sc1' % (vr(RB, 4), vr(va_cp), sr(SRD_WS, 4), sr(s_outp)),
              'r': 'buffer_store_dwordx4 %s, %s, %s, %s offen sc1' % (vr(v_m1, 4), vr(va_pw2), sr(SRD_WS, 4), sr(s_ps2))}
        if not red:
            for c_ in HK_D:
                A(hk[c_])
        if worker:
            L_kvok, L_kvslow = A.uid('kvok'), A.uid('kvslow')
            A('v_cmp_gt_u32 vcc, 32, %s' % vr(v_kvf))
            A('s_cbranch_vccnz ' + L_kvslow)
            A.label(L_kvok)

            def kvtail():
                A.label(L_kvslow)
                kv_wait('s')
                A('s_branch ' + L_kvok)
            ool.append(kvtail)
            L_nokv, L_dokv = A.uid('nokv'), A.uid('dokv')
            assert 'w' not in HK_D
            A('s_add_u32 %s, %s, 3' % (sr(s_t0), sr(s_step)))
            A('s_bitcmp1_b64 %s, %s' % (sr(s_kvm, 2), sr(s_step)))
            A('s_cbranch_scc1 ' + L_dokv)
            A.label(L_nokv)

            def kvld():
                A.label(L_dokv)
                A('s_lshr_b32 %s, %s, 3' % (sr(s_kvo), sr(s_t0)))
                A('s_min_u32 %s, %s, 7' % (sr(s_kvo), sr(s_kvo)))
                A('s_lshl_b32 %s, %s, 9' % (sr(s_kvo), sr(s_kvo)))
                A('s_add_u32 %s, %s, %d' % (sr(s_kvo), sr(s_kvo), DBG_KV * 128))
                A('buffer_load_dword %s, %s, %s, %s offen sc1' % (vr(v_kvf), vr(v_zero), sr(SRD_WS, 4), sr(s_kvo)))
                A('s_branch ' + L_nokv)
            ool.append(kvld)
        for k in range(8):
            A('s_waitcnt lgkmcnt(%d)' % (7 - k))
            A(smf(acc1, G + 4 * k, W3 + 8 * k))
        halfadd(acc1, v_t[0], v_t[1])
        A('v_cvt_pk_bf16_f32 %s, %s, %s' % (vr(acc2), vr(v_t[0]), vr(v_t[1])))
        A('v_pk_min_u16 %s, %s, %s' % (vr(acc2), vr(acc2), sr(s_fffe)))
        A('buffer_store_dword %s, %s, %s, %s offen sc1' % (vr(acc2), vr(va_pd), sr(SRD_WS, 4), sr(s_ps)))
        stamp(5)
        if red:
            for _ in range(pf[4]):
                emit(side.pop(0))
            assert not side, len(side)
            if DELAY_E:
                A('s_sleep %d' % DELAY_E)

            def okE(k):
                A('v_mfma_f32_16x16x32_bf16 %s, %s, %s, %s' % (vr(LS, 4), vr(PR + 4 * k, 4), vr(v_sel, 4), '0' if k == 0 else vr(LS, 4)))
            ldE = lambda k: 'buffer_load_dwordx4 %s, %s, %s, %s offen offset:%d sc1' % (vr(PR + 4 * k, 4), vr(va_pr), sr(SRD_WS, 4), sr(s_ps), k * 1024)
            poll(2, ldE, PR, False, 'E', okE)
            stamp(6)
            advance()
            A('v_cvt_pk_bf16_f32 %s, %s, %s' % (vr(v_t[2]), vr(LS), vr(LS + 1)))
            A('v_cvt_pk_bf16_f32 %s, %s, %s' % (vr(v_t[3]), vr(LS + 2), vr(LS + 3)))
            A('v_cndmask_b32 %s, %s, %s, %s' % (vr(v_t[2]), vr(v_t[2]), vr(v_t[3]), sr(s_hf, 2)))
            A('v_pk_min_u16 %s, %s, %s' % (vr(v_t[2]), vr(v_t[2]), sr(s_fffe)))
            A('buffer_store_dword %s, %s, %s, %s offen%s' % (vr(v_t[2]), vr(va_mems), sr(SRD_WS, 4), sr(s_slot), ISC))
            if RED_SLEEP:
                A('s_sleep %d' % RED_SLEEP)
        else:
            for c_ in HK_P:
                A(hk[c_])
            if worker:
                A('v_mov_b32 %s, %s' % (vr(v_junk2), sr(s_step)))
                A('buffer_store_dword %s, %s, %s, 0 offen sc1' % (vr(v_junk2), vr(va_prog), sr(SRD_WS, 4)))
            A('buffer_store_dwordx4 %s, %s, %s, %s offen%s' % (vr(v_m1, 4), vr(va_rb), sr(SRD_WS, 4), sr(s_slot2), ISC))
            A('buffer_store_dword %s, %s, %s, %s offen%s' % (vr(v_m1), vr(va_mems), sr(SRD_WS, 4), sr(s_slot2), ISC))
            for _ in range(pf[4]):
                emit(side.pop(0))
            assert not side, len(side)
            for c_ in HK_L:
                A(hk[c_])
            stamp(6)
            advance()
            if NOE_SLEEP:
                A('s_sleep %d' % NOE_SLEEP)
        A('s_branch ' + L_st)

    A('s_cmp_lg_u32 %s, 0' % sr(s_red))
    A('s_cbranch_scc1 ' + name + '_firstn')
    loop(True)
    loop(False)
    while ool:
        ool.pop(0)()
    A.label(L_last)
    A('s_waitcnt vmcnt(0)')
    A('s_barrier')
    A('s_lshr_b32 %s, %s, 1' % (sr(s_t0), sr(s_w)))
    A('s_lshl_b32 %s, %s, 10' % (sr(s_t1), sr(s_t0)))
    A('v_xor_b32 %s, %s, %s' % (vr(va_rb), sr(s_t1), vr(va_rb)))
    A('v_xor_b32 %s, %s, %s' % (vr(va_cp), sr(s_t1), vr(va_cp)))
    A('s_cmp_eq_u32 %s, 0' % sr(s_t0))
    A('s_cselect_b32 %s, %s, %s' % (sr(s_t0), sr(s_slot), sr(s_slotp)))
    A('s_cselect_b32 %s, %s, %s' % (sr(s_t1), sr(s_out), sr(s_outp)))
    A('buffer_load_dwordx4 %s, %s, %s, %s offen sc1' % (vr(RB, 4), vr(va_rb), sr(SRD_WS, 4), sr(s_t0)))
    A('s_waitcnt vmcnt(0)')
    A('buffer_store_dwordx4 %s, %s, %s, %s offen sc1' % (vr(RB, 4), vr(va_cp), sr(SRD_WS, 4), sr(s_t1)))
    if stamps:
        A('s_waitcnt lgkmcnt(0)')
        A('v_lshlrev_b32 %s, 4, %s' % (vr(v_t[0]), vr(v_lane)))
        A('s_lshl_b32 %s, %s, 12' % (sr(s_t2), sr(s_w)))
        A('s_add_u32 %s, %s, 65536' % (sr(s_t2), sr(s_t2)))
        A('v_add_u32 %s, %s, %s' % (vr(v_t[1]), sr(s_t2), vr(v_t[0])))
        for k in range(4):
            A('ds_read_b128 %s, %s offset:%d' % (vr(F + 4 * k, 4), vr(v_t[1]), k * 1024))
        A('s_waitcnt lgkmcnt(0)')
        for k in range(4):
            A('buffer_store_dwordx4 %s, %s, %s, %s offen offset:%d' % (vr(F + 4 * k, 4), vr(v_t[0]), sr(SRD_WS, 4), sr(s_stamp), k * 1024))
    if worker:
        A('s_waitcnt vmcnt(0) lgkmcnt(0)')
        A('s_barrier')
        A('s_cmp_lg_u32 %s, 0' % sr(s_w))
        A('s_cbranch_scc1 ' + L_work)
        A('s_lshr_b32 %s, %s, 1' % (sr(s_t0), sr(s_x)))
        A('s_lshl_b32 %s, %s, 7' % (sr(s_t0), sr(s_t0)))
        A('s_add_u32 %s, %s, 0x%x' % (sr(s_t0), sr(s_t0), CTR + DBG_FIN * 128))
        A('v_mov_b32 %s, %s' % (vr(v_t[0]), sr(s_t0)))
        A('v_mov_b32 %s, 1' % vr(v_t[1]))
        A('s_mov_b64 exec, 1')
        A('buffer_atomic_add %s, %s, %s, 0 offen sc1' % (vr(v_t[1]), vr(v_t[0]), sr(SRD_WS, 4)))
        A('s_mov_b64 exec, -1')
        A('s_branch ' + L_work)
    A.label(L_exit)
    A('s_endpgm')
    hi = S.hi
    if worker:
        A.label(L_work)
        hi = max(hi, worker(A, name))
    return dict(vgpr=512, accum=256, sgpr=hi)
```

```python
from asmlib import *
from layout import *
from gemm import Gemm
from kernels import mk_srd, load_ptrs, out_direct, out_direct32
import attn
import os, json

LDS_JOB = 131072 + 64
LIM = 200000
WTOUCH = os.environ.get('WTOUCH', '')
WT_ODD = int(os.environ.get('WT_ODD', '1'))
WT2 = int(os.environ.get('WT2', '1'))
WST = int(os.environ.get('WST', '0'))

SEGS = [('skv', 64, 0), ('bkv', 48, 2), ('q', 16, 0), ('aattn', 8, 0), ('bq', 24, 0), ('aout', 8, 0), ('q', 16, 4),
        ('aattn', 4, 2), ('battn', 32, 0), ('aattn', 4, 3), ('aout', 8, 2), ('wot', 32, 0), ('aattn', 4, 4),
        ('bout', 32, 0), ('aout', 4, 4), ('aattn', 4, 5), ('aattn1', 4, 24), ('aout', 4, 5)]
NE = int(os.environ.get('NE', '3'))
for _mp in range(24, 32 - NE):
    SEGS += [('aattn1', 4, _mp + 1), ('aoutd', 8, _mp)]
for _mp in range(32 - NE, 32):
    if _mp < 31:
        SEGS += [('aattn1', 4, _mp + 1)]
    if _mp == 29:
        SEGS += [('aattn1', 4, 31)]
    SEGS += [('aoute', 16, 2 * _mp)]
_seen = set()
SEGS = [x for x in SEGS if not (x in _seen or _seen.add(x))]
if os.environ.get('SEGS'):
    SEGS = [tuple(x) for x in json.loads(os.environ['SEGS'])]


def seg_bounds():
    o, a = [], 0
    for k, n, p in SEGS:
        o.append((a, a + n, '%s%d' % (k, p)))
        a += n
    return o


def gen_worker(A, name):
    S = Regs('s', 4, 100)
    P = load_ptrs(A, S)
    SRD_WS = S.alloc(4, 4)
    SRD_D = S.alloc(4, 4)
    SRD_O = S.alloc(4, 4)
    s_w, s_q, s_qn, s_job, s_cfg, s0, s1, s2_, s3, s_base, s_tbs, s_or, s_ctr, s_inc, s_mt, s_nt, s_it, s_k, s_p = [S.alloc() for _ in range(19)]
    s_pp = S.alloc(2, 2)
    s_tm = S.alloc(2, 2)
    s_sa = S.alloc()

    def wstamp(k):
        if not WST:
            return
        A('s_memrealtime %s' % sr(s_tm, 2))
        A('s_waitcnt lgkmcnt(0)')
        A('v_mov_b32 v4, %s' % sr(s_tm))
        A('v_mov_b32 v5, %s' % sr(s_sa))
        A('s_mov_b64 exec, 1')
        A('buffer_store_dword v4, v5, %s, 0 offen offset:%d' % (sr(SRD_WS, 4), 4 * k))
        if k in (2, 3):
            A('s_memtime %s' % sr(s_tm, 2))
            A('s_waitcnt lgkmcnt(0)')
            A('v_mov_b32 v4, %s' % sr(s_tm))
            A('buffer_store_dword v4, v5, %s, 0 offen offset:%d' % (sr(SRD_WS, 4), 4 * (k + 4)))
        A('s_mov_b64 exec, -1')
    v_lane, v_l16, v_off, v_a, v_b, v_sh = 1, 2, 3, 4, 5, 6
    s_init = S.alloc()
    s_wo = S.alloc()
    smark = S.mark()
    V4 = Regs('v', 8, 256)
    G4 = Gemm(A, S, V4, 4, 4)
    hi = S.mark()
    S.release(smark)
    V2 = Regs('v', 8, 256)
    G2 = Gemm(A, S, V2, 2, 2, xsc=' sc1', nst=4)
    assert (G2.SRD_X, G2.SRD_W, G2.s_xo, G2.s_n) == (G4.SRD_X, G4.SRD_W, G4.s_xo, G4.s_n)
    G = G4
    L_next, L_done = name + '_wnext', name + '_wdone'

    A('v_and_b32 %s, 63, v0' % vr(v_lane))
    A('v_lshrrev_b32 %s, 6, v0' % vr(v_l16))
    A('v_readfirstlane_b32 %s, %s' % (sr(s_w), vr(v_l16)))
    A('v_lshlrev_b32 %s, 4, %s' % (vr(v_l16), vr(v_lane)))
    A('v_and_b32 %s, 31, %s' % (vr(v_off), vr(v_lane)))
    A('v_lshlrev_b32 %s, 12, %s' % (vr(v_off), vr(v_off)))
    A('v_lshrrev_b32 %s, 5, %s' % (vr(v_a), vr(v_lane)))
    A('v_lshl_add_u32 %s, %s, 4, %s' % (vr(v_off), vr(v_a), vr(v_off)))
    A('s_getreg_b32 %s, hwreg(HW_REG_XCC_ID)' % sr(s_q))
    A('s_and_b32 %s, %s, 3' % (sr(s_q), sr(s_q)))
    A('s_mov_b32 %s, 0' % sr(s_qn))
    A('s_mov_b32 %s, 0' % sr(s_cfg))
    A('s_mov_b32 %s, %d' % (sr(s_ctr), DBG_WT))
    A('s_waitcnt lgkmcnt(0)')
    mk_srd(A, SRD_WS, P['ws'], WS_BYTES)
    mk_srd(A, SRD_D, P['dbg'], 256)
    mk_srd(A, SRD_O, P['out'], 2048 * 2048 * 2)

    A('v_and_b32 %s, 3, %s' % (vr(v_sh), vr(v_lane)))
    A('v_lshlrev_b32 %s, 7, %s' % (vr(v_sh), vr(v_sh)))
    A('v_add_u32 %s, 0x%x, %s' % (vr(v_sh), CTR, vr(v_sh)))
    A('s_mov_b32 %s, 0' % sr(s_init))

    def wait_init():
        Lw, Ld = A.uid('iw'), A.uid('id')
        A('s_cmp_lg_u32 %s, 0' % sr(s_init))
        A('s_cbranch_scc1 ' + Ld)
        A('s_mov_b32 %s, 1' % sr(s_init))
        A('v_mov_b32 %s, %d' % (vr(v_a), DBG_INIT))
        A('s_mov_b32 %s, 0' % sr(s3))
        A.label(Lw)
        A('buffer_load_dword %s, %s, %s, 0 offen sc1' % (vr(v_b), vr(v_a), sr(SRD_D, 4)))
        A('s_add_u32 %s, %s, 1' % (sr(s3), sr(s3)))
        A('s_waitcnt vmcnt(0)')
        A('v_cmp_ne_u32 vcc, 0, %s' % vr(v_b))
        A('s_cbranch_vccnz ' + Ld)
        A('s_sleep 4')
        A('s_cmp_lt_u32 %s, %d' % (sr(s3), LIM))
        A('s_cbranch_scc1 ' + Lw)
        A.label(Ld)
    L_have = A.uid('havejob')
    A('s_mov_b32 %s, s3' % sr(s_job))
    SRD_T = S.alloc(4, 4)
    hi = max(hi, S.mark())

    def touch(ptrs_sizes, s_id, per_wave_log2):
        A('s_lshl_b32 %s, %s, %d' % (sr(s0), sr(s_id), per_wave_log2))
        A('v_lshlrev_b32 %s, 7, %s' % (vr(v_a), vr(v_lane)))
        for p, nbytes in ptrs_sizes:
            mk_srd(A, SRD_T, P[p], nbytes)
            for i in range(1 << (per_wave_log2 - 13)):
                A('s_add_u32 %s, %s, %d' % (sr(s1), sr(s0), i * 8192))
                A('buffer_load_dword v7, %s, %s, %s offen' % (vr(v_a), sr(SRD_T, 4), sr(s1)))
            A('s_nop 4')
    A('s_cmp_ge_u32 s3, 32')
    A('s_cbranch_scc1 ' + L_next)
    if WTOUCH:
        if WT_ODD:
            A('s_bitcmp0_b32 s3, 0')
            A('s_cbranch_scc1 ' + L_have)
            A('s_lshr_b32 %s, s3, 1' % sr(s2_))
            A('s_lshl_b32 %s, %s, 4' % (sr(s0), sr(s_q)))
        else:
            A('s_mov_b32 %s, s3' % sr(s2_))
            A('s_lshl_b32 %s, %s, 5' % (sr(s0), sr(s_q)))
        A('s_add_u32 %s, %s, %s' % (sr(s2_), sr(s2_), sr(s0)))
        A('s_lshl_b32 %s, %s, 2' % (sr(s2_), sr(s2_)))
        A('s_add_u32 %s, %s, %s' % (sr(s2_), sr(s2_), sr(s_w)))
        touch([(k, 8 << 20) for k in WTOUCH.split(',')], s2_, 15 if WT_ODD else 14)
    A('s_branch ' + L_have)
    A.label(L_next)
    Lnf = A.uid('nofetch')
    A('s_cmp_lg_u32 %s, 0' % sr(s_w))
    A('s_cbranch_scc1 ' + Lnf)
    wait_init()
    A('s_lshl_b32 %s, %s, 7' % (sr(s0), sr(s_q)))
    A('s_add_u32 %s, %s, 0x%x' % (sr(s0), sr(s0), CTR + DBG_Q * 128))
    A('v_mov_b32 %s, %s' % (vr(v_a), sr(s0)))
    A('v_mov_b32 %s, 1' % vr(v_b))
    A('s_mov_b64 exec, 1')
    A('buffer_atomic_add %s, %s, %s, 0 offen sc0 sc1' % (vr(v_b), vr(v_a), sr(SRD_WS, 4)))
    A('s_waitcnt vmcnt(0)')
    A('v_mov_b32 %s, %d' % (vr(v_a), LDS_JOB))
    A('ds_write_b32 %s, %s' % (vr(v_a), vr(v_b)))
    A('s_waitcnt lgkmcnt(0)')
    A('s_mov_b64 exec, -1')
    A.label(Lnf)
    A('s_barrier')
    A('v_mov_b32 %s, %d' % (vr(v_a), LDS_JOB))
    A('ds_read_b32 %s, %s' % (vr(v_b), vr(v_a)))
    A('s_waitcnt lgkmcnt(0)')
    A('v_readfirstlane_b32 %s, %s' % (sr(s_job), vr(v_b)))
    A('s_barrier')
    A('s_add_u32 %s, %s, 32' % (sr(s_job), sr(s_job)))
    A.label(L_have)
    if WST:
        A('s_min_u32 %s, %s, 511' % (sr(s0), sr(s_job)))
        A('s_lshl_b32 %s, %s, 9' % (sr(s_sa), sr(s_q)))
        A('s_add_u32 %s, %s, %s' % (sr(s_sa), sr(s_sa), sr(s0)))
        A('s_lshl_b32 %s, %s, 2' % (sr(s_sa), sr(s_sa)))
        A('s_add_u32 %s, %s, %s' % (sr(s_sa), sr(s_sa), sr(s_w)))
        A('s_lshl_b32 %s, %s, 5' % (sr(s_sa), sr(s_sa)))
        A('s_add_u32 %s, %s, 0x%x' % (sr(s_sa), sr(s_sa), STAMP + 0x400000))
        wstamp(0)
    kinds = ('skv', 'bkv', 'bq', 'q', 'battn', 'bout', 'wot', 'aattn', 'aout', 'aattn1', 'aoutd', 'aoute', 'big', 'bigA', 'small', 'outc')
    L = {k: A.uid('job' + k) for k in kinds}
    for k, n, p in SEGS:
        A('s_mov_b32 %s, %d' % (sr(s_p), p))
        A('s_cmp_lt_u32 %s, %d' % (sr(s_job), n))
        A('s_cbranch_scc1 ' + L[k])
        A('s_sub_u32 %s, %s, %d' % (sr(s_job), sr(s_job), n))
    QLEN = sum(n for _, n, _ in SEGS)
    L_peek = name + '_wpeek'
    A.label(L_peek)
    A('s_mov_b32 %s, %d' % (sr(s0), DBG_Q * 128))
    A('buffer_load_dword %s, %s, %s, %s offen sc1' % (vr(v_b), vr(v_sh), sr(SRD_WS, 4), sr(s0)))
    A('v_lshlrev_b32 %s, 2, %s' % (vr(v_a), vr(v_lane)))
    A('v_add_u32 %s, %d, %s' % (vr(v_a), LDS_JOB + 64, vr(v_a)))
    A('s_waitcnt vmcnt(0)')
    Lp1 = A.uid('pk')
    A('s_cmp_lg_u32 %s, 0' % sr(s_w))
    A('s_cbranch_scc1 ' + Lp1)
    A('ds_write_b32 %s, %s' % (vr(v_a), vr(v_b)))
    A('s_waitcnt lgkmcnt(0)')
    A.label(Lp1)
    A('s_barrier')
    A('ds_read_b32 %s, %s' % (vr(v_b), vr(v_a)))
    A('s_waitcnt lgkmcnt(0)')
    A('s_barrier')
    for k in range(4):
        A('v_readlane_b32 %s, %s, %d' % (sr(s0), vr(v_b), k))
        A('s_mov_b32 %s, %d' % (sr(s_q), k))
        A('s_cmp_lt_u32 %s, %d' % (sr(s0), QLEN - 32))
        A('s_cbranch_scc1 ' + L_next)
    A('s_endpgm')

    def wait_ctr(s_off, thr, s_shift=None, bits=8, slp=12):
        Lw, Ld = A.uid('dw'), A.uid('dd')
        A('s_cmp_lg_u32 %s, 0' % sr(s_w))
        A('s_cbranch_scc1 ' + Ld)
        A('s_lshl_b32 %s, %s, 7' % (sr(s_wo), sr(s_off) if isinstance(s_off, int) else s_off))
        A('s_mov_b32 %s, 0' % sr(s3))
        A.label(Lw)
        A('buffer_load_dword %s, %s, %s, %s offen sc1' % (vr(v_b), vr(v_sh), sr(SRD_WS, 4), sr(s_wo)))
        A('s_add_u32 %s, %s, 1' % (sr(s3), sr(s3)))
        A('s_waitcnt vmcnt(0)')
        if s_shift is not None:
            A('v_bfe_u32 %s, %s, %s, %d' % (vr(v_b), vr(v_b), sr(s_shift), bits))
        A('v_cmp_gt_u32 vcc, %s, %s' % (thr, vr(v_b)))
        A('s_cbranch_vccz ' + Ld)
        A('s_sleep %d' % slp)
        A('s_cmp_lt_u32 %s, %d' % (sr(s3), LIM))
        A('s_cbranch_scc1 ' + Lw)
        A.label(Ld)
        A('s_barrier')

    def cfg(Gx, cid, *args):
        Ls = A.uid('cfg')
        A('s_cmp_eq_u32 %s, %d' % (sr(s_cfg), cid))
        A('s_cbranch_scc1 ' + Ls)
        Gx.setup(v_lane, s_w, (s0, s1), *args)
        A('s_mov_b32 %s, %d' % (sr(s_cfg), cid))
        A.label(Ls)

    def blk_base(mbk, nbk):
        A('s_lshr_b32 %s, %s, 1' % (sr(s0), sr(s_w)))
        A('s_lshl_b32 %s, %s, 1' % (sr(s1), sr(s_mt)))
        A('s_add_u32 %s, %s, %s' % (sr(s0), sr(s0), sr(s1)))
        A('s_mul_i32 %s, %s, %d' % (sr(s0), sr(s0), mbk))
        A('s_mul_i32 %s, %s, %s' % (sr(s0), sr(s0), sr(s_tbs)))
        A('s_add_u32 %s, %s, %s' % (sr(s_base), sr(s_base), sr(s0)))
        A('s_and_b32 %s, %s, 1' % (sr(s0), sr(s_w)))
        A('s_lshl_b32 %s, %s, 1' % (sr(s1), sr(s_nt)))
        A('s_add_u32 %s, %s, %s' % (sr(s0), sr(s0), sr(s1)))
        A('s_mul_i32 %s, %s, %d' % (sr(s0), sr(s0), nbk * 2048))
        A('s_add_u32 %s, %s, %s' % (sr(s_base), sr(s_base), sr(s0)))

    def sel_kv(thr):
        A('s_cmp_ge_u32 %s, %d' % (sr(s_nt), thr))
        A('s_cselect_b32 %s, 1, 0' % sr(s_or))
        A('s_cselect_b64 %s, %s, %s' % (sr(s_pp, 2), sr(P['A_Wv'], 2), sr(P['A_Wk'], 2)))
        A('s_mov_b32 %s, 0x%x' % (sr(s_base), KX))
        A('s_cselect_b32 %s, 0x%x, %s' % (sr(s_base), VX, sr(s_base)))
        A('s_and_b32 %s, %s, %d' % (sr(s_nt), sr(s_nt), thr - 1))

    def ctr(base, s_idx, inc):
        A('s_lshl_b32 %s, %s, 2' % (sr(s_ctr), sr(s_idx)))
        A('s_add_u32 %s, %s, %d' % (sr(s_ctr), sr(s_ctr), base))
        A('s_mov_b32 %s, %d' % (sr(s_inc), inc))

    def nt_q(mask_bits_shift, mask):
        A('s_lshr_b32 %s, %s, %d' % (sr(s_nt), sr(s_job), mask_bits_shift))
        A('s_and_b32 %s, %s, %d' % (sr(s_nt), sr(s_nt), mask))
        A('s_lshl_b32 %s, %s, 2' % (sr(s_nt), sr(s_nt)))
        A('s_add_u32 %s, %s, %s' % (sr(s_nt), sr(s_nt), sr(s_q)))

    A.label(L['skv'])
    A('s_lshr_b32 %s, %s, 5' % (sr(s0), sr(s_job)))
    ctr(DBG_KV, s0, 1)
    A('s_lshl_b32 %s, %s, 1' % (sr(s0), sr(s0)))
    A('s_and_b32 %s, %s, 1' % (sr(s_mt), sr(s_job)))
    A('s_add_u32 %s, %s, %s' % (sr(s_mt), sr(s_mt), sr(s0)))
    nt_q(1, 15)
    sel_kv(32)
    mk_srd(A, G.SRD_W, s_pp, 1024 * 4096 * 2)
    mk_srd(A, G.SRD_X, P['A_x'], 2048 * 1024 * 2)
    A('s_lshl_b32 %s, %s, 18' % (sr(G.s_xo), sr(s_mt)))
    A('s_mov_b32 %s, 128' % sr(G.s_xs))
    A('s_lshl_b32 %s, %s, 8' % (sr(G.s_wo), sr(s_nt)))
    A('s_mov_b32 %s, %d' % (sr(G.s_ws), 64 * 8192))
    A('s_mov_b32 %s, %d' % (sr(s_tbs), 128 * 2048))
    A('s_mov_b32 %s, 3' % sr(G.s_n))
    blk_base(2, 2)
    cfg(G2, 3, 'nat', 2048, 8192)
    if WT2:
        Lnt = A.uid('nt2')
        A('s_cmp_lt_u32 %s, 32' % sr(s_job))
        A('s_cbranch_scc1 ' + Lnt)
        A('s_sub_u32 %s, %s, 32' % (sr(s2_), sr(s_job)))
        A('s_lshl_b32 %s, %s, 5' % (sr(s0), sr(s_q)))
        A('s_add_u32 %s, %s, %s' % (sr(s2_), sr(s2_), sr(s0)))
        A('s_lshl_b32 %s, %s, 2' % (sr(s2_), sr(s2_)))
        A('s_add_u32 %s, %s, %s' % (sr(s2_), sr(s2_), sr(s_w)))
        touch([('A_x', 4 << 20), ('B_x', 4 << 20), ('B_wo', 2 << 20)], s2_, 13)
        touch([('B_wqkv', 6 << 20)], s2_, 14)
        A.label(Lnt)
    A('s_mov_b32 %s, 0' % sr(s_k))
    A('s_branch ' + L['small'])

    A.label(L['aout'])
    A('s_lshr_b32 %s, %s, 2' % (sr(s_mt), sr(s_job)))
    A('s_add_u32 %s, %s, %s' % (sr(s_mt), sr(s_mt), sr(s_p)))
    A('s_lshl_b32 %s, %s, 1' % (sr(s_mt), sr(s_mt)))
    A('s_lshr_b32 %s, %s, 1' % (sr(s0), sr(s_q)))
    A('s_add_u32 %s, %s, %s' % (sr(s_mt), sr(s_mt), sr(s0)))
    A('s_and_b32 %s, %s, 1' % (sr(s_nt), sr(s_q)))
    A('s_lshl_b32 %s, %s, 2' % (sr(s_nt), sr(s_nt)))
    A('s_and_b32 %s, %s, 3' % (sr(s0), sr(s_job)))
    A('s_add_u32 %s, %s, %s' % (sr(s_nt), sr(s_nt), sr(s0)))
    mk_srd(A, G.SRD_W, P['A_Wo'], 4096 * 1024 * 2)
    A('s_mul_i32 %s, %s, %d' % (sr(G.s_xo), sr(s_mt), 4 * 128 * 2048))
    A('s_add_u32 %s, %s, 0x%x' % (sr(G.s_xo), sr(G.s_xo), OA))
    A('s_mov_b32 %s, 15' % sr(G.s_n))
    A('s_mov_b32 %s, 0' % sr(s_base))
    A('s_mov_b32 %s, %d' % (sr(s2_), DBG_AA))
    cfg(G2, 5, 'blk', 128 * 2048, 2048)
    A('s_branch ' + L['outc'])
    A.label(L['bout'])
    A('s_lshr_b32 %s, %s, 1' % (sr(s_mt), sr(s_job)))
    nt_q(0, 1)
    mk_srd(A, G.SRD_W, P['B_wo'], 1024 * 1024 * 2)
    A('s_mul_i32 %s, %s, %d' % (sr(G.s_xo), sr(s_mt), 4 * 32 * 2048))
    A('s_add_u32 %s, %s, 0x%x' % (sr(G.s_xo), sr(G.s_xo), OB))
    A('s_mov_b32 %s, 3' % sr(G.s_n))
    A('s_mov_b32 %s, 2048' % sr(s_base))
    A('s_mov_b32 %s, %d' % (sr(s2_), DBG_BA))
    cfg(G2, 4, 'blk', 32 * 2048, 2048)
    A.label(L['outc'])
    mk_srd(A, G.SRD_X, P['ws'], WS_BYTES)
    A('s_mov_b32 %s, 4096' % sr(G.s_xs))
    A('s_lshl_b32 %s, %s, 8' % (sr(G.s_wo), sr(s_nt)))
    A('s_mov_b32 %s, %d' % (sr(G.s_ws), 64 * 2048))
    A('s_mov_b32 %s, 0' % sr(s_or))
    A('s_mov_b32 %s, 0' % sr(s_inc))
    A('s_lshr_b32 %s, %s, 1' % (sr(s0), sr(s_w)))
    A('s_lshl_b32 %s, %s, 18' % (sr(s0), sr(s0)))
    A('s_add_u32 %s, %s, %s' % (sr(s_base), sr(s_base), sr(s0)))
    A('s_lshl_b32 %s, %s, 19' % (sr(s0), sr(s_mt)))
    A('s_add_u32 %s, %s, %s' % (sr(s_base), sr(s_base), sr(s0)))
    A('s_and_b32 %s, %s, 1' % (sr(s0), sr(s_w)))
    A('s_lshl_b32 %s, %s, 7' % (sr(s0), sr(s0)))
    A('s_add_u32 %s, %s, %s' % (sr(s_base), sr(s_base), sr(s0)))
    A('s_add_u32 %s, %s, %s' % (sr(s_base), sr(s_base), sr(G.s_wo)))
    A('s_lshr_b32 %s, %s, 1' % (sr(s0), sr(s_mt)))
    A('s_lshl_b32 %s, %s, 2' % (sr(s0), sr(s0)))
    A('s_add_u32 %s, %s, %s' % (sr(s0), sr(s0), sr(s2_)))
    wait_ctr(s0, 4)
    A('s_mov_b32 %s, 1' % sr(s_k))
    A.label(L['small'])
    wstamp(1)
    G2.prologue()
    wstamp(2)
    LN, LE, LO = A.uid('sN'), A.uid('sE'), A.uid('sO')
    A('s_cmp_eq_u32 %s, 1' % sr(s_or))
    A('s_cbranch_scc1 ' + LN)
    G2.mainloop('T', 'st')
    A('s_nop 15')
    A('s_cmp_eq_u32 %s, 1' % sr(s_k))
    A('s_cbranch_scc1 ' + LO)
    A('s_branch ' + LE)
    A.label(LN)
    G2.mainloop('N', 'sn')
    A.label(LE)
    wstamp(3)
    G2.epi_blk(SRD_WS, v_l16, s_base, s_tbs, s0, ' sc1')
    A('s_branch ' + L_done)
    A.label(LO)
    wstamp(3)
    G2.epi_out(SRD_O, v_off, s_base)
    A('s_branch ' + L_done)

    A.label(L['wot'])
    nt_q(0, 1)
    A('s_lshr_b32 %s, %s, 1' % (sr(s_mt), sr(s_job)))
    mk_srd(A, G.SRD_W, P['A_Wo'], 4096 * 1024 * 2)
    cfg(G2, 5, 'blk', 128 * 2048, 2048)
    A('s_lshl_b32 %s, %s, 8' % (sr(G.s_wo), sr(s_nt)))
    A('s_lshl_b32 %s, %s, 19' % (sr(s0), sr(s_mt)))
    A('s_add_u32 %s, %s, %s' % (sr(G.s_wo), sr(G.s_wo), sr(s0)))
    A('s_mov_b32 %s, 1' % sr(s_inc))
    A('s_mov_b32 %s, %d' % (sr(s_ctr), DBG_WT))
    wstamp(1)
    for st in range(4):
        for g in G2.dma_ops(st)[G2.nX:]:
            for t in g:
                A(t)
        A('s_add_u32 %s, %s, %d' % (sr(G.s_wo), sr(G.s_wo), 64 * 2048))
    A('s_and_b32 %s, %s, 1' % (sr(s0), sr(s_w)))
    A('s_lshl_b32 %s, %s, 1' % (sr(s0), sr(s0)))
    A('s_lshl_b32 %s, %s, 2' % (sr(s1), sr(s_nt)))
    A('s_add_u32 %s, %s, %s' % (sr(s0), sr(s0), sr(s1)))
    A('s_lshl_b32 %s, %s, 18' % (sr(s_base), sr(s0)))
    A('s_lshl_b32 %s, %s, 14' % (sr(s0), sr(s_mt)))
    A('s_add_u32 %s, %s, %s' % (sr(s_base), sr(s_base), sr(s0)))
    A('s_lshr_b32 %s, %s, 1' % (sr(s0), sr(s_w)))
    A('s_lshl_b32 %s, %s, 13' % (sr(s1), sr(s0)))
    A('s_add_u32 %s, %s, %s' % (sr(s_base), sr(s_base), sr(s1)))
    A('s_add_u32 %s, %s, 0x%x' % (sr(s_base), sr(s_base), WOT))
    A('s_mul_i32 %s, %s, %d' % (sr(s0), sr(s0), 2 * G2.STG))
    T = V2.alloc(64, 4)
    ta = [V2.alloc() for _ in range(4)]
    for i in range(2):
        for q in range(2):
            A('v_add_u32 %s, %s, %s' % (vr(ta[2 * i + q]), sr(s0), vr(G2.rw[0][i][q])))
    A('s_waitcnt vmcnt(0)')
    A('s_barrier')
    for i in range(2):
        for st in range(2):
            for ks in range(4):
                d = T + 4 * ((i * 2 + st) * 4 + ks)
                for q in range(2):
                    A('ds_read_b64_tr_b16 %s, %s offset:%d' % (vr(d + 2 * q, 2), vr(ta[2 * i + q]), st * G2.STG + ks * 16 * G2.wrow))
            A('s_waitcnt lgkmcnt(0)')
    for i in range(2):
        for st in range(2):
            A('s_add_u32 %s, %s, %d' % (sr(s0), sr(s_base), i * 262144 + st * 4096))
            for ks in range(4):
                d = T + 4 * ((i * 2 + st) * 4 + ks)
                A('buffer_store_dwordx4 %s, %s, %s, %s offen offset:%d' % (vr(d, 4), vr(v_l16), sr(SRD_WS, 4), sr(s0), ks * 1024) + ' sc1')
    A('s_branch ' + L_done)

    A.label(L['bkv'])
    A('s_lshr_b32 %s, %s, 3' % (sr(s_mt), sr(s_job)))
    A('s_add_u32 %s, %s, %s' % (sr(s_mt), sr(s_mt), sr(s_p)))
    nt_q(0, 7)
    sel_kv(16)
    ctr(DBG_KV, s_mt, 4)
    A('s_branch ' + L['bigA'])
    A.label(L['q'])
    A('s_lshr_b32 %s, %s, 2' % (sr(s_mt), sr(s_job)))
    A('s_add_u32 %s, %s, %s' % (sr(s_mt), sr(s_mt), sr(s_p)))
    nt_q(0, 3)
    A('s_mov_b64 %s, %s' % (sr(s_pp, 2), sr(P['A_Wq'], 2)))
    A('s_mov_b32 %s, 0x%x' % (sr(s_base), QX))
    A('s_mov_b32 %s, 0' % sr(s_or))
    ctr(DBG_QR, s_mt, 1)
    A.label(L['bigA'])
    mk_srd(A, G.SRD_W, s_pp, 1024 * 4096 * 2)
    mk_srd(A, G.SRD_X, P['A_x'], 2048 * 1024 * 2)
    A('s_lshl_b32 %s, %s, 9' % (sr(G.s_wo), sr(s_nt)))
    A('s_mov_b32 %s, %d' % (sr(G.s_ws), 64 * 8192))
    A('s_mov_b32 %s, %d' % (sr(s_tbs), 128 * 2048))
    cfg(G4, 1, 'nat', 2048, 8192)
    A('s_branch ' + L['big'])
    A.label(L['bq'])
    A('s_mul_i32 %s, %s, 43' % (sr(s_mt), sr(s_job)))
    A('s_lshr_b32 %s, %s, 7' % (sr(s_mt), sr(s_mt)))
    A('s_mul_i32 %s, %s, 3' % (sr(s0), sr(s_mt)))
    A('s_sub_u32 %s, %s, %s' % (sr(s0), sr(s_job), sr(s0)))
    A('s_cmp_eq_u32 %s, 2' % sr(s0))
    A('s_cselect_b32 %s, 1, 0' % sr(s_or))
    A('s_lshl_b32 %s, %s, 22' % (sr(s_base), sr(s0)))
    A('s_add_u32 %s, %s, 0x%x' % (sr(s_base), sr(s_base), QB))
    A('s_lshl_b32 %s, %s, 2' % (sr(s0), sr(s0)))
    A('s_add_u32 %s, %s, %s' % (sr(s0), sr(s0), sr(s_q)))
    A('s_lshl_b32 %s, %s, 9' % (sr(G.s_wo), sr(s0)))
    A('s_mov_b32 %s, %s' % (sr(s_nt), sr(s_q)))
    mk_srd(A, G.SRD_W, P['B_wqkv'], 1024 * 3072 * 2)
    mk_srd(A, G.SRD_X, P['B_x'], 2048 * 1024 * 2)
    A('s_mov_b32 %s, %d' % (sr(G.s_ws), 64 * 6144))
    A('s_mov_b32 %s, %d' % (sr(s_tbs), 32 * 2048))
    ctr(DBG_BQ, s_mt, 1)
    cfg(G4, 2, 'nat', 2048, 6144)
    A.label(L['big'])
    A('s_lshl_b32 %s, %s, 19' % (sr(G.s_xo), sr(s_mt)))
    A('s_mov_b32 %s, 128' % sr(G.s_xs))
    A('s_mov_b32 %s, 7' % sr(G.s_n))
    blk_base(4, 4)
    wstamp(1)
    G4.prologue()
    wstamp(2)
    LN, LE = A.uid('bN'), A.uid('bE')
    A('s_cmp_eq_u32 %s, 1' % sr(s_or))
    A('s_cbranch_scc1 ' + LN)
    G4.mainloop('T', 'bt')
    A('s_nop 15')
    A('s_branch ' + LE)
    A.label(LN)
    G4.mainloop('N', 'bn')
    A.label(LE)
    wstamp(3)
    G4.epi_blk(SRD_WS, v_l16, s_base, s_tbs, s0, ' sc1')
    A('s_branch ' + L_done)

    def attn_items():
        A('s_mov_b32 %s, 0' % sr(s_cfg))
        A('s_and_b32 %s, %s, 3' % (sr(s0), sr(s_job)))
        A('s_lshl_b32 %s, %s, 2' % (sr(s1), sr(s_q)))
        A('s_add_u32 %s, %s, %s' % (sr(s0), sr(s0), sr(s1)))
        A('s_lshl_b32 %s, %s, 1' % (sr(s0), sr(s0)))
        A('s_and_b32 %s, %s, 1' % (sr(s1), sr(s_w)))
        A('s_add_u32 %s, %s, %s' % (sr(s_it), sr(s0), sr(s1)))
        A('s_lshl_b32 %s, %s, 8' % (sr(s0), sr(s_mt)))
        A('s_add_u32 %s, %s, %s' % (sr(s_it), sr(s_it), sr(s0)))
        A('s_lshr_b32 %s, %s, 1' % (sr(s0), sr(s_w)))
        A('s_lshl_b32 %s, %s, 7' % (sr(s0), sr(s0)))
        A('s_add_u32 %s, %s, %s' % (sr(s_it), sr(s_it), sr(s0)))
        A('s_mov_b32 %s, 4' % sr(s_k))
        wstamp(1)

    def attn_loop(fn, tag):
        Lb = A.uid(tag)
        A.label(Lb)
        fn(A, SRD_WS, s_it, (s0, s1, s2_, s3), v_lane, v_l16, 8, ld=' sc1', stf=' sc1')
        A('s_add_u32 %s, %s, 32' % (sr(s_it), sr(s_it)))
        A('s_sub_u32 %s, %s, 1' % (sr(s_k), sr(s_k)))
        A('s_cmp_lg_u32 %s, 0' % sr(s_k))
        A('s_waitcnt vmcnt(0)')
        A('s_cbranch_scc1 ' + Lb)

    A.label(L['aattn'])
    A('s_lshr_b32 %s, %s, 2' % (sr(s_mt), sr(s_job)))
    A('s_add_u32 %s, %s, %s' % (sr(s_mt), sr(s_mt), sr(s_p)))
    A('s_lshl_b32 %s, %s, 2' % (sr(s_ctr), sr(s_mt)))
    A('s_add_u32 %s, %s, %d' % (sr(s0), sr(s_ctr), DBG_QR))
    wait_ctr(s0, 4)
    A('s_lshl_b32 %s, %s, 3' % (sr(s1), sr(s_mt)))
    A('s_add_u32 %s, %s, 10' % (sr(s1), sr(s1)))
    wait_ctr(str(DBG_PROG), sr(s1))
    ctr(DBG_AA, s_mt, 1)
    attn_items()
    attn.attn_a_n(A, SRD_WS, s_it, (s0, s1, s2_, s3), v_lane, v_l16, 8, 4, ld=' sc1', stf=' sc1')
    A('s_branch ' + L_done)

    A.label(L['aattn1'])
    A('s_lshr_b32 %s, %s, 2' % (sr(s_mt), sr(s_p)))
    A('s_lshl_b32 %s, %s, 2' % (sr(s_ctr), sr(s_mt)))
    A('s_add_u32 %s, %s, %d' % (sr(s0), sr(s_ctr), DBG_QR))
    wait_ctr(s0, 4)
    A('s_lshl_b32 %s, %s, 1' % (sr(s_it), sr(s_p)))
    A('s_lshr_b32 %s, %s, 1' % (sr(s0), sr(s_job)))
    A('s_add_u32 %s, %s, %s' % (sr(s_it), sr(s_it), sr(s0)))
    A('s_add_u32 %s, %s, 3' % (sr(s_tbs), sr(s_it)))
    A('s_mov_b32 %s, %d' % (sr(s_base), DBG_PROG))
    A('s_cmp_gt_u32 %s, 59' % sr(s_it))
    A('s_cselect_b32 %s, 32, %s' % (sr(s_tbs), sr(s_tbs)))
    A('s_cselect_b32 %s, %d, %s' % (sr(s_base), DBG_FIN, sr(s_base)))
    A('s_add_u32 %s, %s, %d' % (sr(s0), sr(s_ctr), DBG_KV))
    wait_ctr(s0, 32)
    A('s_add_u32 %s, %s, %d' % (sr(s_ctr), sr(s_ctr), DBG_AA))
    A('s_and_b32 %s, %s, 7' % (sr(s0), sr(s_it)))
    A('s_lshl_b32 %s, %s, 2' % (sr(s0), sr(s0)))
    A('s_lshl_b32 %s, 1, %s' % (sr(s_inc), sr(s0)))
    A('s_lshl_b32 %s, %s, 5' % (sr(s_it), sr(s_it)))
    A('s_lshl_b32 %s, %s, 3' % (sr(s0), sr(s_q)))
    A('s_add_u32 %s, %s, %s' % (sr(s_it), sr(s_it), sr(s0)))
    A('s_and_b32 %s, %s, 1' % (sr(s0), sr(s_job)))
    A('s_lshl_b32 %s, %s, 2' % (sr(s0), sr(s0)))
    A('s_add_u32 %s, %s, %s' % (sr(s_it), sr(s_it), sr(s0)))
    A('s_add_u32 %s, %s, %s' % (sr(s_it), sr(s_it), sr(s_w)))
    A('s_mov_b32 %s, 0' % sr(s_cfg))

    def pw1():
        wait_ctr(s_base, sr(s_tbs), slp=4)
        wstamp(1)
    attn.attn_a(A, SRD_WS, s_it, (s0, s1, s2_, s3), v_lane, v_l16, 8, ld=' sc1', stf=' sc1', pre_wait=pw1)
    A('s_branch ' + L_done)

    A.label(L['aoute'])
    wait_ctr(str(DBG_WT), 32)
    A('s_lshr_b32 %s, %s, 3' % (sr(s_mt), sr(s_job)))
    A('s_add_u32 %s, %s, %s' % (sr(s_mt), sr(s_mt), sr(s_p)))
    A('s_lshl_b32 %s, %s, 3' % (sr(s_nt), sr(s_q)))
    A('s_and_b32 %s, %s, 7' % (sr(s0), sr(s_job)))
    A('s_add_u32 %s, %s, %s' % (sr(s_nt), sr(s_nt), sr(s0)))
    A('s_mov_b32 %s, 0' % sr(s_inc))
    A('s_mov_b32 %s, 0' % sr(s_cfg))

    def pw2():
        A('s_lshr_b32 %s, %s, 3' % (sr(s0), sr(s_mt)))
        A('s_lshl_b32 %s, %s, 2' % (sr(s0), sr(s0)))
        A('s_add_u32 %s, %s, %d' % (sr(s0), sr(s0), DBG_AA))
        A('s_and_b32 %s, %s, 7' % (sr(s1), sr(s_mt)))
        A('s_lshl_b32 %s, %s, 2' % (sr(s1), sr(s1)))
        wait_ctr(s0, 2, s1, bits=4, slp=4)
        wstamp(1)
    out_direct32(A, SRD_WS, SRD_O, s_w, s_mt, s_nt, (s_base, s_tbs, s0), v_lane, v_l16, 8, ' sc1', pw2)
    A('s_branch ' + L_done)

    A.label(L['aoutd'])
    wait_ctr(str(DBG_WT), 32)
    A('s_lshr_b32 %s, %s, 2' % (sr(s0), sr(s_p)))
    A('s_lshl_b32 %s, %s, 2' % (sr(s0), sr(s0)))
    A('s_add_u32 %s, %s, %d' % (sr(s0), sr(s0), DBG_AA))
    A('s_and_b32 %s, %s, 3' % (sr(s1), sr(s_p)))
    A('s_lshl_b32 %s, %s, 3' % (sr(s1), sr(s1)))
    wait_ctr(s0, '0x22', s1)
    A('s_lshl_b32 %s, %s, 1' % (sr(s_mt), sr(s_p)))
    A('s_lshl_b32 %s, %s, 3' % (sr(s_nt), sr(s_q)))
    A('s_add_u32 %s, %s, %s' % (sr(s_nt), sr(s_nt), sr(s_job)))
    A('s_mov_b32 %s, 0' % sr(s_inc))
    A('s_mov_b32 %s, 0' % sr(s_cfg))
    wstamp(1)
    out_direct(A, SRD_WS, SRD_O, s_w, s_mt, s_nt, (s_base, s_tbs, s_it, s0, s1), v_lane, v_l16, v_off, 8, ld=' sc1')
    A('s_branch ' + L_done)

    A.label(L['battn'])
    A('s_lshr_b32 %s, %s, 2' % (sr(s_mt), sr(s_job)))
    A('s_lshl_b32 %s, %s, 2' % (sr(s_ctr), sr(s_mt)))
    A('s_add_u32 %s, %s, %d' % (sr(s0), sr(s_ctr), DBG_BQ))
    wait_ctr(s0, 3)
    A('s_add_u32 %s, %s, %d' % (sr(s0), sr(s_ctr), DBG_BQ - 4))
    A('s_max_u32 %s, %s, %d' % (sr(s0), sr(s0), DBG_BQ))
    wait_ctr(s0, 3)
    ctr(DBG_BA, s_mt, 1)
    attn_items()
    attn.attn_b4(A, SRD_WS, s_it, (s0, s1, s2_, s3), v_lane, v_l16, 8, ld=' sc1', stf=' sc1')

    A.label(L_done)
    wstamp(4)
    A('s_waitcnt vmcnt(0)')
    wstamp(5)
    A('s_barrier')
    A('s_cmp_lg_u32 %s, 0' % sr(s_w))
    A('s_cbranch_scc1 ' + L_next)
    A('s_cmp_eq_u32 %s, 0' % sr(s_inc))
    A('s_cbranch_scc1 ' + L_next)
    wait_init()
    A('s_add_u32 %s, %s, %s' % (sr(s0), sr(s_ctr), sr(s_q)))
    A('s_lshl_b32 %s, %s, 7' % (sr(s0), sr(s0)))
    A('s_add_u32 %s, %s, 0x%x' % (sr(s0), sr(s0), CTR))
    A('v_mov_b32 %s, %s' % (vr(v_a), sr(s0)))
    A('v_mov_b32 %s, %s' % (vr(v_b), sr(s_inc)))
    A('s_mov_b64 exec, 1')
    A('buffer_atomic_add %s, %s, %s, 0 offen sc1' % (vr(v_b), vr(v_a), sr(SRD_WS, 4)))
    Lk0 = A.uid('k0')
    A('s_cmp_lg_u32 %s, %d' % (sr(s_ctr), DBG_KV))
    A('s_cbranch_scc1 ' + Lk0)
    A('s_cmp_lg_u32 %s, 0' % sr(s_mt))
    A('s_cbranch_scc1 ' + Lk0)
    A('v_add_u32 %s, %d, %s' % (vr(v_a), (DBG_KV0 - DBG_KV) * 128, vr(v_a)))
    A('v_mov_b32 %s, 2' % vr(v_b))
    A('buffer_atomic_add %s, %s, %s, 0 offen sc1' % (vr(v_b), vr(v_a), sr(SRD_WS, 4)))
    A.label(Lk0)
    A('s_mov_b64 exec, -1')
    A('s_branch ' + L_next)
    return hi
```

```python
from asmlib import *
from layout import *
from gemm import Gemm
from kernels import mk_srd, load_ptrs, out_direct, out_direct32
import attn
import os, json

LDS_JOB = 131072 + 64
LIM = 200000
WTOUCH = os.environ.get('WTOUCH', '')
WT_ODD = int(os.environ.get('WT_ODD', '1'))
WT2 = int(os.environ.get('WT2', '1'))
WST = int(os.environ.get('WST', '0'))

BL = int(os.environ.get('BL', '24'))
SEGS = [('skv', 64, 0), ('bkv', 48, 2), ('q', 16, 0), ('bq', 24, 0), ('aattn', 8, 0), ('aout', 8, 0), ('q', 16, 4),
        ('aattn', 8, 2), ('battn', 32, 0), ('aout', 8, 2), ('wot', 32, 0), ('aattn', 4, 4),
        ('bout', 32 - BL, 0), ('aout', 4, 4), ('aattn', 4, 5), ('aattn1', 4, 24), ('aout', 4, 5)]
NE = int(os.environ.get('NE', '3'))
for _mp in range(24, 32 - NE):
    SEGS += [('aattn1', 4, _mp + 1), ('aoutd', 8, _mp)]
for _mp in range(32 - NE, 32):
    if _mp < 31:
        SEGS += [('aattn1', 4, _mp + 1)]
    if _mp == 29:
        SEGS += [('aattn1', 4, 31)]
    SEGS += [('aoute', 16, 2 * _mp)]
SEGS += [('bout', BL, 32 - BL)]
SEGS = [x for x in SEGS if x[1]]
_seen = set()
SEGS = [x for x in SEGS if not (x in _seen or _seen.add(x))]
if os.environ.get('SEGS'):
    SEGS = [tuple(x) for x in json.loads(os.environ['SEGS'])]


def seg_bounds():
    o, a = [], 0
    for k, n, p in SEGS:
        o.append((a, a + n, '%s%d' % (k, p)))
        a += n
    return o


def gen_worker(A, name):
    S = Regs('s', 4, 100)
    P = load_ptrs(A, S)
    SRD_WS = S.alloc(4, 4)
    SRD_D = S.alloc(4, 4)
    SRD_O = S.alloc(4, 4)
    s_w, s_q, s_qn, s_job, s_cfg, s0, s1, s2_, s3, s_base, s_tbs, s_or, s_ctr, s_inc, s_mt, s_nt, s_it, s_k, s_p = [S.alloc() for _ in range(19)]
    s_pp = S.alloc(2, 2)
    s_tm = S.alloc(2, 2)
    s_sa = S.alloc()

    def wstamp(k):
        if not WST:
            return
        A('s_memrealtime %s' % sr(s_tm, 2))
        A('s_waitcnt lgkmcnt(0)')
        A('v_mov_b32 v4, %s' % sr(s_tm))
        A('v_mov_b32 v5, %s' % sr(s_sa))
        A('s_mov_b64 exec, 1')
        A('buffer_store_dword v4, v5, %s, 0 offen offset:%d' % (sr(SRD_WS, 4), 4 * k))
        if k in (2, 3):
            A('s_memtime %s' % sr(s_tm, 2))
            A('s_waitcnt lgkmcnt(0)')
            A('v_mov_b32 v4, %s' % sr(s_tm))
            A('buffer_store_dword v4, v5, %s, 0 offen offset:%d' % (sr(SRD_WS, 4), 4 * (k + 4)))
        A('s_mov_b64 exec, -1')
    v_lane, v_l16, v_off, v_a, v_b, v_sh = 1, 2, 3, 4, 5, 6
    s_init = S.alloc()
    s_wo = S.alloc()
    smark = S.mark()
    V4 = Regs('v', 8, 256)
    G4 = Gemm(A, S, V4, 4, 4)
    hi = S.mark()
    S.release(smark)
    V2 = Regs('v', 8, 256)
    G2 = Gemm(A, S, V2, 2, 2, xsc=' sc1', nst=4)
    assert (G2.SRD_X, G2.SRD_W, G2.s_xo, G2.s_n) == (G4.SRD_X, G4.SRD_W, G4.s_xo, G4.s_n)
    G = G4
    L_next, L_done = name + '_wnext', name + '_wdone'

    A('v_and_b32 %s, 63, v0' % vr(v_lane))
    A('v_lshrrev_b32 %s, 6, v0' % vr(v_l16))
    A('v_readfirstlane_b32 %s, %s' % (sr(s_w), vr(v_l16)))
    A('v_lshlrev_b32 %s, 4, %s' % (vr(v_l16), vr(v_lane)))
    A('v_and_b32 %s, 31, %s' % (vr(v_off), vr(v_lane)))
    A('v_lshlrev_b32 %s, 12, %s' % (vr(v_off), vr(v_off)))
    A('v_lshrrev_b32 %s, 5, %s' % (vr(v_a), vr(v_lane)))
    A('v_lshl_add_u32 %s, %s, 4, %s' % (vr(v_off), vr(v_a), vr(v_off)))
    A('s_getreg_b32 %s, hwreg(HW_REG_XCC_ID)' % sr(s_q))
    A('s_and_b32 %s, %s, 3' % (sr(s_q), sr(s_q)))
    A('s_mov_b32 %s, 0' % sr(s_qn))
    A('s_mov_b32 %s, 0' % sr(s_cfg))
    A('s_mov_b32 %s, %d' % (sr(s_ctr), DBG_WT))
    A('s_waitcnt lgkmcnt(0)')
    mk_srd(A, SRD_WS, P['ws'], WS_BYTES)
    mk_srd(A, SRD_D, P['dbg'], 256)
    mk_srd(A, SRD_O, P['out'], 2048 * 2048 * 2)

    A('v_and_b32 %s, 3, %s' % (vr(v_sh), vr(v_lane)))
    A('v_lshlrev_b32 %s, 7, %s' % (vr(v_sh), vr(v_sh)))
    A('v_add_u32 %s, 0x%x, %s' % (vr(v_sh), CTR, vr(v_sh)))
    A('s_mov_b32 %s, 0' % sr(s_init))

    def wait_init():
        Lw, Ld = A.uid('iw'), A.uid('id')
        A('s_cmp_lg_u32 %s, 0' % sr(s_init))
        A('s_cbranch_scc1 ' + Ld)
        A('s_mov_b32 %s, 1' % sr(s_init))
        A('v_mov_b32 %s, %d' % (vr(v_a), DBG_INIT))
        A('s_mov_b32 %s, 0' % sr(s3))
        A.label(Lw)
        A('buffer_load_dword %s, %s, %s, 0 offen sc1' % (vr(v_b), vr(v_a), sr(SRD_D, 4)))
        A('s_add_u32 %s, %s, 1' % (sr(s3), sr(s3)))
        A('s_waitcnt vmcnt(0)')
        A('v_cmp_ne_u32 vcc, 0, %s' % vr(v_b))
        A('s_cbranch_vccnz ' + Ld)
        A('s_sleep 4')
        A('s_cmp_lt_u32 %s, %d' % (sr(s3), LIM))
        A('s_cbranch_scc1 ' + Lw)
        A.label(Ld)
    L_have = A.uid('havejob')
    A('s_mov_b32 %s, s3' % sr(s_job))
    SRD_T = S.alloc(4, 4)
    hi = max(hi, S.mark())

    def touch(ptrs_sizes, s_id, per_wave_log2):
        A('s_lshl_b32 %s, %s, %d' % (sr(s0), sr(s_id), per_wave_log2))
        A('v_lshlrev_b32 %s, 7, %s' % (vr(v_a), vr(v_lane)))
        for p, nbytes in ptrs_sizes:
            mk_srd(A, SRD_T, P[p], nbytes)
            for i in range(1 << (per_wave_log2 - 13)):
                A('s_add_u32 %s, %s, %d' % (sr(s1), sr(s0), i * 8192))
                A('buffer_load_dword v7, %s, %s, %s offen' % (vr(v_a), sr(SRD_T, 4), sr(s1)))
            A('s_nop 4')
    A('s_cmp_ge_u32 s3, 32')
    A('s_cbranch_scc1 ' + L_next)
    if WTOUCH:
        if WT_ODD:
            A('s_bitcmp0_b32 s3, 0')
            A('s_cbranch_scc1 ' + L_have)
            A('s_lshr_b32 %s, s3, 1' % sr(s2_))
            A('s_lshl_b32 %s, %s, 4' % (sr(s0), sr(s_q)))
        else:
            A('s_mov_b32 %s, s3' % sr(s2_))
            A('s_lshl_b32 %s, %s, 5' % (sr(s0), sr(s_q)))
        A('s_add_u32 %s, %s, %s' % (sr(s2_), sr(s2_), sr(s0)))
        A('s_lshl_b32 %s, %s, 2' % (sr(s2_), sr(s2_)))
        A('s_add_u32 %s, %s, %s' % (sr(s2_), sr(s2_), sr(s_w)))
        touch([(k, 8 << 20) for k in WTOUCH.split(',')], s2_, 15 if WT_ODD else 14)
    A('s_branch ' + L_have)
    A.label(L_next)
    Lnf = A.uid('nofetch')
    A('s_cmp_lg_u32 %s, 0' % sr(s_w))
    A('s_cbranch_scc1 ' + Lnf)
    wait_init()
    A('s_lshl_b32 %s, %s, 7' % (sr(s0), sr(s_q)))
    A('s_add_u32 %s, %s, 0x%x' % (sr(s0), sr(s0), CTR + DBG_Q * 128))
    A('v_mov_b32 %s, %s' % (vr(v_a), sr(s0)))
    A('v_mov_b32 %s, 1' % vr(v_b))
    A('s_mov_b64 exec, 1')
    A('buffer_atomic_add %s, %s, %s, 0 offen sc0 sc1' % (vr(v_b), vr(v_a), sr(SRD_WS, 4)))
    A('s_waitcnt vmcnt(0)')
    A('v_mov_b32 %s, %d' % (vr(v_a), LDS_JOB))
    A('ds_write_b32 %s, %s' % (vr(v_a), vr(v_b)))
    A('s_waitcnt lgkmcnt(0)')
    A('s_mov_b64 exec, -1')
    A.label(Lnf)
    A('s_barrier')
    A('v_mov_b32 %s, %d' % (vr(v_a), LDS_JOB))
    A('ds_read_b32 %s, %s' % (vr(v_b), vr(v_a)))
    A('s_waitcnt lgkmcnt(0)')
    A('v_readfirstlane_b32 %s, %s' % (sr(s_job), vr(v_b)))
    A('s_barrier')
    A('s_add_u32 %s, %s, 32' % (sr(s_job), sr(s_job)))
    A.label(L_have)
    if WST:
        A('s_min_u32 %s, %s, 511' % (sr(s0), sr(s_job)))
        A('s_lshl_b32 %s, %s, 9' % (sr(s_sa), sr(s_q)))
        A('s_add_u32 %s, %s, %s' % (sr(s_sa), sr(s_sa), sr(s0)))
        A('s_lshl_b32 %s, %s, 2' % (sr(s_sa), sr(s_sa)))
        A('s_add_u32 %s, %s, %s' % (sr(s_sa), sr(s_sa), sr(s_w)))
        A('s_lshl_b32 %s, %s, 5' % (sr(s_sa), sr(s_sa)))
        A('s_add_u32 %s, %s, 0x%x' % (sr(s_sa), sr(s_sa), STAMP + 0x400000))
        wstamp(0)
    kinds = ('skv', 'bkv', 'bq', 'q', 'battn', 'bout', 'wot', 'aattn', 'aout', 'aattn1', 'aoutd', 'aoute', 'big', 'bigA', 'small', 'outc')
    L = {k: A.uid('job' + k) for k in kinds}
    for k, n, p in SEGS:
        A('s_mov_b32 %s, %d' % (sr(s_p), p))
        A('s_cmp_lt_u32 %s, %d' % (sr(s_job), n))
        A('s_cbranch_scc1 ' + L[k])
        A('s_sub_u32 %s, %s, %d' % (sr(s_job), sr(s_job), n))
    QLEN = sum(n for _, n, _ in SEGS)
    L_peek = name + '_wpeek'
    A.label(L_peek)
    A('s_mov_b32 %s, %d' % (sr(s0), DBG_Q * 128))
    A('buffer_load_dword %s, %s, %s, %s offen sc1' % (vr(v_b), vr(v_sh), sr(SRD_WS, 4), sr(s0)))
    A('v_lshlrev_b32 %s, 2, %s' % (vr(v_a), vr(v_lane)))
    A('v_add_u32 %s, %d, %s' % (vr(v_a), LDS_JOB + 64, vr(v_a)))
    A('s_waitcnt vmcnt(0)')
    Lp1 = A.uid('pk')
    A('s_cmp_lg_u32 %s, 0' % sr(s_w))
    A('s_cbranch_scc1 ' + Lp1)
    A('ds_write_b32 %s, %s' % (vr(v_a), vr(v_b)))
    A('s_waitcnt lgkmcnt(0)')
    A.label(Lp1)
    A('s_barrier')
    A('ds_read_b32 %s, %s' % (vr(v_b), vr(v_a)))
    A('s_waitcnt lgkmcnt(0)')
    A('s_barrier')
    for k in range(4):
        A('v_readlane_b32 %s, %s, %d' % (sr(s0), vr(v_b), k))
        A('s_mov_b32 %s, %d' % (sr(s_q), k))
        A('s_cmp_lt_u32 %s, %d' % (sr(s0), QLEN - 32))
        A('s_cbranch_scc1 ' + L_next)
    A('s_endpgm')

    def wait_ctr(s_off, thr, s_shift=None, bits=8, slp=12):
        Lw, Ld = A.uid('dw'), A.uid('dd')
        A('s_cmp_lg_u32 %s, 0' % sr(s_w))
        A('s_cbranch_scc1 ' + Ld)
        A('s_lshl_b32 %s, %s, 7' % (sr(s_wo), sr(s_off) if isinstance(s_off, int) else s_off))
        A('s_mov_b32 %s, 0' % sr(s3))
        A.label(Lw)
        A('buffer_load_dword %s, %s, %s, %s offen sc1' % (vr(v_b), vr(v_sh), sr(SRD_WS, 4), sr(s_wo)))
        A('s_add_u32 %s, %s, 1' % (sr(s3), sr(s3)))
        A('s_waitcnt vmcnt(0)')
        if s_shift is not None:
            A('v_bfe_u32 %s, %s, %s, %d' % (vr(v_b), vr(v_b), sr(s_shift), bits))
        A('v_cmp_gt_u32 vcc, %s, %s' % (thr, vr(v_b)))
        A('s_cbranch_vccz ' + Ld)
        A('s_sleep %d' % slp)
        A('s_cmp_lt_u32 %s, %d' % (sr(s3), LIM))
        A('s_cbranch_scc1 ' + Lw)
        A.label(Ld)
        A('s_barrier')

    def cfg(Gx, cid, *args):
        Ls = A.uid('cfg')
        A('s_cmp_eq_u32 %s, %d' % (sr(s_cfg), cid))
        A('s_cbranch_scc1 ' + Ls)
        Gx.setup(v_lane, s_w, (s0, s1), *args)
        A('s_mov_b32 %s, %d' % (sr(s_cfg), cid))
        A.label(Ls)

    def blk_base(mbk, nbk):
        A('s_lshr_b32 %s, %s, 1' % (sr(s0), sr(s_w)))
        A('s_lshl_b32 %s, %s, 1' % (sr(s1), sr(s_mt)))
        A('s_add_u32 %s, %s, %s' % (sr(s0), sr(s0), sr(s1)))
        A('s_mul_i32 %s, %s, %d' % (sr(s0), sr(s0), mbk))
        A('s_mul_i32 %s, %s, %s' % (sr(s0), sr(s0), sr(s_tbs)))
        A('s_add_u32 %s, %s, %s' % (sr(s_base), sr(s_base), sr(s0)))
        A('s_and_b32 %s, %s, 1' % (sr(s0), sr(s_w)))
        A('s_lshl_b32 %s, %s, 1' % (sr(s1), sr(s_nt)))
        A('s_add_u32 %s, %s, %s' % (sr(s0), sr(s0), sr(s1)))
        A('s_mul_i32 %s, %s, %d' % (sr(s0), sr(s0), nbk * 2048))
        A('s_add_u32 %s, %s, %s' % (sr(s_base), sr(s_base), sr(s0)))

    def sel_kv(thr):
        A('s_cmp_ge_u32 %s, %d' % (sr(s_nt), thr))
        A('s_cselect_b32 %s, 1, 0' % sr(s_or))
        A('s_cselect_b64 %s, %s, %s' % (sr(s_pp, 2), sr(P['A_Wv'], 2), sr(P['A_Wk'], 2)))
        A('s_mov_b32 %s, 0x%x' % (sr(s_base), KX))
        A('s_cselect_b32 %s, 0x%x, %s' % (sr(s_base), VX, sr(s_base)))
        A('s_and_b32 %s, %s, %d' % (sr(s_nt), sr(s_nt), thr - 1))

    def ctr(base, s_idx, inc):
        A('s_lshl_b32 %s, %s, 2' % (sr(s_ctr), sr(s_idx)))
        A('s_add_u32 %s, %s, %d' % (sr(s_ctr), sr(s_ctr), base))
        A('s_mov_b32 %s, %d' % (sr(s_inc), inc))

    def nt_q(mask_bits_shift, mask):
        A('s_lshr_b32 %s, %s, %d' % (sr(s_nt), sr(s_job), mask_bits_shift))
        A('s_and_b32 %s, %s, %d' % (sr(s_nt), sr(s_nt), mask))
        A('s_lshl_b32 %s, %s, 2' % (sr(s_nt), sr(s_nt)))
        A('s_add_u32 %s, %s, %s' % (sr(s_nt), sr(s_nt), sr(s_q)))

    A.label(L['skv'])
    A('s_lshr_b32 %s, %s, 5' % (sr(s0), sr(s_job)))
    ctr(DBG_KV, s0, 1)
    A('s_lshl_b32 %s, %s, 1' % (sr(s0), sr(s0)))
    A('s_and_b32 %s, %s, 1' % (sr(s_mt), sr(s_job)))
    A('s_add_u32 %s, %s, %s' % (sr(s_mt), sr(s_mt), sr(s0)))
    nt_q(1, 15)
    sel_kv(32)
    mk_srd(A, G.SRD_W, s_pp, 1024 * 4096 * 2)
    mk_srd(A, G.SRD_X, P['A_x'], 2048 * 1024 * 2)
    A('s_lshl_b32 %s, %s, 18' % (sr(G.s_xo), sr(s_mt)))
    A('s_mov_b32 %s, 128' % sr(G.s_xs))
    A('s_lshl_b32 %s, %s, 8' % (sr(G.s_wo), sr(s_nt)))
    A('s_mov_b32 %s, %d' % (sr(G.s_ws), 64 * 8192))
    A('s_mov_b32 %s, %d' % (sr(s_tbs), 128 * 2048))
    A('s_mov_b32 %s, 3' % sr(G.s_n))
    blk_base(2, 2)
    cfg(G2, 3, 'nat', 2048, 8192)
    if WT2:
        Lnt = A.uid('nt2')
        A('s_cmp_lt_u32 %s, 32' % sr(s_job))
        A('s_cbranch_scc1 ' + Lnt)
        A('s_sub_u32 %s, %s, 32' % (sr(s2_), sr(s_job)))
        A('s_lshl_b32 %s, %s, 5' % (sr(s0), sr(s_q)))
        A('s_add_u32 %s, %s, %s' % (sr(s2_), sr(s2_), sr(s0)))
        A('s_lshl_b32 %s, %s, 2' % (sr(s2_), sr(s2_)))
        A('s_add_u32 %s, %s, %s' % (sr(s2_), sr(s2_), sr(s_w)))
        touch([('A_x', 4 << 20), ('B_x', 4 << 20), ('B_wo', 2 << 20)], s2_, 13)
        touch([('B_wqkv', 6 << 20)], s2_, 14)
        A.label(Lnt)
    A('s_mov_b32 %s, 0' % sr(s_k))
    A('s_branch ' + L['small'])

    A.label(L['aout'])
    A('s_lshr_b32 %s, %s, 2' % (sr(s_mt), sr(s_job)))
    A('s_add_u32 %s, %s, %s' % (sr(s_mt), sr(s_mt), sr(s_p)))
    A('s_lshl_b32 %s, %s, 1' % (sr(s_mt), sr(s_mt)))
    A('s_lshr_b32 %s, %s, 1' % (sr(s0), sr(s_q)))
    A('s_add_u32 %s, %s, %s' % (sr(s_mt), sr(s_mt), sr(s0)))
    A('s_and_b32 %s, %s, 1' % (sr(s_nt), sr(s_q)))
    A('s_lshl_b32 %s, %s, 2' % (sr(s_nt), sr(s_nt)))
    A('s_and_b32 %s, %s, 3' % (sr(s0), sr(s_job)))
    A('s_add_u32 %s, %s, %s' % (sr(s_nt), sr(s_nt), sr(s0)))
    mk_srd(A, G.SRD_W, P['A_Wo'], 4096 * 1024 * 2)
    A('s_mul_i32 %s, %s, %d' % (sr(G.s_xo), sr(s_mt), 4 * 128 * 2048))
    A('s_add_u32 %s, %s, 0x%x' % (sr(G.s_xo), sr(G.s_xo), OA))
    A('s_mov_b32 %s, 15' % sr(G.s_n))
    A('s_mov_b32 %s, 0' % sr(s_base))
    A('s_mov_b32 %s, %d' % (sr(s2_), DBG_AA))
    cfg(G2, 5, 'blk', 128 * 2048, 2048)
    A('s_branch ' + L['outc'])
    A.label(L['bout'])
    A('s_add_u32 %s, %s, %s' % (sr(s_job), sr(s_job), sr(s_p)))
    A('s_lshr_b32 %s, %s, 1' % (sr(s_mt), sr(s_job)))
    nt_q(0, 1)
    mk_srd(A, G.SRD_W, P['B_wo'], 1024 * 1024 * 2)
    A('s_mul_i32 %s, %s, %d' % (sr(G.s_xo), sr(s_mt), 4 * 32 * 2048))
    A('s_add_u32 %s, %s, 0x%x' % (sr(G.s_xo), sr(G.s_xo), OB))
    A('s_mov_b32 %s, 3' % sr(G.s_n))
    A('s_mov_b32 %s, 2048' % sr(s_base))
    A('s_mov_b32 %s, %d' % (sr(s2_), DBG_BA))
    cfg(G2, 4, 'blk', 32 * 2048, 2048)
    A.label(L['outc'])
    mk_srd(A, G.SRD_X, P['ws'], WS_BYTES)
    A('s_mov_b32 %s, 4096' % sr(G.s_xs))
    A('s_lshl_b32 %s, %s, 8' % (sr(G.s_wo), sr(s_nt)))
    A('s_mov_b32 %s, %d' % (sr(G.s_ws), 64 * 2048))
    A('s_mov_b32 %s, 0' % sr(s_or))
    A('s_mov_b32 %s, 0' % sr(s_inc))
    A('s_lshr_b32 %s, %s, 1' % (sr(s0), sr(s_w)))
    A('s_lshl_b32 %s, %s, 18' % (sr(s0), sr(s0)))
    A('s_add_u32 %s, %s, %s' % (sr(s_base), sr(s_base), sr(s0)))
    A('s_lshl_b32 %s, %s, 19' % (sr(s0), sr(s_mt)))
    A('s_add_u32 %s, %s, %s' % (sr(s_base), sr(s_base), sr(s0)))
    A('s_and_b32 %s, %s, 1' % (sr(s0), sr(s_w)))
    A('s_lshl_b32 %s, %s, 7' % (sr(s0), sr(s0)))
    A('s_add_u32 %s, %s, %s' % (sr(s_base), sr(s_base), sr(s0)))
    A('s_add_u32 %s, %s, %s' % (sr(s_base), sr(s_base), sr(G.s_wo)))
    A('s_lshr_b32 %s, %s, 1' % (sr(s0), sr(s_mt)))
    A('s_lshl_b32 %s, %s, 2' % (sr(s0), sr(s0)))
    A('s_add_u32 %s, %s, %s' % (sr(s0), sr(s0), sr(s2_)))
    wait_ctr(s0, 4)
    A('s_mov_b32 %s, 1' % sr(s_k))
    A.label(L['small'])
    wstamp(1)
    G2.prologue()
    wstamp(2)
    LN, LE, LO = A.uid('sN'), A.uid('sE'), A.uid('sO')
    A('s_cmp_eq_u32 %s, 1' % sr(s_or))
    A('s_cbranch_scc1 ' + LN)
    G2.mainloop('T', 'st')
    A('s_nop 15')
    A('s_cmp_eq_u32 %s, 1' % sr(s_k))
    A('s_cbranch_scc1 ' + LO)
    A('s_branch ' + LE)
    A.label(LN)
    G2.mainloop('N', 'sn')
    A.label(LE)
    wstamp(3)
    G2.epi_blk(SRD_WS, v_l16, s_base, s_tbs, s0, ' sc1')
    A('s_branch ' + L_done)
    A.label(LO)
    wstamp(3)
    G2.epi_out(SRD_O, v_off, s_base)
    A('s_branch ' + L_done)

    A.label(L['wot'])
    nt_q(0, 1)
    A('s_lshr_b32 %s, %s, 1' % (sr(s_mt), sr(s_job)))
    mk_srd(A, G.SRD_W, P['A_Wo'], 4096 * 1024 * 2)
    cfg(G2, 5, 'blk', 128 * 2048, 2048)
    A('s_lshl_b32 %s, %s, 8' % (sr(G.s_wo), sr(s_nt)))
    A('s_lshl_b32 %s, %s, 19' % (sr(s0), sr(s_mt)))
    A('s_add_u32 %s, %s, %s' % (sr(G.s_wo), sr(G.s_wo), sr(s0)))
    A('s_mov_b32 %s, 1' % sr(s_inc))
    A('s_mov_b32 %s, %d' % (sr(s_ctr), DBG_WT))
    wstamp(1)
    for st in range(4):
        for g in G2.dma_ops(st)[G2.nX:]:
            for t in g:
                A(t)
        A('s_add_u32 %s, %s, %d' % (sr(G.s_wo), sr(G.s_wo), 64 * 2048))
    A('s_and_b32 %s, %s, 1' % (sr(s0), sr(s_w)))
    A('s_lshl_b32 %s, %s, 1' % (sr(s0), sr(s0)))
    A('s_lshl_b32 %s, %s, 2' % (sr(s1), sr(s_nt)))
    A('s_add_u32 %s, %s, %s' % (sr(s0), sr(s0), sr(s1)))
    A('s_lshl_b32 %s, %s, 18' % (sr(s_base), sr(s0)))
    A('s_lshl_b32 %s, %s, 14' % (sr(s0), sr(s_mt)))
    A('s_add_u32 %s, %s, %s' % (sr(s_base), sr(s_base), sr(s0)))
    A('s_lshr_b32 %s, %s, 1' % (sr(s0), sr(s_w)))
    A('s_lshl_b32 %s, %s, 13' % (sr(s1), sr(s0)))
    A('s_add_u32 %s, %s, %s' % (sr(s_base), sr(s_base), sr(s1)))
    A('s_add_u32 %s, %s, 0x%x' % (sr(s_base), sr(s_base), WOT))
    A('s_mul_i32 %s, %s, %d' % (sr(s0), sr(s0), 2 * G2.STG))
    T = V2.alloc(64, 4)
    ta = [V2.alloc() for _ in range(4)]
    for i in range(2):
        for q in range(2):
            A('v_add_u32 %s, %s, %s' % (vr(ta[2 * i + q]), sr(s0), vr(G2.rw[0][i][q])))
    A('s_waitcnt vmcnt(0)')
    A('s_barrier')
    for i in range(2):
        for st in range(2):
            for ks in range(4):
                d = T + 4 * ((i * 2 + st) * 4 + ks)
                for q in range(2):
                    A('ds_read_b64_tr_b16 %s, %s offset:%d' % (vr(d + 2 * q, 2), vr(ta[2 * i + q]), st * G2.STG + ks * 16 * G2.wrow))
            A('s_waitcnt lgkmcnt(0)')
    for i in range(2):
        for st in range(2):
            A('s_add_u32 %s, %s, %d' % (sr(s0), sr(s_base), i * 262144 + st * 4096))
            for ks in range(4):
                d = T + 4 * ((i * 2 + st) * 4 + ks)
                A('buffer_store_dwordx4 %s, %s, %s, %s offen offset:%d' % (vr(d, 4), vr(v_l16), sr(SRD_WS, 4), sr(s0), ks * 1024) + ' sc1')
    A('s_branch ' + L_done)

    A.label(L['bkv'])
    A('s_lshr_b32 %s, %s, 3' % (sr(s_mt), sr(s_job)))
    A('s_add_u32 %s, %s, %s' % (sr(s_mt), sr(s_mt), sr(s_p)))
    nt_q(0, 7)
    sel_kv(16)
    ctr(DBG_KV, s_mt, 4)
    A('s_branch ' + L['bigA'])
    A.label(L['q'])
    A('s_lshr_b32 %s, %s, 2' % (sr(s_mt), sr(s_job)))
    A('s_add_u32 %s, %s, %s' % (sr(s_mt), sr(s_mt), sr(s_p)))
    nt_q(0, 3)
    A('s_mov_b64 %s, %s' % (sr(s_pp, 2), sr(P['A_Wq'], 2)))
    A('s_mov_b32 %s, 0x%x' % (sr(s_base), QX))
    A('s_mov_b32 %s, 0' % sr(s_or))
    ctr(DBG_QR, s_mt, 1)
    A.label(L['bigA'])
    mk_srd(A, G.SRD_W, s_pp, 1024 * 4096 * 2)
    mk_srd(A, G.SRD_X, P['A_x'], 2048 * 1024 * 2)
    A('s_lshl_b32 %s, %s, 9' % (sr(G.s_wo), sr(s_nt)))
    A('s_mov_b32 %s, %d' % (sr(G.s_ws), 64 * 8192))
    A('s_mov_b32 %s, %d' % (sr(s_tbs), 128 * 2048))
    cfg(G4, 1, 'nat', 2048, 8192)
    A('s_branch ' + L['big'])
    A.label(L['bq'])
    A('s_mul_i32 %s, %s, 43' % (sr(s_mt), sr(s_job)))
    A('s_lshr_b32 %s, %s, 7' % (sr(s_mt), sr(s_mt)))
    A('s_mul_i32 %s, %s, 3' % (sr(s0), sr(s_mt)))
    A('s_sub_u32 %s, %s, %s' % (sr(s0), sr(s_job), sr(s0)))
    A('s_cmp_eq_u32 %s, 2' % sr(s0))
    A('s_cselect_b32 %s, 1, 0' % sr(s_or))
    A('s_lshl_b32 %s, %s, 22' % (sr(s_base), sr(s0)))
    A('s_add_u32 %s, %s, 0x%x' % (sr(s_base), sr(s_base), QB))
    A('s_lshl_b32 %s, %s, 2' % (sr(s0), sr(s0)))
    A('s_add_u32 %s, %s, %s' % (sr(s0), sr(s0), sr(s_q)))
    A('s_lshl_b32 %s, %s, 9' % (sr(G.s_wo), sr(s0)))
    A('s_mov_b32 %s, %s' % (sr(s_nt), sr(s_q)))
    mk_srd(A, G.SRD_W, P['B_wqkv'], 1024 * 3072 * 2)
    mk_srd(A, G.SRD_X, P['B_x'], 2048 * 1024 * 2)
    A('s_mov_b32 %s, %d' % (sr(G.s_ws), 64 * 6144))
    A('s_mov_b32 %s, %d' % (sr(s_tbs), 32 * 2048))
    ctr(DBG_BQ, s_mt, 1)
    cfg(G4, 2, 'nat', 2048, 6144)
    A.label(L['big'])
    A('s_lshl_b32 %s, %s, 19' % (sr(G.s_xo), sr(s_mt)))
    A('s_mov_b32 %s, 128' % sr(G.s_xs))
    A('s_mov_b32 %s, 7' % sr(G.s_n))
    blk_base(4, 4)
    wstamp(1)
    G4.prologue()
    wstamp(2)
    LN, LE = A.uid('bN'), A.uid('bE')
    A('s_cmp_eq_u32 %s, 1' % sr(s_or))
    A('s_cbranch_scc1 ' + LN)
    G4.mainloop('T', 'bt')
    A('s_nop 15')
    A('s_branch ' + LE)
    A.label(LN)
    G4.mainloop('N', 'bn')
    A.label(LE)
    wstamp(3)
    G4.epi_blk(SRD_WS, v_l16, s_base, s_tbs, s0, ' sc1')
    A('s_branch ' + L_done)

    def attn_items():
        A('s_mov_b32 %s, 0' % sr(s_cfg))
        A('s_and_b32 %s, %s, 3' % (sr(s0), sr(s_job)))
        A('s_lshl_b32 %s, %s, 2' % (sr(s1), sr(s_q)))
        A('s_add_u32 %s, %s, %s' % (sr(s0), sr(s0), sr(s1)))
        A('s_lshl_b32 %s, %s, 1' % (sr(s0), sr(s0)))
        A('s_and_b32 %s, %s, 1' % (sr(s1), sr(s_w)))
        A('s_add_u32 %s, %s, %s' % (sr(s_it), sr(s0), sr(s1)))
        A('s_lshl_b32 %s, %s, 8' % (sr(s0), sr(s_mt)))
        A('s_add_u32 %s, %s, %s' % (sr(s_it), sr(s_it), sr(s0)))
        A('s_lshr_b32 %s, %s, 1' % (sr(s0), sr(s_w)))
        A('s_lshl_b32 %s, %s, 7' % (sr(s0), sr(s0)))
        A('s_add_u32 %s, %s, %s' % (sr(s_it), sr(s_it), sr(s0)))
        A('s_mov_b32 %s, 4' % sr(s_k))
        wstamp(1)

    def attn_loop(fn, tag):
        Lb = A.uid(tag)
        A.label(Lb)
        fn(A, SRD_WS, s_it, (s0, s1, s2_, s3), v_lane, v_l16, 8, ld=' sc1', stf=' sc1')
        A('s_add_u32 %s, %s, 32' % (sr(s_it), sr(s_it)))
        A('s_sub_u32 %s, %s, 1' % (sr(s_k), sr(s_k)))
        A('s_cmp_lg_u32 %s, 0' % sr(s_k))
        A('s_waitcnt vmcnt(0)')
        A('s_cbranch_scc1 ' + Lb)

    A.label(L['aattn'])
    A('s_lshr_b32 %s, %s, 2' % (sr(s_mt), sr(s_job)))
    A('s_add_u32 %s, %s, %s' % (sr(s_mt), sr(s_mt), sr(s_p)))
    A('s_lshl_b32 %s, %s, 2' % (sr(s_ctr), sr(s_mt)))
    A('s_add_u32 %s, %s, %d' % (sr(s0), sr(s_ctr), DBG_QR))
    wait_ctr(s0, 4)
    A('s_lshl_b32 %s, %s, 3' % (sr(s1), sr(s_mt)))
    A('s_add_u32 %s, %s, 10' % (sr(s1), sr(s1)))
    wait_ctr(str(DBG_PROG), sr(s1))
    ctr(DBG_AA, s_mt, 1)
    attn_items()
    attn.attn_a_n(A, SRD_WS, s_it, (s0, s1, s2_, s3), v_lane, v_l16, 8, 4, ld=' sc1', stf=' sc1')
    A('s_branch ' + L_done)

    A.label(L['aattn1'])
    A('s_lshr_b32 %s, %s, 2' % (sr(s_mt), sr(s_p)))
    A('s_lshl_b32 %s, %s, 2' % (sr(s_ctr), sr(s_mt)))
    A('s_add_u32 %s, %s, %d' % (sr(s0), sr(s_ctr), DBG_QR))
    wait_ctr(s0, 4)
    A('s_lshl_b32 %s, %s, 1' % (sr(s_it), sr(s_p)))
    A('s_lshr_b32 %s, %s, 1' % (sr(s0), sr(s_job)))
    A('s_add_u32 %s, %s, %s' % (sr(s_it), sr(s_it), sr(s0)))
    A('s_add_u32 %s, %s, 3' % (sr(s_tbs), sr(s_it)))
    A('s_mov_b32 %s, %d' % (sr(s_base), DBG_PROG))
    A('s_cmp_gt_u32 %s, 59' % sr(s_it))
    A('s_cselect_b32 %s, 32, %s' % (sr(s_tbs), sr(s_tbs)))
    A('s_cselect_b32 %s, %d, %s' % (sr(s_base), DBG_FIN, sr(s_base)))
    A('s_add_u32 %s, %s, %d' % (sr(s0), sr(s_ctr), DBG_KV))
    wait_ctr(s0, 32)
    A('s_add_u32 %s, %s, %d' % (sr(s_ctr), sr(s_ctr), DBG_AA))
    A('s_and_b32 %s, %s, 7' % (sr(s0), sr(s_it)))
    A('s_lshl_b32 %s, %s, 2' % (sr(s0), sr(s0)))
    A('s_lshl_b32 %s, 1, %s' % (sr(s_inc), sr(s0)))
    A('s_lshl_b32 %s, %s, 5' % (sr(s_it), sr(s_it)))
    A('s_lshl_b32 %s, %s, 3' % (sr(s0), sr(s_q)))
    A('s_add_u32 %s, %s, %s' % (sr(s_it), sr(s_it), sr(s0)))
    A('s_and_b32 %s, %s, 1' % (sr(s0), sr(s_job)))
    A('s_lshl_b32 %s, %s, 2' % (sr(s0), sr(s0)))
    A('s_add_u32 %s, %s, %s' % (sr(s_it), sr(s_it), sr(s0)))
    A('s_add_u32 %s, %s, %s' % (sr(s_it), sr(s_it), sr(s_w)))
    A('s_mov_b32 %s, 0' % sr(s_cfg))

    def pw1():
        wait_ctr(s_base, sr(s_tbs), slp=4)
        wstamp(1)
    attn.attn_a(A, SRD_WS, s_it, (s0, s1, s2_, s3), v_lane, v_l16, 8, ld=' sc1', stf=' sc1', pre_wait=pw1)
    A('s_branch ' + L_done)

    A.label(L['aoute'])
    wait_ctr(str(DBG_WT), 32)
    A('s_lshr_b32 %s, %s, 3' % (sr(s_mt), sr(s_job)))
    A('s_add_u32 %s, %s, %s' % (sr(s_mt), sr(s_mt), sr(s_p)))
    A('s_lshl_b32 %s, %s, 3' % (sr(s_nt), sr(s_q)))
    A('s_and_b32 %s, %s, 7' % (sr(s0), sr(s_job)))
    A('s_add_u32 %s, %s, %s' % (sr(s_nt), sr(s_nt), sr(s0)))
    A('s_mov_b32 %s, 0' % sr(s_inc))
    A('s_mov_b32 %s, 0' % sr(s_cfg))

    def pw2():
        A('s_lshr_b32 %s, %s, 3' % (sr(s0), sr(s_mt)))
        A('s_lshl_b32 %s, %s, 2' % (sr(s0), sr(s0)))
        A('s_add_u32 %s, %s, %d' % (sr(s0), sr(s0), DBG_AA))
        A('s_and_b32 %s, %s, 7' % (sr(s1), sr(s_mt)))
        A('s_lshl_b32 %s, %s, 2' % (sr(s1), sr(s1)))
        wait_ctr(s0, 2, s1, bits=4, slp=4)
        wstamp(1)
    out_direct32(A, SRD_WS, SRD_O, s_w, s_mt, s_nt, (s_base, s_tbs, s0), v_lane, v_l16, 8, ' sc1', pw2)
    A('s_branch ' + L_done)

    A.label(L['aoutd'])
    wait_ctr(str(DBG_WT), 32)
    A('s_lshr_b32 %s, %s, 2' % (sr(s0), sr(s_p)))
    A('s_lshl_b32 %s, %s, 2' % (sr(s0), sr(s0)))
    A('s_add_u32 %s, %s, %d' % (sr(s0), sr(s0), DBG_AA))
    A('s_and_b32 %s, %s, 3' % (sr(s1), sr(s_p)))
    A('s_lshl_b32 %s, %s, 3' % (sr(s1), sr(s1)))
    wait_ctr(s0, '0x22', s1)
    A('s_lshl_b32 %s, %s, 1' % (sr(s_mt), sr(s_p)))
    A('s_lshl_b32 %s, %s, 3' % (sr(s_nt), sr(s_q)))
    A('s_add_u32 %s, %s, %s' % (sr(s_nt), sr(s_nt), sr(s_job)))
    A('s_mov_b32 %s, 0' % sr(s_inc))
    A('s_mov_b32 %s, 0' % sr(s_cfg))
    wstamp(1)
    out_direct(A, SRD_WS, SRD_O, s_w, s_mt, s_nt, (s_base, s_tbs, s_it, s0, s1), v_lane, v_l16, v_off, 8, ld=' sc1')
    A('s_branch ' + L_done)

    A.label(L['battn'])
    A('s_lshr_b32 %s, %s, 2' % (sr(s_mt), sr(s_job)))
    A('s_lshl_b32 %s, %s, 2' % (sr(s_ctr), sr(s_mt)))
    A('s_add_u32 %s, %s, %d' % (sr(s0), sr(s_ctr), DBG_BQ))
    wait_ctr(s0, 3)
    A('s_add_u32 %s, %s, %d' % (sr(s0), sr(s_ctr), DBG_BQ - 4))
    A('s_max_u32 %s, %s, %d' % (sr(s0), sr(s0), DBG_BQ))
    wait_ctr(s0, 3)
    ctr(DBG_BA, s_mt, 1)
    attn_items()
    attn.attn_b4(A, SRD_WS, s_it, (s0, s1, s2_, s3), v_lane, v_l16, 8, ld=' sc1', stf=' sc1')

    A.label(L_done)
    wstamp(4)
    A('s_waitcnt vmcnt(0)')
    wstamp(5)
    A('s_barrier')
    A('s_cmp_lg_u32 %s, 0' % sr(s_w))
    A('s_cbranch_scc1 ' + L_next)
    A('s_cmp_eq_u32 %s, 0' % sr(s_inc))
    A('s_cbranch_scc1 ' + L_next)
    wait_init()
    A('s_add_u32 %s, %s, %s' % (sr(s0), sr(s_ctr), sr(s_q)))
    A('s_lshl_b32 %s, %s, 7' % (sr(s0), sr(s0)))
    A('s_add_u32 %s, %s, 0x%x' % (sr(s0), sr(s0), CTR))
    A('v_mov_b32 %s, %s' % (vr(v_a), sr(s0)))
    A('v_mov_b32 %s, %s' % (vr(v_b), sr(s_inc)))
    A('s_mov_b64 exec, 1')
    A('buffer_atomic_add %s, %s, %s, 0 offen sc1' % (vr(v_b), vr(v_a), sr(SRD_WS, 4)))
    Lk0 = A.uid('k0')
    A('s_cmp_lg_u32 %s, %d' % (sr(s_ctr), DBG_KV))
    A('s_cbranch_scc1 ' + Lk0)
    A('s_cmp_lg_u32 %s, 0' % sr(s_mt))
    A('s_cbranch_scc1 ' + Lk0)
    A('v_add_u32 %s, %d, %s' % (vr(v_a), (DBG_KV0 - DBG_KV) * 128, vr(v_a)))
    A('v_mov_b32 %s, 2' % vr(v_b))
    A('buffer_atomic_add %s, %s, %s, 0 offen sc1' % (vr(v_b), vr(v_a), sr(SRD_WS, 4)))
    A.label(Lk0)
    A('s_mov_b64 exec, -1')
    A('s_branch ' + L_next)
    return hi
```

```python
from asmlib import *
from layout import *
import struct, os
from kernels import place_check, shift_ptrs


def f32bits(x):
    return struct.unpack('<I', struct.pack('<f', x))[0]


LDS_MEM = 131072
LDS_O = LDS_MEM + 16384
LDS_ROLE = LDS_O + 8192
NSTEP = int(os.environ.get('NSTEP', '64'))
POLL_LIMIT = 400000
DIAG = int(os.environ.get('DIAG', '0'))
PF = [int(x) for x in os.environ.get('PF', '4,4,1,3,0,0,4,0').split(',')]
PFN = [int(x) for x in os.environ.get('PFN', '2,2,1,1,10,0,0,0').split(',')]
OOO = int(os.environ.get('OOO', '0'))
C2 = int(os.environ.get('C2', '0'))
C2B = int(os.environ.get('C2B', '1'))
HK_D = os.environ.get('HK_D', '')
HK_P = os.environ.get('HK_P', 'crw')
HK_L = os.environ.get('HK_L', '')
A_BACK = int(os.environ.get('A_BACK', '0'))
RED_SLEEP = int(os.environ.get('RED_SLEEP', '3'))
ILV = int(os.environ.get('ILV', '1'))
FORCE_SAFE = int(os.environ.get('FORCE_SAFE', '0'))
PIPE = int(os.environ.get('PIPE', '1'))
E_DEPTH = int(os.environ.get('E_DEPTH', '0'))
E_INT = int(os.environ.get('E_INT', '3'))
E_INT2 = int(os.environ.get('E_INT2', '0'))
EARLY_SIDE = int(os.environ.get('EARLY_SIDE', '0'))
NEARX = int(os.environ.get('NEARX', '1'))
PFB_SPAN = int(os.environ.get('PFB_SPAN', '9'))
NOE_SLEEP = int(os.environ.get('NOE_SLEEP', '0'))
FINE = os.environ.get('FINE', '')
DELAY_C = int(os.environ.get('DELAY_C', '0'))
TOUCH = int(os.environ.get('TOUCH', '0'))
PRET = int(os.environ.get('PRET', '0'))
LITE = [int(x) for x in os.environ.get('LITE', '').split(',') if x]
DELAY_E = int(os.environ.get('DELAY_E', '5'))
NOCOPY = int(os.environ.get('NOCOPY', '0'))
NOPF = int(os.environ.get('NOPF', '0'))
WARM = int(os.environ.get('WARM', '1'))


def gen_chain(A, name, stamps=False, nsteps=NSTEP, flat=False, four=True, worker=None):
    ISC = ' sc1' if flat else ''
    S = Regs('s', 16, 100)
    V = Regs('v', 1, 256)
    SRD_WS = 8
    SRD_T = 12
    s_ptr = S.alloc(16, 4)
    s_w = S.alloc()
    s_x = S.alloc()
    s_j = S.alloc()
    s_t0 = S.alloc()
    s_t1 = S.alloc()
    s_t2 = S.alloc()
    s_t3 = S.alloc()
    s_step = S.alloc()
    s_slot = S.alloc()
    s_slot1 = S.alloc()
    s_slot2 = S.alloc()
    s_kx = S.alloc()
    s_kx2 = S.alloc()
    s_out = S.alloc()
    s_fffe = S.alloc()
    s_c = S.alloc()
    s_lim = S.alloc()
    s_cnt = S.alloc()
    s_pend = S.alloc()
    s_exlo = S.alloc(2, 2)
    s_hf = S.alloc(2, 2)
    s_tm = S.alloc(2, 2)
    s_kvm = S.alloc(2, 2)
    s_bad = S.alloc(8, 2) if OOO else None
    s_stamp = S.alloc()
    s_vxl = S.alloc()
    s_kvo = S.alloc()
    s_red = S.alloc()
    s_obm = S.alloc()
    s_stl = S.alloc()
    s_ps = S.alloc()
    s_ps2 = S.alloc()
    v_lane = V.alloc()
    v_nu = V.alloc()
    v_g = V.alloc()
    v_t = [V.alloc() for _ in range(8)]
    va_memr = V.alloc()
    va_mems = V.alloc()
    va_memz = V.alloc()
    va_rw = V.alloc()
    va_rr = V.alloc()
    va_rrv = V.alloc()
    va_qks = V.alloc()
    va_rb = V.alloc()
    va_vs = V.alloc()
    va_cp = V.alloc()
    va_prog = V.alloc()
    va_qkr = V.alloc()
    va_vmr = V.alloc()
    va_kx = V.alloc()
    va_vx = V.alloc()
    va_ow = V.alloc()
    va_or = V.alloc()
    va_pw = V.alloc()
    va_pr = V.alloc()
    va_pw2 = V.alloc()
    va_pd = V.alloc()
    va_warm = V.alloc()
    v_idx = V.alloc()
    va_vxr = V.alloc()
    v_m1 = V.alloc(4, 4)
    v_mask = V.alloc(4, 4)
    v_sel = V.alloc(4, 4)
    v_maskx = V.alloc(4, 4)
    v_ones = V.alloc(4, 4)
    v_bias = V.alloc()
    v_junk = V.alloc()
    v_kvf = V.alloc()
    v_junk2 = V.alloc()
    v_zero = V.alloc()
    acc1 = V.alloc(4, 4)
    acc2 = V.alloc(4, 4)
    KXA = V.alloc(16, 4)
    KXB = V.alloc(16, 4)
    VXR = V.alloc(32, 4)
    VMR = V.alloc(8, 4)
    QK = V.alloc(16, 4)
    F = V.alloc(64, 4)
    M = V.alloc(16, 4)
    PR = F + 52
    RB = F + 60
    SA, SB, SM = F, F + 4, F + 8
    PX, PXH = F + 12, F + 16
    PM, PMH = F + 20, F + 22
    AC = F
    HA = F + 24
    RD = F + 36
    O = F + 28
    LS = F + 44
    v_mx, v_mx2, v_l = F + 48, F + 49, F + 50
    XY = QK
    G = F
    W1, W2, W3 = 0, 128, 192

    L_exit = name + '_exit'
    nvm = [0]

    def stamp(k):
        if not stamps or (LITE and k not in LITE):
            return
        A('%s %s' % ('s_memrealtime' if stamps == 'rt' else 's_memtime', sr(s_tm, 2)))
        A('s_waitcnt lgkmcnt(0)')
        A('v_mov_b32 %s, %s' % (vr(v_t[7]), sr(s_tm)))
        A('v_mov_b32 %s, %s' % (vr(v_t[6]), sr(s_stl)))
        A('ds_write_b32 %s, %s offset:%d' % (vr(v_t[6]), vr(v_t[7]), 4 * k))
        if k in (0, 2, 6):
            A('v_mov_b32 %s, %s' % (vr(v_t[5]), sr(s_cnt)))
            A('ds_write_b32 %s, %s offset:%d' % (vr(v_t[6]), vr(v_t[5]), 4 * (8 + k)))

    def srd(dst, ptr, nbytes):
        A('s_mov_b32 %s, %s' % (sr(dst), sr(ptr)))
        A('s_and_b32 %s, %s, 0xffff' % (sr(dst + 1), sr(ptr + 1)))
        A('s_mov_b32 %s, 0x%x' % (sr(dst + 2), nbytes))
        A('s_mov_b32 %s, 0x00020000' % sr(dst + 3))

    A.raw('.p2align 8')
    A.label(name)
    A('s_cmp_ge_u32 s2, 256')
    A('s_cbranch_scc1 ' + L_exit)
    A('s_mov_b32 s%d, 0' % S_MODE)
    L_restart = name + '_restart'
    A.label(L_restart)
    A('s_load_dwordx2 %s, s[0:1], 8' % sr(s_ptr, 2))
    A('s_load_dwordx4 %s, s[0:1], 16' % sr(s_ptr + 4, 4))
    A('s_load_dwordx4 %s, s[0:1], 32' % sr(s_ptr + 8, 4))
    A('s_load_dwordx4 %s, s[0:1], 88' % sr(s_ptr + 12, 4))
    P_MEM0, P_WQ, P_WK, P_WV, P_WO, P_DBG, P_WS = s_ptr, s_ptr + 4, s_ptr + 6, s_ptr + 8, s_ptr + 10, s_ptr + 12, s_ptr + 14
    A('v_and_b32 %s, 63, v0' % vr(v_lane))
    A('v_lshrrev_b32 %s, 6, v0' % vr(v_t[0]))
    A('v_readfirstlane_b32 %s, %s' % (sr(s_w), vr(v_t[0])))
    A('v_and_b32 %s, 15, %s' % (vr(v_nu), vr(v_lane)))
    A('v_lshrrev_b32 %s, 4, %s' % (vr(v_g), vr(v_lane)))
    A('s_waitcnt lgkmcnt(0)')
    shift_ptrs(A, P_WS, P_DBG, s_t0)
    srd(SRD_WS, P_WS, WS_HALF)
    srd(SRD_T, P_DBG, 128)
    L_role = A.uid('role')
    A('s_lshr_b32 %s, s2, 5' % sr(s_x))
    A('s_and_b32 %s, s2, 31' % sr(s_j))
    A('s_cmp_lg_u32 s%d, 0' % S_MODE)
    A('s_cbranch_scc1 ' + L_role)
    if True:
        A('s_getreg_b32 %s, hwreg(HW_REG_XCC_ID)' % sr(s_x))
        A('s_and_b32 %s, %s, 7' % (sr(s_x), sr(s_x)))
        if FORCE_SAFE:
            A('s_cmp_eq_u32 s2, %d' % FORCE_SAFE)
            A('s_cselect_b32 %s, 1, 0' % sr(s_t0))
            A('s_xor_b32 %s, %s, %s' % (sr(s_x), sr(s_x), sr(s_t0)))
        L_norole = A.uid('norole')
        A('s_cmp_lg_u32 %s, 0' % sr(s_w))
        A('s_cbranch_scc1 ' + L_norole)
        A('s_lshl_b32 %s, %s, 2' % (sr(s_t0), sr(s_x)))
        A('v_mov_b32 %s, %s' % (vr(v_t[0]), sr(s_t0)))
        A('v_mov_b32 %s, 1' % vr(v_t[1]))
        A('s_mov_b64 exec, 1')
        A('buffer_atomic_add %s, %s, %s, 0 offen sc0 sc1' % (vr(v_t[1]), vr(v_t[0]), sr(SRD_T, 4)))
        A('s_waitcnt vmcnt(0)')
        A('v_mov_b32 %s, %d' % (vr(v_t[0]), LDS_ROLE))
        A('ds_write_b32 %s, %s' % (vr(v_t[0]), vr(v_t[1])))
        A('s_waitcnt lgkmcnt(0)')
        A('s_mov_b64 exec, -1')
        A.label(L_norole)
        A('s_barrier')
        A('v_mov_b32 %s, %d' % (vr(v_t[0]), LDS_ROLE))
        A('ds_read_b32 %s, %s' % (vr(v_t[1]), vr(v_t[0])))
        A('s_waitcnt lgkmcnt(0)')
        A('v_readfirstlane_b32 %s, %s' % (sr(s_j), vr(v_t[1])))
    A.label(L_role)
    L_work = name + '_worker' if worker else L_exit
    A('s_mov_b32 s%d, %s' % (S_VX, sr(s_x)))
    A('s_mov_b32 s3, %s' % sr(s_j))
    A('s_cmp_ge_u32 %s, 4' % sr(s_x))
    A('s_cbranch_scc1 ' + L_work)
    A('s_cmp_ge_u32 %s, 32' % sr(s_j))
    A('s_cbranch_scc1 ' + L_work)
    A('s_mov_b32 s3, -1')
    A('s_lshl_b32 %s, %s, 1' % (sr(s_x), sr(s_x)))
    A('s_lshr_b32 %s, %s, 4' % (sr(s_t0), sr(s_j)))
    A('s_add_u32 %s, %s, %s' % (sr(s_x), sr(s_x), sr(s_t0)))
    A('s_and_b32 %s, %s, 15' % (sr(s_j), sr(s_j)))
    A('s_xor_b32 %s, %s, %s' % (sr(s_red), sr(s_x), sr(s_j)))
    A('s_and_b32 %s, %s, 1' % (sr(s_red), sr(s_red)))
    A('s_lshr_b32 %s, %s, 1' % (sr(s_obm), sr(s_x)))
    A('s_lshl_b32 %s, %s, 4' % (sr(s_obm), sr(s_obm)))
    A('s_add_u32 %s, %s, %s' % (sr(s_obm), sr(s_obm), sr(s_j)))
    A('s_lshl_b32 %s, %s, 10' % (sr(s_obm), sr(s_obm)))

    if stamps:
        s_e = S.alloc(6, 2)
        A('s_memrealtime %s' % sr(s_e, 2))
    if worker:
        L_noz = A.uid('noz')
        A('s_or_b32 %s, %s, %s' % (sr(s_t0), sr(s_x), sr(s_j)))
        A('s_xor_b32 %s, %s, 1' % (sr(s_t1), sr(s_w)))
        A('s_or_b32 %s, %s, %s' % (sr(s_t0), sr(s_t0), sr(s_t1)))
        A('s_cmp_lg_u32 %s, 0' % sr(s_t0))
        A('s_cbranch_scc1 ' + L_noz)
        A('v_lshlrev_b32 %s, 7, %s' % (vr(v_t[0]), vr(v_lane)))
        A('v_mov_b32 %s, 0' % vr(v_t[1]))
        for i in range(4):
            A('s_mov_b32 %s, 0x%x' % (sr(s_t0), CTR + i * 8192))
            A('buffer_store_dword %s, %s, %s, %s offen sc1' % (vr(v_t[1]), vr(v_t[0]), sr(SRD_WS, 4), sr(s_t0)))
        A('s_waitcnt vmcnt(0)')
        A('v_mov_b32 %s, %d' % (vr(v_t[0]), DBG_INIT))
        A('v_mov_b32 %s, 1' % vr(v_t[1]))
        A('s_mov_b64 exec, 1')
        A('buffer_store_dword %s, %s, %s, 0 offen sc1' % (vr(v_t[1]), vr(v_t[0]), sr(SRD_T, 4)))
        A('s_mov_b64 exec, -1')
        A.label(L_noz)
    A('s_mov_b32 %s, 0xfffefffe' % sr(s_fffe))
    A('s_mov_b32 %s, 0x%x' % (sr(s_c), f32bits(128 ** -0.5 * 1.4426950408889634)))
    A('s_mov_b32 %s, %d' % (sr(s_lim), POLL_LIMIT))
    A('s_mov_b32 %s, 0x00ff00ff' % sr(s_exlo))
    A('s_mov_b32 %s, 0x00ff00ff' % sr(s_exlo + 1))
    A('s_mov_b32 %s, 0xff00ff00' % sr(s_hf))
    A('s_mov_b32 %s, 0xff00ff00' % sr(s_hf + 1))
    for i in range(4):
        A('v_mov_b32 %s, -1' % vr(v_m1 + i))
    A('v_mov_b32 %s, 0x%x' % (vr(v_t[0]), f32bits(-1e30)))
    for i in range(4):
        A('v_cndmask_b32 %s, 0, %s, %s' % (vr(v_maskx + i), vr(v_t[0]), sr(s_hf, 2)))
    A('v_cmp_gt_u32 vcc, 32, %s' % vr(v_lane))
    for i in range(4):
        A('v_cndmask_b32 %s, %s, %s, vcc' % (vr(v_mask + i), vr(v_maskx), vr(v_t[0])))
    A('v_mov_b32 %s, 0x%x' % (vr(v_t[0]), f32bits(-3e38)))
    A('v_cndmask_b32 %s, %s, 0, %s' % (vr(v_bias), vr(v_t[0]), sr(s_hf, 2)))
    for i in range(4):
        A('v_mov_b32 %s, 0x3f803f80' % vr(v_ones + i))
    A('v_mov_b32 %s, 0x4444' % vr(v_t[0]))
    A('v_mov_b32 %s, 0xeeee' % vr(v_t[1]))
    A('v_cmp_gt_u32 vcc, 8, %s' % vr(v_nu))
    A('v_cndmask_b32 %s, %s, %s, vcc' % (vr(v_idx), vr(v_t[1]), vr(v_t[0])))
    A('v_bfe_u32 %s, %s, 2, 1' % (vr(v_t[0]), vr(v_nu)))
    A('v_bfe_u32 %s, %s, 1, 1' % (vr(v_t[1]), vr(v_nu)))
    A('v_lshl_add_u32 %s, %s, 1, %s' % (vr(v_t[0]), vr(v_t[1]), vr(v_t[0])))
    A('v_and_b32 %s, 1, %s' % (vr(v_t[1]), vr(v_nu)))
    A('v_lshlrev_b32 %s, 4, %s' % (vr(v_t[1]), vr(v_t[1])))
    A('v_mov_b32 %s, 0x3f80' % vr(v_t[2]))
    A('v_lshlrev_b32 %s, %s, %s' % (vr(v_t[1]), vr(v_t[1]), vr(v_t[2])))
    for d in range(4):
        A('v_cmp_eq_u32 vcc, %d, %s' % (d, vr(v_t[0])))
        A('v_cndmask_b32 %s, 0, %s, vcc' % (vr(v_sel + d), vr(v_t[1])))

    l16 = v_t[2]
    A('v_lshlrev_b32 %s, 4, %s' % (vr(l16), vr(v_lane)))

    s_ob = s_t3
    A('s_lshl_b32 %s, %s, 4' % (sr(s_ob), sr(s_x)))
    A('s_add_u32 %s, %s, %s' % (sr(s_ob), sr(s_ob), sr(s_j)))
    A('s_lshl_b32 %s, %s, 10' % (sr(s_ob), sr(s_ob)))

    SRD_A = S.alloc(4, 4)
    if PRET:
        A('s_lshr_b32 %s, %s, 4' % (sr(s_t2), sr(s_ob)))
        A('s_lshl_b32 %s, %s, 21' % (sr(s_t0), sr(s_w)))
        A('s_add_u32 %s, %s, %s' % (sr(s_t2), sr(s_t2), sr(s_t0)))
        A('v_lshlrev_b32 %s, 13, %s' % (vr(v_t[4]), vr(v_lane)))
        for P in (P_WQ, P_WK, P_WV):
            srd(SRD_A, P, 1024 * 4096 * 2)
            for i in range(4):
                A('s_add_u32 %s, %s, %d' % (sr(s_t1), sr(s_t2), i * 64 * 8192))
                A('buffer_load_dword %s, %s, %s, %s offen' % (vr(v_junk), vr(v_t[4]), sr(SRD_A, 4), sr(s_t1)))
            A('s_nop 4')
        srd(SRD_A, P_WO, 4096 * 1024 * 2)
        A('v_lshlrev_b32 %s, 11, %s' % (vr(v_t[4]), vr(v_lane)))
        A('s_lshl_b32 %s, %s, 20' % (sr(s_t1), sr(s_x)))
        A('s_lshl_b32 %s, %s, 18' % (sr(s_t2), sr(s_w)))
        A('s_add_u32 %s, %s, %s' % (sr(s_t1), sr(s_t1), sr(s_t2)))
        A('s_lshl_b32 %s, %s, 7' % (sr(s_t2), sr(s_j)))
        A('s_add_u32 %s, %s, %s' % (sr(s_t2), sr(s_t1), sr(s_t2)))
        for i in range(2):
            A('s_add_u32 %s, %s, %d' % (sr(s_t1), sr(s_t2), i * 64 * 2048))
            A('buffer_load_dword %s, %s, %s, %s offen' % (vr(v_junk), vr(v_t[4]), sr(SRD_A, 4), sr(s_t1)))
        A('s_nop 4')

    A('s_lshl_b32 %s, %s, 17' % (sr(s_t0), sr(s_w)))
    A('s_add_u32 %s, %s, %s' % (sr(s_t0), sr(s_t0), sr(s_ob)))
    for base in (QKI, VMI):
        A('s_add_u32 %s, %s, 0x%x' % (sr(s_t1), sr(s_t0), base))
        A('buffer_store_dwordx4 %s, %s, %s, %s offen%s' % (vr(v_m1, 4), vr(l16), sr(SRD_WS, 4), sr(s_t1), ' sc1'))
    A('s_lshl_b32 %s, %s, 17' % (sr(s_t0), sr(s_w)))
    A('s_add_u32 %s, %s, %s' % (sr(s_t0), sr(s_t0), sr(s_obm)))
    A('s_add_u32 %s, %s, 0x%x' % (sr(s_t1), sr(s_t0), MEMI))
    A('buffer_store_dwordx4 %s, %s, %s, %s offen%s' % (vr(v_m1, 4), vr(l16), sr(SRD_WS, 4), sr(s_t1), ' sc1'))
    A('s_lshl_b32 %s, %s, 14' % (sr(s_t0), sr(s_j)))
    A('s_lshl_b32 %s, %s, 11' % (sr(s_t1), sr(s_w)))
    A('s_add_u32 %s, %s, %s' % (sr(s_t0), sr(s_t0), sr(s_t1)))
    A('s_add_u32 %s, %s, 0x%x' % (sr(s_t0), sr(s_t0), PART))
    A('v_add_u32 %s, %s, %s' % (vr(va_pr), sr(s_t0), vr(l16)))
    A('s_lshl_b32 %s, %s, 8' % (sr(s_t1), sr(s_x)))
    A('v_add_u32 %s, %s, %s' % (vr(va_pw), sr(s_t1), vr(va_pr)))
    A('v_add_u32 %s, 8192, %s' % (vr(va_pw2), vr(va_pw)))
    A('s_mov_b64 exec, 0xffff')
    for sl in range(4):
        A('s_mov_b32 %s, 0x%x' % (sr(s_t1), sl * 0x40000))
        A('buffer_store_dwordx4 %s, %s, %s, %s offen sc1' % (vr(v_m1, 4), vr(va_pw), sr(SRD_WS, 4), sr(s_t1)))
        A('buffer_store_dwordx4 %s, %s, %s, %s offen sc1' % (vr(v_m1, 4), vr(va_pw2), sr(SRD_WS, 4), sr(s_t1)))
    A('s_mov_b64 exec, -1')
    s_ta = S.alloc(2, 2)
    s_m0 = S.alloc()
    s_m1 = S.alloc()
    L_nocal = A.uid('nocal')
    L_nocal2 = A.uid('nocal2')
    A('s_mov_b32 %s, 1' % sr(s_pend))
    A('s_cmp_ge_u32 %s, 4' % sr(s_j))
    A('s_cbranch_scc1 ' + L_nocal2)
    A('s_waitcnt vmcnt(0)')
    A('s_barrier')
    A('s_cmp_lg_u32 %s, 0' % sr(s_w))
    A('s_cbranch_scc1 ' + L_nocal)
    A('s_waitcnt vmcnt(0)')
    A('s_mov_b32 %s, -1' % sr(s_m0))
    A('s_mov_b32 %s, -1' % sr(s_m1))
    A('s_mov_b64 exec, 0xffff')
    for rep in range(2):
        for c in range(2):
            A('s_mov_b32 %s, %d' % (sr(s_t1), 0x80000 + rep * 0x40000))
            A('s_memtime %s' % sr(s_ta, 2))
            A('s_waitcnt lgkmcnt(0)')
            A('buffer_store_dwordx4 %s, %s, %s, %s offen sc1' % (vr(v_m1, 4), vr(va_pw2 if c else va_pw), sr(SRD_WS, 4), sr(s_t1)))
            A('s_waitcnt vmcnt(0)')
            A('s_memtime %s' % sr(s_tm, 2))
            A('s_waitcnt lgkmcnt(0)')
            A('s_sub_u32 %s, %s, %s' % (sr(s_t2), sr(s_tm), sr(s_ta)))
            A('s_min_u32 %s, %s, %s' % (sr(s_m1 if c else s_m0), sr(s_m1 if c else s_m0), sr(s_t2)))
    A('s_cmp_lt_u32 %s, %s' % (sr(s_m1), sr(s_m0)))
    A('s_cselect_b32 %s, 0x10001, 1' % sr(s_pend))
    A('s_mov_b64 exec, -1')
    A.label(L_nocal)
    A('s_barrier')
    A.label(L_nocal2)

    s_col = s_t2
    A('s_lshr_b32 %s, %s, 4' % (sr(s_col), sr(s_ob)))
    vw = v_t[4]
    A('v_lshrrev_b32 %s, 2, %s' % (vr(vw), vr(v_lane)))
    A('v_lshlrev_b32 %s, 13, %s' % (vr(vw), vr(vw)))
    A('v_and_b32 %s, 3, %s' % (vr(v_t[5]), vr(v_lane)))
    A('v_lshl_add_u32 %s, %s, 4, %s' % (vr(vw), vr(v_t[5]), vr(vw)))
    SRD_B = S.alloc(4, 4)
    IM = 4 if ILV else 1
    A('s_lshl_b32 %s, %s, %d' % (sr(s_t0), sr(s_w), 17 if ILV else 21))
    A('s_add_u32 %s, %s, %s' % (sr(s_col), sr(s_col), sr(s_t0)))
    A('s_lshl_b32 %s, %s, %d' % (sr(s_t0), sr(s_w), 10 if ILV else 14))
    for mi, P in enumerate((P_WQ, P_WK)):
        srd(SRD_A, P, 1024 * 4096 * 2)
        for i in range(16):
            A('s_add_u32 m0, %s, %d' % (sr(s_t0), mi * 65536 + i * IM * 1024))
            A('s_add_u32 %s, %s, %d' % (sr(s_t1), sr(s_col), i * IM * 131072))
            A('buffer_load_dwordx4 %s, %s, %s offen lds' % (vr(vw), sr(SRD_A, 4), sr(s_t1)))
        if mi == 0:
            A('s_waitcnt vmcnt(16)')
            A('s_barrier')
            L_nord = A.uid('nord')
            A('s_cmp_lg_u32 %s, 0' % sr(s_w))
            A('s_cbranch_scc1 ' + L_nord)
            A('v_mov_b32 %s, 32' % vr(acc2))
            A('v_mov_b32 %s, %s' % (vr(acc2 + 1), sr(s_pend)))
            A('s_mov_b64 exec, 1')
            A('buffer_atomic_add %s, %s, %s, 0 offen sc1' % (vr(acc2 + 1), vr(acc2), sr(SRD_T, 4)))
            A('s_mov_b64 exec, -1')
            A.label(L_nord)
            A('s_nop 4')
    LV = KXA
    assert KXB == KXA + 16 and VXR == KXA + 32
    srd(SRD_B, P_WV, 1024 * 4096 * 2)
    for i in range(16):
        A('s_add_u32 %s, %s, %d' % (sr(s_t1), sr(s_col), i * IM * 131072))
        A('buffer_load_dwordx4 %s, %s, %s, %s offen' % (vr(LV + 4 * i, 4), vr(vw), sr(SRD_B, 4), sr(s_t1)))
    LO = F
    SRD_C = S.alloc(4, 4)
    srd(SRD_C, P_WO, 4096 * 1024 * 2)
    vo = v_t[5]
    A('v_lshrrev_b32 %s, 3, %s' % (vr(vo), vr(v_lane)))
    A('v_lshlrev_b32 %s, 11, %s' % (vr(vo), vr(vo)))
    A('v_and_b32 %s, 7, %s' % (vr(v_t[6]), vr(v_lane)))
    A('v_lshl_add_u32 %s, %s, 4, %s' % (vr(vo), vr(v_t[6]), vr(vo)))
    A('s_lshl_b32 %s, %s, 20' % (sr(s_t1), sr(s_x)))
    A('s_lshl_b32 %s, %s, %d' % (sr(s_t2), sr(s_w), 14 if ILV else 18))
    A('s_add_u32 %s, %s, %s' % (sr(s_t1), sr(s_t1), sr(s_t2)))
    A('s_lshl_b32 %s, %s, 7' % (sr(s_t2), sr(s_j)))
    A('s_add_u32 %s, %s, %s' % (sr(s_t2), sr(s_t1), sr(s_t2)))
    for i in range(16):
        A('s_add_u32 %s, %s, %d' % (sr(s_t1), sr(s_t2), i * IM * 16384))
        A('buffer_load_dwordx4 %s, %s, %s, %s offen' % (vr(LO + 4 * i, 4), vr(vo), sr(SRD_C, 4), sr(s_t1)))
    SRD_D = S.alloc(4, 4)
    srd(SRD_D, P_MEM0, 8 * 1024 * 2)
    vm0 = v_t[6]
    A('v_and_b32 %s, 7, %s' % (vr(vm0), vr(v_nu)))
    A('v_lshlrev_b32 %s, 11, %s' % (vr(vm0), vr(vm0)))
    A('v_lshl_add_u32 %s, %s, 5, %s' % (vr(vm0), vr(v_g), vr(vm0)))
    A('v_lshrrev_b32 %s, 3, %s' % (vr(v_t[7]), vr(v_nu)))
    A('v_lshl_add_u32 %s, %s, 2, %s' % (vr(vm0), vr(v_t[7]), vr(vm0)))
    A('s_lshl_b32 %s, %s, 9' % (sr(s_t1), sr(s_w)))
    for k in range(4):
        for a in range(4):
            A('buffer_load_dword %s, %s, %s, %s offen offset:%d' % (vr(M + 4 * k + a), vr(vm0), sr(SRD_D, 4), sr(s_t1), k * 128 + a * 8))

    s_p = s_t0
    s_wh = s_t1
    A('s_and_b32 %s, %s, 1' % (sr(s_p), sr(s_w)))
    A('s_lshr_b32 %s, %s, 1' % (sr(s_wh), sr(s_w)))
    ta, tb, tc = v_t[0], v_t[1], v_t[7]
    A('s_lshl_b32 %s, %s, 12' % (sr(s_t2), sr(s_w)))
    A('v_add_u32 %s, %s, %s' % (vr(ta), sr(s_t2), vr(l16)))
    A('s_lshr_b32 %s, %s, 1' % (sr(s_t2), sr(s_x)))
    A('s_lshl_b32 %s, %s, 14' % (sr(s_t2), sr(s_t2)))
    A('s_add_u32 %s, %s, 0x%x' % (sr(s_t2), sr(s_t2), MEMI))
    A('v_add_u32 %s, %s, %s' % (vr(va_memr), sr(s_t2), vr(ta)))
    A('s_lshl_b32 %s, %s, 14' % (sr(s_t2), sr(s_x)))
    A('s_add_u32 %s, %s, 0x%x' % (sr(s_t2), sr(s_t2), QKI))
    A('v_add_u32 %s, %s, %s' % (vr(va_qkr), sr(s_t2), vr(ta)))
    A('s_lshl_b32 %s, %s, 12' % (sr(s_cnt), sr(s_w)))
    A('s_add_u32 %s, %s, %s' % (sr(s_t2), sr(s_t2), sr(s_cnt)))
    A('s_add_u32 %s, %s, 0x%x' % (sr(s_t2), sr(s_t2), VMI - QKI))
    A('v_and_b32 %s, 31, %s' % (vr(va_vmr), vr(v_lane)))
    A('v_lshlrev_b32 %s, 4, %s' % (vr(va_vmr), vr(va_vmr)))
    A('v_lshrrev_b32 %s, 5, %s' % (vr(ta), vr(v_lane)))
    A('v_xor_b32 %s, 1, %s' % (vr(ta), vr(ta)))
    A('v_lshl_add_u32 %s, %s, 11, %s' % (vr(va_vmr), vr(ta), vr(va_vmr)))
    A('v_add_u32 %s, %s, %s' % (vr(va_vmr), sr(s_t2), vr(va_vmr)))
    A('s_mul_i32 %s, %s, 3072' % (sr(s_t2), sr(s_w)))
    A('s_add_u32 %s, %s, %d' % (sr(s_t2), sr(s_t2), LDS_MEM))
    A('v_lshl_add_u32 %s, %s, 3, %s' % (vr(va_rw), vr(v_lane), sr(s_t2)))
    A('v_lshrrev_b32 %s, 5, %s' % (vr(ta), vr(v_lane)))
    A('v_mul_u32_u24 %s, 6144, %s' % (vr(ta), vr(ta)))
    A('v_and_b32 %s, 31, %s' % (vr(tb), vr(v_lane)))
    A('v_lshl_add_u32 %s, %s, 4, %s' % (vr(ta), vr(tb), vr(ta)))
    A('s_lshl_b32 %s, %s, 9' % (sr(s_t2), sr(s_w)))
    A('s_add_u32 %s, %s, %d' % (sr(s_t2), sr(s_t2), LDS_MEM))
    A('v_add_u32 %s, %s, %s' % (vr(va_rr), sr(s_t2), vr(ta)))
    A('s_lshl_b32 %s, %s, 9' % (sr(s_t2), sr(s_p)))
    A('s_add_u32 %s, %s, %d' % (sr(s_t2), sr(s_t2), LDS_MEM + 2048))
    A('v_add_u32 %s, %s, %s' % (vr(va_rrv), sr(s_t2), vr(ta)))
    vR, vcp, vH = tc, acc1, acc1 + 1
    A('v_bfe_u32 %s, %s, 3, 1' % (vr(ta), vr(v_lane)))
    A('v_bfe_u32 %s, %s, 4, 1' % (vr(tb), vr(v_lane)))
    A('v_lshlrev_b32 %s, 2, %s' % (vr(vR), vr(ta)))
    A('v_lshl_add_u32 %s, %s, 1, %s' % (vr(vR), vr(tb), vr(vR)))
    A('v_and_b32 %s, 7, %s' % (vr(vcp), vr(v_lane)))
    A('v_lshrrev_b32 %s, 5, %s' % (vr(vH), vr(v_lane)))
    A('v_lshlrev_b32 %s, 8, %s' % (vr(va_vs), vr(ta)))
    A('v_lshl_add_u32 %s, %s, 5, %s' % (vr(va_vs), vr(vcp), vr(va_vs)))
    A('v_lshl_add_u32 %s, %s, 4, %s' % (vr(va_vs), vr(vH), vr(va_vs)))
    A('v_lshl_add_u32 %s, %s, 2, %s' % (vr(va_vs), vr(tb), vr(va_vs)))
    A('s_lshl_b32 %s, %s, 3' % (sr(s_t2), sr(s_p)))
    A('s_add_u32 %s, %s, %s' % (sr(s_t2), sr(s_t2), sr(s_ob)))
    A('s_add_u32 %s, %s, 0x%x' % (sr(s_t2), sr(s_t2), VMI))
    A('s_cmp_ge_u32 %s, 2' % sr(s_w))
    A('s_cselect_b32 %s, 0x%x, %s' % (sr(s_t2), WS_BYTES, sr(s_t2)))
    A('v_add_u32 %s, %s, %s' % (vr(va_vs), sr(s_t2), vr(va_vs)))
    A('v_bfe_u32 %s, %s, 1, 1' % (vr(ta), vr(vcp)))
    A('v_lshlrev_b32 %s, 8, %s' % (vr(va_qks), vr(ta)))
    A('v_add_u32 %s, %s, %s' % (vr(vR), vr(vR), vr(vH)))
    A('v_lshl_add_u32 %s, %s, 4, %s' % (vr(va_qks), vr(vR), vr(va_qks)))
    A('v_lshrrev_b32 %s, 2, %s' % (vr(ta), vr(vcp)))
    A('v_lshl_add_u32 %s, %s, 3, %s' % (vr(va_qks), vr(ta), vr(va_qks)))
    A('v_and_b32 %s, 1, %s' % (vr(ta), vr(vcp)))
    A('v_lshl_add_u32 %s, %s, 2, %s' % (vr(va_qks), vr(ta), vr(va_qks)))
    A('s_lshl_b32 %s, %s, 9' % (sr(s_t2), sr(s_p)))
    A('v_add_u32 %s, %s, %s' % (vr(va_qks), sr(s_t2), vr(va_qks)))
    A('s_lshl_b32 %s, %s, 7' % (sr(s_t2), sr(s_wh)))
    A('s_add_u32 %s, %s, %s' % (sr(s_t2), sr(s_t2), sr(s_ob)))
    A('s_add_u32 %s, %s, 0x%x' % (sr(s_t2), sr(s_t2), QKI))
    A('v_add_u32 %s, %s, %s' % (vr(va_qks), sr(s_t2), vr(va_qks)))
    A('v_lshlrev_b32 %s, 4, %s' % (vr(va_mems), vr(v_nu)))
    A('v_lshl_add_u32 %s, %s, 2, %s' % (vr(va_mems), vr(v_g), vr(va_mems)))
    A('s_lshl_b32 %s, %s, 8' % (sr(s_t2), sr(s_w)))
    A('s_add_u32 %s, %s, %s' % (sr(s_t2), sr(s_t2), sr(s_obm)))
    A('s_add_u32 %s, %s, 0x%x' % (sr(s_t2), sr(s_t2), MEMI))
    A('v_add_u32 %s, %s, %s' % (vr(va_mems), sr(s_t2), vr(va_mems)))
    A('s_lshl_b32 %s, %s, 19' % (sr(s_t2), sr(s_w)))
    A('s_add_u32 %s, %s, %s' % (sr(s_t2), sr(s_t2), sr(s_ob)))
    A('s_add_u32 %s, %s, 0x%x' % (sr(s_t2), sr(s_t2), QKI))
    A('s_add_u32 %s, %s, 0x%x' % (sr(s_cnt), sr(s_obm), MEMI))
    A('s_cmp_eq_u32 %s, 0' % sr(s_red))
    A('s_cselect_b32 %s, %s, 0x%x' % (sr(s_cnt), sr(s_cnt), WS_BYTES))
    A('s_cmp_eq_u32 %s, 2' % sr(s_w))
    A('s_cselect_b32 %s, %s, %s' % (sr(s_t2), sr(s_cnt), sr(s_t2)))
    A('s_cmp_eq_u32 %s, 3' % sr(s_w))
    A('s_cselect_b32 %s, 0x%x, %s' % (sr(s_t2), WS_BYTES, sr(s_t2)))
    A('v_add_u32 %s, %s, %s' % (vr(va_memz), sr(s_t2), vr(l16)))
    A('s_lshr_b32 %s, %s, 1' % (sr(s_t2), sr(s_w)))
    A('s_lshl_b32 %s, %s, 10' % (sr(s_t2), sr(s_t2)))
    A('s_xor_b32 %s, %s, %s' % (sr(s_kvo), sr(s_t2), sr(s_ob)))
    A('s_and_b32 %s, %s, 1' % (sr(s_cnt), sr(s_w)))
    A('s_lshl_b32 %s, %s, 19' % (sr(s_t2), sr(s_cnt)))
    A('s_add_u32 %s, %s, %s' % (sr(s_t2), sr(s_t2), sr(s_kvo)))
    A('s_add_u32 %s, %s, 0x%x' % (sr(s_t2), sr(s_t2), QKI))
    A('s_lshl_b32 %s, %s, 23' % (sr(s_cnt), sr(s_cnt)))
    A('s_add_u32 %s, %s, %s' % (sr(s_cnt), sr(s_cnt), sr(s_kvo)))
    A('s_add_u32 %s, %s, 0x%x' % (sr(s_cnt), sr(s_cnt), KMO))
    assert VMO - KMO == 1 << 23
    A('v_add_u32 %s, %s, %s' % (vr(va_rb), sr(s_t2), vr(l16)))
    A('v_add_u32 %s, %s, %s' % (vr(va_cp), sr(s_cnt), vr(l16)))
    A('s_xor_b32 %s, %s, 1' % (sr(s_t2), sr(s_j)))
    A('s_or_b32 %s, %s, %s' % (sr(s_t2), sr(s_x), sr(s_t2)))
    A('s_xor_b32 %s, %s, 3' % (sr(s_cnt), sr(s_w)))
    A('s_or_b32 %s, %s, %s' % (sr(s_t2), sr(s_t2), sr(s_cnt)))
    A('s_cmp_eq_u32 %s, 0' % sr(s_t2))
    A('s_cselect_b32 %s, 0x%x, 0x%x' % (sr(s_t2), CTR + DBG_PROG * 128, WS_BYTES) if False else 's_mov_b32 %s, 0x%x' % (sr(s_cnt), CTR + DBG_PROG * 128))
    A('s_cselect_b32 %s, %s, 0x%x' % (sr(s_t2), sr(s_cnt), WS_BYTES))
    A('v_and_b32 %s, 3, %s' % (vr(v_zero), vr(v_lane)))
    A('v_lshlrev_b32 %s, 7, %s' % (vr(v_zero), vr(v_zero)))
    A('v_add_u32 %s, %s, %s' % (vr(va_prog), sr(s_t2), vr(v_zero)))
    A('v_cmp_lt_u32 vcc, 3, %s' % vr(v_lane))
    A('v_mov_b32 %s, 0x%x' % (vr(ta), WS_BYTES))
    A('v_cndmask_b32 %s, %s, %s, vcc' % (vr(va_prog), vr(va_prog), vr(ta)))
    A('v_add_u32 %s, 0x%x, %s' % (vr(v_zero), CTR, vr(v_zero)))
    s_h = s_t2
    A('s_lshl_b32 %s, %s, 2' % (sr(s_h), sr(s_x)))
    A('s_add_u32 %s, %s, %s' % (sr(s_h), sr(s_h), sr(s_w)))
    A('s_lshl_b32 %s, %s, 13' % (sr(s_h), sr(s_h)))
    A('v_and_b32 %s, 1, %s' % (vr(ta), vr(v_g)))
    A('v_lshrrev_b32 %s, 1, %s' % (vr(tb), vr(v_g)))
    A('v_lshlrev_b32 %s, 9, %s' % (vr(va_kx), vr(ta)))
    A('v_lshl_add_u32 %s, %s, 10, %s' % (vr(va_kx), vr(tb), vr(va_kx)))
    A('v_add_u32 %s, %s, %s' % (vr(va_kx), sr(s_h), vr(va_kx)))
    A('v_lshl_add_u32 %s, %s, 4, %s' % (vr(va_vx), vr(v_nu), vr(va_kx)))
    A('v_add_u32 %s, 0x%x, %s' % (vr(va_vx), VX, vr(va_vx)))
    A('v_lshrrev_b32 %s, 3, %s' % (vr(ta), vr(v_nu)))
    A('v_lshl_add_u32 %s, %s, 8, %s' % (vr(va_kx), vr(ta), vr(va_kx)))
    A('v_and_b32 %s, 7, %s' % (vr(ta), vr(v_nu)))
    A('v_lshl_add_u32 %s, %s, 4, %s' % (vr(va_kx), vr(ta), vr(va_kx)))
    A('v_add_u32 %s, 0x%x, %s' % (vr(va_kx), KX, vr(va_kx)))
    A('s_lshr_b32 %s, %s, 1' % (sr(s_t2), sr(s_j)))
    A('s_lshl_b32 %s, %s, 2' % (sr(s_t2), sr(s_t2)))
    A('s_add_u32 %s, %s, %s' % (sr(s_t2), sr(s_t2), sr(s_w)))
    A('s_and_b32 %s, %s, 15' % (sr(s_cnt), sr(s_t2)))
    A('s_lshl_b32 %s, %s, 11' % (sr(s_cnt), sr(s_cnt)))
    A('s_lshr_b32 %s, %s, 4' % (sr(s_t2), sr(s_t2)))
    A('s_lshl_b32 %s, %s, 24' % (sr(s_t2), sr(s_t2)))
    assert VX - KX == 1 << 24
    A('s_add_u32 %s, %s, %s' % (sr(s_t2), sr(s_t2), sr(s_cnt)))
    A('s_lshl_b32 %s, %s, 15' % (sr(s_cnt), sr(s_x)))
    A('s_add_u32 %s, %s, %s' % (sr(s_t2), sr(s_t2), sr(s_cnt)))
    A('s_add_u32 %s, %s, 0x%x' % (sr(s_t2), sr(s_t2), KX + 0x40000))
    A('v_lshl_add_u32 %s, %s, 5, %s' % (vr(va_warm), vr(v_lane), sr(s_t2)))
    A('v_add_u32 %s, %d, %s' % (vr(va_or), LDS_O, vr(l16)))
    A('v_lshrrev_b32 %s, 3, %s' % (vr(ta), vr(v_nu)))
    A('v_mul_u32_u24 %s, %d, %s' % (vr(ta), 1024 - 128, vr(ta)))
    A('s_lshl_b32 %s, %s, 11' % (sr(s_t2), sr(s_w)))
    A('v_add3_u32 %s, %s, %s, %s' % (vr(va_ow), sr(s_t2), vr(va_or), vr(ta)))
    A('s_lshl_b32 %s, %s, 13' % (sr(s_vxl), sr(s_w)))
    A('v_add_u32 %s, %s, %s' % (vr(va_vxr), sr(s_vxl), vr(l16)))
    if stamps:
        A('s_lshl_b32 %s, %s, 4' % (sr(s_stamp), sr(s_ob)))
        A('s_lshl_b32 %s, %s, 12' % (sr(s_t2), sr(s_w)))
        A('s_add_u32 %s, %s, %s' % (sr(s_stamp), sr(s_stamp), sr(s_t2)))
        A('s_add_u32 %s, %s, 0x%x' % (sr(s_stamp), sr(s_stamp), STAMP))
        A('s_add_u32 %s, %s, 65536' % (sr(s_stl), sr(s_t2)))

    vq1, vq2, vr_, vcq = acc1, acc1 + 1, acc1 + 2, acc1 + 3
    A('v_bfe_u32 %s, %s, 2, 2' % (vr(vr_), vr(v_lane)))
    A('v_and_b32 %s, 3, %s' % (vr(vcq), vr(v_lane)))
    A('v_lshl_add_u32 %s, %s, 3, %s' % (vr(vq1), vr(v_g), vr(vr_)))
    A('v_lshlrev_b32 %s, 6, %s' % (vr(vq1), vr(vq1)))
    A('v_lshl_add_u32 %s, %s, 3, %s' % (vr(vq1), vr(vcq), vr(vq1)))
    A('s_lshl_b32 %s, %s, 14' % (sr(s_t2), sr(s_w)))
    A('v_add_u32 %s, %s, %s' % (vr(vq1), sr(s_t2), vr(vq1)))
    A('v_add_u32 %s, 65536, %s' % (vr(tb), vr(vq1)))
    if stamps:
        A('s_memrealtime %s' % sr(s_e + 2, 2))
    A('s_waitcnt vmcnt(48)')
    if stamps:
        A('s_memrealtime %s' % sr(s_e + 4, 2))
    A('s_barrier')
    for kk in range(4):
        for tl in range(4):
            for bh in range(2):
                for q in range(2):
                    A('ds_read_b64_tr_b16 %s, %s offset:%d' % (ar(W1 + 8 * (kk * 6 + tl) + 4 * bh + 2 * q, 2), vr(tb if tl >= 2 else vq1), kk * 4096 + bh * 2048 + q * 256 + (tl & 1) * 32))
            A('s_waitcnt lgkmcnt(8)')
    A('s_waitcnt lgkmcnt(0)')
    A('s_barrier')
    A('s_waitcnt vmcnt(0)')
    A('s_lshl_b32 %s, %s, %d' % (sr(s_t2), sr(s_w), 10 if ILV else 14))
    A('v_add_u32 %s, %s, %s' % (vr(ta), sr(s_t2), vr(l16)))
    A('v_add_u32 %s, 65536, %s' % (vr(tb), vr(ta)))
    for i in range(16):
        A('ds_write_b128 %s, %s offset:%d' % (vr(ta), vr(LV + 4 * i, 4), i * IM * 1024))
        A('ds_write_b128 %s, %s offset:%d' % (vr(tb), vr(LO + 4 * i, 4), i * IM * 1024))
        A('s_waitcnt lgkmcnt(8)')
    A('s_waitcnt lgkmcnt(0)')
    A('s_barrier')
    for kk in range(4):
        for tl in range(2):
            for bh in range(2):
                for q in range(2):
                    A('ds_read_b64_tr_b16 %s, %s offset:%d' % (ar(W1 + 8 * (kk * 6 + 4 + tl) + 4 * bh + 2 * q, 2), vr(vq1), kk * 4096 + bh * 2048 + q * 256 + tl * 32))
            A('s_waitcnt lgkmcnt(8)')
    A('v_and_b32 %s, 1, %s' % (vr(vq2), vr(v_g)))
    A('v_lshl_add_u32 %s, %s, 5, %s' % (vr(vq2), vr(vq2), vr(vr_)))
    A('v_lshrrev_b32 %s, 1, %s' % (vr(tb), vr(v_g)))
    A('v_lshl_add_u32 %s, %s, 2, %s' % (vr(vq2), vr(tb), vr(vq2)))
    A('v_lshlrev_b32 %s, 7, %s' % (vr(vq2), vr(vq2)))
    A('v_lshl_add_u32 %s, %s, 3, %s' % (vr(vq2), vr(vcq), vr(vq2)))
    A('s_lshl_b32 %s, %s, 5' % (sr(s_t2), sr(s_w)))
    A('s_add_u32 %s, %s, 65536' % (sr(s_t2), sr(s_t2)))
    A('v_add_u32 %s, %s, %s' % (vr(vq2), sr(s_t2), vr(vq2)))
    for k in range(8):
        for bh in range(2):
            for q in range(2):
                A('ds_read_b64_tr_b16 %s, %s offset:%d' % (ar(W3 + 8 * k + 4 * bh + 2 * q, 2), vr(vq2), k * 8192 + q * 2048 + bh * 1024))
        A('s_waitcnt lgkmcnt(8)')
    A('s_waitcnt lgkmcnt(0)')
    A('s_barrier')

    def kx_ops():
        o = []
        for eb in range(4):
            so = s_kx if eb < 2 else s_kx2
            o.append(['buffer_load_dwordx4 %s, %s, %s, %s offen offset:%d' % (vr(KXA + 4 * eb, 4), vr(va_kx), sr(SRD_WS, 4), sr(so), (eb & 1) * 2048) + ' sc1'])
            o.append(['buffer_load_dwordx4 %s, %s, %s, %s offen offset:%d' % (vr(KXB + 4 * eb, 4), vr(va_kx), sr(SRD_WS, 4), sr(so), (eb & 1) * 2048 + 128) + ' sc1'])
        return o

    def vx_ops(nstage):
        o = []
        for T in range(8):
            eb = T >> 1
            so = s_kx if eb < 2 else s_kx2
            off = (eb & 1) * 2048 + (T & 1) * 256
            if T < nstage:
                o.append(['s_add_u32 m0, %s, %d' % (sr(s_vxl), 4096 + T * 1024 - off), 's_nop 0',
                          'buffer_load_dwordx4 %s, %s, %s offen offset:%d sc1 lds' % (vr(va_vx), sr(SRD_WS, 4), sr(so), off)])
            else:
                o.append(['buffer_load_dwordx4 %s, %s, %s, %s offen offset:%d sc1' % (vr(VXR + 4 * T, 4), vr(va_vx), sr(SRD_WS, 4), sr(so), off)])
        return o

    def emit(it):
        for t in (it if isinstance(it, list) else [it]):
            A(t)
            if t.startswith('buffer_'):
                nvm[0] += 1

    A('s_mov_b32 %s, 0' % sr(s_step))
    A('s_mov_b32 %s, 0x20202022' % sr(s_kvm))
    A('s_mov_b32 %s, 0x00202020' % sr(s_kvm + 1))
    A('s_mov_b32 %s, 0' % sr(s_slot))
    A('s_mov_b32 %s, 0x20000' % sr(s_slot1))
    A('s_mov_b32 %s, 0x40000' % sr(s_slot2))
    A('s_mov_b32 %s, 0' % sr(s_kx))
    A('s_mov_b32 %s, 4096' % sr(s_kx2))
    A('s_mov_b32 %s, 0' % sr(s_out))
    A('s_mov_b32 %s, 0' % sr(s_ps))
    A('s_mov_b32 %s, 0x80000' % sr(s_ps2))
    A('s_mov_b32 %s, %d' % (sr(s_kvo), DBG_KV0 * 128))

    def kv_wait(tag):
        Lw, Ld = A.uid('kvw' + tag), A.uid('kvd' + tag)
        A('s_mov_b32 %s, 0' % sr(s_cnt))
        A.label(Lw)
        A('s_sleep 4')
        A('buffer_load_dword %s, %s, %s, %s offen sc1' % (vr(v_kvf), vr(v_zero), sr(SRD_WS, 4), sr(s_kvo)))
        A('s_add_u32 %s, %s, 1' % (sr(s_cnt), sr(s_cnt)))
        A('s_cmp_gt_u32 %s, %s' % (sr(s_cnt), sr(s_lim)))
        A('s_cbranch_scc1 ' + Ld)
        A('s_waitcnt vmcnt(0)')
        A('v_cmp_gt_u32 vcc, 32, %s' % vr(v_kvf))
        A('s_cbranch_vccnz ' + Lw)
        A.label(Ld)
        A('s_waitcnt vmcnt(0)')
    stamp(7)
    if stamps and not LITE and not FINE:
        for i_, k_ in enumerate((11, 12, 13)):
            A('v_mov_b32 %s, %s' % (vr(v_t[7]), sr(s_e + 2 * i_)))
            A('ds_write_b32 %s, %s offset:%d' % (vr(v_t[6]), vr(v_t[7]), 4 * k_))
    if worker and TOUCH:
        s_tp = s_ptr
        SRD_E = SRD_A
        A('s_load_dwordx2 %s, s[0:1], 0' % sr(s_tp, 2))
        A('s_load_dwordx2 %s, s[0:1], 56' % sr(s_tp + 2, 2))
        A('s_load_dwordx4 %s, s[0:1], 64' % sr(s_tp + 4, 4))
        A('v_lshlrev_b32 %s, 7, %s' % (vr(v_t[7]), vr(v_lane)))
        A('s_lshl_b32 %s, %s, 4' % (sr(s_t1), sr(s_x)))
        A('s_add_u32 %s, %s, %s' % (sr(s_t1), sr(s_t1), sr(s_j)))
        A('s_lshl_b32 %s, %s, 2' % (sr(s_t1), sr(s_t1)))
        A('s_add_u32 %s, %s, %s' % (sr(s_t1), sr(s_t1), sr(s_w)))
        A('s_lshl_b32 %s, %s, 13' % (sr(s_t1), sr(s_t1)))
        A('s_waitcnt lgkmcnt(0)')
        for pi, nbytes in ((0, 4 << 20), (4, 6 << 20), (2, 4 << 20), (6, 2 << 20)):
            srd(SRD_E, s_tp + pi, nbytes)
            A('buffer_load_dword %s, %s, %s, %s offen' % (vr(v_junk), vr(v_t[7]), sr(SRD_E, 4), sr(s_t1)))
            if nbytes > (4 << 20):
                A('s_add_u32 %s, %s, 0x400000' % (sr(s_t2), sr(s_t1)))
                A('buffer_load_dword %s, %s, %s, %s offen' % (vr(v_junk), vr(v_t[7]), sr(SRD_E, 4), sr(s_t2)))
            A('s_nop 4')

    place_check(A, SRD_T, v_lane, v_t[0], v_t[1], s_cnt, POLL_LIMIT, L_restart)
    L_rdy = A.uid('rdy')
    L_rdy_done = A.uid('rdyd')
    A('v_mov_b32 %s, 32' % vr(v_t[0]))
    A('s_mov_b32 %s, 0' % sr(s_cnt))
    L_rdy0 = A.uid('rdy0')
    A('s_branch ' + L_rdy0)
    A.label(L_rdy)
    A('s_sleep 6')
    A.label(L_rdy0)
    A('buffer_load_dword %s, %s, %s, 0 offen sc1' % (vr(acc1 + 1), vr(v_t[0]), sr(SRD_T, 4)))
    A('s_add_u32 %s, %s, 1' % (sr(s_cnt), sr(s_cnt)))
    A('s_cmp_gt_u32 %s, %s' % (sr(s_cnt), sr(s_lim)))
    A('s_cbranch_scc1 ' + L_rdy_done)
    A('s_waitcnt vmcnt(0)')
    A('v_and_b32 %s, 0xffff, %s' % (vr(acc1), vr(acc1 + 1)))
    A('v_cmp_gt_u32 vcc, 128, %s' % vr(acc1))
    A('s_cbranch_vccnz ' + L_rdy)
    A.label(L_rdy_done)
    A('s_waitcnt vmcnt(0)')
    A('v_lshrrev_b32 %s, 16, %s' % (vr(acc1), vr(acc1 + 1)))
    A('v_cmp_%s_u32 vcc, 16, %s' % ('lt' if NEARX else 'ge', vr(acc1)))
    A('v_mov_b32 %s, 8192' % vr(acc1 + 1))
    A('v_cndmask_b32 %s, 0, %s, vcc' % (vr(acc1), vr(acc1 + 1)))
    A('v_add_u32 %s, %s, %s' % (vr(va_pr), vr(va_pr), vr(acc1)))
    A('v_add_u32 %s, %s, %s' % (vr(va_pw), vr(va_pw), vr(acc1)))
    A('v_mul_u32_u24 %s, 252, %s' % (vr(acc1), vr(v_g)))
    A('v_sub_u32 %s, %s, %s' % (vr(va_pd), vr(va_pw), vr(acc1)))
    A('v_lshlrev_b32 %s, 8, %s' % (vr(acc1), vr(v_g)))
    A('v_sub_u32 %s, %s, %s' % (vr(va_pw2), vr(va_pw), vr(acc1)))
    A('v_and_b32 %s, 1, %s' % (vr(acc1), vr(v_g)))
    A('v_lshlrev_b32 %s, 14, %s' % (vr(acc1), vr(acc1)))
    A('v_xor_b32 %s, %s, %s' % (vr(va_pw2), vr(va_pw2), vr(acc1)))
    A('v_lshrrev_b32 %s, 1, %s' % (vr(acc1), vr(v_g)))
    A('v_lshl_add_u32 %s, %s, 28, %s' % (vr(va_pw2), vr(acc1), vr(va_pw2)))

    if worker:
        kv_wait('0')
    stamp(9)

    def chk_piece(base, bits16, t0, t1):
        if bits16:
            A('v_pk_max_u16 %s, %s, %s' % (vr(t0), vr(base), vr(base + 1)))
            A('v_pk_max_u16 %s, %s, %s' % (vr(t1), vr(base + 2), vr(base + 3)))
            A('v_pk_max_u16 %s, %s, %s' % (vr(t0), vr(t0), vr(t1)))
            A('v_pk_max_u16 %s, %s, %s op_sel:[0,1] op_sel_hi:[1,0]' % (vr(t0), vr(t0), vr(t0)))
        else:
            A('v_max3_u32 %s, %s, %s, %s' % (vr(t0), vr(base), vr(base + 1), vr(base + 2)))
            A('v_max_u32 %s, %s, %s' % (vr(t0), vr(t0), vr(base + 3)))
        A('v_cmp_eq_u32 vcc, -1, %s' % vr(t0))

    ool = []

    def poll(n, load, base, bits16, tag, on_ok=None):
        Ld = A.uid('polld' + tag)
        Lf = A.uid('pollf' + tag)
        Lk = [A.uid('poll%s%d' % (tag, k)) for k in range(n)]
        Lc = [A.uid('chk%s%d' % (tag, k)) for k in range(n)]
        Lo = [A.uid('ok%s%d' % (tag, k)) for k in range(n)]
        Lfs = [A.uid('pollf%s%d' % (tag, k)) for k in range(n)]

        def issue(m, first=False):
            if first and tag == 'A' and A_BACK:
                Lsk = A.uid('sk')
                A('s_branch ' + Lsk)
            A.label(Lk[m])
            if tag == 'A' and A_BACK:
                A('s_sleep %d' % A_BACK)
                if first:
                    A.label(Lsk)
            for k in range(m, n):
                A(load(k))
            A('s_add_u32 %s, %s, 1' % (sr(s_cnt), sr(s_cnt)))
            A('s_cmp_gt_u32 %s, %s' % (sr(s_cnt), sr(s_lim)))
            A('s_cbranch_scc1 ' + Lfs[m])
        A('s_mov_b32 %s, 0' % sr(s_cnt))
        issue(0, True)
        for m in range(n):
            A.label(Lc[m])
            A('s_waitcnt vmcnt(%d)' % (n - 1 - m if PIPE else 0))
            if FINE == tag:
                stamp([7, 9, 11, 12][m])
            chk_piece(base + 4 * m, bits16, v_t[0], v_t[1])
            A('s_cbranch_vccnz ' + Lk[m])
            A.label(Lo[m])
            if on_ok:
                on_ok(m)
        A.label(Ld)

        def tail():
            for m in range(1, n):
                issue(m)
                A('s_branch ' + Lc[m])
            for m in range(n):
                A.label(Lfs[m])
                A('s_mov_b32 %s, 0' % sr(s_lim))
                A('s_waitcnt vmcnt(0)')
                A('s_branch ' + Lo[m])
        ool.append(tail)

    def halfadd(acc, d0, d1):
        A('v_permlane32_swap_b32 %s, %s' % (vr(acc), vr(acc + 2)))
        A('v_permlane32_swap_b32 %s, %s' % (vr(acc + 1), vr(acc + 3)))
        A('v_add_f32 %s, %s, %s' % (vr(d0), vr(acc), vr(acc + 2)))
        A('v_add_f32 %s, %s, %s' % (vr(d1), vr(acc + 1), vr(acc + 3)))

    def spread(main, side, n):
        pos = set()
        if n:
            for k in range(n):
                pos.add(int((k + 0.5) * len(main) / n))
        for i, m in enumerate(main):
            emit(m)
            if i in pos:
                emit(side.pop(0))

    def smf(acc, a, w):
        return 'v_smfmac_f32_16x16x64_bf16 %s, %s, %s, %s' % (vr(acc, 4), vr(a, 4), ar(w, 8), vr(v_idx))

    def frag(i):
        return M + 4 * i if i < 4 else F + 4 * (i - 4)

    L_last = name + '_last'

    def okA(k):
        for tl in range(4):
            A(smf(AC + 4 * tl, M + 4 * k, W1 + 8 * (k * 6 + tl)))

    def zero_acc():
        for i in range(24):
            A('v_mov_b32 %s, 0' % vr(AC + i))

    def advance():
        A('s_add_u32 %s, %s, 1' % (sr(s_step), sr(s_step)))
        A('s_mov_b32 %s, %s' % (sr(s_slot), sr(s_slot1)))
        A('s_mov_b32 %s, %s' % (sr(s_slot1), sr(s_slot2)))
        A('s_add_u32 %s, %s, 0x20000' % (sr(s_slot2), sr(s_slot2)))
        A('s_and_b32 %s, %s, 0x7ffff' % (sr(s_slot2), sr(s_slot2)))
        A('s_add_u32 %s, %s, 0x20000' % (sr(s_out), sr(s_out)))
        A('s_lshl_b32 %s, %s, 1' % (sr(s_ps), sr(s_slot)))
        A('s_lshl_b32 %s, %s, 1' % (sr(s_ps2), sr(s_slot2)))
        if stamps:
            A('s_add_u32 %s, %s, 64' % (sr(s_stl), sr(s_stl)))

    def ldA(k):
        return 'buffer_load_dwordx4 %s, %s, %s, %s offen offset:%d sc1' % (vr(M + 4 * k, 4), vr(va_memr), sr(SRD_WS, 4), sr(s_slot), k * 1024)

    def pollA():
        Lr, Lf, Lgo = A.uid('pA'), A.uid('pAf'), A.uid('pAg')
        for k in range(4):
            A(ldA(k))
        zero_acc()
        A('s_mov_b32 %s, 15' % sr(s_pend))
        A('s_mov_b32 %s, 0' % sr(s_cnt))
        A.label(Lr)
        A('s_add_u32 %s, %s, 1' % (sr(s_cnt), sr(s_cnt)))
        A('s_mov_b32 %s, 0' % sr(s_t0))
        A('s_cmp_gt_u32 %s, %s' % (sr(s_cnt), sr(s_lim)))
        A('s_cbranch_scc1 ' + Lf)
        A('s_waitcnt vmcnt(0)')
        for k in range(4):
            A('v_max3_u32 %s, %s, %s, %s' % (vr(v_t[k]), vr(M + 4 * k), vr(M + 4 * k + 1), vr(M + 4 * k + 2)))
        for k in range(4):
            A('v_max_u32 %s, %s, %s' % (vr(v_t[k]), vr(v_t[k]), vr(M + 4 * k + 3)))
        for k in range(4):
            A('v_cmp_eq_u32 %s, -1, %s' % (sr(s_bad + 2 * k, 2), vr(v_t[k])))
        for k in range(4):
            Ls = A.uid('pAs')
            A('s_cmp_eq_u64 %s, 0' % sr(s_bad + 2 * k, 2))
            A('s_cbranch_scc1 ' + Ls)
            A(ldA(k))
            A('s_bitset1_b32 %s, %d' % (sr(s_t0), k))
            A.label(Ls)
        A.label(Lgo)
        A('s_andn2_b32 %s, %s, %s' % (sr(s_t1), sr(s_pend), sr(s_t0)))
        A('s_mov_b32 %s, %s' % (sr(s_pend), sr(s_t0)))
        for k in range(4):
            Ls = A.uid('pAt')
            A('s_bitcmp1_b32 %s, %d' % (sr(s_t1), k))
            A('s_cbranch_scc0 ' + Ls)
            okA(k)
            A.label(Ls)
        A('s_cmp_lg_u32 %s, 0' % sr(s_pend))
        A('s_cbranch_scc1 ' + Lr)

        def tail():
            A.label(Lf)
            A('s_mov_b32 %s, 0' % sr(s_lim))
            A('s_waitcnt vmcnt(0)')
            A('s_branch ' + Lgo)
        ool.append(tail)

    def loop(red, fl):
        tg = ('r' if red else 'n') + ('f' if fl else '')
        ISC = ' sc1' if fl else ''
        pf = PF if red else PFN
        nl = pf[6]
        nstage = 8 if red else max(0, sum(pf[:4]) - 8)
        pfl = kx_ops() + vx_ops(nstage)
        if NOPF == 1 or (NOPF == 2 and red) or (NOPF == 3 and not red):
            pfl = [['s_nop 0'] for _ in pfl]
        late = pfl[16 - nl:]
        L_st, L_B = name + '_step' + tg, name + '_B' + tg
        A.label(name + '_first' + tg)
        for it in (kx_ops() + vx_ops(nstage))[:16 - nl]:
            emit(it)
        zero_acc()
        for k in range(4):
            okA(k)
        A('s_waitcnt vmcnt(0)')
        A('s_branch ' + L_B)
        A.label(L_st)
        if OOO:
            pollA()
        else:
            zero_acc()
            poll(4, ldA, M, False, 'A', okA)
        A.label(L_B)
        stamp(0)
        vs = [smf(AC + 4 * tl, M + 4 * k, W1 + 8 * (k * 6 + tl)) for tl in (4, 5) for k in range(4)]
        for tl in range(4):
            A(vs.pop(0))
            if late:
                emit(late.pop(0))
            A('v_permlane32_swap_b32 %s, %s' % (vr(AC + 4 * tl), vr(AC + 4 * tl + 2)))
            A('v_permlane32_swap_b32 %s, %s' % (vr(AC + 4 * tl + 1), vr(AC + 4 * tl + 3)))
            A(vs.pop(0))
            A('v_pk_add_f32 %s, %s, %s' % (vr(HA + 2 * tl, 2), vr(AC + 4 * tl, 2), vr(AC + 4 * tl + 2, 2)))
            A('ds_write_b64 %s, %s offset:%d' % (vr(va_rw), vr(HA + 2 * tl, 2), tl * 512))
        assert not late
        A('s_waitcnt lgkmcnt(0)')
        A('s_barrier')
        if FINE:
            stamp(15)
        A('ds_read_b128 %s, %s' % (vr(RD, 4), vr(va_rr)))
        A('ds_read_b128 %s, %s offset:3072' % (vr(RD + 4, 4), vr(va_rr)))
        for tl in (4, 5):
            A('v_permlane32_swap_b32 %s, %s' % (vr(AC + 4 * tl), vr(AC + 4 * tl + 2)))
            A('v_permlane32_swap_b32 %s, %s' % (vr(AC + 4 * tl + 1), vr(AC + 4 * tl + 3)))
            A('v_pk_add_f32 %s, %s, %s' % (vr(HA + 2 * tl, 2), vr(AC + 4 * tl, 2), vr(AC + 4 * tl + 2, 2)))
            A('ds_write_b64 %s, %s offset:%d' % (vr(va_rw), vr(HA + 2 * tl, 2), tl * 512))
        A('s_waitcnt lgkmcnt(2)')
        A('v_pk_add_f32 %s, %s, %s' % (vr(RD, 2), vr(RD, 2), vr(RD + 4, 2)))
        A('v_pk_add_f32 %s, %s, %s' % (vr(RD + 2, 2), vr(RD + 2, 2), vr(RD + 6, 2)))
        A('v_permlane32_swap_b32 %s, %s' % (vr(RD), vr(RD + 1)))
        A('v_permlane32_swap_b32 %s, %s' % (vr(RD + 2), vr(RD + 3)))
        A('v_add_f32 %s, %s, %s' % (vr(v_t[0]), vr(RD), vr(RD + 1)))
        A('v_add_f32 %s, %s, %s' % (vr(v_t[1]), vr(RD + 2), vr(RD + 3)))
        A('v_cvt_pk_bf16_f32 %s, %s, %s' % (vr(v_t[2]), vr(v_t[0]), vr(v_t[1])))
        A('v_pk_min_u16 %s, %s, %s' % (vr(v_t[2]), vr(v_t[2]), sr(s_fffe)))
        A('buffer_store_dword %s, %s, %s, %s offen%s' % (vr(v_t[2]), vr(va_qks), sr(SRD_WS, 4), sr(s_slot), ISC))
        if FINE:
            stamp(13)

        def ldC(st_):
            for k in range(4):
                A('buffer_load_dwordx4 %s, %s, %s, %s offen offset:%d sc1' % (vr(st_ + 4 * k, 4), vr(va_qkr), sr(SRD_WS, 4), sr(s_slot), k * 1024))

        def procC(st_, younger):
            for t in range(4):
                A('s_waitcnt vmcnt(%d)' % (3 - t + younger))
                q = st_ + 4 * t
                A('v_mfma_f32_16x16x32_bf16 %s, %s, %s, %s' % (vr(SA, 4), vr(KXA + 4 * t, 4), vr(q, 4), vr(v_maskx, 4) if t == 0 else vr(SA, 4)))
                if t == 0:
                    A('v_max3_u32 %s, %s, %s, %s' % (vr(v_t[0]), vr(q), vr(q + 1), vr(q + 2)))
                else:
                    A('v_max3_u32 %s, %s, %s, %s' % (vr(v_t[0]), vr(v_t[0]), vr(q), vr(q + 1)))
                A('v_mfma_f32_16x16x32_bf16 %s, %s, %s, %s' % (vr(SB, 4), vr(KXB + 4 * t, 4), vr(q, 4), vr(v_maskx, 4) if t == 0 else vr(SB, 4)))
                if t == 0:
                    A('v_max_u32 %s, %s, %s' % (vr(v_t[0]), vr(v_t[0]), vr(q + 3)))
                else:
                    A('v_max3_u32 %s, %s, %s, %s' % (vr(v_t[0]), vr(v_t[0]), vr(q + 2), vr(q + 3)))
                if t == 3:
                    A('v_cmp_eq_u32 vcc, -1, %s' % vr(v_t[0]))
                A('v_mfma_f32_16x16x32_bf16 %s, %s, %s, %s' % (vr(SM, 4), vr(q, 4), vr(q, 4), vr(v_mask, 4) if t == 0 else vr(SM, 4)))
        if C2 == 1:
            ldC(QK)
        A('s_waitcnt lgkmcnt(0)')
        A('s_barrier')
        A('ds_read_b128 %s, %s' % (vr(RD + 8, 4), vr(va_rrv)))
        A('ds_read_b128 %s, %s offset:3072' % (vr(RD + 12, 4), vr(va_rrv)))
        if C2 == 2:
            ldC(QK)
        A('s_waitcnt lgkmcnt(0)')
        A('v_pk_add_f32 %s, %s, %s' % (vr(RD + 8, 2), vr(RD + 8, 2), vr(RD + 12, 2)))
        A('v_pk_add_f32 %s, %s, %s' % (vr(RD + 10, 2), vr(RD + 10, 2), vr(RD + 14, 2)))
        for T in range(8 - nl):
            if T < nstage:
                A('ds_read_b128 %s, %s offset:%d' % (vr(VXR + 4 * T, 4), vr(va_vxr), 4096 + T * 1024))
        halfadd(RD + 8, v_t[0], v_t[1])
        A('v_cvt_pk_bf16_f32 %s, %s, %s' % (vr(v_t[3]), vr(v_t[0]), vr(v_t[1])))
        A('v_pk_min_u16 %s, %s, %s' % (vr(v_t[3]), vr(v_t[3]), sr(s_fffe)))
        A('buffer_store_dword %s, %s, %s, %s offen%s' % (vr(v_t[3]), vr(va_vs), sr(SRD_WS, 4), sr(s_slot), ISC))
        stamp(1)
        A('s_cmp_ge_u32 %s, %d' % (sr(s_step), nsteps - 1))
        A('s_cbranch_scc1 ' + L_last)
        A('s_add_u32 %s, %s, 0x40000' % (sr(s_kx), sr(s_kx)))
        A('s_add_u32 %s, %s, 0x40000' % (sr(s_kx2), sr(s_kx2)))
        if DELAY_C:
            A('s_sleep %d' % DELAY_C)

        Lc, Lcf, Lcd = A.uid('pC'), A.uid('pCf'), A.uid('pCd')
        A('s_mov_b32 %s, 1' % sr(s_cnt))
        if C2:
            if C2B:
                ldC(M)
            procC(QK, 1 + (4 if C2B else 0))
            A('s_cbranch_vccnz ' + Lcf)
            A.label(Lcd)

            def tailC():
                A.label(Lcf)
                if C2B:
                    A('s_add_u32 %s, %s, 1' % (sr(s_cnt), sr(s_cnt)))
                    procC(M, 0)
                    A('s_cbranch_vccz ' + Lcd)
                A.label(Lc)
                ldC(QK)
                A('s_add_u32 %s, %s, 1' % (sr(s_cnt), sr(s_cnt)))
                procC(QK, 0)
                A('s_cbranch_vccz ' + Lcd)
                A('s_cmp_le_u32 %s, %s' % (sr(s_cnt), sr(s_lim)))
                A('s_cbranch_scc1 ' + Lc)
                A('s_mov_b32 %s, 0' % sr(s_lim))
                A('s_branch ' + Lcd)
            ool.append(tailC)
        else:
            A.label(Lc)
            ldC(QK)
            procC(QK, 0)
            A('s_cbranch_vccnz ' + Lcf)
            A.label(Lcd)

            def tailC():
                A.label(Lcf)
                A('s_add_u32 %s, %s, 1' % (sr(s_cnt), sr(s_cnt)))
                A('s_cmp_le_u32 %s, %s' % (sr(s_cnt), sr(s_lim)))
                A('s_cbranch_scc1 ' + Lc)
                A('s_mov_b32 %s, 0' % sr(s_lim))
                A('s_branch ' + Lcd)
            ool.append(tailC)
        stamp(2)

        def vload(k):
            return 'buffer_load_dwordx4 %s, %s, %s, %s offen offset:%d sc1' % (vr(VMR + 4 * k, 4), vr(va_vmr), sr(SRD_WS, 4), sr(s_slot), k * 1024)
        for k in range(2):
            A(vload(k))
        for T in range(8 - nl, 8):
            A('ds_read_b128 %s, %s offset:%d' % (vr(VXR + 4 * T, 4), vr(va_vxr), 4096 + T * 1024))
        nvm[0] = 0
        side = list(pfl[:16 - nl])
        s = [SA + i for i in range(12)]
        sm = []
        sm.append('v_max3_f32 %s, %s, %s, %s' % (vr(v_mx), vr(s[0]), vr(s[1]), vr(s[2])))
        sm.append('v_max3_f32 %s, %s, %s, %s' % (vr(v_mx2), vr(s[3]), vr(s[4]), vr(v_bias)))
        sm.append('v_max3_f32 %s, %s, %s, %s' % (vr(v_mx), vr(v_mx), vr(s[5]), vr(s[6])))
        sm.append('v_max3_f32 %s, %s, %s, %s' % (vr(v_mx2), vr(v_mx2), vr(s[7]), vr(s[8])))
        sm.append('v_max3_f32 %s, %s, %s, %s' % (vr(v_mx), vr(v_mx), vr(s[9]), vr(s[10])))
        sm.append('v_max3_f32 %s, %s, %s, %s' % (vr(v_mx), vr(v_mx), vr(v_mx2), vr(s[11])))

        def xlane(op, a, b):
            o = []
            for sw in ('v_permlane32_swap_b32', 'v_permlane16_swap_b32'):
                o.append('v_mov_b32 %s, %s' % (vr(b), vr(a)))
                o.append('%s %s, %s' % (sw, vr(a), vr(b)))
                o.append('%s %s, %s, %s' % (op, vr(a), vr(a), vr(b)))
            return o
        sm += xlane('v_max_f32', v_mx, v_mx2)
        sm.append('v_mul_f32 %s, %s, %s' % (vr(v_mx), sr(s_c), vr(v_mx)))
        for i in range(8):
            sm.append('v_fma_f32 %s, %s, %s, -%s' % (vr(s[i]), vr(s[i]), sr(s_c), vr(v_mx)))
        for i in range(8):
            sm.append('v_exp_f32 %s, %s' % (vr(s[i]), vr(s[i])))
            if i >= 2 and i % 2 == 0:
                sm.append('v_cvt_pk_bf16_f32 %s, %s, %s' % (vr(PX + i // 2 - 1), vr(s[i - 2]), vr(s[i - 1])))
        sm.append('v_fma_f32 %s, %s, %s, -%s' % (vr(s[8]), vr(s[8]), sr(s_c), vr(v_mx)))
        sm.append('v_cvt_pk_bf16_f32 %s, %s, %s' % (vr(PX + 3), vr(s[6]), vr(s[7])))
        sm.append('v_fma_f32 %s, %s, %s, -%s' % (vr(s[9]), vr(s[9]), sr(s_c), vr(v_mx)))
        spread(sm, side, pf[0])
        A('s_waitcnt lgkmcnt(0)')
        stamp(3)

        def dpp8(d, srcr):
            return 'v_mov_b32_dpp %s, %s row_shr:8 row_mask:0xf bank_mask:0xf bound_ctrl:0' % (vr(d), vr(srcr))
        t = v_t
        sh = []
        for i in range(10, 12):
            sh.append('v_fma_f32 %s, %s, %s, -%s' % (vr(s[i]), vr(s[i]), sr(s_c), vr(v_mx)))
        for i in range(4):
            sh.append(dpp8(PXH + i, PX + i))
        for i in range(8, 12):
            sh.append('v_exp_f32 %s, %s' % (vr(s[i]), vr(s[i])))
        for i in range(2):
            sh.append('v_cvt_pk_bf16_f32 %s, %s, %s' % (vr(PM + i), vr(s[8 + 2 * i]), vr(s[9 + 2 * i])))
        sh.append('s_waitcnt vmcnt(VMCNT)')
        sh.append('v_max3_u32 %s, %s, %s, %s' % (vr(t[0]), vr(VMR), vr(VMR + 1), vr(VMR + 2)))
        sh.append('v_max3_u32 %s, %s, %s, %s' % (vr(t[1]), vr(VMR + 3), vr(VMR + 4), vr(VMR + 5)))
        sh.append(dpp8(PMH, PM))
        sh.append(dpp8(PMH + 1, PM + 1))
        sh.append('v_max3_u32 %s, %s, %s, %s' % (vr(t[0]), vr(t[0]), vr(VMR + 6), vr(VMR + 7)))
        sh.append('v_max_u32 %s, %s, %s' % (vr(t[0]), vr(t[0]), vr(t[1])))
        sh.append('v_permlane32_swap_b32 %s, %s' % (vr(PMH), vr(PM)))
        sh.append('v_permlane32_swap_b32 %s, %s' % (vr(PMH + 1), vr(PM + 1)))
        sh.append('v_cmp_eq_u32 vcc, -1, %s' % vr(t[0]))
        mf = ['v_mfma_f32_16x16x32_bf16 %s, %s, %s, 0' % (vr(LS, 4), vr(v_ones, 4), vr(PX, 4))]
        for a in range(4):
            mf.append('v_mfma_f32_16x16x32_bf16 %s, %s, %s, 0' % (vr(O + 4 * a, 4), vr(VXR + 4 * a, 4), vr(PX, 4)))
        for a in range(4):
            mf.append('v_mfma_f32_16x16x32_bf16 %s, %s, %s, %s' % (vr(O + 4 * a, 4), vr(VXR + 4 * (a + 4), 4), vr(PXH, 4), vr(O + 4 * a, 4)))
        per = [3, 3, 2, 2, 2, 2, 3, 3, 1]
        npf = pf[1]
        for i, m in enumerate(mf):
            A(m)
            for _ in range(per[i]):
                if sh:
                    x = sh.pop(0)
                    if 'VMCNT' in x:
                        A(x.replace('VMCNT', str(nvm[0])))
                        x = sh.pop(0)
                    A(x)
            if npf and i in (1, 3, 6, 8):
                emit(side.pop(0))
                npf -= 1
        assert not sh
        Lv_ok, Lv_slow = A.uid('vok'), A.uid('vslow')
        A('s_cbranch_vccnz ' + Lv_slow)
        A.label(Lv_ok)

        def tailV():
            A.label(Lv_slow)
            poll(2, vload, VMR, False, 'V')
            A('s_branch ' + Lv_ok)
        ool.append(tailV)
        A('v_mfma_f32_16x16x16_bf16 %s, %s, %s, %s' % (vr(LS, 4), vr(v_ones, 2), vr(PM, 2), vr(LS, 4)))
        pm = ['v_mfma_f32_16x16x16_bf16 %s, %s, %s, %s' % (vr(O + 4 * a, 4), vr(VMR + 2 * a, 2), vr(PM, 2), vr(O + 4 * a, 4)) for a in range(4)]

        def nrm(a):
            g = []
            for r in range(0, 4, 2):
                g.append('v_pk_mul_f32 %s, %s, %s op_sel_hi:[1,0]' % (vr(O + 4 * a + r, 2), vr(O + 4 * a + r, 2), vr(v_l, 2)))
            g.append('v_cvt_pk_bf16_f32 %s, %s, %s' % (vr(XY + a), vr(O + 4 * a), vr(O + 4 * a + 1)))
            g.append('v_cvt_pk_bf16_f32 %s, %s, %s' % (vr(XY + 4 + a), vr(O + 4 * a + 2), vr(O + 4 * a + 3)))
            return g
        for i in range(4):
            A(pm[i])
            A('v_mov_b32 %s, 0' % vr(acc1 + i))
        for _ in range(pf[2]):
            emit(side.pop(0))
        A('v_rcp_f32 %s, %s' % (vr(v_l), vr(LS)))
        A('v_mov_b32_dpp %s, %s row_shr:8 row_mask:0xf bank_mask:0xc' % (vr(v_l), vr(v_l)))
        npf = pf[3]
        for a in range(4):
            for x in nrm(a):
                A(x)
            if npf and a < 3:
                emit(side.pop(0))
                npf -= 1
        assert npf == 0
        A('ds_write_b128 %s, %s' % (vr(va_ow), vr(XY, 4)))
        A('ds_write_b128 %s, %s offset:128' % (vr(va_ow), vr(XY + 4, 4)))
        A('s_waitcnt lgkmcnt(0)')
        stamp(4)
        A('s_barrier')
        for k in range(8):
            A('ds_read_b128 %s, %s offset:%d' % (vr(G + 4 * k, 4), vr(va_or), k * 1024))
        hk = {'w': 'buffer_load_dword %s, %s, %s, %s offen sc1' % (vr(v_junk), vr(va_warm), sr(SRD_WS, 4), sr(s_kx)),
              'c': 'buffer_store_dwordx4 %s, %s, %s, %s offen sc1' % (vr(RB, 4), vr(va_cp), sr(SRD_WS, 4), sr(s_out)),
              'r': 'buffer_store_dwordx4 %s, %s, %s, %s offen sc1' % (vr(v_m1, 4), vr(va_pw2), sr(SRD_WS, 4), sr(s_ps2))}
        if not red:
            A('buffer_load_dwordx4 %s, %s, %s, %s offen sc1' % (vr(RB, 4), vr(va_rb), sr(SRD_WS, 4), sr(s_slot)))
            assert not HK_D
        if worker:
            L_kvok, L_kvslow = A.uid('kvok'), A.uid('kvslow')
            A('v_cmp_gt_u32 vcc, 32, %s' % vr(v_kvf))
            A('s_cbranch_vccnz ' + L_kvslow)
            A.label(L_kvok)

            def kvtail():
                A.label(L_kvslow)
                kv_wait('s')
                A('s_branch ' + L_kvok)
            ool.append(kvtail)
            L_nokv, L_dokv = A.uid('nokv'), A.uid('dokv')
            assert 'w' not in HK_D
            A('s_add_u32 %s, %s, 3' % (sr(s_t0), sr(s_step)))
            A('s_bitcmp1_b64 %s, %s' % (sr(s_kvm, 2), sr(s_step)))
            A('s_cbranch_scc1 ' + L_dokv)
            A.label(L_nokv)

            def kvld():
                A.label(L_dokv)
                A('s_lshr_b32 %s, %s, 3' % (sr(s_kvo), sr(s_t0)))
                A('s_min_u32 %s, %s, 7' % (sr(s_kvo), sr(s_kvo)))
                A('s_lshl_b32 %s, %s, 9' % (sr(s_kvo), sr(s_kvo)))
                A('s_add_u32 %s, %s, %d' % (sr(s_kvo), sr(s_kvo), DBG_KV * 128))
                A('buffer_load_dword %s, %s, %s, %s offen sc1' % (vr(v_kvf), vr(v_zero), sr(SRD_WS, 4), sr(s_kvo)))
                A('s_branch ' + L_nokv)
            ool.append(kvld)
        for k in range(8):
            A('s_waitcnt lgkmcnt(%d)' % (7 - k))
            A(smf(acc1, G + 4 * k, W3 + 8 * k))
        halfadd(acc1, v_t[0], v_t[1])
        A('v_cvt_pk_bf16_f32 %s, %s, %s' % (vr(acc2), vr(v_t[0]), vr(v_t[1])))
        A('v_pk_min_u16 %s, %s, %s' % (vr(acc2), vr(acc2), sr(s_fffe)))
        A('buffer_store_dword %s, %s, %s, %s offen sc1' % (vr(acc2), vr(va_pd), sr(SRD_WS, 4), sr(s_ps)))
        stamp(5)
        if red:
            for _ in range(pf[4]):
                emit(side.pop(0))
            assert not side, len(side)
            if DELAY_E:
                A('s_sleep %d' % DELAY_E)

            def okE(k):
                A('v_mfma_f32_16x16x32_bf16 %s, %s, %s, %s' % (vr(LS, 4), vr(PR + 4 * k, 4), vr(v_sel, 4), '0' if k == 0 else vr(LS, 4)))
            ldE = lambda k: 'buffer_load_dwordx4 %s, %s, %s, %s offen offset:%d sc1' % (vr(PR + 4 * k, 4), vr(va_pr), sr(SRD_WS, 4), sr(s_ps), k * 1024)
            poll(2, ldE, PR, False, 'E', okE)
            stamp(6)
            advance()
            A('v_cvt_pk_bf16_f32 %s, %s, %s' % (vr(v_t[2]), vr(LS), vr(LS + 1)))
            A('v_cvt_pk_bf16_f32 %s, %s, %s' % (vr(v_t[3]), vr(LS + 2), vr(LS + 3)))
            A('v_cndmask_b32 %s, %s, %s, %s' % (vr(v_t[2]), vr(v_t[2]), vr(v_t[3]), sr(s_hf, 2)))
            A('v_pk_min_u16 %s, %s, %s' % (vr(v_t[2]), vr(v_t[2]), sr(s_fffe)))
            A('buffer_store_dword %s, %s, %s, %s offen%s' % (vr(v_t[2]), vr(va_mems), sr(SRD_WS, 4), sr(s_slot), ISC))
            if RED_SLEEP:
                A('s_sleep %d' % RED_SLEEP)
        else:
            A('s_waitcnt vmcnt(1)')
            for c_ in HK_P:
                A(hk[c_])
            if worker:
                A('v_mov_b32 %s, %s' % (vr(v_junk2), sr(s_step)))
                A('buffer_store_dword %s, %s, %s, 0 offen sc1' % (vr(v_junk2), vr(va_prog), sr(SRD_WS, 4)))
            A('buffer_store_dwordx4 %s, %s, %s, %s offen%s' % (vr(v_m1, 4), vr(va_rb), sr(SRD_WS, 4), sr(s_slot2), ISC))
            A('buffer_store_dword %s, %s, %s, %s offen%s' % (vr(v_m1), vr(va_mems), sr(SRD_WS, 4), sr(s_slot2), ISC))
            for _ in range(pf[4]):
                emit(side.pop(0))
            assert not side, len(side)
            for c_ in HK_L:
                A(hk[c_])
            stamp(6)
            advance()
            if NOE_SLEEP:
                A('s_sleep %d' % NOE_SLEEP)
        A('s_branch ' + L_st)

    L_safe = A.uid('safe')
    A('s_cmp_lg_u32 s%d, 0' % S_MODE)
    A('s_cbranch_scc1 ' + L_safe)
    A('s_cmp_lg_u32 %s, 0' % sr(s_red))
    A('s_cbranch_scc1 ' + name + '_firstn')
    loop(True, False)
    loop(False, False)
    while ool:
        ool.pop(0)()
    A.label(L_safe)
    A('s_cmp_lg_u32 %s, 0' % sr(s_red))
    A('s_cbranch_scc1 ' + name + '_firstnf')
    loop(True, True)
    loop(False, True)
    while ool:
        ool.pop(0)()
    A.label(L_last)
    A('s_waitcnt vmcnt(0)')
    A('s_barrier')
    L_l1 = A.uid('l1')
    A('s_cmp_ge_u32 %s, 2' % sr(s_w))
    A('s_cbranch_scc1 ' + L_l1)
    A('buffer_load_dwordx4 %s, %s, %s, %s offen sc1' % (vr(RB, 4), vr(va_rb), sr(SRD_WS, 4), sr(s_slot)))
    A('s_waitcnt vmcnt(0)')
    A('buffer_store_dwordx4 %s, %s, %s, %s offen sc1' % (vr(RB, 4), vr(va_cp), sr(SRD_WS, 4), sr(s_out)))
    A.label(L_l1)
    if stamps:
        A('s_waitcnt lgkmcnt(0)')
        A('v_lshlrev_b32 %s, 4, %s' % (vr(v_t[0]), vr(v_lane)))
        A('s_lshl_b32 %s, %s, 12' % (sr(s_t2), sr(s_w)))
        A('s_add_u32 %s, %s, 65536' % (sr(s_t2), sr(s_t2)))
        A('v_add_u32 %s, %s, %s' % (vr(v_t[1]), sr(s_t2), vr(v_t[0])))
        for k in range(4):
            A('ds_read_b128 %s, %s offset:%d' % (vr(F + 4 * k, 4), vr(v_t[1]), k * 1024))
        A('s_waitcnt lgkmcnt(0)')
        for k in range(4):
            A('buffer_store_dwordx4 %s, %s, %s, %s offen offset:%d' % (vr(F + 4 * k, 4), vr(v_t[0]), sr(SRD_WS, 4), sr(s_stamp), k * 1024))
    if worker:
        A('s_waitcnt vmcnt(0) lgkmcnt(0)')
        A('s_barrier')
        A('s_cmp_lg_u32 %s, 0' % sr(s_w))
        A('s_cbranch_scc1 ' + L_work)
        A('s_lshr_b32 %s, %s, 1' % (sr(s_t0), sr(s_x)))
        A('s_lshl_b32 %s, %s, 7' % (sr(s_t0), sr(s_t0)))
        A('s_add_u32 %s, %s, 0x%x' % (sr(s_t0), sr(s_t0), CTR + DBG_FIN * 128))
        A('v_mov_b32 %s, %s' % (vr(v_t[0]), sr(s_t0)))
        A('v_mov_b32 %s, 1' % vr(v_t[1]))
        A('s_mov_b64 exec, 1')
        A('buffer_atomic_add %s, %s, %s, 0 offen sc1' % (vr(v_t[1]), vr(v_t[0]), sr(SRD_WS, 4)))
        A('s_mov_b64 exec, -1')
        A('s_branch ' + L_work)
    A.label(L_exit)
    A('s_endpgm')
    hi = S.hi
    if worker:
        A.label(L_work)
        hi = max(hi, worker(A, name))
    return dict(vgpr=512, accum=256, sgpr=102)
```

```python
from asmlib import *
from layout import *
import struct, os
from kernels import place_check, shift_ptrs


def f32bits(x):
    return struct.unpack('<I', struct.pack('<f', x))[0]


def env(n, d):
    return int(os.environ.get(n, str(d)))


LDS_RED = 131072
LDS_O = LDS_RED + 16384
LDS_ROLE = LDS_O + 8192
NSTEP = env('NSTEP', 64)
POLL_LIMIT = 400000
NEARX = env('NEARX', 1)
DELAY_C = env('DELAY_C', 4)
DELAY_E = env('DELAY_E', 25)
E_BACK = env('E_BACK', 0)
DELAY_V = env('DELAY_V', 0)
RED_SLEEP = env('RED_SLEEP', 1)
NOE_SLEEP = env('NOE_SLEEP', 0)
NOPF = env('NOPF', 0)
FORCE_SAFE = env('FORCE_SAFE', 0)
PFC = env('PFC', 0)
VS = [int(x) for x in os.environ.get('VS', '8,3,5').split(',')]
LITE = [int(x) for x in os.environ.get('LITE', '').split(',') if x]


def gen_chain(A, name, stamps=False, nsteps=NSTEP, worker=None):
    S = Regs('s', 16, 100)
    V = Regs('v', 1, 256)
    SRD_WS, SRD_T = 8, 12
    s_ptr = S.alloc(16, 4)
    (s_w, s_x, s_j, s_t0, s_t1, s_t2, s_t3, s_step, s_slot, s_slot1, s_slot2, s_slotp, s_kx, s_kx2, s_out, s_outp, s_fffe, s_c,
     s_lim, s_cnt, s_vote, s_stamp, s_stl, s_red, s_obm, s_kvo, s_ps, s_ps2, s_m0, s_m1) = [S.alloc() for _ in range(30)]
    s_hf = S.alloc(2, 2)
    s_tm = S.alloc(2, 2)
    s_ta = S.alloc(2, 2)
    s_kvm = S.alloc(2, 2)
    SRD_A = S.alloc(4, 4)
    SRD_B = S.alloc(4, 4)
    SRD_D = S.alloc(4, 4)
    v_lane, v_nu, v_g = V.alloc(), V.alloc(), V.alloc()
    v_t = [V.alloc() for _ in range(8)]
    (va_memr, va_mems, va_rw, va_rr, va_qks, va_rb, va_vs, va_cp, va_prog, va_qkr, va_vmr, va_kx, va_vx, va_ow, va_or, va_pw, va_pr,
     va_pz, va_pd, va_warm, v_idx, v_bias, v_junk, v_kvf, v_junk2, v_sh) = [V.alloc() for _ in range(26)]
    v_m1 = V.alloc(4, 4)
    v_mask = V.alloc(4, 4)
    v_sel = V.alloc(4, 4)
    v_maskx = V.alloc(4, 4)
    v_ones = V.alloc(4, 4)
    acc1 = V.alloc(4, 4)
    acc2 = V.alloc(4, 4)
    KXA = V.alloc(16, 4)
    KXB = V.alloc(16, 4)
    VXR = V.alloc(32, 4)
    F = V.alloc(64, 4)
    VMR = V.alloc(8, 4)
    QK = V.alloc(16, 4)
    M = V.alloc(16, 4)
    assert KXB == KXA + 16 and VXR == KXA + 32 and F == KXA + 64
    LND = KXA
    AC = F
    HA = F + 32
    RD = F + 48
    SA, SB, SM = F, F + 4, F + 8
    PX, PXH = F + 12, F + 16
    PM, PMH = F + 20, F + 22
    O = F + 28
    LS = F + 44
    v_mx, v_mx2, v_l = F + 48, F + 49, F + 50
    XY = QK
    G = F
    PR = KXA
    RB = KXA + 8
    W1, W2 = 0, 128
    L_exit = name + '_exit'
    nvm = [0]

    def stamp(k):
        if not stamps or (LITE and k not in LITE):
            return
        A('%s %s' % ('s_memrealtime' if stamps == 'rt' else 's_memtime', sr(s_tm, 2)))
        A('s_waitcnt lgkmcnt(0)')
        A('v_mov_b32 %s, %s' % (vr(v_t[7]), sr(s_tm)))
        A('v_mov_b32 %s, %s' % (vr(v_t[6]), sr(s_stl)))
        A('ds_write_b32 %s, %s offset:%d' % (vr(v_t[6]), vr(v_t[7]), 4 * k))
        if k in (0, 2, 6):
            A('v_mov_b32 %s, %s' % (vr(v_t[5]), sr(s_cnt)))
            A('ds_write_b32 %s, %s offset:%d' % (vr(v_t[6]), vr(v_t[5]), 4 * (8 + k)))

    def srd(dst, ptr, nbytes):
        A('s_mov_b32 %s, %s' % (sr(dst), sr(ptr)))
        A('s_and_b32 %s, %s, 0xffff' % (sr(dst + 1), sr(ptr + 1)))
        A('s_mov_b32 %s, 0x%x' % (sr(dst + 2), nbytes))
        A('s_mov_b32 %s, 0x00020000' % sr(dst + 3))

    A.raw('.p2align 8')
    A.label(name)
    A('s_cmp_ge_u32 s2, 256')
    A('s_cbranch_scc1 ' + L_exit)
    A('s_mov_b32 s%d, 0' % S_MODE)
    L_restart = name + '_restart'
    A.label(L_restart)
    A('s_load_dwordx2 %s, s[0:1], 8' % sr(s_ptr, 2))
    A('s_load_dwordx4 %s, s[0:1], 16' % sr(s_ptr + 4, 4))
    A('s_load_dwordx4 %s, s[0:1], 32' % sr(s_ptr + 8, 4))
    A('s_load_dwordx4 %s, s[0:1], 88' % sr(s_ptr + 12, 4))
    P_MEM0, P_WQ, P_WK, P_WV, P_WO, P_DBG, P_WS = s_ptr, s_ptr + 4, s_ptr + 6, s_ptr + 8, s_ptr + 10, s_ptr + 12, s_ptr + 14
    A('v_and_b32 %s, 63, v0' % vr(v_lane))
    A('v_lshrrev_b32 %s, 6, v0' % vr(v_t[0]))
    A('v_readfirstlane_b32 %s, %s' % (sr(s_w), vr(v_t[0])))
    A('v_and_b32 %s, 15, %s' % (vr(v_nu), vr(v_lane)))
    A('v_lshrrev_b32 %s, 4, %s' % (vr(v_g), vr(v_lane)))
    A('s_waitcnt lgkmcnt(0)')
    shift_ptrs(A, P_WS, P_DBG, s_t0)
    srd(SRD_WS, P_WS, WS_HALF)
    srd(SRD_T, P_DBG, 128)
    L_role = A.uid('role')
    A('s_lshr_b32 %s, s2, 5' % sr(s_x))
    A('s_and_b32 %s, s2, 31' % sr(s_j))
    A('s_cmp_lg_u32 s%d, 0' % S_MODE)
    A('s_cbranch_scc1 ' + L_role)
    A('s_getreg_b32 %s, hwreg(HW_REG_XCC_ID)' % sr(s_x))
    A('s_and_b32 %s, %s, 7' % (sr(s_x), sr(s_x)))
    if FORCE_SAFE:
        A('s_cmp_eq_u32 s2, %d' % FORCE_SAFE)
        A('s_cselect_b32 %s, 1, 0' % sr(s_t0))
        A('s_xor_b32 %s, %s, %s' % (sr(s_x), sr(s_x), sr(s_t0)))
    L_norole = A.uid('norole')
    A('s_cmp_lg_u32 %s, 0' % sr(s_w))
    A('s_cbranch_scc1 ' + L_norole)
    A('s_lshl_b32 %s, %s, 2' % (sr(s_t0), sr(s_x)))
    A('v_mov_b32 %s, %s' % (vr(v_t[0]), sr(s_t0)))
    A('v_mov_b32 %s, 1' % vr(v_t[1]))
    A('s_mov_b64 exec, 1')
    A('buffer_atomic_add %s, %s, %s, 0 offen sc0 sc1' % (vr(v_t[1]), vr(v_t[0]), sr(SRD_T, 4)))
    A('s_waitcnt vmcnt(0)')
    A('v_mov_b32 %s, %d' % (vr(v_t[0]), LDS_ROLE))
    A('ds_write_b32 %s, %s' % (vr(v_t[0]), vr(v_t[1])))
    A('s_waitcnt lgkmcnt(0)')
    A('s_mov_b64 exec, -1')
    A.label(L_norole)
    A('s_barrier')
    A('v_mov_b32 %s, %d' % (vr(v_t[0]), LDS_ROLE))
    A('ds_read_b32 %s, %s' % (vr(v_t[1]), vr(v_t[0])))
    A('s_waitcnt lgkmcnt(0)')
    A('v_readfirstlane_b32 %s, %s' % (sr(s_j), vr(v_t[1])))
    A.label(L_role)
    L_work = name + '_worker'
    A('s_mov_b32 s%d, %s' % (S_VX, sr(s_x)))
    A('s_mov_b32 s3, %s' % sr(s_j))
    A('s_cmp_ge_u32 %s, 4' % sr(s_x))
    A('s_cbranch_scc1 ' + L_work)
    A('s_cmp_ge_u32 %s, 32' % sr(s_j))
    A('s_cbranch_scc1 ' + L_work)
    A('s_mov_b32 s3, -1')
    A('s_lshl_b32 %s, %s, 1' % (sr(s_x), sr(s_x)))
    A('s_lshr_b32 %s, %s, 4' % (sr(s_t0), sr(s_j)))
    A('s_add_u32 %s, %s, %s' % (sr(s_x), sr(s_x), sr(s_t0)))
    A('s_and_b32 %s, %s, 15' % (sr(s_j), sr(s_j)))
    A('s_xor_b32 %s, %s, %s' % (sr(s_red), sr(s_x), sr(s_j)))
    A('s_and_b32 %s, %s, 1' % (sr(s_red), sr(s_red)))
    A('s_lshr_b32 %s, %s, 1' % (sr(s_obm), sr(s_x)))
    A('s_lshl_b32 %s, %s, 4' % (sr(s_obm), sr(s_obm)))
    A('s_add_u32 %s, %s, %s' % (sr(s_obm), sr(s_obm), sr(s_j)))
    A('s_lshl_b32 %s, %s, 10' % (sr(s_obm), sr(s_obm)))
    L_noz = A.uid('noz')
    A('s_or_b32 %s, %s, %s' % (sr(s_t0), sr(s_x), sr(s_j)))
    A('s_xor_b32 %s, %s, 1' % (sr(s_t1), sr(s_w)))
    A('s_or_b32 %s, %s, %s' % (sr(s_t0), sr(s_t0), sr(s_t1)))
    A('s_cmp_lg_u32 %s, 0' % sr(s_t0))
    A('s_cbranch_scc1 ' + L_noz)
    A('v_lshlrev_b32 %s, 7, %s' % (vr(v_t[0]), vr(v_lane)))
    A('v_mov_b32 %s, 0' % vr(v_t[1]))
    for i in range(4):
        A('s_mov_b32 %s, 0x%x' % (sr(s_t0), CTR + i * 8192))
        A('buffer_store_dword %s, %s, %s, %s offen sc1' % (vr(v_t[1]), vr(v_t[0]), sr(SRD_WS, 4), sr(s_t0)))
    A('s_waitcnt vmcnt(0)')
    A('v_mov_b32 %s, %d' % (vr(v_t[0]), DBG_INIT))
    A('v_mov_b32 %s, 1' % vr(v_t[1]))
    A('s_mov_b64 exec, 1')
    A('buffer_store_dword %s, %s, %s, 0 offen sc1' % (vr(v_t[1]), vr(v_t[0]), sr(SRD_T, 4)))
    A('s_mov_b64 exec, -1')
    A.label(L_noz)
    for i in range(4):
        A('v_mov_b32 %s, -1' % vr(v_m1 + i))
    l16 = v_t[2]
    A('v_lshlrev_b32 %s, 4, %s' % (vr(l16), vr(v_lane)))
    s_ob = s_t3
    A('s_lshl_b32 %s, %s, 4' % (sr(s_ob), sr(s_x)))
    A('s_add_u32 %s, %s, %s' % (sr(s_ob), sr(s_ob), sr(s_j)))
    A('s_lshl_b32 %s, %s, 10' % (sr(s_ob), sr(s_ob)))

    A('s_lshl_b32 %s, %s, 17' % (sr(s_t0), sr(s_w)))
    A('s_add_u32 %s, %s, %s' % (sr(s_t2), sr(s_t0), sr(s_ob)))
    for base in (QKI, VMI):
        A('s_add_u32 %s, %s, 0x%x' % (sr(s_t1), sr(s_t2), base))
        A('buffer_store_dwordx4 %s, %s, %s, %s offen sc1' % (vr(v_m1, 4), vr(l16), sr(SRD_WS, 4), sr(s_t1)))
    A('s_add_u32 %s, %s, %s' % (sr(s_t0), sr(s_t0), sr(s_obm)))
    A('s_add_u32 %s, %s, 0x%x' % (sr(s_t1), sr(s_t0), MEMI))
    A('buffer_store_dwordx4 %s, %s, %s, %s offen sc1' % (vr(v_m1, 4), vr(l16), sr(SRD_WS, 4), sr(s_t1)))
    A('s_lshl_b32 %s, %s, 14' % (sr(s_t0), sr(s_j)))
    A('s_lshl_b32 %s, %s, 11' % (sr(s_t1), sr(s_w)))
    A('s_add_u32 %s, %s, %s' % (sr(s_t0), sr(s_t0), sr(s_t1)))
    A('s_add_u32 %s, %s, 0x%x' % (sr(s_t0), sr(s_t0), PART))
    A('v_add_u32 %s, %s, %s' % (vr(va_pr), sr(s_t0), vr(l16)))
    A('s_lshl_b32 %s, %s, 8' % (sr(s_t1), sr(s_x)))
    A('v_add_u32 %s, %s, %s' % (vr(va_pw), sr(s_t1), vr(va_pr)))
    A('v_add_u32 %s, 8192, %s' % (vr(va_pz), vr(va_pw)))
    A('s_mov_b64 exec, 0xffff')
    for sl in range(4):
        A('s_mov_b32 %s, 0x%x' % (sr(s_t1), sl * 0x40000))
        A('buffer_store_dwordx4 %s, %s, %s, %s offen sc1' % (vr(v_m1, 4), vr(va_pw), sr(SRD_WS, 4), sr(s_t1)))
        A('buffer_store_dwordx4 %s, %s, %s, %s offen sc1' % (vr(v_m1, 4), vr(va_pz), sr(SRD_WS, 4), sr(s_t1)))
    A('s_mov_b64 exec, -1')
    L_nocal, L_nocal2 = A.uid('nocal'), A.uid('nocal2')
    A('s_mov_b32 %s, 1' % sr(s_vote))
    A('s_cmp_ge_u32 %s, 4' % sr(s_j))
    A('s_cbranch_scc1 ' + L_nocal2)
    A('s_waitcnt vmcnt(0)')
    A('s_barrier')
    A('s_cmp_lg_u32 %s, 0' % sr(s_w))
    A('s_cbranch_scc1 ' + L_nocal)
    A('s_mov_b32 %s, -1' % sr(s_m0))
    A('s_mov_b32 %s, -1' % sr(s_m1))
    A('s_mov_b64 exec, 0xffff')
    for rep in range(2):
        for c in range(2):
            A('s_mov_b32 %s, %d' % (sr(s_t1), 0x80000 + rep * 0x40000))
            A('s_memtime %s' % sr(s_ta, 2))
            A('s_waitcnt lgkmcnt(0)')
            A('buffer_store_dwordx4 %s, %s, %s, %s offen sc1' % (vr(v_m1, 4), vr(va_pz if c else va_pw), sr(SRD_WS, 4), sr(s_t1)))
            A('s_waitcnt vmcnt(0)')
            A('s_memtime %s' % sr(s_tm, 2))
            A('s_waitcnt lgkmcnt(0)')
            A('s_sub_u32 %s, %s, %s' % (sr(s_t2), sr(s_tm), sr(s_ta)))
            A('s_min_u32 %s, %s, %s' % (sr(s_m1 if c else s_m0), sr(s_m1 if c else s_m0), sr(s_t2)))
    A('s_cmp_lt_u32 %s, %s' % (sr(s_m1), sr(s_m0)))
    A('s_cselect_b32 %s, 0x10001, 1' % sr(s_vote))
    A('s_mov_b64 exec, -1')
    A.label(L_nocal)
    A('s_barrier')
    A.label(L_nocal2)

    s_col = s_t2
    A('s_lshr_b32 %s, %s, 4' % (sr(s_col), sr(s_ob)))
    vw = v_t[4]
    A('v_lshrrev_b32 %s, 2, %s' % (vr(vw), vr(v_lane)))
    A('v_lshlrev_b32 %s, 13, %s' % (vr(vw), vr(vw)))
    A('v_and_b32 %s, 3, %s' % (vr(v_t[5]), vr(v_lane)))
    A('v_lshl_add_u32 %s, %s, 4, %s' % (vr(vw), vr(v_t[5]), vr(vw)))
    A('s_lshl_b32 %s, %s, 17' % (sr(s_t0), sr(s_w)))
    A('s_add_u32 %s, %s, %s' % (sr(s_col), sr(s_col), sr(s_t0)))
    A('s_lshl_b32 %s, %s, 10' % (sr(s_t0), sr(s_w)))
    for mi, P in enumerate((P_WQ, P_WK)):
        srd(SRD_A, P, 1024 * 4096 * 2)
        for i in range(16):
            A('s_add_u32 m0, %s, %d' % (sr(s_t0), mi * 65536 + i * 4096))
            A('s_add_u32 %s, %s, %d' % (sr(s_t1), sr(s_col), i * 4 * 131072))
            A('buffer_load_dwordx4 %s, %s, %s offen lds' % (vr(vw), sr(SRD_A, 4), sr(s_t1)))
        if mi == 0:
            A('s_waitcnt vmcnt(16)')
            A('s_barrier')
            L_nord = A.uid('nord')
            A('s_cmp_lg_u32 %s, 0' % sr(s_w))
            A('s_cbranch_scc1 ' + L_nord)
            A('v_mov_b32 %s, 32' % vr(acc2))
            A('v_mov_b32 %s, %s' % (vr(acc2 + 1), sr(s_vote)))
            A('s_mov_b64 exec, 1')
            A('buffer_atomic_add %s, %s, %s, 0 offen sc1' % (vr(acc2 + 1), vr(acc2), sr(SRD_T, 4)))
            A('s_mov_b64 exec, -1')
            A.label(L_nord)
            A('s_nop 4')
    v2 = v_t[5]
    LwN, LwJ = A.uid('wN'), A.uid('wJ')
    A('s_cmp_lg_u32 %s, 0' % sr(s_red))
    A('s_cbranch_scc1 ' + LwN)
    srd(SRD_B, P_WV, 1024 * 4096 * 2)
    A('v_lshrrev_b32 %s, 3, %s' % (vr(v2), vr(v_lane)))
    A('v_lshlrev_b32 %s, 13, %s' % (vr(v2), vr(v2)))
    A('v_and_b32 %s, 7, %s' % (vr(v_t[6]), vr(v_lane)))
    A('v_lshl_add_u32 %s, %s, 4, %s' % (vr(v2), vr(v_t[6]), vr(v2)))
    A('s_lshr_b32 %s, %s, 4' % (sr(s_t2), sr(s_ob)))
    A('s_andn2_b32 %s, %s, 64' % (sr(s_t2), sr(s_t2)))
    A('s_lshl_b32 %s, %s, 16' % (sr(s_t1), sr(s_w)))
    A('s_add_u32 %s, %s, %s' % (sr(s_t2), sr(s_t2), sr(s_t1)))
    A('s_mov_b32 %s, %d' % (sr(s_t0), 4 * 65536))
    A('s_branch ' + LwJ)
    A.label(LwN)
    srd(SRD_B, P_WO, 4096 * 1024 * 2)
    A('v_lshlrev_b32 %s, 11, %s' % (vr(v2), vr(v_g)))
    A('v_lshl_add_u32 %s, %s, 4, %s' % (vr(v2), vr(v_nu), vr(v2)))
    A('s_lshl_b32 %s, %s, 20' % (sr(s_t2), sr(s_x)))
    A('s_lshr_b32 %s, %s, 1' % (sr(s_t1), sr(s_j)))
    A('s_lshl_b32 %s, %s, 8' % (sr(s_t1), sr(s_t1)))
    A('s_add_u32 %s, %s, %s' % (sr(s_t2), sr(s_t2), sr(s_t1)))
    A('s_lshl_b32 %s, %s, 13' % (sr(s_t1), sr(s_w)))
    A('s_add_u32 %s, %s, %s' % (sr(s_t2), sr(s_t2), sr(s_t1)))
    A('s_mov_b32 %s, %d' % (sr(s_t0), 4 * 8192))
    A.label(LwJ)
    for i in range(32):
        A('buffer_load_dwordx4 %s, %s, %s, %s offen' % (vr(LND + 4 * i, 4), vr(v2), sr(SRD_B, 4), sr(s_t2)))
        A('s_add_u32 %s, %s, %s' % (sr(s_t2), sr(s_t2), sr(s_t0)))
    srd(SRD_D, P_MEM0, 8 * 1024 * 2)
    vm0 = v_t[6]
    A('v_and_b32 %s, 7, %s' % (vr(vm0), vr(v_nu)))
    A('v_lshlrev_b32 %s, 11, %s' % (vr(vm0), vr(vm0)))
    A('v_lshl_add_u32 %s, %s, 5, %s' % (vr(vm0), vr(v_g), vr(vm0)))
    A('v_lshrrev_b32 %s, 3, %s' % (vr(v_t[7]), vr(v_nu)))
    A('v_lshl_add_u32 %s, %s, 2, %s' % (vr(vm0), vr(v_t[7]), vr(vm0)))
    A('s_lshl_b32 %s, %s, 9' % (sr(s_t1), sr(s_w)))
    for k in range(4):
        for a in range(4):
            A('buffer_load_dword %s, %s, %s, %s offen offset:%d' % (vr(M + 4 * k + a), vr(vm0), sr(SRD_D, 4), sr(s_t1), k * 128 + a * 8))

    A('s_mov_b32 %s, 0xfffefffe' % sr(s_fffe))
    A('s_mov_b32 %s, 0x%x' % (sr(s_c), f32bits(128 ** -0.5 * 1.4426950408889634)))
    A('s_mov_b32 %s, %d' % (sr(s_lim), POLL_LIMIT))
    A('s_mov_b32 %s, 0xff00ff00' % sr(s_hf))
    A('s_mov_b32 %s, 0xff00ff00' % sr(s_hf + 1))
    ta, tb, tc = v_t[0], v_t[1], v_t[7]
    A('v_mov_b32 %s, 0x%x' % (vr(ta), f32bits(-1e30)))
    for i in range(4):
        A('v_cndmask_b32 %s, 0, %s, %s' % (vr(v_maskx + i), vr(ta), sr(s_hf, 2)))
    A('v_cmp_gt_u32 vcc, 32, %s' % vr(v_lane))
    for i in range(4):
        A('v_cndmask_b32 %s, %s, %s, vcc' % (vr(v_mask + i), vr(v_maskx), vr(ta)))
    A('v_mov_b32 %s, 0x%x' % (vr(ta), f32bits(-3e38)))
    A('v_cndmask_b32 %s, %s, 0, %s' % (vr(v_bias), vr(ta), sr(s_hf, 2)))
    for i in range(4):
        A('v_mov_b32 %s, 0x3f803f80' % vr(v_ones + i))
    A('v_mov_b32 %s, 0x4444' % vr(ta))
    A('v_mov_b32 %s, 0xeeee' % vr(tb))
    A('v_cndmask_b32 %s, %s, %s, %s' % (vr(v_idx), vr(ta), vr(tb), sr(s_hf, 2)))
    A('v_bfe_u32 %s, %s, 2, 1' % (vr(ta), vr(v_nu)))
    A('v_bfe_u32 %s, %s, 1, 1' % (vr(tb), vr(v_nu)))
    A('v_lshl_add_u32 %s, %s, 1, %s' % (vr(ta), vr(tb), vr(ta)))
    A('v_and_b32 %s, 1, %s' % (vr(tb), vr(v_nu)))
    A('v_lshlrev_b32 %s, 4, %s' % (vr(tb), vr(tb)))
    A('v_mov_b32 %s, 0x3f80' % vr(tc))
    A('v_lshlrev_b32 %s, %s, %s' % (vr(tb), vr(tb), vr(tc)))
    for d in range(4):
        A('v_cmp_eq_u32 vcc, %d, %s' % (d, vr(ta)))
        A('v_cndmask_b32 %s, 0, %s, vcc' % (vr(v_sel + d), vr(tb)))

    s_p, s_wh = s_t0, s_t1
    A('s_and_b32 %s, %s, 1' % (sr(s_p), sr(s_w)))
    A('s_lshr_b32 %s, %s, 1' % (sr(s_wh), sr(s_w)))
    A('s_lshl_b32 %s, %s, 12' % (sr(s_t2), sr(s_w)))
    A('v_add_u32 %s, %s, %s' % (vr(ta), sr(s_t2), vr(l16)))
    A('s_lshr_b32 %s, %s, 1' % (sr(s_t2), sr(s_x)))
    A('s_lshl_b32 %s, %s, 14' % (sr(s_t2), sr(s_t2)))
    A('s_add_u32 %s, %s, 0x%x' % (sr(s_t2), sr(s_t2), MEMI))
    A('v_add_u32 %s, %s, %s' % (vr(va_memr), sr(s_t2), vr(ta)))
    A('s_lshl_b32 %s, %s, 14' % (sr(s_t2), sr(s_x)))
    A('s_add_u32 %s, %s, 0x%x' % (sr(s_t2), sr(s_t2), QKI))
    A('v_add_u32 %s, %s, %s' % (vr(va_qkr), sr(s_t2), vr(ta)))
    A('s_lshl_b32 %s, %s, 12' % (sr(s_cnt), sr(s_w)))
    A('s_add_u32 %s, %s, %s' % (sr(s_t2), sr(s_t2), sr(s_cnt)))
    A('s_add_u32 %s, %s, 0x%x' % (sr(s_t2), sr(s_t2), VMI - QKI))
    A('v_and_b32 %s, 31, %s' % (vr(va_vmr), vr(v_lane)))
    A('v_lshlrev_b32 %s, 4, %s' % (vr(va_vmr), vr(va_vmr)))
    A('v_lshrrev_b32 %s, 5, %s' % (vr(ta), vr(v_lane)))
    A('v_xor_b32 %s, 1, %s' % (vr(ta), vr(ta)))
    A('v_lshl_add_u32 %s, %s, 11, %s' % (vr(va_vmr), vr(ta), vr(va_vmr)))
    A('v_add_u32 %s, %s, %s' % (vr(va_vmr), sr(s_t2), vr(va_vmr)))
    A('s_lshl_b32 %s, %s, 12' % (sr(s_t2), sr(s_w)))
    A('s_add_u32 %s, %s, %d' % (sr(s_t2), sr(s_t2), LDS_RED))
    A('v_lshl_add_u32 %s, %s, 3, %s' % (vr(va_rw), vr(v_lane), sr(s_t2)))
    A('v_lshrrev_b32 %s, 5, %s' % (vr(ta), vr(v_lane)))
    A('v_lshlrev_b32 %s, 13, %s' % (vr(ta), vr(ta)))
    A('v_and_b32 %s, 31, %s' % (vr(tb), vr(v_lane)))
    A('v_lshl_add_u32 %s, %s, 4, %s' % (vr(ta), vr(tb), vr(ta)))
    A('s_lshl_b32 %s, %s, 9' % (sr(s_t2), sr(s_w)))
    A('s_add_u32 %s, %s, %d' % (sr(s_t2), sr(s_t2), LDS_RED))
    A('v_add_u32 %s, %s, %s' % (vr(va_rr), sr(s_t2), vr(ta)))
    vR, vcp, vH = tc, acc1, acc1 + 1
    A('v_bfe_u32 %s, %s, 3, 1' % (vr(ta), vr(v_lane)))
    A('v_bfe_u32 %s, %s, 4, 1' % (vr(tb), vr(v_lane)))
    A('v_lshlrev_b32 %s, 2, %s' % (vr(vR), vr(ta)))
    A('v_lshl_add_u32 %s, %s, 1, %s' % (vr(vR), vr(tb), vr(vR)))
    A('v_and_b32 %s, 7, %s' % (vr(vcp), vr(v_lane)))
    A('v_lshrrev_b32 %s, 5, %s' % (vr(vH), vr(v_lane)))
    A('v_lshlrev_b32 %s, 8, %s' % (vr(va_vs), vr(ta)))
    A('v_lshl_add_u32 %s, %s, 5, %s' % (vr(va_vs), vr(vcp), vr(va_vs)))
    A('v_lshl_add_u32 %s, %s, 4, %s' % (vr(va_vs), vr(vH), vr(va_vs)))
    A('v_lshl_add_u32 %s, %s, 2, %s' % (vr(va_vs), vr(tb), vr(va_vs)))
    A('s_andn2_b32 %s, %s, 1024' % (sr(s_t2), sr(s_ob)))
    A('s_lshl_b32 %s, %s, 10' % (sr(s_cnt), sr(s_wh)))
    A('s_add_u32 %s, %s, %s' % (sr(s_t2), sr(s_t2), sr(s_cnt)))
    A('s_lshl_b32 %s, %s, 3' % (sr(s_cnt), sr(s_p)))
    A('s_add_u32 %s, %s, %s' % (sr(s_t2), sr(s_t2), sr(s_cnt)))
    A('s_add_u32 %s, %s, 0x%x' % (sr(s_t2), sr(s_t2), VMI))
    A('v_add_u32 %s, %s, %s' % (vr(va_vs), sr(s_t2), vr(va_vs)))
    A('v_bfe_u32 %s, %s, 1, 1' % (vr(ta), vr(vcp)))
    A('v_lshlrev_b32 %s, 8, %s' % (vr(va_qks), vr(ta)))
    A('v_add_u32 %s, %s, %s' % (vr(vR), vr(vR), vr(vH)))
    A('v_lshl_add_u32 %s, %s, 4, %s' % (vr(va_qks), vr(vR), vr(va_qks)))
    A('v_lshrrev_b32 %s, 2, %s' % (vr(ta), vr(vcp)))
    A('v_lshl_add_u32 %s, %s, 3, %s' % (vr(va_qks), vr(ta), vr(va_qks)))
    A('v_and_b32 %s, 1, %s' % (vr(ta), vr(vcp)))
    A('v_lshl_add_u32 %s, %s, 2, %s' % (vr(va_qks), vr(ta), vr(va_qks)))
    A('s_lshl_b32 %s, %s, 9' % (sr(s_t2), sr(s_p)))
    A('v_add_u32 %s, %s, %s' % (vr(va_qks), sr(s_t2), vr(va_qks)))
    A('s_lshl_b32 %s, %s, 7' % (sr(s_t2), sr(s_wh)))
    A('s_add_u32 %s, %s, %s' % (sr(s_t2), sr(s_t2), sr(s_ob)))
    A('s_add_u32 %s, %s, 0x%x' % (sr(s_t2), sr(s_t2), QKI))
    A('v_add_u32 %s, %s, %s' % (vr(va_qks), sr(s_t2), vr(va_qks)))
    A('v_lshlrev_b32 %s, 4, %s' % (vr(va_mems), vr(v_nu)))
    A('v_lshl_add_u32 %s, %s, 2, %s' % (vr(va_mems), vr(v_g), vr(va_mems)))
    A('s_lshl_b32 %s, %s, 8' % (sr(s_t2), sr(s_w)))
    A('s_add_u32 %s, %s, %s' % (sr(s_t2), sr(s_t2), sr(s_obm)))
    A('s_add_u32 %s, %s, 0x%x' % (sr(s_t2), sr(s_t2), MEMI))
    A('v_add_u32 %s, %s, %s' % (vr(va_mems), sr(s_t2), vr(va_mems)))
    A('s_lshl_b32 %s, %s, 10' % (sr(s_t2), sr(s_wh)))
    A('s_xor_b32 %s, %s, %s' % (sr(s_kvo), sr(s_t2), sr(s_ob)))
    A('s_lshl_b32 %s, %s, 19' % (sr(s_t2), sr(s_p)))
    A('s_add_u32 %s, %s, %s' % (sr(s_t2), sr(s_t2), sr(s_kvo)))
    A('s_add_u32 %s, %s, 0x%x' % (sr(s_t2), sr(s_t2), QKI))
    A('s_lshl_b32 %s, %s, 23' % (sr(s_cnt), sr(s_p)))
    A('s_add_u32 %s, %s, %s' % (sr(s_cnt), sr(s_cnt), sr(s_kvo)))
    A('s_add_u32 %s, %s, 0x%x' % (sr(s_cnt), sr(s_cnt), KMO))
    assert VMO - KMO == 1 << 23 and VMI - QKI == 1 << 19
    A('v_add_u32 %s, %s, %s' % (vr(va_rb), sr(s_t2), vr(l16)))
    A('v_add_u32 %s, %s, %s' % (vr(va_cp), sr(s_cnt), vr(l16)))
    A('s_or_b32 %s, %s, %s' % (sr(s_t2), sr(s_x), sr(s_j)))
    A('s_xor_b32 %s, %s, 3' % (sr(s_cnt), sr(s_w)))
    A('s_or_b32 %s, %s, %s' % (sr(s_t2), sr(s_t2), sr(s_cnt)))
    A('s_cmp_eq_u32 %s, 0' % sr(s_t2))
    A('s_mov_b32 %s, 0x%x' % (sr(s_cnt), CTR + DBG_PROG * 128))
    A('s_cselect_b32 %s, %s, 0x%x' % (sr(s_t2), sr(s_cnt), WS_BYTES))
    A('v_and_b32 %s, 3, %s' % (vr(v_sh), vr(v_lane)))
    A('v_lshlrev_b32 %s, 7, %s' % (vr(v_sh), vr(v_sh)))
    A('v_add_u32 %s, %s, %s' % (vr(va_prog), sr(s_t2), vr(v_sh)))
    A('v_cmp_lt_u32 vcc, 3, %s' % vr(v_lane))
    A('v_mov_b32 %s, 0x%x' % (vr(ta), WS_BYTES))
    A('v_cndmask_b32 %s, %s, %s, vcc' % (vr(va_prog), vr(va_prog), vr(ta)))
    A('v_add_u32 %s, 0x%x, %s' % (vr(v_sh), CTR, vr(v_sh)))
    s_h = s_t2
    A('s_lshl_b32 %s, %s, 2' % (sr(s_h), sr(s_x)))
    A('s_add_u32 %s, %s, %s' % (sr(s_h), sr(s_h), sr(s_w)))
    A('s_lshl_b32 %s, %s, 13' % (sr(s_h), sr(s_h)))
    A('v_and_b32 %s, 1, %s' % (vr(ta), vr(v_g)))
    A('v_lshrrev_b32 %s, 1, %s' % (vr(tb), vr(v_g)))
    A('v_lshlrev_b32 %s, 9, %s' % (vr(va_kx), vr(ta)))
    A('v_lshl_add_u32 %s, %s, 10, %s' % (vr(va_kx), vr(tb), vr(va_kx)))
    A('v_add_u32 %s, %s, %s' % (vr(va_kx), sr(s_h), vr(va_kx)))
    A('v_lshl_add_u32 %s, %s, 4, %s' % (vr(va_vx), vr(v_nu), vr(va_kx)))
    A('v_add_u32 %s, 0x%x, %s' % (vr(va_vx), VX, vr(va_vx)))
    A('v_lshrrev_b32 %s, 3, %s' % (vr(ta), vr(v_nu)))
    A('v_lshl_add_u32 %s, %s, 8, %s' % (vr(va_kx), vr(ta), vr(va_kx)))
    A('v_and_b32 %s, 7, %s' % (vr(ta), vr(v_nu)))
    A('v_lshl_add_u32 %s, %s, 4, %s' % (vr(va_kx), vr(ta), vr(va_kx)))
    A('v_add_u32 %s, 0x%x, %s' % (vr(va_kx), KX, vr(va_kx)))
    A('s_lshr_b32 %s, %s, 1' % (sr(s_t2), sr(s_j)))
    A('s_lshl_b32 %s, %s, 2' % (sr(s_t2), sr(s_t2)))
    A('s_add_u32 %s, %s, %s' % (sr(s_t2), sr(s_t2), sr(s_w)))
    A('s_and_b32 %s, %s, 15' % (sr(s_cnt), sr(s_t2)))
    A('s_lshl_b32 %s, %s, 11' % (sr(s_cnt), sr(s_cnt)))
    A('s_lshr_b32 %s, %s, 4' % (sr(s_t2), sr(s_t2)))
    A('s_lshl_b32 %s, %s, 24' % (sr(s_t2), sr(s_t2)))
    assert VX - KX == 1 << 24
    A('s_add_u32 %s, %s, %s' % (sr(s_t2), sr(s_t2), sr(s_cnt)))
    A('s_lshl_b32 %s, %s, 15' % (sr(s_cnt), sr(s_x)))
    A('s_add_u32 %s, %s, %s' % (sr(s_t2), sr(s_t2), sr(s_cnt)))
    A('s_add_u32 %s, %s, 0x%x' % (sr(s_t2), sr(s_t2), KX))
    A('v_lshl_add_u32 %s, %s, 5, %s' % (vr(va_warm), vr(v_lane), sr(s_t2)))
    A('v_add_u32 %s, %d, %s' % (vr(va_or), LDS_O, vr(l16)))
    A('v_lshrrev_b32 %s, 3, %s' % (vr(ta), vr(v_nu)))
    A('v_mul_u32_u24 %s, %d, %s' % (vr(ta), 1024 - 128, vr(ta)))
    A('s_lshl_b32 %s, %s, 11' % (sr(s_t2), sr(s_w)))
    A('v_add3_u32 %s, %s, %s, %s' % (vr(va_ow), sr(s_t2), vr(va_or), vr(ta)))
    if stamps:
        A('s_lshl_b32 %s, %s, 4' % (sr(s_stamp), sr(s_ob)))
        A('s_lshl_b32 %s, %s, 12' % (sr(s_t2), sr(s_w)))
        A('s_add_u32 %s, %s, %s' % (sr(s_stamp), sr(s_stamp), sr(s_t2)))
        A('s_add_u32 %s, %s, 0x%x' % (sr(s_stamp), sr(s_stamp), STAMP))
        A('s_add_u32 %s, %s, 65536' % (sr(s_stl), sr(s_t2)))

    vq1, vq2, vr_, vcq = acc1, acc1 + 1, acc1 + 2, acc1 + 3
    A('v_bfe_u32 %s, %s, 2, 2' % (vr(vr_), vr(v_lane)))
    A('v_and_b32 %s, 3, %s' % (vr(vcq), vr(v_lane)))
    A('v_lshl_add_u32 %s, %s, 3, %s' % (vr(vq2), vr(v_g), vr(vr_)))
    A('v_lshlrev_b32 %s, 6, %s' % (vr(vq1), vr(vq2)))
    A('v_lshl_add_u32 %s, %s, 3, %s' % (vr(vq1), vr(vcq), vr(vq1)))
    A('s_lshl_b32 %s, %s, 14' % (sr(s_t2), sr(s_w)))
    A('v_add_u32 %s, %s, %s' % (vr(vq1), sr(s_t2), vr(vq1)))
    A('v_add_u32 %s, 65536, %s' % (vr(tb), vr(vq1)))
    A('s_waitcnt vmcnt(48)')
    A('s_barrier')
    for kk in range(4):
        for tl in range(4):
            for bh in range(2):
                for q in range(2):
                    A('ds_read_b64_tr_b16 %s, %s offset:%d' % (ar(W1 + 8 * (kk * 4 + tl) + 4 * bh + 2 * q, 2), vr(tb if tl >= 2 else vq1), kk * 4096 + bh * 2048 + q * 256 + (tl & 1) * 32))
            A('s_waitcnt lgkmcnt(8)')
    A('s_waitcnt lgkmcnt(0)')
    A('s_barrier')
    A('s_waitcnt vmcnt(0)')
    A('s_lshl_b32 %s, %s, 10' % (sr(s_t2), sr(s_w)))
    A('v_add_u32 %s, %s, %s' % (vr(ta), sr(s_t2), vr(l16)))
    A('v_add_u32 %s, 65536, %s' % (vr(tb), vr(ta)))
    for i in range(32):
        A('ds_write_b128 %s, %s offset:%d' % (vr(ta if i < 16 else tb), vr(LND + 4 * i, 4), (i & 15) * 4096))
        if i & 3 == 3:
            A('s_waitcnt lgkmcnt(8)')
    A('s_waitcnt lgkmcnt(0)')
    A('s_barrier')
    LtN, LtJ = A.uid('tN'), A.uid('tJ')
    A('s_cmp_lg_u32 %s, 0' % sr(s_red))
    A('s_cbranch_scc1 ' + LtN)
    A('v_lshlrev_b32 %s, 7, %s' % (vr(ta), vr(vq2)))
    A('v_lshl_add_u32 %s, %s, 3, %s' % (vr(ta), vr(vcq), vr(ta)))
    A('s_lshl_b32 %s, %s, 15' % (sr(s_t2), sr(s_w)))
    A('v_add_u32 %s, %s, %s' % (vr(ta), sr(s_t2), vr(ta)))
    for kk in range(4):
        for tv in range(4):
            for bh in range(2):
                for q in range(2):
                    A('ds_read_b64_tr_b16 %s, %s offset:%d' % (ar(W2 + 8 * (kk * 4 + tv) + 4 * bh + 2 * q, 2), vr(ta), kk * 8192 + bh * 4096 + q * 512 + tv * 32))
            A('s_waitcnt lgkmcnt(8)')
    A('s_branch ' + LtJ)
    A.label(LtN)
    A('v_and_b32 %s, 1, %s' % (vr(ta), vr(v_g)))
    A('v_lshl_add_u32 %s, %s, 5, %s' % (vr(ta), vr(ta), vr(vr_)))
    A('v_lshrrev_b32 %s, 1, %s' % (vr(tb), vr(v_g)))
    A('v_lshl_add_u32 %s, %s, 2, %s' % (vr(ta), vr(tb), vr(ta)))
    A('v_lshlrev_b32 %s, 8, %s' % (vr(ta), vr(ta)))
    A('v_lshl_add_u32 %s, %s, 3, %s' % (vr(ta), vr(vcq), vr(ta)))
    A('s_lshl_b32 %s, %s, 5' % (sr(s_t2), sr(s_w)))
    A('v_add_u32 %s, %s, %s' % (vr(ta), sr(s_t2), vr(ta)))
    A('v_add_u32 %s, 65536, %s' % (vr(tb), vr(ta)))
    for k in range(8):
        for u in range(2):
            for bh in range(2):
                for q in range(2):
                    A('ds_read_b64_tr_b16 %s, %s offset:%d' % (ar(W2 + 8 * (k * 2 + u) + 4 * bh + 2 * q, 2), vr(ta if k < 4 else tb), (k & 3) * 16384 + q * 4096 + bh * 2048 + u * 128))
            A('s_waitcnt lgkmcnt(8)')
    A.label(LtJ)
    A('s_waitcnt lgkmcnt(0)')
    A('s_barrier')

    def pf_ops():
        o = []
        for eb in range(4):
            so = s_kx if eb < 2 else s_kx2
            o.append('buffer_load_dwordx4 %s, %s, %s, %s offen offset:%d sc1' % (vr(KXA + 4 * eb, 4), vr(va_kx), sr(SRD_WS, 4), sr(so), (eb & 1) * 2048))
            o.append('buffer_load_dwordx4 %s, %s, %s, %s offen offset:%d sc1' % (vr(KXB + 4 * eb, 4), vr(va_kx), sr(SRD_WS, 4), sr(so), (eb & 1) * 2048 + 128))
        for T in range(8):
            eb = T >> 1
            so = s_kx if eb < 2 else s_kx2
            o.append('buffer_load_dwordx4 %s, %s, %s, %s offen offset:%d sc1' % (vr(VXR + 4 * T, 4), vr(va_vx), sr(SRD_WS, 4), sr(so), (eb & 1) * 2048 + (T & 1) * 256))
        return o

    def emit(t):
        A(t)
        if t.startswith('buffer_'):
            nvm[0] += 1

    A('s_mov_b32 %s, 0' % sr(s_step))
    A('s_mov_b32 %s, 0x40404044' % sr(s_kvm))
    A('s_mov_b32 %s, 0x00404040' % sr(s_kvm + 1))
    A('s_mov_b32 %s, 0' % sr(s_slot))
    A('s_mov_b32 %s, 0x20000' % sr(s_slot1))
    A('s_mov_b32 %s, 0x40000' % sr(s_slot2))
    A('s_mov_b32 %s, 0' % sr(s_slotp))
    A('s_mov_b32 %s, 0' % sr(s_kx))
    A('s_mov_b32 %s, 4096' % sr(s_kx2))
    A('s_mov_b32 %s, 0' % sr(s_out))
    A('s_mov_b32 %s, 0x%x' % (sr(s_outp), WS_BYTES))
    A('s_mov_b32 %s, 0' % sr(s_ps))
    A('s_mov_b32 %s, 0x80000' % sr(s_ps2))
    A('s_mov_b32 %s, %d' % (sr(s_kvo), DBG_KV0 * 128))

    def kv_wait(tag):
        Lw, Ld, L0 = A.uid('kvw' + tag), A.uid('kvd' + tag), A.uid('kv0' + tag)
        A('s_mov_b32 %s, 0' % sr(s_cnt))
        A('s_branch ' + L0)
        A.label(Lw)
        A('s_sleep 6')
        A.label(L0)
        A('buffer_load_dword %s, %s, %s, %s offen sc1' % (vr(v_kvf), vr(v_sh), sr(SRD_WS, 4), sr(s_kvo)))
        A('s_add_u32 %s, %s, 1' % (sr(s_cnt), sr(s_cnt)))
        A('s_cmp_gt_u32 %s, %s' % (sr(s_cnt), sr(s_lim)))
        A('s_cbranch_scc1 ' + Ld)
        A('s_waitcnt vmcnt(0)')
        A('v_cmp_gt_u32 vcc, 32, %s' % vr(v_kvf))
        A('s_cbranch_vccnz ' + Lw)
        A.label(Ld)
        A('s_waitcnt vmcnt(0)')
    stamp(7)
    place_check(A, SRD_T, v_lane, v_t[0], v_t[1], s_cnt, POLL_LIMIT, L_restart)
    L_rdy, L_rdy_done, L_rdy0 = A.uid('rdy'), A.uid('rdyd'), A.uid('rdy0')
    A('v_mov_b32 %s, 32' % vr(v_t[0]))
    A('s_mov_b32 %s, 0' % sr(s_cnt))
    A('s_branch ' + L_rdy0)
    A.label(L_rdy)
    A('s_sleep 6')
    A.label(L_rdy0)
    A('buffer_load_dword %s, %s, %s, 0 offen sc1' % (vr(acc1 + 1), vr(v_t[0]), sr(SRD_T, 4)))
    A('s_add_u32 %s, %s, 1' % (sr(s_cnt), sr(s_cnt)))
    A('s_cmp_gt_u32 %s, %s' % (sr(s_cnt), sr(s_lim)))
    A('s_cbranch_scc1 ' + L_rdy_done)
    A('s_waitcnt vmcnt(0)')
    A('v_and_b32 %s, 0xffff, %s' % (vr(acc1), vr(acc1 + 1)))
    A('v_cmp_gt_u32 vcc, 128, %s' % vr(acc1))
    A('s_cbranch_vccnz ' + L_rdy)
    A.label(L_rdy_done)
    A('s_waitcnt vmcnt(0)')
    A('v_lshrrev_b32 %s, 16, %s' % (vr(acc1), vr(acc1 + 1)))
    A('v_cmp_%s_u32 vcc, 16, %s' % ('lt' if NEARX else 'ge', vr(acc1)))
    A('v_mov_b32 %s, 8192' % vr(acc1 + 1))
    A('v_cndmask_b32 %s, 0, %s, vcc' % (vr(acc1), vr(acc1 + 1)))
    A('v_add_u32 %s, %s, %s' % (vr(va_pr), vr(va_pr), vr(acc1)))
    A('v_add_u32 %s, %s, %s' % (vr(va_pw), vr(va_pw), vr(acc1)))
    A('v_mul_u32_u24 %s, 252, %s' % (vr(acc1), vr(v_g)))
    A('v_sub_u32 %s, %s, %s' % (vr(va_pd), vr(va_pw), vr(acc1)))
    A('v_and_b32 %s, 0x%x, %s' % (vr(va_pd), 0xffffffff ^ 16384, vr(va_pd)))
    A('v_lshlrev_b32 %s, 8, %s' % (vr(acc1), vr(v_g)))
    A('v_sub_u32 %s, %s, %s' % (vr(va_pz), vr(va_pw), vr(acc1)))
    A('v_and_b32 %s, 1, %s' % (vr(acc1), vr(v_g)))
    A('v_lshlrev_b32 %s, 14, %s' % (vr(acc1), vr(acc1)))
    A('v_xor_b32 %s, %s, %s' % (vr(va_pz), vr(va_pz), vr(acc1)))
    A('v_lshrrev_b32 %s, 1, %s' % (vr(acc1), vr(v_g)))
    A('v_lshl_add_u32 %s, %s, 28, %s' % (vr(va_pz), vr(acc1), vr(va_pz)))
    A('v_add_u32 %s, 16384, %s' % (vr(va_pw), vr(va_pd)))
    kv_wait('0')
    stamp(9)

    ool = []

    def poll(n, load, base, tag, on_ok=None, back=0):
        Lk = [A.uid('poll%s%d' % (tag, k)) for k in range(n)]
        Lc = [A.uid('chk%s%d' % (tag, k)) for k in range(n)]
        Lo = [A.uid('ok%s%d' % (tag, k)) for k in range(n)]
        Lfs = [A.uid('pollf%s%d' % (tag, k)) for k in range(n)]

        def issue(m):
            A.label(Lk[m])
            if back:
                A('s_sleep %d' % back)
            for k in range(m, n):
                A(load(k))
            A('s_add_u32 %s, %s, 1' % (sr(s_cnt), sr(s_cnt)))
            A('s_cmp_gt_u32 %s, %s' % (sr(s_cnt), sr(s_lim)))
            A('s_cbranch_scc1 ' + Lfs[m])
        A('s_mov_b32 %s, 0' % sr(s_cnt))
        issue(0)
        for m in range(n):
            A.label(Lc[m])
            A('s_waitcnt vmcnt(%d)' % (n - 1 - m))
            b = base + 4 * m
            A('v_max3_u32 %s, %s, %s, %s' % (vr(v_t[0]), vr(b), vr(b + 1), vr(b + 2)))
            A('v_max_u32 %s, %s, %s' % (vr(v_t[0]), vr(v_t[0]), vr(b + 3)))
            A('v_cmp_eq_u32 vcc, -1, %s' % vr(v_t[0]))
            A('s_cbranch_vccnz ' + Lk[m])
            A.label(Lo[m])
            if on_ok:
                on_ok(m)

        def tail():
            for m in range(1, n):
                issue(m)
                A('s_branch ' + Lc[m])
            for m in range(n):
                A.label(Lfs[m])
                A('s_mov_b32 %s, 0' % sr(s_lim))
                A('s_waitcnt vmcnt(0)')
                A('s_branch ' + Lo[m])
        ool.append(tail)

    def smf(acc, a, w):
        return 'v_smfmac_f32_16x16x64_bf16 %s, %s, %s, %s' % (vr(acc, 4), vr(a, 4), ar(w, 8), vr(v_idx))

    def okA(k):
        for tl in range(4):
            A(smf(AC + 4 * tl, M + 4 * k, W1 + 8 * (k * 4 + tl)))

    def advance():
        A('s_add_u32 %s, %s, 1' % (sr(s_step), sr(s_step)))
        A('s_mov_b32 %s, %s' % (sr(s_slotp), sr(s_slot)))
        A('s_mov_b32 %s, %s' % (sr(s_outp), sr(s_out)))
        A('s_mov_b32 %s, %s' % (sr(s_slot), sr(s_slot1)))
        A('s_mov_b32 %s, %s' % (sr(s_slot1), sr(s_slot2)))
        A('s_add_u32 %s, %s, 0x20000' % (sr(s_slot2), sr(s_slot2)))
        A('s_and_b32 %s, %s, 0x7ffff' % (sr(s_slot2), sr(s_slot2)))
        A('s_add_u32 %s, %s, 0x20000' % (sr(s_out), sr(s_out)))
        A('s_lshl_b32 %s, %s, 1' % (sr(s_ps), sr(s_slot)))
        A('s_lshl_b32 %s, %s, 1' % (sr(s_ps2), sr(s_slot2)))
        if stamps:
            A('s_add_u32 %s, %s, 64' % (sr(s_stl), sr(s_stl)))

    def ha_write(tl):
        return ['v_permlane32_swap_b32 %s, %s' % (vr(AC + 4 * tl), vr(AC + 4 * tl + 2)),
                'v_permlane32_swap_b32 %s, %s' % (vr(AC + 4 * tl + 1), vr(AC + 4 * tl + 3)),
                'v_pk_add_f32 %s, %s, %s' % (vr(HA + 2 * tl, 2), vr(AC + 4 * tl, 2), vr(AC + 4 * tl + 2, 2)),
                'ds_write_b64 %s, %s offset:%d' % (vr(va_rw), vr(HA + 2 * tl, 2), tl * 512)]

    def kv_stuff():
        L_kvok, L_kvslow, L_nokv, L_dokv = A.uid('kvok'), A.uid('kvslow'), A.uid('nokv'), A.uid('dokv')
        A('v_cmp_gt_u32 vcc, 32, %s' % vr(v_kvf))
        A('s_cbranch_vccnz ' + L_kvslow)
        A.label(L_kvok)
        A('s_bitcmp1_b64 %s, %s' % (sr(s_kvm, 2), sr(s_step)))
        A('s_cbranch_scc1 ' + L_dokv)
        A.label(L_nokv)

        def t():
            A.label(L_kvslow)
            kv_wait('s')
            A('s_branch ' + L_kvok)
            A.label(L_dokv)
            A('s_add_u32 %s, %s, 2' % (sr(s_kvo), sr(s_step)))
            A('s_lshr_b32 %s, %s, 3' % (sr(s_kvo), sr(s_kvo)))
            A('s_lshl_b32 %s, %s, 9' % (sr(s_kvo), sr(s_kvo)))
            A('s_add_u32 %s, %s, %d' % (sr(s_kvo), sr(s_kvo), DBG_KV * 128))
            A('buffer_load_dword %s, %s, %s, %s offen sc1' % (vr(v_kvf), vr(v_sh), sr(SRD_WS, 4), sr(s_kvo)))
            A('s_branch ' + L_nokv)
        ool.append(t)

    L_lastR, L_lastN, L_fin = name + '_lastR', name + '_lastN', name + '_fin'

    def loop(red, fl):
        tg = ('r' if red else 'n') + ('f' if fl else '')
        ISC = ' sc1' if fl else ''
        nacc = 32 if red else 16
        L_st, L_B = name + '_step' + tg, name + '_B' + tg

        def zero_acc():
            for i in range(nacc):
                A('v_mov_b32 %s, 0' % vr(AC + i))
        A.label(name + '_first' + tg)
        if not red:
            for t in pf_ops():
                A(t)
        zero_acc()
        for k in range(4):
            okA(k)
        A('s_branch ' + L_B)
        A.label(L_st)
        zero_acc()
        poll(4, lambda k: 'buffer_load_dwordx4 %s, %s, %s, %s offen offset:%d sc1' % (vr(M + 4 * k, 4), vr(va_memr), sr(SRD_WS, 4), sr(s_slot), k * 1024), M, 'A', okA)
        A.label(L_B)
        stamp(0)
        vs = [smf(AC + 16 + 4 * tv, M + 4 * k, W2 + 8 * (k * 4 + tv)) for tv in range(4) for k in range(4)] if red else []
        ne = VS[0]
        for tl in range(4):
            h = ha_write(tl)
            if vs and ne > 0:
                A(vs.pop(0))
                ne -= 1
            A(h[0])
            A(h[1])
            if vs and ne > 3 - tl:
                A(vs.pop(0))
                ne -= 1
            A(h[2])
            A(h[3])
        for _ in range(VS[1]):
            if vs:
                A(vs.pop(0))
        A('s_waitcnt lgkmcnt(0)')
        A('s_barrier')
        A('ds_read_b128 %s, %s' % (vr(RD, 4), vr(va_rr)))
        A('ds_read_b128 %s, %s offset:4096' % (vr(RD + 4, 4), vr(va_rr)))
        for _ in range(VS[2]):
            if vs:
                A(vs.pop(0))
        A('s_waitcnt lgkmcnt(0)')
        A('v_pk_add_f32 %s, %s, %s' % (vr(RD, 2), vr(RD, 2), vr(RD + 4, 2)))
        A('v_pk_add_f32 %s, %s, %s' % (vr(RD + 2, 2), vr(RD + 2, 2), vr(RD + 6, 2)))
        A('v_permlane32_swap_b32 %s, %s' % (vr(RD), vr(RD + 1)))
        A('v_permlane32_swap_b32 %s, %s' % (vr(RD + 2), vr(RD + 3)))
        A('v_add_f32 %s, %s, %s' % (vr(v_t[0]), vr(RD), vr(RD + 1)))
        A('v_add_f32 %s, %s, %s' % (vr(v_t[1]), vr(RD + 2), vr(RD + 3)))
        A('v_cvt_pk_bf16_f32 %s, %s, %s' % (vr(v_t[2]), vr(v_t[0]), vr(v_t[1])))
        A('v_pk_min_u16 %s, %s, %s' % (vr(v_t[2]), vr(v_t[2]), sr(s_fffe)))
        A('buffer_store_dword %s, %s, %s, %s offen%s' % (vr(v_t[2]), vr(va_qks), sr(SRD_WS, 4), sr(s_slot), ISC))
        if red:
            for tv in range(4):
                while vs and len(vs) > 4 * (3 - tv) - 4:
                    A(vs.pop(0))
                for t in ha_write(4 + tv):
                    A(t)
            A('s_waitcnt lgkmcnt(0)')
            A('s_barrier')
            A('ds_read_b128 %s, %s offset:2048' % (vr(RD, 4), vr(va_rr)))
            A('ds_read_b128 %s, %s offset:6144' % (vr(RD + 4, 4), vr(va_rr)))
            A('s_waitcnt lgkmcnt(0)')
            A('v_pk_add_f32 %s, %s, %s' % (vr(RD, 2), vr(RD, 2), vr(RD + 4, 2)))
            A('v_pk_add_f32 %s, %s, %s' % (vr(RD + 2, 2), vr(RD + 2, 2), vr(RD + 6, 2)))
            A('v_permlane32_swap_b32 %s, %s' % (vr(RD), vr(RD + 2)))
            A('v_permlane32_swap_b32 %s, %s' % (vr(RD + 1), vr(RD + 3)))
            A('v_pk_add_f32 %s, %s, %s' % (vr(RD, 2), vr(RD, 2), vr(RD + 2, 2)))
            A('v_cvt_pk_bf16_f32 %s, %s, %s' % (vr(v_t[3]), vr(RD), vr(RD + 1)))
            A('v_pk_min_u16 %s, %s, %s' % (vr(v_t[3]), vr(v_t[3]), sr(s_fffe)))
            A('buffer_store_dword %s, %s, %s, %s offen%s' % (vr(v_t[3]), vr(va_vs), sr(SRD_WS, 4), sr(s_slot), ISC))
            stamp(1)
            A('buffer_load_dwordx4 %s, %s, %s, %s offen sc1' % (vr(RB, 4), vr(va_rb), sr(SRD_WS, 4), sr(s_slotp)))
            A('v_mov_b32 %s, %s' % (vr(v_junk2), sr(s_step)))
            A('s_waitcnt vmcnt(0)')
            A('s_barrier')
            A('buffer_store_dwordx4 %s, %s, %s, %s offen sc1' % (vr(RB, 4), vr(va_cp), sr(SRD_WS, 4), sr(s_outp)))
            A('buffer_store_dword %s, %s, %s, 0 offen sc1' % (vr(v_junk2), vr(va_prog), sr(SRD_WS, 4)))
            A('s_cmp_ge_u32 %s, %d' % (sr(s_step), nsteps - 1))
            A('s_cbranch_scc1 ' + L_lastR)
            A('s_add_u32 %s, %s, 0x40000' % (sr(s_kx), sr(s_kx)))
            kv_stuff()
            A('buffer_load_dword %s, %s, %s, %s offen sc1' % (vr(v_junk), vr(va_warm), sr(SRD_WS, 4), sr(s_kx)))
            A('buffer_store_dwordx4 %s, %s, %s, %s offen sc1' % (vr(v_m1, 4), vr(va_pz), sr(SRD_WS, 4), sr(s_ps2)))
            A('buffer_store_dwordx4 %s, %s, %s, %s offen%s' % (vr(v_m1, 4), vr(va_rb), sr(SRD_WS, 4), sr(s_slot2), ISC))
            A('buffer_store_dword %s, %s, %s, %s offen%s' % (vr(v_m1), vr(va_mems), sr(SRD_WS, 4), sr(s_slot2), ISC))
            if DELAY_E:
                A('s_sleep %d' % DELAY_E)

            def okE(k):
                A('v_mfma_f32_16x16x32_bf16 %s, %s, %s, %s' % (vr(LS, 4), vr(PR + 4 * k, 4), vr(v_sel, 4), '0' if k == 0 else vr(LS, 4)))
            poll(2, lambda k: 'buffer_load_dwordx4 %s, %s, %s, %s offen offset:%d sc1' % (vr(PR + 4 * k, 4), vr(va_pr), sr(SRD_WS, 4), sr(s_ps), k * 1024), PR, 'E', okE, back=E_BACK)
            stamp(6)
            advance()
            A('v_cvt_pk_bf16_f32 %s, %s, %s' % (vr(v_t[2]), vr(LS), vr(LS + 1)))
            A('v_cvt_pk_bf16_f32 %s, %s, %s' % (vr(v_t[3]), vr(LS + 2), vr(LS + 3)))
            A('v_cndmask_b32 %s, %s, %s, %s' % (vr(v_t[2]), vr(v_t[2]), vr(v_t[3]), sr(s_hf, 2)))
            A('v_pk_min_u16 %s, %s, %s' % (vr(v_t[2]), vr(v_t[2]), sr(s_fffe)))
            A('buffer_store_dword %s, %s, %s, %s offen%s' % (vr(v_t[2]), vr(va_mems), sr(SRD_WS, 4), sr(s_slot), ISC))
            if RED_SLEEP:
                A('s_sleep %d' % RED_SLEEP)
            A('s_branch ' + L_st)
            return
        stamp(1)
        A('s_cmp_ge_u32 %s, %d' % (sr(s_step), nsteps - 1))
        A('s_cbranch_scc1 ' + L_lastN)
        A('s_add_u32 %s, %s, 0x40000' % (sr(s_kx), sr(s_kx)))
        A('s_add_u32 %s, %s, 0x40000' % (sr(s_kx2), sr(s_kx2)))
        for i in range(4):
            A('v_mov_b32 %s, 0' % vr(acc1 + i))
            A('v_mov_b32 %s, 0' % vr(acc2 + i))
        if DELAY_C:
            A('s_sleep %d' % DELAY_C)
        Lc, Lcf, Lcd = A.uid('pC'), A.uid('pCf'), A.uid('pCd')
        A('s_mov_b32 %s, 1' % sr(s_cnt))
        A.label(Lc)
        for k in range(4):
            A('buffer_load_dwordx4 %s, %s, %s, %s offen offset:%d sc1' % (vr(QK + 4 * k, 4), vr(va_qkr), sr(SRD_WS, 4), sr(s_slot), k * 1024))
        for t in range(4):
            A('s_waitcnt vmcnt(%d)' % (3 - t))
            q = QK + 4 * t
            A('v_mfma_f32_16x16x32_bf16 %s, %s, %s, %s' % (vr(SA, 4), vr(KXA + 4 * t, 4), vr(q, 4), vr(v_maskx, 4) if t == 0 else vr(SA, 4)))
            if t == 0:
                A('v_max3_u32 %s, %s, %s, %s' % (vr(v_t[0]), vr(q), vr(q + 1), vr(q + 2)))
            else:
                A('v_max3_u32 %s, %s, %s, %s' % (vr(v_t[0]), vr(v_t[0]), vr(q), vr(q + 1)))
            A('v_mfma_f32_16x16x32_bf16 %s, %s, %s, %s' % (vr(SB, 4), vr(KXB + 4 * t, 4), vr(q, 4), vr(v_maskx, 4) if t == 0 else vr(SB, 4)))
            if t == 0:
                A('v_max_u32 %s, %s, %s' % (vr(v_t[0]), vr(v_t[0]), vr(q + 3)))
            else:
                A('v_max3_u32 %s, %s, %s, %s' % (vr(v_t[0]), vr(v_t[0]), vr(q + 2), vr(q + 3)))
            if t == 3:
                A('v_cmp_eq_u32 vcc, -1, %s' % vr(v_t[0]))
            A('v_mfma_f32_16x16x32_bf16 %s, %s, %s, %s' % (vr(SM, 4), vr(q, 4), vr(q, 4), vr(v_mask, 4) if t == 0 else vr(SM, 4)))
        A('s_cbranch_vccnz ' + Lcf)
        A.label(Lcd)

        def tailC():
            A.label(Lcf)
            A('s_add_u32 %s, %s, 1' % (sr(s_cnt), sr(s_cnt)))
            A('s_cmp_le_u32 %s, %s' % (sr(s_cnt), sr(s_lim)))
            A('s_cbranch_scc1 ' + Lc)
            A('s_mov_b32 %s, 0' % sr(s_lim))
            A('s_branch ' + Lcd)
        ool.append(tailC)
        stamp(2)

        def vload(k):
            return 'buffer_load_dwordx4 %s, %s, %s, %s offen offset:%d sc1' % (vr(VMR + 4 * k, 4), vr(va_vmr), sr(SRD_WS, 4), sr(s_slot), k * 1024)
        side = pf_ops() if not NOPF else []
        s = [SA + i for i in range(12)]
        sm = []
        sm.append('v_max3_f32 %s, %s, %s, %s' % (vr(v_mx), vr(s[0]), vr(s[1]), vr(s[2])))
        sm.append('v_max3_f32 %s, %s, %s, %s' % (vr(v_mx2), vr(s[3]), vr(s[4]), vr(v_bias)))
        sm.append('v_max3_f32 %s, %s, %s, %s' % (vr(v_mx), vr(v_mx), vr(s[5]), vr(s[6])))
        sm.append('v_max3_f32 %s, %s, %s, %s' % (vr(v_mx2), vr(v_mx2), vr(s[7]), vr(s[8])))
        sm.append('v_max3_f32 %s, %s, %s, %s' % (vr(v_mx), vr(v_mx), vr(s[9]), vr(s[10])))
        sm.append('v_max3_f32 %s, %s, %s, %s' % (vr(v_mx), vr(v_mx), vr(v_mx2), vr(s[11])))
        for sw in ('v_permlane32_swap_b32', 'v_permlane16_swap_b32'):
            sm.append('v_mov_b32 %s, %s' % (vr(v_mx2), vr(v_mx)))
            sm.append('%s %s, %s' % (sw, vr(v_mx), vr(v_mx2)))
            sm.append('v_max_f32 %s, %s, %s' % (vr(v_mx), vr(v_mx), vr(v_mx2)))
        sm.append('v_mul_f32 %s, %s, %s' % (vr(v_mx), sr(s_c), vr(v_mx)))
        for i in range(8):
            sm.append('v_fma_f32 %s, %s, %s, -%s' % (vr(s[i]), vr(s[i]), sr(s_c), vr(v_mx)))
        for i in range(8):
            sm.append('v_exp_f32 %s, %s' % (vr(s[i]), vr(s[i])))
            if i >= 2 and i % 2 == 0:
                sm.append('v_cvt_pk_bf16_f32 %s, %s, %s' % (vr(PX + i // 2 - 1), vr(s[i - 2]), vr(s[i - 1])))
        sm.append('v_fma_f32 %s, %s, %s, -%s' % (vr(s[8]), vr(s[8]), sr(s_c), vr(v_mx)))
        sm.append('v_cvt_pk_bf16_f32 %s, %s, %s' % (vr(PX + 3), vr(s[6]), vr(s[7])))
        sm.append('v_fma_f32 %s, %s, %s, -%s' % (vr(s[9]), vr(s[9]), sr(s_c), vr(v_mx)))
        for i, m in enumerate(sm):
            if i == DELAY_V:
                A(vload(0))
                A(vload(1))
            A(m)
        stamp(3)

        def dpp8(d, srcr):
            return 'v_mov_b32_dpp %s, %s row_shr:8 row_mask:0xf bank_mask:0xf bound_ctrl:0' % (vr(d), vr(srcr))
        t = v_t
        sh = []
        for i in range(10, 12):
            sh.append('v_fma_f32 %s, %s, %s, -%s' % (vr(s[i]), vr(s[i]), sr(s_c), vr(v_mx)))
        for i in range(4):
            sh.append(dpp8(PXH + i, PX + i))
        for i in range(8, 12):
            sh.append('v_exp_f32 %s, %s' % (vr(s[i]), vr(s[i])))
        for i in range(2):
            sh.append('v_cvt_pk_bf16_f32 %s, %s, %s' % (vr(PM + i), vr(s[8 + 2 * i]), vr(s[9 + 2 * i])))
        sh.append('s_waitcnt vmcnt(0)')
        sh.append('v_max3_u32 %s, %s, %s, %s' % (vr(t[0]), vr(VMR), vr(VMR + 1), vr(VMR + 2)))
        sh.append('v_max3_u32 %s, %s, %s, %s' % (vr(t[1]), vr(VMR + 3), vr(VMR + 4), vr(VMR + 5)))
        sh.append(dpp8(PMH, PM))
        sh.append(dpp8(PMH + 1, PM + 1))
        sh.append('v_max3_u32 %s, %s, %s, %s' % (vr(t[0]), vr(t[0]), vr(VMR + 6), vr(VMR + 7)))
        sh.append('v_max_u32 %s, %s, %s' % (vr(t[0]), vr(t[0]), vr(t[1])))
        sh.append('v_permlane32_swap_b32 %s, %s' % (vr(PMH), vr(PM)))
        sh.append('v_permlane32_swap_b32 %s, %s' % (vr(PMH + 1), vr(PM + 1)))
        sh.append('v_cmp_eq_u32 vcc, -1, %s' % vr(t[0]))
        mf = ['v_mfma_f32_16x16x32_bf16 %s, %s, %s, 0' % (vr(LS, 4), vr(v_ones, 4), vr(PX, 4))]
        for a in range(4):
            mf.append('v_mfma_f32_16x16x32_bf16 %s, %s, %s, 0' % (vr(O + 4 * a, 4), vr(VXR + 4 * a, 4), vr(PX, 4)))
        for a in range(4):
            mf.append('v_mfma_f32_16x16x32_bf16 %s, %s, %s, %s' % (vr(O + 4 * a, 4), vr(VXR + 4 * (a + 4), 4), vr(PXH, 4), vr(O + 4 * a, 4)))
        per = [3, 3, 2, 2, 2, 2, 3, 3, 1]
        for i, m in enumerate(mf):
            A(m)
            for _ in range(per[i]):
                if sh:
                    x = sh.pop(0)
                    if x.startswith('s_waitcnt'):
                        A(x)
                        x = sh.pop(0)
                    A(x)
        assert not sh
        Lv_ok, Lv_slow = A.uid('vok'), A.uid('vslow')
        A('s_cbranch_vccnz ' + Lv_slow)
        A.label(Lv_ok)

        def tailV():
            A.label(Lv_slow)
            poll(2, vload, VMR, 'V')
            A('s_branch ' + Lv_ok)
        ool.append(tailV)
        A('v_mfma_f32_16x16x16_bf16 %s, %s, %s, %s' % (vr(LS, 4), vr(v_ones, 2), vr(PM, 2), vr(LS, 4)))
        for a in range(4):
            A('v_mfma_f32_16x16x16_bf16 %s, %s, %s, %s' % (vr(O + 4 * a, 4), vr(VMR + 2 * a, 2), vr(PM, 2), vr(O + 4 * a, 4)))
        A('v_rcp_f32 %s, %s' % (vr(v_l), vr(LS)))
        A('v_mov_b32_dpp %s, %s row_shr:8 row_mask:0xf bank_mask:0xc' % (vr(v_l), vr(v_l)))
        for a in range(4):
            for r in range(0, 4, 2):
                A('v_pk_mul_f32 %s, %s, %s op_sel_hi:[1,0]' % (vr(O + 4 * a + r, 2), vr(O + 4 * a + r, 2), vr(v_l, 2)))
            A('v_cvt_pk_bf16_f32 %s, %s, %s' % (vr(XY + a), vr(O + 4 * a), vr(O + 4 * a + 1)))
            A('v_cvt_pk_bf16_f32 %s, %s, %s' % (vr(XY + 4 + a), vr(O + 4 * a + 2), vr(O + 4 * a + 3)))
        A('ds_write_b128 %s, %s' % (vr(va_ow), vr(XY, 4)))
        A('ds_write_b128 %s, %s offset:128' % (vr(va_ow), vr(XY + 4, 4)))
        A('s_waitcnt lgkmcnt(0)')
        stamp(4)
        A('s_barrier')
        for k in range(8):
            A('ds_read_b128 %s, %s offset:%d' % (vr(G + 4 * k, 4), vr(va_or), k * 1024))
        for k in range(8):
            A('s_waitcnt lgkmcnt(%d)' % (7 - k))
            A(smf(acc1, G + 4 * k, W2 + 8 * (2 * k)))
            A(smf(acc2, G + 4 * k, W2 + 8 * (2 * k + 1)))
        for acc, va in ((acc1, va_pd), (acc2, va_pw)):
            A('v_permlane32_swap_b32 %s, %s' % (vr(acc), vr(acc + 2)))
            A('v_permlane32_swap_b32 %s, %s' % (vr(acc + 1), vr(acc + 3)))
            A('v_pk_add_f32 %s, %s, %s' % (vr(acc, 2), vr(acc, 2), vr(acc + 2, 2)))
            A('v_cvt_pk_bf16_f32 %s, %s, %s' % (vr(acc), vr(acc), vr(acc + 1)))
            A('v_pk_min_u16 %s, %s, %s' % (vr(acc), vr(acc), sr(s_fffe)))
            A('buffer_store_dword %s, %s, %s, %s offen sc1' % (vr(acc), vr(va), sr(SRD_WS, 4), sr(s_ps)))
        stamp(5)
        kv_stuff()
        for x in side:
            A(x)
        advance()
        if NOE_SLEEP:
            A('s_sleep %d' % NOE_SLEEP)
        A('s_branch ' + L_st)

    L_safe = A.uid('safe')
    A('s_cmp_lg_u32 s%d, 0' % S_MODE)
    A('s_cbranch_scc1 ' + L_safe)
    for fl in (False, True):
        if fl:
            A.label(L_safe)
        A('s_cmp_lg_u32 %s, 0' % sr(s_red))
        A('s_cbranch_scc1 ' + name + '_firstn' + ('f' if fl else ''))
        loop(True, fl)
        loop(False, fl)
        while ool:
            ool.pop(0)()
    A.label(L_lastN)
    A('s_waitcnt vmcnt(0)')
    A('s_barrier')
    A('s_cmp_lg_u32 %s, 0' % sr(s_w))
    A('s_cbranch_scc1 ' + L_fin)
    A.label(L_lastR)
    A('s_cmp_eq_u32 %s, 2' % sr(s_w))
    A('s_cbranch_scc1 ' + L_fin)
    A('buffer_load_dwordx4 %s, %s, %s, %s offen sc1' % (vr(M, 4), vr(va_rb), sr(SRD_WS, 4), sr(s_slot)))
    A('s_waitcnt vmcnt(0)')
    A('buffer_store_dwordx4 %s, %s, %s, %s offen sc1' % (vr(M, 4), vr(va_cp), sr(SRD_WS, 4), sr(s_out)))
    A.label(L_fin)
    if stamps:
        A('s_waitcnt lgkmcnt(0)')
        A('v_lshlrev_b32 %s, 4, %s' % (vr(v_t[0]), vr(v_lane)))
        A('s_lshl_b32 %s, %s, 12' % (sr(s_t2), sr(s_w)))
        A('s_add_u32 %s, %s, 65536' % (sr(s_t2), sr(s_t2)))
        A('v_add_u32 %s, %s, %s' % (vr(v_t[1]), sr(s_t2), vr(v_t[0])))
        for k in range(4):
            A('ds_read_b128 %s, %s offset:%d' % (vr(F + 4 * k, 4), vr(v_t[1]), k * 1024))
        A('s_waitcnt lgkmcnt(0)')
        for k in range(4):
            A('buffer_store_dwordx4 %s, %s, %s, %s offen offset:%d' % (vr(F + 4 * k, 4), vr(v_t[0]), sr(SRD_WS, 4), sr(s_stamp), k * 1024))
    A('s_waitcnt vmcnt(0) lgkmcnt(0)')
    A('s_barrier')
    A('s_cmp_lg_u32 %s, 0' % sr(s_w))
    A('s_cbranch_scc1 ' + L_work)
    A('s_lshr_b32 %s, %s, 1' % (sr(s_t0), sr(s_x)))
    A('s_lshl_b32 %s, %s, 7' % (sr(s_t0), sr(s_t0)))
    A('s_add_u32 %s, %s, 0x%x' % (sr(s_t0), sr(s_t0), CTR + DBG_FIN * 128))
    A('v_mov_b32 %s, %s' % (vr(v_t[0]), sr(s_t0)))
    A('v_mov_b32 %s, 1' % vr(v_t[1]))
    A('s_mov_b64 exec, 1')
    A('buffer_atomic_add %s, %s, %s, 0 offen sc1' % (vr(v_t[1]), vr(v_t[0]), sr(SRD_WS, 4)))
    A('s_mov_b64 exec, -1')
    A('s_branch ' + L_work)
    A.label(L_exit)
    A('s_endpgm')
    A.label(L_work)
    worker(A, name)
    return dict(vgpr=512, accum=256, sgpr=102)
```

```python
from asmlib import *
from layout import *
from gemm import Gemm
import struct


def f32bits(x):
    return struct.unpack('<I', struct.pack('<f', x))[0]


def mk_srd(A, dst, ptr, nbytes):
    A('s_mov_b32 %s, %s' % (sr(dst), sr(ptr)))
    A('s_and_b32 %s, %s, 0xffff' % (sr(dst + 1), sr(ptr + 1)))
    A('s_mov_b32 %s, 0x%x' % (sr(dst + 2), nbytes))
    A('s_mov_b32 %s, 0x00020000' % sr(dst + 3))


def load_ptrs(A, S):
    P = S.alloc(28, 4)
    A('s_load_dwordx16 %s, s[0:1], 0' % sr(P, 16))
    A('s_load_dwordx8 %s, s[0:1], 64' % sr(P + 16, 8))
    A('s_load_dwordx2 %s, s[0:1], 96' % sr(P + 24, 2))
    return {k: P + v // 4 for k, v in KA.items()}


def gen_qkv(A, name):
    S = Regs('s', 4, 100)
    V = Regs('v', 1, 256)
    A.raw('.p2align 8')
    A.label(name)
    L_exit = name + '_exit'
    A('s_cmp_ge_u32 s2, 480')
    A('s_cbranch_scc1 ' + L_exit)
    P = load_ptrs(A, S)
    G = Gemm(A, S, V, 4, 4)
    SRD_WS = S.alloc(4, 4)
    s_w, s_nt, s_mt, s0, s1, s2_, s_base, s_tbs, s_or = [S.alloc() for _ in range(9)]
    s_pp = S.alloc(2, 2)
    v_lane, v_l16 = V.alloc(), V.alloc()
    A('v_and_b32 %s, 63, v0' % vr(v_lane))
    A('v_lshrrev_b32 %s, 6, v0' % vr(v_l16))
    A('v_readfirstlane_b32 %s, %s' % (sr(s_w), vr(v_l16)))
    A('v_lshlrev_b32 %s, 4, %s' % (vr(v_l16), vr(v_lane)))
    A('s_and_b32 %s, s2, 7' % sr(s0))
    A('s_lshr_b32 %s, s2, 3' % sr(s1))
    A('s_and_b32 %s, %s, 7' % (sr(s_mt), sr(s1)))
    A('s_and_b32 %s, %s, 0xf8' % (sr(s_nt), sr(s1)))
    A('s_add_u32 %s, %s, %s' % (sr(s_nt), sr(s_nt), sr(s0)))
    L1 = A.uid('dec')
    A('s_cmp_lt_u32 %s, 56' % sr(s1))
    A('s_cbranch_scc1 ' + L1)
    A('s_lshr_b32 %s, %s, 1' % (sr(s_nt), sr(s0)))
    A('s_add_u32 %s, %s, 56' % (sr(s_nt), sr(s_nt)))
    A('s_and_b32 %s, %s, 1' % (sr(s0), sr(s0)))
    A('s_lshl_b32 %s, %s, 2' % (sr(s0), sr(s0)))
    A('s_add_u32 %s, %s, %s' % (sr(s_mt), sr(s_mt), sr(s0)))
    A.label(L1)
    A('s_waitcnt lgkmcnt(0)')
    mk_srd(A, SRD_WS, P['ws'], WS_BYTES)
    A('s_lshl_b32 %s, %s, 19' % (sr(G.s_xo), sr(s_mt)))
    A('s_mov_b32 %s, 128' % sr(G.s_xs))
    A('s_mov_b32 %s, 7' % sr(G.s_n))
    LB, LJ = A.uid('isB'), A.uid('join')
    A('s_cmp_ge_u32 %s, 48' % sr(s_nt))
    A('s_cbranch_scc1 ' + LB)
    A('s_lshr_b32 %s, %s, 4' % (sr(s0), sr(s_nt)))
    A('s_and_b32 %s, %s, 15' % (sr(s1), sr(s_nt)))
    A('s_cmp_eq_u32 %s, 1' % sr(s0))
    A('s_cselect_b32 %s, 1, 0' % sr(s_or))
    A('s_cselect_b64 %s, %s, %s' % (sr(s_pp, 2), sr(P['A_Wv'], 2), sr(P['A_Wk'], 2)))
    A('s_cselect_b32 %s, 0x%x, 0x%x' % (sr(s_base), VX, KX) if False else 's_mov_b32 %s, 0x%x' % (sr(s_base), KX))
    A('s_cselect_b32 %s, 0x%x, %s' % (sr(s_base), VX, sr(s_base)))
    A('s_cmp_eq_u32 %s, 2' % sr(s0))
    A('s_cselect_b64 %s, %s, %s' % (sr(s_pp, 2), sr(P['A_Wq'], 2), sr(s_pp, 2)))
    A('s_cselect_b32 %s, 0x%x, %s' % (sr(s_base), QX, sr(s_base)))
    mk_srd(A, G.SRD_W, s_pp, 1024 * 4096 * 2)
    mk_srd(A, G.SRD_X, P['A_x'], 2048 * 1024 * 2)
    A('s_lshl_b32 %s, %s, 9' % (sr(G.s_wo), sr(s1)))
    A('s_mov_b32 %s, %d' % (sr(G.s_ws), 64 * 8192))
    A('s_mov_b32 %s, %d' % (sr(s_tbs), 128 * 2048))
    A('s_mov_b32 %s, %s' % (sr(s2_), sr(s1)))
    G.setup(v_lane, s_w, (s0, s1), 'nat', 2048, 8192)
    A('s_branch ' + LJ)
    A.label(LB)
    A('s_sub_u32 %s, %s, 48' % (sr(s1), sr(s_nt)))
    A('s_lshr_b32 %s, %s, 2' % (sr(s0), sr(s1)))
    A('s_cmp_eq_u32 %s, 2' % sr(s0))
    A('s_cselect_b32 %s, 1, 0' % sr(s_or))
    A('s_lshl_b32 %s, %s, 22' % (sr(s_base), sr(s0)))
    A('s_add_u32 %s, %s, 0x%x' % (sr(s_base), sr(s_base), QB))
    mk_srd(A, G.SRD_W, P['B_wqkv'], 1024 * 3072 * 2)
    mk_srd(A, G.SRD_X, P['B_x'], 2048 * 1024 * 2)
    A('s_lshl_b32 %s, %s, 9' % (sr(G.s_wo), sr(s1)))
    A('s_mov_b32 %s, %d' % (sr(G.s_ws), 64 * 6144))
    A('s_mov_b32 %s, %d' % (sr(s_tbs), 32 * 2048))
    A('s_and_b32 %s, %s, 3' % (sr(s2_), sr(s1)))
    G.setup(v_lane, s_w, (s0, s1), 'nat', 2048, 6144)
    A.label(LJ)
    A('s_lshr_b32 %s, %s, 1' % (sr(s0), sr(s_w)))
    A('s_lshl_b32 %s, %s, 2' % (sr(s0), sr(s0)))
    A('s_lshl_b32 %s, %s, 3' % (sr(s1), sr(s_mt)))
    A('s_add_u32 %s, %s, %s' % (sr(s0), sr(s0), sr(s1)))
    A('s_mul_i32 %s, %s, %s' % (sr(s0), sr(s0), sr(s_tbs)))
    A('s_add_u32 %s, %s, %s' % (sr(s_base), sr(s_base), sr(s0)))
    A('s_and_b32 %s, %s, 1' % (sr(s0), sr(s_w)))
    A('s_lshl_b32 %s, %s, 13' % (sr(s0), sr(s0)))
    A('s_lshl_b32 %s, %s, 14' % (sr(s1), sr(s2_)))
    A('s_add_u32 %s, %s, %s' % (sr(s_base), sr(s_base), sr(s0)))
    A('s_add_u32 %s, %s, %s' % (sr(s_base), sr(s_base), sr(s1)))
    G.prologue()
    LN, LE = A.uid('orN'), A.uid('epi')
    A('s_cmp_eq_u32 %s, 1' % sr(s_or))
    A('s_cbranch_scc1 ' + LN)
    G.mainloop('T', 't')
    A('s_nop 15')
    A('s_branch ' + LE)
    A.label(LN)
    G.mainloop('N', 'n')
    A.label(LE)
    G.epi_blk(SRD_WS, v_l16, s_base, s_tbs, s0)
    A.label(L_exit)
    A('s_endpgm')
    return dict(vgpr=512, accum=256, sgpr=S.hi)


def gen_out(A, name, mb=2, nb=1, a_only=False, nst=2):
    S = Regs('s', 4, 100)
    V = Regs('v', 1, 128)
    TM, TN = 64 * mb, 64 * nb
    nM, nN = 2048 // TM, 1024 // TN
    nT = nM * nN
    A.raw('.p2align 8')
    A.label(name)
    L_exit = name + '_exit'
    A('s_cmp_ge_u32 s2, %d' % (nT if a_only else 2 * nT))
    A('s_cbranch_scc1 ' + L_exit)
    P = load_ptrs(A, S)
    G = Gemm(A, S, V, mb, nb, nst=nst)
    SRD_O = S.alloc(4, 4)
    s_w, s_nt, s_mt, s0, s1, s_id, s_base = [S.alloc() for _ in range(7)]
    v_lane, v_off = V.alloc(), V.alloc()
    A('v_and_b32 %s, 63, v0' % vr(v_lane))
    A('v_lshrrev_b32 %s, 6, v0' % vr(v_off))
    A('v_readfirstlane_b32 %s, %s' % (sr(s_w), vr(v_off)))
    A('v_and_b32 %s, 31, %s' % (vr(v_off), vr(v_lane)))
    A('v_lshlrev_b32 %s, 12, %s' % (vr(v_off), vr(v_off)))
    A('v_lshrrev_b32 %s, 5, %s' % (vr(G.t[0]), vr(v_lane)))
    A('v_lshl_add_u32 %s, %s, 4, %s' % (vr(v_off), vr(G.t[0]), vr(v_off)))
    A('s_and_b32 %s, s2, %d' % (sr(s_id), nT - 1))
    mper = nM // 8
    A('s_and_b32 %s, %s, 7' % (sr(s0), sr(s_id)))
    A('s_lshr_b32 %s, %s, 3' % (sr(s1), sr(s_id)))
    A('s_and_b32 %s, %s, %d' % (sr(s_nt), sr(s1), nN - 1))
    A('s_lshr_b32 %s, %s, %d' % (sr(s_mt), sr(s1), nN.bit_length() - 1))
    A('s_lshl_b32 %s, %s, 3' % (sr(s_mt), sr(s_mt)))
    A('s_add_u32 %s, %s, %s' % (sr(s_mt), sr(s_mt), sr(s0)))
    A('s_waitcnt lgkmcnt(0)')
    mk_srd(A, SRD_O, P['out'], 2048 * 2048 * 2)
    mk_srd(A, G.SRD_X, P['ws'], WS_BYTES)
    A('s_mov_b32 %s, 4096' % sr(G.s_xs))
    A('s_mov_b32 %s, %d' % (sr(G.s_ws), 64 * 2048))
    A('s_mul_i32 %s, %s, %d' % (sr(G.s_wo), sr(s_nt), TN * 2))
    A('s_lshr_b32 %s, %s, 1' % (sr(s0), sr(s_w)))
    A('s_mul_i32 %s, %s, %d' % (sr(s0), sr(s0), 32 * mb * 4096))
    A('s_mul_i32 %s, %s, %d' % (sr(s_base), sr(s_mt), TM * 4096))
    A('s_add_u32 %s, %s, %s' % (sr(s_base), sr(s_base), sr(s0)))
    A('s_and_b32 %s, %s, 1' % (sr(s0), sr(s_w)))
    A('s_mul_i32 %s, %s, %d' % (sr(s0), sr(s0), 64 * nb))
    A('s_add_u32 %s, %s, %s' % (sr(s_base), sr(s_base), sr(s0)))
    A('s_add_u32 %s, %s, %s' % (sr(s_base), sr(s_base), sr(G.s_wo)))
    LB, LJ = A.uid('isB'), A.uid('join')
    A('s_cmp_ge_u32 s2, %d' % nT)
    A('s_cbranch_scc1 ' + LB)
    mk_srd(A, G.SRD_W, P['A_Wo'], 4096 * 1024 * 2)
    A('s_mul_i32 %s, %s, %d' % (sr(G.s_xo), sr(s_mt), (TM // 32) * 128 * 2048))
    A('s_add_u32 %s, %s, 0x%x' % (sr(G.s_xo), sr(G.s_xo), OA))
    A('s_mov_b32 %s, %d' % (sr(G.s_n), 64 // nst - 1))
    G.setup(v_lane, s_w, (s0, s1), 'blk', 128 * 2048, 2048)
    A('s_branch ' + LJ)
    A.label(LB)
    mk_srd(A, G.SRD_W, P['B_wo'], 1024 * 1024 * 2)
    A('s_mul_i32 %s, %s, %d' % (sr(G.s_xo), sr(s_mt), (TM // 32) * 32 * 2048))
    A('s_add_u32 %s, %s, 0x%x' % (sr(G.s_xo), sr(G.s_xo), OB))
    A('s_mov_b32 %s, %d' % (sr(G.s_n), 16 // nst - 1))
    A('s_add_u32 %s, %s, 2048' % (sr(s_base), sr(s_base)))
    G.setup(v_lane, s_w, (s0, s1), 'blk', 32 * 2048, 2048)
    A.label(LJ)
    G.prologue()
    G.mainloop('T', 't')
    G.epi_out(SRD_O, v_off, s_base)
    A.label(L_exit)
    A('s_endpgm')
    nacc = 16 * mb * nb
    acc_off = (V.hi + 3) // 4 * 4
    return dict(vgpr=acc_off + nacc, accum=acc_off, sgpr=S.hi, grid=2 * nT, lds=2 * G.STG)


import attn


def gen_attn(A, name, a_only=False):
    S = Regs('s', 4, 100)
    A.raw('.p2align 8')
    A.label(name)
    L_exit = name + '_exit'
    A('s_cmp_ge_u32 s2, %d' % (512 if a_only else 1024))
    A('s_cbranch_scc1 ' + L_exit)
    p = S.alloc(2, 2)
    SRD = S.alloc(4, 4)
    s_w, s_item = S.alloc(), S.alloc()
    st = [S.alloc() for _ in range(4)]
    A('s_load_dwordx2 %s, s[0:1], 96' % sr(p, 2))
    v_lane, v_l16 = 1, 2
    A('v_and_b32 %s, 63, v0' % vr(v_lane))
    A('v_lshrrev_b32 %s, 6, v0' % vr(v_l16))
    A('v_readfirstlane_b32 %s, %s' % (sr(s_w), vr(v_l16)))
    A('v_lshlrev_b32 %s, 4, %s' % (vr(v_l16), vr(v_lane)))
    A('s_and_b32 %s, s2, 511' % sr(s_item))
    A('s_lshl_b32 %s, %s, 2' % (sr(s_item), sr(s_item)))
    A('s_add_u32 %s, %s, %s' % (sr(s_item), sr(s_item), sr(s_w)))
    A('s_waitcnt lgkmcnt(0)')
    mk_srd(A, SRD, p, WS_BYTES)
    LA = A.uid('attnA')
    h1 = 0
    if not a_only:
        A('s_cmp_ge_u32 s2, 512')
        A('s_cbranch_scc1 ' + LA)
        h1 = attn.attn_b(A, SRD, s_item, st, v_lane, v_l16, 4)
        A('s_endpgm')
    A.label(LA)
    h2 = attn.attn_a(A, SRD, s_item, st, v_lane, v_l16, 4)
    A.label(L_exit)
    A('s_endpgm')
    hi = (max(h1, h2) + 3) // 4 * 4
    return dict(vgpr=hi, accum=hi, sgpr=S.hi)


def gen_attn_tail(A, name, item0, nitems):
    S = Regs('s', 4, 100)
    A.raw('.p2align 8')
    A.label(name)
    L_exit = name + '_exit'
    A('s_cmp_ge_u32 s2, %d' % nitems)
    A('s_cbranch_scc1 ' + L_exit)
    p = S.alloc(2, 2)
    SRD = S.alloc(4, 4)
    s_item = S.alloc()
    st = [S.alloc() for _ in range(4)]
    A('s_load_dwordx2 %s, s[0:1], 96' % sr(p, 2))
    v_lane, v_l16 = 1, 2
    A('v_and_b32 %s, 63, v0' % vr(v_lane))
    A('v_lshlrev_b32 %s, 4, %s' % (vr(v_l16), vr(v_lane)))
    A('s_add_u32 %s, s2, %d' % (sr(s_item), item0))
    A('s_waitcnt lgkmcnt(0)')
    mk_srd(A, SRD, p, WS_BYTES)
    h2 = attn.attn_a(A, SRD, s_item, st, v_lane, v_l16, 4)
    A.label(L_exit)
    A('s_endpgm')
    hi = (h2 + 3) // 4 * 4
    return dict(vgpr=hi, accum=hi, sgpr=S.hi)


def out_direct(A, SRD, SRD_O, s_w, s_tb, s_nb, st, v_lane, v_l16, v_off, V0, mtiles=2, ld='', pre=None):
    V = Regs('v', V0, 256)
    s_x0, s_x1, s_wb, s0, s1 = st
    v_t = V.alloc()
    ACC = V.alloc(16 * mtiles, 4)
    NB = 4
    per = 1 + mtiles
    BUF = [V.alloc(4 * per * NB, 4) for _ in range(4)]
    A('s_lshl_b32 %s, %s, 16' % (sr(s0), sr(s_w)))
    A('s_lshl_b32 %s, %s, 18' % (sr(s_x0), sr(s_tb)))
    A('s_add_u32 %s, %s, %s' % (sr(s_x0), sr(s_x0), sr(s0)))
    A('s_add_u32 %s, %s, 0x%x' % (sr(s_x0), sr(s_x0), OA))
    A('s_add_u32 %s, %s, %d' % (sr(s_x1), sr(s_x0), 128 * 2048))
    A('s_lshl_b32 %s, %s, 18' % (sr(s_wb), sr(s_nb)))
    A('s_add_u32 %s, %s, %s' % (sr(s_wb), sr(s_wb), sr(s0)))
    A('s_add_u32 %s, %s, 0x%x' % (sr(s_wb), sr(s_wb), WOT))
    srcs = (s_wb, s_x0, s_x1)[:per]

    def loads(b):
        for kk in range(NB):
            for i, so in enumerate(srcs):
                A('buffer_load_dwordx4 %s, %s, %s, %s offen offset:%d%s' % (vr(BUF[b] + 4 * per * kk + 4 * i, 4), vr(v_l16), sr(SRD, 4), sr(so), kk * 1024, ld))
        for so in srcs:
            A('s_add_u32 %s, %s, %d' % (sr(so), sr(so), NB * 1024))

    def comp(b, first):
        for kk in range(NB):
            for m in range(mtiles):
                a = vr(ACC + 16 * m, 16)
                A('v_mfma_f32_32x32x16_bf16 %s, %s, %s, %s' % (a, vr(BUF[b] + 4 * per * kk, 4), vr(BUF[b] + 4 * per * kk + 4 + 4 * m, 4), '0' if first and kk == 0 else a))
    nbat = 64 // NB
    for b in range(3):
        loads(b)
    for i in range(nbat):
        if i + 3 < nbat:
            loads((i + 3) % 4)
            A('s_waitcnt vmcnt(%d)' % (3 * per * NB))
        else:
            A('s_waitcnt vmcnt(%d)' % ((nbat - 1 - i) * per * NB))
        comp(i % 4, i == 0)
    nq = 4 * mtiles
    A('s_mul_i32 %s, %s, %d' % (sr(s0), sr(s_w), nq * 1024))
    A('v_add_u32 %s, %s, %s' % (vr(v_t), sr(s0), vr(v_l16)))
    for r in range(nq):
        A('ds_write_b128 %s, %s offset:%d' % (vr(v_t), vr(ACC + 4 * r, 4), r * 1024))
    assert mtiles == 2
    A('s_lshl_b32 %s, %s, 11' % (sr(s0), sr(s_w)))
    A('v_add_u32 %s, %s, %s' % (vr(v_t), sr(s0), vr(v_l16)))
    A('s_waitcnt lgkmcnt(0)')
    A('s_barrier')
    R = BUF[0]
    for w in range(4):
        for h in range(2):
            A('ds_read_b128 %s, %s offset:%d' % (vr(R + 8 * w + 4 * h, 4), vr(v_t), w * 8192 + h * 1024))
    A('s_lshr_b32 %s, %s, 1' % (sr(s1), sr(s_w)))
    A('s_add_u32 %s, %s, %s' % (sr(s0), sr(s_tb), sr(s1)))
    A('s_lshl_b32 %s, %s, 17' % (sr(s0), sr(s0)))
    A('s_lshl_b32 %s, %s, 6' % (sr(s1), sr(s_nb)))
    A('s_add_u32 %s, %s, %s' % (sr(s0), sr(s0), sr(s1)))
    A('s_and_b32 %s, %s, 1' % (sr(s1), sr(s_w)))
    A('s_lshl_b32 %s, %s, 5' % (sr(s1), sr(s1)))
    A('s_add_u32 %s, %s, %s' % (sr(s0), sr(s0), sr(s1)))
    A('s_waitcnt lgkmcnt(0)')
    for r in range(8):
        A('v_add_f32 %s, %s, %s' % (vr(R + r), vr(R + r), vr(R + 8 + r)))
        A('v_add_f32 %s, %s, %s' % (vr(R + 16 + r), vr(R + 16 + r), vr(R + 24 + r)))
    for r in range(8):
        A('v_add_f32 %s, %s, %s' % (vr(R + r), vr(R + r), vr(R + 16 + r)))
    D = R + 32
    for r in range(4):
        A('v_cvt_pk_bf16_f32 %s, %s, %s' % (vr(D + r), vr(R + 2 * r), vr(R + 2 * r + 1)))
    A('v_permlane32_swap_b32 %s, %s' % (vr(D), vr(D + 2)))
    A('v_permlane32_swap_b32 %s, %s' % (vr(D + 1), vr(D + 3)))
    A('buffer_store_dwordx4 %s, %s, %s, %s offen' % (vr(D, 4), vr(v_off), sr(SRD_O, 4), sr(s0)))
    return V.hi


def out_direct32(A, SRD, SRD_O, s_w, s_tb, s_nb, st, v_lane, v_l16, V0, ld, pre_wait):
    V = Regs('v', V0, 256)
    s_x, s_wb, s0 = st
    v_t, v_o = V.alloc(), V.alloc()
    ACC = V.alloc(16, 4)
    NX = 56
    XB = V.alloc(4 * NX, 4)
    A('s_lshl_b32 %s, %s, 16' % (sr(s0), sr(s_w)))
    A('s_lshl_b32 %s, %s, 18' % (sr(s_x), sr(s_tb)))
    A('s_add_u32 %s, %s, %s' % (sr(s_x), sr(s_x), sr(s0)))
    A('s_add_u32 %s, %s, 0x%x' % (sr(s_x), sr(s_x), OA))
    A('s_lshl_b32 %s, %s, 18' % (sr(s_wb), sr(s_nb)))
    A('s_add_u32 %s, %s, %s' % (sr(s_wb), sr(s_wb), sr(s0)))
    A('s_add_u32 %s, %s, 0x%x' % (sr(s_wb), sr(s_wb), WOT))
    for kk in range(64):
        A('buffer_load_dwordx4 %s, %s, %s, %s offen offset:%d%s' % (ar(4 * kk, 4), vr(v_l16), sr(SRD, 4), sr(s_wb), (kk & 3) * 1024, ld))
        if kk & 3 == 3:
            A('s_add_u32 %s, %s, 4096' % (sr(s_wb), sr(s_wb)))
    A('v_and_b32 %s, 31, %s' % (vr(v_o), vr(v_lane)))
    A('v_lshlrev_b32 %s, 12, %s' % (vr(v_o), vr(v_o)))
    A('v_lshrrev_b32 %s, 5, %s' % (vr(v_t), vr(v_lane)))
    A('v_lshl_add_u32 %s, %s, 3, %s' % (vr(v_o), vr(v_t), vr(v_o)))
    A('s_waitcnt vmcnt(0)')
    pre_wait()

    def xl(kk):
        A('buffer_load_dwordx4 %s, %s, %s, %s offen offset:%d%s' % (vr(XB + 4 * (kk % NX), 4), vr(v_l16), sr(SRD, 4), sr(s_x), (kk & 3) * 1024, ld))
        if kk & 3 == 3:
            A('s_add_u32 %s, %s, 4096' % (sr(s_x), sr(s_x)))
    for kk in range(NX):
        xl(kk)
    a = vr(ACC, 16)
    issued = NX
    for kk in range(64):
        A('s_waitcnt vmcnt(%d)' % (issued - kk - 1))
        A('v_mfma_f32_32x32x16_bf16 %s, %s, %s, %s' % (a, ar(4 * kk, 4), vr(XB + 4 * (kk % NX), 4), '0' if kk == 0 else a))
        if issued < 64:
            xl(issued)
            issued += 1
    A('s_lshl_b32 %s, %s, 12' % (sr(s0), sr(s_w)))
    A('v_add_u32 %s, %s, %s' % (vr(v_t), sr(s0), vr(v_l16)))
    for r in range(4):
        A('ds_write_b128 %s, %s offset:%d' % (vr(v_t), vr(ACC + 4 * r, 4), r * 1024))
    A('s_lshl_b32 %s, %s, 10' % (sr(s0), sr(s_w)))
    A('v_add_u32 %s, %s, %s' % (vr(v_t), sr(s0), vr(v_l16)))
    A('s_waitcnt lgkmcnt(0)')
    A('s_barrier')
    R = XB
    for w in range(4):
        A('ds_read_b128 %s, %s offset:%d' % (vr(R + 4 * w, 4), vr(v_t), w * 4096))
    A('s_lshl_b32 %s, %s, 17' % (sr(s0), sr(s_tb)))
    A('s_lshl_b32 %s, %s, 6' % (sr(s_x), sr(s_nb)))
    A('s_add_u32 %s, %s, %s' % (sr(s0), sr(s0), sr(s_x)))
    A('s_lshl_b32 %s, %s, 4' % (sr(s_x), sr(s_w)))
    A('s_add_u32 %s, %s, %s' % (sr(s0), sr(s0), sr(s_x)))
    A('s_waitcnt lgkmcnt(0)')
    for r in range(0, 4, 2):
        A('v_pk_add_f32 %s, %s, %s' % (vr(R + r, 2), vr(R + r, 2), vr(R + 4 + r, 2)))
        A('v_pk_add_f32 %s, %s, %s' % (vr(R + 8 + r, 2), vr(R + 8 + r, 2), vr(R + 12 + r, 2)))
    for r in range(0, 4, 2):
        A('v_pk_add_f32 %s, %s, %s' % (vr(R + r, 2), vr(R + r, 2), vr(R + 8 + r, 2)))
    D = R + 16
    for r in range(2):
        A('v_cvt_pk_bf16_f32 %s, %s, %s' % (vr(D + r), vr(R + 2 * r), vr(R + 2 * r + 1)))
    A('buffer_store_dwordx2 %s, %s, %s, %s offen' % (vr(D, 2), vr(v_o), sr(SRD_O, 4), sr(s0)))


def place_check(A, SRD_D, v_lane, va, vb, s_cnt, lim, L_restart):
    Lw, Ld, Lb = A.uid('pcw'), A.uid('pcd'), A.uid('pcb')
    A('s_cmp_lg_u32 s%d, 0' % S_MODE)
    A('s_cbranch_scc1 ' + Ld)
    A('v_and_b32 %s, 7, %s' % (vr(va), vr(v_lane)))
    A('v_lshlrev_b32 %s, 2, %s' % (vr(va), vr(va)))
    A('s_mov_b32 %s, 0' % sr(s_cnt))
    A.label(Lw)
    A('buffer_load_dword %s, %s, %s, 0 offen sc1' % (vr(vb), vr(va), sr(SRD_D, 4)))
    A('s_add_u32 %s, %s, 1' % (sr(s_cnt), sr(s_cnt)))
    A('s_waitcnt vmcnt(0)')
    A('v_cmp_ne_u32 vcc, 32, %s' % vr(vb))
    A('s_cbranch_vccz ' + Ld)
    A('v_cmp_lt_u32 vcc, 32, %s' % vr(vb))
    A('s_cbranch_vccnz ' + Lb)
    A('s_sleep 8')
    A('s_cmp_lt_u32 %s, %d' % (sr(s_cnt), lim))
    A('s_cbranch_scc1 ' + Lw)
    A('s_branch ' + Ld)
    A.label(Lb)
    A('s_mov_b32 s%d, 1' % S_MODE)
    A('s_waitcnt vmcnt(0) lgkmcnt(0)')
    A('s_barrier')
    A('s_branch ' + L_restart)
    A.label(Ld)


def shift_ptrs(A, p_ws, p_dbg, s_tmp):
    A('s_lshl_b32 %s, s%d, 27' % (sr(s_tmp), S_MODE))
    A('s_add_u32 %s, %s, %s' % (sr(p_ws), sr(p_ws), sr(s_tmp)))
    A('s_addc_u32 %s, %s, 0' % (sr(p_ws + 1), sr(p_ws + 1)))
    A('s_lshl_b32 %s, s%d, 7' % (sr(s_tmp), S_MODE))
    A('s_add_u32 %s, %s, %s' % (sr(p_dbg), sr(p_dbg), sr(s_tmp)))
    A('s_addc_u32 %s, %s, 0' % (sr(p_dbg + 1), sr(p_dbg + 1)))
```

```python
from asmlib import *
from layout import *
from gemm import Gemm
from kernels import mk_srd, load_ptrs, out_direct, out_direct32, place_check, shift_ptrs
import attn
import os, json

LDS_JOB = 131072 + 64
LIM = 200000
WTOUCH = os.environ.get('WTOUCH', '')
WT_ODD = int(os.environ.get('WT_ODD', '1'))
WT2 = int(os.environ.get('WT2', '1'))
EARLY = int(os.environ.get('EARLY', '1'))
LAG = 2 if os.environ.get('OLDCHAIN') else 3
WST = int(os.environ.get('WST', '0'))

BL = int(os.environ.get('BL', '0'))
SEGS = [('skv', 16, 0), ('bkv', 16, 1), ('skv', 16, 1), ('bkv', 32, 3), ('bkv', 8, 7), ('q', 16, 0), ('bq', 24, 0),
        ('aattn', 8, 0), ('q', 8, 4), ('aout', 8, 0), ('q', 8, 6), ('aattn', 8, 2), ('battn', 8, 0), ('aout', 8, 2),
        ('battn', 8, 8), ('aattn', 4, 4), ('battn', 16, 16), ('aout', 4, 4), ('aattn1', 4, 20), ('aattn1', 4, 21),
        ('wot', 32, 0), ('aoutr', 2, 10), ('aattn1', 4, 22), ('aattn1', 4, 23), ('bout', 12, 0), ('aoutr', 2, 11),
        ('aattn1', 4, 24), ('aattn1', 4, 25), ('bout', 20 - BL, 12), ('aoutr', 2, 12), ('aattn1', 4, 26)]
NE = int(os.environ.get('NE', '3'))
for _mp in range(26, 32 - NE):
    SEGS += [('aattn1', 4, _mp + 1), ('aoutd', 8, _mp)]
for _mp in range(32 - NE, 32):
    if _mp < 31:
        SEGS += [('aattn1', 4, _mp + 1)]
    if _mp == 29:
        SEGS += [('aattn1', 4, 31)]
    SEGS += [('aoute', 16, 2 * _mp)]
SEGS += [('bout', BL, 32 - BL)]
SEGS = [x for x in SEGS if x[1]]
_seen = set()
SEGS = [x for x in SEGS if not (x in _seen or _seen.add(x))]
if os.environ.get('SEGS'):
    SEGS = [tuple(x) for x in json.loads(os.environ['SEGS'])]


def seg_bounds():
    o, a = [], 0
    for k, n, p in SEGS:
        o.append((a, a + n, '%s%d' % (k, p)))
        a += n
    return o


def gen_worker(A, name):
    S = Regs('s', 4, 100)
    P = load_ptrs(A, S)
    SRD_WS = S.alloc(4, 4)
    SRD_D = S.alloc(4, 4)
    SRD_O = S.alloc(4, 4)
    s_w, s_q, s_qn, s_job, s_cfg, s0, s1, s2_, s3, s_base, s_tbs, s_or, s_ctr, s_inc, s_mt, s_nt, s_it, s_k, s_p = [S.alloc() for _ in range(19)]
    s_pp = S.alloc(2, 2)
    s_tm = S.alloc(2, 2)
    s_sa = S.alloc()

    def wstamp(k):
        if not WST:
            return
        A('s_memrealtime %s' % sr(s_tm, 2))
        A('s_waitcnt lgkmcnt(0)')
        A('v_mov_b32 v4, %s' % sr(s_tm))
        A('v_mov_b32 v5, %s' % sr(s_sa))
        A('s_mov_b64 exec, 1')
        A('buffer_store_dword v4, v5, %s, 0 offen offset:%d' % (sr(SRD_WS, 4), 4 * k))
        if k in (2, 3):
            A('s_memtime %s' % sr(s_tm, 2))
            A('s_waitcnt lgkmcnt(0)')
            A('v_mov_b32 v4, %s' % sr(s_tm))
            A('buffer_store_dword v4, v5, %s, 0 offen offset:%d' % (sr(SRD_WS, 4), 4 * (k + 4)))
        A('s_mov_b64 exec, -1')
    v_lane, v_l16, v_off, v_a, v_b, v_sh = 1, 2, 3, 4, 5, 6
    s_init = S.alloc()
    s_et = S.alloc()
    s_wo = S.alloc()
    smark = S.mark()
    V4 = Regs('v', 8, 256)
    G4 = Gemm(A, S, V4, 4, 4)
    hi = S.mark()
    S.release(smark)
    V2 = Regs('v', 8, 256)
    G2 = Gemm(A, S, V2, 2, 2, xsc=' sc1', nst=4)
    assert (G2.SRD_X, G2.SRD_W, G2.s_xo, G2.s_n) == (G4.SRD_X, G4.SRD_W, G4.s_xo, G4.s_n)
    G = G4
    L_next, L_done = name + '_wnext', name + '_wdone'

    A('v_and_b32 %s, 63, v0' % vr(v_lane))
    A('v_lshrrev_b32 %s, 6, v0' % vr(v_l16))
    A('v_readfirstlane_b32 %s, %s' % (sr(s_w), vr(v_l16)))
    A('v_lshlrev_b32 %s, 4, %s' % (vr(v_l16), vr(v_lane)))
    A('v_and_b32 %s, 31, %s' % (vr(v_off), vr(v_lane)))
    A('v_lshlrev_b32 %s, 12, %s' % (vr(v_off), vr(v_off)))
    A('v_lshrrev_b32 %s, 5, %s' % (vr(v_a), vr(v_lane)))
    A('v_lshl_add_u32 %s, %s, 4, %s' % (vr(v_off), vr(v_a), vr(v_off)))
    A('s_and_b32 %s, s%d, 3' % (sr(s_q), S_VX))
    A('s_mov_b32 %s, 0' % sr(s_qn))
    A('s_mov_b32 %s, 0' % sr(s_cfg))
    A('s_mov_b32 %s, %d' % (sr(s_ctr), DBG_WT))
    A('s_waitcnt lgkmcnt(0)')
    shift_ptrs(A, P['ws'], P['dbg'], s0)
    mk_srd(A, SRD_WS, P['ws'], WS_HALF)
    mk_srd(A, SRD_D, P['dbg'], 128)
    mk_srd(A, SRD_O, P['out'], 2048 * 2048 * 2)

    A('v_and_b32 %s, 3, %s' % (vr(v_sh), vr(v_lane)))
    A('v_lshlrev_b32 %s, 7, %s' % (vr(v_sh), vr(v_sh)))
    A('v_add_u32 %s, 0x%x, %s' % (vr(v_sh), CTR, vr(v_sh)))
    A('v_mov_b32 v7, 0')
    A('s_mov_b32 %s, 0' % sr(s_init))
    A('s_mov_b32 %s, 0' % sr(s_et))
    v_tk = 7

    def early():
        if not EARLY:
            return
        Le = A.uid('et')
        A('s_nop 11')
        A('s_cmp_eq_u32 %s, 0' % sr(s_init))
        A('s_cbranch_scc1 ' + Le)
        A('s_mov_b32 %s, 1' % sr(s_et))
        A('s_cmp_lg_u32 %s, 0' % sr(s_w))
        A('s_cbranch_scc1 ' + Le)
        A('s_lshl_b32 %s, %s, 7' % (sr(s3), sr(s_q)))
        A('s_add_u32 %s, %s, 0x%x' % (sr(s3), sr(s3), CTR + DBG_Q * 128))
        A('v_mov_b32 %s, %s' % (vr(v_a), sr(s3)))
        A('v_mov_b32 %s, 1' % vr(v_tk))
        A('s_mov_b64 exec, 1')
        A('buffer_atomic_add %s, %s, %s, 0 offen sc0 sc1' % (vr(v_tk), vr(v_a), sr(SRD_WS, 4)))
        A('s_mov_b64 exec, -1')
        A.label(Le)

    def wait_init():
        Lw, Ld = A.uid('iw'), A.uid('id')
        A('s_cmp_lg_u32 %s, 0' % sr(s_init))
        A('s_cbranch_scc1 ' + Ld)
        A('s_mov_b32 %s, 1' % sr(s_init))
        A('v_mov_b32 %s, %d' % (vr(v_a), DBG_INIT))
        A('s_mov_b32 %s, 0' % sr(s3))
        A.label(Lw)
        A('buffer_load_dword %s, %s, %s, 0 offen sc1' % (vr(v_b), vr(v_a), sr(SRD_D, 4)))
        A('s_add_u32 %s, %s, 1' % (sr(s3), sr(s3)))
        A('s_waitcnt vmcnt(0)')
        A('v_cmp_ne_u32 vcc, 0, %s' % vr(v_b))
        A('s_cbranch_vccnz ' + Ld)
        A('s_sleep 4')
        A('s_cmp_lt_u32 %s, %d' % (sr(s3), LIM))
        A('s_cbranch_scc1 ' + Lw)
        A.label(Ld)
    L_have = A.uid('havejob')
    L_got = A.uid('gotjob')
    A('s_mov_b32 %s, s3' % sr(s_job))
    SRD_T = S.alloc(4, 4)
    hi = max(hi, S.mark())

    def touch(ptrs_sizes, s_id, per_wave_log2):
        A('s_lshl_b32 %s, %s, %d' % (sr(s0), sr(s_id), per_wave_log2))
        A('v_lshlrev_b32 %s, 7, %s' % (vr(v_a), vr(v_lane)))
        for p, nbytes in ptrs_sizes:
            mk_srd(A, SRD_T, P[p], nbytes)
            for i in range(1 << (per_wave_log2 - 13)):
                A('s_add_u32 %s, %s, %d' % (sr(s1), sr(s0), i * 8192))
                A('buffer_load_dword v7, %s, %s, %s offen' % (vr(v_a), sr(SRD_T, 4), sr(s1)))
            A('s_nop 4')
    L_restart = name + '_restart'
    L_st = A.uid('static')
    A('s_cmp_lt_u32 s3, 32')
    A('s_cbranch_scc1 ' + L_st)
    place_check(A, SRD_D, v_lane, v_a, v_b, s3, LIM, L_restart)
    A('s_branch ' + L_next)
    A.label(L_st)
    if WTOUCH:
        if WT_ODD:
            A('s_bitcmp0_b32 s3, 0')
            A('s_cbranch_scc1 ' + L_have)
            A('s_lshr_b32 %s, s3, 1' % sr(s2_))
            A('s_lshl_b32 %s, %s, 4' % (sr(s0), sr(s_q)))
        else:
            A('s_mov_b32 %s, s3' % sr(s2_))
            A('s_lshl_b32 %s, %s, 5' % (sr(s0), sr(s_q)))
        A('s_add_u32 %s, %s, %s' % (sr(s2_), sr(s2_), sr(s0)))
        A('s_lshl_b32 %s, %s, 2' % (sr(s2_), sr(s2_)))
        A('s_add_u32 %s, %s, %s' % (sr(s2_), sr(s2_), sr(s_w)))
        touch([(k, 8 << 20) for k in WTOUCH.split(',')], s2_, 15 if WT_ODD else 14)
    A('s_branch ' + L_have)
    A.label(L_next)
    Lnf = A.uid('nofetch')
    A('s_cmp_lg_u32 %s, 0' % sr(s_w))
    A('s_cbranch_scc1 ' + Lnf)
    wait_init()
    A('s_lshl_b32 %s, %s, 7' % (sr(s0), sr(s_q)))
    A('s_add_u32 %s, %s, 0x%x' % (sr(s0), sr(s0), CTR + DBG_Q * 128))
    A('v_mov_b32 %s, %s' % (vr(v_a), sr(s0)))
    A('v_mov_b32 %s, 1' % vr(v_b))
    A('s_mov_b64 exec, 1')
    A('buffer_atomic_add %s, %s, %s, 0 offen sc0 sc1' % (vr(v_b), vr(v_a), sr(SRD_WS, 4)))
    A('s_waitcnt vmcnt(0)')
    A('v_mov_b32 %s, %d' % (vr(v_a), LDS_JOB))
    A('ds_write_b32 %s, %s' % (vr(v_a), vr(v_b)))
    A('s_waitcnt lgkmcnt(0)')
    A('s_mov_b64 exec, -1')
    A.label(Lnf)
    A('s_barrier')
    A('v_mov_b32 %s, %d' % (vr(v_a), LDS_JOB))
    A('ds_read_b32 %s, %s' % (vr(v_b), vr(v_a)))
    A('s_waitcnt lgkmcnt(0)')
    A('v_readfirstlane_b32 %s, %s' % (sr(s_job), vr(v_b)))
    A('s_barrier')
    A.label(L_got)
    A('s_mov_b32 %s, 1' % sr(s_init))
    A('s_add_u32 %s, %s, 32' % (sr(s_job), sr(s_job)))
    A.label(L_have)
    if WST:
        A('s_min_u32 %s, %s, 511' % (sr(s0), sr(s_job)))
        A('s_lshl_b32 %s, %s, 9' % (sr(s_sa), sr(s_q)))
        A('s_add_u32 %s, %s, %s' % (sr(s_sa), sr(s_sa), sr(s0)))
        A('s_lshl_b32 %s, %s, 2' % (sr(s_sa), sr(s_sa)))
        A('s_add_u32 %s, %s, %s' % (sr(s_sa), sr(s_sa), sr(s_w)))
        A('s_lshl_b32 %s, %s, 5' % (sr(s_sa), sr(s_sa)))
        A('s_add_u32 %s, %s, 0x%x' % (sr(s_sa), sr(s_sa), STAMP + 0x400000))
        wstamp(0)
    kinds = ('aoutr', 'aoutj', 'skv', 'bkv', 'bq', 'q', 'battn', 'bout', 'wot', 'aattn', 'aout', 'aattn1', 'aoutd', 'aoute', 'big', 'bigA', 'small', 'outc')
    L = {k: A.uid('job' + k) for k in kinds}
    for k, n, p in SEGS:
        A('s_mov_b32 %s, %d' % (sr(s_p), p))
        A('s_cmp_lt_u32 %s, %d' % (sr(s_job), n))
        A('s_cbranch_scc1 ' + L[k])
        A('s_sub_u32 %s, %s, %d' % (sr(s_job), sr(s_job), n))
    QLEN = sum(n for _, n, _ in SEGS)
    L_peek = name + '_wpeek'
    A.label(L_peek)
    A('s_mov_b32 %s, %d' % (sr(s0), DBG_Q * 128))
    A('buffer_load_dword %s, %s, %s, %s offen sc1' % (vr(v_b), vr(v_sh), sr(SRD_WS, 4), sr(s0)))
    A('v_lshlrev_b32 %s, 2, %s' % (vr(v_a), vr(v_lane)))
    A('v_add_u32 %s, %d, %s' % (vr(v_a), LDS_JOB + 64, vr(v_a)))
    A('s_waitcnt vmcnt(0)')
    Lp1 = A.uid('pk')
    A('s_cmp_lg_u32 %s, 0' % sr(s_w))
    A('s_cbranch_scc1 ' + Lp1)
    A('ds_write_b32 %s, %s' % (vr(v_a), vr(v_b)))
    A('s_waitcnt lgkmcnt(0)')
    A.label(Lp1)
    A('s_barrier')
    A('ds_read_b32 %s, %s' % (vr(v_b), vr(v_a)))
    A('s_waitcnt lgkmcnt(0)')
    A('s_barrier')
    for k in range(4):
        A('v_readlane_b32 %s, %s, %d' % (sr(s0), vr(v_b), k))
        A('s_mov_b32 %s, %d' % (sr(s_q), k))
        A('s_cmp_lt_u32 %s, %d' % (sr(s0), QLEN - 32))
        A('s_cbranch_scc1 ' + L_next)
    A('s_endpgm')

    def wait_ctr(s_off, thr, s_shift=None, bits=8, slp=12):
        Lw, Ld = A.uid('dw'), A.uid('dd')
        A('s_cmp_lg_u32 %s, 0' % sr(s_w))
        A('s_cbranch_scc1 ' + Ld)
        A('s_lshl_b32 %s, %s, 7' % (sr(s_wo), sr(s_off) if isinstance(s_off, int) else s_off))
        A('s_mov_b32 %s, 0' % sr(s3))
        A.label(Lw)
        A('buffer_load_dword %s, %s, %s, %s offen sc1' % (vr(v_b), vr(v_sh), sr(SRD_WS, 4), sr(s_wo)))
        A('s_add_u32 %s, %s, 1' % (sr(s3), sr(s3)))
        A('s_waitcnt vmcnt(0)')
        if s_shift is not None:
            A('v_bfe_u32 %s, %s, %s, %d' % (vr(v_b), vr(v_b), sr(s_shift), bits))
        A('v_cmp_gt_u32 vcc, %s, %s' % (thr, vr(v_b)))
        A('s_cbranch_vccz ' + Ld)
        A('s_sleep %d' % slp)
        A('s_cmp_lt_u32 %s, %d' % (sr(s3), LIM))
        A('s_cbranch_scc1 ' + Lw)
        A.label(Ld)
        A('s_barrier')

    def cfg(Gx, cid, *args):
        Ls = A.uid('cfg')
        A('s_cmp_eq_u32 %s, %d' % (sr(s_cfg), cid))
        A('s_cbranch_scc1 ' + Ls)
        Gx.setup(v_lane, s_w, (s0, s1), *args)
        A('s_mov_b32 %s, %d' % (sr(s_cfg), cid))
        A.label(Ls)

    def blk_base(mbk, nbk):
        A('s_lshr_b32 %s, %s, 1' % (sr(s0), sr(s_w)))
        A('s_lshl_b32 %s, %s, 1' % (sr(s1), sr(s_mt)))
        A('s_add_u32 %s, %s, %s' % (sr(s0), sr(s0), sr(s1)))
        A('s_mul_i32 %s, %s, %d' % (sr(s0), sr(s0), mbk))
        A('s_mul_i32 %s, %s, %s' % (sr(s0), sr(s0), sr(s_tbs)))
        A('s_add_u32 %s, %s, %s' % (sr(s_base), sr(s_base), sr(s0)))
        A('s_and_b32 %s, %s, 1' % (sr(s0), sr(s_w)))
        A('s_lshl_b32 %s, %s, 1' % (sr(s1), sr(s_nt)))
        A('s_add_u32 %s, %s, %s' % (sr(s0), sr(s0), sr(s1)))
        A('s_mul_i32 %s, %s, %d' % (sr(s0), sr(s0), nbk * 2048))
        A('s_add_u32 %s, %s, %s' % (sr(s_base), sr(s_base), sr(s0)))

    def sel_kv(thr):
        A('s_cmp_ge_u32 %s, %d' % (sr(s_nt), thr))
        A('s_cselect_b32 %s, 1, 0' % sr(s_or))
        A('s_cselect_b64 %s, %s, %s' % (sr(s_pp, 2), sr(P['A_Wv'], 2), sr(P['A_Wk'], 2)))
        A('s_mov_b32 %s, 0x%x' % (sr(s_base), KX))
        A('s_cselect_b32 %s, 0x%x, %s' % (sr(s_base), VX, sr(s_base)))
        A('s_and_b32 %s, %s, %d' % (sr(s_nt), sr(s_nt), thr - 1))

    def ctr(base, s_idx, inc):
        A('s_lshl_b32 %s, %s, 2' % (sr(s_ctr), sr(s_idx)))
        A('s_add_u32 %s, %s, %d' % (sr(s_ctr), sr(s_ctr), base))
        A('s_mov_b32 %s, %d' % (sr(s_inc), inc))

    def nt_q(mask_bits_shift, mask):
        A('s_lshr_b32 %s, %s, %d' % (sr(s_nt), sr(s_job), mask_bits_shift))
        A('s_and_b32 %s, %s, %d' % (sr(s_nt), sr(s_nt), mask))
        A('s_lshl_b32 %s, %s, 2' % (sr(s_nt), sr(s_nt)))
        A('s_add_u32 %s, %s, %s' % (sr(s_nt), sr(s_nt), sr(s_q)))

    A.label(L['skv'])
    A('s_lshr_b32 %s, %s, 1' % (sr(s0), sr(s_p)))
    ctr(DBG_KV, s0, 1)
    A('s_mov_b32 %s, %s' % (sr(s_mt), sr(s_p)))
    nt_q(0, 15)
    sel_kv(32)
    mk_srd(A, G.SRD_W, s_pp, 1024 * 4096 * 2)
    mk_srd(A, G.SRD_X, P['A_x'], 2048 * 1024 * 2)
    A('s_lshl_b32 %s, %s, 18' % (sr(G.s_xo), sr(s_mt)))
    A('s_mov_b32 %s, 128' % sr(G.s_xs))
    A('s_lshl_b32 %s, %s, 8' % (sr(G.s_wo), sr(s_nt)))
    A('s_mov_b32 %s, %d' % (sr(G.s_ws), 64 * 8192))
    A('s_mov_b32 %s, %d' % (sr(s_tbs), 128 * 2048))
    A('s_mov_b32 %s, 3' % sr(G.s_n))
    blk_base(2, 2)
    cfg(G2, 3, 'nat', 2048, 8192)
    A('s_mov_b32 %s, 0' % sr(s_k))
    A('s_branch ' + L['small'])

    A.label(L['aout'])
    A('s_lshr_b32 %s, %s, 2' % (sr(s_mt), sr(s_job)))
    A('s_add_u32 %s, %s, %s' % (sr(s_mt), sr(s_mt), sr(s_p)))
    A('s_lshl_b32 %s, %s, 1' % (sr(s_mt), sr(s_mt)))
    A('s_lshr_b32 %s, %s, 1' % (sr(s0), sr(s_q)))
    A('s_add_u32 %s, %s, %s' % (sr(s_mt), sr(s_mt), sr(s0)))
    A('s_and_b32 %s, %s, 1' % (sr(s_nt), sr(s_q)))
    A('s_lshl_b32 %s, %s, 2' % (sr(s_nt), sr(s_nt)))
    A('s_and_b32 %s, %s, 3' % (sr(s0), sr(s_job)))
    A('s_add_u32 %s, %s, %s' % (sr(s_nt), sr(s_nt), sr(s0)))
    A('s_mov_b32 %s, 4' % sr(s_tbs))
    A('s_mov_b32 %s, 0' % sr(s_it))
    A('s_branch ' + L['aoutj'])
    A.label(L['aoutr'])
    A('s_mov_b32 %s, %s' % (sr(s_mt), sr(s_p)))
    A('s_lshl_b32 %s, %s, 1' % (sr(s_nt), sr(s_q)))
    A('s_add_u32 %s, %s, %s' % (sr(s_nt), sr(s_nt), sr(s_job)))
    A('s_mov_b32 %s, 0x2222' % sr(s_tbs))
    A('s_and_b32 %s, %s, 1' % (sr(s_it), sr(s_p)))
    A('s_lshl_b32 %s, %s, 4' % (sr(s_it), sr(s_it)))
    A.label(L['aoutj'])
    mk_srd(A, G.SRD_W, P['A_Wo'], 4096 * 1024 * 2)
    A('s_mul_i32 %s, %s, %d' % (sr(G.s_xo), sr(s_mt), 4 * 128 * 2048))
    A('s_add_u32 %s, %s, 0x%x' % (sr(G.s_xo), sr(G.s_xo), OA))
    A('s_mov_b32 %s, 15' % sr(G.s_n))
    A('s_mov_b32 %s, 0' % sr(s_base))
    A('s_mov_b32 %s, %d' % (sr(s2_), DBG_AA))
    cfg(G2, 5, 'blk', 128 * 2048, 2048)
    A('s_branch ' + L['outc'])
    A.label(L['bout'])
    A('s_add_u32 %s, %s, %s' % (sr(s_job), sr(s_job), sr(s_p)))
    A('s_lshr_b32 %s, %s, 1' % (sr(s_mt), sr(s_job)))
    nt_q(0, 1)
    mk_srd(A, G.SRD_W, P['B_wo'], 1024 * 1024 * 2)
    A('s_mul_i32 %s, %s, %d' % (sr(G.s_xo), sr(s_mt), 4 * 32 * 2048))
    A('s_add_u32 %s, %s, 0x%x' % (sr(G.s_xo), sr(G.s_xo), OB))
    A('s_mov_b32 %s, 3' % sr(G.s_n))
    A('s_mov_b32 %s, 2048' % sr(s_base))
    A('s_mov_b32 %s, %d' % (sr(s2_), DBG_BA))
    A('s_mov_b32 %s, 4' % sr(s_tbs))
    A('s_mov_b32 %s, 0' % sr(s_it))
    cfg(G2, 4, 'blk', 32 * 2048, 2048)
    A.label(L['outc'])
    mk_srd(A, G.SRD_X, P['ws'], WS_HALF)
    A('s_mov_b32 %s, 4096' % sr(G.s_xs))
    A('s_lshl_b32 %s, %s, 8' % (sr(G.s_wo), sr(s_nt)))
    A('s_mov_b32 %s, %d' % (sr(G.s_ws), 64 * 2048))
    A('s_mov_b32 %s, 0' % sr(s_or))
    A('s_mov_b32 %s, 0' % sr(s_inc))
    A('s_lshr_b32 %s, %s, 1' % (sr(s0), sr(s_w)))
    A('s_lshl_b32 %s, %s, 18' % (sr(s0), sr(s0)))
    A('s_add_u32 %s, %s, %s' % (sr(s_base), sr(s_base), sr(s0)))
    A('s_lshl_b32 %s, %s, 19' % (sr(s0), sr(s_mt)))
    A('s_add_u32 %s, %s, %s' % (sr(s_base), sr(s_base), sr(s0)))
    A('s_and_b32 %s, %s, 1' % (sr(s0), sr(s_w)))
    A('s_lshl_b32 %s, %s, 7' % (sr(s0), sr(s0)))
    A('s_add_u32 %s, %s, %s' % (sr(s_base), sr(s_base), sr(s0)))
    A('s_add_u32 %s, %s, %s' % (sr(s_base), sr(s_base), sr(G.s_wo)))
    A('s_lshr_b32 %s, %s, 1' % (sr(s0), sr(s_mt)))
    A('s_lshl_b32 %s, %s, 2' % (sr(s0), sr(s0)))
    A('s_add_u32 %s, %s, %s' % (sr(s0), sr(s0), sr(s2_)))
    wait_ctr(s0, sr(s_tbs), s_it, bits=16)
    A('s_mov_b32 %s, 1' % sr(s_k))
    A.label(L['small'])
    wstamp(1)
    G2.prologue()
    wstamp(2)
    LN, LE, LO = A.uid('sN'), A.uid('sE'), A.uid('sO')
    A('s_cmp_eq_u32 %s, 1' % sr(s_or))
    A('s_cbranch_scc1 ' + LN)
    G2.mainloop('T', 'st')
    A('s_nop 15')
    A('s_cmp_eq_u32 %s, 1' % sr(s_k))
    A('s_cbranch_scc1 ' + LO)
    A('s_branch ' + LE)
    A.label(LN)
    G2.mainloop('N', 'sn')
    A.label(LE)
    wstamp(3)
    early()
    G2.epi_blk(SRD_WS, v_l16, s_base, s_tbs, s0, ' sc1')
    A('s_branch ' + L_done)
    A.label(LO)
    wstamp(3)
    early()
    G2.epi_out(SRD_O, v_off, s_base)
    A('s_branch ' + L_done)

    A.label(L['wot'])
    nt_q(0, 1)
    A('s_lshr_b32 %s, %s, 1' % (sr(s_mt), sr(s_job)))
    mk_srd(A, G.SRD_W, P['A_Wo'], 4096 * 1024 * 2)
    cfg(G2, 5, 'blk', 128 * 2048, 2048)
    A('s_lshl_b32 %s, %s, 8' % (sr(G.s_wo), sr(s_nt)))
    A('s_lshl_b32 %s, %s, 19' % (sr(s0), sr(s_mt)))
    A('s_add_u32 %s, %s, %s' % (sr(G.s_wo), sr(G.s_wo), sr(s0)))
    A('s_mov_b32 %s, 1' % sr(s_inc))
    A('s_mov_b32 %s, %d' % (sr(s_ctr), DBG_WT))
    wstamp(1)
    for st in range(4):
        for g in G2.dma_ops(st)[G2.nX:]:
            for t in g:
                A(t)
        A('s_add_u32 %s, %s, %d' % (sr(G.s_wo), sr(G.s_wo), 64 * 2048))
    A('s_and_b32 %s, %s, 1' % (sr(s0), sr(s_w)))
    A('s_lshl_b32 %s, %s, 1' % (sr(s0), sr(s0)))
    A('s_lshl_b32 %s, %s, 2' % (sr(s1), sr(s_nt)))
    A('s_add_u32 %s, %s, %s' % (sr(s0), sr(s0), sr(s1)))
    A('s_lshl_b32 %s, %s, 18' % (sr(s_base), sr(s0)))
    A('s_lshl_b32 %s, %s, 14' % (sr(s0), sr(s_mt)))
    A('s_add_u32 %s, %s, %s' % (sr(s_base), sr(s_base), sr(s0)))
    A('s_lshr_b32 %s, %s, 1' % (sr(s0), sr(s_w)))
    A('s_lshl_b32 %s, %s, 13' % (sr(s1), sr(s0)))
    A('s_add_u32 %s, %s, %s' % (sr(s_base), sr(s_base), sr(s1)))
    A('s_add_u32 %s, %s, 0x%x' % (sr(s_base), sr(s_base), WOT))
    A('s_mul_i32 %s, %s, %d' % (sr(s0), sr(s0), 2 * G2.STG))
    T = V2.alloc(64, 4)
    ta = [V2.alloc() for _ in range(4)]
    for i in range(2):
        for q in range(2):
            A('v_add_u32 %s, %s, %s' % (vr(ta[2 * i + q]), sr(s0), vr(G2.rw[0][i][q])))
    A('s_waitcnt vmcnt(0)')
    A('s_barrier')
    for i in range(2):
        for st in range(2):
            for ks in range(4):
                d = T + 4 * ((i * 2 + st) * 4 + ks)
                for q in range(2):
                    A('ds_read_b64_tr_b16 %s, %s offset:%d' % (vr(d + 2 * q, 2), vr(ta[2 * i + q]), st * G2.STG + ks * 16 * G2.wrow))
            A('s_waitcnt lgkmcnt(0)')
    for i in range(2):
        for st in range(2):
            A('s_add_u32 %s, %s, %d' % (sr(s0), sr(s_base), i * 262144 + st * 4096))
            for ks in range(4):
                d = T + 4 * ((i * 2 + st) * 4 + ks)
                A('buffer_store_dwordx4 %s, %s, %s, %s offen offset:%d' % (vr(d, 4), vr(v_l16), sr(SRD_WS, 4), sr(s0), ks * 1024) + ' sc1')
    A('s_branch ' + L_done)

    def wid16():
        A('s_lshl_b32 %s, %s, 4' % (sr(s0), sr(s_q)))
        A('s_add_u32 %s, %s, %s' % (sr(s2_), sr(s_job), sr(s0)))
        A('s_lshl_b32 %s, %s, 2' % (sr(s2_), sr(s2_)))
        A('s_add_u32 %s, %s, %s' % (sr(s2_), sr(s2_), sr(s_w)))
    A.label(L['bkv'])
    if WT2:
        Lnt = A.uid('nt2')
        A('s_cmp_lg_u32 %s, 1' % sr(s_p))
        A('s_cbranch_scc1 ' + Lnt)
        wid16()
        touch([('A_x', 4 << 20)], s2_, 14)
        A.label(Lnt)
    A('s_lshl_b32 %s, %s, 5' % (sr(s0), sr(s_q)))
    A('s_add_u32 %s, %s, %s' % (sr(s_k), sr(s_job), sr(s0)))
    A('s_lshl_b32 %s, %s, 2' % (sr(s_k), sr(s_k)))
    A('s_add_u32 %s, %s, %s' % (sr(s_k), sr(s_k), sr(s_w)))
    A('s_cmp_eq_u32 %s, 3' % sr(s_p))
    A('s_cselect_b32 %s, %s, -1' % (sr(s_k), sr(s_k)))
    A('s_lshr_b32 %s, %s, 3' % (sr(s_mt), sr(s_job)))
    A('s_add_u32 %s, %s, %s' % (sr(s_mt), sr(s_mt), sr(s_p)))
    nt_q(0, 7)
    sel_kv(16)
    ctr(DBG_KV, s_mt, 4)
    A('s_branch ' + L['bigA'])
    A.label(L['q'])
    A('s_mov_b32 %s, -1' % sr(s_k))
    A('s_lshr_b32 %s, %s, 2' % (sr(s_mt), sr(s_job)))
    A('s_add_u32 %s, %s, %s' % (sr(s_mt), sr(s_mt), sr(s_p)))
    nt_q(0, 3)
    A('s_mov_b64 %s, %s' % (sr(s_pp, 2), sr(P['A_Wq'], 2)))
    A('s_mov_b32 %s, 0x%x' % (sr(s_base), QX))
    A('s_mov_b32 %s, 0' % sr(s_or))
    ctr(DBG_QR, s_mt, 1)
    A.label(L['bigA'])
    mk_srd(A, G.SRD_W, s_pp, 1024 * 4096 * 2)
    mk_srd(A, G.SRD_X, P['A_x'], 2048 * 1024 * 2)
    A('s_lshl_b32 %s, %s, 9' % (sr(G.s_wo), sr(s_nt)))
    A('s_mov_b32 %s, %d' % (sr(G.s_ws), 64 * 8192))
    A('s_mov_b32 %s, %d' % (sr(s_tbs), 128 * 2048))
    cfg(G4, 1, 'nat', 2048, 8192)
    A('s_branch ' + L['big'])
    A.label(L['bq'])
    A('s_mov_b32 %s, -1' % sr(s_k))
    A('s_mul_i32 %s, %s, 43' % (sr(s_mt), sr(s_job)))
    A('s_lshr_b32 %s, %s, 7' % (sr(s_mt), sr(s_mt)))
    A('s_mul_i32 %s, %s, 3' % (sr(s0), sr(s_mt)))
    A('s_sub_u32 %s, %s, %s' % (sr(s0), sr(s_job), sr(s0)))
    A('s_cmp_eq_u32 %s, 2' % sr(s0))
    A('s_cselect_b32 %s, 1, 0' % sr(s_or))
    A('s_lshl_b32 %s, %s, 22' % (sr(s_base), sr(s0)))
    A('s_add_u32 %s, %s, 0x%x' % (sr(s_base), sr(s_base), QB))
    A('s_lshl_b32 %s, %s, 2' % (sr(s0), sr(s0)))
    A('s_add_u32 %s, %s, %s' % (sr(s0), sr(s0), sr(s_q)))
    A('s_lshl_b32 %s, %s, 9' % (sr(G.s_wo), sr(s0)))
    A('s_mov_b32 %s, %s' % (sr(s_nt), sr(s_q)))
    mk_srd(A, G.SRD_W, P['B_wqkv'], 1024 * 3072 * 2)
    mk_srd(A, G.SRD_X, P['B_x'], 2048 * 1024 * 2)
    A('s_mov_b32 %s, %d' % (sr(G.s_ws), 64 * 6144))
    A('s_mov_b32 %s, %d' % (sr(s_tbs), 32 * 2048))
    ctr(DBG_BQ, s_mt, 1)
    cfg(G4, 2, 'nat', 2048, 6144)
    A.label(L['big'])
    A('s_lshl_b32 %s, %s, 19' % (sr(G.s_xo), sr(s_mt)))
    A('s_mov_b32 %s, 128' % sr(G.s_xs))
    A('s_mov_b32 %s, 7' % sr(G.s_n))
    blk_base(4, 4)
    wstamp(1)
    G4.prologue()
    wstamp(2)
    Lnt3 = A.uid('nt3')
    A('s_cmp_eq_u32 %s, -1' % sr(s_k))
    A('s_cbranch_scc1 ' + Lnt3)
    touch([('B_x', 4 << 20), ('B_wo', 2 << 20)], s_k, 13)
    touch([('B_wqkv', 6 << 20)], s_k, 14)
    A.label(Lnt3)
    LN, LE = A.uid('bN'), A.uid('bE')
    A('s_cmp_eq_u32 %s, 1' % sr(s_or))
    A('s_cbranch_scc1 ' + LN)
    G4.mainloop('T', 'bt')
    A('s_nop 15')
    A('s_branch ' + LE)
    A.label(LN)
    G4.mainloop('N', 'bn')
    A.label(LE)
    wstamp(3)
    early()
    G4.epi_blk(SRD_WS, v_l16, s_base, s_tbs, s0, ' sc1')
    A('s_branch ' + L_done)

    def attn_items():
        A('s_mov_b32 %s, 0' % sr(s_cfg))
        A('s_and_b32 %s, %s, 3' % (sr(s0), sr(s_job)))
        A('s_lshl_b32 %s, %s, 2' % (sr(s1), sr(s_q)))
        A('s_add_u32 %s, %s, %s' % (sr(s0), sr(s0), sr(s1)))
        A('s_lshl_b32 %s, %s, 1' % (sr(s0), sr(s0)))
        A('s_and_b32 %s, %s, 1' % (sr(s1), sr(s_w)))
        A('s_add_u32 %s, %s, %s' % (sr(s_it), sr(s0), sr(s1)))
        A('s_lshl_b32 %s, %s, 8' % (sr(s0), sr(s_mt)))
        A('s_add_u32 %s, %s, %s' % (sr(s_it), sr(s_it), sr(s0)))
        A('s_lshr_b32 %s, %s, 1' % (sr(s0), sr(s_w)))
        A('s_lshl_b32 %s, %s, 7' % (sr(s0), sr(s0)))
        A('s_add_u32 %s, %s, %s' % (sr(s_it), sr(s_it), sr(s0)))
        A('s_mov_b32 %s, 4' % sr(s_k))
        wstamp(1)

    def attn_loop(fn, tag):
        Lb = A.uid(tag)
        A.label(Lb)
        fn(A, SRD_WS, s_it, (s0, s1, s2_, s3), v_lane, v_l16, 8, ld=' sc1', stf=' sc1')
        A('s_add_u32 %s, %s, 32' % (sr(s_it), sr(s_it)))
        A('s_sub_u32 %s, %s, 1' % (sr(s_k), sr(s_k)))
        A('s_cmp_lg_u32 %s, 0' % sr(s_k))
        A('s_waitcnt vmcnt(0)')
        A('s_cbranch_scc1 ' + Lb)

    A.label(L['aattn'])
    A('s_lshr_b32 %s, %s, 2' % (sr(s_mt), sr(s_job)))
    A('s_add_u32 %s, %s, %s' % (sr(s_mt), sr(s_mt), sr(s_p)))
    A('s_lshl_b32 %s, %s, 2' % (sr(s_ctr), sr(s_mt)))
    A('s_add_u32 %s, %s, %d' % (sr(s0), sr(s_ctr), DBG_QR))
    wait_ctr(s0, 4)
    A('s_lshl_b32 %s, %s, 3' % (sr(s1), sr(s_mt)))
    A('s_add_u32 %s, %s, %d' % (sr(s1), sr(s1), 7 + LAG))
    wait_ctr(str(DBG_PROG), sr(s1))
    ctr(DBG_AA, s_mt, 1)
    attn_items()
    attn.attn_a_n(A, SRD_WS, s_it, (s0, s1, s2_, s3), v_lane, v_l16, 8, 4, ld=' sc1', stf=' sc1')
    A('s_branch ' + L_done)

    A.label(L['aattn1'])
    A('s_lshr_b32 %s, %s, 2' % (sr(s_mt), sr(s_p)))
    A('s_lshl_b32 %s, %s, 2' % (sr(s_ctr), sr(s_mt)))
    A('s_add_u32 %s, %s, %d' % (sr(s0), sr(s_ctr), DBG_QR))
    wait_ctr(s0, 4)
    A('s_lshl_b32 %s, %s, 1' % (sr(s_it), sr(s_p)))
    A('s_lshr_b32 %s, %s, 1' % (sr(s0), sr(s_job)))
    A('s_add_u32 %s, %s, %s' % (sr(s_it), sr(s_it), sr(s0)))
    A('s_add_u32 %s, %s, %d' % (sr(s_tbs), sr(s_it), LAG))
    A('s_mov_b32 %s, %d' % (sr(s_base), DBG_PROG))
    A('s_cmp_gt_u32 %s, 60' % sr(s_it))
    A('s_cselect_b32 %s, 32, %s' % (sr(s_tbs), sr(s_tbs)))
    A('s_cselect_b32 %s, %d, %s' % (sr(s_base), DBG_FIN, sr(s_base)))
    A('s_add_u32 %s, %s, %d' % (sr(s0), sr(s_ctr), DBG_KV))
    wait_ctr(s0, 32)
    A('s_add_u32 %s, %s, %d' % (sr(s_ctr), sr(s_ctr), DBG_AA))
    A('s_and_b32 %s, %s, 7' % (sr(s0), sr(s_it)))
    A('s_lshl_b32 %s, %s, 2' % (sr(s0), sr(s0)))
    A('s_lshl_b32 %s, 1, %s' % (sr(s_inc), sr(s0)))
    A('s_lshl_b32 %s, %s, 5' % (sr(s_it), sr(s_it)))
    A('s_lshl_b32 %s, %s, 3' % (sr(s0), sr(s_q)))
    A('s_add_u32 %s, %s, %s' % (sr(s_it), sr(s_it), sr(s0)))
    A('s_and_b32 %s, %s, 1' % (sr(s0), sr(s_job)))
    A('s_lshl_b32 %s, %s, 2' % (sr(s0), sr(s0)))
    A('s_add_u32 %s, %s, %s' % (sr(s_it), sr(s_it), sr(s0)))
    A('s_add_u32 %s, %s, %s' % (sr(s_it), sr(s_it), sr(s_w)))
    A('s_mov_b32 %s, 0' % sr(s_cfg))

    def pw1():
        wait_ctr(s_base, sr(s_tbs), slp=4)
        wstamp(1)
    attn.attn_a(A, SRD_WS, s_it, (s0, s1, s2_, s3), v_lane, v_l16, 8, ld=' sc1', stf=' sc1', pre_wait=pw1)
    A('s_branch ' + L_done)

    A.label(L['aoute'])
    wait_ctr(str(DBG_WT), 32)
    A('s_lshr_b32 %s, %s, 3' % (sr(s_mt), sr(s_job)))
    A('s_add_u32 %s, %s, %s' % (sr(s_mt), sr(s_mt), sr(s_p)))
    A('s_lshl_b32 %s, %s, 3' % (sr(s_nt), sr(s_q)))
    A('s_and_b32 %s, %s, 7' % (sr(s0), sr(s_job)))
    A('s_add_u32 %s, %s, %s' % (sr(s_nt), sr(s_nt), sr(s0)))
    A('s_mov_b32 %s, 0' % sr(s_inc))
    A('s_mov_b32 %s, 0' % sr(s_cfg))

    def pw2():
        A('s_lshr_b32 %s, %s, 3' % (sr(s0), sr(s_mt)))
        A('s_lshl_b32 %s, %s, 2' % (sr(s0), sr(s0)))
        A('s_add_u32 %s, %s, %d' % (sr(s0), sr(s0), DBG_AA))
        A('s_and_b32 %s, %s, 7' % (sr(s1), sr(s_mt)))
        A('s_lshl_b32 %s, %s, 2' % (sr(s1), sr(s1)))
        wait_ctr(s0, 2, s1, bits=4, slp=4)
        wstamp(1)
    out_direct32(A, SRD_WS, SRD_O, s_w, s_mt, s_nt, (s_base, s_tbs, s0), v_lane, v_l16, 8, ' sc1', pw2)
    A('s_branch ' + L_done)

    A.label(L['aoutd'])
    wait_ctr(str(DBG_WT), 32)
    A('s_lshr_b32 %s, %s, 2' % (sr(s0), sr(s_p)))
    A('s_lshl_b32 %s, %s, 2' % (sr(s0), sr(s0)))
    A('s_add_u32 %s, %s, %d' % (sr(s0), sr(s0), DBG_AA))
    A('s_and_b32 %s, %s, 3' % (sr(s1), sr(s_p)))
    A('s_lshl_b32 %s, %s, 3' % (sr(s1), sr(s1)))
    wait_ctr(s0, '0x22', s1)
    A('s_lshl_b32 %s, %s, 1' % (sr(s_mt), sr(s_p)))
    A('s_lshl_b32 %s, %s, 3' % (sr(s_nt), sr(s_q)))
    A('s_add_u32 %s, %s, %s' % (sr(s_nt), sr(s_nt), sr(s_job)))
    A('s_mov_b32 %s, 0' % sr(s_inc))
    A('s_mov_b32 %s, 0' % sr(s_cfg))
    wstamp(1)
    out_direct(A, SRD_WS, SRD_O, s_w, s_mt, s_nt, (s_base, s_tbs, s_it, s0, s1), v_lane, v_l16, v_off, 8, ld=' sc1')
    A('s_branch ' + L_done)

    A.label(L['battn'])
    A('s_add_u32 %s, %s, %s' % (sr(s_job), sr(s_job), sr(s_p)))
    A('s_lshr_b32 %s, %s, 2' % (sr(s_mt), sr(s_job)))
    A('s_lshl_b32 %s, %s, 2' % (sr(s_ctr), sr(s_mt)))
    A('s_add_u32 %s, %s, %d' % (sr(s0), sr(s_ctr), DBG_BQ))
    wait_ctr(s0, 3)
    A('s_add_u32 %s, %s, %d' % (sr(s0), sr(s_ctr), DBG_BQ - 4))
    A('s_max_u32 %s, %s, %d' % (sr(s0), sr(s0), DBG_BQ))
    wait_ctr(s0, 3)
    ctr(DBG_BA, s_mt, 1)
    attn_items()
    attn.attn_b4(A, SRD_WS, s_it, (s0, s1, s2_, s3), v_lane, v_l16, 8, ld=' sc1', stf=' sc1')

    A.label(L_done)
    wstamp(4)
    Lq0 = A.uid('q0')
    A('s_cmp_lg_u32 %s, 0' % sr(s_init))
    A('s_cbranch_scc1 ' + Lq0)
    A('v_cmp_gt_u32 vcc, 8, %s' % vr(v_lane))
    A('v_lshlrev_b32 %s, 2, %s' % (vr(v_a), vr(v_lane)))
    A('v_mov_b32 %s, %d' % (vr(v_b), DBG_INIT))
    A('v_cndmask_b32 %s, %s, %s, vcc' % (vr(v_a), vr(v_b), vr(v_a)))
    A('buffer_load_dword %s, %s, %s, 0 offen sc1' % (vr(v_b), vr(v_a), sr(SRD_D, 4)))
    A('v_cndmask_b32 %s, 1, 32, vcc' % vr(v_a))
    A('s_waitcnt vmcnt(0)')
    A('v_cmp_ne_u32 vcc, %s, %s' % (vr(v_a), vr(v_b)))
    A('s_cbranch_vccnz ' + Lq0)
    A('s_mov_b32 %s, 1' % sr(s_init))
    A.label(Lq0)
    A('s_waitcnt vmcnt(0)')
    wstamp(5)
    Ld1, Ld2, Lsig = A.uid('d1'), A.uid('d2'), A.uid('sig')
    A('v_mov_b32 %s, %d' % (vr(v_a), LDS_JOB))
    A('s_cmp_lg_u32 %s, 0' % sr(s_w))
    A('s_cbranch_scc1 ' + Ld1)
    A('s_mov_b64 exec, 1')
    A('ds_write_b32 %s, %s' % (vr(v_a), vr(v_tk)))
    A('s_mov_b64 exec, -1')
    A('s_waitcnt lgkmcnt(0)')
    A.label(Ld1)
    A('s_barrier')
    Lck = A.uid('ck')
    A('s_cmp_lg_u32 %s, 0' % sr(s_init))
    A('s_cbranch_scc1 ' + Lck)
    place_check(A, SRD_D, v_lane, v_a, v_b, s3, LIM, L_restart)
    A.label(Lck)
    A('s_cmp_lg_u32 %s, 0' % sr(s_w))
    A('s_cbranch_scc1 ' + Ld2)
    A('s_cmp_lg_u32 %s, 0' % sr(s_inc))
    A('s_cbranch_scc1 ' + Lsig)
    A.label(Ld2)
    A('s_cmp_eq_u32 %s, 0' % sr(s_et))
    A('s_cbranch_scc1 ' + L_next)
    A('s_mov_b32 %s, 0' % sr(s_et))
    A('v_mov_b32 %s, %d' % (vr(v_a), LDS_JOB))
    A('ds_read_b32 %s, %s' % (vr(v_b), vr(v_a)))
    A('s_waitcnt lgkmcnt(0)')
    A('v_readfirstlane_b32 %s, %s' % (sr(s_job), vr(v_b)))
    A('s_barrier')
    A('s_branch ' + L_got)
    A.label(Lsig)
    wait_init()
    A('s_add_u32 %s, %s, %s' % (sr(s0), sr(s_ctr), sr(s_q)))
    A('s_lshl_b32 %s, %s, 7' % (sr(s0), sr(s0)))
    A('s_add_u32 %s, %s, 0x%x' % (sr(s0), sr(s0), CTR))
    A('v_mov_b32 %s, %s' % (vr(v_a), sr(s0)))
    A('v_mov_b32 %s, %s' % (vr(v_b), sr(s_inc)))
    A('s_mov_b64 exec, 1')
    A('buffer_atomic_add %s, %s, %s, 0 offen sc1' % (vr(v_b), vr(v_a), sr(SRD_WS, 4)))
    Lk0 = A.uid('k0')
    A('s_cmp_lg_u32 %s, %d' % (sr(s_ctr), DBG_KV))
    A('s_cbranch_scc1 ' + Lk0)
    A('s_cmp_lg_u32 %s, 0' % sr(s_mt))
    A('s_cbranch_scc1 ' + Lk0)
    A('v_add_u32 %s, %d, %s' % (vr(v_a), (DBG_KV0 - DBG_KV) * 128, vr(v_a)))
    A('v_mov_b32 %s, 2' % vr(v_b))
    A('buffer_atomic_add %s, %s, %s, 0 offen sc1' % (vr(v_b), vr(v_a), sr(SRD_WS, 4)))
    A.label(Lk0)
    A('s_mov_b64 exec, -1')
    A('s_branch ' + Ld2)
    return hi
```

```python
import sys
from asmlib import *
from layout import *
import chain
import chain2
import os
import kernels
import worker

HEADER = open('concat_heads__memory_aug_recurrent_mem_tr__sliding_block__prompt.s.ref').read().split('; Override launch')[0]


def build(kernels, launches):
    A = Asm()
    infos = {}
    for name, fn in kernels:
        A.raw('.globl %s' % name)
        A.raw('.type %s,@function' % name)
        infos[name] = fn(A, name)
    out = HEADER
    for name, grid, block, lds in launches:
        out += '; @launch kernel=%s grid=(%d,1,1) block=(%d,1,1) lds=%d\n' % (name, grid, block, lds)
    out += '.amdgcn_target "amdgcn-amd-amdhsa--gfx950"\n.text\n'
    out += A.text()
    out += '.section .rodata,"a"\n'
    for name, _ in kernels:
        i = infos[name]
        out += '.p2align 6\n.amdhsa_kernel %s\n' % name
        out += '  .amdhsa_next_free_vgpr %d\n  .amdhsa_next_free_sgpr %d\n  .amdhsa_accum_offset %d\n' % (i['vgpr'], max(i['sgpr'], 16), i['accum'])
        out += '  .amdhsa_group_segment_fixed_size 0\n  .amdhsa_kernarg_size 104\n  .amdhsa_user_sgpr_count 2\n'
        out += '  .amdhsa_user_sgpr_kernarg_segment_ptr 1\n  .amdhsa_system_sgpr_workgroup_id_x 1\n'
        out += '  .amdhsa_float_denorm_mode_32 3\n'
        out += '.end_amdhsa_kernel\n'
    return out


if __name__ == '__main__':
    mode = sys.argv[1]
    outp = sys.argv[2]
    if mode.startswith('chain'):
        st = 'rt' if 'stamprt' in mode else ('stamp' in mode)
        fl = 'flat' in mode
        txt = build([('chain_kernel', lambda A, n: chain.gen_chain(A, n, stamps=st, flat=fl))],
                    [('chain_kernel', 256, 256, 163840)])
    if mode == 'qkv':
        txt = build([('qkv_kernel', kernels.gen_qkv)], [('qkv_kernel', 480, 256, 131072)])
    if mode == 'full1':
        txt = build([('qkv_kernel', kernels.gen_qkv), ('chain_kernel', lambda A, n: chain.gen_chain(A, n)),
                     ('attn_kernel', kernels.gen_attn), ('out_kernel', lambda A, n: kernels.gen_out(A, n, 2, 2))],
                    [('qkv_kernel', 480, 256, 131072), ('chain_kernel', 256, 256, 163840), ('attn_kernel', 1024, 256, 0),
                     ('out_kernel', 256, 256, 65536)])
    if mode.startswith('m1'):
        st = 'rt' if 'stamprt' in mode else False
        txt = build([('mega_kernel', lambda A, n: chain.gen_chain(A, n, stamps=st, worker=worker.gen_worker)),
                     ('attn_kernel', lambda A, n: kernels.gen_attn(A, n, True)), ('out_kernel', lambda A, n: kernels.gen_out(A, n, 1, 2, True, 4))],
                    [('mega_kernel', 256, 256, 163840), ('attn_kernel', 512, 256, 0),
                     ('out_kernel', 256, 256, 98304)])
    if mode.startswith('m2'):
        st = 'rt' if 'stamprt' in mode else ('stamp' in mode)
        ch = chain if os.environ.get('OLDCHAIN') else chain2
        txt = build([('mega_kernel', lambda A, n: ch.gen_chain(A, n, stamps=st, worker=worker.gen_worker))],
                    [('mega_kernel', 256, 256, 163840)])
    open(outp, 'w').write(txt)
    print('wrote', outp, len(txt), 'bytes')
```

```python
from asmlib import *
from layout import *
import struct

LOG2E = 1.4426950408889634


def f32bits(x):
    return struct.unpack('<I', struct.pack('<f', x))[0]


def tree(A, op3, op2, regs, t0, t1):
    regs = list(regs)
    A('%s %s, %s, %s, %s' % (op3, vr(t0), vr(regs[0]), vr(regs[1]), vr(regs[2])))
    A('%s %s, %s, %s, %s' % (op3, vr(t1), vr(regs[3]), vr(regs[4]), vr(regs[5])))
    i, k = 6, 0
    while i + 1 < len(regs):
        t = (t0, t1)[k & 1]
        A('%s %s, %s, %s, %s' % (op3, vr(t), vr(t), vr(regs[i]), vr(regs[i + 1])))
        i += 2
        k += 1
    if i < len(regs):
        A('%s %s, %s, %s, %s' % (op3, vr(t0), vr(t0), vr(t1), vr(regs[i])))
    else:
        A('%s %s, %s, %s' % (op2, vr(t0), vr(t0), vr(t1)))


def xhalf(A, op, a, b):
    A('v_mov_b32 %s, %s' % (vr(b), vr(a)))
    A('v_permlane32_swap_b32 %s, %s' % (vr(a), vr(b)))
    A('%s %s, %s, %s' % (op, vr(a), vr(a), vr(b)))


def sum_regs(A, regs, t0, t1):
    regs = list(regs)
    A('v_add_f32 %s, %s, %s' % (vr(t0), vr(regs[0]), vr(regs[1])))
    A('v_add_f32 %s, %s, %s' % (vr(t1), vr(regs[2]), vr(regs[3])))
    for i in range(4, len(regs)):
        t = (t0, t1)[i & 1]
        A('v_add_f32 %s, %s, %s' % (vr(t), vr(t), vr(regs[i])))
    A('v_add_f32 %s, %s, %s' % (vr(t0), vr(t0), vr(t1)))


def mask_init(A, S0, v_d, v_neg, causal):
    for r in range(16):
        kr = (r >> 2) * 8 + (r & 3)
        A('v_cmp_%s_i32 vcc, %d, %s' % ('le' if causal else 'gt', kr, vr(v_d)))
        A('v_cndmask_b32 %s, %s, 0, vcc' % (vr(S0 + r), vr(v_neg)))


def attn_a(A, SRD, s_item, st, v_lane, v_l16, V0, ld='', stf='', pre_wait=None):
    V = Regs('v', V0, 256)
    s0, s1, s2, s3 = st
    Q = V.alloc(32, 4)
    K = V.alloc(32, 4)
    KM = V.alloc(32, 4)
    VXr = V.alloc(32, 4)
    VMr = V.alloc(8, 4)
    SX = V.alloc(16, 4)
    SM = V.alloc(16, 4)
    v_km, v_d, v_neg, t0, t1, v_vm = [V.alloc() for _ in range(6)]
    O = Q
    PX = KM
    PM = KM + 8
    OP = KM + 16
    A('s_lshl_b32 %s, %s, 13' % (sr(s0), sr(s_item)))
    A('s_add_u32 %s, %s, 4096' % (sr(s1), sr(s0)))
    A('v_add_u32 %s, 0x%x, %s' % (vr(t0), KX, vr(v_l16)))
    A('v_add_u32 %s, 0x%x, %s' % (vr(t1), VX, vr(v_l16)))
    assert QX == 0
    for k in range(8):
        so = s0 if k < 4 else s1
        A('buffer_load_dwordx4 %s, %s, %s, %s offen offset:%d%s' % (vr(Q + 4 * k, 4), vr(v_l16), sr(SRD, 4), sr(so), (k & 3) * 1024, ld))
        A('buffer_load_dwordx4 %s, %s, %s, %s offen offset:%d%s' % (vr(K + 4 * k, 4), vr(t0), sr(SRD, 4), sr(so), (k & 3) * 1024, ld))
    for k in range(8):
        so = s0 if k < 4 else s1
        A('buffer_load_dwordx4 %s, %s, %s, %s offen offset:%d%s' % (vr(VXr + 4 * k, 4), vr(t1), sr(SRD, 4), sr(so), (k & 3) * 1024, ld))
    A('v_and_b32 %s, 7, %s' % (vr(v_km), vr(v_lane)))
    A('v_lshlrev_b32 %s, 4, %s' % (vr(v_km), vr(v_km)))
    A('v_lshrrev_b32 %s, 5, %s' % (vr(v_d), vr(v_lane)))
    A('v_lshl_add_u32 %s, %s, 8, %s' % (vr(v_km), vr(v_d), vr(v_km)))
    A('v_and_b32 %s, 15, %s' % (vr(v_vm), vr(v_lane)))
    A('v_lshlrev_b32 %s, 4, %s' % (vr(v_vm), vr(v_vm)))
    A('v_lshl_add_u32 %s, %s, 8, %s' % (vr(v_vm), vr(v_d), vr(v_vm)))
    A('v_bfe_u32 %s, %s, 4, 1' % (vr(v_neg), vr(v_lane)))
    A('v_lshl_add_u32 %s, %s, 3, %s' % (vr(v_vm), vr(v_neg), vr(v_vm)))
    A('v_lshlrev_b32 %s, 2, %s' % (vr(v_d), vr(v_d)))
    A('v_and_b32 %s, 31, %s' % (vr(v_neg), vr(v_lane)))
    A('v_sub_u32 %s, %s, %s' % (vr(v_d), vr(v_neg), vr(v_d)))
    A('v_mov_b32 %s, 0x%x' % (vr(v_neg), f32bits(-1e30)))
    mask_init(A, SX, v_d, v_neg, True)
    for k in range(8):
        A('s_waitcnt vmcnt(%d)' % (24 - 2 * (k + 1)))
        A('v_mfma_f32_32x32x16_bf16 %s, %s, %s, %s' % (vr(SX, 16), vr(K + 4 * k, 4), vr(Q + 4 * k, 4), vr(SX, 16)))
    if pre_wait:
        pre_wait()
    A('s_lshl_b32 %s, %s, 12' % (sr(s2), sr(s_item)))
    A('s_add_u32 %s, %s, 0x%x' % (sr(s3), sr(s2), VMO))
    A('s_add_u32 %s, %s, 0x%x' % (sr(s2), sr(s2), KMO))
    for k in range(8):
        A('buffer_load_dwordx4 %s, %s, %s, %s offen offset:%d%s' % (vr(KM + 4 * k, 4), vr(v_km), sr(SRD, 4), sr(s2), k * 512 + 128, ld))
    for k in range(4):
        A('buffer_load_dwordx2 %s, %s, %s, %s offen offset:%d%s' % (vr(VMr + 2 * k, 2), vr(v_vm), sr(SRD, 4), sr(s3), k * 1024, ld))
    for k in range(8):
        A('s_waitcnt vmcnt(%d)' % (12 - (k + 1)))
        A('v_mfma_f32_32x32x16_bf16 %s, %s, %s, %s' % (vr(SM, 16), vr(KM + 4 * k, 4), vr(Q + 4 * k, 4), '0' if k == 0 else vr(SM, 16)))
    regs = [SX + i for i in range(16)] + [SM + i for i in range(4)]
    tree(A, 'v_max3_f32', 'v_max_f32', regs, t0, t1)
    xhalf(A, 'v_max_f32', t0, t1)
    A('s_mov_b32 %s, 0x%x' % (sr(s2), f32bits(128 ** -0.5 * LOG2E)))
    A('v_mul_f32 %s, %s, %s' % (vr(t0), sr(s2), vr(t0)))
    for r in regs:
        A('v_fma_f32 %s, %s, %s, -%s' % (vr(r), vr(r), sr(s2), vr(t0)))
    for r in regs:
        A('v_exp_f32 %s, %s' % (vr(r), vr(r)))
    sum_regs(A, regs, t0, t1)
    xhalf(A, 'v_add_f32', t0, t1)
    A('v_rcp_f32 %s, %s' % (vr(t0), vr(t0)))
    for r in regs:
        A('v_mul_f32 %s, %s, %s' % (vr(r), vr(r), vr(t0)))
    for i in range(8):
        A('v_cvt_pk_bf16_f32 %s, %s, %s' % (vr(PX + i), vr(SX + 2 * i), vr(SX + 2 * i + 1)))
    for i in range(2):
        A('v_cvt_pk_bf16_f32 %s, %s, %s' % (vr(PM + i), vr(SM + 2 * i), vr(SM + 2 * i + 1)))
    A('s_waitcnt vmcnt(0)')
    for eb in range(4):
        o = vr(O + 16 * eb, 16)
        A('v_mfma_f32_32x32x16_bf16 %s, %s, %s, 0' % (o, vr(VXr + 8 * eb, 4), vr(PX, 4)))
        A('v_mfma_f32_32x32x16_bf16 %s, %s, %s, %s' % (o, vr(VXr + 8 * eb + 4, 4), vr(PX + 4, 4), o))
        A('v_mfma_f32_32x32x8_bf16 %s, %s, %s, %s' % (o, vr(VMr + 2 * eb, 2), vr(PM, 2), o))
    A('v_add_u32 %s, 0x%x, %s' % (vr(t0), OA, vr(v_l16)))
    for eb in range(4):
        d = OP + 8 * (eb & 1)
        for i in range(8):
            A('v_cvt_pk_bf16_f32 %s, %s, %s' % (vr(d + i), vr(O + 16 * eb + 2 * i), vr(O + 16 * eb + 2 * i + 1)))
        so = s0 if eb < 2 else s1
        for j in range(2):
            A('buffer_store_dwordx4 %s, %s, %s, %s offen offset:%d%s' % (vr(d + 4 * j, 4), vr(t0), sr(SRD, 4), sr(so), (eb & 1) * 2048 + j * 1024, stf))
    return V.hi


def attn_b(A, SRD, s_item, st, v_lane, v_l16, V0, ld='', stf=''):
    V = Regs('v', V0, 256)
    s0, s1, s2, s3 = st
    S = V.alloc(144, 4)
    KV = V.alloc(72, 4)
    Q = V.alloc(8, 4)
    v_d, v_neg, t0, t1, v_k, v_v = [V.alloc() for _ in range(6)]
    O = S + 80
    OP = S + 96
    A('s_lshl_b32 %s, %s, 11' % (sr(s0), sr(s_item)))
    A('s_lshr_b32 %s, %s, 5' % (sr(s1), sr(s_item)))
    A('s_and_b32 %s, %s, 31' % (sr(s2), sr(s_item)))
    A('s_lshl_b32 %s, %s, 11' % (sr(s2), sr(s2)))
    A('v_add_u32 %s, 0x%x, %s' % (vr(t0), QB, vr(v_l16)))
    A('v_add_u32 %s, 0x%x, %s' % (vr(v_k), KB, vr(v_l16)))
    A('v_add_u32 %s, %s, %s' % (vr(v_k), sr(s2), vr(v_k)))
    A('v_add_u32 %s, 0x%x, %s' % (vr(v_v), VB - KB, vr(v_k)))
    for j in range(2):
        A('buffer_load_dwordx4 %s, %s, %s, %s offen offset:%d%s' % (vr(Q + 4 * j, 4), vr(t0), sr(SRD, 4), sr(s0), j * 1024, ld))

    def kb_off(i):
        A('s_add_i32 %s, %s, %d' % (sr(s3), sr(s1), i - 8))
        A('s_max_i32 %s, %s, 0' % (sr(s3), sr(s3)))
        A('s_lshl_b32 %s, %s, 16' % (sr(s3), sr(s3)))
    for i in range(9):
        kb_off(i)
        for j in range(2):
            A('buffer_load_dwordx4 %s, %s, %s, %s offen offset:%d%s' % (vr(KV + 8 * i + 4 * j, 4), vr(v_k), sr(SRD, 4), sr(s3), j * 1024, ld))
    A('v_lshrrev_b32 %s, 5, %s' % (vr(v_d), vr(v_lane)))
    A('v_lshlrev_b32 %s, 2, %s' % (vr(v_d), vr(v_d)))
    A('v_and_b32 %s, 31, %s' % (vr(v_neg), vr(v_lane)))
    A('v_sub_u32 %s, %s, %s' % (vr(v_d), vr(v_neg), vr(v_d)))
    A('v_mov_b32 %s, 0x%x' % (vr(v_neg), f32bits(-1e30)))
    mask_init(A, S, v_d, v_neg, False)
    mask_init(A, S + 128, v_d, v_neg, True)
    for i in range(9):
        A('s_waitcnt vmcnt(16)')
        s = vr(S + 16 * i, 16)
        A('v_mfma_f32_32x32x16_bf16 %s, %s, %s, %s' % (s, vr(KV + 8 * i, 4), vr(Q, 4), s if i in (0, 8) else '0'))
        A('v_mfma_f32_32x32x16_bf16 %s, %s, %s, %s' % (s, vr(KV + 8 * i + 4, 4), vr(Q + 4, 4), s))
        kb_off(i)
        for j in range(2):
            A('buffer_load_dwordx4 %s, %s, %s, %s offen offset:%d%s' % (vr(KV + 8 * i + 4 * j, 4), vr(v_v), sr(SRD, 4), sr(s3), j * 1024, ld))
    Lok = A.uid('bok')
    A('s_nop 15')
    for i in range(8):
        A('s_cmp_ge_u32 %s, %d' % (sr(s1), 8 - i))
        A('s_cbranch_scc1 ' + Lok)
        for r in range(16):
            A('v_mov_b32 %s, %s' % (vr(S + 16 * i + r), vr(v_neg)))
    A.label(Lok)
    regs = [S + i for i in range(144)]
    tree(A, 'v_max3_f32', 'v_max_f32', regs, t0, t1)
    xhalf(A, 'v_max_f32', t0, t1)
    A('s_mov_b32 %s, 0x%x' % (sr(s2), f32bits(32 ** -0.5 * LOG2E)))
    A('v_mul_f32 %s, %s, %s' % (vr(t0), sr(s2), vr(t0)))
    la, lb = v_d, v_k
    for i in range(9):
        rr = regs[16 * i:16 * i + 16]
        for r in rr:
            A('v_fma_f32 %s, %s, %s, -%s' % (vr(r), vr(r), sr(s2), vr(t0)))
        for r in rr:
            A('v_exp_f32 %s, %s' % (vr(r), vr(r)))
        for k, r in enumerate(rr):
            d = (la, lb)[k & 1]
            if i == 0 and k < 2:
                A('v_mov_b32 %s, %s' % (vr(d), vr(r)))
            else:
                A('v_add_f32 %s, %s, %s' % (vr(d), vr(d), vr(r)))
        for k in range(8):
            A('v_cvt_pk_bf16_f32 %s, %s, %s' % (vr(S + 8 * i + k), vr(rr[2 * k]), vr(rr[2 * k + 1])))
    A('v_add_f32 %s, %s, %s' % (vr(la), vr(la), vr(lb)))
    xhalf(A, 'v_add_f32', la, lb)
    A('v_rcp_f32 %s, %s' % (vr(la), vr(la)))
    A('s_waitcnt vmcnt(0)')
    o = vr(O, 16)
    for i in range(9):
        for j in range(2):
            A('v_mfma_f32_32x32x16_bf16 %s, %s, %s, %s' % (o, vr(KV + 8 * i + 4 * j, 4), vr(S + 8 * i + 4 * j, 4), '0' if i == 0 and j == 0 else o))
    A('v_add_u32 %s, 0x%x, %s' % (vr(t0), OB, vr(v_l16)))
    for r in range(16):
        A('v_mul_f32 %s, %s, %s' % (vr(O + r), vr(O + r), vr(la)))
    for k in range(8):
        A('v_cvt_pk_bf16_f32 %s, %s, %s' % (vr(OP + k), vr(O + 2 * k), vr(O + 2 * k + 1)))
    for j in range(2):
        A('buffer_store_dwordx4 %s, %s, %s, %s offen offset:%d%s' % (vr(OP + 4 * j, 4), vr(t0), sr(SRD, 4), sr(s0), j * 1024, stf))
    return V.hi


def attn_b4(A, SRD, s_item, st, v_lane, v_l16, V0, ld='', stf='', late=None):
    V = Regs('v', V0, 256)
    s0, s1, s2, s3 = st
    S = V.alloc(144, 4)
    MA = V.alloc(16, 4)
    MC = V.alloc(16, 4)
    O = V.alloc(16, 4)
    OP = V.alloc(8, 4)
    LP = V.alloc(4, 2)
    CM = V.alloc(4, 2)
    v_d, v_neg, t0, t1, v_k, v_v, v_o = [V.alloc() for _ in range(7)]
    KA, VA, QA = 0, 96, 192
    A('s_lshl_b32 %s, %s, 11' % (sr(s0), sr(s_item)))
    A('s_lshr_b32 %s, %s, 5' % (sr(s1), sr(s_item)))
    A('s_and_b32 %s, %s, 31' % (sr(s2), sr(s_item)))
    A('s_lshl_b32 %s, %s, 11' % (sr(s2), sr(s2)))
    A('v_add_u32 %s, 0x%x, %s' % (vr(t0), QB, vr(v_l16)))
    A('v_add_u32 %s, 0x%x, %s' % (vr(v_k), KB, vr(v_l16)))
    A('v_add_u32 %s, %s, %s' % (vr(v_k), sr(s2), vr(v_k)))
    A('v_add_u32 %s, 0x%x, %s' % (vr(v_v), VB - KB, vr(v_k)))
    A('v_add_u32 %s, 0x%x, %s' % (vr(v_o), OB, vr(v_l16)))

    def kb_off(i):
        A('s_add_i32 %s, %s, %d' % (sr(s3), sr(s1), i - 8))
        A('s_max_i32 %s, %s, 0' % (sr(s3), sr(s3)))
        A('s_lshl_b32 %s, %s, 16' % (sr(s3), sr(s3)))
    order = []
    order += [('q', 0)] + [('k', i) for i in range(9)] + [('v', i) for i in range(9)]
    for it in range(1, 4):
        order += [('q', it), ('k', 8 + it), ('v', 8 + it)]
    pos = {}
    for n, (kind, i) in enumerate(order):
        pos[(kind, i)] = n
        if kind == 'q':
            A('s_add_u32 %s, %s, %d' % (sr(s3), sr(s0), i * 65536))
            for j in range(2):
                A('buffer_load_dwordx4 %s, %s, %s, %s offen offset:%d%s' % (ar(QA + 8 * i + 4 * j, 4), vr(t0), sr(SRD, 4), sr(s3), j * 1024, ld))
        else:
            kb_off(i)
            for j in range(2):
                A('buffer_load_dwordx4 %s, %s, %s, %s offen offset:%d%s' % (ar((KA if kind == 'k' else VA) + 8 * i + 4 * j, 4), vr(v_k if kind == 'k' else v_v), sr(SRD, 4), sr(s3), j * 1024, ld))
    total = 2 * len(order)
    nst = [0]

    def need_(kind, i):
        A('s_waitcnt vmcnt(%d)' % min(63, total - 2 * (pos[(kind, i)] + 1) + nst[0]))
    A('v_lshrrev_b32 %s, 5, %s' % (vr(v_d), vr(v_lane)))
    A('v_lshlrev_b32 %s, 2, %s' % (vr(v_d), vr(v_d)))
    A('v_and_b32 %s, 31, %s' % (vr(v_neg), vr(v_lane)))
    A('v_sub_u32 %s, %s, %s' % (vr(v_d), vr(v_neg), vr(v_d)))
    A('v_mov_b32 %s, 0x%x' % (vr(v_neg), f32bits(-1e30)))
    mask_init(A, MA, v_d, v_neg, False)
    mask_init(A, MC, v_d, v_neg, True)
    A('v_mov_b32 %s, 0x%x' % (vr(CM), f32bits(32 ** -0.5 * LOG2E)))
    regs = [S + i for i in range(144)]
    for it in range(4):
        for i in range(9):
            if it == 0 or i == 8:
                need_('k', it + i)
            s = vr(S + 16 * i, 16)
            c = vr(MA, 16) if i == 0 else (vr(MC, 16) if i == 8 else '0')
            A('v_mfma_f32_32x32x16_bf16 %s, %s, %s, %s' % (s, ar(KA + 8 * (it + i), 4), ar(QA + 8 * it, 4), c))
            A('v_mfma_f32_32x32x16_bf16 %s, %s, %s, %s' % (s, ar(KA + 8 * (it + i) + 4, 4), ar(QA + 8 * it + 4, 4), s))
            if i >= 2:
                rr = regs[16 * (i - 2):16 * (i - 1)]
                _maxtile(A, rr, t0, t1, i == 2)
        Lok, Lfix = A.uid('bok'), A.uid('bfix')
        A('s_cmp_lt_u32 %s, 8' % sr(s1))
        A('s_cbranch_scc1 ' + Lfix)
        _maxtile(A, regs[112:128], t0, t1, False)
        _maxtile(A, regs[128:144], t0, t1, False)
        A('v_max_f32 %s, %s, %s' % (vr(t0), vr(t0), vr(t1)))
        A('s_branch ' + Lok)
        A.label(Lfix)
        A('s_nop 15')
        Lf2 = A.uid('bf2')
        for i in range(8):
            A('s_cmp_ge_u32 %s, %d' % (sr(s1), max(0, 8 - i - it)))
            A('s_cbranch_scc1 ' + Lf2)
            for r in range(16):
                A('v_mov_b32 %s, %s' % (vr(S + 16 * i + r), vr(v_neg)))
        A.label(Lf2)
        tree(A, 'v_max3_f32', 'v_max_f32', regs, t0, t1)
        A.label(Lok)
        if it == 3 and late:
            late()
        xhalf(A, 'v_max_f32', t0, t1)
        A('v_mul_f32 %s, %s, -%s' % (vr(CM + 2), vr(CM), vr(t0)))
        o = vr(O, 16)
        for i in range(9):
            rr = regs[16 * i:16 * i + 16]
            for k in range(0, 16, 2):
                A('v_pk_fma_f32 %s, %s, %s, %s op_sel_hi:[1,0,0]' % (vr(rr[k], 2), vr(rr[k], 2), vr(CM, 2), vr(CM + 2, 2)))
            if i >= 1:
                if it == 0:
                    need_('v', it + i - 1)
                A('v_mfma_f32_32x32x16_bf16 %s, %s, %s, %s' % (o, ar(VA + 8 * (it + i - 1), 4), vr(S + 16 * (i - 1), 4), '0' if i == 1 else o))
            for r in rr[:8]:
                A('v_exp_f32 %s, %s' % (vr(r), vr(r)))
            if i >= 1:
                A('v_mfma_f32_32x32x16_bf16 %s, %s, %s, %s' % (o, ar(VA + 8 * (it + i - 1) + 4, 4), vr(S + 16 * (i - 1) + 4, 4), o))
            for r in rr[8:]:
                A('v_exp_f32 %s, %s' % (vr(r), vr(r)))
            for k in range(0, 16, 2):
                d = LP + 2 * ((k >> 1) & 1)
                if i == 0 and k < 4:
                    A('v_pk_add_f32 %s, %s, 0' % (vr(d, 2), vr(rr[k], 2)))
                else:
                    A('v_pk_add_f32 %s, %s, %s' % (vr(d, 2), vr(d, 2), vr(rr[k], 2)))
            for k in range(8):
                A('v_cvt_pk_bf16_f32 %s, %s, %s' % (vr(S + 16 * i + k), vr(rr[2 * k]), vr(rr[2 * k + 1])))
        need_('v', it + 8)
        A('v_pk_add_f32 %s, %s, %s' % (vr(LP, 2), vr(LP, 2), vr(LP + 2, 2)))
        A('v_mfma_f32_32x32x16_bf16 %s, %s, %s, %s' % (o, ar(VA + 8 * (it + 8), 4), vr(S + 128, 4), o))
        A('v_mfma_f32_32x32x16_bf16 %s, %s, %s, %s' % (o, ar(VA + 8 * (it + 8) + 4, 4), vr(S + 132, 4), o))
        A('v_add_f32 %s, %s, %s' % (vr(LP), vr(LP), vr(LP + 1)))
        xhalf(A, 'v_add_f32', LP, LP + 1)
        A('v_rcp_f32 %s, %s' % (vr(LP), vr(LP)))
        A('s_add_u32 %s, %s, %d' % (sr(s3), sr(s0), it * 65536))
        for r in range(0, 16, 2):
            A('v_pk_mul_f32 %s, %s, %s op_sel_hi:[1,0]' % (vr(O + r, 2), vr(O + r, 2), vr(LP, 2)))
        for k in range(8):
            A('v_cvt_pk_bf16_f32 %s, %s, %s' % (vr(OP + k), vr(O + 2 * k), vr(O + 2 * k + 1)))
        for j in range(2):
            A('buffer_store_dwordx4 %s, %s, %s, %s offen offset:%d%s' % (vr(OP + 4 * j, 4), vr(v_o), sr(SRD, 4), sr(s3), j * 1024, stf))
            nst[0] += 1
        if it < 3:
            need_('q', it + 1)
    return V.hi


def _maxtile(A, rr, t0, t1, first):
    i = 0
    if first:
        A('v_max3_f32 %s, %s, %s, %s' % (vr(t0), vr(rr[0]), vr(rr[1]), vr(rr[2])))
        A('v_max3_f32 %s, %s, %s, %s' % (vr(t1), vr(rr[3]), vr(rr[4]), vr(rr[5])))
        i = 6
    k = 0
    while i < 16:
        t = (t0, t1)[k & 1]
        A('v_max3_f32 %s, %s, %s, %s' % (vr(t), vr(t), vr(rr[i]), vr(rr[i + 1])))
        i += 2
        k += 1


def attn_a_n(A, SRD, s_item, st, v_lane, v_l16, V0, n, ld='', stf='', late=None):
    V = Regs('v', V0, 256)
    s0, s1, s2, s3 = st
    SET_V = V.alloc(136, 4)
    SX = V.alloc(16, 4)
    SM = V.alloc(16, 4)
    MC = V.alloc(16, 4)
    O = V.alloc(32, 4)
    PX = V.alloc(12, 4)
    PM = PX + 8
    v_km, v_d, v_neg, t0, t1, v_vm, v_k, v_v, v_o = [V.alloc() for _ in range(9)]
    OP = SM + 8
    A('v_add_u32 %s, 0x%x, %s' % (vr(v_k), KX, vr(v_l16)))
    A('v_add_u32 %s, 0x%x, %s' % (vr(v_v), VX, vr(v_l16)))
    A('v_add_u32 %s, 0x%x, %s' % (vr(v_o), OA, vr(v_l16)))
    A('v_and_b32 %s, 7, %s' % (vr(v_km), vr(v_lane)))
    A('v_lshlrev_b32 %s, 4, %s' % (vr(v_km), vr(v_km)))
    A('v_lshrrev_b32 %s, 5, %s' % (vr(v_d), vr(v_lane)))
    A('v_lshl_add_u32 %s, %s, 8, %s' % (vr(v_km), vr(v_d), vr(v_km)))
    A('v_add_u32 %s, 0x%x, %s' % (vr(v_km), KMO + 128, vr(v_km)))
    A('v_and_b32 %s, 15, %s' % (vr(v_vm), vr(v_lane)))
    A('v_lshlrev_b32 %s, 4, %s' % (vr(v_vm), vr(v_vm)))
    A('v_lshl_add_u32 %s, %s, 8, %s' % (vr(v_vm), vr(v_d), vr(v_vm)))
    A('v_bfe_u32 %s, %s, 4, 1' % (vr(v_neg), vr(v_lane)))
    A('v_lshl_add_u32 %s, %s, 3, %s' % (vr(v_vm), vr(v_neg), vr(v_vm)))
    A('v_add_u32 %s, 0x%x, %s' % (vr(v_vm), VMO, vr(v_vm)))

    def R(setn, off, cnt):
        return vr(SET_V + off, cnt) if setn == 0 else ar(off, cnt)
    Qo, Ko, KMo, VXo, VMo = 0, 32, 64, 96, 128

    def loads(it):
        sn = it & 1
        A('s_add_u32 %s, %s, %d' % (sr(s2), sr(s_item), 32 * it))
        A('s_lshl_b32 %s, %s, 13' % (sr(s0), sr(s2)))
        A('s_add_u32 %s, %s, 4096' % (sr(s1), sr(s0)))
        A('s_lshl_b32 %s, %s, 12' % (sr(s2), sr(s2)))
        for k in range(8):
            so = s0 if k < 4 else s1
            A('buffer_load_dwordx4 %s, %s, %s, %s offen offset:%d%s' % (R(sn, Qo + 4 * k, 4), vr(v_l16), sr(SRD, 4), sr(so), (k & 3) * 1024, ld))
            A('buffer_load_dwordx4 %s, %s, %s, %s offen offset:%d%s' % (R(sn, Ko + 4 * k, 4), vr(v_k), sr(SRD, 4), sr(so), (k & 3) * 1024, ld))
        for k in range(8):
            A('buffer_load_dwordx4 %s, %s, %s, %s offen offset:%d%s' % (R(sn, KMo + 4 * k, 4), vr(v_km), sr(SRD, 4), sr(s2), k * 512, ld))
        for k in range(8):
            so = s0 if k < 4 else s1
            A('buffer_load_dwordx4 %s, %s, %s, %s offen offset:%d%s' % (R(sn, VXo + 4 * k, 4), vr(v_v), sr(SRD, 4), sr(so), (k & 3) * 1024, ld))
        for k in range(4):
            A('buffer_load_dwordx2 %s, %s, %s, %s offen offset:%d%s' % (R(sn, VMo + 2 * k, 2), vr(v_vm), sr(SRD, 4), sr(s2), k * 1024, ld))
    loads(0)
    A('v_lshlrev_b32 %s, 2, %s' % (vr(v_d), vr(v_d)))
    A('v_and_b32 %s, 31, %s' % (vr(v_neg), vr(v_lane)))
    A('v_sub_u32 %s, %s, %s' % (vr(v_d), vr(v_neg), vr(v_d)))
    A('v_mov_b32 %s, 0x%x' % (vr(v_neg), f32bits(-1e30)))
    mask_init(A, MC, v_d, v_neg, True)
    A('s_mov_b32 %s, 0x%x' % (sr(s3), f32bits(128 ** -0.5 * LOG2E)))
    for it in range(n):
        sn = it & 1
        A('s_waitcnt vmcnt(12)' if it == 0 else 's_waitcnt vmcnt(8)')
        for k in range(8):
            A('v_mfma_f32_32x32x16_bf16 %s, %s, %s, %s' % (vr(SX, 16), R(sn, Ko + 4 * k, 4), R(sn, Qo + 4 * k, 4), vr(MC, 16) if k == 0 else vr(SX, 16)))
        for k in range(8):
            A('v_mfma_f32_32x32x16_bf16 %s, %s, %s, %s' % (vr(SM, 16), R(sn, KMo + 4 * k, 4), R(sn, Qo + 4 * k, 4), '0' if k == 0 else vr(SM, 16)))
        if it + 1 < n:
            loads(it + 1)
        elif late:
            late()
        regs = [SX + i for i in range(16)] + [SM + i for i in range(4)]
        tree(A, 'v_max3_f32', 'v_max_f32', regs, t0, t1)
        xhalf(A, 'v_max_f32', t0, t1)
        A('v_mul_f32 %s, %s, %s' % (vr(t0), sr(s3), vr(t0)))
        for r in regs:
            A('v_fma_f32 %s, %s, %s, -%s' % (vr(r), vr(r), sr(s3), vr(t0)))
        for r in regs:
            A('v_exp_f32 %s, %s' % (vr(r), vr(r)))
        sum_regs(A, regs, t0, t1)
        xhalf(A, 'v_add_f32', t0, t1)
        A('v_rcp_f32 %s, %s' % (vr(t0), vr(t0)))
        for r in regs:
            A('v_mul_f32 %s, %s, %s' % (vr(r), vr(r), vr(t0)))
        for i in range(8):
            A('v_cvt_pk_bf16_f32 %s, %s, %s' % (vr(PX + i), vr(SX + 2 * i), vr(SX + 2 * i + 1)))
        for i in range(2):
            A('v_cvt_pk_bf16_f32 %s, %s, %s' % (vr(PM + i), vr(SM + 2 * i), vr(SM + 2 * i + 1)))
        A('s_add_u32 %s, %s, %d' % (sr(s2), sr(s_item), 32 * it))
        A('s_lshl_b32 %s, %s, 13' % (sr(s0), sr(s2)))
        A('s_add_u32 %s, %s, 4096' % (sr(s1), sr(s0)))

        def pv(eb):
            o = vr(O + 16 * (eb & 1), 16)
            A('v_mfma_f32_32x32x16_bf16 %s, %s, %s, 0' % (o, R(sn, VXo + 8 * eb, 4), vr(PX, 4)))
            A('v_mfma_f32_32x32x16_bf16 %s, %s, %s, %s' % (o, R(sn, VXo + 8 * eb + 4, 4), vr(PX + 4, 4), o))
            A('v_mfma_f32_32x32x8_bf16 %s, %s, %s, %s' % (o, R(sn, VMo + 2 * eb, 2), vr(PM, 2), o))

        def st_(eb):
            d = (SX if eb & 1 else SX + 8)
            ob = O + 16 * (eb & 1)
            for i in range(8):
                A('v_cvt_pk_bf16_f32 %s, %s, %s' % (vr(d + i), vr(ob + 2 * i), vr(ob + 2 * i + 1)))
            so = s0 if eb < 2 else s1
            for j in range(2):
                A('buffer_store_dwordx4 %s, %s, %s, %s offen offset:%d%s' % (vr(d + 4 * j, 4), vr(v_o), sr(SRD, 4), sr(so), (eb & 1) * 2048 + j * 1024, stf))
        if it == 0:
            A('s_waitcnt vmcnt(%d)' % (36 if n > 1 else 0))
        pv(0)
        pv(1)
        st_(0)
        pv(2)
        st_(1)
        pv(3)
        st_(2)
        st_(3)
    return V.hi
```

```python
from asmlib import *
from layout import *
import struct, os
from kernels import place_check, shift_ptrs


def f32bits(x):
    return struct.unpack('<I', struct.pack('<f', x))[0]


def env(n, d):
    return int(os.environ.get(n, str(d)))


LDS_RED = 131072
LDS_O = LDS_RED + 16384
LDS_ROLE = LDS_O + 8192
NSTEP = env('NSTEP', 64)
POLL_LIMIT = 400000
NEARX = env('NEARX', 1)
DELAY_C = env('DELAY_C', 4)
DELAY_E = env('DELAY_E', 12)
E_BACK = env('E_BACK', 0)
DELAY_V = env('DELAY_V', 6)
RED_SLEEP = env('RED_SLEEP', 3)
NOE_SLEEP = env('NOE_SLEEP', 10)
NOPF = env('NOPF', 0)
FORCE_SAFE = env('FORCE_SAFE', 0)
PFC = env('PFC', 0)
VS = [int(x) for x in os.environ.get('VS', '8,3,5').split(',')]
A2 = env('A2', 1)
S3 = env('S3', 2)
HINT = env('HINT', 7)
LITE = [int(x) for x in os.environ.get('LITE', '').split(',') if x]


def gen_chain(A, name, stamps=False, nsteps=NSTEP, worker=None):
    S = Regs('s', 16, 100)
    V = Regs('v', 1, 256)
    SRD_WS, SRD_T = 8, 12
    s_ptr = S.alloc(16, 4)
    (s_w, s_x, s_j, s_t0, s_t1, s_t2, s_t3, s_step, s_slot, s_slot1, s_slot2, s_slotp, s_kx, s_kx2, s_out, s_outp, s_fffe, s_c,
     s_lim, s_cnt, s_vote, s_stamp, s_stl, s_red, s_obm, s_kvo, s_ps, s_ps2, s_m0, s_m1) = [S.alloc() for _ in range(30)]
    s_hf = S.alloc(2, 2)
    s_tm = S.alloc(2, 2)
    s_ta = S.alloc(2, 2)
    s_kvm = S.alloc(2, 2)
    SRD_A = S.alloc(4, 4)
    SRD_B = S.alloc(4, 4)
    SRD_D = S.alloc(4, 4)
    v_lane, v_nu, v_g = V.alloc(), V.alloc(), V.alloc()
    v_t = [V.alloc() for _ in range(8)]
    (va_memr, va_mems, va_rw, va_rr, va_qks, va_rb, va_vs, va_cp, va_prog, va_qkr, va_vmr, va_kx, va_vx, va_ow, va_or, va_pw, va_pr,
     va_pz, va_pd, va_warm, v_idx, v_bias, v_junk, v_kvf, v_junk2, v_sh, va_flg, va_pg) = [V.alloc() for _ in range(28)]
    v_m1 = V.alloc(4, 4)
    v_mask = V.alloc(4, 4)
    v_sel = V.alloc(4, 4)
    v_maskx = V.alloc(4, 4)
    v_ones = V.alloc(4, 4)
    acc1 = V.alloc(4, 4)
    acc2 = V.alloc(4, 4)
    KXA = V.alloc(16, 4)
    KXB = V.alloc(16, 4)
    VXR = V.alloc(32, 4)
    F = V.alloc(64, 4)
    VMR = V.alloc(8, 4)
    QK = V.alloc(16, 4)
    M = V.alloc(16, 4)
    assert KXB == KXA + 16 and VXR == KXA + 32 and F == KXA + 64
    LND = KXA
    AC = F
    HA = F + 32
    RD = F + 48
    SA, SB, SM = F, F + 4, F + 8
    PX, PXH = F + 12, F + 16
    PM, PMH = F + 20, F + 22
    O = F + 28
    LS = F + 44
    v_mx, v_mx2, v_l = F + 48, F + 49, F + 50
    XY = QK
    G = F
    PR = KXA
    RB = KXA + 8
    W1, W2 = 0, 128
    L_exit = name + '_exit'
    nvm = [0]

    def stamp(k):
        if not stamps or (LITE and k not in LITE):
            return
        A('%s %s' % ('s_memrealtime' if stamps == 'rt' else 's_memtime', sr(s_tm, 2)))
        A('s_waitcnt lgkmcnt(0)')
        A('v_mov_b32 %s, %s' % (vr(v_t[7]), sr(s_tm)))
        A('v_mov_b32 %s, %s' % (vr(v_t[6]), sr(s_stl)))
        A('ds_write_b32 %s, %s offset:%d' % (vr(v_t[6]), vr(v_t[7]), 4 * k))
        if k in (0, 2, 6):
            A('v_mov_b32 %s, %s' % (vr(v_t[5]), sr(s_cnt)))
            A('ds_write_b32 %s, %s offset:%d' % (vr(v_t[6]), vr(v_t[5]), 4 * (8 + k)))

    def srd(dst, ptr, nbytes):
        A('s_mov_b32 %s, %s' % (sr(dst), sr(ptr)))
        A('s_and_b32 %s, %s, 0xffff' % (sr(dst + 1), sr(ptr + 1)))
        A('s_mov_b32 %s, 0x%x' % (sr(dst + 2), nbytes))
        A('s_mov_b32 %s, 0x00020000' % sr(dst + 3))

    A.raw('.p2align 8')
    A.label(name)
    A('s_cmp_ge_u32 s2, 256')
    A('s_cbranch_scc1 ' + L_exit)
    A('s_mov_b32 s%d, 0' % S_MODE)
    L_restart = name + '_restart'
    A.label(L_restart)
    A('s_load_dwordx2 %s, s[0:1], 8' % sr(s_ptr, 2))
    A('s_load_dwordx4 %s, s[0:1], 16' % sr(s_ptr + 4, 4))
    A('s_load_dwordx4 %s, s[0:1], 32' % sr(s_ptr + 8, 4))
    A('s_load_dwordx4 %s, s[0:1], 88' % sr(s_ptr + 12, 4))
    P_MEM0, P_WQ, P_WK, P_WV, P_WO, P_DBG, P_WS = s_ptr, s_ptr + 4, s_ptr + 6, s_ptr + 8, s_ptr + 10, s_ptr + 12, s_ptr + 14
    A('v_and_b32 %s, 63, v0' % vr(v_lane))
    A('v_lshrrev_b32 %s, 6, v0' % vr(v_t[0]))
    A('v_readfirstlane_b32 %s, %s' % (sr(s_w), vr(v_t[0])))
    A('v_and_b32 %s, 15, %s' % (vr(v_nu), vr(v_lane)))
    A('v_lshrrev_b32 %s, 4, %s' % (vr(v_g), vr(v_lane)))
    A('s_waitcnt lgkmcnt(0)')
    shift_ptrs(A, P_WS, P_DBG, s_t0)
    srd(SRD_WS, P_WS, WS_HALF)
    srd(SRD_T, P_DBG, 128)
    L_role = A.uid('role')
    A('s_lshr_b32 %s, s2, 5' % sr(s_x))
    A('s_and_b32 %s, s2, 31' % sr(s_j))
    A('s_cmp_lg_u32 s%d, 0' % S_MODE)
    A('s_cbranch_scc1 ' + L_role)
    A('s_getreg_b32 %s, hwreg(HW_REG_XCC_ID)' % sr(s_x))
    A('s_and_b32 %s, %s, 7' % (sr(s_x), sr(s_x)))
    if FORCE_SAFE:
        A('s_cmp_eq_u32 s2, %d' % FORCE_SAFE)
        A('s_cselect_b32 %s, 1, 0' % sr(s_t0))
        A('s_xor_b32 %s, %s, %s' % (sr(s_x), sr(s_x), sr(s_t0)))
    L_norole = A.uid('norole')
    A('s_cmp_lg_u32 %s, 0' % sr(s_w))
    A('s_cbranch_scc1 ' + L_norole)
    A('s_lshl_b32 %s, %s, 2' % (sr(s_t0), sr(s_x)))
    A('v_mov_b32 %s, %s' % (vr(v_t[0]), sr(s_t0)))
    A('v_mov_b32 %s, 1' % vr(v_t[1]))
    A('s_mov_b64 exec, 1')
    A('buffer_atomic_add %s, %s, %s, 0 offen sc0 sc1' % (vr(v_t[1]), vr(v_t[0]), sr(SRD_T, 4)))
    A('s_waitcnt vmcnt(0)')
    A('v_mov_b32 %s, %d' % (vr(v_t[0]), LDS_ROLE))
    A('ds_write_b32 %s, %s' % (vr(v_t[0]), vr(v_t[1])))
    A('s_waitcnt lgkmcnt(0)')
    A('s_mov_b64 exec, -1')
    A.label(L_norole)
    A('s_barrier')
    A('v_mov_b32 %s, %d' % (vr(v_t[0]), LDS_ROLE))
    A('ds_read_b32 %s, %s' % (vr(v_t[1]), vr(v_t[0])))
    A('s_waitcnt lgkmcnt(0)')
    A('v_readfirstlane_b32 %s, %s' % (sr(s_j), vr(v_t[1])))
    A.label(L_role)
    L_work = name + '_worker'
    A('s_mov_b32 s%d, %s' % (S_VX, sr(s_x)))
    A('s_mov_b32 s3, %s' % sr(s_j))
    A('s_cmp_ge_u32 %s, 4' % sr(s_x))
    A('s_cbranch_scc1 ' + L_work)
    A('s_cmp_ge_u32 %s, 32' % sr(s_j))
    A('s_cbranch_scc1 ' + L_work)
    A('s_mov_b32 s3, -1')
    A('s_lshl_b32 %s, %s, 1' % (sr(s_x), sr(s_x)))
    A('s_lshr_b32 %s, %s, 4' % (sr(s_t0), sr(s_j)))
    A('s_add_u32 %s, %s, %s' % (sr(s_x), sr(s_x), sr(s_t0)))
    A('s_and_b32 %s, %s, 15' % (sr(s_j), sr(s_j)))
    A('s_xor_b32 %s, %s, %s' % (sr(s_red), sr(s_x), sr(s_j)))
    A('s_and_b32 %s, %s, 1' % (sr(s_red), sr(s_red)))
    A('s_lshr_b32 %s, %s, 1' % (sr(s_obm), sr(s_x)))
    A('s_lshl_b32 %s, %s, 4' % (sr(s_obm), sr(s_obm)))
    A('s_add_u32 %s, %s, %s' % (sr(s_obm), sr(s_obm), sr(s_j)))
    A('s_lshl_b32 %s, %s, 10' % (sr(s_obm), sr(s_obm)))
    L_noz = A.uid('noz')
    A('s_or_b32 %s, %s, %s' % (sr(s_t0), sr(s_x), sr(s_j)))
    A('s_xor_b32 %s, %s, 1' % (sr(s_t1), sr(s_w)))
    A('s_or_b32 %s, %s, %s' % (sr(s_t0), sr(s_t0), sr(s_t1)))
    A('s_cmp_lg_u32 %s, 0' % sr(s_t0))
    A('s_cbranch_scc1 ' + L_noz)
    A('v_lshlrev_b32 %s, 7, %s' % (vr(v_t[0]), vr(v_lane)))
    A('v_mov_b32 %s, 0' % vr(v_t[1]))
    for i in range(4):
        A('s_mov_b32 %s, 0x%x' % (sr(s_t0), CTR + i * 8192))
        A('buffer_store_dword %s, %s, %s, %s offen sc1' % (vr(v_t[1]), vr(v_t[0]), sr(SRD_WS, 4), sr(s_t0)))
    A('s_waitcnt vmcnt(0)')
    A('v_mov_b32 %s, %d' % (vr(v_t[0]), DBG_INIT))
    A('v_mov_b32 %s, 1' % vr(v_t[1]))
    A('s_mov_b64 exec, 1')
    A('buffer_store_dword %s, %s, %s, 0 offen sc1' % (vr(v_t[1]), vr(v_t[0]), sr(SRD_T, 4)))
    A('s_mov_b64 exec, -1')
    A.label(L_noz)
    for i in range(4):
        A('v_mov_b32 %s, -1' % vr(v_m1 + i))
    l16 = v_t[2]
    A('v_lshlrev_b32 %s, 4, %s' % (vr(l16), vr(v_lane)))
    s_ob = s_t3
    A('s_lshl_b32 %s, %s, 4' % (sr(s_ob), sr(s_x)))
    A('s_add_u32 %s, %s, %s' % (sr(s_ob), sr(s_ob), sr(s_j)))
    A('s_lshl_b32 %s, %s, 10' % (sr(s_ob), sr(s_ob)))

    A('s_lshl_b32 %s, %s, 17' % (sr(s_t0), sr(s_w)))
    A('s_add_u32 %s, %s, %s' % (sr(s_t2), sr(s_t0), sr(s_ob)))
    for base in (QKI, VMI):
        A('s_add_u32 %s, %s, 0x%x' % (sr(s_t1), sr(s_t2), base))
        A('buffer_store_dwordx4 %s, %s, %s, %s offen sc1' % (vr(v_m1, 4), vr(l16), sr(SRD_WS, 4), sr(s_t1)))
    A('s_add_u32 %s, %s, %s' % (sr(s_t0), sr(s_t0), sr(s_obm)))
    A('s_add_u32 %s, %s, 0x%x' % (sr(s_t1), sr(s_t0), MEMI))
    A('buffer_store_dwordx4 %s, %s, %s, %s offen sc1' % (vr(v_m1, 4), vr(l16), sr(SRD_WS, 4), sr(s_t1)))
    A('s_lshl_b32 %s, %s, 14' % (sr(s_t0), sr(s_j)))
    A('s_lshl_b32 %s, %s, 11' % (sr(s_t1), sr(s_w)))
    A('s_add_u32 %s, %s, %s' % (sr(s_t0), sr(s_t0), sr(s_t1)))
    A('s_add_u32 %s, %s, 0x%x' % (sr(s_t0), sr(s_t0), PART))
    A('v_add_u32 %s, %s, %s' % (vr(va_pr), sr(s_t0), vr(l16)))
    A('s_lshl_b32 %s, %s, 8' % (sr(s_t1), sr(s_x)))
    A('v_add_u32 %s, %s, %s' % (vr(va_pw), sr(s_t1), vr(va_pr)))
    A('v_add_u32 %s, 8192, %s' % (vr(va_pz), vr(va_pw)))
    A('s_mov_b64 exec, 0xffff')
    for sl in range(4):
        A('s_mov_b32 %s, 0x%x' % (sr(s_t1), sl * 0x40000))
        A('buffer_store_dwordx4 %s, %s, %s, %s offen sc1' % (vr(v_m1, 4), vr(va_pw), sr(SRD_WS, 4), sr(s_t1)))
        A('buffer_store_dwordx4 %s, %s, %s, %s offen sc1' % (vr(v_m1, 4), vr(va_pz), sr(SRD_WS, 4), sr(s_t1)))
    A('s_mov_b64 exec, -1')
    A('s_lshr_b32 %s, %s, 1' % (sr(s_t0), sr(s_x)))
    A('s_lshl_b32 %s, %s, 8' % (sr(s_t0), sr(s_t0)))
    A('s_add_u32 %s, %s, 0x%x' % (sr(s_t0), sr(s_t0), FLG))
    A('v_lshl_add_u32 %s, %s, 2, %s' % (vr(va_flg), vr(v_nu), sr(s_t0)))
    Lfr = A.uid('fr')
    A('s_cmp_eq_u32 %s, 0' % sr(s_red))
    A('s_cbranch_scc1 ' + Lfr)
    A('s_and_b32 %s, %s, 1' % (sr(s_t1), sr(s_x)))
    A('s_lshl_b32 %s, %s, 5' % (sr(s_t1), sr(s_t1)))
    A('s_add_u32 %s, %s, %s' % (sr(s_t0), sr(s_t0), sr(s_t1)))
    A('s_lshr_b32 %s, %s, 1' % (sr(s_t1), sr(s_j)))
    A('s_lshl_b32 %s, %s, 2' % (sr(s_t1), sr(s_t1)))
    A('s_add_u32 %s, %s, %s' % (sr(s_t0), sr(s_t0), sr(s_t1)))
    A('v_min_u32 %s, 1, v0' % vr(va_flg))
    A('v_lshl_add_u32 %s, %s, 28, %s' % (vr(va_flg), vr(va_flg), sr(s_t0)))
    A('buffer_store_dword %s, %s, %s, 0 offen sc1' % (vr(v_m1), vr(va_flg), sr(SRD_WS, 4)))
    A.label(Lfr)
    L_nocal, L_nocal2 = A.uid('nocal'), A.uid('nocal2')
    A('s_mov_b32 %s, 1' % sr(s_vote))
    A('s_cmp_ge_u32 %s, 4' % sr(s_j))
    A('s_cbranch_scc1 ' + L_nocal2)
    A('s_waitcnt vmcnt(0)')
    A('s_barrier')
    A('s_cmp_lg_u32 %s, 0' % sr(s_w))
    A('s_cbranch_scc1 ' + L_nocal)
    A('s_mov_b32 %s, -1' % sr(s_m0))
    A('s_mov_b32 %s, -1' % sr(s_m1))
    A('s_mov_b64 exec, 0xffff')
    for rep in range(2):
        for c in range(2):
            A('s_mov_b32 %s, %d' % (sr(s_t1), 0x80000 + rep * 0x40000))
            A('s_memtime %s' % sr(s_ta, 2))
            A('s_waitcnt lgkmcnt(0)')
            A('buffer_store_dwordx4 %s, %s, %s, %s offen sc1' % (vr(v_m1, 4), vr(va_pz if c else va_pw), sr(SRD_WS, 4), sr(s_t1)))
            A('s_waitcnt vmcnt(0)')
            A('s_memtime %s' % sr(s_tm, 2))
            A('s_waitcnt lgkmcnt(0)')
            A('s_sub_u32 %s, %s, %s' % (sr(s_t2), sr(s_tm), sr(s_ta)))
            A('s_min_u32 %s, %s, %s' % (sr(s_m1 if c else s_m0), sr(s_m1 if c else s_m0), sr(s_t2)))
    A('s_cmp_lt_u32 %s, %s' % (sr(s_m1), sr(s_m0)))
    A('s_cselect_b32 %s, 0x10001, 1' % sr(s_vote))
    A('s_mov_b64 exec, -1')
    A.label(L_nocal)
    A('s_barrier')
    A.label(L_nocal2)

    s_col = s_t2
    A('s_lshr_b32 %s, %s, 4' % (sr(s_col), sr(s_ob)))
    vw = v_t[4]
    A('v_lshrrev_b32 %s, 2, %s' % (vr(vw), vr(v_lane)))
    A('v_lshlrev_b32 %s, 13, %s' % (vr(vw), vr(vw)))
    A('v_and_b32 %s, 3, %s' % (vr(v_t[5]), vr(v_lane)))
    A('v_lshl_add_u32 %s, %s, 4, %s' % (vr(vw), vr(v_t[5]), vr(vw)))
    A('s_lshl_b32 %s, %s, 17' % (sr(s_t0), sr(s_w)))
    A('s_add_u32 %s, %s, %s' % (sr(s_col), sr(s_col), sr(s_t0)))
    A('s_lshl_b32 %s, %s, 10' % (sr(s_t0), sr(s_w)))
    for mi, P in enumerate((P_WQ, P_WK)):
        srd(SRD_A, P, 1024 * 4096 * 2)
        for i in range(16):
            A('s_add_u32 m0, %s, %d' % (sr(s_t0), mi * 65536 + i * 4096))
            A('s_add_u32 %s, %s, %d' % (sr(s_t1), sr(s_col), i * 4 * 131072))
            A('buffer_load_dwordx4 %s, %s, %s offen lds' % (vr(vw), sr(SRD_A, 4), sr(s_t1)))
        if mi == 0:
            A('s_waitcnt vmcnt(16)')
            A('s_barrier')
            L_nord = A.uid('nord')
            A('s_cmp_lg_u32 %s, 0' % sr(s_w))
            A('s_cbranch_scc1 ' + L_nord)
            A('v_mov_b32 %s, 32' % vr(acc2))
            A('v_mov_b32 %s, %s' % (vr(acc2 + 1), sr(s_vote)))
            A('s_mov_b64 exec, 1')
            A('buffer_atomic_add %s, %s, %s, 0 offen sc1' % (vr(acc2 + 1), vr(acc2), sr(SRD_T, 4)))
            A('s_mov_b64 exec, -1')
            A.label(L_nord)
            A('s_nop 4')
    v2 = v_t[5]
    LwN, LwJ = A.uid('wN'), A.uid('wJ')
    A('s_cmp_lg_u32 %s, 0' % sr(s_red))
    A('s_cbranch_scc1 ' + LwN)
    srd(SRD_B, P_WV, 1024 * 4096 * 2)
    A('v_lshrrev_b32 %s, 3, %s' % (vr(v2), vr(v_lane)))
    A('v_lshlrev_b32 %s, 13, %s' % (vr(v2), vr(v2)))
    A('v_and_b32 %s, 7, %s' % (vr(v_t[6]), vr(v_lane)))
    A('v_lshl_add_u32 %s, %s, 4, %s' % (vr(v2), vr(v_t[6]), vr(v2)))
    A('s_lshr_b32 %s, %s, 4' % (sr(s_t2), sr(s_ob)))
    A('s_andn2_b32 %s, %s, 64' % (sr(s_t2), sr(s_t2)))
    A('s_lshl_b32 %s, %s, 16' % (sr(s_t1), sr(s_w)))
    A('s_add_u32 %s, %s, %s' % (sr(s_t2), sr(s_t2), sr(s_t1)))
    A('s_mov_b32 %s, %d' % (sr(s_t0), 4 * 65536))
    A('s_branch ' + LwJ)
    A.label(LwN)
    srd(SRD_B, P_WO, 4096 * 1024 * 2)
    A('v_lshlrev_b32 %s, 11, %s' % (vr(v2), vr(v_g)))
    A('v_lshl_add_u32 %s, %s, 4, %s' % (vr(v2), vr(v_nu), vr(v2)))
    A('s_lshl_b32 %s, %s, 20' % (sr(s_t2), sr(s_x)))
    A('s_lshr_b32 %s, %s, 1' % (sr(s_t1), sr(s_j)))
    A('s_lshl_b32 %s, %s, 8' % (sr(s_t1), sr(s_t1)))
    A('s_add_u32 %s, %s, %s' % (sr(s_t2), sr(s_t2), sr(s_t1)))
    A('s_lshl_b32 %s, %s, 13' % (sr(s_t1), sr(s_w)))
    A('s_add_u32 %s, %s, %s' % (sr(s_t2), sr(s_t2), sr(s_t1)))
    A('s_mov_b32 %s, %d' % (sr(s_t0), 4 * 8192))
    A.label(LwJ)
    for i in range(32):
        A('buffer_load_dwordx4 %s, %s, %s, %s offen' % (vr(LND + 4 * i, 4), vr(v2), sr(SRD_B, 4), sr(s_t2)))
        A('s_add_u32 %s, %s, %s' % (sr(s_t2), sr(s_t2), sr(s_t0)))
    srd(SRD_D, P_MEM0, 8 * 1024 * 2)
    vm0 = v_t[6]
    A('v_and_b32 %s, 7, %s' % (vr(vm0), vr(v_nu)))
    A('v_lshlrev_b32 %s, 11, %s' % (vr(vm0), vr(vm0)))
    A('v_lshl_add_u32 %s, %s, 5, %s' % (vr(vm0), vr(v_g), vr(vm0)))
    A('v_lshrrev_b32 %s, 3, %s' % (vr(v_t[7]), vr(v_nu)))
    A('v_lshl_add_u32 %s, %s, 2, %s' % (vr(vm0), vr(v_t[7]), vr(vm0)))
    A('s_lshl_b32 %s, %s, 9' % (sr(s_t1), sr(s_w)))
    for k in range(4):
        for a in range(4):
            A('buffer_load_dword %s, %s, %s, %s offen offset:%d' % (vr(M + 4 * k + a), vr(vm0), sr(SRD_D, 4), sr(s_t1), k * 128 + a * 8))

    A('s_mov_b32 %s, 0xfffefffe' % sr(s_fffe))
    A('s_mov_b32 %s, 0x%x' % (sr(s_c), f32bits(128 ** -0.5 * 1.4426950408889634)))
    A('s_mov_b32 %s, %d' % (sr(s_lim), POLL_LIMIT))
    A('s_mov_b32 %s, 0xff00ff00' % sr(s_hf))
    A('s_mov_b32 %s, 0xff00ff00' % sr(s_hf + 1))
    ta, tb, tc = v_t[0], v_t[1], v_t[7]
    A('v_mov_b32 %s, 0x%x' % (vr(ta), f32bits(-1e30)))
    for i in range(4):
        A('v_cndmask_b32 %s, 0, %s, %s' % (vr(v_maskx + i), vr(ta), sr(s_hf, 2)))
    A('v_cmp_gt_u32 vcc, 32, %s' % vr(v_lane))
    for i in range(4):
        A('v_cndmask_b32 %s, %s, %s, vcc' % (vr(v_mask + i), vr(v_maskx), vr(ta)))
    A('v_mov_b32 %s, 0x%x' % (vr(ta), f32bits(-3e38)))
    A('v_cndmask_b32 %s, %s, 0, %s' % (vr(v_bias), vr(ta), sr(s_hf, 2)))
    for i in range(4):
        A('v_mov_b32 %s, 0x3f803f80' % vr(v_ones + i))
    A('v_mov_b32 %s, 0x4444' % vr(ta))
    A('v_mov_b32 %s, 0xeeee' % vr(tb))
    A('v_cndmask_b32 %s, %s, %s, %s' % (vr(v_idx), vr(ta), vr(tb), sr(s_hf, 2)))
    A('v_bfe_u32 %s, %s, 2, 1' % (vr(ta), vr(v_nu)))
    A('v_bfe_u32 %s, %s, 1, 1' % (vr(tb), vr(v_nu)))
    A('v_lshl_add_u32 %s, %s, 1, %s' % (vr(ta), vr(tb), vr(ta)))
    A('v_and_b32 %s, 1, %s' % (vr(tb), vr(v_nu)))
    A('v_lshlrev_b32 %s, 4, %s' % (vr(tb), vr(tb)))
    A('v_mov_b32 %s, 0x3f80' % vr(tc))
    A('v_lshlrev_b32 %s, %s, %s' % (vr(tb), vr(tb), vr(tc)))
    for d in range(4):
        A('v_cmp_eq_u32 vcc, %d, %s' % (d, vr(ta)))
        A('v_cndmask_b32 %s, 0, %s, vcc' % (vr(v_sel + d), vr(tb)))

    s_p, s_wh = s_t0, s_t1
    A('s_and_b32 %s, %s, 1' % (sr(s_p), sr(s_w)))
    A('s_lshr_b32 %s, %s, 1' % (sr(s_wh), sr(s_w)))
    A('s_lshl_b32 %s, %s, 12' % (sr(s_t2), sr(s_w)))
    A('v_add_u32 %s, %s, %s' % (vr(ta), sr(s_t2), vr(l16)))
    A('s_lshr_b32 %s, %s, 1' % (sr(s_t2), sr(s_x)))
    A('s_lshl_b32 %s, %s, 14' % (sr(s_t2), sr(s_t2)))
    A('s_add_u32 %s, %s, 0x%x' % (sr(s_t2), sr(s_t2), MEMI))
    A('v_add_u32 %s, %s, %s' % (vr(va_memr), sr(s_t2), vr(ta)))
    A('s_lshl_b32 %s, %s, 14' % (sr(s_t2), sr(s_x)))
    A('s_add_u32 %s, %s, 0x%x' % (sr(s_t2), sr(s_t2), QKI))
    A('v_add_u32 %s, %s, %s' % (vr(va_qkr), sr(s_t2), vr(ta)))
    A('s_lshl_b32 %s, %s, 12' % (sr(s_cnt), sr(s_w)))
    A('s_add_u32 %s, %s, %s' % (sr(s_t2), sr(s_t2), sr(s_cnt)))
    A('s_add_u32 %s, %s, 0x%x' % (sr(s_t2), sr(s_t2), VMI - QKI))
    A('v_and_b32 %s, 31, %s' % (vr(va_vmr), vr(v_lane)))
    A('v_lshlrev_b32 %s, 4, %s' % (vr(va_vmr), vr(va_vmr)))
    A('v_lshrrev_b32 %s, 5, %s' % (vr(ta), vr(v_lane)))
    A('v_xor_b32 %s, 1, %s' % (vr(ta), vr(ta)))
    A('v_lshl_add_u32 %s, %s, 11, %s' % (vr(va_vmr), vr(ta), vr(va_vmr)))
    A('v_add_u32 %s, %s, %s' % (vr(va_vmr), sr(s_t2), vr(va_vmr)))
    A('s_lshl_b32 %s, %s, 12' % (sr(s_t2), sr(s_w)))
    A('s_add_u32 %s, %s, %d' % (sr(s_t2), sr(s_t2), LDS_RED))
    A('v_lshl_add_u32 %s, %s, 3, %s' % (vr(va_rw), vr(v_lane), sr(s_t2)))
    A('v_lshrrev_b32 %s, 5, %s' % (vr(ta), vr(v_lane)))
    A('v_lshlrev_b32 %s, 13, %s' % (vr(ta), vr(ta)))
    A('v_and_b32 %s, 31, %s' % (vr(tb), vr(v_lane)))
    A('v_lshl_add_u32 %s, %s, 4, %s' % (vr(ta), vr(tb), vr(ta)))
    A('s_lshl_b32 %s, %s, 9' % (sr(s_t2), sr(s_w)))
    A('s_add_u32 %s, %s, %d' % (sr(s_t2), sr(s_t2), LDS_RED))
    A('v_add_u32 %s, %s, %s' % (vr(va_rr), sr(s_t2), vr(ta)))
    vR, vcp, vH = tc, acc1, acc1 + 1
    A('v_bfe_u32 %s, %s, 3, 1' % (vr(ta), vr(v_lane)))
    A('v_bfe_u32 %s, %s, 4, 1' % (vr(tb), vr(v_lane)))
    A('v_lshlrev_b32 %s, 2, %s' % (vr(vR), vr(ta)))
    A('v_lshl_add_u32 %s, %s, 1, %s' % (vr(vR), vr(tb), vr(vR)))
    A('v_and_b32 %s, 7, %s' % (vr(vcp), vr(v_lane)))
    A('v_lshrrev_b32 %s, 5, %s' % (vr(vH), vr(v_lane)))
    A('v_lshlrev_b32 %s, 8, %s' % (vr(va_vs), vr(ta)))
    A('v_lshl_add_u32 %s, %s, 5, %s' % (vr(va_vs), vr(vcp), vr(va_vs)))
    A('v_lshl_add_u32 %s, %s, 4, %s' % (vr(va_vs), vr(vH), vr(va_vs)))
    A('v_lshl_add_u32 %s, %s, 2, %s' % (vr(va_vs), vr(tb), vr(va_vs)))
    A('s_andn2_b32 %s, %s, 1024' % (sr(s_t2), sr(s_ob)))
    A('s_lshl_b32 %s, %s, 10' % (sr(s_cnt), sr(s_wh)))
    A('s_add_u32 %s, %s, %s' % (sr(s_t2), sr(s_t2), sr(s_cnt)))
    A('s_lshl_b32 %s, %s, 3' % (sr(s_cnt), sr(s_p)))
    A('s_add_u32 %s, %s, %s' % (sr(s_t2), sr(s_t2), sr(s_cnt)))
    A('s_add_u32 %s, %s, 0x%x' % (sr(s_t2), sr(s_t2), VMI))
    A('v_add_u32 %s, %s, %s' % (vr(va_vs), sr(s_t2), vr(va_vs)))
    A('v_bfe_u32 %s, %s, 1, 1' % (vr(ta), vr(vcp)))
    A('v_lshlrev_b32 %s, 8, %s' % (vr(va_qks), vr(ta)))
    A('v_add_u32 %s, %s, %s' % (vr(vR), vr(vR), vr(vH)))
    A('v_lshl_add_u32 %s, %s, 4, %s' % (vr(va_qks), vr(vR), vr(va_qks)))
    A('v_lshrrev_b32 %s, 2, %s' % (vr(ta), vr(vcp)))
    A('v_lshl_add_u32 %s, %s, 3, %s' % (vr(va_qks), vr(ta), vr(va_qks)))
    A('v_and_b32 %s, 1, %s' % (vr(ta), vr(vcp)))
    A('v_lshl_add_u32 %s, %s, 2, %s' % (vr(va_qks), vr(ta), vr(va_qks)))
    A('s_lshl_b32 %s, %s, 9' % (sr(s_t2), sr(s_p)))
    A('v_add_u32 %s, %s, %s' % (vr(va_qks), sr(s_t2), vr(va_qks)))
    A('s_lshl_b32 %s, %s, 7' % (sr(s_t2), sr(s_wh)))
    A('s_add_u32 %s, %s, %s' % (sr(s_t2), sr(s_t2), sr(s_ob)))
    A('s_add_u32 %s, %s, 0x%x' % (sr(s_t2), sr(s_t2), QKI))
    A('v_add_u32 %s, %s, %s' % (vr(va_qks), sr(s_t2), vr(va_qks)))
    A('v_lshlrev_b32 %s, 4, %s' % (vr(va_mems), vr(v_nu)))
    A('v_lshl_add_u32 %s, %s, 2, %s' % (vr(va_mems), vr(v_g), vr(va_mems)))
    A('s_lshl_b32 %s, %s, 8' % (sr(s_t2), sr(s_w)))
    A('s_add_u32 %s, %s, %s' % (sr(s_t2), sr(s_t2), sr(s_obm)))
    A('s_add_u32 %s, %s, 0x%x' % (sr(s_t2), sr(s_t2), MEMI))
    A('v_add_u32 %s, %s, %s' % (vr(va_mems), sr(s_t2), vr(va_mems)))
    A('s_lshl_b32 %s, %s, 10' % (sr(s_t2), sr(s_wh)))
    A('s_xor_b32 %s, %s, %s' % (sr(s_kvo), sr(s_t2), sr(s_ob)))
    A('s_lshl_b32 %s, %s, 19' % (sr(s_t2), sr(s_p)))
    A('s_add_u32 %s, %s, %s' % (sr(s_t2), sr(s_t2), sr(s_kvo)))
    A('s_add_u32 %s, %s, 0x%x' % (sr(s_t2), sr(s_t2), QKI))
    A('s_lshl_b32 %s, %s, 23' % (sr(s_cnt), sr(s_p)))
    A('s_add_u32 %s, %s, %s' % (sr(s_cnt), sr(s_cnt), sr(s_kvo)))
    A('s_add_u32 %s, %s, 0x%x' % (sr(s_cnt), sr(s_cnt), KMO))
    assert VMO - KMO == 1 << 23 and VMI - QKI == 1 << 19
    A('v_add_u32 %s, %s, %s' % (vr(va_rb), sr(s_t2), vr(l16)))
    A('v_add_u32 %s, %s, %s' % (vr(va_cp), sr(s_cnt), vr(l16)))
    A('s_or_b32 %s, %s, %s' % (sr(s_t2), sr(s_x), sr(s_j)))
    A('s_xor_b32 %s, %s, 3' % (sr(s_cnt), sr(s_w)))
    A('s_or_b32 %s, %s, %s' % (sr(s_t2), sr(s_t2), sr(s_cnt)))
    A('s_cmp_eq_u32 %s, 0' % sr(s_t2))
    A('s_mov_b32 %s, 0x%x' % (sr(s_cnt), CTR + DBG_PROG * 128))
    A('s_cselect_b32 %s, %s, 0x%x' % (sr(s_t2), sr(s_cnt), WS_BYTES))
    A('v_and_b32 %s, 3, %s' % (vr(v_sh), vr(v_lane)))
    A('v_lshlrev_b32 %s, 7, %s' % (vr(v_sh), vr(v_sh)))
    A('v_add_u32 %s, %s, %s' % (vr(va_prog), sr(s_t2), vr(v_sh)))
    A('v_cmp_lt_u32 vcc, 3, %s' % vr(v_lane))
    A('v_mov_b32 %s, 0x%x' % (vr(ta), WS_BYTES))
    A('v_cndmask_b32 %s, %s, %s, vcc' % (vr(va_prog), vr(va_prog), vr(ta)))
    A('v_add_u32 %s, 0x%x, %s' % (vr(v_sh), CTR, vr(v_sh)))
    s_h = s_t2
    A('s_lshl_b32 %s, %s, 2' % (sr(s_h), sr(s_x)))
    A('s_add_u32 %s, %s, %s' % (sr(s_h), sr(s_h), sr(s_w)))
    A('s_lshl_b32 %s, %s, 13' % (sr(s_h), sr(s_h)))
    A('v_and_b32 %s, 1, %s' % (vr(ta), vr(v_g)))
    A('v_lshrrev_b32 %s, 1, %s' % (vr(tb), vr(v_g)))
    A('v_lshlrev_b32 %s, 9, %s' % (vr(va_kx), vr(ta)))
    A('v_lshl_add_u32 %s, %s, 10, %s' % (vr(va_kx), vr(tb), vr(va_kx)))
    A('v_add_u32 %s, %s, %s' % (vr(va_kx), sr(s_h), vr(va_kx)))
    A('v_lshl_add_u32 %s, %s, 4, %s' % (vr(va_vx), vr(v_nu), vr(va_kx)))
    A('v_add_u32 %s, 0x%x, %s' % (vr(va_vx), VX, vr(va_vx)))
    A('v_lshrrev_b32 %s, 3, %s' % (vr(ta), vr(v_nu)))
    A('v_lshl_add_u32 %s, %s, 8, %s' % (vr(va_kx), vr(ta), vr(va_kx)))
    A('v_and_b32 %s, 7, %s' % (vr(ta), vr(v_nu)))
    A('v_lshl_add_u32 %s, %s, 4, %s' % (vr(va_kx), vr(ta), vr(va_kx)))
    A('v_add_u32 %s, 0x%x, %s' % (vr(va_kx), KX, vr(va_kx)))
    A('s_lshr_b32 %s, %s, 1' % (sr(s_t2), sr(s_j)))
    A('s_lshl_b32 %s, %s, 2' % (sr(s_t2), sr(s_t2)))
    A('s_add_u32 %s, %s, %s' % (sr(s_t2), sr(s_t2), sr(s_w)))
    A('s_and_b32 %s, %s, 15' % (sr(s_cnt), sr(s_t2)))
    A('s_lshl_b32 %s, %s, 11' % (sr(s_cnt), sr(s_cnt)))
    A('s_lshr_b32 %s, %s, 4' % (sr(s_t2), sr(s_t2)))
    A('s_lshl_b32 %s, %s, 24' % (sr(s_t2), sr(s_t2)))
    assert VX - KX == 1 << 24
    A('s_add_u32 %s, %s, %s' % (sr(s_t2), sr(s_t2), sr(s_cnt)))
    A('s_lshl_b32 %s, %s, 15' % (sr(s_cnt), sr(s_x)))
    A('s_add_u32 %s, %s, %s' % (sr(s_t2), sr(s_t2), sr(s_cnt)))
    A('s_add_u32 %s, %s, 0x%x' % (sr(s_t2), sr(s_t2), KX))
    A('v_lshl_add_u32 %s, %s, 5, %s' % (vr(va_warm), vr(v_lane), sr(s_t2)))
    A('v_add_u32 %s, %d, %s' % (vr(va_or), LDS_O, vr(l16)))
    A('v_lshrrev_b32 %s, 3, %s' % (vr(ta), vr(v_nu)))
    A('v_mul_u32_u24 %s, %d, %s' % (vr(ta), 1024 - 128, vr(ta)))
    A('s_lshl_b32 %s, %s, 11' % (sr(s_t2), sr(s_w)))
    A('v_add3_u32 %s, %s, %s, %s' % (vr(va_ow), sr(s_t2), vr(va_or), vr(ta)))
    if stamps:
        A('s_lshl_b32 %s, %s, 4' % (sr(s_stamp), sr(s_ob)))
        A('s_lshl_b32 %s, %s, 12' % (sr(s_t2), sr(s_w)))
        A('s_add_u32 %s, %s, %s' % (sr(s_stamp), sr(s_stamp), sr(s_t2)))
        A('s_add_u32 %s, %s, 0x%x' % (sr(s_stamp), sr(s_stamp), STAMP))
        A('s_add_u32 %s, %s, 65536' % (sr(s_stl), sr(s_t2)))

    vq1, vq2, vr_, vcq = acc1, acc1 + 1, acc1 + 2, acc1 + 3
    A('v_bfe_u32 %s, %s, 2, 2' % (vr(vr_), vr(v_lane)))
    A('v_and_b32 %s, 3, %s' % (vr(vcq), vr(v_lane)))
    A('v_lshl_add_u32 %s, %s, 3, %s' % (vr(vq2), vr(v_g), vr(vr_)))
    A('v_lshlrev_b32 %s, 6, %s' % (vr(vq1), vr(vq2)))
    A('v_lshl_add_u32 %s, %s, 3, %s' % (vr(vq1), vr(vcq), vr(vq1)))
    A('s_lshl_b32 %s, %s, 14' % (sr(s_t2), sr(s_w)))
    A('v_add_u32 %s, %s, %s' % (vr(vq1), sr(s_t2), vr(vq1)))
    A('v_add_u32 %s, 65536, %s' % (vr(tb), vr(vq1)))
    A('s_waitcnt vmcnt(48)')
    A('s_barrier')
    for kk in range(4):
        for tl in range(4):
            for bh in range(2):
                for q in range(2):
                    A('ds_read_b64_tr_b16 %s, %s offset:%d' % (ar(W1 + 8 * (kk * 4 + tl) + 4 * bh + 2 * q, 2), vr(tb if tl >= 2 else vq1), kk * 4096 + bh * 2048 + q * 256 + (tl & 1) * 32))
            A('s_waitcnt lgkmcnt(8)')
    A('s_waitcnt lgkmcnt(0)')
    A('s_barrier')
    A('s_waitcnt vmcnt(0)')
    A('s_lshl_b32 %s, %s, 10' % (sr(s_t2), sr(s_w)))
    A('v_add_u32 %s, %s, %s' % (vr(ta), sr(s_t2), vr(l16)))
    A('v_add_u32 %s, 65536, %s' % (vr(tb), vr(ta)))
    for i in range(32):
        A('ds_write_b128 %s, %s offset:%d' % (vr(ta if i < 16 else tb), vr(LND + 4 * i, 4), (i & 15) * 4096))
        if i & 3 == 3:
            A('s_waitcnt lgkmcnt(8)')
    A('s_waitcnt lgkmcnt(0)')
    A('s_barrier')
    LtN, LtJ = A.uid('tN'), A.uid('tJ')
    A('s_cmp_lg_u32 %s, 0' % sr(s_red))
    A('s_cbranch_scc1 ' + LtN)
    A('v_lshlrev_b32 %s, 7, %s' % (vr(ta), vr(vq2)))
    A('v_lshl_add_u32 %s, %s, 3, %s' % (vr(ta), vr(vcq), vr(ta)))
    A('s_lshl_b32 %s, %s, 15' % (sr(s_t2), sr(s_w)))
    A('v_add_u32 %s, %s, %s' % (vr(ta), sr(s_t2), vr(ta)))
    for kk in range(4):
        for tv in range(4):
            for bh in range(2):
                for q in range(2):
                    A('ds_read_b64_tr_b16 %s, %s offset:%d' % (ar(W2 + 8 * (kk * 4 + tv) + 4 * bh + 2 * q, 2), vr(ta), kk * 8192 + bh * 4096 + q * 512 + tv * 32))
            A('s_waitcnt lgkmcnt(8)')
    A('s_branch ' + LtJ)
    A.label(LtN)
    A('v_and_b32 %s, 1, %s' % (vr(ta), vr(v_g)))
    A('v_lshl_add_u32 %s, %s, 5, %s' % (vr(ta), vr(ta), vr(vr_)))
    A('v_lshrrev_b32 %s, 1, %s' % (vr(tb), vr(v_g)))
    A('v_lshl_add_u32 %s, %s, 2, %s' % (vr(ta), vr(tb), vr(ta)))
    A('v_lshlrev_b32 %s, 8, %s' % (vr(ta), vr(ta)))
    A('v_lshl_add_u32 %s, %s, 3, %s' % (vr(ta), vr(vcq), vr(ta)))
    A('s_lshl_b32 %s, %s, 5' % (sr(s_t2), sr(s_w)))
    A('v_add_u32 %s, %s, %s' % (vr(ta), sr(s_t2), vr(ta)))
    A('v_add_u32 %s, 65536, %s' % (vr(tb), vr(ta)))
    for k in range(8):
        for u in range(2):
            for bh in range(2):
                for q in range(2):
                    A('ds_read_b64_tr_b16 %s, %s offset:%d' % (ar(W2 + 8 * (k * 2 + u) + 4 * bh + 2 * q, 2), vr(ta if k < 4 else tb), (k & 3) * 16384 + q * 4096 + bh * 2048 + u * 128))
            A('s_waitcnt lgkmcnt(8)')
    A.label(LtJ)
    A('s_waitcnt lgkmcnt(0)')
    A('s_barrier')

    def pf_ops():
        o = []
        for eb in range(4):
            so = s_kx if eb < 2 else s_kx2
            o.append('buffer_load_dwordx4 %s, %s, %s, %s offen offset:%d sc1' % (vr(KXA + 4 * eb, 4), vr(va_kx), sr(SRD_WS, 4), sr(so), (eb & 1) * 2048))
            o.append('buffer_load_dwordx4 %s, %s, %s, %s offen offset:%d sc1' % (vr(KXB + 4 * eb, 4), vr(va_kx), sr(SRD_WS, 4), sr(so), (eb & 1) * 2048 + 128))
        for T in range(8):
            eb = T >> 1
            so = s_kx if eb < 2 else s_kx2
            o.append('buffer_load_dwordx4 %s, %s, %s, %s offen offset:%d sc1' % (vr(VXR + 4 * T, 4), vr(va_vx), sr(SRD_WS, 4), sr(so), (eb & 1) * 2048 + (T & 1) * 256))
        return o

    def emit(t):
        A(t)
        if t.startswith('buffer_'):
            nvm[0] += 1

    A('s_mov_b32 %s, 0' % sr(s_step))
    A('s_mov_b32 %s, 0x40404044' % sr(s_kvm))
    A('s_mov_b32 %s, 0x00404040' % sr(s_kvm + 1))
    A('s_mov_b32 %s, 0' % sr(s_slot))
    A('s_mov_b32 %s, 0x20000' % sr(s_slot1))
    A('s_mov_b32 %s, 0x40000' % sr(s_slot2))
    A('s_mov_b32 %s, 0' % sr(s_slotp))
    A('s_mov_b32 %s, 0' % sr(s_kx))
    A('s_mov_b32 %s, 4096' % sr(s_kx2))
    A('s_mov_b32 %s, 0' % sr(s_out))
    A('s_mov_b32 %s, 0x%x' % (sr(s_outp), WS_BYTES))
    A('s_mov_b32 %s, 0' % sr(s_ps))
    A('s_mov_b32 %s, 0x80000' % sr(s_ps2))
    A('s_mov_b32 %s, %d' % (sr(s_kvo), DBG_KV0 * 128))

    def kv_wait(tag):
        Lw, Ld, L0 = A.uid('kvw' + tag), A.uid('kvd' + tag), A.uid('kv0' + tag)
        A('s_mov_b32 %s, 0' % sr(s_cnt))
        A('s_branch ' + L0)
        A.label(Lw)
        A('s_sleep 6')
        A.label(L0)
        A('buffer_load_dword %s, %s, %s, %s offen sc1' % (vr(v_kvf), vr(v_sh), sr(SRD_WS, 4), sr(s_kvo)))
        A('s_add_u32 %s, %s, 1' % (sr(s_cnt), sr(s_cnt)))
        A('s_cmp_gt_u32 %s, %s' % (sr(s_cnt), sr(s_lim)))
        A('s_cbranch_scc1 ' + Ld)
        A('s_waitcnt vmcnt(0)')
        A('v_cmp_gt_u32 vcc, 32, %s' % vr(v_kvf))
        A('s_cbranch_vccnz ' + Lw)
        A.label(Ld)
        A('s_waitcnt vmcnt(0)')
    stamp(7)
    place_check(A, SRD_T, v_lane, v_t[0], v_t[1], s_cnt, POLL_LIMIT, L_restart)
    L_rdy, L_rdy_done, L_rdy0 = A.uid('rdy'), A.uid('rdyd'), A.uid('rdy0')
    A('v_mov_b32 %s, 32' % vr(v_t[0]))
    A('s_mov_b32 %s, 0' % sr(s_cnt))
    A('s_branch ' + L_rdy0)
    A.label(L_rdy)
    A('s_sleep 6')
    A.label(L_rdy0)
    A('buffer_load_dword %s, %s, %s, 0 offen sc1' % (vr(acc1 + 1), vr(v_t[0]), sr(SRD_T, 4)))
    A('s_add_u32 %s, %s, 1' % (sr(s_cnt), sr(s_cnt)))
    A('s_cmp_gt_u32 %s, %s' % (sr(s_cnt), sr(s_lim)))
    A('s_cbranch_scc1 ' + L_rdy_done)
    A('s_waitcnt vmcnt(0)')
    A('v_and_b32 %s, 0xffff, %s' % (vr(acc1), vr(acc1 + 1)))
    A('v_cmp_gt_u32 vcc, 128, %s' % vr(acc1))
    A('s_cbranch_vccnz ' + L_rdy)
    A.label(L_rdy_done)
    A('s_waitcnt vmcnt(0)')
    A('v_lshrrev_b32 %s, 16, %s' % (vr(acc1), vr(acc1 + 1)))
    A('v_cmp_%s_u32 vcc, 16, %s' % ('lt' if NEARX else 'ge', vr(acc1)))
    A('v_mov_b32 %s, 8192' % vr(acc1 + 1))
    A('v_cndmask_b32 %s, 0, %s, vcc' % (vr(acc1), vr(acc1 + 1)))
    A('v_add_u32 %s, %s, %s' % (vr(va_pr), vr(va_pr), vr(acc1)))
    A('v_add_u32 %s, %s, %s' % (vr(va_pw), vr(va_pw), vr(acc1)))
    A('v_mul_u32_u24 %s, 252, %s' % (vr(acc1), vr(v_g)))
    A('v_sub_u32 %s, %s, %s' % (vr(va_pd), vr(va_pw), vr(acc1)))
    A('v_and_b32 %s, 0x%x, %s' % (vr(va_pd), 0xffffffff ^ 16384, vr(va_pd)))
    A('v_lshlrev_b32 %s, 8, %s' % (vr(acc1), vr(v_g)))
    A('v_sub_u32 %s, %s, %s' % (vr(va_pz), vr(va_pw), vr(acc1)))
    A('v_and_b32 %s, 1, %s' % (vr(acc1), vr(v_g)))
    A('v_lshlrev_b32 %s, 14, %s' % (vr(acc1), vr(acc1)))
    A('v_xor_b32 %s, %s, %s' % (vr(va_pz), vr(va_pz), vr(acc1)))
    A('v_lshrrev_b32 %s, 1, %s' % (vr(acc1), vr(v_g)))
    A('v_lshl_add_u32 %s, %s, 28, %s' % (vr(va_pz), vr(acc1), vr(va_pz)))
    A('v_add_u32 %s, 16384, %s' % (vr(va_pw), vr(va_pd)))
    A('v_lshlrev_b32 %s, 2, %s' % (vr(acc1), vr(v_g)))
    A('v_sub_u32 %s, %s, %s' % (vr(va_pg), vr(va_pd), vr(acc1)))
    A('v_lshrrev_b32 %s, 1, %s' % (vr(acc1), vr(v_g)))
    A('v_lshl_add_u32 %s, %s, 14, %s' % (vr(va_pg), vr(acc1), vr(va_pg)))
    A('v_and_b32 %s, 1, %s' % (vr(acc1), vr(v_g)))
    A('v_lshl_add_u32 %s, %s, 28, %s' % (vr(va_pg), vr(acc1), vr(va_pg)))
    kv_wait('0')
    stamp(9)

    ool = []

    def poll(n, load, base, tag, on_ok=None, back=0):
        Lk = [A.uid('poll%s%d' % (tag, k)) for k in range(n)]
        Lc = [A.uid('chk%s%d' % (tag, k)) for k in range(n)]
        Lo = [A.uid('ok%s%d' % (tag, k)) for k in range(n)]
        Lfs = [A.uid('pollf%s%d' % (tag, k)) for k in range(n)]

        def issue(m):
            A.label(Lk[m])
            if back:
                A('s_sleep %d' % back)
            for k in range(m, n):
                A(load(k))
            A('s_add_u32 %s, %s, 1' % (sr(s_cnt), sr(s_cnt)))
            A('s_cmp_gt_u32 %s, %s' % (sr(s_cnt), sr(s_lim)))
            A('s_cbranch_scc1 ' + Lfs[m])
        A('s_mov_b32 %s, 0' % sr(s_cnt))
        issue(0)
        for m in range(n):
            A.label(Lc[m])
            A('s_waitcnt vmcnt(%d)' % (n - 1 - m))
            b = base + 4 * m
            A('v_max3_u32 %s, %s, %s, %s' % (vr(v_t[0]), vr(b), vr(b + 1), vr(b + 2)))
            A('v_max_u32 %s, %s, %s' % (vr(v_t[0]), vr(v_t[0]), vr(b + 3)))
            A('v_cmp_eq_u32 vcc, -1, %s' % vr(v_t[0]))
            A('s_cbranch_vccnz ' + Lk[m])
            A.label(Lo[m])
            if on_ok:
                on_ok(m)

        def tail():
            for m in range(1, n):
                issue(m)
                A('s_branch ' + Lc[m])
            for m in range(n):
                A.label(Lfs[m])
                A('s_mov_b32 %s, 0' % sr(s_lim))
                A('s_waitcnt vmcnt(0)')
                A('s_branch ' + Lo[m])
        ool.append(tail)

    def smf(acc, a, w):
        return 'v_smfmac_f32_16x16x64_bf16 %s, %s, %s, %s' % (vr(acc, 4), vr(a, 4), ar(w, 8), vr(v_idx))

    def okA(k):
        for tl in range(4):
            A(smf(AC + 4 * tl, M + 4 * k, W1 + 8 * (k * 4 + tl)))

    def pollA2():
        ld = lambda k: 'buffer_load_dwordx4 %s, %s, %s, %s offen offset:%d sc1' % (vr(M + 4 * k, 4), vr(va_memr), sr(SRD_WS, 4), sr(s_slot), k * 1024)
        Lr = [A.uid('rA%d' % k) for k in range(4)]
        Lo = [A.uid('oA%d' % k) for k in range(4)]

        def chk(k):
            b = M + 4 * k
            return ['s_waitcnt vmcnt(%d)' % (3 - k),
                    'v_max3_u32 %s, %s, %s, %s' % (vr(v_t[0]), vr(b), vr(b + 1), vr(b + 2)),
                    'v_max_u32 %s, %s, %s' % (vr(v_t[0]), vr(v_t[0]), vr(b + 3)),
                    'v_cmp_eq_u32 vcc, -1, %s' % vr(v_t[0])]
        A('s_mov_b32 %s, 1' % sr(s_cnt))
        for k in range(4):
            A(ld(k))
        for t in chk(0):
            A(t)
        for k in range(4):
            A('s_cbranch_vccnz ' + Lr[k])
            A.label(Lo[k])
            c = chk(k + 1) if k < 3 else []
            for tl in range(4):
                A(smf(AC + 4 * tl, M + 4 * k, W1 + 8 * (k * 4 + tl)))
                if c and tl < 3:
                    if tl == 0:
                        A(c.pop(0))
                    A(c.pop(0))

        def tail():
            for k in range(4):
                A.label(Lr[k])
                for m in range(k, 4):
                    A(ld(m))
                A('s_add_u32 %s, %s, 1' % (sr(s_cnt), sr(s_cnt)))
                for t in chk(k):
                    A(t)
                A('s_cbranch_vccz ' + Lo[k])
                A('s_cmp_le_u32 %s, %s' % (sr(s_cnt), sr(s_lim)))
                A('s_cbranch_scc1 ' + Lr[k])
                A('s_mov_b32 %s, 0' % sr(s_lim))
                A('s_branch ' + Lo[k])
        ool.append(tail)

    def advance():
        A('s_add_u32 %s, %s, 1' % (sr(s_step), sr(s_step)))
        A('s_mov_b32 %s, %s' % (sr(s_slotp), sr(s_slot)))
        A('s_mov_b32 %s, %s' % (sr(s_outp), sr(s_out)))
        A('s_mov_b32 %s, %s' % (sr(s_slot), sr(s_slot1)))
        A('s_mov_b32 %s, %s' % (sr(s_slot1), sr(s_slot2)))
        A('s_add_u32 %s, %s, 0x20000' % (sr(s_slot2), sr(s_slot2)))
        A('s_and_b32 %s, %s, 0x7ffff' % (sr(s_slot2), sr(s_slot2)))
        A('s_add_u32 %s, %s, 0x20000' % (sr(s_out), sr(s_out)))
        A('s_lshl_b32 %s, %s, 1' % (sr(s_ps), sr(s_slot)))
        A('s_lshl_b32 %s, %s, 1' % (sr(s_ps2), sr(s_slot2)))
        if stamps:
            A('s_add_u32 %s, %s, 64' % (sr(s_stl), sr(s_stl)))

    def ha_write(tl):
        return ['v_permlane32_swap_b32 %s, %s' % (vr(AC + 4 * tl), vr(AC + 4 * tl + 2)),
                'v_permlane32_swap_b32 %s, %s' % (vr(AC + 4 * tl + 1), vr(AC + 4 * tl + 3)),
                'v_pk_add_f32 %s, %s, %s' % (vr(HA + 2 * tl, 2), vr(AC + 4 * tl, 2), vr(AC + 4 * tl + 2, 2)),
                'ds_write_b64 %s, %s offset:%d' % (vr(va_rw), vr(HA + 2 * tl, 2), tl * 512)]

    def kv_stuff():
        L_kvok, L_kvslow, L_nokv, L_dokv = A.uid('kvok'), A.uid('kvslow'), A.uid('nokv'), A.uid('dokv')
        A('v_cmp_gt_u32 vcc, 32, %s' % vr(v_kvf))
        A('s_cbranch_vccnz ' + L_kvslow)
        A.label(L_kvok)
        A('s_bitcmp1_b64 %s, %s' % (sr(s_kvm, 2), sr(s_step)))
        A('s_cbranch_scc1 ' + L_dokv)
        A.label(L_nokv)

        def t():
            A.label(L_kvslow)
            kv_wait('s')
            A('s_branch ' + L_kvok)
            A.label(L_dokv)
            A('s_add_u32 %s, %s, 2' % (sr(s_kvo), sr(s_step)))
            A('s_lshr_b32 %s, %s, 3' % (sr(s_kvo), sr(s_kvo)))
            A('s_lshl_b32 %s, %s, 9' % (sr(s_kvo), sr(s_kvo)))
            A('s_add_u32 %s, %s, %d' % (sr(s_kvo), sr(s_kvo), DBG_KV * 128))
            A('buffer_load_dword %s, %s, %s, %s offen sc1' % (vr(v_kvf), vr(v_sh), sr(SRD_WS, 4), sr(s_kvo)))
            A('s_branch ' + L_nokv)
        ool.append(t)

    L_lastR, L_lastN, L_fin = name + '_lastR', name + '_lastN', name + '_fin'

    def loop(red, fl):
        tg = ('r' if red else 'n') + ('f' if fl else '')
        ISC = ' sc1' if fl else ''
        nacc = 32 if red else 16
        L_st, L_B = name + '_step' + tg, name + '_B' + tg

        def zero_acc():
            for i in range(nacc):
                A('v_mov_b32 %s, 0' % vr(AC + i))
        A.label(name + '_first' + tg)
        if not red:
            for t in pf_ops():
                A(t)
        zero_acc()
        for k in range(4):
            okA(k)
        A('s_branch ' + L_B)
        A.label(L_st)
        zero_acc()
        if A2:
            pollA2()
        else:
            poll(4, lambda k: 'buffer_load_dwordx4 %s, %s, %s, %s offen offset:%d sc1' % (vr(M + 4 * k, 4), vr(va_memr), sr(SRD_WS, 4), sr(s_slot), k * 1024), M, 'A', okA)
        A.label(L_B)
        stamp(0)
        vs = [smf(AC + 16 + 4 * tv, M + 4 * k, W2 + 8 * (k * 4 + tv)) for tv in range(4) for k in range(4)] if red else []
        ne = VS[0]
        for tl in range(4):
            h = ha_write(tl)
            if vs and ne > 0:
                A(vs.pop(0))
                ne -= 1
            A(h[0])
            A(h[1])
            if vs and ne > 3 - tl:
                A(vs.pop(0))
                ne -= 1
            A(h[2])
            A(h[3])
        for _ in range(VS[1]):
            if vs:
                A(vs.pop(0))
        A('s_waitcnt lgkmcnt(0)')
        A('s_barrier')
        A('ds_read_b128 %s, %s' % (vr(RD, 4), vr(va_rr)))
        A('ds_read_b128 %s, %s offset:4096' % (vr(RD + 4, 4), vr(va_rr)))
        for _ in range(VS[2]):
            if vs:
                A(vs.pop(0))
        A('s_waitcnt lgkmcnt(0)')
        A('v_pk_add_f32 %s, %s, %s' % (vr(RD, 2), vr(RD, 2), vr(RD + 4, 2)))
        A('v_pk_add_f32 %s, %s, %s' % (vr(RD + 2, 2), vr(RD + 2, 2), vr(RD + 6, 2)))
        A('v_permlane32_swap_b32 %s, %s' % (vr(RD), vr(RD + 1)))
        A('v_permlane32_swap_b32 %s, %s' % (vr(RD + 2), vr(RD + 3)))
        A('v_add_f32 %s, %s, %s' % (vr(v_t[0]), vr(RD), vr(RD + 1)))
        A('v_add_f32 %s, %s, %s' % (vr(v_t[1]), vr(RD + 2), vr(RD + 3)))
        A('v_cvt_pk_bf16_f32 %s, %s, %s' % (vr(v_t[2]), vr(v_t[0]), vr(v_t[1])))
        A('v_pk_min_u16 %s, %s, %s' % (vr(v_t[2]), vr(v_t[2]), sr(s_fffe)))
        A('buffer_store_dword %s, %s, %s, %s offen%s' % (vr(v_t[2]), vr(va_qks), sr(SRD_WS, 4), sr(s_slot), ISC))
        if red:
            for tv in range(4):
                while vs and len(vs) > 4 * (3 - tv) - 4:
                    A(vs.pop(0))
                for t in ha_write(4 + tv):
                    A(t)
            A('s_waitcnt lgkmcnt(0)')
            A('s_barrier')
            A('ds_read_b128 %s, %s offset:2048' % (vr(RD, 4), vr(va_rr)))
            A('ds_read_b128 %s, %s offset:6144' % (vr(RD + 4, 4), vr(va_rr)))
            A('s_waitcnt lgkmcnt(0)')
            A('v_pk_add_f32 %s, %s, %s' % (vr(RD, 2), vr(RD, 2), vr(RD + 4, 2)))
            A('v_pk_add_f32 %s, %s, %s' % (vr(RD + 2, 2), vr(RD + 2, 2), vr(RD + 6, 2)))
            A('v_permlane32_swap_b32 %s, %s' % (vr(RD), vr(RD + 2)))
            A('v_permlane32_swap_b32 %s, %s' % (vr(RD + 1), vr(RD + 3)))
            A('v_pk_add_f32 %s, %s, %s' % (vr(RD, 2), vr(RD, 2), vr(RD + 2, 2)))
            A('v_cvt_pk_bf16_f32 %s, %s, %s' % (vr(v_t[3]), vr(RD), vr(RD + 1)))
            A('v_pk_min_u16 %s, %s, %s' % (vr(v_t[3]), vr(v_t[3]), sr(s_fffe)))
            A('buffer_store_dword %s, %s, %s, %s offen%s' % (vr(v_t[3]), vr(va_vs), sr(SRD_WS, 4), sr(s_slot), ISC))
            stamp(1)
            A('buffer_load_dwordx4 %s, %s, %s, %s offen sc1' % (vr(RB, 4), vr(va_rb), sr(SRD_WS, 4), sr(s_slotp)))
            A('v_mov_b32 %s, %s' % (vr(v_junk2), sr(s_step)))
            A('s_waitcnt vmcnt(0)')
            A('s_barrier')
            A('buffer_store_dwordx4 %s, %s, %s, %s offen sc1' % (vr(RB, 4), vr(va_cp), sr(SRD_WS, 4), sr(s_outp)))
            A('buffer_store_dword %s, %s, %s, 0 offen sc1' % (vr(v_junk2), vr(va_prog), sr(SRD_WS, 4)))
            A('s_cmp_ge_u32 %s, %d' % (sr(s_step), nsteps - 1))
            A('s_cbranch_scc1 ' + L_lastR)
            A('s_add_u32 %s, %s, 0x40000' % (sr(s_kx), sr(s_kx)))
            kv_stuff()
            A('buffer_load_dword %s, %s, %s, %s offen sc1' % (vr(v_junk), vr(va_warm), sr(SRD_WS, 4), sr(s_kx)))
            A('buffer_store_dwordx4 %s, %s, %s, %s offen sc1' % (vr(v_m1, 4), vr(va_pz), sr(SRD_WS, 4), sr(s_ps2)))
            A('buffer_store_dwordx4 %s, %s, %s, %s offen%s' % (vr(v_m1, 4), vr(va_rb), sr(SRD_WS, 4), sr(s_slot2), ISC))
            A('buffer_store_dword %s, %s, %s, %s offen%s' % (vr(v_m1), vr(va_mems), sr(SRD_WS, 4), sr(s_slot2), ISC))
            if DELAY_E:
                A('s_sleep %d' % DELAY_E)
            if HINT:
                Lh, Lhd = A.uid('h'), A.uid('hd')
                A('s_mov_b32 %s, 0' % sr(s_cnt))
                A.label(Lh)
                A('buffer_load_dword %s, %s, %s, 0 offen sc1' % (vr(v_t[0]), vr(va_flg), sr(SRD_WS, 4)))
                A('s_add_u32 %s, %s, 1' % (sr(s_cnt), sr(s_cnt)))
                A('s_cmp_gt_u32 %s, %s' % (sr(s_cnt), sr(s_lim)))
                A('s_cbranch_scc1 ' + Lhd)
                A('s_waitcnt vmcnt(0)')
                A('v_cmp_ne_u32 vcc, %s, %s' % (sr(s_step), vr(v_t[0])))
                A('s_cbranch_vccnz ' + Lh)
                A.label(Lhd)
                if HINT > 1:
                    A('s_sleep %d' % (HINT - 1))

            def okE(k):
                A('v_mfma_f32_16x16x32_bf16 %s, %s, %s, %s' % (vr(LS, 4), vr(PR + 4 * k, 4), vr(v_sel, 4), '0' if k == 0 else vr(LS, 4)))
            poll(2, lambda k: 'buffer_load_dwordx4 %s, %s, %s, %s offen offset:%d sc1' % (vr(PR + 4 * k, 4), vr(va_pr), sr(SRD_WS, 4), sr(s_ps), k * 1024), PR, 'E', okE, back=E_BACK)
            stamp(6)
            advance()
            A('v_cvt_pk_bf16_f32 %s, %s, %s' % (vr(v_t[2]), vr(LS), vr(LS + 1)))
            A('v_cvt_pk_bf16_f32 %s, %s, %s' % (vr(v_t[3]), vr(LS + 2), vr(LS + 3)))
            A('v_cndmask_b32 %s, %s, %s, %s' % (vr(v_t[2]), vr(v_t[2]), vr(v_t[3]), sr(s_hf, 2)))
            A('v_pk_min_u16 %s, %s, %s' % (vr(v_t[2]), vr(v_t[2]), sr(s_fffe)))
            A('buffer_store_dword %s, %s, %s, %s offen%s' % (vr(v_t[2]), vr(va_mems), sr(SRD_WS, 4), sr(s_slot), ISC))
            if RED_SLEEP:
                A('s_sleep %d' % RED_SLEEP)
            A('s_branch ' + L_st)
            return
        stamp(1)
        A('s_cmp_ge_u32 %s, %d' % (sr(s_step), nsteps - 1))
        A('s_cbranch_scc1 ' + L_lastN)
        A('s_add_u32 %s, %s, 0x40000' % (sr(s_kx), sr(s_kx)))
        A('s_add_u32 %s, %s, 0x40000' % (sr(s_kx2), sr(s_kx2)))
        for i in range(4):
            A('v_mov_b32 %s, 0' % vr(acc1 + i))
            A('v_mov_b32 %s, 0' % vr(acc2 + i))
        A('v_mov_b32 %s, %s' % (vr(v_junk2), sr(s_step)))
        if DELAY_C:
            A('s_sleep %d' % DELAY_C)
        Lc, Lcf, Lcd = A.uid('pC'), A.uid('pCf'), A.uid('pCd')
        A('s_mov_b32 %s, 1' % sr(s_cnt))
        A.label(Lc)
        for k in range(4):
            A('buffer_load_dwordx4 %s, %s, %s, %s offen offset:%d sc1' % (vr(QK + 4 * k, 4), vr(va_qkr), sr(SRD_WS, 4), sr(s_slot), k * 1024))
        for t in range(4):
            A('s_waitcnt vmcnt(%d)' % (3 - t))
            q = QK + 4 * t
            A('v_mfma_f32_16x16x32_bf16 %s, %s, %s, %s' % (vr(SA, 4), vr(KXA + 4 * t, 4), vr(q, 4), vr(v_maskx, 4) if t == 0 else vr(SA, 4)))
            if t == 0:
                A('v_max3_u32 %s, %s, %s, %s' % (vr(v_t[0]), vr(q), vr(q + 1), vr(q + 2)))
            else:
                A('v_max3_u32 %s, %s, %s, %s' % (vr(v_t[0]), vr(v_t[0]), vr(q), vr(q + 1)))
            A('v_mfma_f32_16x16x32_bf16 %s, %s, %s, %s' % (vr(SB, 4), vr(KXB + 4 * t, 4), vr(q, 4), vr(v_maskx, 4) if t == 0 else vr(SB, 4)))
            if t == 0:
                A('v_max_u32 %s, %s, %s' % (vr(v_t[0]), vr(v_t[0]), vr(q + 3)))
            else:
                A('v_max3_u32 %s, %s, %s, %s' % (vr(v_t[0]), vr(v_t[0]), vr(q + 2), vr(q + 3)))
            if t == 3:
                A('v_cmp_eq_u32 vcc, -1, %s' % vr(v_t[0]))
            A('v_mfma_f32_16x16x32_bf16 %s, %s, %s, %s' % (vr(SM, 4), vr(q, 4), vr(q, 4), vr(v_mask, 4) if t == 0 else vr(SM, 4)))
        A('s_cbranch_vccnz ' + Lcf)
        A.label(Lcd)

        def tailC():
            A.label(Lcf)
            A('s_add_u32 %s, %s, 1' % (sr(s_cnt), sr(s_cnt)))
            A('s_cmp_le_u32 %s, %s' % (sr(s_cnt), sr(s_lim)))
            A('s_cbranch_scc1 ' + Lc)
            A('s_mov_b32 %s, 0' % sr(s_lim))
            A('s_branch ' + Lcd)
        ool.append(tailC)
        stamp(2)

        def vload(k):
            return 'buffer_load_dwordx4 %s, %s, %s, %s offen offset:%d sc1' % (vr(VMR + 4 * k, 4), vr(va_vmr), sr(SRD_WS, 4), sr(s_slot), k * 1024)
        side = pf_ops() if not NOPF else []
        s = [SA + i for i in range(12)]
        sm = []
        sm.append('v_max3_f32 %s, %s, %s, %s' % (vr(v_mx), vr(s[0]), vr(s[1]), vr(s[2])))
        sm.append('v_max3_f32 %s, %s, %s, %s' % (vr(v_mx2), vr(s[3]), vr(s[4]), vr(v_bias)))
        sm.append('v_max3_f32 %s, %s, %s, %s' % (vr(v_mx), vr(v_mx), vr(s[5]), vr(s[6])))
        sm.append('v_max3_f32 %s, %s, %s, %s' % (vr(v_mx2), vr(v_mx2), vr(s[7]), vr(s[8])))
        sm.append('v_max3_f32 %s, %s, %s, %s' % (vr(v_mx), vr(v_mx), vr(s[9]), vr(s[10])))
        sm.append('v_max3_f32 %s, %s, %s, %s' % (vr(v_mx), vr(v_mx), vr(v_mx2), vr(s[11])))
        for sw in ('v_permlane32_swap_b32', 'v_permlane16_swap_b32'):
            sm.append('v_mov_b32 %s, %s' % (vr(v_mx2), vr(v_mx)))
            sm.append('%s %s, %s' % (sw, vr(v_mx), vr(v_mx2)))
            sm.append('v_max_f32 %s, %s, %s' % (vr(v_mx), vr(v_mx), vr(v_mx2)))
        sm.append('v_mul_f32 %s, %s, %s' % (vr(v_mx), sr(s_c), vr(v_mx)))
        for i in range(8):
            sm.append('v_fma_f32 %s, %s, %s, -%s' % (vr(s[i]), vr(s[i]), sr(s_c), vr(v_mx)))
        for i in range(8):
            sm.append('v_exp_f32 %s, %s' % (vr(s[i]), vr(s[i])))
            if i >= 2 and i % 2 == 0:
                sm.append('v_cvt_pk_bf16_f32 %s, %s, %s' % (vr(PX + i // 2 - 1), vr(s[i - 2]), vr(s[i - 1])))
        sm.append('v_fma_f32 %s, %s, %s, -%s' % (vr(s[8]), vr(s[8]), sr(s_c), vr(v_mx)))
        sm.append('v_cvt_pk_bf16_f32 %s, %s, %s' % (vr(PX + 3), vr(s[6]), vr(s[7])))
        sm.append('v_fma_f32 %s, %s, %s, -%s' % (vr(s[9]), vr(s[9]), sr(s_c), vr(v_mx)))
        for i, m in enumerate(sm):
            if i == DELAY_V:
                A(vload(0))
                A(vload(1))
            A(m)
        stamp(3)

        def dpp8(d, srcr):
            return 'v_mov_b32_dpp %s, %s row_shr:8 row_mask:0xf bank_mask:0xf bound_ctrl:0' % (vr(d), vr(srcr))
        t = v_t
        sh = []
        for i in range(10, 12):
            sh.append('v_fma_f32 %s, %s, %s, -%s' % (vr(s[i]), vr(s[i]), sr(s_c), vr(v_mx)))
        for i in range(4):
            sh.append(dpp8(PXH + i, PX + i))
        for i in range(8, 12):
            sh.append('v_exp_f32 %s, %s' % (vr(s[i]), vr(s[i])))
        for i in range(2):
            sh.append('v_cvt_pk_bf16_f32 %s, %s, %s' % (vr(PM + i), vr(s[8 + 2 * i]), vr(s[9 + 2 * i])))
        sh.append('s_waitcnt vmcnt(0)')
        sh.append('v_max3_u32 %s, %s, %s, %s' % (vr(t[0]), vr(VMR), vr(VMR + 1), vr(VMR + 2)))
        sh.append('v_max3_u32 %s, %s, %s, %s' % (vr(t[1]), vr(VMR + 3), vr(VMR + 4), vr(VMR + 5)))
        sh.append(dpp8(PMH, PM))
        sh.append(dpp8(PMH + 1, PM + 1))
        sh.append('v_max3_u32 %s, %s, %s, %s' % (vr(t[0]), vr(t[0]), vr(VMR + 6), vr(VMR + 7)))
        sh.append('v_max_u32 %s, %s, %s' % (vr(t[0]), vr(t[0]), vr(t[1])))
        sh.append('v_permlane32_swap_b32 %s, %s' % (vr(PMH), vr(PM)))
        sh.append('v_permlane32_swap_b32 %s, %s' % (vr(PMH + 1), vr(PM + 1)))
        sh.append('v_cmp_eq_u32 vcc, -1, %s' % vr(t[0]))
        mf = ['v_mfma_f32_16x16x32_bf16 %s, %s, %s, 0' % (vr(LS, 4), vr(v_ones, 4), vr(PX, 4))]
        for a in range(4):
            mf.append('v_mfma_f32_16x16x32_bf16 %s, %s, %s, 0' % (vr(O + 4 * a, 4), vr(VXR + 4 * a, 4), vr(PX, 4)))
        for a in range(4):
            mf.append('v_mfma_f32_16x16x32_bf16 %s, %s, %s, %s' % (vr(O + 4 * a, 4), vr(VXR + 4 * (a + 4), 4), vr(PXH, 4), vr(O + 4 * a, 4)))
        per = [3, 3, 2, 2, 2, 2, 3, 3, 1]
        for i, m in enumerate(mf):
            A(m)
            for _ in range(per[i]):
                if sh:
                    x = sh.pop(0)
                    if x.startswith('s_waitcnt'):
                        A(x)
                        x = sh.pop(0)
                    A(x)
        assert not sh
        Lv_ok, Lv_slow = A.uid('vok'), A.uid('vslow')
        A('s_cbranch_vccnz ' + Lv_slow)
        A.label(Lv_ok)

        def tailV():
            A.label(Lv_slow)
            poll(2, vload, VMR, 'V')
            A('s_branch ' + Lv_ok)
        ool.append(tailV)
        A('v_mfma_f32_16x16x16_bf16 %s, %s, %s, %s' % (vr(LS, 4), vr(v_ones, 2), vr(PM, 2), vr(LS, 4)))
        for a in range(4):
            A('v_mfma_f32_16x16x16_bf16 %s, %s, %s, %s' % (vr(O + 4 * a, 4), vr(VMR + 2 * a, 2), vr(PM, 2), vr(O + 4 * a, 4)))
        A('v_rcp_f32 %s, %s' % (vr(v_l), vr(LS)))
        A('v_mov_b32_dpp %s, %s row_shr:8 row_mask:0xf bank_mask:0xc' % (vr(v_l), vr(v_l)))
        for a in range(4):
            for r in range(0, 4, 2):
                A('v_pk_mul_f32 %s, %s, %s op_sel_hi:[1,0]' % (vr(O + 4 * a + r, 2), vr(O + 4 * a + r, 2), vr(v_l, 2)))
            A('v_cvt_pk_bf16_f32 %s, %s, %s' % (vr(XY + a), vr(O + 4 * a), vr(O + 4 * a + 1)))
            A('v_cvt_pk_bf16_f32 %s, %s, %s' % (vr(XY + 4 + a), vr(O + 4 * a + 2), vr(O + 4 * a + 3)))
        A('ds_write_b128 %s, %s' % (vr(va_ow), vr(XY, 4)))
        A('ds_write_b128 %s, %s offset:128' % (vr(va_ow), vr(XY + 4, 4)))
        A('s_waitcnt lgkmcnt(0)')
        stamp(4)
        A('s_barrier')
        if HINT:
            A('buffer_store_dword %s, %s, %s, 0 offen%s' % (vr(v_junk2), vr(va_flg), sr(SRD_WS, 4), ISC))
        for k in range(8):
            A('ds_read_b128 %s, %s offset:%d' % (vr(G + 4 * k, 4), vr(va_or), k * 1024))
        def epi3(acc, va):
            return ['v_permlane32_swap_b32 %s, %s' % (vr(acc), vr(acc + 2)),
                    'v_permlane32_swap_b32 %s, %s' % (vr(acc + 1), vr(acc + 3)),
                    'v_pk_add_f32 %s, %s, %s' % (vr(acc, 2), vr(acc, 2), vr(acc + 2, 2)),
                    'v_cvt_pk_bf16_f32 %s, %s, %s' % (vr(acc), vr(acc), vr(acc + 1)),
                    'v_pk_min_u16 %s, %s, %s' % (vr(acc), vr(acc), sr(s_fffe)),
                    'buffer_store_dword %s, %s, %s, %s offen sc1' % (vr(acc), vr(va), sr(SRD_WS, 4), sr(s_ps))]
        if S3 == 2:
            D = VMR
            for k in range(8):
                A('s_waitcnt lgkmcnt(%d)' % (7 - k))
                A(smf(acc1, G + 4 * k, W2 + 8 * (2 * k)))
                if k < 2:
                    A(smf(acc2, G + 4 * k, W2 + 8 * (2 * k + 1)))
            e1 = epi3(acc1, va_pd)[:3] + ['v_cvt_pk_bf16_f32 %s, %s, %s' % (vr(D), vr(acc1), vr(acc1 + 1)),
                                          'v_pk_min_u16 %s, %s, %s' % (vr(D), vr(D), sr(s_fffe))]
            for k in range(2, 8):
                A(smf(acc2, G + 4 * k, W2 + 8 * (2 * k + 1)))
                if k >= 4:
                    for _ in range(2):
                        if e1:
                            A(e1.pop(0))
            for t_ in e1 + epi3(acc2, va_pw)[:3]:
                A(t_)
            A('v_cvt_pk_bf16_f32 %s, %s, %s' % (vr(D + 2), vr(acc2), vr(acc2 + 1)))
            A('v_pk_min_u16 %s, %s, %s' % (vr(D + 2), vr(D + 2), sr(s_fffe)))
            A('v_permlane32_swap_b32 %s, %s' % (vr(D), vr(D + 2)))
            A('v_permlane16_swap_b32 %s, %s' % (vr(D), vr(D + 1)))
            A('v_permlane16_swap_b32 %s, %s' % (vr(D + 2), vr(D + 3)))
            A('buffer_store_dwordx4 %s, %s, %s, %s offen sc1' % (vr(D, 4), vr(va_pg), sr(SRD_WS, 4), sr(s_ps)))
        elif S3:
            for k in range(8):
                A('s_waitcnt lgkmcnt(%d)' % (7 - k))
                A(smf(acc1, G + 4 * k, W2 + 8 * (2 * k)))
                if k < 2:
                    A(smf(acc2, G + 4 * k, W2 + 8 * (2 * k + 1)))
            e1 = epi3(acc1, va_pd)
            for k in range(2, 8):
                A(smf(acc2, G + 4 * k, W2 + 8 * (2 * k + 1)))
                if k >= 4:
                    for _ in range(2):
                        if e1:
                            A(e1.pop(0))
            for t_ in e1 + epi3(acc2, va_pw):
                A(t_)
        else:
            for k in range(8):
                A('s_waitcnt lgkmcnt(%d)' % (7 - k))
                A(smf(acc1, G + 4 * k, W2 + 8 * (2 * k)))
                A(smf(acc2, G + 4 * k, W2 + 8 * (2 * k + 1)))
            for t_ in epi3(acc1, va_pd) + epi3(acc2, va_pw):
                A(t_)
        stamp(5)
        kv_stuff()
        for x in side:
            A(x)
        advance()
        if NOE_SLEEP:
            A('s_sleep %d' % NOE_SLEEP)
        A('s_branch ' + L_st)

    L_safe = A.uid('safe')
    A('s_cmp_lg_u32 s%d, 0' % S_MODE)
    A('s_cbranch_scc1 ' + L_safe)
    for fl in (False, True):
        if fl:
            A.label(L_safe)
        A('s_cmp_lg_u32 %s, 0' % sr(s_red))
        A('s_cbranch_scc1 ' + name + '_firstn' + ('f' if fl else ''))
        loop(True, fl)
        loop(False, fl)
        while ool:
            ool.pop(0)()
    A.label(L_lastN)
    A('s_waitcnt vmcnt(0)')
    A('s_barrier')
    A('s_cmp_lg_u32 %s, 0' % sr(s_w))
    A('s_cbranch_scc1 ' + L_fin)
    A.label(L_lastR)
    A('s_cmp_eq_u32 %s, 2' % sr(s_w))
    A('s_cbranch_scc1 ' + L_fin)
    A('buffer_load_dwordx4 %s, %s, %s, %s offen sc1' % (vr(M, 4), vr(va_rb), sr(SRD_WS, 4), sr(s_slot)))
    A('s_waitcnt vmcnt(0)')
    A('buffer_store_dwordx4 %s, %s, %s, %s offen sc1' % (vr(M, 4), vr(va_cp), sr(SRD_WS, 4), sr(s_out)))
    A.label(L_fin)
    if stamps:
        A('s_waitcnt lgkmcnt(0)')
        A('v_lshlrev_b32 %s, 4, %s' % (vr(v_t[0]), vr(v_lane)))
        A('s_lshl_b32 %s, %s, 12' % (sr(s_t2), sr(s_w)))
        A('s_add_u32 %s, %s, 65536' % (sr(s_t2), sr(s_t2)))
        A('v_add_u32 %s, %s, %s' % (vr(v_t[1]), sr(s_t2), vr(v_t[0])))
        for k in range(4):
            A('ds_read_b128 %s, %s offset:%d' % (vr(F + 4 * k, 4), vr(v_t[1]), k * 1024))
        A('s_waitcnt lgkmcnt(0)')
        for k in range(4):
            A('buffer_store_dwordx4 %s, %s, %s, %s offen offset:%d' % (vr(F + 4 * k, 4), vr(v_t[0]), sr(SRD_WS, 4), sr(s_stamp), k * 1024))
    A('s_waitcnt vmcnt(0) lgkmcnt(0)')
    A('s_barrier')
    A('s_cmp_lg_u32 %s, 0' % sr(s_w))
    A('s_cbranch_scc1 ' + L_work)
    A('s_lshr_b32 %s, %s, 1' % (sr(s_t0), sr(s_x)))
    A('s_lshl_b32 %s, %s, 7' % (sr(s_t0), sr(s_t0)))
    A('s_add_u32 %s, %s, 0x%x' % (sr(s_t0), sr(s_t0), CTR + DBG_FIN * 128))
    A('v_mov_b32 %s, %s' % (vr(v_t[0]), sr(s_t0)))
    A('v_mov_b32 %s, 1' % vr(v_t[1]))
    A('s_mov_b64 exec, 1')
    A('buffer_atomic_add %s, %s, %s, 0 offen sc1' % (vr(v_t[1]), vr(v_t[0]), sr(SRD_WS, 4)))
    A('s_mov_b64 exec, -1')
    A('s_branch ' + L_work)
    A.label(L_exit)
    A('s_endpgm')
    A.label(L_work)
    worker(A, name)
    return dict(vgpr=512, accum=256, sgpr=102)
```

```python
from asmlib import *
from layout import *
from gemm import Gemm
import struct


def f32bits(x):
    return struct.unpack('<I', struct.pack('<f', x))[0]


def mk_srd(A, dst, ptr, nbytes):
    A('s_mov_b32 %s, %s' % (sr(dst), sr(ptr)))
    A('s_and_b32 %s, %s, 0xffff' % (sr(dst + 1), sr(ptr + 1)))
    A('s_mov_b32 %s, 0x%x' % (sr(dst + 2), nbytes))
    A('s_mov_b32 %s, 0x00020000' % sr(dst + 3))


def load_ptrs(A, S):
    P = S.alloc(28, 4)
    A('s_load_dwordx16 %s, s[0:1], 0' % sr(P, 16))
    A('s_load_dwordx8 %s, s[0:1], 64' % sr(P + 16, 8))
    A('s_load_dwordx2 %s, s[0:1], 96' % sr(P + 24, 2))
    return {k: P + v // 4 for k, v in KA.items()}


def gen_qkv(A, name):
    S = Regs('s', 4, 100)
    V = Regs('v', 1, 256)
    A.raw('.p2align 8')
    A.label(name)
    L_exit = name + '_exit'
    A('s_cmp_ge_u32 s2, 480')
    A('s_cbranch_scc1 ' + L_exit)
    P = load_ptrs(A, S)
    G = Gemm(A, S, V, 4, 4)
    SRD_WS = S.alloc(4, 4)
    s_w, s_nt, s_mt, s0, s1, s2_, s_base, s_tbs, s_or = [S.alloc() for _ in range(9)]
    s_pp = S.alloc(2, 2)
    v_lane, v_l16 = V.alloc(), V.alloc()
    A('v_and_b32 %s, 63, v0' % vr(v_lane))
    A('v_lshrrev_b32 %s, 6, v0' % vr(v_l16))
    A('v_readfirstlane_b32 %s, %s' % (sr(s_w), vr(v_l16)))
    A('v_lshlrev_b32 %s, 4, %s' % (vr(v_l16), vr(v_lane)))
    A('s_and_b32 %s, s2, 7' % sr(s0))
    A('s_lshr_b32 %s, s2, 3' % sr(s1))
    A('s_and_b32 %s, %s, 7' % (sr(s_mt), sr(s1)))
    A('s_and_b32 %s, %s, 0xf8' % (sr(s_nt), sr(s1)))
    A('s_add_u32 %s, %s, %s' % (sr(s_nt), sr(s_nt), sr(s0)))
    L1 = A.uid('dec')
    A('s_cmp_lt_u32 %s, 56' % sr(s1))
    A('s_cbranch_scc1 ' + L1)
    A('s_lshr_b32 %s, %s, 1' % (sr(s_nt), sr(s0)))
    A('s_add_u32 %s, %s, 56' % (sr(s_nt), sr(s_nt)))
    A('s_and_b32 %s, %s, 1' % (sr(s0), sr(s0)))
    A('s_lshl_b32 %s, %s, 2' % (sr(s0), sr(s0)))
    A('s_add_u32 %s, %s, %s' % (sr(s_mt), sr(s_mt), sr(s0)))
    A.label(L1)
    A('s_waitcnt lgkmcnt(0)')
    mk_srd(A, SRD_WS, P['ws'], WS_BYTES)
    A('s_lshl_b32 %s, %s, 19' % (sr(G.s_xo), sr(s_mt)))
    A('s_mov_b32 %s, 128' % sr(G.s_xs))
    A('s_mov_b32 %s, 7' % sr(G.s_n))
    LB, LJ = A.uid('isB'), A.uid('join')
    A('s_cmp_ge_u32 %s, 48' % sr(s_nt))
    A('s_cbranch_scc1 ' + LB)
    A('s_lshr_b32 %s, %s, 4' % (sr(s0), sr(s_nt)))
    A('s_and_b32 %s, %s, 15' % (sr(s1), sr(s_nt)))
    A('s_cmp_eq_u32 %s, 1' % sr(s0))
    A('s_cselect_b32 %s, 1, 0' % sr(s_or))
    A('s_cselect_b64 %s, %s, %s' % (sr(s_pp, 2), sr(P['A_Wv'], 2), sr(P['A_Wk'], 2)))
    A('s_cselect_b32 %s, 0x%x, 0x%x' % (sr(s_base), VX, KX) if False else 's_mov_b32 %s, 0x%x' % (sr(s_base), KX))
    A('s_cselect_b32 %s, 0x%x, %s' % (sr(s_base), VX, sr(s_base)))
    A('s_cmp_eq_u32 %s, 2' % sr(s0))
    A('s_cselect_b64 %s, %s, %s' % (sr(s_pp, 2), sr(P['A_Wq'], 2), sr(s_pp, 2)))
    A('s_cselect_b32 %s, 0x%x, %s' % (sr(s_base), QX, sr(s_base)))
    mk_srd(A, G.SRD_W, s_pp, 1024 * 4096 * 2)
    mk_srd(A, G.SRD_X, P['A_x'], 2048 * 1024 * 2)
    A('s_lshl_b32 %s, %s, 9' % (sr(G.s_wo), sr(s1)))
    A('s_mov_b32 %s, %d' % (sr(G.s_ws), 64 * 8192))
    A('s_mov_b32 %s, %d' % (sr(s_tbs), 128 * 2048))
    A('s_mov_b32 %s, %s' % (sr(s2_), sr(s1)))
    G.setup(v_lane, s_w, (s0, s1), 'nat', 2048, 8192)
    A('s_branch ' + LJ)
    A.label(LB)
    A('s_sub_u32 %s, %s, 48' % (sr(s1), sr(s_nt)))
    A('s_lshr_b32 %s, %s, 2' % (sr(s0), sr(s1)))
    A('s_cmp_eq_u32 %s, 2' % sr(s0))
    A('s_cselect_b32 %s, 1, 0' % sr(s_or))
    A('s_lshl_b32 %s, %s, 22' % (sr(s_base), sr(s0)))
    A('s_add_u32 %s, %s, 0x%x' % (sr(s_base), sr(s_base), QB))
    mk_srd(A, G.SRD_W, P['B_wqkv'], 1024 * 3072 * 2)
    mk_srd(A, G.SRD_X, P['B_x'], 2048 * 1024 * 2)
    A('s_lshl_b32 %s, %s, 9' % (sr(G.s_wo), sr(s1)))
    A('s_mov_b32 %s, %d' % (sr(G.s_ws), 64 * 6144))
    A('s_mov_b32 %s, %d' % (sr(s_tbs), 32 * 2048))
    A('s_and_b32 %s, %s, 3' % (sr(s2_), sr(s1)))
    G.setup(v_lane, s_w, (s0, s1), 'nat', 2048, 6144)
    A.label(LJ)
    A('s_lshr_b32 %s, %s, 1' % (sr(s0), sr(s_w)))
    A('s_lshl_b32 %s, %s, 2' % (sr(s0), sr(s0)))
    A('s_lshl_b32 %s, %s, 3' % (sr(s1), sr(s_mt)))
    A('s_add_u32 %s, %s, %s' % (sr(s0), sr(s0), sr(s1)))
    A('s_mul_i32 %s, %s, %s' % (sr(s0), sr(s0), sr(s_tbs)))
    A('s_add_u32 %s, %s, %s' % (sr(s_base), sr(s_base), sr(s0)))
    A('s_and_b32 %s, %s, 1' % (sr(s0), sr(s_w)))
    A('s_lshl_b32 %s, %s, 13' % (sr(s0), sr(s0)))
    A('s_lshl_b32 %s, %s, 14' % (sr(s1), sr(s2_)))
    A('s_add_u32 %s, %s, %s' % (sr(s_base), sr(s_base), sr(s0)))
    A('s_add_u32 %s, %s, %s' % (sr(s_base), sr(s_base), sr(s1)))
    G.prologue()
    LN, LE = A.uid('orN'), A.uid('epi')
    A('s_cmp_eq_u32 %s, 1' % sr(s_or))
    A('s_cbranch_scc1 ' + LN)
    G.mainloop('T', 't')
    A('s_nop 15')
    A('s_branch ' + LE)
    A.label(LN)
    G.mainloop('N', 'n')
    A.label(LE)
    G.epi_blk(SRD_WS, v_l16, s_base, s_tbs, s0)
    A.label(L_exit)
    A('s_endpgm')
    return dict(vgpr=512, accum=256, sgpr=S.hi)


def gen_out(A, name, mb=2, nb=1, a_only=False, nst=2):
    S = Regs('s', 4, 100)
    V = Regs('v', 1, 128)
    TM, TN = 64 * mb, 64 * nb
    nM, nN = 2048 // TM, 1024 // TN
    nT = nM * nN
    A.raw('.p2align 8')
    A.label(name)
    L_exit = name + '_exit'
    A('s_cmp_ge_u32 s2, %d' % (nT if a_only else 2 * nT))
    A('s_cbranch_scc1 ' + L_exit)
    P = load_ptrs(A, S)
    G = Gemm(A, S, V, mb, nb, nst=nst)
    SRD_O = S.alloc(4, 4)
    s_w, s_nt, s_mt, s0, s1, s_id, s_base = [S.alloc() for _ in range(7)]
    v_lane, v_off = V.alloc(), V.alloc()
    A('v_and_b32 %s, 63, v0' % vr(v_lane))
    A('v_lshrrev_b32 %s, 6, v0' % vr(v_off))
    A('v_readfirstlane_b32 %s, %s' % (sr(s_w), vr(v_off)))
    A('v_and_b32 %s, 31, %s' % (vr(v_off), vr(v_lane)))
    A('v_lshlrev_b32 %s, 12, %s' % (vr(v_off), vr(v_off)))
    A('v_lshrrev_b32 %s, 5, %s' % (vr(G.t[0]), vr(v_lane)))
    A('v_lshl_add_u32 %s, %s, 4, %s' % (vr(v_off), vr(G.t[0]), vr(v_off)))
    A('s_and_b32 %s, s2, %d' % (sr(s_id), nT - 1))
    mper = nM // 8
    A('s_and_b32 %s, %s, 7' % (sr(s0), sr(s_id)))
    A('s_lshr_b32 %s, %s, 3' % (sr(s1), sr(s_id)))
    A('s_and_b32 %s, %s, %d' % (sr(s_nt), sr(s1), nN - 1))
    A('s_lshr_b32 %s, %s, %d' % (sr(s_mt), sr(s1), nN.bit_length() - 1))
    A('s_lshl_b32 %s, %s, 3' % (sr(s_mt), sr(s_mt)))
    A('s_add_u32 %s, %s, %s' % (sr(s_mt), sr(s_mt), sr(s0)))
    A('s_waitcnt lgkmcnt(0)')
    mk_srd(A, SRD_O, P['out'], 2048 * 2048 * 2)
    mk_srd(A, G.SRD_X, P['ws'], WS_BYTES)
    A('s_mov_b32 %s, 4096' % sr(G.s_xs))
    A('s_mov_b32 %s, %d' % (sr(G.s_ws), 64 * 2048))
    A('s_mul_i32 %s, %s, %d' % (sr(G.s_wo), sr(s_nt), TN * 2))
    A('s_lshr_b32 %s, %s, 1' % (sr(s0), sr(s_w)))
    A('s_mul_i32 %s, %s, %d' % (sr(s0), sr(s0), 32 * mb * 4096))
    A('s_mul_i32 %s, %s, %d' % (sr(s_base), sr(s_mt), TM * 4096))
    A('s_add_u32 %s, %s, %s' % (sr(s_base), sr(s_base), sr(s0)))
    A('s_and_b32 %s, %s, 1' % (sr(s0), sr(s_w)))
    A('s_mul_i32 %s, %s, %d' % (sr(s0), sr(s0), 64 * nb))
    A('s_add_u32 %s, %s, %s' % (sr(s_base), sr(s_base), sr(s0)))
    A('s_add_u32 %s, %s, %s' % (sr(s_base), sr(s_base), sr(G.s_wo)))
    LB, LJ = A.uid('isB'), A.uid('join')
    A('s_cmp_ge_u32 s2, %d' % nT)
    A('s_cbranch_scc1 ' + LB)
    mk_srd(A, G.SRD_W, P['A_Wo'], 4096 * 1024 * 2)
    A('s_mul_i32 %s, %s, %d' % (sr(G.s_xo), sr(s_mt), (TM // 32) * 128 * 2048))
    A('s_add_u32 %s, %s, 0x%x' % (sr(G.s_xo), sr(G.s_xo), OA))
    A('s_mov_b32 %s, %d' % (sr(G.s_n), 64 // nst - 1))
    G.setup(v_lane, s_w, (s0, s1), 'blk', 128 * 2048, 2048)
    A('s_branch ' + LJ)
    A.label(LB)
    mk_srd(A, G.SRD_W, P['B_wo'], 1024 * 1024 * 2)
    A('s_mul_i32 %s, %s, %d' % (sr(G.s_xo), sr(s_mt), (TM // 32) * 32 * 2048))
    A('s_add_u32 %s, %s, 0x%x' % (sr(G.s_xo), sr(G.s_xo), OB))
    A('s_mov_b32 %s, %d' % (sr(G.s_n), 16 // nst - 1))
    A('s_add_u32 %s, %s, 2048' % (sr(s_base), sr(s_base)))
    G.setup(v_lane, s_w, (s0, s1), 'blk', 32 * 2048, 2048)
    A.label(LJ)
    G.prologue()
    G.mainloop('T', 't')
    G.epi_out(SRD_O, v_off, s_base)
    A.label(L_exit)
    A('s_endpgm')
    nacc = 16 * mb * nb
    acc_off = (V.hi + 3) // 4 * 4
    return dict(vgpr=acc_off + nacc, accum=acc_off, sgpr=S.hi, grid=2 * nT, lds=2 * G.STG)


import attn


def gen_attn(A, name, a_only=False):
    S = Regs('s', 4, 100)
    A.raw('.p2align 8')
    A.label(name)
    L_exit = name + '_exit'
    A('s_cmp_ge_u32 s2, %d' % (512 if a_only else 1024))
    A('s_cbranch_scc1 ' + L_exit)
    p = S.alloc(2, 2)
    SRD = S.alloc(4, 4)
    s_w, s_item = S.alloc(), S.alloc()
    st = [S.alloc() for _ in range(4)]
    A('s_load_dwordx2 %s, s[0:1], 96' % sr(p, 2))
    v_lane, v_l16 = 1, 2
    A('v_and_b32 %s, 63, v0' % vr(v_lane))
    A('v_lshrrev_b32 %s, 6, v0' % vr(v_l16))
    A('v_readfirstlane_b32 %s, %s' % (sr(s_w), vr(v_l16)))
    A('v_lshlrev_b32 %s, 4, %s' % (vr(v_l16), vr(v_lane)))
    A('s_and_b32 %s, s2, 511' % sr(s_item))
    A('s_lshl_b32 %s, %s, 2' % (sr(s_item), sr(s_item)))
    A('s_add_u32 %s, %s, %s' % (sr(s_item), sr(s_item), sr(s_w)))
    A('s_waitcnt lgkmcnt(0)')
    mk_srd(A, SRD, p, WS_BYTES)
    LA = A.uid('attnA')
    h1 = 0
    if not a_only:
        A('s_cmp_ge_u32 s2, 512')
        A('s_cbranch_scc1 ' + LA)
        h1 = attn.attn_b(A, SRD, s_item, st, v_lane, v_l16, 4)
        A('s_endpgm')
    A.label(LA)
    h2 = attn.attn_a(A, SRD, s_item, st, v_lane, v_l16, 4)
    A.label(L_exit)
    A('s_endpgm')
    hi = (max(h1, h2) + 3) // 4 * 4
    return dict(vgpr=hi, accum=hi, sgpr=S.hi)


def gen_attn_tail(A, name, item0, nitems):
    S = Regs('s', 4, 100)
    A.raw('.p2align 8')
    A.label(name)
    L_exit = name + '_exit'
    A('s_cmp_ge_u32 s2, %d' % nitems)
    A('s_cbranch_scc1 ' + L_exit)
    p = S.alloc(2, 2)
    SRD = S.alloc(4, 4)
    s_item = S.alloc()
    st = [S.alloc() for _ in range(4)]
    A('s_load_dwordx2 %s, s[0:1], 96' % sr(p, 2))
    v_lane, v_l16 = 1, 2
    A('v_and_b32 %s, 63, v0' % vr(v_lane))
    A('v_lshlrev_b32 %s, 4, %s' % (vr(v_l16), vr(v_lane)))
    A('s_add_u32 %s, s2, %d' % (sr(s_item), item0))
    A('s_waitcnt lgkmcnt(0)')
    mk_srd(A, SRD, p, WS_BYTES)
    h2 = attn.attn_a(A, SRD, s_item, st, v_lane, v_l16, 4)
    A.label(L_exit)
    A('s_endpgm')
    hi = (h2 + 3) // 4 * 4
    return dict(vgpr=hi, accum=hi, sgpr=S.hi)


def out_direct(A, SRD, SRD_O, s_w, s_tb, s_nb, st, v_lane, v_l16, v_off, V0, mtiles=2, ld='', pre=None):
    V = Regs('v', V0, 256)
    s_x0, s_x1, s_wb, s0, s1 = st
    v_t = V.alloc()
    v_r = V.alloc()
    ACC = V.alloc(16 * mtiles, 4)
    NB = 4
    per = 1 + mtiles
    BUF = [V.alloc(4 * per * NB, 4) for _ in range(4)]
    A('s_lshl_b32 %s, %s, 16' % (sr(s0), sr(s_w)))
    A('s_lshl_b32 %s, %s, 18' % (sr(s_x0), sr(s_tb)))
    A('s_add_u32 %s, %s, %s' % (sr(s_x0), sr(s_x0), sr(s0)))
    A('s_add_u32 %s, %s, 0x%x' % (sr(s_x0), sr(s_x0), OA))
    A('s_add_u32 %s, %s, %d' % (sr(s_x1), sr(s_x0), 128 * 2048))
    A('s_lshl_b32 %s, %s, 18' % (sr(s_wb), sr(s_nb)))
    A('s_add_u32 %s, %s, %s' % (sr(s_wb), sr(s_wb), sr(s0)))
    A('s_add_u32 %s, %s, 0x%x' % (sr(s_wb), sr(s_wb), WOT))
    srcs = (s_wb, s_x0, s_x1)[:per]
    A('s_mov_b32 %s, 0' % sr(s1))

    def loads(b):
        A('v_add_u32 %s, %s, %s' % (vr(v_r), sr(s1), vr(v_l16)))
        A('s_add_u32 %s, %s, %d' % (sr(s1), sr(s1), NB * 1024))
        A('s_and_b32 %s, %s, 0xffff' % (sr(s1), sr(s1)))
        for kk in range(NB):
            for i, so in enumerate(srcs):
                A('buffer_load_dwordx4 %s, %s, %s, %s offen offset:%d%s' % (vr(BUF[b] + 4 * per * kk + 4 * i, 4), vr(v_r), sr(SRD, 4), sr(so), kk * 1024, ld))

    def comp(b, first):
        for kk in range(NB):
            for m in range(mtiles):
                a = vr(ACC + 16 * m, 16)
                A('v_mfma_f32_32x32x16_bf16 %s, %s, %s, %s' % (a, vr(BUF[b] + 4 * per * kk, 4), vr(BUF[b] + 4 * per * kk + 4 + 4 * m, 4), '0' if first and kk == 0 else a))
    nbat = 64 // NB
    for b in range(3):
        loads(b)
    for i in range(nbat):
        if i + 3 < nbat:
            loads((i + 3) % 4)
            A('s_waitcnt vmcnt(%d)' % (3 * per * NB))
        else:
            A('s_waitcnt vmcnt(%d)' % ((nbat - 1 - i) * per * NB))
        comp(i % 4, i == 0)
    if pre:
        pre()
    nq = 4 * mtiles
    A('s_mul_i32 %s, %s, %d' % (sr(s0), sr(s_w), nq * 1024))
    A('v_add_u32 %s, %s, %s' % (vr(v_t), sr(s0), vr(v_l16)))
    for r in range(nq):
        A('ds_write_b128 %s, %s offset:%d' % (vr(v_t), vr(ACC + 4 * r, 4), r * 1024))
    assert mtiles == 2
    A('s_lshl_b32 %s, %s, 11' % (sr(s0), sr(s_w)))
    A('v_add_u32 %s, %s, %s' % (vr(v_t), sr(s0), vr(v_l16)))
    A('s_waitcnt lgkmcnt(0)')
    A('s_barrier')
    R = BUF[0]
    for w in range(4):
        for h in range(2):
            A('ds_read_b128 %s, %s offset:%d' % (vr(R + 8 * w + 4 * h, 4), vr(v_t), w * 8192 + h * 1024))
    A('s_lshr_b32 %s, %s, 1' % (sr(s1), sr(s_w)))
    A('s_add_u32 %s, %s, %s' % (sr(s0), sr(s_tb), sr(s1)))
    A('s_lshl_b32 %s, %s, 17' % (sr(s0), sr(s0)))
    A('s_lshl_b32 %s, %s, 6' % (sr(s1), sr(s_nb)))
    A('s_add_u32 %s, %s, %s' % (sr(s0), sr(s0), sr(s1)))
    A('s_and_b32 %s, %s, 1' % (sr(s1), sr(s_w)))
    A('s_lshl_b32 %s, %s, 5' % (sr(s1), sr(s1)))
    A('s_add_u32 %s, %s, %s' % (sr(s0), sr(s0), sr(s1)))
    A('s_waitcnt lgkmcnt(0)')
    for r in range(8):
        A('v_add_f32 %s, %s, %s' % (vr(R + r), vr(R + r), vr(R + 8 + r)))
        A('v_add_f32 %s, %s, %s' % (vr(R + 16 + r), vr(R + 16 + r), vr(R + 24 + r)))
    for r in range(8):
        A('v_add_f32 %s, %s, %s' % (vr(R + r), vr(R + r), vr(R + 16 + r)))
    D = R + 32
    for r in range(4):
        A('v_cvt_pk_bf16_f32 %s, %s, %s' % (vr(D + r), vr(R + 2 * r), vr(R + 2 * r + 1)))
    A('v_permlane32_swap_b32 %s, %s' % (vr(D), vr(D + 2)))
    A('v_permlane32_swap_b32 %s, %s' % (vr(D + 1), vr(D + 3)))
    A('buffer_store_dwordx4 %s, %s, %s, %s offen' % (vr(D, 4), vr(v_off), sr(SRD_O, 4), sr(s0)))
    return V.hi


def out_direct32(A, SRD, SRD_O, s_w, s_tb, s_nb, st, v_lane, v_l16, V0, ld, pre_wait):
    V = Regs('v', V0, 256)
    s_x, s_wb, s0, s_r, s_a = st
    v_t, v_o = V.alloc(), V.alloc()
    ACC = V.alloc(16, 4)
    NX = 56
    XB = V.alloc(4 * NX, 4)
    A('s_lshl_b32 %s, %s, 16' % (sr(s0), sr(s_w)))
    A('s_lshl_b32 %s, %s, 18' % (sr(s_x), sr(s_tb)))
    A('s_add_u32 %s, %s, %s' % (sr(s_x), sr(s_x), sr(s0)))
    A('s_add_u32 %s, %s, 0x%x' % (sr(s_x), sr(s_x), OA))
    A('s_lshl_b32 %s, %s, 18' % (sr(s_wb), sr(s_nb)))
    A('s_add_u32 %s, %s, %s' % (sr(s_wb), sr(s_wb), sr(s0)))
    A('s_add_u32 %s, %s, 0x%x' % (sr(s_wb), sr(s_wb), WOT))
    A('s_mov_b32 %s, 0' % sr(s_r))

    def step(base):
        A('s_add_u32 %s, %s, %s' % (sr(s_a), sr(base), sr(s_r)))
        A('s_add_u32 %s, %s, 4096' % (sr(s_r), sr(s_r)))
        A('s_and_b32 %s, %s, 0xffff' % (sr(s_r), sr(s_r)))
    for kk in range(64):
        if kk & 3 == 0:
            step(s_wb)
        A('buffer_load_dwordx4 %s, %s, %s, %s offen offset:%d%s' % (ar(4 * kk, 4), vr(v_l16), sr(SRD, 4), sr(s_a), (kk & 3) * 1024, ld))
    A('v_and_b32 %s, 31, %s' % (vr(v_o), vr(v_lane)))
    A('v_lshlrev_b32 %s, 12, %s' % (vr(v_o), vr(v_o)))
    A('v_lshrrev_b32 %s, 5, %s' % (vr(v_t), vr(v_lane)))
    A('v_lshl_add_u32 %s, %s, 3, %s' % (vr(v_o), vr(v_t), vr(v_o)))
    A('s_waitcnt vmcnt(0)')
    pre_wait()

    def xl(kk):
        if kk & 3 == 0:
            step(s_x)
        A('buffer_load_dwordx4 %s, %s, %s, %s offen offset:%d%s' % (vr(XB + 4 * (kk % NX), 4), vr(v_l16), sr(SRD, 4), sr(s_a), (kk & 3) * 1024, ld))
    for kk in range(NX):
        xl(kk)
    a = vr(ACC, 16)
    issued = NX
    for kk in range(64):
        A('s_waitcnt vmcnt(%d)' % (issued - kk - 1))
        A('v_mfma_f32_32x32x16_bf16 %s, %s, %s, %s' % (a, ar(4 * kk, 4), vr(XB + 4 * (kk % NX), 4), '0' if kk == 0 else a))
        if issued < 64:
            xl(issued)
            issued += 1
    A('s_lshl_b32 %s, %s, 12' % (sr(s0), sr(s_w)))
    A('v_add_u32 %s, %s, %s' % (vr(v_t), sr(s0), vr(v_l16)))
    for r in range(4):
        A('ds_write_b128 %s, %s offset:%d' % (vr(v_t), vr(ACC + 4 * r, 4), r * 1024))
    A('s_lshl_b32 %s, %s, 10' % (sr(s0), sr(s_w)))
    A('v_add_u32 %s, %s, %s' % (vr(v_t), sr(s0), vr(v_l16)))
    A('s_waitcnt lgkmcnt(0)')
    A('s_barrier')
    R = XB
    for w in range(4):
        A('ds_read_b128 %s, %s offset:%d' % (vr(R + 4 * w, 4), vr(v_t), w * 4096))
    A('s_lshl_b32 %s, %s, 17' % (sr(s0), sr(s_tb)))
    A('s_lshl_b32 %s, %s, 6' % (sr(s_x), sr(s_nb)))
    A('s_add_u32 %s, %s, %s' % (sr(s0), sr(s0), sr(s_x)))
    A('s_lshl_b32 %s, %s, 4' % (sr(s_x), sr(s_w)))
    A('s_add_u32 %s, %s, %s' % (sr(s0), sr(s0), sr(s_x)))
    A('s_waitcnt lgkmcnt(0)')
    for r in range(0, 4, 2):
        A('v_pk_add_f32 %s, %s, %s' % (vr(R + r, 2), vr(R + r, 2), vr(R + 4 + r, 2)))
        A('v_pk_add_f32 %s, %s, %s' % (vr(R + 8 + r, 2), vr(R + 8 + r, 2), vr(R + 12 + r, 2)))
    for r in range(0, 4, 2):
        A('v_pk_add_f32 %s, %s, %s' % (vr(R + r, 2), vr(R + r, 2), vr(R + 8 + r, 2)))
    D = R + 16
    for r in range(2):
        A('v_cvt_pk_bf16_f32 %s, %s, %s' % (vr(D + r), vr(R + 2 * r), vr(R + 2 * r + 1)))
    A('buffer_store_dwordx2 %s, %s, %s, %s offen' % (vr(D, 2), vr(v_o), sr(SRD_O, 4), sr(s0)))


def place_check(A, SRD_D, v_lane, va, vb, s_cnt, lim, L_restart):
    Lw, Ld, Lb = A.uid('pcw'), A.uid('pcd'), A.uid('pcb')
    A('s_cmp_lg_u32 s%d, 0' % S_MODE)
    A('s_cbranch_scc1 ' + Ld)
    A('v_and_b32 %s, 7, %s' % (vr(va), vr(v_lane)))
    A('v_lshlrev_b32 %s, 2, %s' % (vr(va), vr(va)))
    A('s_mov_b32 %s, 0' % sr(s_cnt))
    A.label(Lw)
    A('buffer_load_dword %s, %s, %s, 0 offen sc1' % (vr(vb), vr(va), sr(SRD_D, 4)))
    A('s_add_u32 %s, %s, 1' % (sr(s_cnt), sr(s_cnt)))
    A('s_waitcnt vmcnt(0)')
    A('v_cmp_ne_u32 vcc, 32, %s' % vr(vb))
    A('s_cbranch_vccz ' + Ld)
    A('v_cmp_lt_u32 vcc, 32, %s' % vr(vb))
    A('s_cbranch_vccnz ' + Lb)
    A('s_sleep 8')
    A('s_cmp_lt_u32 %s, %d' % (sr(s_cnt), lim))
    A('s_cbranch_scc1 ' + Lw)
    A('s_branch ' + Ld)
    A.label(Lb)
    A('s_mov_b32 s%d, 1' % S_MODE)
    A('s_waitcnt vmcnt(0) lgkmcnt(0)')
    A('s_barrier')
    A('s_branch ' + L_restart)
    A.label(Ld)


def shift_ptrs(A, p_ws, p_dbg, s_tmp):
    A('s_lshl_b32 %s, s%d, 27' % (sr(s_tmp), S_MODE))
    A('s_add_u32 %s, %s, %s' % (sr(p_ws), sr(p_ws), sr(s_tmp)))
    A('s_addc_u32 %s, %s, 0' % (sr(p_ws + 1), sr(p_ws + 1)))
    A('s_lshl_b32 %s, s%d, 7' % (sr(s_tmp), S_MODE))
    A('s_add_u32 %s, %s, %s' % (sr(p_dbg), sr(p_dbg), sr(s_tmp)))
    A('s_addc_u32 %s, %s, 0' % (sr(p_dbg + 1), sr(p_dbg + 1)))
```

```python
from asmlib import *
from layout import *
from gemm import Gemm
from kernels import mk_srd, load_ptrs, out_direct, out_direct32, place_check, shift_ptrs
import attn
import os, json

LDS_JOB = 131072 + 64
LIM = 200000
WTOUCH = os.environ.get('WTOUCH', '')
WT_ODD = int(os.environ.get('WT_ODD', '1'))
WT2 = int(os.environ.get('WT2', '1'))
EARLY = int(os.environ.get('EARLY', '1'))
LAG = 2 if os.environ.get('OLDCHAIN') else 3
WST = int(os.environ.get('WST', '0'))

BL = int(os.environ.get('BL', '0'))
SEGS = [('skv', 16, 0), ('bkv', 16, 1), ('skv', 16, 1), ('bkv', 32, 3), ('bkv', 8, 7), ('q', 16, 0), ('bq', 24, 0),
        ('aattn', 8, 0), ('q', 8, 4), ('aout', 8, 0), ('q', 8, 6), ('aattn', 8, 2), ('battn', 8, 0), ('aout', 8, 2),
        ('battn', 8, 8), ('aattn', 4, 4), ('battn', 16, 16), ('aout', 4, 4), ('aattn1', 4, 20), ('aattn1', 4, 21),
        ('wot', 32, 0), ('aoutr', 2, 10), ('aattn1', 4, 22), ('aattn1', 4, 23), ('bout', 12, 0), ('aoutr', 2, 11),
        ('aattn1', 4, 24), ('aattn1', 4, 25), ('bout', 20 - BL, 12), ('aoutr', 2, 12), ('aattn1', 4, 26)]
NE = int(os.environ.get('NE', '3'))
for _mp in range(26, 32 - NE):
    SEGS += [('aattn1', 4, _mp + 1), ('aoutd', 8, _mp)]
for _mp in range(32 - NE, 32):
    if _mp < 31:
        SEGS += [('aattn1', 4, _mp + 1)]
    if _mp == 29:
        SEGS += [('aattn1', 4, 31)]
    SEGS += [('aoute', 16, 2 * _mp)]
SEGS += [('bout', BL, 32 - BL)]
SEGS = [x for x in SEGS if x[1]]
_seen = set()
SEGS = [x for x in SEGS if not (x in _seen or _seen.add(x))]
if os.environ.get('SEGS'):
    SEGS = [tuple(x) for x in json.loads(os.environ['SEGS'])]


def seg_bounds():
    o, a = [], 0
    for k, n, p in SEGS:
        o.append((a, a + n, '%s%d' % (k, p)))
        a += n
    return o


def gen_worker(A, name):
    S = Regs('s', 4, 100)
    P = load_ptrs(A, S)
    SRD_WS = S.alloc(4, 4)
    SRD_D = S.alloc(4, 4)
    SRD_O = S.alloc(4, 4)
    s_w, s_q, s_qn, s_job, s_cfg, s0, s1, s2_, s3, s_base, s_tbs, s_or, s_ctr, s_inc, s_mt, s_nt, s_it, s_k, s_p = [S.alloc() for _ in range(19)]
    s_pp = S.alloc(2, 2)
    s_tm = S.alloc(2, 2)
    s_sa = S.alloc()

    def wstamp(k):
        if not WST:
            return
        A('s_memrealtime %s' % sr(s_tm, 2))
        A('s_waitcnt lgkmcnt(0)')
        A('v_mov_b32 v4, %s' % sr(s_tm))
        A('v_mov_b32 v5, %s' % sr(s_sa))
        A('s_mov_b64 exec, 1')
        A('buffer_store_dword v4, v5, %s, 0 offen offset:%d' % (sr(SRD_WS, 4), 4 * k))
        if k in (2, 3):
            A('s_memtime %s' % sr(s_tm, 2))
            A('s_waitcnt lgkmcnt(0)')
            A('v_mov_b32 v4, %s' % sr(s_tm))
            A('buffer_store_dword v4, v5, %s, 0 offen offset:%d' % (sr(SRD_WS, 4), 4 * (k + 4)))
        A('s_mov_b64 exec, -1')
    v_lane, v_l16, v_off, v_a, v_b, v_sh = 1, 2, 3, 4, 5, 6
    s_init = S.alloc()
    s_et = S.alloc()
    s_wo = S.alloc()
    s_wo2 = S.alloc()
    smark = S.mark()
    V4 = Regs('v', 8, 256)
    G4 = Gemm(A, S, V4, 4, 4)
    hi = S.mark()
    S.release(smark)
    V2 = Regs('v', 8, 256)
    G2 = Gemm(A, S, V2, 2, 2, xsc=' sc1', nst=4)
    assert (G2.SRD_X, G2.SRD_W, G2.s_xo, G2.s_n) == (G4.SRD_X, G4.SRD_W, G4.s_xo, G4.s_n)
    G = G4
    L_next, L_done = name + '_wnext', name + '_wdone'

    A('v_and_b32 %s, 63, v0' % vr(v_lane))
    A('v_lshrrev_b32 %s, 6, v0' % vr(v_l16))
    A('v_readfirstlane_b32 %s, %s' % (sr(s_w), vr(v_l16)))
    A('v_lshlrev_b32 %s, 4, %s' % (vr(v_l16), vr(v_lane)))
    A('v_and_b32 %s, 31, %s' % (vr(v_off), vr(v_lane)))
    A('v_lshlrev_b32 %s, 12, %s' % (vr(v_off), vr(v_off)))
    A('v_lshrrev_b32 %s, 5, %s' % (vr(v_a), vr(v_lane)))
    A('v_lshl_add_u32 %s, %s, 4, %s' % (vr(v_off), vr(v_a), vr(v_off)))
    A('s_and_b32 %s, s%d, 3' % (sr(s_q), S_VX))
    A('s_mov_b32 %s, 0' % sr(s_qn))
    A('s_mov_b32 %s, 0' % sr(s_cfg))
    A('s_mov_b32 %s, %d' % (sr(s_ctr), DBG_WT))
    A('s_waitcnt lgkmcnt(0)')
    shift_ptrs(A, P['ws'], P['dbg'], s0)
    mk_srd(A, SRD_WS, P['ws'], WS_HALF)
    mk_srd(A, SRD_D, P['dbg'], 128)
    mk_srd(A, SRD_O, P['out'], 2048 * 2048 * 2)

    A('v_and_b32 %s, 3, %s' % (vr(v_sh), vr(v_lane)))
    A('v_lshlrev_b32 %s, 7, %s' % (vr(v_sh), vr(v_sh)))
    A('v_add_u32 %s, 0x%x, %s' % (vr(v_sh), CTR, vr(v_sh)))
    A('v_mov_b32 v7, 0')
    A('s_mov_b32 %s, 0' % sr(s_init))
    A('s_mov_b32 %s, 0' % sr(s_et))
    v_tk = 7

    def early():
        if not EARLY:
            return
        Le = A.uid('et')
        A('s_nop 11')
        A('s_cmp_eq_u32 %s, 0' % sr(s_init))
        A('s_cbranch_scc1 ' + Le)
        A('s_mov_b32 %s, 1' % sr(s_et))
        A('s_cmp_lg_u32 %s, 0' % sr(s_w))
        A('s_cbranch_scc1 ' + Le)
        A('s_lshl_b32 %s, %s, 7' % (sr(s_wo), sr(s_q)))
        A('s_add_u32 %s, %s, 0x%x' % (sr(s_wo), sr(s_wo), CTR + DBG_Q * 128))
        A('v_mov_b32 %s, %s' % (vr(v_a), sr(s_wo)))
        A('v_mov_b32 %s, 1' % vr(v_tk))
        A('s_mov_b64 exec, 1')
        A('buffer_atomic_add %s, %s, %s, 0 offen sc0 sc1' % (vr(v_tk), vr(v_a), sr(SRD_WS, 4)))
        A('s_mov_b64 exec, -1')
        A.label(Le)

    def wait_init():
        Lw, Ld = A.uid('iw'), A.uid('id')
        A('s_cmp_lg_u32 %s, 0' % sr(s_init))
        A('s_cbranch_scc1 ' + Ld)
        A('s_mov_b32 %s, 1' % sr(s_init))
        A('v_mov_b32 %s, %d' % (vr(v_a), DBG_INIT))
        A('s_mov_b32 %s, 0' % sr(s3))
        A.label(Lw)
        A('buffer_load_dword %s, %s, %s, 0 offen sc1' % (vr(v_b), vr(v_a), sr(SRD_D, 4)))
        A('s_add_u32 %s, %s, 1' % (sr(s3), sr(s3)))
        A('s_waitcnt vmcnt(0)')
        A('v_cmp_ne_u32 vcc, 0, %s' % vr(v_b))
        A('s_cbranch_vccnz ' + Ld)
        A('s_sleep 4')
        A('s_cmp_lt_u32 %s, %d' % (sr(s3), LIM))
        A('s_cbranch_scc1 ' + Lw)
        A.label(Ld)
    L_have = A.uid('havejob')
    L_got = A.uid('gotjob')
    A('s_mov_b32 %s, s3' % sr(s_job))
    SRD_T = S.alloc(4, 4)
    hi = max(hi, S.mark())

    def touch(ptrs_sizes, s_id, per_wave_log2):
        A('s_lshl_b32 %s, %s, %d' % (sr(s0), sr(s_id), per_wave_log2))
        A('v_lshlrev_b32 %s, 7, %s' % (vr(v_a), vr(v_lane)))
        for p, nbytes in ptrs_sizes:
            mk_srd(A, SRD_T, P[p], nbytes)
            for i in range(1 << (per_wave_log2 - 13)):
                A('s_add_u32 %s, %s, %d' % (sr(s1), sr(s0), i * 8192))
                A('buffer_load_dword v7, %s, %s, %s offen' % (vr(v_a), sr(SRD_T, 4), sr(s1)))
            A('s_nop 4')
    L_restart = name + '_restart'
    L_st = A.uid('static')
    A('s_cmp_lt_u32 s3, 32')
    A('s_cbranch_scc1 ' + L_st)
    place_check(A, SRD_D, v_lane, v_a, v_b, s3, LIM, L_restart)
    A('s_branch ' + L_next)
    A.label(L_st)
    if WTOUCH:
        if WT_ODD:
            A('s_bitcmp0_b32 s3, 0')
            A('s_cbranch_scc1 ' + L_have)
            A('s_lshr_b32 %s, s3, 1' % sr(s2_))
            A('s_lshl_b32 %s, %s, 4' % (sr(s0), sr(s_q)))
        else:
            A('s_mov_b32 %s, s3' % sr(s2_))
            A('s_lshl_b32 %s, %s, 5' % (sr(s0), sr(s_q)))
        A('s_add_u32 %s, %s, %s' % (sr(s2_), sr(s2_), sr(s0)))
        A('s_lshl_b32 %s, %s, 2' % (sr(s2_), sr(s2_)))
        A('s_add_u32 %s, %s, %s' % (sr(s2_), sr(s2_), sr(s_w)))
        touch([(k, 8 << 20) for k in WTOUCH.split(',')], s2_, 15 if WT_ODD else 14)
    A('s_branch ' + L_have)
    A.label(L_next)
    Lnf = A.uid('nofetch')
    A('s_cmp_lg_u32 %s, 0' % sr(s_w))
    A('s_cbranch_scc1 ' + Lnf)
    wait_init()
    A('s_lshl_b32 %s, %s, 7' % (sr(s0), sr(s_q)))
    A('s_add_u32 %s, %s, 0x%x' % (sr(s0), sr(s0), CTR + DBG_Q * 128))
    A('v_mov_b32 %s, %s' % (vr(v_a), sr(s0)))
    A('v_mov_b32 %s, 1' % vr(v_b))
    A('s_mov_b64 exec, 1')
    A('buffer_atomic_add %s, %s, %s, 0 offen sc0 sc1' % (vr(v_b), vr(v_a), sr(SRD_WS, 4)))
    A('s_waitcnt vmcnt(0)')
    A('v_mov_b32 %s, %d' % (vr(v_a), LDS_JOB))
    A('ds_write_b32 %s, %s' % (vr(v_a), vr(v_b)))
    A('s_waitcnt lgkmcnt(0)')
    A('s_mov_b64 exec, -1')
    A.label(Lnf)
    A('s_barrier')
    A('v_mov_b32 %s, %d' % (vr(v_a), LDS_JOB))
    A('ds_read_b32 %s, %s' % (vr(v_b), vr(v_a)))
    A('s_waitcnt lgkmcnt(0)')
    A('v_readfirstlane_b32 %s, %s' % (sr(s_job), vr(v_b)))
    A('s_barrier')
    A.label(L_got)
    A('s_mov_b32 %s, 1' % sr(s_init))
    A('s_add_u32 %s, %s, 32' % (sr(s_job), sr(s_job)))
    A.label(L_have)
    if WST:
        A('s_min_u32 %s, %s, 511' % (sr(s0), sr(s_job)))
        A('s_lshl_b32 %s, %s, 9' % (sr(s_sa), sr(s_q)))
        A('s_add_u32 %s, %s, %s' % (sr(s_sa), sr(s_sa), sr(s0)))
        A('s_lshl_b32 %s, %s, 2' % (sr(s_sa), sr(s_sa)))
        A('s_add_u32 %s, %s, %s' % (sr(s_sa), sr(s_sa), sr(s_w)))
        A('s_lshl_b32 %s, %s, 5' % (sr(s_sa), sr(s_sa)))
        A('s_add_u32 %s, %s, 0x%x' % (sr(s_sa), sr(s_sa), STAMP + 0x400000))
        wstamp(0)
    kinds = ('aoutr', 'aoutj', 'skv', 'bkv', 'bq', 'q', 'battn', 'bout', 'wot', 'aattn', 'aout', 'aattn1', 'aoutd', 'aoute', 'big', 'bigA', 'small', 'outc')
    L = {k: A.uid('job' + k) for k in kinds}
    for k, n, p in SEGS:
        A('s_mov_b32 %s, %d' % (sr(s_p), p))
        A('s_cmp_lt_u32 %s, %d' % (sr(s_job), n))
        A('s_cbranch_scc1 ' + L[k])
        A('s_sub_u32 %s, %s, %d' % (sr(s_job), sr(s_job), n))
    QLEN = sum(n for _, n, _ in SEGS)
    L_peek = name + '_wpeek'
    A.label(L_peek)
    A('s_mov_b32 %s, %d' % (sr(s0), DBG_Q * 128))
    A('buffer_load_dword %s, %s, %s, %s offen sc1' % (vr(v_b), vr(v_sh), sr(SRD_WS, 4), sr(s0)))
    A('v_lshlrev_b32 %s, 2, %s' % (vr(v_a), vr(v_lane)))
    A('v_add_u32 %s, %d, %s' % (vr(v_a), LDS_JOB + 64, vr(v_a)))
    A('s_waitcnt vmcnt(0)')
    Lp1 = A.uid('pk')
    A('s_cmp_lg_u32 %s, 0' % sr(s_w))
    A('s_cbranch_scc1 ' + Lp1)
    A('ds_write_b32 %s, %s' % (vr(v_a), vr(v_b)))
    A('s_waitcnt lgkmcnt(0)')
    A.label(Lp1)
    A('s_barrier')
    A('ds_read_b32 %s, %s' % (vr(v_b), vr(v_a)))
    A('s_waitcnt lgkmcnt(0)')
    A('s_barrier')
    for k in range(4):
        A('v_readlane_b32 %s, %s, %d' % (sr(s0), vr(v_b), k))
        A('s_mov_b32 %s, %d' % (sr(s_q), k))
        A('s_cmp_lt_u32 %s, %d' % (sr(s0), QLEN - 32))
        A('s_cbranch_scc1 ' + L_next)
    A('s_endpgm')

    def wait_ctr(s_off, thr, s_shift=None, bits=8, slp=12):
        Lw, Ld = A.uid('dw'), A.uid('dd')
        A('s_cmp_lg_u32 %s, 0' % sr(s_w))
        A('s_cbranch_scc1 ' + Ld)
        A('s_lshl_b32 %s, %s, 7' % (sr(s_wo), sr(s_off) if isinstance(s_off, int) else s_off))
        A('s_mov_b32 %s, 0' % sr(s3))
        A.label(Lw)
        A('buffer_load_dword %s, %s, %s, %s offen sc1' % (vr(v_b), vr(v_sh), sr(SRD_WS, 4), sr(s_wo)))
        A('s_add_u32 %s, %s, 1' % (sr(s3), sr(s3)))
        A('s_waitcnt vmcnt(0)')
        if s_shift is not None:
            A('v_bfe_u32 %s, %s, %s, %d' % (vr(v_b), vr(v_b), sr(s_shift), bits))
        A('v_cmp_gt_u32 vcc, %s, %s' % (thr, vr(v_b)))
        A('s_cbranch_vccz ' + Ld)
        A('s_sleep %d' % slp)
        A('s_cmp_lt_u32 %s, %d' % (sr(s3), LIM))
        A('s_cbranch_scc1 ' + Lw)
        A.label(Ld)
        A('s_barrier')

    def wait2(off1, thr1, off2, thr2, s_shift=None, bits=8, slp=12):
        Lw, Ld, Ln = A.uid('dw'), A.uid('dd'), A.uid('dn')
        tx = lambda o: sr(o) if isinstance(o, int) else o
        A('s_cmp_lg_u32 %s, 0' % sr(s_w))
        A('s_cbranch_scc1 ' + Ld)
        A('s_lshl_b32 %s, %s, 7' % (sr(s_wo), tx(off1)))
        A('s_lshl_b32 %s, %s, 7' % (sr(s_wo2), tx(off2)))
        A('s_mov_b32 %s, 0' % sr(s3))
        A.label(Lw)
        A('buffer_load_dword %s, %s, %s, %s offen sc1' % (vr(v_a), vr(v_sh), sr(SRD_WS, 4), sr(s_wo)))
        A('buffer_load_dword %s, %s, %s, %s offen sc1' % (vr(v_b), vr(v_sh), sr(SRD_WS, 4), sr(s_wo2)))
        A('s_add_u32 %s, %s, 1' % (sr(s3), sr(s3)))
        A('s_waitcnt vmcnt(0)')
        if s_shift is not None:
            A('v_bfe_u32 %s, %s, %s, %d' % (vr(v_b), vr(v_b), sr(s_shift), bits))
        A('v_cmp_gt_u32 vcc, %s, %s' % (thr1, vr(v_a)))
        A('s_cbranch_vccnz ' + Ln)
        A('v_cmp_gt_u32 vcc, %s, %s' % (thr2, vr(v_b)))
        A('s_cbranch_vccz ' + Ld)
        A.label(Ln)
        A('s_sleep %d' % slp)
        A('s_cmp_lt_u32 %s, %d' % (sr(s3), LIM))
        A('s_cbranch_scc1 ' + Lw)
        A.label(Ld)
        A('s_barrier')

    def cfg(Gx, cid, *args):
        Ls = A.uid('cfg')
        A('s_cmp_eq_u32 %s, %d' % (sr(s_cfg), cid))
        A('s_cbranch_scc1 ' + Ls)
        Gx.setup(v_lane, s_w, (s0, s1), *args)
        A('s_mov_b32 %s, %d' % (sr(s_cfg), cid))
        A.label(Ls)

    def blk_base(mbk, nbk):
        A('s_lshr_b32 %s, %s, 1' % (sr(s0), sr(s_w)))
        A('s_lshl_b32 %s, %s, 1' % (sr(s1), sr(s_mt)))
        A('s_add_u32 %s, %s, %s' % (sr(s0), sr(s0), sr(s1)))
        A('s_mul_i32 %s, %s, %d' % (sr(s0), sr(s0), mbk))
        A('s_mul_i32 %s, %s, %s' % (sr(s0), sr(s0), sr(s_tbs)))
        A('s_add_u32 %s, %s, %s' % (sr(s_base), sr(s_base), sr(s0)))
        A('s_and_b32 %s, %s, 1' % (sr(s0), sr(s_w)))
        A('s_lshl_b32 %s, %s, 1' % (sr(s1), sr(s_nt)))
        A('s_add_u32 %s, %s, %s' % (sr(s0), sr(s0), sr(s1)))
        A('s_mul_i32 %s, %s, %d' % (sr(s0), sr(s0), nbk * 2048))
        A('s_add_u32 %s, %s, %s' % (sr(s_base), sr(s_base), sr(s0)))

    def sel_kv(thr):
        A('s_cmp_ge_u32 %s, %d' % (sr(s_nt), thr))
        A('s_cselect_b32 %s, 1, 0' % sr(s_or))
        A('s_cselect_b64 %s, %s, %s' % (sr(s_pp, 2), sr(P['A_Wv'], 2), sr(P['A_Wk'], 2)))
        A('s_mov_b32 %s, 0x%x' % (sr(s_base), KX))
        A('s_cselect_b32 %s, 0x%x, %s' % (sr(s_base), VX, sr(s_base)))
        A('s_and_b32 %s, %s, %d' % (sr(s_nt), sr(s_nt), thr - 1))

    def ctr(base, s_idx, inc):
        A('s_lshl_b32 %s, %s, 2' % (sr(s_ctr), sr(s_idx)))
        A('s_add_u32 %s, %s, %d' % (sr(s_ctr), sr(s_ctr), base))
        A('s_mov_b32 %s, %d' % (sr(s_inc), inc))

    def nt_q(mask_bits_shift, mask):
        A('s_lshr_b32 %s, %s, %d' % (sr(s_nt), sr(s_job), mask_bits_shift))
        A('s_and_b32 %s, %s, %d' % (sr(s_nt), sr(s_nt), mask))
        A('s_lshl_b32 %s, %s, 2' % (sr(s_nt), sr(s_nt)))
        A('s_add_u32 %s, %s, %s' % (sr(s_nt), sr(s_nt), sr(s_q)))

    A.label(L['skv'])
    A('s_lshr_b32 %s, %s, 1' % (sr(s0), sr(s_p)))
    ctr(DBG_KV, s0, 1)
    A('s_mov_b32 %s, %s' % (sr(s_mt), sr(s_p)))
    nt_q(0, 15)
    sel_kv(32)
    mk_srd(A, G.SRD_W, s_pp, 1024 * 4096 * 2)
    mk_srd(A, G.SRD_X, P['A_x'], 2048 * 1024 * 2)
    A('s_lshl_b32 %s, %s, 18' % (sr(G.s_xo), sr(s_mt)))
    A('s_mov_b32 %s, 128' % sr(G.s_xs))
    A('s_lshl_b32 %s, %s, 8' % (sr(G.s_wo), sr(s_nt)))
    A('s_mov_b32 %s, %d' % (sr(G.s_ws), 64 * 8192))
    A('s_mov_b32 %s, %d' % (sr(s_tbs), 128 * 2048))
    A('s_mov_b32 %s, 3' % sr(G.s_n))
    blk_base(2, 2)
    cfg(G2, 3, 'nat', 2048, 8192)
    A('s_mov_b32 %s, 0' % sr(s_k))
    A('s_branch ' + L['small'])

    A.label(L['aout'])
    A('s_lshr_b32 %s, %s, 2' % (sr(s_mt), sr(s_job)))
    A('s_add_u32 %s, %s, %s' % (sr(s_mt), sr(s_mt), sr(s_p)))
    A('s_lshl_b32 %s, %s, 1' % (sr(s_mt), sr(s_mt)))
    A('s_lshr_b32 %s, %s, 1' % (sr(s0), sr(s_q)))
    A('s_add_u32 %s, %s, %s' % (sr(s_mt), sr(s_mt), sr(s0)))
    A('s_and_b32 %s, %s, 1' % (sr(s_nt), sr(s_q)))
    A('s_lshl_b32 %s, %s, 2' % (sr(s_nt), sr(s_nt)))
    A('s_and_b32 %s, %s, 3' % (sr(s0), sr(s_job)))
    A('s_add_u32 %s, %s, %s' % (sr(s_nt), sr(s_nt), sr(s0)))
    A('s_mov_b32 %s, 4' % sr(s_tbs))
    A('s_mov_b32 %s, 0' % sr(s_it))
    A('s_branch ' + L['aoutj'])
    A.label(L['aoutr'])
    A('s_mov_b32 %s, %s' % (sr(s_mt), sr(s_p)))
    A('s_lshl_b32 %s, %s, 1' % (sr(s_nt), sr(s_q)))
    A('s_add_u32 %s, %s, %s' % (sr(s_nt), sr(s_nt), sr(s_job)))
    A('s_mov_b32 %s, 0x2222' % sr(s_tbs))
    A('s_and_b32 %s, %s, 1' % (sr(s_it), sr(s_p)))
    A('s_lshl_b32 %s, %s, 4' % (sr(s_it), sr(s_it)))
    A.label(L['aoutj'])
    mk_srd(A, G.SRD_W, P['A_Wo'], 4096 * 1024 * 2)
    A('s_mul_i32 %s, %s, %d' % (sr(G.s_xo), sr(s_mt), 4 * 128 * 2048))
    A('s_add_u32 %s, %s, 0x%x' % (sr(G.s_xo), sr(G.s_xo), OA))
    A('s_mov_b32 %s, 15' % sr(G.s_n))
    A('s_mov_b32 %s, 0' % sr(s_base))
    A('s_mov_b32 %s, %d' % (sr(s2_), DBG_AA))
    cfg(G2, 5, 'blk', 128 * 2048, 2048)
    A('s_branch ' + L['outc'])
    A.label(L['bout'])
    A('s_add_u32 %s, %s, %s' % (sr(s_job), sr(s_job), sr(s_p)))
    A('s_lshr_b32 %s, %s, 1' % (sr(s_mt), sr(s_job)))
    nt_q(0, 1)
    mk_srd(A, G.SRD_W, P['B_wo'], 1024 * 1024 * 2)
    A('s_mul_i32 %s, %s, %d' % (sr(G.s_xo), sr(s_mt), 4 * 32 * 2048))
    A('s_add_u32 %s, %s, 0x%x' % (sr(G.s_xo), sr(G.s_xo), OB))
    A('s_mov_b32 %s, 3' % sr(G.s_n))
    A('s_mov_b32 %s, 2048' % sr(s_base))
    A('s_mov_b32 %s, %d' % (sr(s2_), DBG_BA))
    A('s_mov_b32 %s, 4' % sr(s_tbs))
    A('s_mov_b32 %s, 0' % sr(s_it))
    cfg(G2, 4, 'blk', 32 * 2048, 2048)
    A.label(L['outc'])
    mk_srd(A, G.SRD_X, P['ws'], WS_HALF)
    A('s_mov_b32 %s, 4096' % sr(G.s_xs))
    A('s_lshl_b32 %s, %s, 8' % (sr(G.s_wo), sr(s_nt)))
    A('s_mov_b32 %s, %d' % (sr(G.s_ws), 64 * 2048))
    A('s_mov_b32 %s, 0' % sr(s_or))
    A('s_mov_b32 %s, 0' % sr(s_inc))
    A('s_lshr_b32 %s, %s, 1' % (sr(s0), sr(s_w)))
    A('s_lshl_b32 %s, %s, 18' % (sr(s0), sr(s0)))
    A('s_add_u32 %s, %s, %s' % (sr(s_base), sr(s_base), sr(s0)))
    A('s_lshl_b32 %s, %s, 19' % (sr(s0), sr(s_mt)))
    A('s_add_u32 %s, %s, %s' % (sr(s_base), sr(s_base), sr(s0)))
    A('s_and_b32 %s, %s, 1' % (sr(s0), sr(s_w)))
    A('s_lshl_b32 %s, %s, 7' % (sr(s0), sr(s0)))
    A('s_add_u32 %s, %s, %s' % (sr(s_base), sr(s_base), sr(s0)))
    A('s_add_u32 %s, %s, %s' % (sr(s_base), sr(s_base), sr(G.s_wo)))
    A('s_lshr_b32 %s, %s, 1' % (sr(s0), sr(s_mt)))
    A('s_lshl_b32 %s, %s, 2' % (sr(s0), sr(s0)))
    A('s_add_u32 %s, %s, %s' % (sr(s0), sr(s0), sr(s2_)))
    wait_ctr(s0, sr(s_tbs), s_it, bits=16)
    A('s_mov_b32 %s, 1' % sr(s_k))
    A.label(L['small'])
    wstamp(1)
    G2.prologue()
    wstamp(2)
    LN, LE, LO = A.uid('sN'), A.uid('sE'), A.uid('sO')
    A('s_cmp_eq_u32 %s, 1' % sr(s_or))
    A('s_cbranch_scc1 ' + LN)
    G2.mainloop('T', 'st')
    A('s_nop 15')
    A('s_cmp_eq_u32 %s, 1' % sr(s_k))
    A('s_cbranch_scc1 ' + LO)
    A('s_branch ' + LE)
    A.label(LN)
    G2.mainloop('N', 'sn')
    A.label(LE)
    wstamp(3)
    early()
    G2.epi_blk(SRD_WS, v_l16, s_base, s_tbs, s0, ' sc1')
    A('s_branch ' + L_done)
    A.label(LO)
    wstamp(3)
    early()
    G2.epi_out(SRD_O, v_off, s_base)
    A('s_branch ' + L_done)

    A.label(L['wot'])
    nt_q(0, 1)
    A('s_lshr_b32 %s, %s, 1' % (sr(s_mt), sr(s_job)))
    mk_srd(A, G.SRD_W, P['A_Wo'], 4096 * 1024 * 2)
    cfg(G2, 5, 'blk', 128 * 2048, 2048)
    A('s_lshl_b32 %s, %s, 8' % (sr(G.s_wo), sr(s_nt)))
    A('s_lshl_b32 %s, %s, 19' % (sr(s0), sr(s_mt)))
    A('s_add_u32 %s, %s, %s' % (sr(G.s_wo), sr(G.s_wo), sr(s0)))
    A('s_mov_b32 %s, 1' % sr(s_inc))
    A('s_mov_b32 %s, %d' % (sr(s_ctr), DBG_WT))
    wstamp(1)
    for st in range(4):
        for g in G2.dma_ops(st)[G2.nX:]:
            for t in g:
                A(t)
        A('s_add_u32 %s, %s, %d' % (sr(G.s_wo), sr(G.s_wo), 64 * 2048))
    A('s_and_b32 %s, %s, 1' % (sr(s0), sr(s_w)))
    A('s_lshl_b32 %s, %s, 1' % (sr(s0), sr(s0)))
    A('s_lshl_b32 %s, %s, 2' % (sr(s1), sr(s_nt)))
    A('s_add_u32 %s, %s, %s' % (sr(s0), sr(s0), sr(s1)))
    A('s_lshl_b32 %s, %s, 18' % (sr(s_base), sr(s0)))
    A('s_lshl_b32 %s, %s, 14' % (sr(s0), sr(s_mt)))
    A('s_add_u32 %s, %s, %s' % (sr(s_base), sr(s_base), sr(s0)))
    A('s_lshr_b32 %s, %s, 1' % (sr(s0), sr(s_w)))
    A('s_lshl_b32 %s, %s, 13' % (sr(s1), sr(s0)))
    A('s_add_u32 %s, %s, %s' % (sr(s_base), sr(s_base), sr(s1)))
    A('s_add_u32 %s, %s, 0x%x' % (sr(s_base), sr(s_base), WOT))
    A('s_mul_i32 %s, %s, %d' % (sr(s0), sr(s0), 2 * G2.STG))
    T = V2.alloc(64, 4)
    ta = [V2.alloc() for _ in range(4)]
    for i in range(2):
        for q in range(2):
            A('v_add_u32 %s, %s, %s' % (vr(ta[2 * i + q]), sr(s0), vr(G2.rw[0][i][q])))
    early()
    A('s_waitcnt vmcnt(0)')
    A('s_barrier')
    for i in range(2):
        for st in range(2):
            for ks in range(4):
                d = T + 4 * ((i * 2 + st) * 4 + ks)
                for q in range(2):
                    A('ds_read_b64_tr_b16 %s, %s offset:%d' % (vr(d + 2 * q, 2), vr(ta[2 * i + q]), st * G2.STG + ks * 16 * G2.wrow))
            A('s_waitcnt lgkmcnt(0)')
    for i in range(2):
        for st in range(2):
            A('s_add_u32 %s, %s, %d' % (sr(s0), sr(s_base), i * 262144 + st * 4096))
            for ks in range(4):
                d = T + 4 * ((i * 2 + st) * 4 + ks)
                A('buffer_store_dwordx4 %s, %s, %s, %s offen offset:%d' % (vr(d, 4), vr(v_l16), sr(SRD_WS, 4), sr(s0), ks * 1024) + ' sc1')
    A('s_branch ' + L_done)

    def wid16():
        A('s_lshl_b32 %s, %s, 4' % (sr(s0), sr(s_q)))
        A('s_add_u32 %s, %s, %s' % (sr(s2_), sr(s_job), sr(s0)))
        A('s_lshl_b32 %s, %s, 2' % (sr(s2_), sr(s2_)))
        A('s_add_u32 %s, %s, %s' % (sr(s2_), sr(s2_), sr(s_w)))
    A.label(L['bkv'])
    if WT2:
        Lnt = A.uid('nt2')
        A('s_cmp_lg_u32 %s, 1' % sr(s_p))
        A('s_cbranch_scc1 ' + Lnt)
        wid16()
        touch([('A_x', 4 << 20)], s2_, 14)
        A.label(Lnt)
    A('s_lshl_b32 %s, %s, 5' % (sr(s0), sr(s_q)))
    A('s_add_u32 %s, %s, %s' % (sr(s_k), sr(s_job), sr(s0)))
    A('s_lshl_b32 %s, %s, 2' % (sr(s_k), sr(s_k)))
    A('s_add_u32 %s, %s, %s' % (sr(s_k), sr(s_k), sr(s_w)))
    A('s_cmp_eq_u32 %s, 3' % sr(s_p))
    A('s_cselect_b32 %s, %s, -1' % (sr(s_k), sr(s_k)))
    A('s_lshr_b32 %s, %s, 3' % (sr(s_mt), sr(s_job)))
    A('s_add_u32 %s, %s, %s' % (sr(s_mt), sr(s_mt), sr(s_p)))
    nt_q(0, 7)
    sel_kv(16)
    ctr(DBG_KV, s_mt, 4)
    A('s_branch ' + L['bigA'])
    A.label(L['q'])
    A('s_mov_b32 %s, -1' % sr(s_k))
    A('s_lshr_b32 %s, %s, 2' % (sr(s_mt), sr(s_job)))
    A('s_add_u32 %s, %s, %s' % (sr(s_mt), sr(s_mt), sr(s_p)))
    nt_q(0, 3)
    A('s_mov_b64 %s, %s' % (sr(s_pp, 2), sr(P['A_Wq'], 2)))
    A('s_mov_b32 %s, 0x%x' % (sr(s_base), QX))
    A('s_mov_b32 %s, 0' % sr(s_or))
    ctr(DBG_QR, s_mt, 1)
    A.label(L['bigA'])
    mk_srd(A, G.SRD_W, s_pp, 1024 * 4096 * 2)
    mk_srd(A, G.SRD_X, P['A_x'], 2048 * 1024 * 2)
    A('s_lshl_b32 %s, %s, 9' % (sr(G.s_wo), sr(s_nt)))
    A('s_mov_b32 %s, %d' % (sr(G.s_ws), 64 * 8192))
    A('s_mov_b32 %s, %d' % (sr(s_tbs), 128 * 2048))
    cfg(G4, 1, 'nat', 2048, 8192)
    A('s_branch ' + L['big'])
    A.label(L['bq'])
    A('s_mov_b32 %s, -1' % sr(s_k))
    A('s_mul_i32 %s, %s, 43' % (sr(s_mt), sr(s_job)))
    A('s_lshr_b32 %s, %s, 7' % (sr(s_mt), sr(s_mt)))
    A('s_mul_i32 %s, %s, 3' % (sr(s0), sr(s_mt)))
    A('s_sub_u32 %s, %s, %s' % (sr(s0), sr(s_job), sr(s0)))
    A('s_cmp_eq_u32 %s, 2' % sr(s0))
    A('s_cselect_b32 %s, 1, 0' % sr(s_or))
    A('s_lshl_b32 %s, %s, 22' % (sr(s_base), sr(s0)))
    A('s_add_u32 %s, %s, 0x%x' % (sr(s_base), sr(s_base), QB))
    A('s_lshl_b32 %s, %s, 2' % (sr(s0), sr(s0)))
    A('s_add_u32 %s, %s, %s' % (sr(s0), sr(s0), sr(s_q)))
    A('s_lshl_b32 %s, %s, 9' % (sr(G.s_wo), sr(s0)))
    A('s_mov_b32 %s, %s' % (sr(s_nt), sr(s_q)))
    mk_srd(A, G.SRD_W, P['B_wqkv'], 1024 * 3072 * 2)
    mk_srd(A, G.SRD_X, P['B_x'], 2048 * 1024 * 2)
    A('s_mov_b32 %s, %d' % (sr(G.s_ws), 64 * 6144))
    A('s_mov_b32 %s, %d' % (sr(s_tbs), 32 * 2048))
    ctr(DBG_BQ, s_mt, 1)
    cfg(G4, 2, 'nat', 2048, 6144)
    A.label(L['big'])
    A('s_lshl_b32 %s, %s, 19' % (sr(G.s_xo), sr(s_mt)))
    A('s_mov_b32 %s, 128' % sr(G.s_xs))
    A('s_mov_b32 %s, 7' % sr(G.s_n))
    blk_base(4, 4)
    wstamp(1)
    G4.prologue()
    wstamp(2)
    Lnt3 = A.uid('nt3')
    A('s_cmp_eq_u32 %s, -1' % sr(s_k))
    A('s_cbranch_scc1 ' + Lnt3)
    touch([('B_x', 4 << 20), ('B_wo', 2 << 20)], s_k, 13)
    touch([('B_wqkv', 6 << 20)], s_k, 14)
    A.label(Lnt3)
    LN, LE = A.uid('bN'), A.uid('bE')
    A('s_cmp_eq_u32 %s, 1' % sr(s_or))
    A('s_cbranch_scc1 ' + LN)
    G4.mainloop('T', 'bt')
    A('s_nop 15')
    A('s_branch ' + LE)
    A.label(LN)
    G4.mainloop('N', 'bn')
    A.label(LE)
    wstamp(3)
    early()
    G4.epi_blk(SRD_WS, v_l16, s_base, s_tbs, s0, ' sc1')
    A('s_branch ' + L_done)

    def attn_items():
        A('s_mov_b32 %s, 0' % sr(s_cfg))
        A('s_and_b32 %s, %s, 3' % (sr(s0), sr(s_job)))
        A('s_lshl_b32 %s, %s, 2' % (sr(s1), sr(s_q)))
        A('s_add_u32 %s, %s, %s' % (sr(s0), sr(s0), sr(s1)))
        A('s_lshl_b32 %s, %s, 1' % (sr(s0), sr(s0)))
        A('s_and_b32 %s, %s, 1' % (sr(s1), sr(s_w)))
        A('s_add_u32 %s, %s, %s' % (sr(s_it), sr(s0), sr(s1)))
        A('s_lshl_b32 %s, %s, 8' % (sr(s0), sr(s_mt)))
        A('s_add_u32 %s, %s, %s' % (sr(s_it), sr(s_it), sr(s0)))
        A('s_lshr_b32 %s, %s, 1' % (sr(s0), sr(s_w)))
        A('s_lshl_b32 %s, %s, 7' % (sr(s0), sr(s0)))
        A('s_add_u32 %s, %s, %s' % (sr(s_it), sr(s_it), sr(s0)))
        A('s_mov_b32 %s, 4' % sr(s_k))
        wstamp(1)

    def attn_loop(fn, tag):
        Lb = A.uid(tag)
        A.label(Lb)
        fn(A, SRD_WS, s_it, (s0, s1, s2_, s3), v_lane, v_l16, 8, ld=' sc1', stf=' sc1')
        A('s_add_u32 %s, %s, 32' % (sr(s_it), sr(s_it)))
        A('s_sub_u32 %s, %s, 1' % (sr(s_k), sr(s_k)))
        A('s_cmp_lg_u32 %s, 0' % sr(s_k))
        A('s_waitcnt vmcnt(0)')
        A('s_cbranch_scc1 ' + Lb)

    A.label(L['aattn'])
    A('s_lshr_b32 %s, %s, 2' % (sr(s_mt), sr(s_job)))
    A('s_add_u32 %s, %s, %s' % (sr(s_mt), sr(s_mt), sr(s_p)))
    A('s_lshl_b32 %s, %s, 2' % (sr(s_ctr), sr(s_mt)))
    A('s_add_u32 %s, %s, %d' % (sr(s0), sr(s_ctr), DBG_QR))
    A('s_lshl_b32 %s, %s, 3' % (sr(s1), sr(s_mt)))
    A('s_add_u32 %s, %s, %d' % (sr(s1), sr(s1), 7 + LAG))
    wait2(s0, 4, str(DBG_PROG), sr(s1))
    ctr(DBG_AA, s_mt, 1)
    attn_items()
    attn.attn_a_n(A, SRD_WS, s_it, (s0, s1, s2_, s3), v_lane, v_l16, 8, 4, ld=' sc1', stf=' sc1', late=early)
    A('s_branch ' + L_done)

    A.label(L['aattn1'])
    A('s_lshr_b32 %s, %s, 2' % (sr(s_mt), sr(s_p)))
    A('s_lshl_b32 %s, %s, 2' % (sr(s_ctr), sr(s_mt)))
    A('s_lshl_b32 %s, %s, 1' % (sr(s_it), sr(s_p)))
    A('s_lshr_b32 %s, %s, 1' % (sr(s0), sr(s_job)))
    A('s_add_u32 %s, %s, %s' % (sr(s_it), sr(s_it), sr(s0)))
    A('s_add_u32 %s, %s, %d' % (sr(s_tbs), sr(s_it), LAG))
    A('s_mov_b32 %s, %d' % (sr(s_base), DBG_PROG))
    A('s_cmp_gt_u32 %s, 60' % sr(s_it))
    A('s_cselect_b32 %s, 32, %s' % (sr(s_tbs), sr(s_tbs)))
    A('s_cselect_b32 %s, %d, %s' % (sr(s_base), DBG_FIN, sr(s_base)))
    A('s_add_u32 %s, %s, %d' % (sr(s0), sr(s_ctr), DBG_KV))
    A('s_add_u32 %s, %s, %d' % (sr(s1), sr(s_ctr), DBG_QR))
    wait2(s0, 32, s1, 4)
    A('s_add_u32 %s, %s, %d' % (sr(s_ctr), sr(s_ctr), DBG_AA))
    A('s_and_b32 %s, %s, 7' % (sr(s0), sr(s_it)))
    A('s_lshl_b32 %s, %s, 2' % (sr(s0), sr(s0)))
    A('s_lshl_b32 %s, 1, %s' % (sr(s_inc), sr(s0)))
    A('s_lshl_b32 %s, %s, 5' % (sr(s_it), sr(s_it)))
    A('s_lshl_b32 %s, %s, 3' % (sr(s0), sr(s_q)))
    A('s_add_u32 %s, %s, %s' % (sr(s_it), sr(s_it), sr(s0)))
    A('s_and_b32 %s, %s, 1' % (sr(s0), sr(s_job)))
    A('s_lshl_b32 %s, %s, 2' % (sr(s0), sr(s0)))
    A('s_add_u32 %s, %s, %s' % (sr(s_it), sr(s_it), sr(s0)))
    A('s_add_u32 %s, %s, %s' % (sr(s_it), sr(s_it), sr(s_w)))
    A('s_mov_b32 %s, 0' % sr(s_cfg))

    def pw1():
        wait_ctr(s_base, sr(s_tbs), slp=4)
        wstamp(1)
        early()
    attn.attn_a(A, SRD_WS, s_it, (s0, s1, s2_, s3), v_lane, v_l16, 8, ld=' sc1', stf=' sc1', pre_wait=pw1)
    A('s_branch ' + L_done)

    A.label(L['aoute'])
    wait_ctr(str(DBG_WT), 32)
    A('s_lshr_b32 %s, %s, 3' % (sr(s_mt), sr(s_job)))
    A('s_add_u32 %s, %s, %s' % (sr(s_mt), sr(s_mt), sr(s_p)))
    A('s_lshl_b32 %s, %s, 3' % (sr(s_nt), sr(s_q)))
    A('s_and_b32 %s, %s, 7' % (sr(s0), sr(s_job)))
    A('s_add_u32 %s, %s, %s' % (sr(s_nt), sr(s_nt), sr(s0)))
    A('s_mov_b32 %s, 0' % sr(s_inc))
    A('s_mov_b32 %s, 0' % sr(s_cfg))

    def pw2():
        A('s_lshr_b32 %s, %s, 3' % (sr(s0), sr(s_mt)))
        A('s_lshl_b32 %s, %s, 2' % (sr(s0), sr(s0)))
        A('s_add_u32 %s, %s, %d' % (sr(s0), sr(s0), DBG_AA))
        A('s_and_b32 %s, %s, 7' % (sr(s1), sr(s_mt)))
        A('s_lshl_b32 %s, %s, 2' % (sr(s1), sr(s1)))
        wait_ctr(s0, 2, s1, bits=4, slp=4)
        wstamp(1)
    out_direct32(A, SRD_WS, SRD_O, s_w, s_mt, s_nt, (s_base, s_tbs, s0, s_it, s_k), v_lane, v_l16, 8, ' sc1', pw2)
    A('s_branch ' + L_done)

    A.label(L['aoutd'])
    A('s_lshr_b32 %s, %s, 2' % (sr(s0), sr(s_p)))
    A('s_lshl_b32 %s, %s, 2' % (sr(s0), sr(s0)))
    A('s_add_u32 %s, %s, %d' % (sr(s0), sr(s0), DBG_AA))
    A('s_and_b32 %s, %s, 3' % (sr(s1), sr(s_p)))
    A('s_lshl_b32 %s, %s, 3' % (sr(s1), sr(s1)))
    wait2(str(DBG_WT), 32, s0, '0x22', s1)
    A('s_lshl_b32 %s, %s, 1' % (sr(s_mt), sr(s_p)))
    A('s_lshl_b32 %s, %s, 3' % (sr(s_nt), sr(s_q)))
    A('s_add_u32 %s, %s, %s' % (sr(s_nt), sr(s_nt), sr(s_job)))
    A('s_mov_b32 %s, 0' % sr(s_inc))
    A('s_mov_b32 %s, 0' % sr(s_cfg))
    wstamp(1)
    out_direct(A, SRD_WS, SRD_O, s_w, s_mt, s_nt, (s_base, s_tbs, s_it, s0, s1), v_lane, v_l16, v_off, 8, ld=' sc1', pre=early)
    A('s_branch ' + L_done)

    A.label(L['battn'])
    A('s_add_u32 %s, %s, %s' % (sr(s_job), sr(s_job), sr(s_p)))
    A('s_lshr_b32 %s, %s, 2' % (sr(s_mt), sr(s_job)))
    A('s_lshl_b32 %s, %s, 2' % (sr(s_ctr), sr(s_mt)))
    A('s_add_u32 %s, %s, %d' % (sr(s1), sr(s_ctr), DBG_BQ))
    A('s_add_u32 %s, %s, %d' % (sr(s0), sr(s_ctr), DBG_BQ - 4))
    A('s_max_u32 %s, %s, %d' % (sr(s0), sr(s0), DBG_BQ))
    wait2(s0, 3, s1, 3)
    ctr(DBG_BA, s_mt, 1)
    attn_items()
    attn.attn_b4(A, SRD_WS, s_it, (s0, s1, s2_, s3), v_lane, v_l16, 8, ld=' sc1', stf=' sc1', late=early)

    A.label(L_done)
    wstamp(4)
    Lq0 = A.uid('q0')
    A('s_cmp_lg_u32 %s, 0' % sr(s_init))
    A('s_cbranch_scc1 ' + Lq0)
    A('v_cmp_gt_u32 vcc, 8, %s' % vr(v_lane))
    A('v_lshlrev_b32 %s, 2, %s' % (vr(v_a), vr(v_lane)))
    A('v_mov_b32 %s, %d' % (vr(v_b), DBG_INIT))
    A('v_cndmask_b32 %s, %s, %s, vcc' % (vr(v_a), vr(v_b), vr(v_a)))
    A('buffer_load_dword %s, %s, %s, 0 offen sc1' % (vr(v_b), vr(v_a), sr(SRD_D, 4)))
    A('v_cndmask_b32 %s, 1, 32, vcc' % vr(v_a))
    A('s_waitcnt vmcnt(0)')
    A('v_cmp_ne_u32 vcc, %s, %s' % (vr(v_a), vr(v_b)))
    A('s_cbranch_vccnz ' + Lq0)
    A('s_mov_b32 %s, 1' % sr(s_init))
    A.label(Lq0)
    A('s_waitcnt vmcnt(0)')
    wstamp(5)
    Ld1, Ld2, Lsig = A.uid('d1'), A.uid('d2'), A.uid('sig')
    A('v_mov_b32 %s, %d' % (vr(v_a), LDS_JOB))
    A('s_cmp_lg_u32 %s, 0' % sr(s_w))
    A('s_cbranch_scc1 ' + Ld1)
    A('s_mov_b64 exec, 1')
    A('ds_write_b32 %s, %s' % (vr(v_a), vr(v_tk)))
    A('s_mov_b64 exec, -1')
    A('s_waitcnt lgkmcnt(0)')
    A.label(Ld1)
    A('s_barrier')
    Lck = A.uid('ck')
    A('s_cmp_lg_u32 %s, 0' % sr(s_init))
    A('s_cbranch_scc1 ' + Lck)
    place_check(A, SRD_D, v_lane, v_a, v_b, s3, LIM, L_restart)
    A.label(Lck)
    A('s_cmp_lg_u32 %s, 0' % sr(s_w))
    A('s_cbranch_scc1 ' + Ld2)
    A('s_cmp_lg_u32 %s, 0' % sr(s_inc))
    A('s_cbranch_scc1 ' + Lsig)
    A.label(Ld2)
    A('s_cmp_eq_u32 %s, 0' % sr(s_et))
    A('s_cbranch_scc1 ' + L_next)
    A('s_mov_b32 %s, 0' % sr(s_et))
    A('v_mov_b32 %s, %d' % (vr(v_a), LDS_JOB))
    A('ds_read_b32 %s, %s' % (vr(v_b), vr(v_a)))
    A('s_waitcnt lgkmcnt(0)')
    A('v_readfirstlane_b32 %s, %s' % (sr(s_job), vr(v_b)))
    A('s_barrier')
    A('s_branch ' + L_got)
    A.label(Lsig)
    wait_init()
    A('s_add_u32 %s, %s, %s' % (sr(s0), sr(s_ctr), sr(s_q)))
    A('s_lshl_b32 %s, %s, 7' % (sr(s0), sr(s0)))
    A('s_add_u32 %s, %s, 0x%x' % (sr(s0), sr(s0), CTR))
    A('v_mov_b32 %s, %s' % (vr(v_a), sr(s0)))
    A('v_mov_b32 %s, %s' % (vr(v_b), sr(s_inc)))
    A('s_mov_b64 exec, 1')
    A('buffer_atomic_add %s, %s, %s, 0 offen sc1' % (vr(v_b), vr(v_a), sr(SRD_WS, 4)))
    Lk0 = A.uid('k0')
    A('s_cmp_lg_u32 %s, %d' % (sr(s_ctr), DBG_KV))
    A('s_cbranch_scc1 ' + Lk0)
    A('s_cmp_lg_u32 %s, 0' % sr(s_mt))
    A('s_cbranch_scc1 ' + Lk0)
    A('v_add_u32 %s, %d, %s' % (vr(v_a), (DBG_KV0 - DBG_KV) * 128, vr(v_a)))
    A('v_mov_b32 %s, 2' % vr(v_b))
    A('buffer_atomic_add %s, %s, %s, 0 offen sc1' % (vr(v_b), vr(v_a), sr(SRD_WS, 4)))
    A.label(Lk0)
    A('s_mov_b64 exec, -1')
    A('s_branch ' + Ld2)
    return hi
```

```python
from asmlib import *
from layout import *
import struct, os
from kernels import place_check, shift_ptrs


def f32bits(x):
    return struct.unpack('<I', struct.pack('<f', x))[0]


def env(n, d):
    return int(os.environ.get(n, str(d)))


LDS_RED = 131072
LDS_O = LDS_RED + 16384
LDS_ROLE = LDS_O + 8192
NSTEP = env('NSTEP', 64)
POLL_LIMIT = 400000
NEARX = env('NEARX', 1)
DELAY_C = env('DELAY_C', 4)
DELAY_E = env('DELAY_E', 12)
E_BACK = env('E_BACK', 0)
DELAY_V = env('DELAY_V', 6)
RED_SLEEP = env('RED_SLEEP', 3)
NOE_SLEEP = env('NOE_SLEEP', 10)
NOPF = env('NOPF', 0)
FORCE_SAFE = env('FORCE_SAFE', 0)
PFC = env('PFC', 0)
VS = [int(x) for x in os.environ.get('VS', '8,3,5').split(',')]
A2 = env('A2', 1)
S3 = env('S3', 2)
HINT = env('HINT', 7)
DBGT = env('DBGT', 0)
LITE = [int(x) for x in os.environ.get('LITE', '').split(',') if x]


def gen_chain(A, name, stamps=False, nsteps=NSTEP, worker=None):
    S = Regs('s', 16, 100)
    V = Regs('v', 1, 256)
    SRD_WS, SRD_T = 8, 12
    s_ptr = S.alloc(16, 4)
    (s_w, s_x, s_j, s_t0, s_t1, s_t2, s_t3, s_step, s_slot, s_slot1, s_slot2, s_slotp, s_kx, s_kx2, s_out, s_outp, s_fffe, s_c,
     s_lim, s_cnt, s_vote, s_stamp, s_stl, s_red, s_obm, s_kvo, s_ps, s_ps2, s_m0, s_m1) = [S.alloc() for _ in range(30)]
    s_hf = S.alloc(2, 2)
    s_tm = S.alloc(2, 2)
    s_ta = S.alloc(2, 2)
    s_kvm = S.alloc(2, 2)
    SRD_A = S.alloc(4, 4)
    SRD_B = S.alloc(4, 4)
    SRD_D = S.alloc(4, 4)
    v_lane, v_nu, v_g = V.alloc(), V.alloc(), V.alloc()
    v_t = [V.alloc() for _ in range(8)]
    (va_memr, va_mems, va_rw, va_rr, va_qks, va_rb, va_vs, va_cp, va_prog, va_qkr, va_vmr, va_kx, va_vx, va_ow, va_or, va_pw, va_pr,
     va_pz, va_pd, va_warm, v_idx, v_bias, v_junk, v_kvf, v_junk2, v_sh, va_flg, va_pg) = [V.alloc() for _ in range(28)]
    v_m1 = V.alloc(4, 4)
    v_mask = V.alloc(4, 4)
    v_sel = V.alloc(4, 4)
    v_maskx = V.alloc(4, 4)
    v_ones = V.alloc(4, 4)
    acc1 = V.alloc(4, 4)
    acc2 = V.alloc(4, 4)
    KXA = V.alloc(16, 4)
    KXB = V.alloc(16, 4)
    VXR = V.alloc(32, 4)
    F = V.alloc(64, 4)
    VMR = V.alloc(8, 4)
    QK = V.alloc(16, 4)
    M = V.alloc(16, 4)
    assert KXB == KXA + 16 and VXR == KXA + 32 and F == KXA + 64
    LND = KXA
    AC = F
    HA = F + 32
    RD = F + 48
    SA, SB, SM = F, F + 4, F + 8
    PX, PXH = F + 12, F + 16
    PM, PMH = F + 20, F + 22
    O = F + 28
    LS = F + 44
    v_mx, v_mx2, v_l = F + 48, F + 49, F + 50
    XY = QK
    G = F
    PR = KXA
    RB = KXA + 8
    W1, W2 = 0, 128
    L_exit = name + '_exit'
    nvm = [0]

    def stamp(k):
        if not stamps or (LITE and k not in LITE):
            return
        A('%s %s' % ('s_memrealtime' if stamps == 'rt' else 's_memtime', sr(s_tm, 2)))
        A('s_waitcnt lgkmcnt(0)')
        A('v_mov_b32 %s, %s' % (vr(v_t[7]), sr(s_tm)))
        A('v_mov_b32 %s, %s' % (vr(v_t[6]), sr(s_stl)))
        A('ds_write_b32 %s, %s offset:%d' % (vr(v_t[6]), vr(v_t[7]), 4 * k))
        if k in (0, 2, 6):
            A('v_mov_b32 %s, %s' % (vr(v_t[5]), sr(s_cnt)))
            A('ds_write_b32 %s, %s offset:%d' % (vr(v_t[6]), vr(v_t[5]), 4 * (8 + k)))

    def dbgt(word):
        if not DBGT:
            return
        A('s_memrealtime %s' % sr(s_tm, 2))
        A('s_waitcnt lgkmcnt(0)')
        A('v_mov_b32 %s, %s' % (vr(v_t[7]), sr(s_tm)))
        A('v_mov_b32 %s, %d' % (vr(v_t[6]), word * 4))
        A('s_mov_b64 exec, 1')
        A('buffer_atomic_umax %s, %s, %s, 0 offen sc1' % (vr(v_t[7]), vr(v_t[6]), sr(SRD_T, 4)))
        A('s_mov_b64 exec, -1')

    def srd(dst, ptr, nbytes):
        A('s_mov_b32 %s, %s' % (sr(dst), sr(ptr)))
        A('s_and_b32 %s, %s, 0xffff' % (sr(dst + 1), sr(ptr + 1)))
        A('s_mov_b32 %s, 0x%x' % (sr(dst + 2), nbytes))
        A('s_mov_b32 %s, 0x00020000' % sr(dst + 3))

    A.raw('.p2align 8')
    A.label(name)
    A('s_cmp_ge_u32 s2, 256')
    A('s_cbranch_scc1 ' + L_exit)
    A('s_mov_b32 s%d, 0' % S_MODE)
    L_restart = name + '_restart'
    A.label(L_restart)
    A('s_load_dwordx2 %s, s[0:1], 8' % sr(s_ptr, 2))
    A('s_load_dwordx4 %s, s[0:1], 16' % sr(s_ptr + 4, 4))
    A('s_load_dwordx4 %s, s[0:1], 32' % sr(s_ptr + 8, 4))
    A('s_load_dwordx4 %s, s[0:1], 88' % sr(s_ptr + 12, 4))
    P_MEM0, P_WQ, P_WK, P_WV, P_WO, P_DBG, P_WS = s_ptr, s_ptr + 4, s_ptr + 6, s_ptr + 8, s_ptr + 10, s_ptr + 12, s_ptr + 14
    A('v_and_b32 %s, 63, v0' % vr(v_lane))
    A('v_lshrrev_b32 %s, 6, v0' % vr(v_t[0]))
    A('v_readfirstlane_b32 %s, %s' % (sr(s_w), vr(v_t[0])))
    A('v_and_b32 %s, 15, %s' % (vr(v_nu), vr(v_lane)))
    A('v_lshrrev_b32 %s, 4, %s' % (vr(v_g), vr(v_lane)))
    A('s_waitcnt lgkmcnt(0)')
    shift_ptrs(A, P_WS, P_DBG, s_t0)
    srd(SRD_WS, P_WS, WS_HALF)
    srd(SRD_T, P_DBG, 128)
    L_role = A.uid('role')
    A('s_lshr_b32 %s, s2, 5' % sr(s_x))
    A('s_and_b32 %s, s2, 31' % sr(s_j))
    A('s_cmp_lg_u32 s%d, 0' % S_MODE)
    A('s_cbranch_scc1 ' + L_role)
    A('s_getreg_b32 %s, hwreg(HW_REG_XCC_ID)' % sr(s_x))
    A('s_and_b32 %s, %s, 7' % (sr(s_x), sr(s_x)))
    if FORCE_SAFE:
        A('s_cmp_eq_u32 s2, %d' % FORCE_SAFE)
        A('s_cselect_b32 %s, 1, 0' % sr(s_t0))
        A('s_xor_b32 %s, %s, %s' % (sr(s_x), sr(s_x), sr(s_t0)))
    L_norole = A.uid('norole')
    A('s_cmp_lg_u32 %s, 0' % sr(s_w))
    A('s_cbranch_scc1 ' + L_norole)
    A('s_lshl_b32 %s, %s, 2' % (sr(s_t0), sr(s_x)))
    A('v_mov_b32 %s, %s' % (vr(v_t[0]), sr(s_t0)))
    A('v_mov_b32 %s, 1' % vr(v_t[1]))
    A('s_mov_b64 exec, 1')
    A('buffer_atomic_add %s, %s, %s, 0 offen sc0 sc1' % (vr(v_t[1]), vr(v_t[0]), sr(SRD_T, 4)))
    A('s_waitcnt vmcnt(0)')
    A('v_mov_b32 %s, %d' % (vr(v_t[0]), LDS_ROLE))
    A('ds_write_b32 %s, %s' % (vr(v_t[0]), vr(v_t[1])))
    A('s_waitcnt lgkmcnt(0)')
    A('s_mov_b64 exec, -1')
    A.label(L_norole)
    A('s_barrier')
    A('v_mov_b32 %s, %d' % (vr(v_t[0]), LDS_ROLE))
    A('ds_read_b32 %s, %s' % (vr(v_t[1]), vr(v_t[0])))
    A('s_waitcnt lgkmcnt(0)')
    A('v_readfirstlane_b32 %s, %s' % (sr(s_j), vr(v_t[1])))
    A.label(L_role)
    L_work = name + '_worker'
    A('s_mov_b32 s%d, %s' % (S_VX, sr(s_x)))
    A('s_mov_b32 s3, %s' % sr(s_j))
    A('s_cmp_ge_u32 %s, 4' % sr(s_x))
    A('s_cbranch_scc1 ' + L_work)
    A('s_cmp_ge_u32 %s, 32' % sr(s_j))
    A('s_cbranch_scc1 ' + L_work)
    A('s_mov_b32 s3, -1')
    A('s_lshl_b32 %s, %s, 1' % (sr(s_x), sr(s_x)))
    A('s_lshr_b32 %s, %s, 4' % (sr(s_t0), sr(s_j)))
    A('s_add_u32 %s, %s, %s' % (sr(s_x), sr(s_x), sr(s_t0)))
    A('s_and_b32 %s, %s, 15' % (sr(s_j), sr(s_j)))
    A('s_xor_b32 %s, %s, %s' % (sr(s_red), sr(s_x), sr(s_j)))
    A('s_and_b32 %s, %s, 1' % (sr(s_red), sr(s_red)))
    A('s_lshr_b32 %s, %s, 1' % (sr(s_obm), sr(s_x)))
    A('s_lshl_b32 %s, %s, 4' % (sr(s_obm), sr(s_obm)))
    A('s_add_u32 %s, %s, %s' % (sr(s_obm), sr(s_obm), sr(s_j)))
    A('s_lshl_b32 %s, %s, 10' % (sr(s_obm), sr(s_obm)))
    L_noz = A.uid('noz')
    A('s_or_b32 %s, %s, %s' % (sr(s_t0), sr(s_x), sr(s_j)))
    A('s_xor_b32 %s, %s, 1' % (sr(s_t1), sr(s_w)))
    A('s_or_b32 %s, %s, %s' % (sr(s_t0), sr(s_t0), sr(s_t1)))
    A('s_cmp_lg_u32 %s, 0' % sr(s_t0))
    A('s_cbranch_scc1 ' + L_noz)
    A('v_lshlrev_b32 %s, 7, %s' % (vr(v_t[0]), vr(v_lane)))
    A('v_mov_b32 %s, 0' % vr(v_t[1]))
    for i in range(4):
        A('s_mov_b32 %s, 0x%x' % (sr(s_t0), CTR + i * 8192))
        A('buffer_store_dword %s, %s, %s, %s offen sc1' % (vr(v_t[1]), vr(v_t[0]), sr(SRD_WS, 4), sr(s_t0)))
    A('s_waitcnt vmcnt(0)')
    A('v_mov_b32 %s, %d' % (vr(v_t[0]), DBG_INIT))
    A('v_mov_b32 %s, 1' % vr(v_t[1]))
    A('s_mov_b64 exec, 1')
    A('buffer_store_dword %s, %s, %s, 0 offen sc1' % (vr(v_t[1]), vr(v_t[0]), sr(SRD_T, 4)))
    A('s_mov_b64 exec, -1')
    dbgt(10)
    A.label(L_noz)
    for i in range(4):
        A('v_mov_b32 %s, -1' % vr(v_m1 + i))
    l16 = v_t[2]
    A('v_lshlrev_b32 %s, 4, %s' % (vr(l16), vr(v_lane)))
    s_ob = s_t3
    A('s_lshl_b32 %s, %s, 4' % (sr(s_ob), sr(s_x)))
    A('s_add_u32 %s, %s, %s' % (sr(s_ob), sr(s_ob), sr(s_j)))
    A('s_lshl_b32 %s, %s, 10' % (sr(s_ob), sr(s_ob)))

    A('s_lshl_b32 %s, %s, 17' % (sr(s_t0), sr(s_w)))
    A('s_add_u32 %s, %s, %s' % (sr(s_t2), sr(s_t0), sr(s_ob)))
    for base in (QKI, VMI):
        A('s_add_u32 %s, %s, 0x%x' % (sr(s_t1), sr(s_t2), base))
        A('buffer_store_dwordx4 %s, %s, %s, %s offen sc1' % (vr(v_m1, 4), vr(l16), sr(SRD_WS, 4), sr(s_t1)))
    A('s_add_u32 %s, %s, %s' % (sr(s_t0), sr(s_t0), sr(s_obm)))
    A('s_add_u32 %s, %s, 0x%x' % (sr(s_t1), sr(s_t0), MEMI))
    A('buffer_store_dwordx4 %s, %s, %s, %s offen sc1' % (vr(v_m1, 4), vr(l16), sr(SRD_WS, 4), sr(s_t1)))
    A('s_lshl_b32 %s, %s, 14' % (sr(s_t0), sr(s_j)))
    A('s_lshl_b32 %s, %s, 11' % (sr(s_t1), sr(s_w)))
    A('s_add_u32 %s, %s, %s' % (sr(s_t0), sr(s_t0), sr(s_t1)))
    A('s_add_u32 %s, %s, 0x%x' % (sr(s_t0), sr(s_t0), PART))
    A('v_add_u32 %s, %s, %s' % (vr(va_pr), sr(s_t0), vr(l16)))
    A('s_lshl_b32 %s, %s, 8' % (sr(s_t1), sr(s_x)))
    A('v_add_u32 %s, %s, %s' % (vr(va_pw), sr(s_t1), vr(va_pr)))
    A('v_add_u32 %s, 8192, %s' % (vr(va_pz), vr(va_pw)))
    A('s_mov_b64 exec, 0xffff')
    for sl in range(4):
        A('s_mov_b32 %s, 0x%x' % (sr(s_t1), sl * 0x40000))
        A('buffer_store_dwordx4 %s, %s, %s, %s offen sc1' % (vr(v_m1, 4), vr(va_pw), sr(SRD_WS, 4), sr(s_t1)))
        A('buffer_store_dwordx4 %s, %s, %s, %s offen sc1' % (vr(v_m1, 4), vr(va_pz), sr(SRD_WS, 4), sr(s_t1)))
    A('s_mov_b64 exec, -1')
    A('s_lshr_b32 %s, %s, 1' % (sr(s_t0), sr(s_x)))
    A('s_lshl_b32 %s, %s, 8' % (sr(s_t0), sr(s_t0)))
    A('s_add_u32 %s, %s, 0x%x' % (sr(s_t0), sr(s_t0), FLG))
    A('v_lshl_add_u32 %s, %s, 2, %s' % (vr(va_flg), vr(v_nu), sr(s_t0)))
    Lfr = A.uid('fr')
    A('s_cmp_eq_u32 %s, 0' % sr(s_red))
    A('s_cbranch_scc1 ' + Lfr)
    A('s_and_b32 %s, %s, 1' % (sr(s_t1), sr(s_x)))
    A('s_lshl_b32 %s, %s, 5' % (sr(s_t1), sr(s_t1)))
    A('s_add_u32 %s, %s, %s' % (sr(s_t0), sr(s_t0), sr(s_t1)))
    A('s_lshr_b32 %s, %s, 1' % (sr(s_t1), sr(s_j)))
    A('s_lshl_b32 %s, %s, 2' % (sr(s_t1), sr(s_t1)))
    A('s_add_u32 %s, %s, %s' % (sr(s_t0), sr(s_t0), sr(s_t1)))
    A('v_min_u32 %s, 1, v0' % vr(va_flg))
    A('v_lshl_add_u32 %s, %s, 28, %s' % (vr(va_flg), vr(va_flg), sr(s_t0)))
    A('buffer_store_dword %s, %s, %s, 0 offen sc1' % (vr(v_m1), vr(va_flg), sr(SRD_WS, 4)))
    A.label(Lfr)
    L_nocal, L_nocal2 = A.uid('nocal'), A.uid('nocal2')
    A('s_mov_b32 %s, 1' % sr(s_vote))
    A('s_cmp_ge_u32 %s, 4' % sr(s_j))
    A('s_cbranch_scc1 ' + L_nocal2)
    A('s_waitcnt vmcnt(0)')
    A('s_barrier')
    A('s_cmp_lg_u32 %s, 0' % sr(s_w))
    A('s_cbranch_scc1 ' + L_nocal)
    A('s_mov_b32 %s, -1' % sr(s_m0))
    A('s_mov_b32 %s, -1' % sr(s_m1))
    A('s_mov_b64 exec, 0xffff')
    for rep in range(2):
        for c in range(2):
            A('s_mov_b32 %s, %d' % (sr(s_t1), 0x80000 + rep * 0x40000))
            A('s_memtime %s' % sr(s_ta, 2))
            A('s_waitcnt lgkmcnt(0)')
            A('buffer_store_dwordx4 %s, %s, %s, %s offen sc1' % (vr(v_m1, 4), vr(va_pz if c else va_pw), sr(SRD_WS, 4), sr(s_t1)))
            A('s_waitcnt vmcnt(0)')
            A('s_memtime %s' % sr(s_tm, 2))
            A('s_waitcnt lgkmcnt(0)')
            A('s_sub_u32 %s, %s, %s' % (sr(s_t2), sr(s_tm), sr(s_ta)))
            A('s_min_u32 %s, %s, %s' % (sr(s_m1 if c else s_m0), sr(s_m1 if c else s_m0), sr(s_t2)))
    A('s_cmp_lt_u32 %s, %s' % (sr(s_m1), sr(s_m0)))
    A('s_cselect_b32 %s, 0x10001, 1' % sr(s_vote))
    A('s_mov_b64 exec, -1')
    A.label(L_nocal)
    A('s_barrier')
    A.label(L_nocal2)

    s_col = s_t2
    A('s_lshr_b32 %s, %s, 4' % (sr(s_col), sr(s_ob)))
    vw = v_t[4]
    A('v_lshrrev_b32 %s, 2, %s' % (vr(vw), vr(v_lane)))
    A('v_lshlrev_b32 %s, 13, %s' % (vr(vw), vr(vw)))
    A('v_and_b32 %s, 3, %s' % (vr(v_t[5]), vr(v_lane)))
    A('v_lshl_add_u32 %s, %s, 4, %s' % (vr(vw), vr(v_t[5]), vr(vw)))
    A('s_lshl_b32 %s, %s, 17' % (sr(s_t0), sr(s_w)))
    A('s_add_u32 %s, %s, %s' % (sr(s_col), sr(s_col), sr(s_t0)))
    A('s_lshl_b32 %s, %s, 10' % (sr(s_t0), sr(s_w)))
    for mi, P in enumerate((P_WQ, P_WK)):
        srd(SRD_A, P, 1024 * 4096 * 2)
        for i in range(16):
            A('s_add_u32 m0, %s, %d' % (sr(s_t0), mi * 65536 + i * 4096))
            A('s_add_u32 %s, %s, %d' % (sr(s_t1), sr(s_col), i * 4 * 131072))
            A('buffer_load_dwordx4 %s, %s, %s offen lds' % (vr(vw), sr(SRD_A, 4), sr(s_t1)))
        if mi == 0:
            A('s_waitcnt vmcnt(16)')
            A('s_barrier')
            L_nord = A.uid('nord')
            A('s_cmp_lg_u32 %s, 0' % sr(s_w))
            A('s_cbranch_scc1 ' + L_nord)
            A('v_mov_b32 %s, 32' % vr(acc2))
            A('v_mov_b32 %s, %s' % (vr(acc2 + 1), sr(s_vote)))
            A('s_mov_b64 exec, 1')
            A('buffer_atomic_add %s, %s, %s, 0 offen sc1' % (vr(acc2 + 1), vr(acc2), sr(SRD_T, 4)))
            A('s_mov_b64 exec, -1')
            A.label(L_nord)
            A('s_nop 4')
    v2 = v_t[5]
    LwN, LwJ = A.uid('wN'), A.uid('wJ')
    A('s_cmp_lg_u32 %s, 0' % sr(s_red))
    A('s_cbranch_scc1 ' + LwN)
    srd(SRD_B, P_WV, 1024 * 4096 * 2)
    A('v_lshrrev_b32 %s, 3, %s' % (vr(v2), vr(v_lane)))
    A('v_lshlrev_b32 %s, 13, %s' % (vr(v2), vr(v2)))
    A('v_and_b32 %s, 7, %s' % (vr(v_t[6]), vr(v_lane)))
    A('v_lshl_add_u32 %s, %s, 4, %s' % (vr(v2), vr(v_t[6]), vr(v2)))
    A('s_lshr_b32 %s, %s, 4' % (sr(s_t2), sr(s_ob)))
    A('s_andn2_b32 %s, %s, 64' % (sr(s_t2), sr(s_t2)))
    A('s_lshl_b32 %s, %s, 16' % (sr(s_t1), sr(s_w)))
    A('s_add_u32 %s, %s, %s' % (sr(s_t2), sr(s_t2), sr(s_t1)))
    A('s_mov_b32 %s, %d' % (sr(s_t0), 4 * 65536))
    A('s_branch ' + LwJ)
    A.label(LwN)
    srd(SRD_B, P_WO, 4096 * 1024 * 2)
    A('v_lshlrev_b32 %s, 11, %s' % (vr(v2), vr(v_g)))
    A('v_lshl_add_u32 %s, %s, 4, %s' % (vr(v2), vr(v_nu), vr(v2)))
    A('s_lshl_b32 %s, %s, 20' % (sr(s_t2), sr(s_x)))
    A('s_lshr_b32 %s, %s, 1' % (sr(s_t1), sr(s_j)))
    A('s_lshl_b32 %s, %s, 8' % (sr(s_t1), sr(s_t1)))
    A('s_add_u32 %s, %s, %s' % (sr(s_t2), sr(s_t2), sr(s_t1)))
    A('s_lshl_b32 %s, %s, 13' % (sr(s_t1), sr(s_w)))
    A('s_add_u32 %s, %s, %s' % (sr(s_t2), sr(s_t2), sr(s_t1)))
    A('s_mov_b32 %s, %d' % (sr(s_t0), 4 * 8192))
    A.label(LwJ)
    for i in range(32):
        A('buffer_load_dwordx4 %s, %s, %s, %s offen' % (vr(LND + 4 * i, 4), vr(v2), sr(SRD_B, 4), sr(s_t2)))
        A('s_add_u32 %s, %s, %s' % (sr(s_t2), sr(s_t2), sr(s_t0)))
    srd(SRD_D, P_MEM0, 8 * 1024 * 2)
    vm0 = v_t[6]
    A('v_and_b32 %s, 7, %s' % (vr(vm0), vr(v_nu)))
    A('v_lshlrev_b32 %s, 11, %s' % (vr(vm0), vr(vm0)))
    A('v_lshl_add_u32 %s, %s, 5, %s' % (vr(vm0), vr(v_g), vr(vm0)))
    A('v_lshrrev_b32 %s, 3, %s' % (vr(v_t[7]), vr(v_nu)))
    A('v_lshl_add_u32 %s, %s, 2, %s' % (vr(vm0), vr(v_t[7]), vr(vm0)))
    A('s_lshl_b32 %s, %s, 9' % (sr(s_t1), sr(s_w)))
    for k in range(4):
        for a in range(4):
            A('buffer_load_dword %s, %s, %s, %s offen offset:%d' % (vr(M + 4 * k + a), vr(vm0), sr(SRD_D, 4), sr(s_t1), k * 128 + a * 8))

    A('s_mov_b32 %s, 0xfffefffe' % sr(s_fffe))
    A('s_mov_b32 %s, 0x%x' % (sr(s_c), f32bits(128 ** -0.5 * 1.4426950408889634)))
    A('s_mov_b32 %s, %d' % (sr(s_lim), POLL_LIMIT))
    A('s_mov_b32 %s, 0xff00ff00' % sr(s_hf))
    A('s_mov_b32 %s, 0xff00ff00' % sr(s_hf + 1))
    ta, tb, tc = v_t[0], v_t[1], v_t[7]
    A('v_mov_b32 %s, 0x%x' % (vr(ta), f32bits(-1e30)))
    for i in range(4):
        A('v_cndmask_b32 %s, 0, %s, %s' % (vr(v_maskx + i), vr(ta), sr(s_hf, 2)))
    A('v_cmp_gt_u32 vcc, 32, %s' % vr(v_lane))
    for i in range(4):
        A('v_cndmask_b32 %s, %s, %s, vcc' % (vr(v_mask + i), vr(v_maskx), vr(ta)))
    A('v_mov_b32 %s, 0x%x' % (vr(ta), f32bits(-3e38)))
    A('v_cndmask_b32 %s, %s, 0, %s' % (vr(v_bias), vr(ta), sr(s_hf, 2)))
    for i in range(4):
        A('v_mov_b32 %s, 0x3f803f80' % vr(v_ones + i))
    A('v_mov_b32 %s, 0x4444' % vr(ta))
    A('v_mov_b32 %s, 0xeeee' % vr(tb))
    A('v_cndmask_b32 %s, %s, %s, %s' % (vr(v_idx), vr(ta), vr(tb), sr(s_hf, 2)))
    A('v_bfe_u32 %s, %s, 2, 1' % (vr(ta), vr(v_nu)))
    A('v_bfe_u32 %s, %s, 1, 1' % (vr(tb), vr(v_nu)))
    A('v_lshl_add_u32 %s, %s, 1, %s' % (vr(ta), vr(tb), vr(ta)))
    A('v_and_b32 %s, 1, %s' % (vr(tb), vr(v_nu)))
    A('v_lshlrev_b32 %s, 4, %s' % (vr(tb), vr(tb)))
    A('v_mov_b32 %s, 0x3f80' % vr(tc))
    A('v_lshlrev_b32 %s, %s, %s' % (vr(tb), vr(tb), vr(tc)))
    for d in range(4):
        A('v_cmp_eq_u32 vcc, %d, %s' % (d, vr(ta)))
        A('v_cndmask_b32 %s, 0, %s, vcc' % (vr(v_sel + d), vr(tb)))

    s_p, s_wh = s_t0, s_t1
    A('s_and_b32 %s, %s, 1' % (sr(s_p), sr(s_w)))
    A('s_lshr_b32 %s, %s, 1' % (sr(s_wh), sr(s_w)))
    A('s_lshl_b32 %s, %s, 12' % (sr(s_t2), sr(s_w)))
    A('v_add_u32 %s, %s, %s' % (vr(ta), sr(s_t2), vr(l16)))
    A('s_lshr_b32 %s, %s, 1' % (sr(s_t2), sr(s_x)))
    A('s_lshl_b32 %s, %s, 14' % (sr(s_t2), sr(s_t2)))
    A('s_add_u32 %s, %s, 0x%x' % (sr(s_t2), sr(s_t2), MEMI))
    A('v_add_u32 %s, %s, %s' % (vr(va_memr), sr(s_t2), vr(ta)))
    A('s_lshl_b32 %s, %s, 14' % (sr(s_t2), sr(s_x)))
    A('s_add_u32 %s, %s, 0x%x' % (sr(s_t2), sr(s_t2), QKI))
    A('v_add_u32 %s, %s, %s' % (vr(va_qkr), sr(s_t2), vr(ta)))
    A('s_lshl_b32 %s, %s, 12' % (sr(s_cnt), sr(s_w)))
    A('s_add_u32 %s, %s, %s' % (sr(s_t2), sr(s_t2), sr(s_cnt)))
    A('s_add_u32 %s, %s, 0x%x' % (sr(s_t2), sr(s_t2), VMI - QKI))
    A('v_and_b32 %s, 31, %s' % (vr(va_vmr), vr(v_lane)))
    A('v_lshlrev_b32 %s, 4, %s' % (vr(va_vmr), vr(va_vmr)))
    A('v_lshrrev_b32 %s, 5, %s' % (vr(ta), vr(v_lane)))
    A('v_xor_b32 %s, 1, %s' % (vr(ta), vr(ta)))
    A('v_lshl_add_u32 %s, %s, 11, %s' % (vr(va_vmr), vr(ta), vr(va_vmr)))
    A('v_add_u32 %s, %s, %s' % (vr(va_vmr), sr(s_t2), vr(va_vmr)))
    A('s_lshl_b32 %s, %s, 12' % (sr(s_t2), sr(s_w)))
    A('s_add_u32 %s, %s, %d' % (sr(s_t2), sr(s_t2), LDS_RED))
    A('v_lshl_add_u32 %s, %s, 3, %s' % (vr(va_rw), vr(v_lane), sr(s_t2)))
    A('v_lshrrev_b32 %s, 5, %s' % (vr(ta), vr(v_lane)))
    A('v_lshlrev_b32 %s, 13, %s' % (vr(ta), vr(ta)))
    A('v_and_b32 %s, 31, %s' % (vr(tb), vr(v_lane)))
    A('v_lshl_add_u32 %s, %s, 4, %s' % (vr(ta), vr(tb), vr(ta)))
    A('s_lshl_b32 %s, %s, 9' % (sr(s_t2), sr(s_w)))
    A('s_add_u32 %s, %s, %d' % (sr(s_t2), sr(s_t2), LDS_RED))
    A('v_add_u32 %s, %s, %s' % (vr(va_rr), sr(s_t2), vr(ta)))
    vR, vcp, vH = tc, acc1, acc1 + 1
    A('v_bfe_u32 %s, %s, 3, 1' % (vr(ta), vr(v_lane)))
    A('v_bfe_u32 %s, %s, 4, 1' % (vr(tb), vr(v_lane)))
    A('v_lshlrev_b32 %s, 2, %s' % (vr(vR), vr(ta)))
    A('v_lshl_add_u32 %s, %s, 1, %s' % (vr(vR), vr(tb), vr(vR)))
    A('v_and_b32 %s, 7, %s' % (vr(vcp), vr(v_lane)))
    A('v_lshrrev_b32 %s, 5, %s' % (vr(vH), vr(v_lane)))
    A('v_lshlrev_b32 %s, 8, %s' % (vr(va_vs), vr(ta)))
    A('v_lshl_add_u32 %s, %s, 5, %s' % (vr(va_vs), vr(vcp), vr(va_vs)))
    A('v_lshl_add_u32 %s, %s, 4, %s' % (vr(va_vs), vr(vH), vr(va_vs)))
    A('v_lshl_add_u32 %s, %s, 2, %s' % (vr(va_vs), vr(tb), vr(va_vs)))
    A('s_andn2_b32 %s, %s, 1024' % (sr(s_t2), sr(s_ob)))
    A('s_lshl_b32 %s, %s, 10' % (sr(s_cnt), sr(s_wh)))
    A('s_add_u32 %s, %s, %s' % (sr(s_t2), sr(s_t2), sr(s_cnt)))
    A('s_lshl_b32 %s, %s, 3' % (sr(s_cnt), sr(s_p)))
    A('s_add_u32 %s, %s, %s' % (sr(s_t2), sr(s_t2), sr(s_cnt)))
    A('s_add_u32 %s, %s, 0x%x' % (sr(s_t2), sr(s_t2), VMI))
    A('v_add_u32 %s, %s, %s' % (vr(va_vs), sr(s_t2), vr(va_vs)))
    A('v_bfe_u32 %s, %s, 1, 1' % (vr(ta), vr(vcp)))
    A('v_lshlrev_b32 %s, 8, %s' % (vr(va_qks), vr(ta)))
    A('v_add_u32 %s, %s, %s' % (vr(vR), vr(vR), vr(vH)))
    A('v_lshl_add_u32 %s, %s, 4, %s' % (vr(va_qks), vr(vR), vr(va_qks)))
    A('v_lshrrev_b32 %s, 2, %s' % (vr(ta), vr(vcp)))
    A('v_lshl_add_u32 %s, %s, 3, %s' % (vr(va_qks), vr(ta), vr(va_qks)))
    A('v_and_b32 %s, 1, %s' % (vr(ta), vr(vcp)))
    A('v_lshl_add_u32 %s, %s, 2, %s' % (vr(va_qks), vr(ta), vr(va_qks)))
    A('s_lshl_b32 %s, %s, 9' % (sr(s_t2), sr(s_p)))
    A('v_add_u32 %s, %s, %s' % (vr(va_qks), sr(s_t2), vr(va_qks)))
    A('s_lshl_b32 %s, %s, 7' % (sr(s_t2), sr(s_wh)))
    A('s_add_u32 %s, %s, %s' % (sr(s_t2), sr(s_t2), sr(s_ob)))
    A('s_add_u32 %s, %s, 0x%x' % (sr(s_t2), sr(s_t2), QKI))
    A('v_add_u32 %s, %s, %s' % (vr(va_qks), sr(s_t2), vr(va_qks)))
    A('v_lshlrev_b32 %s, 4, %s' % (vr(va_mems), vr(v_nu)))
    A('v_lshl_add_u32 %s, %s, 2, %s' % (vr(va_mems), vr(v_g), vr(va_mems)))
    A('s_lshl_b32 %s, %s, 8' % (sr(s_t2), sr(s_w)))
    A('s_add_u32 %s, %s, %s' % (sr(s_t2), sr(s_t2), sr(s_obm)))
    A('s_add_u32 %s, %s, 0x%x' % (sr(s_t2), sr(s_t2), MEMI))
    A('v_add_u32 %s, %s, %s' % (vr(va_mems), sr(s_t2), vr(va_mems)))
    A('s_lshl_b32 %s, %s, 10' % (sr(s_t2), sr(s_wh)))
    A('s_xor_b32 %s, %s, %s' % (sr(s_kvo), sr(s_t2), sr(s_ob)))
    A('s_lshl_b32 %s, %s, 19' % (sr(s_t2), sr(s_p)))
    A('s_add_u32 %s, %s, %s' % (sr(s_t2), sr(s_t2), sr(s_kvo)))
    A('s_add_u32 %s, %s, 0x%x' % (sr(s_t2), sr(s_t2), QKI))
    A('s_lshl_b32 %s, %s, 23' % (sr(s_cnt), sr(s_p)))
    A('s_add_u32 %s, %s, %s' % (sr(s_cnt), sr(s_cnt), sr(s_kvo)))
    A('s_add_u32 %s, %s, 0x%x' % (sr(s_cnt), sr(s_cnt), KMO))
    assert VMO - KMO == 1 << 23 and VMI - QKI == 1 << 19
    A('v_add_u32 %s, %s, %s' % (vr(va_rb), sr(s_t2), vr(l16)))
    A('v_add_u32 %s, %s, %s' % (vr(va_cp), sr(s_cnt), vr(l16)))
    A('s_or_b32 %s, %s, %s' % (sr(s_t2), sr(s_x), sr(s_j)))
    A('s_xor_b32 %s, %s, 3' % (sr(s_cnt), sr(s_w)))
    A('s_or_b32 %s, %s, %s' % (sr(s_t2), sr(s_t2), sr(s_cnt)))
    A('s_cmp_eq_u32 %s, 0' % sr(s_t2))
    A('s_mov_b32 %s, 0x%x' % (sr(s_cnt), CTR + DBG_PROG * 128))
    A('s_cselect_b32 %s, %s, 0x%x' % (sr(s_t2), sr(s_cnt), WS_BYTES))
    A('v_and_b32 %s, 3, %s' % (vr(v_sh), vr(v_lane)))
    A('v_lshlrev_b32 %s, 7, %s' % (vr(v_sh), vr(v_sh)))
    A('v_add_u32 %s, %s, %s' % (vr(va_prog), sr(s_t2), vr(v_sh)))
    A('v_cmp_lt_u32 vcc, 3, %s' % vr(v_lane))
    A('v_mov_b32 %s, 0x%x' % (vr(ta), WS_BYTES))
    A('v_cndmask_b32 %s, %s, %s, vcc' % (vr(va_prog), vr(va_prog), vr(ta)))
    A('v_add_u32 %s, 0x%x, %s' % (vr(v_sh), CTR, vr(v_sh)))
    s_h = s_t2
    A('s_lshl_b32 %s, %s, 2' % (sr(s_h), sr(s_x)))
    A('s_add_u32 %s, %s, %s' % (sr(s_h), sr(s_h), sr(s_w)))
    A('s_lshl_b32 %s, %s, 13' % (sr(s_h), sr(s_h)))
    A('v_and_b32 %s, 1, %s' % (vr(ta), vr(v_g)))
    A('v_lshrrev_b32 %s, 1, %s' % (vr(tb), vr(v_g)))
    A('v_lshlrev_b32 %s, 9, %s' % (vr(va_kx), vr(ta)))
    A('v_lshl_add_u32 %s, %s, 10, %s' % (vr(va_kx), vr(tb), vr(va_kx)))
    A('v_add_u32 %s, %s, %s' % (vr(va_kx), sr(s_h), vr(va_kx)))
    A('v_lshl_add_u32 %s, %s, 4, %s' % (vr(va_vx), vr(v_nu), vr(va_kx)))
    A('v_add_u32 %s, 0x%x, %s' % (vr(va_vx), VX, vr(va_vx)))
    A('v_lshrrev_b32 %s, 3, %s' % (vr(ta), vr(v_nu)))
    A('v_lshl_add_u32 %s, %s, 8, %s' % (vr(va_kx), vr(ta), vr(va_kx)))
    A('v_and_b32 %s, 7, %s' % (vr(ta), vr(v_nu)))
    A('v_lshl_add_u32 %s, %s, 4, %s' % (vr(va_kx), vr(ta), vr(va_kx)))
    A('v_add_u32 %s, 0x%x, %s' % (vr(va_kx), KX, vr(va_kx)))
    A('s_lshr_b32 %s, %s, 1' % (sr(s_t2), sr(s_j)))
    A('s_lshl_b32 %s, %s, 2' % (sr(s_t2), sr(s_t2)))
    A('s_add_u32 %s, %s, %s' % (sr(s_t2), sr(s_t2), sr(s_w)))
    A('s_and_b32 %s, %s, 15' % (sr(s_cnt), sr(s_t2)))
    A('s_lshl_b32 %s, %s, 11' % (sr(s_cnt), sr(s_cnt)))
    A('s_lshr_b32 %s, %s, 4' % (sr(s_t2), sr(s_t2)))
    A('s_lshl_b32 %s, %s, 24' % (sr(s_t2), sr(s_t2)))
    assert VX - KX == 1 << 24
    A('s_add_u32 %s, %s, %s' % (sr(s_t2), sr(s_t2), sr(s_cnt)))
    A('s_lshl_b32 %s, %s, 15' % (sr(s_cnt), sr(s_x)))
    A('s_add_u32 %s, %s, %s' % (sr(s_t2), sr(s_t2), sr(s_cnt)))
    A('s_add_u32 %s, %s, 0x%x' % (sr(s_t2), sr(s_t2), KX))
    A('v_lshl_add_u32 %s, %s, 5, %s' % (vr(va_warm), vr(v_lane), sr(s_t2)))
    A('v_add_u32 %s, %d, %s' % (vr(va_or), LDS_O, vr(l16)))
    A('v_lshrrev_b32 %s, 3, %s' % (vr(ta), vr(v_nu)))
    A('v_mul_u32_u24 %s, %d, %s' % (vr(ta), 1024 - 128, vr(ta)))
    A('s_lshl_b32 %s, %s, 11' % (sr(s_t2), sr(s_w)))
    A('v_add3_u32 %s, %s, %s, %s' % (vr(va_ow), sr(s_t2), vr(va_or), vr(ta)))
    if stamps:
        A('s_lshl_b32 %s, %s, 4' % (sr(s_stamp), sr(s_ob)))
        A('s_lshl_b32 %s, %s, 12' % (sr(s_t2), sr(s_w)))
        A('s_add_u32 %s, %s, %s' % (sr(s_stamp), sr(s_stamp), sr(s_t2)))
        A('s_add_u32 %s, %s, 0x%x' % (sr(s_stamp), sr(s_stamp), STAMP))
        A('s_add_u32 %s, %s, 65536' % (sr(s_stl), sr(s_t2)))

    vq1, vq2, vr_, vcq = acc1, acc1 + 1, acc1 + 2, acc1 + 3
    A('v_bfe_u32 %s, %s, 2, 2' % (vr(vr_), vr(v_lane)))
    A('v_and_b32 %s, 3, %s' % (vr(vcq), vr(v_lane)))
    A('v_lshl_add_u32 %s, %s, 3, %s' % (vr(vq2), vr(v_g), vr(vr_)))
    A('v_lshlrev_b32 %s, 6, %s' % (vr(vq1), vr(vq2)))
    A('v_lshl_add_u32 %s, %s, 3, %s' % (vr(vq1), vr(vcq), vr(vq1)))
    A('s_lshl_b32 %s, %s, 14' % (sr(s_t2), sr(s_w)))
    A('v_add_u32 %s, %s, %s' % (vr(vq1), sr(s_t2), vr(vq1)))
    A('v_add_u32 %s, 65536, %s' % (vr(tb), vr(vq1)))
    A('s_waitcnt vmcnt(48)')
    A('s_barrier')
    for kk in range(4):
        for tl in range(4):
            for bh in range(2):
                for q in range(2):
                    A('ds_read_b64_tr_b16 %s, %s offset:%d' % (ar(W1 + 8 * (kk * 4 + tl) + 4 * bh + 2 * q, 2), vr(tb if tl >= 2 else vq1), kk * 4096 + bh * 2048 + q * 256 + (tl & 1) * 32))
            A('s_waitcnt lgkmcnt(8)')
    A('s_waitcnt lgkmcnt(0)')
    A('s_barrier')
    A('s_waitcnt vmcnt(0)')
    A('s_lshl_b32 %s, %s, 10' % (sr(s_t2), sr(s_w)))
    A('v_add_u32 %s, %s, %s' % (vr(ta), sr(s_t2), vr(l16)))
    A('v_add_u32 %s, 65536, %s' % (vr(tb), vr(ta)))
    for i in range(32):
        A('ds_write_b128 %s, %s offset:%d' % (vr(ta if i < 16 else tb), vr(LND + 4 * i, 4), (i & 15) * 4096))
        if i & 3 == 3:
            A('s_waitcnt lgkmcnt(8)')
    A('s_waitcnt lgkmcnt(0)')
    A('s_barrier')
    LtN, LtJ = A.uid('tN'), A.uid('tJ')
    A('s_cmp_lg_u32 %s, 0' % sr(s_red))
    A('s_cbranch_scc1 ' + LtN)
    A('v_lshlrev_b32 %s, 7, %s' % (vr(ta), vr(vq2)))
    A('v_lshl_add_u32 %s, %s, 3, %s' % (vr(ta), vr(vcq), vr(ta)))
    A('s_lshl_b32 %s, %s, 15' % (sr(s_t2), sr(s_w)))
    A('v_add_u32 %s, %s, %s' % (vr(ta), sr(s_t2), vr(ta)))
    for kk in range(4):
        for tv in range(4):
            for bh in range(2):
                for q in range(2):
                    A('ds_read_b64_tr_b16 %s, %s offset:%d' % (ar(W2 + 8 * (kk * 4 + tv) + 4 * bh + 2 * q, 2), vr(ta), kk * 8192 + bh * 4096 + q * 512 + tv * 32))
            A('s_waitcnt lgkmcnt(8)')
    A('s_branch ' + LtJ)
    A.label(LtN)
    A('v_and_b32 %s, 1, %s' % (vr(ta), vr(v_g)))
    A('v_lshl_add_u32 %s, %s, 5, %s' % (vr(ta), vr(ta), vr(vr_)))
    A('v_lshrrev_b32 %s, 1, %s' % (vr(tb), vr(v_g)))
    A('v_lshl_add_u32 %s, %s, 2, %s' % (vr(ta), vr(tb), vr(ta)))
    A('v_lshlrev_b32 %s, 8, %s' % (vr(ta), vr(ta)))
    A('v_lshl_add_u32 %s, %s, 3, %s' % (vr(ta), vr(vcq), vr(ta)))
    A('s_lshl_b32 %s, %s, 5' % (sr(s_t2), sr(s_w)))
    A('v_add_u32 %s, %s, %s' % (vr(ta), sr(s_t2), vr(ta)))
    A('v_add_u32 %s, 65536, %s' % (vr(tb), vr(ta)))
    for k in range(8):
        for u in range(2):
            for bh in range(2):
                for q in range(2):
                    A('ds_read_b64_tr_b16 %s, %s offset:%d' % (ar(W2 + 8 * (k * 2 + u) + 4 * bh + 2 * q, 2), vr(ta if k < 4 else tb), (k & 3) * 16384 + q * 4096 + bh * 2048 + u * 128))
            A('s_waitcnt lgkmcnt(8)')
    A.label(LtJ)
    A('s_waitcnt lgkmcnt(0)')
    A('s_barrier')

    def pf_ops():
        o = []
        for eb in range(4):
            so = s_kx if eb < 2 else s_kx2
            o.append('buffer_load_dwordx4 %s, %s, %s, %s offen offset:%d sc1' % (vr(KXA + 4 * eb, 4), vr(va_kx), sr(SRD_WS, 4), sr(so), (eb & 1) * 2048))
            o.append('buffer_load_dwordx4 %s, %s, %s, %s offen offset:%d sc1' % (vr(KXB + 4 * eb, 4), vr(va_kx), sr(SRD_WS, 4), sr(so), (eb & 1) * 2048 + 128))
        for T in range(8):
            eb = T >> 1
            so = s_kx if eb < 2 else s_kx2
            o.append('buffer_load_dwordx4 %s, %s, %s, %s offen offset:%d sc1' % (vr(VXR + 4 * T, 4), vr(va_vx), sr(SRD_WS, 4), sr(so), (eb & 1) * 2048 + (T & 1) * 256))
        return o

    def emit(t):
        A(t)
        if t.startswith('buffer_'):
            nvm[0] += 1

    A('s_mov_b32 %s, 0' % sr(s_step))
    A('s_mov_b32 %s, 0x40404044' % sr(s_kvm))
    A('s_mov_b32 %s, 0x00404040' % sr(s_kvm + 1))
    A('s_mov_b32 %s, 0' % sr(s_slot))
    A('s_mov_b32 %s, 0x20000' % sr(s_slot1))
    A('s_mov_b32 %s, 0x40000' % sr(s_slot2))
    A('s_mov_b32 %s, 0' % sr(s_slotp))
    A('s_mov_b32 %s, 0' % sr(s_kx))
    A('s_mov_b32 %s, 4096' % sr(s_kx2))
    A('s_mov_b32 %s, 0' % sr(s_out))
    A('s_mov_b32 %s, 0x%x' % (sr(s_outp), WS_BYTES))
    A('s_mov_b32 %s, 0' % sr(s_ps))
    A('s_mov_b32 %s, 0x80000' % sr(s_ps2))
    A('s_mov_b32 %s, %d' % (sr(s_kvo), DBG_KV0 * 128))

    def kv_wait(tag):
        Lw, Ld, L0 = A.uid('kvw' + tag), A.uid('kvd' + tag), A.uid('kv0' + tag)
        A('s_mov_b32 %s, 0' % sr(s_cnt))
        A('s_branch ' + L0)
        A.label(Lw)
        A('s_sleep 6')
        A.label(L0)
        A('buffer_load_dword %s, %s, %s, %s offen sc1' % (vr(v_kvf), vr(v_sh), sr(SRD_WS, 4), sr(s_kvo)))
        A('s_add_u32 %s, %s, 1' % (sr(s_cnt), sr(s_cnt)))
        A('s_cmp_gt_u32 %s, %s' % (sr(s_cnt), sr(s_lim)))
        A('s_cbranch_scc1 ' + Ld)
        A('s_waitcnt vmcnt(0)')
        A('v_cmp_gt_u32 vcc, 32, %s' % vr(v_kvf))
        A('s_cbranch_vccnz ' + Lw)
        A.label(Ld)
        A('s_waitcnt vmcnt(0)')
    stamp(7)
    place_check(A, SRD_T, v_lane, v_t[0], v_t[1], s_cnt, POLL_LIMIT, L_restart)
    L_rdy, L_rdy_done, L_rdy0 = A.uid('rdy'), A.uid('rdyd'), A.uid('rdy0')
    A('v_mov_b32 %s, 32' % vr(v_t[0]))
    A('s_mov_b32 %s, 0' % sr(s_cnt))
    A('s_branch ' + L_rdy0)
    A.label(L_rdy)
    A('s_sleep 6')
    A.label(L_rdy0)
    A('buffer_load_dword %s, %s, %s, 0 offen sc1' % (vr(acc1 + 1), vr(v_t[0]), sr(SRD_T, 4)))
    A('s_add_u32 %s, %s, 1' % (sr(s_cnt), sr(s_cnt)))
    A('s_cmp_gt_u32 %s, %s' % (sr(s_cnt), sr(s_lim)))
    A('s_cbranch_scc1 ' + L_rdy_done)
    A('s_waitcnt vmcnt(0)')
    A('v_and_b32 %s, 0xffff, %s' % (vr(acc1), vr(acc1 + 1)))
    A('v_cmp_gt_u32 vcc, 128, %s' % vr(acc1))
    A('s_cbranch_vccnz ' + L_rdy)
    A.label(L_rdy_done)
    A('s_waitcnt vmcnt(0)')
    A('v_lshrrev_b32 %s, 16, %s' % (vr(acc1), vr(acc1 + 1)))
    A('v_cmp_%s_u32 vcc, 16, %s' % ('lt' if NEARX else 'ge', vr(acc1)))
    A('v_mov_b32 %s, 8192' % vr(acc1 + 1))
    A('v_cndmask_b32 %s, 0, %s, vcc' % (vr(acc1), vr(acc1 + 1)))
    A('v_add_u32 %s, %s, %s' % (vr(va_pr), vr(va_pr), vr(acc1)))
    A('v_add_u32 %s, %s, %s' % (vr(va_pw), vr(va_pw), vr(acc1)))
    A('v_mul_u32_u24 %s, 252, %s' % (vr(acc1), vr(v_g)))
    A('v_sub_u32 %s, %s, %s' % (vr(va_pd), vr(va_pw), vr(acc1)))
    A('v_and_b32 %s, 0x%x, %s' % (vr(va_pd), 0xffffffff ^ 16384, vr(va_pd)))
    A('v_lshlrev_b32 %s, 8, %s' % (vr(acc1), vr(v_g)))
    A('v_sub_u32 %s, %s, %s' % (vr(va_pz), vr(va_pw), vr(acc1)))
    A('v_and_b32 %s, 1, %s' % (vr(acc1), vr(v_g)))
    A('v_lshlrev_b32 %s, 14, %s' % (vr(acc1), vr(acc1)))
    A('v_xor_b32 %s, %s, %s' % (vr(va_pz), vr(va_pz), vr(acc1)))
    A('v_lshrrev_b32 %s, 1, %s' % (vr(acc1), vr(v_g)))
    A('v_lshl_add_u32 %s, %s, 28, %s' % (vr(va_pz), vr(acc1), vr(va_pz)))
    A('v_add_u32 %s, 16384, %s' % (vr(va_pw), vr(va_pd)))
    A('v_lshlrev_b32 %s, 2, %s' % (vr(acc1), vr(v_g)))
    A('v_sub_u32 %s, %s, %s' % (vr(va_pg), vr(va_pd), vr(acc1)))
    A('v_lshrrev_b32 %s, 1, %s' % (vr(acc1), vr(v_g)))
    A('v_lshl_add_u32 %s, %s, 14, %s' % (vr(va_pg), vr(acc1), vr(va_pg)))
    A('v_and_b32 %s, 1, %s' % (vr(acc1), vr(v_g)))
    A('v_lshl_add_u32 %s, %s, 28, %s' % (vr(va_pg), vr(acc1), vr(va_pg)))
    dbgt(9)
    kv_wait('0')
    stamp(9)
    dbgt(11)

    ool = []

    def poll(n, load, base, tag, on_ok=None, back=0):
        Lk = [A.uid('poll%s%d' % (tag, k)) for k in range(n)]
        Lc = [A.uid('chk%s%d' % (tag, k)) for k in range(n)]
        Lo = [A.uid('ok%s%d' % (tag, k)) for k in range(n)]
        Lfs = [A.uid('pollf%s%d' % (tag, k)) for k in range(n)]

        def issue(m):
            A.label(Lk[m])
            if back:
                A('s_sleep %d' % back)
            for k in range(m, n):
                A(load(k))
            A('s_add_u32 %s, %s, 1' % (sr(s_cnt), sr(s_cnt)))
            A('s_cmp_gt_u32 %s, %s' % (sr(s_cnt), sr(s_lim)))
            A('s_cbranch_scc1 ' + Lfs[m])
        A('s_mov_b32 %s, 0' % sr(s_cnt))
        issue(0)
        for m in range(n):
            A.label(Lc[m])
            A('s_waitcnt vmcnt(%d)' % (n - 1 - m))
            b = base + 4 * m
            A('v_max3_u32 %s, %s, %s, %s' % (vr(v_t[0]), vr(b), vr(b + 1), vr(b + 2)))
            A('v_max_u32 %s, %s, %s' % (vr(v_t[0]), vr(v_t[0]), vr(b + 3)))
            A('v_cmp_eq_u32 vcc, -1, %s' % vr(v_t[0]))
            A('s_cbranch_vccnz ' + Lk[m])
            A.label(Lo[m])
            if on_ok:
                on_ok(m)

        def tail():
            for m in range(1, n):
                issue(m)
                A('s_branch ' + Lc[m])
            for m in range(n):
                A.label(Lfs[m])
                A('s_mov_b32 %s, 0' % sr(s_lim))
                A('s_waitcnt vmcnt(0)')
                A('s_branch ' + Lo[m])
        ool.append(tail)

    def smf(acc, a, w):
        return 'v_smfmac_f32_16x16x64_bf16 %s, %s, %s, %s' % (vr(acc, 4), vr(a, 4), ar(w, 8), vr(v_idx))

    def okA(k):
        for tl in range(4):
            A(smf(AC + 4 * tl, M + 4 * k, W1 + 8 * (k * 4 + tl)))

    def pollA2():
        ld = lambda k: 'buffer_load_dwordx4 %s, %s, %s, %s offen offset:%d sc1' % (vr(M + 4 * k, 4), vr(va_memr), sr(SRD_WS, 4), sr(s_slot), k * 1024)
        Lr = [A.uid('rA%d' % k) for k in range(4)]
        Lo = [A.uid('oA%d' % k) for k in range(4)]

        def chk(k):
            b = M + 4 * k
            return ['s_waitcnt vmcnt(%d)' % (3 - k),
                    'v_max3_u32 %s, %s, %s, %s' % (vr(v_t[0]), vr(b), vr(b + 1), vr(b + 2)),
                    'v_max_u32 %s, %s, %s' % (vr(v_t[0]), vr(v_t[0]), vr(b + 3)),
                    'v_cmp_eq_u32 vcc, -1, %s' % vr(v_t[0])]
        A('s_mov_b32 %s, 1' % sr(s_cnt))
        for k in range(4):
            A(ld(k))
        for t in chk(0):
            A(t)
        for k in range(4):
            A('s_cbranch_vccnz ' + Lr[k])
            A.label(Lo[k])
            c = chk(k + 1) if k < 3 else []
            for tl in range(4):
                A(smf(AC + 4 * tl, M + 4 * k, W1 + 8 * (k * 4 + tl)))
                if c and tl < 3:
                    if tl == 0:
                        A(c.pop(0))
                    A(c.pop(0))

        def tail():
            for k in range(4):
                A.label(Lr[k])
                for m in range(k, 4):
                    A(ld(m))
                A('s_add_u32 %s, %s, 1' % (sr(s_cnt), sr(s_cnt)))
                for t in chk(k):
                    A(t)
                A('s_cbranch_vccz ' + Lo[k])
                A('s_cmp_le_u32 %s, %s' % (sr(s_cnt), sr(s_lim)))
                A('s_cbranch_scc1 ' + Lr[k])
                A('s_mov_b32 %s, 0' % sr(s_lim))
                A('s_branch ' + Lo[k])
        ool.append(tail)

    def advance():
        A('s_add_u32 %s, %s, 1' % (sr(s_step), sr(s_step)))
        A('s_mov_b32 %s, %s' % (sr(s_slotp), sr(s_slot)))
        A('s_mov_b32 %s, %s' % (sr(s_outp), sr(s_out)))
        A('s_mov_b32 %s, %s' % (sr(s_slot), sr(s_slot1)))
        A('s_mov_b32 %s, %s' % (sr(s_slot1), sr(s_slot2)))
        A('s_add_u32 %s, %s, 0x20000' % (sr(s_slot2), sr(s_slot2)))
        A('s_and_b32 %s, %s, 0x7ffff' % (sr(s_slot2), sr(s_slot2)))
        A('s_add_u32 %s, %s, 0x20000' % (sr(s_out), sr(s_out)))
        A('s_lshl_b32 %s, %s, 1' % (sr(s_ps), sr(s_slot)))
        A('s_lshl_b32 %s, %s, 1' % (sr(s_ps2), sr(s_slot2)))
        if stamps:
            A('s_add_u32 %s, %s, 64' % (sr(s_stl), sr(s_stl)))

    def ha_write(tl):
        return ['v_permlane32_swap_b32 %s, %s' % (vr(AC + 4 * tl), vr(AC + 4 * tl + 2)),
                'v_permlane32_swap_b32 %s, %s' % (vr(AC + 4 * tl + 1), vr(AC + 4 * tl + 3)),
                'v_pk_add_f32 %s, %s, %s' % (vr(HA + 2 * tl, 2), vr(AC + 4 * tl, 2), vr(AC + 4 * tl + 2, 2)),
                'ds_write_b64 %s, %s offset:%d' % (vr(va_rw), vr(HA + 2 * tl, 2), tl * 512)]

    def kv_stuff():
        L_kvok, L_kvslow, L_nokv, L_dokv = A.uid('kvok'), A.uid('kvslow'), A.uid('nokv'), A.uid('dokv')
        A('v_cmp_gt_u32 vcc, 32, %s' % vr(v_kvf))
        A('s_cbranch_vccnz ' + L_kvslow)
        A.label(L_kvok)
        A('s_bitcmp1_b64 %s, %s' % (sr(s_kvm, 2), sr(s_step)))
        A('s_cbranch_scc1 ' + L_dokv)
        A.label(L_nokv)

        def t():
            A.label(L_kvslow)
            kv_wait('s')
            A('s_branch ' + L_kvok)
            A.label(L_dokv)
            A('s_add_u32 %s, %s, 2' % (sr(s_kvo), sr(s_step)))
            A('s_lshr_b32 %s, %s, 3' % (sr(s_kvo), sr(s_kvo)))
            A('s_lshl_b32 %s, %s, 9' % (sr(s_kvo), sr(s_kvo)))
            A('s_add_u32 %s, %s, %d' % (sr(s_kvo), sr(s_kvo), DBG_KV * 128))
            A('buffer_load_dword %s, %s, %s, %s offen sc1' % (vr(v_kvf), vr(v_sh), sr(SRD_WS, 4), sr(s_kvo)))
            A('s_branch ' + L_nokv)
        ool.append(t)

    L_lastR, L_lastN, L_fin = name + '_lastR', name + '_lastN', name + '_fin'

    def loop(red, fl):
        tg = ('r' if red else 'n') + ('f' if fl else '')
        ISC = ' sc1' if fl else ''
        nacc = 32 if red else 16
        L_st, L_B = name + '_step' + tg, name + '_B' + tg

        def zero_acc():
            for i in range(nacc):
                A('v_mov_b32 %s, 0' % vr(AC + i))
        A.label(name + '_first' + tg)
        if not red:
            for t in pf_ops():
                A(t)
        zero_acc()
        for k in range(4):
            okA(k)
        A('s_branch ' + L_B)
        A.label(L_st)
        zero_acc()
        if A2:
            pollA2()
        else:
            poll(4, lambda k: 'buffer_load_dwordx4 %s, %s, %s, %s offen offset:%d sc1' % (vr(M + 4 * k, 4), vr(va_memr), sr(SRD_WS, 4), sr(s_slot), k * 1024), M, 'A', okA)
        A.label(L_B)
        stamp(0)
        vs = [smf(AC + 16 + 4 * tv, M + 4 * k, W2 + 8 * (k * 4 + tv)) for tv in range(4) for k in range(4)] if red else []
        ne = VS[0]
        for tl in range(4):
            h = ha_write(tl)
            if vs and ne > 0:
                A(vs.pop(0))
                ne -= 1
            A(h[0])
            A(h[1])
            if vs and ne > 3 - tl:
                A(vs.pop(0))
                ne -= 1
            A(h[2])
            A(h[3])
        for _ in range(VS[1]):
            if vs:
                A(vs.pop(0))
        A('s_waitcnt lgkmcnt(0)')
        A('s_barrier')
        A('ds_read_b128 %s, %s' % (vr(RD, 4), vr(va_rr)))
        A('ds_read_b128 %s, %s offset:4096' % (vr(RD + 4, 4), vr(va_rr)))
        for _ in range(VS[2]):
            if vs:
                A(vs.pop(0))
        A('s_waitcnt lgkmcnt(0)')
        A('v_pk_add_f32 %s, %s, %s' % (vr(RD, 2), vr(RD, 2), vr(RD + 4, 2)))
        A('v_pk_add_f32 %s, %s, %s' % (vr(RD + 2, 2), vr(RD + 2, 2), vr(RD + 6, 2)))
        A('v_permlane32_swap_b32 %s, %s' % (vr(RD), vr(RD + 1)))
        A('v_permlane32_swap_b32 %s, %s' % (vr(RD + 2), vr(RD + 3)))
        A('v_add_f32 %s, %s, %s' % (vr(v_t[0]), vr(RD), vr(RD + 1)))
        A('v_add_f32 %s, %s, %s' % (vr(v_t[1]), vr(RD + 2), vr(RD + 3)))
        A('v_cvt_pk_bf16_f32 %s, %s, %s' % (vr(v_t[2]), vr(v_t[0]), vr(v_t[1])))
        A('v_pk_min_u16 %s, %s, %s' % (vr(v_t[2]), vr(v_t[2]), sr(s_fffe)))
        A('buffer_store_dword %s, %s, %s, %s offen%s' % (vr(v_t[2]), vr(va_qks), sr(SRD_WS, 4), sr(s_slot), ISC))
        if red:
            for tv in range(4):
                while vs and len(vs) > 4 * (3 - tv) - 4:
                    A(vs.pop(0))
                for t in ha_write(4 + tv):
                    A(t)
            A('s_waitcnt lgkmcnt(0)')
            A('s_barrier')
            A('ds_read_b128 %s, %s offset:2048' % (vr(RD, 4), vr(va_rr)))
            A('ds_read_b128 %s, %s offset:6144' % (vr(RD + 4, 4), vr(va_rr)))
            A('s_waitcnt lgkmcnt(0)')
            A('v_pk_add_f32 %s, %s, %s' % (vr(RD, 2), vr(RD, 2), vr(RD + 4, 2)))
            A('v_pk_add_f32 %s, %s, %s' % (vr(RD + 2, 2), vr(RD + 2, 2), vr(RD + 6, 2)))
            A('v_permlane32_swap_b32 %s, %s' % (vr(RD), vr(RD + 2)))
            A('v_permlane32_swap_b32 %s, %s' % (vr(RD + 1), vr(RD + 3)))
            A('v_pk_add_f32 %s, %s, %s' % (vr(RD, 2), vr(RD, 2), vr(RD + 2, 2)))
            A('v_cvt_pk_bf16_f32 %s, %s, %s' % (vr(v_t[3]), vr(RD), vr(RD + 1)))
            A('v_pk_min_u16 %s, %s, %s' % (vr(v_t[3]), vr(v_t[3]), sr(s_fffe)))
            A('buffer_store_dword %s, %s, %s, %s offen%s' % (vr(v_t[3]), vr(va_vs), sr(SRD_WS, 4), sr(s_slot), ISC))
            stamp(1)
            A('buffer_load_dwordx4 %s, %s, %s, %s offen sc1' % (vr(RB, 4), vr(va_rb), sr(SRD_WS, 4), sr(s_slotp)))
            A('v_mov_b32 %s, %s' % (vr(v_junk2), sr(s_step)))
            A('s_waitcnt vmcnt(0)')
            A('s_barrier')
            A('buffer_store_dwordx4 %s, %s, %s, %s offen sc1' % (vr(RB, 4), vr(va_cp), sr(SRD_WS, 4), sr(s_outp)))
            A('buffer_store_dword %s, %s, %s, 0 offen sc1' % (vr(v_junk2), vr(va_prog), sr(SRD_WS, 4)))
            A('s_cmp_ge_u32 %s, %d' % (sr(s_step), nsteps - 1))
            A('s_cbranch_scc1 ' + L_lastR)
            A('s_add_u32 %s, %s, 0x40000' % (sr(s_kx), sr(s_kx)))
            kv_stuff()
            A('buffer_load_dword %s, %s, %s, %s offen sc1' % (vr(v_junk), vr(va_warm), sr(SRD_WS, 4), sr(s_kx)))
            A('buffer_store_dwordx4 %s, %s, %s, %s offen sc1' % (vr(v_m1, 4), vr(va_pz), sr(SRD_WS, 4), sr(s_ps2)))
            A('buffer_store_dwordx4 %s, %s, %s, %s offen%s' % (vr(v_m1, 4), vr(va_rb), sr(SRD_WS, 4), sr(s_slot2), ISC))
            A('buffer_store_dword %s, %s, %s, %s offen%s' % (vr(v_m1), vr(va_mems), sr(SRD_WS, 4), sr(s_slot2), ISC))
            if DELAY_E:
                A('s_sleep %d' % DELAY_E)
            if HINT:
                Lh, Lhd = A.uid('h'), A.uid('hd')
                A('s_mov_b32 %s, 0' % sr(s_cnt))
                A.label(Lh)
                A('buffer_load_dword %s, %s, %s, 0 offen sc1' % (vr(v_t[0]), vr(va_flg), sr(SRD_WS, 4)))
                A('s_add_u32 %s, %s, 1' % (sr(s_cnt), sr(s_cnt)))
                A('s_cmp_gt_u32 %s, %s' % (sr(s_cnt), sr(s_lim)))
                A('s_cbranch_scc1 ' + Lhd)
                A('s_waitcnt vmcnt(0)')
                A('v_cmp_ne_u32 vcc, %s, %s' % (sr(s_step), vr(v_t[0])))
                A('s_cbranch_vccnz ' + Lh)
                A.label(Lhd)
                if HINT > 1:
                    A('s_sleep %d' % (HINT - 1))

            def okE(k):
                A('v_mfma_f32_16x16x32_bf16 %s, %s, %s, %s' % (vr(LS, 4), vr(PR + 4 * k, 4), vr(v_sel, 4), '0' if k == 0 else vr(LS, 4)))
            poll(2, lambda k: 'buffer_load_dwordx4 %s, %s, %s, %s offen offset:%d sc1' % (vr(PR + 4 * k, 4), vr(va_pr), sr(SRD_WS, 4), sr(s_ps), k * 1024), PR, 'E', okE, back=E_BACK)
            stamp(6)
            advance()
            A('v_cvt_pk_bf16_f32 %s, %s, %s' % (vr(v_t[2]), vr(LS), vr(LS + 1)))
            A('v_cvt_pk_bf16_f32 %s, %s, %s' % (vr(v_t[3]), vr(LS + 2), vr(LS + 3)))
            A('v_cndmask_b32 %s, %s, %s, %s' % (vr(v_t[2]), vr(v_t[2]), vr(v_t[3]), sr(s_hf, 2)))
            A('v_pk_min_u16 %s, %s, %s' % (vr(v_t[2]), vr(v_t[2]), sr(s_fffe)))
            A('buffer_store_dword %s, %s, %s, %s offen%s' % (vr(v_t[2]), vr(va_mems), sr(SRD_WS, 4), sr(s_slot), ISC))
            if RED_SLEEP:
                A('s_sleep %d' % RED_SLEEP)
            A('s_branch ' + L_st)
            return
        stamp(1)
        A('s_cmp_ge_u32 %s, %d' % (sr(s_step), nsteps - 1))
        A('s_cbranch_scc1 ' + L_lastN)
        A('s_add_u32 %s, %s, 0x40000' % (sr(s_kx), sr(s_kx)))
        A('s_add_u32 %s, %s, 0x40000' % (sr(s_kx2), sr(s_kx2)))
        for i in range(4):
            A('v_mov_b32 %s, 0' % vr(acc1 + i))
            A('v_mov_b32 %s, 0' % vr(acc2 + i))
        A('v_mov_b32 %s, %s' % (vr(v_junk2), sr(s_step)))
        if DELAY_C:
            A('s_sleep %d' % DELAY_C)
        Lc, Lcf, Lcd = A.uid('pC'), A.uid('pCf'), A.uid('pCd')
        A('s_mov_b32 %s, 1' % sr(s_cnt))
        A.label(Lc)
        for k in range(4):
            A('buffer_load_dwordx4 %s, %s, %s, %s offen offset:%d sc1' % (vr(QK + 4 * k, 4), vr(va_qkr), sr(SRD_WS, 4), sr(s_slot), k * 1024))
        for t in range(4):
            A('s_waitcnt vmcnt(%d)' % (3 - t))
            q = QK + 4 * t
            A('v_mfma_f32_16x16x32_bf16 %s, %s, %s, %s' % (vr(SA, 4), vr(KXA + 4 * t, 4), vr(q, 4), vr(v_maskx, 4) if t == 0 else vr(SA, 4)))
            if t == 0:
                A('v_max3_u32 %s, %s, %s, %s' % (vr(v_t[0]), vr(q), vr(q + 1), vr(q + 2)))
            else:
                A('v_max3_u32 %s, %s, %s, %s' % (vr(v_t[0]), vr(v_t[0]), vr(q), vr(q + 1)))
            A('v_mfma_f32_16x16x32_bf16 %s, %s, %s, %s' % (vr(SB, 4), vr(KXB + 4 * t, 4), vr(q, 4), vr(v_maskx, 4) if t == 0 else vr(SB, 4)))
            if t == 0:
                A('v_max_u32 %s, %s, %s' % (vr(v_t[0]), vr(v_t[0]), vr(q + 3)))
            else:
                A('v_max3_u32 %s, %s, %s, %s' % (vr(v_t[0]), vr(v_t[0]), vr(q + 2), vr(q + 3)))
            if t == 3:
                A('v_cmp_eq_u32 vcc, -1, %s' % vr(v_t[0]))
            A('v_mfma_f32_16x16x32_bf16 %s, %s, %s, %s' % (vr(SM, 4), vr(q, 4), vr(q, 4), vr(v_mask, 4) if t == 0 else vr(SM, 4)))
        A('s_cbranch_vccnz ' + Lcf)
        A.label(Lcd)

        def tailC():
            A.label(Lcf)
            A('s_add_u32 %s, %s, 1' % (sr(s_cnt), sr(s_cnt)))
            A('s_cmp_le_u32 %s, %s' % (sr(s_cnt), sr(s_lim)))
            A('s_cbranch_scc1 ' + Lc)
            A('s_mov_b32 %s, 0' % sr(s_lim))
            A('s_branch ' + Lcd)
        ool.append(tailC)
        stamp(2)

        def vload(k):
            return 'buffer_load_dwordx4 %s, %s, %s, %s offen offset:%d sc1' % (vr(VMR + 4 * k, 4), vr(va_vmr), sr(SRD_WS, 4), sr(s_slot), k * 1024)
        side = pf_ops() if not NOPF else []
        s = [SA + i for i in range(12)]
        sm = []
        sm.append('v_max3_f32 %s, %s, %s, %s' % (vr(v_mx), vr(s[0]), vr(s[1]), vr(s[2])))
        sm.append('v_max3_f32 %s, %s, %s, %s' % (vr(v_mx2), vr(s[3]), vr(s[4]), vr(v_bias)))
        sm.append('v_max3_f32 %s, %s, %s, %s' % (vr(v_mx), vr(v_mx), vr(s[5]), vr(s[6])))
        sm.append('v_max3_f32 %s, %s, %s, %s' % (vr(v_mx2), vr(v_mx2), vr(s[7]), vr(s[8])))
        sm.append('v_max3_f32 %s, %s, %s, %s' % (vr(v_mx), vr(v_mx), vr(s[9]), vr(s[10])))
        sm.append('v_max3_f32 %s, %s, %s, %s' % (vr(v_mx), vr(v_mx), vr(v_mx2), vr(s[11])))
        for sw in ('v_permlane32_swap_b32', 'v_permlane16_swap_b32'):
            sm.append('v_mov_b32 %s, %s' % (vr(v_mx2), vr(v_mx)))
            sm.append('%s %s, %s' % (sw, vr(v_mx), vr(v_mx2)))
            sm.append('v_max_f32 %s, %s, %s' % (vr(v_mx), vr(v_mx), vr(v_mx2)))
        sm.append('v_mul_f32 %s, %s, %s' % (vr(v_mx), sr(s_c), vr(v_mx)))
        for i in range(8):
            sm.append('v_fma_f32 %s, %s, %s, -%s' % (vr(s[i]), vr(s[i]), sr(s_c), vr(v_mx)))
        for i in range(8):
            sm.append('v_exp_f32 %s, %s' % (vr(s[i]), vr(s[i])))
            if i >= 2 and i % 2 == 0:
                sm.append('v_cvt_pk_bf16_f32 %s, %s, %s' % (vr(PX + i // 2 - 1), vr(s[i - 2]), vr(s[i - 1])))
        sm.append('v_fma_f32 %s, %s, %s, -%s' % (vr(s[8]), vr(s[8]), sr(s_c), vr(v_mx)))
        sm.append('v_cvt_pk_bf16_f32 %s, %s, %s' % (vr(PX + 3), vr(s[6]), vr(s[7])))
        sm.append('v_fma_f32 %s, %s, %s, -%s' % (vr(s[9]), vr(s[9]), sr(s_c), vr(v_mx)))
        for i, m in enumerate(sm):
            if i == DELAY_V:
                A(vload(0))
                A(vload(1))
            A(m)
        stamp(3)

        def dpp8(d, srcr):
            return 'v_mov_b32_dpp %s, %s row_shr:8 row_mask:0xf bank_mask:0xf bound_ctrl:0' % (vr(d), vr(srcr))
        t = v_t
        sh = []
        for i in range(10, 12):
            sh.append('v_fma_f32 %s, %s, %s, -%s' % (vr(s[i]), vr(s[i]), sr(s_c), vr(v_mx)))
        for i in range(4):
            sh.append(dpp8(PXH + i, PX + i))
        for i in range(8, 12):
            sh.append('v_exp_f32 %s, %s' % (vr(s[i]), vr(s[i])))
        for i in range(2):
            sh.append('v_cvt_pk_bf16_f32 %s, %s, %s' % (vr(PM + i), vr(s[8 + 2 * i]), vr(s[9 + 2 * i])))
        sh.append('s_waitcnt vmcnt(0)')
        sh.append('v_max3_u32 %s, %s, %s, %s' % (vr(t[0]), vr(VMR), vr(VMR + 1), vr(VMR + 2)))
        sh.append('v_max3_u32 %s, %s, %s, %s' % (vr(t[1]), vr(VMR + 3), vr(VMR + 4), vr(VMR + 5)))
        sh.append(dpp8(PMH, PM))
        sh.append(dpp8(PMH + 1, PM + 1))
        sh.append('v_max3_u32 %s, %s, %s, %s' % (vr(t[0]), vr(t[0]), vr(VMR + 6), vr(VMR + 7)))
        sh.append('v_max_u32 %s, %s, %s' % (vr(t[0]), vr(t[0]), vr(t[1])))
        sh.append('v_permlane32_swap_b32 %s, %s' % (vr(PMH), vr(PM)))
        sh.append('v_permlane32_swap_b32 %s, %s' % (vr(PMH + 1), vr(PM + 1)))
        sh.append('v_cmp_eq_u32 vcc, -1, %s' % vr(t[0]))
        mf = ['v_mfma_f32_16x16x32_bf16 %s, %s, %s, 0' % (vr(LS, 4), vr(v_ones, 4), vr(PX, 4))]
        for a in range(4):
            mf.append('v_mfma_f32_16x16x32_bf16 %s, %s, %s, 0' % (vr(O + 4 * a, 4), vr(VXR + 4 * a, 4), vr(PX, 4)))
        for a in range(4):
            mf.append('v_mfma_f32_16x16x32_bf16 %s, %s, %s, %s' % (vr(O + 4 * a, 4), vr(VXR + 4 * (a + 4), 4), vr(PXH, 4), vr(O + 4 * a, 4)))
        per = [3, 3, 2, 2, 2, 2, 3, 3, 1]
        for i, m in enumerate(mf):
            A(m)
            for _ in range(per[i]):
                if sh:
                    x = sh.pop(0)
                    if x.startswith('s_waitcnt'):
                        A(x)
                        x = sh.pop(0)
                    A(x)
        assert not sh
        Lv_ok, Lv_slow = A.uid('vok'), A.uid('vslow')
        A('s_cbranch_vccnz ' + Lv_slow)
        A.label(Lv_ok)

        def tailV():
            A.label(Lv_slow)
            poll(2, vload, VMR, 'V')
            A('s_branch ' + Lv_ok)
        ool.append(tailV)
        A('v_mfma_f32_16x16x16_bf16 %s, %s, %s, %s' % (vr(LS, 4), vr(v_ones, 2), vr(PM, 2), vr(LS, 4)))
        for a in range(4):
            A('v_mfma_f32_16x16x16_bf16 %s, %s, %s, %s' % (vr(O + 4 * a, 4), vr(VMR + 2 * a, 2), vr(PM, 2), vr(O + 4 * a, 4)))
        A('v_rcp_f32 %s, %s' % (vr(v_l), vr(LS)))
        A('v_mov_b32_dpp %s, %s row_shr:8 row_mask:0xf bank_mask:0xc' % (vr(v_l), vr(v_l)))
        for a in range(4):
            for r in range(0, 4, 2):
                A('v_pk_mul_f32 %s, %s, %s op_sel_hi:[1,0]' % (vr(O + 4 * a + r, 2), vr(O + 4 * a + r, 2), vr(v_l, 2)))
            A('v_cvt_pk_bf16_f32 %s, %s, %s' % (vr(XY + a), vr(O + 4 * a), vr(O + 4 * a + 1)))
            A('v_cvt_pk_bf16_f32 %s, %s, %s' % (vr(XY + 4 + a), vr(O + 4 * a + 2), vr(O + 4 * a + 3)))
        A('ds_write_b128 %s, %s' % (vr(va_ow), vr(XY, 4)))
        A('ds_write_b128 %s, %s offset:128' % (vr(va_ow), vr(XY + 4, 4)))
        A('s_waitcnt lgkmcnt(0)')
        stamp(4)
        A('s_barrier')
        if HINT:
            A('buffer_store_dword %s, %s, %s, 0 offen%s' % (vr(v_junk2), vr(va_flg), sr(SRD_WS, 4), ISC))
        for k in range(8):
            A('ds_read_b128 %s, %s offset:%d' % (vr(G + 4 * k, 4), vr(va_or), k * 1024))
        def epi3(acc, va):
            return ['v_permlane32_swap_b32 %s, %s' % (vr(acc), vr(acc + 2)),
                    'v_permlane32_swap_b32 %s, %s' % (vr(acc + 1), vr(acc + 3)),
                    'v_pk_add_f32 %s, %s, %s' % (vr(acc, 2), vr(acc, 2), vr(acc + 2, 2)),
                    'v_cvt_pk_bf16_f32 %s, %s, %s' % (vr(acc), vr(acc), vr(acc + 1)),
                    'v_pk_min_u16 %s, %s, %s' % (vr(acc), vr(acc), sr(s_fffe)),
                    'buffer_store_dword %s, %s, %s, %s offen sc1' % (vr(acc), vr(va), sr(SRD_WS, 4), sr(s_ps))]
        if S3 == 2:
            D = VMR
            for k in range(8):
                A('s_waitcnt lgkmcnt(%d)' % (7 - k))
                A(smf(acc1, G + 4 * k, W2 + 8 * (2 * k)))
                if k < 2:
                    A(smf(acc2, G + 4 * k, W2 + 8 * (2 * k + 1)))
            e1 = epi3(acc1, va_pd)[:3] + ['v_cvt_pk_bf16_f32 %s, %s, %s' % (vr(D), vr(acc1), vr(acc1 + 1)),
                                          'v_pk_min_u16 %s, %s, %s' % (vr(D), vr(D), sr(s_fffe))]
            for k in range(2, 8):
                A(smf(acc2, G + 4 * k, W2 + 8 * (2 * k + 1)))
                if k >= 4:
                    for _ in range(2):
                        if e1:
                            A(e1.pop(0))
            for t_ in e1 + epi3(acc2, va_pw)[:3]:
                A(t_)
            A('v_cvt_pk_bf16_f32 %s, %s, %s' % (vr(D + 2), vr(acc2), vr(acc2 + 1)))
            A('v_pk_min_u16 %s, %s, %s' % (vr(D + 2), vr(D + 2), sr(s_fffe)))
            A('v_permlane32_swap_b32 %s, %s' % (vr(D), vr(D + 2)))
            A('v_permlane16_swap_b32 %s, %s' % (vr(D), vr(D + 1)))
            A('v_permlane16_swap_b32 %s, %s' % (vr(D + 2), vr(D + 3)))
            A('buffer_store_dwordx4 %s, %s, %s, %s offen sc1' % (vr(D, 4), vr(va_pg), sr(SRD_WS, 4), sr(s_ps)))
        elif S3:
            for k in range(8):
                A('s_waitcnt lgkmcnt(%d)' % (7 - k))
                A(smf(acc1, G + 4 * k, W2 + 8 * (2 * k)))
                if k < 2:
                    A(smf(acc2, G + 4 * k, W2 + 8 * (2 * k + 1)))
            e1 = epi3(acc1, va_pd)
            for k in range(2, 8):
                A(smf(acc2, G + 4 * k, W2 + 8 * (2 * k + 1)))
                if k >= 4:
                    for _ in range(2):
                        if e1:
                            A(e1.pop(0))
            for t_ in e1 + epi3(acc2, va_pw):
                A(t_)
        else:
            for k in range(8):
                A('s_waitcnt lgkmcnt(%d)' % (7 - k))
                A(smf(acc1, G + 4 * k, W2 + 8 * (2 * k)))
                A(smf(acc2, G + 4 * k, W2 + 8 * (2 * k + 1)))
            for t_ in epi3(acc1, va_pd) + epi3(acc2, va_pw):
                A(t_)
        stamp(5)
        kv_stuff()
        for x in side:
            A(x)
        advance()
        if NOE_SLEEP:
            A('s_sleep %d' % NOE_SLEEP)
        A('s_branch ' + L_st)

    L_safe = A.uid('safe')
    A('s_cmp_lg_u32 s%d, 0' % S_MODE)
    A('s_cbranch_scc1 ' + L_safe)
    for fl in (False, True):
        if fl:
            A.label(L_safe)
        A('s_cmp_lg_u32 %s, 0' % sr(s_red))
        A('s_cbranch_scc1 ' + name + '_firstn' + ('f' if fl else ''))
        loop(True, fl)
        loop(False, fl)
        while ool:
            ool.pop(0)()
    A.label(L_lastN)
    A('s_waitcnt vmcnt(0)')
    A('s_barrier')
    A('s_cmp_lg_u32 %s, 0' % sr(s_w))
    A('s_cbranch_scc1 ' + L_fin)
    A.label(L_lastR)
    A('s_cmp_eq_u32 %s, 2' % sr(s_w))
    A('s_cbranch_scc1 ' + L_fin)
    A('buffer_load_dwordx4 %s, %s, %s, %s offen sc1' % (vr(M, 4), vr(va_rb), sr(SRD_WS, 4), sr(s_slot)))
    A('s_waitcnt vmcnt(0)')
    A('buffer_store_dwordx4 %s, %s, %s, %s offen sc1' % (vr(M, 4), vr(va_cp), sr(SRD_WS, 4), sr(s_out)))
    A.label(L_fin)
    if stamps:
        A('s_waitcnt lgkmcnt(0)')
        A('v_lshlrev_b32 %s, 4, %s' % (vr(v_t[0]), vr(v_lane)))
        A('s_lshl_b32 %s, %s, 12' % (sr(s_t2), sr(s_w)))
        A('s_add_u32 %s, %s, 65536' % (sr(s_t2), sr(s_t2)))
        A('v_add_u32 %s, %s, %s' % (vr(v_t[1]), sr(s_t2), vr(v_t[0])))
        for k in range(4):
            A('ds_read_b128 %s, %s offset:%d' % (vr(F + 4 * k, 4), vr(v_t[1]), k * 1024))
        A('s_waitcnt lgkmcnt(0)')
        for k in range(4):
            A('buffer_store_dwordx4 %s, %s, %s, %s offen offset:%d' % (vr(F + 4 * k, 4), vr(v_t[0]), sr(SRD_WS, 4), sr(s_stamp), k * 1024))
    A('s_waitcnt vmcnt(0) lgkmcnt(0)')
    A('s_barrier')
    A('s_cmp_lg_u32 %s, 0' % sr(s_w))
    A('s_cbranch_scc1 ' + L_work)
    dbgt(12)
    A('s_lshr_b32 %s, %s, 1' % (sr(s_t0), sr(s_x)))
    A('s_lshl_b32 %s, %s, 7' % (sr(s_t0), sr(s_t0)))
    A('s_add_u32 %s, %s, 0x%x' % (sr(s_t0), sr(s_t0), CTR + DBG_FIN * 128))
    A('v_mov_b32 %s, %s' % (vr(v_t[0]), sr(s_t0)))
    A('v_mov_b32 %s, 1' % vr(v_t[1]))
    A('s_mov_b64 exec, 1')
    A('buffer_atomic_add %s, %s, %s, 0 offen sc1' % (vr(v_t[1]), vr(v_t[0]), sr(SRD_WS, 4)))
    A('s_mov_b64 exec, -1')
    A('s_branch ' + L_work)
    A.label(L_exit)
    A('s_endpgm')
    A.label(L_work)
    worker(A, name)
    return dict(vgpr=512, accum=256, sgpr=102)
```

```python
from asmlib import *
from layout import *
from gemm import Gemm
from kernels import mk_srd, load_ptrs, out_direct, out_direct32, place_check, shift_ptrs
import attn
import os, json

LDS_JOB = 131072 + 64
LIM = 200000
WTOUCH = os.environ.get('WTOUCH', '')
WT_ODD = int(os.environ.get('WT_ODD', '1'))
WT2 = int(os.environ.get('WT2', '1'))
EARLY = int(os.environ.get('EARLY', '1'))
LAG = 2 if os.environ.get('OLDCHAIN') else 3
WST = int(os.environ.get('WST', '0'))

BL = int(os.environ.get('BL', '0'))
SEGS = [('skv', 16, 0), ('bkv', 16, 1), ('skv', 16, 1), ('bkv', 32, 3), ('bkv', 8, 7), ('q', 16, 0), ('bq', 24, 0),
        ('aattn', 8, 0), ('q', 8, 4), ('aout', 8, 0), ('q', 8, 6), ('aattn', 8, 2), ('battn', 8, 0), ('aout', 8, 2),
        ('battn', 8, 8), ('aattn', 4, 4), ('battn', 16, 16), ('aout', 4, 4), ('aattn1', 4, 20), ('aattn1', 4, 21),
        ('wot', 32, 0), ('aoutr', 2, 10), ('aattn1', 4, 22), ('aattn1', 4, 23), ('bout', 12, 0), ('aoutr', 2, 11),
        ('aattn1', 4, 24), ('aattn1', 4, 25), ('bout', 20 - BL, 12), ('aoutr', 2, 12), ('aattn1', 4, 26)]
NE = int(os.environ.get('NE', '3'))
for _mp in range(26, 32 - NE):
    SEGS += [('aattn1', 4, _mp + 1), ('aoutd', 8, _mp)]
for _mp in range(32 - NE, 32):
    if _mp < 31:
        SEGS += [('aattn1', 4, _mp + 1)]
    if _mp == 29:
        SEGS += [('aattn1', 4, 31)]
    SEGS += [('aoute', 16, 2 * _mp)]
SEGS += [('bout', BL, 32 - BL)]
SEGS = [x for x in SEGS if x[1]]
_seen = set()
SEGS = [x for x in SEGS if not (x in _seen or _seen.add(x))]
if os.environ.get('SEGS'):
    SEGS = [tuple(x) for x in json.loads(os.environ['SEGS'])]


def seg_bounds():
    o, a = [], 0
    for k, n, p in SEGS:
        o.append((a, a + n, '%s%d' % (k, p)))
        a += n
    return o


def gen_worker(A, name):
    S = Regs('s', 4, 100)
    P = load_ptrs(A, S)
    SRD_WS = S.alloc(4, 4)
    SRD_D = S.alloc(4, 4)
    SRD_O = S.alloc(4, 4)
    s_w, s_q, s_qn, s_job, s_cfg, s0, s1, s2_, s3, s_base, s_tbs, s_or, s_ctr, s_inc, s_mt, s_nt, s_it, s_k, s_p = [S.alloc() for _ in range(19)]
    s_pp = S.alloc(2, 2)
    s_tm = S.alloc(2, 2)
    s_sa = S.alloc()

    def wstamp(k):
        if not WST:
            return
        A('s_memrealtime %s' % sr(s_tm, 2))
        A('s_waitcnt lgkmcnt(0)')
        A('v_mov_b32 v4, %s' % sr(s_tm))
        A('v_mov_b32 v5, %s' % sr(s_sa))
        A('s_mov_b64 exec, 1')
        A('buffer_store_dword v4, v5, %s, 0 offen offset:%d' % (sr(SRD_WS, 4), 4 * k))
        if k in (2, 3):
            A('s_memtime %s' % sr(s_tm, 2))
            A('s_waitcnt lgkmcnt(0)')
            A('v_mov_b32 v4, %s' % sr(s_tm))
            A('buffer_store_dword v4, v5, %s, 0 offen offset:%d' % (sr(SRD_WS, 4), 4 * (k + 4)))
        A('s_mov_b64 exec, -1')
    def dbgt(word):
        if not int(os.environ.get('DBGT', '0')):
            return
        Lx = A.uid('dt')
        A('s_cmp_lg_u32 %s, 0' % sr(s_w))
        A('s_cbranch_scc1 ' + Lx)
        A('s_memrealtime %s' % sr(s_tm, 2))
        A('s_waitcnt lgkmcnt(0)')
        A('v_mov_b32 v4, %s' % sr(s_tm))
        A('v_mov_b32 v5, %d' % (word * 4))
        A('s_mov_b64 exec, 1')
        A('buffer_atomic_umax v4, v5, %s, 0 offen sc1' % sr(SRD_D, 4))
        A('s_mov_b64 exec, -1')
        A.label(Lx)
    v_lane, v_l16, v_off, v_a, v_b, v_sh = 1, 2, 3, 4, 5, 6
    s_init = S.alloc()
    s_et = S.alloc()
    s_wo = S.alloc()
    s_wo2 = S.alloc()
    smark = S.mark()
    V4 = Regs('v', 8, 256)
    G4 = Gemm(A, S, V4, 4, 4)
    hi = S.mark()
    S.release(smark)
    V2 = Regs('v', 8, 256)
    G2 = Gemm(A, S, V2, 2, 2, xsc=' sc1', nst=4)
    assert (G2.SRD_X, G2.SRD_W, G2.s_xo, G2.s_n) == (G4.SRD_X, G4.SRD_W, G4.s_xo, G4.s_n)
    G = G4
    L_next, L_done = name + '_wnext', name + '_wdone'

    A('v_and_b32 %s, 63, v0' % vr(v_lane))
    A('v_lshrrev_b32 %s, 6, v0' % vr(v_l16))
    A('v_readfirstlane_b32 %s, %s' % (sr(s_w), vr(v_l16)))
    A('v_lshlrev_b32 %s, 4, %s' % (vr(v_l16), vr(v_lane)))
    A('v_and_b32 %s, 31, %s' % (vr(v_off), vr(v_lane)))
    A('v_lshlrev_b32 %s, 12, %s' % (vr(v_off), vr(v_off)))
    A('v_lshrrev_b32 %s, 5, %s' % (vr(v_a), vr(v_lane)))
    A('v_lshl_add_u32 %s, %s, 4, %s' % (vr(v_off), vr(v_a), vr(v_off)))
    A('s_and_b32 %s, s%d, 3' % (sr(s_q), S_VX))
    A('s_mov_b32 %s, 0' % sr(s_qn))
    A('s_mov_b32 %s, 0' % sr(s_cfg))
    A('s_mov_b32 %s, %d' % (sr(s_ctr), DBG_WT))
    A('s_waitcnt lgkmcnt(0)')
    shift_ptrs(A, P['ws'], P['dbg'], s0)
    mk_srd(A, SRD_WS, P['ws'], WS_HALF)
    mk_srd(A, SRD_D, P['dbg'], 128)
    mk_srd(A, SRD_O, P['out'], 2048 * 2048 * 2)

    A('v_and_b32 %s, 3, %s' % (vr(v_sh), vr(v_lane)))
    A('v_lshlrev_b32 %s, 7, %s' % (vr(v_sh), vr(v_sh)))
    A('v_add_u32 %s, 0x%x, %s' % (vr(v_sh), CTR, vr(v_sh)))
    A('v_mov_b32 v7, 0')
    A('s_mov_b32 %s, 0' % sr(s_init))
    A('s_mov_b32 %s, 0' % sr(s_et))
    v_tk = 7

    def early():
        if not EARLY:
            return
        Le = A.uid('et')
        A('s_nop 11')
        A('s_cmp_eq_u32 %s, 0' % sr(s_init))
        A('s_cbranch_scc1 ' + Le)
        A('s_mov_b32 %s, 1' % sr(s_et))
        A('s_cmp_lg_u32 %s, 0' % sr(s_w))
        A('s_cbranch_scc1 ' + Le)
        A('s_lshl_b32 %s, %s, 7' % (sr(s_wo), sr(s_q)))
        A('s_add_u32 %s, %s, 0x%x' % (sr(s_wo), sr(s_wo), CTR + DBG_Q * 128))
        A('v_mov_b32 %s, %s' % (vr(v_a), sr(s_wo)))
        A('v_mov_b32 %s, 1' % vr(v_tk))
        A('s_mov_b64 exec, 1')
        A('buffer_atomic_add %s, %s, %s, 0 offen sc0 sc1' % (vr(v_tk), vr(v_a), sr(SRD_WS, 4)))
        A('s_mov_b64 exec, -1')
        A.label(Le)

    def wait_init():
        Lw, Ld = A.uid('iw'), A.uid('id')
        A('s_cmp_lg_u32 %s, 0' % sr(s_init))
        A('s_cbranch_scc1 ' + Ld)
        A('s_mov_b32 %s, 1' % sr(s_init))
        A('v_mov_b32 %s, %d' % (vr(v_a), DBG_INIT))
        A('s_mov_b32 %s, 0' % sr(s3))
        A.label(Lw)
        A('buffer_load_dword %s, %s, %s, 0 offen sc1' % (vr(v_b), vr(v_a), sr(SRD_D, 4)))
        A('s_add_u32 %s, %s, 1' % (sr(s3), sr(s3)))
        A('s_waitcnt vmcnt(0)')
        A('v_cmp_ne_u32 vcc, 0, %s' % vr(v_b))
        A('s_cbranch_vccnz ' + Ld)
        A('s_sleep 4')
        A('s_cmp_lt_u32 %s, %d' % (sr(s3), LIM))
        A('s_cbranch_scc1 ' + Lw)
        A.label(Ld)
    L_have = A.uid('havejob')
    L_got = A.uid('gotjob')
    A('s_mov_b32 %s, s3' % sr(s_job))
    SRD_T = S.alloc(4, 4)
    hi = max(hi, S.mark())

    def touch(ptrs_sizes, s_id, per_wave_log2):
        A('s_lshl_b32 %s, %s, %d' % (sr(s0), sr(s_id), per_wave_log2))
        A('v_lshlrev_b32 %s, 7, %s' % (vr(v_a), vr(v_lane)))
        for p, nbytes in ptrs_sizes:
            mk_srd(A, SRD_T, P[p], nbytes)
            for i in range(1 << (per_wave_log2 - 13)):
                A('s_add_u32 %s, %s, %d' % (sr(s1), sr(s0), i * 8192))
                A('buffer_load_dword v7, %s, %s, %s offen' % (vr(v_a), sr(SRD_T, 4), sr(s1)))
            A('s_nop 4')
    L_restart = name + '_restart'
    L_st = A.uid('static')
    A('s_cmp_lt_u32 s3, 32')
    A('s_cbranch_scc1 ' + L_st)
    place_check(A, SRD_D, v_lane, v_a, v_b, s3, LIM, L_restart)
    A('s_branch ' + L_next)
    A.label(L_st)
    if WTOUCH:
        if WT_ODD:
            A('s_bitcmp0_b32 s3, 0')
            A('s_cbranch_scc1 ' + L_have)
            A('s_lshr_b32 %s, s3, 1' % sr(s2_))
            A('s_lshl_b32 %s, %s, 4' % (sr(s0), sr(s_q)))
        else:
            A('s_mov_b32 %s, s3' % sr(s2_))
            A('s_lshl_b32 %s, %s, 5' % (sr(s0), sr(s_q)))
        A('s_add_u32 %s, %s, %s' % (sr(s2_), sr(s2_), sr(s0)))
        A('s_lshl_b32 %s, %s, 2' % (sr(s2_), sr(s2_)))
        A('s_add_u32 %s, %s, %s' % (sr(s2_), sr(s2_), sr(s_w)))
        touch([(k, 8 << 20) for k in WTOUCH.split(',')], s2_, 15 if WT_ODD else 14)
    A('s_branch ' + L_have)
    A.label(L_next)
    Lnf = A.uid('nofetch')
    A('s_cmp_lg_u32 %s, 0' % sr(s_w))
    A('s_cbranch_scc1 ' + Lnf)
    wait_init()
    A('s_lshl_b32 %s, %s, 7' % (sr(s0), sr(s_q)))
    A('s_add_u32 %s, %s, 0x%x' % (sr(s0), sr(s0), CTR + DBG_Q * 128))
    A('v_mov_b32 %s, %s' % (vr(v_a), sr(s0)))
    A('v_mov_b32 %s, 1' % vr(v_b))
    A('s_mov_b64 exec, 1')
    A('buffer_atomic_add %s, %s, %s, 0 offen sc0 sc1' % (vr(v_b), vr(v_a), sr(SRD_WS, 4)))
    A('s_waitcnt vmcnt(0)')
    A('v_mov_b32 %s, %d' % (vr(v_a), LDS_JOB))
    A('ds_write_b32 %s, %s' % (vr(v_a), vr(v_b)))
    A('s_waitcnt lgkmcnt(0)')
    A('s_mov_b64 exec, -1')
    A.label(Lnf)
    A('s_barrier')
    A('v_mov_b32 %s, %d' % (vr(v_a), LDS_JOB))
    A('ds_read_b32 %s, %s' % (vr(v_b), vr(v_a)))
    A('s_waitcnt lgkmcnt(0)')
    A('v_readfirstlane_b32 %s, %s' % (sr(s_job), vr(v_b)))
    A('s_barrier')
    A.label(L_got)
    A('s_mov_b32 %s, 1' % sr(s_init))
    A('s_add_u32 %s, %s, 32' % (sr(s_job), sr(s_job)))
    A.label(L_have)
    if WST:
        A('s_min_u32 %s, %s, 511' % (sr(s0), sr(s_job)))
        A('s_lshl_b32 %s, %s, 9' % (sr(s_sa), sr(s_q)))
        A('s_add_u32 %s, %s, %s' % (sr(s_sa), sr(s_sa), sr(s0)))
        A('s_lshl_b32 %s, %s, 2' % (sr(s_sa), sr(s_sa)))
        A('s_add_u32 %s, %s, %s' % (sr(s_sa), sr(s_sa), sr(s_w)))
        A('s_lshl_b32 %s, %s, 5' % (sr(s_sa), sr(s_sa)))
        A('s_add_u32 %s, %s, 0x%x' % (sr(s_sa), sr(s_sa), STAMP + 0x400000))
        wstamp(0)
    kinds = ('aoutr', 'aoutj', 'skv', 'bkv', 'bq', 'q', 'battn', 'bout', 'wot', 'aattn', 'aout', 'aattn1', 'aoutd', 'aoute', 'big', 'bigA', 'small', 'outc')
    L = {k: A.uid('job' + k) for k in kinds}
    for k, n, p in SEGS:
        A('s_mov_b32 %s, %d' % (sr(s_p), p))
        A('s_cmp_lt_u32 %s, %d' % (sr(s_job), n))
        A('s_cbranch_scc1 ' + L[k])
        A('s_sub_u32 %s, %s, %d' % (sr(s_job), sr(s_job), n))
    QLEN = sum(n for _, n, _ in SEGS)
    L_peek = name + '_wpeek'
    A.label(L_peek)
    A('s_mov_b32 %s, %d' % (sr(s0), DBG_Q * 128))
    A('buffer_load_dword %s, %s, %s, %s offen sc1' % (vr(v_b), vr(v_sh), sr(SRD_WS, 4), sr(s0)))
    A('v_lshlrev_b32 %s, 2, %s' % (vr(v_a), vr(v_lane)))
    A('v_add_u32 %s, %d, %s' % (vr(v_a), LDS_JOB + 64, vr(v_a)))
    A('s_waitcnt vmcnt(0)')
    Lp1 = A.uid('pk')
    A('s_cmp_lg_u32 %s, 0' % sr(s_w))
    A('s_cbranch_scc1 ' + Lp1)
    A('ds_write_b32 %s, %s' % (vr(v_a), vr(v_b)))
    A('s_waitcnt lgkmcnt(0)')
    A.label(Lp1)
    A('s_barrier')
    A('ds_read_b32 %s, %s' % (vr(v_b), vr(v_a)))
    A('s_waitcnt lgkmcnt(0)')
    A('s_barrier')
    for k in range(4):
        A('v_readlane_b32 %s, %s, %d' % (sr(s0), vr(v_b), k))
        A('s_mov_b32 %s, %d' % (sr(s_q), k))
        A('s_cmp_lt_u32 %s, %d' % (sr(s0), QLEN - 32))
        A('s_cbranch_scc1 ' + L_next)
    A('s_endpgm')

    def wait_ctr(s_off, thr, s_shift=None, bits=8, slp=12):
        Lw, Ld = A.uid('dw'), A.uid('dd')
        A('s_cmp_lg_u32 %s, 0' % sr(s_w))
        A('s_cbranch_scc1 ' + Ld)
        A('s_lshl_b32 %s, %s, 7' % (sr(s_wo), sr(s_off) if isinstance(s_off, int) else s_off))
        A('s_mov_b32 %s, 0' % sr(s3))
        A.label(Lw)
        A('buffer_load_dword %s, %s, %s, %s offen sc1' % (vr(v_b), vr(v_sh), sr(SRD_WS, 4), sr(s_wo)))
        A('s_add_u32 %s, %s, 1' % (sr(s3), sr(s3)))
        A('s_waitcnt vmcnt(0)')
        if s_shift is not None:
            A('v_bfe_u32 %s, %s, %s, %d' % (vr(v_b), vr(v_b), sr(s_shift), bits))
        A('v_cmp_gt_u32 vcc, %s, %s' % (thr, vr(v_b)))
        A('s_cbranch_vccz ' + Ld)
        A('s_sleep %d' % slp)
        A('s_cmp_lt_u32 %s, %d' % (sr(s3), LIM))
        A('s_cbranch_scc1 ' + Lw)
        A.label(Ld)
        A('s_barrier')

    def wait2(off1, thr1, off2, thr2, s_shift=None, bits=8, slp=12):
        Lw, Ld, Ln = A.uid('dw'), A.uid('dd'), A.uid('dn')
        tx = lambda o: sr(o) if isinstance(o, int) else o
        A('s_cmp_lg_u32 %s, 0' % sr(s_w))
        A('s_cbranch_scc1 ' + Ld)
        A('s_lshl_b32 %s, %s, 7' % (sr(s_wo), tx(off1)))
        A('s_lshl_b32 %s, %s, 7' % (sr(s_wo2), tx(off2)))
        A('s_mov_b32 %s, 0' % sr(s3))
        A.label(Lw)
        A('buffer_load_dword %s, %s, %s, %s offen sc1' % (vr(v_a), vr(v_sh), sr(SRD_WS, 4), sr(s_wo)))
        A('buffer_load_dword %s, %s, %s, %s offen sc1' % (vr(v_b), vr(v_sh), sr(SRD_WS, 4), sr(s_wo2)))
        A('s_add_u32 %s, %s, 1' % (sr(s3), sr(s3)))
        A('s_waitcnt vmcnt(0)')
        if s_shift is not None:
            A('v_bfe_u32 %s, %s, %s, %d' % (vr(v_b), vr(v_b), sr(s_shift), bits))
        A('v_cmp_gt_u32 vcc, %s, %s' % (thr1, vr(v_a)))
        A('s_cbranch_vccnz ' + Ln)
        A('v_cmp_gt_u32 vcc, %s, %s' % (thr2, vr(v_b)))
        A('s_cbranch_vccz ' + Ld)
        A.label(Ln)
        A('s_sleep %d' % slp)
        A('s_cmp_lt_u32 %s, %d' % (sr(s3), LIM))
        A('s_cbranch_scc1 ' + Lw)
        A.label(Ld)
        A('s_barrier')

    def cfg(Gx, cid, *args):
        Ls = A.uid('cfg')
        A('s_cmp_eq_u32 %s, %d' % (sr(s_cfg), cid))
        A('s_cbranch_scc1 ' + Ls)
        Gx.setup(v_lane, s_w, (s0, s1), *args)
        A('s_mov_b32 %s, %d' % (sr(s_cfg), cid))
        A.label(Ls)

    def blk_base(mbk, nbk):
        A('s_lshr_b32 %s, %s, 1' % (sr(s0), sr(s_w)))
        A('s_lshl_b32 %s, %s, 1' % (sr(s1), sr(s_mt)))
        A('s_add_u32 %s, %s, %s' % (sr(s0), sr(s0), sr(s1)))
        A('s_mul_i32 %s, %s, %d' % (sr(s0), sr(s0), mbk))
        A('s_mul_i32 %s, %s, %s' % (sr(s0), sr(s0), sr(s_tbs)))
        A('s_add_u32 %s, %s, %s' % (sr(s_base), sr(s_base), sr(s0)))
        A('s_and_b32 %s, %s, 1' % (sr(s0), sr(s_w)))
        A('s_lshl_b32 %s, %s, 1' % (sr(s1), sr(s_nt)))
        A('s_add_u32 %s, %s, %s' % (sr(s0), sr(s0), sr(s1)))
        A('s_mul_i32 %s, %s, %d' % (sr(s0), sr(s0), nbk * 2048))
        A('s_add_u32 %s, %s, %s' % (sr(s_base), sr(s_base), sr(s0)))

    def sel_kv(thr):
        A('s_cmp_ge_u32 %s, %d' % (sr(s_nt), thr))
        A('s_cselect_b32 %s, 1, 0' % sr(s_or))
        A('s_cselect_b64 %s, %s, %s' % (sr(s_pp, 2), sr(P['A_Wv'], 2), sr(P['A_Wk'], 2)))
        A('s_mov_b32 %s, 0x%x' % (sr(s_base), KX))
        A('s_cselect_b32 %s, 0x%x, %s' % (sr(s_base), VX, sr(s_base)))
        A('s_and_b32 %s, %s, %d' % (sr(s_nt), sr(s_nt), thr - 1))

    def ctr(base, s_idx, inc):
        A('s_lshl_b32 %s, %s, 2' % (sr(s_ctr), sr(s_idx)))
        A('s_add_u32 %s, %s, %d' % (sr(s_ctr), sr(s_ctr), base))
        A('s_mov_b32 %s, %d' % (sr(s_inc), inc))

    def nt_q(mask_bits_shift, mask):
        A('s_lshr_b32 %s, %s, %d' % (sr(s_nt), sr(s_job), mask_bits_shift))
        A('s_and_b32 %s, %s, %d' % (sr(s_nt), sr(s_nt), mask))
        A('s_lshl_b32 %s, %s, 2' % (sr(s_nt), sr(s_nt)))
        A('s_add_u32 %s, %s, %s' % (sr(s_nt), sr(s_nt), sr(s_q)))

    A.label(L['skv'])
    A('s_lshr_b32 %s, %s, 1' % (sr(s0), sr(s_p)))
    ctr(DBG_KV, s0, 1)
    A('s_mov_b32 %s, %s' % (sr(s_mt), sr(s_p)))
    nt_q(0, 15)
    sel_kv(32)
    mk_srd(A, G.SRD_W, s_pp, 1024 * 4096 * 2)
    mk_srd(A, G.SRD_X, P['A_x'], 2048 * 1024 * 2)
    A('s_lshl_b32 %s, %s, 18' % (sr(G.s_xo), sr(s_mt)))
    A('s_mov_b32 %s, 128' % sr(G.s_xs))
    A('s_lshl_b32 %s, %s, 8' % (sr(G.s_wo), sr(s_nt)))
    A('s_mov_b32 %s, %d' % (sr(G.s_ws), 64 * 8192))
    A('s_mov_b32 %s, %d' % (sr(s_tbs), 128 * 2048))
    A('s_mov_b32 %s, 3' % sr(G.s_n))
    blk_base(2, 2)
    cfg(G2, 3, 'nat', 2048, 8192)
    A('s_mov_b32 %s, 0' % sr(s_k))
    A('s_branch ' + L['small'])

    A.label(L['aout'])
    A('s_lshr_b32 %s, %s, 2' % (sr(s_mt), sr(s_job)))
    A('s_add_u32 %s, %s, %s' % (sr(s_mt), sr(s_mt), sr(s_p)))
    A('s_lshl_b32 %s, %s, 1' % (sr(s_mt), sr(s_mt)))
    A('s_lshr_b32 %s, %s, 1' % (sr(s0), sr(s_q)))
    A('s_add_u32 %s, %s, %s' % (sr(s_mt), sr(s_mt), sr(s0)))
    A('s_and_b32 %s, %s, 1' % (sr(s_nt), sr(s_q)))
    A('s_lshl_b32 %s, %s, 2' % (sr(s_nt), sr(s_nt)))
    A('s_and_b32 %s, %s, 3' % (sr(s0), sr(s_job)))
    A('s_add_u32 %s, %s, %s' % (sr(s_nt), sr(s_nt), sr(s0)))
    A('s_mov_b32 %s, 4' % sr(s_tbs))
    A('s_mov_b32 %s, 0' % sr(s_it))
    A('s_branch ' + L['aoutj'])
    A.label(L['aoutr'])
    A('s_mov_b32 %s, %s' % (sr(s_mt), sr(s_p)))
    A('s_lshl_b32 %s, %s, 1' % (sr(s_nt), sr(s_q)))
    A('s_add_u32 %s, %s, %s' % (sr(s_nt), sr(s_nt), sr(s_job)))
    A('s_mov_b32 %s, 0x2222' % sr(s_tbs))
    A('s_and_b32 %s, %s, 1' % (sr(s_it), sr(s_p)))
    A('s_lshl_b32 %s, %s, 4' % (sr(s_it), sr(s_it)))
    A.label(L['aoutj'])
    mk_srd(A, G.SRD_W, P['A_Wo'], 4096 * 1024 * 2)
    A('s_mul_i32 %s, %s, %d' % (sr(G.s_xo), sr(s_mt), 4 * 128 * 2048))
    A('s_add_u32 %s, %s, 0x%x' % (sr(G.s_xo), sr(G.s_xo), OA))
    A('s_mov_b32 %s, 15' % sr(G.s_n))
    A('s_mov_b32 %s, 0' % sr(s_base))
    A('s_mov_b32 %s, %d' % (sr(s2_), DBG_AA))
    cfg(G2, 5, 'blk', 128 * 2048, 2048)
    A('s_branch ' + L['outc'])
    A.label(L['bout'])
    A('s_add_u32 %s, %s, %s' % (sr(s_job), sr(s_job), sr(s_p)))
    A('s_lshr_b32 %s, %s, 1' % (sr(s_mt), sr(s_job)))
    nt_q(0, 1)
    mk_srd(A, G.SRD_W, P['B_wo'], 1024 * 1024 * 2)
    A('s_mul_i32 %s, %s, %d' % (sr(G.s_xo), sr(s_mt), 4 * 32 * 2048))
    A('s_add_u32 %s, %s, 0x%x' % (sr(G.s_xo), sr(G.s_xo), OB))
    A('s_mov_b32 %s, 3' % sr(G.s_n))
    A('s_mov_b32 %s, 2048' % sr(s_base))
    A('s_mov_b32 %s, %d' % (sr(s2_), DBG_BA))
    A('s_mov_b32 %s, 4' % sr(s_tbs))
    A('s_mov_b32 %s, 0' % sr(s_it))
    cfg(G2, 4, 'blk', 32 * 2048, 2048)
    A.label(L['outc'])
    mk_srd(A, G.SRD_X, P['ws'], WS_HALF)
    A('s_mov_b32 %s, 4096' % sr(G.s_xs))
    A('s_lshl_b32 %s, %s, 8' % (sr(G.s_wo), sr(s_nt)))
    A('s_mov_b32 %s, %d' % (sr(G.s_ws), 64 * 2048))
    A('s_mov_b32 %s, 0' % sr(s_or))
    A('s_mov_b32 %s, 0' % sr(s_inc))
    A('s_lshr_b32 %s, %s, 1' % (sr(s0), sr(s_w)))
    A('s_lshl_b32 %s, %s, 18' % (sr(s0), sr(s0)))
    A('s_add_u32 %s, %s, %s' % (sr(s_base), sr(s_base), sr(s0)))
    A('s_lshl_b32 %s, %s, 19' % (sr(s0), sr(s_mt)))
    A('s_add_u32 %s, %s, %s' % (sr(s_base), sr(s_base), sr(s0)))
    A('s_and_b32 %s, %s, 1' % (sr(s0), sr(s_w)))
    A('s_lshl_b32 %s, %s, 7' % (sr(s0), sr(s0)))
    A('s_add_u32 %s, %s, %s' % (sr(s_base), sr(s_base), sr(s0)))
    A('s_add_u32 %s, %s, %s' % (sr(s_base), sr(s_base), sr(G.s_wo)))
    A('s_lshr_b32 %s, %s, 1' % (sr(s0), sr(s_mt)))
    A('s_lshl_b32 %s, %s, 2' % (sr(s0), sr(s0)))
    A('s_add_u32 %s, %s, %s' % (sr(s0), sr(s0), sr(s2_)))
    wait_ctr(s0, sr(s_tbs), s_it, bits=16)
    A('s_mov_b32 %s, 1' % sr(s_k))
    A.label(L['small'])
    wstamp(1)
    G2.prologue()
    wstamp(2)
    LN, LE, LO = A.uid('sN'), A.uid('sE'), A.uid('sO')
    A('s_cmp_eq_u32 %s, 1' % sr(s_or))
    A('s_cbranch_scc1 ' + LN)
    G2.mainloop('T', 'st')
    A('s_nop 15')
    A('s_cmp_eq_u32 %s, 1' % sr(s_k))
    A('s_cbranch_scc1 ' + LO)
    A('s_branch ' + LE)
    A.label(LN)
    G2.mainloop('N', 'sn')
    A.label(LE)
    wstamp(3)
    early()
    G2.epi_blk(SRD_WS, v_l16, s_base, s_tbs, s0, ' sc1')
    A('s_branch ' + L_done)
    A.label(LO)
    wstamp(3)
    early()
    G2.epi_out(SRD_O, v_off, s_base)
    A('s_branch ' + L_done)

    A.label(L['wot'])
    nt_q(0, 1)
    A('s_lshr_b32 %s, %s, 1' % (sr(s_mt), sr(s_job)))
    mk_srd(A, G.SRD_W, P['A_Wo'], 4096 * 1024 * 2)
    cfg(G2, 5, 'blk', 128 * 2048, 2048)
    A('s_lshl_b32 %s, %s, 8' % (sr(G.s_wo), sr(s_nt)))
    A('s_lshl_b32 %s, %s, 19' % (sr(s0), sr(s_mt)))
    A('s_add_u32 %s, %s, %s' % (sr(G.s_wo), sr(G.s_wo), sr(s0)))
    A('s_mov_b32 %s, 1' % sr(s_inc))
    A('s_mov_b32 %s, %d' % (sr(s_ctr), DBG_WT))
    wstamp(1)
    for st in range(4):
        for g in G2.dma_ops(st)[G2.nX:]:
            for t in g:
                A(t)
        A('s_add_u32 %s, %s, %d' % (sr(G.s_wo), sr(G.s_wo), 64 * 2048))
    A('s_and_b32 %s, %s, 1' % (sr(s0), sr(s_w)))
    A('s_lshl_b32 %s, %s, 1' % (sr(s0), sr(s0)))
    A('s_lshl_b32 %s, %s, 2' % (sr(s1), sr(s_nt)))
    A('s_add_u32 %s, %s, %s' % (sr(s0), sr(s0), sr(s1)))
    A('s_lshl_b32 %s, %s, 18' % (sr(s_base), sr(s0)))
    A('s_lshl_b32 %s, %s, 14' % (sr(s0), sr(s_mt)))
    A('s_add_u32 %s, %s, %s' % (sr(s_base), sr(s_base), sr(s0)))
    A('s_lshr_b32 %s, %s, 1' % (sr(s0), sr(s_w)))
    A('s_lshl_b32 %s, %s, 13' % (sr(s1), sr(s0)))
    A('s_add_u32 %s, %s, %s' % (sr(s_base), sr(s_base), sr(s1)))
    A('s_add_u32 %s, %s, 0x%x' % (sr(s_base), sr(s_base), WOT))
    A('s_mul_i32 %s, %s, %d' % (sr(s0), sr(s0), 2 * G2.STG))
    T = V2.alloc(64, 4)
    ta = [V2.alloc() for _ in range(4)]
    for i in range(2):
        for q in range(2):
            A('v_add_u32 %s, %s, %s' % (vr(ta[2 * i + q]), sr(s0), vr(G2.rw[0][i][q])))
    early()
    A('s_waitcnt vmcnt(0)')
    A('s_barrier')
    for i in range(2):
        for st in range(2):
            for ks in range(4):
                d = T + 4 * ((i * 2 + st) * 4 + ks)
                for q in range(2):
                    A('ds_read_b64_tr_b16 %s, %s offset:%d' % (vr(d + 2 * q, 2), vr(ta[2 * i + q]), st * G2.STG + ks * 16 * G2.wrow))
            A('s_waitcnt lgkmcnt(0)')
    for i in range(2):
        for st in range(2):
            A('s_add_u32 %s, %s, %d' % (sr(s0), sr(s_base), i * 262144 + st * 4096))
            for ks in range(4):
                d = T + 4 * ((i * 2 + st) * 4 + ks)
                A('buffer_store_dwordx4 %s, %s, %s, %s offen offset:%d' % (vr(d, 4), vr(v_l16), sr(SRD_WS, 4), sr(s0), ks * 1024) + ' sc1')
    A('s_branch ' + L_done)

    def wid16():
        A('s_lshl_b32 %s, %s, 4' % (sr(s0), sr(s_q)))
        A('s_add_u32 %s, %s, %s' % (sr(s2_), sr(s_job), sr(s0)))
        A('s_lshl_b32 %s, %s, 2' % (sr(s2_), sr(s2_)))
        A('s_add_u32 %s, %s, %s' % (sr(s2_), sr(s2_), sr(s_w)))
    A.label(L['bkv'])
    if WT2:
        Lnt = A.uid('nt2')
        A('s_cmp_lg_u32 %s, 1' % sr(s_p))
        A('s_cbranch_scc1 ' + Lnt)
        wid16()
        touch([('A_x', 4 << 20)], s2_, 14)
        A.label(Lnt)
    A('s_lshl_b32 %s, %s, 5' % (sr(s0), sr(s_q)))
    A('s_add_u32 %s, %s, %s' % (sr(s_k), sr(s_job), sr(s0)))
    A('s_lshl_b32 %s, %s, 2' % (sr(s_k), sr(s_k)))
    A('s_add_u32 %s, %s, %s' % (sr(s_k), sr(s_k), sr(s_w)))
    A('s_cmp_eq_u32 %s, 3' % sr(s_p))
    A('s_cselect_b32 %s, %s, -1' % (sr(s_k), sr(s_k)))
    A('s_lshr_b32 %s, %s, 3' % (sr(s_mt), sr(s_job)))
    A('s_add_u32 %s, %s, %s' % (sr(s_mt), sr(s_mt), sr(s_p)))
    nt_q(0, 7)
    sel_kv(16)
    ctr(DBG_KV, s_mt, 4)
    A('s_branch ' + L['bigA'])
    A.label(L['q'])
    A('s_mov_b32 %s, -1' % sr(s_k))
    A('s_lshr_b32 %s, %s, 2' % (sr(s_mt), sr(s_job)))
    A('s_add_u32 %s, %s, %s' % (sr(s_mt), sr(s_mt), sr(s_p)))
    nt_q(0, 3)
    A('s_mov_b64 %s, %s' % (sr(s_pp, 2), sr(P['A_Wq'], 2)))
    A('s_mov_b32 %s, 0x%x' % (sr(s_base), QX))
    A('s_mov_b32 %s, 0' % sr(s_or))
    ctr(DBG_QR, s_mt, 1)
    A.label(L['bigA'])
    mk_srd(A, G.SRD_W, s_pp, 1024 * 4096 * 2)
    mk_srd(A, G.SRD_X, P['A_x'], 2048 * 1024 * 2)
    A('s_lshl_b32 %s, %s, 9' % (sr(G.s_wo), sr(s_nt)))
    A('s_mov_b32 %s, %d' % (sr(G.s_ws), 64 * 8192))
    A('s_mov_b32 %s, %d' % (sr(s_tbs), 128 * 2048))
    cfg(G4, 1, 'nat', 2048, 8192)
    A('s_branch ' + L['big'])
    A.label(L['bq'])
    A('s_mov_b32 %s, -1' % sr(s_k))
    A('s_mul_i32 %s, %s, 43' % (sr(s_mt), sr(s_job)))
    A('s_lshr_b32 %s, %s, 7' % (sr(s_mt), sr(s_mt)))
    A('s_mul_i32 %s, %s, 3' % (sr(s0), sr(s_mt)))
    A('s_sub_u32 %s, %s, %s' % (sr(s0), sr(s_job), sr(s0)))
    A('s_cmp_eq_u32 %s, 2' % sr(s0))
    A('s_cselect_b32 %s, 1, 0' % sr(s_or))
    A('s_lshl_b32 %s, %s, 22' % (sr(s_base), sr(s0)))
    A('s_add_u32 %s, %s, 0x%x' % (sr(s_base), sr(s_base), QB))
    A('s_lshl_b32 %s, %s, 2' % (sr(s0), sr(s0)))
    A('s_add_u32 %s, %s, %s' % (sr(s0), sr(s0), sr(s_q)))
    A('s_lshl_b32 %s, %s, 9' % (sr(G.s_wo), sr(s0)))
    A('s_mov_b32 %s, %s' % (sr(s_nt), sr(s_q)))
    mk_srd(A, G.SRD_W, P['B_wqkv'], 1024 * 3072 * 2)
    mk_srd(A, G.SRD_X, P['B_x'], 2048 * 1024 * 2)
    A('s_mov_b32 %s, %d' % (sr(G.s_ws), 64 * 6144))
    A('s_mov_b32 %s, %d' % (sr(s_tbs), 32 * 2048))
    ctr(DBG_BQ, s_mt, 1)
    cfg(G4, 2, 'nat', 2048, 6144)
    A.label(L['big'])
    A('s_lshl_b32 %s, %s, 19' % (sr(G.s_xo), sr(s_mt)))
    A('s_mov_b32 %s, 128' % sr(G.s_xs))
    A('s_mov_b32 %s, 7' % sr(G.s_n))
    blk_base(4, 4)
    wstamp(1)
    G4.prologue()
    wstamp(2)
    Lnt3 = A.uid('nt3')
    A('s_cmp_eq_u32 %s, -1' % sr(s_k))
    A('s_cbranch_scc1 ' + Lnt3)
    touch([('B_x', 4 << 20), ('B_wo', 2 << 20)], s_k, 13)
    touch([('B_wqkv', 6 << 20)], s_k, 14)
    A.label(Lnt3)
    LN, LE = A.uid('bN'), A.uid('bE')
    A('s_cmp_eq_u32 %s, 1' % sr(s_or))
    A('s_cbranch_scc1 ' + LN)
    G4.mainloop('T', 'bt')
    A('s_nop 15')
    A('s_branch ' + LE)
    A.label(LN)
    G4.mainloop('N', 'bn')
    A.label(LE)
    wstamp(3)
    early()
    G4.epi_blk(SRD_WS, v_l16, s_base, s_tbs, s0, ' sc1')
    dbgt(15)
    A('s_branch ' + L_done)

    def attn_items():
        A('s_mov_b32 %s, 0' % sr(s_cfg))
        A('s_and_b32 %s, %s, 3' % (sr(s0), sr(s_job)))
        A('s_lshl_b32 %s, %s, 2' % (sr(s1), sr(s_q)))
        A('s_add_u32 %s, %s, %s' % (sr(s0), sr(s0), sr(s1)))
        A('s_lshl_b32 %s, %s, 1' % (sr(s0), sr(s0)))
        A('s_and_b32 %s, %s, 1' % (sr(s1), sr(s_w)))
        A('s_add_u32 %s, %s, %s' % (sr(s_it), sr(s0), sr(s1)))
        A('s_lshl_b32 %s, %s, 8' % (sr(s0), sr(s_mt)))
        A('s_add_u32 %s, %s, %s' % (sr(s_it), sr(s_it), sr(s0)))
        A('s_lshr_b32 %s, %s, 1' % (sr(s0), sr(s_w)))
        A('s_lshl_b32 %s, %s, 7' % (sr(s0), sr(s0)))
        A('s_add_u32 %s, %s, %s' % (sr(s_it), sr(s_it), sr(s0)))
        A('s_mov_b32 %s, 4' % sr(s_k))
        wstamp(1)

    def attn_loop(fn, tag):
        Lb = A.uid(tag)
        A.label(Lb)
        fn(A, SRD_WS, s_it, (s0, s1, s2_, s3), v_lane, v_l16, 8, ld=' sc1', stf=' sc1')
        A('s_add_u32 %s, %s, 32' % (sr(s_it), sr(s_it)))
        A('s_sub_u32 %s, %s, 1' % (sr(s_k), sr(s_k)))
        A('s_cmp_lg_u32 %s, 0' % sr(s_k))
        A('s_waitcnt vmcnt(0)')
        A('s_cbranch_scc1 ' + Lb)

    A.label(L['aattn'])
    A('s_lshr_b32 %s, %s, 2' % (sr(s_mt), sr(s_job)))
    A('s_add_u32 %s, %s, %s' % (sr(s_mt), sr(s_mt), sr(s_p)))
    A('s_lshl_b32 %s, %s, 2' % (sr(s_ctr), sr(s_mt)))
    A('s_add_u32 %s, %s, %d' % (sr(s0), sr(s_ctr), DBG_QR))
    A('s_lshl_b32 %s, %s, 3' % (sr(s1), sr(s_mt)))
    A('s_add_u32 %s, %s, %d' % (sr(s1), sr(s1), 7 + LAG))
    wait2(s0, 4, str(DBG_PROG), sr(s1))
    ctr(DBG_AA, s_mt, 1)
    attn_items()
    attn.attn_a_n(A, SRD_WS, s_it, (s0, s1, s2_, s3), v_lane, v_l16, 8, 4, ld=' sc1', stf=' sc1', late=early)
    A('s_branch ' + L_done)

    A.label(L['aattn1'])
    A('s_lshr_b32 %s, %s, 2' % (sr(s_mt), sr(s_p)))
    A('s_lshl_b32 %s, %s, 2' % (sr(s_ctr), sr(s_mt)))
    A('s_lshl_b32 %s, %s, 1' % (sr(s_it), sr(s_p)))
    A('s_lshr_b32 %s, %s, 1' % (sr(s0), sr(s_job)))
    A('s_add_u32 %s, %s, %s' % (sr(s_it), sr(s_it), sr(s0)))
    A('s_add_u32 %s, %s, %d' % (sr(s_tbs), sr(s_it), LAG))
    A('s_mov_b32 %s, %d' % (sr(s_base), DBG_PROG))
    A('s_cmp_gt_u32 %s, 60' % sr(s_it))
    A('s_cselect_b32 %s, 32, %s' % (sr(s_tbs), sr(s_tbs)))
    A('s_cselect_b32 %s, %d, %s' % (sr(s_base), DBG_FIN, sr(s_base)))
    A('s_add_u32 %s, %s, %d' % (sr(s0), sr(s_ctr), DBG_KV))
    A('s_add_u32 %s, %s, %d' % (sr(s1), sr(s_ctr), DBG_QR))
    wait2(s0, 32, s1, 4)
    A('s_add_u32 %s, %s, %d' % (sr(s_ctr), sr(s_ctr), DBG_AA))
    A('s_and_b32 %s, %s, 7' % (sr(s0), sr(s_it)))
    A('s_lshl_b32 %s, %s, 2' % (sr(s0), sr(s0)))
    A('s_lshl_b32 %s, 1, %s' % (sr(s_inc), sr(s0)))
    A('s_lshl_b32 %s, %s, 5' % (sr(s_it), sr(s_it)))
    A('s_lshl_b32 %s, %s, 3' % (sr(s0), sr(s_q)))
    A('s_add_u32 %s, %s, %s' % (sr(s_it), sr(s_it), sr(s0)))
    A('s_and_b32 %s, %s, 1' % (sr(s0), sr(s_job)))
    A('s_lshl_b32 %s, %s, 2' % (sr(s0), sr(s0)))
    A('s_add_u32 %s, %s, %s' % (sr(s_it), sr(s_it), sr(s0)))
    A('s_add_u32 %s, %s, %s' % (sr(s_it), sr(s_it), sr(s_w)))
    A('s_mov_b32 %s, 0' % sr(s_cfg))

    def pw1():
        wait_ctr(s_base, sr(s_tbs), slp=4)
        wstamp(1)
        early()
    attn.attn_a(A, SRD_WS, s_it, (s0, s1, s2_, s3), v_lane, v_l16, 8, ld=' sc1', stf=' sc1', pre_wait=pw1)
    A('s_branch ' + L_done)

    A.label(L['aoute'])
    wait_ctr(str(DBG_WT), 32)
    A('s_lshr_b32 %s, %s, 3' % (sr(s_mt), sr(s_job)))
    A('s_add_u32 %s, %s, %s' % (sr(s_mt), sr(s_mt), sr(s_p)))
    A('s_lshl_b32 %s, %s, 3' % (sr(s_nt), sr(s_q)))
    A('s_and_b32 %s, %s, 7' % (sr(s0), sr(s_job)))
    A('s_add_u32 %s, %s, %s' % (sr(s_nt), sr(s_nt), sr(s0)))
    A('s_mov_b32 %s, 0' % sr(s_inc))
    A('s_mov_b32 %s, 0' % sr(s_cfg))

    def pw2():
        A('s_lshr_b32 %s, %s, 3' % (sr(s0), sr(s_mt)))
        A('s_lshl_b32 %s, %s, 2' % (sr(s0), sr(s0)))
        A('s_add_u32 %s, %s, %d' % (sr(s0), sr(s0), DBG_AA))
        A('s_and_b32 %s, %s, 7' % (sr(s1), sr(s_mt)))
        A('s_lshl_b32 %s, %s, 2' % (sr(s1), sr(s1)))
        wait_ctr(s0, 2, s1, bits=4, slp=4)
        wstamp(1)
    out_direct32(A, SRD_WS, SRD_O, s_w, s_mt, s_nt, (s_base, s_tbs, s0, s_it, s_k), v_lane, v_l16, 8, ' sc1', pw2)
    A('s_branch ' + L_done)

    A.label(L['aoutd'])
    A('s_lshr_b32 %s, %s, 2' % (sr(s0), sr(s_p)))
    A('s_lshl_b32 %s, %s, 2' % (sr(s0), sr(s0)))
    A('s_add_u32 %s, %s, %d' % (sr(s0), sr(s0), DBG_AA))
    A('s_and_b32 %s, %s, 3' % (sr(s1), sr(s_p)))
    A('s_lshl_b32 %s, %s, 3' % (sr(s1), sr(s1)))
    wait2(str(DBG_WT), 32, s0, '0x22', s1)
    A('s_lshl_b32 %s, %s, 1' % (sr(s_mt), sr(s_p)))
    A('s_lshl_b32 %s, %s, 3' % (sr(s_nt), sr(s_q)))
    A('s_add_u32 %s, %s, %s' % (sr(s_nt), sr(s_nt), sr(s_job)))
    A('s_mov_b32 %s, 0' % sr(s_inc))
    A('s_mov_b32 %s, 0' % sr(s_cfg))
    wstamp(1)
    out_direct(A, SRD_WS, SRD_O, s_w, s_mt, s_nt, (s_base, s_tbs, s_it, s0, s1), v_lane, v_l16, v_off, 8, ld=' sc1', pre=early)
    A('s_branch ' + L_done)

    A.label(L['battn'])
    A('s_add_u32 %s, %s, %s' % (sr(s_job), sr(s_job), sr(s_p)))
    A('s_lshr_b32 %s, %s, 2' % (sr(s_mt), sr(s_job)))
    A('s_lshl_b32 %s, %s, 2' % (sr(s_ctr), sr(s_mt)))
    A('s_add_u32 %s, %s, %d' % (sr(s1), sr(s_ctr), DBG_BQ))
    A('s_add_u32 %s, %s, %d' % (sr(s0), sr(s_ctr), DBG_BQ - 4))
    A('s_max_u32 %s, %s, %d' % (sr(s0), sr(s0), DBG_BQ))
    wait2(s0, 3, s1, 3)
    ctr(DBG_BA, s_mt, 1)
    attn_items()
    attn.attn_b4(A, SRD_WS, s_it, (s0, s1, s2_, s3), v_lane, v_l16, 8, ld=' sc1', stf=' sc1', late=early)

    A.label(L_done)
    wstamp(4)
    Lq0 = A.uid('q0')
    A('s_cmp_lg_u32 %s, 0' % sr(s_init))
    A('s_cbranch_scc1 ' + Lq0)
    A('v_cmp_gt_u32 vcc, 8, %s' % vr(v_lane))
    A('v_lshlrev_b32 %s, 2, %s' % (vr(v_a), vr(v_lane)))
    A('v_mov_b32 %s, %d' % (vr(v_b), DBG_INIT))
    A('v_cndmask_b32 %s, %s, %s, vcc' % (vr(v_a), vr(v_b), vr(v_a)))
    A('buffer_load_dword %s, %s, %s, 0 offen sc1' % (vr(v_b), vr(v_a), sr(SRD_D, 4)))
    A('v_cndmask_b32 %s, 1, 32, vcc' % vr(v_a))
    A('s_waitcnt vmcnt(0)')
    A('v_cmp_ne_u32 vcc, %s, %s' % (vr(v_a), vr(v_b)))
    A('s_cbranch_vccnz ' + Lq0)
    A('s_mov_b32 %s, 1' % sr(s_init))
    A.label(Lq0)
    A('s_waitcnt vmcnt(0)')
    wstamp(5)
    dbgt(14)
    Ld1, Ld2, Lsig = A.uid('d1'), A.uid('d2'), A.uid('sig')
    A('v_mov_b32 %s, %d' % (vr(v_a), LDS_JOB))
    A('s_cmp_lg_u32 %s, 0' % sr(s_w))
    A('s_cbranch_scc1 ' + Ld1)
    A('s_mov_b64 exec, 1')
    A('ds_write_b32 %s, %s' % (vr(v_a), vr(v_tk)))
    A('s_mov_b64 exec, -1')
    A('s_waitcnt lgkmcnt(0)')
    A.label(Ld1)
    A('s_barrier')
    Lck = A.uid('ck')
    A('s_cmp_lg_u32 %s, 0' % sr(s_init))
    A('s_cbranch_scc1 ' + Lck)
    place_check(A, SRD_D, v_lane, v_a, v_b, s3, LIM, L_restart)
    A.label(Lck)
    A('s_cmp_lg_u32 %s, 0' % sr(s_w))
    A('s_cbranch_scc1 ' + Ld2)
    A('s_cmp_lg_u32 %s, 0' % sr(s_inc))
    A('s_cbranch_scc1 ' + Lsig)
    A.label(Ld2)
    A('s_cmp_eq_u32 %s, 0' % sr(s_et))
    A('s_cbranch_scc1 ' + L_next)
    A('s_mov_b32 %s, 0' % sr(s_et))
    A('v_mov_b32 %s, %d' % (vr(v_a), LDS_JOB))
    A('ds_read_b32 %s, %s' % (vr(v_b), vr(v_a)))
    A('s_waitcnt lgkmcnt(0)')
    A('v_readfirstlane_b32 %s, %s' % (sr(s_job), vr(v_b)))
    A('s_barrier')
    A('s_branch ' + L_got)
    A.label(Lsig)
    wait_init()
    A('s_add_u32 %s, %s, %s' % (sr(s0), sr(s_ctr), sr(s_q)))
    A('s_lshl_b32 %s, %s, 7' % (sr(s0), sr(s0)))
    A('s_add_u32 %s, %s, 0x%x' % (sr(s0), sr(s0), CTR))
    A('v_mov_b32 %s, %s' % (vr(v_a), sr(s0)))
    A('v_mov_b32 %s, %s' % (vr(v_b), sr(s_inc)))
    A('s_mov_b64 exec, 1')
    A('buffer_atomic_add %s, %s, %s, 0 offen sc1' % (vr(v_b), vr(v_a), sr(SRD_WS, 4)))
    Lk0 = A.uid('k0')
    A('s_cmp_lg_u32 %s, %d' % (sr(s_ctr), DBG_KV))
    A('s_cbranch_scc1 ' + Lk0)
    A('s_cmp_lg_u32 %s, 0' % sr(s_mt))
    A('s_cbranch_scc1 ' + Lk0)
    A('v_add_u32 %s, %d, %s' % (vr(v_a), (DBG_KV0 - DBG_KV) * 128, vr(v_a)))
    A('v_mov_b32 %s, 2' % vr(v_b))
    A('buffer_atomic_add %s, %s, %s, 0 offen sc1' % (vr(v_b), vr(v_a), sr(SRD_WS, 4)))
    A.label(Lk0)
    A('s_mov_b64 exec, -1')
    A('s_branch ' + Ld2)
    return hi
```

```python
from asmlib import *
from layout import *


import os
FAKE16 = int(os.environ.get('FAKE16', '0'))


class Gemm:
    def __init__(self, A, S, V, mb, nb, xsc='', nst=2):
        self.A, self.mb, self.nb = A, mb, nb
        self.nst = nst
        self.xsc = xsc
        self.TM, self.TN = 64 * mb, 64 * nb
        self.nX, self.nW = self.TM // 32, self.TN // 32
        self.XB = self.TM * 128
        self.WB = self.TN * 128
        self.STG = self.XB + self.WB
        self.wrow = self.TN * 2
        self.SRD_X = S.alloc(4, 4)
        self.SRD_W = S.alloc(4, 4)
        self.s_xo = S.alloc()
        self.s_wo = S.alloc()
        self.s_xs = S.alloc()
        self.s_ws = S.alloc()
        self.s_n = S.alloc()
        self.s_lx = S.alloc()
        self.s_lw = S.alloc()
        self.vx = [V.alloc() for _ in range(self.nX)]
        self.vw = [V.alloc() for _ in range(self.nW)]
        self.rx = [[V.alloc() for _ in range(4)] for _ in range(nst)]
        self.rw = [[[V.alloc() for _ in range(2)] for _ in range(nb)] for _ in range(nst)]
        self.FX = [V.alloc(4 * mb, 4) for _ in range(2)]
        self.FW = [V.alloc(4 * nb, 4) for _ in range(2)]
        self.t = [V.alloc() for _ in range(6)]
        self.E = V.alloc(24, 4)

    def acc(self, m, n):
        return 16 * (m * self.nb + n)

    def setup(self, v_lane, s_w, s_tmp, xmode, xpitch, wpitch):
        A, t = self.A, self.t
        nX, nW = self.nX, self.nW
        s0, s1 = s_tmp
        A('s_mul_i32 %s, %s, %d' % (sr(self.s_lx), sr(s_w), nX * 1024))
        A('s_mul_i32 %s, %s, %d' % (sr(self.s_lw), sr(s_w), nW * 1024))
        A('s_add_u32 %s, %s, %d' % (sr(self.s_lw), sr(self.s_lw), self.XB))
        if xmode == 'nat':
            A('v_lshrrev_b32 %s, 3, %s' % (vr(t[0]), vr(v_lane)))
            A('s_mul_i32 %s, %s, %d' % (sr(s0), sr(s_w), nX * 8))
            A('v_add_u32 %s, %s, %s' % (vr(t[0]), sr(s0), vr(t[0])))
            A('v_and_b32 %s, 7, %s' % (vr(t[1]), vr(v_lane)))
            A('s_mov_b32 %s, %d' % (sr(s1), xpitch))
            for i in range(nX):
                A('v_add_u32 %s, %d, %s' % (vr(t[2]), 8 * i, vr(t[0])))
                A('v_bfe_u32 %s, %s, 1, 3' % (vr(t[3]), vr(t[2])))
                A('v_xor_b32 %s, %s, %s' % (vr(t[3]), vr(t[3]), vr(t[1])))
                A('v_mul_lo_u32 %s, %s, %s' % (vr(t[2]), vr(t[2]), sr(s1)))
                A('v_lshl_add_u32 %s, %s, 4, %s' % (vr(self.vx[i]), vr(t[3]), vr(t[2])))
        else:
            A('v_lshlrev_b32 %s, 4, %s' % (vr(t[0]), vr(v_lane)))
            for i in range(nX):
                A('s_mul_i32 %s, %s, %d' % (sr(s0), sr(s_w), nX))
                A('s_add_u32 %s, %s, %d' % (sr(s0), sr(s0), i))
                A('s_lshr_b32 %s, %s, 2' % (sr(s1), sr(s0)))
                A('s_mul_i32 %s, %s, %d' % (sr(s1), sr(s1), xpitch))
                A('s_and_b32 %s, %s, 3' % (sr(s0), sr(s0)))
                A('s_lshl_b32 %s, %s, 10' % (sr(s0), sr(s0)))
                A('s_add_u32 %s, %s, %s' % (sr(s0), sr(s0), sr(s1)))
                A('v_add_u32 %s, %s, %s' % (vr(self.vx[i]), sr(s0), vr(t[0])))
        upr = self.wrow // 16
        rpi = 64 // upr
        sh = upr.bit_length() - 1
        A('v_lshrrev_b32 %s, %d, %s' % (vr(t[0]), sh, vr(v_lane)))
        A('s_mul_i32 %s, %s, %d' % (sr(s0), sr(s_w), nW * rpi))
        A('v_add_u32 %s, %s, %s' % (vr(t[0]), sr(s0), vr(t[0])))
        A('v_and_b32 %s, %d, %s' % (vr(t[1]), upr - 1, vr(v_lane)))
        A('s_mov_b32 %s, %d' % (sr(s1), wpitch))
        for i in range(nW):
            A('v_add_u32 %s, %d, %s' % (vr(t[2]), rpi * i, vr(t[0])))
            A('v_and_b32 %s, 3, %s' % (vr(t[3]), vr(t[2])))
            A('v_lshlrev_b32 %s, 2, %s' % (vr(t[3]), vr(t[3])))
            A('v_xor_b32 %s, %s, %s' % (vr(t[3]), vr(t[3]), vr(t[1])))
            A('v_mul_lo_u32 %s, %s, %s' % (vr(t[2]), vr(t[2]), sr(s1)))
            A('v_lshl_add_u32 %s, %s, 4, %s' % (vr(self.vw[i]), vr(t[3]), vr(t[2])))
        A('s_lshr_b32 %s, %s, 1' % (sr(s0), sr(s_w)))
        A('s_mul_i32 %s, %s, %d' % (sr(s0), sr(s0), self.mb * 4096))
        if xmode == 'nat':
            A('v_and_b32 %s, 31, %s' % (vr(t[0]), vr(v_lane)))
            A('v_lshrrev_b32 %s, 5, %s' % (vr(t[1]), vr(v_lane)))
            A('v_bfe_u32 %s, %s, 1, 3' % (vr(t[2]), vr(t[0])))
            A('v_lshlrev_b32 %s, 7, %s' % (vr(t[0]), vr(t[0])))
            A('v_add_u32 %s, %s, %s' % (vr(t[0]), sr(s0), vr(t[0])))
            for ks in range(4):
                A('v_add_u32 %s, %d, %s' % (vr(t[3]), 2 * ks, vr(t[1])))
                A('v_xor_b32 %s, %s, %s' % (vr(t[3]), vr(t[3]), vr(t[2])))
                A('v_lshl_add_u32 %s, %s, 4, %s' % (vr(self.rx[0][ks]), vr(t[3]), vr(t[0])))
                for st in range(1, self.nst):
                    A('v_add_u32 %s, %d, %s' % (vr(self.rx[st][ks]), st * self.STG, vr(self.rx[0][ks])))
        else:
            A('v_lshlrev_b32 %s, 4, %s' % (vr(t[0]), vr(v_lane)))
            A('v_add_u32 %s, %s, %s' % (vr(t[0]), sr(s0), vr(t[0])))
            for ks in range(4):
                for st in range(self.nst):
                    A('v_add_u32 %s, %d, %s' % (vr(self.rx[st][ks]), ks * 1024 + st * self.STG, vr(t[0])))
        hmul, qmul = (8, 4) if xmode == 'nat' else (4, 8)
        A('v_bfe_u32 %s, %s, 2, 2' % (vr(t[0]), vr(v_lane)))
        A('v_lshrrev_b32 %s, 5, %s' % (vr(t[1]), vr(v_lane)))
        A('v_mul_u32_u24 %s, %d, %s' % (vr(t[1]), hmul, vr(t[1])))
        A('v_add_u32 %s, %s, %s' % (vr(t[1]), vr(t[1]), vr(t[0])))
        A('v_mul_u32_u24 %s, %d, %s' % (vr(t[1]), self.wrow, vr(t[1])))
        A('v_bfe_u32 %s, %s, 4, 1' % (vr(t[2]), vr(v_lane)))
        A('v_lshl_add_u32 %s, %s, 5, %s' % (vr(t[1]), vr(t[2]), vr(t[1])))
        A('v_and_b32 %s, 3, %s' % (vr(t[2]), vr(v_lane)))
        A('v_lshl_add_u32 %s, %s, 3, %s' % (vr(t[1]), vr(t[2]), vr(t[1])))
        A('s_and_b32 %s, %s, 1' % (sr(s0), sr(s_w)))
        A('s_mul_i32 %s, %s, %d' % (sr(s0), sr(s0), self.nb))
        for i in range(self.nb):
            A('s_add_u32 %s, %s, %d' % (sr(s1), sr(s0), i))
            A('v_xor_b32 %s, %s, %s' % (vr(t[2]), sr(s1), vr(t[0])))
            A('v_lshl_add_u32 %s, %s, 6, %s' % (vr(t[2]), vr(t[2]), vr(t[1])))
            for q in range(2):
                for st in range(self.nst):
                    A('v_add_u32 %s, %d, %s' % (vr(self.rw[st][i][q]), self.XB + st * self.STG + q * qmul * self.wrow, vr(t[2])))

    def dma_ops(self, st):
        o = []
        for i in range(self.nX):
            o.append(['s_add_u32 m0, %s, %d' % (sr(self.s_lx), st * self.STG + i * 1024), 's_nop 0',
                      'buffer_load_dwordx4 %s, %s, %s offen%s lds' % (vr(self.vx[i]), sr(self.SRD_X, 4), sr(self.s_xo), self.xsc)])
        for i in range(self.nW):
            o.append(['s_add_u32 m0, %s, %d' % (sr(self.s_lw), st * self.STG + i * 1024), 's_nop 0',
                      'buffer_load_dwordx4 %s, %s, %s offen lds' % (vr(self.vw[i]), sr(self.SRD_W, 4), sr(self.s_wo))])
        return o

    def adv(self):
        return ['s_add_u32 %s, %s, %s' % (sr(self.s_xo), sr(self.s_xo), sr(self.s_xs)),
                's_add_u32 %s, %s, %s' % (sr(self.s_wo), sr(self.s_wo), sr(self.s_ws))]

    def read_ops(self, st, ks, fs):
        o = []
        xs = ['ds_read_b128 %s, %s offset:%d' % (vr(self.FX[fs] + 4 * m, 4), vr(self.rx[st][ks]), m * 4096) for m in range(self.mb)]
        wsr = []
        for i in range(self.nb):
            for q in range(2):
                wsr.append('ds_read_b64_tr_b16 %s, %s offset:%d' % (vr(self.FW[fs] + 4 * i + 2 * q, 2), vr(self.rw[st][i][q]), ks * 16 * self.wrow))
        while xs or wsr:
            if xs:
                o.append(xs.pop(0))
            for _ in range(2):
                if wsr:
                    o.append(wsr.pop(0))
        return o

    def mfmas(self, fs, orient, first):
        o = []
        for m in range(self.mb):
            for n in range(self.nb):
                a = ar(self.acc(m, n), 16)
                x, w = vr(self.FX[fs] + 4 * m, 4), vr(self.FW[fs] + 4 * n, 4)
                p, q = (w, x) if orient == 'T' else (x, w)
                if FAKE16:
                    for h in range(2):
                        a4 = ar(self.acc(m, n) + fs * 8 + 4 * h, 4)
                        x2 = vr(self.FX[fs] + 4 * ((m + h) % self.mb), 4)
                        o.append('v_mfma_f32_16x16x32_bf16 %s, %s, %s, %s' % (a4, w, x2, '0' if first else a4))
                    continue
                o.append('v_mfma_f32_32x32x16_bf16 %s, %s, %s, %s' % (a, p, q, '0' if first else a))
        return o

    def _weave(self, mf, side):
        A = self.A
        n = len(mf)
        k = len(side)
        per = [0] * n
        slots = max(1, n - 2)
        for j in range(k):
            per[min(n - 1, j * slots // max(k, 1))] += 1
        idx = 0
        for i, m in enumerate(mf):
            A(m)
            for _ in range(per[i]):
                it = side[idx]
                idx += 1
                for t in (it if isinstance(it, list) else [it]):
                    A(t)

    def body(self, st, orient, dma, first=False, last=False, ahead=None, hook=None):
        A = self.A
        pend = self.pending
        self.pending = [[], [], []]
        per = self.nX + self.nW
        if ahead is None:
            ahead = self.nst - 2
        nxt = (st + 1) % self.nst
        for ks in range(4):
            fs = ks & 1
            A('s_waitcnt lgkmcnt(0)')
            if ks == 3 and not last:
                A('s_waitcnt vmcnt(%d)' % (ahead * per))
                A('s_barrier')
                if hook:
                    hook()
            side = []
            if ks < 3:
                side += self.read_ops(st, ks + 1, fs ^ 1)
                side = self._mix(side, pend[ks])
            elif not last:
                side += self.read_ops(nxt, 0, fs ^ 1)
            if ks == 3 and dma:
                d = self.dma_ops(st)
                if self.nst == 2:
                    h = len(d) // 2
                    parts = [d[:h], d[h:] + [self.adv()], [], []]
                else:
                    q = (len(d) + 3) // 4
                    parts = [d[i * q:(i + 1) * q] for i in range(4)]
                    parts[3] = parts[3] + [self.adv()]
                side = self._mix(side, parts[0])
                self.pending = parts[1:]
            self._weave(self.mfmas(fs, orient, first and ks == 0), side)

    @staticmethod
    def _mix(a, b):
        o = []
        a, b = list(a), list(b)
        while a or b:
            for _ in range(2):
                if a:
                    o.append(a.pop(0))
            if b:
                o.append(b.pop(0))
        return o

    def prologue_issue(self):
        A = self.A
        for st in range(self.nst):
            for g in self.dma_ops(st):
                for t in g:
                    A(t)
            for t in self.adv():
                A(t)

    def prologue_finish(self):
        A = self.A
        A('s_barrier')
        for t in self.read_ops(0, 0, 0):
            A(t)
        self.pending = [[], [], []]

    def prologue(self):
        self.prologue_issue()
        self.A('s_waitcnt vmcnt(%d)' % ((self.nst - 1) * (self.nX + self.nW)))
        self.prologue_finish()

    def mainloop(self, orient, tag, hook_first=None, hook_tail=None):
        A = self.A
        n = self.nst
        L = A.uid('gl' + tag)
        Lx = A.uid('gx' + tag)
        self.pending = [[], [], []]
        for st in range(n):
            self.body(st, orient, True, first=(st == 0), hook=hook_first if st == 0 else None)
        A('s_sub_u32 %s, %s, 1' % (sr(self.s_n), sr(self.s_n)))
        A('s_cmp_eq_u32 %s, 0' % sr(self.s_n))
        A('s_cbranch_scc1 ' + Lx)
        A.label(L)
        for st in range(n):
            self.body(st, orient, True)
        A('s_sub_u32 %s, %s, 1' % (sr(self.s_n), sr(self.s_n)))
        A('s_cmp_lg_u32 %s, 0' % sr(self.s_n))
        A('s_cbranch_scc1 ' + L)
        A.label(Lx)
        if hook_tail:
            hook_tail()
        for st in range(n):
            self.body(st, orient, False, last=(st == n - 1), ahead=max(0, n - 2 - st))

    def pack_tile(self, m, n, dst):
        A = self.A
        E = self.E
        a = self.acc(m, n)
        for r in range(16):
            A('v_accvgpr_read_b32 %s, %s' % (vr(E + r), ar(a + r)))
        for r in range(8):
            A('v_cvt_pk_bf16_f32 %s, %s, %s' % (vr(dst + r), vr(E + 2 * r), vr(E + 2 * r + 1)))

    def epi_blk(self, SRD, v_l16, s_base, s_tbstride, s_tmp, sc=''):
        A = self.A
        bufs = [self.FX[0], self.FW[0]] if self.mb >= 2 and self.nb >= 2 else [self.E + 16, self.E + 16]
        k = 0
        A('s_mov_b32 %s, %s' % (sr(s_tmp), sr(s_base)))
        for m in range(self.mb):
            for n in range(self.nb):
                d = bufs[k & 1]
                k += 1
                self.pack_tile(m, n, d)
                if n and n % 2 == 0:
                    A('s_add_u32 %s, %s, 4096' % (sr(s_tmp), sr(s_tmp)))
                for j in range(2):
                    A('buffer_store_dwordx4 %s, %s, %s, %s offen offset:%d%s' % (vr(d + 4 * j, 4), vr(v_l16), sr(SRD, 4), sr(s_tmp), (n & 1) * 2048 + j * 1024, sc))
            if m + 1 < self.mb:
                A('s_add_u32 %s, %s, %s' % (sr(s_base), sr(s_base), sr(s_tbstride)))
                A('s_mov_b32 %s, %s' % (sr(s_tmp), sr(s_base)))

    def epi_out(self, SRD, v_off, s_base):
        A = self.A
        bufs = [self.FX[0], self.FW[0]] if self.mb >= 2 and self.nb >= 2 else [self.E + 16, self.E + 16]
        k = 0
        for m in range(self.mb):
            for n in range(self.nb):
                d = bufs[k & 1]
                k += 1
                self.pack_tile(m, n, d)
                for p in range(2):
                    A('v_permlane32_swap_b32 %s, %s' % (vr(d + 4 * p), vr(d + 4 * p + 2)))
                    A('v_permlane32_swap_b32 %s, %s' % (vr(d + 4 * p + 1), vr(d + 4 * p + 3)))
                for p in range(2):
                    A('buffer_store_dwordx4 %s, %s, %s, %s offen offset:%d' % (vr(d + 4 * p, 4), vr(v_off), sr(SRD, 4), sr(s_base), n * 64 + p * 32))
            if m + 1 < self.mb:
                A('s_add_u32 %s, %s, %d' % (sr(s_base), sr(s_base), 32 * 4096))
```

```python
from asmlib import *
from layout import *
from gemm import Gemm
from kernels import mk_srd, load_ptrs, out_direct, out_direct32, place_check, shift_ptrs
import attn
import os, json

LDS_JOB = 131072 + 64
LIM = 200000
WTOUCH = os.environ.get('WTOUCH', '')
WT_ODD = int(os.environ.get('WT_ODD', '1'))
WT2 = int(os.environ.get('WT2', '1'))
EARLY = int(os.environ.get('EARLY', '1'))
LAG = 2 if os.environ.get('OLDCHAIN') else 3
OVL = int(os.environ.get('OVL', '0'))
WST = int(os.environ.get('WST', '0'))

BL = int(os.environ.get('BL', '0'))
SEGS = [('skv', 16, 0), ('bkv', 16, 1), ('skv', 16, 1), ('bkv', 32, 3), ('bkv', 8, 7), ('q', 16, 0), ('bq', 24, 0),
        ('aattn', 8, 0), ('q', 8, 4), ('aout', 8, 0), ('q', 8, 6), ('aattn', 8, 2), ('battn', 8, 0), ('aout', 8, 2),
        ('battn', 8, 8), ('aattn', 4, 4), ('battn', 16, 16), ('aout', 4, 4), ('aattn1', 4, 20), ('aattn1', 4, 21),
        ('wot', 16, 0), ('aoutr', 2, 10), ('aattn1', 4, 22), ('wot', 16, 16), ('aattn1', 4, 23), ('bout', 8, 0), ('aoutr', 2, 11),
        ('aattn1', 4, 24), ('aattn1', 4, 25), ('bout', 12, 8), ('aoutr', 2, 12), ('bout', 12, 20), ('aattn1', 4, 26),
        ('aattn1', 4, 27), ('aoutd', 8, 26), ('aattn1', 4, 28), ('aoutd', 8, 27), ('aattn1', 4, 29)]
if os.environ.get('ORD') == '1':
    SEGS += [('aoutd', 8, 28), ('aattn1', 4, 30), ('aattn1', 4, 31)]
else:
    SEGS += [('aattn1', 4, 30), ('aattn1', 4, 31), ('aoutd', 8, 28)]
SEGS += [('aoute', 16, 58), ('aoute', 16, 60), ('aoute', 16, 62)]
SEGS += [('bout', BL, 32 - BL)]
SEGS = [x for x in SEGS if x[1]]
_seen = set()
SEGS = [x for x in SEGS if not (x in _seen or _seen.add(x))]
if os.environ.get('SEGS'):
    SEGS = [tuple(x) for x in json.loads(os.environ['SEGS'])]


def seg_bounds():
    o, a = [], 0
    for k, n, p in SEGS:
        o.append((a, a + n, '%s%d' % (k, p)))
        a += n
    return o


def gen_worker(A, name):
    S = Regs('s', 4, 100)
    P = load_ptrs(A, S)
    SRD_WS = S.alloc(4, 4)
    SRD_D = S.alloc(4, 4)
    SRD_O = S.alloc(4, 4)
    s_w, s_q, s_qn, s_job, s_cfg, s0, s1, s2_, s3, s_base, s_tbs, s_or, s_ctr, s_inc, s_mt, s_nt, s_it, s_k, s_p = [S.alloc() for _ in range(19)]
    s_pp = S.alloc(2, 2)
    s_tm = S.alloc(2, 2)
    s_sa = S.alloc()

    def wstamp(k):
        if not WST:
            return
        A('s_memrealtime %s' % sr(s_tm, 2))
        A('s_waitcnt lgkmcnt(0)')
        A('v_mov_b32 v4, %s' % sr(s_tm))
        A('v_mov_b32 v5, %s' % sr(s_sa))
        A('s_mov_b64 exec, 1')
        A('buffer_store_dword v4, v5, %s, 0 offen offset:%d' % (sr(SRD_WS, 4), 4 * k))
        if k in (2, 3):
            A('s_memtime %s' % sr(s_tm, 2))
            A('s_waitcnt lgkmcnt(0)')
            A('v_mov_b32 v4, %s' % sr(s_tm))
            A('buffer_store_dword v4, v5, %s, 0 offen offset:%d' % (sr(SRD_WS, 4), 4 * (k + 4)))
        A('s_mov_b64 exec, -1')
    def dbgt(word):
        if not int(os.environ.get('DBGT', '0')):
            return
        Lx = A.uid('dt')
        A('s_cmp_lg_u32 %s, 0' % sr(s_w))
        A('s_cbranch_scc1 ' + Lx)
        A('s_memrealtime %s' % sr(s_tm, 2))
        A('s_waitcnt lgkmcnt(0)')
        A('v_mov_b32 v4, %s' % sr(s_tm))
        A('v_mov_b32 v5, %d' % (word * 4))
        A('s_mov_b64 exec, 1')
        A('buffer_atomic_umax v4, v5, %s, 0 offen sc1' % sr(SRD_D, 4))
        A('s_mov_b64 exec, -1')
        A.label(Lx)
    v_lane, v_l16, v_off, v_a, v_b, v_sh = 1, 2, 3, 4, 5, 6
    s_init = S.alloc()
    s_pe, p_base, p_tbs, p_ctr, p_inc = [S.alloc() for _ in range(5)]
    s_et = S.alloc()
    s_wo = S.alloc()
    s_wo2 = S.alloc()
    smark = S.mark()
    V4 = Regs('v', 8, 256)
    G4 = Gemm(A, S, V4, 4, 4)
    hi = S.mark()
    S.release(smark)
    V2 = Regs('v', 8, 256)
    G2 = Gemm(A, S, V2, 2, 2, xsc=' sc1', nst=4)
    assert (G2.SRD_X, G2.SRD_W, G2.s_xo, G2.s_n) == (G4.SRD_X, G4.SRD_W, G4.s_xo, G4.s_n)
    G = G4
    L_next, L_done = name + '_wnext', name + '_wdone'

    A('v_and_b32 %s, 63, v0' % vr(v_lane))
    A('v_lshrrev_b32 %s, 6, v0' % vr(v_l16))
    A('v_readfirstlane_b32 %s, %s' % (sr(s_w), vr(v_l16)))
    A('v_lshlrev_b32 %s, 4, %s' % (vr(v_l16), vr(v_lane)))
    A('v_and_b32 %s, 31, %s' % (vr(v_off), vr(v_lane)))
    A('v_lshlrev_b32 %s, 12, %s' % (vr(v_off), vr(v_off)))
    A('v_lshrrev_b32 %s, 5, %s' % (vr(v_a), vr(v_lane)))
    A('v_lshl_add_u32 %s, %s, 4, %s' % (vr(v_off), vr(v_a), vr(v_off)))
    A('s_and_b32 %s, s%d, 3' % (sr(s_q), S_VX))
    A('s_mov_b32 %s, 0' % sr(s_qn))
    A('s_mov_b32 %s, 0' % sr(s_cfg))
    A('s_mov_b32 %s, %d' % (sr(s_ctr), DBG_WT))
    A('s_waitcnt lgkmcnt(0)')
    shift_ptrs(A, P['ws'], P['dbg'], s0)
    mk_srd(A, SRD_WS, P['ws'], WS_HALF)
    mk_srd(A, SRD_D, P['dbg'], 128)
    mk_srd(A, SRD_O, P['out'], 2048 * 2048 * 2)

    A('v_and_b32 %s, 3, %s' % (vr(v_sh), vr(v_lane)))
    A('v_lshlrev_b32 %s, 7, %s' % (vr(v_sh), vr(v_sh)))
    A('v_add_u32 %s, 0x%x, %s' % (vr(v_sh), CTR, vr(v_sh)))
    A('v_mov_b32 v7, 0')
    A('s_mov_b32 %s, 0' % sr(s_init))
    A('s_mov_b32 %s, 0' % sr(s_et))
    A('s_mov_b32 %s, 0' % sr(s_pe))
    A('s_mov_b32 %s, %d' % (sr(p_ctr), DBG_WT))
    A('s_mov_b32 %s, 0' % sr(p_inc))
    v_tk = 7

    def early(nop=True):
        if not EARLY:
            return
        Le = A.uid('et')
        if nop:
            A('s_nop 11')
        A('s_cmp_eq_u32 %s, 0' % sr(s_init))
        A('s_cbranch_scc1 ' + Le)
        A('s_mov_b32 %s, 1' % sr(s_et))
        A('s_cmp_lg_u32 %s, 0' % sr(s_w))
        A('s_cbranch_scc1 ' + Le)
        A('s_lshl_b32 %s, %s, 7' % (sr(s_wo), sr(s_q)))
        A('s_add_u32 %s, %s, 0x%x' % (sr(s_wo), sr(s_wo), CTR + DBG_Q * 128))
        A('v_mov_b32 %s, %s' % (vr(v_a), sr(s_wo)))
        A('v_mov_b32 %s, 1' % vr(v_tk))
        A('s_mov_b64 exec, 1')
        A('buffer_atomic_add %s, %s, %s, 0 offen sc0 sc1' % (vr(v_tk), vr(v_a), sr(SRD_WS, 4)))
        A('s_mov_b64 exec, -1')
        A.label(Le)

    def wait_init():
        Lw, Ld = A.uid('iw'), A.uid('id')
        A('s_cmp_lg_u32 %s, 0' % sr(s_init))
        A('s_cbranch_scc1 ' + Ld)
        A('s_mov_b32 %s, 1' % sr(s_init))
        A('v_mov_b32 %s, %d' % (vr(v_a), DBG_INIT))
        A('s_mov_b32 %s, 0' % sr(s3))
        A.label(Lw)
        A('buffer_load_dword %s, %s, %s, 0 offen sc1' % (vr(v_b), vr(v_a), sr(SRD_D, 4)))
        A('s_add_u32 %s, %s, 1' % (sr(s3), sr(s3)))
        A('s_waitcnt vmcnt(0)')
        A('v_cmp_ne_u32 vcc, 0, %s' % vr(v_b))
        A('s_cbranch_vccnz ' + Ld)
        A('s_sleep 4')
        A('s_cmp_lt_u32 %s, %d' % (sr(s3), LIM))
        A('s_cbranch_scc1 ' + Lw)
        A.label(Ld)
    L_have = A.uid('havejob')
    L_got = A.uid('gotjob')
    A('s_mov_b32 %s, s3' % sr(s_job))
    SRD_T = S.alloc(4, 4)
    hi = max(hi, S.mark())

    def touch(ptrs_sizes, s_id, per_wave_log2):
        A('s_lshl_b32 %s, %s, %d' % (sr(s0), sr(s_id), per_wave_log2))
        A('v_lshlrev_b32 %s, 7, %s' % (vr(v_a), vr(v_lane)))
        for p, nbytes in ptrs_sizes:
            mk_srd(A, SRD_T, P[p], nbytes)
            for i in range(1 << (per_wave_log2 - 13)):
                A('s_add_u32 %s, %s, %d' % (sr(s1), sr(s0), i * 8192))
                A('buffer_load_dword v7, %s, %s, %s offen' % (vr(v_a), sr(SRD_T, 4), sr(s1)))
            A('s_nop 4')
    L_restart = name + '_restart'
    L_st = A.uid('static')
    A('s_cmp_lt_u32 s3, 32')
    A('s_cbranch_scc1 ' + L_st)
    place_check(A, SRD_D, v_lane, v_a, v_b, s3, LIM, L_restart)
    A('s_branch ' + L_next)
    A.label(L_st)
    if WTOUCH:
        if WT_ODD:
            A('s_bitcmp0_b32 s3, 0')
            A('s_cbranch_scc1 ' + L_have)
            A('s_lshr_b32 %s, s3, 1' % sr(s2_))
            A('s_lshl_b32 %s, %s, 4' % (sr(s0), sr(s_q)))
        else:
            A('s_mov_b32 %s, s3' % sr(s2_))
            A('s_lshl_b32 %s, %s, 5' % (sr(s0), sr(s_q)))
        A('s_add_u32 %s, %s, %s' % (sr(s2_), sr(s2_), sr(s0)))
        A('s_lshl_b32 %s, %s, 2' % (sr(s2_), sr(s2_)))
        A('s_add_u32 %s, %s, %s' % (sr(s2_), sr(s2_), sr(s_w)))
        touch([(k, 8 << 20) for k in WTOUCH.split(',')], s2_, 15 if WT_ODD else 14)
    A('s_branch ' + L_have)
    A.label(L_next)
    Lnf = A.uid('nofetch')
    A('s_cmp_lg_u32 %s, 0' % sr(s_w))
    A('s_cbranch_scc1 ' + Lnf)
    wait_init()
    A('s_lshl_b32 %s, %s, 7' % (sr(s0), sr(s_q)))
    A('s_add_u32 %s, %s, 0x%x' % (sr(s0), sr(s0), CTR + DBG_Q * 128))
    A('v_mov_b32 %s, %s' % (vr(v_a), sr(s0)))
    A('v_mov_b32 %s, 1' % vr(v_b))
    A('s_mov_b64 exec, 1')
    A('buffer_atomic_add %s, %s, %s, 0 offen sc0 sc1' % (vr(v_b), vr(v_a), sr(SRD_WS, 4)))
    A('s_waitcnt vmcnt(0)')
    A('v_mov_b32 %s, %d' % (vr(v_a), LDS_JOB))
    A('ds_write_b32 %s, %s' % (vr(v_a), vr(v_b)))
    A('s_waitcnt lgkmcnt(0)')
    A('s_mov_b64 exec, -1')
    A.label(Lnf)
    A('s_barrier')
    A('v_mov_b32 %s, %d' % (vr(v_a), LDS_JOB))
    A('ds_read_b32 %s, %s' % (vr(v_b), vr(v_a)))
    A('s_waitcnt lgkmcnt(0)')
    A('v_readfirstlane_b32 %s, %s' % (sr(s_job), vr(v_b)))
    A('s_barrier')
    A.label(L_got)
    A('s_mov_b32 %s, 1' % sr(s_init))
    A('s_add_u32 %s, %s, 32' % (sr(s_job), sr(s_job)))
    A.label(L_have)
    if WST:
        A('s_min_u32 %s, %s, 511' % (sr(s0), sr(s_job)))
        A('s_lshl_b32 %s, %s, 9' % (sr(s_sa), sr(s_q)))
        A('s_add_u32 %s, %s, %s' % (sr(s_sa), sr(s_sa), sr(s0)))
        A('s_lshl_b32 %s, %s, 2' % (sr(s_sa), sr(s_sa)))
        A('s_add_u32 %s, %s, %s' % (sr(s_sa), sr(s_sa), sr(s_w)))
        A('s_lshl_b32 %s, %s, 5' % (sr(s_sa), sr(s_sa)))
        A('s_add_u32 %s, %s, 0x%x' % (sr(s_sa), sr(s_sa), STAMP + 0x400000))
        wstamp(0)
    kinds = ('aoutr', 'aoutj', 'skv', 'bkv', 'bq', 'q', 'battn', 'bout', 'wot', 'aattn', 'aout', 'aattn1', 'aoutd', 'aoute', 'big', 'bigA', 'small', 'outc')
    L = {k: A.uid('job' + k) for k in kinds}
    for k, n, p in SEGS:
        A('s_mov_b32 %s, %d' % (sr(s_p), p))
        A('s_cmp_lt_u32 %s, %d' % (sr(s_job), n))
        A('s_cbranch_scc1 ' + L[k])
        A('s_sub_u32 %s, %s, %d' % (sr(s_job), sr(s_job), n))
    QLEN = sum(n for _, n, _ in SEGS)
    L_peek = name + '_wpeek'
    A.label(L_peek)
    A('s_mov_b32 %s, %d' % (sr(s0), DBG_Q * 128))
    A('buffer_load_dword %s, %s, %s, %s offen sc1' % (vr(v_b), vr(v_sh), sr(SRD_WS, 4), sr(s0)))
    A('v_lshlrev_b32 %s, 2, %s' % (vr(v_a), vr(v_lane)))
    A('v_add_u32 %s, %d, %s' % (vr(v_a), LDS_JOB + 64, vr(v_a)))
    A('s_waitcnt vmcnt(0)')
    Lp1 = A.uid('pk')
    A('s_cmp_lg_u32 %s, 0' % sr(s_w))
    A('s_cbranch_scc1 ' + Lp1)
    A('ds_write_b32 %s, %s' % (vr(v_a), vr(v_b)))
    A('s_waitcnt lgkmcnt(0)')
    A.label(Lp1)
    A('s_barrier')
    A('ds_read_b32 %s, %s' % (vr(v_b), vr(v_a)))
    A('s_waitcnt lgkmcnt(0)')
    A('s_barrier')
    for k in range(4):
        A('v_readlane_b32 %s, %s, %d' % (sr(s0), vr(v_b), k))
        A('s_mov_b32 %s, %d' % (sr(s_q), k))
        A('s_cmp_lt_u32 %s, %d' % (sr(s0), QLEN - 32))
        A('s_cbranch_scc1 ' + L_next)
    A('s_endpgm')

    def wait_ctr(s_off, thr, s_shift=None, bits=8, slp=12):
        Lw, Ld = A.uid('dw'), A.uid('dd')
        A('s_cmp_lg_u32 %s, 0' % sr(s_w))
        A('s_cbranch_scc1 ' + Ld)
        A('s_lshl_b32 %s, %s, 7' % (sr(s_wo), sr(s_off) if isinstance(s_off, int) else s_off))
        A('s_mov_b32 %s, 0' % sr(s3))
        A.label(Lw)
        A('buffer_load_dword %s, %s, %s, %s offen sc1' % (vr(v_b), vr(v_sh), sr(SRD_WS, 4), sr(s_wo)))
        A('s_add_u32 %s, %s, 1' % (sr(s3), sr(s3)))
        A('s_waitcnt vmcnt(0)')
        if s_shift is not None:
            A('v_bfe_u32 %s, %s, %s, %d' % (vr(v_b), vr(v_b), sr(s_shift), bits))
        A('v_cmp_gt_u32 vcc, %s, %s' % (thr, vr(v_b)))
        A('s_cbranch_vccz ' + Ld)
        A('s_sleep %d' % slp)
        A('s_cmp_lt_u32 %s, %d' % (sr(s3), LIM))
        A('s_cbranch_scc1 ' + Lw)
        A.label(Ld)
        A('s_barrier')

    def wait2(off1, thr1, off2, thr2, s_shift=None, bits=8, slp=12):
        Lw, Ld, Ln = A.uid('dw'), A.uid('dd'), A.uid('dn')
        tx = lambda o: sr(o) if isinstance(o, int) else o
        A('s_cmp_lg_u32 %s, 0' % sr(s_w))
        A('s_cbranch_scc1 ' + Ld)
        A('s_lshl_b32 %s, %s, 7' % (sr(s_wo), tx(off1)))
        A('s_lshl_b32 %s, %s, 7' % (sr(s_wo2), tx(off2)))
        A('s_mov_b32 %s, 0' % sr(s3))
        A.label(Lw)
        A('buffer_load_dword %s, %s, %s, %s offen sc1' % (vr(v_a), vr(v_sh), sr(SRD_WS, 4), sr(s_wo)))
        A('buffer_load_dword %s, %s, %s, %s offen sc1' % (vr(v_b), vr(v_sh), sr(SRD_WS, 4), sr(s_wo2)))
        A('s_add_u32 %s, %s, 1' % (sr(s3), sr(s3)))
        A('s_waitcnt vmcnt(0)')
        if s_shift is not None:
            A('v_bfe_u32 %s, %s, %s, %d' % (vr(v_b), vr(v_b), sr(s_shift), bits))
        A('v_cmp_gt_u32 vcc, %s, %s' % (thr1, vr(v_a)))
        A('s_cbranch_vccnz ' + Ln)
        A('v_cmp_gt_u32 vcc, %s, %s' % (thr2, vr(v_b)))
        A('s_cbranch_vccz ' + Ld)
        A.label(Ln)
        A('s_sleep %d' % slp)
        A('s_cmp_lt_u32 %s, %d' % (sr(s3), LIM))
        A('s_cbranch_scc1 ' + Lw)
        A.label(Ld)
        A('s_barrier')

    def cfg(Gx, cid, *args):
        Ls = A.uid('cfg')
        A('s_cmp_eq_u32 %s, %d' % (sr(s_cfg), cid))
        A('s_cbranch_scc1 ' + Ls)
        Gx.setup(v_lane, s_w, (s0, s1), *args)
        A('s_mov_b32 %s, %d' % (sr(s_cfg), cid))
        A.label(Ls)

    def blk_base(mbk, nbk):
        A('s_lshr_b32 %s, %s, 1' % (sr(s0), sr(s_w)))
        A('s_lshl_b32 %s, %s, 1' % (sr(s1), sr(s_mt)))
        A('s_add_u32 %s, %s, %s' % (sr(s0), sr(s0), sr(s1)))
        A('s_mul_i32 %s, %s, %d' % (sr(s0), sr(s0), mbk))
        A('s_mul_i32 %s, %s, %s' % (sr(s0), sr(s0), sr(s_tbs)))
        A('s_add_u32 %s, %s, %s' % (sr(s_base), sr(s_base), sr(s0)))
        A('s_and_b32 %s, %s, 1' % (sr(s0), sr(s_w)))
        A('s_lshl_b32 %s, %s, 1' % (sr(s1), sr(s_nt)))
        A('s_add_u32 %s, %s, %s' % (sr(s0), sr(s0), sr(s1)))
        A('s_mul_i32 %s, %s, %d' % (sr(s0), sr(s0), nbk * 2048))
        A('s_add_u32 %s, %s, %s' % (sr(s_base), sr(s_base), sr(s0)))

    def sel_kv(thr):
        A('s_cmp_ge_u32 %s, %d' % (sr(s_nt), thr))
        A('s_cselect_b32 %s, 1, 0' % sr(s_or))
        A('s_cselect_b64 %s, %s, %s' % (sr(s_pp, 2), sr(P['A_Wv'], 2), sr(P['A_Wk'], 2)))
        A('s_mov_b32 %s, 0x%x' % (sr(s_base), KX))
        A('s_cselect_b32 %s, 0x%x, %s' % (sr(s_base), VX, sr(s_base)))
        A('s_and_b32 %s, %s, %d' % (sr(s_nt), sr(s_nt), thr - 1))

    def ctr(base, s_idx, inc):
        A('s_lshl_b32 %s, %s, 2' % (sr(s_ctr), sr(s_idx)))
        A('s_add_u32 %s, %s, %d' % (sr(s_ctr), sr(s_ctr), base))
        A('s_mov_b32 %s, %d' % (sr(s_inc), inc))

    def nt_q(mask_bits_shift, mask):
        A('s_lshr_b32 %s, %s, %d' % (sr(s_nt), sr(s_job), mask_bits_shift))
        A('s_and_b32 %s, %s, %d' % (sr(s_nt), sr(s_nt), mask))
        A('s_lshl_b32 %s, %s, 2' % (sr(s_nt), sr(s_nt)))
        A('s_add_u32 %s, %s, %s' % (sr(s_nt), sr(s_nt), sr(s_q)))

    A.label(L['skv'])
    A('s_lshr_b32 %s, %s, 1' % (sr(s0), sr(s_p)))
    ctr(DBG_KV, s0, 1)
    A('s_mov_b32 %s, %s' % (sr(s_mt), sr(s_p)))
    nt_q(0, 15)
    sel_kv(32)
    mk_srd(A, G.SRD_W, s_pp, 1024 * 4096 * 2)
    mk_srd(A, G.SRD_X, P['A_x'], 2048 * 1024 * 2)
    A('s_lshl_b32 %s, %s, 18' % (sr(G.s_xo), sr(s_mt)))
    A('s_mov_b32 %s, 128' % sr(G.s_xs))
    A('s_lshl_b32 %s, %s, 8' % (sr(G.s_wo), sr(s_nt)))
    A('s_mov_b32 %s, %d' % (sr(G.s_ws), 64 * 8192))
    A('s_mov_b32 %s, %d' % (sr(s_tbs), 128 * 2048))
    A('s_mov_b32 %s, 3' % sr(G.s_n))
    blk_base(2, 2)
    cfg(G2, 3, 'nat', 2048, 8192)
    A('s_mov_b32 %s, 0' % sr(s_k))
    A('s_branch ' + L['small'])

    A.label(L['aout'])
    A('s_lshr_b32 %s, %s, 2' % (sr(s_mt), sr(s_job)))
    A('s_add_u32 %s, %s, %s' % (sr(s_mt), sr(s_mt), sr(s_p)))
    A('s_lshl_b32 %s, %s, 1' % (sr(s_mt), sr(s_mt)))
    A('s_lshr_b32 %s, %s, 1' % (sr(s0), sr(s_q)))
    A('s_add_u32 %s, %s, %s' % (sr(s_mt), sr(s_mt), sr(s0)))
    A('s_and_b32 %s, %s, 1' % (sr(s_nt), sr(s_q)))
    A('s_lshl_b32 %s, %s, 2' % (sr(s_nt), sr(s_nt)))
    A('s_and_b32 %s, %s, 3' % (sr(s0), sr(s_job)))
    A('s_add_u32 %s, %s, %s' % (sr(s_nt), sr(s_nt), sr(s0)))
    A('s_mov_b32 %s, 4' % sr(s_tbs))
    A('s_mov_b32 %s, 0' % sr(s_it))
    A('s_branch ' + L['aoutj'])
    A.label(L['aoutr'])
    A('s_mov_b32 %s, %s' % (sr(s_mt), sr(s_p)))
    A('s_lshl_b32 %s, %s, 1' % (sr(s_nt), sr(s_q)))
    A('s_add_u32 %s, %s, %s' % (sr(s_nt), sr(s_nt), sr(s_job)))
    A('s_mov_b32 %s, 0x2222' % sr(s_tbs))
    A('s_and_b32 %s, %s, 1' % (sr(s_it), sr(s_p)))
    A('s_lshl_b32 %s, %s, 4' % (sr(s_it), sr(s_it)))
    A.label(L['aoutj'])
    mk_srd(A, G.SRD_W, P['A_Wo'], 4096 * 1024 * 2)
    A('s_mul_i32 %s, %s, %d' % (sr(G.s_xo), sr(s_mt), 4 * 128 * 2048))
    A('s_add_u32 %s, %s, 0x%x' % (sr(G.s_xo), sr(G.s_xo), OA))
    A('s_mov_b32 %s, 15' % sr(G.s_n))
    A('s_mov_b32 %s, 0' % sr(s_base))
    A('s_mov_b32 %s, %d' % (sr(s2_), DBG_AA))
    cfg(G2, 5, 'blk', 128 * 2048, 2048)
    A('s_branch ' + L['outc'])
    A.label(L['bout'])
    A('s_add_u32 %s, %s, %s' % (sr(s_job), sr(s_job), sr(s_p)))
    A('s_lshr_b32 %s, %s, 1' % (sr(s_mt), sr(s_job)))
    nt_q(0, 1)
    mk_srd(A, G.SRD_W, P['B_wo'], 1024 * 1024 * 2)
    A('s_mul_i32 %s, %s, %d' % (sr(G.s_xo), sr(s_mt), 4 * 32 * 2048))
    A('s_add_u32 %s, %s, 0x%x' % (sr(G.s_xo), sr(G.s_xo), OB))
    A('s_mov_b32 %s, 3' % sr(G.s_n))
    A('s_mov_b32 %s, 2048' % sr(s_base))
    A('s_mov_b32 %s, %d' % (sr(s2_), DBG_BA))
    A('s_mov_b32 %s, 4' % sr(s_tbs))
    A('s_mov_b32 %s, 0' % sr(s_it))
    cfg(G2, 4, 'blk', 32 * 2048, 2048)
    A.label(L['outc'])
    mk_srd(A, G.SRD_X, P['ws'], WS_HALF)
    A('s_mov_b32 %s, 4096' % sr(G.s_xs))
    A('s_lshl_b32 %s, %s, 8' % (sr(G.s_wo), sr(s_nt)))
    A('s_mov_b32 %s, %d' % (sr(G.s_ws), 64 * 2048))
    A('s_mov_b32 %s, 0' % sr(s_or))
    A('s_mov_b32 %s, 0' % sr(s_inc))
    A('s_lshr_b32 %s, %s, 1' % (sr(s0), sr(s_w)))
    A('s_lshl_b32 %s, %s, 18' % (sr(s0), sr(s0)))
    A('s_add_u32 %s, %s, %s' % (sr(s_base), sr(s_base), sr(s0)))
    A('s_lshl_b32 %s, %s, 19' % (sr(s0), sr(s_mt)))
    A('s_add_u32 %s, %s, %s' % (sr(s_base), sr(s_base), sr(s0)))
    A('s_and_b32 %s, %s, 1' % (sr(s0), sr(s_w)))
    A('s_lshl_b32 %s, %s, 7' % (sr(s0), sr(s0)))
    A('s_add_u32 %s, %s, %s' % (sr(s_base), sr(s_base), sr(s0)))
    A('s_add_u32 %s, %s, %s' % (sr(s_base), sr(s_base), sr(G.s_wo)))
    A('s_lshr_b32 %s, %s, 1' % (sr(s0), sr(s_mt)))
    A('s_lshl_b32 %s, %s, 2' % (sr(s0), sr(s0)))
    A('s_add_u32 %s, %s, %s' % (sr(s0), sr(s0), sr(s2_)))
    wait_ctr(s0, sr(s_tbs), s_it, bits=16)
    A('s_mov_b32 %s, 1' % sr(s_k))
    A.label(L['small'])
    wstamp(1)
    G2.prologue()
    wstamp(2)
    LN, LE, LO = A.uid('sN'), A.uid('sE'), A.uid('sO')
    A('s_cmp_eq_u32 %s, 1' % sr(s_or))
    A('s_cbranch_scc1 ' + LN)
    G2.mainloop('T', 'st')
    A('s_nop 15')
    A('s_cmp_eq_u32 %s, 1' % sr(s_k))
    A('s_cbranch_scc1 ' + LO)
    A('s_branch ' + LE)
    A.label(LN)
    G2.mainloop('N', 'sn')
    A.label(LE)
    wstamp(3)
    early()
    G2.epi_blk(SRD_WS, v_l16, s_base, s_tbs, s0, ' sc1')
    A('s_branch ' + L_done)
    A.label(LO)
    wstamp(3)
    early()
    G2.epi_out(SRD_O, v_off, s_base)
    A('s_branch ' + L_done)

    A.label(L['wot'])
    A('s_add_u32 %s, %s, %s' % (sr(s_job), sr(s_job), sr(s_p)))
    nt_q(0, 1)
    A('s_lshr_b32 %s, %s, 1' % (sr(s_mt), sr(s_job)))
    mk_srd(A, G.SRD_W, P['A_Wo'], 4096 * 1024 * 2)
    cfg(G2, 5, 'blk', 128 * 2048, 2048)
    A('s_lshl_b32 %s, %s, 8' % (sr(G.s_wo), sr(s_nt)))
    A('s_lshl_b32 %s, %s, 19' % (sr(s0), sr(s_mt)))
    A('s_add_u32 %s, %s, %s' % (sr(G.s_wo), sr(G.s_wo), sr(s0)))
    A('s_mov_b32 %s, 1' % sr(s_inc))
    A('s_mov_b32 %s, %d' % (sr(s_ctr), DBG_WT))
    wstamp(1)
    for st in range(4):
        for g in G2.dma_ops(st)[G2.nX:]:
            for t in g:
                A(t)
        A('s_add_u32 %s, %s, %d' % (sr(G.s_wo), sr(G.s_wo), 64 * 2048))
    A('s_and_b32 %s, %s, 1' % (sr(s0), sr(s_w)))
    A('s_lshl_b32 %s, %s, 1' % (sr(s0), sr(s0)))
    A('s_lshl_b32 %s, %s, 2' % (sr(s1), sr(s_nt)))
    A('s_add_u32 %s, %s, %s' % (sr(s0), sr(s0), sr(s1)))
    A('s_lshl_b32 %s, %s, 18' % (sr(s_base), sr(s0)))
    A('s_lshl_b32 %s, %s, 14' % (sr(s0), sr(s_mt)))
    A('s_add_u32 %s, %s, %s' % (sr(s_base), sr(s_base), sr(s0)))
    A('s_lshr_b32 %s, %s, 1' % (sr(s0), sr(s_w)))
    A('s_lshl_b32 %s, %s, 13' % (sr(s1), sr(s0)))
    A('s_add_u32 %s, %s, %s' % (sr(s_base), sr(s_base), sr(s1)))
    A('s_add_u32 %s, %s, 0x%x' % (sr(s_base), sr(s_base), WOT))
    A('s_mul_i32 %s, %s, %d' % (sr(s0), sr(s0), 2 * G2.STG))
    T = V2.alloc(64, 4)
    ta = [V2.alloc() for _ in range(4)]
    for i in range(2):
        for q in range(2):
            A('v_add_u32 %s, %s, %s' % (vr(ta[2 * i + q]), sr(s0), vr(G2.rw[0][i][q])))
    early()
    A('s_waitcnt vmcnt(0)')
    A('s_barrier')
    for i in range(2):
        for st in range(2):
            for ks in range(4):
                d = T + 4 * ((i * 2 + st) * 4 + ks)
                for q in range(2):
                    A('ds_read_b64_tr_b16 %s, %s offset:%d' % (vr(d + 2 * q, 2), vr(ta[2 * i + q]), st * G2.STG + ks * 16 * G2.wrow))
            A('s_waitcnt lgkmcnt(0)')
    for i in range(2):
        for st in range(2):
            A('s_add_u32 %s, %s, %d' % (sr(s0), sr(s_base), i * 262144 + st * 4096))
            for ks in range(4):
                d = T + 4 * ((i * 2 + st) * 4 + ks)
                A('buffer_store_dwordx4 %s, %s, %s, %s offen offset:%d' % (vr(d, 4), vr(v_l16), sr(SRD_WS, 4), sr(s0), ks * 1024) + ' sc1')
    A('s_branch ' + L_done)

    def wid16():
        A('s_lshl_b32 %s, %s, 4' % (sr(s0), sr(s_q)))
        A('s_add_u32 %s, %s, %s' % (sr(s2_), sr(s_job), sr(s0)))
        A('s_lshl_b32 %s, %s, 2' % (sr(s2_), sr(s2_)))
        A('s_add_u32 %s, %s, %s' % (sr(s2_), sr(s2_), sr(s_w)))
    A.label(L['bkv'])
    if WT2:
        Lnt = A.uid('nt2')
        A('s_cmp_lg_u32 %s, 1' % sr(s_p))
        A('s_cbranch_scc1 ' + Lnt)
        wid16()
        touch([('A_x', 4 << 20)], s2_, 14)
        A.label(Lnt)
    A('s_lshl_b32 %s, %s, 5' % (sr(s0), sr(s_q)))
    A('s_add_u32 %s, %s, %s' % (sr(s_k), sr(s_job), sr(s0)))
    A('s_lshl_b32 %s, %s, 2' % (sr(s_k), sr(s_k)))
    A('s_add_u32 %s, %s, %s' % (sr(s_k), sr(s_k), sr(s_w)))
    A('s_cmp_eq_u32 %s, 3' % sr(s_p))
    A('s_cselect_b32 %s, %s, -1' % (sr(s_k), sr(s_k)))
    A('s_lshr_b32 %s, %s, 3' % (sr(s_mt), sr(s_job)))
    A('s_add_u32 %s, %s, %s' % (sr(s_mt), sr(s_mt), sr(s_p)))
    nt_q(0, 7)
    sel_kv(16)
    ctr(DBG_KV, s_mt, 4)
    A('s_branch ' + L['bigA'])
    A.label(L['q'])
    A('s_mov_b32 %s, -1' % sr(s_k))
    A('s_lshr_b32 %s, %s, 2' % (sr(s_mt), sr(s_job)))
    A('s_add_u32 %s, %s, %s' % (sr(s_mt), sr(s_mt), sr(s_p)))
    nt_q(0, 3)
    A('s_mov_b64 %s, %s' % (sr(s_pp, 2), sr(P['A_Wq'], 2)))
    A('s_mov_b32 %s, 0x%x' % (sr(s_base), QX))
    A('s_mov_b32 %s, 0' % sr(s_or))
    ctr(DBG_QR, s_mt, 1)
    A.label(L['bigA'])
    mk_srd(A, G.SRD_W, s_pp, 1024 * 4096 * 2)
    mk_srd(A, G.SRD_X, P['A_x'], 2048 * 1024 * 2)
    A('s_lshl_b32 %s, %s, 9' % (sr(G.s_wo), sr(s_nt)))
    A('s_mov_b32 %s, %d' % (sr(G.s_ws), 64 * 8192))
    A('s_mov_b32 %s, %d' % (sr(s_tbs), 128 * 2048))
    cfg(G4, 1, 'nat', 2048, 8192)
    A('s_branch ' + L['big'])
    A.label(L['bq'])
    A('s_mov_b32 %s, -1' % sr(s_k))
    A('s_mul_i32 %s, %s, 43' % (sr(s_mt), sr(s_job)))
    A('s_lshr_b32 %s, %s, 7' % (sr(s_mt), sr(s_mt)))
    A('s_mul_i32 %s, %s, 3' % (sr(s0), sr(s_mt)))
    A('s_sub_u32 %s, %s, %s' % (sr(s0), sr(s_job), sr(s0)))
    A('s_cmp_eq_u32 %s, 2' % sr(s0))
    A('s_cselect_b32 %s, 1, 0' % sr(s_or))
    A('s_lshl_b32 %s, %s, 22' % (sr(s_base), sr(s0)))
    A('s_add_u32 %s, %s, 0x%x' % (sr(s_base), sr(s_base), QB))
    A('s_lshl_b32 %s, %s, 2' % (sr(s0), sr(s0)))
    A('s_add_u32 %s, %s, %s' % (sr(s0), sr(s0), sr(s_q)))
    A('s_lshl_b32 %s, %s, 9' % (sr(G.s_wo), sr(s0)))
    A('s_mov_b32 %s, %s' % (sr(s_nt), sr(s_q)))
    mk_srd(A, G.SRD_W, P['B_wqkv'], 1024 * 3072 * 2)
    mk_srd(A, G.SRD_X, P['B_x'], 2048 * 1024 * 2)
    A('s_mov_b32 %s, %d' % (sr(G.s_ws), 64 * 6144))
    A('s_mov_b32 %s, %d' % (sr(s_tbs), 32 * 2048))
    ctr(DBG_BQ, s_mt, 1)
    cfg(G4, 2, 'nat', 2048, 6144)
    A.label(L['big'])
    A('s_lshl_b32 %s, %s, 19' % (sr(G.s_xo), sr(s_mt)))
    A('s_mov_b32 %s, 128' % sr(G.s_xs))
    A('s_mov_b32 %s, 7' % sr(G.s_n))
    blk_base(4, 4)
    wstamp(1)
    G4.prologue_issue()
    Lpe, Lpj = A.uid('pe'), A.uid('pj')
    A('s_cmp_lg_u32 %s, 0' % sr(s_pe))
    A('s_cbranch_scc1 ' + Lpe)
    A('s_waitcnt vmcnt(16)')
    A('s_branch ' + Lpj)
    A.label(Lpe)
    G4.epi_blk(SRD_WS, v_l16, p_base, p_tbs, s0, ' sc1')
    A('s_waitcnt vmcnt(48)')
    A.label(Lpj)
    G4.prologue_finish()
    wstamp(2)

    def sig_prev():
        Ls = A.uid('sp')
        A('s_cmp_eq_u32 %s, 0' % sr(s_pe))
        A('s_cbranch_scc1 ' + Ls)
        A('s_mov_b32 %s, 0' % sr(s_pe))
        A('s_cmp_lg_u32 %s, 0' % sr(s_w))
        A('s_cbranch_scc1 ' + Ls)
        A('s_add_u32 %s, %s, %s' % (sr(s0), sr(p_ctr), sr(s_q)))
        A('s_lshl_b32 %s, %s, 7' % (sr(s0), sr(s0)))
        A('s_add_u32 %s, %s, 0x%x' % (sr(s0), sr(s0), CTR))
        A('v_mov_b32 %s, %s' % (vr(v_a), sr(s0)))
        A('v_mov_b32 %s, %s' % (vr(v_b), sr(p_inc)))
        A('s_mov_b64 exec, 1')
        A('buffer_atomic_add %s, %s, %s, 0 offen sc1' % (vr(v_b), vr(v_a), sr(SRD_WS, 4)))
        A('s_mov_b64 exec, -1')
        A.label(Ls)
    ht = (lambda: early(False)) if OVL else None
    Lnt3 = A.uid('nt3')
    A('s_cmp_eq_u32 %s, -1' % sr(s_k))
    A('s_cbranch_scc1 ' + Lnt3)
    touch([('B_x', 4 << 20), ('B_wo', 2 << 20)], s_k, 13)
    touch([('B_wqkv', 6 << 20)], s_k, 14)
    A.label(Lnt3)
    LN, LE = A.uid('bN'), A.uid('bE')
    A('s_cmp_eq_u32 %s, 1' % sr(s_or))
    A('s_cbranch_scc1 ' + LN)
    G4.mainloop('T', 'bt', sig_prev, ht)
    A('s_nop 15')
    A('s_branch ' + LE)
    A.label(LN)
    G4.mainloop('N', 'bn', sig_prev, ht)
    A.label(LE)
    wstamp(3)
    if OVL:
        Lno, Lw1, Lyes = A.uid('no'), A.uid('w1'), A.uid('yes')
        A('s_nop 11')
        A('s_cmp_eq_u32 %s, 0' % sr(s_et))
        A('s_cbranch_scc1 ' + Lno)
        A('v_mov_b32 %s, %d' % (vr(v_a), LDS_JOB))
        A('s_cmp_lg_u32 %s, 0' % sr(s_w))
        A('s_cbranch_scc1 ' + Lw1)
        A('s_mov_b64 exec, 1')
        A('ds_write_b32 %s, %s' % (vr(v_a), vr(v_tk)))
        A('s_mov_b64 exec, -1')
        A('s_waitcnt lgkmcnt(0)')
        A.label(Lw1)
        A('s_barrier')
        A('ds_read_b32 %s, %s' % (vr(v_b), vr(v_a)))
        A('s_waitcnt lgkmcnt(0)')
        A('v_readfirstlane_b32 %s, %s' % (sr(s1), vr(v_b)))
        A('s_barrier')
        rng, a0 = [], 0
        for k_, n_, p_ in SEGS:
            if k_ in ('bkv', 'q', 'bq'):
                if rng and rng[-1][1] == a0:
                    rng[-1][1] = a0 + n_
                else:
                    rng.append([a0, a0 + n_])
            a0 += n_
        for lo, hi_ in rng:
            if hi_ <= 32:
                continue
            A('s_sub_u32 %s, %s, %d' % (sr(s0), sr(s1), lo - 32))
            A('s_cmp_lt_u32 %s, %d' % (sr(s0), hi_ - lo))
            A('s_cbranch_scc1 ' + Lyes)
        A('s_branch ' + Lno)
        A.label(Lyes)
        wstamp(4)
        wstamp(5)
        A('s_mov_b32 %s, %s' % (sr(p_base), sr(s_base)))
        A('s_mov_b32 %s, %s' % (sr(p_tbs), sr(s_tbs)))
        A('s_mov_b32 %s, %s' % (sr(p_ctr), sr(s_ctr)))
        A('s_mov_b32 %s, %s' % (sr(p_inc), sr(s_inc)))
        A('s_mov_b32 %s, 1' % sr(s_pe))
        A('s_mov_b32 %s, 0' % sr(s_et))
        A('s_mov_b32 %s, %s' % (sr(s_job), sr(s1)))
        A('s_branch ' + L_got)
        A.label(Lno)
    else:
        early()
    G4.epi_blk(SRD_WS, v_l16, s_base, s_tbs, s0, ' sc1')
    A('s_branch ' + L_done)

    def attn_items():
        A('s_mov_b32 %s, 0' % sr(s_cfg))
        A('s_and_b32 %s, %s, 3' % (sr(s0), sr(s_job)))
        A('s_lshl_b32 %s, %s, 2' % (sr(s1), sr(s_q)))
        A('s_add_u32 %s, %s, %s' % (sr(s0), sr(s0), sr(s1)))
        A('s_lshl_b32 %s, %s, 1' % (sr(s0), sr(s0)))
        A('s_and_b32 %s, %s, 1' % (sr(s1), sr(s_w)))
        A('s_add_u32 %s, %s, %s' % (sr(s_it), sr(s0), sr(s1)))
        A('s_lshl_b32 %s, %s, 8' % (sr(s0), sr(s_mt)))
        A('s_add_u32 %s, %s, %s' % (sr(s_it), sr(s_it), sr(s0)))
        A('s_lshr_b32 %s, %s, 1' % (sr(s0), sr(s_w)))
        A('s_lshl_b32 %s, %s, 7' % (sr(s0), sr(s0)))
        A('s_add_u32 %s, %s, %s' % (sr(s_it), sr(s_it), sr(s0)))
        A('s_mov_b32 %s, 4' % sr(s_k))
        wstamp(1)

    def attn_loop(fn, tag):
        Lb = A.uid(tag)
        A.label(Lb)
        fn(A, SRD_WS, s_it, (s0, s1, s2_, s3), v_lane, v_l16, 8, ld=' sc1', stf=' sc1')
        A('s_add_u32 %s, %s, 32' % (sr(s_it), sr(s_it)))
        A('s_sub_u32 %s, %s, 1' % (sr(s_k), sr(s_k)))
        A('s_cmp_lg_u32 %s, 0' % sr(s_k))
        A('s_waitcnt vmcnt(0)')
        A('s_cbranch_scc1 ' + Lb)

    A.label(L['aattn'])
    A('s_lshr_b32 %s, %s, 2' % (sr(s_mt), sr(s_job)))
    A('s_add_u32 %s, %s, %s' % (sr(s_mt), sr(s_mt), sr(s_p)))
    A('s_lshl_b32 %s, %s, 2' % (sr(s_ctr), sr(s_mt)))
    A('s_add_u32 %s, %s, %d' % (sr(s0), sr(s_ctr), DBG_QR))
    A('s_lshl_b32 %s, %s, 3' % (sr(s1), sr(s_mt)))
    A('s_add_u32 %s, %s, %d' % (sr(s1), sr(s1), 7 + LAG))
    wait2(s0, 4, str(DBG_PROG), sr(s1))
    ctr(DBG_AA, s_mt, 1)
    attn_items()
    attn.attn_a_n(A, SRD_WS, s_it, (s0, s1, s2_, s3), v_lane, v_l16, 8, 4, ld=' sc1', stf=' sc1', late=early)
    A('s_branch ' + L_done)

    A.label(L['aattn1'])
    A('s_lshr_b32 %s, %s, 2' % (sr(s_mt), sr(s_p)))
    A('s_lshl_b32 %s, %s, 2' % (sr(s_ctr), sr(s_mt)))
    A('s_lshl_b32 %s, %s, 1' % (sr(s_it), sr(s_p)))
    A('s_lshr_b32 %s, %s, 1' % (sr(s0), sr(s_job)))
    A('s_add_u32 %s, %s, %s' % (sr(s_it), sr(s_it), sr(s0)))
    A('s_add_u32 %s, %s, %d' % (sr(s_tbs), sr(s_it), LAG))
    A('s_mov_b32 %s, %d' % (sr(s_base), DBG_PROG))
    A('s_cmp_gt_u32 %s, 60' % sr(s_it))
    A('s_cselect_b32 %s, 32, %s' % (sr(s_tbs), sr(s_tbs)))
    A('s_cselect_b32 %s, %d, %s' % (sr(s_base), DBG_FIN, sr(s_base)))
    A('s_add_u32 %s, %s, %d' % (sr(s0), sr(s_ctr), DBG_KV))
    A('s_add_u32 %s, %s, %d' % (sr(s1), sr(s_ctr), DBG_QR))
    wait2(s0, 32, s1, 4)
    A('s_add_u32 %s, %s, %d' % (sr(s_ctr), sr(s_ctr), DBG_AA))
    A('s_and_b32 %s, %s, 7' % (sr(s0), sr(s_it)))
    A('s_lshl_b32 %s, %s, 2' % (sr(s0), sr(s0)))
    A('s_lshl_b32 %s, 1, %s' % (sr(s_inc), sr(s0)))
    A('s_lshl_b32 %s, %s, 5' % (sr(s_it), sr(s_it)))
    A('s_lshl_b32 %s, %s, 3' % (sr(s0), sr(s_q)))
    A('s_add_u32 %s, %s, %s' % (sr(s_it), sr(s_it), sr(s0)))
    A('s_and_b32 %s, %s, 1' % (sr(s0), sr(s_job)))
    A('s_lshl_b32 %s, %s, 2' % (sr(s0), sr(s0)))
    A('s_add_u32 %s, %s, %s' % (sr(s_it), sr(s_it), sr(s0)))
    A('s_add_u32 %s, %s, %s' % (sr(s_it), sr(s_it), sr(s_w)))
    A('s_mov_b32 %s, 0' % sr(s_cfg))

    def pw1():
        wait_ctr(s_base, sr(s_tbs), slp=4)
        wstamp(1)
        early()
    attn.attn_a(A, SRD_WS, s_it, (s0, s1, s2_, s3), v_lane, v_l16, 8, ld=' sc1', stf=' sc1', pre_wait=pw1)
    A('s_branch ' + L_done)

    A.label(L['aoute'])
    wait_ctr(str(DBG_WT), 32)
    A('s_lshr_b32 %s, %s, 3' % (sr(s_mt), sr(s_job)))
    A('s_add_u32 %s, %s, %s' % (sr(s_mt), sr(s_mt), sr(s_p)))
    A('s_lshl_b32 %s, %s, 3' % (sr(s_nt), sr(s_q)))
    A('s_and_b32 %s, %s, 7' % (sr(s0), sr(s_job)))
    A('s_add_u32 %s, %s, %s' % (sr(s_nt), sr(s_nt), sr(s0)))
    A('s_mov_b32 %s, 0' % sr(s_inc))
    A('s_mov_b32 %s, 0' % sr(s_cfg))

    def pw2():
        A('s_lshr_b32 %s, %s, 3' % (sr(s0), sr(s_mt)))
        A('s_lshl_b32 %s, %s, 2' % (sr(s0), sr(s0)))
        A('s_add_u32 %s, %s, %d' % (sr(s0), sr(s0), DBG_AA))
        A('s_and_b32 %s, %s, 7' % (sr(s1), sr(s_mt)))
        A('s_lshl_b32 %s, %s, 2' % (sr(s1), sr(s1)))
        wait_ctr(s0, 2, s1, bits=4, slp=4)
        wstamp(1)
    out_direct32(A, SRD_WS, SRD_O, s_w, s_mt, s_nt, (s_base, s_tbs, s0, s_it, s_k), v_lane, v_l16, 8, ' sc1', pw2)
    A('s_branch ' + L_done)

    A.label(L['aoutd'])
    A('s_lshr_b32 %s, %s, 2' % (sr(s0), sr(s_p)))
    A('s_lshl_b32 %s, %s, 2' % (sr(s0), sr(s0)))
    A('s_add_u32 %s, %s, %d' % (sr(s0), sr(s0), DBG_AA))
    A('s_and_b32 %s, %s, 3' % (sr(s1), sr(s_p)))
    A('s_lshl_b32 %s, %s, 3' % (sr(s1), sr(s1)))
    wait2(str(DBG_WT), 32, s0, '0x22', s1)
    A('s_lshl_b32 %s, %s, 1' % (sr(s_mt), sr(s_p)))
    A('s_lshl_b32 %s, %s, 3' % (sr(s_nt), sr(s_q)))
    A('s_add_u32 %s, %s, %s' % (sr(s_nt), sr(s_nt), sr(s_job)))
    A('s_mov_b32 %s, 0' % sr(s_inc))
    A('s_mov_b32 %s, 0' % sr(s_cfg))
    wstamp(1)
    out_direct(A, SRD_WS, SRD_O, s_w, s_mt, s_nt, (s_base, s_tbs, s_it, s0, s1), v_lane, v_l16, v_off, 8, ld=' sc1', pre=early)
    A('s_branch ' + L_done)

    A.label(L['battn'])
    A('s_add_u32 %s, %s, %s' % (sr(s_job), sr(s_job), sr(s_p)))
    A('s_lshr_b32 %s, %s, 2' % (sr(s_mt), sr(s_job)))
    A('s_lshl_b32 %s, %s, 2' % (sr(s_ctr), sr(s_mt)))
    A('s_add_u32 %s, %s, %d' % (sr(s1), sr(s_ctr), DBG_BQ))
    A('s_add_u32 %s, %s, %d' % (sr(s0), sr(s_ctr), DBG_BQ - 4))
    A('s_max_u32 %s, %s, %d' % (sr(s0), sr(s0), DBG_BQ))
    wait2(s0, 3, s1, 3)
    ctr(DBG_BA, s_mt, 1)
    attn_items()
    attn.attn_b4(A, SRD_WS, s_it, (s0, s1, s2_, s3), v_lane, v_l16, 8, ld=' sc1', stf=' sc1', late=early)

    A.label(L_done)
    wstamp(4)
    Lq0 = A.uid('q0')
    A('s_cmp_lg_u32 %s, 0' % sr(s_init))
    A('s_cbranch_scc1 ' + Lq0)
    A('v_cmp_gt_u32 vcc, 8, %s' % vr(v_lane))
    A('v_lshlrev_b32 %s, 2, %s' % (vr(v_a), vr(v_lane)))
    A('v_mov_b32 %s, %d' % (vr(v_b), DBG_INIT))
    A('v_cndmask_b32 %s, %s, %s, vcc' % (vr(v_a), vr(v_b), vr(v_a)))
    A('buffer_load_dword %s, %s, %s, 0 offen sc1' % (vr(v_b), vr(v_a), sr(SRD_D, 4)))
    A('v_cndmask_b32 %s, 1, 32, vcc' % vr(v_a))
    A('s_waitcnt vmcnt(0)')
    A('v_cmp_ne_u32 vcc, %s, %s' % (vr(v_a), vr(v_b)))
    A('s_cbranch_vccnz ' + Lq0)
    A('s_mov_b32 %s, 1' % sr(s_init))
    A.label(Lq0)
    A('s_waitcnt vmcnt(0)')
    wstamp(5)
    dbgt(14)
    Ld1, Ld2, Lsig = A.uid('d1'), A.uid('d2'), A.uid('sig')
    A('v_mov_b32 %s, %d' % (vr(v_a), LDS_JOB))
    A('s_cmp_lg_u32 %s, 0' % sr(s_w))
    A('s_cbranch_scc1 ' + Ld1)
    A('s_mov_b64 exec, 1')
    A('ds_write_b32 %s, %s' % (vr(v_a), vr(v_tk)))
    A('s_mov_b64 exec, -1')
    A('s_waitcnt lgkmcnt(0)')
    A.label(Ld1)
    A('s_barrier')
    Lck = A.uid('ck')
    A('s_cmp_lg_u32 %s, 0' % sr(s_init))
    A('s_cbranch_scc1 ' + Lck)
    place_check(A, SRD_D, v_lane, v_a, v_b, s3, LIM, L_restart)
    A.label(Lck)
    A('s_cmp_lg_u32 %s, 0' % sr(s_w))
    A('s_cbranch_scc1 ' + Ld2)
    A('s_cmp_lg_u32 %s, 0' % sr(s_inc))
    A('s_cbranch_scc1 ' + Lsig)
    A.label(Ld2)
    A('s_cmp_eq_u32 %s, 0' % sr(s_et))
    A('s_cbranch_scc1 ' + L_next)
    A('s_mov_b32 %s, 0' % sr(s_et))
    A('v_mov_b32 %s, %d' % (vr(v_a), LDS_JOB))
    A('ds_read_b32 %s, %s' % (vr(v_b), vr(v_a)))
    A('s_waitcnt lgkmcnt(0)')
    A('v_readfirstlane_b32 %s, %s' % (sr(s_job), vr(v_b)))
    A('s_barrier')
    A('s_branch ' + L_got)
    A.label(Lsig)
    wait_init()
    A('s_add_u32 %s, %s, %s' % (sr(s0), sr(s_ctr), sr(s_q)))
    A('s_lshl_b32 %s, %s, 7' % (sr(s0), sr(s0)))
    A('s_add_u32 %s, %s, 0x%x' % (sr(s0), sr(s0), CTR))
    A('v_mov_b32 %s, %s' % (vr(v_a), sr(s0)))
    A('v_mov_b32 %s, %s' % (vr(v_b), sr(s_inc)))
    A('s_mov_b64 exec, 1')
    A('buffer_atomic_add %s, %s, %s, 0 offen sc1' % (vr(v_b), vr(v_a), sr(SRD_WS, 4)))
    Lk0 = A.uid('k0')
    A('s_cmp_lg_u32 %s, %d' % (sr(s_ctr), DBG_KV))
    A('s_cbranch_scc1 ' + Lk0)
    A('s_cmp_lg_u32 %s, 0' % sr(s_mt))
    A('s_cbranch_scc1 ' + Lk0)
    A('v_add_u32 %s, %d, %s' % (vr(v_a), (DBG_KV0 - DBG_KV) * 128, vr(v_a)))
    A('v_mov_b32 %s, 2' % vr(v_b))
    A('buffer_atomic_add %s, %s, %s, 0 offen sc1' % (vr(v_b), vr(v_a), sr(SRD_WS, 4)))
    A.label(Lk0)
    A('s_mov_b64 exec, -1')
    A('s_branch ' + Ld2)
    return hi
```

```python
from asmlib import *
from layout import *
import struct, os
from kernels import place_check, shift_ptrs


def f32bits(x):
    return struct.unpack('<I', struct.pack('<f', x))[0]


def env(n, d):
    return int(os.environ.get(n, str(d)))


LDS_RED = 131072
LDS_O = LDS_RED + 16384
LDS_ROLE = LDS_O + 8192
NSTEP = env('NSTEP', 64)
POLL_LIMIT = 400000
NEARX = env('NEARX', 1)
DELAY_C = env('DELAY_C', 4)
DELAY_E = env('DELAY_E', 12)
E_BACK = env('E_BACK', 0)
DELAY_V = env('DELAY_V', 6)
RED_SLEEP = env('RED_SLEEP', 3)
NOE_SLEEP = env('NOE_SLEEP', 10)
NOPF = env('NOPF', 0)
FORCE_SAFE = env('FORCE_SAFE', 0)
PFC = env('PFC', 0)
VS = [int(x) for x in os.environ.get('VS', '8,3,5').split(',')]
A2 = env('A2', 1)
S3 = env('S3', 2)
HINT = env('HINT', 7)
DBGT = env('DBGT', 0)
XMAP = int(os.environ.get('XMAP', '0'), 16)
LITE = [int(x) for x in os.environ.get('LITE', '').split(',') if x]


def gen_chain(A, name, stamps=False, nsteps=NSTEP, worker=None):
    S = Regs('s', 16, 100)
    V = Regs('v', 1, 256)
    SRD_WS, SRD_T = 8, 12
    s_ptr = S.alloc(16, 4)
    (s_w, s_x, s_j, s_t0, s_t1, s_t2, s_t3, s_step, s_slot, s_slot1, s_slot2, s_slotp, s_kx, s_kx2, s_out, s_outp, s_fffe, s_c,
     s_lim, s_cnt, s_vote, s_stamp, s_stl, s_red, s_obm, s_kvo, s_ps, s_ps2, s_m0, s_m1) = [S.alloc() for _ in range(30)]
    s_hf = S.alloc(2, 2)
    s_tm = S.alloc(2, 2)
    s_ta = S.alloc(2, 2)
    s_kvm = S.alloc(2, 2)
    SRD_A = S.alloc(4, 4)
    SRD_B = S.alloc(4, 4)
    SRD_D = S.alloc(4, 4)
    v_lane, v_nu, v_g = V.alloc(), V.alloc(), V.alloc()
    v_t = [V.alloc() for _ in range(8)]
    (va_memr, va_mems, va_rw, va_rr, va_qks, va_rb, va_vs, va_cp, va_prog, va_qkr, va_vmr, va_kx, va_vx, va_ow, va_or, va_pw, va_pr,
     va_pz, va_pd, va_warm, v_idx, v_bias, v_junk, v_kvf, v_junk2, v_sh, va_flg, va_pg) = [V.alloc() for _ in range(28)]
    v_m1 = V.alloc(4, 4)
    v_mask = V.alloc(4, 4)
    v_sel = V.alloc(4, 4)
    v_maskx = V.alloc(4, 4)
    v_ones = V.alloc(4, 4)
    acc1 = V.alloc(4, 4)
    acc2 = V.alloc(4, 4)
    KXA = V.alloc(16, 4)
    KXB = V.alloc(16, 4)
    VXR = V.alloc(32, 4)
    F = V.alloc(64, 4)
    VMR = V.alloc(8, 4)
    QK = V.alloc(16, 4)
    M = V.alloc(16, 4)
    assert KXB == KXA + 16 and VXR == KXA + 32 and F == KXA + 64
    LND = KXA
    AC = F
    HA = F + 32
    RD = F + 48
    SA, SB, SM = F, F + 4, F + 8
    PX, PXH = F + 12, F + 16
    PM, PMH = F + 20, F + 22
    O = F + 28
    LS = F + 44
    v_mx, v_mx2, v_l = F + 48, F + 49, F + 50
    XY = QK
    G = F
    PR = KXA
    RB = KXA + 8
    W1, W2 = 0, 128
    L_exit = name + '_exit'
    nvm = [0]

    def stamp(k):
        if not stamps or (LITE and k not in LITE):
            return
        A('%s %s' % ('s_memrealtime' if stamps == 'rt' else 's_memtime', sr(s_tm, 2)))
        A('s_waitcnt lgkmcnt(0)')
        A('v_mov_b32 %s, %s' % (vr(v_t[7]), sr(s_tm)))
        A('v_mov_b32 %s, %s' % (vr(v_t[6]), sr(s_stl)))
        A('ds_write_b32 %s, %s offset:%d' % (vr(v_t[6]), vr(v_t[7]), 4 * k))
        if k in (0, 2, 6):
            A('v_mov_b32 %s, %s' % (vr(v_t[5]), sr(s_cnt)))
            A('ds_write_b32 %s, %s offset:%d' % (vr(v_t[6]), vr(v_t[5]), 4 * (8 + k)))

    def dbgt(word):
        if not DBGT:
            return
        A('s_memrealtime %s' % sr(s_tm, 2))
        A('s_waitcnt lgkmcnt(0)')
        A('v_mov_b32 %s, %s' % (vr(v_t[7]), sr(s_tm)))
        A('v_mov_b32 %s, %d' % (vr(v_t[6]), word * 4))
        A('s_mov_b64 exec, 1')
        A('buffer_atomic_umax %s, %s, %s, 0 offen sc1' % (vr(v_t[7]), vr(v_t[6]), sr(SRD_T, 4)))
        A('s_mov_b64 exec, -1')

    def srd(dst, ptr, nbytes):
        A('s_mov_b32 %s, %s' % (sr(dst), sr(ptr)))
        A('s_and_b32 %s, %s, 0xffff' % (sr(dst + 1), sr(ptr + 1)))
        A('s_mov_b32 %s, 0x%x' % (sr(dst + 2), nbytes))
        A('s_mov_b32 %s, 0x00020000' % sr(dst + 3))

    A.raw('.p2align 8')
    A.label(name)
    A('s_cmp_ge_u32 s2, 256')
    A('s_cbranch_scc1 ' + L_exit)
    A('s_mov_b32 s%d, 0' % S_MODE)
    L_restart = name + '_restart'
    A.label(L_restart)
    A('s_load_dwordx2 %s, s[0:1], 8' % sr(s_ptr, 2))
    A('s_load_dwordx4 %s, s[0:1], 16' % sr(s_ptr + 4, 4))
    A('s_load_dwordx4 %s, s[0:1], 32' % sr(s_ptr + 8, 4))
    A('s_load_dwordx4 %s, s[0:1], 88' % sr(s_ptr + 12, 4))
    P_MEM0, P_WQ, P_WK, P_WV, P_WO, P_DBG, P_WS = s_ptr, s_ptr + 4, s_ptr + 6, s_ptr + 8, s_ptr + 10, s_ptr + 12, s_ptr + 14
    A('v_and_b32 %s, 63, v0' % vr(v_lane))
    A('v_lshrrev_b32 %s, 6, v0' % vr(v_t[0]))
    A('v_readfirstlane_b32 %s, %s' % (sr(s_w), vr(v_t[0])))
    A('v_and_b32 %s, 15, %s' % (vr(v_nu), vr(v_lane)))
    A('v_lshrrev_b32 %s, 4, %s' % (vr(v_g), vr(v_lane)))
    A('s_waitcnt lgkmcnt(0)')
    shift_ptrs(A, P_WS, P_DBG, s_t0)
    srd(SRD_WS, P_WS, WS_HALF)
    srd(SRD_T, P_DBG, 128)
    L_role = A.uid('role')
    A('s_lshr_b32 %s, s2, 5' % sr(s_x))
    A('s_and_b32 %s, s2, 31' % sr(s_j))
    A('s_cmp_lg_u32 s%d, 0' % S_MODE)
    A('s_cbranch_scc1 ' + L_role)
    A('s_getreg_b32 %s, hwreg(HW_REG_XCC_ID)' % sr(s_x))
    A('s_and_b32 %s, %s, 7' % (sr(s_x), sr(s_x)))
    if XMAP:
        A('s_lshl_b32 %s, %s, 2' % (sr(s_x), sr(s_x)))
        A('s_lshr_b32 %s, 0x%x, %s' % (sr(s_x), XMAP, sr(s_x)))
        A('s_and_b32 %s, %s, 7' % (sr(s_x), sr(s_x)))
    if FORCE_SAFE:
        A('s_cmp_eq_u32 s2, %d' % FORCE_SAFE)
        A('s_cselect_b32 %s, 1, 0' % sr(s_t0))
        A('s_xor_b32 %s, %s, %s' % (sr(s_x), sr(s_x), sr(s_t0)))
    L_norole = A.uid('norole')
    A('s_cmp_lg_u32 %s, 0' % sr(s_w))
    A('s_cbranch_scc1 ' + L_norole)
    A('s_lshl_b32 %s, %s, 2' % (sr(s_t0), sr(s_x)))
    A('v_mov_b32 %s, %s' % (vr(v_t[0]), sr(s_t0)))
    A('v_mov_b32 %s, 1' % vr(v_t[1]))
    A('s_mov_b64 exec, 1')
    A('buffer_atomic_add %s, %s, %s, 0 offen sc0 sc1' % (vr(v_t[1]), vr(v_t[0]), sr(SRD_T, 4)))
    A('s_waitcnt vmcnt(0)')
    A('v_mov_b32 %s, %d' % (vr(v_t[0]), LDS_ROLE))
    A('ds_write_b32 %s, %s' % (vr(v_t[0]), vr(v_t[1])))
    A('s_waitcnt lgkmcnt(0)')
    A('s_mov_b64 exec, -1')
    A.label(L_norole)
    A('s_barrier')
    A('v_mov_b32 %s, %d' % (vr(v_t[0]), LDS_ROLE))
    A('ds_read_b32 %s, %s' % (vr(v_t[1]), vr(v_t[0])))
    A('s_waitcnt lgkmcnt(0)')
    A('v_readfirstlane_b32 %s, %s' % (sr(s_j), vr(v_t[1])))
    A.label(L_role)
    L_work = name + '_worker'
    A('s_mov_b32 s%d, %s' % (S_VX, sr(s_x)))
    A('s_mov_b32 s3, %s' % sr(s_j))
    A('s_cmp_ge_u32 %s, 4' % sr(s_x))
    A('s_cbranch_scc1 ' + L_work)
    A('s_cmp_ge_u32 %s, 32' % sr(s_j))
    A('s_cbranch_scc1 ' + L_work)
    A('s_mov_b32 s3, -1')
    A('s_lshl_b32 %s, %s, 1' % (sr(s_x), sr(s_x)))
    A('s_lshr_b32 %s, %s, 4' % (sr(s_t0), sr(s_j)))
    A('s_add_u32 %s, %s, %s' % (sr(s_x), sr(s_x), sr(s_t0)))
    A('s_and_b32 %s, %s, 15' % (sr(s_j), sr(s_j)))
    A('s_xor_b32 %s, %s, %s' % (sr(s_red), sr(s_x), sr(s_j)))
    A('s_and_b32 %s, %s, 1' % (sr(s_red), sr(s_red)))
    A('s_lshr_b32 %s, %s, 1' % (sr(s_obm), sr(s_x)))
    A('s_lshl_b32 %s, %s, 4' % (sr(s_obm), sr(s_obm)))
    A('s_add_u32 %s, %s, %s' % (sr(s_obm), sr(s_obm), sr(s_j)))
    A('s_lshl_b32 %s, %s, 10' % (sr(s_obm), sr(s_obm)))
    L_noz = A.uid('noz')
    A('s_or_b32 %s, %s, %s' % (sr(s_t0), sr(s_x), sr(s_j)))
    A('s_xor_b32 %s, %s, 1' % (sr(s_t1), sr(s_w)))
    A('s_or_b32 %s, %s, %s' % (sr(s_t0), sr(s_t0), sr(s_t1)))
    A('s_cmp_lg_u32 %s, 0' % sr(s_t0))
    A('s_cbranch_scc1 ' + L_noz)
    A('v_lshlrev_b32 %s, 7, %s' % (vr(v_t[0]), vr(v_lane)))
    A('v_mov_b32 %s, 0' % vr(v_t[1]))
    for i in range(4):
        A('s_mov_b32 %s, 0x%x' % (sr(s_t0), CTR + i * 8192))
        A('buffer_store_dword %s, %s, %s, %s offen sc1' % (vr(v_t[1]), vr(v_t[0]), sr(SRD_WS, 4), sr(s_t0)))
    A('s_waitcnt vmcnt(0)')
    A('v_mov_b32 %s, %d' % (vr(v_t[0]), DBG_INIT))
    A('v_mov_b32 %s, 1' % vr(v_t[1]))
    A('s_mov_b64 exec, 1')
    A('buffer_store_dword %s, %s, %s, 0 offen sc1' % (vr(v_t[1]), vr(v_t[0]), sr(SRD_T, 4)))
    A('s_mov_b64 exec, -1')
    dbgt(10)
    A.label(L_noz)
    for i in range(4):
        A('v_mov_b32 %s, -1' % vr(v_m1 + i))
    l16 = v_t[2]
    A('v_lshlrev_b32 %s, 4, %s' % (vr(l16), vr(v_lane)))
    s_ob = s_t3
    A('s_lshl_b32 %s, %s, 4' % (sr(s_ob), sr(s_x)))
    A('s_add_u32 %s, %s, %s' % (sr(s_ob), sr(s_ob), sr(s_j)))
    A('s_lshl_b32 %s, %s, 10' % (sr(s_ob), sr(s_ob)))

    A('s_lshl_b32 %s, %s, 17' % (sr(s_t0), sr(s_w)))
    A('s_add_u32 %s, %s, %s' % (sr(s_t2), sr(s_t0), sr(s_ob)))
    for base in (QKI, VMI):
        A('s_add_u32 %s, %s, 0x%x' % (sr(s_t1), sr(s_t2), base))
        A('buffer_store_dwordx4 %s, %s, %s, %s offen sc1' % (vr(v_m1, 4), vr(l16), sr(SRD_WS, 4), sr(s_t1)))
    A('s_add_u32 %s, %s, %s' % (sr(s_t0), sr(s_t0), sr(s_obm)))
    A('s_add_u32 %s, %s, 0x%x' % (sr(s_t1), sr(s_t0), MEMI))
    A('buffer_store_dwordx4 %s, %s, %s, %s offen sc1' % (vr(v_m1, 4), vr(l16), sr(SRD_WS, 4), sr(s_t1)))
    A('s_lshl_b32 %s, %s, 14' % (sr(s_t0), sr(s_j)))
    A('s_lshl_b32 %s, %s, 11' % (sr(s_t1), sr(s_w)))
    A('s_add_u32 %s, %s, %s' % (sr(s_t0), sr(s_t0), sr(s_t1)))
    A('s_add_u32 %s, %s, 0x%x' % (sr(s_t0), sr(s_t0), PART))
    A('v_add_u32 %s, %s, %s' % (vr(va_pr), sr(s_t0), vr(l16)))
    A('s_lshl_b32 %s, %s, 8' % (sr(s_t1), sr(s_x)))
    A('v_add_u32 %s, %s, %s' % (vr(va_pw), sr(s_t1), vr(va_pr)))
    A('v_add_u32 %s, 8192, %s' % (vr(va_pz), vr(va_pw)))
    A('s_mov_b64 exec, 0xffff')
    for sl in range(4):
        A('s_mov_b32 %s, 0x%x' % (sr(s_t1), sl * 0x40000))
        A('buffer_store_dwordx4 %s, %s, %s, %s offen sc1' % (vr(v_m1, 4), vr(va_pw), sr(SRD_WS, 4), sr(s_t1)))
        A('buffer_store_dwordx4 %s, %s, %s, %s offen sc1' % (vr(v_m1, 4), vr(va_pz), sr(SRD_WS, 4), sr(s_t1)))
    A('s_mov_b64 exec, -1')
    A('s_lshr_b32 %s, %s, 1' % (sr(s_t0), sr(s_x)))
    A('s_lshl_b32 %s, %s, 8' % (sr(s_t0), sr(s_t0)))
    A('s_add_u32 %s, %s, 0x%x' % (sr(s_t0), sr(s_t0), FLG))
    A('v_lshl_add_u32 %s, %s, 2, %s' % (vr(va_flg), vr(v_nu), sr(s_t0)))
    Lfr = A.uid('fr')
    A('s_cmp_eq_u32 %s, 0' % sr(s_red))
    A('s_cbranch_scc1 ' + Lfr)
    A('s_and_b32 %s, %s, 1' % (sr(s_t1), sr(s_x)))
    A('s_lshl_b32 %s, %s, 5' % (sr(s_t1), sr(s_t1)))
    A('s_add_u32 %s, %s, %s' % (sr(s_t0), sr(s_t0), sr(s_t1)))
    A('s_lshr_b32 %s, %s, 1' % (sr(s_t1), sr(s_j)))
    A('s_lshl_b32 %s, %s, 2' % (sr(s_t1), sr(s_t1)))
    A('s_add_u32 %s, %s, %s' % (sr(s_t0), sr(s_t0), sr(s_t1)))
    A('v_min_u32 %s, 1, v0' % vr(va_flg))
    A('v_lshl_add_u32 %s, %s, 28, %s' % (vr(va_flg), vr(va_flg), sr(s_t0)))
    A('buffer_store_dword %s, %s, %s, 0 offen sc1' % (vr(v_m1), vr(va_flg), sr(SRD_WS, 4)))
    A.label(Lfr)
    L_nocal, L_nocal2 = A.uid('nocal'), A.uid('nocal2')
    A('s_mov_b32 %s, 1' % sr(s_vote))
    A('s_cmp_ge_u32 %s, 8' % sr(s_j))
    A('s_cbranch_scc1 ' + L_nocal2)
    A('s_bitcmp1_b32 %s, 0' % sr(s_x))
    A('s_cbranch_scc1 ' + L_nocal2)
    A('s_waitcnt vmcnt(0)')
    A('s_barrier')
    A('s_cmp_lg_u32 %s, 0' % sr(s_w))
    A('s_cbranch_scc1 ' + L_nocal)
    A('s_mov_b32 %s, -1' % sr(s_m0))
    A('s_mov_b32 %s, -1' % sr(s_m1))
    A('s_mov_b64 exec, 0xffff')
    for rep in range(3):
        for c in range(2):
            A('s_mov_b32 %s, %d' % (sr(s_t1), 0x40000 + rep * 0x40000))
            A('s_memtime %s' % sr(s_ta, 2))
            A('s_waitcnt lgkmcnt(0)')
            A('buffer_store_dwordx4 %s, %s, %s, %s offen sc1' % (vr(v_m1, 4), vr(va_pz if c else va_pw), sr(SRD_WS, 4), sr(s_t1)))
            A('s_waitcnt vmcnt(0)')
            A('s_memtime %s' % sr(s_tm, 2))
            A('s_waitcnt lgkmcnt(0)')
            A('s_sub_u32 %s, %s, %s' % (sr(s_t2), sr(s_tm), sr(s_ta)))
            A('s_min_u32 %s, %s, %s' % (sr(s_m1 if c else s_m0), sr(s_m1 if c else s_m0), sr(s_t2)))
    A('s_cmp_lt_u32 %s, %s' % (sr(s_m1), sr(s_m0)))
    A('s_cselect_b32 %s, 0x10001, 1' % sr(s_vote))
    A('s_mov_b64 exec, -1')
    A.label(L_nocal)
    A('s_barrier')
    A.label(L_nocal2)

    s_col = s_t2
    A('s_lshr_b32 %s, %s, 4' % (sr(s_col), sr(s_ob)))
    vw = v_t[4]
    A('v_lshrrev_b32 %s, 2, %s' % (vr(vw), vr(v_lane)))
    A('v_lshlrev_b32 %s, 13, %s' % (vr(vw), vr(vw)))
    A('v_and_b32 %s, 3, %s' % (vr(v_t[5]), vr(v_lane)))
    A('v_lshl_add_u32 %s, %s, 4, %s' % (vr(vw), vr(v_t[5]), vr(vw)))
    A('s_lshl_b32 %s, %s, 17' % (sr(s_t0), sr(s_w)))
    A('s_add_u32 %s, %s, %s' % (sr(s_col), sr(s_col), sr(s_t0)))
    A('s_lshl_b32 %s, %s, 10' % (sr(s_t0), sr(s_w)))
    for mi, P in enumerate((P_WQ, P_WK)):
        srd(SRD_A, P, 1024 * 4096 * 2)
        for i in range(16):
            A('s_add_u32 m0, %s, %d' % (sr(s_t0), mi * 65536 + i * 4096))
            A('s_add_u32 %s, %s, %d' % (sr(s_t1), sr(s_col), i * 4 * 131072))
            A('buffer_load_dwordx4 %s, %s, %s offen lds' % (vr(vw), sr(SRD_A, 4), sr(s_t1)))
        if mi == 0:
            A('s_waitcnt vmcnt(16)')
            A('s_barrier')
            L_nord = A.uid('nord')
            A('s_cmp_lg_u32 %s, 0' % sr(s_w))
            A('s_cbranch_scc1 ' + L_nord)
            A('v_mov_b32 %s, 32' % vr(acc2))
            A('v_mov_b32 %s, %s' % (vr(acc2 + 1), sr(s_vote)))
            A('s_mov_b64 exec, 1')
            A('buffer_atomic_add %s, %s, %s, 0 offen sc1' % (vr(acc2 + 1), vr(acc2), sr(SRD_T, 4)))
            A('s_mov_b64 exec, -1')
            A.label(L_nord)
            A('s_nop 4')
    v2 = v_t[5]
    LwN, LwJ = A.uid('wN'), A.uid('wJ')
    A('s_cmp_lg_u32 %s, 0' % sr(s_red))
    A('s_cbranch_scc1 ' + LwN)
    srd(SRD_B, P_WV, 1024 * 4096 * 2)
    A('v_lshrrev_b32 %s, 3, %s' % (vr(v2), vr(v_lane)))
    A('v_lshlrev_b32 %s, 13, %s' % (vr(v2), vr(v2)))
    A('v_and_b32 %s, 7, %s' % (vr(v_t[6]), vr(v_lane)))
    A('v_lshl_add_u32 %s, %s, 4, %s' % (vr(v2), vr(v_t[6]), vr(v2)))
    A('s_lshr_b32 %s, %s, 4' % (sr(s_t2), sr(s_ob)))
    A('s_andn2_b32 %s, %s, 64' % (sr(s_t2), sr(s_t2)))
    A('s_lshl_b32 %s, %s, 16' % (sr(s_t1), sr(s_w)))
    A('s_add_u32 %s, %s, %s' % (sr(s_t2), sr(s_t2), sr(s_t1)))
    A('s_mov_b32 %s, %d' % (sr(s_t0), 4 * 65536))
    A('s_branch ' + LwJ)
    A.label(LwN)
    srd(SRD_B, P_WO, 4096 * 1024 * 2)
    A('v_lshlrev_b32 %s, 11, %s' % (vr(v2), vr(v_g)))
    A('v_lshl_add_u32 %s, %s, 4, %s' % (vr(v2), vr(v_nu), vr(v2)))
    A('s_lshl_b32 %s, %s, 20' % (sr(s_t2), sr(s_x)))
    A('s_lshr_b32 %s, %s, 1' % (sr(s_t1), sr(s_j)))
    A('s_lshl_b32 %s, %s, 8' % (sr(s_t1), sr(s_t1)))
    A('s_add_u32 %s, %s, %s' % (sr(s_t2), sr(s_t2), sr(s_t1)))
    A('s_lshl_b32 %s, %s, 13' % (sr(s_t1), sr(s_w)))
    A('s_add_u32 %s, %s, %s' % (sr(s_t2), sr(s_t2), sr(s_t1)))
    A('s_mov_b32 %s, %d' % (sr(s_t0), 4 * 8192))
    A.label(LwJ)
    for i in range(32):
        A('buffer_load_dwordx4 %s, %s, %s, %s offen' % (vr(LND + 4 * i, 4), vr(v2), sr(SRD_B, 4), sr(s_t2)))
        A('s_add_u32 %s, %s, %s' % (sr(s_t2), sr(s_t2), sr(s_t0)))
    srd(SRD_D, P_MEM0, 8 * 1024 * 2)
    vm0 = v_t[6]
    A('v_and_b32 %s, 7, %s' % (vr(vm0), vr(v_nu)))
    A('v_lshlrev_b32 %s, 11, %s' % (vr(vm0), vr(vm0)))
    A('v_lshl_add_u32 %s, %s, 5, %s' % (vr(vm0), vr(v_g), vr(vm0)))
    A('v_lshrrev_b32 %s, 3, %s' % (vr(v_t[7]), vr(v_nu)))
    A('v_lshl_add_u32 %s, %s, 2, %s' % (vr(vm0), vr(v_t[7]), vr(vm0)))
    A('s_lshl_b32 %s, %s, 9' % (sr(s_t1), sr(s_w)))
    for k in range(4):
        for a in range(4):
            A('buffer_load_dword %s, %s, %s, %s offen offset:%d' % (vr(M + 4 * k + a), vr(vm0), sr(SRD_D, 4), sr(s_t1), k * 128 + a * 8))

    A('s_mov_b32 %s, 0xfffefffe' % sr(s_fffe))
    A('s_mov_b32 %s, 0x%x' % (sr(s_c), f32bits(128 ** -0.5 * 1.4426950408889634)))
    A('s_mov_b32 %s, %d' % (sr(s_lim), POLL_LIMIT))
    A('s_mov_b32 %s, 0xff00ff00' % sr(s_hf))
    A('s_mov_b32 %s, 0xff00ff00' % sr(s_hf + 1))
    ta, tb, tc = v_t[0], v_t[1], v_t[7]
    A('v_mov_b32 %s, 0x%x' % (vr(ta), f32bits(-1e30)))
    for i in range(4):
        A('v_cndmask_b32 %s, 0, %s, %s' % (vr(v_maskx + i), vr(ta), sr(s_hf, 2)))
    A('v_cmp_gt_u32 vcc, 32, %s' % vr(v_lane))
    for i in range(4):
        A('v_cndmask_b32 %s, %s, %s, vcc' % (vr(v_mask + i), vr(v_maskx), vr(ta)))
    A('v_mov_b32 %s, 0x%x' % (vr(ta), f32bits(-3e38)))
    A('v_cndmask_b32 %s, %s, 0, %s' % (vr(v_bias), vr(ta), sr(s_hf, 2)))
    for i in range(4):
        A('v_mov_b32 %s, 0x3f803f80' % vr(v_ones + i))
    A('v_mov_b32 %s, 0x4444' % vr(ta))
    A('v_mov_b32 %s, 0xeeee' % vr(tb))
    A('v_cndmask_b32 %s, %s, %s, %s' % (vr(v_idx), vr(ta), vr(tb), sr(s_hf, 2)))
    A('v_bfe_u32 %s, %s, 2, 1' % (vr(ta), vr(v_nu)))
    A('v_bfe_u32 %s, %s, 1, 1' % (vr(tb), vr(v_nu)))
    A('v_lshl_add_u32 %s, %s, 1, %s' % (vr(ta), vr(tb), vr(ta)))
    A('v_and_b32 %s, 1, %s' % (vr(tb), vr(v_nu)))
    A('v_lshlrev_b32 %s, 4, %s' % (vr(tb), vr(tb)))
    A('v_mov_b32 %s, 0x3f80' % vr(tc))
    A('v_lshlrev_b32 %s, %s, %s' % (vr(tb), vr(tb), vr(tc)))
    for d in range(4):
        A('v_cmp_eq_u32 vcc, %d, %s' % (d, vr(ta)))
        A('v_cndmask_b32 %s, 0, %s, vcc' % (vr(v_sel + d), vr(tb)))

    s_p, s_wh = s_t0, s_t1
    A('s_and_b32 %s, %s, 1' % (sr(s_p), sr(s_w)))
    A('s_lshr_b32 %s, %s, 1' % (sr(s_wh), sr(s_w)))
    A('s_lshl_b32 %s, %s, 12' % (sr(s_t2), sr(s_w)))
    A('v_add_u32 %s, %s, %s' % (vr(ta), sr(s_t2), vr(l16)))
    A('s_lshr_b32 %s, %s, 1' % (sr(s_t2), sr(s_x)))
    A('s_lshl_b32 %s, %s, 14' % (sr(s_t2), sr(s_t2)))
    A('s_add_u32 %s, %s, 0x%x' % (sr(s_t2), sr(s_t2), MEMI))
    A('v_add_u32 %s, %s, %s' % (vr(va_memr), sr(s_t2), vr(ta)))
    A('s_lshl_b32 %s, %s, 14' % (sr(s_t2), sr(s_x)))
    A('s_add_u32 %s, %s, 0x%x' % (sr(s_t2), sr(s_t2), QKI))
    A('v_add_u32 %s, %s, %s' % (vr(va_qkr), sr(s_t2), vr(ta)))
    A('s_lshl_b32 %s, %s, 12' % (sr(s_cnt), sr(s_w)))
    A('s_add_u32 %s, %s, %s' % (sr(s_t2), sr(s_t2), sr(s_cnt)))
    A('s_add_u32 %s, %s, 0x%x' % (sr(s_t2), sr(s_t2), VMI - QKI))
    A('v_and_b32 %s, 31, %s' % (vr(va_vmr), vr(v_lane)))
    A('v_lshlrev_b32 %s, 4, %s' % (vr(va_vmr), vr(va_vmr)))
    A('v_lshrrev_b32 %s, 5, %s' % (vr(ta), vr(v_lane)))
    A('v_xor_b32 %s, 1, %s' % (vr(ta), vr(ta)))
    A('v_lshl_add_u32 %s, %s, 11, %s' % (vr(va_vmr), vr(ta), vr(va_vmr)))
    A('v_add_u32 %s, %s, %s' % (vr(va_vmr), sr(s_t2), vr(va_vmr)))
    A('s_lshl_b32 %s, %s, 12' % (sr(s_t2), sr(s_w)))
    A('s_add_u32 %s, %s, %d' % (sr(s_t2), sr(s_t2), LDS_RED))
    A('v_lshl_add_u32 %s, %s, 3, %s' % (vr(va_rw), vr(v_lane), sr(s_t2)))
    A('v_lshrrev_b32 %s, 5, %s' % (vr(ta), vr(v_lane)))
    A('v_lshlrev_b32 %s, 13, %s' % (vr(ta), vr(ta)))
    A('v_and_b32 %s, 31, %s' % (vr(tb), vr(v_lane)))
    A('v_lshl_add_u32 %s, %s, 4, %s' % (vr(ta), vr(tb), vr(ta)))
    A('s_lshl_b32 %s, %s, 9' % (sr(s_t2), sr(s_w)))
    A('s_add_u32 %s, %s, %d' % (sr(s_t2), sr(s_t2), LDS_RED))
    A('v_add_u32 %s, %s, %s' % (vr(va_rr), sr(s_t2), vr(ta)))
    vR, vcp, vH = tc, acc1, acc1 + 1
    A('v_bfe_u32 %s, %s, 3, 1' % (vr(ta), vr(v_lane)))
    A('v_bfe_u32 %s, %s, 4, 1' % (vr(tb), vr(v_lane)))
    A('v_lshlrev_b32 %s, 2, %s' % (vr(vR), vr(ta)))
    A('v_lshl_add_u32 %s, %s, 1, %s' % (vr(vR), vr(tb), vr(vR)))
    A('v_and_b32 %s, 7, %s' % (vr(vcp), vr(v_lane)))
    A('v_lshrrev_b32 %s, 5, %s' % (vr(vH), vr(v_lane)))
    A('v_lshlrev_b32 %s, 8, %s' % (vr(va_vs), vr(ta)))
    A('v_lshl_add_u32 %s, %s, 5, %s' % (vr(va_vs), vr(vcp), vr(va_vs)))
    A('v_lshl_add_u32 %s, %s, 4, %s' % (vr(va_vs), vr(vH), vr(va_vs)))
    A('v_lshl_add_u32 %s, %s, 2, %s' % (vr(va_vs), vr(tb), vr(va_vs)))
    A('s_andn2_b32 %s, %s, 1024' % (sr(s_t2), sr(s_ob)))
    A('s_lshl_b32 %s, %s, 10' % (sr(s_cnt), sr(s_wh)))
    A('s_add_u32 %s, %s, %s' % (sr(s_t2), sr(s_t2), sr(s_cnt)))
    A('s_lshl_b32 %s, %s, 3' % (sr(s_cnt), sr(s_p)))
    A('s_add_u32 %s, %s, %s' % (sr(s_t2), sr(s_t2), sr(s_cnt)))
    A('s_add_u32 %s, %s, 0x%x' % (sr(s_t2), sr(s_t2), VMI))
    A('v_add_u32 %s, %s, %s' % (vr(va_vs), sr(s_t2), vr(va_vs)))
    A('v_bfe_u32 %s, %s, 1, 1' % (vr(ta), vr(vcp)))
    A('v_lshlrev_b32 %s, 8, %s' % (vr(va_qks), vr(ta)))
    A('v_add_u32 %s, %s, %s' % (vr(vR), vr(vR), vr(vH)))
    A('v_lshl_add_u32 %s, %s, 4, %s' % (vr(va_qks), vr(vR), vr(va_qks)))
    A('v_lshrrev_b32 %s, 2, %s' % (vr(ta), vr(vcp)))
    A('v_lshl_add_u32 %s, %s, 3, %s' % (vr(va_qks), vr(ta), vr(va_qks)))
    A('v_and_b32 %s, 1, %s' % (vr(ta), vr(vcp)))
    A('v_lshl_add_u32 %s, %s, 2, %s' % (vr(va_qks), vr(ta), vr(va_qks)))
    A('s_lshl_b32 %s, %s, 9' % (sr(s_t2), sr(s_p)))
    A('v_add_u32 %s, %s, %s' % (vr(va_qks), sr(s_t2), vr(va_qks)))
    A('s_lshl_b32 %s, %s, 7' % (sr(s_t2), sr(s_wh)))
    A('s_add_u32 %s, %s, %s' % (sr(s_t2), sr(s_t2), sr(s_ob)))
    A('s_add_u32 %s, %s, 0x%x' % (sr(s_t2), sr(s_t2), QKI))
    A('v_add_u32 %s, %s, %s' % (vr(va_qks), sr(s_t2), vr(va_qks)))
    A('v_lshlrev_b32 %s, 4, %s' % (vr(va_mems), vr(v_nu)))
    A('v_lshl_add_u32 %s, %s, 2, %s' % (vr(va_mems), vr(v_g), vr(va_mems)))
    A('s_lshl_b32 %s, %s, 8' % (sr(s_t2), sr(s_w)))
    A('s_add_u32 %s, %s, %s' % (sr(s_t2), sr(s_t2), sr(s_obm)))
    A('s_add_u32 %s, %s, 0x%x' % (sr(s_t2), sr(s_t2), MEMI))
    A('v_add_u32 %s, %s, %s' % (vr(va_mems), sr(s_t2), vr(va_mems)))
    A('s_lshl_b32 %s, %s, 10' % (sr(s_t2), sr(s_wh)))
    A('s_xor_b32 %s, %s, %s' % (sr(s_kvo), sr(s_t2), sr(s_ob)))
    A('s_lshl_b32 %s, %s, 19' % (sr(s_t2), sr(s_p)))
    A('s_add_u32 %s, %s, %s' % (sr(s_t2), sr(s_t2), sr(s_kvo)))
    A('s_add_u32 %s, %s, 0x%x' % (sr(s_t2), sr(s_t2), QKI))
    A('s_lshl_b32 %s, %s, 23' % (sr(s_cnt), sr(s_p)))
    A('s_add_u32 %s, %s, %s' % (sr(s_cnt), sr(s_cnt), sr(s_kvo)))
    A('s_add_u32 %s, %s, 0x%x' % (sr(s_cnt), sr(s_cnt), KMO))
    assert VMO - KMO == 1 << 23 and VMI - QKI == 1 << 19
    A('v_add_u32 %s, %s, %s' % (vr(va_rb), sr(s_t2), vr(l16)))
    A('v_add_u32 %s, %s, %s' % (vr(va_cp), sr(s_cnt), vr(l16)))
    A('s_or_b32 %s, %s, %s' % (sr(s_t2), sr(s_x), sr(s_j)))
    A('s_xor_b32 %s, %s, 3' % (sr(s_cnt), sr(s_w)))
    A('s_or_b32 %s, %s, %s' % (sr(s_t2), sr(s_t2), sr(s_cnt)))
    A('s_cmp_eq_u32 %s, 0' % sr(s_t2))
    A('s_mov_b32 %s, 0x%x' % (sr(s_cnt), CTR + DBG_PROG * 128))
    A('s_cselect_b32 %s, %s, 0x%x' % (sr(s_t2), sr(s_cnt), WS_BYTES))
    A('v_and_b32 %s, 3, %s' % (vr(v_sh), vr(v_lane)))
    A('v_lshlrev_b32 %s, 7, %s' % (vr(v_sh), vr(v_sh)))
    A('v_add_u32 %s, %s, %s' % (vr(va_prog), sr(s_t2), vr(v_sh)))
    A('v_cmp_lt_u32 vcc, 3, %s' % vr(v_lane))
    A('v_mov_b32 %s, 0x%x' % (vr(ta), WS_BYTES))
    A('v_cndmask_b32 %s, %s, %s, vcc' % (vr(va_prog), vr(va_prog), vr(ta)))
    A('v_add_u32 %s, 0x%x, %s' % (vr(v_sh), CTR, vr(v_sh)))
    s_h = s_t2
    A('s_lshl_b32 %s, %s, 2' % (sr(s_h), sr(s_x)))
    A('s_add_u32 %s, %s, %s' % (sr(s_h), sr(s_h), sr(s_w)))
    A('s_lshl_b32 %s, %s, 13' % (sr(s_h), sr(s_h)))
    A('v_and_b32 %s, 1, %s' % (vr(ta), vr(v_g)))
    A('v_lshrrev_b32 %s, 1, %s' % (vr(tb), vr(v_g)))
    A('v_lshlrev_b32 %s, 9, %s' % (vr(va_kx), vr(ta)))
    A('v_lshl_add_u32 %s, %s, 10, %s' % (vr(va_kx), vr(tb), vr(va_kx)))
    A('v_add_u32 %s, %s, %s' % (vr(va_kx), sr(s_h), vr(va_kx)))
    A('v_lshl_add_u32 %s, %s, 4, %s' % (vr(va_vx), vr(v_nu), vr(va_kx)))
    A('v_add_u32 %s, 0x%x, %s' % (vr(va_vx), VX, vr(va_vx)))
    A('v_lshrrev_b32 %s, 3, %s' % (vr(ta), vr(v_nu)))
    A('v_lshl_add_u32 %s, %s, 8, %s' % (vr(va_kx), vr(ta), vr(va_kx)))
    A('v_and_b32 %s, 7, %s' % (vr(ta), vr(v_nu)))
    A('v_lshl_add_u32 %s, %s, 4, %s' % (vr(va_kx), vr(ta), vr(va_kx)))
    A('v_add_u32 %s, 0x%x, %s' % (vr(va_kx), KX, vr(va_kx)))
    A('s_lshr_b32 %s, %s, 1' % (sr(s_t2), sr(s_j)))
    A('s_lshl_b32 %s, %s, 2' % (sr(s_t2), sr(s_t2)))
    A('s_add_u32 %s, %s, %s' % (sr(s_t2), sr(s_t2), sr(s_w)))
    A('s_and_b32 %s, %s, 15' % (sr(s_cnt), sr(s_t2)))
    A('s_lshl_b32 %s, %s, 11' % (sr(s_cnt), sr(s_cnt)))
    A('s_lshr_b32 %s, %s, 4' % (sr(s_t2), sr(s_t2)))
    A('s_lshl_b32 %s, %s, 24' % (sr(s_t2), sr(s_t2)))
    assert VX - KX == 1 << 24
    A('s_add_u32 %s, %s, %s' % (sr(s_t2), sr(s_t2), sr(s_cnt)))
    A('s_lshl_b32 %s, %s, 15' % (sr(s_cnt), sr(s_x)))
    A('s_add_u32 %s, %s, %s' % (sr(s_t2), sr(s_t2), sr(s_cnt)))
    A('s_add_u32 %s, %s, 0x%x' % (sr(s_t2), sr(s_t2), KX))
    A('v_lshl_add_u32 %s, %s, 5, %s' % (vr(va_warm), vr(v_lane), sr(s_t2)))
    A('v_add_u32 %s, %d, %s' % (vr(va_or), LDS_O, vr(l16)))
    A('v_lshrrev_b32 %s, 3, %s' % (vr(ta), vr(v_nu)))
    A('v_mul_u32_u24 %s, %d, %s' % (vr(ta), 1024 - 128, vr(ta)))
    A('s_lshl_b32 %s, %s, 11' % (sr(s_t2), sr(s_w)))
    A('v_add3_u32 %s, %s, %s, %s' % (vr(va_ow), sr(s_t2), vr(va_or), vr(ta)))
    if stamps:
        A('s_lshl_b32 %s, %s, 4' % (sr(s_stamp), sr(s_ob)))
        A('s_lshl_b32 %s, %s, 12' % (sr(s_t2), sr(s_w)))
        A('s_add_u32 %s, %s, %s' % (sr(s_stamp), sr(s_stamp), sr(s_t2)))
        A('s_add_u32 %s, %s, 0x%x' % (sr(s_stamp), sr(s_stamp), STAMP))
        A('s_add_u32 %s, %s, 65536' % (sr(s_stl), sr(s_t2)))

    vq1, vq2, vr_, vcq = acc1, acc1 + 1, acc1 + 2, acc1 + 3
    A('v_bfe_u32 %s, %s, 2, 2' % (vr(vr_), vr(v_lane)))
    A('v_and_b32 %s, 3, %s' % (vr(vcq), vr(v_lane)))
    A('v_lshl_add_u32 %s, %s, 3, %s' % (vr(vq2), vr(v_g), vr(vr_)))
    A('v_lshlrev_b32 %s, 6, %s' % (vr(vq1), vr(vq2)))
    A('v_lshl_add_u32 %s, %s, 3, %s' % (vr(vq1), vr(vcq), vr(vq1)))
    A('s_lshl_b32 %s, %s, 14' % (sr(s_t2), sr(s_w)))
    A('v_add_u32 %s, %s, %s' % (vr(vq1), sr(s_t2), vr(vq1)))
    A('v_add_u32 %s, 65536, %s' % (vr(tb), vr(vq1)))
    A('s_waitcnt vmcnt(48)')
    A('s_barrier')
    for kk in range(4):
        for tl in range(4):
            for bh in range(2):
                for q in range(2):
                    A('ds_read_b64_tr_b16 %s, %s offset:%d' % (ar(W1 + 8 * (kk * 4 + tl) + 4 * bh + 2 * q, 2), vr(tb if tl >= 2 else vq1), kk * 4096 + bh * 2048 + q * 256 + (tl & 1) * 32))
            A('s_waitcnt lgkmcnt(8)')
    A('s_waitcnt lgkmcnt(0)')
    A('s_barrier')
    A('s_waitcnt vmcnt(0)')
    A('s_lshl_b32 %s, %s, 10' % (sr(s_t2), sr(s_w)))
    A('v_add_u32 %s, %s, %s' % (vr(ta), sr(s_t2), vr(l16)))
    A('v_add_u32 %s, 65536, %s' % (vr(tb), vr(ta)))
    for i in range(32):
        A('ds_write_b128 %s, %s offset:%d' % (vr(ta if i < 16 else tb), vr(LND + 4 * i, 4), (i & 15) * 4096))
        if i & 3 == 3:
            A('s_waitcnt lgkmcnt(8)')
    A('s_waitcnt lgkmcnt(0)')
    A('s_barrier')
    LtN, LtJ = A.uid('tN'), A.uid('tJ')
    A('s_cmp_lg_u32 %s, 0' % sr(s_red))
    A('s_cbranch_scc1 ' + LtN)
    A('v_lshlrev_b32 %s, 7, %s' % (vr(ta), vr(vq2)))
    A('v_lshl_add_u32 %s, %s, 3, %s' % (vr(ta), vr(vcq), vr(ta)))
    A('s_lshl_b32 %s, %s, 15' % (sr(s_t2), sr(s_w)))
    A('v_add_u32 %s, %s, %s' % (vr(ta), sr(s_t2), vr(ta)))
    for kk in range(4):
        for tv in range(4):
            for bh in range(2):
                for q in range(2):
                    A('ds_read_b64_tr_b16 %s, %s offset:%d' % (ar(W2 + 8 * (kk * 4 + tv) + 4 * bh + 2 * q, 2), vr(ta), kk * 8192 + bh * 4096 + q * 512 + tv * 32))
            A('s_waitcnt lgkmcnt(8)')
    A('s_branch ' + LtJ)
    A.label(LtN)
    A('v_and_b32 %s, 1, %s' % (vr(ta), vr(v_g)))
    A('v_lshl_add_u32 %s, %s, 5, %s' % (vr(ta), vr(ta), vr(vr_)))
    A('v_lshrrev_b32 %s, 1, %s' % (vr(tb), vr(v_g)))
    A('v_lshl_add_u32 %s, %s, 2, %s' % (vr(ta), vr(tb), vr(ta)))
    A('v_lshlrev_b32 %s, 8, %s' % (vr(ta), vr(ta)))
    A('v_lshl_add_u32 %s, %s, 3, %s' % (vr(ta), vr(vcq), vr(ta)))
    A('s_lshl_b32 %s, %s, 5' % (sr(s_t2), sr(s_w)))
    A('v_add_u32 %s, %s, %s' % (vr(ta), sr(s_t2), vr(ta)))
    A('v_add_u32 %s, 65536, %s' % (vr(tb), vr(ta)))
    for k in range(8):
        for u in range(2):
            for bh in range(2):
                for q in range(2):
                    A('ds_read_b64_tr_b16 %s, %s offset:%d' % (ar(W2 + 8 * (k * 2 + u) + 4 * bh + 2 * q, 2), vr(ta if k < 4 else tb), (k & 3) * 16384 + q * 4096 + bh * 2048 + u * 128))
            A('s_waitcnt lgkmcnt(8)')
    A.label(LtJ)
    A('s_waitcnt lgkmcnt(0)')
    A('s_barrier')

    def pf_ops():
        o = []
        for eb in range(4):
            so = s_kx if eb < 2 else s_kx2
            o.append('buffer_load_dwordx4 %s, %s, %s, %s offen offset:%d sc1' % (vr(KXA + 4 * eb, 4), vr(va_kx), sr(SRD_WS, 4), sr(so), (eb & 1) * 2048))
            o.append('buffer_load_dwordx4 %s, %s, %s, %s offen offset:%d sc1' % (vr(KXB + 4 * eb, 4), vr(va_kx), sr(SRD_WS, 4), sr(so), (eb & 1) * 2048 + 128))
        for T in range(8):
            eb = T >> 1
            so = s_kx if eb < 2 else s_kx2
            o.append('buffer_load_dwordx4 %s, %s, %s, %s offen offset:%d sc1' % (vr(VXR + 4 * T, 4), vr(va_vx), sr(SRD_WS, 4), sr(so), (eb & 1) * 2048 + (T & 1) * 256))
        return o

    def emit(t):
        A(t)
        if t.startswith('buffer_'):
            nvm[0] += 1

    A('s_mov_b32 %s, 0' % sr(s_step))
    A('s_mov_b32 %s, 0x40404044' % sr(s_kvm))
    A('s_mov_b32 %s, 0x00404040' % sr(s_kvm + 1))
    A('s_mov_b32 %s, 0' % sr(s_slot))
    A('s_mov_b32 %s, 0x20000' % sr(s_slot1))
    A('s_mov_b32 %s, 0x40000' % sr(s_slot2))
    A('s_mov_b32 %s, 0' % sr(s_slotp))
    A('s_mov_b32 %s, 0' % sr(s_kx))
    A('s_mov_b32 %s, 4096' % sr(s_kx2))
    A('s_mov_b32 %s, 0' % sr(s_out))
    A('s_mov_b32 %s, 0x%x' % (sr(s_outp), WS_BYTES))
    A('s_mov_b32 %s, 0' % sr(s_ps))
    A('s_mov_b32 %s, 0x80000' % sr(s_ps2))
    A('s_mov_b32 %s, %d' % (sr(s_kvo), DBG_KV0 * 128))

    def kv_wait(tag):
        Lw, Ld, L0 = A.uid('kvw' + tag), A.uid('kvd' + tag), A.uid('kv0' + tag)
        A('s_mov_b32 %s, 0' % sr(s_cnt))
        A('s_branch ' + L0)
        A.label(Lw)
        A('s_sleep 6')
        A.label(L0)
        A('buffer_load_dword %s, %s, %s, %s offen sc1' % (vr(v_kvf), vr(v_sh), sr(SRD_WS, 4), sr(s_kvo)))
        A('s_add_u32 %s, %s, 1' % (sr(s_cnt), sr(s_cnt)))
        A('s_cmp_gt_u32 %s, %s' % (sr(s_cnt), sr(s_lim)))
        A('s_cbranch_scc1 ' + Ld)
        A('s_waitcnt vmcnt(0)')
        A('v_cmp_gt_u32 vcc, 32, %s' % vr(v_kvf))
        A('s_cbranch_vccnz ' + Lw)
        A.label(Ld)
        A('s_waitcnt vmcnt(0)')
    stamp(7)
    place_check(A, SRD_T, v_lane, v_t[0], v_t[1], s_cnt, POLL_LIMIT, L_restart)
    L_rdy, L_rdy_done, L_rdy0 = A.uid('rdy'), A.uid('rdyd'), A.uid('rdy0')
    A('v_mov_b32 %s, 32' % vr(v_t[0]))
    A('s_mov_b32 %s, 0' % sr(s_cnt))
    A('s_branch ' + L_rdy0)
    A.label(L_rdy)
    A('s_sleep 6')
    A.label(L_rdy0)
    A('buffer_load_dword %s, %s, %s, 0 offen sc1' % (vr(acc1 + 1), vr(v_t[0]), sr(SRD_T, 4)))
    A('s_add_u32 %s, %s, 1' % (sr(s_cnt), sr(s_cnt)))
    A('s_cmp_gt_u32 %s, %s' % (sr(s_cnt), sr(s_lim)))
    A('s_cbranch_scc1 ' + L_rdy_done)
    A('s_waitcnt vmcnt(0)')
    A('v_and_b32 %s, 0xffff, %s' % (vr(acc1), vr(acc1 + 1)))
    A('v_cmp_gt_u32 vcc, 128, %s' % vr(acc1))
    A('s_cbranch_vccnz ' + L_rdy)
    A.label(L_rdy_done)
    A('s_waitcnt vmcnt(0)')
    A('v_lshrrev_b32 %s, 16, %s' % (vr(acc1), vr(acc1 + 1)))
    A('v_cmp_%s_u32 vcc, 16, %s' % ('lt' if NEARX else 'ge', vr(acc1)))
    A('v_mov_b32 %s, 8192' % vr(acc1 + 1))
    A('v_cndmask_b32 %s, 0, %s, vcc' % (vr(acc1), vr(acc1 + 1)))
    A('v_add_u32 %s, %s, %s' % (vr(va_pr), vr(va_pr), vr(acc1)))
    A('v_add_u32 %s, %s, %s' % (vr(va_pw), vr(va_pw), vr(acc1)))
    A('v_mul_u32_u24 %s, 252, %s' % (vr(acc1), vr(v_g)))
    A('v_sub_u32 %s, %s, %s' % (vr(va_pd), vr(va_pw), vr(acc1)))
    A('v_and_b32 %s, 0x%x, %s' % (vr(va_pd), 0xffffffff ^ 16384, vr(va_pd)))
    A('v_lshlrev_b32 %s, 8, %s' % (vr(acc1), vr(v_g)))
    A('v_sub_u32 %s, %s, %s' % (vr(va_pz), vr(va_pw), vr(acc1)))
    A('v_and_b32 %s, 1, %s' % (vr(acc1), vr(v_g)))
    A('v_lshlrev_b32 %s, 14, %s' % (vr(acc1), vr(acc1)))
    A('v_xor_b32 %s, %s, %s' % (vr(va_pz), vr(va_pz), vr(acc1)))
    A('v_lshrrev_b32 %s, 1, %s' % (vr(acc1), vr(v_g)))
    A('v_lshl_add_u32 %s, %s, 28, %s' % (vr(va_pz), vr(acc1), vr(va_pz)))
    A('v_add_u32 %s, 16384, %s' % (vr(va_pw), vr(va_pd)))
    A('v_lshlrev_b32 %s, 2, %s' % (vr(acc1), vr(v_g)))
    A('v_sub_u32 %s, %s, %s' % (vr(va_pg), vr(va_pd), vr(acc1)))
    A('v_lshrrev_b32 %s, 1, %s' % (vr(acc1), vr(v_g)))
    A('v_lshl_add_u32 %s, %s, 14, %s' % (vr(va_pg), vr(acc1), vr(va_pg)))
    A('v_and_b32 %s, 1, %s' % (vr(acc1), vr(v_g)))
    A('v_lshl_add_u32 %s, %s, 28, %s' % (vr(va_pg), vr(acc1), vr(va_pg)))
    dbgt(9)
    kv_wait('0')
    stamp(9)
    dbgt(11)

    ool = []

    def poll(n, load, base, tag, on_ok=None, back=0):
        Lk = [A.uid('poll%s%d' % (tag, k)) for k in range(n)]
        Lc = [A.uid('chk%s%d' % (tag, k)) for k in range(n)]
        Lo = [A.uid('ok%s%d' % (tag, k)) for k in range(n)]
        Lfs = [A.uid('pollf%s%d' % (tag, k)) for k in range(n)]

        def issue(m):
            A.label(Lk[m])
            if back:
                A('s_sleep %d' % back)
            for k in range(m, n):
                A(load(k))
            A('s_add_u32 %s, %s, 1' % (sr(s_cnt), sr(s_cnt)))
            A('s_cmp_gt_u32 %s, %s' % (sr(s_cnt), sr(s_lim)))
            A('s_cbranch_scc1 ' + Lfs[m])
        A('s_mov_b32 %s, 0' % sr(s_cnt))
        issue(0)
        for m in range(n):
            A.label(Lc[m])
            A('s_waitcnt vmcnt(%d)' % (n - 1 - m))
            b = base + 4 * m
            A('v_max3_u32 %s, %s, %s, %s' % (vr(v_t[0]), vr(b), vr(b + 1), vr(b + 2)))
            A('v_max_u32 %s, %s, %s' % (vr(v_t[0]), vr(v_t[0]), vr(b + 3)))
            A('v_cmp_eq_u32 vcc, -1, %s' % vr(v_t[0]))
            A('s_cbranch_vccnz ' + Lk[m])
            A.label(Lo[m])
            if on_ok:
                on_ok(m)

        def tail():
            for m in range(1, n):
                issue(m)
                A('s_branch ' + Lc[m])
            for m in range(n):
                A.label(Lfs[m])
                A('s_mov_b32 %s, 0' % sr(s_lim))
                A('s_waitcnt vmcnt(0)')
                A('s_branch ' + Lo[m])
        ool.append(tail)

    def smf(acc, a, w):
        return 'v_smfmac_f32_16x16x64_bf16 %s, %s, %s, %s' % (vr(acc, 4), vr(a, 4), ar(w, 8), vr(v_idx))

    def okA(k):
        for tl in range(4):
            A(smf(AC + 4 * tl, M + 4 * k, W1 + 8 * (k * 4 + tl)))

    def pollA2():
        ld = lambda k: 'buffer_load_dwordx4 %s, %s, %s, %s offen offset:%d sc1' % (vr(M + 4 * k, 4), vr(va_memr), sr(SRD_WS, 4), sr(s_slot), k * 1024)
        Lr = [A.uid('rA%d' % k) for k in range(4)]
        Lo = [A.uid('oA%d' % k) for k in range(4)]

        def chk(k):
            b = M + 4 * k
            return ['s_waitcnt vmcnt(%d)' % (3 - k),
                    'v_max3_u32 %s, %s, %s, %s' % (vr(v_t[0]), vr(b), vr(b + 1), vr(b + 2)),
                    'v_max_u32 %s, %s, %s' % (vr(v_t[0]), vr(v_t[0]), vr(b + 3)),
                    'v_cmp_eq_u32 vcc, -1, %s' % vr(v_t[0])]
        A('s_mov_b32 %s, 1' % sr(s_cnt))
        for k in range(4):
            A(ld(k))
        for t in chk(0):
            A(t)
        for k in range(4):
            A('s_cbranch_vccnz ' + Lr[k])
            A.label(Lo[k])
            c = chk(k + 1) if k < 3 else []
            for tl in range(4):
                A(smf(AC + 4 * tl, M + 4 * k, W1 + 8 * (k * 4 + tl)))
                if c and tl < 3:
                    if tl == 0:
                        A(c.pop(0))
                    A(c.pop(0))

        def tail():
            for k in range(4):
                A.label(Lr[k])
                for m in range(k, 4):
                    A(ld(m))
                A('s_add_u32 %s, %s, 1' % (sr(s_cnt), sr(s_cnt)))
                for t in chk(k):
                    A(t)
                A('s_cbranch_vccz ' + Lo[k])
                A('s_cmp_le_u32 %s, %s' % (sr(s_cnt), sr(s_lim)))
                A('s_cbranch_scc1 ' + Lr[k])
                A('s_mov_b32 %s, 0' % sr(s_lim))
                A('s_branch ' + Lo[k])
        ool.append(tail)

    def advance():
        A('s_add_u32 %s, %s, 1' % (sr(s_step), sr(s_step)))
        A('s_mov_b32 %s, %s' % (sr(s_slotp), sr(s_slot)))
        A('s_mov_b32 %s, %s' % (sr(s_outp), sr(s_out)))
        A('s_mov_b32 %s, %s' % (sr(s_slot), sr(s_slot1)))
        A('s_mov_b32 %s, %s' % (sr(s_slot1), sr(s_slot2)))
        A('s_add_u32 %s, %s, 0x20000' % (sr(s_slot2), sr(s_slot2)))
        A('s_and_b32 %s, %s, 0x7ffff' % (sr(s_slot2), sr(s_slot2)))
        A('s_add_u32 %s, %s, 0x20000' % (sr(s_out), sr(s_out)))
        A('s_lshl_b32 %s, %s, 1' % (sr(s_ps), sr(s_slot)))
        A('s_lshl_b32 %s, %s, 1' % (sr(s_ps2), sr(s_slot2)))
        if stamps:
            A('s_add_u32 %s, %s, 64' % (sr(s_stl), sr(s_stl)))

    def ha_write(tl):
        return ['v_permlane32_swap_b32 %s, %s' % (vr(AC + 4 * tl), vr(AC + 4 * tl + 2)),
                'v_permlane32_swap_b32 %s, %s' % (vr(AC + 4 * tl + 1), vr(AC + 4 * tl + 3)),
                'v_pk_add_f32 %s, %s, %s' % (vr(HA + 2 * tl, 2), vr(AC + 4 * tl, 2), vr(AC + 4 * tl + 2, 2)),
                'ds_write_b64 %s, %s offset:%d' % (vr(va_rw), vr(HA + 2 * tl, 2), tl * 512)]

    def kv_stuff():
        L_kvok, L_kvslow, L_nokv, L_dokv = A.uid('kvok'), A.uid('kvslow'), A.uid('nokv'), A.uid('dokv')
        A('v_cmp_gt_u32 vcc, 32, %s' % vr(v_kvf))
        A('s_cbranch_vccnz ' + L_kvslow)
        A.label(L_kvok)
        A('s_bitcmp1_b64 %s, %s' % (sr(s_kvm, 2), sr(s_step)))
        A('s_cbranch_scc1 ' + L_dokv)
        A.label(L_nokv)

        def t():
            A.label(L_kvslow)
            kv_wait('s')
            A('s_branch ' + L_kvok)
            A.label(L_dokv)
            A('s_add_u32 %s, %s, 2' % (sr(s_kvo), sr(s_step)))
            A('s_lshr_b32 %s, %s, 3' % (sr(s_kvo), sr(s_kvo)))
            A('s_lshl_b32 %s, %s, 9' % (sr(s_kvo), sr(s_kvo)))
            A('s_add_u32 %s, %s, %d' % (sr(s_kvo), sr(s_kvo), DBG_KV * 128))
            A('buffer_load_dword %s, %s, %s, %s offen sc1' % (vr(v_kvf), vr(v_sh), sr(SRD_WS, 4), sr(s_kvo)))
            A('s_branch ' + L_nokv)
        ool.append(t)

    L_lastR, L_lastN, L_fin = name + '_lastR', name + '_lastN', name + '_fin'

    def loop(red, fl):
        tg = ('r' if red else 'n') + ('f' if fl else '')
        ISC = ' sc1' if fl else ''
        nacc = 32 if red else 16
        L_st, L_B = name + '_step' + tg, name + '_B' + tg

        def zero_acc():
            for i in range(nacc):
                A('v_mov_b32 %s, 0' % vr(AC + i))
        A.label(name + '_first' + tg)
        if not red:
            for t in pf_ops():
                A(t)
        zero_acc()
        for k in range(4):
            okA(k)
        A('s_branch ' + L_B)
        A.label(L_st)
        zero_acc()
        if A2:
            pollA2()
        else:
            poll(4, lambda k: 'buffer_load_dwordx4 %s, %s, %s, %s offen offset:%d sc1' % (vr(M + 4 * k, 4), vr(va_memr), sr(SRD_WS, 4), sr(s_slot), k * 1024), M, 'A', okA)
        A.label(L_B)
        stamp(0)
        vs = [smf(AC + 16 + 4 * tv, M + 4 * k, W2 + 8 * (k * 4 + tv)) for tv in range(4) for k in range(4)] if red else []
        ne = VS[0]
        for tl in range(4):
            h = ha_write(tl)
            if vs and ne > 0:
                A(vs.pop(0))
                ne -= 1
            A(h[0])
            A(h[1])
            if vs and ne > 3 - tl:
                A(vs.pop(0))
                ne -= 1
            A(h[2])
            A(h[3])
        for _ in range(VS[1]):
            if vs:
                A(vs.pop(0))
        A('s_waitcnt lgkmcnt(0)')
        A('s_barrier')
        A('ds_read_b128 %s, %s' % (vr(RD, 4), vr(va_rr)))
        A('ds_read_b128 %s, %s offset:4096' % (vr(RD + 4, 4), vr(va_rr)))
        for _ in range(VS[2]):
            if vs:
                A(vs.pop(0))
        A('s_waitcnt lgkmcnt(0)')
        A('v_pk_add_f32 %s, %s, %s' % (vr(RD, 2), vr(RD, 2), vr(RD + 4, 2)))
        A('v_pk_add_f32 %s, %s, %s' % (vr(RD + 2, 2), vr(RD + 2, 2), vr(RD + 6, 2)))
        A('v_permlane32_swap_b32 %s, %s' % (vr(RD), vr(RD + 1)))
        A('v_permlane32_swap_b32 %s, %s' % (vr(RD + 2), vr(RD + 3)))
        A('v_add_f32 %s, %s, %s' % (vr(v_t[0]), vr(RD), vr(RD + 1)))
        A('v_add_f32 %s, %s, %s' % (vr(v_t[1]), vr(RD + 2), vr(RD + 3)))
        A('v_cvt_pk_bf16_f32 %s, %s, %s' % (vr(v_t[2]), vr(v_t[0]), vr(v_t[1])))
        A('v_pk_min_u16 %s, %s, %s' % (vr(v_t[2]), vr(v_t[2]), sr(s_fffe)))
        A('buffer_store_dword %s, %s, %s, %s offen%s' % (vr(v_t[2]), vr(va_qks), sr(SRD_WS, 4), sr(s_slot), ISC))
        if red:
            for tv in range(4):
                while vs and len(vs) > 4 * (3 - tv) - 4:
                    A(vs.pop(0))
                for t in ha_write(4 + tv):
                    A(t)
            A('s_waitcnt lgkmcnt(0)')
            A('s_barrier')
            A('ds_read_b128 %s, %s offset:2048' % (vr(RD, 4), vr(va_rr)))
            A('ds_read_b128 %s, %s offset:6144' % (vr(RD + 4, 4), vr(va_rr)))
            A('s_waitcnt lgkmcnt(0)')
            A('v_pk_add_f32 %s, %s, %s' % (vr(RD, 2), vr(RD, 2), vr(RD + 4, 2)))
            A('v_pk_add_f32 %s, %s, %s' % (vr(RD + 2, 2), vr(RD + 2, 2), vr(RD + 6, 2)))
            A('v_permlane32_swap_b32 %s, %s' % (vr(RD), vr(RD + 2)))
            A('v_permlane32_swap_b32 %s, %s' % (vr(RD + 1), vr(RD + 3)))
            A('v_pk_add_f32 %s, %s, %s' % (vr(RD, 2), vr(RD, 2), vr(RD + 2, 2)))
            A('v_cvt_pk_bf16_f32 %s, %s, %s' % (vr(v_t[3]), vr(RD), vr(RD + 1)))
            A('v_pk_min_u16 %s, %s, %s' % (vr(v_t[3]), vr(v_t[3]), sr(s_fffe)))
            A('buffer_store_dword %s, %s, %s, %s offen%s' % (vr(v_t[3]), vr(va_vs), sr(SRD_WS, 4), sr(s_slot), ISC))
            stamp(1)
            A('buffer_load_dwordx4 %s, %s, %s, %s offen sc1' % (vr(RB, 4), vr(va_rb), sr(SRD_WS, 4), sr(s_slotp)))
            A('v_mov_b32 %s, %s' % (vr(v_junk2), sr(s_step)))
            A('s_waitcnt vmcnt(0)')
            A('s_barrier')
            A('buffer_store_dwordx4 %s, %s, %s, %s offen sc1' % (vr(RB, 4), vr(va_cp), sr(SRD_WS, 4), sr(s_outp)))
            A('buffer_store_dword %s, %s, %s, 0 offen sc1' % (vr(v_junk2), vr(va_prog), sr(SRD_WS, 4)))
            A('s_cmp_ge_u32 %s, %d' % (sr(s_step), nsteps - 1))
            A('s_cbranch_scc1 ' + L_lastR)
            A('s_add_u32 %s, %s, 0x40000' % (sr(s_kx), sr(s_kx)))
            kv_stuff()
            A('buffer_load_dword %s, %s, %s, %s offen sc1' % (vr(v_junk), vr(va_warm), sr(SRD_WS, 4), sr(s_kx)))
            A('buffer_store_dwordx4 %s, %s, %s, %s offen sc1' % (vr(v_m1, 4), vr(va_pz), sr(SRD_WS, 4), sr(s_ps2)))
            A('buffer_store_dwordx4 %s, %s, %s, %s offen%s' % (vr(v_m1, 4), vr(va_rb), sr(SRD_WS, 4), sr(s_slot2), ISC))
            A('buffer_store_dword %s, %s, %s, %s offen%s' % (vr(v_m1), vr(va_mems), sr(SRD_WS, 4), sr(s_slot2), ISC))
            if DELAY_E:
                A('s_sleep %d' % DELAY_E)
            if HINT:
                Lh, Lhd = A.uid('h'), A.uid('hd')
                A('s_mov_b32 %s, 0' % sr(s_cnt))
                A.label(Lh)
                A('buffer_load_dword %s, %s, %s, 0 offen sc1' % (vr(v_t[0]), vr(va_flg), sr(SRD_WS, 4)))
                A('s_add_u32 %s, %s, 1' % (sr(s_cnt), sr(s_cnt)))
                A('s_cmp_gt_u32 %s, %s' % (sr(s_cnt), sr(s_lim)))
                A('s_cbranch_scc1 ' + Lhd)
                A('s_waitcnt vmcnt(0)')
                A('v_cmp_ne_u32 vcc, %s, %s' % (sr(s_step), vr(v_t[0])))
                A('s_cbranch_vccnz ' + Lh)
                A.label(Lhd)
                if HINT > 1:
                    A('s_sleep %d' % (HINT - 1))

            def okE(k):
                A('v_mfma_f32_16x16x32_bf16 %s, %s, %s, %s' % (vr(LS, 4), vr(PR + 4 * k, 4), vr(v_sel, 4), '0' if k == 0 else vr(LS, 4)))
            poll(2, lambda k: 'buffer_load_dwordx4 %s, %s, %s, %s offen offset:%d sc1' % (vr(PR + 4 * k, 4), vr(va_pr), sr(SRD_WS, 4), sr(s_ps), k * 1024), PR, 'E', okE, back=E_BACK)
            stamp(6)
            advance()
            A('v_cvt_pk_bf16_f32 %s, %s, %s' % (vr(v_t[2]), vr(LS), vr(LS + 1)))
            A('v_cvt_pk_bf16_f32 %s, %s, %s' % (vr(v_t[3]), vr(LS + 2), vr(LS + 3)))
            A('v_cndmask_b32 %s, %s, %s, %s' % (vr(v_t[2]), vr(v_t[2]), vr(v_t[3]), sr(s_hf, 2)))
            A('v_pk_min_u16 %s, %s, %s' % (vr(v_t[2]), vr(v_t[2]), sr(s_fffe)))
            A('buffer_store_dword %s, %s, %s, %s offen%s' % (vr(v_t[2]), vr(va_mems), sr(SRD_WS, 4), sr(s_slot), ISC))
            if RED_SLEEP:
                A('s_sleep %d' % RED_SLEEP)
            A('s_branch ' + L_st)
            return
        stamp(1)
        A('s_cmp_ge_u32 %s, %d' % (sr(s_step), nsteps - 1))
        A('s_cbranch_scc1 ' + L_lastN)
        A('s_add_u32 %s, %s, 0x40000' % (sr(s_kx), sr(s_kx)))
        A('s_add_u32 %s, %s, 0x40000' % (sr(s_kx2), sr(s_kx2)))
        for i in range(4):
            A('v_mov_b32 %s, 0' % vr(acc1 + i))
            A('v_mov_b32 %s, 0' % vr(acc2 + i))
        A('v_mov_b32 %s, %s' % (vr(v_junk2), sr(s_step)))
        if DELAY_C:
            A('s_sleep %d' % DELAY_C)
        Lc, Lcf, Lcd = A.uid('pC'), A.uid('pCf'), A.uid('pCd')
        A('s_mov_b32 %s, 1' % sr(s_cnt))
        A.label(Lc)
        for k in range(4):
            A('buffer_load_dwordx4 %s, %s, %s, %s offen offset:%d sc1' % (vr(QK + 4 * k, 4), vr(va_qkr), sr(SRD_WS, 4), sr(s_slot), k * 1024))
        for t in range(4):
            A('s_waitcnt vmcnt(%d)' % (3 - t))
            q = QK + 4 * t
            A('v_mfma_f32_16x16x32_bf16 %s, %s, %s, %s' % (vr(SA, 4), vr(KXA + 4 * t, 4), vr(q, 4), vr(v_maskx, 4) if t == 0 else vr(SA, 4)))
            if t == 0:
                A('v_max3_u32 %s, %s, %s, %s' % (vr(v_t[0]), vr(q), vr(q + 1), vr(q + 2)))
            else:
                A('v_max3_u32 %s, %s, %s, %s' % (vr(v_t[0]), vr(v_t[0]), vr(q), vr(q + 1)))
            A('v_mfma_f32_16x16x32_bf16 %s, %s, %s, %s' % (vr(SB, 4), vr(KXB + 4 * t, 4), vr(q, 4), vr(v_maskx, 4) if t == 0 else vr(SB, 4)))
            if t == 0:
                A('v_max_u32 %s, %s, %s' % (vr(v_t[0]), vr(v_t[0]), vr(q + 3)))
            else:
                A('v_max3_u32 %s, %s, %s, %s' % (vr(v_t[0]), vr(v_t[0]), vr(q + 2), vr(q + 3)))
            if t == 3:
                A('v_cmp_eq_u32 vcc, -1, %s' % vr(v_t[0]))
            A('v_mfma_f32_16x16x32_bf16 %s, %s, %s, %s' % (vr(SM, 4), vr(q, 4), vr(q, 4), vr(v_mask, 4) if t == 0 else vr(SM, 4)))
        A('s_cbranch_vccnz ' + Lcf)
        A.label(Lcd)

        def tailC():
            A.label(Lcf)
            A('s_add_u32 %s, %s, 1' % (sr(s_cnt), sr(s_cnt)))
            A('s_cmp_le_u32 %s, %s' % (sr(s_cnt), sr(s_lim)))
            A('s_cbranch_scc1 ' + Lc)
            A('s_mov_b32 %s, 0' % sr(s_lim))
            A('s_branch ' + Lcd)
        ool.append(tailC)
        stamp(2)

        def vload(k):
            return 'buffer_load_dwordx4 %s, %s, %s, %s offen offset:%d sc1' % (vr(VMR + 4 * k, 4), vr(va_vmr), sr(SRD_WS, 4), sr(s_slot), k * 1024)
        side = pf_ops() if not NOPF else []
        s = [SA + i for i in range(12)]
        sm = []
        sm.append('v_max3_f32 %s, %s, %s, %s' % (vr(v_mx), vr(s[0]), vr(s[1]), vr(s[2])))
        sm.append('v_max3_f32 %s, %s, %s, %s' % (vr(v_mx2), vr(s[3]), vr(s[4]), vr(v_bias)))
        sm.append('v_max3_f32 %s, %s, %s, %s' % (vr(v_mx), vr(v_mx), vr(s[5]), vr(s[6])))
        sm.append('v_max3_f32 %s, %s, %s, %s' % (vr(v_mx2), vr(v_mx2), vr(s[7]), vr(s[8])))
        sm.append('v_max3_f32 %s, %s, %s, %s' % (vr(v_mx), vr(v_mx), vr(s[9]), vr(s[10])))
        sm.append('v_max3_f32 %s, %s, %s, %s' % (vr(v_mx), vr(v_mx), vr(v_mx2), vr(s[11])))
        for sw in ('v_permlane32_swap_b32', 'v_permlane16_swap_b32'):
            sm.append('v_mov_b32 %s, %s' % (vr(v_mx2), vr(v_mx)))
            sm.append('%s %s, %s' % (sw, vr(v_mx), vr(v_mx2)))
            sm.append('v_max_f32 %s, %s, %s' % (vr(v_mx), vr(v_mx), vr(v_mx2)))
        sm.append('v_mul_f32 %s, %s, %s' % (vr(v_mx), sr(s_c), vr(v_mx)))
        for i in range(8):
            sm.append('v_fma_f32 %s, %s, %s, -%s' % (vr(s[i]), vr(s[i]), sr(s_c), vr(v_mx)))
        for i in range(8):
            sm.append('v_exp_f32 %s, %s' % (vr(s[i]), vr(s[i])))
            if i >= 2 and i % 2 == 0:
                sm.append('v_cvt_pk_bf16_f32 %s, %s, %s' % (vr(PX + i // 2 - 1), vr(s[i - 2]), vr(s[i - 1])))
        sm.append('v_fma_f32 %s, %s, %s, -%s' % (vr(s[8]), vr(s[8]), sr(s_c), vr(v_mx)))
        sm.append('v_cvt_pk_bf16_f32 %s, %s, %s' % (vr(PX + 3), vr(s[6]), vr(s[7])))
        sm.append('v_fma_f32 %s, %s, %s, -%s' % (vr(s[9]), vr(s[9]), sr(s_c), vr(v_mx)))
        for i, m in enumerate(sm):
            if i == DELAY_V:
                A(vload(0))
                A(vload(1))
            A(m)
        stamp(3)

        def dpp8(d, srcr):
            return 'v_mov_b32_dpp %s, %s row_shr:8 row_mask:0xf bank_mask:0xf bound_ctrl:0' % (vr(d), vr(srcr))
        t = v_t
        sh = []
        for i in range(10, 12):
            sh.append('v_fma_f32 %s, %s, %s, -%s' % (vr(s[i]), vr(s[i]), sr(s_c), vr(v_mx)))
        for i in range(4):
            sh.append(dpp8(PXH + i, PX + i))
        for i in range(8, 12):
            sh.append('v_exp_f32 %s, %s' % (vr(s[i]), vr(s[i])))
        for i in range(2):
            sh.append('v_cvt_pk_bf16_f32 %s, %s, %s' % (vr(PM + i), vr(s[8 + 2 * i]), vr(s[9 + 2 * i])))
        sh.append('s_waitcnt vmcnt(0)')
        sh.append('v_max3_u32 %s, %s, %s, %s' % (vr(t[0]), vr(VMR), vr(VMR + 1), vr(VMR + 2)))
        sh.append('v_max3_u32 %s, %s, %s, %s' % (vr(t[1]), vr(VMR + 3), vr(VMR + 4), vr(VMR + 5)))
        sh.append(dpp8(PMH, PM))
        sh.append(dpp8(PMH + 1, PM + 1))
        sh.append('v_max3_u32 %s, %s, %s, %s' % (vr(t[0]), vr(t[0]), vr(VMR + 6), vr(VMR + 7)))
        sh.append('v_max_u32 %s, %s, %s' % (vr(t[0]), vr(t[0]), vr(t[1])))
        sh.append('v_permlane32_swap_b32 %s, %s' % (vr(PMH), vr(PM)))
        sh.append('v_permlane32_swap_b32 %s, %s' % (vr(PMH + 1), vr(PM + 1)))
        sh.append('v_cmp_eq_u32 vcc, -1, %s' % vr(t[0]))
        mf = ['v_mfma_f32_16x16x32_bf16 %s, %s, %s, 0' % (vr(LS, 4), vr(v_ones, 4), vr(PX, 4))]
        for a in range(4):
            mf.append('v_mfma_f32_16x16x32_bf16 %s, %s, %s, 0' % (vr(O + 4 * a, 4), vr(VXR + 4 * a, 4), vr(PX, 4)))
        for a in range(4):
            mf.append('v_mfma_f32_16x16x32_bf16 %s, %s, %s, %s' % (vr(O + 4 * a, 4), vr(VXR + 4 * (a + 4), 4), vr(PXH, 4), vr(O + 4 * a, 4)))
        per = [3, 3, 2, 2, 2, 2, 3, 3, 1]
        for i, m in enumerate(mf):
            A(m)
            for _ in range(per[i]):
                if sh:
                    x = sh.pop(0)
                    if x.startswith('s_waitcnt'):
                        A(x)
                        x = sh.pop(0)
                    A(x)
        assert not sh
        Lv_ok, Lv_slow = A.uid('vok'), A.uid('vslow')
        A('s_cbranch_vccnz ' + Lv_slow)
        A.label(Lv_ok)

        def tailV():
            A.label(Lv_slow)
            poll(2, vload, VMR, 'V')
            A('s_branch ' + Lv_ok)
        ool.append(tailV)
        A('v_mfma_f32_16x16x16_bf16 %s, %s, %s, %s' % (vr(LS, 4), vr(v_ones, 2), vr(PM, 2), vr(LS, 4)))
        for a in range(4):
            A('v_mfma_f32_16x16x16_bf16 %s, %s, %s, %s' % (vr(O + 4 * a, 4), vr(VMR + 2 * a, 2), vr(PM, 2), vr(O + 4 * a, 4)))
        A('v_rcp_f32 %s, %s' % (vr(v_l), vr(LS)))
        A('v_mov_b32_dpp %s, %s row_shr:8 row_mask:0xf bank_mask:0xc' % (vr(v_l), vr(v_l)))
        for a in range(4):
            for r in range(0, 4, 2):
                A('v_pk_mul_f32 %s, %s, %s op_sel_hi:[1,0]' % (vr(O + 4 * a + r, 2), vr(O + 4 * a + r, 2), vr(v_l, 2)))
            A('v_cvt_pk_bf16_f32 %s, %s, %s' % (vr(XY + a), vr(O + 4 * a), vr(O + 4 * a + 1)))
            A('v_cvt_pk_bf16_f32 %s, %s, %s' % (vr(XY + 4 + a), vr(O + 4 * a + 2), vr(O + 4 * a + 3)))
        A('ds_write_b128 %s, %s' % (vr(va_ow), vr(XY, 4)))
        A('ds_write_b128 %s, %s offset:128' % (vr(va_ow), vr(XY + 4, 4)))
        A('s_waitcnt lgkmcnt(0)')
        stamp(4)
        A('s_barrier')
        if HINT:
            A('buffer_store_dword %s, %s, %s, 0 offen%s' % (vr(v_junk2), vr(va_flg), sr(SRD_WS, 4), ISC))
        for k in range(8):
            A('ds_read_b128 %s, %s offset:%d' % (vr(G + 4 * k, 4), vr(va_or), k * 1024))
        def epi3(acc, va):
            return ['v_permlane32_swap_b32 %s, %s' % (vr(acc), vr(acc + 2)),
                    'v_permlane32_swap_b32 %s, %s' % (vr(acc + 1), vr(acc + 3)),
                    'v_pk_add_f32 %s, %s, %s' % (vr(acc, 2), vr(acc, 2), vr(acc + 2, 2)),
                    'v_cvt_pk_bf16_f32 %s, %s, %s' % (vr(acc), vr(acc), vr(acc + 1)),
                    'v_pk_min_u16 %s, %s, %s' % (vr(acc), vr(acc), sr(s_fffe)),
                    'buffer_store_dword %s, %s, %s, %s offen sc1' % (vr(acc), vr(va), sr(SRD_WS, 4), sr(s_ps))]
        if S3 == 2:
            D = VMR
            for k in range(8):
                A('s_waitcnt lgkmcnt(%d)' % (7 - k))
                A(smf(acc1, G + 4 * k, W2 + 8 * (2 * k)))
                if k < 2:
                    A(smf(acc2, G + 4 * k, W2 + 8 * (2 * k + 1)))
            e1 = epi3(acc1, va_pd)[:3] + ['v_cvt_pk_bf16_f32 %s, %s, %s' % (vr(D), vr(acc1), vr(acc1 + 1)),
                                          'v_pk_min_u16 %s, %s, %s' % (vr(D), vr(D), sr(s_fffe))]
            for k in range(2, 8):
                A(smf(acc2, G + 4 * k, W2 + 8 * (2 * k + 1)))
                if k >= 4:
                    for _ in range(2):
                        if e1:
                            A(e1.pop(0))
            for t_ in e1 + epi3(acc2, va_pw)[:3]:
                A(t_)
            A('v_cvt_pk_bf16_f32 %s, %s, %s' % (vr(D + 2), vr(acc2), vr(acc2 + 1)))
            A('v_pk_min_u16 %s, %s, %s' % (vr(D + 2), vr(D + 2), sr(s_fffe)))
            A('v_permlane32_swap_b32 %s, %s' % (vr(D), vr(D + 2)))
            A('v_permlane16_swap_b32 %s, %s' % (vr(D), vr(D + 1)))
            A('v_permlane16_swap_b32 %s, %s' % (vr(D + 2), vr(D + 3)))
            A('buffer_store_dwordx4 %s, %s, %s, %s offen sc1' % (vr(D, 4), vr(va_pg), sr(SRD_WS, 4), sr(s_ps)))
        elif S3:
            for k in range(8):
                A('s_waitcnt lgkmcnt(%d)' % (7 - k))
                A(smf(acc1, G + 4 * k, W2 + 8 * (2 * k)))
                if k < 2:
                    A(smf(acc2, G + 4 * k, W2 + 8 * (2 * k + 1)))
            e1 = epi3(acc1, va_pd)
            for k in range(2, 8):
                A(smf(acc2, G + 4 * k, W2 + 8 * (2 * k + 1)))
                if k >= 4:
                    for _ in range(2):
                        if e1:
                            A(e1.pop(0))
            for t_ in e1 + epi3(acc2, va_pw):
                A(t_)
        else:
            for k in range(8):
                A('s_waitcnt lgkmcnt(%d)' % (7 - k))
                A(smf(acc1, G + 4 * k, W2 + 8 * (2 * k)))
                A(smf(acc2, G + 4 * k, W2 + 8 * (2 * k + 1)))
            for t_ in epi3(acc1, va_pd) + epi3(acc2, va_pw):
                A(t_)
        stamp(5)
        kv_stuff()
        for x in side:
            A(x)
        advance()
        if NOE_SLEEP:
            A('s_sleep %d' % NOE_SLEEP)
        A('s_branch ' + L_st)

    L_safe = A.uid('safe')
    A('s_cmp_lg_u32 s%d, 0' % S_MODE)
    A('s_cbranch_scc1 ' + L_safe)
    for fl in (False, True):
        if fl:
            A.label(L_safe)
        A('s_cmp_lg_u32 %s, 0' % sr(s_red))
        A('s_cbranch_scc1 ' + name + '_firstn' + ('f' if fl else ''))
        loop(True, fl)
        loop(False, fl)
        while ool:
            ool.pop(0)()
    A.label(L_lastN)
    A('s_waitcnt vmcnt(0)')
    A('s_barrier')
    A('s_cmp_lg_u32 %s, 0' % sr(s_w))
    A('s_cbranch_scc1 ' + L_fin)
    A.label(L_lastR)
    A('s_cmp_eq_u32 %s, 2' % sr(s_w))
    A('s_cbranch_scc1 ' + L_fin)
    A('buffer_load_dwordx4 %s, %s, %s, %s offen sc1' % (vr(M, 4), vr(va_rb), sr(SRD_WS, 4), sr(s_slot)))
    A('s_waitcnt vmcnt(0)')
    A('buffer_store_dwordx4 %s, %s, %s, %s offen sc1' % (vr(M, 4), vr(va_cp), sr(SRD_WS, 4), sr(s_out)))
    A.label(L_fin)
    if stamps:
        A('s_waitcnt lgkmcnt(0)')
        A('v_lshlrev_b32 %s, 4, %s' % (vr(v_t[0]), vr(v_lane)))
        A('s_lshl_b32 %s, %s, 12' % (sr(s_t2), sr(s_w)))
        A('s_add_u32 %s, %s, 65536' % (sr(s_t2), sr(s_t2)))
        A('v_add_u32 %s, %s, %s' % (vr(v_t[1]), sr(s_t2), vr(v_t[0])))
        for k in range(4):
            A('ds_read_b128 %s, %s offset:%d' % (vr(F + 4 * k, 4), vr(v_t[1]), k * 1024))
        A('s_waitcnt lgkmcnt(0)')
        for k in range(4):
            A('buffer_store_dwordx4 %s, %s, %s, %s offen offset:%d' % (vr(F + 4 * k, 4), vr(v_t[0]), sr(SRD_WS, 4), sr(s_stamp), k * 1024))
    A('s_waitcnt vmcnt(0) lgkmcnt(0)')
    A('s_barrier')
    A('s_cmp_lg_u32 %s, 0' % sr(s_w))
    A('s_cbranch_scc1 ' + L_work)
    dbgt(12)
    A('s_lshr_b32 %s, %s, 1' % (sr(s_t0), sr(s_x)))
    A('s_lshl_b32 %s, %s, 7' % (sr(s_t0), sr(s_t0)))
    A('s_add_u32 %s, %s, 0x%x' % (sr(s_t0), sr(s_t0), CTR + DBG_FIN * 128))
    A('v_mov_b32 %s, %s' % (vr(v_t[0]), sr(s_t0)))
    A('v_mov_b32 %s, 1' % vr(v_t[1]))
    A('s_mov_b64 exec, 1')
    A('buffer_atomic_add %s, %s, %s, 0 offen sc1' % (vr(v_t[1]), vr(v_t[0]), sr(SRD_WS, 4)))
    A('s_mov_b64 exec, -1')
    A('s_branch ' + L_work)
    A.label(L_exit)
    A('s_endpgm')
    A.label(L_work)
    worker(A, name)
    return dict(vgpr=512, accum=256, sgpr=102)
```

```python
from asmlib import *
from layout import *


import os
FAKE16 = int(os.environ.get('FAKE16', '0'))


class Gemm:
    def __init__(self, A, S, V, mb, nb, xsc='', nst=2):
        self.A, self.mb, self.nb = A, mb, nb
        self.nst = nst
        self.xsc = xsc
        self.TM, self.TN = 64 * mb, 64 * nb
        self.nX, self.nW = self.TM // 32, self.TN // 32
        self.XB = self.TM * 128
        self.WB = self.TN * 128
        self.STG = self.XB + self.WB
        self.wrow = self.TN * 2
        self.SRD_X = S.alloc(4, 4)
        self.SRD_W = S.alloc(4, 4)
        self.s_xo = S.alloc()
        self.s_wo = S.alloc()
        self.s_xs = S.alloc()
        self.s_ws = S.alloc()
        self.s_n = S.alloc()
        self.s_lx = S.alloc()
        self.s_lw = S.alloc()
        self.vx = [V.alloc() for _ in range(self.nX)]
        self.vw = [V.alloc() for _ in range(self.nW)]
        self.rx = [[V.alloc() for _ in range(4)] for _ in range(nst)]
        self.rw = [[[V.alloc() for _ in range(2)] for _ in range(nb)] for _ in range(nst)]
        self.FX = [V.alloc(4 * mb, 4) for _ in range(2)]
        self.FW = [V.alloc(4 * nb, 4) for _ in range(2)]
        self.t = [V.alloc() for _ in range(6)]
        self.E = V.alloc(24, 4)

    def acc(self, m, n):
        return 16 * (m * self.nb + n)

    def setup(self, v_lane, s_w, s_tmp, xmode, xpitch, wpitch):
        A, t = self.A, self.t
        nX, nW = self.nX, self.nW
        s0, s1 = s_tmp
        A('s_mul_i32 %s, %s, %d' % (sr(self.s_lx), sr(s_w), nX * 1024))
        A('s_mul_i32 %s, %s, %d' % (sr(self.s_lw), sr(s_w), nW * 1024))
        A('s_add_u32 %s, %s, %d' % (sr(self.s_lw), sr(self.s_lw), self.XB))
        if xmode == 'nat':
            A('v_lshrrev_b32 %s, 3, %s' % (vr(t[0]), vr(v_lane)))
            A('s_mul_i32 %s, %s, %d' % (sr(s0), sr(s_w), nX * 8))
            A('v_add_u32 %s, %s, %s' % (vr(t[0]), sr(s0), vr(t[0])))
            A('v_and_b32 %s, 7, %s' % (vr(t[1]), vr(v_lane)))
            A('s_mov_b32 %s, %d' % (sr(s1), xpitch))
            for i in range(nX):
                A('v_add_u32 %s, %d, %s' % (vr(t[2]), 8 * i, vr(t[0])))
                A('v_bfe_u32 %s, %s, 1, 3' % (vr(t[3]), vr(t[2])))
                A('v_xor_b32 %s, %s, %s' % (vr(t[3]), vr(t[3]), vr(t[1])))
                A('v_mul_lo_u32 %s, %s, %s' % (vr(t[2]), vr(t[2]), sr(s1)))
                A('v_lshl_add_u32 %s, %s, 4, %s' % (vr(self.vx[i]), vr(t[3]), vr(t[2])))
        else:
            A('v_lshlrev_b32 %s, 4, %s' % (vr(t[0]), vr(v_lane)))
            for i in range(nX):
                A('s_mul_i32 %s, %s, %d' % (sr(s0), sr(s_w), nX))
                A('s_add_u32 %s, %s, %d' % (sr(s0), sr(s0), i))
                A('s_lshr_b32 %s, %s, 2' % (sr(s1), sr(s0)))
                A('s_mul_i32 %s, %s, %d' % (sr(s1), sr(s1), xpitch))
                A('s_and_b32 %s, %s, 3' % (sr(s0), sr(s0)))
                A('s_lshl_b32 %s, %s, 10' % (sr(s0), sr(s0)))
                A('s_add_u32 %s, %s, %s' % (sr(s0), sr(s0), sr(s1)))
                A('v_add_u32 %s, %s, %s' % (vr(self.vx[i]), sr(s0), vr(t[0])))
        upr = self.wrow // 16
        rpi = 64 // upr
        sh = upr.bit_length() - 1
        A('v_lshrrev_b32 %s, %d, %s' % (vr(t[0]), sh, vr(v_lane)))
        A('s_mul_i32 %s, %s, %d' % (sr(s0), sr(s_w), nW * rpi))
        A('v_add_u32 %s, %s, %s' % (vr(t[0]), sr(s0), vr(t[0])))
        A('v_and_b32 %s, %d, %s' % (vr(t[1]), upr - 1, vr(v_lane)))
        A('s_mov_b32 %s, %d' % (sr(s1), wpitch))
        for i in range(nW):
            A('v_add_u32 %s, %d, %s' % (vr(t[2]), rpi * i, vr(t[0])))
            A('v_and_b32 %s, 3, %s' % (vr(t[3]), vr(t[2])))
            A('v_lshlrev_b32 %s, 2, %s' % (vr(t[3]), vr(t[3])))
            A('v_xor_b32 %s, %s, %s' % (vr(t[3]), vr(t[3]), vr(t[1])))
            A('v_mul_lo_u32 %s, %s, %s' % (vr(t[2]), vr(t[2]), sr(s1)))
            A('v_lshl_add_u32 %s, %s, 4, %s' % (vr(self.vw[i]), vr(t[3]), vr(t[2])))
        A('s_lshr_b32 %s, %s, 1' % (sr(s0), sr(s_w)))
        A('s_mul_i32 %s, %s, %d' % (sr(s0), sr(s0), self.mb * 4096))
        if xmode == 'nat':
            A('v_and_b32 %s, 31, %s' % (vr(t[0]), vr(v_lane)))
            A('v_lshrrev_b32 %s, 5, %s' % (vr(t[1]), vr(v_lane)))
            A('v_bfe_u32 %s, %s, 1, 3' % (vr(t[2]), vr(t[0])))
            A('v_lshlrev_b32 %s, 7, %s' % (vr(t[0]), vr(t[0])))
            A('v_add_u32 %s, %s, %s' % (vr(t[0]), sr(s0), vr(t[0])))
            for ks in range(4):
                A('v_add_u32 %s, %d, %s' % (vr(t[3]), 2 * ks, vr(t[1])))
                A('v_xor_b32 %s, %s, %s' % (vr(t[3]), vr(t[3]), vr(t[2])))
                A('v_lshl_add_u32 %s, %s, 4, %s' % (vr(self.rx[0][ks]), vr(t[3]), vr(t[0])))
                for st in range(1, self.nst):
                    A('v_add_u32 %s, %d, %s' % (vr(self.rx[st][ks]), st * self.STG, vr(self.rx[0][ks])))
        else:
            A('v_lshlrev_b32 %s, 4, %s' % (vr(t[0]), vr(v_lane)))
            A('v_add_u32 %s, %s, %s' % (vr(t[0]), sr(s0), vr(t[0])))
            for ks in range(4):
                for st in range(self.nst):
                    A('v_add_u32 %s, %d, %s' % (vr(self.rx[st][ks]), ks * 1024 + st * self.STG, vr(t[0])))
        hmul, qmul = (8, 4) if xmode == 'nat' else (4, 8)
        A('v_bfe_u32 %s, %s, 2, 2' % (vr(t[0]), vr(v_lane)))
        A('v_lshrrev_b32 %s, 5, %s' % (vr(t[1]), vr(v_lane)))
        A('v_mul_u32_u24 %s, %d, %s' % (vr(t[1]), hmul, vr(t[1])))
        A('v_add_u32 %s, %s, %s' % (vr(t[1]), vr(t[1]), vr(t[0])))
        A('v_mul_u32_u24 %s, %d, %s' % (vr(t[1]), self.wrow, vr(t[1])))
        A('v_bfe_u32 %s, %s, 4, 1' % (vr(t[2]), vr(v_lane)))
        A('v_lshl_add_u32 %s, %s, 5, %s' % (vr(t[1]), vr(t[2]), vr(t[1])))
        A('v_and_b32 %s, 3, %s' % (vr(t[2]), vr(v_lane)))
        A('v_lshl_add_u32 %s, %s, 3, %s' % (vr(t[1]), vr(t[2]), vr(t[1])))
        A('s_and_b32 %s, %s, 1' % (sr(s0), sr(s_w)))
        A('s_mul_i32 %s, %s, %d' % (sr(s0), sr(s0), self.nb))
        for i in range(self.nb):
            A('s_add_u32 %s, %s, %d' % (sr(s1), sr(s0), i))
            A('v_xor_b32 %s, %s, %s' % (vr(t[2]), sr(s1), vr(t[0])))
            A('v_lshl_add_u32 %s, %s, 6, %s' % (vr(t[2]), vr(t[2]), vr(t[1])))
            for q in range(2):
                for st in range(self.nst):
                    A('v_add_u32 %s, %d, %s' % (vr(self.rw[st][i][q]), self.XB + st * self.STG + q * qmul * self.wrow, vr(t[2])))

    def dma_ops(self, st):
        o = []
        for i in range(self.nX):
            o.append(['s_add_u32 m0, %s, %d' % (sr(self.s_lx), st * self.STG + i * 1024), 's_nop 0',
                      'buffer_load_dwordx4 %s, %s, %s offen%s lds' % (vr(self.vx[i]), sr(self.SRD_X, 4), sr(self.s_xo), self.xsc)])
        for i in range(self.nW):
            o.append(['s_add_u32 m0, %s, %d' % (sr(self.s_lw), st * self.STG + i * 1024), 's_nop 0',
                      'buffer_load_dwordx4 %s, %s, %s offen lds' % (vr(self.vw[i]), sr(self.SRD_W, 4), sr(self.s_wo))])
        return o

    def adv(self):
        return ['s_add_u32 %s, %s, %s' % (sr(self.s_xo), sr(self.s_xo), sr(self.s_xs)),
                's_add_u32 %s, %s, %s' % (sr(self.s_wo), sr(self.s_wo), sr(self.s_ws))]

    def read_ops(self, st, ks, fs):
        o = []
        xs = ['ds_read_b128 %s, %s offset:%d' % (vr(self.FX[fs] + 4 * m, 4), vr(self.rx[st][ks]), m * 4096) for m in range(self.mb)]
        wsr = []
        for i in range(self.nb):
            for q in range(2):
                wsr.append('ds_read_b64_tr_b16 %s, %s offset:%d' % (vr(self.FW[fs] + 4 * i + 2 * q, 2), vr(self.rw[st][i][q]), ks * 16 * self.wrow))
        while xs or wsr:
            if xs:
                o.append(xs.pop(0))
            for _ in range(2):
                if wsr:
                    o.append(wsr.pop(0))
        return o

    def mfmas(self, fs, orient, first):
        o = []
        for m in range(self.mb):
            for n in range(self.nb):
                a = ar(self.acc(m, n), 16)
                x, w = vr(self.FX[fs] + 4 * m, 4), vr(self.FW[fs] + 4 * n, 4)
                p, q = (w, x) if orient == 'T' else (x, w)
                if FAKE16:
                    for h in range(2):
                        a4 = ar(self.acc(m, n) + fs * 8 + 4 * h, 4)
                        x2 = vr(self.FX[fs] + 4 * ((m + h) % self.mb), 4)
                        o.append('v_mfma_f32_16x16x32_bf16 %s, %s, %s, %s' % (a4, w, x2, '0' if first else a4))
                    continue
                o.append('v_mfma_f32_32x32x16_bf16 %s, %s, %s, %s' % (a, p, q, '0' if first else a))
        return o

    def _weave(self, mf, side):
        A = self.A
        n = len(mf)
        k = len(side)
        per = [0] * n
        slots = max(1, n - 2)
        for j in range(k):
            per[min(n - 1, j * slots // max(k, 1))] += 1
        idx = 0
        for i, m in enumerate(mf):
            A(m)
            for _ in range(per[i]):
                it = side[idx]
                idx += 1
                for t in (it if isinstance(it, list) else [it]):
                    A(t)

    def body(self, st, orient, dma, first=False, last=False, ahead=None, hook=None):
        A = self.A
        pend = self.pending
        self.pending = [[], [], []]
        per = self.nX + self.nW
        if ahead is None:
            ahead = self.nst - 2
        nxt = (st + 1) % self.nst
        for ks in range(4):
            fs = ks & 1
            A('s_waitcnt lgkmcnt(0)')
            if ks == 3 and not last:
                A('s_waitcnt vmcnt(%d)' % (ahead * per))
                A('s_barrier')
                if hook:
                    hook()
            side = []
            if ks < 3:
                side += self.read_ops(st, ks + 1, fs ^ 1)
                side = self._mix(side, pend[ks])
            elif not last:
                side += self.read_ops(nxt, 0, fs ^ 1)
            if ks == 3 and dma:
                d = self.dma_ops(st)
                if self.nst == 2:
                    h = len(d) // 2
                    parts = [d[:h], d[h:] + [self.adv()], [], []]
                else:
                    q = (len(d) + 3) // 4
                    parts = [d[i * q:(i + 1) * q] for i in range(4)]
                    parts[3] = parts[3] + [self.adv()]
                side = self._mix(side, parts[0])
                self.pending = parts[1:]
            self._weave(self.mfmas(fs, orient, first and ks == 0), side)

    @staticmethod
    def _mix(a, b):
        o = []
        a, b = list(a), list(b)
        while a or b:
            for _ in range(2):
                if a:
                    o.append(a.pop(0))
            if b:
                o.append(b.pop(0))
        return o

    def prologue_issue(self):
        A = self.A
        for st in range(self.nst):
            for g in self.dma_ops(st):
                for t in g:
                    A(t)
            for t in self.adv():
                A(t)

    def prologue_finish(self):
        A = self.A
        A('s_barrier')
        for t in self.read_ops(0, 0, 0):
            A(t)
        self.pending = [[], [], []]

    def prologue(self):
        self.prologue_issue()
        self.A('s_waitcnt vmcnt(%d)' % ((self.nst - 1) * (self.nX + self.nW)))
        self.prologue_finish()

    def mainloop(self, orient, tag, hook_first=None, hook_tail=None):
        A = self.A
        n = self.nst
        L = A.uid('gl' + tag)
        Lx = A.uid('gx' + tag)
        self.pending = [[], [], []]
        for st in range(n):
            self.body(st, orient, True, first=(st == 0), hook=hook_first if st == 0 else None)
        A('s_sub_u32 %s, %s, 1' % (sr(self.s_n), sr(self.s_n)))
        A('s_cmp_eq_u32 %s, 0' % sr(self.s_n))
        A('s_cbranch_scc1 ' + Lx)
        A.label(L)
        for st in range(n):
            self.body(st, orient, True)
        A('s_sub_u32 %s, %s, 1' % (sr(self.s_n), sr(self.s_n)))
        A('s_cmp_lg_u32 %s, 0' % sr(self.s_n))
        A('s_cbranch_scc1 ' + L)
        A.label(Lx)
        if hook_tail:
            hook_tail()
        for st in range(n):
            self.body(st, orient, False, last=(st == n - 1), ahead=max(0, n - 2 - st))

    def pack_tile(self, m, n, dst):
        A = self.A
        E = self.E
        a = self.acc(m, n)
        for r in range(16):
            A('v_accvgpr_read_b32 %s, %s' % (vr(E + r), ar(a + r)))
        for r in range(8):
            A('v_cvt_pk_bf16_f32 %s, %s, %s' % (vr(dst + r), vr(E + 2 * r), vr(E + 2 * r + 1)))

    def epi_blk(self, SRD, v_l16, s_base, s_tbstride, s_tmp, sc=''):
        A = self.A
        bufs = [self.FX[0], self.FW[0]] if self.mb >= 2 and self.nb >= 2 else [self.E + 16, self.E + 16]
        k = 0
        A('s_mov_b32 %s, %s' % (sr(s_tmp), sr(s_base)))
        for m in range(self.mb):
            for n in range(self.nb):
                d = bufs[k & 1]
                k += 1
                self.pack_tile(m, n, d)
                if n and n % 2 == 0:
                    A('s_add_u32 %s, %s, 4096' % (sr(s_tmp), sr(s_tmp)))
                for j in range(2):
                    A('buffer_store_dwordx4 %s, %s, %s, %s offen offset:%d%s' % (vr(d + 4 * j, 4), vr(v_l16), sr(SRD, 4), sr(s_tmp), (n & 1) * 2048 + j * 1024, sc))
            if m + 1 < self.mb:
                A('s_add_u32 %s, %s, %s' % (sr(s_base), sr(s_base), sr(s_tbstride)))
                A('s_mov_b32 %s, %s' % (sr(s_tmp), sr(s_base)))

    def epi_out(self, SRD, v_off, s_base):
        A = self.A
        bufs = [self.FX[0], self.FW[0]] if self.mb >= 2 and self.nb >= 2 else [self.E + 16, self.E + 16]
        k = 0
        for m in range(self.mb):
            for n in range(self.nb):
                d = bufs[k & 1]
                k += 1
                self.pack_tile(m, n, d)
                for p in range(2):
                    A('v_permlane32_swap_b32 %s, %s' % (vr(d + 4 * p), vr(d + 4 * p + 2)))
                    A('v_permlane32_swap_b32 %s, %s' % (vr(d + 4 * p + 1), vr(d + 4 * p + 3)))
                for p in range(2):
                    A('buffer_store_dwordx4 %s, %s, %s, %s offen offset:%d' % (vr(d + 4 * p, 4), vr(v_off), sr(SRD, 4), sr(s_base), n * 64 + p * 32))
            if m + 1 < self.mb:
                A('s_add_u32 %s, %s, %d' % (sr(s_base), sr(s_base), 32 * 4096))


class Gemm16(Gemm):
    def __init__(self, A, S, V):
        self.A, self.mb, self.nb, self.nst, self.xsc = A, 4, 4, 2, ''
        self.TM = self.TN = 256
        self.nX = self.nW = 8
        self.XB = self.WB = 32768
        self.STG = 65536
        self.wrow = 512
        self.SRD_X = S.alloc(4, 4)
        self.SRD_W = S.alloc(4, 4)
        self.s_xo, self.s_wo, self.s_xs, self.s_ws, self.s_n, self.s_lx, self.s_lw = [S.alloc() for _ in range(7)]
        self.vx = [V.alloc() for _ in range(8)]
        self.vw = [V.alloc() for _ in range(8)]
        self.rx = [[V.alloc() for _ in range(2)] for _ in range(2)]
        self.rw = [[[V.alloc() for _ in range(2)] for _ in range(4)] for _ in range(2)]
        self.v_st = V.alloc()
        self.FX = [V.alloc(32, 4) for _ in range(2)]
        self.FW = [V.alloc(32, 4) for _ in range(2)]
        self.t = [V.alloc() for _ in range(6)]
        self.E = V.alloc(16, 4)

    def _swz(self, dst, row, tmp):
        A = self.A
        A('v_bfe_u32 %s, %s, 1, 2' % (vr(dst), vr(row)))
        A('v_bfe_u32 %s, %s, 4, 1' % (vr(tmp), vr(row)))
        A('v_lshl_or_b32 %s, %s, 2, %s' % (vr(dst), vr(tmp), vr(dst)))

    def setup(self, v_lane, s_w, s_tmp, xmode, xpitch, wpitch):
        A, t = self.A, self.t
        s0, s1 = s_tmp
        assert xmode == 'nat'
        A('s_lshl_b32 %s, %s, 13' % (sr(self.s_lx), sr(s_w)))
        A('s_add_u32 %s, %s, %d' % (sr(self.s_lw), sr(self.s_lx), self.XB))
        A('v_lshrrev_b32 %s, 3, %s' % (vr(t[0]), vr(v_lane)))
        A('s_lshl_b32 %s, %s, 6' % (sr(s0), sr(s_w)))
        A('v_add_u32 %s, %s, %s' % (vr(t[0]), sr(s0), vr(t[0])))
        A('v_and_b32 %s, 7, %s' % (vr(t[1]), vr(v_lane)))
        A('s_mov_b32 %s, %d' % (sr(s1), xpitch))
        for i in range(8):
            A('v_add_u32 %s, %d, %s' % (vr(t[2]), 8 * i, vr(t[0])))
            self._swz(t[3], t[2], t[4])
            A('v_xor_b32 %s, %s, %s' % (vr(t[3]), vr(t[3]), vr(t[1])))
            A('v_mul_lo_u32 %s, %s, %s' % (vr(t[2]), vr(t[2]), sr(s1)))
            A('v_lshl_add_u32 %s, %s, 4, %s' % (vr(self.vx[i]), vr(t[3]), vr(t[2])))
        A('v_lshrrev_b32 %s, 5, %s' % (vr(t[0]), vr(v_lane)))
        A('s_lshl_b32 %s, %s, 4' % (sr(s0), sr(s_w)))
        A('v_add_u32 %s, %s, %s' % (vr(t[0]), sr(s0), vr(t[0])))
        A('v_and_b32 %s, 31, %s' % (vr(t[1]), vr(v_lane)))
        A('s_mov_b32 %s, %d' % (sr(s1), wpitch))
        for i in range(8):
            A('v_add_u32 %s, %d, %s' % (vr(t[2]), 2 * i, vr(t[0])))
            A('v_and_b32 %s, 3, %s' % (vr(t[3]), vr(t[2])))
            A('v_bfe_u32 %s, %s, 3, 1' % (vr(t[4]), vr(t[2])))
            A('v_lshl_or_b32 %s, %s, 2, %s' % (vr(t[3]), vr(t[3]), vr(t[4])))
            A('v_xor_b32 %s, %s, %s' % (vr(t[3]), vr(t[3]), vr(t[1])))
            A('v_mul_lo_u32 %s, %s, %s' % (vr(t[2]), vr(t[2]), sr(s1)))
            A('v_lshl_add_u32 %s, %s, 4, %s' % (vr(self.vw[i]), vr(t[3]), vr(t[2])))
        A('v_bfe_u32 %s, %s, 3, 1' % (vr(t[0]), vr(v_lane)))
        A('v_and_b32 %s, 7, %s' % (vr(t[1]), vr(v_lane)))
        A('v_lshl_add_u32 %s, %s, 4, %s' % (vr(t[0]), vr(t[0]), vr(t[1])))
        A('v_lshrrev_b32 %s, 4, %s' % (vr(t[1]), vr(v_lane)))
        A('v_lshlrev_b32 %s, 4, %s' % (vr(self.v_st), vr(t[0])))
        A('v_lshl_add_u32 %s, %s, 9, %s' % (vr(self.v_st), vr(t[1]), vr(self.v_st)))
        self._swz(t[2], t[0], t[3])
        A('s_lshr_b32 %s, %s, 1' % (sr(s0), sr(s_w)))
        A('s_lshl_b32 %s, %s, 14' % (sr(s0), sr(s0)))
        A('v_lshl_add_u32 %s, %s, 7, %s' % (vr(t[0]), vr(t[0]), sr(s0)))
        for ks in range(2):
            A('v_add_u32 %s, %d, %s' % (vr(t[3]), 4 * ks, vr(t[1])))
            A('v_xor_b32 %s, %s, %s' % (vr(t[3]), vr(t[3]), vr(t[2])))
            A('v_lshl_add_u32 %s, %s, 4, %s' % (vr(self.rx[0][ks]), vr(t[3]), vr(t[0])))
            A('v_add_u32 %s, %d, %s' % (vr(self.rx[1][ks]), self.STG, vr(self.rx[0][ks])))
        A('v_bfe_u32 %s, %s, 2, 2' % (vr(t[0]), vr(v_lane)))
        A('v_lshl_add_u32 %s, %s, 3, %s' % (vr(t[2]), vr(t[1]), vr(t[0])))
        A('v_lshlrev_b32 %s, 9, %s' % (vr(t[2]), vr(t[2])))
        A('v_and_b32 %s, 1, %s' % (vr(t[3]), vr(v_lane)))
        A('v_lshl_add_u32 %s, %s, 3, %s' % (vr(t[2]), vr(t[3]), vr(t[2])))
        A('v_bfe_u32 %s, %s, 1, 1' % (vr(t[3]), vr(v_lane)))
        A('v_lshl_add_u32 %s, %s, 5, %s' % (vr(t[2]), vr(t[3]), vr(t[2])))
        A('v_and_b32 %s, 1, %s' % (vr(t[3]), vr(t[1])))
        A('v_lshl_add_u32 %s, %s, 4, %s' % (vr(t[2]), vr(t[3]), vr(t[2])))
        A('s_and_b32 %s, %s, 1' % (sr(s0), sr(s_w)))
        A('s_lshl_b32 %s, %s, 2' % (sr(s0), sr(s0)))
        for i in range(4):
            A('s_add_u32 %s, %s, %d' % (sr(s1), sr(s0), i))
            A('v_xor_b32 %s, %s, %s' % (vr(t[3]), sr(s1), vr(t[0])))
            A('v_lshl_add_u32 %s, %s, 6, %s' % (vr(t[3]), vr(t[3]), vr(t[2])))
            for st in range(2):
                A('v_add_u32 %s, %d, %s' % (vr(self.rw[st][i][0]), self.XB + st * self.STG, vr(t[3])))
                A('v_xor_b32 %s, 16, %s' % (vr(self.rw[st][i][1]), vr(self.rw[st][i][0])))

    def read_ops(self, st, ks, fs):
        xs = ['ds_read_b128 %s, %s offset:%d' % (vr(self.FX[fs] + 8 * m + 4 * tau, 4), vr(self.rx[st][ks]), m * 4096 + tau * 1024)
              for m in range(4) for tau in range(2)]
        wsr = ['ds_read_b64_tr_b16 %s, %s offset:%d' % (vr(self.FW[fs] + 8 * i + 4 * tau + 2 * q, 2), vr(self.rw[st][i][tau]), (32 * ks + 4 * q) * 512)
               for i in range(4) for tau in range(2) for q in range(2)]
        o = []
        while xs or wsr:
            if xs:
                o.append(xs.pop(0))
            for _ in range(2):
                if wsr:
                    o.append(wsr.pop(0))
        return o

    def mfmas(self, fs, orient, first):
        o = []
        for m in range(4):
            for tm in range(2):
                for n in range(4):
                    for tn in range(2):
                        tl, tr_ = (tm, tn) if orient == 'T' else (tn, tm)
                        a = ar(self.acc(m, n) + 8 * tl + 4 * tr_, 4)
                        x, w = vr(self.FX[fs] + 8 * m + 4 * tm, 4), vr(self.FW[fs] + 8 * n + 4 * tn, 4)
                        p, q = (w, x) if orient == 'T' else (x, w)
                        o.append('v_mfma_f32_16x16x32_bf16 %s, %s, %s, %s' % (a, p, q, '0' if first else a))
        return o

    def body(self, st, orient, dma, first=False, last=False, ahead=None, hook=None):
        A = self.A
        for ks in range(2):
            A('s_waitcnt lgkmcnt(0)')
            if ks == 1 and not last:
                A('s_waitcnt vmcnt(0)')
                A('s_barrier')
                if hook:
                    hook()
            side = []
            if ks == 0:
                side = self.read_ops(st, 1, 1)
            elif not last:
                side = self.read_ops(st ^ 1, 0, 0)
            if ks == 1 and dma:
                d = []
                for g in self.dma_ops(st):
                    d.append(g[0])
                    d.append(g[2])
                flat = []
                rd = list(side)
                k = 0
                while rd or d:
                    if d:
                        flat.append(d.pop(0))
                        flat.append(d.pop(0))
                    for _ in range(2 if k & 1 else 1):
                        if rd:
                            flat.append(rd.pop(0))
                    k += 1
                side = flat + [self.adv()]
            mf = self.mfmas(ks, orient, first and ks == 0)
            n, kk = len(mf), len(side)
            span = n - 6
            pos = {}
            for j in range(kk):
                pos.setdefault(j * span // max(kk, 1), []).append(side[j])
            for i, m in enumerate(mf):
                A(m)
                for it in pos.get(i, []):
                    for t in (it if isinstance(it, list) else [it]):
                        A(t)

    def epi_blk(self, SRD, v_l16, s_base, s_tbstride, s_tmp, sc=''):
        A = self.A
        E = self.E
        bufs = [self.FX[0], self.FX[0] + 8, self.FX[0] + 16, self.FX[0] + 24]
        k = 0
        A('s_mov_b32 %s, %s' % (sr(s_tmp), sr(s_base)))
        for m in range(4):
            for n in range(4):
                d = bufs[k & 3]
                k += 1
                self.pack_tile(m, n, d)
                if n == 2:
                    A('s_add_u32 %s, %s, 4096' % (sr(s_tmp), sr(s_tmp)))
                for tl in range(2):
                    A('buffer_store_dwordx4 %s, %s, %s, %s offen offset:%d%s' % (vr(d + 4 * tl, 4), vr(self.v_st), sr(SRD, 4), sr(s_tmp), (n & 1) * 2048 + tl * 128, sc))
            if m < 3:
                A('s_add_u32 %s, %s, %s' % (sr(s_base), sr(s_base), sr(s_tbstride)))
                A('s_mov_b32 %s, %s' % (sr(s_tmp), sr(s_base)))
```

```python
from asmlib import *
from layout import *
from gemm import Gemm, Gemm16
from kernels import mk_srd, load_ptrs, out_direct, out_direct32, place_check, shift_ptrs
import attn
import os, json

LDS_JOB = 131072 + 64
LIM = 200000
WTOUCH = os.environ.get('WTOUCH', '')
WT_ODD = int(os.environ.get('WT_ODD', '1'))
WT2 = int(os.environ.get('WT2', '1'))
EARLY = int(os.environ.get('EARLY', '1'))
LAG = 2 if os.environ.get('OLDCHAIN') else 3
OVL = int(os.environ.get('OVL', '0'))
M16 = int(os.environ.get('M16', '1'))
WST = int(os.environ.get('WST', '0'))

BL = int(os.environ.get('BL', '0'))
SEGS = [('skv', 16, 0), ('bkv', 16, 1), ('skv', 16, 1), ('bkv', 32, 3), ('bkv', 8, 7), ('q', 16, 0), ('bq', 24, 0),
        ('aattn', 8, 0), ('q', 8, 4), ('aout', 8, 0), ('q', 8, 6), ('aattn', 8, 2), ('battn', 8, 0), ('aout', 8, 2),
        ('battn', 8, 8), ('aattn', 4, 4), ('battn', 16, 16), ('aout', 4, 4), ('aattn1', 4, 20), ('aattn1', 4, 21),
        ('wot', 16, 0), ('aoutr', 2, 10), ('aattn1', 4, 22), ('wot', 16, 16), ('aattn1', 4, 23), ('bout', 8, 0), ('aoutr', 2, 11),
        ('aattn1', 4, 24), ('aattn1', 4, 25), ('bout', 12, 8), ('aoutr', 2, 12), ('bout', 12, 20), ('aattn1', 4, 26),
        ('aattn1', 4, 27), ('aoutd', 8, 26), ('aattn1', 4, 28), ('aoutd', 8, 27), ('aattn1', 4, 29)]
if os.environ.get('ORD', '1') == '1':
    SEGS += [('aoutd', 8, 28), ('aattn1', 4, 30), ('aattn1', 4, 31)]
else:
    SEGS += [('aattn1', 4, 30), ('aattn1', 4, 31), ('aoutd', 8, 28)]
SEGS += [('aoute', 16, 58), ('aoute', 16, 60), ('aoute', 16, 62)]
SEGS += [('bout', BL, 32 - BL)]
SEGS = [x for x in SEGS if x[1]]
_seen = set()
SEGS = [x for x in SEGS if not (x in _seen or _seen.add(x))]
if os.environ.get('SEGS'):
    SEGS = [tuple(x) for x in json.loads(os.environ['SEGS'])]


def seg_bounds():
    o, a = [], 0
    for k, n, p in SEGS:
        o.append((a, a + n, '%s%d' % (k, p)))
        a += n
    return o


def gen_worker(A, name):
    S = Regs('s', 4, 100)
    P = load_ptrs(A, S)
    SRD_WS = S.alloc(4, 4)
    SRD_D = S.alloc(4, 4)
    SRD_O = S.alloc(4, 4)
    s_w, s_q, s_qn, s_job, s_cfg, s0, s1, s2_, s3, s_base, s_tbs, s_or, s_ctr, s_inc, s_mt, s_nt, s_it, s_k, s_p = [S.alloc() for _ in range(19)]
    s_pp = S.alloc(2, 2)
    s_tm = S.alloc(2, 2)
    s_sa = S.alloc()

    def wstamp(k):
        if not WST:
            return
        A('s_memrealtime %s' % sr(s_tm, 2))
        A('s_waitcnt lgkmcnt(0)')
        A('v_mov_b32 v4, %s' % sr(s_tm))
        A('v_mov_b32 v5, %s' % sr(s_sa))
        A('s_mov_b64 exec, 1')
        A('buffer_store_dword v4, v5, %s, 0 offen offset:%d' % (sr(SRD_WS, 4), 4 * k))
        if k in (2, 3):
            A('s_memtime %s' % sr(s_tm, 2))
            A('s_waitcnt lgkmcnt(0)')
            A('v_mov_b32 v4, %s' % sr(s_tm))
            A('buffer_store_dword v4, v5, %s, 0 offen offset:%d' % (sr(SRD_WS, 4), 4 * (k + 4)))
        A('s_mov_b64 exec, -1')
    def dbgt(word):
        if not int(os.environ.get('DBGT', '0')):
            return
        Lx = A.uid('dt')
        A('s_cmp_lg_u32 %s, 0' % sr(s_w))
        A('s_cbranch_scc1 ' + Lx)
        A('s_memrealtime %s' % sr(s_tm, 2))
        A('s_waitcnt lgkmcnt(0)')
        A('v_mov_b32 v4, %s' % sr(s_tm))
        A('v_mov_b32 v5, %d' % (word * 4))
        A('s_mov_b64 exec, 1')
        A('buffer_atomic_umax v4, v5, %s, 0 offen sc1' % sr(SRD_D, 4))
        A('s_mov_b64 exec, -1')
        A.label(Lx)
    v_lane, v_l16, v_off, v_a, v_b, v_sh = 1, 2, 3, 4, 5, 6
    s_init = S.alloc()
    s_pe, p_base, p_tbs, p_ctr, p_inc = [S.alloc() for _ in range(5)]
    s_et = S.alloc()
    s_wo = S.alloc()
    s_wo2 = S.alloc()
    smark = S.mark()
    V4 = Regs('v', 8, 256)
    G4 = Gemm16(A, S, V4) if M16 else Gemm(A, S, V4, 4, 4)
    hi = S.mark()
    S.release(smark)
    V2 = Regs('v', 8, 256)
    G2 = Gemm(A, S, V2, 2, 2, xsc=' sc1', nst=4)
    assert (G2.SRD_X, G2.SRD_W, G2.s_xo, G2.s_n) == (G4.SRD_X, G4.SRD_W, G4.s_xo, G4.s_n)
    G = G4
    L_next, L_done = name + '_wnext', name + '_wdone'

    A('v_and_b32 %s, 63, v0' % vr(v_lane))
    A('v_lshrrev_b32 %s, 6, v0' % vr(v_l16))
    A('v_readfirstlane_b32 %s, %s' % (sr(s_w), vr(v_l16)))
    A('v_lshlrev_b32 %s, 4, %s' % (vr(v_l16), vr(v_lane)))
    A('v_and_b32 %s, 31, %s' % (vr(v_off), vr(v_lane)))
    A('v_lshlrev_b32 %s, 12, %s' % (vr(v_off), vr(v_off)))
    A('v_lshrrev_b32 %s, 5, %s' % (vr(v_a), vr(v_lane)))
    A('v_lshl_add_u32 %s, %s, 4, %s' % (vr(v_off), vr(v_a), vr(v_off)))
    A('s_and_b32 %s, s%d, 3' % (sr(s_q), S_VX))
    A('s_mov_b32 %s, 0' % sr(s_qn))
    A('s_mov_b32 %s, 0' % sr(s_cfg))
    A('s_mov_b32 %s, %d' % (sr(s_ctr), DBG_WT))
    A('s_waitcnt lgkmcnt(0)')
    shift_ptrs(A, P['ws'], P['dbg'], s0)
    mk_srd(A, SRD_WS, P['ws'], WS_HALF)
    mk_srd(A, SRD_D, P['dbg'], 128)
    mk_srd(A, SRD_O, P['out'], 2048 * 2048 * 2)

    A('v_and_b32 %s, 3, %s' % (vr(v_sh), vr(v_lane)))
    A('v_lshlrev_b32 %s, 7, %s' % (vr(v_sh), vr(v_sh)))
    A('v_add_u32 %s, 0x%x, %s' % (vr(v_sh), CTR, vr(v_sh)))
    A('v_mov_b32 v7, 0')
    A('s_mov_b32 %s, 0' % sr(s_init))
    A('s_mov_b32 %s, 0' % sr(s_et))
    A('s_mov_b32 %s, 0' % sr(s_pe))
    A('s_mov_b32 %s, %d' % (sr(p_ctr), DBG_WT))
    A('s_mov_b32 %s, 0' % sr(p_inc))
    v_tk = 7

    def early(nop=True):
        if not EARLY:
            return
        Le = A.uid('et')
        if nop:
            A('s_nop 11')
        A('s_cmp_eq_u32 %s, 0' % sr(s_init))
        A('s_cbranch_scc1 ' + Le)
        A('s_mov_b32 %s, 1' % sr(s_et))
        A('s_cmp_lg_u32 %s, 0' % sr(s_w))
        A('s_cbranch_scc1 ' + Le)
        A('s_lshl_b32 %s, %s, 7' % (sr(s_wo), sr(s_q)))
        A('s_add_u32 %s, %s, 0x%x' % (sr(s_wo), sr(s_wo), CTR + DBG_Q * 128))
        A('v_mov_b32 %s, %s' % (vr(v_a), sr(s_wo)))
        A('v_mov_b32 %s, 1' % vr(v_tk))
        A('s_mov_b64 exec, 1')
        A('buffer_atomic_add %s, %s, %s, 0 offen sc0 sc1' % (vr(v_tk), vr(v_a), sr(SRD_WS, 4)))
        A('s_mov_b64 exec, -1')
        A.label(Le)

    def wait_init():
        Lw, Ld = A.uid('iw'), A.uid('id')
        A('s_cmp_lg_u32 %s, 0' % sr(s_init))
        A('s_cbranch_scc1 ' + Ld)
        A('s_mov_b32 %s, 1' % sr(s_init))
        A('v_mov_b32 %s, %d' % (vr(v_a), DBG_INIT))
        A('s_mov_b32 %s, 0' % sr(s3))
        A.label(Lw)
        A('buffer_load_dword %s, %s, %s, 0 offen sc1' % (vr(v_b), vr(v_a), sr(SRD_D, 4)))
        A('s_add_u32 %s, %s, 1' % (sr(s3), sr(s3)))
        A('s_waitcnt vmcnt(0)')
        A('v_cmp_ne_u32 vcc, 0, %s' % vr(v_b))
        A('s_cbranch_vccnz ' + Ld)
        A('s_sleep 4')
        A('s_cmp_lt_u32 %s, %d' % (sr(s3), LIM))
        A('s_cbranch_scc1 ' + Lw)
        A.label(Ld)
    L_have = A.uid('havejob')
    L_got = A.uid('gotjob')
    A('s_mov_b32 %s, s3' % sr(s_job))
    SRD_T = S.alloc(4, 4)
    hi = max(hi, S.mark())

    def touch(ptrs_sizes, s_id, per_wave_log2):
        A('s_lshl_b32 %s, %s, %d' % (sr(s0), sr(s_id), per_wave_log2))
        A('v_lshlrev_b32 %s, 7, %s' % (vr(v_a), vr(v_lane)))
        for p, nbytes in ptrs_sizes:
            mk_srd(A, SRD_T, P[p], nbytes)
            for i in range(1 << (per_wave_log2 - 13)):
                A('s_add_u32 %s, %s, %d' % (sr(s1), sr(s0), i * 8192))
                A('buffer_load_dword v7, %s, %s, %s offen' % (vr(v_a), sr(SRD_T, 4), sr(s1)))
            A('s_nop 4')
    L_restart = name + '_restart'
    L_st = A.uid('static')
    A('s_cmp_lt_u32 s3, 32')
    A('s_cbranch_scc1 ' + L_st)
    place_check(A, SRD_D, v_lane, v_a, v_b, s3, LIM, L_restart)
    A('s_branch ' + L_next)
    A.label(L_st)
    if WTOUCH:
        if WT_ODD:
            A('s_bitcmp0_b32 s3, 0')
            A('s_cbranch_scc1 ' + L_have)
            A('s_lshr_b32 %s, s3, 1' % sr(s2_))
            A('s_lshl_b32 %s, %s, 4' % (sr(s0), sr(s_q)))
        else:
            A('s_mov_b32 %s, s3' % sr(s2_))
            A('s_lshl_b32 %s, %s, 5' % (sr(s0), sr(s_q)))
        A('s_add_u32 %s, %s, %s' % (sr(s2_), sr(s2_), sr(s0)))
        A('s_lshl_b32 %s, %s, 2' % (sr(s2_), sr(s2_)))
        A('s_add_u32 %s, %s, %s' % (sr(s2_), sr(s2_), sr(s_w)))
        touch([(k, 8 << 20) for k in WTOUCH.split(',')], s2_, 15 if WT_ODD else 14)
    A('s_branch ' + L_have)
    A.label(L_next)
    Lnf = A.uid('nofetch')
    A('s_cmp_lg_u32 %s, 0' % sr(s_w))
    A('s_cbranch_scc1 ' + Lnf)
    wait_init()
    A('s_lshl_b32 %s, %s, 7' % (sr(s0), sr(s_q)))
    A('s_add_u32 %s, %s, 0x%x' % (sr(s0), sr(s0), CTR + DBG_Q * 128))
    A('v_mov_b32 %s, %s' % (vr(v_a), sr(s0)))
    A('v_mov_b32 %s, 1' % vr(v_b))
    A('s_mov_b64 exec, 1')
    A('buffer_atomic_add %s, %s, %s, 0 offen sc0 sc1' % (vr(v_b), vr(v_a), sr(SRD_WS, 4)))
    A('s_waitcnt vmcnt(0)')
    A('v_mov_b32 %s, %d' % (vr(v_a), LDS_JOB))
    A('ds_write_b32 %s, %s' % (vr(v_a), vr(v_b)))
    A('s_waitcnt lgkmcnt(0)')
    A('s_mov_b64 exec, -1')
    A.label(Lnf)
    A('s_barrier')
    A('v_mov_b32 %s, %d' % (vr(v_a), LDS_JOB))
    A('ds_read_b32 %s, %s' % (vr(v_b), vr(v_a)))
    A('s_waitcnt lgkmcnt(0)')
    A('v_readfirstlane_b32 %s, %s' % (sr(s_job), vr(v_b)))
    A('s_barrier')
    A.label(L_got)
    A('s_mov_b32 %s, 1' % sr(s_init))
    A('s_add_u32 %s, %s, 32' % (sr(s_job), sr(s_job)))
    A.label(L_have)
    if WST:
        A('s_min_u32 %s, %s, 511' % (sr(s0), sr(s_job)))
        A('s_lshl_b32 %s, %s, 9' % (sr(s_sa), sr(s_q)))
        A('s_add_u32 %s, %s, %s' % (sr(s_sa), sr(s_sa), sr(s0)))
        A('s_lshl_b32 %s, %s, 2' % (sr(s_sa), sr(s_sa)))
        A('s_add_u32 %s, %s, %s' % (sr(s_sa), sr(s_sa), sr(s_w)))
        A('s_lshl_b32 %s, %s, 5' % (sr(s_sa), sr(s_sa)))
        A('s_add_u32 %s, %s, 0x%x' % (sr(s_sa), sr(s_sa), STAMP + 0x400000))
        wstamp(0)
    kinds = ('aoutr', 'aoutj', 'skv', 'bkv', 'bq', 'q', 'battn', 'bout', 'wot', 'aattn', 'aout', 'aattn1', 'aoutd', 'aoute', 'big', 'bigA', 'small', 'outc')
    L = {k: A.uid('job' + k) for k in kinds}
    for k, n, p in SEGS:
        A('s_mov_b32 %s, %d' % (sr(s_p), p))
        A('s_cmp_lt_u32 %s, %d' % (sr(s_job), n))
        A('s_cbranch_scc1 ' + L[k])
        A('s_sub_u32 %s, %s, %d' % (sr(s_job), sr(s_job), n))
    QLEN = sum(n for _, n, _ in SEGS)
    L_peek = name + '_wpeek'
    A.label(L_peek)
    A('s_mov_b32 %s, %d' % (sr(s0), DBG_Q * 128))
    A('buffer_load_dword %s, %s, %s, %s offen sc1' % (vr(v_b), vr(v_sh), sr(SRD_WS, 4), sr(s0)))
    A('v_lshlrev_b32 %s, 2, %s' % (vr(v_a), vr(v_lane)))
    A('v_add_u32 %s, %d, %s' % (vr(v_a), LDS_JOB + 64, vr(v_a)))
    A('s_waitcnt vmcnt(0)')
    Lp1 = A.uid('pk')
    A('s_cmp_lg_u32 %s, 0' % sr(s_w))
    A('s_cbranch_scc1 ' + Lp1)
    A('ds_write_b32 %s, %s' % (vr(v_a), vr(v_b)))
    A('s_waitcnt lgkmcnt(0)')
    A.label(Lp1)
    A('s_barrier')
    A('ds_read_b32 %s, %s' % (vr(v_b), vr(v_a)))
    A('s_waitcnt lgkmcnt(0)')
    A('s_barrier')
    for k in range(4):
        A('v_readlane_b32 %s, %s, %d' % (sr(s0), vr(v_b), k))
        A('s_mov_b32 %s, %d' % (sr(s_q), k))
        A('s_cmp_lt_u32 %s, %d' % (sr(s0), QLEN - 32))
        A('s_cbranch_scc1 ' + L_next)
    A('s_endpgm')

    def wait_ctr(s_off, thr, s_shift=None, bits=8, slp=12):
        Lw, Ld = A.uid('dw'), A.uid('dd')
        A('s_cmp_lg_u32 %s, 0' % sr(s_w))
        A('s_cbranch_scc1 ' + Ld)
        A('s_lshl_b32 %s, %s, 7' % (sr(s_wo), sr(s_off) if isinstance(s_off, int) else s_off))
        A('s_mov_b32 %s, 0' % sr(s3))
        A.label(Lw)
        A('buffer_load_dword %s, %s, %s, %s offen sc1' % (vr(v_b), vr(v_sh), sr(SRD_WS, 4), sr(s_wo)))
        A('s_add_u32 %s, %s, 1' % (sr(s3), sr(s3)))
        A('s_waitcnt vmcnt(0)')
        if s_shift is not None:
            A('v_bfe_u32 %s, %s, %s, %d' % (vr(v_b), vr(v_b), sr(s_shift), bits))
        A('v_cmp_gt_u32 vcc, %s, %s' % (thr, vr(v_b)))
        A('s_cbranch_vccz ' + Ld)
        A('s_sleep %d' % slp)
        A('s_cmp_lt_u32 %s, %d' % (sr(s3), LIM))
        A('s_cbranch_scc1 ' + Lw)
        A.label(Ld)
        A('s_barrier')

    def wait2(off1, thr1, off2, thr2, s_shift=None, bits=8, slp=12):
        Lw, Ld, Ln = A.uid('dw'), A.uid('dd'), A.uid('dn')
        tx = lambda o: sr(o) if isinstance(o, int) else o
        A('s_cmp_lg_u32 %s, 0' % sr(s_w))
        A('s_cbranch_scc1 ' + Ld)
        A('s_lshl_b32 %s, %s, 7' % (sr(s_wo), tx(off1)))
        A('s_lshl_b32 %s, %s, 7' % (sr(s_wo2), tx(off2)))
        A('s_mov_b32 %s, 0' % sr(s3))
        A.label(Lw)
        A('buffer_load_dword %s, %s, %s, %s offen sc1' % (vr(v_a), vr(v_sh), sr(SRD_WS, 4), sr(s_wo)))
        A('buffer_load_dword %s, %s, %s, %s offen sc1' % (vr(v_b), vr(v_sh), sr(SRD_WS, 4), sr(s_wo2)))
        A('s_add_u32 %s, %s, 1' % (sr(s3), sr(s3)))
        A('s_waitcnt vmcnt(0)')
        if s_shift is not None:
            A('v_bfe_u32 %s, %s, %s, %d' % (vr(v_b), vr(v_b), sr(s_shift), bits))
        A('v_cmp_gt_u32 vcc, %s, %s' % (thr1, vr(v_a)))
        A('s_cbranch_vccnz ' + Ln)
        A('v_cmp_gt_u32 vcc, %s, %s' % (thr2, vr(v_b)))
        A('s_cbranch_vccz ' + Ld)
        A.label(Ln)
        A('s_sleep %d' % slp)
        A('s_cmp_lt_u32 %s, %d' % (sr(s3), LIM))
        A('s_cbranch_scc1 ' + Lw)
        A.label(Ld)
        A('s_barrier')

    def cfg(Gx, cid, *args):
        Ls = A.uid('cfg')
        A('s_cmp_eq_u32 %s, %d' % (sr(s_cfg), cid))
        A('s_cbranch_scc1 ' + Ls)
        Gx.setup(v_lane, s_w, (s0, s1), *args)
        A('s_mov_b32 %s, %d' % (sr(s_cfg), cid))
        A.label(Ls)

    def blk_base(mbk, nbk):
        A('s_lshr_b32 %s, %s, 1' % (sr(s0), sr(s_w)))
        A('s_lshl_b32 %s, %s, 1' % (sr(s1), sr(s_mt)))
        A('s_add_u32 %s, %s, %s' % (sr(s0), sr(s0), sr(s1)))
        A('s_mul_i32 %s, %s, %d' % (sr(s0), sr(s0), mbk))
        A('s_mul_i32 %s, %s, %s' % (sr(s0), sr(s0), sr(s_tbs)))
        A('s_add_u32 %s, %s, %s' % (sr(s_base), sr(s_base), sr(s0)))
        A('s_and_b32 %s, %s, 1' % (sr(s0), sr(s_w)))
        A('s_lshl_b32 %s, %s, 1' % (sr(s1), sr(s_nt)))
        A('s_add_u32 %s, %s, %s' % (sr(s0), sr(s0), sr(s1)))
        A('s_mul_i32 %s, %s, %d' % (sr(s0), sr(s0), nbk * 2048))
        A('s_add_u32 %s, %s, %s' % (sr(s_base), sr(s_base), sr(s0)))

    def sel_kv(thr):
        A('s_cmp_ge_u32 %s, %d' % (sr(s_nt), thr))
        A('s_cselect_b32 %s, 1, 0' % sr(s_or))
        A('s_cselect_b64 %s, %s, %s' % (sr(s_pp, 2), sr(P['A_Wv'], 2), sr(P['A_Wk'], 2)))
        A('s_mov_b32 %s, 0x%x' % (sr(s_base), KX))
        A('s_cselect_b32 %s, 0x%x, %s' % (sr(s_base), VX, sr(s_base)))
        A('s_and_b32 %s, %s, %d' % (sr(s_nt), sr(s_nt), thr - 1))

    def ctr(base, s_idx, inc):
        A('s_lshl_b32 %s, %s, 2' % (sr(s_ctr), sr(s_idx)))
        A('s_add_u32 %s, %s, %d' % (sr(s_ctr), sr(s_ctr), base))
        A('s_mov_b32 %s, %d' % (sr(s_inc), inc))

    def nt_q(mask_bits_shift, mask):
        A('s_lshr_b32 %s, %s, %d' % (sr(s_nt), sr(s_job), mask_bits_shift))
        A('s_and_b32 %s, %s, %d' % (sr(s_nt), sr(s_nt), mask))
        A('s_lshl_b32 %s, %s, 2' % (sr(s_nt), sr(s_nt)))
        A('s_add_u32 %s, %s, %s' % (sr(s_nt), sr(s_nt), sr(s_q)))

    A.label(L['skv'])
    A('s_lshr_b32 %s, %s, 1' % (sr(s0), sr(s_p)))
    ctr(DBG_KV, s0, 1)
    A('s_mov_b32 %s, %s' % (sr(s_mt), sr(s_p)))
    nt_q(0, 15)
    sel_kv(32)
    mk_srd(A, G.SRD_W, s_pp, 1024 * 4096 * 2)
    mk_srd(A, G.SRD_X, P['A_x'], 2048 * 1024 * 2)
    A('s_lshl_b32 %s, %s, 18' % (sr(G.s_xo), sr(s_mt)))
    A('s_mov_b32 %s, 128' % sr(G.s_xs))
    A('s_lshl_b32 %s, %s, 8' % (sr(G.s_wo), sr(s_nt)))
    A('s_mov_b32 %s, %d' % (sr(G.s_ws), 64 * 8192))
    A('s_mov_b32 %s, %d' % (sr(s_tbs), 128 * 2048))
    A('s_mov_b32 %s, 3' % sr(G.s_n))
    blk_base(2, 2)
    cfg(G2, 3, 'nat', 2048, 8192)
    A('s_mov_b32 %s, 0' % sr(s_k))
    A('s_branch ' + L['small'])

    A.label(L['aout'])
    A('s_lshr_b32 %s, %s, 2' % (sr(s_mt), sr(s_job)))
    A('s_add_u32 %s, %s, %s' % (sr(s_mt), sr(s_mt), sr(s_p)))
    A('s_lshl_b32 %s, %s, 1' % (sr(s_mt), sr(s_mt)))
    A('s_lshr_b32 %s, %s, 1' % (sr(s0), sr(s_q)))
    A('s_add_u32 %s, %s, %s' % (sr(s_mt), sr(s_mt), sr(s0)))
    A('s_and_b32 %s, %s, 1' % (sr(s_nt), sr(s_q)))
    A('s_lshl_b32 %s, %s, 2' % (sr(s_nt), sr(s_nt)))
    A('s_and_b32 %s, %s, 3' % (sr(s0), sr(s_job)))
    A('s_add_u32 %s, %s, %s' % (sr(s_nt), sr(s_nt), sr(s0)))
    A('s_mov_b32 %s, 4' % sr(s_tbs))
    A('s_mov_b32 %s, 0' % sr(s_it))
    A('s_branch ' + L['aoutj'])
    A.label(L['aoutr'])
    A('s_mov_b32 %s, %s' % (sr(s_mt), sr(s_p)))
    A('s_lshl_b32 %s, %s, 1' % (sr(s_nt), sr(s_q)))
    A('s_add_u32 %s, %s, %s' % (sr(s_nt), sr(s_nt), sr(s_job)))
    A('s_mov_b32 %s, 0x2222' % sr(s_tbs))
    A('s_and_b32 %s, %s, 1' % (sr(s_it), sr(s_p)))
    A('s_lshl_b32 %s, %s, 4' % (sr(s_it), sr(s_it)))
    A.label(L['aoutj'])
    mk_srd(A, G.SRD_W, P['A_Wo'], 4096 * 1024 * 2)
    A('s_mul_i32 %s, %s, %d' % (sr(G.s_xo), sr(s_mt), 4 * 128 * 2048))
    A('s_add_u32 %s, %s, 0x%x' % (sr(G.s_xo), sr(G.s_xo), OA))
    A('s_mov_b32 %s, 15' % sr(G.s_n))
    A('s_mov_b32 %s, 0' % sr(s_base))
    A('s_mov_b32 %s, %d' % (sr(s2_), DBG_AA))
    cfg(G2, 5, 'blk', 128 * 2048, 2048)
    A('s_branch ' + L['outc'])
    A.label(L['bout'])
    A('s_add_u32 %s, %s, %s' % (sr(s_job), sr(s_job), sr(s_p)))
    A('s_lshr_b32 %s, %s, 1' % (sr(s_mt), sr(s_job)))
    nt_q(0, 1)
    mk_srd(A, G.SRD_W, P['B_wo'], 1024 * 1024 * 2)
    A('s_mul_i32 %s, %s, %d' % (sr(G.s_xo), sr(s_mt), 4 * 32 * 2048))
    A('s_add_u32 %s, %s, 0x%x' % (sr(G.s_xo), sr(G.s_xo), OB))
    A('s_mov_b32 %s, 3' % sr(G.s_n))
    A('s_mov_b32 %s, 2048' % sr(s_base))
    A('s_mov_b32 %s, %d' % (sr(s2_), DBG_BA))
    A('s_mov_b32 %s, 4' % sr(s_tbs))
    A('s_mov_b32 %s, 0' % sr(s_it))
    cfg(G2, 4, 'blk', 32 * 2048, 2048)
    A.label(L['outc'])
    mk_srd(A, G.SRD_X, P['ws'], WS_HALF)
    A('s_mov_b32 %s, 4096' % sr(G.s_xs))
    A('s_lshl_b32 %s, %s, 8' % (sr(G.s_wo), sr(s_nt)))
    A('s_mov_b32 %s, %d' % (sr(G.s_ws), 64 * 2048))
    A('s_mov_b32 %s, 0' % sr(s_or))
    A('s_mov_b32 %s, 0' % sr(s_inc))
    A('s_lshr_b32 %s, %s, 1' % (sr(s0), sr(s_w)))
    A('s_lshl_b32 %s, %s, 18' % (sr(s0), sr(s0)))
    A('s_add_u32 %s, %s, %s' % (sr(s_base), sr(s_base), sr(s0)))
    A('s_lshl_b32 %s, %s, 19' % (sr(s0), sr(s_mt)))
    A('s_add_u32 %s, %s, %s' % (sr(s_base), sr(s_base), sr(s0)))
    A('s_and_b32 %s, %s, 1' % (sr(s0), sr(s_w)))
    A('s_lshl_b32 %s, %s, 7' % (sr(s0), sr(s0)))
    A('s_add_u32 %s, %s, %s' % (sr(s_base), sr(s_base), sr(s0)))
    A('s_add_u32 %s, %s, %s' % (sr(s_base), sr(s_base), sr(G.s_wo)))
    A('s_lshr_b32 %s, %s, 1' % (sr(s0), sr(s_mt)))
    A('s_lshl_b32 %s, %s, 2' % (sr(s0), sr(s0)))
    A('s_add_u32 %s, %s, %s' % (sr(s0), sr(s0), sr(s2_)))
    wait_ctr(s0, sr(s_tbs), s_it, bits=16)
    A('s_mov_b32 %s, 1' % sr(s_k))
    A.label(L['small'])
    wstamp(1)
    G2.prologue()
    wstamp(2)
    LN, LE, LO = A.uid('sN'), A.uid('sE'), A.uid('sO')
    A('s_cmp_eq_u32 %s, 1' % sr(s_or))
    A('s_cbranch_scc1 ' + LN)
    G2.mainloop('T', 'st')
    A('s_nop 15')
    A('s_cmp_eq_u32 %s, 1' % sr(s_k))
    A('s_cbranch_scc1 ' + LO)
    A('s_branch ' + LE)
    A.label(LN)
    G2.mainloop('N', 'sn')
    A.label(LE)
    wstamp(3)
    early()
    G2.epi_blk(SRD_WS, v_l16, s_base, s_tbs, s0, ' sc1')
    A('s_branch ' + L_done)
    A.label(LO)
    wstamp(3)
    early()
    G2.epi_out(SRD_O, v_off, s_base)
    A('s_branch ' + L_done)

    A.label(L['wot'])
    A('s_add_u32 %s, %s, %s' % (sr(s_job), sr(s_job), sr(s_p)))
    nt_q(0, 1)
    A('s_lshr_b32 %s, %s, 1' % (sr(s_mt), sr(s_job)))
    mk_srd(A, G.SRD_W, P['A_Wo'], 4096 * 1024 * 2)
    cfg(G2, 5, 'blk', 128 * 2048, 2048)
    A('s_lshl_b32 %s, %s, 8' % (sr(G.s_wo), sr(s_nt)))
    A('s_lshl_b32 %s, %s, 19' % (sr(s0), sr(s_mt)))
    A('s_add_u32 %s, %s, %s' % (sr(G.s_wo), sr(G.s_wo), sr(s0)))
    A('s_mov_b32 %s, 1' % sr(s_inc))
    A('s_mov_b32 %s, %d' % (sr(s_ctr), DBG_WT))
    wstamp(1)
    for st in range(4):
        for g in G2.dma_ops(st)[G2.nX:]:
            for t in g:
                A(t)
        A('s_add_u32 %s, %s, %d' % (sr(G.s_wo), sr(G.s_wo), 64 * 2048))
    A('s_and_b32 %s, %s, 1' % (sr(s0), sr(s_w)))
    A('s_lshl_b32 %s, %s, 1' % (sr(s0), sr(s0)))
    A('s_lshl_b32 %s, %s, 2' % (sr(s1), sr(s_nt)))
    A('s_add_u32 %s, %s, %s' % (sr(s0), sr(s0), sr(s1)))
    A('s_lshl_b32 %s, %s, 18' % (sr(s_base), sr(s0)))
    A('s_lshl_b32 %s, %s, 14' % (sr(s0), sr(s_mt)))
    A('s_add_u32 %s, %s, %s' % (sr(s_base), sr(s_base), sr(s0)))
    A('s_lshr_b32 %s, %s, 1' % (sr(s0), sr(s_w)))
    A('s_lshl_b32 %s, %s, 13' % (sr(s1), sr(s0)))
    A('s_add_u32 %s, %s, %s' % (sr(s_base), sr(s_base), sr(s1)))
    A('s_add_u32 %s, %s, 0x%x' % (sr(s_base), sr(s_base), WOT))
    A('s_mul_i32 %s, %s, %d' % (sr(s0), sr(s0), 2 * G2.STG))
    T = V2.alloc(64, 4)
    ta = [V2.alloc() for _ in range(4)]
    for i in range(2):
        for q in range(2):
            A('v_add_u32 %s, %s, %s' % (vr(ta[2 * i + q]), sr(s0), vr(G2.rw[0][i][q])))
    early()
    A('s_waitcnt vmcnt(0)')
    A('s_barrier')
    for i in range(2):
        for st in range(2):
            for ks in range(4):
                d = T + 4 * ((i * 2 + st) * 4 + ks)
                for q in range(2):
                    A('ds_read_b64_tr_b16 %s, %s offset:%d' % (vr(d + 2 * q, 2), vr(ta[2 * i + q]), st * G2.STG + ks * 16 * G2.wrow))
            A('s_waitcnt lgkmcnt(0)')
    for i in range(2):
        for st in range(2):
            A('s_add_u32 %s, %s, %d' % (sr(s0), sr(s_base), i * 262144 + st * 4096))
            for ks in range(4):
                d = T + 4 * ((i * 2 + st) * 4 + ks)
                A('buffer_store_dwordx4 %s, %s, %s, %s offen offset:%d' % (vr(d, 4), vr(v_l16), sr(SRD_WS, 4), sr(s0), ks * 1024) + ' sc1')
    A('s_branch ' + L_done)

    def wid16():
        A('s_lshl_b32 %s, %s, 4' % (sr(s0), sr(s_q)))
        A('s_add_u32 %s, %s, %s' % (sr(s2_), sr(s_job), sr(s0)))
        A('s_lshl_b32 %s, %s, 2' % (sr(s2_), sr(s2_)))
        A('s_add_u32 %s, %s, %s' % (sr(s2_), sr(s2_), sr(s_w)))
    A.label(L['bkv'])
    if WT2:
        Lnt = A.uid('nt2')
        A('s_cmp_lg_u32 %s, 1' % sr(s_p))
        A('s_cbranch_scc1 ' + Lnt)
        wid16()
        touch([('A_x', 4 << 20)], s2_, 14)
        A.label(Lnt)
    A('s_lshl_b32 %s, %s, 5' % (sr(s0), sr(s_q)))
    A('s_add_u32 %s, %s, %s' % (sr(s_k), sr(s_job), sr(s0)))
    A('s_lshl_b32 %s, %s, 2' % (sr(s_k), sr(s_k)))
    A('s_add_u32 %s, %s, %s' % (sr(s_k), sr(s_k), sr(s_w)))
    A('s_cmp_eq_u32 %s, 3' % sr(s_p))
    A('s_cselect_b32 %s, %s, -1' % (sr(s_k), sr(s_k)))
    A('s_lshr_b32 %s, %s, 3' % (sr(s_mt), sr(s_job)))
    A('s_add_u32 %s, %s, %s' % (sr(s_mt), sr(s_mt), sr(s_p)))
    nt_q(0, 7)
    sel_kv(16)
    ctr(DBG_KV, s_mt, 4)
    A('s_branch ' + L['bigA'])
    A.label(L['q'])
    A('s_mov_b32 %s, -1' % sr(s_k))
    A('s_lshr_b32 %s, %s, 2' % (sr(s_mt), sr(s_job)))
    A('s_add_u32 %s, %s, %s' % (sr(s_mt), sr(s_mt), sr(s_p)))
    nt_q(0, 3)
    A('s_mov_b64 %s, %s' % (sr(s_pp, 2), sr(P['A_Wq'], 2)))
    A('s_mov_b32 %s, 0x%x' % (sr(s_base), QX))
    A('s_mov_b32 %s, 0' % sr(s_or))
    ctr(DBG_QR, s_mt, 1)
    A.label(L['bigA'])
    mk_srd(A, G.SRD_W, s_pp, 1024 * 4096 * 2)
    mk_srd(A, G.SRD_X, P['A_x'], 2048 * 1024 * 2)
    A('s_lshl_b32 %s, %s, 9' % (sr(G.s_wo), sr(s_nt)))
    A('s_mov_b32 %s, %d' % (sr(G.s_ws), 64 * 8192))
    A('s_mov_b32 %s, %d' % (sr(s_tbs), 128 * 2048))
    cfg(G4, 1, 'nat', 2048, 8192)
    A('s_branch ' + L['big'])
    A.label(L['bq'])
    A('s_add_u32 %s, %s, %s' % (sr(s_job), sr(s_job), sr(s_p)))
    A('s_mov_b32 %s, -1' % sr(s_k))
    A('s_mul_i32 %s, %s, 43' % (sr(s_mt), sr(s_job)))
    A('s_lshr_b32 %s, %s, 7' % (sr(s_mt), sr(s_mt)))
    A('s_mul_i32 %s, %s, 3' % (sr(s0), sr(s_mt)))
    A('s_sub_u32 %s, %s, %s' % (sr(s0), sr(s_job), sr(s0)))
    A('s_cmp_eq_u32 %s, 2' % sr(s0))
    A('s_cselect_b32 %s, 1, 0' % sr(s_or))
    A('s_lshl_b32 %s, %s, 22' % (sr(s_base), sr(s0)))
    A('s_add_u32 %s, %s, 0x%x' % (sr(s_base), sr(s_base), QB))
    A('s_lshl_b32 %s, %s, 2' % (sr(s0), sr(s0)))
    A('s_add_u32 %s, %s, %s' % (sr(s0), sr(s0), sr(s_q)))
    A('s_lshl_b32 %s, %s, 9' % (sr(G.s_wo), sr(s0)))
    A('s_mov_b32 %s, %s' % (sr(s_nt), sr(s_q)))
    mk_srd(A, G.SRD_W, P['B_wqkv'], 1024 * 3072 * 2)
    mk_srd(A, G.SRD_X, P['B_x'], 2048 * 1024 * 2)
    A('s_mov_b32 %s, %d' % (sr(G.s_ws), 64 * 6144))
    A('s_mov_b32 %s, %d' % (sr(s_tbs), 32 * 2048))
    ctr(DBG_BQ, s_mt, 1)
    cfg(G4, 2, 'nat', 2048, 6144)
    A.label(L['big'])
    A('s_lshl_b32 %s, %s, 19' % (sr(G.s_xo), sr(s_mt)))
    A('s_mov_b32 %s, 128' % sr(G.s_xs))
    A('s_mov_b32 %s, 7' % sr(G.s_n))
    blk_base(4, 4)
    wstamp(1)
    G4.prologue_issue()
    if OVL:
        Lpe, Lpj = A.uid('pe'), A.uid('pj')
        A('s_cmp_lg_u32 %s, 0' % sr(s_pe))
        A('s_cbranch_scc1 ' + Lpe)
        A('s_waitcnt vmcnt(16)')
        A('s_branch ' + Lpj)
        A.label(Lpe)
        G4.epi_blk(SRD_WS, v_l16, p_base, p_tbs, s0, ' sc1')
        A('s_waitcnt vmcnt(48)')
        A.label(Lpj)
    else:
        A('s_waitcnt vmcnt(16)')
    G4.prologue_finish()
    wstamp(2)

    def sig_prev():
        Ls = A.uid('sp')
        A('s_cmp_eq_u32 %s, 0' % sr(s_pe))
        A('s_cbranch_scc1 ' + Ls)
        A('s_mov_b32 %s, 0' % sr(s_pe))
        A('s_cmp_lg_u32 %s, 0' % sr(s_w))
        A('s_cbranch_scc1 ' + Ls)
        A('s_add_u32 %s, %s, %s' % (sr(s0), sr(p_ctr), sr(s_q)))
        A('s_lshl_b32 %s, %s, 7' % (sr(s0), sr(s0)))
        A('s_add_u32 %s, %s, 0x%x' % (sr(s0), sr(s0), CTR))
        A('v_mov_b32 %s, %s' % (vr(v_a), sr(s0)))
        A('v_mov_b32 %s, %s' % (vr(v_b), sr(p_inc)))
        A('s_mov_b64 exec, 1')
        A('buffer_atomic_add %s, %s, %s, 0 offen sc1' % (vr(v_b), vr(v_a), sr(SRD_WS, 4)))
        A('s_mov_b64 exec, -1')
        A.label(Ls)
    ht = (lambda: early(False)) if OVL else None
    Lnt3 = A.uid('nt3')
    A('s_cmp_eq_u32 %s, -1' % sr(s_k))
    A('s_cbranch_scc1 ' + Lnt3)
    touch([('B_x', 4 << 20), ('B_wo', 2 << 20)], s_k, 13)
    touch([('B_wqkv', 6 << 20)], s_k, 14)
    A.label(Lnt3)
    LN, LE = A.uid('bN'), A.uid('bE')
    A('s_cmp_eq_u32 %s, 1' % sr(s_or))
    A('s_cbranch_scc1 ' + LN)
    G4.mainloop('T', 'bt', sig_prev if OVL else None, ht)
    A('s_nop 15')
    A('s_branch ' + LE)
    A.label(LN)
    G4.mainloop('N', 'bn', sig_prev if OVL else None, ht)
    A.label(LE)
    wstamp(3)
    if OVL:
        Lno, Lw1, Lyes = A.uid('no'), A.uid('w1'), A.uid('yes')
        A('s_nop 11')
        A('s_cmp_eq_u32 %s, 0' % sr(s_et))
        A('s_cbranch_scc1 ' + Lno)
        A('v_mov_b32 %s, %d' % (vr(v_a), LDS_JOB))
        A('s_cmp_lg_u32 %s, 0' % sr(s_w))
        A('s_cbranch_scc1 ' + Lw1)
        A('s_mov_b64 exec, 1')
        A('ds_write_b32 %s, %s' % (vr(v_a), vr(v_tk)))
        A('s_mov_b64 exec, -1')
        A('s_waitcnt lgkmcnt(0)')
        A.label(Lw1)
        A('s_barrier')
        A('ds_read_b32 %s, %s' % (vr(v_b), vr(v_a)))
        A('s_waitcnt lgkmcnt(0)')
        A('v_readfirstlane_b32 %s, %s' % (sr(s1), vr(v_b)))
        A('s_barrier')
        rng, a0 = [], 0
        for k_, n_, p_ in SEGS:
            if k_ in ('bkv', 'q', 'bq'):
                if rng and rng[-1][1] == a0:
                    rng[-1][1] = a0 + n_
                else:
                    rng.append([a0, a0 + n_])
            a0 += n_
        for lo, hi_ in rng:
            if hi_ <= 32:
                continue
            A('s_sub_u32 %s, %s, %d' % (sr(s0), sr(s1), lo - 32))
            A('s_cmp_lt_u32 %s, %d' % (sr(s0), hi_ - lo))
            A('s_cbranch_scc1 ' + Lyes)
        A('s_branch ' + Lno)
        A.label(Lyes)
        wstamp(4)
        wstamp(5)
        A('s_mov_b32 %s, %s' % (sr(p_base), sr(s_base)))
        A('s_mov_b32 %s, %s' % (sr(p_tbs), sr(s_tbs)))
        A('s_mov_b32 %s, %s' % (sr(p_ctr), sr(s_ctr)))
        A('s_mov_b32 %s, %s' % (sr(p_inc), sr(s_inc)))
        A('s_mov_b32 %s, 1' % sr(s_pe))
        A('s_mov_b32 %s, 0' % sr(s_et))
        A('s_mov_b32 %s, %s' % (sr(s_job), sr(s1)))
        A('s_branch ' + L_got)
        A.label(Lno)
    else:
        early()
    G4.epi_blk(SRD_WS, v_l16, s_base, s_tbs, s0, ' sc1')
    A('s_branch ' + L_done)

    def attn_items():
        A('s_mov_b32 %s, 0' % sr(s_cfg))
        A('s_and_b32 %s, %s, 3' % (sr(s0), sr(s_job)))
        A('s_lshl_b32 %s, %s, 2' % (sr(s1), sr(s_q)))
        A('s_add_u32 %s, %s, %s' % (sr(s0), sr(s0), sr(s1)))
        A('s_lshl_b32 %s, %s, 1' % (sr(s0), sr(s0)))
        A('s_and_b32 %s, %s, 1' % (sr(s1), sr(s_w)))
        A('s_add_u32 %s, %s, %s' % (sr(s_it), sr(s0), sr(s1)))
        A('s_lshl_b32 %s, %s, 8' % (sr(s0), sr(s_mt)))
        A('s_add_u32 %s, %s, %s' % (sr(s_it), sr(s_it), sr(s0)))
        A('s_lshr_b32 %s, %s, 1' % (sr(s0), sr(s_w)))
        A('s_lshl_b32 %s, %s, 7' % (sr(s0), sr(s0)))
        A('s_add_u32 %s, %s, %s' % (sr(s_it), sr(s_it), sr(s0)))
        A('s_mov_b32 %s, 4' % sr(s_k))
        wstamp(1)

    def attn_loop(fn, tag):
        Lb = A.uid(tag)
        A.label(Lb)
        fn(A, SRD_WS, s_it, (s0, s1, s2_, s3), v_lane, v_l16, 8, ld=' sc1', stf=' sc1')
        A('s_add_u32 %s, %s, 32' % (sr(s_it), sr(s_it)))
        A('s_sub_u32 %s, %s, 1' % (sr(s_k), sr(s_k)))
        A('s_cmp_lg_u32 %s, 0' % sr(s_k))
        A('s_waitcnt vmcnt(0)')
        A('s_cbranch_scc1 ' + Lb)

    A.label(L['aattn'])
    A('s_lshr_b32 %s, %s, 2' % (sr(s_mt), sr(s_job)))
    A('s_add_u32 %s, %s, %s' % (sr(s_mt), sr(s_mt), sr(s_p)))
    A('s_lshl_b32 %s, %s, 2' % (sr(s_ctr), sr(s_mt)))
    A('s_add_u32 %s, %s, %d' % (sr(s0), sr(s_ctr), DBG_QR))
    A('s_lshl_b32 %s, %s, 3' % (sr(s1), sr(s_mt)))
    A('s_add_u32 %s, %s, %d' % (sr(s1), sr(s1), 7 + LAG))
    wait2(s0, 4, str(DBG_PROG), sr(s1))
    ctr(DBG_AA, s_mt, 1)
    attn_items()
    attn.attn_a_n(A, SRD_WS, s_it, (s0, s1, s2_, s3), v_lane, v_l16, 8, 4, ld=' sc1', stf=' sc1', late=early)
    A('s_branch ' + L_done)

    A.label(L['aattn1'])
    A('s_lshr_b32 %s, %s, 2' % (sr(s_mt), sr(s_p)))
    A('s_lshl_b32 %s, %s, 2' % (sr(s_ctr), sr(s_mt)))
    A('s_lshl_b32 %s, %s, 1' % (sr(s_it), sr(s_p)))
    A('s_lshr_b32 %s, %s, 1' % (sr(s0), sr(s_job)))
    A('s_add_u32 %s, %s, %s' % (sr(s_it), sr(s_it), sr(s0)))
    A('s_add_u32 %s, %s, %d' % (sr(s_tbs), sr(s_it), LAG))
    A('s_mov_b32 %s, %d' % (sr(s_base), DBG_PROG))
    A('s_cmp_gt_u32 %s, 60' % sr(s_it))
    A('s_cselect_b32 %s, 32, %s' % (sr(s_tbs), sr(s_tbs)))
    A('s_cselect_b32 %s, %d, %s' % (sr(s_base), DBG_FIN, sr(s_base)))
    A('s_add_u32 %s, %s, %d' % (sr(s0), sr(s_ctr), DBG_KV))
    A('s_add_u32 %s, %s, %d' % (sr(s1), sr(s_ctr), DBG_QR))
    wait2(s0, 32, s1, 4)
    A('s_add_u32 %s, %s, %d' % (sr(s_ctr), sr(s_ctr), DBG_AA))
    A('s_and_b32 %s, %s, 7' % (sr(s0), sr(s_it)))
    A('s_lshl_b32 %s, %s, 2' % (sr(s0), sr(s0)))
    A('s_lshl_b32 %s, 1, %s' % (sr(s_inc), sr(s0)))
    A('s_lshl_b32 %s, %s, 5' % (sr(s_it), sr(s_it)))
    A('s_lshl_b32 %s, %s, 3' % (sr(s0), sr(s_q)))
    A('s_add_u32 %s, %s, %s' % (sr(s_it), sr(s_it), sr(s0)))
    A('s_and_b32 %s, %s, 1' % (sr(s0), sr(s_job)))
    A('s_lshl_b32 %s, %s, 2' % (sr(s0), sr(s0)))
    A('s_add_u32 %s, %s, %s' % (sr(s_it), sr(s_it), sr(s0)))
    A('s_add_u32 %s, %s, %s' % (sr(s_it), sr(s_it), sr(s_w)))
    A('s_mov_b32 %s, 0' % sr(s_cfg))

    def pw1():
        wait_ctr(s_base, sr(s_tbs), slp=4)
        wstamp(1)
        early()
    attn.attn_a(A, SRD_WS, s_it, (s0, s1, s2_, s3), v_lane, v_l16, 8, ld=' sc1', stf=' sc1', pre_wait=pw1)
    A('s_branch ' + L_done)

    A.label(L['aoute'])
    wait_ctr(str(DBG_WT), 32)
    A('s_lshr_b32 %s, %s, 3' % (sr(s_mt), sr(s_job)))
    A('s_add_u32 %s, %s, %s' % (sr(s_mt), sr(s_mt), sr(s_p)))
    A('s_lshl_b32 %s, %s, 3' % (sr(s_nt), sr(s_q)))
    A('s_and_b32 %s, %s, 7' % (sr(s0), sr(s_job)))
    A('s_add_u32 %s, %s, %s' % (sr(s_nt), sr(s_nt), sr(s0)))
    A('s_mov_b32 %s, 0' % sr(s_inc))
    A('s_mov_b32 %s, 0' % sr(s_cfg))

    def pw2():
        A('s_lshr_b32 %s, %s, 3' % (sr(s0), sr(s_mt)))
        A('s_lshl_b32 %s, %s, 2' % (sr(s0), sr(s0)))
        A('s_add_u32 %s, %s, %d' % (sr(s0), sr(s0), DBG_AA))
        A('s_and_b32 %s, %s, 7' % (sr(s1), sr(s_mt)))
        A('s_lshl_b32 %s, %s, 2' % (sr(s1), sr(s1)))
        wait_ctr(s0, 2, s1, bits=4, slp=4)
        wstamp(1)
    out_direct32(A, SRD_WS, SRD_O, s_w, s_mt, s_nt, (s_base, s_tbs, s0, s_it, s_k), v_lane, v_l16, 8, ' sc1', pw2)
    A('s_branch ' + L_done)

    A.label(L['aoutd'])
    A('s_lshr_b32 %s, %s, 2' % (sr(s0), sr(s_p)))
    A('s_lshl_b32 %s, %s, 2' % (sr(s0), sr(s0)))
    A('s_add_u32 %s, %s, %d' % (sr(s0), sr(s0), DBG_AA))
    A('s_and_b32 %s, %s, 3' % (sr(s1), sr(s_p)))
    A('s_lshl_b32 %s, %s, 3' % (sr(s1), sr(s1)))
    wait2(str(DBG_WT), 32, s0, '0x22', s1)
    A('s_lshl_b32 %s, %s, 1' % (sr(s_mt), sr(s_p)))
    A('s_lshl_b32 %s, %s, 3' % (sr(s_nt), sr(s_q)))
    A('s_add_u32 %s, %s, %s' % (sr(s_nt), sr(s_nt), sr(s_job)))
    A('s_mov_b32 %s, 0' % sr(s_inc))
    A('s_mov_b32 %s, 0' % sr(s_cfg))
    wstamp(1)
    out_direct(A, SRD_WS, SRD_O, s_w, s_mt, s_nt, (s_base, s_tbs, s_it, s0, s1), v_lane, v_l16, v_off, 8, ld=' sc1', pre=early)
    A('s_branch ' + L_done)

    A.label(L['battn'])
    A('s_add_u32 %s, %s, %s' % (sr(s_job), sr(s_job), sr(s_p)))
    A('s_lshr_b32 %s, %s, 2' % (sr(s_mt), sr(s_job)))
    A('s_lshl_b32 %s, %s, 2' % (sr(s_ctr), sr(s_mt)))
    A('s_add_u32 %s, %s, %d' % (sr(s1), sr(s_ctr), DBG_BQ))
    A('s_add_u32 %s, %s, %d' % (sr(s0), sr(s_ctr), DBG_BQ - 4))
    A('s_max_u32 %s, %s, %d' % (sr(s0), sr(s0), DBG_BQ))
    wait2(s0, 3, s1, 3)
    ctr(DBG_BA, s_mt, 1)
    attn_items()
    attn.attn_b4(A, SRD_WS, s_it, (s0, s1, s2_, s3), v_lane, v_l16, 8, ld=' sc1', stf=' sc1', late=early)

    A.label(L_done)
    wstamp(4)
    Lq0 = A.uid('q0')
    A('s_cmp_lg_u32 %s, 0' % sr(s_init))
    A('s_cbranch_scc1 ' + Lq0)
    A('v_cmp_gt_u32 vcc, 8, %s' % vr(v_lane))
    A('v_lshlrev_b32 %s, 2, %s' % (vr(v_a), vr(v_lane)))
    A('v_mov_b32 %s, %d' % (vr(v_b), DBG_INIT))
    A('v_cndmask_b32 %s, %s, %s, vcc' % (vr(v_a), vr(v_b), vr(v_a)))
    A('buffer_load_dword %s, %s, %s, 0 offen sc1' % (vr(v_b), vr(v_a), sr(SRD_D, 4)))
    A('v_cndmask_b32 %s, 1, 32, vcc' % vr(v_a))
    A('s_waitcnt vmcnt(0)')
    A('v_cmp_ne_u32 vcc, %s, %s' % (vr(v_a), vr(v_b)))
    A('s_cbranch_vccnz ' + Lq0)
    A('s_mov_b32 %s, 1' % sr(s_init))
    A.label(Lq0)
    A('s_waitcnt vmcnt(0)')
    wstamp(5)
    dbgt(14)
    Ld1, Ld2, Lsig = A.uid('d1'), A.uid('d2'), A.uid('sig')
    A('v_mov_b32 %s, %d' % (vr(v_a), LDS_JOB))
    A('s_cmp_lg_u32 %s, 0' % sr(s_w))
    A('s_cbranch_scc1 ' + Ld1)
    A('s_mov_b64 exec, 1')
    A('ds_write_b32 %s, %s' % (vr(v_a), vr(v_tk)))
    A('s_mov_b64 exec, -1')
    A('s_waitcnt lgkmcnt(0)')
    A.label(Ld1)
    A('s_barrier')
    Lck = A.uid('ck')
    A('s_cmp_lg_u32 %s, 0' % sr(s_init))
    A('s_cbranch_scc1 ' + Lck)
    place_check(A, SRD_D, v_lane, v_a, v_b, s3, LIM, L_restart)
    A.label(Lck)
    A('s_cmp_lg_u32 %s, 0' % sr(s_w))
    A('s_cbranch_scc1 ' + Ld2)
    A('s_cmp_lg_u32 %s, 0' % sr(s_inc))
    A('s_cbranch_scc1 ' + Lsig)
    A.label(Ld2)
    A('s_cmp_eq_u32 %s, 0' % sr(s_et))
    A('s_cbranch_scc1 ' + L_next)
    A('s_mov_b32 %s, 0' % sr(s_et))
    A('v_mov_b32 %s, %d' % (vr(v_a), LDS_JOB))
    A('ds_read_b32 %s, %s' % (vr(v_b), vr(v_a)))
    A('s_waitcnt lgkmcnt(0)')
    A('v_readfirstlane_b32 %s, %s' % (sr(s_job), vr(v_b)))
    A('s_barrier')
    A('s_branch ' + L_got)
    A.label(Lsig)
    wait_init()
    A('s_add_u32 %s, %s, %s' % (sr(s0), sr(s_ctr), sr(s_q)))
    A('s_lshl_b32 %s, %s, 7' % (sr(s0), sr(s0)))
    A('s_add_u32 %s, %s, 0x%x' % (sr(s0), sr(s0), CTR))
    A('v_mov_b32 %s, %s' % (vr(v_a), sr(s0)))
    A('v_mov_b32 %s, %s' % (vr(v_b), sr(s_inc)))
    A('s_mov_b64 exec, 1')
    A('buffer_atomic_add %s, %s, %s, 0 offen sc1' % (vr(v_b), vr(v_a), sr(SRD_WS, 4)))
    Lk0 = A.uid('k0')
    A('s_cmp_lg_u32 %s, %d' % (sr(s_ctr), DBG_KV))
    A('s_cbranch_scc1 ' + Lk0)
    A('s_cmp_lg_u32 %s, 0' % sr(s_mt))
    A('s_cbranch_scc1 ' + Lk0)
    A('v_add_u32 %s, %d, %s' % (vr(v_a), (DBG_KV0 - DBG_KV) * 128, vr(v_a)))
    A('v_mov_b32 %s, 2' % vr(v_b))
    A('buffer_atomic_add %s, %s, %s, 0 offen sc1' % (vr(v_b), vr(v_a), sr(SRD_WS, 4)))
    A.label(Lk0)
    A('s_mov_b64 exec, -1')
    A('s_branch ' + Ld2)
    return hi
```

```python
from asmlib import *
from layout import *
import struct, os
from kernels import place_check, shift_ptrs


def f32bits(x):
    return struct.unpack('<I', struct.pack('<f', x))[0]


def env(n, d):
    return int(os.environ.get(n, str(d)))


LDS_RED = 131072
LDS_O = LDS_RED + 16384
LDS_ROLE = LDS_O + 8192
NSTEP = env('NSTEP', 64)
POLL_LIMIT = 400000
NEARX = env('NEARX', 1)
DELAY_C = env('DELAY_C', 4)
DELAY_E = env('DELAY_E', 12)
E_BACK = env('E_BACK', 0)
DELAY_V = env('DELAY_V', 6)
RED_SLEEP = env('RED_SLEEP', 3)
NOE_SLEEP = env('NOE_SLEEP', 10)
NOPF = env('NOPF', 0)
FORCE_SAFE = env('FORCE_SAFE', 0)
PFC = env('PFC', 0)
VS = [int(x) for x in os.environ.get('VS', '8,3,5').split(',')]
A2 = env('A2', 1)
S3 = env('S3', 2)
HINT = env('HINT', 7)
DBGT = env('DBGT', 0)
XMAP = int(os.environ.get('XMAP', '0'), 16)
A1P = env('A1P', 0)
ZE = env('ZE', 1)
LITE = [int(x) for x in os.environ.get('LITE', '').split(',') if x]


def gen_chain(A, name, stamps=False, nsteps=NSTEP, worker=None):
    S = Regs('s', 16, 100)
    V = Regs('v', 1, 256)
    SRD_WS, SRD_T = 8, 12
    s_ptr = S.alloc(16, 4)
    (s_w, s_x, s_j, s_t0, s_t1, s_t2, s_t3, s_step, s_slot, s_slot1, s_slot2, s_slotp, s_kx, s_kx2, s_out, s_outp, s_fffe, s_c,
     s_lim, s_cnt, s_vote, s_stamp, s_stl, s_red, s_obm, s_kvo, s_ps, s_ps2, s_m0, s_m1) = [S.alloc() for _ in range(30)]
    s_hf = S.alloc(2, 2)
    s_tm = S.alloc(2, 2)
    s_ta = S.alloc(2, 2)
    s_kvm = S.alloc(2, 2)
    SRD_A = S.alloc(4, 4)
    SRD_B = S.alloc(4, 4)
    SRD_D = S.alloc(4, 4)
    v_lane, v_nu, v_g = V.alloc(), V.alloc(), V.alloc()
    v_t = [V.alloc() for _ in range(8)]
    (va_memr, va_mems, va_rw, va_rr, va_qks, va_rb, va_vs, va_cp, va_prog, va_qkr, va_vmr, va_kx, va_vx, va_ow, va_or, va_pw, va_pr,
     va_pz, va_pd, va_warm, v_idx, v_bias, v_junk, v_kvf, v_junk2, v_sh, va_flg, va_pg) = [V.alloc() for _ in range(28)]
    v_m1 = V.alloc(4, 4)
    v_mask = V.alloc(4, 4)
    v_sel = V.alloc(4, 4)
    v_maskx = V.alloc(4, 4)
    v_ones = V.alloc(4, 4)
    acc1 = V.alloc(4, 4)
    acc2 = V.alloc(4, 4)
    KXA = V.alloc(16, 4)
    KXB = V.alloc(16, 4)
    VXR = V.alloc(32, 4)
    F = V.alloc(64, 4)
    VMR = V.alloc(8, 4)
    QK = V.alloc(16, 4)
    M = V.alloc(16, 4)
    assert KXB == KXA + 16 and VXR == KXA + 32 and F == KXA + 64
    LND = KXA
    AC = F
    HA = F + 32
    RD = F + 48
    SA, SB, SM = F, F + 4, F + 8
    PX, PXH = F + 12, F + 16
    PM, PMH = F + 20, F + 22
    O = F + 28
    LS = F + 44
    v_mx, v_mx2, v_l = F + 48, F + 49, F + 50
    XY = QK
    G = F
    PR = KXA
    RB = KXA + 8
    W1, W2 = 0, 128
    L_exit = name + '_exit'
    nvm = [0]

    def stamp(k):
        if not stamps or (LITE and k not in LITE):
            return
        A('%s %s' % ('s_memrealtime' if stamps == 'rt' else 's_memtime', sr(s_tm, 2)))
        A('s_waitcnt lgkmcnt(0)')
        A('v_mov_b32 %s, %s' % (vr(v_t[7]), sr(s_tm)))
        A('v_mov_b32 %s, %s' % (vr(v_t[6]), sr(s_stl)))
        A('ds_write_b32 %s, %s offset:%d' % (vr(v_t[6]), vr(v_t[7]), 4 * k))
        if k in (0, 2, 6):
            A('v_mov_b32 %s, %s' % (vr(v_t[5]), sr(s_cnt)))
            A('ds_write_b32 %s, %s offset:%d' % (vr(v_t[6]), vr(v_t[5]), 4 * (8 + k)))

    def dbgt(word):
        if not DBGT:
            return
        A('s_memrealtime %s' % sr(s_tm, 2))
        A('s_waitcnt lgkmcnt(0)')
        A('v_mov_b32 %s, %s' % (vr(v_t[7]), sr(s_tm)))
        A('v_mov_b32 %s, %d' % (vr(v_t[6]), word * 4))
        A('s_mov_b64 exec, 1')
        A('buffer_atomic_umax %s, %s, %s, 0 offen sc1' % (vr(v_t[7]), vr(v_t[6]), sr(SRD_T, 4)))
        A('s_mov_b64 exec, -1')

    def srd(dst, ptr, nbytes):
        A('s_mov_b32 %s, %s' % (sr(dst), sr(ptr)))
        A('s_and_b32 %s, %s, 0xffff' % (sr(dst + 1), sr(ptr + 1)))
        A('s_mov_b32 %s, 0x%x' % (sr(dst + 2), nbytes))
        A('s_mov_b32 %s, 0x00020000' % sr(dst + 3))

    A.raw('.p2align 8')
    A.label(name)
    A('s_cmp_ge_u32 s2, 256')
    A('s_cbranch_scc1 ' + L_exit)
    A('s_mov_b32 s%d, 0' % S_MODE)
    L_restart = name + '_restart'
    A.label(L_restart)
    A('s_load_dwordx2 %s, s[0:1], 8' % sr(s_ptr, 2))
    A('s_load_dwordx4 %s, s[0:1], 16' % sr(s_ptr + 4, 4))
    A('s_load_dwordx4 %s, s[0:1], 32' % sr(s_ptr + 8, 4))
    A('s_load_dwordx4 %s, s[0:1], 88' % sr(s_ptr + 12, 4))
    P_MEM0, P_WQ, P_WK, P_WV, P_WO, P_DBG, P_WS = s_ptr, s_ptr + 4, s_ptr + 6, s_ptr + 8, s_ptr + 10, s_ptr + 12, s_ptr + 14
    A('v_and_b32 %s, 63, v0' % vr(v_lane))
    A('v_lshrrev_b32 %s, 6, v0' % vr(v_t[0]))
    A('v_readfirstlane_b32 %s, %s' % (sr(s_w), vr(v_t[0])))
    A('v_and_b32 %s, 15, %s' % (vr(v_nu), vr(v_lane)))
    A('v_lshrrev_b32 %s, 4, %s' % (vr(v_g), vr(v_lane)))
    A('s_waitcnt lgkmcnt(0)')
    shift_ptrs(A, P_WS, P_DBG, s_t0)
    srd(SRD_WS, P_WS, WS_HALF)
    srd(SRD_T, P_DBG, 128)
    L_role = A.uid('role')
    A('s_lshr_b32 %s, s2, 5' % sr(s_x))
    A('s_and_b32 %s, s2, 31' % sr(s_j))
    A('s_cmp_lg_u32 s%d, 0' % S_MODE)
    A('s_cbranch_scc1 ' + L_role)
    A('s_getreg_b32 %s, hwreg(HW_REG_XCC_ID)' % sr(s_x))
    A('s_and_b32 %s, %s, 7' % (sr(s_x), sr(s_x)))
    if XMAP:
        A('s_lshl_b32 %s, %s, 2' % (sr(s_x), sr(s_x)))
        A('s_lshr_b32 %s, 0x%x, %s' % (sr(s_x), XMAP, sr(s_x)))
        A('s_and_b32 %s, %s, 7' % (sr(s_x), sr(s_x)))
    if FORCE_SAFE:
        A('s_cmp_eq_u32 s2, %d' % FORCE_SAFE)
        A('s_cselect_b32 %s, 1, 0' % sr(s_t0))
        A('s_xor_b32 %s, %s, %s' % (sr(s_x), sr(s_x), sr(s_t0)))
    L_norole = A.uid('norole')
    A('s_cmp_lg_u32 %s, 0' % sr(s_w))
    A('s_cbranch_scc1 ' + L_norole)
    A('s_lshl_b32 %s, %s, 2' % (sr(s_t0), sr(s_x)))
    A('v_mov_b32 %s, %s' % (vr(v_t[0]), sr(s_t0)))
    A('v_mov_b32 %s, 1' % vr(v_t[1]))
    A('s_mov_b64 exec, 1')
    A('buffer_atomic_add %s, %s, %s, 0 offen sc0 sc1' % (vr(v_t[1]), vr(v_t[0]), sr(SRD_T, 4)))
    A('s_waitcnt vmcnt(0)')
    A('v_mov_b32 %s, %d' % (vr(v_t[0]), LDS_ROLE))
    A('ds_write_b32 %s, %s' % (vr(v_t[0]), vr(v_t[1])))
    A('s_waitcnt lgkmcnt(0)')
    A('s_mov_b64 exec, -1')
    A.label(L_norole)
    A('s_barrier')
    A('v_mov_b32 %s, %d' % (vr(v_t[0]), LDS_ROLE))
    A('ds_read_b32 %s, %s' % (vr(v_t[1]), vr(v_t[0])))
    A('s_waitcnt lgkmcnt(0)')
    A('v_readfirstlane_b32 %s, %s' % (sr(s_j), vr(v_t[1])))
    A.label(L_role)
    L_work = name + '_worker'
    A('s_mov_b32 s%d, %s' % (S_VX, sr(s_x)))
    A('s_mov_b32 s3, %s' % sr(s_j))
    A('s_cmp_ge_u32 %s, 4' % sr(s_x))
    A('s_cbranch_scc1 ' + L_work)
    A('s_cmp_ge_u32 %s, 32' % sr(s_j))
    A('s_cbranch_scc1 ' + L_work)
    A('s_mov_b32 s3, -1')
    A('s_lshl_b32 %s, %s, 1' % (sr(s_x), sr(s_x)))
    A('s_lshr_b32 %s, %s, 4' % (sr(s_t0), sr(s_j)))
    A('s_add_u32 %s, %s, %s' % (sr(s_x), sr(s_x), sr(s_t0)))
    A('s_and_b32 %s, %s, 15' % (sr(s_j), sr(s_j)))
    A('s_xor_b32 %s, %s, %s' % (sr(s_red), sr(s_x), sr(s_j)))
    A('s_and_b32 %s, %s, 1' % (sr(s_red), sr(s_red)))
    A('s_lshr_b32 %s, %s, 1' % (sr(s_obm), sr(s_x)))
    A('s_lshl_b32 %s, %s, 4' % (sr(s_obm), sr(s_obm)))
    A('s_add_u32 %s, %s, %s' % (sr(s_obm), sr(s_obm), sr(s_j)))
    A('s_lshl_b32 %s, %s, 10' % (sr(s_obm), sr(s_obm)))
    L_noz = A.uid('noz')
    A('s_or_b32 %s, %s, %s' % (sr(s_t0), sr(s_x), sr(s_j)))
    A('s_xor_b32 %s, %s, 1' % (sr(s_t1), sr(s_w)))
    A('s_or_b32 %s, %s, %s' % (sr(s_t0), sr(s_t0), sr(s_t1)))
    A('s_cmp_lg_u32 %s, 0' % sr(s_t0))
    A('s_cbranch_scc1 ' + L_noz)
    A('v_lshlrev_b32 %s, 7, %s' % (vr(v_t[0]), vr(v_lane)))
    A('v_mov_b32 %s, 0' % vr(v_t[1]))
    for i in range(4):
        A('s_mov_b32 %s, 0x%x' % (sr(s_t0), CTR + i * 8192))
        A('buffer_store_dword %s, %s, %s, %s offen sc1' % (vr(v_t[1]), vr(v_t[0]), sr(SRD_WS, 4), sr(s_t0)))
    A('s_waitcnt vmcnt(0)')
    A('v_mov_b32 %s, %d' % (vr(v_t[0]), DBG_INIT))
    A('v_mov_b32 %s, 1' % vr(v_t[1]))
    A('s_mov_b64 exec, 1')
    A('buffer_store_dword %s, %s, %s, 0 offen sc1' % (vr(v_t[1]), vr(v_t[0]), sr(SRD_T, 4)))
    A('s_mov_b64 exec, -1')
    dbgt(10)
    A.label(L_noz)
    for i in range(4):
        A('v_mov_b32 %s, -1' % vr(v_m1 + i))
    l16 = v_t[2]
    A('v_lshlrev_b32 %s, 4, %s' % (vr(l16), vr(v_lane)))
    s_ob = s_t3
    A('s_lshl_b32 %s, %s, 4' % (sr(s_ob), sr(s_x)))
    A('s_add_u32 %s, %s, %s' % (sr(s_ob), sr(s_ob), sr(s_j)))
    A('s_lshl_b32 %s, %s, 10' % (sr(s_ob), sr(s_ob)))

    A('s_lshl_b32 %s, %s, 17' % (sr(s_t0), sr(s_w)))
    A('s_add_u32 %s, %s, %s' % (sr(s_t2), sr(s_t0), sr(s_ob)))
    for base in (QKI, VMI):
        A('s_add_u32 %s, %s, 0x%x' % (sr(s_t1), sr(s_t2), base))
        A('buffer_store_dwordx4 %s, %s, %s, %s offen sc1' % (vr(v_m1, 4), vr(l16), sr(SRD_WS, 4), sr(s_t1)))
    A('s_add_u32 %s, %s, %s' % (sr(s_t0), sr(s_t0), sr(s_obm)))
    A('s_add_u32 %s, %s, 0x%x' % (sr(s_t1), sr(s_t0), MEMI))
    A('buffer_store_dwordx4 %s, %s, %s, %s offen sc1' % (vr(v_m1, 4), vr(l16), sr(SRD_WS, 4), sr(s_t1)))
    A('s_lshl_b32 %s, %s, 14' % (sr(s_t0), sr(s_j)))
    A('s_lshl_b32 %s, %s, 11' % (sr(s_t1), sr(s_w)))
    A('s_add_u32 %s, %s, %s' % (sr(s_t0), sr(s_t0), sr(s_t1)))
    A('s_add_u32 %s, %s, 0x%x' % (sr(s_t0), sr(s_t0), PART))
    A('v_add_u32 %s, %s, %s' % (vr(va_pr), sr(s_t0), vr(l16)))
    A('s_lshl_b32 %s, %s, 8' % (sr(s_t1), sr(s_x)))
    A('v_add_u32 %s, %s, %s' % (vr(va_pw), sr(s_t1), vr(va_pr)))
    A('v_add_u32 %s, 8192, %s' % (vr(va_pz), vr(va_pw)))
    A('s_mov_b64 exec, 0xffff')
    for sl in range(4):
        A('s_mov_b32 %s, 0x%x' % (sr(s_t1), sl * 0x40000))
        A('buffer_store_dwordx4 %s, %s, %s, %s offen sc1' % (vr(v_m1, 4), vr(va_pw), sr(SRD_WS, 4), sr(s_t1)))
        A('buffer_store_dwordx4 %s, %s, %s, %s offen sc1' % (vr(v_m1, 4), vr(va_pz), sr(SRD_WS, 4), sr(s_t1)))
    A('s_mov_b64 exec, -1')
    A('s_lshr_b32 %s, %s, 1' % (sr(s_t0), sr(s_x)))
    A('s_lshl_b32 %s, %s, 8' % (sr(s_t0), sr(s_t0)))
    A('s_add_u32 %s, %s, 0x%x' % (sr(s_t0), sr(s_t0), FLG))
    A('v_lshl_add_u32 %s, %s, 2, %s' % (vr(va_flg), vr(v_nu), sr(s_t0)))
    Lfr = A.uid('fr')
    A('s_cmp_eq_u32 %s, 0' % sr(s_red))
    A('s_cbranch_scc1 ' + Lfr)
    A('s_and_b32 %s, %s, 1' % (sr(s_t1), sr(s_x)))
    A('s_lshl_b32 %s, %s, 5' % (sr(s_t1), sr(s_t1)))
    A('s_add_u32 %s, %s, %s' % (sr(s_t0), sr(s_t0), sr(s_t1)))
    A('s_lshr_b32 %s, %s, 1' % (sr(s_t1), sr(s_j)))
    A('s_lshl_b32 %s, %s, 2' % (sr(s_t1), sr(s_t1)))
    A('s_add_u32 %s, %s, %s' % (sr(s_t0), sr(s_t0), sr(s_t1)))
    A('v_min_u32 %s, 1, v0' % vr(va_flg))
    A('v_lshl_add_u32 %s, %s, 28, %s' % (vr(va_flg), vr(va_flg), sr(s_t0)))
    A('buffer_store_dword %s, %s, %s, 0 offen sc1' % (vr(v_m1), vr(va_flg), sr(SRD_WS, 4)))
    A.label(Lfr)
    L_nocal, L_nocal2 = A.uid('nocal'), A.uid('nocal2')
    A('s_mov_b32 %s, 1' % sr(s_vote))
    A('s_cmp_ge_u32 %s, 8' % sr(s_j))
    A('s_cbranch_scc1 ' + L_nocal2)
    A('s_bitcmp1_b32 %s, 0' % sr(s_x))
    A('s_cbranch_scc1 ' + L_nocal2)
    A('s_waitcnt vmcnt(0)')
    A('s_barrier')
    A('s_cmp_lg_u32 %s, 0' % sr(s_w))
    A('s_cbranch_scc1 ' + L_nocal)
    A('s_mov_b32 %s, -1' % sr(s_m0))
    A('s_mov_b32 %s, -1' % sr(s_m1))
    A('s_mov_b64 exec, 0xffff')
    for rep in range(3):
        for c in range(2):
            A('s_mov_b32 %s, %d' % (sr(s_t1), 0x40000 + rep * 0x40000))
            A('s_memtime %s' % sr(s_ta, 2))
            A('s_waitcnt lgkmcnt(0)')
            A('buffer_store_dwordx4 %s, %s, %s, %s offen sc1' % (vr(v_m1, 4), vr(va_pz if c else va_pw), sr(SRD_WS, 4), sr(s_t1)))
            A('s_waitcnt vmcnt(0)')
            A('s_memtime %s' % sr(s_tm, 2))
            A('s_waitcnt lgkmcnt(0)')
            A('s_sub_u32 %s, %s, %s' % (sr(s_t2), sr(s_tm), sr(s_ta)))
            A('s_min_u32 %s, %s, %s' % (sr(s_m1 if c else s_m0), sr(s_m1 if c else s_m0), sr(s_t2)))
    A('s_cmp_lt_u32 %s, %s' % (sr(s_m1), sr(s_m0)))
    A('s_cselect_b32 %s, 0x10001, 1' % sr(s_vote))
    A('s_mov_b64 exec, -1')
    A.label(L_nocal)
    A('s_barrier')
    A.label(L_nocal2)

    s_col = s_t2
    A('s_lshr_b32 %s, %s, 4' % (sr(s_col), sr(s_ob)))
    vw = v_t[4]
    A('v_lshrrev_b32 %s, 2, %s' % (vr(vw), vr(v_lane)))
    A('v_lshlrev_b32 %s, 13, %s' % (vr(vw), vr(vw)))
    A('v_and_b32 %s, 3, %s' % (vr(v_t[5]), vr(v_lane)))
    A('v_lshl_add_u32 %s, %s, 4, %s' % (vr(vw), vr(v_t[5]), vr(vw)))
    A('s_lshl_b32 %s, %s, 17' % (sr(s_t0), sr(s_w)))
    A('s_add_u32 %s, %s, %s' % (sr(s_col), sr(s_col), sr(s_t0)))
    A('s_lshl_b32 %s, %s, 10' % (sr(s_t0), sr(s_w)))
    for mi, P in enumerate((P_WQ, P_WK)):
        srd(SRD_A, P, 1024 * 4096 * 2)
        for i in range(16):
            A('s_add_u32 m0, %s, %d' % (sr(s_t0), mi * 65536 + i * 4096))
            A('s_add_u32 %s, %s, %d' % (sr(s_t1), sr(s_col), i * 4 * 131072))
            A('buffer_load_dwordx4 %s, %s, %s offen lds' % (vr(vw), sr(SRD_A, 4), sr(s_t1)))
        if mi == 0:
            A('s_waitcnt vmcnt(16)')
            A('s_barrier')
            L_nord = A.uid('nord')
            A('s_cmp_lg_u32 %s, 0' % sr(s_w))
            A('s_cbranch_scc1 ' + L_nord)
            A('v_mov_b32 %s, 32' % vr(acc2))
            A('v_mov_b32 %s, %s' % (vr(acc2 + 1), sr(s_vote)))
            A('s_mov_b64 exec, 1')
            A('buffer_atomic_add %s, %s, %s, 0 offen sc1' % (vr(acc2 + 1), vr(acc2), sr(SRD_T, 4)))
            A('s_mov_b64 exec, -1')
            A.label(L_nord)
            A('s_nop 4')
    v2 = v_t[5]
    LwN, LwJ = A.uid('wN'), A.uid('wJ')
    A('s_cmp_lg_u32 %s, 0' % sr(s_red))
    A('s_cbranch_scc1 ' + LwN)
    srd(SRD_B, P_WV, 1024 * 4096 * 2)
    A('v_lshrrev_b32 %s, 3, %s' % (vr(v2), vr(v_lane)))
    A('v_lshlrev_b32 %s, 13, %s' % (vr(v2), vr(v2)))
    A('v_and_b32 %s, 7, %s' % (vr(v_t[6]), vr(v_lane)))
    A('v_lshl_add_u32 %s, %s, 4, %s' % (vr(v2), vr(v_t[6]), vr(v2)))
    A('s_lshr_b32 %s, %s, 4' % (sr(s_t2), sr(s_ob)))
    A('s_andn2_b32 %s, %s, 64' % (sr(s_t2), sr(s_t2)))
    A('s_lshl_b32 %s, %s, 16' % (sr(s_t1), sr(s_w)))
    A('s_add_u32 %s, %s, %s' % (sr(s_t2), sr(s_t2), sr(s_t1)))
    A('s_mov_b32 %s, %d' % (sr(s_t0), 4 * 65536))
    A('s_branch ' + LwJ)
    A.label(LwN)
    srd(SRD_B, P_WO, 4096 * 1024 * 2)
    A('v_lshlrev_b32 %s, 11, %s' % (vr(v2), vr(v_g)))
    A('v_lshl_add_u32 %s, %s, 4, %s' % (vr(v2), vr(v_nu), vr(v2)))
    A('s_lshl_b32 %s, %s, 20' % (sr(s_t2), sr(s_x)))
    A('s_lshr_b32 %s, %s, 1' % (sr(s_t1), sr(s_j)))
    A('s_lshl_b32 %s, %s, 8' % (sr(s_t1), sr(s_t1)))
    A('s_add_u32 %s, %s, %s' % (sr(s_t2), sr(s_t2), sr(s_t1)))
    A('s_lshl_b32 %s, %s, 13' % (sr(s_t1), sr(s_w)))
    A('s_add_u32 %s, %s, %s' % (sr(s_t2), sr(s_t2), sr(s_t1)))
    A('s_mov_b32 %s, %d' % (sr(s_t0), 4 * 8192))
    A.label(LwJ)
    for i in range(32):
        A('buffer_load_dwordx4 %s, %s, %s, %s offen' % (vr(LND + 4 * i, 4), vr(v2), sr(SRD_B, 4), sr(s_t2)))
        A('s_add_u32 %s, %s, %s' % (sr(s_t2), sr(s_t2), sr(s_t0)))
    srd(SRD_D, P_MEM0, 8 * 1024 * 2)
    vm0 = v_t[6]
    A('v_and_b32 %s, 7, %s' % (vr(vm0), vr(v_nu)))
    A('v_lshlrev_b32 %s, 11, %s' % (vr(vm0), vr(vm0)))
    A('v_lshl_add_u32 %s, %s, 5, %s' % (vr(vm0), vr(v_g), vr(vm0)))
    A('v_lshrrev_b32 %s, 3, %s' % (vr(v_t[7]), vr(v_nu)))
    A('v_lshl_add_u32 %s, %s, 2, %s' % (vr(vm0), vr(v_t[7]), vr(vm0)))
    A('s_lshl_b32 %s, %s, 9' % (sr(s_t1), sr(s_w)))
    for k in range(4):
        for a in range(4):
            A('buffer_load_dword %s, %s, %s, %s offen offset:%d' % (vr(M + 4 * k + a), vr(vm0), sr(SRD_D, 4), sr(s_t1), k * 128 + a * 8))

    A('s_mov_b32 %s, 0xfffefffe' % sr(s_fffe))
    A('s_mov_b32 %s, 0x%x' % (sr(s_c), f32bits(128 ** -0.5 * 1.4426950408889634)))
    A('s_mov_b32 %s, %d' % (sr(s_lim), POLL_LIMIT))
    A('s_mov_b32 %s, 0xff00ff00' % sr(s_hf))
    A('s_mov_b32 %s, 0xff00ff00' % sr(s_hf + 1))
    ta, tb, tc = v_t[0], v_t[1], v_t[7]
    A('v_mov_b32 %s, 0x%x' % (vr(ta), f32bits(-1e30)))
    for i in range(4):
        A('v_cndmask_b32 %s, 0, %s, %s' % (vr(v_maskx + i), vr(ta), sr(s_hf, 2)))
    A('v_cmp_gt_u32 vcc, 32, %s' % vr(v_lane))
    for i in range(4):
        A('v_cndmask_b32 %s, %s, %s, vcc' % (vr(v_mask + i), vr(v_maskx), vr(ta)))
    A('v_mov_b32 %s, 0x%x' % (vr(ta), f32bits(-3e38)))
    A('v_cndmask_b32 %s, %s, 0, %s' % (vr(v_bias), vr(ta), sr(s_hf, 2)))
    for i in range(4):
        A('v_mov_b32 %s, 0x3f803f80' % vr(v_ones + i))
    A('v_mov_b32 %s, 0x4444' % vr(ta))
    A('v_mov_b32 %s, 0xeeee' % vr(tb))
    A('v_cndmask_b32 %s, %s, %s, %s' % (vr(v_idx), vr(ta), vr(tb), sr(s_hf, 2)))
    A('v_bfe_u32 %s, %s, 2, 1' % (vr(ta), vr(v_nu)))
    A('v_bfe_u32 %s, %s, 1, 1' % (vr(tb), vr(v_nu)))
    A('v_lshl_add_u32 %s, %s, 1, %s' % (vr(ta), vr(tb), vr(ta)))
    A('v_and_b32 %s, 1, %s' % (vr(tb), vr(v_nu)))
    A('v_lshlrev_b32 %s, 4, %s' % (vr(tb), vr(tb)))
    A('v_mov_b32 %s, 0x3f80' % vr(tc))
    A('v_lshlrev_b32 %s, %s, %s' % (vr(tb), vr(tb), vr(tc)))
    for d in range(4):
        A('v_cmp_eq_u32 vcc, %d, %s' % (d, vr(ta)))
        A('v_cndmask_b32 %s, 0, %s, vcc' % (vr(v_sel + d), vr(tb)))

    s_p, s_wh = s_t0, s_t1
    A('s_and_b32 %s, %s, 1' % (sr(s_p), sr(s_w)))
    A('s_lshr_b32 %s, %s, 1' % (sr(s_wh), sr(s_w)))
    A('s_lshl_b32 %s, %s, 12' % (sr(s_t2), sr(s_w)))
    A('v_add_u32 %s, %s, %s' % (vr(ta), sr(s_t2), vr(l16)))
    A('s_lshr_b32 %s, %s, 1' % (sr(s_t2), sr(s_x)))
    A('s_lshl_b32 %s, %s, 14' % (sr(s_t2), sr(s_t2)))
    A('s_add_u32 %s, %s, 0x%x' % (sr(s_t2), sr(s_t2), MEMI))
    A('v_add_u32 %s, %s, %s' % (vr(va_memr), sr(s_t2), vr(ta)))
    A('s_lshl_b32 %s, %s, 14' % (sr(s_t2), sr(s_x)))
    A('s_add_u32 %s, %s, 0x%x' % (sr(s_t2), sr(s_t2), QKI))
    A('v_add_u32 %s, %s, %s' % (vr(va_qkr), sr(s_t2), vr(ta)))
    A('s_lshl_b32 %s, %s, 12' % (sr(s_cnt), sr(s_w)))
    A('s_add_u32 %s, %s, %s' % (sr(s_t2), sr(s_t2), sr(s_cnt)))
    A('s_add_u32 %s, %s, 0x%x' % (sr(s_t2), sr(s_t2), VMI - QKI))
    A('v_and_b32 %s, 31, %s' % (vr(va_vmr), vr(v_lane)))
    A('v_lshlrev_b32 %s, 4, %s' % (vr(va_vmr), vr(va_vmr)))
    A('v_lshrrev_b32 %s, 5, %s' % (vr(ta), vr(v_lane)))
    A('v_xor_b32 %s, 1, %s' % (vr(ta), vr(ta)))
    A('v_lshl_add_u32 %s, %s, 11, %s' % (vr(va_vmr), vr(ta), vr(va_vmr)))
    A('v_add_u32 %s, %s, %s' % (vr(va_vmr), sr(s_t2), vr(va_vmr)))
    A('s_lshl_b32 %s, %s, 12' % (sr(s_t2), sr(s_w)))
    A('s_add_u32 %s, %s, %d' % (sr(s_t2), sr(s_t2), LDS_RED))
    A('v_lshl_add_u32 %s, %s, 3, %s' % (vr(va_rw), vr(v_lane), sr(s_t2)))
    A('v_lshrrev_b32 %s, 5, %s' % (vr(ta), vr(v_lane)))
    A('v_lshlrev_b32 %s, 13, %s' % (vr(ta), vr(ta)))
    A('v_and_b32 %s, 31, %s' % (vr(tb), vr(v_lane)))
    A('v_lshl_add_u32 %s, %s, 4, %s' % (vr(ta), vr(tb), vr(ta)))
    A('s_lshl_b32 %s, %s, 9' % (sr(s_t2), sr(s_w)))
    A('s_add_u32 %s, %s, %d' % (sr(s_t2), sr(s_t2), LDS_RED))
    A('v_add_u32 %s, %s, %s' % (vr(va_rr), sr(s_t2), vr(ta)))
    vR, vcp, vH = tc, acc1, acc1 + 1
    A('v_bfe_u32 %s, %s, 3, 1' % (vr(ta), vr(v_lane)))
    A('v_bfe_u32 %s, %s, 4, 1' % (vr(tb), vr(v_lane)))
    A('v_lshlrev_b32 %s, 2, %s' % (vr(vR), vr(ta)))
    A('v_lshl_add_u32 %s, %s, 1, %s' % (vr(vR), vr(tb), vr(vR)))
    A('v_and_b32 %s, 7, %s' % (vr(vcp), vr(v_lane)))
    A('v_lshrrev_b32 %s, 5, %s' % (vr(vH), vr(v_lane)))
    A('v_lshlrev_b32 %s, 8, %s' % (vr(va_vs), vr(ta)))
    A('v_lshl_add_u32 %s, %s, 5, %s' % (vr(va_vs), vr(vcp), vr(va_vs)))
    A('v_lshl_add_u32 %s, %s, 4, %s' % (vr(va_vs), vr(vH), vr(va_vs)))
    A('v_lshl_add_u32 %s, %s, 2, %s' % (vr(va_vs), vr(tb), vr(va_vs)))
    A('s_andn2_b32 %s, %s, 1024' % (sr(s_t2), sr(s_ob)))
    A('s_lshl_b32 %s, %s, 10' % (sr(s_cnt), sr(s_wh)))
    A('s_add_u32 %s, %s, %s' % (sr(s_t2), sr(s_t2), sr(s_cnt)))
    A('s_lshl_b32 %s, %s, 3' % (sr(s_cnt), sr(s_p)))
    A('s_add_u32 %s, %s, %s' % (sr(s_t2), sr(s_t2), sr(s_cnt)))
    A('s_add_u32 %s, %s, 0x%x' % (sr(s_t2), sr(s_t2), VMI))
    A('v_add_u32 %s, %s, %s' % (vr(va_vs), sr(s_t2), vr(va_vs)))
    A('v_bfe_u32 %s, %s, 1, 1' % (vr(ta), vr(vcp)))
    A('v_lshlrev_b32 %s, 8, %s' % (vr(va_qks), vr(ta)))
    A('v_add_u32 %s, %s, %s' % (vr(vR), vr(vR), vr(vH)))
    A('v_lshl_add_u32 %s, %s, 4, %s' % (vr(va_qks), vr(vR), vr(va_qks)))
    A('v_lshrrev_b32 %s, 2, %s' % (vr(ta), vr(vcp)))
    A('v_lshl_add_u32 %s, %s, 3, %s' % (vr(va_qks), vr(ta), vr(va_qks)))
    A('v_and_b32 %s, 1, %s' % (vr(ta), vr(vcp)))
    A('v_lshl_add_u32 %s, %s, 2, %s' % (vr(va_qks), vr(ta), vr(va_qks)))
    A('s_lshl_b32 %s, %s, 9' % (sr(s_t2), sr(s_p)))
    A('v_add_u32 %s, %s, %s' % (vr(va_qks), sr(s_t2), vr(va_qks)))
    A('s_lshl_b32 %s, %s, 7' % (sr(s_t2), sr(s_wh)))
    A('s_add_u32 %s, %s, %s' % (sr(s_t2), sr(s_t2), sr(s_ob)))
    A('s_add_u32 %s, %s, 0x%x' % (sr(s_t2), sr(s_t2), QKI))
    A('v_add_u32 %s, %s, %s' % (vr(va_qks), sr(s_t2), vr(va_qks)))
    A('v_lshlrev_b32 %s, 4, %s' % (vr(va_mems), vr(v_nu)))
    A('v_lshl_add_u32 %s, %s, 2, %s' % (vr(va_mems), vr(v_g), vr(va_mems)))
    A('s_lshl_b32 %s, %s, 8' % (sr(s_t2), sr(s_w)))
    A('s_add_u32 %s, %s, %s' % (sr(s_t2), sr(s_t2), sr(s_obm)))
    A('s_add_u32 %s, %s, 0x%x' % (sr(s_t2), sr(s_t2), MEMI))
    A('v_add_u32 %s, %s, %s' % (vr(va_mems), sr(s_t2), vr(va_mems)))
    A('s_lshl_b32 %s, %s, 10' % (sr(s_t2), sr(s_wh)))
    A('s_xor_b32 %s, %s, %s' % (sr(s_kvo), sr(s_t2), sr(s_ob)))
    A('s_lshl_b32 %s, %s, 19' % (sr(s_t2), sr(s_p)))
    A('s_add_u32 %s, %s, %s' % (sr(s_t2), sr(s_t2), sr(s_kvo)))
    A('s_add_u32 %s, %s, 0x%x' % (sr(s_t2), sr(s_t2), QKI))
    A('s_lshl_b32 %s, %s, 23' % (sr(s_cnt), sr(s_p)))
    A('s_add_u32 %s, %s, %s' % (sr(s_cnt), sr(s_cnt), sr(s_kvo)))
    A('s_add_u32 %s, %s, 0x%x' % (sr(s_cnt), sr(s_cnt), KMO))
    assert VMO - KMO == 1 << 23 and VMI - QKI == 1 << 19
    A('v_add_u32 %s, %s, %s' % (vr(va_rb), sr(s_t2), vr(l16)))
    A('v_add_u32 %s, %s, %s' % (vr(va_cp), sr(s_cnt), vr(l16)))
    A('s_or_b32 %s, %s, %s' % (sr(s_t2), sr(s_x), sr(s_j)))
    A('s_xor_b32 %s, %s, 3' % (sr(s_cnt), sr(s_w)))
    A('s_or_b32 %s, %s, %s' % (sr(s_t2), sr(s_t2), sr(s_cnt)))
    A('s_cmp_eq_u32 %s, 0' % sr(s_t2))
    A('s_mov_b32 %s, 0x%x' % (sr(s_cnt), CTR + DBG_PROG * 128))
    A('s_cselect_b32 %s, %s, 0x%x' % (sr(s_t2), sr(s_cnt), WS_BYTES))
    A('v_and_b32 %s, 3, %s' % (vr(v_sh), vr(v_lane)))
    A('v_lshlrev_b32 %s, 7, %s' % (vr(v_sh), vr(v_sh)))
    A('v_add_u32 %s, %s, %s' % (vr(va_prog), sr(s_t2), vr(v_sh)))
    A('v_cmp_lt_u32 vcc, 3, %s' % vr(v_lane))
    A('v_mov_b32 %s, 0x%x' % (vr(ta), WS_BYTES))
    A('v_cndmask_b32 %s, %s, %s, vcc' % (vr(va_prog), vr(va_prog), vr(ta)))
    A('v_add_u32 %s, 0x%x, %s' % (vr(v_sh), CTR, vr(v_sh)))
    s_h = s_t2
    A('s_lshl_b32 %s, %s, 2' % (sr(s_h), sr(s_x)))
    A('s_add_u32 %s, %s, %s' % (sr(s_h), sr(s_h), sr(s_w)))
    A('s_lshl_b32 %s, %s, 13' % (sr(s_h), sr(s_h)))
    A('v_and_b32 %s, 1, %s' % (vr(ta), vr(v_g)))
    A('v_lshrrev_b32 %s, 1, %s' % (vr(tb), vr(v_g)))
    A('v_lshlrev_b32 %s, 9, %s' % (vr(va_kx), vr(ta)))
    A('v_lshl_add_u32 %s, %s, 10, %s' % (vr(va_kx), vr(tb), vr(va_kx)))
    A('v_add_u32 %s, %s, %s' % (vr(va_kx), sr(s_h), vr(va_kx)))
    A('v_lshl_add_u32 %s, %s, 4, %s' % (vr(va_vx), vr(v_nu), vr(va_kx)))
    A('v_add_u32 %s, 0x%x, %s' % (vr(va_vx), VX, vr(va_vx)))
    A('v_lshrrev_b32 %s, 3, %s' % (vr(ta), vr(v_nu)))
    A('v_lshl_add_u32 %s, %s, 8, %s' % (vr(va_kx), vr(ta), vr(va_kx)))
    A('v_and_b32 %s, 7, %s' % (vr(ta), vr(v_nu)))
    A('v_lshl_add_u32 %s, %s, 4, %s' % (vr(va_kx), vr(ta), vr(va_kx)))
    A('v_add_u32 %s, 0x%x, %s' % (vr(va_kx), KX, vr(va_kx)))
    A('s_lshr_b32 %s, %s, 1' % (sr(s_t2), sr(s_j)))
    A('s_lshl_b32 %s, %s, 2' % (sr(s_t2), sr(s_t2)))
    A('s_add_u32 %s, %s, %s' % (sr(s_t2), sr(s_t2), sr(s_w)))
    A('s_and_b32 %s, %s, 15' % (sr(s_cnt), sr(s_t2)))
    A('s_lshl_b32 %s, %s, 11' % (sr(s_cnt), sr(s_cnt)))
    A('s_lshr_b32 %s, %s, 4' % (sr(s_t2), sr(s_t2)))
    A('s_lshl_b32 %s, %s, 24' % (sr(s_t2), sr(s_t2)))
    assert VX - KX == 1 << 24
    A('s_add_u32 %s, %s, %s' % (sr(s_t2), sr(s_t2), sr(s_cnt)))
    A('s_lshl_b32 %s, %s, 15' % (sr(s_cnt), sr(s_x)))
    A('s_add_u32 %s, %s, %s' % (sr(s_t2), sr(s_t2), sr(s_cnt)))
    A('s_add_u32 %s, %s, 0x%x' % (sr(s_t2), sr(s_t2), KX))
    A('v_lshl_add_u32 %s, %s, 5, %s' % (vr(va_warm), vr(v_lane), sr(s_t2)))
    A('v_add_u32 %s, %d, %s' % (vr(va_or), LDS_O, vr(l16)))
    A('v_lshrrev_b32 %s, 3, %s' % (vr(ta), vr(v_nu)))
    A('v_mul_u32_u24 %s, %d, %s' % (vr(ta), 1024 - 128, vr(ta)))
    A('s_lshl_b32 %s, %s, 11' % (sr(s_t2), sr(s_w)))
    A('v_add3_u32 %s, %s, %s, %s' % (vr(va_ow), sr(s_t2), vr(va_or), vr(ta)))
    if stamps:
        A('s_lshl_b32 %s, %s, 4' % (sr(s_stamp), sr(s_ob)))
        A('s_lshl_b32 %s, %s, 12' % (sr(s_t2), sr(s_w)))
        A('s_add_u32 %s, %s, %s' % (sr(s_stamp), sr(s_stamp), sr(s_t2)))
        A('s_add_u32 %s, %s, 0x%x' % (sr(s_stamp), sr(s_stamp), STAMP))
        A('s_add_u32 %s, %s, 65536' % (sr(s_stl), sr(s_t2)))

    vq1, vq2, vr_, vcq = acc1, acc1 + 1, acc1 + 2, acc1 + 3
    A('v_bfe_u32 %s, %s, 2, 2' % (vr(vr_), vr(v_lane)))
    A('v_and_b32 %s, 3, %s' % (vr(vcq), vr(v_lane)))
    A('v_lshl_add_u32 %s, %s, 3, %s' % (vr(vq2), vr(v_g), vr(vr_)))
    A('v_lshlrev_b32 %s, 6, %s' % (vr(vq1), vr(vq2)))
    A('v_lshl_add_u32 %s, %s, 3, %s' % (vr(vq1), vr(vcq), vr(vq1)))
    A('s_lshl_b32 %s, %s, 14' % (sr(s_t2), sr(s_w)))
    A('v_add_u32 %s, %s, %s' % (vr(vq1), sr(s_t2), vr(vq1)))
    A('v_add_u32 %s, 65536, %s' % (vr(tb), vr(vq1)))
    A('s_waitcnt vmcnt(48)')
    A('s_barrier')
    for kk in range(4):
        for tl in range(4):
            for bh in range(2):
                for q in range(2):
                    A('ds_read_b64_tr_b16 %s, %s offset:%d' % (ar(W1 + 8 * (kk * 4 + tl) + 4 * bh + 2 * q, 2), vr(tb if tl >= 2 else vq1), kk * 4096 + bh * 2048 + q * 256 + (tl & 1) * 32))
            A('s_waitcnt lgkmcnt(8)')
    A('s_waitcnt lgkmcnt(0)')
    A('s_barrier')
    A('s_waitcnt vmcnt(0)')
    A('s_lshl_b32 %s, %s, 10' % (sr(s_t2), sr(s_w)))
    A('v_add_u32 %s, %s, %s' % (vr(ta), sr(s_t2), vr(l16)))
    A('v_add_u32 %s, 65536, %s' % (vr(tb), vr(ta)))
    for i in range(32):
        A('ds_write_b128 %s, %s offset:%d' % (vr(ta if i < 16 else tb), vr(LND + 4 * i, 4), (i & 15) * 4096))
        if i & 3 == 3:
            A('s_waitcnt lgkmcnt(8)')
    A('s_waitcnt lgkmcnt(0)')
    A('s_barrier')
    LtN, LtJ = A.uid('tN'), A.uid('tJ')
    A('s_cmp_lg_u32 %s, 0' % sr(s_red))
    A('s_cbranch_scc1 ' + LtN)
    A('v_lshlrev_b32 %s, 7, %s' % (vr(ta), vr(vq2)))
    A('v_lshl_add_u32 %s, %s, 3, %s' % (vr(ta), vr(vcq), vr(ta)))
    A('s_lshl_b32 %s, %s, 15' % (sr(s_t2), sr(s_w)))
    A('v_add_u32 %s, %s, %s' % (vr(ta), sr(s_t2), vr(ta)))
    for kk in range(4):
        for tv in range(4):
            for bh in range(2):
                for q in range(2):
                    A('ds_read_b64_tr_b16 %s, %s offset:%d' % (ar(W2 + 8 * (kk * 4 + tv) + 4 * bh + 2 * q, 2), vr(ta), kk * 8192 + bh * 4096 + q * 512 + tv * 32))
            A('s_waitcnt lgkmcnt(8)')
    A('s_branch ' + LtJ)
    A.label(LtN)
    A('v_and_b32 %s, 1, %s' % (vr(ta), vr(v_g)))
    A('v_lshl_add_u32 %s, %s, 5, %s' % (vr(ta), vr(ta), vr(vr_)))
    A('v_lshrrev_b32 %s, 1, %s' % (vr(tb), vr(v_g)))
    A('v_lshl_add_u32 %s, %s, 2, %s' % (vr(ta), vr(tb), vr(ta)))
    A('v_lshlrev_b32 %s, 8, %s' % (vr(ta), vr(ta)))
    A('v_lshl_add_u32 %s, %s, 3, %s' % (vr(ta), vr(vcq), vr(ta)))
    A('s_lshl_b32 %s, %s, 5' % (sr(s_t2), sr(s_w)))
    A('v_add_u32 %s, %s, %s' % (vr(ta), sr(s_t2), vr(ta)))
    A('v_add_u32 %s, 65536, %s' % (vr(tb), vr(ta)))
    for k in range(8):
        for u in range(2):
            for bh in range(2):
                for q in range(2):
                    A('ds_read_b64_tr_b16 %s, %s offset:%d' % (ar(W2 + 8 * (k * 2 + u) + 4 * bh + 2 * q, 2), vr(ta if k < 4 else tb), (k & 3) * 16384 + q * 4096 + bh * 2048 + u * 128))
            A('s_waitcnt lgkmcnt(8)')
    A.label(LtJ)
    A('s_waitcnt lgkmcnt(0)')
    A('s_barrier')

    def pf_ops():
        o = []
        for eb in range(4):
            so = s_kx if eb < 2 else s_kx2
            o.append('buffer_load_dwordx4 %s, %s, %s, %s offen offset:%d sc1' % (vr(KXA + 4 * eb, 4), vr(va_kx), sr(SRD_WS, 4), sr(so), (eb & 1) * 2048))
            o.append('buffer_load_dwordx4 %s, %s, %s, %s offen offset:%d sc1' % (vr(KXB + 4 * eb, 4), vr(va_kx), sr(SRD_WS, 4), sr(so), (eb & 1) * 2048 + 128))
        for T in range(8):
            eb = T >> 1
            so = s_kx if eb < 2 else s_kx2
            o.append('buffer_load_dwordx4 %s, %s, %s, %s offen offset:%d sc1' % (vr(VXR + 4 * T, 4), vr(va_vx), sr(SRD_WS, 4), sr(so), (eb & 1) * 2048 + (T & 1) * 256))
        return o

    def emit(t):
        A(t)
        if t.startswith('buffer_'):
            nvm[0] += 1

    A('s_mov_b32 %s, 0' % sr(s_step))
    A('s_mov_b32 %s, 0x40404044' % sr(s_kvm))
    A('s_mov_b32 %s, 0x00404040' % sr(s_kvm + 1))
    A('s_mov_b32 %s, 0' % sr(s_slot))
    A('s_mov_b32 %s, 0x20000' % sr(s_slot1))
    A('s_mov_b32 %s, 0x40000' % sr(s_slot2))
    A('s_mov_b32 %s, 0' % sr(s_slotp))
    A('s_mov_b32 %s, 0' % sr(s_kx))
    A('s_mov_b32 %s, 4096' % sr(s_kx2))
    A('s_mov_b32 %s, 0' % sr(s_out))
    A('s_mov_b32 %s, 0x%x' % (sr(s_outp), WS_BYTES))
    A('s_mov_b32 %s, 0' % sr(s_ps))
    A('s_mov_b32 %s, 0x80000' % sr(s_ps2))
    A('s_mov_b32 %s, %d' % (sr(s_kvo), DBG_KV0 * 128))

    def kv_wait(tag):
        Lw, Ld, L0 = A.uid('kvw' + tag), A.uid('kvd' + tag), A.uid('kv0' + tag)
        A('s_mov_b32 %s, 0' % sr(s_cnt))
        A('s_branch ' + L0)
        A.label(Lw)
        A('s_sleep 6')
        A.label(L0)
        A('buffer_load_dword %s, %s, %s, %s offen sc1' % (vr(v_kvf), vr(v_sh), sr(SRD_WS, 4), sr(s_kvo)))
        A('s_add_u32 %s, %s, 1' % (sr(s_cnt), sr(s_cnt)))
        A('s_cmp_gt_u32 %s, %s' % (sr(s_cnt), sr(s_lim)))
        A('s_cbranch_scc1 ' + Ld)
        A('s_waitcnt vmcnt(0)')
        A('v_cmp_gt_u32 vcc, 32, %s' % vr(v_kvf))
        A('s_cbranch_vccnz ' + Lw)
        A.label(Ld)
        A('s_waitcnt vmcnt(0)')
    stamp(7)
    place_check(A, SRD_T, v_lane, v_t[0], v_t[1], s_cnt, POLL_LIMIT, L_restart)
    L_rdy, L_rdy_done, L_rdy0 = A.uid('rdy'), A.uid('rdyd'), A.uid('rdy0')
    A('v_mov_b32 %s, 32' % vr(v_t[0]))
    A('s_mov_b32 %s, 0' % sr(s_cnt))
    A('s_branch ' + L_rdy0)
    A.label(L_rdy)
    A('s_sleep 6')
    A.label(L_rdy0)
    A('buffer_load_dword %s, %s, %s, 0 offen sc1' % (vr(acc1 + 1), vr(v_t[0]), sr(SRD_T, 4)))
    A('s_add_u32 %s, %s, 1' % (sr(s_cnt), sr(s_cnt)))
    A('s_cmp_gt_u32 %s, %s' % (sr(s_cnt), sr(s_lim)))
    A('s_cbranch_scc1 ' + L_rdy_done)
    A('s_waitcnt vmcnt(0)')
    A('v_and_b32 %s, 0xffff, %s' % (vr(acc1), vr(acc1 + 1)))
    A('v_cmp_gt_u32 vcc, 128, %s' % vr(acc1))
    A('s_cbranch_vccnz ' + L_rdy)
    A.label(L_rdy_done)
    A('s_waitcnt vmcnt(0)')
    A('v_lshrrev_b32 %s, 16, %s' % (vr(acc1), vr(acc1 + 1)))
    A('v_cmp_%s_u32 vcc, 16, %s' % ('lt' if NEARX else 'ge', vr(acc1)))
    A('v_mov_b32 %s, 8192' % vr(acc1 + 1))
    A('v_cndmask_b32 %s, 0, %s, vcc' % (vr(acc1), vr(acc1 + 1)))
    A('v_add_u32 %s, %s, %s' % (vr(va_pr), vr(va_pr), vr(acc1)))
    A('v_add_u32 %s, %s, %s' % (vr(va_pw), vr(va_pw), vr(acc1)))
    A('v_mul_u32_u24 %s, 252, %s' % (vr(acc1), vr(v_g)))
    A('v_sub_u32 %s, %s, %s' % (vr(va_pd), vr(va_pw), vr(acc1)))
    A('v_and_b32 %s, 0x%x, %s' % (vr(va_pd), 0xffffffff ^ 16384, vr(va_pd)))
    A('v_lshlrev_b32 %s, 8, %s' % (vr(acc1), vr(v_g)))
    A('v_sub_u32 %s, %s, %s' % (vr(va_pz), vr(va_pw), vr(acc1)))
    A('v_and_b32 %s, 1, %s' % (vr(acc1), vr(v_g)))
    A('v_lshlrev_b32 %s, 14, %s' % (vr(acc1), vr(acc1)))
    A('v_xor_b32 %s, %s, %s' % (vr(va_pz), vr(va_pz), vr(acc1)))
    A('v_lshrrev_b32 %s, 1, %s' % (vr(acc1), vr(v_g)))
    A('v_lshl_add_u32 %s, %s, 28, %s' % (vr(va_pz), vr(acc1), vr(va_pz)))
    A('v_add_u32 %s, 16384, %s' % (vr(va_pw), vr(va_pd)))
    A('v_lshlrev_b32 %s, 2, %s' % (vr(acc1), vr(v_g)))
    A('v_sub_u32 %s, %s, %s' % (vr(va_pg), vr(va_pd), vr(acc1)))
    A('v_lshrrev_b32 %s, 1, %s' % (vr(acc1), vr(v_g)))
    A('v_lshl_add_u32 %s, %s, 14, %s' % (vr(va_pg), vr(acc1), vr(va_pg)))
    A('v_and_b32 %s, 1, %s' % (vr(acc1), vr(v_g)))
    A('v_lshl_add_u32 %s, %s, 28, %s' % (vr(va_pg), vr(acc1), vr(va_pg)))
    dbgt(9)
    kv_wait('0')
    stamp(9)
    dbgt(11)

    ool = []

    def poll(n, load, base, tag, on_ok=None, back=0):
        Lk = [A.uid('poll%s%d' % (tag, k)) for k in range(n)]
        Lc = [A.uid('chk%s%d' % (tag, k)) for k in range(n)]
        Lo = [A.uid('ok%s%d' % (tag, k)) for k in range(n)]
        Lfs = [A.uid('pollf%s%d' % (tag, k)) for k in range(n)]

        def issue(m):
            A.label(Lk[m])
            if back:
                A('s_sleep %d' % back)
            for k in range(m, n):
                A(load(k))
            A('s_add_u32 %s, %s, 1' % (sr(s_cnt), sr(s_cnt)))
            A('s_cmp_gt_u32 %s, %s' % (sr(s_cnt), sr(s_lim)))
            A('s_cbranch_scc1 ' + Lfs[m])
        A('s_mov_b32 %s, 0' % sr(s_cnt))
        issue(0)
        for m in range(n):
            A.label(Lc[m])
            A('s_waitcnt vmcnt(%d)' % (n - 1 - m))
            b = base + 4 * m
            A('v_max3_u32 %s, %s, %s, %s' % (vr(v_t[0]), vr(b), vr(b + 1), vr(b + 2)))
            A('v_max_u32 %s, %s, %s' % (vr(v_t[0]), vr(v_t[0]), vr(b + 3)))
            A('v_cmp_eq_u32 vcc, -1, %s' % vr(v_t[0]))
            A('s_cbranch_vccnz ' + Lk[m])
            A.label(Lo[m])
            if on_ok:
                on_ok(m)

        def tail():
            for m in range(1, n):
                issue(m)
                A('s_branch ' + Lc[m])
            for m in range(n):
                A.label(Lfs[m])
                A('s_mov_b32 %s, 0' % sr(s_lim))
                A('s_waitcnt vmcnt(0)')
                A('s_branch ' + Lo[m])
        ool.append(tail)

    def smf(acc, a, w):
        return 'v_smfmac_f32_16x16x64_bf16 %s, %s, %s, %s' % (vr(acc, 4), vr(a, 4), ar(w, 8), vr(v_idx))

    def okA(k):
        for tl in range(4):
            A(smf(AC + 4 * tl, M + 4 * k, W1 + 8 * (k * 4 + tl)))

    def pollA2():
        ld = lambda k: 'buffer_load_dwordx4 %s, %s, %s, %s offen offset:%d sc1' % (vr(M + 4 * k, 4), vr(va_memr), sr(SRD_WS, 4), sr(s_slot), k * 1024)
        Lr = [A.uid('rA%d' % k) for k in range(4)]
        Lo = [A.uid('oA%d' % k) for k in range(4)]

        def chk(k):
            b = M + 4 * k
            return ['s_waitcnt vmcnt(%d)' % (3 - k),
                    'v_max3_u32 %s, %s, %s, %s' % (vr(v_t[0]), vr(b), vr(b + 1), vr(b + 2)),
                    'v_max_u32 %s, %s, %s' % (vr(v_t[0]), vr(v_t[0]), vr(b + 3)),
                    'v_cmp_eq_u32 vcc, -1, %s' % vr(v_t[0])]
        A('s_mov_b32 %s, 1' % sr(s_cnt))
        for k in range(4):
            A(ld(k))
        for t in chk(0):
            A(t)
        for k in range(4):
            A('s_cbranch_vccnz ' + Lr[k])
            A.label(Lo[k])
            c = chk(k + 1) if k < 3 else []
            for tl in range(4):
                A(smf(AC + 4 * tl, M + 4 * k, W1 + 8 * (k * 4 + tl)))
                if c and tl < 3:
                    if tl == 0:
                        A(c.pop(0))
                    A(c.pop(0))

        def tail():
            for k in range(4):
                A.label(Lr[k])
                if A1P and k < 3:
                    Lg = A.uid('gA')
                    A(ld(k))
                    A('s_add_u32 %s, %s, 1' % (sr(s_cnt), sr(s_cnt)))
                    A('s_waitcnt vmcnt(0)')
                    for t in chk(k)[1:]:
                        A(t)
                    A('s_cbranch_vccz ' + Lg)
                    A('s_cmp_le_u32 %s, %s' % (sr(s_cnt), sr(s_lim)))
                    A('s_cbranch_scc1 ' + Lr[k])
                    A('s_mov_b32 %s, 0' % sr(s_lim))
                    A.label(Lg)
                    for m in range(k + 1, 4):
                        A(ld(m))
                    A('s_branch ' + Lo[k])
                    continue
                for m in range(k, 4):
                    A(ld(m))
                A('s_add_u32 %s, %s, 1' % (sr(s_cnt), sr(s_cnt)))
                for t in chk(k):
                    A(t)
                A('s_cbranch_vccz ' + Lo[k])
                A('s_cmp_le_u32 %s, %s' % (sr(s_cnt), sr(s_lim)))
                A('s_cbranch_scc1 ' + Lr[k])
                A('s_mov_b32 %s, 0' % sr(s_lim))
                A('s_branch ' + Lo[k])
        ool.append(tail)

    def advance():
        A('s_add_u32 %s, %s, 1' % (sr(s_step), sr(s_step)))
        A('s_mov_b32 %s, %s' % (sr(s_slotp), sr(s_slot)))
        A('s_mov_b32 %s, %s' % (sr(s_outp), sr(s_out)))
        A('s_mov_b32 %s, %s' % (sr(s_slot), sr(s_slot1)))
        A('s_mov_b32 %s, %s' % (sr(s_slot1), sr(s_slot2)))
        A('s_add_u32 %s, %s, 0x20000' % (sr(s_slot2), sr(s_slot2)))
        A('s_and_b32 %s, %s, 0x7ffff' % (sr(s_slot2), sr(s_slot2)))
        A('s_add_u32 %s, %s, 0x20000' % (sr(s_out), sr(s_out)))
        A('s_lshl_b32 %s, %s, 1' % (sr(s_ps), sr(s_slot)))
        A('s_lshl_b32 %s, %s, 1' % (sr(s_ps2), sr(s_slot2)))
        if stamps:
            A('s_add_u32 %s, %s, 64' % (sr(s_stl), sr(s_stl)))

    def ha_write(tl):
        return ['v_permlane32_swap_b32 %s, %s' % (vr(AC + 4 * tl), vr(AC + 4 * tl + 2)),
                'v_permlane32_swap_b32 %s, %s' % (vr(AC + 4 * tl + 1), vr(AC + 4 * tl + 3)),
                'v_pk_add_f32 %s, %s, %s' % (vr(HA + 2 * tl, 2), vr(AC + 4 * tl, 2), vr(AC + 4 * tl + 2, 2)),
                'ds_write_b64 %s, %s offset:%d' % (vr(va_rw), vr(HA + 2 * tl, 2), tl * 512)]

    def kv_stuff():
        L_kvok, L_kvslow, L_nokv, L_dokv = A.uid('kvok'), A.uid('kvslow'), A.uid('nokv'), A.uid('dokv')
        A('v_cmp_gt_u32 vcc, 32, %s' % vr(v_kvf))
        A('s_cbranch_vccnz ' + L_kvslow)
        A.label(L_kvok)
        A('s_bitcmp1_b64 %s, %s' % (sr(s_kvm, 2), sr(s_step)))
        A('s_cbranch_scc1 ' + L_dokv)
        A.label(L_nokv)

        def t():
            A.label(L_kvslow)
            kv_wait('s')
            A('s_branch ' + L_kvok)
            A.label(L_dokv)
            A('s_add_u32 %s, %s, 2' % (sr(s_kvo), sr(s_step)))
            A('s_lshr_b32 %s, %s, 3' % (sr(s_kvo), sr(s_kvo)))
            A('s_lshl_b32 %s, %s, 9' % (sr(s_kvo), sr(s_kvo)))
            A('s_add_u32 %s, %s, %d' % (sr(s_kvo), sr(s_kvo), DBG_KV * 128))
            A('buffer_load_dword %s, %s, %s, %s offen sc1' % (vr(v_kvf), vr(v_sh), sr(SRD_WS, 4), sr(s_kvo)))
            A('s_branch ' + L_nokv)
        ool.append(t)

    L_lastR, L_lastN, L_fin = name + '_lastR', name + '_lastN', name + '_fin'

    def loop(red, fl):
        tg = ('r' if red else 'n') + ('f' if fl else '')
        ISC = ' sc1' if fl else ''
        nacc = 32 if red else 16
        L_st, L_B = name + '_step' + tg, name + '_B' + tg

        def zero_acc():
            for i in range(nacc):
                A('v_mov_b32 %s, 0' % vr(AC + i))
        A.label(name + '_first' + tg)
        if not red:
            for t in pf_ops():
                A(t)
        zero_acc()
        for k in range(4):
            okA(k)
        A('s_branch ' + L_B)
        A.label(L_st)
        if not (red and ZE):
            zero_acc()
        if A2:
            pollA2()
        else:
            poll(4, lambda k: 'buffer_load_dwordx4 %s, %s, %s, %s offen offset:%d sc1' % (vr(M + 4 * k, 4), vr(va_memr), sr(SRD_WS, 4), sr(s_slot), k * 1024), M, 'A', okA)
        A.label(L_B)
        stamp(0)
        vs = [smf(AC + 16 + 4 * tv, M + 4 * k, W2 + 8 * (k * 4 + tv)) for tv in range(4) for k in range(4)] if red else []
        ne = VS[0]
        for tl in range(4):
            h = ha_write(tl)
            if vs and ne > 0:
                A(vs.pop(0))
                ne -= 1
            A(h[0])
            A(h[1])
            if vs and ne > 3 - tl:
                A(vs.pop(0))
                ne -= 1
            A(h[2])
            A(h[3])
        for _ in range(VS[1]):
            if vs:
                A(vs.pop(0))
        A('s_waitcnt lgkmcnt(0)')
        A('s_barrier')
        A('ds_read_b128 %s, %s' % (vr(RD, 4), vr(va_rr)))
        A('ds_read_b128 %s, %s offset:4096' % (vr(RD + 4, 4), vr(va_rr)))
        for _ in range(VS[2]):
            if vs:
                A(vs.pop(0))
        A('s_waitcnt lgkmcnt(0)')
        A('v_pk_add_f32 %s, %s, %s' % (vr(RD, 2), vr(RD, 2), vr(RD + 4, 2)))
        A('v_pk_add_f32 %s, %s, %s' % (vr(RD + 2, 2), vr(RD + 2, 2), vr(RD + 6, 2)))
        A('v_permlane32_swap_b32 %s, %s' % (vr(RD), vr(RD + 1)))
        A('v_permlane32_swap_b32 %s, %s' % (vr(RD + 2), vr(RD + 3)))
        A('v_add_f32 %s, %s, %s' % (vr(v_t[0]), vr(RD), vr(RD + 1)))
        A('v_add_f32 %s, %s, %s' % (vr(v_t[1]), vr(RD + 2), vr(RD + 3)))
        A('v_cvt_pk_bf16_f32 %s, %s, %s' % (vr(v_t[2]), vr(v_t[0]), vr(v_t[1])))
        A('v_pk_min_u16 %s, %s, %s' % (vr(v_t[2]), vr(v_t[2]), sr(s_fffe)))
        A('buffer_store_dword %s, %s, %s, %s offen%s' % (vr(v_t[2]), vr(va_qks), sr(SRD_WS, 4), sr(s_slot), ISC))
        if red:
            for tv in range(4):
                while vs and len(vs) > 4 * (3 - tv) - 4:
                    A(vs.pop(0))
                for t in ha_write(4 + tv):
                    A(t)
            A('s_waitcnt lgkmcnt(0)')
            A('s_barrier')
            A('ds_read_b128 %s, %s offset:2048' % (vr(RD, 4), vr(va_rr)))
            A('ds_read_b128 %s, %s offset:6144' % (vr(RD + 4, 4), vr(va_rr)))
            A('s_waitcnt lgkmcnt(0)')
            A('v_pk_add_f32 %s, %s, %s' % (vr(RD, 2), vr(RD, 2), vr(RD + 4, 2)))
            A('v_pk_add_f32 %s, %s, %s' % (vr(RD + 2, 2), vr(RD + 2, 2), vr(RD + 6, 2)))
            A('v_permlane32_swap_b32 %s, %s' % (vr(RD), vr(RD + 2)))
            A('v_permlane32_swap_b32 %s, %s' % (vr(RD + 1), vr(RD + 3)))
            A('v_pk_add_f32 %s, %s, %s' % (vr(RD, 2), vr(RD, 2), vr(RD + 2, 2)))
            A('v_cvt_pk_bf16_f32 %s, %s, %s' % (vr(v_t[3]), vr(RD), vr(RD + 1)))
            A('v_pk_min_u16 %s, %s, %s' % (vr(v_t[3]), vr(v_t[3]), sr(s_fffe)))
            A('buffer_store_dword %s, %s, %s, %s offen%s' % (vr(v_t[3]), vr(va_vs), sr(SRD_WS, 4), sr(s_slot), ISC))
            stamp(1)
            A('buffer_load_dwordx4 %s, %s, %s, %s offen sc1' % (vr(RB, 4), vr(va_rb), sr(SRD_WS, 4), sr(s_slotp)))
            A('v_mov_b32 %s, %s' % (vr(v_junk2), sr(s_step)))
            A('s_waitcnt vmcnt(0)')
            A('s_barrier')
            A('buffer_store_dwordx4 %s, %s, %s, %s offen sc1' % (vr(RB, 4), vr(va_cp), sr(SRD_WS, 4), sr(s_outp)))
            A('buffer_store_dword %s, %s, %s, 0 offen sc1' % (vr(v_junk2), vr(va_prog), sr(SRD_WS, 4)))
            A('s_cmp_ge_u32 %s, %d' % (sr(s_step), nsteps - 1))
            A('s_cbranch_scc1 ' + L_lastR)
            A('s_add_u32 %s, %s, 0x40000' % (sr(s_kx), sr(s_kx)))
            kv_stuff()
            A('buffer_load_dword %s, %s, %s, %s offen sc1' % (vr(v_junk), vr(va_warm), sr(SRD_WS, 4), sr(s_kx)))
            A('buffer_store_dwordx4 %s, %s, %s, %s offen sc1' % (vr(v_m1, 4), vr(va_pz), sr(SRD_WS, 4), sr(s_ps2)))
            A('buffer_store_dwordx4 %s, %s, %s, %s offen%s' % (vr(v_m1, 4), vr(va_rb), sr(SRD_WS, 4), sr(s_slot2), ISC))
            A('buffer_store_dword %s, %s, %s, %s offen%s' % (vr(v_m1), vr(va_mems), sr(SRD_WS, 4), sr(s_slot2), ISC))
            if ZE:
                zero_acc()
            if DELAY_E:
                A('s_sleep %d' % DELAY_E)
            if HINT:
                Lh, Lhd = A.uid('h'), A.uid('hd')
                A('s_mov_b32 %s, 0' % sr(s_cnt))
                A.label(Lh)
                A('buffer_load_dword %s, %s, %s, 0 offen sc1' % (vr(v_t[0]), vr(va_flg), sr(SRD_WS, 4)))
                A('s_add_u32 %s, %s, 1' % (sr(s_cnt), sr(s_cnt)))
                A('s_cmp_gt_u32 %s, %s' % (sr(s_cnt), sr(s_lim)))
                A('s_cbranch_scc1 ' + Lhd)
                A('s_waitcnt vmcnt(0)')
                A('v_cmp_ne_u32 vcc, %s, %s' % (sr(s_step), vr(v_t[0])))
                A('s_cbranch_vccnz ' + Lh)
                A.label(Lhd)
                if HINT > 1:
                    A('s_sleep %d' % (HINT - 1))

            def okE(k):
                A('v_mfma_f32_16x16x32_bf16 %s, %s, %s, %s' % (vr(LS, 4), vr(PR + 4 * k, 4), vr(v_sel, 4), '0' if k == 0 else vr(LS, 4)))
            poll(2, lambda k: 'buffer_load_dwordx4 %s, %s, %s, %s offen offset:%d sc1' % (vr(PR + 4 * k, 4), vr(va_pr), sr(SRD_WS, 4), sr(s_ps), k * 1024), PR, 'E', okE, back=E_BACK)
            stamp(6)
            advance()
            A('v_cvt_pk_bf16_f32 %s, %s, %s' % (vr(v_t[2]), vr(LS), vr(LS + 1)))
            A('v_cvt_pk_bf16_f32 %s, %s, %s' % (vr(v_t[3]), vr(LS + 2), vr(LS + 3)))
            A('v_cndmask_b32 %s, %s, %s, %s' % (vr(v_t[2]), vr(v_t[2]), vr(v_t[3]), sr(s_hf, 2)))
            A('v_pk_min_u16 %s, %s, %s' % (vr(v_t[2]), vr(v_t[2]), sr(s_fffe)))
            A('buffer_store_dword %s, %s, %s, %s offen%s' % (vr(v_t[2]), vr(va_mems), sr(SRD_WS, 4), sr(s_slot), ISC))
            if RED_SLEEP:
                A('s_sleep %d' % RED_SLEEP)
            A('s_branch ' + L_st)
            return
        stamp(1)
        A('s_cmp_ge_u32 %s, %d' % (sr(s_step), nsteps - 1))
        A('s_cbranch_scc1 ' + L_lastN)
        A('s_add_u32 %s, %s, 0x40000' % (sr(s_kx), sr(s_kx)))
        A('s_add_u32 %s, %s, 0x40000' % (sr(s_kx2), sr(s_kx2)))
        for i in range(4):
            A('v_mov_b32 %s, 0' % vr(acc1 + i))
            A('v_mov_b32 %s, 0' % vr(acc2 + i))
        A('v_mov_b32 %s, %s' % (vr(v_junk2), sr(s_step)))
        if DELAY_C:
            A('s_sleep %d' % DELAY_C)
        Lc, Lcf, Lcd = A.uid('pC'), A.uid('pCf'), A.uid('pCd')
        A('s_mov_b32 %s, 1' % sr(s_cnt))
        A.label(Lc)
        for k in range(4):
            A('buffer_load_dwordx4 %s, %s, %s, %s offen offset:%d sc1' % (vr(QK + 4 * k, 4), vr(va_qkr), sr(SRD_WS, 4), sr(s_slot), k * 1024))
        for t in range(4):
            A('s_waitcnt vmcnt(%d)' % (3 - t))
            q = QK + 4 * t
            A('v_mfma_f32_16x16x32_bf16 %s, %s, %s, %s' % (vr(SA, 4), vr(KXA + 4 * t, 4), vr(q, 4), vr(v_maskx, 4) if t == 0 else vr(SA, 4)))
            if t == 0:
                A('v_max3_u32 %s, %s, %s, %s' % (vr(v_t[0]), vr(q), vr(q + 1), vr(q + 2)))
            else:
                A('v_max3_u32 %s, %s, %s, %s' % (vr(v_t[0]), vr(v_t[0]), vr(q), vr(q + 1)))
            A('v_mfma_f32_16x16x32_bf16 %s, %s, %s, %s' % (vr(SB, 4), vr(KXB + 4 * t, 4), vr(q, 4), vr(v_maskx, 4) if t == 0 else vr(SB, 4)))
            if t == 0:
                A('v_max_u32 %s, %s, %s' % (vr(v_t[0]), vr(v_t[0]), vr(q + 3)))
            else:
                A('v_max3_u32 %s, %s, %s, %s' % (vr(v_t[0]), vr(v_t[0]), vr(q + 2), vr(q + 3)))
            if t == 3:
                A('v_cmp_eq_u32 vcc, -1, %s' % vr(v_t[0]))
            A('v_mfma_f32_16x16x32_bf16 %s, %s, %s, %s' % (vr(SM, 4), vr(q, 4), vr(q, 4), vr(v_mask, 4) if t == 0 else vr(SM, 4)))
        A('s_cbranch_vccnz ' + Lcf)
        A.label(Lcd)

        def tailC():
            A.label(Lcf)
            A('s_add_u32 %s, %s, 1' % (sr(s_cnt), sr(s_cnt)))
            A('s_cmp_le_u32 %s, %s' % (sr(s_cnt), sr(s_lim)))
            A('s_cbranch_scc1 ' + Lc)
            A('s_mov_b32 %s, 0' % sr(s_lim))
            A('s_branch ' + Lcd)
        ool.append(tailC)
        stamp(2)

        def vload(k):
            return 'buffer_load_dwordx4 %s, %s, %s, %s offen offset:%d sc1' % (vr(VMR + 4 * k, 4), vr(va_vmr), sr(SRD_WS, 4), sr(s_slot), k * 1024)
        side = pf_ops() if not NOPF else []
        s = [SA + i for i in range(12)]
        sm = []
        sm.append('v_max3_f32 %s, %s, %s, %s' % (vr(v_mx), vr(s[0]), vr(s[1]), vr(s[2])))
        sm.append('v_max3_f32 %s, %s, %s, %s' % (vr(v_mx2), vr(s[3]), vr(s[4]), vr(v_bias)))
        sm.append('v_max3_f32 %s, %s, %s, %s' % (vr(v_mx), vr(v_mx), vr(s[5]), vr(s[6])))
        sm.append('v_max3_f32 %s, %s, %s, %s' % (vr(v_mx2), vr(v_mx2), vr(s[7]), vr(s[8])))
        sm.append('v_max3_f32 %s, %s, %s, %s' % (vr(v_mx), vr(v_mx), vr(s[9]), vr(s[10])))
        sm.append('v_max3_f32 %s, %s, %s, %s' % (vr(v_mx), vr(v_mx), vr(v_mx2), vr(s[11])))
        for sw in ('v_permlane32_swap_b32', 'v_permlane16_swap_b32'):
            sm.append('v_mov_b32 %s, %s' % (vr(v_mx2), vr(v_mx)))
            sm.append('%s %s, %s' % (sw, vr(v_mx), vr(v_mx2)))
            sm.append('v_max_f32 %s, %s, %s' % (vr(v_mx), vr(v_mx), vr(v_mx2)))
        sm.append('v_mul_f32 %s, %s, %s' % (vr(v_mx), sr(s_c), vr(v_mx)))
        for i in range(8):
            sm.append('v_fma_f32 %s, %s, %s, -%s' % (vr(s[i]), vr(s[i]), sr(s_c), vr(v_mx)))
        for i in range(8):
            sm.append('v_exp_f32 %s, %s' % (vr(s[i]), vr(s[i])))
            if i >= 2 and i % 2 == 0:
                sm.append('v_cvt_pk_bf16_f32 %s, %s, %s' % (vr(PX + i // 2 - 1), vr(s[i - 2]), vr(s[i - 1])))
        sm.append('v_fma_f32 %s, %s, %s, -%s' % (vr(s[8]), vr(s[8]), sr(s_c), vr(v_mx)))
        sm.append('v_cvt_pk_bf16_f32 %s, %s, %s' % (vr(PX + 3), vr(s[6]), vr(s[7])))
        sm.append('v_fma_f32 %s, %s, %s, -%s' % (vr(s[9]), vr(s[9]), sr(s_c), vr(v_mx)))
        for i, m in enumerate(sm):
            if i == DELAY_V:
                A(vload(0))
                A(vload(1))
            A(m)
        stamp(3)

        def dpp8(d, srcr):
            return 'v_mov_b32_dpp %s, %s row_shr:8 row_mask:0xf bank_mask:0xf bound_ctrl:0' % (vr(d), vr(srcr))
        t = v_t
        sh = []
        for i in range(10, 12):
            sh.append('v_fma_f32 %s, %s, %s, -%s' % (vr(s[i]), vr(s[i]), sr(s_c), vr(v_mx)))
        for i in range(4):
            sh.append(dpp8(PXH + i, PX + i))
        for i in range(8, 12):
            sh.append('v_exp_f32 %s, %s' % (vr(s[i]), vr(s[i])))
        for i in range(2):
            sh.append('v_cvt_pk_bf16_f32 %s, %s, %s' % (vr(PM + i), vr(s[8 + 2 * i]), vr(s[9 + 2 * i])))
        sh.append('s_waitcnt vmcnt(0)')
        sh.append('v_max3_u32 %s, %s, %s, %s' % (vr(t[0]), vr(VMR), vr(VMR + 1), vr(VMR + 2)))
        sh.append('v_max3_u32 %s, %s, %s, %s' % (vr(t[1]), vr(VMR + 3), vr(VMR + 4), vr(VMR + 5)))
        sh.append(dpp8(PMH, PM))
        sh.append(dpp8(PMH + 1, PM + 1))
        sh.append('v_max3_u32 %s, %s, %s, %s' % (vr(t[0]), vr(t[0]), vr(VMR + 6), vr(VMR + 7)))
        sh.append('v_max_u32 %s, %s, %s' % (vr(t[0]), vr(t[0]), vr(t[1])))
        sh.append('v_permlane32_swap_b32 %s, %s' % (vr(PMH), vr(PM)))
        sh.append('v_permlane32_swap_b32 %s, %s' % (vr(PMH + 1), vr(PM + 1)))
        sh.append('v_cmp_eq_u32 vcc, -1, %s' % vr(t[0]))
        mf = ['v_mfma_f32_16x16x32_bf16 %s, %s, %s, 0' % (vr(LS, 4), vr(v_ones, 4), vr(PX, 4))]
        for a in range(4):
            mf.append('v_mfma_f32_16x16x32_bf16 %s, %s, %s, 0' % (vr(O + 4 * a, 4), vr(VXR + 4 * a, 4), vr(PX, 4)))
        for a in range(4):
            mf.append('v_mfma_f32_16x16x32_bf16 %s, %s, %s, %s' % (vr(O + 4 * a, 4), vr(VXR + 4 * (a + 4), 4), vr(PXH, 4), vr(O + 4 * a, 4)))
        per = [3, 3, 2, 2, 2, 2, 3, 3, 1]
        for i, m in enumerate(mf):
            A(m)
            for _ in range(per[i]):
                if sh:
                    x = sh.pop(0)
                    if x.startswith('s_waitcnt'):
                        A(x)
                        x = sh.pop(0)
                    A(x)
        assert not sh
        Lv_ok, Lv_slow = A.uid('vok'), A.uid('vslow')
        A('s_cbranch_vccnz ' + Lv_slow)
        A.label(Lv_ok)

        def tailV():
            A.label(Lv_slow)
            poll(2, vload, VMR, 'V')
            A('s_branch ' + Lv_ok)
        ool.append(tailV)
        A('v_mfma_f32_16x16x16_bf16 %s, %s, %s, %s' % (vr(LS, 4), vr(v_ones, 2), vr(PM, 2), vr(LS, 4)))
        for a in range(4):
            A('v_mfma_f32_16x16x16_bf16 %s, %s, %s, %s' % (vr(O + 4 * a, 4), vr(VMR + 2 * a, 2), vr(PM, 2), vr(O + 4 * a, 4)))
        A('v_rcp_f32 %s, %s' % (vr(v_l), vr(LS)))
        A('v_mov_b32_dpp %s, %s row_shr:8 row_mask:0xf bank_mask:0xc' % (vr(v_l), vr(v_l)))
        for a in range(4):
            for r in range(0, 4, 2):
                A('v_pk_mul_f32 %s, %s, %s op_sel_hi:[1,0]' % (vr(O + 4 * a + r, 2), vr(O + 4 * a + r, 2), vr(v_l, 2)))
            A('v_cvt_pk_bf16_f32 %s, %s, %s' % (vr(XY + a), vr(O + 4 * a), vr(O + 4 * a + 1)))
            A('v_cvt_pk_bf16_f32 %s, %s, %s' % (vr(XY + 4 + a), vr(O + 4 * a + 2), vr(O + 4 * a + 3)))
        A('ds_write_b128 %s, %s' % (vr(va_ow), vr(XY, 4)))
        A('ds_write_b128 %s, %s offset:128' % (vr(va_ow), vr(XY + 4, 4)))
        A('s_waitcnt lgkmcnt(0)')
        stamp(4)
        A('s_barrier')
        if HINT:
            A('buffer_store_dword %s, %s, %s, 0 offen%s' % (vr(v_junk2), vr(va_flg), sr(SRD_WS, 4), ISC))
        for k in range(8):
            A('ds_read_b128 %s, %s offset:%d' % (vr(G + 4 * k, 4), vr(va_or), k * 1024))
        def epi3(acc, va):
            return ['v_permlane32_swap_b32 %s, %s' % (vr(acc), vr(acc + 2)),
                    'v_permlane32_swap_b32 %s, %s' % (vr(acc + 1), vr(acc + 3)),
                    'v_pk_add_f32 %s, %s, %s' % (vr(acc, 2), vr(acc, 2), vr(acc + 2, 2)),
                    'v_cvt_pk_bf16_f32 %s, %s, %s' % (vr(acc), vr(acc), vr(acc + 1)),
                    'v_pk_min_u16 %s, %s, %s' % (vr(acc), vr(acc), sr(s_fffe)),
                    'buffer_store_dword %s, %s, %s, %s offen sc1' % (vr(acc), vr(va), sr(SRD_WS, 4), sr(s_ps))]
        if S3 == 2:
            D = VMR
            for k in range(8):
                A('s_waitcnt lgkmcnt(%d)' % (7 - k))
                A(smf(acc1, G + 4 * k, W2 + 8 * (2 * k)))
                if k < 2:
                    A(smf(acc2, G + 4 * k, W2 + 8 * (2 * k + 1)))
            e1 = epi3(acc1, va_pd)[:3] + ['v_cvt_pk_bf16_f32 %s, %s, %s' % (vr(D), vr(acc1), vr(acc1 + 1)),
                                          'v_pk_min_u16 %s, %s, %s' % (vr(D), vr(D), sr(s_fffe))]
            for k in range(2, 8):
                A(smf(acc2, G + 4 * k, W2 + 8 * (2 * k + 1)))
                if k >= 4:
                    for _ in range(2):
                        if e1:
                            A(e1.pop(0))
            for t_ in e1 + epi3(acc2, va_pw)[:3]:
                A(t_)
            A('v_cvt_pk_bf16_f32 %s, %s, %s' % (vr(D + 2), vr(acc2), vr(acc2 + 1)))
            A('v_pk_min_u16 %s, %s, %s' % (vr(D + 2), vr(D + 2), sr(s_fffe)))
            A('v_permlane32_swap_b32 %s, %s' % (vr(D), vr(D + 2)))
            A('v_permlane16_swap_b32 %s, %s' % (vr(D), vr(D + 1)))
            A('v_permlane16_swap_b32 %s, %s' % (vr(D + 2), vr(D + 3)))
            A('buffer_store_dwordx4 %s, %s, %s, %s offen sc1' % (vr(D, 4), vr(va_pg), sr(SRD_WS, 4), sr(s_ps)))
        elif S3:
            for k in range(8):
                A('s_waitcnt lgkmcnt(%d)' % (7 - k))
                A(smf(acc1, G + 4 * k, W2 + 8 * (2 * k)))
                if k < 2:
                    A(smf(acc2, G + 4 * k, W2 + 8 * (2 * k + 1)))
            e1 = epi3(acc1, va_pd)
            for k in range(2, 8):
                A(smf(acc2, G + 4 * k, W2 + 8 * (2 * k + 1)))
                if k >= 4:
                    for _ in range(2):
                        if e1:
                            A(e1.pop(0))
            for t_ in e1 + epi3(acc2, va_pw):
                A(t_)
        else:
            for k in range(8):
                A('s_waitcnt lgkmcnt(%d)' % (7 - k))
                A(smf(acc1, G + 4 * k, W2 + 8 * (2 * k)))
                A(smf(acc2, G + 4 * k, W2 + 8 * (2 * k + 1)))
            for t_ in epi3(acc1, va_pd) + epi3(acc2, va_pw):
                A(t_)
        stamp(5)
        kv_stuff()
        for x in side:
            A(x)
        advance()
        if NOE_SLEEP:
            A('s_sleep %d' % NOE_SLEEP)
        A('s_branch ' + L_st)

    L_safe = A.uid('safe')
    A('s_cmp_lg_u32 s%d, 0' % S_MODE)
    A('s_cbranch_scc1 ' + L_safe)
    for fl in (False, True):
        if fl:
            A.label(L_safe)
        A('s_cmp_lg_u32 %s, 0' % sr(s_red))
        A('s_cbranch_scc1 ' + name + '_firstn' + ('f' if fl else ''))
        loop(True, fl)
        loop(False, fl)
        while ool:
            ool.pop(0)()
    A.label(L_lastN)
    A('s_waitcnt vmcnt(0)')
    A('s_barrier')
    A('s_cmp_lg_u32 %s, 0' % sr(s_w))
    A('s_cbranch_scc1 ' + L_fin)
    A.label(L_lastR)
    A('s_cmp_eq_u32 %s, 2' % sr(s_w))
    A('s_cbranch_scc1 ' + L_fin)
    A('buffer_load_dwordx4 %s, %s, %s, %s offen sc1' % (vr(M, 4), vr(va_rb), sr(SRD_WS, 4), sr(s_slot)))
    A('s_waitcnt vmcnt(0)')
    A('buffer_store_dwordx4 %s, %s, %s, %s offen sc1' % (vr(M, 4), vr(va_cp), sr(SRD_WS, 4), sr(s_out)))
    A.label(L_fin)
    if stamps:
        A('s_waitcnt lgkmcnt(0)')
        A('v_lshlrev_b32 %s, 4, %s' % (vr(v_t[0]), vr(v_lane)))
        A('s_lshl_b32 %s, %s, 12' % (sr(s_t2), sr(s_w)))
        A('s_add_u32 %s, %s, 65536' % (sr(s_t2), sr(s_t2)))
        A('v_add_u32 %s, %s, %s' % (vr(v_t[1]), sr(s_t2), vr(v_t[0])))
        for k in range(4):
            A('ds_read_b128 %s, %s offset:%d' % (vr(F + 4 * k, 4), vr(v_t[1]), k * 1024))
        A('s_waitcnt lgkmcnt(0)')
        for k in range(4):
            A('buffer_store_dwordx4 %s, %s, %s, %s offen offset:%d' % (vr(F + 4 * k, 4), vr(v_t[0]), sr(SRD_WS, 4), sr(s_stamp), k * 1024))
    A('s_waitcnt vmcnt(0) lgkmcnt(0)')
    A('s_barrier')
    A('s_cmp_lg_u32 %s, 0' % sr(s_w))
    A('s_cbranch_scc1 ' + L_work)
    dbgt(12)
    A('s_lshr_b32 %s, %s, 1' % (sr(s_t0), sr(s_x)))
    A('s_lshl_b32 %s, %s, 7' % (sr(s_t0), sr(s_t0)))
    A('s_add_u32 %s, %s, 0x%x' % (sr(s_t0), sr(s_t0), CTR + DBG_FIN * 128))
    A('v_mov_b32 %s, %s' % (vr(v_t[0]), sr(s_t0)))
    A('v_mov_b32 %s, 1' % vr(v_t[1]))
    A('s_mov_b64 exec, 1')
    A('buffer_atomic_add %s, %s, %s, 0 offen sc1' % (vr(v_t[1]), vr(v_t[0]), sr(SRD_WS, 4)))
    A('s_mov_b64 exec, -1')
    A('s_branch ' + L_work)
    A.label(L_exit)
    A('s_endpgm')
    A.label(L_work)
    worker(A, name)
    return dict(vgpr=512, accum=256, sgpr=102)
```

```python
from asmlib import *
from layout import *
from gemm import Gemm, Gemm16
from kernels import mk_srd, load_ptrs, out_direct, out_direct32, place_check, shift_ptrs
import attn
import os, json

LDS_JOB = 131072 + 64
LIM = 200000
WTOUCH = os.environ.get('WTOUCH', '')
WT_ODD = int(os.environ.get('WT_ODD', '1'))
WT2 = int(os.environ.get('WT2', '1'))
EARLY = int(os.environ.get('EARLY', '1'))
LAG = 2 if os.environ.get('OLDCHAIN') else 3
OVL = int(os.environ.get('OVL', '0'))
M16 = int(os.environ.get('M16', '1'))
WST = int(os.environ.get('WST', '0'))

BL = int(os.environ.get('BL', '0'))
SEGS = [('skv', 16, 0), ('bkv', 16, 1), ('skv', 16, 1), ('bkv', 32, 3), ('bkv', 8, 7), ('q', 16, 0), ('bq', 24, 0),
        ('aattn', 8, 0), ('q', 8, 4), ('aout', 8, 0), ('q', 8, 6), ('aattn', 8, 2), ('battn', 8, 0), ('aout', 8, 2),
        ('battn', 8, 8), ('aattn', 4, 4), ('battn', 16, 16), ('aout', 4, 4), ('aattn1', 4, 20), ('aattn1', 4, 21),
        ('wot', 16, 0), ('aoutr', 2, 10), ('aattn1', 4, 22), ('wot', 16, 16), ('aattn1', 4, 23), ('bout', 8, 0), ('aoutr', 2, 11),
        ('aattn1', 4, 24), ('aattn1', 4, 25), ('bout', 12, 8), ('aoutr', 2, 12), ('bout', 12, 20), ('aattn1', 4, 26),
        ('aattn1', 4, 27), ('aoutd', 8, 26), ('aattn1', 4, 28), ('aoutd', 8, 27), ('aattn1', 4, 29)]
ORD = os.environ.get('ORD', '2')
if ORD == '1':
    SEGS += [('aoutd', 8, 28), ('aattn1', 4, 30), ('aattn1', 4, 31), ('aoute', 16, 58), ('aoute', 16, 60), ('aoute', 16, 62)]
elif ORD == '0':
    SEGS += [('aattn1', 4, 30), ('aattn1', 4, 31), ('aoutd', 8, 28), ('aoute', 16, 58), ('aoute', 16, 60), ('aoute', 16, 62)]
elif ORD == '2':
    SEGS += [('aoutd', 8, 28), ('aattn1', 4, 30), ('aattn1', 4, 31), ('aoutd', 8, 29), ('aoute', 16, 60), ('aoute', 16, 62)]
elif ORD == '3':
    SEGS += [('aoutd', 8, 28), ('aattn1', 4, 30), ('aoutd', 8, 29), ('aattn1', 4, 31), ('aoute', 16, 62), ('aoute', 16, 60)]
elif ORD == '4':
    SEGS += [('aoutd', 8, 28), ('aattn1', 4, 30), ('aattn1', 4, 31), ('aoute', 16, 62), ('aoute', 16, 60), ('aoute', 16, 58)]
SEGS += [('bout', BL, 32 - BL)]
SEGS = [x for x in SEGS if x[1]]
_seen = set()
SEGS = [x for x in SEGS if not (x in _seen or _seen.add(x))]
if os.environ.get('SEGS'):
    SEGS = [tuple(x) for x in json.loads(os.environ['SEGS'])]


def seg_bounds():
    o, a = [], 0
    for k, n, p in SEGS:
        o.append((a, a + n, '%s%d' % (k, p)))
        a += n
    return o


def gen_worker(A, name):
    S = Regs('s', 4, 100)
    P = load_ptrs(A, S)
    SRD_WS = S.alloc(4, 4)
    SRD_D = S.alloc(4, 4)
    SRD_O = S.alloc(4, 4)
    s_w, s_q, s_qn, s_job, s_cfg, s0, s1, s2_, s3, s_base, s_tbs, s_or, s_ctr, s_inc, s_mt, s_nt, s_it, s_k, s_p = [S.alloc() for _ in range(19)]
    s_pp = S.alloc(2, 2)
    s_tm = S.alloc(2, 2)
    s_sa = S.alloc()

    def wstamp(k):
        if not WST:
            return
        A('s_memrealtime %s' % sr(s_tm, 2))
        A('s_waitcnt lgkmcnt(0)')
        A('v_mov_b32 v4, %s' % sr(s_tm))
        A('v_mov_b32 v5, %s' % sr(s_sa))
        A('s_mov_b64 exec, 1')
        A('buffer_store_dword v4, v5, %s, 0 offen offset:%d' % (sr(SRD_WS, 4), 4 * k))
        if k in (2, 3):
            A('s_memtime %s' % sr(s_tm, 2))
            A('s_waitcnt lgkmcnt(0)')
            A('v_mov_b32 v4, %s' % sr(s_tm))
            A('buffer_store_dword v4, v5, %s, 0 offen offset:%d' % (sr(SRD_WS, 4), 4 * (k + 4)))
        A('s_mov_b64 exec, -1')
    def dbgt(word):
        if not int(os.environ.get('DBGT', '0')):
            return
        Lx = A.uid('dt')
        A('s_cmp_lg_u32 %s, 0' % sr(s_w))
        A('s_cbranch_scc1 ' + Lx)
        A('s_memrealtime %s' % sr(s_tm, 2))
        A('s_waitcnt lgkmcnt(0)')
        A('v_mov_b32 v4, %s' % sr(s_tm))
        A('v_mov_b32 v5, %d' % (word * 4))
        A('s_mov_b64 exec, 1')
        A('buffer_atomic_umax v4, v5, %s, 0 offen sc1' % sr(SRD_D, 4))
        A('s_mov_b64 exec, -1')
        A.label(Lx)
    v_lane, v_l16, v_off, v_a, v_b, v_sh = 1, 2, 3, 4, 5, 6
    s_init = S.alloc()
    s_pe, p_base, p_tbs, p_ctr, p_inc = [S.alloc() for _ in range(5)]
    s_et = S.alloc()
    s_wo = S.alloc()
    s_wo2 = S.alloc()
    smark = S.mark()
    V4 = Regs('v', 8, 256)
    G4 = Gemm16(A, S, V4) if M16 else Gemm(A, S, V4, 4, 4)
    hi = S.mark()
    S.release(smark)
    V2 = Regs('v', 8, 256)
    G2 = Gemm(A, S, V2, 2, 2, xsc=' sc1', nst=4)
    assert (G2.SRD_X, G2.SRD_W, G2.s_xo, G2.s_n) == (G4.SRD_X, G4.SRD_W, G4.s_xo, G4.s_n)
    G = G4
    L_next, L_done = name + '_wnext', name + '_wdone'

    A('v_and_b32 %s, 63, v0' % vr(v_lane))
    A('v_lshrrev_b32 %s, 6, v0' % vr(v_l16))
    A('v_readfirstlane_b32 %s, %s' % (sr(s_w), vr(v_l16)))
    A('v_lshlrev_b32 %s, 4, %s' % (vr(v_l16), vr(v_lane)))
    A('v_and_b32 %s, 31, %s' % (vr(v_off), vr(v_lane)))
    A('v_lshlrev_b32 %s, 12, %s' % (vr(v_off), vr(v_off)))
    A('v_lshrrev_b32 %s, 5, %s' % (vr(v_a), vr(v_lane)))
    A('v_lshl_add_u32 %s, %s, 4, %s' % (vr(v_off), vr(v_a), vr(v_off)))
    A('s_and_b32 %s, s%d, 3' % (sr(s_q), S_VX))
    A('s_mov_b32 %s, 0' % sr(s_qn))
    A('s_mov_b32 %s, 0' % sr(s_cfg))
    A('s_mov_b32 %s, %d' % (sr(s_ctr), DBG_WT))
    A('s_waitcnt lgkmcnt(0)')
    shift_ptrs(A, P['ws'], P['dbg'], s0)
    mk_srd(A, SRD_WS, P['ws'], WS_HALF)
    mk_srd(A, SRD_D, P['dbg'], 128)
    mk_srd(A, SRD_O, P['out'], 2048 * 2048 * 2)

    A('v_and_b32 %s, 3, %s' % (vr(v_sh), vr(v_lane)))
    A('v_lshlrev_b32 %s, 7, %s' % (vr(v_sh), vr(v_sh)))
    A('v_add_u32 %s, 0x%x, %s' % (vr(v_sh), CTR, vr(v_sh)))
    A('v_mov_b32 v7, 0')
    A('s_mov_b32 %s, 0' % sr(s_init))
    A('s_mov_b32 %s, 0' % sr(s_et))
    A('s_mov_b32 %s, 0' % sr(s_pe))
    A('s_mov_b32 %s, %d' % (sr(p_ctr), DBG_WT))
    A('s_mov_b32 %s, 0' % sr(p_inc))
    v_tk = 7

    def early(nop=True):
        if not EARLY:
            return
        Le = A.uid('et')
        if nop:
            A('s_nop 11')
        A('s_cmp_eq_u32 %s, 0' % sr(s_init))
        A('s_cbranch_scc1 ' + Le)
        A('s_mov_b32 %s, 1' % sr(s_et))
        A('s_cmp_lg_u32 %s, 0' % sr(s_w))
        A('s_cbranch_scc1 ' + Le)
        A('s_lshl_b32 %s, %s, 7' % (sr(s_wo), sr(s_q)))
        A('s_add_u32 %s, %s, 0x%x' % (sr(s_wo), sr(s_wo), CTR + DBG_Q * 128))
        A('v_mov_b32 %s, %s' % (vr(v_a), sr(s_wo)))
        A('v_mov_b32 %s, 1' % vr(v_tk))
        A('s_mov_b64 exec, 1')
        A('buffer_atomic_add %s, %s, %s, 0 offen sc0 sc1' % (vr(v_tk), vr(v_a), sr(SRD_WS, 4)))
        A('s_mov_b64 exec, -1')
        A.label(Le)

    def wait_init():
        Lw, Ld = A.uid('iw'), A.uid('id')
        A('s_cmp_lg_u32 %s, 0' % sr(s_init))
        A('s_cbranch_scc1 ' + Ld)
        A('s_mov_b32 %s, 1' % sr(s_init))
        A('v_mov_b32 %s, %d' % (vr(v_a), DBG_INIT))
        A('s_mov_b32 %s, 0' % sr(s3))
        A.label(Lw)
        A('buffer_load_dword %s, %s, %s, 0 offen sc1' % (vr(v_b), vr(v_a), sr(SRD_D, 4)))
        A('s_add_u32 %s, %s, 1' % (sr(s3), sr(s3)))
        A('s_waitcnt vmcnt(0)')
        A('v_cmp_ne_u32 vcc, 0, %s' % vr(v_b))
        A('s_cbranch_vccnz ' + Ld)
        A('s_sleep 4')
        A('s_cmp_lt_u32 %s, %d' % (sr(s3), LIM))
        A('s_cbranch_scc1 ' + Lw)
        A.label(Ld)
    L_have = A.uid('havejob')
    L_got = A.uid('gotjob')
    A('s_mov_b32 %s, s3' % sr(s_job))
    SRD_T = S.alloc(4, 4)
    hi = max(hi, S.mark())

    def touch(ptrs_sizes, s_id, per_wave_log2):
        A('s_lshl_b32 %s, %s, %d' % (sr(s0), sr(s_id), per_wave_log2))
        A('v_lshlrev_b32 %s, 7, %s' % (vr(v_a), vr(v_lane)))
        for p, nbytes in ptrs_sizes:
            mk_srd(A, SRD_T, P[p], nbytes)
            for i in range(1 << (per_wave_log2 - 13)):
                A('s_add_u32 %s, %s, %d' % (sr(s1), sr(s0), i * 8192))
                A('buffer_load_dword v7, %s, %s, %s offen' % (vr(v_a), sr(SRD_T, 4), sr(s1)))
            A('s_nop 4')
    L_restart = name + '_restart'
    L_st = A.uid('static')
    A('s_cmp_lt_u32 s3, 32')
    A('s_cbranch_scc1 ' + L_st)
    place_check(A, SRD_D, v_lane, v_a, v_b, s3, LIM, L_restart)
    A('s_branch ' + L_next)
    A.label(L_st)
    A('s_branch ' + L_have)
    A.label(L_next)
    Lnf = A.uid('nofetch')
    A('s_cmp_lg_u32 %s, 0' % sr(s_w))
    A('s_cbranch_scc1 ' + Lnf)
    wait_init()
    A('s_lshl_b32 %s, %s, 7' % (sr(s0), sr(s_q)))
    A('s_add_u32 %s, %s, 0x%x' % (sr(s0), sr(s0), CTR + DBG_Q * 128))
    A('v_mov_b32 %s, %s' % (vr(v_a), sr(s0)))
    A('v_mov_b32 %s, 1' % vr(v_b))
    A('s_mov_b64 exec, 1')
    A('buffer_atomic_add %s, %s, %s, 0 offen sc0 sc1' % (vr(v_b), vr(v_a), sr(SRD_WS, 4)))
    A('s_waitcnt vmcnt(0)')
    A('v_mov_b32 %s, %d' % (vr(v_a), LDS_JOB))
    A('ds_write_b32 %s, %s' % (vr(v_a), vr(v_b)))
    A('s_waitcnt lgkmcnt(0)')
    A('s_mov_b64 exec, -1')
    A.label(Lnf)
    A('s_barrier')
    A('v_mov_b32 %s, %d' % (vr(v_a), LDS_JOB))
    A('ds_read_b32 %s, %s' % (vr(v_b), vr(v_a)))
    A('s_waitcnt lgkmcnt(0)')
    A('v_readfirstlane_b32 %s, %s' % (sr(s_job), vr(v_b)))
    A('s_barrier')
    A.label(L_got)
    A('s_mov_b32 %s, 1' % sr(s_init))
    A('s_add_u32 %s, %s, 32' % (sr(s_job), sr(s_job)))
    A.label(L_have)
    if WST:
        A('s_min_u32 %s, %s, 511' % (sr(s0), sr(s_job)))
        A('s_lshl_b32 %s, %s, 9' % (sr(s_sa), sr(s_q)))
        A('s_add_u32 %s, %s, %s' % (sr(s_sa), sr(s_sa), sr(s0)))
        A('s_lshl_b32 %s, %s, 2' % (sr(s_sa), sr(s_sa)))
        A('s_add_u32 %s, %s, %s' % (sr(s_sa), sr(s_sa), sr(s_w)))
        A('s_lshl_b32 %s, %s, 5' % (sr(s_sa), sr(s_sa)))
        A('s_add_u32 %s, %s, 0x%x' % (sr(s_sa), sr(s_sa), STAMP + 0x400000))
        wstamp(0)
    kinds = ('aoutr', 'aoutj', 'skv', 'bkv', 'bq', 'q', 'battn', 'bout', 'wot', 'aattn', 'aout', 'aattn1', 'aoutd', 'aoute', 'big', 'bigA', 'small', 'outc')
    L = {k: A.uid('job' + k) for k in kinds}
    for k, n, p in SEGS:
        A('s_mov_b32 %s, %d' % (sr(s_p), p))
        A('s_cmp_lt_u32 %s, %d' % (sr(s_job), n))
        A('s_cbranch_scc1 ' + L[k])
        A('s_sub_u32 %s, %s, %d' % (sr(s_job), sr(s_job), n))
    QLEN = sum(n for _, n, _ in SEGS)
    L_peek = name + '_wpeek'
    A.label(L_peek)
    A('s_mov_b32 %s, %d' % (sr(s0), DBG_Q * 128))
    A('buffer_load_dword %s, %s, %s, %s offen sc1' % (vr(v_b), vr(v_sh), sr(SRD_WS, 4), sr(s0)))
    A('v_lshlrev_b32 %s, 2, %s' % (vr(v_a), vr(v_lane)))
    A('v_add_u32 %s, %d, %s' % (vr(v_a), LDS_JOB + 64, vr(v_a)))
    A('s_waitcnt vmcnt(0)')
    Lp1 = A.uid('pk')
    A('s_cmp_lg_u32 %s, 0' % sr(s_w))
    A('s_cbranch_scc1 ' + Lp1)
    A('ds_write_b32 %s, %s' % (vr(v_a), vr(v_b)))
    A('s_waitcnt lgkmcnt(0)')
    A.label(Lp1)
    A('s_barrier')
    A('ds_read_b32 %s, %s' % (vr(v_b), vr(v_a)))
    A('s_waitcnt lgkmcnt(0)')
    A('s_barrier')
    for k in range(4):
        A('v_readlane_b32 %s, %s, %d' % (sr(s0), vr(v_b), k))
        A('s_mov_b32 %s, %d' % (sr(s_q), k))
        A('s_cmp_lt_u32 %s, %d' % (sr(s0), QLEN - 32))
        A('s_cbranch_scc1 ' + L_next)
    A('s_endpgm')

    def wait_ctr(s_off, thr, s_shift=None, bits=8, slp=12):
        Lw, Ld = A.uid('dw'), A.uid('dd')
        A('s_cmp_lg_u32 %s, 0' % sr(s_w))
        A('s_cbranch_scc1 ' + Ld)
        A('s_lshl_b32 %s, %s, 7' % (sr(s_wo), sr(s_off) if isinstance(s_off, int) else s_off))
        A('s_mov_b32 %s, 0' % sr(s3))
        A.label(Lw)
        A('buffer_load_dword %s, %s, %s, %s offen sc1' % (vr(v_b), vr(v_sh), sr(SRD_WS, 4), sr(s_wo)))
        A('s_add_u32 %s, %s, 1' % (sr(s3), sr(s3)))
        A('s_waitcnt vmcnt(0)')
        if s_shift is not None:
            A('v_bfe_u32 %s, %s, %s, %d' % (vr(v_b), vr(v_b), sr(s_shift), bits))
        A('v_cmp_gt_u32 vcc, %s, %s' % (thr, vr(v_b)))
        A('s_cbranch_vccz ' + Ld)
        A('s_sleep %d' % slp)
        A('s_cmp_lt_u32 %s, %d' % (sr(s3), LIM))
        A('s_cbranch_scc1 ' + Lw)
        A.label(Ld)
        A('s_barrier')

    def wait2(off1, thr1, off2, thr2, s_shift=None, bits=8, slp=12):
        Lw, Ld, Ln = A.uid('dw'), A.uid('dd'), A.uid('dn')
        tx = lambda o: sr(o) if isinstance(o, int) else o
        A('s_cmp_lg_u32 %s, 0' % sr(s_w))
        A('s_cbranch_scc1 ' + Ld)
        A('s_lshl_b32 %s, %s, 7' % (sr(s_wo), tx(off1)))
        A('s_lshl_b32 %s, %s, 7' % (sr(s_wo2), tx(off2)))
        A('s_mov_b32 %s, 0' % sr(s3))
        A.label(Lw)
        A('buffer_load_dword %s, %s, %s, %s offen sc1' % (vr(v_a), vr(v_sh), sr(SRD_WS, 4), sr(s_wo)))
        A('buffer_load_dword %s, %s, %s, %s offen sc1' % (vr(v_b), vr(v_sh), sr(SRD_WS, 4), sr(s_wo2)))
        A('s_add_u32 %s, %s, 1' % (sr(s3), sr(s3)))
        A('s_waitcnt vmcnt(0)')
        if s_shift is not None:
            A('v_bfe_u32 %s, %s, %s, %d' % (vr(v_b), vr(v_b), sr(s_shift), bits))
        A('v_cmp_gt_u32 vcc, %s, %s' % (thr1, vr(v_a)))
        A('s_cbranch_vccnz ' + Ln)
        A('v_cmp_gt_u32 vcc, %s, %s' % (thr2, vr(v_b)))
        A('s_cbranch_vccz ' + Ld)
        A.label(Ln)
        A('s_sleep %d' % slp)
        A('s_cmp_lt_u32 %s, %d' % (sr(s3), LIM))
        A('s_cbranch_scc1 ' + Lw)
        A.label(Ld)
        A('s_barrier')

    def cfg(Gx, cid, *args):
        Ls = A.uid('cfg')
        A('s_cmp_eq_u32 %s, %d' % (sr(s_cfg), cid))
        A('s_cbranch_scc1 ' + Ls)
        Gx.setup(v_lane, s_w, (s0, s1), *args)
        A('s_mov_b32 %s, %d' % (sr(s_cfg), cid))
        A.label(Ls)

    def blk_base(mbk, nbk):
        A('s_lshr_b32 %s, %s, 1' % (sr(s0), sr(s_w)))
        A('s_lshl_b32 %s, %s, 1' % (sr(s1), sr(s_mt)))
        A('s_add_u32 %s, %s, %s' % (sr(s0), sr(s0), sr(s1)))
        A('s_mul_i32 %s, %s, %d' % (sr(s0), sr(s0), mbk))
        A('s_mul_i32 %s, %s, %s' % (sr(s0), sr(s0), sr(s_tbs)))
        A('s_add_u32 %s, %s, %s' % (sr(s_base), sr(s_base), sr(s0)))
        A('s_and_b32 %s, %s, 1' % (sr(s0), sr(s_w)))
        A('s_lshl_b32 %s, %s, 1' % (sr(s1), sr(s_nt)))
        A('s_add_u32 %s, %s, %s' % (sr(s0), sr(s0), sr(s1)))
        A('s_mul_i32 %s, %s, %d' % (sr(s0), sr(s0), nbk * 2048))
        A('s_add_u32 %s, %s, %s' % (sr(s_base), sr(s_base), sr(s0)))

    def sel_kv(thr):
        A('s_cmp_ge_u32 %s, %d' % (sr(s_nt), thr))
        A('s_cselect_b32 %s, 1, 0' % sr(s_or))
        A('s_cselect_b64 %s, %s, %s' % (sr(s_pp, 2), sr(P['A_Wv'], 2), sr(P['A_Wk'], 2)))
        A('s_mov_b32 %s, 0x%x' % (sr(s_base), KX))
        A('s_cselect_b32 %s, 0x%x, %s' % (sr(s_base), VX, sr(s_base)))
        A('s_and_b32 %s, %s, %d' % (sr(s_nt), sr(s_nt), thr - 1))

    def ctr(base, s_idx, inc):
        A('s_lshl_b32 %s, %s, 2' % (sr(s_ctr), sr(s_idx)))
        A('s_add_u32 %s, %s, %d' % (sr(s_ctr), sr(s_ctr), base))
        A('s_mov_b32 %s, %d' % (sr(s_inc), inc))

    def nt_q(mask_bits_shift, mask):
        A('s_lshr_b32 %s, %s, %d' % (sr(s_nt), sr(s_job), mask_bits_shift))
        A('s_and_b32 %s, %s, %d' % (sr(s_nt), sr(s_nt), mask))
        A('s_lshl_b32 %s, %s, 2' % (sr(s_nt), sr(s_nt)))
        A('s_add_u32 %s, %s, %s' % (sr(s_nt), sr(s_nt), sr(s_q)))

    A.label(L['skv'])
    A('s_lshr_b32 %s, %s, 1' % (sr(s0), sr(s_p)))
    ctr(DBG_KV, s0, 1)
    A('s_mov_b32 %s, %s' % (sr(s_mt), sr(s_p)))
    nt_q(0, 15)
    sel_kv(32)
    mk_srd(A, G.SRD_W, s_pp, 1024 * 4096 * 2)
    mk_srd(A, G.SRD_X, P['A_x'], 2048 * 1024 * 2)
    A('s_lshl_b32 %s, %s, 18' % (sr(G.s_xo), sr(s_mt)))
    A('s_mov_b32 %s, 128' % sr(G.s_xs))
    A('s_lshl_b32 %s, %s, 8' % (sr(G.s_wo), sr(s_nt)))
    A('s_mov_b32 %s, %d' % (sr(G.s_ws), 64 * 8192))
    A('s_mov_b32 %s, %d' % (sr(s_tbs), 128 * 2048))
    A('s_mov_b32 %s, 3' % sr(G.s_n))
    blk_base(2, 2)
    cfg(G2, 3, 'nat', 2048, 8192)
    A('s_mov_b32 %s, 0' % sr(s_k))
    A('s_branch ' + L['small'])

    A.label(L['aout'])
    A('s_lshr_b32 %s, %s, 2' % (sr(s_mt), sr(s_job)))
    A('s_add_u32 %s, %s, %s' % (sr(s_mt), sr(s_mt), sr(s_p)))
    A('s_lshl_b32 %s, %s, 1' % (sr(s_mt), sr(s_mt)))
    A('s_lshr_b32 %s, %s, 1' % (sr(s0), sr(s_q)))
    A('s_add_u32 %s, %s, %s' % (sr(s_mt), sr(s_mt), sr(s0)))
    A('s_and_b32 %s, %s, 1' % (sr(s_nt), sr(s_q)))
    A('s_lshl_b32 %s, %s, 2' % (sr(s_nt), sr(s_nt)))
    A('s_and_b32 %s, %s, 3' % (sr(s0), sr(s_job)))
    A('s_add_u32 %s, %s, %s' % (sr(s_nt), sr(s_nt), sr(s0)))
    A('s_mov_b32 %s, 4' % sr(s_tbs))
    A('s_mov_b32 %s, 0' % sr(s_it))
    A('s_branch ' + L['aoutj'])
    A.label(L['aoutr'])
    A('s_mov_b32 %s, %s' % (sr(s_mt), sr(s_p)))
    A('s_lshl_b32 %s, %s, 1' % (sr(s_nt), sr(s_q)))
    A('s_add_u32 %s, %s, %s' % (sr(s_nt), sr(s_nt), sr(s_job)))
    A('s_mov_b32 %s, 0x2222' % sr(s_tbs))
    A('s_and_b32 %s, %s, 1' % (sr(s_it), sr(s_p)))
    A('s_lshl_b32 %s, %s, 4' % (sr(s_it), sr(s_it)))
    A.label(L['aoutj'])
    mk_srd(A, G.SRD_W, P['A_Wo'], 4096 * 1024 * 2)
    A('s_mul_i32 %s, %s, %d' % (sr(G.s_xo), sr(s_mt), 4 * 128 * 2048))
    A('s_add_u32 %s, %s, 0x%x' % (sr(G.s_xo), sr(G.s_xo), OA))
    A('s_mov_b32 %s, 15' % sr(G.s_n))
    A('s_mov_b32 %s, 0' % sr(s_base))
    A('s_mov_b32 %s, %d' % (sr(s2_), DBG_AA))
    cfg(G2, 5, 'blk', 128 * 2048, 2048)
    A('s_branch ' + L['outc'])
    A.label(L['bout'])
    A('s_add_u32 %s, %s, %s' % (sr(s_job), sr(s_job), sr(s_p)))
    A('s_lshr_b32 %s, %s, 1' % (sr(s_mt), sr(s_job)))
    nt_q(0, 1)
    mk_srd(A, G.SRD_W, P['B_wo'], 1024 * 1024 * 2)
    A('s_mul_i32 %s, %s, %d' % (sr(G.s_xo), sr(s_mt), 4 * 32 * 2048))
    A('s_add_u32 %s, %s, 0x%x' % (sr(G.s_xo), sr(G.s_xo), OB))
    A('s_mov_b32 %s, 3' % sr(G.s_n))
    A('s_mov_b32 %s, 2048' % sr(s_base))
    A('s_mov_b32 %s, %d' % (sr(s2_), DBG_BA))
    A('s_mov_b32 %s, 4' % sr(s_tbs))
    A('s_mov_b32 %s, 0' % sr(s_it))
    cfg(G2, 4, 'blk', 32 * 2048, 2048)
    A.label(L['outc'])
    mk_srd(A, G.SRD_X, P['ws'], WS_HALF)
    A('s_mov_b32 %s, 4096' % sr(G.s_xs))
    A('s_lshl_b32 %s, %s, 8' % (sr(G.s_wo), sr(s_nt)))
    A('s_mov_b32 %s, %d' % (sr(G.s_ws), 64 * 2048))
    A('s_mov_b32 %s, 0' % sr(s_or))
    A('s_mov_b32 %s, 0' % sr(s_inc))
    A('s_lshr_b32 %s, %s, 1' % (sr(s0), sr(s_w)))
    A('s_lshl_b32 %s, %s, 18' % (sr(s0), sr(s0)))
    A('s_add_u32 %s, %s, %s' % (sr(s_base), sr(s_base), sr(s0)))
    A('s_lshl_b32 %s, %s, 19' % (sr(s0), sr(s_mt)))
    A('s_add_u32 %s, %s, %s' % (sr(s_base), sr(s_base), sr(s0)))
    A('s_and_b32 %s, %s, 1' % (sr(s0), sr(s_w)))
    A('s_lshl_b32 %s, %s, 7' % (sr(s0), sr(s0)))
    A('s_add_u32 %s, %s, %s' % (sr(s_base), sr(s_base), sr(s0)))
    A('s_add_u32 %s, %s, %s' % (sr(s_base), sr(s_base), sr(G.s_wo)))
    A('s_lshr_b32 %s, %s, 1' % (sr(s0), sr(s_mt)))
    A('s_lshl_b32 %s, %s, 2' % (sr(s0), sr(s0)))
    A('s_add_u32 %s, %s, %s' % (sr(s0), sr(s0), sr(s2_)))
    wait_ctr(s0, sr(s_tbs), s_it, bits=16)
    A('s_mov_b32 %s, 1' % sr(s_k))
    A.label(L['small'])
    wstamp(1)
    G2.prologue()
    wstamp(2)
    LN, LE, LO = A.uid('sN'), A.uid('sE'), A.uid('sO')
    A('s_cmp_eq_u32 %s, 1' % sr(s_or))
    A('s_cbranch_scc1 ' + LN)
    G2.mainloop('T', 'st')
    A('s_nop 15')
    A('s_cmp_eq_u32 %s, 1' % sr(s_k))
    A('s_cbranch_scc1 ' + LO)
    A('s_branch ' + LE)
    A.label(LN)
    G2.mainloop('N', 'sn')
    A.label(LE)
    wstamp(3)
    early()
    G2.epi_blk(SRD_WS, v_l16, s_base, s_tbs, s0, ' sc1')
    A('s_branch ' + L_done)
    A.label(LO)
    wstamp(3)
    early()
    G2.epi_out(SRD_O, v_off, s_base)
    A('s_branch ' + L_done)

    A.label(L['wot'])
    A('s_add_u32 %s, %s, %s' % (sr(s_job), sr(s_job), sr(s_p)))
    nt_q(0, 1)
    A('s_lshr_b32 %s, %s, 1' % (sr(s_mt), sr(s_job)))
    mk_srd(A, G.SRD_W, P['A_Wo'], 4096 * 1024 * 2)
    cfg(G2, 5, 'blk', 128 * 2048, 2048)
    A('s_lshl_b32 %s, %s, 8' % (sr(G.s_wo), sr(s_nt)))
    A('s_lshl_b32 %s, %s, 19' % (sr(s0), sr(s_mt)))
    A('s_add_u32 %s, %s, %s' % (sr(G.s_wo), sr(G.s_wo), sr(s0)))
    A('s_mov_b32 %s, 1' % sr(s_inc))
    A('s_mov_b32 %s, %d' % (sr(s_ctr), DBG_WT))
    wstamp(1)
    for st in range(4):
        for g in G2.dma_ops(st)[G2.nX:]:
            for t in g:
                A(t)
        A('s_add_u32 %s, %s, %d' % (sr(G.s_wo), sr(G.s_wo), 64 * 2048))
    A('s_and_b32 %s, %s, 1' % (sr(s0), sr(s_w)))
    A('s_lshl_b32 %s, %s, 1' % (sr(s0), sr(s0)))
    A('s_lshl_b32 %s, %s, 2' % (sr(s1), sr(s_nt)))
    A('s_add_u32 %s, %s, %s' % (sr(s0), sr(s0), sr(s1)))
    A('s_lshl_b32 %s, %s, 18' % (sr(s_base), sr(s0)))
    A('s_lshl_b32 %s, %s, 14' % (sr(s0), sr(s_mt)))
    A('s_add_u32 %s, %s, %s' % (sr(s_base), sr(s_base), sr(s0)))
    A('s_lshr_b32 %s, %s, 1' % (sr(s0), sr(s_w)))
    A('s_lshl_b32 %s, %s, 13' % (sr(s1), sr(s0)))
    A('s_add_u32 %s, %s, %s' % (sr(s_base), sr(s_base), sr(s1)))
    A('s_add_u32 %s, %s, 0x%x' % (sr(s_base), sr(s_base), WOT))
    A('s_mul_i32 %s, %s, %d' % (sr(s0), sr(s0), 2 * G2.STG))
    T = V2.alloc(64, 4)
    ta = [V2.alloc() for _ in range(4)]
    for i in range(2):
        for q in range(2):
            A('v_add_u32 %s, %s, %s' % (vr(ta[2 * i + q]), sr(s0), vr(G2.rw[0][i][q])))
    early()
    A('s_waitcnt vmcnt(0)')
    A('s_barrier')
    for i in range(2):
        for st in range(2):
            for ks in range(4):
                d = T + 4 * ((i * 2 + st) * 4 + ks)
                for q in range(2):
                    A('ds_read_b64_tr_b16 %s, %s offset:%d' % (vr(d + 2 * q, 2), vr(ta[2 * i + q]), st * G2.STG + ks * 16 * G2.wrow))
            A('s_waitcnt lgkmcnt(0)')
    for i in range(2):
        for st in range(2):
            A('s_add_u32 %s, %s, %d' % (sr(s0), sr(s_base), i * 262144 + st * 4096))
            for ks in range(4):
                d = T + 4 * ((i * 2 + st) * 4 + ks)
                A('buffer_store_dwordx4 %s, %s, %s, %s offen offset:%d' % (vr(d, 4), vr(v_l16), sr(SRD_WS, 4), sr(s0), ks * 1024) + ' sc1')
    A('s_branch ' + L_done)

    def wid16():
        A('s_lshl_b32 %s, %s, 4' % (sr(s0), sr(s_q)))
        A('s_add_u32 %s, %s, %s' % (sr(s2_), sr(s_job), sr(s0)))
        A('s_lshl_b32 %s, %s, 2' % (sr(s2_), sr(s2_)))
        A('s_add_u32 %s, %s, %s' % (sr(s2_), sr(s2_), sr(s_w)))
    A.label(L['bkv'])
    if WT2:
        Lnt = A.uid('nt2')
        A('s_cmp_lg_u32 %s, 1' % sr(s_p))
        A('s_cbranch_scc1 ' + Lnt)
        wid16()
        if WTOUCH:
            touch([(k, 8 << 20) for k in WTOUCH.split(',')], s2_, 15)
        touch([('A_x', 4 << 20)], s2_, 14)
        A.label(Lnt)
    A('s_lshl_b32 %s, %s, 5' % (sr(s0), sr(s_q)))
    A('s_add_u32 %s, %s, %s' % (sr(s_k), sr(s_job), sr(s0)))
    A('s_lshl_b32 %s, %s, 2' % (sr(s_k), sr(s_k)))
    A('s_add_u32 %s, %s, %s' % (sr(s_k), sr(s_k), sr(s_w)))
    A('s_cmp_eq_u32 %s, 3' % sr(s_p))
    A('s_cselect_b32 %s, %s, -1' % (sr(s_k), sr(s_k)))
    A('s_lshr_b32 %s, %s, 3' % (sr(s_mt), sr(s_job)))
    A('s_add_u32 %s, %s, %s' % (sr(s_mt), sr(s_mt), sr(s_p)))
    nt_q(0, 7)
    sel_kv(16)
    ctr(DBG_KV, s_mt, 4)
    A('s_branch ' + L['bigA'])
    A.label(L['q'])
    A('s_mov_b32 %s, -1' % sr(s_k))
    A('s_lshr_b32 %s, %s, 2' % (sr(s_mt), sr(s_job)))
    A('s_add_u32 %s, %s, %s' % (sr(s_mt), sr(s_mt), sr(s_p)))
    nt_q(0, 3)
    A('s_mov_b64 %s, %s' % (sr(s_pp, 2), sr(P['A_Wq'], 2)))
    A('s_mov_b32 %s, 0x%x' % (sr(s_base), QX))
    A('s_mov_b32 %s, 0' % sr(s_or))
    ctr(DBG_QR, s_mt, 1)
    A.label(L['bigA'])
    mk_srd(A, G.SRD_W, s_pp, 1024 * 4096 * 2)
    mk_srd(A, G.SRD_X, P['A_x'], 2048 * 1024 * 2)
    A('s_lshl_b32 %s, %s, 9' % (sr(G.s_wo), sr(s_nt)))
    A('s_mov_b32 %s, %d' % (sr(G.s_ws), 64 * 8192))
    A('s_mov_b32 %s, %d' % (sr(s_tbs), 128 * 2048))
    cfg(G4, 1, 'nat', 2048, 8192)
    A('s_branch ' + L['big'])
    A.label(L['bq'])
    A('s_add_u32 %s, %s, %s' % (sr(s_job), sr(s_job), sr(s_p)))
    A('s_mov_b32 %s, -1' % sr(s_k))
    A('s_mul_i32 %s, %s, 43' % (sr(s_mt), sr(s_job)))
    A('s_lshr_b32 %s, %s, 7' % (sr(s_mt), sr(s_mt)))
    A('s_mul_i32 %s, %s, 3' % (sr(s0), sr(s_mt)))
    A('s_sub_u32 %s, %s, %s' % (sr(s0), sr(s_job), sr(s0)))
    A('s_cmp_eq_u32 %s, 2' % sr(s0))
    A('s_cselect_b32 %s, 1, 0' % sr(s_or))
    A('s_lshl_b32 %s, %s, 22' % (sr(s_base), sr(s0)))
    A('s_add_u32 %s, %s, 0x%x' % (sr(s_base), sr(s_base), QB))
    A('s_lshl_b32 %s, %s, 2' % (sr(s0), sr(s0)))
    A('s_add_u32 %s, %s, %s' % (sr(s0), sr(s0), sr(s_q)))
    A('s_lshl_b32 %s, %s, 9' % (sr(G.s_wo), sr(s0)))
    A('s_mov_b32 %s, %s' % (sr(s_nt), sr(s_q)))
    mk_srd(A, G.SRD_W, P['B_wqkv'], 1024 * 3072 * 2)
    mk_srd(A, G.SRD_X, P['B_x'], 2048 * 1024 * 2)
    A('s_mov_b32 %s, %d' % (sr(G.s_ws), 64 * 6144))
    A('s_mov_b32 %s, %d' % (sr(s_tbs), 32 * 2048))
    ctr(DBG_BQ, s_mt, 1)
    cfg(G4, 2, 'nat', 2048, 6144)
    A.label(L['big'])
    A('s_lshl_b32 %s, %s, 19' % (sr(G.s_xo), sr(s_mt)))
    A('s_mov_b32 %s, 128' % sr(G.s_xs))
    A('s_mov_b32 %s, 7' % sr(G.s_n))
    blk_base(4, 4)
    wstamp(1)
    G4.prologue_issue()
    if OVL:
        Lpe, Lpj = A.uid('pe'), A.uid('pj')
        A('s_cmp_lg_u32 %s, 0' % sr(s_pe))
        A('s_cbranch_scc1 ' + Lpe)
        A('s_waitcnt vmcnt(16)')
        A('s_branch ' + Lpj)
        A.label(Lpe)
        G4.epi_blk(SRD_WS, v_l16, p_base, p_tbs, s0, ' sc1')
        A('s_waitcnt vmcnt(48)')
        A.label(Lpj)
    else:
        A('s_waitcnt vmcnt(16)')
    G4.prologue_finish()
    wstamp(2)

    def sig_prev():
        Ls = A.uid('sp')
        A('s_cmp_eq_u32 %s, 0' % sr(s_pe))
        A('s_cbranch_scc1 ' + Ls)
        A('s_mov_b32 %s, 0' % sr(s_pe))
        A('s_cmp_lg_u32 %s, 0' % sr(s_w))
        A('s_cbranch_scc1 ' + Ls)
        A('s_add_u32 %s, %s, %s' % (sr(s0), sr(p_ctr), sr(s_q)))
        A('s_lshl_b32 %s, %s, 7' % (sr(s0), sr(s0)))
        A('s_add_u32 %s, %s, 0x%x' % (sr(s0), sr(s0), CTR))
        A('v_mov_b32 %s, %s' % (vr(v_a), sr(s0)))
        A('v_mov_b32 %s, %s' % (vr(v_b), sr(p_inc)))
        A('s_mov_b64 exec, 1')
        A('buffer_atomic_add %s, %s, %s, 0 offen sc1' % (vr(v_b), vr(v_a), sr(SRD_WS, 4)))
        A('s_mov_b64 exec, -1')
        A.label(Ls)
    ht = (lambda: early(False)) if OVL else None
    Lnt3 = A.uid('nt3')
    A('s_cmp_eq_u32 %s, -1' % sr(s_k))
    A('s_cbranch_scc1 ' + Lnt3)
    touch([('B_x', 4 << 20), ('B_wo', 2 << 20)], s_k, 13)
    touch([('B_wqkv', 6 << 20)], s_k, 14)
    A.label(Lnt3)
    LN, LE = A.uid('bN'), A.uid('bE')
    A('s_cmp_eq_u32 %s, 1' % sr(s_or))
    A('s_cbranch_scc1 ' + LN)
    G4.mainloop('T', 'bt', sig_prev if OVL else None, ht)
    A('s_nop 15')
    A('s_branch ' + LE)
    A.label(LN)
    G4.mainloop('N', 'bn', sig_prev if OVL else None, ht)
    A.label(LE)
    wstamp(3)
    if OVL:
        Lno, Lw1, Lyes = A.uid('no'), A.uid('w1'), A.uid('yes')
        A('s_nop 11')
        A('s_cmp_eq_u32 %s, 0' % sr(s_et))
        A('s_cbranch_scc1 ' + Lno)
        A('v_mov_b32 %s, %d' % (vr(v_a), LDS_JOB))
        A('s_cmp_lg_u32 %s, 0' % sr(s_w))
        A('s_cbranch_scc1 ' + Lw1)
        A('s_mov_b64 exec, 1')
        A('ds_write_b32 %s, %s' % (vr(v_a), vr(v_tk)))
        A('s_mov_b64 exec, -1')
        A('s_waitcnt lgkmcnt(0)')
        A.label(Lw1)
        A('s_barrier')
        A('ds_read_b32 %s, %s' % (vr(v_b), vr(v_a)))
        A('s_waitcnt lgkmcnt(0)')
        A('v_readfirstlane_b32 %s, %s' % (sr(s1), vr(v_b)))
        A('s_barrier')
        rng, a0 = [], 0
        for k_, n_, p_ in SEGS:
            if k_ in ('bkv', 'q', 'bq'):
                if rng and rng[-1][1] == a0:
                    rng[-1][1] = a0 + n_
                else:
                    rng.append([a0, a0 + n_])
            a0 += n_
        for lo, hi_ in rng:
            if hi_ <= 32:
                continue
            A('s_sub_u32 %s, %s, %d' % (sr(s0), sr(s1), lo - 32))
            A('s_cmp_lt_u32 %s, %d' % (sr(s0), hi_ - lo))
            A('s_cbranch_scc1 ' + Lyes)
        A('s_branch ' + Lno)
        A.label(Lyes)
        wstamp(4)
        wstamp(5)
        A('s_mov_b32 %s, %s' % (sr(p_base), sr(s_base)))
        A('s_mov_b32 %s, %s' % (sr(p_tbs), sr(s_tbs)))
        A('s_mov_b32 %s, %s' % (sr(p_ctr), sr(s_ctr)))
        A('s_mov_b32 %s, %s' % (sr(p_inc), sr(s_inc)))
        A('s_mov_b32 %s, 1' % sr(s_pe))
        A('s_mov_b32 %s, 0' % sr(s_et))
        A('s_mov_b32 %s, %s' % (sr(s_job), sr(s1)))
        A('s_branch ' + L_got)
        A.label(Lno)
    else:
        early()
    G4.epi_blk(SRD_WS, v_l16, s_base, s_tbs, s0, ' sc1')
    A('s_branch ' + L_done)

    def attn_items():
        A('s_mov_b32 %s, 0' % sr(s_cfg))
        A('s_and_b32 %s, %s, 3' % (sr(s0), sr(s_job)))
        A('s_lshl_b32 %s, %s, 2' % (sr(s1), sr(s_q)))
        A('s_add_u32 %s, %s, %s' % (sr(s0), sr(s0), sr(s1)))
        A('s_lshl_b32 %s, %s, 1' % (sr(s0), sr(s0)))
        A('s_and_b32 %s, %s, 1' % (sr(s1), sr(s_w)))
        A('s_add_u32 %s, %s, %s' % (sr(s_it), sr(s0), sr(s1)))
        A('s_lshl_b32 %s, %s, 8' % (sr(s0), sr(s_mt)))
        A('s_add_u32 %s, %s, %s' % (sr(s_it), sr(s_it), sr(s0)))
        A('s_lshr_b32 %s, %s, 1' % (sr(s0), sr(s_w)))
        A('s_lshl_b32 %s, %s, 7' % (sr(s0), sr(s0)))
        A('s_add_u32 %s, %s, %s' % (sr(s_it), sr(s_it), sr(s0)))
        A('s_mov_b32 %s, 4' % sr(s_k))
        wstamp(1)

    def attn_loop(fn, tag):
        Lb = A.uid(tag)
        A.label(Lb)
        fn(A, SRD_WS, s_it, (s0, s1, s2_, s3), v_lane, v_l16, 8, ld=' sc1', stf=' sc1')
        A('s_add_u32 %s, %s, 32' % (sr(s_it), sr(s_it)))
        A('s_sub_u32 %s, %s, 1' % (sr(s_k), sr(s_k)))
        A('s_cmp_lg_u32 %s, 0' % sr(s_k))
        A('s_waitcnt vmcnt(0)')
        A('s_cbranch_scc1 ' + Lb)

    A.label(L['aattn'])
    A('s_lshr_b32 %s, %s, 2' % (sr(s_mt), sr(s_job)))
    A('s_add_u32 %s, %s, %s' % (sr(s_mt), sr(s_mt), sr(s_p)))
    A('s_lshl_b32 %s, %s, 2' % (sr(s_ctr), sr(s_mt)))
    A('s_add_u32 %s, %s, %d' % (sr(s0), sr(s_ctr), DBG_QR))
    A('s_lshl_b32 %s, %s, 3' % (sr(s1), sr(s_mt)))
    A('s_add_u32 %s, %s, %d' % (sr(s1), sr(s1), 7 + LAG))
    wait2(s0, 4, str(DBG_PROG), sr(s1))
    ctr(DBG_AA, s_mt, 1)
    attn_items()
    attn.attn_a_n(A, SRD_WS, s_it, (s0, s1, s2_, s3), v_lane, v_l16, 8, 4, ld=' sc1', stf=' sc1', late=early)
    A('s_branch ' + L_done)

    A.label(L['aattn1'])
    A('s_lshr_b32 %s, %s, 2' % (sr(s_mt), sr(s_p)))
    A('s_lshl_b32 %s, %s, 2' % (sr(s_ctr), sr(s_mt)))
    A('s_lshl_b32 %s, %s, 1' % (sr(s_it), sr(s_p)))
    A('s_lshr_b32 %s, %s, 1' % (sr(s0), sr(s_job)))
    A('s_add_u32 %s, %s, %s' % (sr(s_it), sr(s_it), sr(s0)))
    A('s_add_u32 %s, %s, %d' % (sr(s_tbs), sr(s_it), LAG))
    A('s_mov_b32 %s, %d' % (sr(s_base), DBG_PROG))
    A('s_cmp_gt_u32 %s, 60' % sr(s_it))
    A('s_cselect_b32 %s, 32, %s' % (sr(s_tbs), sr(s_tbs)))
    A('s_cselect_b32 %s, %d, %s' % (sr(s_base), DBG_FIN, sr(s_base)))
    A('s_add_u32 %s, %s, %d' % (sr(s0), sr(s_ctr), DBG_KV))
    A('s_add_u32 %s, %s, %d' % (sr(s1), sr(s_ctr), DBG_QR))
    wait2(s0, 32, s1, 4)
    A('s_add_u32 %s, %s, %d' % (sr(s_ctr), sr(s_ctr), DBG_AA))
    A('s_and_b32 %s, %s, 7' % (sr(s0), sr(s_it)))
    A('s_lshl_b32 %s, %s, 2' % (sr(s0), sr(s0)))
    A('s_lshl_b32 %s, 1, %s' % (sr(s_inc), sr(s0)))
    A('s_lshl_b32 %s, %s, 5' % (sr(s_it), sr(s_it)))
    A('s_lshl_b32 %s, %s, 3' % (sr(s0), sr(s_q)))
    A('s_add_u32 %s, %s, %s' % (sr(s_it), sr(s_it), sr(s0)))
    A('s_and_b32 %s, %s, 1' % (sr(s0), sr(s_job)))
    A('s_lshl_b32 %s, %s, 2' % (sr(s0), sr(s0)))
    A('s_add_u32 %s, %s, %s' % (sr(s_it), sr(s_it), sr(s0)))
    A('s_add_u32 %s, %s, %s' % (sr(s_it), sr(s_it), sr(s_w)))
    A('s_mov_b32 %s, 0' % sr(s_cfg))

    def pw1():
        wait_ctr(s_base, sr(s_tbs), slp=4)
        wstamp(1)
        early()
    attn.attn_a(A, SRD_WS, s_it, (s0, s1, s2_, s3), v_lane, v_l16, 8, ld=' sc1', stf=' sc1', pre_wait=pw1)
    A('s_branch ' + L_done)

    A.label(L['aoute'])
    wait_ctr(str(DBG_WT), 32)
    A('s_lshr_b32 %s, %s, 3' % (sr(s_mt), sr(s_job)))
    A('s_add_u32 %s, %s, %s' % (sr(s_mt), sr(s_mt), sr(s_p)))
    A('s_lshl_b32 %s, %s, 3' % (sr(s_nt), sr(s_q)))
    A('s_and_b32 %s, %s, 7' % (sr(s0), sr(s_job)))
    A('s_add_u32 %s, %s, %s' % (sr(s_nt), sr(s_nt), sr(s0)))
    A('s_mov_b32 %s, 0' % sr(s_inc))
    A('s_mov_b32 %s, 0' % sr(s_cfg))

    def pw2():
        A('s_lshr_b32 %s, %s, 3' % (sr(s0), sr(s_mt)))
        A('s_lshl_b32 %s, %s, 2' % (sr(s0), sr(s0)))
        A('s_add_u32 %s, %s, %d' % (sr(s0), sr(s0), DBG_AA))
        A('s_and_b32 %s, %s, 7' % (sr(s1), sr(s_mt)))
        A('s_lshl_b32 %s, %s, 2' % (sr(s1), sr(s1)))
        wait_ctr(s0, 2, s1, bits=4, slp=4)
        wstamp(1)
    out_direct32(A, SRD_WS, SRD_O, s_w, s_mt, s_nt, (s_base, s_tbs, s0, s_it, s_k), v_lane, v_l16, 8, ' sc1', pw2)
    A('s_branch ' + L_done)

    A.label(L['aoutd'])
    A('s_lshr_b32 %s, %s, 2' % (sr(s0), sr(s_p)))
    A('s_lshl_b32 %s, %s, 2' % (sr(s0), sr(s0)))
    A('s_add_u32 %s, %s, %d' % (sr(s0), sr(s0), DBG_AA))
    A('s_and_b32 %s, %s, 3' % (sr(s1), sr(s_p)))
    A('s_lshl_b32 %s, %s, 3' % (sr(s1), sr(s1)))
    wait2(str(DBG_WT), 32, s0, '0x22', s1)
    A('s_lshl_b32 %s, %s, 1' % (sr(s_mt), sr(s_p)))
    A('s_lshl_b32 %s, %s, 3' % (sr(s_nt), sr(s_q)))
    A('s_add_u32 %s, %s, %s' % (sr(s_nt), sr(s_nt), sr(s_job)))
    A('s_mov_b32 %s, 0' % sr(s_inc))
    A('s_mov_b32 %s, 0' % sr(s_cfg))
    wstamp(1)
    out_direct(A, SRD_WS, SRD_O, s_w, s_mt, s_nt, (s_base, s_tbs, s_it, s0, s1), v_lane, v_l16, v_off, 8, ld=' sc1', pre=early)
    A('s_branch ' + L_done)

    A.label(L['battn'])
    A('s_add_u32 %s, %s, %s' % (sr(s_job), sr(s_job), sr(s_p)))
    A('s_lshr_b32 %s, %s, 2' % (sr(s_mt), sr(s_job)))
    A('s_lshl_b32 %s, %s, 2' % (sr(s_ctr), sr(s_mt)))
    A('s_add_u32 %s, %s, %d' % (sr(s1), sr(s_ctr), DBG_BQ))
    A('s_add_u32 %s, %s, %d' % (sr(s0), sr(s_ctr), DBG_BQ - 4))
    A('s_max_u32 %s, %s, %d' % (sr(s0), sr(s0), DBG_BQ))
    wait2(s0, 3, s1, 3)
    ctr(DBG_BA, s_mt, 1)
    attn_items()
    attn.attn_b4(A, SRD_WS, s_it, (s0, s1, s2_, s3), v_lane, v_l16, 8, ld=' sc1', stf=' sc1', late=early)

    A.label(L_done)
    wstamp(4)
    Lq0 = A.uid('q0')
    A('s_cmp_lg_u32 %s, 0' % sr(s_init))
    A('s_cbranch_scc1 ' + Lq0)
    A('v_cmp_gt_u32 vcc, 8, %s' % vr(v_lane))
    A('v_lshlrev_b32 %s, 2, %s' % (vr(v_a), vr(v_lane)))
    A('v_mov_b32 %s, %d' % (vr(v_b), DBG_INIT))
    A('v_cndmask_b32 %s, %s, %s, vcc' % (vr(v_a), vr(v_b), vr(v_a)))
    A('buffer_load_dword %s, %s, %s, 0 offen sc1' % (vr(v_b), vr(v_a), sr(SRD_D, 4)))
    A('v_cndmask_b32 %s, 1, 32, vcc' % vr(v_a))
    A('s_waitcnt vmcnt(0)')
    A('v_cmp_ne_u32 vcc, %s, %s' % (vr(v_a), vr(v_b)))
    A('s_cbranch_vccnz ' + Lq0)
    A('s_mov_b32 %s, 1' % sr(s_init))
    A.label(Lq0)
    A('s_waitcnt vmcnt(0)')
    wstamp(5)
    dbgt(14)
    Ld1, Ld2, Lsig = A.uid('d1'), A.uid('d2'), A.uid('sig')
    A('v_mov_b32 %s, %d' % (vr(v_a), LDS_JOB))
    A('s_cmp_lg_u32 %s, 0' % sr(s_w))
    A('s_cbranch_scc1 ' + Ld1)
    A('s_mov_b64 exec, 1')
    A('ds_write_b32 %s, %s' % (vr(v_a), vr(v_tk)))
    A('s_mov_b64 exec, -1')
    A('s_waitcnt lgkmcnt(0)')
    A.label(Ld1)
    A('s_barrier')
    Lck = A.uid('ck')
    A('s_cmp_lg_u32 %s, 0' % sr(s_init))
    A('s_cbranch_scc1 ' + Lck)
    place_check(A, SRD_D, v_lane, v_a, v_b, s3, LIM, L_restart)
    A.label(Lck)
    A('s_cmp_lg_u32 %s, 0' % sr(s_w))
    A('s_cbranch_scc1 ' + Ld2)
    A('s_cmp_lg_u32 %s, 0' % sr(s_inc))
    A('s_cbranch_scc1 ' + Lsig)
    A.label(Ld2)
    A('s_cmp_eq_u32 %s, 0' % sr(s_et))
    A('s_cbranch_scc1 ' + L_next)
    A('s_mov_b32 %s, 0' % sr(s_et))
    A('v_mov_b32 %s, %d' % (vr(v_a), LDS_JOB))
    A('ds_read_b32 %s, %s' % (vr(v_b), vr(v_a)))
    A('s_waitcnt lgkmcnt(0)')
    A('v_readfirstlane_b32 %s, %s' % (sr(s_job), vr(v_b)))
    A('s_barrier')
    A('s_branch ' + L_got)
    A.label(Lsig)
    wait_init()
    A('s_add_u32 %s, %s, %s' % (sr(s0), sr(s_ctr), sr(s_q)))
    A('s_lshl_b32 %s, %s, 7' % (sr(s0), sr(s0)))
    A('s_add_u32 %s, %s, 0x%x' % (sr(s0), sr(s0), CTR))
    A('v_mov_b32 %s, %s' % (vr(v_a), sr(s0)))
    A('v_mov_b32 %s, %s' % (vr(v_b), sr(s_inc)))
    A('s_mov_b64 exec, 1')
    A('buffer_atomic_add %s, %s, %s, 0 offen sc1' % (vr(v_b), vr(v_a), sr(SRD_WS, 4)))
    Lk0 = A.uid('k0')
    A('s_cmp_lg_u32 %s, %d' % (sr(s_ctr), DBG_KV))
    A('s_cbranch_scc1 ' + Lk0)
    A('s_cmp_lg_u32 %s, 0' % sr(s_mt))
    A('s_cbranch_scc1 ' + Lk0)
    A('v_add_u32 %s, %d, %s' % (vr(v_a), (DBG_KV0 - DBG_KV) * 128, vr(v_a)))
    A('v_mov_b32 %s, 2' % vr(v_b))
    A('buffer_atomic_add %s, %s, %s, 0 offen sc1' % (vr(v_b), vr(v_a), sr(SRD_WS, 4)))
    A.label(Lk0)
    A('s_mov_b64 exec, -1')
    A('s_branch ' + Ld2)
    return hi
```

```python
from asmlib import *
from layout import *
import struct, os
from kernels import place_check, shift_ptrs


def f32bits(x):
    return struct.unpack('<I', struct.pack('<f', x))[0]


def env(n, d):
    return int(os.environ.get(n, str(d)))


LDS_RED = 131072
LDS_O = LDS_RED + 16384
LDS_ROLE = LDS_O + 8192
NSTEP = env('NSTEP', 64)
POLL_LIMIT = 400000
NEARX = env('NEARX', 1)
DELAY_C = env('DELAY_C', 4)
DELAY_E = env('DELAY_E', 12)
E_BACK = env('E_BACK', 0)
DELAY_V = env('DELAY_V', 6)
RED_SLEEP = env('RED_SLEEP', 3)
NOE_SLEEP = env('NOE_SLEEP', 10)
NOPF = env('NOPF', 0)
FORCE_SAFE = env('FORCE_SAFE', 0)
PFC = env('PFC', 0)
VS = [int(x) for x in os.environ.get('VS', '8,3,5').split(',')]
A2 = env('A2', 1)
S3 = env('S3', 2)
HINT = env('HINT', 7)
DBGT = env('DBGT', 0)
XMAP = int(os.environ.get('XMAP', '0'), 16)
A1P = env('A1P', 0)
ZE = env('ZE', 1)
CODEPF = env('CODEPF', 1)
LITE = [int(x) for x in os.environ.get('LITE', '').split(',') if x]


def gen_chain(A, name, stamps=False, nsteps=NSTEP, worker=None):
    S = Regs('s', 16, 100)
    V = Regs('v', 1, 256)
    SRD_WS, SRD_T = 8, 12
    s_ptr = S.alloc(16, 4)
    (s_w, s_x, s_j, s_t0, s_t1, s_t2, s_t3, s_step, s_slot, s_slot1, s_slot2, s_slotp, s_kx, s_kx2, s_out, s_outp, s_fffe, s_c,
     s_lim, s_cnt, s_vote, s_stamp, s_stl, s_red, s_obm, s_kvo, s_ps, s_ps2, s_m0, s_m1) = [S.alloc() for _ in range(30)]
    s_hf = S.alloc(2, 2)
    s_tm = S.alloc(2, 2)
    s_ta = S.alloc(2, 2)
    s_kvm = S.alloc(2, 2)
    SRD_A = S.alloc(4, 4)
    SRD_B = S.alloc(4, 4)
    SRD_D = S.alloc(4, 4)
    v_lane, v_nu, v_g = V.alloc(), V.alloc(), V.alloc()
    v_t = [V.alloc() for _ in range(8)]
    (va_memr, va_mems, va_rw, va_rr, va_qks, va_rb, va_vs, va_cp, va_prog, va_qkr, va_vmr, va_kx, va_vx, va_ow, va_or, va_pw, va_pr,
     va_pz, va_pd, va_warm, v_idx, v_bias, v_junk, v_kvf, v_junk2, v_sh, va_flg, va_pg) = [V.alloc() for _ in range(28)]
    v_m1 = V.alloc(4, 4)
    v_mask = V.alloc(4, 4)
    v_sel = V.alloc(4, 4)
    v_maskx = V.alloc(4, 4)
    v_ones = V.alloc(4, 4)
    acc1 = V.alloc(4, 4)
    acc2 = V.alloc(4, 4)
    KXA = V.alloc(16, 4)
    KXB = V.alloc(16, 4)
    VXR = V.alloc(32, 4)
    F = V.alloc(64, 4)
    VMR = V.alloc(8, 4)
    QK = V.alloc(16, 4)
    M = V.alloc(16, 4)
    assert KXB == KXA + 16 and VXR == KXA + 32 and F == KXA + 64
    LND = KXA
    AC = F
    HA = F + 32
    RD = F + 48
    SA, SB, SM = F, F + 4, F + 8
    PX, PXH = F + 12, F + 16
    PM, PMH = F + 20, F + 22
    O = F + 28
    LS = F + 44
    v_mx, v_mx2, v_l = F + 48, F + 49, F + 50
    XY = QK
    G = F
    PR = KXA
    RB = KXA + 8
    W1, W2 = 0, 128
    L_exit = name + '_exit'
    nvm = [0]

    def stamp(k):
        if not stamps or (LITE and k not in LITE):
            return
        A('%s %s' % ('s_memrealtime' if stamps == 'rt' else 's_memtime', sr(s_tm, 2)))
        A('s_waitcnt lgkmcnt(0)')
        A('v_mov_b32 %s, %s' % (vr(v_t[7]), sr(s_tm)))
        A('v_mov_b32 %s, %s' % (vr(v_t[6]), sr(s_stl)))
        A('ds_write_b32 %s, %s offset:%d' % (vr(v_t[6]), vr(v_t[7]), 4 * k))
        if k in (0, 2, 6):
            A('v_mov_b32 %s, %s' % (vr(v_t[5]), sr(s_cnt)))
            A('ds_write_b32 %s, %s offset:%d' % (vr(v_t[6]), vr(v_t[5]), 4 * (8 + k)))

    def dbgt(word):
        if not DBGT:
            return
        A('s_memrealtime %s' % sr(s_tm, 2))
        A('s_waitcnt lgkmcnt(0)')
        A('v_mov_b32 %s, %s' % (vr(v_t[7]), sr(s_tm)))
        A('v_mov_b32 %s, %d' % (vr(v_t[6]), word * 4))
        A('s_mov_b64 exec, 1')
        A('buffer_atomic_umax %s, %s, %s, 0 offen sc1' % (vr(v_t[7]), vr(v_t[6]), sr(SRD_T, 4)))
        A('s_mov_b64 exec, -1')

    def srd(dst, ptr, nbytes):
        A('s_mov_b32 %s, %s' % (sr(dst), sr(ptr)))
        A('s_and_b32 %s, %s, 0xffff' % (sr(dst + 1), sr(ptr + 1)))
        A('s_mov_b32 %s, 0x%x' % (sr(dst + 2), nbytes))
        A('s_mov_b32 %s, 0x00020000' % sr(dst + 3))

    A.raw('.p2align 8')
    A.label(name)
    A('s_cmp_ge_u32 s2, 256')
    A('s_cbranch_scc1 ' + L_exit)
    A('s_mov_b32 s%d, 0' % S_MODE)
    if CODEPF:
        Lnp = A.uid('nopf')
        A('v_readfirstlane_b32 s4, v0')
        A('s_lshr_b32 s4, s4, 6')
        A('s_cmp_lg_u32 s4, 1')
        A('s_cbranch_scc1 ' + Lnp)
        A('s_getpc_b64 s[4:5]')
        A.label(name + '_pc')
        A('s_lshr_b32 s6, s2, 3')
        A('s_lshl_b32 s6, s6, 13')
        A('v_and_b32 v250, 63, v0')
        A('v_lshl_add_u32 v250, v250, 7, s6')
        A('v_min_u32 v250, %s_end-%s_pc-4, v250' % (name, name))
        A('v_mov_b32 v253, s5')
        A('v_add_co_u32 v252, vcc, s4, v250')
        A('v_addc_co_u32 v253, vcc, 0, v253, vcc')
        if CODEPF == 2:
            A('s_sleep 4')
        A('global_load_dword v251, v[252:253], off')
        A.label(Lnp)
    L_restart = name + '_restart'
    A.label(L_restart)
    A('s_load_dwordx2 %s, s[0:1], 8' % sr(s_ptr, 2))
    A('s_load_dwordx4 %s, s[0:1], 16' % sr(s_ptr + 4, 4))
    A('s_load_dwordx4 %s, s[0:1], 32' % sr(s_ptr + 8, 4))
    A('s_load_dwordx4 %s, s[0:1], 88' % sr(s_ptr + 12, 4))
    P_MEM0, P_WQ, P_WK, P_WV, P_WO, P_DBG, P_WS = s_ptr, s_ptr + 4, s_ptr + 6, s_ptr + 8, s_ptr + 10, s_ptr + 12, s_ptr + 14
    A('v_and_b32 %s, 63, v0' % vr(v_lane))
    A('v_lshrrev_b32 %s, 6, v0' % vr(v_t[0]))
    A('v_readfirstlane_b32 %s, %s' % (sr(s_w), vr(v_t[0])))
    A('v_and_b32 %s, 15, %s' % (vr(v_nu), vr(v_lane)))
    A('v_lshrrev_b32 %s, 4, %s' % (vr(v_g), vr(v_lane)))
    A('s_waitcnt lgkmcnt(0)')
    shift_ptrs(A, P_WS, P_DBG, s_t0)
    srd(SRD_WS, P_WS, WS_HALF)
    srd(SRD_T, P_DBG, 128)
    L_role = A.uid('role')
    A('s_lshr_b32 %s, s2, 5' % sr(s_x))
    A('s_and_b32 %s, s2, 31' % sr(s_j))
    A('s_cmp_lg_u32 s%d, 0' % S_MODE)
    A('s_cbranch_scc1 ' + L_role)
    A('s_getreg_b32 %s, hwreg(HW_REG_XCC_ID)' % sr(s_x))
    A('s_and_b32 %s, %s, 7' % (sr(s_x), sr(s_x)))
    if XMAP:
        A('s_lshl_b32 %s, %s, 2' % (sr(s_x), sr(s_x)))
        A('s_lshr_b32 %s, 0x%x, %s' % (sr(s_x), XMAP, sr(s_x)))
        A('s_and_b32 %s, %s, 7' % (sr(s_x), sr(s_x)))
    if FORCE_SAFE:
        A('s_cmp_eq_u32 s2, %d' % FORCE_SAFE)
        A('s_cselect_b32 %s, 1, 0' % sr(s_t0))
        A('s_xor_b32 %s, %s, %s' % (sr(s_x), sr(s_x), sr(s_t0)))
    L_norole = A.uid('norole')
    A('s_cmp_lg_u32 %s, 0' % sr(s_w))
    A('s_cbranch_scc1 ' + L_norole)
    A('s_lshl_b32 %s, %s, 2' % (sr(s_t0), sr(s_x)))
    A('v_mov_b32 %s, %s' % (vr(v_t[0]), sr(s_t0)))
    A('v_mov_b32 %s, 1' % vr(v_t[1]))
    A('s_mov_b64 exec, 1')
    A('buffer_atomic_add %s, %s, %s, 0 offen sc0 sc1' % (vr(v_t[1]), vr(v_t[0]), sr(SRD_T, 4)))
    A('s_waitcnt vmcnt(0)')
    A('v_mov_b32 %s, %d' % (vr(v_t[0]), LDS_ROLE))
    A('ds_write_b32 %s, %s' % (vr(v_t[0]), vr(v_t[1])))
    A('s_waitcnt lgkmcnt(0)')
    A('s_mov_b64 exec, -1')
    A.label(L_norole)
    A('s_barrier')
    A('v_mov_b32 %s, %d' % (vr(v_t[0]), LDS_ROLE))
    A('ds_read_b32 %s, %s' % (vr(v_t[1]), vr(v_t[0])))
    A('s_waitcnt lgkmcnt(0)')
    A('v_readfirstlane_b32 %s, %s' % (sr(s_j), vr(v_t[1])))
    A.label(L_role)
    L_work = name + '_worker'
    A('s_mov_b32 s%d, %s' % (S_VX, sr(s_x)))
    A('s_mov_b32 s3, %s' % sr(s_j))
    A('s_cmp_ge_u32 %s, 4' % sr(s_x))
    A('s_cbranch_scc1 ' + L_work)
    A('s_cmp_ge_u32 %s, 32' % sr(s_j))
    A('s_cbranch_scc1 ' + L_work)
    A('s_mov_b32 s3, -1')
    A('s_lshl_b32 %s, %s, 1' % (sr(s_x), sr(s_x)))
    A('s_lshr_b32 %s, %s, 4' % (sr(s_t0), sr(s_j)))
    A('s_add_u32 %s, %s, %s' % (sr(s_x), sr(s_x), sr(s_t0)))
    A('s_and_b32 %s, %s, 15' % (sr(s_j), sr(s_j)))
    A('s_xor_b32 %s, %s, %s' % (sr(s_red), sr(s_x), sr(s_j)))
    A('s_and_b32 %s, %s, 1' % (sr(s_red), sr(s_red)))
    A('s_lshr_b32 %s, %s, 1' % (sr(s_obm), sr(s_x)))
    A('s_lshl_b32 %s, %s, 4' % (sr(s_obm), sr(s_obm)))
    A('s_add_u32 %s, %s, %s' % (sr(s_obm), sr(s_obm), sr(s_j)))
    A('s_lshl_b32 %s, %s, 10' % (sr(s_obm), sr(s_obm)))
    L_noz = A.uid('noz')
    A('s_or_b32 %s, %s, %s' % (sr(s_t0), sr(s_x), sr(s_j)))
    A('s_xor_b32 %s, %s, 1' % (sr(s_t1), sr(s_w)))
    A('s_or_b32 %s, %s, %s' % (sr(s_t0), sr(s_t0), sr(s_t1)))
    A('s_cmp_lg_u32 %s, 0' % sr(s_t0))
    A('s_cbranch_scc1 ' + L_noz)
    A('v_lshlrev_b32 %s, 7, %s' % (vr(v_t[0]), vr(v_lane)))
    A('v_mov_b32 %s, 0' % vr(v_t[1]))
    for i in range(4):
        A('s_mov_b32 %s, 0x%x' % (sr(s_t0), CTR + i * 8192))
        A('buffer_store_dword %s, %s, %s, %s offen sc1' % (vr(v_t[1]), vr(v_t[0]), sr(SRD_WS, 4), sr(s_t0)))
    A('s_waitcnt vmcnt(0)')
    A('v_mov_b32 %s, %d' % (vr(v_t[0]), DBG_INIT))
    A('v_mov_b32 %s, 1' % vr(v_t[1]))
    A('s_mov_b64 exec, 1')
    A('buffer_store_dword %s, %s, %s, 0 offen sc1' % (vr(v_t[1]), vr(v_t[0]), sr(SRD_T, 4)))
    A('s_mov_b64 exec, -1')
    dbgt(10)
    A.label(L_noz)
    for i in range(4):
        A('v_mov_b32 %s, -1' % vr(v_m1 + i))
    l16 = v_t[2]
    A('v_lshlrev_b32 %s, 4, %s' % (vr(l16), vr(v_lane)))
    s_ob = s_t3
    A('s_lshl_b32 %s, %s, 4' % (sr(s_ob), sr(s_x)))
    A('s_add_u32 %s, %s, %s' % (sr(s_ob), sr(s_ob), sr(s_j)))
    A('s_lshl_b32 %s, %s, 10' % (sr(s_ob), sr(s_ob)))

    A('s_lshl_b32 %s, %s, 17' % (sr(s_t0), sr(s_w)))
    A('s_add_u32 %s, %s, %s' % (sr(s_t2), sr(s_t0), sr(s_ob)))
    for base in (QKI, VMI):
        A('s_add_u32 %s, %s, 0x%x' % (sr(s_t1), sr(s_t2), base))
        A('buffer_store_dwordx4 %s, %s, %s, %s offen sc1' % (vr(v_m1, 4), vr(l16), sr(SRD_WS, 4), sr(s_t1)))
    A('s_add_u32 %s, %s, %s' % (sr(s_t0), sr(s_t0), sr(s_obm)))
    A('s_add_u32 %s, %s, 0x%x' % (sr(s_t1), sr(s_t0), MEMI))
    A('buffer_store_dwordx4 %s, %s, %s, %s offen sc1' % (vr(v_m1, 4), vr(l16), sr(SRD_WS, 4), sr(s_t1)))
    A('s_lshl_b32 %s, %s, 14' % (sr(s_t0), sr(s_j)))
    A('s_lshl_b32 %s, %s, 11' % (sr(s_t1), sr(s_w)))
    A('s_add_u32 %s, %s, %s' % (sr(s_t0), sr(s_t0), sr(s_t1)))
    A('s_add_u32 %s, %s, 0x%x' % (sr(s_t0), sr(s_t0), PART))
    A('v_add_u32 %s, %s, %s' % (vr(va_pr), sr(s_t0), vr(l16)))
    A('s_lshl_b32 %s, %s, 8' % (sr(s_t1), sr(s_x)))
    A('v_add_u32 %s, %s, %s' % (vr(va_pw), sr(s_t1), vr(va_pr)))
    A('v_add_u32 %s, 8192, %s' % (vr(va_pz), vr(va_pw)))
    A('s_mov_b64 exec, 0xffff')
    for sl in range(4):
        A('s_mov_b32 %s, 0x%x' % (sr(s_t1), sl * 0x40000))
        A('buffer_store_dwordx4 %s, %s, %s, %s offen sc1' % (vr(v_m1, 4), vr(va_pw), sr(SRD_WS, 4), sr(s_t1)))
        A('buffer_store_dwordx4 %s, %s, %s, %s offen sc1' % (vr(v_m1, 4), vr(va_pz), sr(SRD_WS, 4), sr(s_t1)))
    A('s_mov_b64 exec, -1')
    A('s_lshr_b32 %s, %s, 1' % (sr(s_t0), sr(s_x)))
    A('s_lshl_b32 %s, %s, 8' % (sr(s_t0), sr(s_t0)))
    A('s_add_u32 %s, %s, 0x%x' % (sr(s_t0), sr(s_t0), FLG))
    A('v_lshl_add_u32 %s, %s, 2, %s' % (vr(va_flg), vr(v_nu), sr(s_t0)))
    Lfr = A.uid('fr')
    A('s_cmp_eq_u32 %s, 0' % sr(s_red))
    A('s_cbranch_scc1 ' + Lfr)
    A('s_and_b32 %s, %s, 1' % (sr(s_t1), sr(s_x)))
    A('s_lshl_b32 %s, %s, 5' % (sr(s_t1), sr(s_t1)))
    A('s_add_u32 %s, %s, %s' % (sr(s_t0), sr(s_t0), sr(s_t1)))
    A('s_lshr_b32 %s, %s, 1' % (sr(s_t1), sr(s_j)))
    A('s_lshl_b32 %s, %s, 2' % (sr(s_t1), sr(s_t1)))
    A('s_add_u32 %s, %s, %s' % (sr(s_t0), sr(s_t0), sr(s_t1)))
    A('v_min_u32 %s, 1, v0' % vr(va_flg))
    A('v_lshl_add_u32 %s, %s, 28, %s' % (vr(va_flg), vr(va_flg), sr(s_t0)))
    A('buffer_store_dword %s, %s, %s, 0 offen sc1' % (vr(v_m1), vr(va_flg), sr(SRD_WS, 4)))
    A.label(Lfr)
    L_nocal, L_nocal2 = A.uid('nocal'), A.uid('nocal2')
    A('s_mov_b32 %s, 1' % sr(s_vote))
    A('s_cmp_ge_u32 %s, 8' % sr(s_j))
    A('s_cbranch_scc1 ' + L_nocal2)
    A('s_bitcmp1_b32 %s, 0' % sr(s_x))
    A('s_cbranch_scc1 ' + L_nocal2)
    A('s_waitcnt vmcnt(0)')
    A('s_barrier')
    A('s_cmp_lg_u32 %s, 0' % sr(s_w))
    A('s_cbranch_scc1 ' + L_nocal)
    A('s_mov_b32 %s, -1' % sr(s_m0))
    A('s_mov_b32 %s, -1' % sr(s_m1))
    A('s_mov_b64 exec, 0xffff')
    for rep in range(3):
        for c in range(2):
            A('s_mov_b32 %s, %d' % (sr(s_t1), 0x40000 + rep * 0x40000))
            A('s_memtime %s' % sr(s_ta, 2))
            A('s_waitcnt lgkmcnt(0)')
            A('buffer_store_dwordx4 %s, %s, %s, %s offen sc1' % (vr(v_m1, 4), vr(va_pz if c else va_pw), sr(SRD_WS, 4), sr(s_t1)))
            A('s_waitcnt vmcnt(0)')
            A('s_memtime %s' % sr(s_tm, 2))
            A('s_waitcnt lgkmcnt(0)')
            A('s_sub_u32 %s, %s, %s' % (sr(s_t2), sr(s_tm), sr(s_ta)))
            A('s_min_u32 %s, %s, %s' % (sr(s_m1 if c else s_m0), sr(s_m1 if c else s_m0), sr(s_t2)))
    A('s_cmp_lt_u32 %s, %s' % (sr(s_m1), sr(s_m0)))
    A('s_cselect_b32 %s, 0x10001, 1' % sr(s_vote))
    A('s_mov_b64 exec, -1')
    A.label(L_nocal)
    A('s_barrier')
    A.label(L_nocal2)

    s_col = s_t2
    A('s_lshr_b32 %s, %s, 4' % (sr(s_col), sr(s_ob)))
    vw = v_t[4]
    A('v_lshrrev_b32 %s, 2, %s' % (vr(vw), vr(v_lane)))
    A('v_lshlrev_b32 %s, 13, %s' % (vr(vw), vr(vw)))
    A('v_and_b32 %s, 3, %s' % (vr(v_t[5]), vr(v_lane)))
    A('v_lshl_add_u32 %s, %s, 4, %s' % (vr(vw), vr(v_t[5]), vr(vw)))
    A('s_lshl_b32 %s, %s, 17' % (sr(s_t0), sr(s_w)))
    A('s_add_u32 %s, %s, %s' % (sr(s_col), sr(s_col), sr(s_t0)))
    A('s_lshl_b32 %s, %s, 10' % (sr(s_t0), sr(s_w)))
    for mi, P in enumerate((P_WQ, P_WK)):
        srd(SRD_A, P, 1024 * 4096 * 2)
        for i in range(16):
            A('s_add_u32 m0, %s, %d' % (sr(s_t0), mi * 65536 + i * 4096))
            A('s_add_u32 %s, %s, %d' % (sr(s_t1), sr(s_col), i * 4 * 131072))
            A('buffer_load_dwordx4 %s, %s, %s offen lds' % (vr(vw), sr(SRD_A, 4), sr(s_t1)))
        if mi == 0:
            A('s_waitcnt vmcnt(16)')
            A('s_barrier')
            L_nord = A.uid('nord')
            A('s_cmp_lg_u32 %s, 0' % sr(s_w))
            A('s_cbranch_scc1 ' + L_nord)
            A('v_mov_b32 %s, 32' % vr(acc2))
            A('v_mov_b32 %s, %s' % (vr(acc2 + 1), sr(s_vote)))
            A('s_mov_b64 exec, 1')
            A('buffer_atomic_add %s, %s, %s, 0 offen sc1' % (vr(acc2 + 1), vr(acc2), sr(SRD_T, 4)))
            A('s_mov_b64 exec, -1')
            A.label(L_nord)
            A('s_nop 4')
    v2 = v_t[5]
    LwN, LwJ = A.uid('wN'), A.uid('wJ')
    A('s_cmp_lg_u32 %s, 0' % sr(s_red))
    A('s_cbranch_scc1 ' + LwN)
    srd(SRD_B, P_WV, 1024 * 4096 * 2)
    A('v_lshrrev_b32 %s, 3, %s' % (vr(v2), vr(v_lane)))
    A('v_lshlrev_b32 %s, 13, %s' % (vr(v2), vr(v2)))
    A('v_and_b32 %s, 7, %s' % (vr(v_t[6]), vr(v_lane)))
    A('v_lshl_add_u32 %s, %s, 4, %s' % (vr(v2), vr(v_t[6]), vr(v2)))
    A('s_lshr_b32 %s, %s, 4' % (sr(s_t2), sr(s_ob)))
    A('s_andn2_b32 %s, %s, 64' % (sr(s_t2), sr(s_t2)))
    A('s_lshl_b32 %s, %s, 16' % (sr(s_t1), sr(s_w)))
    A('s_add_u32 %s, %s, %s' % (sr(s_t2), sr(s_t2), sr(s_t1)))
    A('s_mov_b32 %s, %d' % (sr(s_t0), 4 * 65536))
    A('s_branch ' + LwJ)
    A.label(LwN)
    srd(SRD_B, P_WO, 4096 * 1024 * 2)
    A('v_lshlrev_b32 %s, 11, %s' % (vr(v2), vr(v_g)))
    A('v_lshl_add_u32 %s, %s, 4, %s' % (vr(v2), vr(v_nu), vr(v2)))
    A('s_lshl_b32 %s, %s, 20' % (sr(s_t2), sr(s_x)))
    A('s_lshr_b32 %s, %s, 1' % (sr(s_t1), sr(s_j)))
    A('s_lshl_b32 %s, %s, 8' % (sr(s_t1), sr(s_t1)))
    A('s_add_u32 %s, %s, %s' % (sr(s_t2), sr(s_t2), sr(s_t1)))
    A('s_lshl_b32 %s, %s, 13' % (sr(s_t1), sr(s_w)))
    A('s_add_u32 %s, %s, %s' % (sr(s_t2), sr(s_t2), sr(s_t1)))
    A('s_mov_b32 %s, %d' % (sr(s_t0), 4 * 8192))
    A.label(LwJ)
    for i in range(32):
        A('buffer_load_dwordx4 %s, %s, %s, %s offen' % (vr(LND + 4 * i, 4), vr(v2), sr(SRD_B, 4), sr(s_t2)))
        A('s_add_u32 %s, %s, %s' % (sr(s_t2), sr(s_t2), sr(s_t0)))
    srd(SRD_D, P_MEM0, 8 * 1024 * 2)
    vm0 = v_t[6]
    A('v_and_b32 %s, 7, %s' % (vr(vm0), vr(v_nu)))
    A('v_lshlrev_b32 %s, 11, %s' % (vr(vm0), vr(vm0)))
    A('v_lshl_add_u32 %s, %s, 5, %s' % (vr(vm0), vr(v_g), vr(vm0)))
    A('v_lshrrev_b32 %s, 3, %s' % (vr(v_t[7]), vr(v_nu)))
    A('v_lshl_add_u32 %s, %s, 2, %s' % (vr(vm0), vr(v_t[7]), vr(vm0)))
    A('s_lshl_b32 %s, %s, 9' % (sr(s_t1), sr(s_w)))
    for k in range(4):
        for a in range(4):
            A('buffer_load_dword %s, %s, %s, %s offen offset:%d' % (vr(M + 4 * k + a), vr(vm0), sr(SRD_D, 4), sr(s_t1), k * 128 + a * 8))

    A('s_mov_b32 %s, 0xfffefffe' % sr(s_fffe))
    A('s_mov_b32 %s, 0x%x' % (sr(s_c), f32bits(128 ** -0.5 * 1.4426950408889634)))
    A('s_mov_b32 %s, %d' % (sr(s_lim), POLL_LIMIT))
    A('s_mov_b32 %s, 0xff00ff00' % sr(s_hf))
    A('s_mov_b32 %s, 0xff00ff00' % sr(s_hf + 1))
    ta, tb, tc = v_t[0], v_t[1], v_t[7]
    A('v_mov_b32 %s, 0x%x' % (vr(ta), f32bits(-1e30)))
    for i in range(4):
        A('v_cndmask_b32 %s, 0, %s, %s' % (vr(v_maskx + i), vr(ta), sr(s_hf, 2)))
    A('v_cmp_gt_u32 vcc, 32, %s' % vr(v_lane))
    for i in range(4):
        A('v_cndmask_b32 %s, %s, %s, vcc' % (vr(v_mask + i), vr(v_maskx), vr(ta)))
    A('v_mov_b32 %s, 0x%x' % (vr(ta), f32bits(-3e38)))
    A('v_cndmask_b32 %s, %s, 0, %s' % (vr(v_bias), vr(ta), sr(s_hf, 2)))
    for i in range(4):
        A('v_mov_b32 %s, 0x3f803f80' % vr(v_ones + i))
    A('v_mov_b32 %s, 0x4444' % vr(ta))
    A('v_mov_b32 %s, 0xeeee' % vr(tb))
    A('v_cndmask_b32 %s, %s, %s, %s' % (vr(v_idx), vr(ta), vr(tb), sr(s_hf, 2)))
    A('v_bfe_u32 %s, %s, 2, 1' % (vr(ta), vr(v_nu)))
    A('v_bfe_u32 %s, %s, 1, 1' % (vr(tb), vr(v_nu)))
    A('v_lshl_add_u32 %s, %s, 1, %s' % (vr(ta), vr(tb), vr(ta)))
    A('v_and_b32 %s, 1, %s' % (vr(tb), vr(v_nu)))
    A('v_lshlrev_b32 %s, 4, %s' % (vr(tb), vr(tb)))
    A('v_mov_b32 %s, 0x3f80' % vr(tc))
    A('v_lshlrev_b32 %s, %s, %s' % (vr(tb), vr(tb), vr(tc)))
    for d in range(4):
        A('v_cmp_eq_u32 vcc, %d, %s' % (d, vr(ta)))
        A('v_cndmask_b32 %s, 0, %s, vcc' % (vr(v_sel + d), vr(tb)))

    s_p, s_wh = s_t0, s_t1
    A('s_and_b32 %s, %s, 1' % (sr(s_p), sr(s_w)))
    A('s_lshr_b32 %s, %s, 1' % (sr(s_wh), sr(s_w)))
    A('s_lshl_b32 %s, %s, 12' % (sr(s_t2), sr(s_w)))
    A('v_add_u32 %s, %s, %s' % (vr(ta), sr(s_t2), vr(l16)))
    A('s_lshr_b32 %s, %s, 1' % (sr(s_t2), sr(s_x)))
    A('s_lshl_b32 %s, %s, 14' % (sr(s_t2), sr(s_t2)))
    A('s_add_u32 %s, %s, 0x%x' % (sr(s_t2), sr(s_t2), MEMI))
    A('v_add_u32 %s, %s, %s' % (vr(va_memr), sr(s_t2), vr(ta)))
    A('s_lshl_b32 %s, %s, 14' % (sr(s_t2), sr(s_x)))
    A('s_add_u32 %s, %s, 0x%x' % (sr(s_t2), sr(s_t2), QKI))
    A('v_add_u32 %s, %s, %s' % (vr(va_qkr), sr(s_t2), vr(ta)))
    A('s_lshl_b32 %s, %s, 12' % (sr(s_cnt), sr(s_w)))
    A('s_add_u32 %s, %s, %s' % (sr(s_t2), sr(s_t2), sr(s_cnt)))
    A('s_add_u32 %s, %s, 0x%x' % (sr(s_t2), sr(s_t2), VMI - QKI))
    A('v_and_b32 %s, 31, %s' % (vr(va_vmr), vr(v_lane)))
    A('v_lshlrev_b32 %s, 4, %s' % (vr(va_vmr), vr(va_vmr)))
    A('v_lshrrev_b32 %s, 5, %s' % (vr(ta), vr(v_lane)))
    A('v_xor_b32 %s, 1, %s' % (vr(ta), vr(ta)))
    A('v_lshl_add_u32 %s, %s, 11, %s' % (vr(va_vmr), vr(ta), vr(va_vmr)))
    A('v_add_u32 %s, %s, %s' % (vr(va_vmr), sr(s_t2), vr(va_vmr)))
    A('s_lshl_b32 %s, %s, 12' % (sr(s_t2), sr(s_w)))
    A('s_add_u32 %s, %s, %d' % (sr(s_t2), sr(s_t2), LDS_RED))
    A('v_lshl_add_u32 %s, %s, 3, %s' % (vr(va_rw), vr(v_lane), sr(s_t2)))
    A('v_lshrrev_b32 %s, 5, %s' % (vr(ta), vr(v_lane)))
    A('v_lshlrev_b32 %s, 13, %s' % (vr(ta), vr(ta)))
    A('v_and_b32 %s, 31, %s' % (vr(tb), vr(v_lane)))
    A('v_lshl_add_u32 %s, %s, 4, %s' % (vr(ta), vr(tb), vr(ta)))
    A('s_lshl_b32 %s, %s, 9' % (sr(s_t2), sr(s_w)))
    A('s_add_u32 %s, %s, %d' % (sr(s_t2), sr(s_t2), LDS_RED))
    A('v_add_u32 %s, %s, %s' % (vr(va_rr), sr(s_t2), vr(ta)))
    vR, vcp, vH = tc, acc1, acc1 + 1
    A('v_bfe_u32 %s, %s, 3, 1' % (vr(ta), vr(v_lane)))
    A('v_bfe_u32 %s, %s, 4, 1' % (vr(tb), vr(v_lane)))
    A('v_lshlrev_b32 %s, 2, %s' % (vr(vR), vr(ta)))
    A('v_lshl_add_u32 %s, %s, 1, %s' % (vr(vR), vr(tb), vr(vR)))
    A('v_and_b32 %s, 7, %s' % (vr(vcp), vr(v_lane)))
    A('v_lshrrev_b32 %s, 5, %s' % (vr(vH), vr(v_lane)))
    A('v_lshlrev_b32 %s, 8, %s' % (vr(va_vs), vr(ta)))
    A('v_lshl_add_u32 %s, %s, 5, %s' % (vr(va_vs), vr(vcp), vr(va_vs)))
    A('v_lshl_add_u32 %s, %s, 4, %s' % (vr(va_vs), vr(vH), vr(va_vs)))
    A('v_lshl_add_u32 %s, %s, 2, %s' % (vr(va_vs), vr(tb), vr(va_vs)))
    A('s_andn2_b32 %s, %s, 1024' % (sr(s_t2), sr(s_ob)))
    A('s_lshl_b32 %s, %s, 10' % (sr(s_cnt), sr(s_wh)))
    A('s_add_u32 %s, %s, %s' % (sr(s_t2), sr(s_t2), sr(s_cnt)))
    A('s_lshl_b32 %s, %s, 3' % (sr(s_cnt), sr(s_p)))
    A('s_add_u32 %s, %s, %s' % (sr(s_t2), sr(s_t2), sr(s_cnt)))
    A('s_add_u32 %s, %s, 0x%x' % (sr(s_t2), sr(s_t2), VMI))
    A('v_add_u32 %s, %s, %s' % (vr(va_vs), sr(s_t2), vr(va_vs)))
    A('v_bfe_u32 %s, %s, 1, 1' % (vr(ta), vr(vcp)))
    A('v_lshlrev_b32 %s, 8, %s' % (vr(va_qks), vr(ta)))
    A('v_add_u32 %s, %s, %s' % (vr(vR), vr(vR), vr(vH)))
    A('v_lshl_add_u32 %s, %s, 4, %s' % (vr(va_qks), vr(vR), vr(va_qks)))
    A('v_lshrrev_b32 %s, 2, %s' % (vr(ta), vr(vcp)))
    A('v_lshl_add_u32 %s, %s, 3, %s' % (vr(va_qks), vr(ta), vr(va_qks)))
    A('v_and_b32 %s, 1, %s' % (vr(ta), vr(vcp)))
    A('v_lshl_add_u32 %s, %s, 2, %s' % (vr(va_qks), vr(ta), vr(va_qks)))
    A('s_lshl_b32 %s, %s, 9' % (sr(s_t2), sr(s_p)))
    A('v_add_u32 %s, %s, %s' % (vr(va_qks), sr(s_t2), vr(va_qks)))
    A('s_lshl_b32 %s, %s, 7' % (sr(s_t2), sr(s_wh)))
    A('s_add_u32 %s, %s, %s' % (sr(s_t2), sr(s_t2), sr(s_ob)))
    A('s_add_u32 %s, %s, 0x%x' % (sr(s_t2), sr(s_t2), QKI))
    A('v_add_u32 %s, %s, %s' % (vr(va_qks), sr(s_t2), vr(va_qks)))
    A('v_lshlrev_b32 %s, 4, %s' % (vr(va_mems), vr(v_nu)))
    A('v_lshl_add_u32 %s, %s, 2, %s' % (vr(va_mems), vr(v_g), vr(va_mems)))
    A('s_lshl_b32 %s, %s, 8' % (sr(s_t2), sr(s_w)))
    A('s_add_u32 %s, %s, %s' % (sr(s_t2), sr(s_t2), sr(s_obm)))
    A('s_add_u32 %s, %s, 0x%x' % (sr(s_t2), sr(s_t2), MEMI))
    A('v_add_u32 %s, %s, %s' % (vr(va_mems), sr(s_t2), vr(va_mems)))
    A('s_lshl_b32 %s, %s, 10' % (sr(s_t2), sr(s_wh)))
    A('s_xor_b32 %s, %s, %s' % (sr(s_kvo), sr(s_t2), sr(s_ob)))
    A('s_lshl_b32 %s, %s, 19' % (sr(s_t2), sr(s_p)))
    A('s_add_u32 %s, %s, %s' % (sr(s_t2), sr(s_t2), sr(s_kvo)))
    A('s_add_u32 %s, %s, 0x%x' % (sr(s_t2), sr(s_t2), QKI))
    A('s_lshl_b32 %s, %s, 23' % (sr(s_cnt), sr(s_p)))
    A('s_add_u32 %s, %s, %s' % (sr(s_cnt), sr(s_cnt), sr(s_kvo)))
    A('s_add_u32 %s, %s, 0x%x' % (sr(s_cnt), sr(s_cnt), KMO))
    assert VMO - KMO == 1 << 23 and VMI - QKI == 1 << 19
    A('v_add_u32 %s, %s, %s' % (vr(va_rb), sr(s_t2), vr(l16)))
    A('v_add_u32 %s, %s, %s' % (vr(va_cp), sr(s_cnt), vr(l16)))
    A('s_or_b32 %s, %s, %s' % (sr(s_t2), sr(s_x), sr(s_j)))
    A('s_xor_b32 %s, %s, 3' % (sr(s_cnt), sr(s_w)))
    A('s_or_b32 %s, %s, %s' % (sr(s_t2), sr(s_t2), sr(s_cnt)))
    A('s_cmp_eq_u32 %s, 0' % sr(s_t2))
    A('s_mov_b32 %s, 0x%x' % (sr(s_cnt), CTR + DBG_PROG * 128))
    A('s_cselect_b32 %s, %s, 0x%x' % (sr(s_t2), sr(s_cnt), WS_BYTES))
    A('v_and_b32 %s, 3, %s' % (vr(v_sh), vr(v_lane)))
    A('v_lshlrev_b32 %s, 7, %s' % (vr(v_sh), vr(v_sh)))
    A('v_add_u32 %s, %s, %s' % (vr(va_prog), sr(s_t2), vr(v_sh)))
    A('v_cmp_lt_u32 vcc, 3, %s' % vr(v_lane))
    A('v_mov_b32 %s, 0x%x' % (vr(ta), WS_BYTES))
    A('v_cndmask_b32 %s, %s, %s, vcc' % (vr(va_prog), vr(va_prog), vr(ta)))
    A('v_add_u32 %s, 0x%x, %s' % (vr(v_sh), CTR, vr(v_sh)))
    s_h = s_t2
    A('s_lshl_b32 %s, %s, 2' % (sr(s_h), sr(s_x)))
    A('s_add_u32 %s, %s, %s' % (sr(s_h), sr(s_h), sr(s_w)))
    A('s_lshl_b32 %s, %s, 13' % (sr(s_h), sr(s_h)))
    A('v_and_b32 %s, 1, %s' % (vr(ta), vr(v_g)))
    A('v_lshrrev_b32 %s, 1, %s' % (vr(tb), vr(v_g)))
    A('v_lshlrev_b32 %s, 9, %s' % (vr(va_kx), vr(ta)))
    A('v_lshl_add_u32 %s, %s, 10, %s' % (vr(va_kx), vr(tb), vr(va_kx)))
    A('v_add_u32 %s, %s, %s' % (vr(va_kx), sr(s_h), vr(va_kx)))
    A('v_lshl_add_u32 %s, %s, 4, %s' % (vr(va_vx), vr(v_nu), vr(va_kx)))
    A('v_add_u32 %s, 0x%x, %s' % (vr(va_vx), VX, vr(va_vx)))
    A('v_lshrrev_b32 %s, 3, %s' % (vr(ta), vr(v_nu)))
    A('v_lshl_add_u32 %s, %s, 8, %s' % (vr(va_kx), vr(ta), vr(va_kx)))
    A('v_and_b32 %s, 7, %s' % (vr(ta), vr(v_nu)))
    A('v_lshl_add_u32 %s, %s, 4, %s' % (vr(va_kx), vr(ta), vr(va_kx)))
    A('v_add_u32 %s, 0x%x, %s' % (vr(va_kx), KX, vr(va_kx)))
    A('s_lshr_b32 %s, %s, 1' % (sr(s_t2), sr(s_j)))
    A('s_lshl_b32 %s, %s, 2' % (sr(s_t2), sr(s_t2)))
    A('s_add_u32 %s, %s, %s' % (sr(s_t2), sr(s_t2), sr(s_w)))
    A('s_and_b32 %s, %s, 15' % (sr(s_cnt), sr(s_t2)))
    A('s_lshl_b32 %s, %s, 11' % (sr(s_cnt), sr(s_cnt)))
    A('s_lshr_b32 %s, %s, 4' % (sr(s_t2), sr(s_t2)))
    A('s_lshl_b32 %s, %s, 24' % (sr(s_t2), sr(s_t2)))
    assert VX - KX == 1 << 24
    A('s_add_u32 %s, %s, %s' % (sr(s_t2), sr(s_t2), sr(s_cnt)))
    A('s_lshl_b32 %s, %s, 15' % (sr(s_cnt), sr(s_x)))
    A('s_add_u32 %s, %s, %s' % (sr(s_t2), sr(s_t2), sr(s_cnt)))
    A('s_add_u32 %s, %s, 0x%x' % (sr(s_t2), sr(s_t2), KX))
    A('v_lshl_add_u32 %s, %s, 5, %s' % (vr(va_warm), vr(v_lane), sr(s_t2)))
    A('v_add_u32 %s, %d, %s' % (vr(va_or), LDS_O, vr(l16)))
    A('v_lshrrev_b32 %s, 3, %s' % (vr(ta), vr(v_nu)))
    A('v_mul_u32_u24 %s, %d, %s' % (vr(ta), 1024 - 128, vr(ta)))
    A('s_lshl_b32 %s, %s, 11' % (sr(s_t2), sr(s_w)))
    A('v_add3_u32 %s, %s, %s, %s' % (vr(va_ow), sr(s_t2), vr(va_or), vr(ta)))
    if stamps:
        A('s_lshl_b32 %s, %s, 4' % (sr(s_stamp), sr(s_ob)))
        A('s_lshl_b32 %s, %s, 12' % (sr(s_t2), sr(s_w)))
        A('s_add_u32 %s, %s, %s' % (sr(s_stamp), sr(s_stamp), sr(s_t2)))
        A('s_add_u32 %s, %s, 0x%x' % (sr(s_stamp), sr(s_stamp), STAMP))
        A('s_add_u32 %s, %s, 65536' % (sr(s_stl), sr(s_t2)))

    vq1, vq2, vr_, vcq = acc1, acc1 + 1, acc1 + 2, acc1 + 3
    A('v_bfe_u32 %s, %s, 2, 2' % (vr(vr_), vr(v_lane)))
    A('v_and_b32 %s, 3, %s' % (vr(vcq), vr(v_lane)))
    A('v_lshl_add_u32 %s, %s, 3, %s' % (vr(vq2), vr(v_g), vr(vr_)))
    A('v_lshlrev_b32 %s, 6, %s' % (vr(vq1), vr(vq2)))
    A('v_lshl_add_u32 %s, %s, 3, %s' % (vr(vq1), vr(vcq), vr(vq1)))
    A('s_lshl_b32 %s, %s, 14' % (sr(s_t2), sr(s_w)))
    A('v_add_u32 %s, %s, %s' % (vr(vq1), sr(s_t2), vr(vq1)))
    A('v_add_u32 %s, 65536, %s' % (vr(tb), vr(vq1)))
    A('s_waitcnt vmcnt(48)')
    A('s_barrier')
    for kk in range(4):
        for tl in range(4):
            for bh in range(2):
                for q in range(2):
                    A('ds_read_b64_tr_b16 %s, %s offset:%d' % (ar(W1 + 8 * (kk * 4 + tl) + 4 * bh + 2 * q, 2), vr(tb if tl >= 2 else vq1), kk * 4096 + bh * 2048 + q * 256 + (tl & 1) * 32))
            A('s_waitcnt lgkmcnt(8)')
    A('s_waitcnt lgkmcnt(0)')
    A('s_barrier')
    A('s_waitcnt vmcnt(0)')
    A('s_lshl_b32 %s, %s, 10' % (sr(s_t2), sr(s_w)))
    A('v_add_u32 %s, %s, %s' % (vr(ta), sr(s_t2), vr(l16)))
    A('v_add_u32 %s, 65536, %s' % (vr(tb), vr(ta)))
    for i in range(32):
        A('ds_write_b128 %s, %s offset:%d' % (vr(ta if i < 16 else tb), vr(LND + 4 * i, 4), (i & 15) * 4096))
        if i & 3 == 3:
            A('s_waitcnt lgkmcnt(8)')
    A('s_waitcnt lgkmcnt(0)')
    A('s_barrier')
    LtN, LtJ = A.uid('tN'), A.uid('tJ')
    A('s_cmp_lg_u32 %s, 0' % sr(s_red))
    A('s_cbranch_scc1 ' + LtN)
    A('v_lshlrev_b32 %s, 7, %s' % (vr(ta), vr(vq2)))
    A('v_lshl_add_u32 %s, %s, 3, %s' % (vr(ta), vr(vcq), vr(ta)))
    A('s_lshl_b32 %s, %s, 15' % (sr(s_t2), sr(s_w)))
    A('v_add_u32 %s, %s, %s' % (vr(ta), sr(s_t2), vr(ta)))
    for kk in range(4):
        for tv in range(4):
            for bh in range(2):
                for q in range(2):
                    A('ds_read_b64_tr_b16 %s, %s offset:%d' % (ar(W2 + 8 * (kk * 4 + tv) + 4 * bh + 2 * q, 2), vr(ta), kk * 8192 + bh * 4096 + q * 512 + tv * 32))
            A('s_waitcnt lgkmcnt(8)')
    A('s_branch ' + LtJ)
    A.label(LtN)
    A('v_and_b32 %s, 1, %s' % (vr(ta), vr(v_g)))
    A('v_lshl_add_u32 %s, %s, 5, %s' % (vr(ta), vr(ta), vr(vr_)))
    A('v_lshrrev_b32 %s, 1, %s' % (vr(tb), vr(v_g)))
    A('v_lshl_add_u32 %s, %s, 2, %s' % (vr(ta), vr(tb), vr(ta)))
    A('v_lshlrev_b32 %s, 8, %s' % (vr(ta), vr(ta)))
    A('v_lshl_add_u32 %s, %s, 3, %s' % (vr(ta), vr(vcq), vr(ta)))
    A('s_lshl_b32 %s, %s, 5' % (sr(s_t2), sr(s_w)))
    A('v_add_u32 %s, %s, %s' % (vr(ta), sr(s_t2), vr(ta)))
    A('v_add_u32 %s, 65536, %s' % (vr(tb), vr(ta)))
    for k in range(8):
        for u in range(2):
            for bh in range(2):
                for q in range(2):
                    A('ds_read_b64_tr_b16 %s, %s offset:%d' % (ar(W2 + 8 * (k * 2 + u) + 4 * bh + 2 * q, 2), vr(ta if k < 4 else tb), (k & 3) * 16384 + q * 4096 + bh * 2048 + u * 128))
            A('s_waitcnt lgkmcnt(8)')
    A.label(LtJ)
    A('s_waitcnt lgkmcnt(0)')
    A('s_barrier')

    def pf_ops():
        o = []
        for eb in range(4):
            so = s_kx if eb < 2 else s_kx2
            o.append('buffer_load_dwordx4 %s, %s, %s, %s offen offset:%d sc1' % (vr(KXA + 4 * eb, 4), vr(va_kx), sr(SRD_WS, 4), sr(so), (eb & 1) * 2048))
            o.append('buffer_load_dwordx4 %s, %s, %s, %s offen offset:%d sc1' % (vr(KXB + 4 * eb, 4), vr(va_kx), sr(SRD_WS, 4), sr(so), (eb & 1) * 2048 + 128))
        for T in range(8):
            eb = T >> 1
            so = s_kx if eb < 2 else s_kx2
            o.append('buffer_load_dwordx4 %s, %s, %s, %s offen offset:%d sc1' % (vr(VXR + 4 * T, 4), vr(va_vx), sr(SRD_WS, 4), sr(so), (eb & 1) * 2048 + (T & 1) * 256))
        return o

    def emit(t):
        A(t)
        if t.startswith('buffer_'):
            nvm[0] += 1

    A('s_mov_b32 %s, 0' % sr(s_step))
    A('s_mov_b32 %s, 0x40404044' % sr(s_kvm))
    A('s_mov_b32 %s, 0x00404040' % sr(s_kvm + 1))
    A('s_mov_b32 %s, 0' % sr(s_slot))
    A('s_mov_b32 %s, 0x20000' % sr(s_slot1))
    A('s_mov_b32 %s, 0x40000' % sr(s_slot2))
    A('s_mov_b32 %s, 0' % sr(s_slotp))
    A('s_mov_b32 %s, 0' % sr(s_kx))
    A('s_mov_b32 %s, 4096' % sr(s_kx2))
    A('s_mov_b32 %s, 0' % sr(s_out))
    A('s_mov_b32 %s, 0x%x' % (sr(s_outp), WS_BYTES))
    A('s_mov_b32 %s, 0' % sr(s_ps))
    A('s_mov_b32 %s, 0x80000' % sr(s_ps2))
    A('s_mov_b32 %s, %d' % (sr(s_kvo), DBG_KV0 * 128))

    def kv_wait(tag):
        Lw, Ld, L0 = A.uid('kvw' + tag), A.uid('kvd' + tag), A.uid('kv0' + tag)
        A('s_mov_b32 %s, 0' % sr(s_cnt))
        A('s_branch ' + L0)
        A.label(Lw)
        A('s_sleep 6')
        A.label(L0)
        A('buffer_load_dword %s, %s, %s, %s offen sc1' % (vr(v_kvf), vr(v_sh), sr(SRD_WS, 4), sr(s_kvo)))
        A('s_add_u32 %s, %s, 1' % (sr(s_cnt), sr(s_cnt)))
        A('s_cmp_gt_u32 %s, %s' % (sr(s_cnt), sr(s_lim)))
        A('s_cbranch_scc1 ' + Ld)
        A('s_waitcnt vmcnt(0)')
        A('v_cmp_gt_u32 vcc, 32, %s' % vr(v_kvf))
        A('s_cbranch_vccnz ' + Lw)
        A.label(Ld)
        A('s_waitcnt vmcnt(0)')
    stamp(7)
    place_check(A, SRD_T, v_lane, v_t[0], v_t[1], s_cnt, POLL_LIMIT, L_restart)
    L_rdy, L_rdy_done, L_rdy0 = A.uid('rdy'), A.uid('rdyd'), A.uid('rdy0')
    A('v_mov_b32 %s, 32' % vr(v_t[0]))
    A('s_mov_b32 %s, 0' % sr(s_cnt))
    A('s_branch ' + L_rdy0)
    A.label(L_rdy)
    A('s_sleep 6')
    A.label(L_rdy0)
    A('buffer_load_dword %s, %s, %s, 0 offen sc1' % (vr(acc1 + 1), vr(v_t[0]), sr(SRD_T, 4)))
    A('s_add_u32 %s, %s, 1' % (sr(s_cnt), sr(s_cnt)))
    A('s_cmp_gt_u32 %s, %s' % (sr(s_cnt), sr(s_lim)))
    A('s_cbranch_scc1 ' + L_rdy_done)
    A('s_waitcnt vmcnt(0)')
    A('v_and_b32 %s, 0xffff, %s' % (vr(acc1), vr(acc1 + 1)))
    A('v_cmp_gt_u32 vcc, 128, %s' % vr(acc1))
    A('s_cbranch_vccnz ' + L_rdy)
    A.label(L_rdy_done)
    A('s_waitcnt vmcnt(0)')
    A('v_lshrrev_b32 %s, 16, %s' % (vr(acc1), vr(acc1 + 1)))
    A('v_cmp_%s_u32 vcc, 16, %s' % ('lt' if NEARX else 'ge', vr(acc1)))
    A('v_mov_b32 %s, 8192' % vr(acc1 + 1))
    A('v_cndmask_b32 %s, 0, %s, vcc' % (vr(acc1), vr(acc1 + 1)))
    A('v_add_u32 %s, %s, %s' % (vr(va_pr), vr(va_pr), vr(acc1)))
    A('v_add_u32 %s, %s, %s' % (vr(va_pw), vr(va_pw), vr(acc1)))
    A('v_mul_u32_u24 %s, 252, %s' % (vr(acc1), vr(v_g)))
    A('v_sub_u32 %s, %s, %s' % (vr(va_pd), vr(va_pw), vr(acc1)))
    A('v_and_b32 %s, 0x%x, %s' % (vr(va_pd), 0xffffffff ^ 16384, vr(va_pd)))
    A('v_lshlrev_b32 %s, 8, %s' % (vr(acc1), vr(v_g)))
    A('v_sub_u32 %s, %s, %s' % (vr(va_pz), vr(va_pw), vr(acc1)))
    A('v_and_b32 %s, 1, %s' % (vr(acc1), vr(v_g)))
    A('v_lshlrev_b32 %s, 14, %s' % (vr(acc1), vr(acc1)))
    A('v_xor_b32 %s, %s, %s' % (vr(va_pz), vr(va_pz), vr(acc1)))
    A('v_lshrrev_b32 %s, 1, %s' % (vr(acc1), vr(v_g)))
    A('v_lshl_add_u32 %s, %s, 28, %s' % (vr(va_pz), vr(acc1), vr(va_pz)))
    A('v_add_u32 %s, 16384, %s' % (vr(va_pw), vr(va_pd)))
    A('v_lshlrev_b32 %s, 2, %s' % (vr(acc1), vr(v_g)))
    A('v_sub_u32 %s, %s, %s' % (vr(va_pg), vr(va_pd), vr(acc1)))
    A('v_lshrrev_b32 %s, 1, %s' % (vr(acc1), vr(v_g)))
    A('v_lshl_add_u32 %s, %s, 14, %s' % (vr(va_pg), vr(acc1), vr(va_pg)))
    A('v_and_b32 %s, 1, %s' % (vr(acc1), vr(v_g)))
    A('v_lshl_add_u32 %s, %s, 28, %s' % (vr(va_pg), vr(acc1), vr(va_pg)))
    dbgt(9)
    kv_wait('0')
    stamp(9)
    dbgt(11)

    ool = []

    def poll(n, load, base, tag, on_ok=None, back=0):
        Lk = [A.uid('poll%s%d' % (tag, k)) for k in range(n)]
        Lc = [A.uid('chk%s%d' % (tag, k)) for k in range(n)]
        Lo = [A.uid('ok%s%d' % (tag, k)) for k in range(n)]
        Lfs = [A.uid('pollf%s%d' % (tag, k)) for k in range(n)]

        def issue(m):
            A.label(Lk[m])
            if back:
                A('s_sleep %d' % back)
            for k in range(m, n):
                A(load(k))
            A('s_add_u32 %s, %s, 1' % (sr(s_cnt), sr(s_cnt)))
            A('s_cmp_gt_u32 %s, %s' % (sr(s_cnt), sr(s_lim)))
            A('s_cbranch_scc1 ' + Lfs[m])
        A('s_mov_b32 %s, 0' % sr(s_cnt))
        issue(0)
        for m in range(n):
            A.label(Lc[m])
            A('s_waitcnt vmcnt(%d)' % (n - 1 - m))
            b = base + 4 * m
            A('v_max3_u32 %s, %s, %s, %s' % (vr(v_t[0]), vr(b), vr(b + 1), vr(b + 2)))
            A('v_max_u32 %s, %s, %s' % (vr(v_t[0]), vr(v_t[0]), vr(b + 3)))
            A('v_cmp_eq_u32 vcc, -1, %s' % vr(v_t[0]))
            A('s_cbranch_vccnz ' + Lk[m])
            A.label(Lo[m])
            if on_ok:
                on_ok(m)

        def tail():
            for m in range(1, n):
                issue(m)
                A('s_branch ' + Lc[m])
            for m in range(n):
                A.label(Lfs[m])
                A('s_mov_b32 %s, 0' % sr(s_lim))
                A('s_waitcnt vmcnt(0)')
                A('s_branch ' + Lo[m])
        ool.append(tail)

    def smf(acc, a, w):
        return 'v_smfmac_f32_16x16x64_bf16 %s, %s, %s, %s' % (vr(acc, 4), vr(a, 4), ar(w, 8), vr(v_idx))

    def okA(k):
        for tl in range(4):
            A(smf(AC + 4 * tl, M + 4 * k, W1 + 8 * (k * 4 + tl)))

    def pollA2():
        ld = lambda k: 'buffer_load_dwordx4 %s, %s, %s, %s offen offset:%d sc1' % (vr(M + 4 * k, 4), vr(va_memr), sr(SRD_WS, 4), sr(s_slot), k * 1024)
        Lr = [A.uid('rA%d' % k) for k in range(4)]
        Lo = [A.uid('oA%d' % k) for k in range(4)]

        def chk(k):
            b = M + 4 * k
            return ['s_waitcnt vmcnt(%d)' % (3 - k),
                    'v_max3_u32 %s, %s, %s, %s' % (vr(v_t[0]), vr(b), vr(b + 1), vr(b + 2)),
                    'v_max_u32 %s, %s, %s' % (vr(v_t[0]), vr(v_t[0]), vr(b + 3)),
                    'v_cmp_eq_u32 vcc, -1, %s' % vr(v_t[0])]
        A('s_mov_b32 %s, 1' % sr(s_cnt))
        for k in range(4):
            A(ld(k))
        for t in chk(0):
            A(t)
        for k in range(4):
            A('s_cbranch_vccnz ' + Lr[k])
            A.label(Lo[k])
            c = chk(k + 1) if k < 3 else []
            for tl in range(4):
                A(smf(AC + 4 * tl, M + 4 * k, W1 + 8 * (k * 4 + tl)))
                if c and tl < 3:
                    if tl == 0:
                        A(c.pop(0))
                    A(c.pop(0))

        def tail():
            for k in range(4):
                A.label(Lr[k])
                if A1P and k < 3:
                    Lg = A.uid('gA')
                    A(ld(k))
                    A('s_add_u32 %s, %s, 1' % (sr(s_cnt), sr(s_cnt)))
                    A('s_waitcnt vmcnt(0)')
                    for t in chk(k)[1:]:
                        A(t)
                    A('s_cbranch_vccz ' + Lg)
                    A('s_cmp_le_u32 %s, %s' % (sr(s_cnt), sr(s_lim)))
                    A('s_cbranch_scc1 ' + Lr[k])
                    A('s_mov_b32 %s, 0' % sr(s_lim))
                    A.label(Lg)
                    for m in range(k + 1, 4):
                        A(ld(m))
                    A('s_branch ' + Lo[k])
                    continue
                for m in range(k, 4):
                    A(ld(m))
                A('s_add_u32 %s, %s, 1' % (sr(s_cnt), sr(s_cnt)))
                for t in chk(k):
                    A(t)
                A('s_cbranch_vccz ' + Lo[k])
                A('s_cmp_le_u32 %s, %s' % (sr(s_cnt), sr(s_lim)))
                A('s_cbranch_scc1 ' + Lr[k])
                A('s_mov_b32 %s, 0' % sr(s_lim))
                A('s_branch ' + Lo[k])
        ool.append(tail)

    def advance():
        A('s_add_u32 %s, %s, 1' % (sr(s_step), sr(s_step)))
        A('s_mov_b32 %s, %s' % (sr(s_slotp), sr(s_slot)))
        A('s_mov_b32 %s, %s' % (sr(s_outp), sr(s_out)))
        A('s_mov_b32 %s, %s' % (sr(s_slot), sr(s_slot1)))
        A('s_mov_b32 %s, %s' % (sr(s_slot1), sr(s_slot2)))
        A('s_add_u32 %s, %s, 0x20000' % (sr(s_slot2), sr(s_slot2)))
        A('s_and_b32 %s, %s, 0x7ffff' % (sr(s_slot2), sr(s_slot2)))
        A('s_add_u32 %s, %s, 0x20000' % (sr(s_out), sr(s_out)))
        A('s_lshl_b32 %s, %s, 1' % (sr(s_ps), sr(s_slot)))
        A('s_lshl_b32 %s, %s, 1' % (sr(s_ps2), sr(s_slot2)))
        if stamps:
            A('s_add_u32 %s, %s, 64' % (sr(s_stl), sr(s_stl)))

    def ha_write(tl):
        return ['v_permlane32_swap_b32 %s, %s' % (vr(AC + 4 * tl), vr(AC + 4 * tl + 2)),
                'v_permlane32_swap_b32 %s, %s' % (vr(AC + 4 * tl + 1), vr(AC + 4 * tl + 3)),
                'v_pk_add_f32 %s, %s, %s' % (vr(HA + 2 * tl, 2), vr(AC + 4 * tl, 2), vr(AC + 4 * tl + 2, 2)),
                'ds_write_b64 %s, %s offset:%d' % (vr(va_rw), vr(HA + 2 * tl, 2), tl * 512)]

    def kv_stuff():
        L_kvok, L_kvslow, L_nokv, L_dokv = A.uid('kvok'), A.uid('kvslow'), A.uid('nokv'), A.uid('dokv')
        A('v_cmp_gt_u32 vcc, 32, %s' % vr(v_kvf))
        A('s_cbranch_vccnz ' + L_kvslow)
        A.label(L_kvok)
        A('s_bitcmp1_b64 %s, %s' % (sr(s_kvm, 2), sr(s_step)))
        A('s_cbranch_scc1 ' + L_dokv)
        A.label(L_nokv)

        def t():
            A.label(L_kvslow)
            kv_wait('s')
            A('s_branch ' + L_kvok)
            A.label(L_dokv)
            A('s_add_u32 %s, %s, 2' % (sr(s_kvo), sr(s_step)))
            A('s_lshr_b32 %s, %s, 3' % (sr(s_kvo), sr(s_kvo)))
            A('s_lshl_b32 %s, %s, 9' % (sr(s_kvo), sr(s_kvo)))
            A('s_add_u32 %s, %s, %d' % (sr(s_kvo), sr(s_kvo), DBG_KV * 128))
            A('buffer_load_dword %s, %s, %s, %s offen sc1' % (vr(v_kvf), vr(v_sh), sr(SRD_WS, 4), sr(s_kvo)))
            A('s_branch ' + L_nokv)
        ool.append(t)

    L_lastR, L_lastN, L_fin = name + '_lastR', name + '_lastN', name + '_fin'

    def loop(red, fl):
        tg = ('r' if red else 'n') + ('f' if fl else '')
        ISC = ' sc1' if fl else ''
        nacc = 32 if red else 16
        L_st, L_B = name + '_step' + tg, name + '_B' + tg

        def zero_acc():
            for i in range(nacc):
                A('v_mov_b32 %s, 0' % vr(AC + i))
        A.label(name + '_first' + tg)
        if not red:
            for t in pf_ops():
                A(t)
        zero_acc()
        for k in range(4):
            okA(k)
        A('s_branch ' + L_B)
        A.label(L_st)
        if not (red and ZE):
            zero_acc()
        if A2:
            pollA2()
        else:
            poll(4, lambda k: 'buffer_load_dwordx4 %s, %s, %s, %s offen offset:%d sc1' % (vr(M + 4 * k, 4), vr(va_memr), sr(SRD_WS, 4), sr(s_slot), k * 1024), M, 'A', okA)
        A.label(L_B)
        stamp(0)
        vs = [smf(AC + 16 + 4 * tv, M + 4 * k, W2 + 8 * (k * 4 + tv)) for tv in range(4) for k in range(4)] if red else []
        ne = VS[0]
        for tl in range(4):
            h = ha_write(tl)
            if vs and ne > 0:
                A(vs.pop(0))
                ne -= 1
            A(h[0])
            A(h[1])
            if vs and ne > 3 - tl:
                A(vs.pop(0))
                ne -= 1
            A(h[2])
            A(h[3])
        for _ in range(VS[1]):
            if vs:
                A(vs.pop(0))
        A('s_waitcnt lgkmcnt(0)')
        A('s_barrier')
        A('ds_read_b128 %s, %s' % (vr(RD, 4), vr(va_rr)))
        A('ds_read_b128 %s, %s offset:4096' % (vr(RD + 4, 4), vr(va_rr)))
        for _ in range(VS[2]):
            if vs:
                A(vs.pop(0))
        A('s_waitcnt lgkmcnt(0)')
        A('v_pk_add_f32 %s, %s, %s' % (vr(RD, 2), vr(RD, 2), vr(RD + 4, 2)))
        A('v_pk_add_f32 %s, %s, %s' % (vr(RD + 2, 2), vr(RD + 2, 2), vr(RD + 6, 2)))
        A('v_permlane32_swap_b32 %s, %s' % (vr(RD), vr(RD + 1)))
        A('v_permlane32_swap_b32 %s, %s' % (vr(RD + 2), vr(RD + 3)))
        A('v_add_f32 %s, %s, %s' % (vr(v_t[0]), vr(RD), vr(RD + 1)))
        A('v_add_f32 %s, %s, %s' % (vr(v_t[1]), vr(RD + 2), vr(RD + 3)))
        A('v_cvt_pk_bf16_f32 %s, %s, %s' % (vr(v_t[2]), vr(v_t[0]), vr(v_t[1])))
        A('v_pk_min_u16 %s, %s, %s' % (vr(v_t[2]), vr(v_t[2]), sr(s_fffe)))
        A('buffer_store_dword %s, %s, %s, %s offen%s' % (vr(v_t[2]), vr(va_qks), sr(SRD_WS, 4), sr(s_slot), ISC))
        if red:
            for tv in range(4):
                while vs and len(vs) > 4 * (3 - tv) - 4:
                    A(vs.pop(0))
                for t in ha_write(4 + tv):
                    A(t)
            A('s_waitcnt lgkmcnt(0)')
            A('s_barrier')
            A('ds_read_b128 %s, %s offset:2048' % (vr(RD, 4), vr(va_rr)))
            A('ds_read_b128 %s, %s offset:6144' % (vr(RD + 4, 4), vr(va_rr)))
            A('s_waitcnt lgkmcnt(0)')
            A('v_pk_add_f32 %s, %s, %s' % (vr(RD, 2), vr(RD, 2), vr(RD + 4, 2)))
            A('v_pk_add_f32 %s, %s, %s' % (vr(RD + 2, 2), vr(RD + 2, 2), vr(RD + 6, 2)))
            A('v_permlane32_swap_b32 %s, %s' % (vr(RD), vr(RD + 2)))
            A('v_permlane32_swap_b32 %s, %s' % (vr(RD + 1), vr(RD + 3)))
            A('v_pk_add_f32 %s, %s, %s' % (vr(RD, 2), vr(RD, 2), vr(RD + 2, 2)))
            A('v_cvt_pk_bf16_f32 %s, %s, %s' % (vr(v_t[3]), vr(RD), vr(RD + 1)))
            A('v_pk_min_u16 %s, %s, %s' % (vr(v_t[3]), vr(v_t[3]), sr(s_fffe)))
            A('buffer_store_dword %s, %s, %s, %s offen%s' % (vr(v_t[3]), vr(va_vs), sr(SRD_WS, 4), sr(s_slot), ISC))
            stamp(1)
            A('buffer_load_dwordx4 %s, %s, %s, %s offen sc1' % (vr(RB, 4), vr(va_rb), sr(SRD_WS, 4), sr(s_slotp)))
            A('v_mov_b32 %s, %s' % (vr(v_junk2), sr(s_step)))
            A('s_waitcnt vmcnt(0)')
            A('s_barrier')
            A('buffer_store_dwordx4 %s, %s, %s, %s offen sc1' % (vr(RB, 4), vr(va_cp), sr(SRD_WS, 4), sr(s_outp)))
            A('buffer_store_dword %s, %s, %s, 0 offen sc1' % (vr(v_junk2), vr(va_prog), sr(SRD_WS, 4)))
            A('s_cmp_ge_u32 %s, %d' % (sr(s_step), nsteps - 1))
            A('s_cbranch_scc1 ' + L_lastR)
            A('s_add_u32 %s, %s, 0x40000' % (sr(s_kx), sr(s_kx)))
            kv_stuff()
            A('buffer_load_dword %s, %s, %s, %s offen sc1' % (vr(v_junk), vr(va_warm), sr(SRD_WS, 4), sr(s_kx)))
            A('buffer_store_dwordx4 %s, %s, %s, %s offen sc1' % (vr(v_m1, 4), vr(va_pz), sr(SRD_WS, 4), sr(s_ps2)))
            A('buffer_store_dwordx4 %s, %s, %s, %s offen%s' % (vr(v_m1, 4), vr(va_rb), sr(SRD_WS, 4), sr(s_slot2), ISC))
            A('buffer_store_dword %s, %s, %s, %s offen%s' % (vr(v_m1), vr(va_mems), sr(SRD_WS, 4), sr(s_slot2), ISC))
            if ZE:
                zero_acc()
            if DELAY_E:
                A('s_sleep %d' % DELAY_E)
            if HINT:
                Lh, Lhd = A.uid('h'), A.uid('hd')
                A('s_mov_b32 %s, 0' % sr(s_cnt))
                A.label(Lh)
                A('buffer_load_dword %s, %s, %s, 0 offen sc1' % (vr(v_t[0]), vr(va_flg), sr(SRD_WS, 4)))
                A('s_add_u32 %s, %s, 1' % (sr(s_cnt), sr(s_cnt)))
                A('s_cmp_gt_u32 %s, %s' % (sr(s_cnt), sr(s_lim)))
                A('s_cbranch_scc1 ' + Lhd)
                A('s_waitcnt vmcnt(0)')
                A('v_cmp_ne_u32 vcc, %s, %s' % (sr(s_step), vr(v_t[0])))
                A('s_cbranch_vccnz ' + Lh)
                A.label(Lhd)
                if HINT > 1:
                    A('s_sleep %d' % (HINT - 1))

            def okE(k):
                A('v_mfma_f32_16x16x32_bf16 %s, %s, %s, %s' % (vr(LS, 4), vr(PR + 4 * k, 4), vr(v_sel, 4), '0' if k == 0 else vr(LS, 4)))
            poll(2, lambda k: 'buffer_load_dwordx4 %s, %s, %s, %s offen offset:%d sc1' % (vr(PR + 4 * k, 4), vr(va_pr), sr(SRD_WS, 4), sr(s_ps), k * 1024), PR, 'E', okE, back=E_BACK)
            stamp(6)
            advance()
            A('v_cvt_pk_bf16_f32 %s, %s, %s' % (vr(v_t[2]), vr(LS), vr(LS + 1)))
            A('v_cvt_pk_bf16_f32 %s, %s, %s' % (vr(v_t[3]), vr(LS + 2), vr(LS + 3)))
            A('v_cndmask_b32 %s, %s, %s, %s' % (vr(v_t[2]), vr(v_t[2]), vr(v_t[3]), sr(s_hf, 2)))
            A('v_pk_min_u16 %s, %s, %s' % (vr(v_t[2]), vr(v_t[2]), sr(s_fffe)))
            A('buffer_store_dword %s, %s, %s, %s offen%s' % (vr(v_t[2]), vr(va_mems), sr(SRD_WS, 4), sr(s_slot), ISC))
            if RED_SLEEP:
                A('s_sleep %d' % RED_SLEEP)
            A('s_branch ' + L_st)
            return
        stamp(1)
        A('s_cmp_ge_u32 %s, %d' % (sr(s_step), nsteps - 1))
        A('s_cbranch_scc1 ' + L_lastN)
        A('s_add_u32 %s, %s, 0x40000' % (sr(s_kx), sr(s_kx)))
        A('s_add_u32 %s, %s, 0x40000' % (sr(s_kx2), sr(s_kx2)))
        for i in range(4):
            A('v_mov_b32 %s, 0' % vr(acc1 + i))
            A('v_mov_b32 %s, 0' % vr(acc2 + i))
        A('v_mov_b32 %s, %s' % (vr(v_junk2), sr(s_step)))
        if DELAY_C:
            A('s_sleep %d' % DELAY_C)
        Lc, Lcf, Lcd = A.uid('pC'), A.uid('pCf'), A.uid('pCd')
        A('s_mov_b32 %s, 1' % sr(s_cnt))
        A.label(Lc)
        for k in range(4):
            A('buffer_load_dwordx4 %s, %s, %s, %s offen offset:%d sc1' % (vr(QK + 4 * k, 4), vr(va_qkr), sr(SRD_WS, 4), sr(s_slot), k * 1024))
        for t in range(4):
            A('s_waitcnt vmcnt(%d)' % (3 - t))
            q = QK + 4 * t
            A('v_mfma_f32_16x16x32_bf16 %s, %s, %s, %s' % (vr(SA, 4), vr(KXA + 4 * t, 4), vr(q, 4), vr(v_maskx, 4) if t == 0 else vr(SA, 4)))
            if t == 0:
                A('v_max3_u32 %s, %s, %s, %s' % (vr(v_t[0]), vr(q), vr(q + 1), vr(q + 2)))
            else:
                A('v_max3_u32 %s, %s, %s, %s' % (vr(v_t[0]), vr(v_t[0]), vr(q), vr(q + 1)))
            A('v_mfma_f32_16x16x32_bf16 %s, %s, %s, %s' % (vr(SB, 4), vr(KXB + 4 * t, 4), vr(q, 4), vr(v_maskx, 4) if t == 0 else vr(SB, 4)))
            if t == 0:
                A('v_max_u32 %s, %s, %s' % (vr(v_t[0]), vr(v_t[0]), vr(q + 3)))
            else:
                A('v_max3_u32 %s, %s, %s, %s' % (vr(v_t[0]), vr(v_t[0]), vr(q + 2), vr(q + 3)))
            if t == 3:
                A('v_cmp_eq_u32 vcc, -1, %s' % vr(v_t[0]))
            A('v_mfma_f32_16x16x32_bf16 %s, %s, %s, %s' % (vr(SM, 4), vr(q, 4), vr(q, 4), vr(v_mask, 4) if t == 0 else vr(SM, 4)))
        A('s_cbranch_vccnz ' + Lcf)
        A.label(Lcd)

        def tailC():
            A.label(Lcf)
            A('s_add_u32 %s, %s, 1' % (sr(s_cnt), sr(s_cnt)))
            A('s_cmp_le_u32 %s, %s' % (sr(s_cnt), sr(s_lim)))
            A('s_cbranch_scc1 ' + Lc)
            A('s_mov_b32 %s, 0' % sr(s_lim))
            A('s_branch ' + Lcd)
        ool.append(tailC)
        stamp(2)

        def vload(k):
            return 'buffer_load_dwordx4 %s, %s, %s, %s offen offset:%d sc1' % (vr(VMR + 4 * k, 4), vr(va_vmr), sr(SRD_WS, 4), sr(s_slot), k * 1024)
        side = pf_ops() if not NOPF else []
        s = [SA + i for i in range(12)]
        sm = []
        sm.append('v_max3_f32 %s, %s, %s, %s' % (vr(v_mx), vr(s[0]), vr(s[1]), vr(s[2])))
        sm.append('v_max3_f32 %s, %s, %s, %s' % (vr(v_mx2), vr(s[3]), vr(s[4]), vr(v_bias)))
        sm.append('v_max3_f32 %s, %s, %s, %s' % (vr(v_mx), vr(v_mx), vr(s[5]), vr(s[6])))
        sm.append('v_max3_f32 %s, %s, %s, %s' % (vr(v_mx2), vr(v_mx2), vr(s[7]), vr(s[8])))
        sm.append('v_max3_f32 %s, %s, %s, %s' % (vr(v_mx), vr(v_mx), vr(s[9]), vr(s[10])))
        sm.append('v_max3_f32 %s, %s, %s, %s' % (vr(v_mx), vr(v_mx), vr(v_mx2), vr(s[11])))
        for sw in ('v_permlane32_swap_b32', 'v_permlane16_swap_b32'):
            sm.append('v_mov_b32 %s, %s' % (vr(v_mx2), vr(v_mx)))
            sm.append('%s %s, %s' % (sw, vr(v_mx), vr(v_mx2)))
            sm.append('v_max_f32 %s, %s, %s' % (vr(v_mx), vr(v_mx), vr(v_mx2)))
        sm.append('v_mul_f32 %s, %s, %s' % (vr(v_mx), sr(s_c), vr(v_mx)))
        for i in range(8):
            sm.append('v_fma_f32 %s, %s, %s, -%s' % (vr(s[i]), vr(s[i]), sr(s_c), vr(v_mx)))
        for i in range(8):
            sm.append('v_exp_f32 %s, %s' % (vr(s[i]), vr(s[i])))
            if i >= 2 and i % 2 == 0:
                sm.append('v_cvt_pk_bf16_f32 %s, %s, %s' % (vr(PX + i // 2 - 1), vr(s[i - 2]), vr(s[i - 1])))
        sm.append('v_fma_f32 %s, %s, %s, -%s' % (vr(s[8]), vr(s[8]), sr(s_c), vr(v_mx)))
        sm.append('v_cvt_pk_bf16_f32 %s, %s, %s' % (vr(PX + 3), vr(s[6]), vr(s[7])))
        sm.append('v_fma_f32 %s, %s, %s, -%s' % (vr(s[9]), vr(s[9]), sr(s_c), vr(v_mx)))
        for i, m in enumerate(sm):
            if i == DELAY_V:
                A(vload(0))
                A(vload(1))
            A(m)
        stamp(3)

        def dpp8(d, srcr):
            return 'v_mov_b32_dpp %s, %s row_shr:8 row_mask:0xf bank_mask:0xf bound_ctrl:0' % (vr(d), vr(srcr))
        t = v_t
        sh = []
        for i in range(10, 12):
            sh.append('v_fma_f32 %s, %s, %s, -%s' % (vr(s[i]), vr(s[i]), sr(s_c), vr(v_mx)))
        for i in range(4):
            sh.append(dpp8(PXH + i, PX + i))
        for i in range(8, 12):
            sh.append('v_exp_f32 %s, %s' % (vr(s[i]), vr(s[i])))
        for i in range(2):
            sh.append('v_cvt_pk_bf16_f32 %s, %s, %s' % (vr(PM + i), vr(s[8 + 2 * i]), vr(s[9 + 2 * i])))
        sh.append('s_waitcnt vmcnt(0)')
        sh.append('v_max3_u32 %s, %s, %s, %s' % (vr(t[0]), vr(VMR), vr(VMR + 1), vr(VMR + 2)))
        sh.append('v_max3_u32 %s, %s, %s, %s' % (vr(t[1]), vr(VMR + 3), vr(VMR + 4), vr(VMR + 5)))
        sh.append(dpp8(PMH, PM))
        sh.append(dpp8(PMH + 1, PM + 1))
        sh.append('v_max3_u32 %s, %s, %s, %s' % (vr(t[0]), vr(t[0]), vr(VMR + 6), vr(VMR + 7)))
        sh.append('v_max_u32 %s, %s, %s' % (vr(t[0]), vr(t[0]), vr(t[1])))
        sh.append('v_permlane32_swap_b32 %s, %s' % (vr(PMH), vr(PM)))
        sh.append('v_permlane32_swap_b32 %s, %s' % (vr(PMH + 1), vr(PM + 1)))
        sh.append('v_cmp_eq_u32 vcc, -1, %s' % vr(t[0]))
        mf = ['v_mfma_f32_16x16x32_bf16 %s, %s, %s, 0' % (vr(LS, 4), vr(v_ones, 4), vr(PX, 4))]
        for a in range(4):
            mf.append('v_mfma_f32_16x16x32_bf16 %s, %s, %s, 0' % (vr(O + 4 * a, 4), vr(VXR + 4 * a, 4), vr(PX, 4)))
        for a in range(4):
            mf.append('v_mfma_f32_16x16x32_bf16 %s, %s, %s, %s' % (vr(O + 4 * a, 4), vr(VXR + 4 * (a + 4), 4), vr(PXH, 4), vr(O + 4 * a, 4)))
        per = [3, 3, 2, 2, 2, 2, 3, 3, 1]
        for i, m in enumerate(mf):
            A(m)
            for _ in range(per[i]):
                if sh:
                    x = sh.pop(0)
                    if x.startswith('s_waitcnt'):
                        A(x)
                        x = sh.pop(0)
                    A(x)
        assert not sh
        Lv_ok, Lv_slow = A.uid('vok'), A.uid('vslow')
        A('s_cbranch_vccnz ' + Lv_slow)
        A.label(Lv_ok)

        def tailV():
            A.label(Lv_slow)
            poll(2, vload, VMR, 'V')
            A('s_branch ' + Lv_ok)
        ool.append(tailV)
        A('v_mfma_f32_16x16x16_bf16 %s, %s, %s, %s' % (vr(LS, 4), vr(v_ones, 2), vr(PM, 2), vr(LS, 4)))
        for a in range(4):
            A('v_mfma_f32_16x16x16_bf16 %s, %s, %s, %s' % (vr(O + 4 * a, 4), vr(VMR + 2 * a, 2), vr(PM, 2), vr(O + 4 * a, 4)))
        A('v_rcp_f32 %s, %s' % (vr(v_l), vr(LS)))
        A('v_mov_b32_dpp %s, %s row_shr:8 row_mask:0xf bank_mask:0xc' % (vr(v_l), vr(v_l)))
        for a in range(4):
            for r in range(0, 4, 2):
                A('v_pk_mul_f32 %s, %s, %s op_sel_hi:[1,0]' % (vr(O + 4 * a + r, 2), vr(O + 4 * a + r, 2), vr(v_l, 2)))
            A('v_cvt_pk_bf16_f32 %s, %s, %s' % (vr(XY + a), vr(O + 4 * a), vr(O + 4 * a + 1)))
            A('v_cvt_pk_bf16_f32 %s, %s, %s' % (vr(XY + 4 + a), vr(O + 4 * a + 2), vr(O + 4 * a + 3)))
        A('ds_write_b128 %s, %s' % (vr(va_ow), vr(XY, 4)))
        A('ds_write_b128 %s, %s offset:128' % (vr(va_ow), vr(XY + 4, 4)))
        A('s_waitcnt lgkmcnt(0)')
        stamp(4)
        A('s_barrier')
        if HINT:
            A('buffer_store_dword %s, %s, %s, 0 offen%s' % (vr(v_junk2), vr(va_flg), sr(SRD_WS, 4), ISC))
        for k in range(8):
            A('ds_read_b128 %s, %s offset:%d' % (vr(G + 4 * k, 4), vr(va_or), k * 1024))
        def epi3(acc, va):
            return ['v_permlane32_swap_b32 %s, %s' % (vr(acc), vr(acc + 2)),
                    'v_permlane32_swap_b32 %s, %s' % (vr(acc + 1), vr(acc + 3)),
                    'v_pk_add_f32 %s, %s, %s' % (vr(acc, 2), vr(acc, 2), vr(acc + 2, 2)),
                    'v_cvt_pk_bf16_f32 %s, %s, %s' % (vr(acc), vr(acc), vr(acc + 1)),
                    'v_pk_min_u16 %s, %s, %s' % (vr(acc), vr(acc), sr(s_fffe)),
                    'buffer_store_dword %s, %s, %s, %s offen sc1' % (vr(acc), vr(va), sr(SRD_WS, 4), sr(s_ps))]
        if S3 == 2:
            D = VMR
            for k in range(8):
                A('s_waitcnt lgkmcnt(%d)' % (7 - k))
                A(smf(acc1, G + 4 * k, W2 + 8 * (2 * k)))
                if k < 2:
                    A(smf(acc2, G + 4 * k, W2 + 8 * (2 * k + 1)))
            e1 = epi3(acc1, va_pd)[:3] + ['v_cvt_pk_bf16_f32 %s, %s, %s' % (vr(D), vr(acc1), vr(acc1 + 1)),
                                          'v_pk_min_u16 %s, %s, %s' % (vr(D), vr(D), sr(s_fffe))]
            for k in range(2, 8):
                A(smf(acc2, G + 4 * k, W2 + 8 * (2 * k + 1)))
                if k >= 4:
                    for _ in range(2):
                        if e1:
                            A(e1.pop(0))
            for t_ in e1 + epi3(acc2, va_pw)[:3]:
                A(t_)
            A('v_cvt_pk_bf16_f32 %s, %s, %s' % (vr(D + 2), vr(acc2), vr(acc2 + 1)))
            A('v_pk_min_u16 %s, %s, %s' % (vr(D + 2), vr(D + 2), sr(s_fffe)))
            A('v_permlane32_swap_b32 %s, %s' % (vr(D), vr(D + 2)))
            A('v_permlane16_swap_b32 %s, %s' % (vr(D), vr(D + 1)))
            A('v_permlane16_swap_b32 %s, %s' % (vr(D + 2), vr(D + 3)))
            A('buffer_store_dwordx4 %s, %s, %s, %s offen sc1' % (vr(D, 4), vr(va_pg), sr(SRD_WS, 4), sr(s_ps)))
        elif S3:
            for k in range(8):
                A('s_waitcnt lgkmcnt(%d)' % (7 - k))
                A(smf(acc1, G + 4 * k, W2 + 8 * (2 * k)))
                if k < 2:
                    A(smf(acc2, G + 4 * k, W2 + 8 * (2 * k + 1)))
            e1 = epi3(acc1, va_pd)
            for k in range(2, 8):
                A(smf(acc2, G + 4 * k, W2 + 8 * (2 * k + 1)))
                if k >= 4:
                    for _ in range(2):
                        if e1:
                            A(e1.pop(0))
            for t_ in e1 + epi3(acc2, va_pw):
                A(t_)
        else:
            for k in range(8):
                A('s_waitcnt lgkmcnt(%d)' % (7 - k))
                A(smf(acc1, G + 4 * k, W2 + 8 * (2 * k)))
                A(smf(acc2, G + 4 * k, W2 + 8 * (2 * k + 1)))
            for t_ in epi3(acc1, va_pd) + epi3(acc2, va_pw):
                A(t_)
        stamp(5)
        kv_stuff()
        for x in side:
            A(x)
        advance()
        if NOE_SLEEP:
            A('s_sleep %d' % NOE_SLEEP)
        A('s_branch ' + L_st)

    L_safe = A.uid('safe')
    A('s_cmp_lg_u32 s%d, 0' % S_MODE)
    A('s_cbranch_scc1 ' + L_safe)
    for fl in (False, True):
        if fl:
            A.label(L_safe)
        A('s_cmp_lg_u32 %s, 0' % sr(s_red))
        A('s_cbranch_scc1 ' + name + '_firstn' + ('f' if fl else ''))
        loop(True, fl)
        loop(False, fl)
        while ool:
            ool.pop(0)()
    A.label(L_lastN)
    A('s_waitcnt vmcnt(0)')
    A('s_barrier')
    A('s_cmp_lg_u32 %s, 0' % sr(s_w))
    A('s_cbranch_scc1 ' + L_fin)
    A.label(L_lastR)
    A('s_cmp_eq_u32 %s, 2' % sr(s_w))
    A('s_cbranch_scc1 ' + L_fin)
    A('buffer_load_dwordx4 %s, %s, %s, %s offen sc1' % (vr(M, 4), vr(va_rb), sr(SRD_WS, 4), sr(s_slot)))
    A('s_waitcnt vmcnt(0)')
    A('buffer_store_dwordx4 %s, %s, %s, %s offen sc1' % (vr(M, 4), vr(va_cp), sr(SRD_WS, 4), sr(s_out)))
    A.label(L_fin)
    if stamps:
        A('s_waitcnt lgkmcnt(0)')
        A('v_lshlrev_b32 %s, 4, %s' % (vr(v_t[0]), vr(v_lane)))
        A('s_lshl_b32 %s, %s, 12' % (sr(s_t2), sr(s_w)))
        A('s_add_u32 %s, %s, 65536' % (sr(s_t2), sr(s_t2)))
        A('v_add_u32 %s, %s, %s' % (vr(v_t[1]), sr(s_t2), vr(v_t[0])))
        for k in range(4):
            A('ds_read_b128 %s, %s offset:%d' % (vr(F + 4 * k, 4), vr(v_t[1]), k * 1024))
        A('s_waitcnt lgkmcnt(0)')
        for k in range(4):
            A('buffer_store_dwordx4 %s, %s, %s, %s offen offset:%d' % (vr(F + 4 * k, 4), vr(v_t[0]), sr(SRD_WS, 4), sr(s_stamp), k * 1024))
    A('s_waitcnt vmcnt(0) lgkmcnt(0)')
    A('s_barrier')
    A('s_cmp_lg_u32 %s, 0' % sr(s_w))
    A('s_cbranch_scc1 ' + L_work)
    dbgt(12)
    A('s_lshr_b32 %s, %s, 1' % (sr(s_t0), sr(s_x)))
    A('s_lshl_b32 %s, %s, 7' % (sr(s_t0), sr(s_t0)))
    A('s_add_u32 %s, %s, 0x%x' % (sr(s_t0), sr(s_t0), CTR + DBG_FIN * 128))
    A('v_mov_b32 %s, %s' % (vr(v_t[0]), sr(s_t0)))
    A('v_mov_b32 %s, 1' % vr(v_t[1]))
    A('s_mov_b64 exec, 1')
    A('buffer_atomic_add %s, %s, %s, 0 offen sc1' % (vr(v_t[1]), vr(v_t[0]), sr(SRD_WS, 4)))
    A('s_mov_b64 exec, -1')
    A('s_branch ' + L_work)
    A.label(L_exit)
    A('s_endpgm')
    A.label(L_work)
    worker(A, name)
    A.label(name + '_end')
    A('s_endpgm')
    return dict(vgpr=512, accum=256, sgpr=102)
```

```python
from asmlib import *
from layout import *
import struct, os
from kernels import place_check, shift_ptrs


def f32bits(x):
    return struct.unpack('<I', struct.pack('<f', x))[0]


def env(n, d):
    return int(os.environ.get(n, str(d)))


LDS_RED = 131072
LDS_O = LDS_RED + 16384
LDS_ROLE = LDS_O + 8192
NSTEP = env('NSTEP', 64)
POLL_LIMIT = 400000
NEARX = env('NEARX', 1)
DELAY_C = env('DELAY_C', 4)
DELAY_E = env('DELAY_E', 12)
E_BACK = env('E_BACK', 0)
DELAY_V = env('DELAY_V', 6)
RED_SLEEP = env('RED_SLEEP', 3)
NOE_SLEEP = env('NOE_SLEEP', 10)
NOPF = env('NOPF', 0)
FORCE_SAFE = env('FORCE_SAFE', 0)
PFC = env('PFC', 0)
VS = [int(x) for x in os.environ.get('VS', '8,3,5').split(',')]
A2 = env('A2', 1)
S3 = env('S3', 2)
HINT = env('HINT', 7)
DBGT = env('DBGT', 0)
XMAP = int(os.environ.get('XMAP', '0'), 16)
A1P = env('A1P', 0)
ZE = env('ZE', 1)
CODEPF = env('CODEPF', 0)
PV2 = env('PV2', 1)
PKF = env('PKF', 1)
TLBW = env('TLBW', 0)
LITE = [int(x) for x in os.environ.get('LITE', '').split(',') if x]


def gen_chain(A, name, stamps=False, nsteps=NSTEP, worker=None):
    S = Regs('s', 16, 100)
    V = Regs('v', 1, 256)
    SRD_WS, SRD_T = 8, 12
    s_ptr = S.alloc(16, 4)
    (s_w, s_x, s_j, s_t0, s_t1, s_t2, s_t3, s_step, s_slot, s_slot1, s_slot2, s_slotp, s_kx, s_kx2, s_out, s_outp, s_fffe, s_c,
     s_lim, s_cnt, s_vote, s_stamp, s_stl, s_red, s_obm, s_kvo, s_ps, s_ps2, s_m0, s_m1) = [S.alloc() for _ in range(30)]
    s_hf = S.alloc(2, 2)
    s_tm = S.alloc(2, 2)
    s_ta = S.alloc(2, 2)
    s_kvm = S.alloc(2, 2)
    SRD_A = S.alloc(4, 4)
    SRD_B = S.alloc(4, 4)
    SRD_D = S.alloc(4, 4)
    v_lane, v_nu, v_g = V.alloc(), V.alloc(), V.alloc()
    v_t = [V.alloc() for _ in range(8)]
    (va_memr, va_mems, va_rw, va_rr, va_qks, va_rb, va_vs, va_cp, va_prog, va_qkr, va_vmr, va_kx, va_vx, va_ow, va_or, va_pw, va_pr,
     va_pz, va_pd, va_warm, v_idx, v_bias, v_junk, v_kvf, v_junk2, v_sh, va_flg, va_pg) = [V.alloc() for _ in range(28)]
    v_cc = V.alloc(2, 2)
    v_m1 = V.alloc(4, 4)
    v_mask = V.alloc(4, 4)
    v_sel = V.alloc(4, 4)
    v_maskx = V.alloc(4, 4)
    v_ones = V.alloc(4, 4)
    acc1 = V.alloc(4, 4)
    acc2 = V.alloc(4, 4)
    KXA = V.alloc(16, 4)
    KXB = V.alloc(16, 4)
    VXR = V.alloc(32, 4)
    F = V.alloc(64, 4)
    VMR = V.alloc(8, 4)
    QK = V.alloc(16, 4)
    M = V.alloc(16, 4)
    assert KXB == KXA + 16 and VXR == KXA + 32 and F == KXA + 64
    LND = KXA
    AC = F
    HA = F + 32
    RD = F + 48
    SA, SB, SM = F, F + 4, F + 8
    PX, PXH = F + 12, F + 16
    PM, PMH = F + 20, F + 22
    O = F + 28
    LS = F + 44
    v_mx, v_mx2, v_l = F + 48, F + 49, F + 50
    XY = QK
    G = F
    PR = KXA
    RB = KXA + 8
    W1, W2 = 0, 128
    L_exit = name + '_exit'
    nvm = [0]

    def stamp(k):
        if not stamps or (LITE and k not in LITE):
            return
        A('%s %s' % ('s_memrealtime' if stamps == 'rt' else 's_memtime', sr(s_tm, 2)))
        A('s_waitcnt lgkmcnt(0)')
        A('v_mov_b32 %s, %s' % (vr(v_t[7]), sr(s_tm)))
        A('v_mov_b32 %s, %s' % (vr(v_t[6]), sr(s_stl)))
        A('ds_write_b32 %s, %s offset:%d' % (vr(v_t[6]), vr(v_t[7]), 4 * k))
        if k in (0, 2, 6):
            A('v_mov_b32 %s, %s' % (vr(v_t[5]), sr(s_cnt)))
            A('ds_write_b32 %s, %s offset:%d' % (vr(v_t[6]), vr(v_t[5]), 4 * (8 + k)))

    def dbgt(word):
        if not DBGT:
            return
        A('s_memrealtime %s' % sr(s_tm, 2))
        A('s_waitcnt lgkmcnt(0)')
        A('v_mov_b32 %s, %s' % (vr(v_t[7]), sr(s_tm)))
        A('v_mov_b32 %s, %d' % (vr(v_t[6]), word * 4))
        A('s_mov_b64 exec, 1')
        A('buffer_atomic_umax %s, %s, %s, 0 offen sc1' % (vr(v_t[7]), vr(v_t[6]), sr(SRD_T, 4)))
        A('s_mov_b64 exec, -1')

    def srd(dst, ptr, nbytes):
        A('s_mov_b32 %s, %s' % (sr(dst), sr(ptr)))
        A('s_and_b32 %s, %s, 0xffff' % (sr(dst + 1), sr(ptr + 1)))
        A('s_mov_b32 %s, 0x%x' % (sr(dst + 2), nbytes))
        A('s_mov_b32 %s, 0x00020000' % sr(dst + 3))

    A.raw('.p2align 8')
    A.label(name)
    A('s_cmp_ge_u32 s2, 256')
    A('s_cbranch_scc1 ' + L_exit)
    A('s_mov_b32 s%d, 0' % S_MODE)
    if CODEPF:
        Lnp = A.uid('nopf')
        A('v_readfirstlane_b32 s4, v0')
        A('s_lshr_b32 s4, s4, 6')
        A('s_cmp_lg_u32 s4, 1')
        A('s_cbranch_scc1 ' + Lnp)
        A('s_getpc_b64 s[4:5]')
        A.label(name + '_pc')
        A('s_lshr_b32 s6, s2, 3')
        A('s_lshl_b32 s6, s6, 13')
        A('v_and_b32 v250, 63, v0')
        A('v_lshl_add_u32 v250, v250, 7, s6')
        A('v_min_u32 v250, %s_end-%s_pc-4, v250' % (name, name))
        A('v_mov_b32 v253, s5')
        A('v_add_co_u32 v252, vcc, s4, v250')
        A('v_addc_co_u32 v253, vcc, 0, v253, vcc')
        if CODEPF == 2:
            A('s_sleep 4')
        A('global_load_dword v251, v[252:253], off')
        A.label(Lnp)
    L_restart = name + '_restart'
    A.label(L_restart)
    A('s_load_dwordx2 %s, s[0:1], 8' % sr(s_ptr, 2))
    A('s_load_dwordx4 %s, s[0:1], 16' % sr(s_ptr + 4, 4))
    A('s_load_dwordx4 %s, s[0:1], 32' % sr(s_ptr + 8, 4))
    A('s_load_dwordx4 %s, s[0:1], 88' % sr(s_ptr + 12, 4))
    P_MEM0, P_WQ, P_WK, P_WV, P_WO, P_DBG, P_WS = s_ptr, s_ptr + 4, s_ptr + 6, s_ptr + 8, s_ptr + 10, s_ptr + 12, s_ptr + 14
    A('v_and_b32 %s, 63, v0' % vr(v_lane))
    A('v_lshrrev_b32 %s, 6, v0' % vr(v_t[0]))
    A('v_readfirstlane_b32 %s, %s' % (sr(s_w), vr(v_t[0])))
    A('v_and_b32 %s, 15, %s' % (vr(v_nu), vr(v_lane)))
    A('v_lshrrev_b32 %s, 4, %s' % (vr(v_g), vr(v_lane)))
    A('s_waitcnt lgkmcnt(0)')
    shift_ptrs(A, P_WS, P_DBG, s_t0)
    srd(SRD_WS, P_WS, WS_HALF)
    srd(SRD_T, P_DBG, 128)
    L_role = A.uid('role')
    A('s_lshr_b32 %s, s2, 5' % sr(s_x))
    A('s_and_b32 %s, s2, 31' % sr(s_j))
    A('s_cmp_lg_u32 s%d, 0' % S_MODE)
    A('s_cbranch_scc1 ' + L_role)
    A('s_getreg_b32 %s, hwreg(HW_REG_XCC_ID)' % sr(s_x))
    A('s_and_b32 %s, %s, 7' % (sr(s_x), sr(s_x)))
    if XMAP:
        A('s_lshl_b32 %s, %s, 2' % (sr(s_x), sr(s_x)))
        A('s_lshr_b32 %s, 0x%x, %s' % (sr(s_x), XMAP, sr(s_x)))
        A('s_and_b32 %s, %s, 7' % (sr(s_x), sr(s_x)))
    if FORCE_SAFE:
        A('s_cmp_eq_u32 s2, %d' % FORCE_SAFE)
        A('s_cselect_b32 %s, 1, 0' % sr(s_t0))
        A('s_xor_b32 %s, %s, %s' % (sr(s_x), sr(s_x), sr(s_t0)))
    L_norole = A.uid('norole')
    A('s_cmp_lg_u32 %s, 0' % sr(s_w))
    A('s_cbranch_scc1 ' + L_norole)
    A('s_lshl_b32 %s, %s, 2' % (sr(s_t0), sr(s_x)))
    A('v_mov_b32 %s, %s' % (vr(v_t[0]), sr(s_t0)))
    A('v_mov_b32 %s, 1' % vr(v_t[1]))
    A('s_mov_b64 exec, 1')
    A('buffer_atomic_add %s, %s, %s, 0 offen sc0 sc1' % (vr(v_t[1]), vr(v_t[0]), sr(SRD_T, 4)))
    A('s_waitcnt vmcnt(0)')
    A('v_mov_b32 %s, %d' % (vr(v_t[0]), LDS_ROLE))
    A('ds_write_b32 %s, %s' % (vr(v_t[0]), vr(v_t[1])))
    A('s_waitcnt lgkmcnt(0)')
    A('s_mov_b64 exec, -1')
    A.label(L_norole)
    A('s_barrier')
    A('v_mov_b32 %s, %d' % (vr(v_t[0]), LDS_ROLE))
    A('ds_read_b32 %s, %s' % (vr(v_t[1]), vr(v_t[0])))
    A('s_waitcnt lgkmcnt(0)')
    A('v_readfirstlane_b32 %s, %s' % (sr(s_j), vr(v_t[1])))
    A.label(L_role)
    L_work = name + '_worker'
    A('s_mov_b32 s%d, %s' % (S_VX, sr(s_x)))
    A('s_mov_b32 s3, %s' % sr(s_j))
    A('s_cmp_ge_u32 %s, 4' % sr(s_x))
    A('s_cbranch_scc1 ' + L_work)
    A('s_cmp_ge_u32 %s, 32' % sr(s_j))
    A('s_cbranch_scc1 ' + L_work)
    A('s_mov_b32 s3, -1')
    A('s_lshl_b32 %s, %s, 1' % (sr(s_x), sr(s_x)))
    A('s_lshr_b32 %s, %s, 4' % (sr(s_t0), sr(s_j)))
    A('s_add_u32 %s, %s, %s' % (sr(s_x), sr(s_x), sr(s_t0)))
    A('s_and_b32 %s, %s, 15' % (sr(s_j), sr(s_j)))
    A('s_xor_b32 %s, %s, %s' % (sr(s_red), sr(s_x), sr(s_j)))
    A('s_and_b32 %s, %s, 1' % (sr(s_red), sr(s_red)))
    A('s_lshr_b32 %s, %s, 1' % (sr(s_obm), sr(s_x)))
    A('s_lshl_b32 %s, %s, 4' % (sr(s_obm), sr(s_obm)))
    A('s_add_u32 %s, %s, %s' % (sr(s_obm), sr(s_obm), sr(s_j)))
    A('s_lshl_b32 %s, %s, 10' % (sr(s_obm), sr(s_obm)))
    L_noz = A.uid('noz')
    A('s_or_b32 %s, %s, %s' % (sr(s_t0), sr(s_x), sr(s_j)))
    A('s_xor_b32 %s, %s, 1' % (sr(s_t1), sr(s_w)))
    A('s_or_b32 %s, %s, %s' % (sr(s_t0), sr(s_t0), sr(s_t1)))
    A('s_cmp_lg_u32 %s, 0' % sr(s_t0))
    A('s_cbranch_scc1 ' + L_noz)
    A('v_lshlrev_b32 %s, 7, %s' % (vr(v_t[0]), vr(v_lane)))
    A('v_mov_b32 %s, 0' % vr(v_t[1]))
    for i in range(4):
        A('s_mov_b32 %s, 0x%x' % (sr(s_t0), CTR + i * 8192))
        A('buffer_store_dword %s, %s, %s, %s offen sc1' % (vr(v_t[1]), vr(v_t[0]), sr(SRD_WS, 4), sr(s_t0)))
    A('s_waitcnt vmcnt(0)')
    A('v_mov_b32 %s, %d' % (vr(v_t[0]), DBG_INIT))
    A('v_mov_b32 %s, 1' % vr(v_t[1]))
    A('s_mov_b64 exec, 1')
    A('buffer_store_dword %s, %s, %s, 0 offen sc1' % (vr(v_t[1]), vr(v_t[0]), sr(SRD_T, 4)))
    A('s_mov_b64 exec, -1')
    dbgt(10)
    A.label(L_noz)
    for i in range(4):
        A('v_mov_b32 %s, -1' % vr(v_m1 + i))
    l16 = v_t[2]
    A('v_lshlrev_b32 %s, 4, %s' % (vr(l16), vr(v_lane)))
    s_ob = s_t3
    A('s_lshl_b32 %s, %s, 4' % (sr(s_ob), sr(s_x)))
    A('s_add_u32 %s, %s, %s' % (sr(s_ob), sr(s_ob), sr(s_j)))
    A('s_lshl_b32 %s, %s, 10' % (sr(s_ob), sr(s_ob)))

    A('s_lshl_b32 %s, %s, 17' % (sr(s_t0), sr(s_w)))
    A('s_add_u32 %s, %s, %s' % (sr(s_t2), sr(s_t0), sr(s_ob)))
    A('s_add_u32 %s, %s, %s' % (sr(s_t0), sr(s_t0), sr(s_obm)))
    Lf1, Lf2 = A.uid('f1'), A.uid('f2')
    A('s_cmp_lg_u32 s%d, 0' % S_MODE)
    A('s_cbranch_scc1 ' + Lf1)
    for sc in ('', ' sc1'):
        if sc:
            A.label(Lf1)
        for base, so in ((QKI, s_t2), (VMI, s_t2), (MEMI, s_t0)):
            A('s_add_u32 %s, %s, 0x%x' % (sr(s_t1), sr(so), base))
            A('buffer_store_dwordx4 %s, %s, %s, %s offen%s' % (vr(v_m1, 4), vr(l16), sr(SRD_WS, 4), sr(s_t1), sc))
        if not sc:
            A('s_branch ' + Lf2)
    A.label(Lf2)
    A('s_lshl_b32 %s, %s, 14' % (sr(s_t0), sr(s_j)))
    A('s_lshl_b32 %s, %s, 11' % (sr(s_t1), sr(s_w)))
    A('s_add_u32 %s, %s, %s' % (sr(s_t0), sr(s_t0), sr(s_t1)))
    A('s_add_u32 %s, %s, 0x%x' % (sr(s_t0), sr(s_t0), PART))
    A('v_add_u32 %s, %s, %s' % (vr(va_pr), sr(s_t0), vr(l16)))
    A('s_lshl_b32 %s, %s, 8' % (sr(s_t1), sr(s_x)))
    A('v_add_u32 %s, %s, %s' % (vr(va_pw), sr(s_t1), vr(va_pr)))
    A('v_add_u32 %s, 8192, %s' % (vr(va_pz), vr(va_pw)))
    A('s_mov_b64 exec, 0xffff')
    for sl in range(4):
        A('s_mov_b32 %s, 0x%x' % (sr(s_t1), sl * 0x40000))
        A('buffer_store_dwordx4 %s, %s, %s, %s offen sc1' % (vr(v_m1, 4), vr(va_pw), sr(SRD_WS, 4), sr(s_t1)))
        A('buffer_store_dwordx4 %s, %s, %s, %s offen sc1' % (vr(v_m1, 4), vr(va_pz), sr(SRD_WS, 4), sr(s_t1)))
    A('s_mov_b64 exec, -1')
    A('s_lshr_b32 %s, %s, 1' % (sr(s_t0), sr(s_x)))
    A('s_lshl_b32 %s, %s, 8' % (sr(s_t0), sr(s_t0)))
    A('s_add_u32 %s, %s, 0x%x' % (sr(s_t0), sr(s_t0), FLG))
    A('v_lshl_add_u32 %s, %s, 2, %s' % (vr(va_flg), vr(v_nu), sr(s_t0)))
    Lfr = A.uid('fr')
    A('s_cmp_eq_u32 %s, 0' % sr(s_red))
    A('s_cbranch_scc1 ' + Lfr)
    A('s_and_b32 %s, %s, 1' % (sr(s_t1), sr(s_x)))
    A('s_lshl_b32 %s, %s, 5' % (sr(s_t1), sr(s_t1)))
    A('s_add_u32 %s, %s, %s' % (sr(s_t0), sr(s_t0), sr(s_t1)))
    A('s_lshr_b32 %s, %s, 1' % (sr(s_t1), sr(s_j)))
    A('s_lshl_b32 %s, %s, 2' % (sr(s_t1), sr(s_t1)))
    A('s_add_u32 %s, %s, %s' % (sr(s_t0), sr(s_t0), sr(s_t1)))
    A('v_min_u32 %s, 1, v0' % vr(va_flg))
    A('v_lshl_add_u32 %s, %s, 28, %s' % (vr(va_flg), vr(va_flg), sr(s_t0)))
    A('buffer_store_dword %s, %s, %s, 0 offen sc1' % (vr(v_m1), vr(va_flg), sr(SRD_WS, 4)))
    A.label(Lfr)
    L_nocal, L_nocal2 = A.uid('nocal'), A.uid('nocal2')
    A('s_mov_b32 %s, 1' % sr(s_vote))
    A('s_cmp_ge_u32 %s, 8' % sr(s_j))
    A('s_cbranch_scc1 ' + L_nocal2)
    A('s_bitcmp1_b32 %s, 0' % sr(s_x))
    A('s_cbranch_scc1 ' + L_nocal2)
    A('s_waitcnt vmcnt(0)')
    A('s_barrier')
    A('s_cmp_lg_u32 %s, 0' % sr(s_w))
    A('s_cbranch_scc1 ' + L_nocal)
    A('s_mov_b32 %s, -1' % sr(s_m0))
    A('s_mov_b32 %s, -1' % sr(s_m1))
    A('s_mov_b64 exec, 0xffff')
    for rep in range(3):
        for c in range(2):
            A('s_mov_b32 %s, %d' % (sr(s_t1), 0x40000 + rep * 0x40000))
            A('s_memtime %s' % sr(s_ta, 2))
            A('s_waitcnt lgkmcnt(0)')
            A('buffer_store_dwordx4 %s, %s, %s, %s offen sc1' % (vr(v_m1, 4), vr(va_pz if c else va_pw), sr(SRD_WS, 4), sr(s_t1)))
            A('s_waitcnt vmcnt(0)')
            A('s_memtime %s' % sr(s_tm, 2))
            A('s_waitcnt lgkmcnt(0)')
            A('s_sub_u32 %s, %s, %s' % (sr(s_t2), sr(s_tm), sr(s_ta)))
            A('s_min_u32 %s, %s, %s' % (sr(s_m1 if c else s_m0), sr(s_m1 if c else s_m0), sr(s_t2)))
    A('s_cmp_lt_u32 %s, %s' % (sr(s_m1), sr(s_m0)))
    A('s_cselect_b32 %s, 0x10001, 1' % sr(s_vote))
    A('s_mov_b64 exec, -1')
    A.label(L_nocal)
    A('s_barrier')
    A.label(L_nocal2)

    s_col = s_t2
    A('s_lshr_b32 %s, %s, 4' % (sr(s_col), sr(s_ob)))
    vw = v_t[4]
    A('v_lshrrev_b32 %s, 2, %s' % (vr(vw), vr(v_lane)))
    A('v_lshlrev_b32 %s, 13, %s' % (vr(vw), vr(vw)))
    A('v_and_b32 %s, 3, %s' % (vr(v_t[5]), vr(v_lane)))
    A('v_lshl_add_u32 %s, %s, 4, %s' % (vr(vw), vr(v_t[5]), vr(vw)))
    A('s_lshl_b32 %s, %s, 17' % (sr(s_t0), sr(s_w)))
    A('s_add_u32 %s, %s, %s' % (sr(s_col), sr(s_col), sr(s_t0)))
    A('s_lshl_b32 %s, %s, 10' % (sr(s_t0), sr(s_w)))
    for mi, P in enumerate((P_WQ, P_WK)):
        srd(SRD_A, P, 1024 * 4096 * 2)
        for i in range(16):
            A('s_add_u32 m0, %s, %d' % (sr(s_t0), mi * 65536 + i * 4096))
            A('s_add_u32 %s, %s, %d' % (sr(s_t1), sr(s_col), i * 4 * 131072))
            A('buffer_load_dwordx4 %s, %s, %s offen lds' % (vr(vw), sr(SRD_A, 4), sr(s_t1)))
        if mi == 0:
            A('s_waitcnt vmcnt(16)')
            A('s_barrier')
            L_nord = A.uid('nord')
            A('s_cmp_lg_u32 %s, 0' % sr(s_w))
            A('s_cbranch_scc1 ' + L_nord)
            A('v_mov_b32 %s, 32' % vr(acc2))
            A('v_mov_b32 %s, %s' % (vr(acc2 + 1), sr(s_vote)))
            A('s_mov_b64 exec, 1')
            A('buffer_atomic_add %s, %s, %s, 0 offen sc1' % (vr(acc2 + 1), vr(acc2), sr(SRD_T, 4)))
            A('s_mov_b64 exec, -1')
            A.label(L_nord)
            A('s_nop 4')
    v2 = v_t[5]
    LwN, LwJ = A.uid('wN'), A.uid('wJ')
    A('s_cmp_lg_u32 %s, 0' % sr(s_red))
    A('s_cbranch_scc1 ' + LwN)
    srd(SRD_B, P_WV, 1024 * 4096 * 2)
    A('v_lshrrev_b32 %s, 3, %s' % (vr(v2), vr(v_lane)))
    A('v_lshlrev_b32 %s, 13, %s' % (vr(v2), vr(v2)))
    A('v_and_b32 %s, 7, %s' % (vr(v_t[6]), vr(v_lane)))
    A('v_lshl_add_u32 %s, %s, 4, %s' % (vr(v2), vr(v_t[6]), vr(v2)))
    A('s_lshr_b32 %s, %s, 4' % (sr(s_t2), sr(s_ob)))
    A('s_andn2_b32 %s, %s, 64' % (sr(s_t2), sr(s_t2)))
    A('s_lshl_b32 %s, %s, 16' % (sr(s_t1), sr(s_w)))
    A('s_add_u32 %s, %s, %s' % (sr(s_t2), sr(s_t2), sr(s_t1)))
    A('s_mov_b32 %s, %d' % (sr(s_t0), 4 * 65536))
    A('s_branch ' + LwJ)
    A.label(LwN)
    srd(SRD_B, P_WO, 4096 * 1024 * 2)
    A('v_lshlrev_b32 %s, 11, %s' % (vr(v2), vr(v_g)))
    A('v_lshl_add_u32 %s, %s, 4, %s' % (vr(v2), vr(v_nu), vr(v2)))
    A('s_lshl_b32 %s, %s, 20' % (sr(s_t2), sr(s_x)))
    A('s_lshr_b32 %s, %s, 1' % (sr(s_t1), sr(s_j)))
    A('s_lshl_b32 %s, %s, 8' % (sr(s_t1), sr(s_t1)))
    A('s_add_u32 %s, %s, %s' % (sr(s_t2), sr(s_t2), sr(s_t1)))
    A('s_lshl_b32 %s, %s, 13' % (sr(s_t1), sr(s_w)))
    A('s_add_u32 %s, %s, %s' % (sr(s_t2), sr(s_t2), sr(s_t1)))
    A('s_mov_b32 %s, %d' % (sr(s_t0), 4 * 8192))
    A.label(LwJ)
    for i in range(32):
        A('buffer_load_dwordx4 %s, %s, %s, %s offen' % (vr(LND + 4 * i, 4), vr(v2), sr(SRD_B, 4), sr(s_t2)))
        A('s_add_u32 %s, %s, %s' % (sr(s_t2), sr(s_t2), sr(s_t0)))
    srd(SRD_D, P_MEM0, 8 * 1024 * 2)
    vm0 = v_t[6]
    A('v_and_b32 %s, 7, %s' % (vr(vm0), vr(v_nu)))
    A('v_lshlrev_b32 %s, 11, %s' % (vr(vm0), vr(vm0)))
    A('v_lshl_add_u32 %s, %s, 5, %s' % (vr(vm0), vr(v_g), vr(vm0)))
    A('v_lshrrev_b32 %s, 3, %s' % (vr(v_t[7]), vr(v_nu)))
    A('v_lshl_add_u32 %s, %s, 2, %s' % (vr(vm0), vr(v_t[7]), vr(vm0)))
    A('s_lshl_b32 %s, %s, 9' % (sr(s_t1), sr(s_w)))
    for k in range(4):
        for a in range(4):
            A('buffer_load_dword %s, %s, %s, %s offen offset:%d' % (vr(M + 4 * k + a), vr(vm0), sr(SRD_D, 4), sr(s_t1), k * 128 + a * 8))

    A('s_mov_b32 %s, 0xfffefffe' % sr(s_fffe))
    A('s_mov_b32 %s, 0x%x' % (sr(s_c), f32bits(128 ** -0.5 * 1.4426950408889634)))
    A('s_mov_b32 %s, %d' % (sr(s_lim), POLL_LIMIT))
    A('v_mov_b32 %s, %s' % (vr(v_cc), sr(s_c)))
    A('v_mov_b32 %s, %s' % (vr(v_cc + 1), sr(s_c)))
    A('s_mov_b32 %s, 0xff00ff00' % sr(s_hf))
    A('s_mov_b32 %s, 0xff00ff00' % sr(s_hf + 1))
    ta, tb, tc = v_t[0], v_t[1], v_t[7]
    A('v_mov_b32 %s, 0x%x' % (vr(ta), f32bits(-1e30)))
    for i in range(4):
        A('v_cndmask_b32 %s, 0, %s, %s' % (vr(v_maskx + i), vr(ta), sr(s_hf, 2)))
    A('v_cmp_gt_u32 vcc, 32, %s' % vr(v_lane))
    for i in range(4):
        A('v_cndmask_b32 %s, %s, %s, vcc' % (vr(v_mask + i), vr(v_maskx), vr(ta)))
    A('v_mov_b32 %s, 0x%x' % (vr(ta), f32bits(-3e38)))
    A('v_cndmask_b32 %s, %s, 0, %s' % (vr(v_bias), vr(ta), sr(s_hf, 2)))
    for i in range(4):
        A('v_mov_b32 %s, 0x3f803f80' % vr(v_ones + i))
    A('v_mov_b32 %s, 0x4444' % vr(ta))
    A('v_mov_b32 %s, 0xeeee' % vr(tb))
    A('v_cndmask_b32 %s, %s, %s, %s' % (vr(v_idx), vr(ta), vr(tb), sr(s_hf, 2)))
    A('v_bfe_u32 %s, %s, 2, 1' % (vr(ta), vr(v_nu)))
    A('v_bfe_u32 %s, %s, 1, 1' % (vr(tb), vr(v_nu)))
    A('v_lshl_add_u32 %s, %s, 1, %s' % (vr(ta), vr(tb), vr(ta)))
    A('v_and_b32 %s, 1, %s' % (vr(tb), vr(v_nu)))
    A('v_lshlrev_b32 %s, 4, %s' % (vr(tb), vr(tb)))
    A('v_mov_b32 %s, 0x3f80' % vr(tc))
    A('v_lshlrev_b32 %s, %s, %s' % (vr(tb), vr(tb), vr(tc)))
    for d in range(4):
        A('v_cmp_eq_u32 vcc, %d, %s' % (d, vr(ta)))
        A('v_cndmask_b32 %s, 0, %s, vcc' % (vr(v_sel + d), vr(tb)))

    s_p, s_wh = s_t0, s_t1
    A('s_and_b32 %s, %s, 1' % (sr(s_p), sr(s_w)))
    A('s_lshr_b32 %s, %s, 1' % (sr(s_wh), sr(s_w)))
    A('s_lshl_b32 %s, %s, 12' % (sr(s_t2), sr(s_w)))
    A('v_add_u32 %s, %s, %s' % (vr(ta), sr(s_t2), vr(l16)))
    A('s_lshr_b32 %s, %s, 1' % (sr(s_t2), sr(s_x)))
    A('s_lshl_b32 %s, %s, 14' % (sr(s_t2), sr(s_t2)))
    A('s_add_u32 %s, %s, 0x%x' % (sr(s_t2), sr(s_t2), MEMI))
    A('v_add_u32 %s, %s, %s' % (vr(va_memr), sr(s_t2), vr(ta)))
    A('s_lshl_b32 %s, %s, 14' % (sr(s_t2), sr(s_x)))
    A('s_add_u32 %s, %s, 0x%x' % (sr(s_t2), sr(s_t2), QKI))
    A('v_add_u32 %s, %s, %s' % (vr(va_qkr), sr(s_t2), vr(ta)))
    A('s_lshl_b32 %s, %s, 12' % (sr(s_cnt), sr(s_w)))
    A('s_add_u32 %s, %s, %s' % (sr(s_t2), sr(s_t2), sr(s_cnt)))
    A('s_add_u32 %s, %s, 0x%x' % (sr(s_t2), sr(s_t2), VMI - QKI))
    A('v_and_b32 %s, 31, %s' % (vr(va_vmr), vr(v_lane)))
    A('v_lshlrev_b32 %s, 4, %s' % (vr(va_vmr), vr(va_vmr)))
    A('v_lshrrev_b32 %s, 5, %s' % (vr(ta), vr(v_lane)))
    A('v_xor_b32 %s, 1, %s' % (vr(ta), vr(ta)))
    A('v_lshl_add_u32 %s, %s, 11, %s' % (vr(va_vmr), vr(ta), vr(va_vmr)))
    A('v_add_u32 %s, %s, %s' % (vr(va_vmr), sr(s_t2), vr(va_vmr)))
    A('s_lshl_b32 %s, %s, 12' % (sr(s_t2), sr(s_w)))
    A('s_add_u32 %s, %s, %d' % (sr(s_t2), sr(s_t2), LDS_RED))
    A('v_lshl_add_u32 %s, %s, 3, %s' % (vr(va_rw), vr(v_lane), sr(s_t2)))
    A('v_lshrrev_b32 %s, 5, %s' % (vr(ta), vr(v_lane)))
    A('v_lshlrev_b32 %s, 13, %s' % (vr(ta), vr(ta)))
    A('v_and_b32 %s, 31, %s' % (vr(tb), vr(v_lane)))
    A('v_lshl_add_u32 %s, %s, 4, %s' % (vr(ta), vr(tb), vr(ta)))
    A('s_lshl_b32 %s, %s, 9' % (sr(s_t2), sr(s_w)))
    A('s_add_u32 %s, %s, %d' % (sr(s_t2), sr(s_t2), LDS_RED))
    A('v_add_u32 %s, %s, %s' % (vr(va_rr), sr(s_t2), vr(ta)))
    vR, vcp, vH = tc, acc1, acc1 + 1
    A('v_bfe_u32 %s, %s, 3, 1' % (vr(ta), vr(v_lane)))
    A('v_bfe_u32 %s, %s, 4, 1' % (vr(tb), vr(v_lane)))
    A('v_lshlrev_b32 %s, 2, %s' % (vr(vR), vr(ta)))
    A('v_lshl_add_u32 %s, %s, 1, %s' % (vr(vR), vr(tb), vr(vR)))
    A('v_and_b32 %s, 7, %s' % (vr(vcp), vr(v_lane)))
    A('v_lshrrev_b32 %s, 5, %s' % (vr(vH), vr(v_lane)))
    A('v_lshlrev_b32 %s, 8, %s' % (vr(va_vs), vr(ta)))
    A('v_lshl_add_u32 %s, %s, 5, %s' % (vr(va_vs), vr(vcp), vr(va_vs)))
    A('v_lshl_add_u32 %s, %s, 4, %s' % (vr(va_vs), vr(vH), vr(va_vs)))
    A('v_lshl_add_u32 %s, %s, 2, %s' % (vr(va_vs), vr(tb), vr(va_vs)))
    A('s_andn2_b32 %s, %s, 1024' % (sr(s_t2), sr(s_ob)))
    A('s_lshl_b32 %s, %s, 10' % (sr(s_cnt), sr(s_wh)))
    A('s_add_u32 %s, %s, %s' % (sr(s_t2), sr(s_t2), sr(s_cnt)))
    A('s_lshl_b32 %s, %s, 3' % (sr(s_cnt), sr(s_p)))
    A('s_add_u32 %s, %s, %s' % (sr(s_t2), sr(s_t2), sr(s_cnt)))
    A('s_add_u32 %s, %s, 0x%x' % (sr(s_t2), sr(s_t2), VMI))
    A('v_add_u32 %s, %s, %s' % (vr(va_vs), sr(s_t2), vr(va_vs)))
    A('v_bfe_u32 %s, %s, 1, 1' % (vr(ta), vr(vcp)))
    A('v_lshlrev_b32 %s, 8, %s' % (vr(va_qks), vr(ta)))
    A('v_add_u32 %s, %s, %s' % (vr(vR), vr(vR), vr(vH)))
    A('v_lshl_add_u32 %s, %s, 4, %s' % (vr(va_qks), vr(vR), vr(va_qks)))
    A('v_lshrrev_b32 %s, 2, %s' % (vr(ta), vr(vcp)))
    A('v_lshl_add_u32 %s, %s, 3, %s' % (vr(va_qks), vr(ta), vr(va_qks)))
    A('v_and_b32 %s, 1, %s' % (vr(ta), vr(vcp)))
    A('v_lshl_add_u32 %s, %s, 2, %s' % (vr(va_qks), vr(ta), vr(va_qks)))
    A('s_lshl_b32 %s, %s, 9' % (sr(s_t2), sr(s_p)))
    A('v_add_u32 %s, %s, %s' % (vr(va_qks), sr(s_t2), vr(va_qks)))
    A('s_lshl_b32 %s, %s, 7' % (sr(s_t2), sr(s_wh)))
    A('s_add_u32 %s, %s, %s' % (sr(s_t2), sr(s_t2), sr(s_ob)))
    A('s_add_u32 %s, %s, 0x%x' % (sr(s_t2), sr(s_t2), QKI))
    A('v_add_u32 %s, %s, %s' % (vr(va_qks), sr(s_t2), vr(va_qks)))
    A('v_lshlrev_b32 %s, 4, %s' % (vr(va_mems), vr(v_nu)))
    A('v_lshl_add_u32 %s, %s, 2, %s' % (vr(va_mems), vr(v_g), vr(va_mems)))
    A('s_lshl_b32 %s, %s, 8' % (sr(s_t2), sr(s_w)))
    A('s_add_u32 %s, %s, %s' % (sr(s_t2), sr(s_t2), sr(s_obm)))
    A('s_add_u32 %s, %s, 0x%x' % (sr(s_t2), sr(s_t2), MEMI))
    A('v_add_u32 %s, %s, %s' % (vr(va_mems), sr(s_t2), vr(va_mems)))
    A('s_lshl_b32 %s, %s, 10' % (sr(s_t2), sr(s_wh)))
    A('s_xor_b32 %s, %s, %s' % (sr(s_kvo), sr(s_t2), sr(s_ob)))
    A('s_lshl_b32 %s, %s, 19' % (sr(s_t2), sr(s_p)))
    A('s_add_u32 %s, %s, %s' % (sr(s_t2), sr(s_t2), sr(s_kvo)))
    A('s_add_u32 %s, %s, 0x%x' % (sr(s_t2), sr(s_t2), QKI))
    A('s_lshl_b32 %s, %s, 23' % (sr(s_cnt), sr(s_p)))
    A('s_add_u32 %s, %s, %s' % (sr(s_cnt), sr(s_cnt), sr(s_kvo)))
    A('s_add_u32 %s, %s, 0x%x' % (sr(s_cnt), sr(s_cnt), KMO))
    assert VMO - KMO == 1 << 23 and VMI - QKI == 1 << 19
    A('v_add_u32 %s, %s, %s' % (vr(va_rb), sr(s_t2), vr(l16)))
    A('v_add_u32 %s, %s, %s' % (vr(va_cp), sr(s_cnt), vr(l16)))
    A('s_or_b32 %s, %s, %s' % (sr(s_t2), sr(s_x), sr(s_j)))
    A('s_xor_b32 %s, %s, 3' % (sr(s_cnt), sr(s_w)))
    A('s_or_b32 %s, %s, %s' % (sr(s_t2), sr(s_t2), sr(s_cnt)))
    A('s_cmp_eq_u32 %s, 0' % sr(s_t2))
    A('s_mov_b32 %s, 0x%x' % (sr(s_cnt), CTR + DBG_PROG * 128))
    A('s_cselect_b32 %s, %s, 0x%x' % (sr(s_t2), sr(s_cnt), WS_BYTES))
    A('v_and_b32 %s, 3, %s' % (vr(v_sh), vr(v_lane)))
    A('v_lshlrev_b32 %s, 7, %s' % (vr(v_sh), vr(v_sh)))
    A('v_add_u32 %s, %s, %s' % (vr(va_prog), sr(s_t2), vr(v_sh)))
    A('v_cmp_lt_u32 vcc, 3, %s' % vr(v_lane))
    A('v_mov_b32 %s, 0x%x' % (vr(ta), WS_BYTES))
    A('v_cndmask_b32 %s, %s, %s, vcc' % (vr(va_prog), vr(va_prog), vr(ta)))
    A('v_add_u32 %s, 0x%x, %s' % (vr(v_sh), CTR, vr(v_sh)))
    s_h = s_t2
    A('s_lshl_b32 %s, %s, 2' % (sr(s_h), sr(s_x)))
    A('s_add_u32 %s, %s, %s' % (sr(s_h), sr(s_h), sr(s_w)))
    A('s_lshl_b32 %s, %s, 13' % (sr(s_h), sr(s_h)))
    A('v_and_b32 %s, 1, %s' % (vr(ta), vr(v_g)))
    A('v_lshrrev_b32 %s, 1, %s' % (vr(tb), vr(v_g)))
    A('v_lshlrev_b32 %s, 9, %s' % (vr(va_kx), vr(ta)))
    A('v_lshl_add_u32 %s, %s, 10, %s' % (vr(va_kx), vr(tb), vr(va_kx)))
    A('v_add_u32 %s, %s, %s' % (vr(va_kx), sr(s_h), vr(va_kx)))
    A('v_lshl_add_u32 %s, %s, 4, %s' % (vr(va_vx), vr(v_nu), vr(va_kx)))
    A('v_add_u32 %s, 0x%x, %s' % (vr(va_vx), VX, vr(va_vx)))
    A('v_lshrrev_b32 %s, 3, %s' % (vr(ta), vr(v_nu)))
    A('v_lshl_add_u32 %s, %s, 8, %s' % (vr(va_kx), vr(ta), vr(va_kx)))
    A('v_and_b32 %s, 7, %s' % (vr(ta), vr(v_nu)))
    A('v_lshl_add_u32 %s, %s, 4, %s' % (vr(va_kx), vr(ta), vr(va_kx)))
    A('v_add_u32 %s, 0x%x, %s' % (vr(va_kx), KX, vr(va_kx)))
    A('s_lshr_b32 %s, %s, 1' % (sr(s_t2), sr(s_j)))
    A('s_lshl_b32 %s, %s, 2' % (sr(s_t2), sr(s_t2)))
    A('s_add_u32 %s, %s, %s' % (sr(s_t2), sr(s_t2), sr(s_w)))
    A('s_and_b32 %s, %s, 15' % (sr(s_cnt), sr(s_t2)))
    A('s_lshl_b32 %s, %s, 11' % (sr(s_cnt), sr(s_cnt)))
    A('s_lshr_b32 %s, %s, 4' % (sr(s_t2), sr(s_t2)))
    A('s_lshl_b32 %s, %s, 24' % (sr(s_t2), sr(s_t2)))
    assert VX - KX == 1 << 24
    A('s_add_u32 %s, %s, %s' % (sr(s_t2), sr(s_t2), sr(s_cnt)))
    A('s_lshl_b32 %s, %s, 15' % (sr(s_cnt), sr(s_x)))
    A('s_add_u32 %s, %s, %s' % (sr(s_t2), sr(s_t2), sr(s_cnt)))
    A('s_add_u32 %s, %s, 0x%x' % (sr(s_t2), sr(s_t2), KX))
    A('v_lshl_add_u32 %s, %s, 5, %s' % (vr(va_warm), vr(v_lane), sr(s_t2)))
    A('v_add_u32 %s, %d, %s' % (vr(va_or), LDS_O, vr(l16)))
    A('v_lshrrev_b32 %s, 3, %s' % (vr(ta), vr(v_nu)))
    A('v_mul_u32_u24 %s, %d, %s' % (vr(ta), 1024 - 128, vr(ta)))
    A('s_lshl_b32 %s, %s, 11' % (sr(s_t2), sr(s_w)))
    A('v_add3_u32 %s, %s, %s, %s' % (vr(va_ow), sr(s_t2), vr(va_or), vr(ta)))
    if stamps:
        A('s_lshl_b32 %s, %s, 4' % (sr(s_stamp), sr(s_ob)))
        A('s_lshl_b32 %s, %s, 12' % (sr(s_t2), sr(s_w)))
        A('s_add_u32 %s, %s, %s' % (sr(s_stamp), sr(s_stamp), sr(s_t2)))
        A('s_add_u32 %s, %s, 0x%x' % (sr(s_stamp), sr(s_stamp), STAMP))
        A('s_add_u32 %s, %s, 65536' % (sr(s_stl), sr(s_t2)))

    vq1, vq2, vr_, vcq = acc1, acc1 + 1, acc1 + 2, acc1 + 3
    A('v_bfe_u32 %s, %s, 2, 2' % (vr(vr_), vr(v_lane)))
    A('v_and_b32 %s, 3, %s' % (vr(vcq), vr(v_lane)))
    A('v_lshl_add_u32 %s, %s, 3, %s' % (vr(vq2), vr(v_g), vr(vr_)))
    A('v_lshlrev_b32 %s, 6, %s' % (vr(vq1), vr(vq2)))
    A('v_lshl_add_u32 %s, %s, 3, %s' % (vr(vq1), vr(vcq), vr(vq1)))
    A('s_lshl_b32 %s, %s, 14' % (sr(s_t2), sr(s_w)))
    A('v_add_u32 %s, %s, %s' % (vr(vq1), sr(s_t2), vr(vq1)))
    A('v_add_u32 %s, 65536, %s' % (vr(tb), vr(vq1)))
    if TLBW:
        A('s_mov_b64 exec, 1')
        for sl in range(1, 4):
            A('s_mov_b32 %s, 0x%x' % (sr(s_t0), sl * 0x20000))
            A('s_mov_b32 %s, 0x%x' % (sr(s_t1), sl * 0x40000))
            for va, so in ((va_memr, s_t0), (va_qkr, s_t0), (va_vmr, s_t0), (va_pr, s_t1)):
                A('buffer_load_dword %s, %s, %s, %s offen sc1' % (vr(v_junk), vr(va), sr(SRD_WS, 4), sr(so)))
        A('s_mov_b64 exec, -1')
    A('s_waitcnt vmcnt(%d)' % (60 if TLBW else 48))
    A('s_barrier')
    for kk in range(4):
        for tl in range(4):
            for bh in range(2):
                for q in range(2):
                    A('ds_read_b64_tr_b16 %s, %s offset:%d' % (ar(W1 + 8 * (kk * 4 + tl) + 4 * bh + 2 * q, 2), vr(tb if tl >= 2 else vq1), kk * 4096 + bh * 2048 + q * 256 + (tl & 1) * 32))
            A('s_waitcnt lgkmcnt(8)')
    A('s_waitcnt lgkmcnt(0)')
    A('s_barrier')
    A('s_waitcnt vmcnt(0)')
    A('s_lshl_b32 %s, %s, 10' % (sr(s_t2), sr(s_w)))
    A('v_add_u32 %s, %s, %s' % (vr(ta), sr(s_t2), vr(l16)))
    A('v_add_u32 %s, 65536, %s' % (vr(tb), vr(ta)))
    for i in range(32):
        A('ds_write_b128 %s, %s offset:%d' % (vr(ta if i < 16 else tb), vr(LND + 4 * i, 4), (i & 15) * 4096))
        if i & 3 == 3:
            A('s_waitcnt lgkmcnt(8)')
    A('s_waitcnt lgkmcnt(0)')
    A('s_barrier')
    LtN, LtJ = A.uid('tN'), A.uid('tJ')
    A('s_cmp_lg_u32 %s, 0' % sr(s_red))
    A('s_cbranch_scc1 ' + LtN)
    A('v_lshlrev_b32 %s, 7, %s' % (vr(ta), vr(vq2)))
    A('v_lshl_add_u32 %s, %s, 3, %s' % (vr(ta), vr(vcq), vr(ta)))
    A('s_lshl_b32 %s, %s, 15' % (sr(s_t2), sr(s_w)))
    A('v_add_u32 %s, %s, %s' % (vr(ta), sr(s_t2), vr(ta)))
    for kk in range(4):
        for tv in range(4):
            for bh in range(2):
                for q in range(2):
                    A('ds_read_b64_tr_b16 %s, %s offset:%d' % (ar(W2 + 8 * (kk * 4 + tv) + 4 * bh + 2 * q, 2), vr(ta), kk * 8192 + bh * 4096 + q * 512 + tv * 32))
            A('s_waitcnt lgkmcnt(8)')
    A('s_branch ' + LtJ)
    A.label(LtN)
    A('v_and_b32 %s, 1, %s' % (vr(ta), vr(v_g)))
    A('v_lshl_add_u32 %s, %s, 5, %s' % (vr(ta), vr(ta), vr(vr_)))
    A('v_lshrrev_b32 %s, 1, %s' % (vr(tb), vr(v_g)))
    A('v_lshl_add_u32 %s, %s, 2, %s' % (vr(ta), vr(tb), vr(ta)))
    A('v_lshlrev_b32 %s, 8, %s' % (vr(ta), vr(ta)))
    A('v_lshl_add_u32 %s, %s, 3, %s' % (vr(ta), vr(vcq), vr(ta)))
    A('s_lshl_b32 %s, %s, 5' % (sr(s_t2), sr(s_w)))
    A('v_add_u32 %s, %s, %s' % (vr(ta), sr(s_t2), vr(ta)))
    A('v_add_u32 %s, 65536, %s' % (vr(tb), vr(ta)))
    for k in range(8):
        for u in range(2):
            for bh in range(2):
                for q in range(2):
                    A('ds_read_b64_tr_b16 %s, %s offset:%d' % (ar(W2 + 8 * (k * 2 + u) + 4 * bh + 2 * q, 2), vr(ta if k < 4 else tb), (k & 3) * 16384 + q * 4096 + bh * 2048 + u * 128))
            A('s_waitcnt lgkmcnt(8)')
    A.label(LtJ)
    A('s_waitcnt lgkmcnt(0)')
    A('s_barrier')

    def pf_ops():
        o = []
        for eb in range(4):
            so = s_kx if eb < 2 else s_kx2
            o.append('buffer_load_dwordx4 %s, %s, %s, %s offen offset:%d sc1' % (vr(KXA + 4 * eb, 4), vr(va_kx), sr(SRD_WS, 4), sr(so), (eb & 1) * 2048))
            o.append('buffer_load_dwordx4 %s, %s, %s, %s offen offset:%d sc1' % (vr(KXB + 4 * eb, 4), vr(va_kx), sr(SRD_WS, 4), sr(so), (eb & 1) * 2048 + 128))
        for T in range(8):
            eb = T >> 1
            so = s_kx if eb < 2 else s_kx2
            o.append('buffer_load_dwordx4 %s, %s, %s, %s offen offset:%d sc1' % (vr(VXR + 4 * T, 4), vr(va_vx), sr(SRD_WS, 4), sr(so), (eb & 1) * 2048 + (T & 1) * 256))
        return o

    def emit(t):
        A(t)
        if t.startswith('buffer_'):
            nvm[0] += 1

    A('s_mov_b32 %s, 0' % sr(s_step))
    A('s_mov_b32 %s, 0x40404044' % sr(s_kvm))
    A('s_mov_b32 %s, 0x00404040' % sr(s_kvm + 1))
    A('s_mov_b32 %s, 0' % sr(s_slot))
    A('s_mov_b32 %s, 0x20000' % sr(s_slot1))
    A('s_mov_b32 %s, 0x40000' % sr(s_slot2))
    A('s_mov_b32 %s, 0' % sr(s_slotp))
    A('s_mov_b32 %s, 0' % sr(s_kx))
    A('s_mov_b32 %s, 4096' % sr(s_kx2))
    A('s_mov_b32 %s, 0' % sr(s_out))
    A('s_mov_b32 %s, 0x%x' % (sr(s_outp), WS_BYTES))
    A('s_mov_b32 %s, 0' % sr(s_ps))
    A('s_mov_b32 %s, 0x80000' % sr(s_ps2))
    A('s_mov_b32 %s, %d' % (sr(s_kvo), DBG_KV0 * 128))

    def kv_wait(tag):
        Lw, Ld, L0 = A.uid('kvw' + tag), A.uid('kvd' + tag), A.uid('kv0' + tag)
        A('s_mov_b32 %s, 0' % sr(s_cnt))
        A('s_branch ' + L0)
        A.label(Lw)
        A('s_sleep 6')
        A.label(L0)
        A('buffer_load_dword %s, %s, %s, %s offen sc1' % (vr(v_kvf), vr(v_sh), sr(SRD_WS, 4), sr(s_kvo)))
        A('s_add_u32 %s, %s, 1' % (sr(s_cnt), sr(s_cnt)))
        A('s_cmp_gt_u32 %s, %s' % (sr(s_cnt), sr(s_lim)))
        A('s_cbranch_scc1 ' + Ld)
        A('s_waitcnt vmcnt(0)')
        A('v_cmp_gt_u32 vcc, 32, %s' % vr(v_kvf))
        A('s_cbranch_vccnz ' + Lw)
        A.label(Ld)
        A('s_waitcnt vmcnt(0)')
    stamp(7)
    place_check(A, SRD_T, v_lane, v_t[0], v_t[1], s_cnt, POLL_LIMIT, L_restart)
    L_rdy, L_rdy_done, L_rdy0 = A.uid('rdy'), A.uid('rdyd'), A.uid('rdy0')
    A('v_mov_b32 %s, 32' % vr(v_t[0]))
    A('s_mov_b32 %s, 0' % sr(s_cnt))
    A('s_branch ' + L_rdy0)
    A.label(L_rdy)
    A('s_sleep 6')
    A.label(L_rdy0)
    A('buffer_load_dword %s, %s, %s, 0 offen sc1' % (vr(acc1 + 1), vr(v_t[0]), sr(SRD_T, 4)))
    A('s_add_u32 %s, %s, 1' % (sr(s_cnt), sr(s_cnt)))
    A('s_cmp_gt_u32 %s, %s' % (sr(s_cnt), sr(s_lim)))
    A('s_cbranch_scc1 ' + L_rdy_done)
    A('s_waitcnt vmcnt(0)')
    A('v_and_b32 %s, 0xffff, %s' % (vr(acc1), vr(acc1 + 1)))
    A('v_cmp_gt_u32 vcc, 128, %s' % vr(acc1))
    A('s_cbranch_vccnz ' + L_rdy)
    A.label(L_rdy_done)
    A('s_waitcnt vmcnt(0)')
    A('v_lshrrev_b32 %s, 16, %s' % (vr(acc1), vr(acc1 + 1)))
    A('v_cmp_%s_u32 vcc, 16, %s' % ('lt' if NEARX else 'ge', vr(acc1)))
    A('v_mov_b32 %s, 8192' % vr(acc1 + 1))
    A('v_cndmask_b32 %s, 0, %s, vcc' % (vr(acc1), vr(acc1 + 1)))
    A('v_add_u32 %s, %s, %s' % (vr(va_pr), vr(va_pr), vr(acc1)))
    A('v_add_u32 %s, %s, %s' % (vr(va_pw), vr(va_pw), vr(acc1)))
    A('v_mul_u32_u24 %s, 252, %s' % (vr(acc1), vr(v_g)))
    A('v_sub_u32 %s, %s, %s' % (vr(va_pd), vr(va_pw), vr(acc1)))
    A('v_and_b32 %s, 0x%x, %s' % (vr(va_pd), 0xffffffff ^ 16384, vr(va_pd)))
    A('v_lshlrev_b32 %s, 8, %s' % (vr(acc1), vr(v_g)))
    A('v_sub_u32 %s, %s, %s' % (vr(va_pz), vr(va_pw), vr(acc1)))
    A('v_and_b32 %s, 1, %s' % (vr(acc1), vr(v_g)))
    A('v_lshlrev_b32 %s, 14, %s' % (vr(acc1), vr(acc1)))
    A('v_xor_b32 %s, %s, %s' % (vr(va_pz), vr(va_pz), vr(acc1)))
    A('v_lshrrev_b32 %s, 1, %s' % (vr(acc1), vr(v_g)))
    A('v_lshl_add_u32 %s, %s, 28, %s' % (vr(va_pz), vr(acc1), vr(va_pz)))
    A('v_add_u32 %s, 16384, %s' % (vr(va_pw), vr(va_pd)))
    A('v_lshlrev_b32 %s, 2, %s' % (vr(acc1), vr(v_g)))
    A('v_sub_u32 %s, %s, %s' % (vr(va_pg), vr(va_pd), vr(acc1)))
    A('v_lshrrev_b32 %s, 1, %s' % (vr(acc1), vr(v_g)))
    A('v_lshl_add_u32 %s, %s, 14, %s' % (vr(va_pg), vr(acc1), vr(va_pg)))
    A('v_and_b32 %s, 1, %s' % (vr(acc1), vr(v_g)))
    A('v_lshl_add_u32 %s, %s, 28, %s' % (vr(va_pg), vr(acc1), vr(va_pg)))
    kv_wait('0')
    stamp(9)
    dbgt(11)

    ool = []

    def poll(n, load, base, tag, on_ok=None, back=0):
        Lk = [A.uid('poll%s%d' % (tag, k)) for k in range(n)]
        Lc = [A.uid('chk%s%d' % (tag, k)) for k in range(n)]
        Lo = [A.uid('ok%s%d' % (tag, k)) for k in range(n)]
        Lfs = [A.uid('pollf%s%d' % (tag, k)) for k in range(n)]

        def issue(m):
            A.label(Lk[m])
            if back:
                A('s_sleep %d' % back)
            for k in range(m, n):
                A(load(k))
            A('s_add_u32 %s, %s, 1' % (sr(s_cnt), sr(s_cnt)))
            A('s_cmp_gt_u32 %s, %s' % (sr(s_cnt), sr(s_lim)))
            A('s_cbranch_scc1 ' + Lfs[m])
        A('s_mov_b32 %s, 0' % sr(s_cnt))
        issue(0)
        for m in range(n):
            A.label(Lc[m])
            A('s_waitcnt vmcnt(%d)' % (n - 1 - m))
            b = base + 4 * m
            A('v_max3_u32 %s, %s, %s, %s' % (vr(v_t[0]), vr(b), vr(b + 1), vr(b + 2)))
            A('v_max_u32 %s, %s, %s' % (vr(v_t[0]), vr(v_t[0]), vr(b + 3)))
            A('v_cmp_eq_u32 vcc, -1, %s' % vr(v_t[0]))
            A('s_cbranch_vccnz ' + Lk[m])
            A.label(Lo[m])
            if on_ok:
                on_ok(m)

        def tail():
            for m in range(1, n):
                issue(m)
                A('s_branch ' + Lc[m])
            for m in range(n):
                A.label(Lfs[m])
                A('s_mov_b32 %s, 0' % sr(s_lim))
                A('s_waitcnt vmcnt(0)')
                A('s_branch ' + Lo[m])
        ool.append(tail)

    def smf(acc, a, w):
        return 'v_smfmac_f32_16x16x64_bf16 %s, %s, %s, %s' % (vr(acc, 4), vr(a, 4), ar(w, 8), vr(v_idx))

    def okA(k):
        for tl in range(4):
            A(smf(AC + 4 * tl, M + 4 * k, W1 + 8 * (k * 4 + tl)))

    def pollA2():
        ld = lambda k: 'buffer_load_dwordx4 %s, %s, %s, %s offen offset:%d sc1' % (vr(M + 4 * k, 4), vr(va_memr), sr(SRD_WS, 4), sr(s_slot), k * 1024)
        Lr = [A.uid('rA%d' % k) for k in range(4)]
        Lo = [A.uid('oA%d' % k) for k in range(4)]

        def chk(k):
            b = M + 4 * k
            return ['s_waitcnt vmcnt(%d)' % (3 - k),
                    'v_max3_u32 %s, %s, %s, %s' % (vr(v_t[0]), vr(b), vr(b + 1), vr(b + 2)),
                    'v_max_u32 %s, %s, %s' % (vr(v_t[0]), vr(v_t[0]), vr(b + 3)),
                    'v_cmp_eq_u32 vcc, -1, %s' % vr(v_t[0])]
        A('s_mov_b32 %s, 1' % sr(s_cnt))
        for k in range(4):
            A(ld(k))
        for t in chk(0):
            A(t)
        for k in range(4):
            A('s_cbranch_vccnz ' + Lr[k])
            A.label(Lo[k])
            c = chk(k + 1) if k < 3 else []
            for tl in range(4):
                A(smf(AC + 4 * tl, M + 4 * k, W1 + 8 * (k * 4 + tl)))
                if c and tl < 3:
                    if tl == 0:
                        A(c.pop(0))
                    A(c.pop(0))

        def tail():
            for k in range(4):
                A.label(Lr[k])
                if A1P and k < 3:
                    Lg = A.uid('gA')
                    A(ld(k))
                    A('s_add_u32 %s, %s, 1' % (sr(s_cnt), sr(s_cnt)))
                    A('s_waitcnt vmcnt(0)')
                    for t in chk(k)[1:]:
                        A(t)
                    A('s_cbranch_vccz ' + Lg)
                    A('s_cmp_le_u32 %s, %s' % (sr(s_cnt), sr(s_lim)))
                    A('s_cbranch_scc1 ' + Lr[k])
                    A('s_mov_b32 %s, 0' % sr(s_lim))
                    A.label(Lg)
                    for m in range(k + 1, 4):
                        A(ld(m))
                    A('s_branch ' + Lo[k])
                    continue
                for m in range(k, 4):
                    A(ld(m))
                A('s_add_u32 %s, %s, 1' % (sr(s_cnt), sr(s_cnt)))
                for t in chk(k):
                    A(t)
                A('s_cbranch_vccz ' + Lo[k])
                A('s_cmp_le_u32 %s, %s' % (sr(s_cnt), sr(s_lim)))
                A('s_cbranch_scc1 ' + Lr[k])
                A('s_mov_b32 %s, 0' % sr(s_lim))
                A('s_branch ' + Lo[k])
        ool.append(tail)

    def advance():
        A('s_add_u32 %s, %s, 1' % (sr(s_step), sr(s_step)))
        A('s_mov_b32 %s, %s' % (sr(s_slotp), sr(s_slot)))
        A('s_mov_b32 %s, %s' % (sr(s_outp), sr(s_out)))
        A('s_mov_b32 %s, %s' % (sr(s_slot), sr(s_slot1)))
        A('s_mov_b32 %s, %s' % (sr(s_slot1), sr(s_slot2)))
        A('s_add_u32 %s, %s, 0x20000' % (sr(s_slot2), sr(s_slot2)))
        A('s_and_b32 %s, %s, 0x7ffff' % (sr(s_slot2), sr(s_slot2)))
        A('s_add_u32 %s, %s, 0x20000' % (sr(s_out), sr(s_out)))
        A('s_lshl_b32 %s, %s, 1' % (sr(s_ps), sr(s_slot)))
        A('s_lshl_b32 %s, %s, 1' % (sr(s_ps2), sr(s_slot2)))
        if stamps:
            A('s_add_u32 %s, %s, 64' % (sr(s_stl), sr(s_stl)))

    def ha_write(tl):
        return ['v_permlane32_swap_b32 %s, %s' % (vr(AC + 4 * tl), vr(AC + 4 * tl + 2)),
                'v_permlane32_swap_b32 %s, %s' % (vr(AC + 4 * tl + 1), vr(AC + 4 * tl + 3)),
                'v_pk_add_f32 %s, %s, %s' % (vr(HA + 2 * tl, 2), vr(AC + 4 * tl, 2), vr(AC + 4 * tl + 2, 2)),
                'ds_write_b64 %s, %s offset:%d' % (vr(va_rw), vr(HA + 2 * tl, 2), tl * 512)]

    def kv_stuff():
        L_kvok, L_kvslow, L_nokv, L_dokv = A.uid('kvok'), A.uid('kvslow'), A.uid('nokv'), A.uid('dokv')
        A('v_cmp_gt_u32 vcc, 32, %s' % vr(v_kvf))
        A('s_cbranch_vccnz ' + L_kvslow)
        A.label(L_kvok)
        A('s_bitcmp1_b64 %s, %s' % (sr(s_kvm, 2), sr(s_step)))
        A('s_cbranch_scc1 ' + L_dokv)
        A.label(L_nokv)

        def t():
            A.label(L_kvslow)
            kv_wait('s')
            A('s_branch ' + L_kvok)
            A.label(L_dokv)
            A('s_add_u32 %s, %s, 2' % (sr(s_kvo), sr(s_step)))
            A('s_lshr_b32 %s, %s, 3' % (sr(s_kvo), sr(s_kvo)))
            A('s_lshl_b32 %s, %s, 9' % (sr(s_kvo), sr(s_kvo)))
            A('s_add_u32 %s, %s, %d' % (sr(s_kvo), sr(s_kvo), DBG_KV * 128))
            A('buffer_load_dword %s, %s, %s, %s offen sc1' % (vr(v_kvf), vr(v_sh), sr(SRD_WS, 4), sr(s_kvo)))
            A('s_branch ' + L_nokv)
        ool.append(t)

    L_lastR, L_lastN, L_fin = name + '_lastR', name + '_lastN', name + '_fin'

    def loop(red, fl):
        tg = ('r' if red else 'n') + ('f' if fl else '')
        ISC = ' sc1' if fl else ''
        nacc = 32 if red else 16
        L_st, L_B = name + '_step' + tg, name + '_B' + tg

        def zero_acc():
            for i in range(nacc):
                A('v_mov_b32 %s, 0' % vr(AC + i))
        A.label(name + '_first' + tg)
        if not red:
            for t in pf_ops():
                A(t)
        zero_acc()
        for k in range(4):
            okA(k)
        A('s_branch ' + L_B)
        A.label(L_st)
        if not (red and ZE):
            zero_acc()
        if A2:
            pollA2()
        else:
            poll(4, lambda k: 'buffer_load_dwordx4 %s, %s, %s, %s offen offset:%d sc1' % (vr(M + 4 * k, 4), vr(va_memr), sr(SRD_WS, 4), sr(s_slot), k * 1024), M, 'A', okA)
        A.label(L_B)
        stamp(0)
        vs = [smf(AC + 16 + 4 * tv, M + 4 * k, W2 + 8 * (k * 4 + tv)) for tv in range(4) for k in range(4)] if red else []
        ne = VS[0]
        for tl in range(4):
            h = ha_write(tl)
            if vs and ne > 0:
                A(vs.pop(0))
                ne -= 1
            A(h[0])
            A(h[1])
            if vs and ne > 3 - tl:
                A(vs.pop(0))
                ne -= 1
            A(h[2])
            A(h[3])
        for _ in range(VS[1]):
            if vs:
                A(vs.pop(0))
        A('s_waitcnt lgkmcnt(0)')
        A('s_barrier')
        A('ds_read_b128 %s, %s' % (vr(RD, 4), vr(va_rr)))
        A('ds_read_b128 %s, %s offset:4096' % (vr(RD + 4, 4), vr(va_rr)))
        for _ in range(VS[2]):
            if vs:
                A(vs.pop(0))
        A('s_waitcnt lgkmcnt(0)')
        A('v_pk_add_f32 %s, %s, %s' % (vr(RD, 2), vr(RD, 2), vr(RD + 4, 2)))
        A('v_pk_add_f32 %s, %s, %s' % (vr(RD + 2, 2), vr(RD + 2, 2), vr(RD + 6, 2)))
        A('v_permlane32_swap_b32 %s, %s' % (vr(RD), vr(RD + 1)))
        A('v_permlane32_swap_b32 %s, %s' % (vr(RD + 2), vr(RD + 3)))
        A('v_add_f32 %s, %s, %s' % (vr(v_t[0]), vr(RD), vr(RD + 1)))
        A('v_add_f32 %s, %s, %s' % (vr(v_t[1]), vr(RD + 2), vr(RD + 3)))
        A('v_cvt_pk_bf16_f32 %s, %s, %s' % (vr(v_t[2]), vr(v_t[0]), vr(v_t[1])))
        A('v_pk_min_u16 %s, %s, %s' % (vr(v_t[2]), vr(v_t[2]), sr(s_fffe)))
        A('buffer_store_dword %s, %s, %s, %s offen%s' % (vr(v_t[2]), vr(va_qks), sr(SRD_WS, 4), sr(s_slot), ISC))
        if red:
            for tv in range(4):
                while vs and len(vs) > 4 * (3 - tv) - 4:
                    A(vs.pop(0))
                for t in ha_write(4 + tv):
                    A(t)
            A('s_waitcnt lgkmcnt(0)')
            A('s_barrier')
            A('ds_read_b128 %s, %s offset:2048' % (vr(RD, 4), vr(va_rr)))
            A('ds_read_b128 %s, %s offset:6144' % (vr(RD + 4, 4), vr(va_rr)))
            A('s_waitcnt lgkmcnt(0)')
            A('v_pk_add_f32 %s, %s, %s' % (vr(RD, 2), vr(RD, 2), vr(RD + 4, 2)))
            A('v_pk_add_f32 %s, %s, %s' % (vr(RD + 2, 2), vr(RD + 2, 2), vr(RD + 6, 2)))
            A('v_permlane32_swap_b32 %s, %s' % (vr(RD), vr(RD + 2)))
            A('v_permlane32_swap_b32 %s, %s' % (vr(RD + 1), vr(RD + 3)))
            A('v_pk_add_f32 %s, %s, %s' % (vr(RD, 2), vr(RD, 2), vr(RD + 2, 2)))
            A('v_cvt_pk_bf16_f32 %s, %s, %s' % (vr(v_t[3]), vr(RD), vr(RD + 1)))
            A('v_pk_min_u16 %s, %s, %s' % (vr(v_t[3]), vr(v_t[3]), sr(s_fffe)))
            A('buffer_store_dword %s, %s, %s, %s offen%s' % (vr(v_t[3]), vr(va_vs), sr(SRD_WS, 4), sr(s_slot), ISC))
            stamp(1)
            A('buffer_load_dwordx4 %s, %s, %s, %s offen sc1' % (vr(RB, 4), vr(va_rb), sr(SRD_WS, 4), sr(s_slotp)))
            A('v_mov_b32 %s, %s' % (vr(v_junk2), sr(s_step)))
            A('s_waitcnt vmcnt(0)')
            A('s_barrier')
            A('buffer_store_dwordx4 %s, %s, %s, %s offen sc1' % (vr(RB, 4), vr(va_cp), sr(SRD_WS, 4), sr(s_outp)))
            A('buffer_store_dword %s, %s, %s, 0 offen sc1' % (vr(v_junk2), vr(va_prog), sr(SRD_WS, 4)))
            A('s_cmp_ge_u32 %s, %d' % (sr(s_step), nsteps - 1))
            A('s_cbranch_scc1 ' + L_lastR)
            A('s_add_u32 %s, %s, 0x40000' % (sr(s_kx), sr(s_kx)))
            kv_stuff()
            A('buffer_load_dword %s, %s, %s, %s offen sc1' % (vr(v_junk), vr(va_warm), sr(SRD_WS, 4), sr(s_kx)))
            A('buffer_store_dwordx4 %s, %s, %s, %s offen sc1' % (vr(v_m1, 4), vr(va_pz), sr(SRD_WS, 4), sr(s_ps2)))
            A('buffer_store_dwordx4 %s, %s, %s, %s offen%s' % (vr(v_m1, 4), vr(va_rb), sr(SRD_WS, 4), sr(s_slot2), ISC))
            A('buffer_store_dword %s, %s, %s, %s offen%s' % (vr(v_m1), vr(va_mems), sr(SRD_WS, 4), sr(s_slot2), ISC))
            if ZE:
                zero_acc()
            if DELAY_E:
                A('s_sleep %d ; nothing can arrive before the attention is through: do not poll yet' % DELAY_E)
            if HINT:
                Lh, Lhd = A.uid('h'), A.uid('hd')
                A('s_mov_b32 %s, 0' % sr(s_cnt))
                A.label(Lh)
                A('buffer_load_dword %s, %s, %s, 0 offen sc1' % (vr(v_t[0]), vr(va_flg), sr(SRD_WS, 4)))
                A('s_add_u32 %s, %s, 1' % (sr(s_cnt), sr(s_cnt)))
                A('s_cmp_gt_u32 %s, %s' % (sr(s_cnt), sr(s_lim)))
                A('s_cbranch_scc1 ' + Lhd)
                A('s_waitcnt vmcnt(0)')
                A('v_cmp_ne_u32 vcc, %s, %s' % (sr(s_step), vr(v_t[0])))
                A('s_cbranch_vccnz ' + Lh)
                A.label(Lhd)
                if HINT > 1:
                    A('s_sleep %d ; partials still in flight: a read that comes too early costs a second fabric round trip' % (HINT - 1))

            def okE(k):
                A('v_mfma_f32_16x16x32_bf16 %s, %s, %s, %s' % (vr(LS, 4), vr(PR + 4 * k, 4), vr(v_sel, 4), '0' if k == 0 else vr(LS, 4)))
            poll(2, lambda k: 'buffer_load_dwordx4 %s, %s, %s, %s offen offset:%d sc1' % (vr(PR + 4 * k, 4), vr(va_pr), sr(SRD_WS, 4), sr(s_ps), k * 1024), PR, 'E', okE, back=E_BACK)
            stamp(6)
            advance()
            A('v_cvt_pk_bf16_f32 %s, %s, %s' % (vr(v_t[2]), vr(LS), vr(LS + 1)))
            A('v_cvt_pk_bf16_f32 %s, %s, %s' % (vr(v_t[3]), vr(LS + 2), vr(LS + 3)))
            A('v_cndmask_b32 %s, %s, %s, %s' % (vr(v_t[2]), vr(v_t[2]), vr(v_t[3]), sr(s_hf, 2)))
            A('v_pk_min_u16 %s, %s, %s' % (vr(v_t[2]), vr(v_t[2]), sr(s_fffe)))
            A('buffer_store_dword %s, %s, %s, %s offen%s' % (vr(v_t[2]), vr(va_mems), sr(SRD_WS, 4), sr(s_slot), ISC))
            if RED_SLEEP:
                A('s_sleep %d ; first poll when the other reducers stores can be visible' % RED_SLEEP)
            A('s_branch ' + L_st)
            return
        stamp(1)
        A('s_cmp_ge_u32 %s, %d' % (sr(s_step), nsteps - 1))
        A('s_cbranch_scc1 ' + L_lastN)
        A('s_add_u32 %s, %s, 0x40000' % (sr(s_kx), sr(s_kx)))
        A('s_add_u32 %s, %s, 0x40000' % (sr(s_kx2), sr(s_kx2)))
        for i in range(4):
            A('v_mov_b32 %s, 0' % vr(acc1 + i))
            A('v_mov_b32 %s, 0' % vr(acc2 + i))
        A('v_mov_b32 %s, %s' % (vr(v_junk2), sr(s_step)))
        if DELAY_C:
            A('s_sleep %d ; first poll when the other CUs q/k stores can be visible' % DELAY_C)
        Lc, Lcf, Lcd = A.uid('pC'), A.uid('pCf'), A.uid('pCd')
        A('s_mov_b32 %s, 1' % sr(s_cnt))
        A.label(Lc)
        for k in range(4):
            A('buffer_load_dwordx4 %s, %s, %s, %s offen offset:%d sc1' % (vr(QK + 4 * k, 4), vr(va_qkr), sr(SRD_WS, 4), sr(s_slot), k * 1024))
        for t in range(4):
            A('s_waitcnt vmcnt(%d)' % (3 - t))
            q = QK + 4 * t
            A('v_mfma_f32_16x16x32_bf16 %s, %s, %s, %s' % (vr(SA, 4), vr(KXA + 4 * t, 4), vr(q, 4), vr(v_maskx, 4) if t == 0 else vr(SA, 4)))
            if t == 0:
                A('v_max3_u32 %s, %s, %s, %s' % (vr(v_t[0]), vr(q), vr(q + 1), vr(q + 2)))
            else:
                A('v_max3_u32 %s, %s, %s, %s' % (vr(v_t[0]), vr(v_t[0]), vr(q), vr(q + 1)))
            A('v_mfma_f32_16x16x32_bf16 %s, %s, %s, %s' % (vr(SB, 4), vr(KXB + 4 * t, 4), vr(q, 4), vr(v_maskx, 4) if t == 0 else vr(SB, 4)))
            if t == 0:
                A('v_max_u32 %s, %s, %s' % (vr(v_t[0]), vr(v_t[0]), vr(q + 3)))
            else:
                A('v_max3_u32 %s, %s, %s, %s' % (vr(v_t[0]), vr(v_t[0]), vr(q + 2), vr(q + 3)))
            if t == 3:
                A('v_cmp_eq_u32 vcc, -1, %s' % vr(v_t[0]))
            A('v_mfma_f32_16x16x32_bf16 %s, %s, %s, %s' % (vr(SM, 4), vr(q, 4), vr(q, 4), vr(v_mask, 4) if t == 0 else vr(SM, 4)))
        A('s_cbranch_vccnz ' + Lcf)
        A.label(Lcd)

        def tailC():
            A.label(Lcf)
            A('s_add_u32 %s, %s, 1' % (sr(s_cnt), sr(s_cnt)))
            A('s_cmp_le_u32 %s, %s' % (sr(s_cnt), sr(s_lim)))
            A('s_cbranch_scc1 ' + Lc)
            A('s_mov_b32 %s, 0' % sr(s_lim))
            A('s_branch ' + Lcd)
        ool.append(tailC)
        stamp(2)

        def vload(k):
            return 'buffer_load_dwordx4 %s, %s, %s, %s offen offset:%d sc1' % (vr(VMR + 4 * k, 4), vr(va_vmr), sr(SRD_WS, 4), sr(s_slot), k * 1024)
        side = pf_ops() if not NOPF else []
        s = [SA + i for i in range(12)]
        sm = []
        sm.append('v_max3_f32 %s, %s, %s, %s' % (vr(v_mx), vr(s[0]), vr(s[1]), vr(s[2])))
        sm.append('v_max3_f32 %s, %s, %s, %s' % (vr(v_mx2), vr(s[3]), vr(s[4]), vr(v_bias)))
        sm.append('v_max3_f32 %s, %s, %s, %s' % (vr(v_mx), vr(v_mx), vr(s[5]), vr(s[6])))
        sm.append('v_max3_f32 %s, %s, %s, %s' % (vr(v_mx2), vr(v_mx2), vr(s[7]), vr(s[8])))
        sm.append('v_max3_f32 %s, %s, %s, %s' % (vr(v_mx), vr(v_mx), vr(s[9]), vr(s[10])))
        sm.append('v_max3_f32 %s, %s, %s, %s' % (vr(v_mx), vr(v_mx), vr(v_mx2), vr(s[11])))
        for sw in ('v_permlane32_swap_b32', 'v_permlane16_swap_b32'):
            sm.append('v_mov_b32 %s, %s' % (vr(v_mx2), vr(v_mx)))
            sm.append('%s %s, %s' % (sw, vr(v_mx), vr(v_mx2)))
            sm.append('v_max_f32 %s, %s, %s' % (vr(v_mx), vr(v_mx), vr(v_mx2)))
        sm.append('v_mul_f32 %s, %s, %s' % (vr(v_mx), sr(s_c), vr(v_mx)))
        if PKF:
            for i in range(0, 8, 2):
                sm.append('v_pk_fma_f32 %s, %s, %s, %s op_sel_hi:[1,0,0] neg_lo:[0,0,1] neg_hi:[0,0,1]' % (vr(s[i], 2), vr(s[i], 2), vr(v_cc, 2), vr(v_mx, 2)))
        else:
            for i in range(8):
                sm.append('v_fma_f32 %s, %s, %s, -%s' % (vr(s[i]), vr(s[i]), sr(s_c), vr(v_mx)))
        for i in range(8):
            sm.append('v_exp_f32 %s, %s' % (vr(s[i]), vr(s[i])))
            if i >= 2 and i % 2 == 0:
                sm.append('v_cvt_pk_bf16_f32 %s, %s, %s' % (vr(PX + i // 2 - 1), vr(s[i - 2]), vr(s[i - 1])))
        sm.append('v_fma_f32 %s, %s, %s, -%s' % (vr(s[8]), vr(s[8]), sr(s_c), vr(v_mx)))
        sm.append('v_cvt_pk_bf16_f32 %s, %s, %s' % (vr(PX + 3), vr(s[6]), vr(s[7])))
        sm.append('v_fma_f32 %s, %s, %s, -%s' % (vr(s[9]), vr(s[9]), sr(s_c), vr(v_mx)))
        for i, m in enumerate(sm):
            if PKF:
                if i == 7:
                    A(vload(0))
                    A(vload(1))
            elif i == DELAY_V:
                A(vload(0))
                A(vload(1))
            A(m)
        stamp(3)

        def dpp8(d, srcr):
            return 'v_mov_b32_dpp %s, %s row_shr:8 row_mask:0xf bank_mask:0xf bound_ctrl:0' % (vr(d), vr(srcr))
        t = v_t
        sh = []
        for i in range(10, 12):
            sh.append('v_fma_f32 %s, %s, %s, -%s' % (vr(s[i]), vr(s[i]), sr(s_c), vr(v_mx)))
        for i in range(4):
            sh.append(dpp8(PXH + i, PX + i))
        for i in range(8, 12):
            sh.append('v_exp_f32 %s, %s' % (vr(s[i]), vr(s[i])))
        for i in range(2):
            sh.append('v_cvt_pk_bf16_f32 %s, %s, %s' % (vr(PM + i), vr(s[8 + 2 * i]), vr(s[9 + 2 * i])))
        ls16 = 'v_mfma_f32_16x16x16_bf16 %s, %s, %s, %s' % (vr(LS, 4), vr(v_ones, 2), vr(PM, 2), vr(LS, 4))
        if PV2:
            sh.append(dpp8(PMH, PM))
            sh.append(dpp8(PMH + 1, PM + 1))
            sh.append(ls16)
            sh.append('s_waitcnt vmcnt(0)')
            sh.append('v_max3_u32 %s, %s, %s, %s' % (vr(t[0]), vr(VMR), vr(VMR + 1), vr(VMR + 2)))
            sh.append('v_max3_u32 %s, %s, %s, %s' % (vr(t[1]), vr(VMR + 3), vr(VMR + 4), vr(VMR + 5)))
            sh.append('v_permlane32_swap_b32 %s, %s' % (vr(PMH), vr(PM)))
            sh.append('v_permlane32_swap_b32 %s, %s' % (vr(PMH + 1), vr(PM + 1)))
            sh.append('v_max3_u32 %s, %s, %s, %s' % (vr(t[0]), vr(t[0]), vr(VMR + 6), vr(VMR + 7)))
            sh.append('v_max_u32 %s, %s, %s' % (vr(t[0]), vr(t[0]), vr(t[1])))
            sh.append('v_cmp_eq_u32 vcc, -1, %s' % vr(t[0]))
            sh.append('v_rcp_f32 %s, %s' % (vr(v_l), vr(LS)))
        else:
            sh.append('s_waitcnt vmcnt(0)')
            sh.append('v_max3_u32 %s, %s, %s, %s' % (vr(t[0]), vr(VMR), vr(VMR + 1), vr(VMR + 2)))
            sh.append('v_max3_u32 %s, %s, %s, %s' % (vr(t[1]), vr(VMR + 3), vr(VMR + 4), vr(VMR + 5)))
            sh.append(dpp8(PMH, PM))
            sh.append(dpp8(PMH + 1, PM + 1))
            sh.append('v_max3_u32 %s, %s, %s, %s' % (vr(t[0]), vr(t[0]), vr(VMR + 6), vr(VMR + 7)))
            sh.append('v_max_u32 %s, %s, %s' % (vr(t[0]), vr(t[0]), vr(t[1])))
            sh.append('v_permlane32_swap_b32 %s, %s' % (vr(PMH), vr(PM)))
            sh.append('v_permlane32_swap_b32 %s, %s' % (vr(PMH + 1), vr(PM + 1)))
            sh.append('v_cmp_eq_u32 vcc, -1, %s' % vr(t[0]))
        mf = ['v_mfma_f32_16x16x32_bf16 %s, %s, %s, 0' % (vr(LS, 4), vr(v_ones, 4), vr(PX, 4))]
        for a in range(4):
            mf.append('v_mfma_f32_16x16x32_bf16 %s, %s, %s, 0' % (vr(O + 4 * a, 4), vr(VXR + 4 * a, 4), vr(PX, 4)))
        for a in range(4):
            mf.append('v_mfma_f32_16x16x32_bf16 %s, %s, %s, %s' % (vr(O + 4 * a, 4), vr(VXR + 4 * (a + 4), 4), vr(PXH, 4), vr(O + 4 * a, 4)))
        per = [3, 3, 2, 2, 2, 3, 3, 3, 2] if PV2 else [3, 3, 2, 2, 2, 2, 3, 3, 1]
        for i, m in enumerate(mf):
            A(m)
            for _ in range(per[i]):
                if sh:
                    x = sh.pop(0)
                    if x.startswith('s_waitcnt'):
                        A(x)
                        x = sh.pop(0)
                    A(x)
        assert not sh
        Lv_ok, Lv_slow = A.uid('vok'), A.uid('vslow')
        A('s_cbranch_vccnz ' + Lv_slow)
        A.label(Lv_ok)

        def tailV():
            A.label(Lv_slow)
            poll(2, vload, VMR, 'V')
            A('s_branch ' + Lv_ok)
        ool.append(tailV)
        if not PV2:
            A(ls16)
        for a in range(4):
            A('v_mfma_f32_16x16x16_bf16 %s, %s, %s, %s' % (vr(O + 4 * a, 4), vr(VMR + 2 * a, 2), vr(PM, 2), vr(O + 4 * a, 4)))
            if PV2 and a == 1:
                A('v_mov_b32_dpp %s, %s row_shr:8 row_mask:0xf bank_mask:0xc' % (vr(v_l), vr(v_l)))
        if not PV2:
            A('v_rcp_f32 %s, %s' % (vr(v_l), vr(LS)))
            A('v_mov_b32_dpp %s, %s row_shr:8 row_mask:0xf bank_mask:0xc' % (vr(v_l), vr(v_l)))
        for a in range(4):
            for r in range(0, 4, 2):
                A('v_pk_mul_f32 %s, %s, %s op_sel_hi:[1,0]' % (vr(O + 4 * a + r, 2), vr(O + 4 * a + r, 2), vr(v_l, 2)))
            A('v_cvt_pk_bf16_f32 %s, %s, %s' % (vr(XY + a), vr(O + 4 * a), vr(O + 4 * a + 1)))
            A('v_cvt_pk_bf16_f32 %s, %s, %s' % (vr(XY + 4 + a), vr(O + 4 * a + 2), vr(O + 4 * a + 3)))
        A('ds_write_b128 %s, %s' % (vr(va_ow), vr(XY, 4)))
        A('ds_write_b128 %s, %s offset:128' % (vr(va_ow), vr(XY + 4, 4)))
        A('s_waitcnt lgkmcnt(0)')
        stamp(4)
        A('s_barrier')
        if HINT:
            A('buffer_store_dword %s, %s, %s, 0 offen%s' % (vr(v_junk2), vr(va_flg), sr(SRD_WS, 4), ISC))
        for k in range(8):
            A('ds_read_b128 %s, %s offset:%d' % (vr(G + 4 * k, 4), vr(va_or), k * 1024))
        def epi3(acc, va):
            return ['v_permlane32_swap_b32 %s, %s' % (vr(acc), vr(acc + 2)),
                    'v_permlane32_swap_b32 %s, %s' % (vr(acc + 1), vr(acc + 3)),
                    'v_pk_add_f32 %s, %s, %s' % (vr(acc, 2), vr(acc, 2), vr(acc + 2, 2)),
                    'v_cvt_pk_bf16_f32 %s, %s, %s' % (vr(acc), vr(acc), vr(acc + 1)),
                    'v_pk_min_u16 %s, %s, %s' % (vr(acc), vr(acc), sr(s_fffe)),
                    'buffer_store_dword %s, %s, %s, %s offen sc1' % (vr(acc), vr(va), sr(SRD_WS, 4), sr(s_ps))]
        if S3 == 2:
            D = VMR
            for k in range(8):
                A('s_waitcnt lgkmcnt(%d)' % (7 - k))
                A(smf(acc1, G + 4 * k, W2 + 8 * (2 * k)))
                if k < 2:
                    A(smf(acc2, G + 4 * k, W2 + 8 * (2 * k + 1)))
            e1 = epi3(acc1, va_pd)[:3] + ['v_cvt_pk_bf16_f32 %s, %s, %s' % (vr(D), vr(acc1), vr(acc1 + 1)),
                                          'v_pk_min_u16 %s, %s, %s' % (vr(D), vr(D), sr(s_fffe))]
            for k in range(2, 8):
                A(smf(acc2, G + 4 * k, W2 + 8 * (2 * k + 1)))
                if k >= 4:
                    for _ in range(2):
                        if e1:
                            A(e1.pop(0))
            for t_ in e1 + epi3(acc2, va_pw)[:3]:
                A(t_)
            A('v_cvt_pk_bf16_f32 %s, %s, %s' % (vr(D + 2), vr(acc2), vr(acc2 + 1)))
            A('v_pk_min_u16 %s, %s, %s' % (vr(D + 2), vr(D + 2), sr(s_fffe)))
            A('v_permlane32_swap_b32 %s, %s' % (vr(D), vr(D + 2)))
            A('v_permlane16_swap_b32 %s, %s' % (vr(D), vr(D + 1)))
            A('v_permlane16_swap_b32 %s, %s' % (vr(D + 2), vr(D + 3)))
            A('buffer_store_dwordx4 %s, %s, %s, %s offen sc1' % (vr(D, 4), vr(va_pg), sr(SRD_WS, 4), sr(s_ps)))
        elif S3:
            for k in range(8):
                A('s_waitcnt lgkmcnt(%d)' % (7 - k))
                A(smf(acc1, G + 4 * k, W2 + 8 * (2 * k)))
                if k < 2:
                    A(smf(acc2, G + 4 * k, W2 + 8 * (2 * k + 1)))
            e1 = epi3(acc1, va_pd)
            for k in range(2, 8):
                A(smf(acc2, G + 4 * k, W2 + 8 * (2 * k + 1)))
                if k >= 4:
                    for _ in range(2):
                        if e1:
                            A(e1.pop(0))
            for t_ in e1 + epi3(acc2, va_pw):
                A(t_)
        else:
            for k in range(8):
                A('s_waitcnt lgkmcnt(%d)' % (7 - k))
                A(smf(acc1, G + 4 * k, W2 + 8 * (2 * k)))
                A(smf(acc2, G + 4 * k, W2 + 8 * (2 * k + 1)))
            for t_ in epi3(acc1, va_pd) + epi3(acc2, va_pw):
                A(t_)
        stamp(5)
        kv_stuff()
        for x in side:
            A(x)
        advance()
        if NOE_SLEEP:
            A('s_sleep %d ; the next memory state needs a cross-XCD exchange first: do not poll yet' % NOE_SLEEP)
        A('s_branch ' + L_st)

    L_safe = A.uid('safe')
    A('s_cmp_lg_u32 s%d, 0' % S_MODE)
    A('s_cbranch_scc1 ' + L_safe)
    for fl in (False, True):
        if fl:
            A.label(L_safe)
        A('s_cmp_lg_u32 %s, 0' % sr(s_red))
        A('s_cbranch_scc1 ' + name + '_firstn' + ('f' if fl else ''))
        loop(True, fl)
        loop(False, fl)
        while ool:
            ool.pop(0)()
    A.label(L_lastN)
    A('s_waitcnt vmcnt(0)')
    A('s_barrier')
    A('s_cmp_lg_u32 %s, 0' % sr(s_w))
    A('s_cbranch_scc1 ' + L_fin)
    A.label(L_lastR)
    A('s_cmp_eq_u32 %s, 2' % sr(s_w))
    A('s_cbranch_scc1 ' + L_fin)
    A('buffer_load_dwordx4 %s, %s, %s, %s offen sc1' % (vr(M, 4), vr(va_rb), sr(SRD_WS, 4), sr(s_slot)))
    A('s_waitcnt vmcnt(0)')
    A('buffer_store_dwordx4 %s, %s, %s, %s offen sc1' % (vr(M, 4), vr(va_cp), sr(SRD_WS, 4), sr(s_out)))
    A.label(L_fin)
    if stamps:
        A('s_waitcnt lgkmcnt(0)')
        A('v_lshlrev_b32 %s, 4, %s' % (vr(v_t[0]), vr(v_lane)))
        A('s_lshl_b32 %s, %s, 12' % (sr(s_t2), sr(s_w)))
        A('s_add_u32 %s, %s, 65536' % (sr(s_t2), sr(s_t2)))
        A('v_add_u32 %s, %s, %s' % (vr(v_t[1]), sr(s_t2), vr(v_t[0])))
        for k in range(4):
            A('ds_read_b128 %s, %s offset:%d' % (vr(F + 4 * k, 4), vr(v_t[1]), k * 1024))
        A('s_waitcnt lgkmcnt(0)')
        for k in range(4):
            A('buffer_store_dwordx4 %s, %s, %s, %s offen offset:%d' % (vr(F + 4 * k, 4), vr(v_t[0]), sr(SRD_WS, 4), sr(s_stamp), k * 1024))
    A('s_waitcnt vmcnt(0) lgkmcnt(0)')
    A('s_barrier')
    A('s_cmp_lg_u32 %s, 0' % sr(s_w))
    A('s_cbranch_scc1 ' + L_work)
    dbgt(12)
    A('s_lshr_b32 %s, %s, 1' % (sr(s_t0), sr(s_x)))
    A('s_lshl_b32 %s, %s, 7' % (sr(s_t0), sr(s_t0)))
    A('s_add_u32 %s, %s, 0x%x' % (sr(s_t0), sr(s_t0), CTR + DBG_FIN * 128))
    A('v_mov_b32 %s, %s' % (vr(v_t[0]), sr(s_t0)))
    A('v_mov_b32 %s, 1' % vr(v_t[1]))
    A('s_mov_b64 exec, 1')
    A('buffer_atomic_add %s, %s, %s, 0 offen sc1' % (vr(v_t[1]), vr(v_t[0]), sr(SRD_WS, 4)))
    A('s_mov_b64 exec, -1')
    A('s_branch ' + L_work)
    A.label(L_exit)
    A('s_endpgm')
    A.label(L_work)
    worker(A, name)
    A.label(name + '_end')
    A('s_endpgm')
    return dict(vgpr=512, accum=256, sgpr=102)
```

```python
from asmlib import *
from layout import *
from gemm import Gemm
import struct, os
TCH = int(os.environ.get('TCH', '0'))


def f32bits(x):
    return struct.unpack('<I', struct.pack('<f', x))[0]


def mk_srd(A, dst, ptr, nbytes):
    A('s_mov_b32 %s, %s' % (sr(dst), sr(ptr)))
    A('s_and_b32 %s, %s, 0xffff' % (sr(dst + 1), sr(ptr + 1)))
    A('s_mov_b32 %s, 0x%x' % (sr(dst + 2), nbytes))
    A('s_mov_b32 %s, 0x00020000' % sr(dst + 3))


def load_ptrs(A, S):
    P = S.alloc(28, 4)
    A('s_load_dwordx16 %s, s[0:1], 0' % sr(P, 16))
    A('s_load_dwordx8 %s, s[0:1], 64' % sr(P + 16, 8))
    A('s_load_dwordx2 %s, s[0:1], 96' % sr(P + 24, 2))
    return {k: P + v // 4 for k, v in KA.items()}


def gen_qkv(A, name):
    S = Regs('s', 4, 100)
    V = Regs('v', 1, 256)
    A.raw('.p2align 8')
    A.label(name)
    L_exit = name + '_exit'
    A('s_cmp_ge_u32 s2, 480')
    A('s_cbranch_scc1 ' + L_exit)
    P = load_ptrs(A, S)
    G = Gemm(A, S, V, 4, 4)
    SRD_WS = S.alloc(4, 4)
    s_w, s_nt, s_mt, s0, s1, s2_, s_base, s_tbs, s_or = [S.alloc() for _ in range(9)]
    s_pp = S.alloc(2, 2)
    v_lane, v_l16 = V.alloc(), V.alloc()
    A('v_and_b32 %s, 63, v0' % vr(v_lane))
    A('v_lshrrev_b32 %s, 6, v0' % vr(v_l16))
    A('v_readfirstlane_b32 %s, %s' % (sr(s_w), vr(v_l16)))
    A('v_lshlrev_b32 %s, 4, %s' % (vr(v_l16), vr(v_lane)))
    A('s_and_b32 %s, s2, 7' % sr(s0))
    A('s_lshr_b32 %s, s2, 3' % sr(s1))
    A('s_and_b32 %s, %s, 7' % (sr(s_mt), sr(s1)))
    A('s_and_b32 %s, %s, 0xf8' % (sr(s_nt), sr(s1)))
    A('s_add_u32 %s, %s, %s' % (sr(s_nt), sr(s_nt), sr(s0)))
    L1 = A.uid('dec')
    A('s_cmp_lt_u32 %s, 56' % sr(s1))
    A('s_cbranch_scc1 ' + L1)
    A('s_lshr_b32 %s, %s, 1' % (sr(s_nt), sr(s0)))
    A('s_add_u32 %s, %s, 56' % (sr(s_nt), sr(s_nt)))
    A('s_and_b32 %s, %s, 1' % (sr(s0), sr(s0)))
    A('s_lshl_b32 %s, %s, 2' % (sr(s0), sr(s0)))
    A('s_add_u32 %s, %s, %s' % (sr(s_mt), sr(s_mt), sr(s0)))
    A.label(L1)
    A('s_waitcnt lgkmcnt(0)')
    mk_srd(A, SRD_WS, P['ws'], WS_BYTES)
    A('s_lshl_b32 %s, %s, 19' % (sr(G.s_xo), sr(s_mt)))
    A('s_mov_b32 %s, 128' % sr(G.s_xs))
    A('s_mov_b32 %s, 7' % sr(G.s_n))
    LB, LJ = A.uid('isB'), A.uid('join')
    A('s_cmp_ge_u32 %s, 48' % sr(s_nt))
    A('s_cbranch_scc1 ' + LB)
    A('s_lshr_b32 %s, %s, 4' % (sr(s0), sr(s_nt)))
    A('s_and_b32 %s, %s, 15' % (sr(s1), sr(s_nt)))
    A('s_cmp_eq_u32 %s, 1' % sr(s0))
    A('s_cselect_b32 %s, 1, 0' % sr(s_or))
    A('s_cselect_b64 %s, %s, %s' % (sr(s_pp, 2), sr(P['A_Wv'], 2), sr(P['A_Wk'], 2)))
    A('s_cselect_b32 %s, 0x%x, 0x%x' % (sr(s_base), VX, KX) if False else 's_mov_b32 %s, 0x%x' % (sr(s_base), KX))
    A('s_cselect_b32 %s, 0x%x, %s' % (sr(s_base), VX, sr(s_base)))
    A('s_cmp_eq_u32 %s, 2' % sr(s0))
    A('s_cselect_b64 %s, %s, %s' % (sr(s_pp, 2), sr(P['A_Wq'], 2), sr(s_pp, 2)))
    A('s_cselect_b32 %s, 0x%x, %s' % (sr(s_base), QX, sr(s_base)))
    mk_srd(A, G.SRD_W, s_pp, 1024 * 4096 * 2)
    mk_srd(A, G.SRD_X, P['A_x'], 2048 * 1024 * 2)
    A('s_lshl_b32 %s, %s, 9' % (sr(G.s_wo), sr(s1)))
    A('s_mov_b32 %s, %d' % (sr(G.s_ws), 64 * 8192))
    A('s_mov_b32 %s, %d' % (sr(s_tbs), 128 * 2048))
    A('s_mov_b32 %s, %s' % (sr(s2_), sr(s1)))
    G.setup(v_lane, s_w, (s0, s1), 'nat', 2048, 8192)
    A('s_branch ' + LJ)
    A.label(LB)
    A('s_sub_u32 %s, %s, 48' % (sr(s1), sr(s_nt)))
    A('s_lshr_b32 %s, %s, 2' % (sr(s0), sr(s1)))
    A('s_cmp_eq_u32 %s, 2' % sr(s0))
    A('s_cselect_b32 %s, 1, 0' % sr(s_or))
    A('s_lshl_b32 %s, %s, 22' % (sr(s_base), sr(s0)))
    A('s_add_u32 %s, %s, 0x%x' % (sr(s_base), sr(s_base), QB))
    mk_srd(A, G.SRD_W, P['B_wqkv'], 1024 * 3072 * 2)
    mk_srd(A, G.SRD_X, P['B_x'], 2048 * 1024 * 2)
    A('s_lshl_b32 %s, %s, 9' % (sr(G.s_wo), sr(s1)))
    A('s_mov_b32 %s, %d' % (sr(G.s_ws), 64 * 6144))
    A('s_mov_b32 %s, %d' % (sr(s_tbs), 32 * 2048))
    A('s_and_b32 %s, %s, 3' % (sr(s2_), sr(s1)))
    G.setup(v_lane, s_w, (s0, s1), 'nat', 2048, 6144)
    A.label(LJ)
    A('s_lshr_b32 %s, %s, 1' % (sr(s0), sr(s_w)))
    A('s_lshl_b32 %s, %s, 2' % (sr(s0), sr(s0)))
    A('s_lshl_b32 %s, %s, 3' % (sr(s1), sr(s_mt)))
    A('s_add_u32 %s, %s, %s' % (sr(s0), sr(s0), sr(s1)))
    A('s_mul_i32 %s, %s, %s' % (sr(s0), sr(s0), sr(s_tbs)))
    A('s_add_u32 %s, %s, %s' % (sr(s_base), sr(s_base), sr(s0)))
    A('s_and_b32 %s, %s, 1' % (sr(s0), sr(s_w)))
    A('s_lshl_b32 %s, %s, 13' % (sr(s0), sr(s0)))
    A('s_lshl_b32 %s, %s, 14' % (sr(s1), sr(s2_)))
    A('s_add_u32 %s, %s, %s' % (sr(s_base), sr(s_base), sr(s0)))
    A('s_add_u32 %s, %s, %s' % (sr(s_base), sr(s_base), sr(s1)))
    G.prologue()
    LN, LE = A.uid('orN'), A.uid('epi')
    A('s_cmp_eq_u32 %s, 1' % sr(s_or))
    A('s_cbranch_scc1 ' + LN)
    G.mainloop('T', 't')
    A('s_nop 15')
    A('s_branch ' + LE)
    A.label(LN)
    G.mainloop('N', 'n')
    A.label(LE)
    G.epi_blk(SRD_WS, v_l16, s_base, s_tbs, s0)
    A.label(L_exit)
    A('s_endpgm')
    return dict(vgpr=512, accum=256, sgpr=S.hi)


def gen_out(A, name, mb=2, nb=1, a_only=False, nst=2):
    S = Regs('s', 4, 100)
    V = Regs('v', 1, 128)
    TM, TN = 64 * mb, 64 * nb
    nM, nN = 2048 // TM, 1024 // TN
    nT = nM * nN
    A.raw('.p2align 8')
    A.label(name)
    L_exit = name + '_exit'
    A('s_cmp_ge_u32 s2, %d' % (nT if a_only else 2 * nT))
    A('s_cbranch_scc1 ' + L_exit)
    P = load_ptrs(A, S)
    G = Gemm(A, S, V, mb, nb, nst=nst)
    SRD_O = S.alloc(4, 4)
    s_w, s_nt, s_mt, s0, s1, s_id, s_base = [S.alloc() for _ in range(7)]
    v_lane, v_off = V.alloc(), V.alloc()
    A('v_and_b32 %s, 63, v0' % vr(v_lane))
    A('v_lshrrev_b32 %s, 6, v0' % vr(v_off))
    A('v_readfirstlane_b32 %s, %s' % (sr(s_w), vr(v_off)))
    A('v_and_b32 %s, 31, %s' % (vr(v_off), vr(v_lane)))
    A('v_lshlrev_b32 %s, 12, %s' % (vr(v_off), vr(v_off)))
    A('v_lshrrev_b32 %s, 5, %s' % (vr(G.t[0]), vr(v_lane)))
    A('v_lshl_add_u32 %s, %s, 4, %s' % (vr(v_off), vr(G.t[0]), vr(v_off)))
    A('s_and_b32 %s, s2, %d' % (sr(s_id), nT - 1))
    mper = nM // 8
    A('s_and_b32 %s, %s, 7' % (sr(s0), sr(s_id)))
    A('s_lshr_b32 %s, %s, 3' % (sr(s1), sr(s_id)))
    A('s_and_b32 %s, %s, %d' % (sr(s_nt), sr(s1), nN - 1))
    A('s_lshr_b32 %s, %s, %d' % (sr(s_mt), sr(s1), nN.bit_length() - 1))
    A('s_lshl_b32 %s, %s, 3' % (sr(s_mt), sr(s_mt)))
    A('s_add_u32 %s, %s, %s' % (sr(s_mt), sr(s_mt), sr(s0)))
    A('s_waitcnt lgkmcnt(0)')
    mk_srd(A, SRD_O, P['out'], 2048 * 2048 * 2)
    mk_srd(A, G.SRD_X, P['ws'], WS_BYTES)
    A('s_mov_b32 %s, 4096' % sr(G.s_xs))
    A('s_mov_b32 %s, %d' % (sr(G.s_ws), 64 * 2048))
    A('s_mul_i32 %s, %s, %d' % (sr(G.s_wo), sr(s_nt), TN * 2))
    A('s_lshr_b32 %s, %s, 1' % (sr(s0), sr(s_w)))
    A('s_mul_i32 %s, %s, %d' % (sr(s0), sr(s0), 32 * mb * 4096))
    A('s_mul_i32 %s, %s, %d' % (sr(s_base), sr(s_mt), TM * 4096))
    A('s_add_u32 %s, %s, %s' % (sr(s_base), sr(s_base), sr(s0)))
    A('s_and_b32 %s, %s, 1' % (sr(s0), sr(s_w)))
    A('s_mul_i32 %s, %s, %d' % (sr(s0), sr(s0), 64 * nb))
    A('s_add_u32 %s, %s, %s' % (sr(s_base), sr(s_base), sr(s0)))
    A('s_add_u32 %s, %s, %s' % (sr(s_base), sr(s_base), sr(G.s_wo)))
    LB, LJ = A.uid('isB'), A.uid('join')
    A('s_cmp_ge_u32 s2, %d' % nT)
    A('s_cbranch_scc1 ' + LB)
    mk_srd(A, G.SRD_W, P['A_Wo'], 4096 * 1024 * 2)
    A('s_mul_i32 %s, %s, %d' % (sr(G.s_xo), sr(s_mt), (TM // 32) * 128 * 2048))
    A('s_add_u32 %s, %s, 0x%x' % (sr(G.s_xo), sr(G.s_xo), OA))
    A('s_mov_b32 %s, %d' % (sr(G.s_n), 64 // nst - 1))
    G.setup(v_lane, s_w, (s0, s1), 'blk', 128 * 2048, 2048)
    A('s_branch ' + LJ)
    A.label(LB)
    mk_srd(A, G.SRD_W, P['B_wo'], 1024 * 1024 * 2)
    A('s_mul_i32 %s, %s, %d' % (sr(G.s_xo), sr(s_mt), (TM // 32) * 32 * 2048))
    A('s_add_u32 %s, %s, 0x%x' % (sr(G.s_xo), sr(G.s_xo), OB))
    A('s_mov_b32 %s, %d' % (sr(G.s_n), 16 // nst - 1))
    A('s_add_u32 %s, %s, 2048' % (sr(s_base), sr(s_base)))
    G.setup(v_lane, s_w, (s0, s1), 'blk', 32 * 2048, 2048)
    A.label(LJ)
    G.prologue()
    G.mainloop('T', 't')
    G.epi_out(SRD_O, v_off, s_base)
    A.label(L_exit)
    A('s_endpgm')
    nacc = 16 * mb * nb
    acc_off = (V.hi + 3) // 4 * 4
    return dict(vgpr=acc_off + nacc, accum=acc_off, sgpr=S.hi, grid=2 * nT, lds=2 * G.STG)


import attn


def gen_attn(A, name, a_only=False):
    S = Regs('s', 4, 100)
    A.raw('.p2align 8')
    A.label(name)
    L_exit = name + '_exit'
    A('s_cmp_ge_u32 s2, %d' % (512 if a_only else 1024))
    A('s_cbranch_scc1 ' + L_exit)
    p = S.alloc(2, 2)
    SRD = S.alloc(4, 4)
    s_w, s_item = S.alloc(), S.alloc()
    st = [S.alloc() for _ in range(4)]
    A('s_load_dwordx2 %s, s[0:1], 96' % sr(p, 2))
    v_lane, v_l16 = 1, 2
    A('v_and_b32 %s, 63, v0' % vr(v_lane))
    A('v_lshrrev_b32 %s, 6, v0' % vr(v_l16))
    A('v_readfirstlane_b32 %s, %s' % (sr(s_w), vr(v_l16)))
    A('v_lshlrev_b32 %s, 4, %s' % (vr(v_l16), vr(v_lane)))
    A('s_and_b32 %s, s2, 511' % sr(s_item))
    A('s_lshl_b32 %s, %s, 2' % (sr(s_item), sr(s_item)))
    A('s_add_u32 %s, %s, %s' % (sr(s_item), sr(s_item), sr(s_w)))
    A('s_waitcnt lgkmcnt(0)')
    mk_srd(A, SRD, p, WS_BYTES)
    LA = A.uid('attnA')
    h1 = 0
    if not a_only:
        A('s_cmp_ge_u32 s2, 512')
        A('s_cbranch_scc1 ' + LA)
        h1 = attn.attn_b(A, SRD, s_item, st, v_lane, v_l16, 4)
        A('s_endpgm')
    A.label(LA)
    h2 = attn.attn_a(A, SRD, s_item, st, v_lane, v_l16, 4)
    A.label(L_exit)
    A('s_endpgm')
    hi = (max(h1, h2) + 3) // 4 * 4
    return dict(vgpr=hi, accum=hi, sgpr=S.hi)


def gen_attn_tail(A, name, item0, nitems):
    S = Regs('s', 4, 100)
    A.raw('.p2align 8')
    A.label(name)
    L_exit = name + '_exit'
    A('s_cmp_ge_u32 s2, %d' % nitems)
    A('s_cbranch_scc1 ' + L_exit)
    p = S.alloc(2, 2)
    SRD = S.alloc(4, 4)
    s_item = S.alloc()
    st = [S.alloc() for _ in range(4)]
    A('s_load_dwordx2 %s, s[0:1], 96' % sr(p, 2))
    v_lane, v_l16 = 1, 2
    A('v_and_b32 %s, 63, v0' % vr(v_lane))
    A('v_lshlrev_b32 %s, 4, %s' % (vr(v_l16), vr(v_lane)))
    A('s_add_u32 %s, s2, %d' % (sr(s_item), item0))
    A('s_waitcnt lgkmcnt(0)')
    mk_srd(A, SRD, p, WS_BYTES)
    h2 = attn.attn_a(A, SRD, s_item, st, v_lane, v_l16, 4)
    A.label(L_exit)
    A('s_endpgm')
    hi = (h2 + 3) // 4 * 4
    return dict(vgpr=hi, accum=hi, sgpr=S.hi)


def out_direct(A, SRD, SRD_O, s_w, s_tb, s_nb, st, v_lane, v_l16, v_off, V0, mtiles=2, ld='', pre=None):
    V = Regs('v', V0, 256)
    s_x0, s_x1, s_wb, s0, s1 = st
    v_t = V.alloc()
    v_r = V.alloc()
    ACC = V.alloc(16 * mtiles, 4)
    NB = 4
    per = 1 + mtiles
    BUF = [V.alloc(4 * per * NB, 4) for _ in range(4)]
    A('s_lshl_b32 %s, %s, 16' % (sr(s0), sr(s_w)))
    A('s_lshl_b32 %s, %s, 18' % (sr(s_x0), sr(s_tb)))
    A('s_add_u32 %s, %s, %s' % (sr(s_x0), sr(s_x0), sr(s0)))
    A('s_add_u32 %s, %s, 0x%x' % (sr(s_x0), sr(s_x0), OA))
    A('s_add_u32 %s, %s, %d' % (sr(s_x1), sr(s_x0), 128 * 2048))
    A('s_lshl_b32 %s, %s, 18' % (sr(s_wb), sr(s_nb)))
    A('s_add_u32 %s, %s, %s' % (sr(s_wb), sr(s_wb), sr(s0)))
    A('s_add_u32 %s, %s, 0x%x' % (sr(s_wb), sr(s_wb), WOT))
    srcs = (s_wb, s_x0, s_x1)[:per]
    A('s_mov_b32 %s, 0' % sr(s1))

    def loads(b):
        A('v_add_u32 %s, %s, %s' % (vr(v_r), sr(s1), vr(v_l16)))
        A('s_add_u32 %s, %s, %d' % (sr(s1), sr(s1), NB * 1024))
        A('s_and_b32 %s, %s, 0xffff' % (sr(s1), sr(s1)))
        for kk in range(NB):
            for i, so in enumerate(srcs):
                A('buffer_load_dwordx4 %s, %s, %s, %s offen offset:%d%s' % (vr(BUF[b] + 4 * per * kk + 4 * i, 4), vr(v_r), sr(SRD, 4), sr(so), kk * 1024, ld))

    def comp(b, first):
        for kk in range(NB):
            for m in range(mtiles):
                a = vr(ACC + 16 * m, 16)
                A('v_mfma_f32_32x32x16_bf16 %s, %s, %s, %s' % (a, vr(BUF[b] + 4 * per * kk, 4), vr(BUF[b] + 4 * per * kk + 4 + 4 * m, 4), '0' if first and kk == 0 else a))
    nbat = 64 // NB
    for b in range(3):
        loads(b)
    for i in range(nbat):
        if i + 3 < nbat:
            loads((i + 3) % 4)
            A('s_waitcnt vmcnt(%d)' % (3 * per * NB))
        else:
            A('s_waitcnt vmcnt(%d)' % ((nbat - 1 - i) * per * NB))
        comp(i % 4, i == 0)
    if pre:
        pre()
    nq = 4 * mtiles
    A('s_mul_i32 %s, %s, %d' % (sr(s0), sr(s_w), nq * 1024))
    A('v_add_u32 %s, %s, %s' % (vr(v_t), sr(s0), vr(v_l16)))
    for r in range(nq):
        A('ds_write_b128 %s, %s offset:%d' % (vr(v_t), vr(ACC + 4 * r, 4), r * 1024))
    assert mtiles == 2
    A('s_lshl_b32 %s, %s, 11' % (sr(s0), sr(s_w)))
    A('v_add_u32 %s, %s, %s' % (vr(v_t), sr(s0), vr(v_l16)))
    A('s_waitcnt lgkmcnt(0)')
    A('s_barrier')
    R = BUF[0]
    for w in range(4):
        for h in range(2):
            A('ds_read_b128 %s, %s offset:%d' % (vr(R + 8 * w + 4 * h, 4), vr(v_t), w * 8192 + h * 1024))
    A('s_lshr_b32 %s, %s, 1' % (sr(s1), sr(s_w)))
    A('s_add_u32 %s, %s, %s' % (sr(s0), sr(s_tb), sr(s1)))
    A('s_lshl_b32 %s, %s, 17' % (sr(s0), sr(s0)))
    A('s_lshl_b32 %s, %s, 6' % (sr(s1), sr(s_nb)))
    A('s_add_u32 %s, %s, %s' % (sr(s0), sr(s0), sr(s1)))
    A('s_and_b32 %s, %s, 1' % (sr(s1), sr(s_w)))
    A('s_lshl_b32 %s, %s, 5' % (sr(s1), sr(s1)))
    A('s_add_u32 %s, %s, %s' % (sr(s0), sr(s0), sr(s1)))
    A('s_waitcnt lgkmcnt(0)')
    for r in range(8):
        A('v_add_f32 %s, %s, %s' % (vr(R + r), vr(R + r), vr(R + 8 + r)))
        A('v_add_f32 %s, %s, %s' % (vr(R + 16 + r), vr(R + 16 + r), vr(R + 24 + r)))
    for r in range(8):
        A('v_add_f32 %s, %s, %s' % (vr(R + r), vr(R + r), vr(R + 16 + r)))
    D = R + 32
    for r in range(4):
        A('v_cvt_pk_bf16_f32 %s, %s, %s' % (vr(D + r), vr(R + 2 * r), vr(R + 2 * r + 1)))
    A('v_permlane32_swap_b32 %s, %s' % (vr(D), vr(D + 2)))
    A('v_permlane32_swap_b32 %s, %s' % (vr(D + 1), vr(D + 3)))
    A('buffer_store_dwordx4 %s, %s, %s, %s offen' % (vr(D, 4), vr(v_off), sr(SRD_O, 4), sr(s0)))
    return V.hi


def out_direct32(A, SRD, SRD_O, s_w, s_tb, s_nb, st, v_lane, v_l16, V0, ld, pre_wait):
    V = Regs('v', V0, 256)
    s_x, s_wb, s0, s_r, s_a = st
    v_t, v_o, v_j, v_p = V.alloc(), V.alloc(), V.alloc(), V.alloc()
    ACC = V.alloc(16, 4)
    NX = 54
    XB = V.alloc(4 * NX, 4)
    A('s_lshl_b32 %s, %s, 16' % (sr(s0), sr(s_w)))
    A('s_lshl_b32 %s, %s, 18' % (sr(s_x), sr(s_tb)))
    A('s_add_u32 %s, %s, %s' % (sr(s_x), sr(s_x), sr(s0)))
    A('s_add_u32 %s, %s, 0x%x' % (sr(s_x), sr(s_x), OA))
    A('s_lshl_b32 %s, %s, 18' % (sr(s_wb), sr(s_nb)))
    A('s_add_u32 %s, %s, %s' % (sr(s_wb), sr(s_wb), sr(s0)))
    A('s_add_u32 %s, %s, 0x%x' % (sr(s_wb), sr(s_wb), WOT))
    A('s_mov_b32 %s, 0' % sr(s_r))

    def step(base):
        A('s_add_u32 %s, %s, %s' % (sr(s_a), sr(base), sr(s_r)))
        A('s_add_u32 %s, %s, 4096' % (sr(s_r), sr(s_r)))
        A('s_and_b32 %s, %s, 0xffff' % (sr(s_r), sr(s_r)))
    def tch(base):
        for i in range(8):
            A('s_add_u32 %s, %s, %d' % (sr(s_a), sr(base), i * 8192))
            A('buffer_load_dword %s, %s, %s, %s offen%s' % (vr(v_j), vr(v_p), sr(SRD, 4), sr(s_a), ld))
    A('v_lshlrev_b32 %s, 7, %s' % (vr(v_p), vr(v_lane)))
    if TCH:
        tch(s_wb)
    for kk in range(64):
        if kk & 3 == 0:
            step(s_wb)
        A('buffer_load_dwordx4 %s, %s, %s, %s offen offset:%d%s' % (ar(4 * kk, 4), vr(v_l16), sr(SRD, 4), sr(s_a), (kk & 3) * 1024, ld))
    A('v_and_b32 %s, 31, %s' % (vr(v_o), vr(v_lane)))
    A('v_lshlrev_b32 %s, 12, %s' % (vr(v_o), vr(v_o)))
    A('v_lshrrev_b32 %s, 5, %s' % (vr(v_t), vr(v_lane)))
    A('v_lshl_add_u32 %s, %s, 3, %s' % (vr(v_o), vr(v_t), vr(v_o)))
    A('s_waitcnt vmcnt(0)')
    pre_wait()

    def xl(kk):
        if kk & 3 == 0:
            step(s_x)
        A('buffer_load_dwordx4 %s, %s, %s, %s offen offset:%d%s' % (vr(XB + 4 * (kk % NX), 4), vr(v_l16), sr(SRD, 4), sr(s_a), (kk & 3) * 1024, ld))
    if TCH:
        tch(s_x)
    for kk in range(NX):
        xl(kk)
    a = vr(ACC, 16)
    issued = NX
    for kk in range(64):
        A('s_waitcnt vmcnt(%d)' % (issued - kk - 1))
        A('v_mfma_f32_32x32x16_bf16 %s, %s, %s, %s' % (a, ar(4 * kk, 4), vr(XB + 4 * (kk % NX), 4), '0' if kk == 0 else a))
        if issued < 64:
            xl(issued)
            issued += 1
    A('s_lshl_b32 %s, %s, 12' % (sr(s0), sr(s_w)))
    A('v_add_u32 %s, %s, %s' % (vr(v_t), sr(s0), vr(v_l16)))
    for r in range(4):
        A('ds_write_b128 %s, %s offset:%d' % (vr(v_t), vr(ACC + 4 * r, 4), r * 1024))
    A('s_lshl_b32 %s, %s, 10' % (sr(s0), sr(s_w)))
    A('v_add_u32 %s, %s, %s' % (vr(v_t), sr(s0), vr(v_l16)))
    A('s_waitcnt lgkmcnt(0)')
    A('s_barrier')
    R = XB
    for w in range(4):
        A('ds_read_b128 %s, %s offset:%d' % (vr(R + 4 * w, 4), vr(v_t), w * 4096))
    A('s_lshl_b32 %s, %s, 17' % (sr(s0), sr(s_tb)))
    A('s_lshl_b32 %s, %s, 6' % (sr(s_x), sr(s_nb)))
    A('s_add_u32 %s, %s, %s' % (sr(s0), sr(s0), sr(s_x)))
    A('s_lshl_b32 %s, %s, 4' % (sr(s_x), sr(s_w)))
    A('s_add_u32 %s, %s, %s' % (sr(s0), sr(s0), sr(s_x)))
    A('s_waitcnt lgkmcnt(0)')
    for r in range(0, 4, 2):
        A('v_pk_add_f32 %s, %s, %s' % (vr(R + r, 2), vr(R + r, 2), vr(R + 4 + r, 2)))
        A('v_pk_add_f32 %s, %s, %s' % (vr(R + 8 + r, 2), vr(R + 8 + r, 2), vr(R + 12 + r, 2)))
    for r in range(0, 4, 2):
        A('v_pk_add_f32 %s, %s, %s' % (vr(R + r, 2), vr(R + r, 2), vr(R + 8 + r, 2)))
    D = R + 16
    for r in range(2):
        A('v_cvt_pk_bf16_f32 %s, %s, %s' % (vr(D + r), vr(R + 2 * r), vr(R + 2 * r + 1)))
    A('buffer_store_dwordx2 %s, %s, %s, %s offen' % (vr(D, 2), vr(v_o), sr(SRD_O, 4), sr(s0)))


def place_check(A, SRD_D, v_lane, va, vb, s_cnt, lim, L_restart):
    Lw, Ld, Lb = A.uid('pcw'), A.uid('pcd'), A.uid('pcb')
    A('s_cmp_lg_u32 s%d, 0' % S_MODE)
    A('s_cbranch_scc1 ' + Ld)
    A('v_and_b32 %s, 7, %s' % (vr(va), vr(v_lane)))
    A('v_lshlrev_b32 %s, 2, %s' % (vr(va), vr(va)))
    A('s_mov_b32 %s, 0' % sr(s_cnt))
    A.label(Lw)
    A('buffer_load_dword %s, %s, %s, 0 offen sc1' % (vr(vb), vr(va), sr(SRD_D, 4)))
    A('s_add_u32 %s, %s, 1' % (sr(s_cnt), sr(s_cnt)))
    A('s_waitcnt vmcnt(0)')
    A('v_cmp_ne_u32 vcc, 32, %s' % vr(vb))
    A('s_cbranch_vccz ' + Ld)
    A('v_cmp_lt_u32 vcc, 32, %s' % vr(vb))
    A('s_cbranch_vccnz ' + Lb)
    A('s_sleep 8')
    A('s_cmp_lt_u32 %s, %d' % (sr(s_cnt), lim))
    A('s_cbranch_scc1 ' + Lw)
    A('s_branch ' + Ld)
    A.label(Lb)
    A('s_mov_b32 s%d, 1' % S_MODE)
    A('s_waitcnt vmcnt(0) lgkmcnt(0)')
    A('s_barrier')
    A('s_branch ' + L_restart)
    A.label(Ld)


def shift_ptrs(A, p_ws, p_dbg, s_tmp):
    A('s_lshl_b32 %s, s%d, 27' % (sr(s_tmp), S_MODE))
    A('s_add_u32 %s, %s, %s' % (sr(p_ws), sr(p_ws), sr(s_tmp)))
    A('s_addc_u32 %s, %s, 0' % (sr(p_ws + 1), sr(p_ws + 1)))
    A('s_lshl_b32 %s, s%d, 7' % (sr(s_tmp), S_MODE))
    A('s_add_u32 %s, %s, %s' % (sr(p_dbg), sr(p_dbg), sr(s_tmp)))
    A('s_addc_u32 %s, %s, 0' % (sr(p_dbg + 1), sr(p_dbg + 1)))
```

```python
from asmlib import *
from layout import *
from gemm import Gemm, Gemm16
from kernels import mk_srd, load_ptrs, out_direct, out_direct32, place_check, shift_ptrs
import attn
import os, json

LDS_JOB = 131072 + 64
LIM = 200000
WTOUCH = os.environ.get('WTOUCH', '')
WT_ODD = int(os.environ.get('WT_ODD', '1'))
WT2 = int(os.environ.get('WT2', '1'))
EARLY = int(os.environ.get('EARLY', '1'))
LAG = 2 if os.environ.get('OLDCHAIN') else 3
OVL = int(os.environ.get('OVL', '0'))
M16 = int(os.environ.get('M16', '1'))
PEEK = int(os.environ.get('PEEK', '0'))
WST = int(os.environ.get('WST', '0'))

BL = int(os.environ.get('BL', '0'))
SEGS = [('skv', 16, 0), ('bkv', 16, 1), ('skv', 16, 1), ('bkv', 32, 3), ('bkv', 8, 7), ('q', 16, 0), ('bq', 24, 0),
        ('aattn', 8, 0), ('q', 8, 4), ('aout', 8, 0), ('q', 8, 6), ('aattn', 8, 2), ('battn', 8, 0), ('aout', 8, 2),
        ('battn', 8, 8), ('aattn', 4, 4), ('battn', 16, 16), ('aout', 4, 4), ('aattn1', 4, 20), ('aattn1', 4, 21),
        ('wot', 16, 0), ('aoutr', 2, 10), ('aattn1', 4, 22), ('wot', 16, 16), ('aattn1', 4, 23), ('bout', 8, 0), ('aoutr', 2, 11),
        ('aattn1', 4, 24), ('aattn1', 4, 25), ('bout', 12, 8), ('aoutr', 2, 12), ('bout', 12, 20), ('aattn1', 4, 26),
        ('aattn1', 4, 27), ('aoutd', 8, 26), ('aattn1', 4, 28), ('aoutd', 8, 27), ('aattn1', 4, 29)]
ORD = os.environ.get('ORD', '2')
if ORD == '1':
    SEGS += [('aoutd', 8, 28), ('aattn1', 4, 30), ('aattn1', 4, 31), ('aoute', 16, 58), ('aoute', 16, 60), ('aoute', 16, 62)]
elif ORD == '0':
    SEGS += [('aattn1', 4, 30), ('aattn1', 4, 31), ('aoutd', 8, 28), ('aoute', 16, 58), ('aoute', 16, 60), ('aoute', 16, 62)]
elif ORD == '2':
    SEGS += [('aoutd', 8, 28), ('aattn1', 4, 30), ('aattn1', 4, 31), ('aoutd', 8, 29), ('aoute', 16, 60), ('aoute', 16, 62)]
elif ORD == '3':
    SEGS += [('aoutd', 8, 28), ('aattn1', 4, 30), ('aoutd', 8, 29), ('aattn1', 4, 31), ('aoute', 16, 62), ('aoute', 16, 60)]
elif ORD == '4':
    SEGS += [('aoutd', 8, 28), ('aattn1', 4, 30), ('aattn1', 4, 31), ('aoute', 16, 62), ('aoute', 16, 60), ('aoute', 16, 58)]
SEGS += [('bout', BL, 32 - BL)]
SEGS = [x for x in SEGS if x[1]]
_seen = set()
SEGS = [x for x in SEGS if not (x in _seen or _seen.add(x))]
if os.environ.get('SEGS'):
    SEGS = [tuple(x) for x in json.loads(os.environ['SEGS'])]


def seg_bounds():
    o, a = [], 0
    for k, n, p in SEGS:
        o.append((a, a + n, '%s%d' % (k, p)))
        a += n
    return o


def gen_worker(A, name):
    S = Regs('s', 4, 100)
    P = load_ptrs(A, S)
    SRD_WS = S.alloc(4, 4)
    SRD_D = S.alloc(4, 4)
    SRD_O = S.alloc(4, 4)
    s_w, s_q, s_qn, s_job, s_cfg, s0, s1, s2_, s3, s_base, s_tbs, s_or, s_ctr, s_inc, s_mt, s_nt, s_it, s_k, s_p = [S.alloc() for _ in range(19)]
    s_pp = S.alloc(2, 2)
    s_tm = S.alloc(2, 2)
    s_sa = S.alloc()

    def wstamp(k):
        if not WST:
            return
        A('s_memrealtime %s' % sr(s_tm, 2))
        A('s_waitcnt lgkmcnt(0)')
        A('v_mov_b32 v4, %s' % sr(s_tm))
        A('v_mov_b32 v5, %s' % sr(s_sa))
        A('s_mov_b64 exec, 1')
        A('buffer_store_dword v4, v5, %s, 0 offen offset:%d' % (sr(SRD_WS, 4), 4 * k))
        if k in (2, 3):
            A('s_memtime %s' % sr(s_tm, 2))
            A('s_waitcnt lgkmcnt(0)')
            A('v_mov_b32 v4, %s' % sr(s_tm))
            A('buffer_store_dword v4, v5, %s, 0 offen offset:%d' % (sr(SRD_WS, 4), 4 * (k + 4)))
        A('s_mov_b64 exec, -1')
    def dbgt(word):
        if not int(os.environ.get('DBGT', '0')):
            return
        Lx = A.uid('dt')
        A('s_cmp_lg_u32 %s, 0' % sr(s_w))
        A('s_cbranch_scc1 ' + Lx)
        A('s_memrealtime %s' % sr(s_tm, 2))
        A('s_waitcnt lgkmcnt(0)')
        A('v_mov_b32 v4, %s' % sr(s_tm))
        A('v_mov_b32 v5, %d' % (word * 4))
        A('s_mov_b64 exec, 1')
        A('buffer_atomic_umax v4, v5, %s, 0 offen sc1' % sr(SRD_D, 4))
        A('s_mov_b64 exec, -1')
        A.label(Lx)
    v_lane, v_l16, v_off, v_a, v_b, v_sh = 1, 2, 3, 4, 5, 6
    s_init = S.alloc()
    s_pe, p_base, p_tbs, p_ctr, p_inc = [S.alloc() for _ in range(5)]
    s_et = S.alloc()
    s_wo = S.alloc()
    s_wo2 = S.alloc()
    smark = S.mark()
    V4 = Regs('v', 8, 256)
    G4 = Gemm16(A, S, V4) if M16 else Gemm(A, S, V4, 4, 4)
    hi = S.mark()
    S.release(smark)
    V2 = Regs('v', 8, 256)
    G2 = Gemm(A, S, V2, 2, 2, xsc=' sc1', nst=4)
    assert (G2.SRD_X, G2.SRD_W, G2.s_xo, G2.s_n) == (G4.SRD_X, G4.SRD_W, G4.s_xo, G4.s_n)
    G = G4
    L_next, L_done = name + '_wnext', name + '_wdone'

    A('v_and_b32 %s, 63, v0' % vr(v_lane))
    A('v_lshrrev_b32 %s, 6, v0' % vr(v_l16))
    A('v_readfirstlane_b32 %s, %s' % (sr(s_w), vr(v_l16)))
    A('v_lshlrev_b32 %s, 4, %s' % (vr(v_l16), vr(v_lane)))
    A('v_and_b32 %s, 31, %s' % (vr(v_off), vr(v_lane)))
    A('v_lshlrev_b32 %s, 12, %s' % (vr(v_off), vr(v_off)))
    A('v_lshrrev_b32 %s, 5, %s' % (vr(v_a), vr(v_lane)))
    A('v_lshl_add_u32 %s, %s, 4, %s' % (vr(v_off), vr(v_a), vr(v_off)))
    A('s_and_b32 %s, s%d, 3' % (sr(s_q), S_VX))
    A('s_mov_b32 %s, 0' % sr(s_qn))
    A('s_mov_b32 %s, 0' % sr(s_cfg))
    A('s_mov_b32 %s, %d' % (sr(s_ctr), DBG_WT))
    A('s_waitcnt lgkmcnt(0)')
    shift_ptrs(A, P['ws'], P['dbg'], s0)
    mk_srd(A, SRD_WS, P['ws'], WS_HALF)
    mk_srd(A, SRD_D, P['dbg'], 128)
    mk_srd(A, SRD_O, P['out'], 2048 * 2048 * 2)

    A('v_and_b32 %s, 3, %s' % (vr(v_sh), vr(v_lane)))
    A('v_lshlrev_b32 %s, 7, %s' % (vr(v_sh), vr(v_sh)))
    A('v_add_u32 %s, 0x%x, %s' % (vr(v_sh), CTR, vr(v_sh)))
    A('v_mov_b32 v7, 0')
    A('s_mov_b32 %s, 0' % sr(s_init))
    A('s_mov_b32 %s, 0' % sr(s_et))
    A('s_mov_b32 %s, 0' % sr(s_pe))
    A('s_mov_b32 %s, %d' % (sr(p_ctr), DBG_WT))
    A('s_mov_b32 %s, 0' % sr(p_inc))
    v_tk = 7

    def early(nop=True):
        if not EARLY:
            return
        Le = A.uid('et')
        if nop:
            A('s_nop 11')
        A('s_cmp_eq_u32 %s, 0' % sr(s_init))
        A('s_cbranch_scc1 ' + Le)
        A('s_mov_b32 %s, 1' % sr(s_et))
        A('s_cmp_lg_u32 %s, 0' % sr(s_w))
        A('s_cbranch_scc1 ' + Le)
        A('s_lshl_b32 %s, %s, 7' % (sr(s_wo), sr(s_q)))
        A('s_add_u32 %s, %s, 0x%x' % (sr(s_wo), sr(s_wo), CTR + DBG_Q * 128))
        A('v_mov_b32 %s, %s' % (vr(v_a), sr(s_wo)))
        A('v_mov_b32 %s, 1' % vr(v_tk))
        A('s_mov_b64 exec, 1')
        A('buffer_atomic_add %s, %s, %s, 0 offen sc0 sc1' % (vr(v_tk), vr(v_a), sr(SRD_WS, 4)))
        A('s_mov_b64 exec, -1')
        A.label(Le)

    def wait_init():
        Lw, Ld = A.uid('iw'), A.uid('id')
        A('s_cmp_lg_u32 %s, 0' % sr(s_init))
        A('s_cbranch_scc1 ' + Ld)
        A('s_mov_b32 %s, 1' % sr(s_init))
        A('v_mov_b32 %s, %d' % (vr(v_a), DBG_INIT))
        A('s_mov_b32 %s, 0' % sr(s3))
        A.label(Lw)
        A('buffer_load_dword %s, %s, %s, 0 offen sc1' % (vr(v_b), vr(v_a), sr(SRD_D, 4)))
        A('s_add_u32 %s, %s, 1' % (sr(s3), sr(s3)))
        A('s_waitcnt vmcnt(0)')
        A('v_cmp_ne_u32 vcc, 0, %s' % vr(v_b))
        A('s_cbranch_vccnz ' + Ld)
        A('s_sleep 4')
        A('s_cmp_lt_u32 %s, %d' % (sr(s3), LIM))
        A('s_cbranch_scc1 ' + Lw)
        A.label(Ld)
    L_have = A.uid('havejob')
    L_got = A.uid('gotjob')
    A('s_mov_b32 %s, s3' % sr(s_job))
    SRD_T = S.alloc(4, 4)
    hi = max(hi, S.mark())

    def touch(ptrs_sizes, s_id, per_wave_log2):
        A('s_lshl_b32 %s, %s, %d' % (sr(s0), sr(s_id), per_wave_log2))
        A('v_lshlrev_b32 %s, 7, %s' % (vr(v_a), vr(v_lane)))
        for p, nbytes in ptrs_sizes:
            mk_srd(A, SRD_T, P[p], nbytes)
            for i in range(1 << (per_wave_log2 - 13)):
                A('s_add_u32 %s, %s, %d' % (sr(s1), sr(s0), i * 8192))
                A('buffer_load_dword v7, %s, %s, %s offen' % (vr(v_a), sr(SRD_T, 4), sr(s1)))
            A('s_nop 4')
    L_restart = name + '_restart'
    L_st = A.uid('static')
    A('s_cmp_lt_u32 s3, 32')
    A('s_cbranch_scc1 ' + L_st)
    place_check(A, SRD_D, v_lane, v_a, v_b, s3, LIM, L_restart)
    A('s_branch ' + L_next)
    A.label(L_st)
    A('s_branch ' + L_have)
    A.label(L_next)
    Lnf = A.uid('nofetch')
    A('s_cmp_lg_u32 %s, 0' % sr(s_w))
    A('s_cbranch_scc1 ' + Lnf)
    wait_init()
    A('s_lshl_b32 %s, %s, 7' % (sr(s0), sr(s_q)))
    A('s_add_u32 %s, %s, 0x%x' % (sr(s0), sr(s0), CTR + DBG_Q * 128))
    A('v_mov_b32 %s, %s' % (vr(v_a), sr(s0)))
    A('v_mov_b32 %s, 1' % vr(v_b))
    A('s_mov_b64 exec, 1')
    A('buffer_atomic_add %s, %s, %s, 0 offen sc0 sc1' % (vr(v_b), vr(v_a), sr(SRD_WS, 4)))
    A('s_waitcnt vmcnt(0)')
    A('v_mov_b32 %s, %d' % (vr(v_a), LDS_JOB))
    A('ds_write_b32 %s, %s' % (vr(v_a), vr(v_b)))
    A('s_waitcnt lgkmcnt(0)')
    A('s_mov_b64 exec, -1')
    A.label(Lnf)
    A('s_barrier')
    A('v_mov_b32 %s, %d' % (vr(v_a), LDS_JOB))
    A('ds_read_b32 %s, %s' % (vr(v_b), vr(v_a)))
    A('s_waitcnt lgkmcnt(0)')
    A('v_readfirstlane_b32 %s, %s' % (sr(s_job), vr(v_b)))
    A('s_barrier')
    A.label(L_got)
    A('s_mov_b32 %s, 1' % sr(s_init))
    A('s_add_u32 %s, %s, 32' % (sr(s_job), sr(s_job)))
    A.label(L_have)
    if WST:
        A('s_min_u32 %s, %s, 511' % (sr(s0), sr(s_job)))
        A('s_lshl_b32 %s, %s, 9' % (sr(s_sa), sr(s_q)))
        A('s_add_u32 %s, %s, %s' % (sr(s_sa), sr(s_sa), sr(s0)))
        A('s_lshl_b32 %s, %s, 2' % (sr(s_sa), sr(s_sa)))
        A('s_add_u32 %s, %s, %s' % (sr(s_sa), sr(s_sa), sr(s_w)))
        A('s_lshl_b32 %s, %s, 5' % (sr(s_sa), sr(s_sa)))
        A('s_add_u32 %s, %s, 0x%x' % (sr(s_sa), sr(s_sa), STAMP + 0x400000))
        wstamp(0)
    kinds = ('aoutr', 'aoutj', 'skv', 'bkv', 'bq', 'q', 'battn', 'bout', 'wot', 'aattn', 'aout', 'aattn1', 'aoutd', 'aoute', 'big', 'bigA', 'small', 'outc')
    L = {k: A.uid('job' + k) for k in kinds}
    for k, n, p in SEGS:
        A('s_mov_b32 %s, %d' % (sr(s_p), p))
        A('s_cmp_lt_u32 %s, %d' % (sr(s_job), n))
        A('s_cbranch_scc1 ' + L[k])
        A('s_sub_u32 %s, %s, %d' % (sr(s_job), sr(s_job), n))
    QLEN = sum(n for _, n, _ in SEGS)
    L_peek = name + '_wpeek'
    A.label(L_peek)
    if PEEK:
        A('s_mov_b32 %s, %d' % (sr(s0), DBG_Q * 128))
        A('buffer_load_dword %s, %s, %s, %s offen sc1' % (vr(v_b), vr(v_sh), sr(SRD_WS, 4), sr(s0)))
        A('v_lshlrev_b32 %s, 2, %s' % (vr(v_a), vr(v_lane)))
        A('v_add_u32 %s, %d, %s' % (vr(v_a), LDS_JOB + 64, vr(v_a)))
        A('s_waitcnt vmcnt(0)')
        Lp1 = A.uid('pk')
        A('s_cmp_lg_u32 %s, 0' % sr(s_w))
        A('s_cbranch_scc1 ' + Lp1)
        A('ds_write_b32 %s, %s' % (vr(v_a), vr(v_b)))
        A('s_waitcnt lgkmcnt(0)')
        A.label(Lp1)
        A('s_barrier')
        A('ds_read_b32 %s, %s' % (vr(v_b), vr(v_a)))
        A('s_waitcnt lgkmcnt(0)')
        A('s_barrier')
        for k in range(4):
            A('v_readlane_b32 %s, %s, %d' % (sr(s0), vr(v_b), k))
            A('s_mov_b32 %s, %d' % (sr(s_q), k))
            A('s_cmp_lt_u32 %s, %d' % (sr(s0), QLEN - 32))
            A('s_cbranch_scc1 ' + L_next)
    A('s_endpgm')

    def wait_ctr(s_off, thr, s_shift=None, bits=8, slp=12):
        Lw, Ld = A.uid('dw'), A.uid('dd')
        A('s_cmp_lg_u32 %s, 0' % sr(s_w))
        A('s_cbranch_scc1 ' + Ld)
        A('s_lshl_b32 %s, %s, 7' % (sr(s_wo), sr(s_off) if isinstance(s_off, int) else s_off))
        A('s_mov_b32 %s, 0' % sr(s3))
        A.label(Lw)
        A('buffer_load_dword %s, %s, %s, %s offen sc1' % (vr(v_b), vr(v_sh), sr(SRD_WS, 4), sr(s_wo)))
        A('s_add_u32 %s, %s, 1' % (sr(s3), sr(s3)))
        A('s_waitcnt vmcnt(0)')
        if s_shift is not None:
            A('v_bfe_u32 %s, %s, %s, %d' % (vr(v_b), vr(v_b), sr(s_shift), bits))
        A('v_cmp_gt_u32 vcc, %s, %s' % (thr, vr(v_b)))
        A('s_cbranch_vccz ' + Ld)
        A('s_sleep %d ; poll back-off' % slp)
        A('s_cmp_lt_u32 %s, %d' % (sr(s3), LIM))
        A('s_cbranch_scc1 ' + Lw)
        A.label(Ld)
        A('s_barrier')

    def wait2(off1, thr1, off2, thr2, s_shift=None, bits=8, slp=12):
        Lw, Ld, Ln = A.uid('dw'), A.uid('dd'), A.uid('dn')
        tx = lambda o: sr(o) if isinstance(o, int) else o
        A('s_cmp_lg_u32 %s, 0' % sr(s_w))
        A('s_cbranch_scc1 ' + Ld)
        A('s_lshl_b32 %s, %s, 7' % (sr(s_wo), tx(off1)))
        A('s_lshl_b32 %s, %s, 7' % (sr(s_wo2), tx(off2)))
        A('s_mov_b32 %s, 0' % sr(s3))
        A.label(Lw)
        A('buffer_load_dword %s, %s, %s, %s offen sc1' % (vr(v_a), vr(v_sh), sr(SRD_WS, 4), sr(s_wo)))
        A('buffer_load_dword %s, %s, %s, %s offen sc1' % (vr(v_b), vr(v_sh), sr(SRD_WS, 4), sr(s_wo2)))
        A('s_add_u32 %s, %s, 1' % (sr(s3), sr(s3)))
        A('s_waitcnt vmcnt(0)')
        if s_shift is not None:
            A('v_bfe_u32 %s, %s, %s, %d' % (vr(v_b), vr(v_b), sr(s_shift), bits))
        A('v_cmp_gt_u32 vcc, %s, %s' % (thr1, vr(v_a)))
        A('s_cbranch_vccnz ' + Ln)
        A('v_cmp_gt_u32 vcc, %s, %s' % (thr2, vr(v_b)))
        A('s_cbranch_vccz ' + Ld)
        A.label(Ln)
        A('s_sleep %d ; poll back-off' % slp)
        A('s_cmp_lt_u32 %s, %d' % (sr(s3), LIM))
        A('s_cbranch_scc1 ' + Lw)
        A.label(Ld)
        A('s_barrier')

    def cfg(Gx, cid, *args):
        Ls = A.uid('cfg')
        A('s_cmp_eq_u32 %s, %d' % (sr(s_cfg), cid))
        A('s_cbranch_scc1 ' + Ls)
        Gx.setup(v_lane, s_w, (s0, s1), *args)
        A('s_mov_b32 %s, %d' % (sr(s_cfg), cid))
        A.label(Ls)

    def blk_base(mbk, nbk):
        A('s_lshr_b32 %s, %s, 1' % (sr(s0), sr(s_w)))
        A('s_lshl_b32 %s, %s, 1' % (sr(s1), sr(s_mt)))
        A('s_add_u32 %s, %s, %s' % (sr(s0), sr(s0), sr(s1)))
        A('s_mul_i32 %s, %s, %d' % (sr(s0), sr(s0), mbk))
        A('s_mul_i32 %s, %s, %s' % (sr(s0), sr(s0), sr(s_tbs)))
        A('s_add_u32 %s, %s, %s' % (sr(s_base), sr(s_base), sr(s0)))
        A('s_and_b32 %s, %s, 1' % (sr(s0), sr(s_w)))
        A('s_lshl_b32 %s, %s, 1' % (sr(s1), sr(s_nt)))
        A('s_add_u32 %s, %s, %s' % (sr(s0), sr(s0), sr(s1)))
        A('s_mul_i32 %s, %s, %d' % (sr(s0), sr(s0), nbk * 2048))
        A('s_add_u32 %s, %s, %s' % (sr(s_base), sr(s_base), sr(s0)))

    def sel_kv(thr):
        A('s_cmp_ge_u32 %s, %d' % (sr(s_nt), thr))
        A('s_cselect_b32 %s, 1, 0' % sr(s_or))
        A('s_cselect_b64 %s, %s, %s' % (sr(s_pp, 2), sr(P['A_Wv'], 2), sr(P['A_Wk'], 2)))
        A('s_mov_b32 %s, 0x%x' % (sr(s_base), KX))
        A('s_cselect_b32 %s, 0x%x, %s' % (sr(s_base), VX, sr(s_base)))
        A('s_and_b32 %s, %s, %d' % (sr(s_nt), sr(s_nt), thr - 1))

    def ctr(base, s_idx, inc):
        A('s_lshl_b32 %s, %s, 2' % (sr(s_ctr), sr(s_idx)))
        A('s_add_u32 %s, %s, %d' % (sr(s_ctr), sr(s_ctr), base))
        A('s_mov_b32 %s, %d' % (sr(s_inc), inc))

    def nt_q(mask_bits_shift, mask):
        A('s_lshr_b32 %s, %s, %d' % (sr(s_nt), sr(s_job), mask_bits_shift))
        A('s_and_b32 %s, %s, %d' % (sr(s_nt), sr(s_nt), mask))
        A('s_lshl_b32 %s, %s, 2' % (sr(s_nt), sr(s_nt)))
        A('s_add_u32 %s, %s, %s' % (sr(s_nt), sr(s_nt), sr(s_q)))

    A.label(L['skv'])
    A('s_lshr_b32 %s, %s, 1' % (sr(s0), sr(s_p)))
    ctr(DBG_KV, s0, 1)
    A('s_mov_b32 %s, %s' % (sr(s_mt), sr(s_p)))
    nt_q(0, 15)
    sel_kv(32)
    mk_srd(A, G.SRD_W, s_pp, 1024 * 4096 * 2)
    mk_srd(A, G.SRD_X, P['A_x'], 2048 * 1024 * 2)
    A('s_lshl_b32 %s, %s, 18' % (sr(G.s_xo), sr(s_mt)))
    A('s_mov_b32 %s, 128' % sr(G.s_xs))
    A('s_lshl_b32 %s, %s, 8' % (sr(G.s_wo), sr(s_nt)))
    A('s_mov_b32 %s, %d' % (sr(G.s_ws), 64 * 8192))
    A('s_mov_b32 %s, %d' % (sr(s_tbs), 128 * 2048))
    A('s_mov_b32 %s, 3' % sr(G.s_n))
    blk_base(2, 2)
    cfg(G2, 3, 'nat', 2048, 8192)
    A('s_mov_b32 %s, 0' % sr(s_k))
    A('s_branch ' + L['small'])

    A.label(L['aout'])
    A('s_lshr_b32 %s, %s, 2' % (sr(s_mt), sr(s_job)))
    A('s_add_u32 %s, %s, %s' % (sr(s_mt), sr(s_mt), sr(s_p)))
    A('s_lshl_b32 %s, %s, 1' % (sr(s_mt), sr(s_mt)))
    A('s_lshr_b32 %s, %s, 1' % (sr(s0), sr(s_q)))
    A('s_add_u32 %s, %s, %s' % (sr(s_mt), sr(s_mt), sr(s0)))
    A('s_and_b32 %s, %s, 1' % (sr(s_nt), sr(s_q)))
    A('s_lshl_b32 %s, %s, 2' % (sr(s_nt), sr(s_nt)))
    A('s_and_b32 %s, %s, 3' % (sr(s0), sr(s_job)))
    A('s_add_u32 %s, %s, %s' % (sr(s_nt), sr(s_nt), sr(s0)))
    A('s_mov_b32 %s, 4' % sr(s_tbs))
    A('s_mov_b32 %s, 0' % sr(s_it))
    A('s_branch ' + L['aoutj'])
    A.label(L['aoutr'])
    A('s_mov_b32 %s, %s' % (sr(s_mt), sr(s_p)))
    A('s_lshl_b32 %s, %s, 1' % (sr(s_nt), sr(s_q)))
    A('s_add_u32 %s, %s, %s' % (sr(s_nt), sr(s_nt), sr(s_job)))
    A('s_mov_b32 %s, 0x2222' % sr(s_tbs))
    A('s_and_b32 %s, %s, 1' % (sr(s_it), sr(s_p)))
    A('s_lshl_b32 %s, %s, 4' % (sr(s_it), sr(s_it)))
    A.label(L['aoutj'])
    mk_srd(A, G.SRD_W, P['A_Wo'], 4096 * 1024 * 2)
    A('s_mul_i32 %s, %s, %d' % (sr(G.s_xo), sr(s_mt), 4 * 128 * 2048))
    A('s_add_u32 %s, %s, 0x%x' % (sr(G.s_xo), sr(G.s_xo), OA))
    A('s_mov_b32 %s, 15' % sr(G.s_n))
    A('s_mov_b32 %s, 0' % sr(s_base))
    A('s_mov_b32 %s, %d' % (sr(s2_), DBG_AA))
    cfg(G2, 5, 'blk', 128 * 2048, 2048)
    A('s_branch ' + L['outc'])
    A.label(L['bout'])
    A('s_add_u32 %s, %s, %s' % (sr(s_job), sr(s_job), sr(s_p)))
    A('s_lshr_b32 %s, %s, 1' % (sr(s_mt), sr(s_job)))
    nt_q(0, 1)
    mk_srd(A, G.SRD_W, P['B_wo'], 1024 * 1024 * 2)
    A('s_mul_i32 %s, %s, %d' % (sr(G.s_xo), sr(s_mt), 4 * 32 * 2048))
    A('s_add_u32 %s, %s, 0x%x' % (sr(G.s_xo), sr(G.s_xo), OB))
    A('s_mov_b32 %s, 3' % sr(G.s_n))
    A('s_mov_b32 %s, 2048' % sr(s_base))
    A('s_mov_b32 %s, %d' % (sr(s2_), DBG_BA))
    A('s_mov_b32 %s, 4' % sr(s_tbs))
    A('s_mov_b32 %s, 0' % sr(s_it))
    cfg(G2, 4, 'blk', 32 * 2048, 2048)
    A.label(L['outc'])
    mk_srd(A, G.SRD_X, P['ws'], WS_HALF)
    A('s_mov_b32 %s, 4096' % sr(G.s_xs))
    A('s_lshl_b32 %s, %s, 8' % (sr(G.s_wo), sr(s_nt)))
    A('s_mov_b32 %s, %d' % (sr(G.s_ws), 64 * 2048))
    A('s_mov_b32 %s, 0' % sr(s_or))
    A('s_mov_b32 %s, 0' % sr(s_inc))
    A('s_lshr_b32 %s, %s, 1' % (sr(s0), sr(s_w)))
    A('s_lshl_b32 %s, %s, 18' % (sr(s0), sr(s0)))
    A('s_add_u32 %s, %s, %s' % (sr(s_base), sr(s_base), sr(s0)))
    A('s_lshl_b32 %s, %s, 19' % (sr(s0), sr(s_mt)))
    A('s_add_u32 %s, %s, %s' % (sr(s_base), sr(s_base), sr(s0)))
    A('s_and_b32 %s, %s, 1' % (sr(s0), sr(s_w)))
    A('s_lshl_b32 %s, %s, 7' % (sr(s0), sr(s0)))
    A('s_add_u32 %s, %s, %s' % (sr(s_base), sr(s_base), sr(s0)))
    A('s_add_u32 %s, %s, %s' % (sr(s_base), sr(s_base), sr(G.s_wo)))
    A('s_lshr_b32 %s, %s, 1' % (sr(s0), sr(s_mt)))
    A('s_lshl_b32 %s, %s, 2' % (sr(s0), sr(s0)))
    A('s_add_u32 %s, %s, %s' % (sr(s0), sr(s0), sr(s2_)))
    wait_ctr(s0, sr(s_tbs), s_it, bits=16)
    A('s_mov_b32 %s, 1' % sr(s_k))
    A.label(L['small'])
    wstamp(1)
    G2.prologue()
    wstamp(2)
    LN, LE, LO = A.uid('sN'), A.uid('sE'), A.uid('sO')
    A('s_cmp_eq_u32 %s, 1' % sr(s_or))
    A('s_cbranch_scc1 ' + LN)
    G2.mainloop('T', 'st')
    A('s_nop 15')
    A('s_cmp_eq_u32 %s, 1' % sr(s_k))
    A('s_cbranch_scc1 ' + LO)
    A('s_branch ' + LE)
    A.label(LN)
    G2.mainloop('N', 'sn')
    A.label(LE)
    wstamp(3)
    early()
    G2.epi_blk(SRD_WS, v_l16, s_base, s_tbs, s0, ' sc1')
    A('s_branch ' + L_done)
    A.label(LO)
    wstamp(3)
    early()
    G2.epi_out(SRD_O, v_off, s_base)
    A('s_branch ' + L_done)

    A.label(L['wot'])
    A('s_add_u32 %s, %s, %s' % (sr(s_job), sr(s_job), sr(s_p)))
    nt_q(0, 1)
    A('s_lshr_b32 %s, %s, 1' % (sr(s_mt), sr(s_job)))
    mk_srd(A, G.SRD_W, P['A_Wo'], 4096 * 1024 * 2)
    cfg(G2, 5, 'blk', 128 * 2048, 2048)
    A('s_lshl_b32 %s, %s, 8' % (sr(G.s_wo), sr(s_nt)))
    A('s_lshl_b32 %s, %s, 19' % (sr(s0), sr(s_mt)))
    A('s_add_u32 %s, %s, %s' % (sr(G.s_wo), sr(G.s_wo), sr(s0)))
    A('s_mov_b32 %s, 1' % sr(s_inc))
    A('s_mov_b32 %s, %d' % (sr(s_ctr), DBG_WT))
    wstamp(1)
    for st in range(4):
        for g in G2.dma_ops(st)[G2.nX:]:
            for t in g:
                A(t)
        A('s_add_u32 %s, %s, %d' % (sr(G.s_wo), sr(G.s_wo), 64 * 2048))
    A('s_and_b32 %s, %s, 1' % (sr(s0), sr(s_w)))
    A('s_lshl_b32 %s, %s, 1' % (sr(s0), sr(s0)))
    A('s_lshl_b32 %s, %s, 2' % (sr(s1), sr(s_nt)))
    A('s_add_u32 %s, %s, %s' % (sr(s0), sr(s0), sr(s1)))
    A('s_lshl_b32 %s, %s, 18' % (sr(s_base), sr(s0)))
    A('s_lshl_b32 %s, %s, 14' % (sr(s0), sr(s_mt)))
    A('s_add_u32 %s, %s, %s' % (sr(s_base), sr(s_base), sr(s0)))
    A('s_lshr_b32 %s, %s, 1' % (sr(s0), sr(s_w)))
    A('s_lshl_b32 %s, %s, 13' % (sr(s1), sr(s0)))
    A('s_add_u32 %s, %s, %s' % (sr(s_base), sr(s_base), sr(s1)))
    A('s_add_u32 %s, %s, 0x%x' % (sr(s_base), sr(s_base), WOT))
    A('s_mul_i32 %s, %s, %d' % (sr(s0), sr(s0), 2 * G2.STG))
    T = V2.alloc(64, 4)
    ta = [V2.alloc() for _ in range(4)]
    for i in range(2):
        for q in range(2):
            A('v_add_u32 %s, %s, %s' % (vr(ta[2 * i + q]), sr(s0), vr(G2.rw[0][i][q])))
    early()
    A('s_waitcnt vmcnt(0)')
    A('s_barrier')
    for i in range(2):
        for st in range(2):
            for ks in range(4):
                d = T + 4 * ((i * 2 + st) * 4 + ks)
                for q in range(2):
                    A('ds_read_b64_tr_b16 %s, %s offset:%d' % (vr(d + 2 * q, 2), vr(ta[2 * i + q]), st * G2.STG + ks * 16 * G2.wrow))
            A('s_waitcnt lgkmcnt(0)')
    for i in range(2):
        for st in range(2):
            A('s_add_u32 %s, %s, %d' % (sr(s0), sr(s_base), i * 262144 + st * 4096))
            for ks in range(4):
                d = T + 4 * ((i * 2 + st) * 4 + ks)
                A('buffer_store_dwordx4 %s, %s, %s, %s offen offset:%d' % (vr(d, 4), vr(v_l16), sr(SRD_WS, 4), sr(s0), ks * 1024) + ' sc1')
    A('s_branch ' + L_done)

    def wid16():
        A('s_lshl_b32 %s, %s, 4' % (sr(s0), sr(s_q)))
        A('s_add_u32 %s, %s, %s' % (sr(s2_), sr(s_job), sr(s0)))
        A('s_lshl_b32 %s, %s, 2' % (sr(s2_), sr(s2_)))
        A('s_add_u32 %s, %s, %s' % (sr(s2_), sr(s2_), sr(s_w)))
    A.label(L['bkv'])
    if WT2:
        Lnt = A.uid('nt2')
        A('s_cmp_lg_u32 %s, 1' % sr(s_p))
        A('s_cbranch_scc1 ' + Lnt)
        wid16()
        if WTOUCH:
            touch([(k, 8 << 20) for k in WTOUCH.split(',')], s2_, 15)
        touch([('A_x', 4 << 20)], s2_, 14)
        A.label(Lnt)
    A('s_lshl_b32 %s, %s, 5' % (sr(s0), sr(s_q)))
    A('s_add_u32 %s, %s, %s' % (sr(s_k), sr(s_job), sr(s0)))
    A('s_lshl_b32 %s, %s, 2' % (sr(s_k), sr(s_k)))
    A('s_add_u32 %s, %s, %s' % (sr(s_k), sr(s_k), sr(s_w)))
    A('s_cmp_eq_u32 %s, %d' % (sr(s_p), int(os.environ.get('T3P', '3'))))
    A('s_cselect_b32 %s, %s, -1' % (sr(s_k), sr(s_k)))
    A('s_lshr_b32 %s, %s, 3' % (sr(s_mt), sr(s_job)))
    A('s_add_u32 %s, %s, %s' % (sr(s_mt), sr(s_mt), sr(s_p)))
    nt_q(0, 7)
    sel_kv(16)
    ctr(DBG_KV, s_mt, 4)
    A('s_branch ' + L['bigA'])
    A.label(L['q'])
    A('s_mov_b32 %s, -1' % sr(s_k))
    A('s_lshr_b32 %s, %s, 2' % (sr(s_mt), sr(s_job)))
    A('s_add_u32 %s, %s, %s' % (sr(s_mt), sr(s_mt), sr(s_p)))
    nt_q(0, 3)
    A('s_mov_b64 %s, %s' % (sr(s_pp, 2), sr(P['A_Wq'], 2)))
    A('s_mov_b32 %s, 0x%x' % (sr(s_base), QX))
    A('s_mov_b32 %s, 0' % sr(s_or))
    ctr(DBG_QR, s_mt, 1)
    A.label(L['bigA'])
    mk_srd(A, G.SRD_W, s_pp, 1024 * 4096 * 2)
    mk_srd(A, G.SRD_X, P['A_x'], 2048 * 1024 * 2)
    A('s_lshl_b32 %s, %s, 9' % (sr(G.s_wo), sr(s_nt)))
    A('s_mov_b32 %s, %d' % (sr(G.s_ws), 64 * 8192))
    A('s_mov_b32 %s, %d' % (sr(s_tbs), 128 * 2048))
    cfg(G4, 1, 'nat', 2048, 8192)
    A('s_branch ' + L['big'])
    A.label(L['bq'])
    A('s_add_u32 %s, %s, %s' % (sr(s_job), sr(s_job), sr(s_p)))
    A('s_mov_b32 %s, -1' % sr(s_k))
    A('s_mul_i32 %s, %s, 43' % (sr(s_mt), sr(s_job)))
    A('s_lshr_b32 %s, %s, 7' % (sr(s_mt), sr(s_mt)))
    A('s_mul_i32 %s, %s, 3' % (sr(s0), sr(s_mt)))
    A('s_sub_u32 %s, %s, %s' % (sr(s0), sr(s_job), sr(s0)))
    A('s_cmp_eq_u32 %s, 2' % sr(s0))
    A('s_cselect_b32 %s, 1, 0' % sr(s_or))
    A('s_lshl_b32 %s, %s, 22' % (sr(s_base), sr(s0)))
    A('s_add_u32 %s, %s, 0x%x' % (sr(s_base), sr(s_base), QB))
    A('s_lshl_b32 %s, %s, 2' % (sr(s0), sr(s0)))
    A('s_add_u32 %s, %s, %s' % (sr(s0), sr(s0), sr(s_q)))
    A('s_lshl_b32 %s, %s, 9' % (sr(G.s_wo), sr(s0)))
    A('s_mov_b32 %s, %s' % (sr(s_nt), sr(s_q)))
    mk_srd(A, G.SRD_W, P['B_wqkv'], 1024 * 3072 * 2)
    mk_srd(A, G.SRD_X, P['B_x'], 2048 * 1024 * 2)
    A('s_mov_b32 %s, %d' % (sr(G.s_ws), 64 * 6144))
    A('s_mov_b32 %s, %d' % (sr(s_tbs), 32 * 2048))
    ctr(DBG_BQ, s_mt, 1)
    cfg(G4, 2, 'nat', 2048, 6144)
    A.label(L['big'])
    A('s_lshl_b32 %s, %s, 19' % (sr(G.s_xo), sr(s_mt)))
    A('s_mov_b32 %s, 128' % sr(G.s_xs))
    A('s_mov_b32 %s, 7' % sr(G.s_n))
    blk_base(4, 4)
    wstamp(1)
    G4.prologue_issue()
    if OVL:
        Lpe, Lpj = A.uid('pe'), A.uid('pj')
        A('s_cmp_lg_u32 %s, 0' % sr(s_pe))
        A('s_cbranch_scc1 ' + Lpe)
        A('s_waitcnt vmcnt(16)')
        A('s_branch ' + Lpj)
        A.label(Lpe)
        G4.epi_blk(SRD_WS, v_l16, p_base, p_tbs, s0, ' sc1')
        A('s_waitcnt vmcnt(48)')
        A.label(Lpj)
    else:
        A('s_waitcnt vmcnt(16)')
    G4.prologue_finish()
    wstamp(2)

    def sig_prev():
        Ls = A.uid('sp')
        A('s_cmp_eq_u32 %s, 0' % sr(s_pe))
        A('s_cbranch_scc1 ' + Ls)
        A('s_mov_b32 %s, 0' % sr(s_pe))
        A('s_cmp_lg_u32 %s, 0' % sr(s_w))
        A('s_cbranch_scc1 ' + Ls)
        A('s_add_u32 %s, %s, %s' % (sr(s0), sr(p_ctr), sr(s_q)))
        A('s_lshl_b32 %s, %s, 7' % (sr(s0), sr(s0)))
        A('s_add_u32 %s, %s, 0x%x' % (sr(s0), sr(s0), CTR))
        A('v_mov_b32 %s, %s' % (vr(v_a), sr(s0)))
        A('v_mov_b32 %s, %s' % (vr(v_b), sr(p_inc)))
        A('s_mov_b64 exec, 1')
        A('buffer_atomic_add %s, %s, %s, 0 offen sc1' % (vr(v_b), vr(v_a), sr(SRD_WS, 4)))
        A('s_mov_b64 exec, -1')
        A.label(Ls)
    ht = (lambda: early(False)) if OVL else None
    Lnt3 = A.uid('nt3')
    A('s_cmp_eq_u32 %s, -1' % sr(s_k))
    A('s_cbranch_scc1 ' + Lnt3)
    touch([('B_x', 4 << 20), ('B_wo', 2 << 20)], s_k, 13)
    touch([('B_wqkv', 6 << 20)], s_k, 14)
    A.label(Lnt3)
    LN, LE = A.uid('bN'), A.uid('bE')
    A('s_cmp_eq_u32 %s, 1' % sr(s_or))
    A('s_cbranch_scc1 ' + LN)
    G4.mainloop('T', 'bt', sig_prev if OVL else None, ht)
    A('s_nop 15')
    A('s_branch ' + LE)
    A.label(LN)
    G4.mainloop('N', 'bn', sig_prev if OVL else None, ht)
    A.label(LE)
    wstamp(3)
    if OVL:
        Lno, Lw1, Lyes = A.uid('no'), A.uid('w1'), A.uid('yes')
        A('s_nop 11')
        A('s_cmp_eq_u32 %s, 0' % sr(s_et))
        A('s_cbranch_scc1 ' + Lno)
        A('v_mov_b32 %s, %d' % (vr(v_a), LDS_JOB))
        A('s_cmp_lg_u32 %s, 0' % sr(s_w))
        A('s_cbranch_scc1 ' + Lw1)
        A('s_mov_b64 exec, 1')
        A('ds_write_b32 %s, %s' % (vr(v_a), vr(v_tk)))
        A('s_mov_b64 exec, -1')
        A('s_waitcnt lgkmcnt(0)')
        A.label(Lw1)
        A('s_barrier')
        A('ds_read_b32 %s, %s' % (vr(v_b), vr(v_a)))
        A('s_waitcnt lgkmcnt(0)')
        A('v_readfirstlane_b32 %s, %s' % (sr(s1), vr(v_b)))
        A('s_barrier')
        rng, a0 = [], 0
        for k_, n_, p_ in SEGS:
            if k_ in ('bkv', 'q', 'bq'):
                if rng and rng[-1][1] == a0:
                    rng[-1][1] = a0 + n_
                else:
                    rng.append([a0, a0 + n_])
            a0 += n_
        for lo, hi_ in rng:
            if hi_ <= 32:
                continue
            A('s_sub_u32 %s, %s, %d' % (sr(s0), sr(s1), lo - 32))
            A('s_cmp_lt_u32 %s, %d' % (sr(s0), hi_ - lo))
            A('s_cbranch_scc1 ' + Lyes)
        A('s_branch ' + Lno)
        A.label(Lyes)
        wstamp(4)
        wstamp(5)
        A('s_mov_b32 %s, %s' % (sr(p_base), sr(s_base)))
        A('s_mov_b32 %s, %s' % (sr(p_tbs), sr(s_tbs)))
        A('s_mov_b32 %s, %s' % (sr(p_ctr), sr(s_ctr)))
        A('s_mov_b32 %s, %s' % (sr(p_inc), sr(s_inc)))
        A('s_mov_b32 %s, 1' % sr(s_pe))
        A('s_mov_b32 %s, 0' % sr(s_et))
        A('s_mov_b32 %s, %s' % (sr(s_job), sr(s1)))
        A('s_branch ' + L_got)
        A.label(Lno)
    else:
        early()
    G4.epi_blk(SRD_WS, v_l16, s_base, s_tbs, s0, ' sc1')
    A('s_branch ' + L_done)

    def attn_items():
        A('s_mov_b32 %s, 0' % sr(s_cfg))
        A('s_and_b32 %s, %s, 3' % (sr(s0), sr(s_job)))
        A('s_lshl_b32 %s, %s, 2' % (sr(s1), sr(s_q)))
        A('s_add_u32 %s, %s, %s' % (sr(s0), sr(s0), sr(s1)))
        A('s_lshl_b32 %s, %s, 1' % (sr(s0), sr(s0)))
        A('s_and_b32 %s, %s, 1' % (sr(s1), sr(s_w)))
        A('s_add_u32 %s, %s, %s' % (sr(s_it), sr(s0), sr(s1)))
        A('s_lshl_b32 %s, %s, 8' % (sr(s0), sr(s_mt)))
        A('s_add_u32 %s, %s, %s' % (sr(s_it), sr(s_it), sr(s0)))
        A('s_lshr_b32 %s, %s, 1' % (sr(s0), sr(s_w)))
        A('s_lshl_b32 %s, %s, 7' % (sr(s0), sr(s0)))
        A('s_add_u32 %s, %s, %s' % (sr(s_it), sr(s_it), sr(s0)))
        A('s_mov_b32 %s, 4' % sr(s_k))
        wstamp(1)

    def attn_loop(fn, tag):
        Lb = A.uid(tag)
        A.label(Lb)
        fn(A, SRD_WS, s_it, (s0, s1, s2_, s3), v_lane, v_l16, 8, ld=' sc1', stf=' sc1')
        A('s_add_u32 %s, %s, 32' % (sr(s_it), sr(s_it)))
        A('s_sub_u32 %s, %s, 1' % (sr(s_k), sr(s_k)))
        A('s_cmp_lg_u32 %s, 0' % sr(s_k))
        A('s_waitcnt vmcnt(0)')
        A('s_cbranch_scc1 ' + Lb)

    A.label(L['aattn'])
    A('s_lshr_b32 %s, %s, 2' % (sr(s_mt), sr(s_job)))
    A('s_add_u32 %s, %s, %s' % (sr(s_mt), sr(s_mt), sr(s_p)))
    A('s_lshl_b32 %s, %s, 2' % (sr(s_ctr), sr(s_mt)))
    A('s_add_u32 %s, %s, %d' % (sr(s0), sr(s_ctr), DBG_QR))
    A('s_lshl_b32 %s, %s, 3' % (sr(s1), sr(s_mt)))
    A('s_add_u32 %s, %s, %d' % (sr(s1), sr(s1), 7 + LAG))
    wait2(s0, 4, str(DBG_PROG), sr(s1))
    ctr(DBG_AA, s_mt, 1)
    attn_items()
    attn.attn_a_n(A, SRD_WS, s_it, (s0, s1, s2_, s3), v_lane, v_l16, 8, 4, ld=' sc1', stf=' sc1', late=early)
    A('s_branch ' + L_done)

    A.label(L['aattn1'])
    A('s_lshr_b32 %s, %s, 2' % (sr(s_mt), sr(s_p)))
    A('s_lshl_b32 %s, %s, 2' % (sr(s_ctr), sr(s_mt)))
    A('s_lshl_b32 %s, %s, 1' % (sr(s_it), sr(s_p)))
    A('s_lshr_b32 %s, %s, 1' % (sr(s0), sr(s_job)))
    A('s_add_u32 %s, %s, %s' % (sr(s_it), sr(s_it), sr(s0)))
    A('s_add_u32 %s, %s, %d' % (sr(s_tbs), sr(s_it), LAG))
    A('s_mov_b32 %s, %d' % (sr(s_base), DBG_PROG))
    A('s_cmp_gt_u32 %s, 60' % sr(s_it))
    A('s_cselect_b32 %s, 32, %s' % (sr(s_tbs), sr(s_tbs)))
    A('s_cselect_b32 %s, %d, %s' % (sr(s_base), DBG_FIN, sr(s_base)))
    A('s_add_u32 %s, %s, %d' % (sr(s0), sr(s_ctr), DBG_KV))
    A('s_add_u32 %s, %s, %d' % (sr(s1), sr(s_ctr), DBG_QR))
    wait2(s0, 32, s1, 4)
    A('s_add_u32 %s, %s, %d' % (sr(s_ctr), sr(s_ctr), DBG_AA))
    A('s_and_b32 %s, %s, 7' % (sr(s0), sr(s_it)))
    A('s_lshl_b32 %s, %s, 2' % (sr(s0), sr(s0)))
    A('s_lshl_b32 %s, 1, %s' % (sr(s_inc), sr(s0)))
    A('s_lshl_b32 %s, %s, 5' % (sr(s_it), sr(s_it)))
    A('s_lshl_b32 %s, %s, 3' % (sr(s0), sr(s_q)))
    A('s_add_u32 %s, %s, %s' % (sr(s_it), sr(s_it), sr(s0)))
    A('s_and_b32 %s, %s, 1' % (sr(s0), sr(s_job)))
    A('s_lshl_b32 %s, %s, 2' % (sr(s0), sr(s0)))
    A('s_add_u32 %s, %s, %s' % (sr(s_it), sr(s_it), sr(s0)))
    A('s_add_u32 %s, %s, %s' % (sr(s_it), sr(s_it), sr(s_w)))
    A('s_mov_b32 %s, 0' % sr(s_cfg))

    def pw1():
        wait_ctr(s_base, sr(s_tbs), slp=4)
        wstamp(1)
        early()
    attn.attn_a(A, SRD_WS, s_it, (s0, s1, s2_, s3), v_lane, v_l16, 8, ld=' sc1', stf=' sc1', pre_wait=pw1)
    A('s_branch ' + L_done)

    A.label(L['aoute'])
    wait_ctr(str(DBG_WT), 32)
    A('s_lshr_b32 %s, %s, 3' % (sr(s_mt), sr(s_job)))
    A('s_add_u32 %s, %s, %s' % (sr(s_mt), sr(s_mt), sr(s_p)))
    A('s_lshl_b32 %s, %s, 3' % (sr(s_nt), sr(s_q)))
    A('s_and_b32 %s, %s, 7' % (sr(s0), sr(s_job)))
    A('s_add_u32 %s, %s, %s' % (sr(s_nt), sr(s_nt), sr(s0)))
    A('s_mov_b32 %s, 0' % sr(s_inc))
    A('s_mov_b32 %s, 0' % sr(s_cfg))

    def pw2():
        A('s_lshr_b32 %s, %s, 3' % (sr(s0), sr(s_mt)))
        A('s_lshl_b32 %s, %s, 2' % (sr(s0), sr(s0)))
        A('s_add_u32 %s, %s, %d' % (sr(s0), sr(s0), DBG_AA))
        A('s_and_b32 %s, %s, 7' % (sr(s1), sr(s_mt)))
        A('s_lshl_b32 %s, %s, 2' % (sr(s1), sr(s1)))
        wait_ctr(s0, 2, s1, bits=4, slp=4)
        wstamp(1)
        early()
    out_direct32(A, SRD_WS, SRD_O, s_w, s_mt, s_nt, (s_base, s_tbs, s0, s_it, s_k), v_lane, v_l16, 8, ' sc1', pw2)
    A('s_branch ' + L_done)

    A.label(L['aoutd'])
    A('s_lshr_b32 %s, %s, 2' % (sr(s0), sr(s_p)))
    A('s_lshl_b32 %s, %s, 2' % (sr(s0), sr(s0)))
    A('s_add_u32 %s, %s, %d' % (sr(s0), sr(s0), DBG_AA))
    A('s_and_b32 %s, %s, 3' % (sr(s1), sr(s_p)))
    A('s_lshl_b32 %s, %s, 3' % (sr(s1), sr(s1)))
    wait2(str(DBG_WT), 32, s0, '0x22', s1)
    A('s_lshl_b32 %s, %s, 1' % (sr(s_mt), sr(s_p)))
    A('s_lshl_b32 %s, %s, 3' % (sr(s_nt), sr(s_q)))
    A('s_add_u32 %s, %s, %s' % (sr(s_nt), sr(s_nt), sr(s_job)))
    A('s_mov_b32 %s, 0' % sr(s_inc))
    A('s_mov_b32 %s, 0' % sr(s_cfg))
    wstamp(1)
    out_direct(A, SRD_WS, SRD_O, s_w, s_mt, s_nt, (s_base, s_tbs, s_it, s0, s1), v_lane, v_l16, v_off, 8, ld=' sc1', pre=early)
    A('s_branch ' + L_done)

    A.label(L['battn'])
    A('s_add_u32 %s, %s, %s' % (sr(s_job), sr(s_job), sr(s_p)))
    A('s_lshr_b32 %s, %s, 2' % (sr(s_mt), sr(s_job)))
    A('s_lshl_b32 %s, %s, 2' % (sr(s_ctr), sr(s_mt)))
    A('s_add_u32 %s, %s, %d' % (sr(s1), sr(s_ctr), DBG_BQ))
    A('s_add_u32 %s, %s, %d' % (sr(s0), sr(s_ctr), DBG_BQ - 4))
    A('s_max_u32 %s, %s, %d' % (sr(s0), sr(s0), DBG_BQ))
    wait2(s0, 3, s1, 3)
    ctr(DBG_BA, s_mt, 1)
    attn_items()
    attn.attn_b4(A, SRD_WS, s_it, (s0, s1, s2_, s3), v_lane, v_l16, 8, ld=' sc1', stf=' sc1', late=early)

    A.label(L_done)
    wstamp(4)
    Lq0 = A.uid('q0')
    A('s_cmp_lg_u32 %s, 0' % sr(s_init))
    A('s_cbranch_scc1 ' + Lq0)
    A('v_cmp_gt_u32 vcc, 8, %s' % vr(v_lane))
    A('v_lshlrev_b32 %s, 2, %s' % (vr(v_a), vr(v_lane)))
    A('v_mov_b32 %s, %d' % (vr(v_b), DBG_INIT))
    A('v_cndmask_b32 %s, %s, %s, vcc' % (vr(v_a), vr(v_b), vr(v_a)))
    A('buffer_load_dword %s, %s, %s, 0 offen sc1' % (vr(v_b), vr(v_a), sr(SRD_D, 4)))
    A('v_cndmask_b32 %s, 1, 32, vcc' % vr(v_a))
    A('s_waitcnt vmcnt(0)')
    A('v_cmp_ne_u32 vcc, %s, %s' % (vr(v_a), vr(v_b)))
    A('s_cbranch_vccnz ' + Lq0)
    A('s_mov_b32 %s, 1' % sr(s_init))
    A.label(Lq0)
    A('s_waitcnt vmcnt(0)')
    wstamp(5)
    dbgt(14)
    Ld1, Ld2, Lsig = A.uid('d1'), A.uid('d2'), A.uid('sig')
    A('v_mov_b32 %s, %d' % (vr(v_a), LDS_JOB))
    A('s_cmp_lg_u32 %s, 0' % sr(s_w))
    A('s_cbranch_scc1 ' + Ld1)
    A('s_mov_b64 exec, 1')
    A('ds_write_b32 %s, %s' % (vr(v_a), vr(v_tk)))
    A('s_mov_b64 exec, -1')
    A('s_waitcnt lgkmcnt(0)')
    A.label(Ld1)
    A('s_barrier')
    Lck = A.uid('ck')
    A('s_cmp_lg_u32 %s, 0' % sr(s_init))
    A('s_cbranch_scc1 ' + Lck)
    place_check(A, SRD_D, v_lane, v_a, v_b, s3, LIM, L_restart)
    A.label(Lck)
    A('s_cmp_lg_u32 %s, 0' % sr(s_w))
    A('s_cbranch_scc1 ' + Ld2)
    A('s_cmp_lg_u32 %s, 0' % sr(s_inc))
    A('s_cbranch_scc1 ' + Lsig)
    A.label(Ld2)
    A('s_cmp_eq_u32 %s, 0' % sr(s_et))
    A('s_cbranch_scc1 ' + L_next)
    A('s_mov_b32 %s, 0' % sr(s_et))
    A('v_mov_b32 %s, %d' % (vr(v_a), LDS_JOB))
    A('ds_read_b32 %s, %s' % (vr(v_b), vr(v_a)))
    A('s_waitcnt lgkmcnt(0)')
    A('v_readfirstlane_b32 %s, %s' % (sr(s_job), vr(v_b)))
    A('s_barrier')
    A('s_branch ' + L_got)
    A.label(Lsig)
    wait_init()
    A('s_add_u32 %s, %s, %s' % (sr(s0), sr(s_ctr), sr(s_q)))
    A('s_lshl_b32 %s, %s, 7' % (sr(s0), sr(s0)))
    A('s_add_u32 %s, %s, 0x%x' % (sr(s0), sr(s0), CTR))
    A('v_mov_b32 %s, %s' % (vr(v_a), sr(s0)))
    A('v_mov_b32 %s, %s' % (vr(v_b), sr(s_inc)))
    A('s_mov_b64 exec, 1')
    A('buffer_atomic_add %s, %s, %s, 0 offen sc1' % (vr(v_b), vr(v_a), sr(SRD_WS, 4)))
    Lk0 = A.uid('k0')
    A('s_cmp_lg_u32 %s, %d' % (sr(s_ctr), DBG_KV))
    A('s_cbranch_scc1 ' + Lk0)
    A('s_cmp_lg_u32 %s, 0' % sr(s_mt))
    A('s_cbranch_scc1 ' + Lk0)
    A('v_add_u32 %s, %d, %s' % (vr(v_a), (DBG_KV0 - DBG_KV) * 128, vr(v_a)))
    A('v_mov_b32 %s, 2' % vr(v_b))
    A('buffer_atomic_add %s, %s, %s, 0 offen sc1' % (vr(v_b), vr(v_a), sr(SRD_WS, 4)))
    A.label(Lk0)
    A('s_mov_b64 exec, -1')
    A('s_branch ' + Ld2)
    return hi
```

```python
import sys
from asmlib import *
from layout import *
import chain
import chain2
import os
import kernels
import worker

HEADER = open('concat_heads__memory_aug_recurrent_mem_tr__sliding_block__prompt.s.ref').read().split('; Override launch')[0]


DESC = """; One persistent launch, one workgroup per CU (generated by the author's own Python scripts).
"""


def build(kernels, launches):
    A = Asm()
    infos = {}
    for name, fn in kernels:
        A.raw('.globl %s' % name)
        A.raw('.type %s,@function' % name)
        infos[name] = fn(A, name)
    out = HEADER
    out += DESC
    for name, grid, block, lds in launches:
        out += '; @launch kernel=%s grid=(%d,1,1) block=(%d,1,1) lds=%d\n' % (name, grid, block, lds)
    out += '.amdgcn_target "amdgcn-amd-amdhsa--gfx950"\n.text\n'
    out += A.text()
    out += '.section .rodata,"a"\n'
    for name, _ in kernels:
        i = infos[name]
        out += '.p2align 6\n.amdhsa_kernel %s\n' % name
        out += '  .amdhsa_next_free_vgpr %d\n  .amdhsa_next_free_sgpr %d\n  .amdhsa_accum_offset %d\n' % (i['vgpr'], max(i['sgpr'], 16), i['accum'])
        out += '  .amdhsa_group_segment_fixed_size 0\n  .amdhsa_kernarg_size 104\n  .amdhsa_user_sgpr_count 2\n'
        out += '  .amdhsa_user_sgpr_kernarg_segment_ptr 1\n  .amdhsa_system_sgpr_workgroup_id_x 1\n'
        out += '  .amdhsa_float_denorm_mode_32 3\n'
        out += '.end_amdhsa_kernel\n'
    return out


if __name__ == '__main__':
    mode = sys.argv[1]
    outp = sys.argv[2]
    if mode.startswith('chain'):
        st = 'rt' if 'stamprt' in mode else ('stamp' in mode)
        fl = 'flat' in mode
        txt = build([('chain_kernel', lambda A, n: chain.gen_chain(A, n, stamps=st, flat=fl))],
                    [('chain_kernel', 256, 256, 163840)])
    if mode == 'qkv':
        txt = build([('qkv_kernel', kernels.gen_qkv)], [('qkv_kernel', 480, 256, 131072)])
    if mode == 'full1':
        txt = build([('qkv_kernel', kernels.gen_qkv), ('chain_kernel', lambda A, n: chain.gen_chain(A, n)),
                     ('attn_kernel', kernels.gen_attn), ('out_kernel', lambda A, n: kernels.gen_out(A, n, 2, 2))],
                    [('qkv_kernel', 480, 256, 131072), ('chain_kernel', 256, 256, 163840), ('attn_kernel', 1024, 256, 0),
                     ('out_kernel', 256, 256, 65536)])
    if mode.startswith('m1'):
        st = 'rt' if 'stamprt' in mode else False
        txt = build([('mega_kernel', lambda A, n: chain.gen_chain(A, n, stamps=st, worker=worker.gen_worker)),
                     ('attn_kernel', lambda A, n: kernels.gen_attn(A, n, True)), ('out_kernel', lambda A, n: kernels.gen_out(A, n, 1, 2, True, 4))],
                    [('mega_kernel', 256, 256, 163840), ('attn_kernel', 512, 256, 0),
                     ('out_kernel', 256, 256, 98304)])
    if mode.startswith('m2'):
        st = 'rt' if 'stamprt' in mode else ('stamp' in mode)
        ch = chain if os.environ.get('OLDCHAIN') else chain2
        txt = build([('mega_kernel', lambda A, n: ch.gen_chain(A, n, stamps=st, worker=worker.gen_worker))],
                    [('mega_kernel', 256, 256, 163840)])
    open(outp, 'w').write(txt)
    print('wrote', outp, len(txt), 'bytes')
```

```python
from asmlib import *
from layout import *
import struct, os
from kernels import place_check, shift_ptrs


def f32bits(x):
    return struct.unpack('<I', struct.pack('<f', x))[0]


def env(n, d):
    return int(os.environ.get(n, str(d)))


LDS_RED = 131072
LDS_O = LDS_RED + 16384
LDS_ROLE = LDS_O + 8192
NSTEP = env('NSTEP', 64)
POLL_LIMIT = 400000
NEARX = env('NEARX', 1)
DELAY_C = env('DELAY_C', 4)
DELAY_E = env('DELAY_E', 12)
E_BACK = env('E_BACK', 0)
DELAY_V = env('DELAY_V', 6)
RED_SLEEP = env('RED_SLEEP', 3)
NOE_SLEEP = env('NOE_SLEEP', 10)
NOPF = env('NOPF', 0)
FORCE_SAFE = env('FORCE_SAFE', 0)
PFC = env('PFC', 0)
VS = [int(x) for x in os.environ.get('VS', '8,3,5').split(',')]
A2 = env('A2', 1)
S3 = env('S3', 2)
HINT = env('HINT', 7)
DBGT = env('DBGT', 0)
XMAP = int(os.environ.get('XMAP', '0'), 16)
A1P = env('A1P', 0)
ZE = env('ZE', 1)
CODEPF = env('CODEPF', 0)
PV2 = env('PV2', 1)
PKF = env('PKF', 1)
TLBW = env('TLBW', 0)
TWO = env('TWO', 0)
LITE = [int(x) for x in os.environ.get('LITE', '').split(',') if x]


def gen_chain(A, name, stamps=False, nsteps=NSTEP, worker=None):
    S = Regs('s', 16, 100)
    V = Regs('v', 1, 256)
    SRD_WS, SRD_T = 8, 12
    s_ptr = S.alloc(16, 4)
    (s_w, s_x, s_j, s_t0, s_t1, s_t2, s_t3, s_step, s_slot, s_slot1, s_slot2, s_slotp, s_kx, s_kx2, s_out, s_outp, s_fffe, s_c,
     s_lim, s_cnt, s_vote, s_stamp, s_stl, s_red, s_obm, s_kvo, s_ps, s_ps2, s_m0, s_m1) = [S.alloc() for _ in range(30)]
    s_hf = S.alloc(2, 2)
    s_tm = S.alloc(2, 2)
    s_ta = S.alloc(2, 2)
    s_kvm = S.alloc(2, 2)
    SRD_A = S.alloc(4, 4)
    SRD_B = S.alloc(4, 4)
    SRD_D = S.alloc(4, 4)
    v_lane, v_nu, v_g = V.alloc(), V.alloc(), V.alloc()
    v_t = [V.alloc() for _ in range(8)]
    (va_memr, va_mems, va_rw, va_rr, va_qks, va_rb, va_vs, va_cp, va_prog, va_qkr, va_vmr, va_kx, va_vx, va_ow, va_or, va_pw, va_pr,
     va_pz, va_pd, va_warm, v_idx, v_bias, v_junk, v_kvf, v_junk2, v_sh, va_flg, va_pg) = [V.alloc() for _ in range(28)]
    v_cc = V.alloc(2, 2)
    v_m1 = V.alloc(4, 4)
    v_mask = V.alloc(4, 4)
    v_sel = V.alloc(4, 4)
    v_maskx = V.alloc(4, 4)
    v_ones = V.alloc(4, 4)
    acc1 = V.alloc(4, 4)
    acc2 = V.alloc(4, 4)
    KXA = V.alloc(16, 4)
    KXB = V.alloc(16, 4)
    VXR = V.alloc(32, 4)
    F = V.alloc(64, 4)
    VMR = V.alloc(8, 4)
    QK = V.alloc(16, 4)
    M = V.alloc(16, 4)
    assert KXB == KXA + 16 and VXR == KXA + 32 and F == KXA + 64
    LND = KXA
    AC = F
    HA = F + 32
    RD = F + 48
    SA, SB, SM = F, F + 4, F + 8
    PX, PXH = F + 12, F + 16
    PM, PMH = F + 20, F + 22
    O = F + 28
    LS = F + 44
    v_mx, v_mx2, v_l = F + 48, F + 49, F + 50
    XY = QK
    G = F
    PR = KXA
    RB = KXA + 8
    W1, W2 = 0, 128
    L_exit = name + '_exit'
    nvm = [0]

    def stamp(k):
        if not stamps or (LITE and k not in LITE):
            return
        A('%s %s' % ('s_memrealtime' if stamps == 'rt' else 's_memtime', sr(s_tm, 2)))
        A('s_waitcnt lgkmcnt(0)')
        A('v_mov_b32 %s, %s' % (vr(v_t[7]), sr(s_tm)))
        A('v_mov_b32 %s, %s' % (vr(v_t[6]), sr(s_stl)))
        A('ds_write_b32 %s, %s offset:%d' % (vr(v_t[6]), vr(v_t[7]), 4 * k))
        if k in (0, 2, 6):
            A('v_mov_b32 %s, %s' % (vr(v_t[5]), sr(s_cnt)))
            A('ds_write_b32 %s, %s offset:%d' % (vr(v_t[6]), vr(v_t[5]), 4 * (8 + k)))

    def dbgt(word):
        if not DBGT:
            return
        A('s_memrealtime %s' % sr(s_tm, 2))
        A('s_waitcnt lgkmcnt(0)')
        A('v_mov_b32 %s, %s' % (vr(v_t[7]), sr(s_tm)))
        A('v_mov_b32 %s, %d' % (vr(v_t[6]), word * 4))
        A('s_mov_b64 exec, 1')
        A('buffer_atomic_umax %s, %s, %s, 0 offen sc1' % (vr(v_t[7]), vr(v_t[6]), sr(SRD_T, 4)))
        A('s_mov_b64 exec, -1')

    def srd(dst, ptr, nbytes):
        A('s_mov_b32 %s, %s' % (sr(dst), sr(ptr)))
        A('s_and_b32 %s, %s, 0xffff' % (sr(dst + 1), sr(ptr + 1)))
        A('s_mov_b32 %s, 0x%x' % (sr(dst + 2), nbytes))
        A('s_mov_b32 %s, 0x00020000' % sr(dst + 3))

    A.raw('.p2align 8')
    A.label(name)
    A('s_cmp_ge_u32 s2, 256')
    A('s_cbranch_scc1 ' + L_exit)
    A('s_mov_b32 s%d, 0' % S_MODE)
    if CODEPF:
        Lnp = A.uid('nopf')
        A('v_readfirstlane_b32 s4, v0')
        A('s_lshr_b32 s4, s4, 6')
        A('s_cmp_lg_u32 s4, 1')
        A('s_cbranch_scc1 ' + Lnp)
        A('s_getpc_b64 s[4:5]')
        A.label(name + '_pc')
        A('s_lshr_b32 s6, s2, 3')
        A('s_lshl_b32 s6, s6, 13')
        A('v_and_b32 v250, 63, v0')
        A('v_lshl_add_u32 v250, v250, 7, s6')
        A('v_min_u32 v250, %s_end-%s_pc-4, v250' % (name, name))
        A('v_mov_b32 v253, s5')
        A('v_add_co_u32 v252, vcc, s4, v250')
        A('v_addc_co_u32 v253, vcc, 0, v253, vcc')
        if CODEPF == 2:
            A('s_sleep 4')
        A('global_load_dword v251, v[252:253], off')
        A.label(Lnp)
    L_restart = name + '_restart'
    A.label(L_restart)
    A('s_load_dwordx2 %s, s[0:1], 8' % sr(s_ptr, 2))
    A('s_load_dwordx4 %s, s[0:1], 16' % sr(s_ptr + 4, 4))
    A('s_load_dwordx4 %s, s[0:1], 32' % sr(s_ptr + 8, 4))
    A('s_load_dwordx4 %s, s[0:1], 88' % sr(s_ptr + 12, 4))
    P_MEM0, P_WQ, P_WK, P_WV, P_WO, P_DBG, P_WS = s_ptr, s_ptr + 4, s_ptr + 6, s_ptr + 8, s_ptr + 10, s_ptr + 12, s_ptr + 14
    A('v_and_b32 %s, 63, v0' % vr(v_lane))
    A('v_lshrrev_b32 %s, 6, v0' % vr(v_t[0]))
    A('v_readfirstlane_b32 %s, %s' % (sr(s_w), vr(v_t[0])))
    A('v_and_b32 %s, 15, %s' % (vr(v_nu), vr(v_lane)))
    A('v_lshrrev_b32 %s, 4, %s' % (vr(v_g), vr(v_lane)))
    A('s_waitcnt lgkmcnt(0)')
    shift_ptrs(A, P_WS, P_DBG, s_t0)
    srd(SRD_WS, P_WS, WS_HALF)
    srd(SRD_T, P_DBG, 128)
    L_role = A.uid('role')
    A('s_lshr_b32 %s, s2, 5' % sr(s_x))
    A('s_and_b32 %s, s2, 31' % sr(s_j))
    A('s_cmp_lg_u32 s%d, 0' % S_MODE)
    A('s_cbranch_scc1 ' + L_role)
    A('s_getreg_b32 %s, hwreg(HW_REG_XCC_ID)' % sr(s_x))
    A('s_and_b32 %s, %s, 7' % (sr(s_x), sr(s_x)))
    if XMAP:
        A('s_lshl_b32 %s, %s, 2' % (sr(s_x), sr(s_x)))
        A('s_lshr_b32 %s, 0x%x, %s' % (sr(s_x), XMAP, sr(s_x)))
        A('s_and_b32 %s, %s, 7' % (sr(s_x), sr(s_x)))
    if FORCE_SAFE:
        A('s_cmp_eq_u32 s2, %d' % FORCE_SAFE)
        A('s_cselect_b32 %s, 1, 0' % sr(s_t0))
        A('s_xor_b32 %s, %s, %s' % (sr(s_x), sr(s_x), sr(s_t0)))
    L_norole = A.uid('norole')
    A('s_cmp_lg_u32 %s, 0' % sr(s_w))
    A('s_cbranch_scc1 ' + L_norole)
    A('s_lshl_b32 %s, %s, 2' % (sr(s_t0), sr(s_x)))
    A('v_mov_b32 %s, %s' % (vr(v_t[0]), sr(s_t0)))
    A('v_mov_b32 %s, 1' % vr(v_t[1]))
    A('s_mov_b64 exec, 1')
    A('buffer_atomic_add %s, %s, %s, 0 offen sc0 sc1' % (vr(v_t[1]), vr(v_t[0]), sr(SRD_T, 4)))
    A('s_waitcnt vmcnt(0)')
    A('v_mov_b32 %s, %d' % (vr(v_t[0]), LDS_ROLE))
    A('ds_write_b32 %s, %s' % (vr(v_t[0]), vr(v_t[1])))
    A('s_waitcnt lgkmcnt(0)')
    A('s_mov_b64 exec, -1')
    A.label(L_norole)
    A('s_barrier')
    A('v_mov_b32 %s, %d' % (vr(v_t[0]), LDS_ROLE))
    A('ds_read_b32 %s, %s' % (vr(v_t[1]), vr(v_t[0])))
    A('s_waitcnt lgkmcnt(0)')
    A('v_readfirstlane_b32 %s, %s' % (sr(s_j), vr(v_t[1])))
    A.label(L_role)
    L_work = name + '_worker'
    A('s_mov_b32 s%d, %s' % (S_VX, sr(s_x)))
    A('s_mov_b32 s3, %s' % sr(s_j))
    A('s_cmp_ge_u32 %s, 4' % sr(s_x))
    A('s_cbranch_scc1 ' + L_work)
    A('s_cmp_ge_u32 %s, 32' % sr(s_j))
    A('s_cbranch_scc1 ' + L_work)
    A('s_mov_b32 s3, -1')
    A('s_lshl_b32 %s, %s, 1' % (sr(s_x), sr(s_x)))
    A('s_lshr_b32 %s, %s, 4' % (sr(s_t0), sr(s_j)))
    A('s_add_u32 %s, %s, %s' % (sr(s_x), sr(s_x), sr(s_t0)))
    A('s_and_b32 %s, %s, 15' % (sr(s_j), sr(s_j)))
    A('s_xor_b32 %s, %s, %s' % (sr(s_red), sr(s_x), sr(s_j)))
    A('s_and_b32 %s, %s, 1' % (sr(s_red), sr(s_red)))
    A('s_lshr_b32 %s, %s, 1' % (sr(s_obm), sr(s_x)))
    A('s_lshl_b32 %s, %s, 4' % (sr(s_obm), sr(s_obm)))
    A('s_add_u32 %s, %s, %s' % (sr(s_obm), sr(s_obm), sr(s_j)))
    A('s_lshl_b32 %s, %s, 10' % (sr(s_obm), sr(s_obm)))
    L_noz = A.uid('noz')
    A('s_or_b32 %s, %s, %s' % (sr(s_t0), sr(s_x), sr(s_j)))
    A('s_xor_b32 %s, %s, 1' % (sr(s_t1), sr(s_w)))
    A('s_or_b32 %s, %s, %s' % (sr(s_t0), sr(s_t0), sr(s_t1)))
    A('s_cmp_lg_u32 %s, 0' % sr(s_t0))
    A('s_cbranch_scc1 ' + L_noz)
    A('v_lshlrev_b32 %s, 7, %s' % (vr(v_t[0]), vr(v_lane)))
    A('v_mov_b32 %s, 0' % vr(v_t[1]))
    for i in range(4):
        A('s_mov_b32 %s, 0x%x' % (sr(s_t0), CTR + i * 8192))
        A('buffer_store_dword %s, %s, %s, %s offen sc1' % (vr(v_t[1]), vr(v_t[0]), sr(SRD_WS, 4), sr(s_t0)))
    A('s_waitcnt vmcnt(0)')
    A('v_mov_b32 %s, %d' % (vr(v_t[0]), DBG_INIT))
    A('v_mov_b32 %s, 1' % vr(v_t[1]))
    A('s_mov_b64 exec, 1')
    A('buffer_store_dword %s, %s, %s, 0 offen sc1' % (vr(v_t[1]), vr(v_t[0]), sr(SRD_T, 4)))
    A('s_mov_b64 exec, -1')
    dbgt(10)
    A.label(L_noz)
    for i in range(4):
        A('v_mov_b32 %s, -1' % vr(v_m1 + i))
    l16 = v_t[2]
    A('v_lshlrev_b32 %s, 4, %s' % (vr(l16), vr(v_lane)))
    s_ob = s_t3
    A('s_lshl_b32 %s, %s, 4' % (sr(s_ob), sr(s_x)))
    A('s_add_u32 %s, %s, %s' % (sr(s_ob), sr(s_ob), sr(s_j)))
    A('s_lshl_b32 %s, %s, 10' % (sr(s_ob), sr(s_ob)))

    A('s_lshl_b32 %s, %s, 17' % (sr(s_t0), sr(s_w)))
    A('s_add_u32 %s, %s, %s' % (sr(s_t2), sr(s_t0), sr(s_ob)))
    A('s_add_u32 %s, %s, %s' % (sr(s_t0), sr(s_t0), sr(s_obm)))
    Lf1, Lf2 = A.uid('f1'), A.uid('f2')
    A('s_cmp_lg_u32 s%d, 0' % S_MODE)
    A('s_cbranch_scc1 ' + Lf1)
    for sc in ('', ' sc1'):
        if sc:
            A.label(Lf1)
        for base, so in ((QKI, s_t2), (VMI, s_t2), (MEMI, s_t0)):
            A('s_add_u32 %s, %s, 0x%x' % (sr(s_t1), sr(so), base))
            A('buffer_store_dwordx4 %s, %s, %s, %s offen%s' % (vr(v_m1, 4), vr(l16), sr(SRD_WS, 4), sr(s_t1), sc))
        if not sc:
            A('s_branch ' + Lf2)
    A.label(Lf2)
    A('s_lshl_b32 %s, %s, 14' % (sr(s_t0), sr(s_j)))
    A('s_lshl_b32 %s, %s, 11' % (sr(s_t1), sr(s_w)))
    A('s_add_u32 %s, %s, %s' % (sr(s_t0), sr(s_t0), sr(s_t1)))
    A('s_add_u32 %s, %s, 0x%x' % (sr(s_t0), sr(s_t0), PART))
    A('v_add_u32 %s, %s, %s' % (vr(va_pr), sr(s_t0), vr(l16)))
    A('s_lshl_b32 %s, %s, 8' % (sr(s_t1), sr(s_x)))
    A('v_add_u32 %s, %s, %s' % (vr(va_pw), sr(s_t1), vr(va_pr)))
    A('v_add_u32 %s, 8192, %s' % (vr(va_pz), vr(va_pw)))
    A('s_mov_b64 exec, 0xffff')
    for sl in range(4):
        A('s_mov_b32 %s, 0x%x' % (sr(s_t1), sl * 0x40000))
        A('buffer_store_dwordx4 %s, %s, %s, %s offen sc1' % (vr(v_m1, 4), vr(va_pw), sr(SRD_WS, 4), sr(s_t1)))
        A('buffer_store_dwordx4 %s, %s, %s, %s offen sc1' % (vr(v_m1, 4), vr(va_pz), sr(SRD_WS, 4), sr(s_t1)))
    A('s_mov_b64 exec, -1')
    A('s_lshr_b32 %s, %s, 1' % (sr(s_t0), sr(s_x)))
    A('s_lshl_b32 %s, %s, 8' % (sr(s_t0), sr(s_t0)))
    A('s_add_u32 %s, %s, 0x%x' % (sr(s_t0), sr(s_t0), FLG))
    A('v_lshl_add_u32 %s, %s, 2, %s' % (vr(va_flg), vr(v_nu), sr(s_t0)))
    Lfr = A.uid('fr')
    A('s_cmp_eq_u32 %s, 0' % sr(s_red))
    A('s_cbranch_scc1 ' + Lfr)
    A('s_and_b32 %s, %s, 1' % (sr(s_t1), sr(s_x)))
    A('s_lshl_b32 %s, %s, 5' % (sr(s_t1), sr(s_t1)))
    A('s_add_u32 %s, %s, %s' % (sr(s_t0), sr(s_t0), sr(s_t1)))
    A('s_lshr_b32 %s, %s, 1' % (sr(s_t1), sr(s_j)))
    A('s_lshl_b32 %s, %s, 2' % (sr(s_t1), sr(s_t1)))
    A('s_add_u32 %s, %s, %s' % (sr(s_t0), sr(s_t0), sr(s_t1)))
    A('v_min_u32 %s, 1, v0' % vr(va_flg))
    A('v_lshl_add_u32 %s, %s, 28, %s' % (vr(va_flg), vr(va_flg), sr(s_t0)))
    A('buffer_store_dword %s, %s, %s, 0 offen sc1' % (vr(v_m1), vr(va_flg), sr(SRD_WS, 4)))
    A.label(Lfr)
    L_nocal, L_nocal2 = A.uid('nocal'), A.uid('nocal2')
    A('s_mov_b32 %s, 1' % sr(s_vote))
    A('s_cmp_ge_u32 %s, 8' % sr(s_j))
    A('s_cbranch_scc1 ' + L_nocal2)
    A('s_bitcmp1_b32 %s, 0' % sr(s_x))
    A('s_cbranch_scc1 ' + L_nocal2)
    A('s_waitcnt vmcnt(0)')
    A('s_barrier')
    A('s_cmp_lg_u32 %s, 0' % sr(s_w))
    A('s_cbranch_scc1 ' + L_nocal)
    A('s_mov_b32 %s, -1' % sr(s_m0))
    A('s_mov_b32 %s, -1' % sr(s_m1))
    A('s_mov_b64 exec, 0xffff')
    for rep in range(3):
        for c in range(2):
            A('s_mov_b32 %s, %d' % (sr(s_t1), 0x40000 + rep * 0x40000))
            A('s_memtime %s' % sr(s_ta, 2))
            A('s_waitcnt lgkmcnt(0)')
            A('buffer_store_dwordx4 %s, %s, %s, %s offen sc1' % (vr(v_m1, 4), vr(va_pz if c else va_pw), sr(SRD_WS, 4), sr(s_t1)))
            A('s_waitcnt vmcnt(0)')
            A('s_memtime %s' % sr(s_tm, 2))
            A('s_waitcnt lgkmcnt(0)')
            A('s_sub_u32 %s, %s, %s' % (sr(s_t2), sr(s_tm), sr(s_ta)))
            A('s_min_u32 %s, %s, %s' % (sr(s_m1 if c else s_m0), sr(s_m1 if c else s_m0), sr(s_t2)))
    A('s_cmp_lt_u32 %s, %s' % (sr(s_m1), sr(s_m0)))
    A('s_cselect_b32 %s, 0x10001, 1' % sr(s_vote))
    if TWO:
        A('s_cselect_b32 %s, 0x10000, 0' % sr(s_vote))
        A('s_lshl_b32 %s, %s, 1' % (sr(s_t2), sr(s_x)))
        A('s_lshl_b32 %s, %s, %s' % (sr(s_vote), sr(s_vote), sr(s_t2)))
        A('s_add_u32 %s, %s, 1' % (sr(s_vote), sr(s_vote)))
    A('s_mov_b64 exec, -1')
    A.label(L_nocal)
    A('s_barrier')
    A.label(L_nocal2)

    s_col = s_t2
    A('s_lshr_b32 %s, %s, 4' % (sr(s_col), sr(s_ob)))
    vw = v_t[4]
    A('v_lshrrev_b32 %s, 2, %s' % (vr(vw), vr(v_lane)))
    A('v_lshlrev_b32 %s, 13, %s' % (vr(vw), vr(vw)))
    A('v_and_b32 %s, 3, %s' % (vr(v_t[5]), vr(v_lane)))
    A('v_lshl_add_u32 %s, %s, 4, %s' % (vr(vw), vr(v_t[5]), vr(vw)))
    A('s_lshl_b32 %s, %s, 17' % (sr(s_t0), sr(s_w)))
    A('s_add_u32 %s, %s, %s' % (sr(s_col), sr(s_col), sr(s_t0)))
    A('s_lshl_b32 %s, %s, 10' % (sr(s_t0), sr(s_w)))
    for mi, P in enumerate((P_WQ, P_WK)):
        srd(SRD_A, P, 1024 * 4096 * 2)
        for i in range(16):
            A('s_add_u32 m0, %s, %d' % (sr(s_t0), mi * 65536 + i * 4096))
            A('s_add_u32 %s, %s, %d' % (sr(s_t1), sr(s_col), i * 4 * 131072))
            A('buffer_load_dwordx4 %s, %s, %s offen lds' % (vr(vw), sr(SRD_A, 4), sr(s_t1)))
        if mi == 0:
            A('s_waitcnt vmcnt(16)')
            A('s_barrier')
            L_nord = A.uid('nord')
            A('s_cmp_lg_u32 %s, 0' % sr(s_w))
            A('s_cbranch_scc1 ' + L_nord)
            A('v_mov_b32 %s, 32' % vr(acc2))
            A('v_mov_b32 %s, %s' % (vr(acc2 + 1), sr(s_vote)))
            A('s_mov_b64 exec, 1')
            A('buffer_atomic_add %s, %s, %s, 0 offen sc1' % (vr(acc2 + 1), vr(acc2), sr(SRD_T, 4)))
            A('s_mov_b64 exec, -1')
            A.label(L_nord)
            A('s_nop 4')
    v2 = v_t[5]
    LwN, LwJ = A.uid('wN'), A.uid('wJ')
    A('s_cmp_lg_u32 %s, 0' % sr(s_red))
    A('s_cbranch_scc1 ' + LwN)
    srd(SRD_B, P_WV, 1024 * 4096 * 2)
    A('v_lshrrev_b32 %s, 3, %s' % (vr(v2), vr(v_lane)))
    A('v_lshlrev_b32 %s, 13, %s' % (vr(v2), vr(v2)))
    A('v_and_b32 %s, 7, %s' % (vr(v_t[6]), vr(v_lane)))
    A('v_lshl_add_u32 %s, %s, 4, %s' % (vr(v2), vr(v_t[6]), vr(v2)))
    A('s_lshr_b32 %s, %s, 4' % (sr(s_t2), sr(s_ob)))
    A('s_andn2_b32 %s, %s, 64' % (sr(s_t2), sr(s_t2)))
    A('s_lshl_b32 %s, %s, 16' % (sr(s_t1), sr(s_w)))
    A('s_add_u32 %s, %s, %s' % (sr(s_t2), sr(s_t2), sr(s_t1)))
    A('s_mov_b32 %s, %d' % (sr(s_t0), 4 * 65536))
    A('s_branch ' + LwJ)
    A.label(LwN)
    srd(SRD_B, P_WO, 4096 * 1024 * 2)
    A('v_lshlrev_b32 %s, 11, %s' % (vr(v2), vr(v_g)))
    A('v_lshl_add_u32 %s, %s, 4, %s' % (vr(v2), vr(v_nu), vr(v2)))
    A('s_lshl_b32 %s, %s, 20' % (sr(s_t2), sr(s_x)))
    A('s_lshr_b32 %s, %s, 1' % (sr(s_t1), sr(s_j)))
    A('s_lshl_b32 %s, %s, 8' % (sr(s_t1), sr(s_t1)))
    A('s_add_u32 %s, %s, %s' % (sr(s_t2), sr(s_t2), sr(s_t1)))
    A('s_lshl_b32 %s, %s, 13' % (sr(s_t1), sr(s_w)))
    A('s_add_u32 %s, %s, %s' % (sr(s_t2), sr(s_t2), sr(s_t1)))
    A('s_mov_b32 %s, %d' % (sr(s_t0), 4 * 8192))
    A.label(LwJ)
    for i in range(32):
        A('buffer_load_dwordx4 %s, %s, %s, %s offen' % (vr(LND + 4 * i, 4), vr(v2), sr(SRD_B, 4), sr(s_t2)))
        A('s_add_u32 %s, %s, %s' % (sr(s_t2), sr(s_t2), sr(s_t0)))
    srd(SRD_D, P_MEM0, 8 * 1024 * 2)
    vm0 = v_t[6]
    A('v_and_b32 %s, 7, %s' % (vr(vm0), vr(v_nu)))
    A('v_lshlrev_b32 %s, 11, %s' % (vr(vm0), vr(vm0)))
    A('v_lshl_add_u32 %s, %s, 5, %s' % (vr(vm0), vr(v_g), vr(vm0)))
    A('v_lshrrev_b32 %s, 3, %s' % (vr(v_t[7]), vr(v_nu)))
    A('v_lshl_add_u32 %s, %s, 2, %s' % (vr(vm0), vr(v_t[7]), vr(vm0)))
    A('s_lshl_b32 %s, %s, 9' % (sr(s_t1), sr(s_w)))
    for k in range(4):
        for a in range(4):
            A('buffer_load_dword %s, %s, %s, %s offen offset:%d' % (vr(M + 4 * k + a), vr(vm0), sr(SRD_D, 4), sr(s_t1), k * 128 + a * 8))

    A('s_mov_b32 %s, 0xfffefffe' % sr(s_fffe))
    A('s_mov_b32 %s, 0x%x' % (sr(s_c), f32bits(128 ** -0.5 * 1.4426950408889634)))
    A('s_mov_b32 %s, %d' % (sr(s_lim), POLL_LIMIT))
    A('v_mov_b32 %s, %s' % (vr(v_cc), sr(s_c)))
    A('v_mov_b32 %s, %s' % (vr(v_cc + 1), sr(s_c)))
    A('s_mov_b32 %s, 0xff00ff00' % sr(s_hf))
    A('s_mov_b32 %s, 0xff00ff00' % sr(s_hf + 1))
    ta, tb, tc = v_t[0], v_t[1], v_t[7]
    A('v_mov_b32 %s, 0x%x' % (vr(ta), f32bits(-1e30)))
    for i in range(4):
        A('v_cndmask_b32 %s, 0, %s, %s' % (vr(v_maskx + i), vr(ta), sr(s_hf, 2)))
    A('v_cmp_gt_u32 vcc, 32, %s' % vr(v_lane))
    for i in range(4):
        A('v_cndmask_b32 %s, %s, %s, vcc' % (vr(v_mask + i), vr(v_maskx), vr(ta)))
    A('v_mov_b32 %s, 0x%x' % (vr(ta), f32bits(-3e38)))
    A('v_cndmask_b32 %s, %s, 0, %s' % (vr(v_bias), vr(ta), sr(s_hf, 2)))
    for i in range(4):
        A('v_mov_b32 %s, 0x3f803f80' % vr(v_ones + i))
    A('v_mov_b32 %s, 0x4444' % vr(ta))
    A('v_mov_b32 %s, 0xeeee' % vr(tb))
    A('v_cndmask_b32 %s, %s, %s, %s' % (vr(v_idx), vr(ta), vr(tb), sr(s_hf, 2)))
    A('v_bfe_u32 %s, %s, 2, 1' % (vr(ta), vr(v_nu)))
    A('v_bfe_u32 %s, %s, 1, 1' % (vr(tb), vr(v_nu)))
    A('v_lshl_add_u32 %s, %s, 1, %s' % (vr(ta), vr(tb), vr(ta)))
    A('v_and_b32 %s, 1, %s' % (vr(tb), vr(v_nu)))
    A('v_lshlrev_b32 %s, 4, %s' % (vr(tb), vr(tb)))
    A('v_mov_b32 %s, 0x3f80' % vr(tc))
    A('v_lshlrev_b32 %s, %s, %s' % (vr(tb), vr(tb), vr(tc)))
    for d in range(4):
        A('v_cmp_eq_u32 vcc, %d, %s' % (d, vr(ta)))
        A('v_cndmask_b32 %s, 0, %s, vcc' % (vr(v_sel + d), vr(tb)))

    s_p, s_wh = s_t0, s_t1
    A('s_and_b32 %s, %s, 1' % (sr(s_p), sr(s_w)))
    A('s_lshr_b32 %s, %s, 1' % (sr(s_wh), sr(s_w)))
    A('s_lshl_b32 %s, %s, 12' % (sr(s_t2), sr(s_w)))
    A('v_add_u32 %s, %s, %s' % (vr(ta), sr(s_t2), vr(l16)))
    A('s_lshr_b32 %s, %s, 1' % (sr(s_t2), sr(s_x)))
    A('s_lshl_b32 %s, %s, 14' % (sr(s_t2), sr(s_t2)))
    A('s_add_u32 %s, %s, 0x%x' % (sr(s_t2), sr(s_t2), MEMI))
    A('v_add_u32 %s, %s, %s' % (vr(va_memr), sr(s_t2), vr(ta)))
    A('s_lshl_b32 %s, %s, 14' % (sr(s_t2), sr(s_x)))
    A('s_add_u32 %s, %s, 0x%x' % (sr(s_t2), sr(s_t2), QKI))
    A('v_add_u32 %s, %s, %s' % (vr(va_qkr), sr(s_t2), vr(ta)))
    A('s_lshl_b32 %s, %s, 12' % (sr(s_cnt), sr(s_w)))
    A('s_add_u32 %s, %s, %s' % (sr(s_t2), sr(s_t2), sr(s_cnt)))
    A('s_add_u32 %s, %s, 0x%x' % (sr(s_t2), sr(s_t2), VMI - QKI))
    A('v_and_b32 %s, 31, %s' % (vr(va_vmr), vr(v_lane)))
    A('v_lshlrev_b32 %s, 4, %s' % (vr(va_vmr), vr(va_vmr)))
    A('v_lshrrev_b32 %s, 5, %s' % (vr(ta), vr(v_lane)))
    A('v_xor_b32 %s, 1, %s' % (vr(ta), vr(ta)))
    A('v_lshl_add_u32 %s, %s, 11, %s' % (vr(va_vmr), vr(ta), vr(va_vmr)))
    A('v_add_u32 %s, %s, %s' % (vr(va_vmr), sr(s_t2), vr(va_vmr)))
    A('s_lshl_b32 %s, %s, 12' % (sr(s_t2), sr(s_w)))
    A('s_add_u32 %s, %s, %d' % (sr(s_t2), sr(s_t2), LDS_RED))
    A('v_lshl_add_u32 %s, %s, 3, %s' % (vr(va_rw), vr(v_lane), sr(s_t2)))
    A('v_lshrrev_b32 %s, 5, %s' % (vr(ta), vr(v_lane)))
    A('v_lshlrev_b32 %s, 13, %s' % (vr(ta), vr(ta)))
    A('v_and_b32 %s, 31, %s' % (vr(tb), vr(v_lane)))
    A('v_lshl_add_u32 %s, %s, 4, %s' % (vr(ta), vr(tb), vr(ta)))
    A('s_lshl_b32 %s, %s, 9' % (sr(s_t2), sr(s_w)))
    A('s_add_u32 %s, %s, %d' % (sr(s_t2), sr(s_t2), LDS_RED))
    A('v_add_u32 %s, %s, %s' % (vr(va_rr), sr(s_t2), vr(ta)))
    vR, vcp, vH = tc, acc1, acc1 + 1
    A('v_bfe_u32 %s, %s, 3, 1' % (vr(ta), vr(v_lane)))
    A('v_bfe_u32 %s, %s, 4, 1' % (vr(tb), vr(v_lane)))
    A('v_lshlrev_b32 %s, 2, %s' % (vr(vR), vr(ta)))
    A('v_lshl_add_u32 %s, %s, 1, %s' % (vr(vR), vr(tb), vr(vR)))
    A('v_and_b32 %s, 7, %s' % (vr(vcp), vr(v_lane)))
    A('v_lshrrev_b32 %s, 5, %s' % (vr(vH), vr(v_lane)))
    A('v_lshlrev_b32 %s, 8, %s' % (vr(va_vs), vr(ta)))
    A('v_lshl_add_u32 %s, %s, 5, %s' % (vr(va_vs), vr(vcp), vr(va_vs)))
    A('v_lshl_add_u32 %s, %s, 4, %s' % (vr(va_vs), vr(vH), vr(va_vs)))
    A('v_lshl_add_u32 %s, %s, 2, %s' % (vr(va_vs), vr(tb), vr(va_vs)))
    A('s_andn2_b32 %s, %s, 1024' % (sr(s_t2), sr(s_ob)))
    A('s_lshl_b32 %s, %s, 10' % (sr(s_cnt), sr(s_wh)))
    A('s_add_u32 %s, %s, %s' % (sr(s_t2), sr(s_t2), sr(s_cnt)))
    A('s_lshl_b32 %s, %s, 3' % (sr(s_cnt), sr(s_p)))
    A('s_add_u32 %s, %s, %s' % (sr(s_t2), sr(s_t2), sr(s_cnt)))
    A('s_add_u32 %s, %s, 0x%x' % (sr(s_t2), sr(s_t2), VMI))
    A('v_add_u32 %s, %s, %s' % (vr(va_vs), sr(s_t2), vr(va_vs)))
    A('v_bfe_u32 %s, %s, 1, 1' % (vr(ta), vr(vcp)))
    A('v_lshlrev_b32 %s, 8, %s' % (vr(va_qks), vr(ta)))
    A('v_add_u32 %s, %s, %s' % (vr(vR), vr(vR), vr(vH)))
    A('v_lshl_add_u32 %s, %s, 4, %s' % (vr(va_qks), vr(vR), vr(va_qks)))
    A('v_lshrrev_b32 %s, 2, %s' % (vr(ta), vr(vcp)))
    A('v_lshl_add_u32 %s, %s, 3, %s' % (vr(va_qks), vr(ta), vr(va_qks)))
    A('v_and_b32 %s, 1, %s' % (vr(ta), vr(vcp)))
    A('v_lshl_add_u32 %s, %s, 2, %s' % (vr(va_qks), vr(ta), vr(va_qks)))
    A('s_lshl_b32 %s, %s, 9' % (sr(s_t2), sr(s_p)))
    A('v_add_u32 %s, %s, %s' % (vr(va_qks), sr(s_t2), vr(va_qks)))
    A('s_lshl_b32 %s, %s, 7' % (sr(s_t2), sr(s_wh)))
    A('s_add_u32 %s, %s, %s' % (sr(s_t2), sr(s_t2), sr(s_ob)))
    A('s_add_u32 %s, %s, 0x%x' % (sr(s_t2), sr(s_t2), QKI))
    A('v_add_u32 %s, %s, %s' % (vr(va_qks), sr(s_t2), vr(va_qks)))
    A('v_lshlrev_b32 %s, 4, %s' % (vr(va_mems), vr(v_nu)))
    A('v_lshl_add_u32 %s, %s, 2, %s' % (vr(va_mems), vr(v_g), vr(va_mems)))
    A('s_lshl_b32 %s, %s, 8' % (sr(s_t2), sr(s_w)))
    A('s_add_u32 %s, %s, %s' % (sr(s_t2), sr(s_t2), sr(s_obm)))
    A('s_add_u32 %s, %s, 0x%x' % (sr(s_t2), sr(s_t2), MEMI))
    A('v_add_u32 %s, %s, %s' % (vr(va_mems), sr(s_t2), vr(va_mems)))
    A('s_lshl_b32 %s, %s, 10' % (sr(s_t2), sr(s_wh)))
    A('s_xor_b32 %s, %s, %s' % (sr(s_kvo), sr(s_t2), sr(s_ob)))
    A('s_lshl_b32 %s, %s, 19' % (sr(s_t2), sr(s_p)))
    A('s_add_u32 %s, %s, %s' % (sr(s_t2), sr(s_t2), sr(s_kvo)))
    A('s_add_u32 %s, %s, 0x%x' % (sr(s_t2), sr(s_t2), QKI))
    A('s_lshl_b32 %s, %s, 23' % (sr(s_cnt), sr(s_p)))
    A('s_add_u32 %s, %s, %s' % (sr(s_cnt), sr(s_cnt), sr(s_kvo)))
    A('s_add_u32 %s, %s, 0x%x' % (sr(s_cnt), sr(s_cnt), KMO))
    assert VMO - KMO == 1 << 23 and VMI - QKI == 1 << 19
    A('v_add_u32 %s, %s, %s' % (vr(va_rb), sr(s_t2), vr(l16)))
    A('v_add_u32 %s, %s, %s' % (vr(va_cp), sr(s_cnt), vr(l16)))
    A('s_or_b32 %s, %s, %s' % (sr(s_t2), sr(s_x), sr(s_j)))
    A('s_xor_b32 %s, %s, 3' % (sr(s_cnt), sr(s_w)))
    A('s_or_b32 %s, %s, %s' % (sr(s_t2), sr(s_t2), sr(s_cnt)))
    A('s_cmp_eq_u32 %s, 0' % sr(s_t2))
    A('s_mov_b32 %s, 0x%x' % (sr(s_cnt), CTR + DBG_PROG * 128))
    A('s_cselect_b32 %s, %s, 0x%x' % (sr(s_t2), sr(s_cnt), WS_BYTES))
    A('v_and_b32 %s, 3, %s' % (vr(v_sh), vr(v_lane)))
    A('v_lshlrev_b32 %s, 7, %s' % (vr(v_sh), vr(v_sh)))
    A('v_add_u32 %s, %s, %s' % (vr(va_prog), sr(s_t2), vr(v_sh)))
    A('v_cmp_lt_u32 vcc, 3, %s' % vr(v_lane))
    A('v_mov_b32 %s, 0x%x' % (vr(ta), WS_BYTES))
    A('v_cndmask_b32 %s, %s, %s, vcc' % (vr(va_prog), vr(va_prog), vr(ta)))
    A('v_add_u32 %s, 0x%x, %s' % (vr(v_sh), CTR, vr(v_sh)))
    s_h = s_t2
    A('s_lshl_b32 %s, %s, 2' % (sr(s_h), sr(s_x)))
    A('s_add_u32 %s, %s, %s' % (sr(s_h), sr(s_h), sr(s_w)))
    A('s_lshl_b32 %s, %s, 13' % (sr(s_h), sr(s_h)))
    A('v_and_b32 %s, 1, %s' % (vr(ta), vr(v_g)))
    A('v_lshrrev_b32 %s, 1, %s' % (vr(tb), vr(v_g)))
    A('v_lshlrev_b32 %s, 9, %s' % (vr(va_kx), vr(ta)))
    A('v_lshl_add_u32 %s, %s, 10, %s' % (vr(va_kx), vr(tb), vr(va_kx)))
    A('v_add_u32 %s, %s, %s' % (vr(va_kx), sr(s_h), vr(va_kx)))
    A('v_lshl_add_u32 %s, %s, 4, %s' % (vr(va_vx), vr(v_nu), vr(va_kx)))
    A('v_add_u32 %s, 0x%x, %s' % (vr(va_vx), VX, vr(va_vx)))
    A('v_lshrrev_b32 %s, 3, %s' % (vr(ta), vr(v_nu)))
    A('v_lshl_add_u32 %s, %s, 8, %s' % (vr(va_kx), vr(ta), vr(va_kx)))
    A('v_and_b32 %s, 7, %s' % (vr(ta), vr(v_nu)))
    A('v_lshl_add_u32 %s, %s, 4, %s' % (vr(va_kx), vr(ta), vr(va_kx)))
    A('v_add_u32 %s, 0x%x, %s' % (vr(va_kx), KX, vr(va_kx)))
    A('s_lshr_b32 %s, %s, 1' % (sr(s_t2), sr(s_j)))
    A('s_lshl_b32 %s, %s, 2' % (sr(s_t2), sr(s_t2)))
    A('s_add_u32 %s, %s, %s' % (sr(s_t2), sr(s_t2), sr(s_w)))
    A('s_and_b32 %s, %s, 15' % (sr(s_cnt), sr(s_t2)))
    A('s_lshl_b32 %s, %s, 11' % (sr(s_cnt), sr(s_cnt)))
    A('s_lshr_b32 %s, %s, 4' % (sr(s_t2), sr(s_t2)))
    A('s_lshl_b32 %s, %s, 24' % (sr(s_t2), sr(s_t2)))
    assert VX - KX == 1 << 24
    A('s_add_u32 %s, %s, %s' % (sr(s_t2), sr(s_t2), sr(s_cnt)))
    A('s_lshl_b32 %s, %s, 15' % (sr(s_cnt), sr(s_x)))
    A('s_add_u32 %s, %s, %s' % (sr(s_t2), sr(s_t2), sr(s_cnt)))
    A('s_add_u32 %s, %s, 0x%x' % (sr(s_t2), sr(s_t2), KX))
    A('v_lshl_add_u32 %s, %s, 5, %s' % (vr(va_warm), vr(v_lane), sr(s_t2)))
    A('v_add_u32 %s, %d, %s' % (vr(va_or), LDS_O, vr(l16)))
    A('v_lshrrev_b32 %s, 3, %s' % (vr(ta), vr(v_nu)))
    A('v_mul_u32_u24 %s, %d, %s' % (vr(ta), 1024 - 128, vr(ta)))
    A('s_lshl_b32 %s, %s, 11' % (sr(s_t2), sr(s_w)))
    A('v_add3_u32 %s, %s, %s, %s' % (vr(va_ow), sr(s_t2), vr(va_or), vr(ta)))
    if stamps:
        A('s_lshl_b32 %s, %s, 4' % (sr(s_stamp), sr(s_ob)))
        A('s_lshl_b32 %s, %s, 12' % (sr(s_t2), sr(s_w)))
        A('s_add_u32 %s, %s, %s' % (sr(s_stamp), sr(s_stamp), sr(s_t2)))
        A('s_add_u32 %s, %s, 0x%x' % (sr(s_stamp), sr(s_stamp), STAMP))
        A('s_add_u32 %s, %s, 65536' % (sr(s_stl), sr(s_t2)))

    vq1, vq2, vr_, vcq = acc1, acc1 + 1, acc1 + 2, acc1 + 3
    A('v_bfe_u32 %s, %s, 2, 2' % (vr(vr_), vr(v_lane)))
    A('v_and_b32 %s, 3, %s' % (vr(vcq), vr(v_lane)))
    A('v_lshl_add_u32 %s, %s, 3, %s' % (vr(vq2), vr(v_g), vr(vr_)))
    A('v_lshlrev_b32 %s, 6, %s' % (vr(vq1), vr(vq2)))
    A('v_lshl_add_u32 %s, %s, 3, %s' % (vr(vq1), vr(vcq), vr(vq1)))
    A('s_lshl_b32 %s, %s, 14' % (sr(s_t2), sr(s_w)))
    A('v_add_u32 %s, %s, %s' % (vr(vq1), sr(s_t2), vr(vq1)))
    A('v_add_u32 %s, 65536, %s' % (vr(tb), vr(vq1)))
    if TLBW:
        A('s_mov_b64 exec, 1')
        for sl in range(1, 4):
            A('s_mov_b32 %s, 0x%x' % (sr(s_t0), sl * 0x20000))
            A('s_mov_b32 %s, 0x%x' % (sr(s_t1), sl * 0x40000))
            for va, so in ((va_memr, s_t0), (va_qkr, s_t0), (va_vmr, s_t0), (va_pr, s_t1)):
                A('buffer_load_dword %s, %s, %s, %s offen sc1' % (vr(v_junk), vr(va), sr(SRD_WS, 4), sr(so)))
        A('s_mov_b64 exec, -1')
    A('s_waitcnt vmcnt(%d)' % (60 if TLBW else 48))
    A('s_barrier')
    for kk in range(4):
        for tl in range(4):
            for bh in range(2):
                for q in range(2):
                    A('ds_read_b64_tr_b16 %s, %s offset:%d' % (ar(W1 + 8 * (kk * 4 + tl) + 4 * bh + 2 * q, 2), vr(tb if tl >= 2 else vq1), kk * 4096 + bh * 2048 + q * 256 + (tl & 1) * 32))
            A('s_waitcnt lgkmcnt(8)')
    A('s_waitcnt lgkmcnt(0)')
    A('s_barrier')
    A('s_waitcnt vmcnt(0)')
    A('s_lshl_b32 %s, %s, 10' % (sr(s_t2), sr(s_w)))
    A('v_add_u32 %s, %s, %s' % (vr(ta), sr(s_t2), vr(l16)))
    A('v_add_u32 %s, 65536, %s' % (vr(tb), vr(ta)))
    for i in range(32):
        A('ds_write_b128 %s, %s offset:%d' % (vr(ta if i < 16 else tb), vr(LND + 4 * i, 4), (i & 15) * 4096))
        if i & 3 == 3:
            A('s_waitcnt lgkmcnt(8)')
    A('s_waitcnt lgkmcnt(0)')
    A('s_barrier')
    LtN, LtJ = A.uid('tN'), A.uid('tJ')
    A('s_cmp_lg_u32 %s, 0' % sr(s_red))
    A('s_cbranch_scc1 ' + LtN)
    A('v_lshlrev_b32 %s, 7, %s' % (vr(ta), vr(vq2)))
    A('v_lshl_add_u32 %s, %s, 3, %s' % (vr(ta), vr(vcq), vr(ta)))
    A('s_lshl_b32 %s, %s, 15' % (sr(s_t2), sr(s_w)))
    A('v_add_u32 %s, %s, %s' % (vr(ta), sr(s_t2), vr(ta)))
    for kk in range(4):
        for tv in range(4):
            for bh in range(2):
                for q in range(2):
                    A('ds_read_b64_tr_b16 %s, %s offset:%d' % (ar(W2 + 8 * (kk * 4 + tv) + 4 * bh + 2 * q, 2), vr(ta), kk * 8192 + bh * 4096 + q * 512 + tv * 32))
            A('s_waitcnt lgkmcnt(8)')
    A('s_branch ' + LtJ)
    A.label(LtN)
    A('v_and_b32 %s, 1, %s' % (vr(ta), vr(v_g)))
    A('v_lshl_add_u32 %s, %s, 5, %s' % (vr(ta), vr(ta), vr(vr_)))
    A('v_lshrrev_b32 %s, 1, %s' % (vr(tb), vr(v_g)))
    A('v_lshl_add_u32 %s, %s, 2, %s' % (vr(ta), vr(tb), vr(ta)))
    A('v_lshlrev_b32 %s, 8, %s' % (vr(ta), vr(ta)))
    A('v_lshl_add_u32 %s, %s, 3, %s' % (vr(ta), vr(vcq), vr(ta)))
    A('s_lshl_b32 %s, %s, 5' % (sr(s_t2), sr(s_w)))
    A('v_add_u32 %s, %s, %s' % (vr(ta), sr(s_t2), vr(ta)))
    A('v_add_u32 %s, 65536, %s' % (vr(tb), vr(ta)))
    for k in range(8):
        for u in range(2):
            for bh in range(2):
                for q in range(2):
                    A('ds_read_b64_tr_b16 %s, %s offset:%d' % (ar(W2 + 8 * (k * 2 + u) + 4 * bh + 2 * q, 2), vr(ta if k < 4 else tb), (k & 3) * 16384 + q * 4096 + bh * 2048 + u * 128))
            A('s_waitcnt lgkmcnt(8)')
    A.label(LtJ)
    A('s_waitcnt lgkmcnt(0)')
    A('s_barrier')

    def pf_ops():
        o = []
        for eb in range(4):
            so = s_kx if eb < 2 else s_kx2
            o.append('buffer_load_dwordx4 %s, %s, %s, %s offen offset:%d sc1' % (vr(KXA + 4 * eb, 4), vr(va_kx), sr(SRD_WS, 4), sr(so), (eb & 1) * 2048))
            o.append('buffer_load_dwordx4 %s, %s, %s, %s offen offset:%d sc1' % (vr(KXB + 4 * eb, 4), vr(va_kx), sr(SRD_WS, 4), sr(so), (eb & 1) * 2048 + 128))
        for T in range(8):
            eb = T >> 1
            so = s_kx if eb < 2 else s_kx2
            o.append('buffer_load_dwordx4 %s, %s, %s, %s offen offset:%d sc1' % (vr(VXR + 4 * T, 4), vr(va_vx), sr(SRD_WS, 4), sr(so), (eb & 1) * 2048 + (T & 1) * 256))
        return o

    def emit(t):
        A(t)
        if t.startswith('buffer_'):
            nvm[0] += 1

    A('s_mov_b32 %s, 0' % sr(s_step))
    A('s_mov_b32 %s, 0x40404044' % sr(s_kvm))
    A('s_mov_b32 %s, 0x00404040' % sr(s_kvm + 1))
    A('s_mov_b32 %s, 0' % sr(s_slot))
    A('s_mov_b32 %s, 0x20000' % sr(s_slot1))
    A('s_mov_b32 %s, 0x40000' % sr(s_slot2))
    A('s_mov_b32 %s, 0' % sr(s_slotp))
    A('s_mov_b32 %s, 0' % sr(s_kx))
    A('s_mov_b32 %s, 4096' % sr(s_kx2))
    A('s_mov_b32 %s, 0' % sr(s_out))
    A('s_mov_b32 %s, 0x%x' % (sr(s_outp), WS_BYTES))
    A('s_mov_b32 %s, 0' % sr(s_ps))
    A('s_mov_b32 %s, 0x80000' % sr(s_ps2))
    A('s_mov_b32 %s, %d' % (sr(s_kvo), DBG_KV0 * 128))

    def kv_wait(tag):
        Lw, Ld, L0 = A.uid('kvw' + tag), A.uid('kvd' + tag), A.uid('kv0' + tag)
        A('s_mov_b32 %s, 0' % sr(s_cnt))
        A('s_branch ' + L0)
        A.label(Lw)
        A('s_sleep 6')
        A.label(L0)
        A('buffer_load_dword %s, %s, %s, %s offen sc1' % (vr(v_kvf), vr(v_sh), sr(SRD_WS, 4), sr(s_kvo)))
        A('s_add_u32 %s, %s, 1' % (sr(s_cnt), sr(s_cnt)))
        A('s_cmp_gt_u32 %s, %s' % (sr(s_cnt), sr(s_lim)))
        A('s_cbranch_scc1 ' + Ld)
        A('s_waitcnt vmcnt(0)')
        A('v_cmp_gt_u32 vcc, 32, %s' % vr(v_kvf))
        A('s_cbranch_vccnz ' + Lw)
        A.label(Ld)
        A('s_waitcnt vmcnt(0)')
    stamp(7)
    place_check(A, SRD_T, v_lane, v_t[0], v_t[1], s_cnt, POLL_LIMIT, L_restart)
    L_rdy, L_rdy_done, L_rdy0 = A.uid('rdy'), A.uid('rdyd'), A.uid('rdy0')
    A('v_mov_b32 %s, 32' % vr(v_t[0]))
    A('s_mov_b32 %s, 0' % sr(s_cnt))
    A('s_branch ' + L_rdy0)
    A.label(L_rdy)
    A('s_sleep 6')
    A.label(L_rdy0)
    A('buffer_load_dword %s, %s, %s, 0 offen sc1' % (vr(acc1 + 1), vr(v_t[0]), sr(SRD_T, 4)))
    A('s_add_u32 %s, %s, 1' % (sr(s_cnt), sr(s_cnt)))
    A('s_cmp_gt_u32 %s, %s' % (sr(s_cnt), sr(s_lim)))
    A('s_cbranch_scc1 ' + L_rdy_done)
    A('s_waitcnt vmcnt(0)')
    A('v_and_b32 %s, 0xffff, %s' % (vr(acc1), vr(acc1 + 1)))
    A('v_cmp_gt_u32 vcc, 128, %s' % vr(acc1))
    A('s_cbranch_vccnz ' + L_rdy)
    A.label(L_rdy_done)
    A('s_waitcnt vmcnt(0)')
    if TWO:
        A('s_lshr_b32 %s, %s, 1' % (sr(s_t2), sr(s_x)))
        A('s_lshl_b32 %s, %s, 2' % (sr(s_t2), sr(s_t2)))
        A('s_add_u32 %s, %s, 16' % (sr(s_t2), sr(s_t2)))
        A('v_bfe_u32 %s, %s, %s, 4' % (vr(acc1), vr(acc1 + 1), sr(s_t2)))
        A('v_cmp_lt_u32 vcc, 4, %s' % vr(acc1))
    else:
        A('v_lshrrev_b32 %s, 16, %s' % (vr(acc1), vr(acc1 + 1)))
        A('v_cmp_%s_u32 vcc, 16, %s' % ('lt' if NEARX else 'ge', vr(acc1)))
    A('v_mov_b32 %s, 8192' % vr(acc1 + 1))
    A('v_cndmask_b32 %s, 0, %s, vcc' % (vr(acc1), vr(acc1 + 1)))
    A('v_add_u32 %s, %s, %s' % (vr(va_pr), vr(va_pr), vr(acc1)))
    A('v_add_u32 %s, %s, %s' % (vr(va_pw), vr(va_pw), vr(acc1)))
    A('v_mul_u32_u24 %s, 252, %s' % (vr(acc1), vr(v_g)))
    A('v_sub_u32 %s, %s, %s' % (vr(va_pd), vr(va_pw), vr(acc1)))
    A('v_and_b32 %s, 0x%x, %s' % (vr(va_pd), 0xffffffff ^ 16384, vr(va_pd)))
    A('v_lshlrev_b32 %s, 8, %s' % (vr(acc1), vr(v_g)))
    A('v_sub_u32 %s, %s, %s' % (vr(va_pz), vr(va_pw), vr(acc1)))
    A('v_and_b32 %s, 1, %s' % (vr(acc1), vr(v_g)))
    A('v_lshlrev_b32 %s, 14, %s' % (vr(acc1), vr(acc1)))
    A('v_xor_b32 %s, %s, %s' % (vr(va_pz), vr(va_pz), vr(acc1)))
    A('v_lshrrev_b32 %s, 1, %s' % (vr(acc1), vr(v_g)))
    if TWO:
        A('v_lshlrev_b32 %s, 13, %s' % (vr(acc1), vr(acc1)))
        A('v_xor_b32 %s, %s, %s' % (vr(va_pz), vr(acc1), vr(va_pz)))
    else:
        A('v_lshl_add_u32 %s, %s, 28, %s' % (vr(va_pz), vr(acc1), vr(va_pz)))
    A('v_add_u32 %s, 16384, %s' % (vr(va_pw), vr(va_pd)))
    A('v_lshlrev_b32 %s, 2, %s' % (vr(acc1), vr(v_g)))
    A('v_sub_u32 %s, %s, %s' % (vr(va_pg), vr(va_pd), vr(acc1)))
    A('v_lshrrev_b32 %s, 1, %s' % (vr(acc1), vr(v_g)))
    A('v_lshl_add_u32 %s, %s, 14, %s' % (vr(va_pg), vr(acc1), vr(va_pg)))
    A('v_and_b32 %s, 1, %s' % (vr(acc1), vr(v_g)))
    A('v_lshl_add_u32 %s, %s, 28, %s' % (vr(va_pg), vr(acc1), vr(va_pg)))
    A('v_xor_b32 %s, 8192, %s' % (vr(va_pd), vr(va_pg)))
    kv_wait('0')
    stamp(9)
    dbgt(11)

    ool = []

    def poll(n, load, base, tag, on_ok=None, back=0):
        Lk = [A.uid('poll%s%d' % (tag, k)) for k in range(n)]
        Lc = [A.uid('chk%s%d' % (tag, k)) for k in range(n)]
        Lo = [A.uid('ok%s%d' % (tag, k)) for k in range(n)]
        Lfs = [A.uid('pollf%s%d' % (tag, k)) for k in range(n)]

        def issue(m):
            A.label(Lk[m])
            if back:
                A('s_sleep %d' % back)
            for k in range(m, n):
                A(load(k))
            A('s_add_u32 %s, %s, 1' % (sr(s_cnt), sr(s_cnt)))
            A('s_cmp_gt_u32 %s, %s' % (sr(s_cnt), sr(s_lim)))
            A('s_cbranch_scc1 ' + Lfs[m])
        A('s_mov_b32 %s, 0' % sr(s_cnt))
        issue(0)
        for m in range(n):
            A.label(Lc[m])
            A('s_waitcnt vmcnt(%d)' % (n - 1 - m))
            b = base + 4 * m
            A('v_max3_u32 %s, %s, %s, %s' % (vr(v_t[0]), vr(b), vr(b + 1), vr(b + 2)))
            A('v_max_u32 %s, %s, %s' % (vr(v_t[0]), vr(v_t[0]), vr(b + 3)))
            A('v_cmp_eq_u32 vcc, -1, %s' % vr(v_t[0]))
            A('s_cbranch_vccnz ' + Lk[m])
            A.label(Lo[m])
            if on_ok:
                on_ok(m)

        def tail():
            for m in range(1, n):
                issue(m)
                A('s_branch ' + Lc[m])
            for m in range(n):
                A.label(Lfs[m])
                A('s_mov_b32 %s, 0' % sr(s_lim))
                A('s_waitcnt vmcnt(0)')
                A('s_branch ' + Lo[m])
        ool.append(tail)

    def smf(acc, a, w):
        return 'v_smfmac_f32_16x16x64_bf16 %s, %s, %s, %s' % (vr(acc, 4), vr(a, 4), ar(w, 8), vr(v_idx))

    def okA(k):
        for tl in range(4):
            A(smf(AC + 4 * tl, M + 4 * k, W1 + 8 * (k * 4 + tl)))

    def pollA2():
        ld = lambda k: 'buffer_load_dwordx4 %s, %s, %s, %s offen offset:%d sc1' % (vr(M + 4 * k, 4), vr(va_memr), sr(SRD_WS, 4), sr(s_slot), k * 1024)
        Lr = [A.uid('rA%d' % k) for k in range(4)]
        Lo = [A.uid('oA%d' % k) for k in range(4)]

        def chk(k):
            b = M + 4 * k
            return ['s_waitcnt vmcnt(%d)' % (3 - k),
                    'v_max3_u32 %s, %s, %s, %s' % (vr(v_t[0]), vr(b), vr(b + 1), vr(b + 2)),
                    'v_max_u32 %s, %s, %s' % (vr(v_t[0]), vr(v_t[0]), vr(b + 3)),
                    'v_cmp_eq_u32 vcc, -1, %s' % vr(v_t[0])]
        A('s_mov_b32 %s, 1' % sr(s_cnt))
        for k in range(4):
            A(ld(k))
        for t in chk(0):
            A(t)
        for k in range(4):
            A('s_cbranch_vccnz ' + Lr[k])
            A.label(Lo[k])
            c = chk(k + 1) if k < 3 else []
            for tl in range(4):
                A(smf(AC + 4 * tl, M + 4 * k, W1 + 8 * (k * 4 + tl)))
                if c and tl < 3:
                    if tl == 0:
                        A(c.pop(0))
                    A(c.pop(0))

        def tail():
            for k in range(4):
                A.label(Lr[k])
                if A1P and k < 3:
                    Lg = A.uid('gA')
                    A(ld(k))
                    A('s_add_u32 %s, %s, 1' % (sr(s_cnt), sr(s_cnt)))
                    A('s_waitcnt vmcnt(0)')
                    for t in chk(k)[1:]:
                        A(t)
                    A('s_cbranch_vccz ' + Lg)
                    A('s_cmp_le_u32 %s, %s' % (sr(s_cnt), sr(s_lim)))
                    A('s_cbranch_scc1 ' + Lr[k])
                    A('s_mov_b32 %s, 0' % sr(s_lim))
                    A.label(Lg)
                    for m in range(k + 1, 4):
                        A(ld(m))
                    A('s_branch ' + Lo[k])
                    continue
                for m in range(k, 4):
                    A(ld(m))
                A('s_add_u32 %s, %s, 1' % (sr(s_cnt), sr(s_cnt)))
                for t in chk(k):
                    A(t)
                A('s_cbranch_vccz ' + Lo[k])
                A('s_cmp_le_u32 %s, %s' % (sr(s_cnt), sr(s_lim)))
                A('s_cbranch_scc1 ' + Lr[k])
                A('s_mov_b32 %s, 0' % sr(s_lim))
                A('s_branch ' + Lo[k])
        ool.append(tail)

    def advance():
        A('s_add_u32 %s, %s, 1' % (sr(s_step), sr(s_step)))
        A('s_mov_b32 %s, %s' % (sr(s_slotp), sr(s_slot)))
        A('s_mov_b32 %s, %s' % (sr(s_outp), sr(s_out)))
        A('s_mov_b32 %s, %s' % (sr(s_slot), sr(s_slot1)))
        A('s_mov_b32 %s, %s' % (sr(s_slot1), sr(s_slot2)))
        A('s_add_u32 %s, %s, 0x20000' % (sr(s_slot2), sr(s_slot2)))
        A('s_and_b32 %s, %s, 0x7ffff' % (sr(s_slot2), sr(s_slot2)))
        A('s_add_u32 %s, %s, 0x20000' % (sr(s_out), sr(s_out)))
        A('s_lshl_b32 %s, %s, 1' % (sr(s_ps), sr(s_slot)))
        A('s_lshl_b32 %s, %s, 1' % (sr(s_ps2), sr(s_slot2)))
        if stamps:
            A('s_add_u32 %s, %s, 64' % (sr(s_stl), sr(s_stl)))

    def ha_write(tl):
        return ['v_permlane32_swap_b32 %s, %s' % (vr(AC + 4 * tl), vr(AC + 4 * tl + 2)),
                'v_permlane32_swap_b32 %s, %s' % (vr(AC + 4 * tl + 1), vr(AC + 4 * tl + 3)),
                'v_pk_add_f32 %s, %s, %s' % (vr(HA + 2 * tl, 2), vr(AC + 4 * tl, 2), vr(AC + 4 * tl + 2, 2)),
                'ds_write_b64 %s, %s offset:%d' % (vr(va_rw), vr(HA + 2 * tl, 2), tl * 512)]

    def kv_stuff():
        L_kvok, L_kvslow, L_nokv, L_dokv = A.uid('kvok'), A.uid('kvslow'), A.uid('nokv'), A.uid('dokv')
        A('v_cmp_gt_u32 vcc, 32, %s' % vr(v_kvf))
        A('s_cbranch_vccnz ' + L_kvslow)
        A.label(L_kvok)
        A('s_bitcmp1_b64 %s, %s' % (sr(s_kvm, 2), sr(s_step)))
        A('s_cbranch_scc1 ' + L_dokv)
        A.label(L_nokv)

        def t():
            A.label(L_kvslow)
            kv_wait('s')
            A('s_branch ' + L_kvok)
            A.label(L_dokv)
            A('s_add_u32 %s, %s, 2' % (sr(s_kvo), sr(s_step)))
            A('s_lshr_b32 %s, %s, 3' % (sr(s_kvo), sr(s_kvo)))
            A('s_lshl_b32 %s, %s, 9' % (sr(s_kvo), sr(s_kvo)))
            A('s_add_u32 %s, %s, %d' % (sr(s_kvo), sr(s_kvo), DBG_KV * 128))
            A('buffer_load_dword %s, %s, %s, %s offen sc1' % (vr(v_kvf), vr(v_sh), sr(SRD_WS, 4), sr(s_kvo)))
            A('s_branch ' + L_nokv)
        ool.append(t)

    L_lastR, L_lastN, L_fin = name + '_lastR', name + '_lastN', name + '_fin'

    def loop(red, fl):
        tg = ('r' if red else 'n') + ('f' if fl else '')
        ISC = ' sc1' if fl else ''
        nacc = 32 if red else 16
        L_st, L_B = name + '_step' + tg, name + '_B' + tg

        def zero_acc():
            for i in range(nacc):
                A('v_mov_b32 %s, 0' % vr(AC + i))
        A.label(name + '_first' + tg)
        if not red:
            for t in pf_ops():
                A(t)
        zero_acc()
        for k in range(4):
            okA(k)
        A('s_branch ' + L_B)
        A.label(L_st)
        if not (red and ZE):
            zero_acc()
        if A2:
            pollA2()
        else:
            poll(4, lambda k: 'buffer_load_dwordx4 %s, %s, %s, %s offen offset:%d sc1' % (vr(M + 4 * k, 4), vr(va_memr), sr(SRD_WS, 4), sr(s_slot), k * 1024), M, 'A', okA)
        A.label(L_B)
        stamp(0)
        vs = [smf(AC + 16 + 4 * tv, M + 4 * k, W2 + 8 * (k * 4 + tv)) for tv in range(4) for k in range(4)] if red else []
        ne = VS[0]
        for tl in range(4):
            h = ha_write(tl)
            if vs and ne > 0:
                A(vs.pop(0))
                ne -= 1
            A(h[0])
            A(h[1])
            if vs and ne > 3 - tl:
                A(vs.pop(0))
                ne -= 1
            A(h[2])
            A(h[3])
        for _ in range(VS[1]):
            if vs:
                A(vs.pop(0))
        A('s_waitcnt lgkmcnt(0)')
        A('s_barrier')
        A('ds_read_b128 %s, %s' % (vr(RD, 4), vr(va_rr)))
        A('ds_read_b128 %s, %s offset:4096' % (vr(RD + 4, 4), vr(va_rr)))
        for _ in range(VS[2]):
            if vs:
                A(vs.pop(0))
        A('s_waitcnt lgkmcnt(0)')
        A('v_pk_add_f32 %s, %s, %s' % (vr(RD, 2), vr(RD, 2), vr(RD + 4, 2)))
        A('v_pk_add_f32 %s, %s, %s' % (vr(RD + 2, 2), vr(RD + 2, 2), vr(RD + 6, 2)))
        A('v_permlane32_swap_b32 %s, %s' % (vr(RD), vr(RD + 1)))
        A('v_permlane32_swap_b32 %s, %s' % (vr(RD + 2), vr(RD + 3)))
        A('v_add_f32 %s, %s, %s' % (vr(v_t[0]), vr(RD), vr(RD + 1)))
        A('v_add_f32 %s, %s, %s' % (vr(v_t[1]), vr(RD + 2), vr(RD + 3)))
        A('v_cvt_pk_bf16_f32 %s, %s, %s' % (vr(v_t[2]), vr(v_t[0]), vr(v_t[1])))
        A('v_pk_min_u16 %s, %s, %s' % (vr(v_t[2]), vr(v_t[2]), sr(s_fffe)))
        A('buffer_store_dword %s, %s, %s, %s offen%s' % (vr(v_t[2]), vr(va_qks), sr(SRD_WS, 4), sr(s_slot), ISC))
        if red:
            for tv in range(4):
                while vs and len(vs) > 4 * (3 - tv) - 4:
                    A(vs.pop(0))
                for t in ha_write(4 + tv):
                    A(t)
            A('s_waitcnt lgkmcnt(0)')
            A('s_barrier')
            A('ds_read_b128 %s, %s offset:2048' % (vr(RD, 4), vr(va_rr)))
            A('ds_read_b128 %s, %s offset:6144' % (vr(RD + 4, 4), vr(va_rr)))
            A('s_waitcnt lgkmcnt(0)')
            A('v_pk_add_f32 %s, %s, %s' % (vr(RD, 2), vr(RD, 2), vr(RD + 4, 2)))
            A('v_pk_add_f32 %s, %s, %s' % (vr(RD + 2, 2), vr(RD + 2, 2), vr(RD + 6, 2)))
            A('v_permlane32_swap_b32 %s, %s' % (vr(RD), vr(RD + 2)))
            A('v_permlane32_swap_b32 %s, %s' % (vr(RD + 1), vr(RD + 3)))
            A('v_pk_add_f32 %s, %s, %s' % (vr(RD, 2), vr(RD, 2), vr(RD + 2, 2)))
            A('v_cvt_pk_bf16_f32 %s, %s, %s' % (vr(v_t[3]), vr(RD), vr(RD + 1)))
            A('v_pk_min_u16 %s, %s, %s' % (vr(v_t[3]), vr(v_t[3]), sr(s_fffe)))
            A('buffer_store_dword %s, %s, %s, %s offen%s' % (vr(v_t[3]), vr(va_vs), sr(SRD_WS, 4), sr(s_slot), ISC))
            stamp(1)
            A('buffer_load_dwordx4 %s, %s, %s, %s offen sc1' % (vr(RB, 4), vr(va_rb), sr(SRD_WS, 4), sr(s_slotp)))
            A('v_mov_b32 %s, %s' % (vr(v_junk2), sr(s_step)))
            A('s_waitcnt vmcnt(0)')
            A('s_barrier')
            A('buffer_store_dwordx4 %s, %s, %s, %s offen sc1' % (vr(RB, 4), vr(va_cp), sr(SRD_WS, 4), sr(s_outp)))
            A('buffer_store_dword %s, %s, %s, 0 offen sc1' % (vr(v_junk2), vr(va_prog), sr(SRD_WS, 4)))
            A('s_cmp_ge_u32 %s, %d' % (sr(s_step), nsteps - 1))
            A('s_cbranch_scc1 ' + L_lastR)
            A('s_add_u32 %s, %s, 0x40000' % (sr(s_kx), sr(s_kx)))
            kv_stuff()
            A('buffer_load_dword %s, %s, %s, %s offen sc1' % (vr(v_junk), vr(va_warm), sr(SRD_WS, 4), sr(s_kx)))
            A('buffer_store_dwordx4 %s, %s, %s, %s offen sc1' % (vr(v_m1, 4), vr(va_pz), sr(SRD_WS, 4), sr(s_ps2)))
            A('buffer_store_dwordx4 %s, %s, %s, %s offen%s' % (vr(v_m1, 4), vr(va_rb), sr(SRD_WS, 4), sr(s_slot2), ISC))
            A('buffer_store_dword %s, %s, %s, %s offen%s' % (vr(v_m1), vr(va_mems), sr(SRD_WS, 4), sr(s_slot2), ISC))
            if ZE:
                zero_acc()
            if DELAY_E:
                A('s_sleep %d ; nothing can arrive before the attention is through: do not poll yet' % DELAY_E)
            if HINT:
                Lh, Lhd = A.uid('h'), A.uid('hd')
                A('s_mov_b32 %s, 0' % sr(s_cnt))
                A.label(Lh)
                A('buffer_load_dword %s, %s, %s, 0 offen sc1' % (vr(v_t[0]), vr(va_flg), sr(SRD_WS, 4)))
                A('s_add_u32 %s, %s, 1' % (sr(s_cnt), sr(s_cnt)))
                A('s_cmp_gt_u32 %s, %s' % (sr(s_cnt), sr(s_lim)))
                A('s_cbranch_scc1 ' + Lhd)
                A('s_waitcnt vmcnt(0)')
                A('v_cmp_ne_u32 vcc, %s, %s' % (sr(s_step), vr(v_t[0])))
                A('s_cbranch_vccnz ' + Lh)
                A.label(Lhd)
                if HINT > 1:
                    A('s_sleep %d ; partials still in flight: a read that comes too early costs a second fabric round trip' % (HINT - 1))

            def okE(k):
                A('v_mfma_f32_16x16x32_bf16 %s, %s, %s, %s' % (vr(LS, 4), vr(PR + 4 * k, 4), vr(v_sel, 4), '0' if k == 0 else vr(LS, 4)))
            poll(2, lambda k: 'buffer_load_dwordx4 %s, %s, %s, %s offen offset:%d sc1' % (vr(PR + 4 * k, 4), vr(va_pr), sr(SRD_WS, 4), sr(s_ps), k * 1024), PR, 'E', okE, back=E_BACK)
            stamp(6)
            advance()
            A('v_cvt_pk_bf16_f32 %s, %s, %s' % (vr(v_t[2]), vr(LS), vr(LS + 1)))
            A('v_cvt_pk_bf16_f32 %s, %s, %s' % (vr(v_t[3]), vr(LS + 2), vr(LS + 3)))
            A('v_cndmask_b32 %s, %s, %s, %s' % (vr(v_t[2]), vr(v_t[2]), vr(v_t[3]), sr(s_hf, 2)))
            A('v_pk_min_u16 %s, %s, %s' % (vr(v_t[2]), vr(v_t[2]), sr(s_fffe)))
            A('buffer_store_dword %s, %s, %s, %s offen%s' % (vr(v_t[2]), vr(va_mems), sr(SRD_WS, 4), sr(s_slot), ISC))
            if RED_SLEEP:
                A('s_sleep %d ; first poll when the other reducers stores can be visible' % RED_SLEEP)
            A('s_branch ' + L_st)
            return
        stamp(1)
        A('s_cmp_ge_u32 %s, %d' % (sr(s_step), nsteps - 1))
        A('s_cbranch_scc1 ' + L_lastN)
        A('s_add_u32 %s, %s, 0x40000' % (sr(s_kx), sr(s_kx)))
        A('s_add_u32 %s, %s, 0x40000' % (sr(s_kx2), sr(s_kx2)))
        for i in range(4):
            A('v_mov_b32 %s, 0' % vr(acc1 + i))
            A('v_mov_b32 %s, 0' % vr(acc2 + i))
        A('v_mov_b32 %s, %s' % (vr(v_junk2), sr(s_step)))
        if DELAY_C:
            A('s_sleep %d ; first poll when the other CUs q/k stores can be visible' % DELAY_C)
        Lc, Lcf, Lcd = A.uid('pC'), A.uid('pCf'), A.uid('pCd')
        A('s_mov_b32 %s, 1' % sr(s_cnt))
        A.label(Lc)
        for k in range(4):
            A('buffer_load_dwordx4 %s, %s, %s, %s offen offset:%d sc1' % (vr(QK + 4 * k, 4), vr(va_qkr), sr(SRD_WS, 4), sr(s_slot), k * 1024))
        for t in range(4):
            A('s_waitcnt vmcnt(%d)' % (3 - t))
            q = QK + 4 * t
            A('v_mfma_f32_16x16x32_bf16 %s, %s, %s, %s' % (vr(SA, 4), vr(KXA + 4 * t, 4), vr(q, 4), vr(v_maskx, 4) if t == 0 else vr(SA, 4)))
            if t == 0:
                A('v_max3_u32 %s, %s, %s, %s' % (vr(v_t[0]), vr(q), vr(q + 1), vr(q + 2)))
            else:
                A('v_max3_u32 %s, %s, %s, %s' % (vr(v_t[0]), vr(v_t[0]), vr(q), vr(q + 1)))
            A('v_mfma_f32_16x16x32_bf16 %s, %s, %s, %s' % (vr(SB, 4), vr(KXB + 4 * t, 4), vr(q, 4), vr(v_maskx, 4) if t == 0 else vr(SB, 4)))
            if t == 0:
                A('v_max_u32 %s, %s, %s' % (vr(v_t[0]), vr(v_t[0]), vr(q + 3)))
            else:
                A('v_max3_u32 %s, %s, %s, %s' % (vr(v_t[0]), vr(v_t[0]), vr(q + 2), vr(q + 3)))
            if t == 3:
                A('v_cmp_eq_u32 vcc, -1, %s' % vr(v_t[0]))
            A('v_mfma_f32_16x16x32_bf16 %s, %s, %s, %s' % (vr(SM, 4), vr(q, 4), vr(q, 4), vr(v_mask, 4) if t == 0 else vr(SM, 4)))
        A('s_cbranch_vccnz ' + Lcf)
        A.label(Lcd)

        def tailC():
            A.label(Lcf)
            A('s_add_u32 %s, %s, 1' % (sr(s_cnt), sr(s_cnt)))
            A('s_cmp_le_u32 %s, %s' % (sr(s_cnt), sr(s_lim)))
            A('s_cbranch_scc1 ' + Lc)
            A('s_mov_b32 %s, 0' % sr(s_lim))
            A('s_branch ' + Lcd)
        ool.append(tailC)
        stamp(2)

        def vload(k):
            return 'buffer_load_dwordx4 %s, %s, %s, %s offen offset:%d sc1' % (vr(VMR + 4 * k, 4), vr(va_vmr), sr(SRD_WS, 4), sr(s_slot), k * 1024)
        side = pf_ops() if not NOPF else []
        s = [SA + i for i in range(12)]
        sm = []
        sm.append('v_max3_f32 %s, %s, %s, %s' % (vr(v_mx), vr(s[0]), vr(s[1]), vr(s[2])))
        sm.append('v_max3_f32 %s, %s, %s, %s' % (vr(v_mx2), vr(s[3]), vr(s[4]), vr(v_bias)))
        sm.append('v_max3_f32 %s, %s, %s, %s' % (vr(v_mx), vr(v_mx), vr(s[5]), vr(s[6])))
        sm.append('v_max3_f32 %s, %s, %s, %s' % (vr(v_mx2), vr(v_mx2), vr(s[7]), vr(s[8])))
        sm.append('v_max3_f32 %s, %s, %s, %s' % (vr(v_mx), vr(v_mx), vr(s[9]), vr(s[10])))
        sm.append('v_max3_f32 %s, %s, %s, %s' % (vr(v_mx), vr(v_mx), vr(v_mx2), vr(s[11])))
        for sw in ('v_permlane32_swap_b32', 'v_permlane16_swap_b32'):
            sm.append('v_mov_b32 %s, %s' % (vr(v_mx2), vr(v_mx)))
            sm.append('%s %s, %s' % (sw, vr(v_mx), vr(v_mx2)))
            sm.append('v_max_f32 %s, %s, %s' % (vr(v_mx), vr(v_mx), vr(v_mx2)))
        sm.append('v_mul_f32 %s, %s, %s' % (vr(v_mx), sr(s_c), vr(v_mx)))
        if PKF:
            for i in range(0, 8, 2):
                sm.append('v_pk_fma_f32 %s, %s, %s, %s op_sel_hi:[1,0,0] neg_lo:[0,0,1] neg_hi:[0,0,1]' % (vr(s[i], 2), vr(s[i], 2), vr(v_cc, 2), vr(v_mx, 2)))
        else:
            for i in range(8):
                sm.append('v_fma_f32 %s, %s, %s, -%s' % (vr(s[i]), vr(s[i]), sr(s_c), vr(v_mx)))
        for i in range(8):
            sm.append('v_exp_f32 %s, %s' % (vr(s[i]), vr(s[i])))
            if i >= 2 and i % 2 == 0:
                sm.append('v_cvt_pk_bf16_f32 %s, %s, %s' % (vr(PX + i // 2 - 1), vr(s[i - 2]), vr(s[i - 1])))
        sm.append('v_fma_f32 %s, %s, %s, -%s' % (vr(s[8]), vr(s[8]), sr(s_c), vr(v_mx)))
        sm.append('v_cvt_pk_bf16_f32 %s, %s, %s' % (vr(PX + 3), vr(s[6]), vr(s[7])))
        sm.append('v_fma_f32 %s, %s, %s, -%s' % (vr(s[9]), vr(s[9]), sr(s_c), vr(v_mx)))
        for i, m in enumerate(sm):
            if PKF:
                if i == 7:
                    A(vload(0))
                    A(vload(1))
            elif i == DELAY_V:
                A(vload(0))
                A(vload(1))
            A(m)
        stamp(3)

        def dpp8(d, srcr):
            return 'v_mov_b32_dpp %s, %s row_shr:8 row_mask:0xf bank_mask:0xf bound_ctrl:0' % (vr(d), vr(srcr))
        t = v_t
        sh = []
        for i in range(10, 12):
            sh.append('v_fma_f32 %s, %s, %s, -%s' % (vr(s[i]), vr(s[i]), sr(s_c), vr(v_mx)))
        for i in range(4):
            sh.append(dpp8(PXH + i, PX + i))
        for i in range(8, 12):
            sh.append('v_exp_f32 %s, %s' % (vr(s[i]), vr(s[i])))
        for i in range(2):
            sh.append('v_cvt_pk_bf16_f32 %s, %s, %s' % (vr(PM + i), vr(s[8 + 2 * i]), vr(s[9 + 2 * i])))
        ls16 = 'v_mfma_f32_16x16x16_bf16 %s, %s, %s, %s' % (vr(LS, 4), vr(v_ones, 2), vr(PM, 2), vr(LS, 4))
        if PV2:
            sh.append(dpp8(PMH, PM))
            sh.append(dpp8(PMH + 1, PM + 1))
            sh.append(ls16)
            sh.append('s_waitcnt vmcnt(0)')
            sh.append('v_max3_u32 %s, %s, %s, %s' % (vr(t[0]), vr(VMR), vr(VMR + 1), vr(VMR + 2)))
            sh.append('v_max3_u32 %s, %s, %s, %s' % (vr(t[1]), vr(VMR + 3), vr(VMR + 4), vr(VMR + 5)))
            sh.append('v_permlane32_swap_b32 %s, %s' % (vr(PMH), vr(PM)))
            sh.append('v_permlane32_swap_b32 %s, %s' % (vr(PMH + 1), vr(PM + 1)))
            sh.append('v_max3_u32 %s, %s, %s, %s' % (vr(t[0]), vr(t[0]), vr(VMR + 6), vr(VMR + 7)))
            sh.append('v_max_u32 %s, %s, %s' % (vr(t[0]), vr(t[0]), vr(t[1])))
            sh.append('v_cmp_eq_u32 vcc, -1, %s' % vr(t[0]))
            sh.append('v_rcp_f32 %s, %s' % (vr(v_l), vr(LS)))
        else:
            sh.append('s_waitcnt vmcnt(0)')
            sh.append('v_max3_u32 %s, %s, %s, %s' % (vr(t[0]), vr(VMR), vr(VMR + 1), vr(VMR + 2)))
            sh.append('v_max3_u32 %s, %s, %s, %s' % (vr(t[1]), vr(VMR + 3), vr(VMR + 4), vr(VMR + 5)))
            sh.append(dpp8(PMH, PM))
            sh.append(dpp8(PMH + 1, PM + 1))
            sh.append('v_max3_u32 %s, %s, %s, %s' % (vr(t[0]), vr(t[0]), vr(VMR + 6), vr(VMR + 7)))
            sh.append('v_max_u32 %s, %s, %s' % (vr(t[0]), vr(t[0]), vr(t[1])))
            sh.append('v_permlane32_swap_b32 %s, %s' % (vr(PMH), vr(PM)))
            sh.append('v_permlane32_swap_b32 %s, %s' % (vr(PMH + 1), vr(PM + 1)))
            sh.append('v_cmp_eq_u32 vcc, -1, %s' % vr(t[0]))
        mf = ['v_mfma_f32_16x16x32_bf16 %s, %s, %s, 0' % (vr(LS, 4), vr(v_ones, 4), vr(PX, 4))]
        for a in range(4):
            mf.append('v_mfma_f32_16x16x32_bf16 %s, %s, %s, 0' % (vr(O + 4 * a, 4), vr(VXR + 4 * a, 4), vr(PX, 4)))
        for a in range(4):
            mf.append('v_mfma_f32_16x16x32_bf16 %s, %s, %s, %s' % (vr(O + 4 * a, 4), vr(VXR + 4 * (a + 4), 4), vr(PXH, 4), vr(O + 4 * a, 4)))
        per = [3, 3, 2, 2, 2, 3, 3, 3, 2] if PV2 else [3, 3, 2, 2, 2, 2, 3, 3, 1]
        for i, m in enumerate(mf):
            A(m)
            for _ in range(per[i]):
                if sh:
                    x = sh.pop(0)
                    if x.startswith('s_waitcnt'):
                        A(x)
                        x = sh.pop(0)
                    A(x)
        assert not sh
        Lv_ok, Lv_slow = A.uid('vok'), A.uid('vslow')
        A('s_cbranch_vccnz ' + Lv_slow)
        A.label(Lv_ok)

        def tailV():
            A.label(Lv_slow)
            poll(2, vload, VMR, 'V')
            A('s_branch ' + Lv_ok)
        ool.append(tailV)
        if not PV2:
            A(ls16)
        for a in range(4):
            A('v_mfma_f32_16x16x16_bf16 %s, %s, %s, %s' % (vr(O + 4 * a, 4), vr(VMR + 2 * a, 2), vr(PM, 2), vr(O + 4 * a, 4)))
            if PV2 and a == 1:
                A('v_mov_b32_dpp %s, %s row_shr:8 row_mask:0xf bank_mask:0xc' % (vr(v_l), vr(v_l)))
        if not PV2:
            A('v_rcp_f32 %s, %s' % (vr(v_l), vr(LS)))
            A('v_mov_b32_dpp %s, %s row_shr:8 row_mask:0xf bank_mask:0xc' % (vr(v_l), vr(v_l)))
        for a in range(4):
            for r in range(0, 4, 2):
                A('v_pk_mul_f32 %s, %s, %s op_sel_hi:[1,0]' % (vr(O + 4 * a + r, 2), vr(O + 4 * a + r, 2), vr(v_l, 2)))
            A('v_cvt_pk_bf16_f32 %s, %s, %s' % (vr(XY + a), vr(O + 4 * a), vr(O + 4 * a + 1)))
            A('v_cvt_pk_bf16_f32 %s, %s, %s' % (vr(XY + 4 + a), vr(O + 4 * a + 2), vr(O + 4 * a + 3)))
        A('ds_write_b128 %s, %s' % (vr(va_ow), vr(XY, 4)))
        A('ds_write_b128 %s, %s offset:128' % (vr(va_ow), vr(XY + 4, 4)))
        A('s_waitcnt lgkmcnt(0)')
        stamp(4)
        A('s_barrier')
        if HINT:
            A('buffer_store_dword %s, %s, %s, 0 offen%s' % (vr(v_junk2), vr(va_flg), sr(SRD_WS, 4), ISC))
        for k in range(8):
            A('ds_read_b128 %s, %s offset:%d' % (vr(G + 4 * k, 4), vr(va_or), k * 1024))
        def epi3(acc, va):
            return ['v_permlane32_swap_b32 %s, %s' % (vr(acc), vr(acc + 2)),
                    'v_permlane32_swap_b32 %s, %s' % (vr(acc + 1), vr(acc + 3)),
                    'v_pk_add_f32 %s, %s, %s' % (vr(acc, 2), vr(acc, 2), vr(acc + 2, 2)),
                    'v_cvt_pk_bf16_f32 %s, %s, %s' % (vr(acc), vr(acc), vr(acc + 1)),
                    'v_pk_min_u16 %s, %s, %s' % (vr(acc), vr(acc), sr(s_fffe)),
                    'buffer_store_dword %s, %s, %s, %s offen sc1' % (vr(acc), vr(va), sr(SRD_WS, 4), sr(s_ps))]
        if S3 == 2:
            D = VMR
            for k in range(8):
                A('s_waitcnt lgkmcnt(%d)' % (7 - k))
                A(smf(acc1, G + 4 * k, W2 + 8 * (2 * k)))
                if k < 2:
                    A(smf(acc2, G + 4 * k, W2 + 8 * (2 * k + 1)))
            e1 = epi3(acc1, va_pd)[:3] + ['v_cvt_pk_bf16_f32 %s, %s, %s' % (vr(D), vr(acc1), vr(acc1 + 1)),
                                          'v_pk_min_u16 %s, %s, %s' % (vr(D), vr(D), sr(s_fffe))]
            for k in range(2, 8):
                A(smf(acc2, G + 4 * k, W2 + 8 * (2 * k + 1)))
                if k >= 4:
                    for _ in range(2):
                        if e1:
                            A(e1.pop(0))
            for t_ in e1 + epi3(acc2, va_pw)[:3]:
                A(t_)
            A('v_cvt_pk_bf16_f32 %s, %s, %s' % (vr(D + 2), vr(acc2), vr(acc2 + 1)))
            A('v_pk_min_u16 %s, %s, %s' % (vr(D + 2), vr(D + 2), sr(s_fffe)))
            A('v_permlane32_swap_b32 %s, %s' % (vr(D), vr(D + 2)))
            A('v_permlane16_swap_b32 %s, %s' % (vr(D), vr(D + 1)))
            A('v_permlane16_swap_b32 %s, %s' % (vr(D + 2), vr(D + 3)))
            if TWO:
                A('buffer_store_dwordx4 %s, %s, %s, %s offen sc1' % (vr(D, 4), vr(va_pd), sr(SRD_WS, 4), sr(s_ps)))
            A('buffer_store_dwordx4 %s, %s, %s, %s offen sc1' % (vr(D, 4), vr(va_pg), sr(SRD_WS, 4), sr(s_ps)))
        elif S3:
            for k in range(8):
                A('s_waitcnt lgkmcnt(%d)' % (7 - k))
                A(smf(acc1, G + 4 * k, W2 + 8 * (2 * k)))
                if k < 2:
                    A(smf(acc2, G + 4 * k, W2 + 8 * (2 * k + 1)))
            e1 = epi3(acc1, va_pd)
            for k in range(2, 8):
                A(smf(acc2, G + 4 * k, W2 + 8 * (2 * k + 1)))
                if k >= 4:
                    for _ in range(2):
                        if e1:
                            A(e1.pop(0))
            for t_ in e1 + epi3(acc2, va_pw):
                A(t_)
        else:
            for k in range(8):
                A('s_waitcnt lgkmcnt(%d)' % (7 - k))
                A(smf(acc1, G + 4 * k, W2 + 8 * (2 * k)))
                A(smf(acc2, G + 4 * k, W2 + 8 * (2 * k + 1)))
            for t_ in epi3(acc1, va_pd) + epi3(acc2, va_pw):
                A(t_)
        stamp(5)
        kv_stuff()
        for x in side:
            A(x)
        advance()
        if NOE_SLEEP:
            A('s_sleep %d ; the next memory state needs a cross-XCD exchange first: do not poll yet' % NOE_SLEEP)
        A('s_branch ' + L_st)

    L_safe = A.uid('safe')
    A('s_cmp_lg_u32 s%d, 0' % S_MODE)
    A('s_cbranch_scc1 ' + L_safe)
    for fl in (False, True):
        if fl:
            A.label(L_safe)
        A('s_cmp_lg_u32 %s, 0' % sr(s_red))
        A('s_cbranch_scc1 ' + name + '_firstn' + ('f' if fl else ''))
        loop(True, fl)
        loop(False, fl)
        while ool:
            ool.pop(0)()
    A.label(L_lastN)
    A('s_waitcnt vmcnt(0)')
    A('s_barrier')
    A('s_cmp_lg_u32 %s, 0' % sr(s_w))
    A('s_cbranch_scc1 ' + L_fin)
    A.label(L_lastR)
    A('s_cmp_eq_u32 %s, 2' % sr(s_w))
    A('s_cbranch_scc1 ' + L_fin)
    A('buffer_load_dwordx4 %s, %s, %s, %s offen sc1' % (vr(M, 4), vr(va_rb), sr(SRD_WS, 4), sr(s_slot)))
    A('s_waitcnt vmcnt(0)')
    A('buffer_store_dwordx4 %s, %s, %s, %s offen sc1' % (vr(M, 4), vr(va_cp), sr(SRD_WS, 4), sr(s_out)))
    A.label(L_fin)
    if stamps:
        A('s_waitcnt lgkmcnt(0)')
        A('v_lshlrev_b32 %s, 4, %s' % (vr(v_t[0]), vr(v_lane)))
        A('s_lshl_b32 %s, %s, 12' % (sr(s_t2), sr(s_w)))
        A('s_add_u32 %s, %s, 65536' % (sr(s_t2), sr(s_t2)))
        A('v_add_u32 %s, %s, %s' % (vr(v_t[1]), sr(s_t2), vr(v_t[0])))
        for k in range(4):
            A('ds_read_b128 %s, %s offset:%d' % (vr(F + 4 * k, 4), vr(v_t[1]), k * 1024))
        A('s_waitcnt lgkmcnt(0)')
        for k in range(4):
            A('buffer_store_dwordx4 %s, %s, %s, %s offen offset:%d' % (vr(F + 4 * k, 4), vr(v_t[0]), sr(SRD_WS, 4), sr(s_stamp), k * 1024))
    A('s_waitcnt vmcnt(0) lgkmcnt(0)')
    A('s_barrier')
    A('s_cmp_lg_u32 %s, 0' % sr(s_w))
    A('s_cbranch_scc1 ' + L_work)
    dbgt(12)
    A('s_lshr_b32 %s, %s, 1' % (sr(s_t0), sr(s_x)))
    A('s_lshl_b32 %s, %s, 7' % (sr(s_t0), sr(s_t0)))
    A('s_add_u32 %s, %s, 0x%x' % (sr(s_t0), sr(s_t0), CTR + DBG_FIN * 128))
    A('v_mov_b32 %s, %s' % (vr(v_t[0]), sr(s_t0)))
    A('v_mov_b32 %s, 1' % vr(v_t[1]))
    A('s_mov_b64 exec, 1')
    A('buffer_atomic_add %s, %s, %s, 0 offen sc1' % (vr(v_t[1]), vr(v_t[0]), sr(SRD_WS, 4)))
    A('s_mov_b64 exec, -1')
    A('s_branch ' + L_work)
    A.label(L_exit)
    A('s_endpgm')
    A.label(L_work)
    worker(A, name)
    A.label(name + '_end')
    A('s_endpgm')
    return dict(vgpr=512, accum=256, sgpr=102)
```

```python
from asmlib import *
from layout import *
from gemm import Gemm, Gemm16
from kernels import mk_srd, load_ptrs, out_direct, out_direct32, place_check, shift_ptrs
import attn
import os, json

LDS_JOB = 131072 + 64
LIM = 200000
WTOUCH = os.environ.get('WTOUCH', '')
WT_ODD = int(os.environ.get('WT_ODD', '1'))
WT2 = int(os.environ.get('WT2', '1'))
EARLY = int(os.environ.get('EARLY', '1'))
LAG = 2 if os.environ.get('OLDCHAIN') else 3
OVL = int(os.environ.get('OVL', '0'))
M16 = int(os.environ.get('M16', '1'))
PEEK = int(os.environ.get('PEEK', '0'))
WST = int(os.environ.get('WST', '0'))

BL = int(os.environ.get('BL', '0'))
SEGS = [('skv', 16, 0), ('bkv', 16, 1), ('skv', 16, 1), ('bkv', 32, 3), ('bkv', 8, 7), ('q', 16, 0), ('bq', 24, 0),
        ('aattn', 8, 0), ('q', 8, 4), ('aout', 8, 0), ('q', 8, 6), ('aattn', 8, 2), ('battn', 8, 0), ('aout', 8, 2),
        ('battn', 8, 8), ('aattn', 4, 4), ('battn', 16, 16), ('aout', 4, 4), ('aattn1', 4, 20), ('aattn1', 4, 21),
        ('wot', 16, 0), ('aoutr', 2, 10), ('aattn1', 4, 22), ('wot', 16, 16), ('aattn1', 4, 23), ('bout', 8, 0), ('aoutr', 2, 11),
        ('aattn1', 4, 24), ('aattn1', 4, 25), ('bout', 12, 8), ('aoutr', 2, 12), ('bout', 12, 20), ('aattn1', 4, 26),
        ('aattn1', 4, 27), ('aoutd', 8, 26), ('aattn1', 4, 28), ('aoutd', 8, 27), ('aattn1', 4, 29)]
ORD = os.environ.get('ORD', '2')
if ORD == '1':
    SEGS += [('aoutd', 8, 28), ('aattn1', 4, 30), ('aattn1', 4, 31), ('aoute', 16, 58), ('aoute', 16, 60), ('aoute', 16, 62)]
elif ORD == '0':
    SEGS += [('aattn1', 4, 30), ('aattn1', 4, 31), ('aoutd', 8, 28), ('aoute', 16, 58), ('aoute', 16, 60), ('aoute', 16, 62)]
elif ORD == '2':
    SEGS += [('aoutd', 8, 28), ('aattn1', 4, 30), ('aattn1', 4, 31), ('aoutd', 8, 29), ('aoute', 16, 60), ('aoute', 16, 62)]
elif ORD == '3':
    SEGS += [('aoutd', 8, 28), ('aattn1', 4, 30), ('aoutd', 8, 29), ('aattn1', 4, 31), ('aoute', 16, 62), ('aoute', 16, 60)]
elif ORD == '4':
    SEGS += [('aoutd', 8, 28), ('aattn1', 4, 30), ('aattn1', 4, 31), ('aoute', 16, 62), ('aoute', 16, 60), ('aoute', 16, 58)]
SEGS += [('bout', BL, 32 - BL)]
SEGS = [x for x in SEGS if x[1]]
_seen = set()
SEGS = [x for x in SEGS if not (x in _seen or _seen.add(x))]
if os.environ.get('SEGS'):
    SEGS = [tuple(x) for x in json.loads(os.environ['SEGS'])]


def seg_bounds():
    o, a = [], 0
    for k, n, p in SEGS:
        o.append((a, a + n, '%s%d' % (k, p)))
        a += n
    return o


def gen_worker(A, name):
    S = Regs('s', 4, 100)
    P = load_ptrs(A, S)
    SRD_WS = S.alloc(4, 4)
    SRD_D = S.alloc(4, 4)
    SRD_O = S.alloc(4, 4)
    s_w, s_q, s_qn, s_job, s_cfg, s0, s1, s2_, s3, s_base, s_tbs, s_or, s_ctr, s_inc, s_mt, s_nt, s_it, s_k, s_p = [S.alloc() for _ in range(19)]
    s_pp = S.alloc(2, 2)
    s_tm = S.alloc(2, 2)
    s_sa = S.alloc()

    def wstamp(k):
        if not WST:
            return
        A('s_memrealtime %s' % sr(s_tm, 2))
        A('s_waitcnt lgkmcnt(0)')
        A('v_mov_b32 v4, %s' % sr(s_tm))
        A('v_mov_b32 v5, %s' % sr(s_sa))
        A('s_mov_b64 exec, 1')
        A('buffer_store_dword v4, v5, %s, 0 offen offset:%d' % (sr(SRD_WS, 4), 4 * k))
        if k in (2, 3):
            A('s_memtime %s' % sr(s_tm, 2))
            A('s_waitcnt lgkmcnt(0)')
            A('v_mov_b32 v4, %s' % sr(s_tm))
            A('buffer_store_dword v4, v5, %s, 0 offen offset:%d' % (sr(SRD_WS, 4), 4 * (k + 4)))
        A('s_mov_b64 exec, -1')
    def dbgt(word):
        if not int(os.environ.get('DBGT', '0')):
            return
        Lx = A.uid('dt')
        A('s_cmp_lg_u32 %s, 0' % sr(s_w))
        A('s_cbranch_scc1 ' + Lx)
        A('s_memrealtime %s' % sr(s_tm, 2))
        A('s_waitcnt lgkmcnt(0)')
        A('v_mov_b32 v4, %s' % sr(s_tm))
        A('v_mov_b32 v5, %d' % (word * 4))
        A('s_mov_b64 exec, 1')
        A('buffer_atomic_umax v4, v5, %s, 0 offen sc1' % sr(SRD_D, 4))
        A('s_mov_b64 exec, -1')
        A.label(Lx)
    v_lane, v_l16, v_off, v_a, v_b, v_sh = 1, 2, 3, 4, 5, 6
    s_init = S.alloc()
    s_pe, p_base, p_tbs, p_ctr, p_inc = [S.alloc() for _ in range(5)]
    s_et = S.alloc()
    s_wo = S.alloc()
    s_wo2 = S.alloc()
    smark = S.mark()
    V4 = Regs('v', 8, 256)
    G4 = Gemm16(A, S, V4) if M16 else Gemm(A, S, V4, 4, 4)
    hi = S.mark()
    S.release(smark)
    V2 = Regs('v', 8, 256)
    G2 = Gemm(A, S, V2, 2, 2, xsc=' sc1', nst=4)
    assert (G2.SRD_X, G2.SRD_W, G2.s_xo, G2.s_n) == (G4.SRD_X, G4.SRD_W, G4.s_xo, G4.s_n)
    G = G4
    L_next, L_done = name + '_wnext', name + '_wdone'

    A('v_and_b32 %s, 63, v0' % vr(v_lane))
    A('v_lshrrev_b32 %s, 6, v0' % vr(v_l16))
    A('v_readfirstlane_b32 %s, %s' % (sr(s_w), vr(v_l16)))
    A('v_lshlrev_b32 %s, 4, %s' % (vr(v_l16), vr(v_lane)))
    A('v_and_b32 %s, 31, %s' % (vr(v_off), vr(v_lane)))
    A('v_lshlrev_b32 %s, 12, %s' % (vr(v_off), vr(v_off)))
    A('v_lshrrev_b32 %s, 5, %s' % (vr(v_a), vr(v_lane)))
    A('v_lshl_add_u32 %s, %s, 4, %s' % (vr(v_off), vr(v_a), vr(v_off)))
    A('s_and_b32 %s, s%d, 3' % (sr(s_q), S_VX))
    A('s_mov_b32 %s, 0' % sr(s_qn))
    A('s_mov_b32 %s, 0' % sr(s_cfg))
    A('s_mov_b32 %s, %d' % (sr(s_ctr), DBG_WT))
    A('s_waitcnt lgkmcnt(0)')
    shift_ptrs(A, P['ws'], P['dbg'], s0)
    mk_srd(A, SRD_WS, P['ws'], WS_HALF)
    mk_srd(A, SRD_D, P['dbg'], 128)
    mk_srd(A, SRD_O, P['out'], 2048 * 2048 * 2)

    A('v_and_b32 %s, 3, %s' % (vr(v_sh), vr(v_lane)))
    A('v_lshlrev_b32 %s, 7, %s' % (vr(v_sh), vr(v_sh)))
    A('v_add_u32 %s, 0x%x, %s' % (vr(v_sh), CTR, vr(v_sh)))
    A('v_mov_b32 v7, 0')
    A('s_mov_b32 %s, 0' % sr(s_init))
    A('s_mov_b32 %s, 0' % sr(s_et))
    A('s_mov_b32 %s, 0' % sr(s_pe))
    A('s_mov_b32 %s, %d' % (sr(p_ctr), DBG_WT))
    A('s_mov_b32 %s, 0' % sr(p_inc))
    v_tk = 7

    def early(nop=True):
        if not EARLY:
            return
        Le = A.uid('et')
        if nop:
            A('s_nop 11')
        A('s_cmp_eq_u32 %s, 0' % sr(s_init))
        A('s_cbranch_scc1 ' + Le)
        A('s_mov_b32 %s, 1' % sr(s_et))
        A('s_cmp_lg_u32 %s, 0' % sr(s_w))
        A('s_cbranch_scc1 ' + Le)
        A('s_lshl_b32 %s, %s, 7' % (sr(s_wo), sr(s_q)))
        A('s_add_u32 %s, %s, 0x%x' % (sr(s_wo), sr(s_wo), CTR + DBG_Q * 128))
        A('v_mov_b32 %s, %s' % (vr(v_a), sr(s_wo)))
        A('v_mov_b32 %s, 1' % vr(v_tk))
        A('s_mov_b64 exec, 1')
        A('buffer_atomic_add %s, %s, %s, 0 offen sc0 sc1' % (vr(v_tk), vr(v_a), sr(SRD_WS, 4)))
        A('s_mov_b64 exec, -1')
        A.label(Le)

    def wait_init():
        Lw, Ld = A.uid('iw'), A.uid('id')
        A('s_cmp_lg_u32 %s, 0' % sr(s_init))
        A('s_cbranch_scc1 ' + Ld)
        A('s_mov_b32 %s, 1' % sr(s_init))
        A('v_mov_b32 %s, %d' % (vr(v_a), DBG_INIT))
        A('s_mov_b32 %s, 0' % sr(s3))
        A.label(Lw)
        A('buffer_load_dword %s, %s, %s, 0 offen sc1' % (vr(v_b), vr(v_a), sr(SRD_D, 4)))
        A('s_add_u32 %s, %s, 1' % (sr(s3), sr(s3)))
        A('s_waitcnt vmcnt(0)')
        A('v_cmp_ne_u32 vcc, 0, %s' % vr(v_b))
        A('s_cbranch_vccnz ' + Ld)
        A('s_sleep 4')
        A('s_cmp_lt_u32 %s, %d' % (sr(s3), LIM))
        A('s_cbranch_scc1 ' + Lw)
        A.label(Ld)
    L_have = A.uid('havejob')
    L_got = A.uid('gotjob')
    A('s_mov_b32 %s, s3' % sr(s_job))
    SRD_T = S.alloc(4, 4)
    hi = max(hi, S.mark())

    def touch(ptrs_sizes, s_id, per_wave_log2):
        A('s_lshl_b32 %s, %s, %d' % (sr(s0), sr(s_id), per_wave_log2))
        A('v_lshlrev_b32 %s, 7, %s' % (vr(v_a), vr(v_lane)))
        for p, nbytes in ptrs_sizes:
            mk_srd(A, SRD_T, P[p], nbytes)
            for i in range(1 << (per_wave_log2 - 13)):
                A('s_add_u32 %s, %s, %d' % (sr(s1), sr(s0), i * 8192))
                A('buffer_load_dword v7, %s, %s, %s offen' % (vr(v_a), sr(SRD_T, 4), sr(s1)))
            A('s_nop 4')
    L_restart = name + '_restart'
    L_st = A.uid('static')
    A('s_cmp_lt_u32 s3, 32')
    A('s_cbranch_scc1 ' + L_st)
    place_check(A, SRD_D, v_lane, v_a, v_b, s3, LIM, L_restart)
    A('s_branch ' + L_next)
    A.label(L_st)
    A('s_branch ' + L_have)
    A.label(L_next)
    Lnf = A.uid('nofetch')
    A('s_cmp_lg_u32 %s, 0' % sr(s_w))
    A('s_cbranch_scc1 ' + Lnf)
    wait_init()
    A('s_lshl_b32 %s, %s, 7' % (sr(s0), sr(s_q)))
    A('s_add_u32 %s, %s, 0x%x' % (sr(s0), sr(s0), CTR + DBG_Q * 128))
    A('v_mov_b32 %s, %s' % (vr(v_a), sr(s0)))
    A('v_mov_b32 %s, 1' % vr(v_b))
    A('s_mov_b64 exec, 1')
    A('buffer_atomic_add %s, %s, %s, 0 offen sc0 sc1' % (vr(v_b), vr(v_a), sr(SRD_WS, 4)))
    A('s_waitcnt vmcnt(0)')
    A('v_mov_b32 %s, %d' % (vr(v_a), LDS_JOB))
    A('ds_write_b32 %s, %s' % (vr(v_a), vr(v_b)))
    A('s_waitcnt lgkmcnt(0)')
    A('s_mov_b64 exec, -1')
    A.label(Lnf)
    A('s_barrier')
    A('v_mov_b32 %s, %d' % (vr(v_a), LDS_JOB))
    A('ds_read_b32 %s, %s' % (vr(v_b), vr(v_a)))
    A('s_waitcnt lgkmcnt(0)')
    A('v_readfirstlane_b32 %s, %s' % (sr(s_job), vr(v_b)))
    A('s_barrier')
    A.label(L_got)
    A('s_mov_b32 %s, 1' % sr(s_init))
    A('s_add_u32 %s, %s, 32' % (sr(s_job), sr(s_job)))
    A.label(L_have)
    if WST:
        A('s_min_u32 %s, %s, 511' % (sr(s0), sr(s_job)))
        A('s_lshl_b32 %s, %s, 9' % (sr(s_sa), sr(s_q)))
        A('s_add_u32 %s, %s, %s' % (sr(s_sa), sr(s_sa), sr(s0)))
        A('s_lshl_b32 %s, %s, 2' % (sr(s_sa), sr(s_sa)))
        A('s_add_u32 %s, %s, %s' % (sr(s_sa), sr(s_sa), sr(s_w)))
        A('s_lshl_b32 %s, %s, 5' % (sr(s_sa), sr(s_sa)))
        A('s_add_u32 %s, %s, 0x%x' % (sr(s_sa), sr(s_sa), STAMP + 0x400000))
        wstamp(0)
    kinds = ('aoutr', 'aoutj', 'skv', 'bkv', 'bq', 'q', 'battn', 'bout', 'wot', 'aattn', 'aout', 'aattn1', 'aoutd', 'aoute', 'big', 'bigA', 'small', 'outc')
    L = {k: A.uid('job' + k) for k in kinds}
    for k, n, p in SEGS:
        A('s_mov_b32 %s, %d' % (sr(s_p), p))
        A('s_cmp_lt_u32 %s, %d' % (sr(s_job), n))
        A('s_cbranch_scc1 ' + L[k])
        A('s_sub_u32 %s, %s, %d' % (sr(s_job), sr(s_job), n))
    QLEN = sum(n for _, n, _ in SEGS)
    L_peek = name + '_wpeek'
    A.label(L_peek)
    if PEEK:
        A('s_mov_b32 %s, %d' % (sr(s0), DBG_Q * 128))
        A('buffer_load_dword %s, %s, %s, %s offen sc1' % (vr(v_b), vr(v_sh), sr(SRD_WS, 4), sr(s0)))
        A('v_lshlrev_b32 %s, 2, %s' % (vr(v_a), vr(v_lane)))
        A('v_add_u32 %s, %d, %s' % (vr(v_a), LDS_JOB + 64, vr(v_a)))
        A('s_waitcnt vmcnt(0)')
        Lp1 = A.uid('pk')
        A('s_cmp_lg_u32 %s, 0' % sr(s_w))
        A('s_cbranch_scc1 ' + Lp1)
        A('ds_write_b32 %s, %s' % (vr(v_a), vr(v_b)))
        A('s_waitcnt lgkmcnt(0)')
        A.label(Lp1)
        A('s_barrier')
        A('ds_read_b32 %s, %s' % (vr(v_b), vr(v_a)))
        A('s_waitcnt lgkmcnt(0)')
        A('s_barrier')
        for k in range(4):
            A('v_readlane_b32 %s, %s, %d' % (sr(s0), vr(v_b), k))
            A('s_mov_b32 %s, %d' % (sr(s_q), k))
            A('s_cmp_lt_u32 %s, %d' % (sr(s0), QLEN - 32))
            A('s_cbranch_scc1 ' + L_next)
    A('s_endpgm')

    def wait_ctr(s_off, thr, s_shift=None, bits=8, slp=12):
        Lw, Ld = A.uid('dw'), A.uid('dd')
        A('s_cmp_lg_u32 %s, 0' % sr(s_w))
        A('s_cbranch_scc1 ' + Ld)
        A('s_lshl_b32 %s, %s, 7' % (sr(s_wo), sr(s_off) if isinstance(s_off, int) else s_off))
        A('s_mov_b32 %s, 0' % sr(s3))
        A.label(Lw)
        A('buffer_load_dword %s, %s, %s, %s offen sc1' % (vr(v_b), vr(v_sh), sr(SRD_WS, 4), sr(s_wo)))
        A('s_add_u32 %s, %s, 1' % (sr(s3), sr(s3)))
        A('s_waitcnt vmcnt(0)')
        if s_shift is not None:
            A('v_bfe_u32 %s, %s, %s, %d' % (vr(v_b), vr(v_b), sr(s_shift), bits))
        A('v_cmp_gt_u32 vcc, %s, %s' % (thr, vr(v_b)))
        A('s_cbranch_vccz ' + Ld)
        A('s_sleep %d ; poll back-off' % slp)
        A('s_cmp_lt_u32 %s, %d' % (sr(s3), LIM))
        A('s_cbranch_scc1 ' + Lw)
        A.label(Ld)
        A('s_barrier')

    def wait2(off1, thr1, off2, thr2, s_shift=None, bits=8, slp=12):
        Lw, Ld, Ln = A.uid('dw'), A.uid('dd'), A.uid('dn')
        tx = lambda o: sr(o) if isinstance(o, int) else o
        A('s_cmp_lg_u32 %s, 0' % sr(s_w))
        A('s_cbranch_scc1 ' + Ld)
        A('s_lshl_b32 %s, %s, 7' % (sr(s_wo), tx(off1)))
        A('s_lshl_b32 %s, %s, 7' % (sr(s_wo2), tx(off2)))
        A('s_mov_b32 %s, 0' % sr(s3))
        A.label(Lw)
        A('buffer_load_dword %s, %s, %s, %s offen sc1' % (vr(v_a), vr(v_sh), sr(SRD_WS, 4), sr(s_wo)))
        A('buffer_load_dword %s, %s, %s, %s offen sc1' % (vr(v_b), vr(v_sh), sr(SRD_WS, 4), sr(s_wo2)))
        A('s_add_u32 %s, %s, 1' % (sr(s3), sr(s3)))
        A('s_waitcnt vmcnt(0)')
        if s_shift is not None:
            A('v_bfe_u32 %s, %s, %s, %d' % (vr(v_b), vr(v_b), sr(s_shift), bits))
        A('v_cmp_gt_u32 vcc, %s, %s' % (thr1, vr(v_a)))
        A('s_cbranch_vccnz ' + Ln)
        A('v_cmp_gt_u32 vcc, %s, %s' % (thr2, vr(v_b)))
        A('s_cbranch_vccz ' + Ld)
        A.label(Ln)
        A('s_sleep %d ; poll back-off' % slp)
        A('s_cmp_lt_u32 %s, %d' % (sr(s3), LIM))
        A('s_cbranch_scc1 ' + Lw)
        A.label(Ld)
        A('s_barrier')

    def cfg(Gx, cid, *args):
        Ls = A.uid('cfg')
        A('s_cmp_eq_u32 %s, %d' % (sr(s_cfg), cid))
        A('s_cbranch_scc1 ' + Ls)
        Gx.setup(v_lane, s_w, (s0, s1), *args)
        A('s_mov_b32 %s, %d' % (sr(s_cfg), cid))
        A.label(Ls)

    def blk_base(mbk, nbk):
        A('s_lshr_b32 %s, %s, 1' % (sr(s0), sr(s_w)))
        A('s_lshl_b32 %s, %s, 1' % (sr(s1), sr(s_mt)))
        A('s_add_u32 %s, %s, %s' % (sr(s0), sr(s0), sr(s1)))
        A('s_mul_i32 %s, %s, %d' % (sr(s0), sr(s0), mbk))
        A('s_mul_i32 %s, %s, %s' % (sr(s0), sr(s0), sr(s_tbs)))
        A('s_add_u32 %s, %s, %s' % (sr(s_base), sr(s_base), sr(s0)))
        A('s_and_b32 %s, %s, 1' % (sr(s0), sr(s_w)))
        A('s_lshl_b32 %s, %s, 1' % (sr(s1), sr(s_nt)))
        A('s_add_u32 %s, %s, %s' % (sr(s0), sr(s0), sr(s1)))
        A('s_mul_i32 %s, %s, %d' % (sr(s0), sr(s0), nbk * 2048))
        A('s_add_u32 %s, %s, %s' % (sr(s_base), sr(s_base), sr(s0)))

    def sel_kv(thr):
        A('s_cmp_ge_u32 %s, %d' % (sr(s_nt), thr))
        A('s_cselect_b32 %s, 1, 0' % sr(s_or))
        A('s_cselect_b64 %s, %s, %s' % (sr(s_pp, 2), sr(P['A_Wv'], 2), sr(P['A_Wk'], 2)))
        A('s_mov_b32 %s, 0x%x' % (sr(s_base), KX))
        A('s_cselect_b32 %s, 0x%x, %s' % (sr(s_base), VX, sr(s_base)))
        A('s_and_b32 %s, %s, %d' % (sr(s_nt), sr(s_nt), thr - 1))

    def ctr(base, s_idx, inc):
        A('s_lshl_b32 %s, %s, 2' % (sr(s_ctr), sr(s_idx)))
        A('s_add_u32 %s, %s, %d' % (sr(s_ctr), sr(s_ctr), base))
        A('s_mov_b32 %s, %d' % (sr(s_inc), inc))

    def nt_q(mask_bits_shift, mask):
        A('s_lshr_b32 %s, %s, %d' % (sr(s_nt), sr(s_job), mask_bits_shift))
        A('s_and_b32 %s, %s, %d' % (sr(s_nt), sr(s_nt), mask))
        A('s_lshl_b32 %s, %s, 2' % (sr(s_nt), sr(s_nt)))
        A('s_add_u32 %s, %s, %s' % (sr(s_nt), sr(s_nt), sr(s_q)))

    A.label(L['skv'])
    A('s_lshr_b32 %s, %s, 1' % (sr(s0), sr(s_p)))
    ctr(DBG_KV, s0, 1)
    A('s_mov_b32 %s, %s' % (sr(s_mt), sr(s_p)))
    nt_q(0, 15)
    sel_kv(32)
    mk_srd(A, G.SRD_W, s_pp, 1024 * 4096 * 2)
    mk_srd(A, G.SRD_X, P['A_x'], 2048 * 1024 * 2)
    A('s_lshl_b32 %s, %s, 18' % (sr(G.s_xo), sr(s_mt)))
    A('s_mov_b32 %s, 128' % sr(G.s_xs))
    A('s_lshl_b32 %s, %s, 8' % (sr(G.s_wo), sr(s_nt)))
    A('s_mov_b32 %s, %d' % (sr(G.s_ws), 64 * 8192))
    A('s_mov_b32 %s, %d' % (sr(s_tbs), 128 * 2048))
    A('s_mov_b32 %s, 3' % sr(G.s_n))
    blk_base(2, 2)
    cfg(G2, 3, 'nat', 2048, 8192)
    A('s_mov_b32 %s, 0' % sr(s_k))
    A('s_branch ' + L['small'])

    A.label(L['aout'])
    A('s_lshr_b32 %s, %s, 2' % (sr(s_mt), sr(s_job)))
    A('s_add_u32 %s, %s, %s' % (sr(s_mt), sr(s_mt), sr(s_p)))
    A('s_lshl_b32 %s, %s, 1' % (sr(s_mt), sr(s_mt)))
    A('s_lshr_b32 %s, %s, 1' % (sr(s0), sr(s_q)))
    A('s_add_u32 %s, %s, %s' % (sr(s_mt), sr(s_mt), sr(s0)))
    A('s_and_b32 %s, %s, 1' % (sr(s_nt), sr(s_q)))
    A('s_lshl_b32 %s, %s, 2' % (sr(s_nt), sr(s_nt)))
    A('s_and_b32 %s, %s, 3' % (sr(s0), sr(s_job)))
    A('s_add_u32 %s, %s, %s' % (sr(s_nt), sr(s_nt), sr(s0)))
    A('s_mov_b32 %s, 4' % sr(s_tbs))
    A('s_mov_b32 %s, 0' % sr(s_it))
    A('s_branch ' + L['aoutj'])
    A.label(L['aoutr'])
    A('s_mov_b32 %s, %s' % (sr(s_mt), sr(s_p)))
    A('s_lshl_b32 %s, %s, 1' % (sr(s_nt), sr(s_q)))
    A('s_add_u32 %s, %s, %s' % (sr(s_nt), sr(s_nt), sr(s_job)))
    A('s_mov_b32 %s, 0x2222' % sr(s_tbs))
    A('s_and_b32 %s, %s, 1' % (sr(s_it), sr(s_p)))
    A('s_lshl_b32 %s, %s, 4' % (sr(s_it), sr(s_it)))
    A.label(L['aoutj'])
    mk_srd(A, G.SRD_W, P['A_Wo'], 4096 * 1024 * 2)
    A('s_mul_i32 %s, %s, %d' % (sr(G.s_xo), sr(s_mt), 4 * 128 * 2048))
    A('s_add_u32 %s, %s, 0x%x' % (sr(G.s_xo), sr(G.s_xo), OA))
    A('s_mov_b32 %s, 15' % sr(G.s_n))
    A('s_mov_b32 %s, 0' % sr(s_base))
    A('s_mov_b32 %s, %d' % (sr(s2_), DBG_AA))
    cfg(G2, 5, 'blk', 128 * 2048, 2048)
    A('s_branch ' + L['outc'])
    A.label(L['bout'])
    A('s_add_u32 %s, %s, %s' % (sr(s_job), sr(s_job), sr(s_p)))
    A('s_lshr_b32 %s, %s, 1' % (sr(s_mt), sr(s_job)))
    nt_q(0, 1)
    mk_srd(A, G.SRD_W, P['B_wo'], 1024 * 1024 * 2)
    A('s_mul_i32 %s, %s, %d' % (sr(G.s_xo), sr(s_mt), 4 * 32 * 2048))
    A('s_add_u32 %s, %s, 0x%x' % (sr(G.s_xo), sr(G.s_xo), OB))
    A('s_mov_b32 %s, 3' % sr(G.s_n))
    A('s_mov_b32 %s, 2048' % sr(s_base))
    A('s_mov_b32 %s, %d' % (sr(s2_), DBG_BA))
    A('s_mov_b32 %s, 4' % sr(s_tbs))
    A('s_mov_b32 %s, 0' % sr(s_it))
    cfg(G2, 4, 'blk', 32 * 2048, 2048)
    A.label(L['outc'])
    mk_srd(A, G.SRD_X, P['ws'], WS_HALF)
    A('s_mov_b32 %s, 4096' % sr(G.s_xs))
    A('s_lshl_b32 %s, %s, 8' % (sr(G.s_wo), sr(s_nt)))
    A('s_mov_b32 %s, %d' % (sr(G.s_ws), 64 * 2048))
    A('s_mov_b32 %s, 0' % sr(s_or))
    A('s_mov_b32 %s, 0' % sr(s_inc))
    A('s_lshr_b32 %s, %s, 1' % (sr(s0), sr(s_w)))
    A('s_lshl_b32 %s, %s, 18' % (sr(s0), sr(s0)))
    A('s_add_u32 %s, %s, %s' % (sr(s_base), sr(s_base), sr(s0)))
    A('s_lshl_b32 %s, %s, 19' % (sr(s0), sr(s_mt)))
    A('s_add_u32 %s, %s, %s' % (sr(s_base), sr(s_base), sr(s0)))
    A('s_and_b32 %s, %s, 1' % (sr(s0), sr(s_w)))
    A('s_lshl_b32 %s, %s, 7' % (sr(s0), sr(s0)))
    A('s_add_u32 %s, %s, %s' % (sr(s_base), sr(s_base), sr(s0)))
    A('s_add_u32 %s, %s, %s' % (sr(s_base), sr(s_base), sr(G.s_wo)))
    A('s_lshr_b32 %s, %s, 1' % (sr(s0), sr(s_mt)))
    A('s_lshl_b32 %s, %s, 2' % (sr(s0), sr(s0)))
    A('s_add_u32 %s, %s, %s' % (sr(s0), sr(s0), sr(s2_)))
    wait_ctr(s0, sr(s_tbs), s_it, bits=16)
    A('s_mov_b32 %s, 1' % sr(s_k))
    A.label(L['small'])
    wstamp(1)
    G2.prologue()
    wstamp(2)
    LN, LE, LO = A.uid('sN'), A.uid('sE'), A.uid('sO')
    A('s_cmp_eq_u32 %s, 1' % sr(s_or))
    A('s_cbranch_scc1 ' + LN)
    G2.mainloop('T', 'st')
    A('s_nop 15')
    A('s_cmp_eq_u32 %s, 1' % sr(s_k))
    A('s_cbranch_scc1 ' + LO)
    A('s_branch ' + LE)
    A.label(LN)
    G2.mainloop('N', 'sn')
    A.label(LE)
    wstamp(3)
    early()
    G2.epi_blk(SRD_WS, v_l16, s_base, s_tbs, s0, ' sc1')
    A('s_branch ' + L_done)
    A.label(LO)
    wstamp(3)
    early()
    G2.epi_out(SRD_O, v_off, s_base)
    A('s_branch ' + L_done)

    A.label(L['wot'])
    A('s_add_u32 %s, %s, %s' % (sr(s_job), sr(s_job), sr(s_p)))
    nt_q(0, 1)
    A('s_lshr_b32 %s, %s, 1' % (sr(s_mt), sr(s_job)))
    mk_srd(A, G.SRD_W, P['A_Wo'], 4096 * 1024 * 2)
    cfg(G2, 5, 'blk', 128 * 2048, 2048)
    A('s_lshl_b32 %s, %s, 8' % (sr(G.s_wo), sr(s_nt)))
    A('s_lshl_b32 %s, %s, 19' % (sr(s0), sr(s_mt)))
    A('s_add_u32 %s, %s, %s' % (sr(G.s_wo), sr(G.s_wo), sr(s0)))
    A('s_mov_b32 %s, 1' % sr(s_inc))
    A('s_mov_b32 %s, %d' % (sr(s_ctr), DBG_WT))
    wstamp(1)
    for st in range(4):
        for g in G2.dma_ops(st)[G2.nX:]:
            for t in g:
                A(t)
        A('s_add_u32 %s, %s, %d' % (sr(G.s_wo), sr(G.s_wo), 64 * 2048))
    A('s_and_b32 %s, %s, 1' % (sr(s0), sr(s_w)))
    A('s_lshl_b32 %s, %s, 1' % (sr(s0), sr(s0)))
    A('s_lshl_b32 %s, %s, 2' % (sr(s1), sr(s_nt)))
    A('s_add_u32 %s, %s, %s' % (sr(s0), sr(s0), sr(s1)))
    A('s_lshl_b32 %s, %s, 18' % (sr(s_base), sr(s0)))
    A('s_lshl_b32 %s, %s, 14' % (sr(s0), sr(s_mt)))
    A('s_add_u32 %s, %s, %s' % (sr(s_base), sr(s_base), sr(s0)))
    A('s_lshr_b32 %s, %s, 1' % (sr(s0), sr(s_w)))
    A('s_lshl_b32 %s, %s, 13' % (sr(s1), sr(s0)))
    A('s_add_u32 %s, %s, %s' % (sr(s_base), sr(s_base), sr(s1)))
    A('s_add_u32 %s, %s, 0x%x' % (sr(s_base), sr(s_base), WOT))
    A('s_mul_i32 %s, %s, %d' % (sr(s0), sr(s0), 2 * G2.STG))
    T = V2.alloc(64, 4)
    ta = [V2.alloc() for _ in range(4)]
    for i in range(2):
        for q in range(2):
            A('v_add_u32 %s, %s, %s' % (vr(ta[2 * i + q]), sr(s0), vr(G2.rw[0][i][q])))
    early()
    A('s_waitcnt vmcnt(0)')
    A('s_barrier')
    for i in range(2):
        for st in range(2):
            for ks in range(4):
                d = T + 4 * ((i * 2 + st) * 4 + ks)
                for q in range(2):
                    A('ds_read_b64_tr_b16 %s, %s offset:%d' % (vr(d + 2 * q, 2), vr(ta[2 * i + q]), st * G2.STG + ks * 16 * G2.wrow))
            A('s_waitcnt lgkmcnt(0)')
    for i in range(2):
        for st in range(2):
            A('s_add_u32 %s, %s, %d' % (sr(s0), sr(s_base), i * 262144 + st * 4096))
            for ks in range(4):
                d = T + 4 * ((i * 2 + st) * 4 + ks)
                A('buffer_store_dwordx4 %s, %s, %s, %s offen offset:%d' % (vr(d, 4), vr(v_l16), sr(SRD_WS, 4), sr(s0), ks * 1024) + ' sc1')
    A('s_branch ' + L_done)

    def wid16():
        A('s_lshl_b32 %s, %s, 4' % (sr(s0), sr(s_q)))
        A('s_add_u32 %s, %s, %s' % (sr(s2_), sr(s_job), sr(s0)))
        A('s_lshl_b32 %s, %s, 2' % (sr(s2_), sr(s2_)))
        A('s_add_u32 %s, %s, %s' % (sr(s2_), sr(s2_), sr(s_w)))
    A.label(L['bkv'])
    if WT2:
        Lnt = A.uid('nt2')
        A('s_cmp_lg_u32 %s, 1' % sr(s_p))
        A('s_cbranch_scc1 ' + Lnt)
        wid16()
        if WTOUCH:
            touch([(k, 8 << 20) for k in WTOUCH.split(',')], s2_, 15)
        touch([('A_x', 4 << 20)], s2_, 14)
        A.label(Lnt)
    A('s_lshl_b32 %s, %s, 3' % (sr(s1), sr(s_p)))
    A('s_add_u32 %s, %s, %s' % (sr(s1), sr(s1), sr(s_job)))
    A('s_sub_u32 %s, %s, 24' % (sr(s1), sr(s1)))
    A('s_lshl_b32 %s, %s, 5' % (sr(s0), sr(s_q)))
    A('s_add_u32 %s, %s, %s' % (sr(s_k), sr(s1), sr(s0)))
    A('s_lshl_b32 %s, %s, 2' % (sr(s_k), sr(s_k)))
    A('s_add_u32 %s, %s, %s' % (sr(s_k), sr(s_k), sr(s_w)))
    A('s_cmp_lt_u32 %s, 32' % sr(s1))
    A('s_cselect_b32 %s, %s, -1' % (sr(s_k), sr(s_k)))
    A('s_lshr_b32 %s, %s, 3' % (sr(s_mt), sr(s_job)))
    A('s_add_u32 %s, %s, %s' % (sr(s_mt), sr(s_mt), sr(s_p)))
    nt_q(0, 7)
    sel_kv(16)
    ctr(DBG_KV, s_mt, 4)
    A('s_branch ' + L['bigA'])
    A.label(L['q'])
    A('s_mov_b32 %s, -1' % sr(s_k))
    A('s_lshr_b32 %s, %s, 2' % (sr(s_mt), sr(s_job)))
    A('s_add_u32 %s, %s, %s' % (sr(s_mt), sr(s_mt), sr(s_p)))
    nt_q(0, 3)
    A('s_mov_b64 %s, %s' % (sr(s_pp, 2), sr(P['A_Wq'], 2)))
    A('s_mov_b32 %s, 0x%x' % (sr(s_base), QX))
    A('s_mov_b32 %s, 0' % sr(s_or))
    ctr(DBG_QR, s_mt, 1)
    A.label(L['bigA'])
    mk_srd(A, G.SRD_W, s_pp, 1024 * 4096 * 2)
    mk_srd(A, G.SRD_X, P['A_x'], 2048 * 1024 * 2)
    A('s_lshl_b32 %s, %s, 9' % (sr(G.s_wo), sr(s_nt)))
    A('s_mov_b32 %s, %d' % (sr(G.s_ws), 64 * 8192))
    A('s_mov_b32 %s, %d' % (sr(s_tbs), 128 * 2048))
    cfg(G4, 1, 'nat', 2048, 8192)
    A('s_branch ' + L['big'])
    A.label(L['bq'])
    A('s_add_u32 %s, %s, %s' % (sr(s_job), sr(s_job), sr(s_p)))
    A('s_mov_b32 %s, -1' % sr(s_k))
    A('s_mul_i32 %s, %s, 43' % (sr(s_mt), sr(s_job)))
    A('s_lshr_b32 %s, %s, 7' % (sr(s_mt), sr(s_mt)))
    A('s_mul_i32 %s, %s, 3' % (sr(s0), sr(s_mt)))
    A('s_sub_u32 %s, %s, %s' % (sr(s0), sr(s_job), sr(s0)))
    A('s_cmp_eq_u32 %s, 2' % sr(s0))
    A('s_cselect_b32 %s, 1, 0' % sr(s_or))
    A('s_lshl_b32 %s, %s, 22' % (sr(s_base), sr(s0)))
    A('s_add_u32 %s, %s, 0x%x' % (sr(s_base), sr(s_base), QB))
    A('s_lshl_b32 %s, %s, 2' % (sr(s0), sr(s0)))
    A('s_add_u32 %s, %s, %s' % (sr(s0), sr(s0), sr(s_q)))
    A('s_lshl_b32 %s, %s, 9' % (sr(G.s_wo), sr(s0)))
    A('s_mov_b32 %s, %s' % (sr(s_nt), sr(s_q)))
    mk_srd(A, G.SRD_W, P['B_wqkv'], 1024 * 3072 * 2)
    mk_srd(A, G.SRD_X, P['B_x'], 2048 * 1024 * 2)
    A('s_mov_b32 %s, %d' % (sr(G.s_ws), 64 * 6144))
    A('s_mov_b32 %s, %d' % (sr(s_tbs), 32 * 2048))
    ctr(DBG_BQ, s_mt, 1)
    cfg(G4, 2, 'nat', 2048, 6144)
    A.label(L['big'])
    A('s_lshl_b32 %s, %s, 19' % (sr(G.s_xo), sr(s_mt)))
    A('s_mov_b32 %s, 128' % sr(G.s_xs))
    A('s_mov_b32 %s, 7' % sr(G.s_n))
    blk_base(4, 4)
    wstamp(1)
    G4.prologue_issue()
    if OVL:
        Lpe, Lpj = A.uid('pe'), A.uid('pj')
        A('s_cmp_lg_u32 %s, 0' % sr(s_pe))
        A('s_cbranch_scc1 ' + Lpe)
        A('s_waitcnt vmcnt(16)')
        A('s_branch ' + Lpj)
        A.label(Lpe)
        G4.epi_blk(SRD_WS, v_l16, p_base, p_tbs, s0, ' sc1')
        A('s_waitcnt vmcnt(48)')
        A.label(Lpj)
    else:
        A('s_waitcnt vmcnt(16)')
    G4.prologue_finish()
    wstamp(2)

    def sig_prev():
        Ls = A.uid('sp')
        A('s_cmp_eq_u32 %s, 0' % sr(s_pe))
        A('s_cbranch_scc1 ' + Ls)
        A('s_mov_b32 %s, 0' % sr(s_pe))
        A('s_cmp_lg_u32 %s, 0' % sr(s_w))
        A('s_cbranch_scc1 ' + Ls)
        A('s_add_u32 %s, %s, %s' % (sr(s0), sr(p_ctr), sr(s_q)))
        A('s_lshl_b32 %s, %s, 7' % (sr(s0), sr(s0)))
        A('s_add_u32 %s, %s, 0x%x' % (sr(s0), sr(s0), CTR))
        A('v_mov_b32 %s, %s' % (vr(v_a), sr(s0)))
        A('v_mov_b32 %s, %s' % (vr(v_b), sr(p_inc)))
        A('s_mov_b64 exec, 1')
        A('buffer_atomic_add %s, %s, %s, 0 offen sc1' % (vr(v_b), vr(v_a), sr(SRD_WS, 4)))
        A('s_mov_b64 exec, -1')
        A.label(Ls)
    ht = (lambda: early(False)) if OVL else None
    Lnt3 = A.uid('nt3')
    A('s_cmp_eq_u32 %s, -1' % sr(s_k))
    A('s_cbranch_scc1 ' + Lnt3)
    touch([('B_x', 4 << 20), ('B_wo', 2 << 20)], s_k, 13)
    touch([('B_wqkv', 6 << 20)], s_k, 14)
    A.label(Lnt3)
    LN, LE = A.uid('bN'), A.uid('bE')
    A('s_cmp_eq_u32 %s, 1' % sr(s_or))
    A('s_cbranch_scc1 ' + LN)
    G4.mainloop('T', 'bt', sig_prev if OVL else None, ht)
    A('s_nop 15')
    A('s_branch ' + LE)
    A.label(LN)
    G4.mainloop('N', 'bn', sig_prev if OVL else None, ht)
    A.label(LE)
    wstamp(3)
    if OVL:
        Lno, Lw1, Lyes = A.uid('no'), A.uid('w1'), A.uid('yes')
        A('s_nop 11')
        A('s_cmp_eq_u32 %s, 0' % sr(s_et))
        A('s_cbranch_scc1 ' + Lno)
        A('v_mov_b32 %s, %d' % (vr(v_a), LDS_JOB))
        A('s_cmp_lg_u32 %s, 0' % sr(s_w))
        A('s_cbranch_scc1 ' + Lw1)
        A('s_mov_b64 exec, 1')
        A('ds_write_b32 %s, %s' % (vr(v_a), vr(v_tk)))
        A('s_mov_b64 exec, -1')
        A('s_waitcnt lgkmcnt(0)')
        A.label(Lw1)
        A('s_barrier')
        A('ds_read_b32 %s, %s' % (vr(v_b), vr(v_a)))
        A('s_waitcnt lgkmcnt(0)')
        A('v_readfirstlane_b32 %s, %s' % (sr(s1), vr(v_b)))
        A('s_barrier')
        rng, a0 = [], 0
        for k_, n_, p_ in SEGS:
            if k_ in ('bkv', 'q', 'bq'):
                if rng and rng[-1][1] == a0:
                    rng[-1][1] = a0 + n_
                else:
                    rng.append([a0, a0 + n_])
            a0 += n_
        for lo, hi_ in rng:
            if hi_ <= 32:
                continue
            A('s_sub_u32 %s, %s, %d' % (sr(s0), sr(s1), lo - 32))
            A('s_cmp_lt_u32 %s, %d' % (sr(s0), hi_ - lo))
            A('s_cbranch_scc1 ' + Lyes)
        A('s_branch ' + Lno)
        A.label(Lyes)
        wstamp(4)
        wstamp(5)
        A('s_mov_b32 %s, %s' % (sr(p_base), sr(s_base)))
        A('s_mov_b32 %s, %s' % (sr(p_tbs), sr(s_tbs)))
        A('s_mov_b32 %s, %s' % (sr(p_ctr), sr(s_ctr)))
        A('s_mov_b32 %s, %s' % (sr(p_inc), sr(s_inc)))
        A('s_mov_b32 %s, 1' % sr(s_pe))
        A('s_mov_b32 %s, 0' % sr(s_et))
        A('s_mov_b32 %s, %s' % (sr(s_job), sr(s1)))
        A('s_branch ' + L_got)
        A.label(Lno)
    else:
        early()
    G4.epi_blk(SRD_WS, v_l16, s_base, s_tbs, s0, ' sc1')
    A('s_branch ' + L_done)

    def attn_items():
        A('s_mov_b32 %s, 0' % sr(s_cfg))
        A('s_and_b32 %s, %s, 3' % (sr(s0), sr(s_job)))
        A('s_lshl_b32 %s, %s, 2' % (sr(s1), sr(s_q)))
        A('s_add_u32 %s, %s, %s' % (sr(s0), sr(s0), sr(s1)))
        A('s_lshl_b32 %s, %s, 1' % (sr(s0), sr(s0)))
        A('s_and_b32 %s, %s, 1' % (sr(s1), sr(s_w)))
        A('s_add_u32 %s, %s, %s' % (sr(s_it), sr(s0), sr(s1)))
        A('s_lshl_b32 %s, %s, 8' % (sr(s0), sr(s_mt)))
        A('s_add_u32 %s, %s, %s' % (sr(s_it), sr(s_it), sr(s0)))
        A('s_lshr_b32 %s, %s, 1' % (sr(s0), sr(s_w)))
        A('s_lshl_b32 %s, %s, 7' % (sr(s0), sr(s0)))
        A('s_add_u32 %s, %s, %s' % (sr(s_it), sr(s_it), sr(s0)))
        A('s_mov_b32 %s, 4' % sr(s_k))
        wstamp(1)

    def attn_loop(fn, tag):
        Lb = A.uid(tag)
        A.label(Lb)
        fn(A, SRD_WS, s_it, (s0, s1, s2_, s3), v_lane, v_l16, 8, ld=' sc1', stf=' sc1')
        A('s_add_u32 %s, %s, 32' % (sr(s_it), sr(s_it)))
        A('s_sub_u32 %s, %s, 1' % (sr(s_k), sr(s_k)))
        A('s_cmp_lg_u32 %s, 0' % sr(s_k))
        A('s_waitcnt vmcnt(0)')
        A('s_cbranch_scc1 ' + Lb)

    A.label(L['aattn'])
    A('s_lshr_b32 %s, %s, 2' % (sr(s_mt), sr(s_job)))
    A('s_add_u32 %s, %s, %s' % (sr(s_mt), sr(s_mt), sr(s_p)))
    A('s_lshl_b32 %s, %s, 2' % (sr(s_ctr), sr(s_mt)))
    A('s_add_u32 %s, %s, %d' % (sr(s0), sr(s_ctr), DBG_QR))
    A('s_lshl_b32 %s, %s, 3' % (sr(s1), sr(s_mt)))
    A('s_add_u32 %s, %s, %d' % (sr(s1), sr(s1), 7 + LAG))
    wait2(s0, 4, str(DBG_PROG), sr(s1))
    ctr(DBG_AA, s_mt, 1)
    attn_items()
    attn.attn_a_n(A, SRD_WS, s_it, (s0, s1, s2_, s3), v_lane, v_l16, 8, 4, ld=' sc1', stf=' sc1', late=early)
    A('s_branch ' + L_done)

    A.label(L['aattn1'])
    A('s_lshr_b32 %s, %s, 2' % (sr(s_mt), sr(s_p)))
    A('s_lshl_b32 %s, %s, 2' % (sr(s_ctr), sr(s_mt)))
    A('s_lshl_b32 %s, %s, 1' % (sr(s_it), sr(s_p)))
    A('s_lshr_b32 %s, %s, 1' % (sr(s0), sr(s_job)))
    A('s_add_u32 %s, %s, %s' % (sr(s_it), sr(s_it), sr(s0)))
    A('s_add_u32 %s, %s, %d' % (sr(s_tbs), sr(s_it), LAG))
    A('s_mov_b32 %s, %d' % (sr(s_base), DBG_PROG))
    A('s_cmp_gt_u32 %s, 60' % sr(s_it))
    A('s_cselect_b32 %s, 32, %s' % (sr(s_tbs), sr(s_tbs)))
    A('s_cselect_b32 %s, %d, %s' % (sr(s_base), DBG_FIN, sr(s_base)))
    A('s_add_u32 %s, %s, %d' % (sr(s0), sr(s_ctr), DBG_KV))
    A('s_add_u32 %s, %s, %d' % (sr(s1), sr(s_ctr), DBG_QR))
    wait2(s0, 32, s1, 4)
    A('s_add_u32 %s, %s, %d' % (sr(s_ctr), sr(s_ctr), DBG_AA))
    A('s_and_b32 %s, %s, 7' % (sr(s0), sr(s_it)))
    A('s_lshl_b32 %s, %s, 2' % (sr(s0), sr(s0)))
    A('s_lshl_b32 %s, 1, %s' % (sr(s_inc), sr(s0)))
    A('s_lshl_b32 %s, %s, 5' % (sr(s_it), sr(s_it)))
    A('s_lshl_b32 %s, %s, 3' % (sr(s0), sr(s_q)))
    A('s_add_u32 %s, %s, %s' % (sr(s_it), sr(s_it), sr(s0)))
    A('s_and_b32 %s, %s, 1' % (sr(s0), sr(s_job)))
    A('s_lshl_b32 %s, %s, 2' % (sr(s0), sr(s0)))
    A('s_add_u32 %s, %s, %s' % (sr(s_it), sr(s_it), sr(s0)))
    A('s_add_u32 %s, %s, %s' % (sr(s_it), sr(s_it), sr(s_w)))
    A('s_mov_b32 %s, 0' % sr(s_cfg))

    def pw1():
        wait_ctr(s_base, sr(s_tbs), slp=4)
        wstamp(1)
        early()
    attn.attn_a(A, SRD_WS, s_it, (s0, s1, s2_, s3), v_lane, v_l16, 8, ld=' sc1', stf=' sc1', pre_wait=pw1)
    A('s_branch ' + L_done)

    A.label(L['aoute'])
    wait_ctr(str(DBG_WT), 32)
    A('s_lshr_b32 %s, %s, 3' % (sr(s_mt), sr(s_job)))
    A('s_add_u32 %s, %s, %s' % (sr(s_mt), sr(s_mt), sr(s_p)))
    A('s_lshl_b32 %s, %s, 3' % (sr(s_nt), sr(s_q)))
    A('s_and_b32 %s, %s, 7' % (sr(s0), sr(s_job)))
    A('s_add_u32 %s, %s, %s' % (sr(s_nt), sr(s_nt), sr(s0)))
    A('s_mov_b32 %s, 0' % sr(s_inc))
    A('s_mov_b32 %s, 0' % sr(s_cfg))

    def pw2():
        A('s_lshr_b32 %s, %s, 3' % (sr(s0), sr(s_mt)))
        A('s_lshl_b32 %s, %s, 2' % (sr(s0), sr(s0)))
        A('s_add_u32 %s, %s, %d' % (sr(s0), sr(s0), DBG_AA))
        A('s_and_b32 %s, %s, 7' % (sr(s1), sr(s_mt)))
        A('s_lshl_b32 %s, %s, 2' % (sr(s1), sr(s1)))
        wait_ctr(s0, 2, s1, bits=4, slp=4)
        wstamp(1)
        early()
    out_direct32(A, SRD_WS, SRD_O, s_w, s_mt, s_nt, (s_base, s_tbs, s0, s_it, s_k), v_lane, v_l16, 8, ' sc1', pw2)
    A('s_branch ' + L_done)

    A.label(L['aoutd'])
    A('s_lshr_b32 %s, %s, 2' % (sr(s0), sr(s_p)))
    A('s_lshl_b32 %s, %s, 2' % (sr(s0), sr(s0)))
    A('s_add_u32 %s, %s, %d' % (sr(s0), sr(s0), DBG_AA))
    A('s_and_b32 %s, %s, 3' % (sr(s1), sr(s_p)))
    A('s_lshl_b32 %s, %s, 3' % (sr(s1), sr(s1)))
    wait2(str(DBG_WT), 32, s0, '0x22', s1)
    A('s_lshl_b32 %s, %s, 1' % (sr(s_mt), sr(s_p)))
    A('s_lshl_b32 %s, %s, 3' % (sr(s_nt), sr(s_q)))
    A('s_add_u32 %s, %s, %s' % (sr(s_nt), sr(s_nt), sr(s_job)))
    A('s_mov_b32 %s, 0' % sr(s_inc))
    A('s_mov_b32 %s, 0' % sr(s_cfg))
    wstamp(1)
    out_direct(A, SRD_WS, SRD_O, s_w, s_mt, s_nt, (s_base, s_tbs, s_it, s0, s1), v_lane, v_l16, v_off, 8, ld=' sc1', pre=early)
    A('s_branch ' + L_done)

    A.label(L['battn'])
    A('s_add_u32 %s, %s, %s' % (sr(s_job), sr(s_job), sr(s_p)))
    A('s_lshr_b32 %s, %s, 2' % (sr(s_mt), sr(s_job)))
    A('s_lshl_b32 %s, %s, 2' % (sr(s_ctr), sr(s_mt)))
    A('s_add_u32 %s, %s, %d' % (sr(s1), sr(s_ctr), DBG_BQ))
    A('s_add_u32 %s, %s, %d' % (sr(s0), sr(s_ctr), DBG_BQ - 4))
    A('s_max_u32 %s, %s, %d' % (sr(s0), sr(s0), DBG_BQ))
    wait2(s0, 3, s1, 3)
    ctr(DBG_BA, s_mt, 1)
    attn_items()
    attn.attn_b4(A, SRD_WS, s_it, (s0, s1, s2_, s3), v_lane, v_l16, 8, ld=' sc1', stf=' sc1', late=early)

    A.label(L_done)
    wstamp(4)
    Lq0 = A.uid('q0')
    A('s_cmp_lg_u32 %s, 0' % sr(s_init))
    A('s_cbranch_scc1 ' + Lq0)
    A('v_cmp_gt_u32 vcc, 8, %s' % vr(v_lane))
    A('v_lshlrev_b32 %s, 2, %s' % (vr(v_a), vr(v_lane)))
    A('v_mov_b32 %s, %d' % (vr(v_b), DBG_INIT))
    A('v_cndmask_b32 %s, %s, %s, vcc' % (vr(v_a), vr(v_b), vr(v_a)))
    A('buffer_load_dword %s, %s, %s, 0 offen sc1' % (vr(v_b), vr(v_a), sr(SRD_D, 4)))
    A('v_cndmask_b32 %s, 1, 32, vcc' % vr(v_a))
    A('s_waitcnt vmcnt(0)')
    A('v_cmp_ne_u32 vcc, %s, %s' % (vr(v_a), vr(v_b)))
    A('s_cbranch_vccnz ' + Lq0)
    A('s_mov_b32 %s, 1' % sr(s_init))
    A.label(Lq0)
    A('s_waitcnt vmcnt(0)')
    wstamp(5)
    dbgt(14)
    Ld1, Ld2, Lsig = A.uid('d1'), A.uid('d2'), A.uid('sig')
    A('v_mov_b32 %s, %d' % (vr(v_a), LDS_JOB))
    A('s_cmp_lg_u32 %s, 0' % sr(s_w))
    A('s_cbranch_scc1 ' + Ld1)
    A('s_mov_b64 exec, 1')
    A('ds_write_b32 %s, %s' % (vr(v_a), vr(v_tk)))
    A('s_mov_b64 exec, -1')
    A('s_waitcnt lgkmcnt(0)')
    A.label(Ld1)
    A('s_barrier')
    Lck = A.uid('ck')
    A('s_cmp_lg_u32 %s, 0' % sr(s_init))
    A('s_cbranch_scc1 ' + Lck)
    place_check(A, SRD_D, v_lane, v_a, v_b, s3, LIM, L_restart)
    A.label(Lck)
    A('s_cmp_lg_u32 %s, 0' % sr(s_w))
    A('s_cbranch_scc1 ' + Ld2)
    A('s_cmp_lg_u32 %s, 0' % sr(s_inc))
    A('s_cbranch_scc1 ' + Lsig)
    A.label(Ld2)
    A('s_cmp_eq_u32 %s, 0' % sr(s_et))
    A('s_cbranch_scc1 ' + L_next)
    A('s_mov_b32 %s, 0' % sr(s_et))
    A('v_mov_b32 %s, %d' % (vr(v_a), LDS_JOB))
    A('ds_read_b32 %s, %s' % (vr(v_b), vr(v_a)))
    A('s_waitcnt lgkmcnt(0)')
    A('v_readfirstlane_b32 %s, %s' % (sr(s_job), vr(v_b)))
    A('s_barrier')
    A('s_branch ' + L_got)
    A.label(Lsig)
    wait_init()
    A('s_add_u32 %s, %s, %s' % (sr(s0), sr(s_ctr), sr(s_q)))
    A('s_lshl_b32 %s, %s, 7' % (sr(s0), sr(s0)))
    A('s_add_u32 %s, %s, 0x%x' % (sr(s0), sr(s0), CTR))
    A('v_mov_b32 %s, %s' % (vr(v_a), sr(s0)))
    A('v_mov_b32 %s, %s' % (vr(v_b), sr(s_inc)))
    A('s_mov_b64 exec, 1')
    A('buffer_atomic_add %s, %s, %s, 0 offen sc1' % (vr(v_b), vr(v_a), sr(SRD_WS, 4)))
    Lk0 = A.uid('k0')
    A('s_cmp_lg_u32 %s, %d' % (sr(s_ctr), DBG_KV))
    A('s_cbranch_scc1 ' + Lk0)
    A('s_cmp_lg_u32 %s, 0' % sr(s_mt))
    A('s_cbranch_scc1 ' + Lk0)
    A('v_add_u32 %s, %d, %s' % (vr(v_a), (DBG_KV0 - DBG_KV) * 128, vr(v_a)))
    A('v_mov_b32 %s, 2' % vr(v_b))
    A('buffer_atomic_add %s, %s, %s, 0 offen sc1' % (vr(v_b), vr(v_a), sr(SRD_WS, 4)))
    A.label(Lk0)
    A('s_mov_b64 exec, -1')
    A('s_branch ' + Ld2)
    return hi
```

```python
from asmlib import *
from layout import *
import struct, os
from kernels import place_check, shift_ptrs


def f32bits(x):
    return struct.unpack('<I', struct.pack('<f', x))[0]


def env(n, d):
    return int(os.environ.get(n, str(d)))


LDS_RED = 131072
LDS_O = LDS_RED + 16384
LDS_ROLE = LDS_O + 8192
NSTEP = env('NSTEP', 64)
POLL_LIMIT = 400000
NEARX = env('NEARX', 1)
DELAY_C = env('DELAY_C', 4)
DELAY_E = env('DELAY_E', 12)
E_BACK = env('E_BACK', 0)
DELAY_V = env('DELAY_V', 6)
RED_SLEEP = env('RED_SLEEP', 3)
NOE_SLEEP = env('NOE_SLEEP', 10)
NOPF = env('NOPF', 0)
FORCE_SAFE = env('FORCE_SAFE', 0)
PFC = env('PFC', 0)
VS = [int(x) for x in os.environ.get('VS', '8,3,5').split(',')]
A2 = env('A2', 1)
S3 = env('S3', 2)
HINT = env('HINT', 7)
DBGT = env('DBGT', 0)
XMAP = int(os.environ.get('XMAP', '0'), 16)
A1P = env('A1P', 0)
ZE = env('ZE', 1)
CODEPF = env('CODEPF', 0)
PV2 = env('PV2', 1)
PKF = env('PKF', 1)
TLBW = env('TLBW', 0)
TWO = env('TWO', 0)
LITE = [int(x) for x in os.environ.get('LITE', '').split(',') if x]


def gen_chain(A, name, stamps=False, nsteps=NSTEP, worker=None):
    S = Regs('s', 16, 100)
    V = Regs('v', 1, 256)
    SRD_WS, SRD_T = 8, 12
    s_ptr = S.alloc(16, 4)
    (s_w, s_x, s_j, s_t0, s_t1, s_t2, s_t3, s_step, s_slot, s_slot1, s_slot2, s_slotp, s_kx, s_kx2, s_out, s_outp, s_fffe, s_c,
     s_lim, s_cnt, s_vote, s_stamp, s_stl, s_red, s_obm, s_kvo, s_ps, s_ps2, s_m0, s_m1) = [S.alloc() for _ in range(30)]
    s_hf = S.alloc(2, 2)
    s_tm = S.alloc(2, 2)
    s_ta = S.alloc(2, 2)
    s_kvm = S.alloc(2, 2)
    SRD_A = S.alloc(4, 4)
    SRD_B = S.alloc(4, 4)
    SRD_D = S.alloc(4, 4)
    v_lane, v_nu, v_g = V.alloc(), V.alloc(), V.alloc()
    v_t = [V.alloc() for _ in range(8)]
    (va_memr, va_mems, va_rw, va_rr, va_qks, va_rb, va_vs, va_cp, va_prog, va_qkr, va_vmr, va_kx, va_vx, va_ow, va_or, va_pw, va_pr,
     va_pz, va_pd, va_warm, v_idx, v_bias, v_junk, v_kvf, v_junk2, v_sh, va_flg, va_pg) = [V.alloc() for _ in range(28)]
    v_cc = V.alloc(2, 2)
    v_m1 = V.alloc(4, 4)
    v_mask = V.alloc(4, 4)
    v_sel = V.alloc(4, 4)
    v_maskx = V.alloc(4, 4)
    v_ones = V.alloc(4, 4)
    acc1 = V.alloc(4, 4)
    acc2 = V.alloc(4, 4)
    KXA = V.alloc(16, 4)
    KXB = V.alloc(16, 4)
    VXR = V.alloc(32, 4)
    F = V.alloc(64, 4)
    VMR = V.alloc(8, 4)
    QK = V.alloc(16, 4)
    M = V.alloc(16, 4)
    assert KXB == KXA + 16 and VXR == KXA + 32 and F == KXA + 64
    LND = KXA
    AC = F
    HA = F + 32
    RD = F + 48
    SA, SB, SM = F, F + 4, F + 8
    PX, PXH = F + 12, F + 16
    PM, PMH = F + 20, F + 22
    O = F + 28
    LS = F + 44
    v_mx, v_mx2, v_l = F + 48, F + 49, F + 50
    XY = QK
    G = F
    PR = KXA
    RB = KXA + 8
    W1, W2 = 0, 128
    L_exit = name + '_exit'
    nvm = [0]

    def stamp(k):
        if not stamps or (LITE and k not in LITE):
            return
        A('%s %s' % ('s_memrealtime' if stamps == 'rt' else 's_memtime', sr(s_tm, 2)))
        A('s_waitcnt lgkmcnt(0)')
        A('v_mov_b32 %s, %s' % (vr(v_t[7]), sr(s_tm)))
        A('v_mov_b32 %s, %s' % (vr(v_t[6]), sr(s_stl)))
        A('ds_write_b32 %s, %s offset:%d' % (vr(v_t[6]), vr(v_t[7]), 4 * k))
        if k in (0, 2, 6):
            A('v_mov_b32 %s, %s' % (vr(v_t[5]), sr(s_cnt)))
            A('ds_write_b32 %s, %s offset:%d' % (vr(v_t[6]), vr(v_t[5]), 4 * (8 + k)))

    def dbgt(word):
        if not DBGT:
            return
        A('s_memrealtime %s' % sr(s_tm, 2))
        A('s_waitcnt lgkmcnt(0)')
        A('v_mov_b32 %s, %s' % (vr(v_t[7]), sr(s_tm)))
        A('v_mov_b32 %s, %d' % (vr(v_t[6]), word * 4))
        A('s_mov_b64 exec, 1')
        A('buffer_atomic_umax %s, %s, %s, 0 offen sc1' % (vr(v_t[7]), vr(v_t[6]), sr(SRD_T, 4)))
        A('s_mov_b64 exec, -1')

    def srd(dst, ptr, nbytes):
        A('s_mov_b32 %s, %s' % (sr(dst), sr(ptr)))
        A('s_and_b32 %s, %s, 0xffff' % (sr(dst + 1), sr(ptr + 1)))
        A('s_mov_b32 %s, 0x%x' % (sr(dst + 2), nbytes))
        A('s_mov_b32 %s, 0x00020000' % sr(dst + 3))

    A.raw('.p2align 8')
    A.label(name)
    A('s_cmp_ge_u32 s2, 256')
    A('s_cbranch_scc1 ' + L_exit)
    A('s_mov_b32 s%d, 0' % S_MODE)
    if CODEPF:
        Lnp = A.uid('nopf')
        A('v_readfirstlane_b32 s4, v0')
        A('s_lshr_b32 s4, s4, 6')
        A('s_cmp_lg_u32 s4, 1')
        A('s_cbranch_scc1 ' + Lnp)
        A('s_getpc_b64 s[4:5]')
        A.label(name + '_pc')
        A('s_lshr_b32 s6, s2, 3')
        A('s_lshl_b32 s6, s6, 13')
        A('v_and_b32 v250, 63, v0')
        A('v_lshl_add_u32 v250, v250, 7, s6')
        A('v_min_u32 v250, %s_end-%s_pc-4, v250' % (name, name))
        A('v_mov_b32 v253, s5')
        A('v_add_co_u32 v252, vcc, s4, v250')
        A('v_addc_co_u32 v253, vcc, 0, v253, vcc')
        if CODEPF == 2:
            A('s_sleep 4')
        A('global_load_dword v251, v[252:253], off')
        A.label(Lnp)
    L_restart = name + '_restart'
    A.label(L_restart)
    A('s_load_dwordx2 %s, s[0:1], 8' % sr(s_ptr, 2))
    A('s_load_dwordx4 %s, s[0:1], 16' % sr(s_ptr + 4, 4))
    A('s_load_dwordx4 %s, s[0:1], 32' % sr(s_ptr + 8, 4))
    A('s_load_dwordx4 %s, s[0:1], 88' % sr(s_ptr + 12, 4))
    P_MEM0, P_WQ, P_WK, P_WV, P_WO, P_DBG, P_WS = s_ptr, s_ptr + 4, s_ptr + 6, s_ptr + 8, s_ptr + 10, s_ptr + 12, s_ptr + 14
    A('v_and_b32 %s, 63, v0' % vr(v_lane))
    A('v_lshrrev_b32 %s, 6, v0' % vr(v_t[0]))
    A('v_readfirstlane_b32 %s, %s' % (sr(s_w), vr(v_t[0])))
    A('v_and_b32 %s, 15, %s' % (vr(v_nu), vr(v_lane)))
    A('v_lshrrev_b32 %s, 4, %s' % (vr(v_g), vr(v_lane)))
    A('s_waitcnt lgkmcnt(0)')
    shift_ptrs(A, P_WS, P_DBG, s_t0)
    srd(SRD_WS, P_WS, WS_HALF)
    srd(SRD_T, P_DBG, 128)
    L_role = A.uid('role')
    A('s_lshr_b32 %s, s2, 5' % sr(s_x))
    A('s_and_b32 %s, s2, 31' % sr(s_j))
    A('s_cmp_lg_u32 s%d, 0' % S_MODE)
    A('s_cbranch_scc1 ' + L_role)
    A('s_getreg_b32 %s, hwreg(HW_REG_XCC_ID)' % sr(s_x))
    A('s_and_b32 %s, %s, 7' % (sr(s_x), sr(s_x)))
    if XMAP:
        A('s_lshl_b32 %s, %s, 2' % (sr(s_x), sr(s_x)))
        A('s_lshr_b32 %s, 0x%x, %s' % (sr(s_x), XMAP, sr(s_x)))
        A('s_and_b32 %s, %s, 7' % (sr(s_x), sr(s_x)))
    if FORCE_SAFE:
        A('s_cmp_eq_u32 s2, %d' % FORCE_SAFE)
        A('s_cselect_b32 %s, 1, 0' % sr(s_t0))
        A('s_xor_b32 %s, %s, %s' % (sr(s_x), sr(s_x), sr(s_t0)))
    L_norole = A.uid('norole')
    A('s_cmp_lg_u32 %s, 0' % sr(s_w))
    A('s_cbranch_scc1 ' + L_norole)
    A('s_lshl_b32 %s, %s, 2' % (sr(s_t0), sr(s_x)))
    A('v_mov_b32 %s, %s' % (vr(v_t[0]), sr(s_t0)))
    A('v_mov_b32 %s, 1' % vr(v_t[1]))
    A('s_mov_b64 exec, 1')
    A('buffer_atomic_add %s, %s, %s, 0 offen sc0 sc1' % (vr(v_t[1]), vr(v_t[0]), sr(SRD_T, 4)))
    A('s_waitcnt vmcnt(0)')
    A('v_mov_b32 %s, %d' % (vr(v_t[0]), LDS_ROLE))
    A('ds_write_b32 %s, %s' % (vr(v_t[0]), vr(v_t[1])))
    A('s_waitcnt lgkmcnt(0)')
    A('s_mov_b64 exec, -1')
    A.label(L_norole)
    A('s_barrier')
    A('v_mov_b32 %s, %d' % (vr(v_t[0]), LDS_ROLE))
    A('ds_read_b32 %s, %s' % (vr(v_t[1]), vr(v_t[0])))
    A('s_waitcnt lgkmcnt(0)')
    A('v_readfirstlane_b32 %s, %s' % (sr(s_j), vr(v_t[1])))
    A.label(L_role)
    L_work = name + '_worker'
    A('s_mov_b32 s%d, %s' % (S_VX, sr(s_x)))
    A('s_mov_b32 s3, %s' % sr(s_j))
    A('s_cmp_ge_u32 %s, 4' % sr(s_x))
    A('s_cbranch_scc1 ' + L_work)
    A('s_cmp_ge_u32 %s, 32' % sr(s_j))
    A('s_cbranch_scc1 ' + L_work)
    A('s_mov_b32 s3, -1')
    A('s_lshl_b32 %s, %s, 1' % (sr(s_x), sr(s_x)))
    A('s_lshr_b32 %s, %s, 4' % (sr(s_t0), sr(s_j)))
    A('s_add_u32 %s, %s, %s' % (sr(s_x), sr(s_x), sr(s_t0)))
    A('s_and_b32 %s, %s, 15' % (sr(s_j), sr(s_j)))
    A('s_xor_b32 %s, %s, %s' % (sr(s_red), sr(s_x), sr(s_j)))
    A('s_and_b32 %s, %s, 1' % (sr(s_red), sr(s_red)))
    A('s_lshr_b32 %s, %s, 1' % (sr(s_obm), sr(s_x)))
    A('s_lshl_b32 %s, %s, 4' % (sr(s_obm), sr(s_obm)))
    A('s_add_u32 %s, %s, %s' % (sr(s_obm), sr(s_obm), sr(s_j)))
    A('s_lshl_b32 %s, %s, 10' % (sr(s_obm), sr(s_obm)))
    L_noz = A.uid('noz')
    A('s_or_b32 %s, %s, %s' % (sr(s_t0), sr(s_x), sr(s_j)))
    A('s_xor_b32 %s, %s, 1' % (sr(s_t1), sr(s_w)))
    A('s_or_b32 %s, %s, %s' % (sr(s_t0), sr(s_t0), sr(s_t1)))
    A('s_cmp_lg_u32 %s, 0' % sr(s_t0))
    A('s_cbranch_scc1 ' + L_noz)
    A('v_lshlrev_b32 %s, 7, %s' % (vr(v_t[0]), vr(v_lane)))
    A('v_mov_b32 %s, 0' % vr(v_t[1]))
    for i in range(4):
        A('s_mov_b32 %s, 0x%x' % (sr(s_t0), CTR + i * 8192))
        A('buffer_store_dword %s, %s, %s, %s offen sc1' % (vr(v_t[1]), vr(v_t[0]), sr(SRD_WS, 4), sr(s_t0)))
    A('s_waitcnt vmcnt(0)')
    A('v_mov_b32 %s, %d' % (vr(v_t[0]), DBG_INIT))
    A('v_mov_b32 %s, 1' % vr(v_t[1]))
    A('s_mov_b64 exec, 1')
    A('buffer_store_dword %s, %s, %s, 0 offen sc1' % (vr(v_t[1]), vr(v_t[0]), sr(SRD_T, 4)))
    A('s_mov_b64 exec, -1')
    dbgt(10)
    A.label(L_noz)
    for i in range(4):
        A('v_mov_b32 %s, -1' % vr(v_m1 + i))
    l16 = v_t[2]
    A('v_lshlrev_b32 %s, 4, %s' % (vr(l16), vr(v_lane)))
    s_ob = s_t3
    A('s_lshl_b32 %s, %s, 4' % (sr(s_ob), sr(s_x)))
    A('s_add_u32 %s, %s, %s' % (sr(s_ob), sr(s_ob), sr(s_j)))
    A('s_lshl_b32 %s, %s, 10' % (sr(s_ob), sr(s_ob)))

    A('s_lshl_b32 %s, %s, 17' % (sr(s_t0), sr(s_w)))
    A('s_add_u32 %s, %s, %s' % (sr(s_t2), sr(s_t0), sr(s_ob)))
    A('s_add_u32 %s, %s, %s' % (sr(s_t0), sr(s_t0), sr(s_obm)))
    Lf1, Lf2 = A.uid('f1'), A.uid('f2')
    A('s_cmp_lg_u32 s%d, 0' % S_MODE)
    A('s_cbranch_scc1 ' + Lf1)
    for sc in ('', ' sc1'):
        if sc:
            A.label(Lf1)
        for base, so in ((QKI, s_t2), (VMI, s_t2), (MEMI, s_t0)):
            A('s_add_u32 %s, %s, 0x%x' % (sr(s_t1), sr(so), base))
            A('buffer_store_dwordx4 %s, %s, %s, %s offen%s' % (vr(v_m1, 4), vr(l16), sr(SRD_WS, 4), sr(s_t1), sc))
        if not sc:
            A('s_branch ' + Lf2)
    A.label(Lf2)
    A('s_lshl_b32 %s, %s, 14' % (sr(s_t0), sr(s_j)))
    A('s_lshl_b32 %s, %s, 11' % (sr(s_t1), sr(s_w)))
    A('s_add_u32 %s, %s, %s' % (sr(s_t0), sr(s_t0), sr(s_t1)))
    A('s_add_u32 %s, %s, 0x%x' % (sr(s_t0), sr(s_t0), PART))
    A('v_add_u32 %s, %s, %s' % (vr(va_pr), sr(s_t0), vr(l16)))
    A('s_lshl_b32 %s, %s, 8' % (sr(s_t1), sr(s_x)))
    A('v_add_u32 %s, %s, %s' % (vr(va_pw), sr(s_t1), vr(va_pr)))
    A('v_add_u32 %s, 8192, %s' % (vr(va_pz), vr(va_pw)))
    A('s_mov_b64 exec, 0xffff')
    for sl in range(4):
        A('s_mov_b32 %s, 0x%x' % (sr(s_t1), sl * 0x40000))
        A('buffer_store_dwordx4 %s, %s, %s, %s offen sc1' % (vr(v_m1, 4), vr(va_pw), sr(SRD_WS, 4), sr(s_t1)))
        A('buffer_store_dwordx4 %s, %s, %s, %s offen sc1' % (vr(v_m1, 4), vr(va_pz), sr(SRD_WS, 4), sr(s_t1)))
    A('s_mov_b64 exec, -1')
    A('s_lshr_b32 %s, %s, 1' % (sr(s_t0), sr(s_x)))
    A('s_lshl_b32 %s, %s, 8' % (sr(s_t0), sr(s_t0)))
    A('s_add_u32 %s, %s, 0x%x' % (sr(s_t0), sr(s_t0), FLG))
    A('v_lshl_add_u32 %s, %s, 2, %s' % (vr(va_flg), vr(v_nu), sr(s_t0)))
    Lfr = A.uid('fr')
    A('s_cmp_eq_u32 %s, 0' % sr(s_red))
    A('s_cbranch_scc1 ' + Lfr)
    A('s_and_b32 %s, %s, 1' % (sr(s_t1), sr(s_x)))
    A('s_lshl_b32 %s, %s, 5' % (sr(s_t1), sr(s_t1)))
    A('s_add_u32 %s, %s, %s' % (sr(s_t0), sr(s_t0), sr(s_t1)))
    A('s_lshr_b32 %s, %s, 1' % (sr(s_t1), sr(s_j)))
    A('s_lshl_b32 %s, %s, 2' % (sr(s_t1), sr(s_t1)))
    A('s_add_u32 %s, %s, %s' % (sr(s_t0), sr(s_t0), sr(s_t1)))
    A('v_min_u32 %s, 1, v0' % vr(va_flg))
    A('v_lshl_add_u32 %s, %s, 28, %s' % (vr(va_flg), vr(va_flg), sr(s_t0)))
    A('buffer_store_dword %s, %s, %s, 0 offen sc1' % (vr(v_m1), vr(va_flg), sr(SRD_WS, 4)))
    A.label(Lfr)
    L_nocal, L_nocal2 = A.uid('nocal'), A.uid('nocal2')
    A('s_mov_b32 %s, 1' % sr(s_vote))
    A('s_cmp_lt_u32 %s, 8' % sr(s_j))
    A('s_cbranch_scc1 ' + L_nocal2)
    A('s_bitcmp1_b32 %s, 0' % sr(s_x))
    A('s_cbranch_scc1 ' + L_nocal2)
    A('s_waitcnt vmcnt(0)')
    A('s_barrier')
    A('s_cmp_lg_u32 %s, 0' % sr(s_w))
    A('s_cbranch_scc1 ' + L_nocal)
    A('s_mov_b32 %s, -1' % sr(s_m0))
    A('s_mov_b32 %s, -1' % sr(s_m1))
    A('s_mov_b64 exec, 0xffff')
    for rep in range(3):
        for c in range(2):
            A('s_mov_b32 %s, %d' % (sr(s_t1), 0x40000 + rep * 0x40000))
            A('s_memtime %s' % sr(s_ta, 2))
            A('s_waitcnt lgkmcnt(0)')
            A('buffer_store_dwordx4 %s, %s, %s, %s offen sc1' % (vr(v_m1, 4), vr(va_pz if c else va_pw), sr(SRD_WS, 4), sr(s_t1)))
            A('s_waitcnt vmcnt(0)')
            A('s_memtime %s' % sr(s_tm, 2))
            A('s_waitcnt lgkmcnt(0)')
            A('s_sub_u32 %s, %s, %s' % (sr(s_t2), sr(s_tm), sr(s_ta)))
            A('s_min_u32 %s, %s, %s' % (sr(s_m1 if c else s_m0), sr(s_m1 if c else s_m0), sr(s_t2)))
    A('s_cmp_lt_u32 %s, %s' % (sr(s_m1), sr(s_m0)))
    A('s_cselect_b32 %s, 0x10001, 1' % sr(s_vote))
    if TWO:
        A('s_cselect_b32 %s, 0x10000, 0' % sr(s_vote))
        A('s_lshl_b32 %s, %s, 1' % (sr(s_t2), sr(s_x)))
        A('s_lshl_b32 %s, %s, %s' % (sr(s_vote), sr(s_vote), sr(s_t2)))
        A('s_add_u32 %s, %s, 1' % (sr(s_vote), sr(s_vote)))
    A('s_mov_b64 exec, -1')
    A.label(L_nocal)
    A('s_barrier')
    A.label(L_nocal2)

    s_col = s_t2
    A('s_lshr_b32 %s, %s, 4' % (sr(s_col), sr(s_ob)))
    vw = v_t[4]
    A('v_lshrrev_b32 %s, 2, %s' % (vr(vw), vr(v_lane)))
    A('v_lshlrev_b32 %s, 13, %s' % (vr(vw), vr(vw)))
    A('v_and_b32 %s, 3, %s' % (vr(v_t[5]), vr(v_lane)))
    A('v_lshl_add_u32 %s, %s, 4, %s' % (vr(vw), vr(v_t[5]), vr(vw)))
    A('s_lshl_b32 %s, %s, 17' % (sr(s_t0), sr(s_w)))
    A('s_add_u32 %s, %s, %s' % (sr(s_col), sr(s_col), sr(s_t0)))
    A('s_lshl_b32 %s, %s, 10' % (sr(s_t0), sr(s_w)))
    for mi, P in enumerate((P_WQ, P_WK)):
        srd(SRD_A, P, 1024 * 4096 * 2)
        for i in range(16):
            A('s_add_u32 m0, %s, %d' % (sr(s_t0), mi * 65536 + i * 4096))
            A('s_add_u32 %s, %s, %d' % (sr(s_t1), sr(s_col), i * 4 * 131072))
            A('buffer_load_dwordx4 %s, %s, %s offen lds' % (vr(vw), sr(SRD_A, 4), sr(s_t1)))
        if mi == 0:
            A('s_waitcnt vmcnt(16)')
            A('s_barrier')
            L_nord = A.uid('nord')
            A('s_cmp_lg_u32 %s, 0' % sr(s_w))
            A('s_cbranch_scc1 ' + L_nord)
            A('v_mov_b32 %s, 32' % vr(acc2))
            A('v_mov_b32 %s, %s' % (vr(acc2 + 1), sr(s_vote)))
            A('s_mov_b64 exec, 1')
            A('buffer_atomic_add %s, %s, %s, 0 offen sc1' % (vr(acc2 + 1), vr(acc2), sr(SRD_T, 4)))
            A('s_mov_b64 exec, -1')
            A.label(L_nord)
            A('s_nop 4')
    srd(SRD_D, P_MEM0, 8 * 1024 * 2)
    vm0 = v_t[6]
    A('v_and_b32 %s, 7, %s' % (vr(vm0), vr(v_nu)))
    A('v_lshlrev_b32 %s, 11, %s' % (vr(vm0), vr(vm0)))
    A('v_lshl_add_u32 %s, %s, 5, %s' % (vr(vm0), vr(v_g), vr(vm0)))
    A('v_lshrrev_b32 %s, 3, %s' % (vr(v_t[7]), vr(v_nu)))
    A('v_lshl_add_u32 %s, %s, 2, %s' % (vr(vm0), vr(v_t[7]), vr(vm0)))
    A('s_lshl_b32 %s, %s, 9' % (sr(s_t1), sr(s_w)))
    for k in range(4):
        for a in range(4):
            A('buffer_load_dword %s, %s, %s, %s offen offset:%d' % (vr(M + 4 * k + a), vr(vm0), sr(SRD_D, 4), sr(s_t1), k * 128 + a * 8))

    v2 = v_t[5]
    LwN, LwJ = A.uid('wN'), A.uid('wJ')
    A('s_cmp_lg_u32 %s, 0' % sr(s_red))
    A('s_cbranch_scc1 ' + LwN)
    srd(SRD_B, P_WV, 1024 * 4096 * 2)
    A('v_lshrrev_b32 %s, 3, %s' % (vr(v2), vr(v_lane)))
    A('v_lshlrev_b32 %s, 13, %s' % (vr(v2), vr(v2)))
    A('v_and_b32 %s, 7, %s' % (vr(v_t[6]), vr(v_lane)))
    A('v_lshl_add_u32 %s, %s, 4, %s' % (vr(v2), vr(v_t[6]), vr(v2)))
    A('s_lshr_b32 %s, %s, 4' % (sr(s_t2), sr(s_ob)))
    A('s_andn2_b32 %s, %s, 64' % (sr(s_t2), sr(s_t2)))
    A('s_lshl_b32 %s, %s, 16' % (sr(s_t1), sr(s_w)))
    A('s_add_u32 %s, %s, %s' % (sr(s_t2), sr(s_t2), sr(s_t1)))
    A('s_mov_b32 %s, %d' % (sr(s_t0), 4 * 65536))
    A('s_branch ' + LwJ)
    A.label(LwN)
    srd(SRD_B, P_WO, 4096 * 1024 * 2)
    A('v_lshlrev_b32 %s, 11, %s' % (vr(v2), vr(v_g)))
    A('v_lshl_add_u32 %s, %s, 4, %s' % (vr(v2), vr(v_nu), vr(v2)))
    A('s_lshl_b32 %s, %s, 20' % (sr(s_t2), sr(s_x)))
    A('s_lshr_b32 %s, %s, 1' % (sr(s_t1), sr(s_j)))
    A('s_lshl_b32 %s, %s, 8' % (sr(s_t1), sr(s_t1)))
    A('s_add_u32 %s, %s, %s' % (sr(s_t2), sr(s_t2), sr(s_t1)))
    A('s_lshl_b32 %s, %s, 13' % (sr(s_t1), sr(s_w)))
    A('s_add_u32 %s, %s, %s' % (sr(s_t2), sr(s_t2), sr(s_t1)))
    A('s_mov_b32 %s, %d' % (sr(s_t0), 4 * 8192))
    A.label(LwJ)
    A('s_mov_b32 %s, %s' % (sr(s_m0), sr(s_t2)))
    A('s_mov_b32 %s, %s' % (sr(s_m1), sr(s_t0)))
    A('s_mov_b32 %s, 0xfffefffe' % sr(s_fffe))
    A('s_mov_b32 %s, 0x%x' % (sr(s_c), f32bits(128 ** -0.5 * 1.4426950408889634)))
    A('s_mov_b32 %s, %d' % (sr(s_lim), POLL_LIMIT))
    A('v_mov_b32 %s, %s' % (vr(v_cc), sr(s_c)))
    A('v_mov_b32 %s, %s' % (vr(v_cc + 1), sr(s_c)))
    A('s_mov_b32 %s, 0xff00ff00' % sr(s_hf))
    A('s_mov_b32 %s, 0xff00ff00' % sr(s_hf + 1))
    ta, tb, tc = v_t[0], v_t[1], v_t[7]
    A('v_mov_b32 %s, 0x%x' % (vr(ta), f32bits(-1e30)))
    for i in range(4):
        A('v_cndmask_b32 %s, 0, %s, %s' % (vr(v_maskx + i), vr(ta), sr(s_hf, 2)))
    A('v_cmp_gt_u32 vcc, 32, %s' % vr(v_lane))
    for i in range(4):
        A('v_cndmask_b32 %s, %s, %s, vcc' % (vr(v_mask + i), vr(v_maskx), vr(ta)))
    A('v_mov_b32 %s, 0x%x' % (vr(ta), f32bits(-3e38)))
    A('v_cndmask_b32 %s, %s, 0, %s' % (vr(v_bias), vr(ta), sr(s_hf, 2)))
    for i in range(4):
        A('v_mov_b32 %s, 0x3f803f80' % vr(v_ones + i))
    A('v_mov_b32 %s, 0x4444' % vr(ta))
    A('v_mov_b32 %s, 0xeeee' % vr(tb))
    A('v_cndmask_b32 %s, %s, %s, %s' % (vr(v_idx), vr(ta), vr(tb), sr(s_hf, 2)))
    A('v_bfe_u32 %s, %s, 2, 1' % (vr(ta), vr(v_nu)))
    A('v_bfe_u32 %s, %s, 1, 1' % (vr(tb), vr(v_nu)))
    A('v_lshl_add_u32 %s, %s, 1, %s' % (vr(ta), vr(tb), vr(ta)))
    A('v_and_b32 %s, 1, %s' % (vr(tb), vr(v_nu)))
    A('v_lshlrev_b32 %s, 4, %s' % (vr(tb), vr(tb)))
    A('v_mov_b32 %s, 0x3f80' % vr(tc))
    A('v_lshlrev_b32 %s, %s, %s' % (vr(tb), vr(tb), vr(tc)))
    for d in range(4):
        A('v_cmp_eq_u32 vcc, %d, %s' % (d, vr(ta)))
        A('v_cndmask_b32 %s, 0, %s, vcc' % (vr(v_sel + d), vr(tb)))

    s_p, s_wh = s_t0, s_t1
    A('s_and_b32 %s, %s, 1' % (sr(s_p), sr(s_w)))
    A('s_lshr_b32 %s, %s, 1' % (sr(s_wh), sr(s_w)))
    A('s_lshl_b32 %s, %s, 12' % (sr(s_t2), sr(s_w)))
    A('v_add_u32 %s, %s, %s' % (vr(ta), sr(s_t2), vr(l16)))
    A('s_lshr_b32 %s, %s, 1' % (sr(s_t2), sr(s_x)))
    A('s_lshl_b32 %s, %s, 14' % (sr(s_t2), sr(s_t2)))
    A('s_add_u32 %s, %s, 0x%x' % (sr(s_t2), sr(s_t2), MEMI))
    A('v_add_u32 %s, %s, %s' % (vr(va_memr), sr(s_t2), vr(ta)))
    A('s_lshl_b32 %s, %s, 14' % (sr(s_t2), sr(s_x)))
    A('s_add_u32 %s, %s, 0x%x' % (sr(s_t2), sr(s_t2), QKI))
    A('v_add_u32 %s, %s, %s' % (vr(va_qkr), sr(s_t2), vr(ta)))
    A('s_lshl_b32 %s, %s, 12' % (sr(s_cnt), sr(s_w)))
    A('s_add_u32 %s, %s, %s' % (sr(s_t2), sr(s_t2), sr(s_cnt)))
    A('s_add_u32 %s, %s, 0x%x' % (sr(s_t2), sr(s_t2), VMI - QKI))
    A('v_and_b32 %s, 31, %s' % (vr(va_vmr), vr(v_lane)))
    A('v_lshlrev_b32 %s, 4, %s' % (vr(va_vmr), vr(va_vmr)))
    A('v_lshrrev_b32 %s, 5, %s' % (vr(ta), vr(v_lane)))
    A('v_xor_b32 %s, 1, %s' % (vr(ta), vr(ta)))
    A('v_lshl_add_u32 %s, %s, 11, %s' % (vr(va_vmr), vr(ta), vr(va_vmr)))
    A('v_add_u32 %s, %s, %s' % (vr(va_vmr), sr(s_t2), vr(va_vmr)))
    A('s_lshl_b32 %s, %s, 12' % (sr(s_t2), sr(s_w)))
    A('s_add_u32 %s, %s, %d' % (sr(s_t2), sr(s_t2), LDS_RED))
    A('v_lshl_add_u32 %s, %s, 3, %s' % (vr(va_rw), vr(v_lane), sr(s_t2)))
    A('v_lshrrev_b32 %s, 5, %s' % (vr(ta), vr(v_lane)))
    A('v_lshlrev_b32 %s, 13, %s' % (vr(ta), vr(ta)))
    A('v_and_b32 %s, 31, %s' % (vr(tb), vr(v_lane)))
    A('v_lshl_add_u32 %s, %s, 4, %s' % (vr(ta), vr(tb), vr(ta)))
    A('s_lshl_b32 %s, %s, 9' % (sr(s_t2), sr(s_w)))
    A('s_add_u32 %s, %s, %d' % (sr(s_t2), sr(s_t2), LDS_RED))
    A('v_add_u32 %s, %s, %s' % (vr(va_rr), sr(s_t2), vr(ta)))
    vR, vcp, vH = tc, acc1, acc1 + 1
    A('v_bfe_u32 %s, %s, 3, 1' % (vr(ta), vr(v_lane)))
    A('v_bfe_u32 %s, %s, 4, 1' % (vr(tb), vr(v_lane)))
    A('v_lshlrev_b32 %s, 2, %s' % (vr(vR), vr(ta)))
    A('v_lshl_add_u32 %s, %s, 1, %s' % (vr(vR), vr(tb), vr(vR)))
    A('v_and_b32 %s, 7, %s' % (vr(vcp), vr(v_lane)))
    A('v_lshrrev_b32 %s, 5, %s' % (vr(vH), vr(v_lane)))
    A('v_lshlrev_b32 %s, 8, %s' % (vr(va_vs), vr(ta)))
    A('v_lshl_add_u32 %s, %s, 5, %s' % (vr(va_vs), vr(vcp), vr(va_vs)))
    A('v_lshl_add_u32 %s, %s, 4, %s' % (vr(va_vs), vr(vH), vr(va_vs)))
    A('v_lshl_add_u32 %s, %s, 2, %s' % (vr(va_vs), vr(tb), vr(va_vs)))
    A('s_andn2_b32 %s, %s, 1024' % (sr(s_t2), sr(s_ob)))
    A('s_lshl_b32 %s, %s, 10' % (sr(s_cnt), sr(s_wh)))
    A('s_add_u32 %s, %s, %s' % (sr(s_t2), sr(s_t2), sr(s_cnt)))
    A('s_lshl_b32 %s, %s, 3' % (sr(s_cnt), sr(s_p)))
    A('s_add_u32 %s, %s, %s' % (sr(s_t2), sr(s_t2), sr(s_cnt)))
    A('s_add_u32 %s, %s, 0x%x' % (sr(s_t2), sr(s_t2), VMI))
    A('v_add_u32 %s, %s, %s' % (vr(va_vs), sr(s_t2), vr(va_vs)))
    A('v_bfe_u32 %s, %s, 1, 1' % (vr(ta), vr(vcp)))
    A('v_lshlrev_b32 %s, 8, %s' % (vr(va_qks), vr(ta)))
    A('v_add_u32 %s, %s, %s' % (vr(vR), vr(vR), vr(vH)))
    A('v_lshl_add_u32 %s, %s, 4, %s' % (vr(va_qks), vr(vR), vr(va_qks)))
    A('v_lshrrev_b32 %s, 2, %s' % (vr(ta), vr(vcp)))
    A('v_lshl_add_u32 %s, %s, 3, %s' % (vr(va_qks), vr(ta), vr(va_qks)))
    A('v_and_b32 %s, 1, %s' % (vr(ta), vr(vcp)))
    A('v_lshl_add_u32 %s, %s, 2, %s' % (vr(va_qks), vr(ta), vr(va_qks)))
    A('s_lshl_b32 %s, %s, 9' % (sr(s_t2), sr(s_p)))
    A('v_add_u32 %s, %s, %s' % (vr(va_qks), sr(s_t2), vr(va_qks)))
    A('s_lshl_b32 %s, %s, 7' % (sr(s_t2), sr(s_wh)))
    A('s_add_u32 %s, %s, %s' % (sr(s_t2), sr(s_t2), sr(s_ob)))
    A('s_add_u32 %s, %s, 0x%x' % (sr(s_t2), sr(s_t2), QKI))
    A('v_add_u32 %s, %s, %s' % (vr(va_qks), sr(s_t2), vr(va_qks)))
    A('v_lshlrev_b32 %s, 4, %s' % (vr(va_mems), vr(v_nu)))
    A('v_lshl_add_u32 %s, %s, 2, %s' % (vr(va_mems), vr(v_g), vr(va_mems)))
    A('s_lshl_b32 %s, %s, 8' % (sr(s_t2), sr(s_w)))
    A('s_add_u32 %s, %s, %s' % (sr(s_t2), sr(s_t2), sr(s_obm)))
    A('s_add_u32 %s, %s, 0x%x' % (sr(s_t2), sr(s_t2), MEMI))
    A('v_add_u32 %s, %s, %s' % (vr(va_mems), sr(s_t2), vr(va_mems)))
    A('s_lshl_b32 %s, %s, 10' % (sr(s_t2), sr(s_wh)))
    A('s_xor_b32 %s, %s, %s' % (sr(s_kvo), sr(s_t2), sr(s_ob)))
    A('s_lshl_b32 %s, %s, 19' % (sr(s_t2), sr(s_p)))
    A('s_add_u32 %s, %s, %s' % (sr(s_t2), sr(s_t2), sr(s_kvo)))
    A('s_add_u32 %s, %s, 0x%x' % (sr(s_t2), sr(s_t2), QKI))
    A('s_lshl_b32 %s, %s, 23' % (sr(s_cnt), sr(s_p)))
    A('s_add_u32 %s, %s, %s' % (sr(s_cnt), sr(s_cnt), sr(s_kvo)))
    A('s_add_u32 %s, %s, 0x%x' % (sr(s_cnt), sr(s_cnt), KMO))
    assert VMO - KMO == 1 << 23 and VMI - QKI == 1 << 19
    A('v_add_u32 %s, %s, %s' % (vr(va_rb), sr(s_t2), vr(l16)))
    A('v_add_u32 %s, %s, %s' % (vr(va_cp), sr(s_cnt), vr(l16)))
    A('s_or_b32 %s, %s, %s' % (sr(s_t2), sr(s_x), sr(s_j)))
    A('s_xor_b32 %s, %s, 3' % (sr(s_cnt), sr(s_w)))
    A('s_or_b32 %s, %s, %s' % (sr(s_t2), sr(s_t2), sr(s_cnt)))
    A('s_cmp_eq_u32 %s, 0' % sr(s_t2))
    A('s_mov_b32 %s, 0x%x' % (sr(s_cnt), CTR + DBG_PROG * 128))
    A('s_cselect_b32 %s, %s, 0x%x' % (sr(s_t2), sr(s_cnt), WS_BYTES))
    A('v_and_b32 %s, 3, %s' % (vr(v_sh), vr(v_lane)))
    A('v_lshlrev_b32 %s, 7, %s' % (vr(v_sh), vr(v_sh)))
    A('v_add_u32 %s, %s, %s' % (vr(va_prog), sr(s_t2), vr(v_sh)))
    A('v_cmp_lt_u32 vcc, 3, %s' % vr(v_lane))
    A('v_mov_b32 %s, 0x%x' % (vr(ta), WS_BYTES))
    A('v_cndmask_b32 %s, %s, %s, vcc' % (vr(va_prog), vr(va_prog), vr(ta)))
    A('v_add_u32 %s, 0x%x, %s' % (vr(v_sh), CTR, vr(v_sh)))
    s_h = s_t2
    A('s_lshl_b32 %s, %s, 2' % (sr(s_h), sr(s_x)))
    A('s_add_u32 %s, %s, %s' % (sr(s_h), sr(s_h), sr(s_w)))
    A('s_lshl_b32 %s, %s, 13' % (sr(s_h), sr(s_h)))
    A('v_and_b32 %s, 1, %s' % (vr(ta), vr(v_g)))
    A('v_lshrrev_b32 %s, 1, %s' % (vr(tb), vr(v_g)))
    A('v_lshlrev_b32 %s, 9, %s' % (vr(va_kx), vr(ta)))
    A('v_lshl_add_u32 %s, %s, 10, %s' % (vr(va_kx), vr(tb), vr(va_kx)))
    A('v_add_u32 %s, %s, %s' % (vr(va_kx), sr(s_h), vr(va_kx)))
    A('v_lshl_add_u32 %s, %s, 4, %s' % (vr(va_vx), vr(v_nu), vr(va_kx)))
    A('v_add_u32 %s, 0x%x, %s' % (vr(va_vx), VX, vr(va_vx)))
    A('v_lshrrev_b32 %s, 3, %s' % (vr(ta), vr(v_nu)))
    A('v_lshl_add_u32 %s, %s, 8, %s' % (vr(va_kx), vr(ta), vr(va_kx)))
    A('v_and_b32 %s, 7, %s' % (vr(ta), vr(v_nu)))
    A('v_lshl_add_u32 %s, %s, 4, %s' % (vr(va_kx), vr(ta), vr(va_kx)))
    A('v_add_u32 %s, 0x%x, %s' % (vr(va_kx), KX, vr(va_kx)))
    A('s_lshr_b32 %s, %s, 1' % (sr(s_t2), sr(s_j)))
    A('s_lshl_b32 %s, %s, 2' % (sr(s_t2), sr(s_t2)))
    A('s_add_u32 %s, %s, %s' % (sr(s_t2), sr(s_t2), sr(s_w)))
    A('s_and_b32 %s, %s, 15' % (sr(s_cnt), sr(s_t2)))
    A('s_lshl_b32 %s, %s, 11' % (sr(s_cnt), sr(s_cnt)))
    A('s_lshr_b32 %s, %s, 4' % (sr(s_t2), sr(s_t2)))
    A('s_lshl_b32 %s, %s, 24' % (sr(s_t2), sr(s_t2)))
    assert VX - KX == 1 << 24
    A('s_add_u32 %s, %s, %s' % (sr(s_t2), sr(s_t2), sr(s_cnt)))
    A('s_lshl_b32 %s, %s, 15' % (sr(s_cnt), sr(s_x)))
    A('s_add_u32 %s, %s, %s' % (sr(s_t2), sr(s_t2), sr(s_cnt)))
    A('s_add_u32 %s, %s, 0x%x' % (sr(s_t2), sr(s_t2), KX))
    A('v_lshl_add_u32 %s, %s, 5, %s' % (vr(va_warm), vr(v_lane), sr(s_t2)))
    A('v_add_u32 %s, %d, %s' % (vr(va_or), LDS_O, vr(l16)))
    A('v_lshrrev_b32 %s, 3, %s' % (vr(ta), vr(v_nu)))
    A('v_mul_u32_u24 %s, %d, %s' % (vr(ta), 1024 - 128, vr(ta)))
    A('s_lshl_b32 %s, %s, 11' % (sr(s_t2), sr(s_w)))
    A('v_add3_u32 %s, %s, %s, %s' % (vr(va_ow), sr(s_t2), vr(va_or), vr(ta)))
    if stamps:
        A('s_lshl_b32 %s, %s, 4' % (sr(s_stamp), sr(s_ob)))
        A('s_lshl_b32 %s, %s, 12' % (sr(s_t2), sr(s_w)))
        A('s_add_u32 %s, %s, %s' % (sr(s_stamp), sr(s_stamp), sr(s_t2)))
        A('s_add_u32 %s, %s, 0x%x' % (sr(s_stamp), sr(s_stamp), STAMP))
        A('s_add_u32 %s, %s, 65536' % (sr(s_stl), sr(s_t2)))

    vq1, vq2, vr_, vcq = acc1, acc1 + 1, acc1 + 2, acc1 + 3
    A('v_bfe_u32 %s, %s, 2, 2' % (vr(vr_), vr(v_lane)))
    A('v_and_b32 %s, 3, %s' % (vr(vcq), vr(v_lane)))
    A('v_lshl_add_u32 %s, %s, 3, %s' % (vr(vq2), vr(v_g), vr(vr_)))
    A('v_lshlrev_b32 %s, 6, %s' % (vr(vq1), vr(vq2)))
    A('v_lshl_add_u32 %s, %s, 3, %s' % (vr(vq1), vr(vcq), vr(vq1)))
    A('s_lshl_b32 %s, %s, 14' % (sr(s_t2), sr(s_w)))
    A('v_add_u32 %s, %s, %s' % (vr(vq1), sr(s_t2), vr(vq1)))
    A('v_add_u32 %s, 65536, %s' % (vr(tb), vr(vq1)))
    def ld2(i):
        A('buffer_load_dwordx4 %s, %s, %s, %s offen' % (vr(LND + 4 * i, 4), vr(v2), sr(SRD_B, 4), sr(s_m0)))
        A('s_add_u32 %s, %s, %s' % (sr(s_m0), sr(s_m0), sr(s_m1)))
    for i in range(8):
        ld2(i)
    A('s_waitcnt vmcnt(8)')
    A('s_barrier')
    n2 = 8
    for kk in range(4):
        for tl in range(4):
            for bh in range(2):
                for q in range(2):
                    A('ds_read_b64_tr_b16 %s, %s offset:%d' % (ar(W1 + 8 * (kk * 4 + tl) + 4 * bh + 2 * q, 2), vr(tb if tl >= 2 else vq1), kk * 4096 + bh * 2048 + q * 256 + (tl & 1) * 32))
            ld2(n2)
            n2 += 1
            A('s_waitcnt lgkmcnt(8)')
    A('s_waitcnt lgkmcnt(0)')
    A('s_barrier')
    A('s_lshl_b32 %s, %s, 10' % (sr(s_t2), sr(s_w)))
    A('v_add_u32 %s, %s, %s' % (vr(ta), sr(s_t2), vr(l16)))
    A('v_add_u32 %s, 65536, %s' % (vr(tb), vr(ta)))
    for i in range(32):
        if n2 < 32 and i % 2 == 0:
            ld2(n2)
            n2 += 1
        A('s_waitcnt vmcnt(%d)' % (n2 - 1 - i))
        A('ds_write_b128 %s, %s offset:%d' % (vr(ta if i < 16 else tb), vr(LND + 4 * i, 4), (i & 15) * 4096))
        if i & 3 == 3:
            A('s_waitcnt lgkmcnt(8)')
    A('s_waitcnt lgkmcnt(0)')
    A('s_barrier')
    LtN, LtJ = A.uid('tN'), A.uid('tJ')
    A('s_cmp_lg_u32 %s, 0' % sr(s_red))
    A('s_cbranch_scc1 ' + LtN)
    A('v_lshlrev_b32 %s, 7, %s' % (vr(ta), vr(vq2)))
    A('v_lshl_add_u32 %s, %s, 3, %s' % (vr(ta), vr(vcq), vr(ta)))
    A('s_lshl_b32 %s, %s, 15' % (sr(s_t2), sr(s_w)))
    A('v_add_u32 %s, %s, %s' % (vr(ta), sr(s_t2), vr(ta)))
    for kk in range(4):
        for tv in range(4):
            for bh in range(2):
                for q in range(2):
                    A('ds_read_b64_tr_b16 %s, %s offset:%d' % (ar(W2 + 8 * (kk * 4 + tv) + 4 * bh + 2 * q, 2), vr(ta), kk * 8192 + bh * 4096 + q * 512 + tv * 32))
            A('s_waitcnt lgkmcnt(8)')
    A('s_branch ' + LtJ)
    A.label(LtN)
    A('v_and_b32 %s, 1, %s' % (vr(ta), vr(v_g)))
    A('v_lshl_add_u32 %s, %s, 5, %s' % (vr(ta), vr(ta), vr(vr_)))
    A('v_lshrrev_b32 %s, 1, %s' % (vr(tb), vr(v_g)))
    A('v_lshl_add_u32 %s, %s, 2, %s' % (vr(ta), vr(tb), vr(ta)))
    A('v_lshlrev_b32 %s, 8, %s' % (vr(ta), vr(ta)))
    A('v_lshl_add_u32 %s, %s, 3, %s' % (vr(ta), vr(vcq), vr(ta)))
    A('s_lshl_b32 %s, %s, 5' % (sr(s_t2), sr(s_w)))
    A('v_add_u32 %s, %s, %s' % (vr(ta), sr(s_t2), vr(ta)))
    A('v_add_u32 %s, 65536, %s' % (vr(tb), vr(ta)))
    for k in range(8):
        for u in range(2):
            for bh in range(2):
                for q in range(2):
                    A('ds_read_b64_tr_b16 %s, %s offset:%d' % (ar(W2 + 8 * (k * 2 + u) + 4 * bh + 2 * q, 2), vr(ta if k < 4 else tb), (k & 3) * 16384 + q * 4096 + bh * 2048 + u * 128))
            A('s_waitcnt lgkmcnt(8)')
    A.label(LtJ)
    A('s_waitcnt lgkmcnt(0)')
    A('s_barrier')

    def pf_ops():
        o = []
        for eb in range(4):
            so = s_kx if eb < 2 else s_kx2
            o.append('buffer_load_dwordx4 %s, %s, %s, %s offen offset:%d sc1' % (vr(KXA + 4 * eb, 4), vr(va_kx), sr(SRD_WS, 4), sr(so), (eb & 1) * 2048))
            o.append('buffer_load_dwordx4 %s, %s, %s, %s offen offset:%d sc1' % (vr(KXB + 4 * eb, 4), vr(va_kx), sr(SRD_WS, 4), sr(so), (eb & 1) * 2048 + 128))
        for T in range(8):
            eb = T >> 1
            so = s_kx if eb < 2 else s_kx2
            o.append('buffer_load_dwordx4 %s, %s, %s, %s offen offset:%d sc1' % (vr(VXR + 4 * T, 4), vr(va_vx), sr(SRD_WS, 4), sr(so), (eb & 1) * 2048 + (T & 1) * 256))
        return o

    def emit(t):
        A(t)
        if t.startswith('buffer_'):
            nvm[0] += 1

    A('s_mov_b32 %s, 0' % sr(s_step))
    A('s_mov_b32 %s, 0x40404044' % sr(s_kvm))
    A('s_mov_b32 %s, 0x00404040' % sr(s_kvm + 1))
    A('s_mov_b32 %s, 0' % sr(s_slot))
    A('s_mov_b32 %s, 0x20000' % sr(s_slot1))
    A('s_mov_b32 %s, 0x40000' % sr(s_slot2))
    A('s_mov_b32 %s, 0' % sr(s_slotp))
    A('s_mov_b32 %s, 0' % sr(s_kx))
    A('s_mov_b32 %s, 4096' % sr(s_kx2))
    A('s_mov_b32 %s, 0' % sr(s_out))
    A('s_mov_b32 %s, 0x%x' % (sr(s_outp), WS_BYTES))
    A('s_mov_b32 %s, 0' % sr(s_ps))
    A('s_mov_b32 %s, 0x80000' % sr(s_ps2))
    A('s_mov_b32 %s, %d' % (sr(s_kvo), DBG_KV0 * 128))

    def kv_wait(tag):
        Lw, Ld, L0 = A.uid('kvw' + tag), A.uid('kvd' + tag), A.uid('kv0' + tag)
        A('s_mov_b32 %s, 0' % sr(s_cnt))
        A('s_branch ' + L0)
        A.label(Lw)
        A('s_sleep 6')
        A.label(L0)
        A('buffer_load_dword %s, %s, %s, %s offen sc1' % (vr(v_kvf), vr(v_sh), sr(SRD_WS, 4), sr(s_kvo)))
        A('s_add_u32 %s, %s, 1' % (sr(s_cnt), sr(s_cnt)))
        A('s_cmp_gt_u32 %s, %s' % (sr(s_cnt), sr(s_lim)))
        A('s_cbranch_scc1 ' + Ld)
        A('s_waitcnt vmcnt(0)')
        A('v_cmp_gt_u32 vcc, 32, %s' % vr(v_kvf))
        A('s_cbranch_vccnz ' + Lw)
        A.label(Ld)
        A('s_waitcnt vmcnt(0)')
    stamp(7)
    place_check(A, SRD_T, v_lane, v_t[0], v_t[1], s_cnt, POLL_LIMIT, L_restart)
    L_rdy, L_rdy_done, L_rdy0 = A.uid('rdy'), A.uid('rdyd'), A.uid('rdy0')
    A('v_mov_b32 %s, 32' % vr(v_t[0]))
    A('s_mov_b32 %s, 0' % sr(s_cnt))
    A('s_branch ' + L_rdy0)
    A.label(L_rdy)
    A('s_sleep 6')
    A.label(L_rdy0)
    A('buffer_load_dword %s, %s, %s, 0 offen sc1' % (vr(acc1 + 1), vr(v_t[0]), sr(SRD_T, 4)))
    A('s_add_u32 %s, %s, 1' % (sr(s_cnt), sr(s_cnt)))
    A('s_cmp_gt_u32 %s, %s' % (sr(s_cnt), sr(s_lim)))
    A('s_cbranch_scc1 ' + L_rdy_done)
    A('s_waitcnt vmcnt(0)')
    A('v_and_b32 %s, 0xffff, %s' % (vr(acc1), vr(acc1 + 1)))
    A('v_cmp_gt_u32 vcc, 128, %s' % vr(acc1))
    A('s_cbranch_vccnz ' + L_rdy)
    A.label(L_rdy_done)
    A('s_waitcnt vmcnt(0)')
    if TWO:
        A('s_lshr_b32 %s, %s, 1' % (sr(s_t2), sr(s_x)))
        A('s_lshl_b32 %s, %s, 2' % (sr(s_t2), sr(s_t2)))
        A('s_add_u32 %s, %s, 16' % (sr(s_t2), sr(s_t2)))
        A('v_bfe_u32 %s, %s, %s, 4' % (vr(acc1), vr(acc1 + 1), sr(s_t2)))
        A('v_cmp_lt_u32 vcc, 4, %s' % vr(acc1))
    else:
        A('v_lshrrev_b32 %s, 16, %s' % (vr(acc1), vr(acc1 + 1)))
        A('v_cmp_%s_u32 vcc, 16, %s' % ('lt' if NEARX else 'ge', vr(acc1)))
    A('v_mov_b32 %s, 8192' % vr(acc1 + 1))
    A('v_cndmask_b32 %s, 0, %s, vcc' % (vr(acc1), vr(acc1 + 1)))
    A('v_add_u32 %s, %s, %s' % (vr(va_pr), vr(va_pr), vr(acc1)))
    A('v_add_u32 %s, %s, %s' % (vr(va_pw), vr(va_pw), vr(acc1)))
    A('v_mul_u32_u24 %s, 252, %s' % (vr(acc1), vr(v_g)))
    A('v_sub_u32 %s, %s, %s' % (vr(va_pd), vr(va_pw), vr(acc1)))
    A('v_and_b32 %s, 0x%x, %s' % (vr(va_pd), 0xffffffff ^ 16384, vr(va_pd)))
    A('v_lshlrev_b32 %s, 8, %s' % (vr(acc1), vr(v_g)))
    A('v_sub_u32 %s, %s, %s' % (vr(va_pz), vr(va_pw), vr(acc1)))
    A('v_and_b32 %s, 1, %s' % (vr(acc1), vr(v_g)))
    A('v_lshlrev_b32 %s, 14, %s' % (vr(acc1), vr(acc1)))
    A('v_xor_b32 %s, %s, %s' % (vr(va_pz), vr(va_pz), vr(acc1)))
    A('v_lshrrev_b32 %s, 1, %s' % (vr(acc1), vr(v_g)))
    if TWO:
        A('v_lshlrev_b32 %s, 13, %s' % (vr(acc1), vr(acc1)))
        A('v_xor_b32 %s, %s, %s' % (vr(va_pz), vr(acc1), vr(va_pz)))
    else:
        A('v_lshl_add_u32 %s, %s, 28, %s' % (vr(va_pz), vr(acc1), vr(va_pz)))
    A('v_add_u32 %s, 16384, %s' % (vr(va_pw), vr(va_pd)))
    A('v_lshlrev_b32 %s, 2, %s' % (vr(acc1), vr(v_g)))
    A('v_sub_u32 %s, %s, %s' % (vr(va_pg), vr(va_pd), vr(acc1)))
    A('v_lshrrev_b32 %s, 1, %s' % (vr(acc1), vr(v_g)))
    A('v_lshl_add_u32 %s, %s, 14, %s' % (vr(va_pg), vr(acc1), vr(va_pg)))
    A('v_and_b32 %s, 1, %s' % (vr(acc1), vr(v_g)))
    A('v_lshl_add_u32 %s, %s, 28, %s' % (vr(va_pg), vr(acc1), vr(va_pg)))
    A('v_xor_b32 %s, 8192, %s' % (vr(va_pd), vr(va_pg)))
    kv_wait('0')
    stamp(9)
    dbgt(11)

    ool = []

    def poll(n, load, base, tag, on_ok=None, back=0):
        Lk = [A.uid('poll%s%d' % (tag, k)) for k in range(n)]
        Lc = [A.uid('chk%s%d' % (tag, k)) for k in range(n)]
        Lo = [A.uid('ok%s%d' % (tag, k)) for k in range(n)]
        Lfs = [A.uid('pollf%s%d' % (tag, k)) for k in range(n)]

        def issue(m):
            A.label(Lk[m])
            if back:
                A('s_sleep %d' % back)
            for k in range(m, n):
                A(load(k))
            A('s_add_u32 %s, %s, 1' % (sr(s_cnt), sr(s_cnt)))
            A('s_cmp_gt_u32 %s, %s' % (sr(s_cnt), sr(s_lim)))
            A('s_cbranch_scc1 ' + Lfs[m])
        A('s_mov_b32 %s, 0' % sr(s_cnt))
        issue(0)
        for m in range(n):
            A.label(Lc[m])
            A('s_waitcnt vmcnt(%d)' % (n - 1 - m))
            b = base + 4 * m
            A('v_max3_u32 %s, %s, %s, %s' % (vr(v_t[0]), vr(b), vr(b + 1), vr(b + 2)))
            A('v_max_u32 %s, %s, %s' % (vr(v_t[0]), vr(v_t[0]), vr(b + 3)))
            A('v_cmp_eq_u32 vcc, -1, %s' % vr(v_t[0]))
            A('s_cbranch_vccnz ' + Lk[m])
            A.label(Lo[m])
            if on_ok:
                on_ok(m)

        def tail():
            for m in range(1, n):
                issue(m)
                A('s_branch ' + Lc[m])
            for m in range(n):
                A.label(Lfs[m])
                A('s_mov_b32 %s, 0' % sr(s_lim))
                A('s_waitcnt vmcnt(0)')
                A('s_branch ' + Lo[m])
        ool.append(tail)

    def smf(acc, a, w):
        return 'v_smfmac_f32_16x16x64_bf16 %s, %s, %s, %s' % (vr(acc, 4), vr(a, 4), ar(w, 8), vr(v_idx))

    def okA(k):
        for tl in range(4):
            A(smf(AC + 4 * tl, M + 4 * k, W1 + 8 * (k * 4 + tl)))

    def pollA2():
        ld = lambda k: 'buffer_load_dwordx4 %s, %s, %s, %s offen offset:%d sc1' % (vr(M + 4 * k, 4), vr(va_memr), sr(SRD_WS, 4), sr(s_slot), k * 1024)
        Lr = [A.uid('rA%d' % k) for k in range(4)]
        Lo = [A.uid('oA%d' % k) for k in range(4)]

        def chk(k):
            b = M + 4 * k
            return ['s_waitcnt vmcnt(%d)' % (3 - k),
                    'v_max3_u32 %s, %s, %s, %s' % (vr(v_t[0]), vr(b), vr(b + 1), vr(b + 2)),
                    'v_max_u32 %s, %s, %s' % (vr(v_t[0]), vr(v_t[0]), vr(b + 3)),
                    'v_cmp_eq_u32 vcc, -1, %s' % vr(v_t[0])]
        A('s_mov_b32 %s, 1' % sr(s_cnt))
        for k in range(4):
            A(ld(k))
        for t in chk(0):
            A(t)
        for k in range(4):
            A('s_cbranch_vccnz ' + Lr[k])
            A.label(Lo[k])
            c = chk(k + 1) if k < 3 else []
            for tl in range(4):
                A(smf(AC + 4 * tl, M + 4 * k, W1 + 8 * (k * 4 + tl)))
                if c and tl < 3:
                    if tl == 0:
                        A(c.pop(0))
                    A(c.pop(0))

        def tail():
            for k in range(4):
                A.label(Lr[k])
                if A1P and k < 3:
                    Lg = A.uid('gA')
                    A(ld(k))
                    A('s_add_u32 %s, %s, 1' % (sr(s_cnt), sr(s_cnt)))
                    A('s_waitcnt vmcnt(0)')
                    for t in chk(k)[1:]:
                        A(t)
                    A('s_cbranch_vccz ' + Lg)
                    A('s_cmp_le_u32 %s, %s' % (sr(s_cnt), sr(s_lim)))
                    A('s_cbranch_scc1 ' + Lr[k])
                    A('s_mov_b32 %s, 0' % sr(s_lim))
                    A.label(Lg)
                    for m in range(k + 1, 4):
                        A(ld(m))
                    A('s_branch ' + Lo[k])
                    continue
                for m in range(k, 4):
                    A(ld(m))
                A('s_add_u32 %s, %s, 1' % (sr(s_cnt), sr(s_cnt)))
                for t in chk(k):
                    A(t)
                A('s_cbranch_vccz ' + Lo[k])
                A('s_cmp_le_u32 %s, %s' % (sr(s_cnt), sr(s_lim)))
                A('s_cbranch_scc1 ' + Lr[k])
                A('s_mov_b32 %s, 0' % sr(s_lim))
                A('s_branch ' + Lo[k])
        ool.append(tail)

    def advance():
        A('s_add_u32 %s, %s, 1' % (sr(s_step), sr(s_step)))
        A('s_mov_b32 %s, %s' % (sr(s_slotp), sr(s_slot)))
        A('s_mov_b32 %s, %s' % (sr(s_outp), sr(s_out)))
        A('s_mov_b32 %s, %s' % (sr(s_slot), sr(s_slot1)))
        A('s_mov_b32 %s, %s' % (sr(s_slot1), sr(s_slot2)))
        A('s_add_u32 %s, %s, 0x20000' % (sr(s_slot2), sr(s_slot2)))
        A('s_and_b32 %s, %s, 0x7ffff' % (sr(s_slot2), sr(s_slot2)))
        A('s_add_u32 %s, %s, 0x20000' % (sr(s_out), sr(s_out)))
        A('s_lshl_b32 %s, %s, 1' % (sr(s_ps), sr(s_slot)))
        A('s_lshl_b32 %s, %s, 1' % (sr(s_ps2), sr(s_slot2)))
        if stamps:
            A('s_add_u32 %s, %s, 64' % (sr(s_stl), sr(s_stl)))

    def ha_write(tl):
        return ['v_permlane32_swap_b32 %s, %s' % (vr(AC + 4 * tl), vr(AC + 4 * tl + 2)),
                'v_permlane32_swap_b32 %s, %s' % (vr(AC + 4 * tl + 1), vr(AC + 4 * tl + 3)),
                'v_pk_add_f32 %s, %s, %s' % (vr(HA + 2 * tl, 2), vr(AC + 4 * tl, 2), vr(AC + 4 * tl + 2, 2)),
                'ds_write_b64 %s, %s offset:%d' % (vr(va_rw), vr(HA + 2 * tl, 2), tl * 512)]

    def kv_stuff():
        L_kvok, L_kvslow, L_nokv, L_dokv = A.uid('kvok'), A.uid('kvslow'), A.uid('nokv'), A.uid('dokv')
        A('v_cmp_gt_u32 vcc, 32, %s' % vr(v_kvf))
        A('s_cbranch_vccnz ' + L_kvslow)
        A.label(L_kvok)
        A('s_bitcmp1_b64 %s, %s' % (sr(s_kvm, 2), sr(s_step)))
        A('s_cbranch_scc1 ' + L_dokv)
        A.label(L_nokv)

        def t():
            A.label(L_kvslow)
            kv_wait('s')
            A('s_branch ' + L_kvok)
            A.label(L_dokv)
            A('s_add_u32 %s, %s, 2' % (sr(s_kvo), sr(s_step)))
            A('s_lshr_b32 %s, %s, 3' % (sr(s_kvo), sr(s_kvo)))
            A('s_lshl_b32 %s, %s, 9' % (sr(s_kvo), sr(s_kvo)))
            A('s_add_u32 %s, %s, %d' % (sr(s_kvo), sr(s_kvo), DBG_KV * 128))
            A('buffer_load_dword %s, %s, %s, %s offen sc1' % (vr(v_kvf), vr(v_sh), sr(SRD_WS, 4), sr(s_kvo)))
            A('s_branch ' + L_nokv)
        ool.append(t)

    L_lastR, L_lastN, L_fin = name + '_lastR', name + '_lastN', name + '_fin'

    def loop(red, fl):
        tg = ('r' if red else 'n') + ('f' if fl else '')
        ISC = ' sc1' if fl else ''
        nacc = 32 if red else 16
        L_st, L_B = name + '_step' + tg, name + '_B' + tg

        def zero_acc():
            for i in range(nacc):
                A('v_mov_b32 %s, 0' % vr(AC + i))
        A.label(name + '_first' + tg)
        if not red:
            for t in pf_ops():
                A(t)
        zero_acc()
        for k in range(4):
            okA(k)
        A('s_branch ' + L_B)
        A.label(L_st)
        if not (red and ZE):
            zero_acc()
        if A2:
            pollA2()
        else:
            poll(4, lambda k: 'buffer_load_dwordx4 %s, %s, %s, %s offen offset:%d sc1' % (vr(M + 4 * k, 4), vr(va_memr), sr(SRD_WS, 4), sr(s_slot), k * 1024), M, 'A', okA)
        A.label(L_B)
        stamp(0)
        vs = [smf(AC + 16 + 4 * tv, M + 4 * k, W2 + 8 * (k * 4 + tv)) for tv in range(4) for k in range(4)] if red else []
        ne = VS[0]
        for tl in range(4):
            h = ha_write(tl)
            if vs and ne > 0:
                A(vs.pop(0))
                ne -= 1
            A(h[0])
            A(h[1])
            if vs and ne > 3 - tl:
                A(vs.pop(0))
                ne -= 1
            A(h[2])
            A(h[3])
        for _ in range(VS[1]):
            if vs:
                A(vs.pop(0))
        A('s_waitcnt lgkmcnt(0)')
        A('s_barrier')
        A('ds_read_b128 %s, %s' % (vr(RD, 4), vr(va_rr)))
        A('ds_read_b128 %s, %s offset:4096' % (vr(RD + 4, 4), vr(va_rr)))
        for _ in range(VS[2]):
            if vs:
                A(vs.pop(0))
        A('s_waitcnt lgkmcnt(0)')
        A('v_pk_add_f32 %s, %s, %s' % (vr(RD, 2), vr(RD, 2), vr(RD + 4, 2)))
        A('v_pk_add_f32 %s, %s, %s' % (vr(RD + 2, 2), vr(RD + 2, 2), vr(RD + 6, 2)))
        A('v_permlane32_swap_b32 %s, %s' % (vr(RD), vr(RD + 1)))
        A('v_permlane32_swap_b32 %s, %s' % (vr(RD + 2), vr(RD + 3)))
        A('v_add_f32 %s, %s, %s' % (vr(v_t[0]), vr(RD), vr(RD + 1)))
        A('v_add_f32 %s, %s, %s' % (vr(v_t[1]), vr(RD + 2), vr(RD + 3)))
        A('v_cvt_pk_bf16_f32 %s, %s, %s' % (vr(v_t[2]), vr(v_t[0]), vr(v_t[1])))
        A('v_pk_min_u16 %s, %s, %s' % (vr(v_t[2]), vr(v_t[2]), sr(s_fffe)))
        A('buffer_store_dword %s, %s, %s, %s offen%s' % (vr(v_t[2]), vr(va_qks), sr(SRD_WS, 4), sr(s_slot), ISC))
        if red:
            for tv in range(4):
                while vs and len(vs) > 4 * (3 - tv) - 4:
                    A(vs.pop(0))
                for t in ha_write(4 + tv):
                    A(t)
            A('s_waitcnt lgkmcnt(0)')
            A('s_barrier')
            A('ds_read_b128 %s, %s offset:2048' % (vr(RD, 4), vr(va_rr)))
            A('ds_read_b128 %s, %s offset:6144' % (vr(RD + 4, 4), vr(va_rr)))
            A('s_waitcnt lgkmcnt(0)')
            A('v_pk_add_f32 %s, %s, %s' % (vr(RD, 2), vr(RD, 2), vr(RD + 4, 2)))
            A('v_pk_add_f32 %s, %s, %s' % (vr(RD + 2, 2), vr(RD + 2, 2), vr(RD + 6, 2)))
            A('v_permlane32_swap_b32 %s, %s' % (vr(RD), vr(RD + 2)))
            A('v_permlane32_swap_b32 %s, %s' % (vr(RD + 1), vr(RD + 3)))
            A('v_pk_add_f32 %s, %s, %s' % (vr(RD, 2), vr(RD, 2), vr(RD + 2, 2)))
            A('v_cvt_pk_bf16_f32 %s, %s, %s' % (vr(v_t[3]), vr(RD), vr(RD + 1)))
            A('v_pk_min_u16 %s, %s, %s' % (vr(v_t[3]), vr(v_t[3]), sr(s_fffe)))
            A('buffer_store_dword %s, %s, %s, %s offen%s' % (vr(v_t[3]), vr(va_vs), sr(SRD_WS, 4), sr(s_slot), ISC))
            stamp(1)
            A('buffer_load_dwordx4 %s, %s, %s, %s offen sc1' % (vr(RB, 4), vr(va_rb), sr(SRD_WS, 4), sr(s_slotp)))
            A('v_mov_b32 %s, %s' % (vr(v_junk2), sr(s_step)))
            A('s_waitcnt vmcnt(0)')
            A('s_barrier')
            A('buffer_store_dwordx4 %s, %s, %s, %s offen sc1' % (vr(RB, 4), vr(va_cp), sr(SRD_WS, 4), sr(s_outp)))
            A('buffer_store_dword %s, %s, %s, 0 offen sc1' % (vr(v_junk2), vr(va_prog), sr(SRD_WS, 4)))
            A('s_cmp_ge_u32 %s, %d' % (sr(s_step), nsteps - 1))
            A('s_cbranch_scc1 ' + L_lastR)
            A('s_add_u32 %s, %s, 0x40000' % (sr(s_kx), sr(s_kx)))
            kv_stuff()
            A('buffer_load_dword %s, %s, %s, %s offen sc1' % (vr(v_junk), vr(va_warm), sr(SRD_WS, 4), sr(s_kx)))
            A('buffer_store_dwordx4 %s, %s, %s, %s offen sc1' % (vr(v_m1, 4), vr(va_pz), sr(SRD_WS, 4), sr(s_ps2)))
            A('buffer_store_dwordx4 %s, %s, %s, %s offen%s' % (vr(v_m1, 4), vr(va_rb), sr(SRD_WS, 4), sr(s_slot2), ISC))
            A('buffer_store_dword %s, %s, %s, %s offen%s' % (vr(v_m1), vr(va_mems), sr(SRD_WS, 4), sr(s_slot2), ISC))
            if ZE:
                zero_acc()
            if DELAY_E:
                A('s_sleep %d ; nothing can arrive before the attention is through: do not poll yet' % DELAY_E)
            if HINT:
                Lh, Lhd = A.uid('h'), A.uid('hd')
                A('s_mov_b32 %s, 0' % sr(s_cnt))
                A.label(Lh)
                A('buffer_load_dword %s, %s, %s, 0 offen sc1' % (vr(v_t[0]), vr(va_flg), sr(SRD_WS, 4)))
                A('s_add_u32 %s, %s, 1' % (sr(s_cnt), sr(s_cnt)))
                A('s_cmp_gt_u32 %s, %s' % (sr(s_cnt), sr(s_lim)))
                A('s_cbranch_scc1 ' + Lhd)
                A('s_waitcnt vmcnt(0)')
                A('v_cmp_ne_u32 vcc, %s, %s' % (sr(s_step), vr(v_t[0])))
                A('s_cbranch_vccnz ' + Lh)
                A.label(Lhd)
                if HINT > 1:
                    A('s_sleep %d ; partials still in flight: a read that comes too early costs a second fabric round trip' % (HINT - 1))

            def okE(k):
                A('v_mfma_f32_16x16x32_bf16 %s, %s, %s, %s' % (vr(LS, 4), vr(PR + 4 * k, 4), vr(v_sel, 4), '0' if k == 0 else vr(LS, 4)))
            poll(2, lambda k: 'buffer_load_dwordx4 %s, %s, %s, %s offen offset:%d sc1' % (vr(PR + 4 * k, 4), vr(va_pr), sr(SRD_WS, 4), sr(s_ps), k * 1024), PR, 'E', okE, back=E_BACK)
            stamp(6)
            advance()
            A('v_cvt_pk_bf16_f32 %s, %s, %s' % (vr(v_t[2]), vr(LS), vr(LS + 1)))
            A('v_cvt_pk_bf16_f32 %s, %s, %s' % (vr(v_t[3]), vr(LS + 2), vr(LS + 3)))
            A('v_cndmask_b32 %s, %s, %s, %s' % (vr(v_t[2]), vr(v_t[2]), vr(v_t[3]), sr(s_hf, 2)))
            A('v_pk_min_u16 %s, %s, %s' % (vr(v_t[2]), vr(v_t[2]), sr(s_fffe)))
            A('buffer_store_dword %s, %s, %s, %s offen%s' % (vr(v_t[2]), vr(va_mems), sr(SRD_WS, 4), sr(s_slot), ISC))
            if RED_SLEEP:
                A('s_sleep %d ; first poll when the other reducers stores can be visible' % RED_SLEEP)
            A('s_branch ' + L_st)
            return
        stamp(1)
        A('s_cmp_ge_u32 %s, %d' % (sr(s_step), nsteps - 1))
        A('s_cbranch_scc1 ' + L_lastN)
        A('s_add_u32 %s, %s, 0x40000' % (sr(s_kx), sr(s_kx)))
        A('s_add_u32 %s, %s, 0x40000' % (sr(s_kx2), sr(s_kx2)))
        for i in range(4):
            A('v_mov_b32 %s, 0' % vr(acc1 + i))
            A('v_mov_b32 %s, 0' % vr(acc2 + i))
        A('v_mov_b32 %s, %s' % (vr(v_junk2), sr(s_step)))
        if DELAY_C:
            A('s_sleep %d ; first poll when the other CUs q/k stores can be visible' % DELAY_C)
        Lc, Lcf, Lcd = A.uid('pC'), A.uid('pCf'), A.uid('pCd')
        A('s_mov_b32 %s, 1' % sr(s_cnt))
        A.label(Lc)
        for k in range(4):
            A('buffer_load_dwordx4 %s, %s, %s, %s offen offset:%d sc1' % (vr(QK + 4 * k, 4), vr(va_qkr), sr(SRD_WS, 4), sr(s_slot), k * 1024))
        for t in range(4):
            A('s_waitcnt vmcnt(%d)' % (3 - t))
            q = QK + 4 * t
            A('v_mfma_f32_16x16x32_bf16 %s, %s, %s, %s' % (vr(SA, 4), vr(KXA + 4 * t, 4), vr(q, 4), vr(v_maskx, 4) if t == 0 else vr(SA, 4)))
            if t == 0:
                A('v_max3_u32 %s, %s, %s, %s' % (vr(v_t[0]), vr(q), vr(q + 1), vr(q + 2)))
            else:
                A('v_max3_u32 %s, %s, %s, %s' % (vr(v_t[0]), vr(v_t[0]), vr(q), vr(q + 1)))
            A('v_mfma_f32_16x16x32_bf16 %s, %s, %s, %s' % (vr(SB, 4), vr(KXB + 4 * t, 4), vr(q, 4), vr(v_maskx, 4) if t == 0 else vr(SB, 4)))
            if t == 0:
                A('v_max_u32 %s, %s, %s' % (vr(v_t[0]), vr(v_t[0]), vr(q + 3)))
            else:
                A('v_max3_u32 %s, %s, %s, %s' % (vr(v_t[0]), vr(v_t[0]), vr(q + 2), vr(q + 3)))
            if t == 3:
                A('v_cmp_eq_u32 vcc, -1, %s' % vr(v_t[0]))
            A('v_mfma_f32_16x16x32_bf16 %s, %s, %s, %s' % (vr(SM, 4), vr(q, 4), vr(q, 4), vr(v_mask, 4) if t == 0 else vr(SM, 4)))
        A('s_cbranch_vccnz ' + Lcf)
        A.label(Lcd)

        def tailC():
            A.label(Lcf)
            A('s_add_u32 %s, %s, 1' % (sr(s_cnt), sr(s_cnt)))
            A('s_cmp_le_u32 %s, %s' % (sr(s_cnt), sr(s_lim)))
            A('s_cbranch_scc1 ' + Lc)
            A('s_mov_b32 %s, 0' % sr(s_lim))
            A('s_branch ' + Lcd)
        ool.append(tailC)
        stamp(2)

        def vload(k):
            return 'buffer_load_dwordx4 %s, %s, %s, %s offen offset:%d sc1' % (vr(VMR + 4 * k, 4), vr(va_vmr), sr(SRD_WS, 4), sr(s_slot), k * 1024)
        side = pf_ops() if not NOPF else []
        s = [SA + i for i in range(12)]
        sm = []
        sm.append('v_max3_f32 %s, %s, %s, %s' % (vr(v_mx), vr(s[0]), vr(s[1]), vr(s[2])))
        sm.append('v_max3_f32 %s, %s, %s, %s' % (vr(v_mx2), vr(s[3]), vr(s[4]), vr(v_bias)))
        sm.append('v_max3_f32 %s, %s, %s, %s' % (vr(v_mx), vr(v_mx), vr(s[5]), vr(s[6])))
        sm.append('v_max3_f32 %s, %s, %s, %s' % (vr(v_mx2), vr(v_mx2), vr(s[7]), vr(s[8])))
        sm.append('v_max3_f32 %s, %s, %s, %s' % (vr(v_mx), vr(v_mx), vr(s[9]), vr(s[10])))
        sm.append('v_max3_f32 %s, %s, %s, %s' % (vr(v_mx), vr(v_mx), vr(v_mx2), vr(s[11])))
        for sw in ('v_permlane32_swap_b32', 'v_permlane16_swap_b32'):
            sm.append('v_mov_b32 %s, %s' % (vr(v_mx2), vr(v_mx)))
            sm.append('%s %s, %s' % (sw, vr(v_mx), vr(v_mx2)))
            sm.append('v_max_f32 %s, %s, %s' % (vr(v_mx), vr(v_mx), vr(v_mx2)))
        sm.append('v_mul_f32 %s, %s, %s' % (vr(v_mx), sr(s_c), vr(v_mx)))
        if PKF:
            for i in range(0, 8, 2):
                sm.append('v_pk_fma_f32 %s, %s, %s, %s op_sel_hi:[1,0,0] neg_lo:[0,0,1] neg_hi:[0,0,1]' % (vr(s[i], 2), vr(s[i], 2), vr(v_cc, 2), vr(v_mx, 2)))
        else:
            for i in range(8):
                sm.append('v_fma_f32 %s, %s, %s, -%s' % (vr(s[i]), vr(s[i]), sr(s_c), vr(v_mx)))
        for i in range(8):
            sm.append('v_exp_f32 %s, %s' % (vr(s[i]), vr(s[i])))
            if i >= 2 and i % 2 == 0:
                sm.append('v_cvt_pk_bf16_f32 %s, %s, %s' % (vr(PX + i // 2 - 1), vr(s[i - 2]), vr(s[i - 1])))
        sm.append('v_fma_f32 %s, %s, %s, -%s' % (vr(s[8]), vr(s[8]), sr(s_c), vr(v_mx)))
        sm.append('v_cvt_pk_bf16_f32 %s, %s, %s' % (vr(PX + 3), vr(s[6]), vr(s[7])))
        sm.append('v_fma_f32 %s, %s, %s, -%s' % (vr(s[9]), vr(s[9]), sr(s_c), vr(v_mx)))
        for i, m in enumerate(sm):
            if PKF:
                if i == 7:
                    A(vload(0))
                    A(vload(1))
            elif i == DELAY_V:
                A(vload(0))
                A(vload(1))
            A(m)
        stamp(3)

        def dpp8(d, srcr):
            return 'v_mov_b32_dpp %s, %s row_shr:8 row_mask:0xf bank_mask:0xf bound_ctrl:0' % (vr(d), vr(srcr))
        t = v_t
        sh = []
        for i in range(10, 12):
            sh.append('v_fma_f32 %s, %s, %s, -%s' % (vr(s[i]), vr(s[i]), sr(s_c), vr(v_mx)))
        for i in range(4):
            sh.append(dpp8(PXH + i, PX + i))
        for i in range(8, 12):
            sh.append('v_exp_f32 %s, %s' % (vr(s[i]), vr(s[i])))
        for i in range(2):
            sh.append('v_cvt_pk_bf16_f32 %s, %s, %s' % (vr(PM + i), vr(s[8 + 2 * i]), vr(s[9 + 2 * i])))
        ls16 = 'v_mfma_f32_16x16x16_bf16 %s, %s, %s, %s' % (vr(LS, 4), vr(v_ones, 2), vr(PM, 2), vr(LS, 4))
        if PV2:
            sh.append(dpp8(PMH, PM))
            sh.append(dpp8(PMH + 1, PM + 1))
            sh.append(ls16)
            sh.append('s_waitcnt vmcnt(0)')
            sh.append('v_max3_u32 %s, %s, %s, %s' % (vr(t[0]), vr(VMR), vr(VMR + 1), vr(VMR + 2)))
            sh.append('v_max3_u32 %s, %s, %s, %s' % (vr(t[1]), vr(VMR + 3), vr(VMR + 4), vr(VMR + 5)))
            sh.append('v_permlane32_swap_b32 %s, %s' % (vr(PMH), vr(PM)))
            sh.append('v_permlane32_swap_b32 %s, %s' % (vr(PMH + 1), vr(PM + 1)))
            sh.append('v_max3_u32 %s, %s, %s, %s' % (vr(t[0]), vr(t[0]), vr(VMR + 6), vr(VMR + 7)))
            sh.append('v_max_u32 %s, %s, %s' % (vr(t[0]), vr(t[0]), vr(t[1])))
            sh.append('v_cmp_eq_u32 vcc, -1, %s' % vr(t[0]))
            sh.append('v_rcp_f32 %s, %s' % (vr(v_l), vr(LS)))
        else:
            sh.append('s_waitcnt vmcnt(0)')
            sh.append('v_max3_u32 %s, %s, %s, %s' % (vr(t[0]), vr(VMR), vr(VMR + 1), vr(VMR + 2)))
            sh.append('v_max3_u32 %s, %s, %s, %s' % (vr(t[1]), vr(VMR + 3), vr(VMR + 4), vr(VMR + 5)))
            sh.append(dpp8(PMH, PM))
            sh.append(dpp8(PMH + 1, PM + 1))
            sh.append('v_max3_u32 %s, %s, %s, %s' % (vr(t[0]), vr(t[0]), vr(VMR + 6), vr(VMR + 7)))
            sh.append('v_max_u32 %s, %s, %s' % (vr(t[0]), vr(t[0]), vr(t[1])))
            sh.append('v_permlane32_swap_b32 %s, %s' % (vr(PMH), vr(PM)))
            sh.append('v_permlane32_swap_b32 %s, %s' % (vr(PMH + 1), vr(PM + 1)))
            sh.append('v_cmp_eq_u32 vcc, -1, %s' % vr(t[0]))
        mf = ['v_mfma_f32_16x16x32_bf16 %s, %s, %s, 0' % (vr(LS, 4), vr(v_ones, 4), vr(PX, 4))]
        for a in range(4):
            mf.append('v_mfma_f32_16x16x32_bf16 %s, %s, %s, 0' % (vr(O + 4 * a, 4), vr(VXR + 4 * a, 4), vr(PX, 4)))
        for a in range(4):
            mf.append('v_mfma_f32_16x16x32_bf16 %s, %s, %s, %s' % (vr(O + 4 * a, 4), vr(VXR + 4 * (a + 4), 4), vr(PXH, 4), vr(O + 4 * a, 4)))
        per = [3, 3, 2, 2, 2, 3, 3, 3, 2] if PV2 else [3, 3, 2, 2, 2, 2, 3, 3, 1]
        for i, m in enumerate(mf):
            A(m)
            for _ in range(per[i]):
                if sh:
                    x = sh.pop(0)
                    if x.startswith('s_waitcnt'):
                        A(x)
                        x = sh.pop(0)
                    A(x)
        assert not sh
        Lv_ok, Lv_slow = A.uid('vok'), A.uid('vslow')
        A('s_cbranch_vccnz ' + Lv_slow)
        A.label(Lv_ok)

        def tailV():
            A.label(Lv_slow)
            poll(2, vload, VMR, 'V')
            A('s_branch ' + Lv_ok)
        ool.append(tailV)
        if not PV2:
            A(ls16)
        for a in range(4):
            A('v_mfma_f32_16x16x16_bf16 %s, %s, %s, %s' % (vr(O + 4 * a, 4), vr(VMR + 2 * a, 2), vr(PM, 2), vr(O + 4 * a, 4)))
            if PV2 and a == 1:
                A('v_mov_b32_dpp %s, %s row_shr:8 row_mask:0xf bank_mask:0xc' % (vr(v_l), vr(v_l)))
        if not PV2:
            A('v_rcp_f32 %s, %s' % (vr(v_l), vr(LS)))
            A('v_mov_b32_dpp %s, %s row_shr:8 row_mask:0xf bank_mask:0xc' % (vr(v_l), vr(v_l)))
        for a in range(4):
            for r in range(0, 4, 2):
                A('v_pk_mul_f32 %s, %s, %s op_sel_hi:[1,0]' % (vr(O + 4 * a + r, 2), vr(O + 4 * a + r, 2), vr(v_l, 2)))
            A('v_cvt_pk_bf16_f32 %s, %s, %s' % (vr(XY + a), vr(O + 4 * a), vr(O + 4 * a + 1)))
            A('v_cvt_pk_bf16_f32 %s, %s, %s' % (vr(XY + 4 + a), vr(O + 4 * a + 2), vr(O + 4 * a + 3)))
        A('ds_write_b128 %s, %s' % (vr(va_ow), vr(XY, 4)))
        A('ds_write_b128 %s, %s offset:128' % (vr(va_ow), vr(XY + 4, 4)))
        A('s_waitcnt lgkmcnt(0)')
        stamp(4)
        A('s_barrier')
        if HINT:
            A('buffer_store_dword %s, %s, %s, 0 offen%s' % (vr(v_junk2), vr(va_flg), sr(SRD_WS, 4), ISC))
        for k in range(8):
            A('ds_read_b128 %s, %s offset:%d' % (vr(G + 4 * k, 4), vr(va_or), k * 1024))
        def epi3(acc, va):
            return ['v_permlane32_swap_b32 %s, %s' % (vr(acc), vr(acc + 2)),
                    'v_permlane32_swap_b32 %s, %s' % (vr(acc + 1), vr(acc + 3)),
                    'v_pk_add_f32 %s, %s, %s' % (vr(acc, 2), vr(acc, 2), vr(acc + 2, 2)),
                    'v_cvt_pk_bf16_f32 %s, %s, %s' % (vr(acc), vr(acc), vr(acc + 1)),
                    'v_pk_min_u16 %s, %s, %s' % (vr(acc), vr(acc), sr(s_fffe)),
                    'buffer_store_dword %s, %s, %s, %s offen sc1' % (vr(acc), vr(va), sr(SRD_WS, 4), sr(s_ps))]
        if S3 == 2:
            D = VMR
            for k in range(8):
                A('s_waitcnt lgkmcnt(%d)' % (7 - k))
                A(smf(acc1, G + 4 * k, W2 + 8 * (2 * k)))
                if k < 2:
                    A(smf(acc2, G + 4 * k, W2 + 8 * (2 * k + 1)))
            e1 = epi3(acc1, va_pd)[:3] + ['v_cvt_pk_bf16_f32 %s, %s, %s' % (vr(D), vr(acc1), vr(acc1 + 1)),
                                          'v_pk_min_u16 %s, %s, %s' % (vr(D), vr(D), sr(s_fffe))]
            for k in range(2, 8):
                A(smf(acc2, G + 4 * k, W2 + 8 * (2 * k + 1)))
                if k >= 4:
                    for _ in range(2):
                        if e1:
                            A(e1.pop(0))
            for t_ in e1 + epi3(acc2, va_pw)[:3]:
                A(t_)
            A('v_cvt_pk_bf16_f32 %s, %s, %s' % (vr(D + 2), vr(acc2), vr(acc2 + 1)))
            A('v_pk_min_u16 %s, %s, %s' % (vr(D + 2), vr(D + 2), sr(s_fffe)))
            A('v_permlane32_swap_b32 %s, %s' % (vr(D), vr(D + 2)))
            A('v_permlane16_swap_b32 %s, %s' % (vr(D), vr(D + 1)))
            A('v_permlane16_swap_b32 %s, %s' % (vr(D + 2), vr(D + 3)))
            if TWO:
                A('buffer_store_dwordx4 %s, %s, %s, %s offen sc1' % (vr(D, 4), vr(va_pd), sr(SRD_WS, 4), sr(s_ps)))
            A('buffer_store_dwordx4 %s, %s, %s, %s offen sc1' % (vr(D, 4), vr(va_pg), sr(SRD_WS, 4), sr(s_ps)))
        elif S3:
            for k in range(8):
                A('s_waitcnt lgkmcnt(%d)' % (7 - k))
                A(smf(acc1, G + 4 * k, W2 + 8 * (2 * k)))
                if k < 2:
                    A(smf(acc2, G + 4 * k, W2 + 8 * (2 * k + 1)))
            e1 = epi3(acc1, va_pd)
            for k in range(2, 8):
                A(smf(acc2, G + 4 * k, W2 + 8 * (2 * k + 1)))
                if k >= 4:
                    for _ in range(2):
                        if e1:
                            A(e1.pop(0))
            for t_ in e1 + epi3(acc2, va_pw):
                A(t_)
        else:
            for k in range(8):
                A('s_waitcnt lgkmcnt(%d)' % (7 - k))
                A(smf(acc1, G + 4 * k, W2 + 8 * (2 * k)))
                A(smf(acc2, G + 4 * k, W2 + 8 * (2 * k + 1)))
            for t_ in epi3(acc1, va_pd) + epi3(acc2, va_pw):
                A(t_)
        stamp(5)
        kv_stuff()
        for x in side:
            A(x)
        advance()
        if NOE_SLEEP:
            A('s_sleep %d ; the next memory state needs a cross-XCD exchange first: do not poll yet' % NOE_SLEEP)
        A('s_branch ' + L_st)

    L_safe = A.uid('safe')
    A('s_cmp_lg_u32 s%d, 0' % S_MODE)
    A('s_cbranch_scc1 ' + L_safe)
    for fl in (False, True):
        if fl:
            A.label(L_safe)
        A('s_cmp_lg_u32 %s, 0' % sr(s_red))
        A('s_cbranch_scc1 ' + name + '_firstn' + ('f' if fl else ''))
        loop(True, fl)
        loop(False, fl)
        while ool:
            ool.pop(0)()
    A.label(L_lastN)
    A('s_waitcnt vmcnt(0)')
    A('s_barrier')
    A('s_cmp_lg_u32 %s, 0' % sr(s_w))
    A('s_cbranch_scc1 ' + L_fin)
    A.label(L_lastR)
    A('s_cmp_eq_u32 %s, 2' % sr(s_w))
    A('s_cbranch_scc1 ' + L_fin)
    A('buffer_load_dwordx4 %s, %s, %s, %s offen sc1' % (vr(M, 4), vr(va_rb), sr(SRD_WS, 4), sr(s_slot)))
    A('s_waitcnt vmcnt(0)')
    A('buffer_store_dwordx4 %s, %s, %s, %s offen sc1' % (vr(M, 4), vr(va_cp), sr(SRD_WS, 4), sr(s_out)))
    A.label(L_fin)
    if stamps:
        A('s_waitcnt lgkmcnt(0)')
        A('v_lshlrev_b32 %s, 4, %s' % (vr(v_t[0]), vr(v_lane)))
        A('s_lshl_b32 %s, %s, 12' % (sr(s_t2), sr(s_w)))
        A('s_add_u32 %s, %s, 65536' % (sr(s_t2), sr(s_t2)))
        A('v_add_u32 %s, %s, %s' % (vr(v_t[1]), sr(s_t2), vr(v_t[0])))
        for k in range(4):
            A('ds_read_b128 %s, %s offset:%d' % (vr(F + 4 * k, 4), vr(v_t[1]), k * 1024))
        A('s_waitcnt lgkmcnt(0)')
        for k in range(4):
            A('buffer_store_dwordx4 %s, %s, %s, %s offen offset:%d' % (vr(F + 4 * k, 4), vr(v_t[0]), sr(SRD_WS, 4), sr(s_stamp), k * 1024))
    A('s_waitcnt vmcnt(0) lgkmcnt(0)')
    A('s_barrier')
    A('s_cmp_lg_u32 %s, 0' % sr(s_w))
    A('s_cbranch_scc1 ' + L_work)
    dbgt(12)
    A('s_lshr_b32 %s, %s, 1' % (sr(s_t0), sr(s_x)))
    A('s_lshl_b32 %s, %s, 7' % (sr(s_t0), sr(s_t0)))
    A('s_add_u32 %s, %s, 0x%x' % (sr(s_t0), sr(s_t0), CTR + DBG_FIN * 128))
    A('v_mov_b32 %s, %s' % (vr(v_t[0]), sr(s_t0)))
    A('v_mov_b32 %s, 1' % vr(v_t[1]))
    A('s_mov_b64 exec, 1')
    A('buffer_atomic_add %s, %s, %s, 0 offen sc1' % (vr(v_t[1]), vr(v_t[0]), sr(SRD_WS, 4)))
    A('s_mov_b64 exec, -1')
    A('s_branch ' + L_work)
    A.label(L_exit)
    A('s_endpgm')
    A.label(L_work)
    worker(A, name)
    A.label(name + '_end')
    A('s_endpgm')
    return dict(vgpr=512, accum=256, sgpr=102)
```

```python
from asmlib import *
from layout import *
from gemm import Gemm, Gemm16
from kernels import mk_srd, load_ptrs, out_direct, out_direct32, place_check, shift_ptrs
import attn
import os, json

LDS_JOB = 131072 + 64
LIM = 200000
WTOUCH = os.environ.get('WTOUCH', '')
WT_ODD = int(os.environ.get('WT_ODD', '1'))
WT2 = int(os.environ.get('WT2', '1'))
EARLY = int(os.environ.get('EARLY', '1'))
LAG = 2 if os.environ.get('OLDCHAIN') else 3
OVL = int(os.environ.get('OVL', '0'))
M16 = int(os.environ.get('M16', '1'))
PEEK = int(os.environ.get('PEEK', '0'))
SLOWT = int(os.environ.get('SLOWT', '0'))
WST = int(os.environ.get('WST', '0'))

BL = int(os.environ.get('BL', '0'))
SEGS = [('skv', 16, 0), ('bkv', 16, 1), ('skv', 16, 1), ('bkv', 32, 3), ('bkv', 8, 7), ('q', 16, 0), ('bq', 24, 0),
        ('aattn', 8, 0), ('q', 8, 4), ('aout', 8, 0), ('q', 8, 6), ('aattn', 8, 2), ('battn', 8, 0), ('aout', 8, 2),
        ('battn', 8, 8), ('aattn', 4, 4), ('battn', 16, 16), ('aout', 4, 4), ('aattn1', 4, 20), ('aattn1', 4, 21),
        ('wot', 16, 0), ('aoutr', 2, 10), ('aattn1', 4, 22), ('wot', 16, 16), ('aattn1', 4, 23), ('bout', 8, 0), ('aoutr', 2, 11),
        ('aattn1', 4, 24), ('aattn1', 4, 25), ('bout', 12, 8), ('aoutr', 2, 12), ('bout', 12, 20), ('aattn1', 4, 26),
        ('aattn1', 4, 27), ('aoutd', 8, 26), ('aattn1', 4, 28), ('aoutd', 8, 27), ('aattn1', 4, 29)]
ORD = os.environ.get('ORD', '2')
if ORD == '1':
    SEGS += [('aoutd', 8, 28), ('aattn1', 4, 30), ('aattn1', 4, 31), ('aoute', 16, 58), ('aoute', 16, 60), ('aoute', 16, 62)]
elif ORD == '0':
    SEGS += [('aattn1', 4, 30), ('aattn1', 4, 31), ('aoutd', 8, 28), ('aoute', 16, 58), ('aoute', 16, 60), ('aoute', 16, 62)]
elif ORD == '2':
    SEGS += [('aoutd', 8, 28), ('aattn1', 4, 30), ('aattn1', 4, 31), ('aoutd', 8, 29), ('aoute', 16, 60), ('aoute', 16, 62)]
elif ORD == '3':
    SEGS += [('aoutd', 8, 28), ('aattn1', 4, 30), ('aoutd', 8, 29), ('aattn1', 4, 31), ('aoute', 16, 62), ('aoute', 16, 60)]
elif ORD == '4':
    SEGS += [('aoutd', 8, 28), ('aattn1', 4, 30), ('aattn1', 4, 31), ('aoute', 16, 62), ('aoute', 16, 60), ('aoute', 16, 58)]
SEGS += [('bout', BL, 32 - BL)]
SEGS = [x for x in SEGS if x[1]]
_seen = set()
SEGS = [x for x in SEGS if not (x in _seen or _seen.add(x))]
if os.environ.get('SEGS'):
    SEGS = [tuple(x) for x in json.loads(os.environ['SEGS'])]


def seg_bounds():
    o, a = [], 0
    for k, n, p in SEGS:
        o.append((a, a + n, '%s%d' % (k, p)))
        a += n
    return o


def gen_worker(A, name):
    S = Regs('s', 4, 100)
    P = load_ptrs(A, S)
    SRD_WS = S.alloc(4, 4)
    SRD_D = S.alloc(4, 4)
    SRD_O = S.alloc(4, 4)
    s_w, s_q, s_qn, s_job, s_cfg, s0, s1, s2_, s3, s_base, s_tbs, s_or, s_ctr, s_inc, s_mt, s_nt, s_it, s_k, s_p = [S.alloc() for _ in range(19)]
    s_pp = S.alloc(2, 2)
    s_tm = S.alloc(2, 2)
    s_sa = S.alloc()

    def wstamp(k):
        if not WST:
            return
        A('s_memrealtime %s' % sr(s_tm, 2))
        A('s_waitcnt lgkmcnt(0)')
        A('v_mov_b32 v4, %s' % sr(s_tm))
        A('v_mov_b32 v5, %s' % sr(s_sa))
        A('s_mov_b64 exec, 1')
        A('buffer_store_dword v4, v5, %s, 0 offen offset:%d' % (sr(SRD_WS, 4), 4 * k))
        if k in (2, 3):
            A('s_memtime %s' % sr(s_tm, 2))
            A('s_waitcnt lgkmcnt(0)')
            A('v_mov_b32 v4, %s' % sr(s_tm))
            A('buffer_store_dword v4, v5, %s, 0 offen offset:%d' % (sr(SRD_WS, 4), 4 * (k + 4)))
        A('s_mov_b64 exec, -1')
    def dbgt(word):
        if not int(os.environ.get('DBGT', '0')):
            return
        Lx = A.uid('dt')
        A('s_cmp_lg_u32 %s, 0' % sr(s_w))
        A('s_cbranch_scc1 ' + Lx)
        A('s_memrealtime %s' % sr(s_tm, 2))
        A('s_waitcnt lgkmcnt(0)')
        A('v_mov_b32 v4, %s' % sr(s_tm))
        A('v_mov_b32 v5, %d' % (word * 4))
        A('s_mov_b64 exec, 1')
        A('buffer_atomic_umax v4, v5, %s, 0 offen sc1' % sr(SRD_D, 4))
        A('s_mov_b64 exec, -1')
        A.label(Lx)
    v_lane, v_l16, v_off, v_a, v_b, v_sh = 1, 2, 3, 4, 5, 6
    s_init = S.alloc()
    s_pe, p_base, p_tbs, p_ctr, p_inc = [S.alloc() for _ in range(5)]
    s_et = S.alloc()
    s_wo = S.alloc()
    s_wo2 = S.alloc()
    smark = S.mark()
    V4 = Regs('v', 8, 256)
    G4 = Gemm16(A, S, V4) if M16 else Gemm(A, S, V4, 4, 4)
    hi = S.mark()
    S.release(smark)
    V2 = Regs('v', 8, 256)
    G2 = Gemm(A, S, V2, 2, 2, xsc=' sc1', nst=4)
    assert (G2.SRD_X, G2.SRD_W, G2.s_xo, G2.s_n) == (G4.SRD_X, G4.SRD_W, G4.s_xo, G4.s_n)
    G = G4
    L_next, L_done = name + '_wnext', name + '_wdone'

    A('v_and_b32 %s, 63, v0' % vr(v_lane))
    A('v_lshrrev_b32 %s, 6, v0' % vr(v_l16))
    A('v_readfirstlane_b32 %s, %s' % (sr(s_w), vr(v_l16)))
    A('v_lshlrev_b32 %s, 4, %s' % (vr(v_l16), vr(v_lane)))
    A('v_and_b32 %s, 31, %s' % (vr(v_off), vr(v_lane)))
    A('v_lshlrev_b32 %s, 12, %s' % (vr(v_off), vr(v_off)))
    A('v_lshrrev_b32 %s, 5, %s' % (vr(v_a), vr(v_lane)))
    A('v_lshl_add_u32 %s, %s, 4, %s' % (vr(v_off), vr(v_a), vr(v_off)))
    A('s_and_b32 %s, s%d, 3' % (sr(s_q), S_VX))
    A('s_mov_b32 %s, 0' % sr(s_qn))
    A('s_mov_b32 %s, 0' % sr(s_cfg))
    A('s_mov_b32 %s, %d' % (sr(s_ctr), DBG_WT))
    A('s_waitcnt lgkmcnt(0)')
    shift_ptrs(A, P['ws'], P['dbg'], s0)
    mk_srd(A, SRD_WS, P['ws'], WS_HALF)
    mk_srd(A, SRD_D, P['dbg'], 128)
    mk_srd(A, SRD_O, P['out'], 2048 * 2048 * 2)

    A('v_and_b32 %s, 3, %s' % (vr(v_sh), vr(v_lane)))
    A('v_lshlrev_b32 %s, 7, %s' % (vr(v_sh), vr(v_sh)))
    A('v_add_u32 %s, 0x%x, %s' % (vr(v_sh), CTR, vr(v_sh)))
    A('v_mov_b32 v7, 0')
    A('s_mov_b32 %s, 0' % sr(s_init))
    A('s_mov_b32 %s, 0' % sr(s_et))
    A('s_mov_b32 %s, 0' % sr(s_pe))
    A('s_mov_b32 %s, %d' % (sr(p_ctr), DBG_WT))
    A('s_mov_b32 %s, 0' % sr(p_inc))
    v_tk = 7

    def early(nop=True):
        if not EARLY:
            return
        Le = A.uid('et')
        if nop:
            A('s_nop 11')
        A('s_cmp_eq_u32 %s, 0' % sr(s_init))
        A('s_cbranch_scc1 ' + Le)
        A('s_mov_b32 %s, 1' % sr(s_et))
        A('s_cmp_lg_u32 %s, 0' % sr(s_w))
        A('s_cbranch_scc1 ' + Le)
        A('s_lshl_b32 %s, %s, 7' % (sr(s_wo), sr(s_q)))
        A('s_add_u32 %s, %s, 0x%x' % (sr(s_wo), sr(s_wo), CTR + DBG_Q * 128))
        A('v_mov_b32 %s, %s' % (vr(v_a), sr(s_wo)))
        A('v_mov_b32 %s, 1' % vr(v_tk))
        A('s_mov_b64 exec, 1')
        A('buffer_atomic_add %s, %s, %s, 0 offen sc0 sc1' % (vr(v_tk), vr(v_a), sr(SRD_WS, 4)))
        A('s_mov_b64 exec, -1')
        A.label(Le)

    def wait_init():
        Lw, Ld = A.uid('iw'), A.uid('id')
        A('s_cmp_lg_u32 %s, 0' % sr(s_init))
        A('s_cbranch_scc1 ' + Ld)
        A('s_mov_b32 %s, 1' % sr(s_init))
        A('v_mov_b32 %s, %d' % (vr(v_a), DBG_INIT))
        A('s_mov_b32 %s, 0' % sr(s3))
        A.label(Lw)
        A('buffer_load_dword %s, %s, %s, 0 offen sc1' % (vr(v_b), vr(v_a), sr(SRD_D, 4)))
        A('s_add_u32 %s, %s, 1' % (sr(s3), sr(s3)))
        A('s_waitcnt vmcnt(0)')
        A('v_cmp_ne_u32 vcc, 0, %s' % vr(v_b))
        A('s_cbranch_vccnz ' + Ld)
        A('s_sleep 4')
        A('s_cmp_lt_u32 %s, %d' % (sr(s3), LIM))
        A('s_cbranch_scc1 ' + Lw)
        A.label(Ld)
    L_have = A.uid('havejob')
    L_got = A.uid('gotjob')
    A('s_mov_b32 %s, s3' % sr(s_job))
    SRD_T = S.alloc(4, 4)
    hi = max(hi, S.mark())

    def touch(ptrs_sizes, s_id, per_wave_log2):
        A('s_lshl_b32 %s, %s, %d' % (sr(s0), sr(s_id), per_wave_log2))
        A('v_lshlrev_b32 %s, 7, %s' % (vr(v_a), vr(v_lane)))
        for p, nbytes in ptrs_sizes:
            mk_srd(A, SRD_T, P[p], nbytes)
            for i in range(1 << (per_wave_log2 - 13)):
                A('s_add_u32 %s, %s, %d' % (sr(s1), sr(s0), i * 8192))
                A('buffer_load_dword v7, %s, %s, %s offen' % (vr(v_a), sr(SRD_T, 4), sr(s1)))
            A('s_nop 4')
    L_restart = name + '_restart'
    L_st = A.uid('static')
    A('s_cmp_lt_u32 s3, 32')
    A('s_cbranch_scc1 ' + L_st)
    place_check(A, SRD_D, v_lane, v_a, v_b, s3, LIM, L_restart)
    A('s_branch ' + L_next)
    A.label(L_st)
    A('s_branch ' + L_have)
    A.label(L_next)
    Lnf = A.uid('nofetch')
    A('s_cmp_lg_u32 %s, 0' % sr(s_w))
    A('s_cbranch_scc1 ' + Lnf)
    wait_init()
    A('s_lshl_b32 %s, %s, 7' % (sr(s0), sr(s_q)))
    A('s_add_u32 %s, %s, 0x%x' % (sr(s0), sr(s0), CTR + DBG_Q * 128))
    A('v_mov_b32 %s, %s' % (vr(v_a), sr(s0)))
    A('v_mov_b32 %s, 1' % vr(v_b))
    A('s_mov_b64 exec, 1')
    A('buffer_atomic_add %s, %s, %s, 0 offen sc0 sc1' % (vr(v_b), vr(v_a), sr(SRD_WS, 4)))
    A('s_waitcnt vmcnt(0)')
    A('v_mov_b32 %s, %d' % (vr(v_a), LDS_JOB))
    A('ds_write_b32 %s, %s' % (vr(v_a), vr(v_b)))
    A('s_waitcnt lgkmcnt(0)')
    A('s_mov_b64 exec, -1')
    A.label(Lnf)
    A('s_barrier')
    A('v_mov_b32 %s, %d' % (vr(v_a), LDS_JOB))
    A('ds_read_b32 %s, %s' % (vr(v_b), vr(v_a)))
    A('s_waitcnt lgkmcnt(0)')
    A('v_readfirstlane_b32 %s, %s' % (sr(s_job), vr(v_b)))
    A('s_barrier')
    A.label(L_got)
    A('s_mov_b32 %s, 1' % sr(s_init))
    A('s_add_u32 %s, %s, 32' % (sr(s_job), sr(s_job)))
    A.label(L_have)
    if WST:
        A('s_min_u32 %s, %s, 511' % (sr(s0), sr(s_job)))
        A('s_lshl_b32 %s, %s, 9' % (sr(s_sa), sr(s_q)))
        A('s_add_u32 %s, %s, %s' % (sr(s_sa), sr(s_sa), sr(s0)))
        A('s_lshl_b32 %s, %s, 2' % (sr(s_sa), sr(s_sa)))
        A('s_add_u32 %s, %s, %s' % (sr(s_sa), sr(s_sa), sr(s_w)))
        A('s_lshl_b32 %s, %s, 5' % (sr(s_sa), sr(s_sa)))
        A('s_add_u32 %s, %s, 0x%x' % (sr(s_sa), sr(s_sa), STAMP + 0x400000))
        wstamp(0)
    kinds = ('aoutr', 'aoutj', 'skv', 'bkv', 'bq', 'q', 'battn', 'bout', 'wot', 'aattn', 'aout', 'aattn1', 'aoutd', 'aoute', 'big', 'bigA', 'small', 'outc')
    L = {k: A.uid('job' + k) for k in kinds}
    for k, n, p in SEGS:
        A('s_mov_b32 %s, %d' % (sr(s_p), p))
        A('s_cmp_lt_u32 %s, %d' % (sr(s_job), n))
        A('s_cbranch_scc1 ' + L[k])
        A('s_sub_u32 %s, %s, %d' % (sr(s_job), sr(s_job), n))
    QLEN = sum(n for _, n, _ in SEGS)
    L_peek = name + '_wpeek'
    A.label(L_peek)
    if PEEK:
        A('s_mov_b32 %s, %d' % (sr(s0), DBG_Q * 128))
        A('buffer_load_dword %s, %s, %s, %s offen sc1' % (vr(v_b), vr(v_sh), sr(SRD_WS, 4), sr(s0)))
        A('v_lshlrev_b32 %s, 2, %s' % (vr(v_a), vr(v_lane)))
        A('v_add_u32 %s, %d, %s' % (vr(v_a), LDS_JOB + 64, vr(v_a)))
        A('s_waitcnt vmcnt(0)')
        Lp1 = A.uid('pk')
        A('s_cmp_lg_u32 %s, 0' % sr(s_w))
        A('s_cbranch_scc1 ' + Lp1)
        A('ds_write_b32 %s, %s' % (vr(v_a), vr(v_b)))
        A('s_waitcnt lgkmcnt(0)')
        A.label(Lp1)
        A('s_barrier')
        A('ds_read_b32 %s, %s' % (vr(v_b), vr(v_a)))
        A('s_waitcnt lgkmcnt(0)')
        A('s_barrier')
        for k in range(4):
            A('v_readlane_b32 %s, %s, %d' % (sr(s0), vr(v_b), k))
            A('s_mov_b32 %s, %d' % (sr(s_q), k))
            A('s_cmp_lt_u32 %s, %d' % (sr(s0), QLEN - 32))
            A('s_cbranch_scc1 ' + L_next)
    A('s_endpgm')

    def wait_ctr(s_off, thr, s_shift=None, bits=8, slp=12):
        Lw, Ld = A.uid('dw'), A.uid('dd')
        A('s_cmp_lg_u32 %s, 0' % sr(s_w))
        A('s_cbranch_scc1 ' + Ld)
        A('s_lshl_b32 %s, %s, 7' % (sr(s_wo), sr(s_off) if isinstance(s_off, int) else s_off))
        A('s_mov_b32 %s, 0' % sr(s3))
        A.label(Lw)
        A('buffer_load_dword %s, %s, %s, %s offen sc1' % (vr(v_b), vr(v_sh), sr(SRD_WS, 4), sr(s_wo)))
        A('s_add_u32 %s, %s, 1' % (sr(s3), sr(s3)))
        A('s_waitcnt vmcnt(0)')
        if s_shift is not None:
            A('v_bfe_u32 %s, %s, %s, %d' % (vr(v_b), vr(v_b), sr(s_shift), bits))
        A('v_cmp_gt_u32 vcc, %s, %s' % (thr, vr(v_b)))
        A('s_cbranch_vccz ' + Ld)
        A('s_sleep %d ; poll back-off' % slp)
        A('s_cmp_lt_u32 %s, %d' % (sr(s3), LIM))
        A('s_cbranch_scc1 ' + Lw)
        A.label(Ld)
        A('s_barrier')

    def wait2(off1, thr1, off2, thr2, s_shift=None, bits=8, slp=12):
        Lw, Ld, Ln = A.uid('dw'), A.uid('dd'), A.uid('dn')
        tx = lambda o: sr(o) if isinstance(o, int) else o
        A('s_cmp_lg_u32 %s, 0' % sr(s_w))
        A('s_cbranch_scc1 ' + Ld)
        A('s_lshl_b32 %s, %s, 7' % (sr(s_wo), tx(off1)))
        A('s_lshl_b32 %s, %s, 7' % (sr(s_wo2), tx(off2)))
        A('s_mov_b32 %s, 0' % sr(s3))
        A.label(Lw)
        A('buffer_load_dword %s, %s, %s, %s offen sc1' % (vr(v_a), vr(v_sh), sr(SRD_WS, 4), sr(s_wo)))
        A('buffer_load_dword %s, %s, %s, %s offen sc1' % (vr(v_b), vr(v_sh), sr(SRD_WS, 4), sr(s_wo2)))
        A('s_add_u32 %s, %s, 1' % (sr(s3), sr(s3)))
        A('s_waitcnt vmcnt(0)')
        if s_shift is not None:
            A('v_bfe_u32 %s, %s, %s, %d' % (vr(v_b), vr(v_b), sr(s_shift), bits))
        A('v_cmp_gt_u32 vcc, %s, %s' % (thr1, vr(v_a)))
        A('s_cbranch_vccnz ' + Ln)
        A('v_cmp_gt_u32 vcc, %s, %s' % (thr2, vr(v_b)))
        A('s_cbranch_vccz ' + Ld)
        A.label(Ln)
        A('s_sleep %d ; poll back-off' % slp)
        A('s_cmp_lt_u32 %s, %d' % (sr(s3), LIM))
        A('s_cbranch_scc1 ' + Lw)
        A.label(Ld)
        A('s_barrier')

    def cfg(Gx, cid, *args):
        Ls = A.uid('cfg')
        A('s_cmp_eq_u32 %s, %d' % (sr(s_cfg), cid))
        A('s_cbranch_scc1 ' + Ls)
        Gx.setup(v_lane, s_w, (s0, s1), *args)
        A('s_mov_b32 %s, %d' % (sr(s_cfg), cid))
        A.label(Ls)

    def blk_base(mbk, nbk):
        A('s_lshr_b32 %s, %s, 1' % (sr(s0), sr(s_w)))
        A('s_lshl_b32 %s, %s, 1' % (sr(s1), sr(s_mt)))
        A('s_add_u32 %s, %s, %s' % (sr(s0), sr(s0), sr(s1)))
        A('s_mul_i32 %s, %s, %d' % (sr(s0), sr(s0), mbk))
        A('s_mul_i32 %s, %s, %s' % (sr(s0), sr(s0), sr(s_tbs)))
        A('s_add_u32 %s, %s, %s' % (sr(s_base), sr(s_base), sr(s0)))
        A('s_and_b32 %s, %s, 1' % (sr(s0), sr(s_w)))
        A('s_lshl_b32 %s, %s, 1' % (sr(s1), sr(s_nt)))
        A('s_add_u32 %s, %s, %s' % (sr(s0), sr(s0), sr(s1)))
        A('s_mul_i32 %s, %s, %d' % (sr(s0), sr(s0), nbk * 2048))
        A('s_add_u32 %s, %s, %s' % (sr(s_base), sr(s_base), sr(s0)))

    def sel_kv(thr):
        A('s_cmp_ge_u32 %s, %d' % (sr(s_nt), thr))
        A('s_cselect_b32 %s, 1, 0' % sr(s_or))
        A('s_cselect_b64 %s, %s, %s' % (sr(s_pp, 2), sr(P['A_Wv'], 2), sr(P['A_Wk'], 2)))
        A('s_mov_b32 %s, 0x%x' % (sr(s_base), KX))
        A('s_cselect_b32 %s, 0x%x, %s' % (sr(s_base), VX, sr(s_base)))
        A('s_and_b32 %s, %s, %d' % (sr(s_nt), sr(s_nt), thr - 1))

    def ctr(base, s_idx, inc):
        A('s_lshl_b32 %s, %s, 2' % (sr(s_ctr), sr(s_idx)))
        A('s_add_u32 %s, %s, %d' % (sr(s_ctr), sr(s_ctr), base))
        A('s_mov_b32 %s, %d' % (sr(s_inc), inc))

    def nt_q(mask_bits_shift, mask):
        A('s_lshr_b32 %s, %s, %d' % (sr(s_nt), sr(s_job), mask_bits_shift))
        A('s_and_b32 %s, %s, %d' % (sr(s_nt), sr(s_nt), mask))
        A('s_lshl_b32 %s, %s, 2' % (sr(s_nt), sr(s_nt)))
        A('s_add_u32 %s, %s, %s' % (sr(s_nt), sr(s_nt), sr(s_q)))

    A.label(L['skv'])
    A('s_lshr_b32 %s, %s, 1' % (sr(s0), sr(s_p)))
    ctr(DBG_KV, s0, 1)
    A('s_mov_b32 %s, %s' % (sr(s_mt), sr(s_p)))
    nt_q(0, 15)
    sel_kv(32)
    mk_srd(A, G.SRD_W, s_pp, 1024 * 4096 * 2)
    mk_srd(A, G.SRD_X, P['A_x'], 2048 * 1024 * 2)
    A('s_lshl_b32 %s, %s, 18' % (sr(G.s_xo), sr(s_mt)))
    A('s_mov_b32 %s, 128' % sr(G.s_xs))
    A('s_lshl_b32 %s, %s, 8' % (sr(G.s_wo), sr(s_nt)))
    A('s_mov_b32 %s, %d' % (sr(G.s_ws), 64 * 8192))
    A('s_mov_b32 %s, %d' % (sr(s_tbs), 128 * 2048))
    A('s_mov_b32 %s, 3' % sr(G.s_n))
    blk_base(2, 2)
    cfg(G2, 3, 'nat', 2048, 8192)
    A('s_mov_b32 %s, 0' % sr(s_k))
    A('s_branch ' + L['small'])

    A.label(L['aout'])
    A('s_lshr_b32 %s, %s, 2' % (sr(s_mt), sr(s_job)))
    A('s_add_u32 %s, %s, %s' % (sr(s_mt), sr(s_mt), sr(s_p)))
    A('s_lshl_b32 %s, %s, 1' % (sr(s_mt), sr(s_mt)))
    A('s_lshr_b32 %s, %s, 1' % (sr(s0), sr(s_q)))
    A('s_add_u32 %s, %s, %s' % (sr(s_mt), sr(s_mt), sr(s0)))
    A('s_and_b32 %s, %s, 1' % (sr(s_nt), sr(s_q)))
    A('s_lshl_b32 %s, %s, 2' % (sr(s_nt), sr(s_nt)))
    A('s_and_b32 %s, %s, 3' % (sr(s0), sr(s_job)))
    A('s_add_u32 %s, %s, %s' % (sr(s_nt), sr(s_nt), sr(s0)))
    A('s_mov_b32 %s, 4' % sr(s_tbs))
    A('s_mov_b32 %s, 0' % sr(s_it))
    A('s_branch ' + L['aoutj'])
    A.label(L['aoutr'])
    A('s_mov_b32 %s, %s' % (sr(s_mt), sr(s_p)))
    A('s_lshl_b32 %s, %s, 1' % (sr(s_nt), sr(s_q)))
    A('s_add_u32 %s, %s, %s' % (sr(s_nt), sr(s_nt), sr(s_job)))
    A('s_mov_b32 %s, 0x2222' % sr(s_tbs))
    A('s_and_b32 %s, %s, 1' % (sr(s_it), sr(s_p)))
    A('s_lshl_b32 %s, %s, 4' % (sr(s_it), sr(s_it)))
    A.label(L['aoutj'])
    mk_srd(A, G.SRD_W, P['A_Wo'], 4096 * 1024 * 2)
    A('s_mul_i32 %s, %s, %d' % (sr(G.s_xo), sr(s_mt), 4 * 128 * 2048))
    A('s_add_u32 %s, %s, 0x%x' % (sr(G.s_xo), sr(G.s_xo), OA))
    A('s_mov_b32 %s, 15' % sr(G.s_n))
    A('s_mov_b32 %s, 0' % sr(s_base))
    A('s_mov_b32 %s, %d' % (sr(s2_), DBG_AA))
    cfg(G2, 5, 'blk', 128 * 2048, 2048)
    A('s_branch ' + L['outc'])
    A.label(L['bout'])
    A('s_add_u32 %s, %s, %s' % (sr(s_job), sr(s_job), sr(s_p)))
    A('s_lshr_b32 %s, %s, 1' % (sr(s_mt), sr(s_job)))
    nt_q(0, 1)
    mk_srd(A, G.SRD_W, P['B_wo'], 1024 * 1024 * 2)
    A('s_mul_i32 %s, %s, %d' % (sr(G.s_xo), sr(s_mt), 4 * 32 * 2048))
    A('s_add_u32 %s, %s, 0x%x' % (sr(G.s_xo), sr(G.s_xo), OB))
    A('s_mov_b32 %s, 3' % sr(G.s_n))
    A('s_mov_b32 %s, 2048' % sr(s_base))
    A('s_mov_b32 %s, %d' % (sr(s2_), DBG_BA))
    A('s_mov_b32 %s, 4' % sr(s_tbs))
    A('s_mov_b32 %s, 0' % sr(s_it))
    cfg(G2, 4, 'blk', 32 * 2048, 2048)
    A.label(L['outc'])
    mk_srd(A, G.SRD_X, P['ws'], WS_HALF)
    A('s_mov_b32 %s, 4096' % sr(G.s_xs))
    A('s_lshl_b32 %s, %s, 8' % (sr(G.s_wo), sr(s_nt)))
    A('s_mov_b32 %s, %d' % (sr(G.s_ws), 64 * 2048))
    A('s_mov_b32 %s, 0' % sr(s_or))
    A('s_mov_b32 %s, 0' % sr(s_inc))
    A('s_lshr_b32 %s, %s, 1' % (sr(s0), sr(s_w)))
    A('s_lshl_b32 %s, %s, 18' % (sr(s0), sr(s0)))
    A('s_add_u32 %s, %s, %s' % (sr(s_base), sr(s_base), sr(s0)))
    A('s_lshl_b32 %s, %s, 19' % (sr(s0), sr(s_mt)))
    A('s_add_u32 %s, %s, %s' % (sr(s_base), sr(s_base), sr(s0)))
    A('s_and_b32 %s, %s, 1' % (sr(s0), sr(s_w)))
    A('s_lshl_b32 %s, %s, 7' % (sr(s0), sr(s0)))
    A('s_add_u32 %s, %s, %s' % (sr(s_base), sr(s_base), sr(s0)))
    A('s_add_u32 %s, %s, %s' % (sr(s_base), sr(s_base), sr(G.s_wo)))
    A('s_lshr_b32 %s, %s, 1' % (sr(s0), sr(s_mt)))
    A('s_lshl_b32 %s, %s, 2' % (sr(s0), sr(s0)))
    A('s_add_u32 %s, %s, %s' % (sr(s0), sr(s0), sr(s2_)))
    wait_ctr(s0, sr(s_tbs), s_it, bits=16)
    A('s_mov_b32 %s, 1' % sr(s_k))
    A.label(L['small'])
    wstamp(1)
    G2.prologue()
    wstamp(2)
    LN, LE, LO = A.uid('sN'), A.uid('sE'), A.uid('sO')
    A('s_cmp_eq_u32 %s, 1' % sr(s_or))
    A('s_cbranch_scc1 ' + LN)
    G2.mainloop('T', 'st')
    A('s_nop 15')
    A('s_cmp_eq_u32 %s, 1' % sr(s_k))
    A('s_cbranch_scc1 ' + LO)
    A('s_branch ' + LE)
    A.label(LN)
    G2.mainloop('N', 'sn')
    A.label(LE)
    wstamp(3)
    early()
    G2.epi_blk(SRD_WS, v_l16, s_base, s_tbs, s0, ' sc1')
    A('s_branch ' + L_done)
    A.label(LO)
    wstamp(3)
    early()
    G2.epi_out(SRD_O, v_off, s_base)
    A('s_branch ' + L_done)

    A.label(L['wot'])
    A('s_add_u32 %s, %s, %s' % (sr(s_job), sr(s_job), sr(s_p)))
    nt_q(0, 1)
    A('s_lshr_b32 %s, %s, 1' % (sr(s_mt), sr(s_job)))
    mk_srd(A, G.SRD_W, P['A_Wo'], 4096 * 1024 * 2)
    cfg(G2, 5, 'blk', 128 * 2048, 2048)
    A('s_lshl_b32 %s, %s, 8' % (sr(G.s_wo), sr(s_nt)))
    A('s_lshl_b32 %s, %s, 19' % (sr(s0), sr(s_mt)))
    A('s_add_u32 %s, %s, %s' % (sr(G.s_wo), sr(G.s_wo), sr(s0)))
    A('s_mov_b32 %s, 1' % sr(s_inc))
    A('s_mov_b32 %s, %d' % (sr(s_ctr), DBG_WT))
    wstamp(1)
    for st in range(4):
        for g in G2.dma_ops(st)[G2.nX:]:
            for t in g:
                A(t)
        A('s_add_u32 %s, %s, %d' % (sr(G.s_wo), sr(G.s_wo), 64 * 2048))
    A('s_and_b32 %s, %s, 1' % (sr(s0), sr(s_w)))
    A('s_lshl_b32 %s, %s, 1' % (sr(s0), sr(s0)))
    A('s_lshl_b32 %s, %s, 2' % (sr(s1), sr(s_nt)))
    A('s_add_u32 %s, %s, %s' % (sr(s0), sr(s0), sr(s1)))
    A('s_lshl_b32 %s, %s, 18' % (sr(s_base), sr(s0)))
    A('s_lshl_b32 %s, %s, 14' % (sr(s0), sr(s_mt)))
    A('s_add_u32 %s, %s, %s' % (sr(s_base), sr(s_base), sr(s0)))
    A('s_lshr_b32 %s, %s, 1' % (sr(s0), sr(s_w)))
    A('s_lshl_b32 %s, %s, 13' % (sr(s1), sr(s0)))
    A('s_add_u32 %s, %s, %s' % (sr(s_base), sr(s_base), sr(s1)))
    A('s_add_u32 %s, %s, 0x%x' % (sr(s_base), sr(s_base), WOT))
    A('s_mul_i32 %s, %s, %d' % (sr(s0), sr(s0), 2 * G2.STG))
    T = V2.alloc(64, 4)
    ta = [V2.alloc() for _ in range(4)]
    for i in range(2):
        for q in range(2):
            A('v_add_u32 %s, %s, %s' % (vr(ta[2 * i + q]), sr(s0), vr(G2.rw[0][i][q])))
    early()
    A('s_waitcnt vmcnt(0)')
    A('s_barrier')
    for i in range(2):
        for st in range(2):
            for ks in range(4):
                d = T + 4 * ((i * 2 + st) * 4 + ks)
                for q in range(2):
                    A('ds_read_b64_tr_b16 %s, %s offset:%d' % (vr(d + 2 * q, 2), vr(ta[2 * i + q]), st * G2.STG + ks * 16 * G2.wrow))
            A('s_waitcnt lgkmcnt(0)')
    for i in range(2):
        for st in range(2):
            A('s_add_u32 %s, %s, %d' % (sr(s0), sr(s_base), i * 262144 + st * 4096))
            for ks in range(4):
                d = T + 4 * ((i * 2 + st) * 4 + ks)
                A('buffer_store_dwordx4 %s, %s, %s, %s offen offset:%d' % (vr(d, 4), vr(v_l16), sr(SRD_WS, 4), sr(s0), ks * 1024) + ' sc1')
    A('s_branch ' + L_done)

    def wid16():
        A('s_lshl_b32 %s, %s, 4' % (sr(s0), sr(s_q)))
        A('s_add_u32 %s, %s, %s' % (sr(s2_), sr(s_job), sr(s0)))
        A('s_lshl_b32 %s, %s, 2' % (sr(s2_), sr(s2_)))
        A('s_add_u32 %s, %s, %s' % (sr(s2_), sr(s2_), sr(s_w)))
    A.label(L['bkv'])
    if WT2:
        Lnt = A.uid('nt2')
        A('s_cmp_lg_u32 %s, 1' % sr(s_p))
        A('s_cbranch_scc1 ' + Lnt)
        wid16()
        if WTOUCH:
            touch([(k, 8 << 20) for k in WTOUCH.split(',')], s2_, 15)
        if SLOWT:
            A('v_and_b32 %s, 31, %s' % (vr(v_a), vr(v_lane)))
            A('v_lshlrev_b32 %s, 10, %s' % (vr(v_a), vr(v_a)))
            A('s_lshl_b32 %s, %s, 15' % (sr(s0), sr(s2_)))
            A('s_add_u32 %s, %s, 384' % (sr(s0), sr(s0)))
            for k_ in ('A_Wv', 'A_Wq', 'A_Wk', 'A_Wo'):
                mk_srd(A, SRD_T, P[k_], 8 << 20)
                A('buffer_load_dword v7, %s, %s, %s offen' % (vr(v_a), sr(SRD_T, 4), sr(s0)))
                A('s_nop 4')
        touch([('A_x', 4 << 20)], s2_, 14)
        A.label(Lnt)
    A('s_lshl_b32 %s, %s, 3' % (sr(s1), sr(s_p)))
    A('s_add_u32 %s, %s, %s' % (sr(s1), sr(s1), sr(s_job)))
    A('s_sub_u32 %s, %s, 24' % (sr(s1), sr(s1)))
    A('s_lshl_b32 %s, %s, 5' % (sr(s0), sr(s_q)))
    A('s_add_u32 %s, %s, %s' % (sr(s_k), sr(s1), sr(s0)))
    A('s_lshl_b32 %s, %s, 2' % (sr(s_k), sr(s_k)))
    A('s_add_u32 %s, %s, %s' % (sr(s_k), sr(s_k), sr(s_w)))
    A('s_cmp_lt_u32 %s, 32' % sr(s1))
    A('s_cselect_b32 %s, %s, -1' % (sr(s_k), sr(s_k)))
    A('s_lshr_b32 %s, %s, 3' % (sr(s_mt), sr(s_job)))
    A('s_add_u32 %s, %s, %s' % (sr(s_mt), sr(s_mt), sr(s_p)))
    nt_q(0, 7)
    sel_kv(16)
    ctr(DBG_KV, s_mt, 4)
    A('s_branch ' + L['bigA'])
    A.label(L['q'])
    A('s_mov_b32 %s, -1' % sr(s_k))
    A('s_lshr_b32 %s, %s, 2' % (sr(s_mt), sr(s_job)))
    A('s_add_u32 %s, %s, %s' % (sr(s_mt), sr(s_mt), sr(s_p)))
    nt_q(0, 3)
    A('s_mov_b64 %s, %s' % (sr(s_pp, 2), sr(P['A_Wq'], 2)))
    A('s_mov_b32 %s, 0x%x' % (sr(s_base), QX))
    A('s_mov_b32 %s, 0' % sr(s_or))
    ctr(DBG_QR, s_mt, 1)
    A.label(L['bigA'])
    mk_srd(A, G.SRD_W, s_pp, 1024 * 4096 * 2)
    mk_srd(A, G.SRD_X, P['A_x'], 2048 * 1024 * 2)
    A('s_lshl_b32 %s, %s, 9' % (sr(G.s_wo), sr(s_nt)))
    A('s_mov_b32 %s, %d' % (sr(G.s_ws), 64 * 8192))
    A('s_mov_b32 %s, %d' % (sr(s_tbs), 128 * 2048))
    cfg(G4, 1, 'nat', 2048, 8192)
    A('s_branch ' + L['big'])
    A.label(L['bq'])
    A('s_add_u32 %s, %s, %s' % (sr(s_job), sr(s_job), sr(s_p)))
    A('s_mov_b32 %s, -1' % sr(s_k))
    A('s_mul_i32 %s, %s, 43' % (sr(s_mt), sr(s_job)))
    A('s_lshr_b32 %s, %s, 7' % (sr(s_mt), sr(s_mt)))
    A('s_mul_i32 %s, %s, 3' % (sr(s0), sr(s_mt)))
    A('s_sub_u32 %s, %s, %s' % (sr(s0), sr(s_job), sr(s0)))
    A('s_cmp_eq_u32 %s, 2' % sr(s0))
    A('s_cselect_b32 %s, 1, 0' % sr(s_or))
    A('s_lshl_b32 %s, %s, 22' % (sr(s_base), sr(s0)))
    A('s_add_u32 %s, %s, 0x%x' % (sr(s_base), sr(s_base), QB))
    A('s_lshl_b32 %s, %s, 2' % (sr(s0), sr(s0)))
    A('s_add_u32 %s, %s, %s' % (sr(s0), sr(s0), sr(s_q)))
    A('s_lshl_b32 %s, %s, 9' % (sr(G.s_wo), sr(s0)))
    A('s_mov_b32 %s, %s' % (sr(s_nt), sr(s_q)))
    mk_srd(A, G.SRD_W, P['B_wqkv'], 1024 * 3072 * 2)
    mk_srd(A, G.SRD_X, P['B_x'], 2048 * 1024 * 2)
    A('s_mov_b32 %s, %d' % (sr(G.s_ws), 64 * 6144))
    A('s_mov_b32 %s, %d' % (sr(s_tbs), 32 * 2048))
    ctr(DBG_BQ, s_mt, 1)
    cfg(G4, 2, 'nat', 2048, 6144)
    A.label(L['big'])
    A('s_lshl_b32 %s, %s, 19' % (sr(G.s_xo), sr(s_mt)))
    A('s_mov_b32 %s, 128' % sr(G.s_xs))
    A('s_mov_b32 %s, 7' % sr(G.s_n))
    blk_base(4, 4)
    wstamp(1)
    G4.prologue_issue()
    if OVL:
        Lpe, Lpj = A.uid('pe'), A.uid('pj')
        A('s_cmp_lg_u32 %s, 0' % sr(s_pe))
        A('s_cbranch_scc1 ' + Lpe)
        A('s_waitcnt vmcnt(16)')
        A('s_branch ' + Lpj)
        A.label(Lpe)
        G4.epi_blk(SRD_WS, v_l16, p_base, p_tbs, s0, ' sc1')
        A('s_waitcnt vmcnt(48)')
        A.label(Lpj)
    else:
        A('s_waitcnt vmcnt(16)')
    G4.prologue_finish()
    wstamp(2)

    def sig_prev():
        Ls = A.uid('sp')
        A('s_cmp_eq_u32 %s, 0' % sr(s_pe))
        A('s_cbranch_scc1 ' + Ls)
        A('s_mov_b32 %s, 0' % sr(s_pe))
        A('s_cmp_lg_u32 %s, 0' % sr(s_w))
        A('s_cbranch_scc1 ' + Ls)
        A('s_add_u32 %s, %s, %s' % (sr(s0), sr(p_ctr), sr(s_q)))
        A('s_lshl_b32 %s, %s, 7' % (sr(s0), sr(s0)))
        A('s_add_u32 %s, %s, 0x%x' % (sr(s0), sr(s0), CTR))
        A('v_mov_b32 %s, %s' % (vr(v_a), sr(s0)))
        A('v_mov_b32 %s, %s' % (vr(v_b), sr(p_inc)))
        A('s_mov_b64 exec, 1')
        A('buffer_atomic_add %s, %s, %s, 0 offen sc1' % (vr(v_b), vr(v_a), sr(SRD_WS, 4)))
        A('s_mov_b64 exec, -1')
        A.label(Ls)
    ht = (lambda: early(False)) if OVL else None
    Lnt3 = A.uid('nt3')
    A('s_cmp_eq_u32 %s, -1' % sr(s_k))
    A('s_cbranch_scc1 ' + Lnt3)
    touch([('B_x', 4 << 20), ('B_wo', 2 << 20)], s_k, 13)
    touch([('B_wqkv', 6 << 20)], s_k, 14)
    A.label(Lnt3)
    LN, LE = A.uid('bN'), A.uid('bE')
    A('s_cmp_eq_u32 %s, 1' % sr(s_or))
    A('s_cbranch_scc1 ' + LN)
    G4.mainloop('T', 'bt', sig_prev if OVL else None, ht)
    A('s_nop 15')
    A('s_branch ' + LE)
    A.label(LN)
    G4.mainloop('N', 'bn', sig_prev if OVL else None, ht)
    A.label(LE)
    wstamp(3)
    if OVL:
        Lno, Lw1, Lyes = A.uid('no'), A.uid('w1'), A.uid('yes')
        A('s_nop 11')
        A('s_cmp_eq_u32 %s, 0' % sr(s_et))
        A('s_cbranch_scc1 ' + Lno)
        A('v_mov_b32 %s, %d' % (vr(v_a), LDS_JOB))
        A('s_cmp_lg_u32 %s, 0' % sr(s_w))
        A('s_cbranch_scc1 ' + Lw1)
        A('s_mov_b64 exec, 1')
        A('ds_write_b32 %s, %s' % (vr(v_a), vr(v_tk)))
        A('s_mov_b64 exec, -1')
        A('s_waitcnt lgkmcnt(0)')
        A.label(Lw1)
        A('s_barrier')
        A('ds_read_b32 %s, %s' % (vr(v_b), vr(v_a)))
        A('s_waitcnt lgkmcnt(0)')
        A('v_readfirstlane_b32 %s, %s' % (sr(s1), vr(v_b)))
        A('s_barrier')
        rng, a0 = [], 0
        for k_, n_, p_ in SEGS:
            if k_ in ('bkv', 'q', 'bq'):
                if rng and rng[-1][1] == a0:
                    rng[-1][1] = a0 + n_
                else:
                    rng.append([a0, a0 + n_])
            a0 += n_
        for lo, hi_ in rng:
            if hi_ <= 32:
                continue
            A('s_sub_u32 %s, %s, %d' % (sr(s0), sr(s1), lo - 32))
            A('s_cmp_lt_u32 %s, %d' % (sr(s0), hi_ - lo))
            A('s_cbranch_scc1 ' + Lyes)
        A('s_branch ' + Lno)
        A.label(Lyes)
        wstamp(4)
        wstamp(5)
        A('s_mov_b32 %s, %s' % (sr(p_base), sr(s_base)))
        A('s_mov_b32 %s, %s' % (sr(p_tbs), sr(s_tbs)))
        A('s_mov_b32 %s, %s' % (sr(p_ctr), sr(s_ctr)))
        A('s_mov_b32 %s, %s' % (sr(p_inc), sr(s_inc)))
        A('s_mov_b32 %s, 1' % sr(s_pe))
        A('s_mov_b32 %s, 0' % sr(s_et))
        A('s_mov_b32 %s, %s' % (sr(s_job), sr(s1)))
        A('s_branch ' + L_got)
        A.label(Lno)
    else:
        early()
    G4.epi_blk(SRD_WS, v_l16, s_base, s_tbs, s0, ' sc1')
    A('s_branch ' + L_done)

    def attn_items():
        A('s_mov_b32 %s, 0' % sr(s_cfg))
        A('s_and_b32 %s, %s, 3' % (sr(s0), sr(s_job)))
        A('s_lshl_b32 %s, %s, 2' % (sr(s1), sr(s_q)))
        A('s_add_u32 %s, %s, %s' % (sr(s0), sr(s0), sr(s1)))
        A('s_lshl_b32 %s, %s, 1' % (sr(s0), sr(s0)))
        A('s_and_b32 %s, %s, 1' % (sr(s1), sr(s_w)))
        A('s_add_u32 %s, %s, %s' % (sr(s_it), sr(s0), sr(s1)))
        A('s_lshl_b32 %s, %s, 8' % (sr(s0), sr(s_mt)))
        A('s_add_u32 %s, %s, %s' % (sr(s_it), sr(s_it), sr(s0)))
        A('s_lshr_b32 %s, %s, 1' % (sr(s0), sr(s_w)))
        A('s_lshl_b32 %s, %s, 7' % (sr(s0), sr(s0)))
        A('s_add_u32 %s, %s, %s' % (sr(s_it), sr(s_it), sr(s0)))
        A('s_mov_b32 %s, 4' % sr(s_k))
        wstamp(1)

    def attn_loop(fn, tag):
        Lb = A.uid(tag)
        A.label(Lb)
        fn(A, SRD_WS, s_it, (s0, s1, s2_, s3), v_lane, v_l16, 8, ld=' sc1', stf=' sc1')
        A('s_add_u32 %s, %s, 32' % (sr(s_it), sr(s_it)))
        A('s_sub_u32 %s, %s, 1' % (sr(s_k), sr(s_k)))
        A('s_cmp_lg_u32 %s, 0' % sr(s_k))
        A('s_waitcnt vmcnt(0)')
        A('s_cbranch_scc1 ' + Lb)

    A.label(L['aattn'])
    A('s_lshr_b32 %s, %s, 2' % (sr(s_mt), sr(s_job)))
    A('s_add_u32 %s, %s, %s' % (sr(s_mt), sr(s_mt), sr(s_p)))
    A('s_lshl_b32 %s, %s, 2' % (sr(s_ctr), sr(s_mt)))
    A('s_add_u32 %s, %s, %d' % (sr(s0), sr(s_ctr), DBG_QR))
    A('s_lshl_b32 %s, %s, 3' % (sr(s1), sr(s_mt)))
    A('s_add_u32 %s, %s, %d' % (sr(s1), sr(s1), 7 + LAG))
    wait2(s0, 4, str(DBG_PROG), sr(s1))
    ctr(DBG_AA, s_mt, 1)
    attn_items()
    attn.attn_a_n(A, SRD_WS, s_it, (s0, s1, s2_, s3), v_lane, v_l16, 8, 4, ld=' sc1', stf=' sc1', late=early)
    A('s_branch ' + L_done)

    A.label(L['aattn1'])
    A('s_lshr_b32 %s, %s, 2' % (sr(s_mt), sr(s_p)))
    A('s_lshl_b32 %s, %s, 2' % (sr(s_ctr), sr(s_mt)))
    A('s_lshl_b32 %s, %s, 1' % (sr(s_it), sr(s_p)))
    A('s_lshr_b32 %s, %s, 1' % (sr(s0), sr(s_job)))
    A('s_add_u32 %s, %s, %s' % (sr(s_it), sr(s_it), sr(s0)))
    A('s_add_u32 %s, %s, %d' % (sr(s_tbs), sr(s_it), LAG))
    A('s_mov_b32 %s, %d' % (sr(s_base), DBG_PROG))
    A('s_cmp_gt_u32 %s, 60' % sr(s_it))
    A('s_cselect_b32 %s, 32, %s' % (sr(s_tbs), sr(s_tbs)))
    A('s_cselect_b32 %s, %d, %s' % (sr(s_base), DBG_FIN, sr(s_base)))
    A('s_add_u32 %s, %s, %d' % (sr(s0), sr(s_ctr), DBG_KV))
    A('s_add_u32 %s, %s, %d' % (sr(s1), sr(s_ctr), DBG_QR))
    wait2(s0, 32, s1, 4)
    A('s_add_u32 %s, %s, %d' % (sr(s_ctr), sr(s_ctr), DBG_AA))
    A('s_and_b32 %s, %s, 7' % (sr(s0), sr(s_it)))
    A('s_lshl_b32 %s, %s, 2' % (sr(s0), sr(s0)))
    A('s_lshl_b32 %s, 1, %s' % (sr(s_inc), sr(s0)))
    A('s_lshl_b32 %s, %s, 5' % (sr(s_it), sr(s_it)))
    A('s_lshl_b32 %s, %s, 3' % (sr(s0), sr(s_q)))
    A('s_add_u32 %s, %s, %s' % (sr(s_it), sr(s_it), sr(s0)))
    A('s_and_b32 %s, %s, 1' % (sr(s0), sr(s_job)))
    A('s_lshl_b32 %s, %s, 2' % (sr(s0), sr(s0)))
    A('s_add_u32 %s, %s, %s' % (sr(s_it), sr(s_it), sr(s0)))
    A('s_add_u32 %s, %s, %s' % (sr(s_it), sr(s_it), sr(s_w)))
    A('s_mov_b32 %s, 0' % sr(s_cfg))

    def pw1():
        wait_ctr(s_base, sr(s_tbs), slp=4)
        wstamp(1)
        early()
    attn.attn_a(A, SRD_WS, s_it, (s0, s1, s2_, s3), v_lane, v_l16, 8, ld=' sc1', stf=' sc1', pre_wait=pw1)
    A('s_branch ' + L_done)

    A.label(L['aoute'])
    wait_ctr(str(DBG_WT), 32)
    A('s_lshr_b32 %s, %s, 3' % (sr(s_mt), sr(s_job)))
    A('s_add_u32 %s, %s, %s' % (sr(s_mt), sr(s_mt), sr(s_p)))
    A('s_lshl_b32 %s, %s, 3' % (sr(s_nt), sr(s_q)))
    A('s_and_b32 %s, %s, 7' % (sr(s0), sr(s_job)))
    A('s_add_u32 %s, %s, %s' % (sr(s_nt), sr(s_nt), sr(s0)))
    A('s_mov_b32 %s, 0' % sr(s_inc))
    A('s_mov_b32 %s, 0' % sr(s_cfg))

    def pw2():
        A('s_lshr_b32 %s, %s, 3' % (sr(s0), sr(s_mt)))
        A('s_lshl_b32 %s, %s, 2' % (sr(s0), sr(s0)))
        A('s_add_u32 %s, %s, %d' % (sr(s0), sr(s0), DBG_AA))
        A('s_and_b32 %s, %s, 7' % (sr(s1), sr(s_mt)))
        A('s_lshl_b32 %s, %s, 2' % (sr(s1), sr(s1)))
        wait_ctr(s0, 2, s1, bits=4, slp=4)
        wstamp(1)
        early()
    out_direct32(A, SRD_WS, SRD_O, s_w, s_mt, s_nt, (s_base, s_tbs, s0, s_it, s_k), v_lane, v_l16, 8, ' sc1', pw2)
    A('s_branch ' + L_done)

    A.label(L['aoutd'])
    A('s_lshr_b32 %s, %s, 2' % (sr(s0), sr(s_p)))
    A('s_lshl_b32 %s, %s, 2' % (sr(s0), sr(s0)))
    A('s_add_u32 %s, %s, %d' % (sr(s0), sr(s0), DBG_AA))
    A('s_and_b32 %s, %s, 3' % (sr(s1), sr(s_p)))
    A('s_lshl_b32 %s, %s, 3' % (sr(s1), sr(s1)))
    wait2(str(DBG_WT), 32, s0, '0x22', s1)
    A('s_lshl_b32 %s, %s, 1' % (sr(s_mt), sr(s_p)))
    A('s_lshl_b32 %s, %s, 3' % (sr(s_nt), sr(s_q)))
    A('s_add_u32 %s, %s, %s' % (sr(s_nt), sr(s_nt), sr(s_job)))
    A('s_mov_b32 %s, 0' % sr(s_inc))
    A('s_mov_b32 %s, 0' % sr(s_cfg))
    wstamp(1)
    out_direct(A, SRD_WS, SRD_O, s_w, s_mt, s_nt, (s_base, s_tbs, s_it, s0, s1), v_lane, v_l16, v_off, 8, ld=' sc1', pre=early)
    A('s_branch ' + L_done)

    A.label(L['battn'])
    A('s_add_u32 %s, %s, %s' % (sr(s_job), sr(s_job), sr(s_p)))
    A('s_lshr_b32 %s, %s, 2' % (sr(s_mt), sr(s_job)))
    A('s_lshl_b32 %s, %s, 2' % (sr(s_ctr), sr(s_mt)))
    A('s_add_u32 %s, %s, %d' % (sr(s1), sr(s_ctr), DBG_BQ))
    A('s_add_u32 %s, %s, %d' % (sr(s0), sr(s_ctr), DBG_BQ - 4))
    A('s_max_u32 %s, %s, %d' % (sr(s0), sr(s0), DBG_BQ))
    wait2(s0, 3, s1, 3)
    ctr(DBG_BA, s_mt, 1)
    attn_items()
    attn.attn_b4(A, SRD_WS, s_it, (s0, s1, s2_, s3), v_lane, v_l16, 8, ld=' sc1', stf=' sc1', late=early)

    A.label(L_done)
    wstamp(4)
    Lq0 = A.uid('q0')
    A('s_cmp_lg_u32 %s, 0' % sr(s_init))
    A('s_cbranch_scc1 ' + Lq0)
    A('v_cmp_gt_u32 vcc, 8, %s' % vr(v_lane))
    A('v_lshlrev_b32 %s, 2, %s' % (vr(v_a), vr(v_lane)))
    A('v_mov_b32 %s, %d' % (vr(v_b), DBG_INIT))
    A('v_cndmask_b32 %s, %s, %s, vcc' % (vr(v_a), vr(v_b), vr(v_a)))
    A('buffer_load_dword %s, %s, %s, 0 offen sc1' % (vr(v_b), vr(v_a), sr(SRD_D, 4)))
    A('v_cndmask_b32 %s, 1, 32, vcc' % vr(v_a))
    A('s_waitcnt vmcnt(0)')
    A('v_cmp_ne_u32 vcc, %s, %s' % (vr(v_a), vr(v_b)))
    A('s_cbranch_vccnz ' + Lq0)
    A('s_mov_b32 %s, 1' % sr(s_init))
    A.label(Lq0)
    A('s_waitcnt vmcnt(0)')
    wstamp(5)
    dbgt(14)
    Ld1, Ld2, Lsig = A.uid('d1'), A.uid('d2'), A.uid('sig')
    A('v_mov_b32 %s, %d' % (vr(v_a), LDS_JOB))
    A('s_cmp_lg_u32 %s, 0' % sr(s_w))
    A('s_cbranch_scc1 ' + Ld1)
    A('s_mov_b64 exec, 1')
    A('ds_write_b32 %s, %s' % (vr(v_a), vr(v_tk)))
    A('s_mov_b64 exec, -1')
    A('s_waitcnt lgkmcnt(0)')
    A.label(Ld1)
    A('s_barrier')
    Lck = A.uid('ck')
    A('s_cmp_lg_u32 %s, 0' % sr(s_init))
    A('s_cbranch_scc1 ' + Lck)
    place_check(A, SRD_D, v_lane, v_a, v_b, s3, LIM, L_restart)
    A.label(Lck)
    A('s_cmp_lg_u32 %s, 0' % sr(s_w))
    A('s_cbranch_scc1 ' + Ld2)
    A('s_cmp_lg_u32 %s, 0' % sr(s_inc))
    A('s_cbranch_scc1 ' + Lsig)
    A.label(Ld2)
    A('s_cmp_eq_u32 %s, 0' % sr(s_et))
    A('s_cbranch_scc1 ' + L_next)
    A('s_mov_b32 %s, 0' % sr(s_et))
    A('v_mov_b32 %s, %d' % (vr(v_a), LDS_JOB))
    A('ds_read_b32 %s, %s' % (vr(v_b), vr(v_a)))
    A('s_waitcnt lgkmcnt(0)')
    A('v_readfirstlane_b32 %s, %s' % (sr(s_job), vr(v_b)))
    A('s_barrier')
    A('s_branch ' + L_got)
    A.label(Lsig)
    wait_init()
    A('s_add_u32 %s, %s, %s' % (sr(s0), sr(s_ctr), sr(s_q)))
    A('s_lshl_b32 %s, %s, 7' % (sr(s0), sr(s0)))
    A('s_add_u32 %s, %s, 0x%x' % (sr(s0), sr(s0), CTR))
    A('v_mov_b32 %s, %s' % (vr(v_a), sr(s0)))
    A('v_mov_b32 %s, %s' % (vr(v_b), sr(s_inc)))
    A('s_mov_b64 exec, 1')
    A('buffer_atomic_add %s, %s, %s, 0 offen sc1' % (vr(v_b), vr(v_a), sr(SRD_WS, 4)))
    Lk0 = A.uid('k0')
    A('s_cmp_lg_u32 %s, %d' % (sr(s_ctr), DBG_KV))
    A('s_cbranch_scc1 ' + Lk0)
    A('s_cmp_lg_u32 %s, 0' % sr(s_mt))
    A('s_cbranch_scc1 ' + Lk0)
    A('v_add_u32 %s, %d, %s' % (vr(v_a), (DBG_KV0 - DBG_KV) * 128, vr(v_a)))
    A('v_mov_b32 %s, 2' % vr(v_b))
    A('buffer_atomic_add %s, %s, %s, 0 offen sc1' % (vr(v_b), vr(v_a), sr(SRD_WS, 4)))
    A.label(Lk0)
    A('s_mov_b64 exec, -1')
    A('s_branch ' + Ld2)
    return hi
```

```python
from asmlib import *
from layout import *
import struct, os
from kernels import place_check, shift_ptrs


def f32bits(x):
    return struct.unpack('<I', struct.pack('<f', x))[0]


def env(n, d):
    return int(os.environ.get(n, str(d)))


LDS_RED = 131072
LDS_O = LDS_RED + 16384
LDS_ROLE = LDS_O + 8192
NSTEP = env('NSTEP', 64)
POLL_LIMIT = 400000
NEARX = env('NEARX', 1)
DELAY_C = env('DELAY_C', 4)
DELAY_E = env('DELAY_E', 12)
E_BACK = env('E_BACK', 0)
DELAY_V = env('DELAY_V', 6)
RED_SLEEP = env('RED_SLEEP', 3)
NOE_SLEEP = env('NOE_SLEEP', 10)
NOPF = env('NOPF', 0)
FORCE_SAFE = env('FORCE_SAFE', 0)
PFC = env('PFC', 0)
VS = [int(x) for x in os.environ.get('VS', '8,3,5').split(',')]
A2 = env('A2', 1)
S3 = env('S3', 2)
HINT = env('HINT', 7)
DBGT = env('DBGT', 0)
XMAP = int(os.environ.get('XMAP', '0'), 16)
A1P = env('A1P', 0)
ZE = env('ZE', 1)
CODEPF = env('CODEPF', 2)
PV2 = env('PV2', 1)
PKF = env('PKF', 1)
TLBW = env('TLBW', 0)
TWO = env('TWO', 0)
LITE = [int(x) for x in os.environ.get('LITE', '').split(',') if x]


def gen_chain(A, name, stamps=False, nsteps=NSTEP, worker=None):
    S = Regs('s', 16, 100)
    V = Regs('v', 1, 256)
    SRD_WS, SRD_T = 8, 12
    s_ptr = S.alloc(16, 4)
    (s_w, s_x, s_j, s_t0, s_t1, s_t2, s_t3, s_step, s_slot, s_slot1, s_slot2, s_slotp, s_kx, s_kx2, s_out, s_outp, s_fffe, s_c,
     s_lim, s_cnt, s_vote, s_stamp, s_stl, s_red, s_obm, s_kvo, s_ps, s_ps2, s_m0, s_m1) = [S.alloc() for _ in range(30)]
    s_hf = S.alloc(2, 2)
    s_tm = S.alloc(2, 2)
    s_ta = S.alloc(2, 2)
    s_kvm = S.alloc(2, 2)
    SRD_A = S.alloc(4, 4)
    SRD_B = S.alloc(4, 4)
    SRD_D = S.alloc(4, 4)
    v_lane, v_nu, v_g = V.alloc(), V.alloc(), V.alloc()
    v_t = [V.alloc() for _ in range(8)]
    (va_memr, va_mems, va_rw, va_rr, va_qks, va_rb, va_vs, va_cp, va_prog, va_qkr, va_vmr, va_kx, va_vx, va_ow, va_or, va_pw, va_pr,
     va_pz, va_pd, va_warm, v_idx, v_bias, v_junk, v_kvf, v_junk2, v_sh, va_flg, va_pg) = [V.alloc() for _ in range(28)]
    v_cc = V.alloc(2, 2)
    v_m1 = V.alloc(4, 4)
    v_mask = V.alloc(4, 4)
    v_sel = V.alloc(4, 4)
    v_maskx = V.alloc(4, 4)
    v_ones = V.alloc(4, 4)
    acc1 = V.alloc(4, 4)
    acc2 = V.alloc(4, 4)
    KXA = V.alloc(16, 4)
    KXB = V.alloc(16, 4)
    VXR = V.alloc(32, 4)
    F = V.alloc(64, 4)
    VMR = V.alloc(8, 4)
    QK = V.alloc(16, 4)
    M = V.alloc(16, 4)
    assert KXB == KXA + 16 and VXR == KXA + 32 and F == KXA + 64
    LND = KXA
    AC = F
    HA = F + 32
    RD = F + 48
    SA, SB, SM = F, F + 4, F + 8
    PX, PXH = F + 12, F + 16
    PM, PMH = F + 20, F + 22
    O = F + 28
    LS = F + 44
    v_mx, v_mx2, v_l = F + 48, F + 49, F + 50
    XY = QK
    G = F
    PR = KXA
    RB = KXA + 8
    W1, W2 = 0, 128
    L_exit = name + '_exit'
    nvm = [0]

    def stamp(k):
        if not stamps or (LITE and k not in LITE):
            return
        A('%s %s' % ('s_memrealtime' if stamps == 'rt' else 's_memtime', sr(s_tm, 2)))
        A('s_waitcnt lgkmcnt(0)')
        A('v_mov_b32 %s, %s' % (vr(v_t[7]), sr(s_tm)))
        A('v_mov_b32 %s, %s' % (vr(v_t[6]), sr(s_stl)))
        A('ds_write_b32 %s, %s offset:%d' % (vr(v_t[6]), vr(v_t[7]), 4 * k))
        if k in (0, 2, 6):
            A('v_mov_b32 %s, %s' % (vr(v_t[5]), sr(s_cnt)))
            A('ds_write_b32 %s, %s offset:%d' % (vr(v_t[6]), vr(v_t[5]), 4 * (8 + k)))

    def dbgt(word):
        if not DBGT:
            return
        A('s_memrealtime %s' % sr(s_tm, 2))
        A('s_waitcnt lgkmcnt(0)')
        A('v_mov_b32 %s, %s' % (vr(v_t[7]), sr(s_tm)))
        A('v_mov_b32 %s, %d' % (vr(v_t[6]), word * 4))
        A('s_mov_b64 exec, 1')
        A('buffer_atomic_umax %s, %s, %s, 0 offen sc1' % (vr(v_t[7]), vr(v_t[6]), sr(SRD_T, 4)))
        A('s_mov_b64 exec, -1')

    def srd(dst, ptr, nbytes):
        A('s_mov_b32 %s, %s' % (sr(dst), sr(ptr)))
        A('s_and_b32 %s, %s, 0xffff' % (sr(dst + 1), sr(ptr + 1)))
        A('s_mov_b32 %s, 0x%x' % (sr(dst + 2), nbytes))
        A('s_mov_b32 %s, 0x00020000' % sr(dst + 3))

    A.raw('.p2align 8')
    A.label(name)
    A('s_cmp_ge_u32 s2, 256')
    A('s_cbranch_scc1 ' + L_exit)
    A('s_mov_b32 s%d, 0' % S_MODE)
    if CODEPF:
        Lnp = A.uid('nopf')
        A('s_getpc_b64 s[4:5]')
        A.label(name + '_pc')
        A('s_lshr_b32 s6, s2, 3')
        A('s_lshl_b32 s6, s6, 13')
        A('v_and_b32 v250, 63, v0')
        A('v_lshl_add_u32 v250, v250, 7, s6')
        A('v_min_u32 v250, %s_end-%s_pc-4, v250' % (name, name))
        A('v_mov_b32 v253, s5')
        A('v_add_co_u32 v252, vcc, s4, v250')
        A('v_addc_co_u32 v253, vcc, 0, v253, vcc')
        A('v_readfirstlane_b32 s4, v0')
        A('s_lshr_b32 s4, s4, 6')
        A('s_cmp_lg_u32 s4, 1')
        A('s_cbranch_scc1 ' + Lnp)
        A('global_load_dword v251, v[252:253], off')
        A.label(Lnp)

    def codepf(at_step=None):
        if CODEPF < 2:
            return
        Ls = A.uid('cpf')
        if at_step is not None:
            A('s_cmp_lg_u32 %s, %d' % (sr(s_step), at_step))
            A('s_cbranch_scc1 ' + Ls)
        A('s_cmp_lg_u32 %s, 1' % sr(s_w))
        A('s_cbranch_scc1 ' + Ls)
        A('global_load_dword v251, v[252:253], off')
        A.label(Ls)
    L_restart = name + '_restart'
    A.label(L_restart)
    A('s_load_dwordx2 %s, s[0:1], 8' % sr(s_ptr, 2))
    A('s_load_dwordx4 %s, s[0:1], 16' % sr(s_ptr + 4, 4))
    A('s_load_dwordx4 %s, s[0:1], 32' % sr(s_ptr + 8, 4))
    A('s_load_dwordx4 %s, s[0:1], 88' % sr(s_ptr + 12, 4))
    P_MEM0, P_WQ, P_WK, P_WV, P_WO, P_DBG, P_WS = s_ptr, s_ptr + 4, s_ptr + 6, s_ptr + 8, s_ptr + 10, s_ptr + 12, s_ptr + 14
    A('v_and_b32 %s, 63, v0' % vr(v_lane))
    A('v_lshrrev_b32 %s, 6, v0' % vr(v_t[0]))
    A('v_readfirstlane_b32 %s, %s' % (sr(s_w), vr(v_t[0])))
    A('v_and_b32 %s, 15, %s' % (vr(v_nu), vr(v_lane)))
    A('v_lshrrev_b32 %s, 4, %s' % (vr(v_g), vr(v_lane)))
    A('s_waitcnt lgkmcnt(0)')
    shift_ptrs(A, P_WS, P_DBG, s_t0)
    srd(SRD_WS, P_WS, WS_HALF)
    srd(SRD_T, P_DBG, 128)
    L_role = A.uid('role')
    A('s_lshr_b32 %s, s2, 5' % sr(s_x))
    A('s_and_b32 %s, s2, 31' % sr(s_j))
    A('s_cmp_lg_u32 s%d, 0' % S_MODE)
    A('s_cbranch_scc1 ' + L_role)
    A('s_getreg_b32 %s, hwreg(HW_REG_XCC_ID)' % sr(s_x))
    A('s_and_b32 %s, %s, 7' % (sr(s_x), sr(s_x)))
    if XMAP:
        A('s_lshl_b32 %s, %s, 2' % (sr(s_x), sr(s_x)))
        A('s_lshr_b32 %s, 0x%x, %s' % (sr(s_x), XMAP, sr(s_x)))
        A('s_and_b32 %s, %s, 7' % (sr(s_x), sr(s_x)))
    if FORCE_SAFE:
        A('s_cmp_eq_u32 s2, %d' % FORCE_SAFE)
        A('s_cselect_b32 %s, 1, 0' % sr(s_t0))
        A('s_xor_b32 %s, %s, %s' % (sr(s_x), sr(s_x), sr(s_t0)))
    L_norole = A.uid('norole')
    A('s_cmp_lg_u32 %s, 0' % sr(s_w))
    A('s_cbranch_scc1 ' + L_norole)
    A('s_lshl_b32 %s, %s, 2' % (sr(s_t0), sr(s_x)))
    A('v_mov_b32 %s, %s' % (vr(v_t[0]), sr(s_t0)))
    A('v_mov_b32 %s, 1' % vr(v_t[1]))
    A('s_mov_b64 exec, 1')
    A('buffer_atomic_add %s, %s, %s, 0 offen sc0 sc1' % (vr(v_t[1]), vr(v_t[0]), sr(SRD_T, 4)))
    A('s_waitcnt vmcnt(0)')
    A('v_mov_b32 %s, %d' % (vr(v_t[0]), LDS_ROLE))
    A('ds_write_b32 %s, %s' % (vr(v_t[0]), vr(v_t[1])))
    A('s_waitcnt lgkmcnt(0)')
    A('s_mov_b64 exec, -1')
    A.label(L_norole)
    A('s_barrier')
    A('v_mov_b32 %s, %d' % (vr(v_t[0]), LDS_ROLE))
    A('ds_read_b32 %s, %s' % (vr(v_t[1]), vr(v_t[0])))
    A('s_waitcnt lgkmcnt(0)')
    A('v_readfirstlane_b32 %s, %s' % (sr(s_j), vr(v_t[1])))
    A.label(L_role)
    L_work = name + '_worker'
    A('s_mov_b32 s%d, %s' % (S_VX, sr(s_x)))
    A('s_mov_b32 s3, %s' % sr(s_j))
    A('s_cmp_ge_u32 %s, 4' % sr(s_x))
    A('s_cbranch_scc1 ' + L_work)
    A('s_cmp_ge_u32 %s, 32' % sr(s_j))
    A('s_cbranch_scc1 ' + L_work)
    A('s_mov_b32 s3, -1')
    A('s_lshl_b32 %s, %s, 1' % (sr(s_x), sr(s_x)))
    A('s_lshr_b32 %s, %s, 4' % (sr(s_t0), sr(s_j)))
    A('s_add_u32 %s, %s, %s' % (sr(s_x), sr(s_x), sr(s_t0)))
    A('s_and_b32 %s, %s, 15' % (sr(s_j), sr(s_j)))
    A('s_xor_b32 %s, %s, %s' % (sr(s_red), sr(s_x), sr(s_j)))
    A('s_and_b32 %s, %s, 1' % (sr(s_red), sr(s_red)))
    A('s_lshr_b32 %s, %s, 1' % (sr(s_obm), sr(s_x)))
    A('s_lshl_b32 %s, %s, 4' % (sr(s_obm), sr(s_obm)))
    A('s_add_u32 %s, %s, %s' % (sr(s_obm), sr(s_obm), sr(s_j)))
    A('s_lshl_b32 %s, %s, 10' % (sr(s_obm), sr(s_obm)))
    L_noz = A.uid('noz')
    A('s_or_b32 %s, %s, %s' % (sr(s_t0), sr(s_x), sr(s_j)))
    A('s_xor_b32 %s, %s, 1' % (sr(s_t1), sr(s_w)))
    A('s_or_b32 %s, %s, %s' % (sr(s_t0), sr(s_t0), sr(s_t1)))
    A('s_cmp_lg_u32 %s, 0' % sr(s_t0))
    A('s_cbranch_scc1 ' + L_noz)
    A('v_lshlrev_b32 %s, 7, %s' % (vr(v_t[0]), vr(v_lane)))
    A('v_mov_b32 %s, 0' % vr(v_t[1]))
    for i in range(4):
        A('s_mov_b32 %s, 0x%x' % (sr(s_t0), CTR + i * 8192))
        A('buffer_store_dword %s, %s, %s, %s offen sc1' % (vr(v_t[1]), vr(v_t[0]), sr(SRD_WS, 4), sr(s_t0)))
    A('s_waitcnt vmcnt(0)')
    A('v_mov_b32 %s, %d' % (vr(v_t[0]), DBG_INIT))
    A('v_mov_b32 %s, 1' % vr(v_t[1]))
    A('s_mov_b64 exec, 1')
    A('buffer_store_dword %s, %s, %s, 0 offen sc1' % (vr(v_t[1]), vr(v_t[0]), sr(SRD_T, 4)))
    A('s_mov_b64 exec, -1')
    dbgt(10)
    A.label(L_noz)
    for i in range(4):
        A('v_mov_b32 %s, -1' % vr(v_m1 + i))
    l16 = v_t[2]
    A('v_lshlrev_b32 %s, 4, %s' % (vr(l16), vr(v_lane)))
    s_ob = s_t3
    A('s_lshl_b32 %s, %s, 4' % (sr(s_ob), sr(s_x)))
    A('s_add_u32 %s, %s, %s' % (sr(s_ob), sr(s_ob), sr(s_j)))
    A('s_lshl_b32 %s, %s, 10' % (sr(s_ob), sr(s_ob)))

    A('s_lshl_b32 %s, %s, 17' % (sr(s_t0), sr(s_w)))
    A('s_add_u32 %s, %s, %s' % (sr(s_t2), sr(s_t0), sr(s_ob)))
    A('s_add_u32 %s, %s, %s' % (sr(s_t0), sr(s_t0), sr(s_obm)))
    Lf1, Lf2 = A.uid('f1'), A.uid('f2')
    A('s_cmp_lg_u32 s%d, 0' % S_MODE)
    A('s_cbranch_scc1 ' + Lf1)
    for sc in ('', ' sc1'):
        if sc:
            A.label(Lf1)
        for base, so in ((QKI, s_t2), (VMI, s_t2), (MEMI, s_t0)):
            A('s_add_u32 %s, %s, 0x%x' % (sr(s_t1), sr(so), base))
            A('buffer_store_dwordx4 %s, %s, %s, %s offen%s' % (vr(v_m1, 4), vr(l16), sr(SRD_WS, 4), sr(s_t1), sc))
        if not sc:
            A('s_branch ' + Lf2)
    A.label(Lf2)
    A('s_lshl_b32 %s, %s, 14' % (sr(s_t0), sr(s_j)))
    A('s_lshl_b32 %s, %s, 11' % (sr(s_t1), sr(s_w)))
    A('s_add_u32 %s, %s, %s' % (sr(s_t0), sr(s_t0), sr(s_t1)))
    A('s_add_u32 %s, %s, 0x%x' % (sr(s_t0), sr(s_t0), PART))
    A('v_add_u32 %s, %s, %s' % (vr(va_pr), sr(s_t0), vr(l16)))
    A('s_lshl_b32 %s, %s, 8' % (sr(s_t1), sr(s_x)))
    A('v_add_u32 %s, %s, %s' % (vr(va_pw), sr(s_t1), vr(va_pr)))
    A('v_add_u32 %s, 8192, %s' % (vr(va_pz), vr(va_pw)))
    A('s_mov_b64 exec, 0xffff')
    for sl in range(4):
        A('s_mov_b32 %s, 0x%x' % (sr(s_t1), sl * 0x40000))
        A('buffer_store_dwordx4 %s, %s, %s, %s offen sc1' % (vr(v_m1, 4), vr(va_pw), sr(SRD_WS, 4), sr(s_t1)))
        A('buffer_store_dwordx4 %s, %s, %s, %s offen sc1' % (vr(v_m1, 4), vr(va_pz), sr(SRD_WS, 4), sr(s_t1)))
    A('s_mov_b64 exec, -1')
    A('s_lshr_b32 %s, %s, 1' % (sr(s_t0), sr(s_x)))
    A('s_lshl_b32 %s, %s, 8' % (sr(s_t0), sr(s_t0)))
    A('s_add_u32 %s, %s, 0x%x' % (sr(s_t0), sr(s_t0), FLG))
    A('v_lshl_add_u32 %s, %s, 2, %s' % (vr(va_flg), vr(v_nu), sr(s_t0)))
    Lfr = A.uid('fr')
    A('s_cmp_eq_u32 %s, 0' % sr(s_red))
    A('s_cbranch_scc1 ' + Lfr)
    A('s_and_b32 %s, %s, 1' % (sr(s_t1), sr(s_x)))
    A('s_lshl_b32 %s, %s, 5' % (sr(s_t1), sr(s_t1)))
    A('s_add_u32 %s, %s, %s' % (sr(s_t0), sr(s_t0), sr(s_t1)))
    A('s_lshr_b32 %s, %s, 1' % (sr(s_t1), sr(s_j)))
    A('s_lshl_b32 %s, %s, 2' % (sr(s_t1), sr(s_t1)))
    A('s_add_u32 %s, %s, %s' % (sr(s_t0), sr(s_t0), sr(s_t1)))
    A('v_min_u32 %s, 1, v0' % vr(va_flg))
    A('v_lshl_add_u32 %s, %s, 28, %s' % (vr(va_flg), vr(va_flg), sr(s_t0)))
    A('buffer_store_dword %s, %s, %s, 0 offen sc1' % (vr(v_m1), vr(va_flg), sr(SRD_WS, 4)))
    A.label(Lfr)
    L_nocal, L_nocal2 = A.uid('nocal'), A.uid('nocal2')
    A('s_mov_b32 %s, 1' % sr(s_vote))
    A('s_cmp_lt_u32 %s, 8' % sr(s_j))
    A('s_cbranch_scc1 ' + L_nocal2)
    A('s_bitcmp1_b32 %s, 0' % sr(s_x))
    A('s_cbranch_scc1 ' + L_nocal2)
    A('s_waitcnt vmcnt(0)')
    A('s_barrier')
    A('s_cmp_lg_u32 %s, 0' % sr(s_w))
    A('s_cbranch_scc1 ' + L_nocal)
    A('s_mov_b32 %s, -1' % sr(s_m0))
    A('s_mov_b32 %s, -1' % sr(s_m1))
    A('s_mov_b64 exec, 0xffff')
    for rep in range(3):
        for c in range(2):
            A('s_mov_b32 %s, %d' % (sr(s_t1), 0x40000 + rep * 0x40000))
            A('s_memtime %s' % sr(s_ta, 2))
            A('s_waitcnt lgkmcnt(0)')
            A('buffer_store_dwordx4 %s, %s, %s, %s offen sc1' % (vr(v_m1, 4), vr(va_pz if c else va_pw), sr(SRD_WS, 4), sr(s_t1)))
            A('s_waitcnt vmcnt(0)')
            A('s_memtime %s' % sr(s_tm, 2))
            A('s_waitcnt lgkmcnt(0)')
            A('s_sub_u32 %s, %s, %s' % (sr(s_t2), sr(s_tm), sr(s_ta)))
            A('s_min_u32 %s, %s, %s' % (sr(s_m1 if c else s_m0), sr(s_m1 if c else s_m0), sr(s_t2)))
    A('s_cmp_lt_u32 %s, %s' % (sr(s_m1), sr(s_m0)))
    A('s_cselect_b32 %s, 0x10001, 1' % sr(s_vote))
    if TWO:
        A('s_cselect_b32 %s, 0x10000, 0' % sr(s_vote))
        A('s_lshl_b32 %s, %s, 1' % (sr(s_t2), sr(s_x)))
        A('s_lshl_b32 %s, %s, %s' % (sr(s_vote), sr(s_vote), sr(s_t2)))
        A('s_add_u32 %s, %s, 1' % (sr(s_vote), sr(s_vote)))
    A('s_mov_b64 exec, -1')
    A.label(L_nocal)
    A('s_barrier')
    A.label(L_nocal2)

    s_col = s_t2
    A('s_lshr_b32 %s, %s, 4' % (sr(s_col), sr(s_ob)))
    vw = v_t[4]
    A('v_lshrrev_b32 %s, 2, %s' % (vr(vw), vr(v_lane)))
    A('v_lshlrev_b32 %s, 13, %s' % (vr(vw), vr(vw)))
    A('v_and_b32 %s, 3, %s' % (vr(v_t[5]), vr(v_lane)))
    A('v_lshl_add_u32 %s, %s, 4, %s' % (vr(vw), vr(v_t[5]), vr(vw)))
    A('s_lshl_b32 %s, %s, 17' % (sr(s_t0), sr(s_w)))
    A('s_add_u32 %s, %s, %s' % (sr(s_col), sr(s_col), sr(s_t0)))
    A('s_lshl_b32 %s, %s, 10' % (sr(s_t0), sr(s_w)))
    for mi, P in enumerate((P_WQ, P_WK)):
        srd(SRD_A, P, 1024 * 4096 * 2)
        for i in range(16):
            A('s_add_u32 m0, %s, %d' % (sr(s_t0), mi * 65536 + i * 4096))
            A('s_add_u32 %s, %s, %d' % (sr(s_t1), sr(s_col), i * 4 * 131072))
            A('buffer_load_dwordx4 %s, %s, %s offen lds' % (vr(vw), sr(SRD_A, 4), sr(s_t1)))
        if mi == 0:
            A('s_waitcnt vmcnt(16)')
            A('s_barrier')
            L_nord = A.uid('nord')
            A('s_cmp_lg_u32 %s, 0' % sr(s_w))
            A('s_cbranch_scc1 ' + L_nord)
            A('v_mov_b32 %s, 32' % vr(acc2))
            A('v_mov_b32 %s, %s' % (vr(acc2 + 1), sr(s_vote)))
            A('s_mov_b64 exec, 1')
            A('buffer_atomic_add %s, %s, %s, 0 offen sc1' % (vr(acc2 + 1), vr(acc2), sr(SRD_T, 4)))
            A('s_mov_b64 exec, -1')
            A.label(L_nord)
            A('s_nop 4')
    srd(SRD_D, P_MEM0, 8 * 1024 * 2)
    vm0 = v_t[6]
    A('v_and_b32 %s, 7, %s' % (vr(vm0), vr(v_nu)))
    A('v_lshlrev_b32 %s, 11, %s' % (vr(vm0), vr(vm0)))
    A('v_lshl_add_u32 %s, %s, 5, %s' % (vr(vm0), vr(v_g), vr(vm0)))
    A('v_lshrrev_b32 %s, 3, %s' % (vr(v_t[7]), vr(v_nu)))
    A('v_lshl_add_u32 %s, %s, 2, %s' % (vr(vm0), vr(v_t[7]), vr(vm0)))
    A('s_lshl_b32 %s, %s, 9' % (sr(s_t1), sr(s_w)))
    for k in range(4):
        for a in range(4):
            A('buffer_load_dword %s, %s, %s, %s offen offset:%d' % (vr(M + 4 * k + a), vr(vm0), sr(SRD_D, 4), sr(s_t1), k * 128 + a * 8))

    v2 = v_t[5]
    LwN, LwJ = A.uid('wN'), A.uid('wJ')
    A('s_cmp_lg_u32 %s, 0' % sr(s_red))
    A('s_cbranch_scc1 ' + LwN)
    srd(SRD_B, P_WV, 1024 * 4096 * 2)
    A('v_lshrrev_b32 %s, 3, %s' % (vr(v2), vr(v_lane)))
    A('v_lshlrev_b32 %s, 13, %s' % (vr(v2), vr(v2)))
    A('v_and_b32 %s, 7, %s' % (vr(v_t[6]), vr(v_lane)))
    A('v_lshl_add_u32 %s, %s, 4, %s' % (vr(v2), vr(v_t[6]), vr(v2)))
    A('s_lshr_b32 %s, %s, 4' % (sr(s_t2), sr(s_ob)))
    A('s_andn2_b32 %s, %s, 64' % (sr(s_t2), sr(s_t2)))
    A('s_lshl_b32 %s, %s, 16' % (sr(s_t1), sr(s_w)))
    A('s_add_u32 %s, %s, %s' % (sr(s_t2), sr(s_t2), sr(s_t1)))
    A('s_mov_b32 %s, %d' % (sr(s_t0), 4 * 65536))
    A('s_branch ' + LwJ)
    A.label(LwN)
    srd(SRD_B, P_WO, 4096 * 1024 * 2)
    A('v_lshlrev_b32 %s, 11, %s' % (vr(v2), vr(v_g)))
    A('v_lshl_add_u32 %s, %s, 4, %s' % (vr(v2), vr(v_nu), vr(v2)))
    A('s_lshl_b32 %s, %s, 20' % (sr(s_t2), sr(s_x)))
    A('s_lshr_b32 %s, %s, 1' % (sr(s_t1), sr(s_j)))
    A('s_lshl_b32 %s, %s, 8' % (sr(s_t1), sr(s_t1)))
    A('s_add_u32 %s, %s, %s' % (sr(s_t2), sr(s_t2), sr(s_t1)))
    A('s_lshl_b32 %s, %s, 13' % (sr(s_t1), sr(s_w)))
    A('s_add_u32 %s, %s, %s' % (sr(s_t2), sr(s_t2), sr(s_t1)))
    A('s_mov_b32 %s, %d' % (sr(s_t0), 4 * 8192))
    A.label(LwJ)
    A('s_mov_b32 %s, %s' % (sr(s_m0), sr(s_t2)))
    A('s_mov_b32 %s, %s' % (sr(s_m1), sr(s_t0)))
    A('s_mov_b32 %s, 0xfffefffe' % sr(s_fffe))
    A('s_mov_b32 %s, 0x%x' % (sr(s_c), f32bits(128 ** -0.5 * 1.4426950408889634)))
    A('s_mov_b32 %s, %d' % (sr(s_lim), POLL_LIMIT))
    A('v_mov_b32 %s, %s' % (vr(v_cc), sr(s_c)))
    A('v_mov_b32 %s, %s' % (vr(v_cc + 1), sr(s_c)))
    A('s_mov_b32 %s, 0xff00ff00' % sr(s_hf))
    A('s_mov_b32 %s, 0xff00ff00' % sr(s_hf + 1))
    ta, tb, tc = v_t[0], v_t[1], v_t[7]
    A('v_mov_b32 %s, 0x%x' % (vr(ta), f32bits(-1e30)))
    for i in range(4):
        A('v_cndmask_b32 %s, 0, %s, %s' % (vr(v_maskx + i), vr(ta), sr(s_hf, 2)))
    A('v_cmp_gt_u32 vcc, 32, %s' % vr(v_lane))
    for i in range(4):
        A('v_cndmask_b32 %s, %s, %s, vcc' % (vr(v_mask + i), vr(v_maskx), vr(ta)))
    A('v_mov_b32 %s, 0x%x' % (vr(ta), f32bits(-3e38)))
    A('v_cndmask_b32 %s, %s, 0, %s' % (vr(v_bias), vr(ta), sr(s_hf, 2)))
    for i in range(4):
        A('v_mov_b32 %s, 0x3f803f80' % vr(v_ones + i))
    A('v_mov_b32 %s, 0x4444' % vr(ta))
    A('v_mov_b32 %s, 0xeeee' % vr(tb))
    A('v_cndmask_b32 %s, %s, %s, %s' % (vr(v_idx), vr(ta), vr(tb), sr(s_hf, 2)))
    A('v_bfe_u32 %s, %s, 2, 1' % (vr(ta), vr(v_nu)))
    A('v_bfe_u32 %s, %s, 1, 1' % (vr(tb), vr(v_nu)))
    A('v_lshl_add_u32 %s, %s, 1, %s' % (vr(ta), vr(tb), vr(ta)))
    A('v_and_b32 %s, 1, %s' % (vr(tb), vr(v_nu)))
    A('v_lshlrev_b32 %s, 4, %s' % (vr(tb), vr(tb)))
    A('v_mov_b32 %s, 0x3f80' % vr(tc))
    A('v_lshlrev_b32 %s, %s, %s' % (vr(tb), vr(tb), vr(tc)))
    for d in range(4):
        A('v_cmp_eq_u32 vcc, %d, %s' % (d, vr(ta)))
        A('v_cndmask_b32 %s, 0, %s, vcc' % (vr(v_sel + d), vr(tb)))

    s_p, s_wh = s_t0, s_t1
    A('s_and_b32 %s, %s, 1' % (sr(s_p), sr(s_w)))
    A('s_lshr_b32 %s, %s, 1' % (sr(s_wh), sr(s_w)))
    A('s_lshl_b32 %s, %s, 12' % (sr(s_t2), sr(s_w)))
    A('v_add_u32 %s, %s, %s' % (vr(ta), sr(s_t2), vr(l16)))
    A('s_lshr_b32 %s, %s, 1' % (sr(s_t2), sr(s_x)))
    A('s_lshl_b32 %s, %s, 14' % (sr(s_t2), sr(s_t2)))
    A('s_add_u32 %s, %s, 0x%x' % (sr(s_t2), sr(s_t2), MEMI))
    A('v_add_u32 %s, %s, %s' % (vr(va_memr), sr(s_t2), vr(ta)))
    A('s_lshl_b32 %s, %s, 14' % (sr(s_t2), sr(s_x)))
    A('s_add_u32 %s, %s, 0x%x' % (sr(s_t2), sr(s_t2), QKI))
    A('v_add_u32 %s, %s, %s' % (vr(va_qkr), sr(s_t2), vr(ta)))
    A('s_lshl_b32 %s, %s, 12' % (sr(s_cnt), sr(s_w)))
    A('s_add_u32 %s, %s, %s' % (sr(s_t2), sr(s_t2), sr(s_cnt)))
    A('s_add_u32 %s, %s, 0x%x' % (sr(s_t2), sr(s_t2), VMI - QKI))
    A('v_and_b32 %s, 31, %s' % (vr(va_vmr), vr(v_lane)))
    A('v_lshlrev_b32 %s, 4, %s' % (vr(va_vmr), vr(va_vmr)))
    A('v_lshrrev_b32 %s, 5, %s' % (vr(ta), vr(v_lane)))
    A('v_xor_b32 %s, 1, %s' % (vr(ta), vr(ta)))
    A('v_lshl_add_u32 %s, %s, 11, %s' % (vr(va_vmr), vr(ta), vr(va_vmr)))
    A('v_add_u32 %s, %s, %s' % (vr(va_vmr), sr(s_t2), vr(va_vmr)))
    A('s_lshl_b32 %s, %s, 12' % (sr(s_t2), sr(s_w)))
    A('s_add_u32 %s, %s, %d' % (sr(s_t2), sr(s_t2), LDS_RED))
    A('v_lshl_add_u32 %s, %s, 3, %s' % (vr(va_rw), vr(v_lane), sr(s_t2)))
    A('v_lshrrev_b32 %s, 5, %s' % (vr(ta), vr(v_lane)))
    A('v_lshlrev_b32 %s, 13, %s' % (vr(ta), vr(ta)))
    A('v_and_b32 %s, 31, %s' % (vr(tb), vr(v_lane)))
    A('v_lshl_add_u32 %s, %s, 4, %s' % (vr(ta), vr(tb), vr(ta)))
    A('s_lshl_b32 %s, %s, 9' % (sr(s_t2), sr(s_w)))
    A('s_add_u32 %s, %s, %d' % (sr(s_t2), sr(s_t2), LDS_RED))
    A('v_add_u32 %s, %s, %s' % (vr(va_rr), sr(s_t2), vr(ta)))
    vR, vcp, vH = tc, acc1, acc1 + 1
    A('v_bfe_u32 %s, %s, 3, 1' % (vr(ta), vr(v_lane)))
    A('v_bfe_u32 %s, %s, 4, 1' % (vr(tb), vr(v_lane)))
    A('v_lshlrev_b32 %s, 2, %s' % (vr(vR), vr(ta)))
    A('v_lshl_add_u32 %s, %s, 1, %s' % (vr(vR), vr(tb), vr(vR)))
    A('v_and_b32 %s, 7, %s' % (vr(vcp), vr(v_lane)))
    A('v_lshrrev_b32 %s, 5, %s' % (vr(vH), vr(v_lane)))
    A('v_lshlrev_b32 %s, 8, %s' % (vr(va_vs), vr(ta)))
    A('v_lshl_add_u32 %s, %s, 5, %s' % (vr(va_vs), vr(vcp), vr(va_vs)))
    A('v_lshl_add_u32 %s, %s, 4, %s' % (vr(va_vs), vr(vH), vr(va_vs)))
    A('v_lshl_add_u32 %s, %s, 2, %s' % (vr(va_vs), vr(tb), vr(va_vs)))
    A('s_andn2_b32 %s, %s, 1024' % (sr(s_t2), sr(s_ob)))
    A('s_lshl_b32 %s, %s, 10' % (sr(s_cnt), sr(s_wh)))
    A('s_add_u32 %s, %s, %s' % (sr(s_t2), sr(s_t2), sr(s_cnt)))
    A('s_lshl_b32 %s, %s, 3' % (sr(s_cnt), sr(s_p)))
    A('s_add_u32 %s, %s, %s' % (sr(s_t2), sr(s_t2), sr(s_cnt)))
    A('s_add_u32 %s, %s, 0x%x' % (sr(s_t2), sr(s_t2), VMI))
    A('v_add_u32 %s, %s, %s' % (vr(va_vs), sr(s_t2), vr(va_vs)))
    A('v_bfe_u32 %s, %s, 1, 1' % (vr(ta), vr(vcp)))
    A('v_lshlrev_b32 %s, 8, %s' % (vr(va_qks), vr(ta)))
    A('v_add_u32 %s, %s, %s' % (vr(vR), vr(vR), vr(vH)))
    A('v_lshl_add_u32 %s, %s, 4, %s' % (vr(va_qks), vr(vR), vr(va_qks)))
    A('v_lshrrev_b32 %s, 2, %s' % (vr(ta), vr(vcp)))
    A('v_lshl_add_u32 %s, %s, 3, %s' % (vr(va_qks), vr(ta), vr(va_qks)))
    A('v_and_b32 %s, 1, %s' % (vr(ta), vr(vcp)))
    A('v_lshl_add_u32 %s, %s, 2, %s' % (vr(va_qks), vr(ta), vr(va_qks)))
    A('s_lshl_b32 %s, %s, 9' % (sr(s_t2), sr(s_p)))
    A('v_add_u32 %s, %s, %s' % (vr(va_qks), sr(s_t2), vr(va_qks)))
    A('s_lshl_b32 %s, %s, 7' % (sr(s_t2), sr(s_wh)))
    A('s_add_u32 %s, %s, %s' % (sr(s_t2), sr(s_t2), sr(s_ob)))
    A('s_add_u32 %s, %s, 0x%x' % (sr(s_t2), sr(s_t2), QKI))
    A('v_add_u32 %s, %s, %s' % (vr(va_qks), sr(s_t2), vr(va_qks)))
    A('v_lshlrev_b32 %s, 4, %s' % (vr(va_mems), vr(v_nu)))
    A('v_lshl_add_u32 %s, %s, 2, %s' % (vr(va_mems), vr(v_g), vr(va_mems)))
    A('s_lshl_b32 %s, %s, 8' % (sr(s_t2), sr(s_w)))
    A('s_add_u32 %s, %s, %s' % (sr(s_t2), sr(s_t2), sr(s_obm)))
    A('s_add_u32 %s, %s, 0x%x' % (sr(s_t2), sr(s_t2), MEMI))
    A('v_add_u32 %s, %s, %s' % (vr(va_mems), sr(s_t2), vr(va_mems)))
    A('s_lshl_b32 %s, %s, 10' % (sr(s_t2), sr(s_wh)))
    A('s_xor_b32 %s, %s, %s' % (sr(s_kvo), sr(s_t2), sr(s_ob)))
    A('s_lshl_b32 %s, %s, 19' % (sr(s_t2), sr(s_p)))
    A('s_add_u32 %s, %s, %s' % (sr(s_t2), sr(s_t2), sr(s_kvo)))
    A('s_add_u32 %s, %s, 0x%x' % (sr(s_t2), sr(s_t2), QKI))
    A('s_lshl_b32 %s, %s, 23' % (sr(s_cnt), sr(s_p)))
    A('s_add_u32 %s, %s, %s' % (sr(s_cnt), sr(s_cnt), sr(s_kvo)))
    A('s_add_u32 %s, %s, 0x%x' % (sr(s_cnt), sr(s_cnt), KMO))
    assert VMO - KMO == 1 << 23 and VMI - QKI == 1 << 19
    A('v_add_u32 %s, %s, %s' % (vr(va_rb), sr(s_t2), vr(l16)))
    A('v_add_u32 %s, %s, %s' % (vr(va_cp), sr(s_cnt), vr(l16)))
    A('s_or_b32 %s, %s, %s' % (sr(s_t2), sr(s_x), sr(s_j)))
    A('s_xor_b32 %s, %s, 3' % (sr(s_cnt), sr(s_w)))
    A('s_or_b32 %s, %s, %s' % (sr(s_t2), sr(s_t2), sr(s_cnt)))
    A('s_cmp_eq_u32 %s, 0' % sr(s_t2))
    A('s_mov_b32 %s, 0x%x' % (sr(s_cnt), CTR + DBG_PROG * 128))
    A('s_cselect_b32 %s, %s, 0x%x' % (sr(s_t2), sr(s_cnt), WS_BYTES))
    A('v_and_b32 %s, 3, %s' % (vr(v_sh), vr(v_lane)))
    A('v_lshlrev_b32 %s, 7, %s' % (vr(v_sh), vr(v_sh)))
    A('v_add_u32 %s, %s, %s' % (vr(va_prog), sr(s_t2), vr(v_sh)))
    A('v_cmp_lt_u32 vcc, 3, %s' % vr(v_lane))
    A('v_mov_b32 %s, 0x%x' % (vr(ta), WS_BYTES))
    A('v_cndmask_b32 %s, %s, %s, vcc' % (vr(va_prog), vr(va_prog), vr(ta)))
    A('v_add_u32 %s, 0x%x, %s' % (vr(v_sh), CTR, vr(v_sh)))
    s_h = s_t2
    A('s_lshl_b32 %s, %s, 2' % (sr(s_h), sr(s_x)))
    A('s_add_u32 %s, %s, %s' % (sr(s_h), sr(s_h), sr(s_w)))
    A('s_lshl_b32 %s, %s, 13' % (sr(s_h), sr(s_h)))
    A('v_and_b32 %s, 1, %s' % (vr(ta), vr(v_g)))
    A('v_lshrrev_b32 %s, 1, %s' % (vr(tb), vr(v_g)))
    A('v_lshlrev_b32 %s, 9, %s' % (vr(va_kx), vr(ta)))
    A('v_lshl_add_u32 %s, %s, 10, %s' % (vr(va_kx), vr(tb), vr(va_kx)))
    A('v_add_u32 %s, %s, %s' % (vr(va_kx), sr(s_h), vr(va_kx)))
    A('v_lshl_add_u32 %s, %s, 4, %s' % (vr(va_vx), vr(v_nu), vr(va_kx)))
    A('v_add_u32 %s, 0x%x, %s' % (vr(va_vx), VX, vr(va_vx)))
    A('v_lshrrev_b32 %s, 3, %s' % (vr(ta), vr(v_nu)))
    A('v_lshl_add_u32 %s, %s, 8, %s' % (vr(va_kx), vr(ta), vr(va_kx)))
    A('v_and_b32 %s, 7, %s' % (vr(ta), vr(v_nu)))
    A('v_lshl_add_u32 %s, %s, 4, %s' % (vr(va_kx), vr(ta), vr(va_kx)))
    A('v_add_u32 %s, 0x%x, %s' % (vr(va_kx), KX, vr(va_kx)))
    A('s_lshr_b32 %s, %s, 1' % (sr(s_t2), sr(s_j)))
    A('s_lshl_b32 %s, %s, 2' % (sr(s_t2), sr(s_t2)))
    A('s_add_u32 %s, %s, %s' % (sr(s_t2), sr(s_t2), sr(s_w)))
    A('s_and_b32 %s, %s, 15' % (sr(s_cnt), sr(s_t2)))
    A('s_lshl_b32 %s, %s, 11' % (sr(s_cnt), sr(s_cnt)))
    A('s_lshr_b32 %s, %s, 4' % (sr(s_t2), sr(s_t2)))
    A('s_lshl_b32 %s, %s, 24' % (sr(s_t2), sr(s_t2)))
    assert VX - KX == 1 << 24
    A('s_add_u32 %s, %s, %s' % (sr(s_t2), sr(s_t2), sr(s_cnt)))
    A('s_lshl_b32 %s, %s, 15' % (sr(s_cnt), sr(s_x)))
    A('s_add_u32 %s, %s, %s' % (sr(s_t2), sr(s_t2), sr(s_cnt)))
    A('s_add_u32 %s, %s, 0x%x' % (sr(s_t2), sr(s_t2), KX))
    A('v_lshl_add_u32 %s, %s, 5, %s' % (vr(va_warm), vr(v_lane), sr(s_t2)))
    A('v_add_u32 %s, %d, %s' % (vr(va_or), LDS_O, vr(l16)))
    A('v_lshrrev_b32 %s, 3, %s' % (vr(ta), vr(v_nu)))
    A('v_mul_u32_u24 %s, %d, %s' % (vr(ta), 1024 - 128, vr(ta)))
    A('s_lshl_b32 %s, %s, 11' % (sr(s_t2), sr(s_w)))
    A('v_add3_u32 %s, %s, %s, %s' % (vr(va_ow), sr(s_t2), vr(va_or), vr(ta)))
    if stamps:
        A('s_lshl_b32 %s, %s, 4' % (sr(s_stamp), sr(s_ob)))
        A('s_lshl_b32 %s, %s, 12' % (sr(s_t2), sr(s_w)))
        A('s_add_u32 %s, %s, %s' % (sr(s_stamp), sr(s_stamp), sr(s_t2)))
        A('s_add_u32 %s, %s, 0x%x' % (sr(s_stamp), sr(s_stamp), STAMP))
        A('s_add_u32 %s, %s, 65536' % (sr(s_stl), sr(s_t2)))

    vq1, vq2, vr_, vcq = acc1, acc1 + 1, acc1 + 2, acc1 + 3
    A('v_bfe_u32 %s, %s, 2, 2' % (vr(vr_), vr(v_lane)))
    A('v_and_b32 %s, 3, %s' % (vr(vcq), vr(v_lane)))
    A('v_lshl_add_u32 %s, %s, 3, %s' % (vr(vq2), vr(v_g), vr(vr_)))
    A('v_lshlrev_b32 %s, 6, %s' % (vr(vq1), vr(vq2)))
    A('v_lshl_add_u32 %s, %s, 3, %s' % (vr(vq1), vr(vcq), vr(vq1)))
    A('s_lshl_b32 %s, %s, 14' % (sr(s_t2), sr(s_w)))
    A('v_add_u32 %s, %s, %s' % (vr(vq1), sr(s_t2), vr(vq1)))
    A('v_add_u32 %s, 65536, %s' % (vr(tb), vr(vq1)))
    def ld2(i):
        A('buffer_load_dwordx4 %s, %s, %s, %s offen' % (vr(LND + 4 * i, 4), vr(v2), sr(SRD_B, 4), sr(s_m0)))
        A('s_add_u32 %s, %s, %s' % (sr(s_m0), sr(s_m0), sr(s_m1)))
    for i in range(8):
        ld2(i)
    A('s_waitcnt vmcnt(8)')
    A('s_barrier')
    n2 = 8
    for kk in range(4):
        for tl in range(4):
            for bh in range(2):
                for q in range(2):
                    A('ds_read_b64_tr_b16 %s, %s offset:%d' % (ar(W1 + 8 * (kk * 4 + tl) + 4 * bh + 2 * q, 2), vr(tb if tl >= 2 else vq1), kk * 4096 + bh * 2048 + q * 256 + (tl & 1) * 32))
            ld2(n2)
            n2 += 1
            A('s_waitcnt lgkmcnt(8)')
    A('s_waitcnt lgkmcnt(0)')
    A('s_barrier')
    A('s_lshl_b32 %s, %s, 10' % (sr(s_t2), sr(s_w)))
    A('v_add_u32 %s, %s, %s' % (vr(ta), sr(s_t2), vr(l16)))
    A('v_add_u32 %s, 65536, %s' % (vr(tb), vr(ta)))
    for i in range(32):
        if n2 < 32 and i % 2 == 0:
            ld2(n2)
            n2 += 1
        A('s_waitcnt vmcnt(%d)' % (n2 - 1 - i))
        A('ds_write_b128 %s, %s offset:%d' % (vr(ta if i < 16 else tb), vr(LND + 4 * i, 4), (i & 15) * 4096))
        if i & 3 == 3:
            A('s_waitcnt lgkmcnt(8)')
    A('s_waitcnt lgkmcnt(0)')
    A('s_barrier')
    codepf()
    LtN, LtJ = A.uid('tN'), A.uid('tJ')
    A('s_cmp_lg_u32 %s, 0' % sr(s_red))
    A('s_cbranch_scc1 ' + LtN)
    A('v_lshlrev_b32 %s, 7, %s' % (vr(ta), vr(vq2)))
    A('v_lshl_add_u32 %s, %s, 3, %s' % (vr(ta), vr(vcq), vr(ta)))
    A('s_lshl_b32 %s, %s, 15' % (sr(s_t2), sr(s_w)))
    A('v_add_u32 %s, %s, %s' % (vr(ta), sr(s_t2), vr(ta)))
    for kk in range(4):
        for tv in range(4):
            for bh in range(2):
                for q in range(2):
                    A('ds_read_b64_tr_b16 %s, %s offset:%d' % (ar(W2 + 8 * (kk * 4 + tv) + 4 * bh + 2 * q, 2), vr(ta), kk * 8192 + bh * 4096 + q * 512 + tv * 32))
            A('s_waitcnt lgkmcnt(8)')
    A('s_branch ' + LtJ)
    A.label(LtN)
    A('v_and_b32 %s, 1, %s' % (vr(ta), vr(v_g)))
    A('v_lshl_add_u32 %s, %s, 5, %s' % (vr(ta), vr(ta), vr(vr_)))
    A('v_lshrrev_b32 %s, 1, %s' % (vr(tb), vr(v_g)))
    A('v_lshl_add_u32 %s, %s, 2, %s' % (vr(ta), vr(tb), vr(ta)))
    A('v_lshlrev_b32 %s, 8, %s' % (vr(ta), vr(ta)))
    A('v_lshl_add_u32 %s, %s, 3, %s' % (vr(ta), vr(vcq), vr(ta)))
    A('s_lshl_b32 %s, %s, 5' % (sr(s_t2), sr(s_w)))
    A('v_add_u32 %s, %s, %s' % (vr(ta), sr(s_t2), vr(ta)))
    A('v_add_u32 %s, 65536, %s' % (vr(tb), vr(ta)))
    for k in range(8):
        for u in range(2):
            for bh in range(2):
                for q in range(2):
                    A('ds_read_b64_tr_b16 %s, %s offset:%d' % (ar(W2 + 8 * (k * 2 + u) + 4 * bh + 2 * q, 2), vr(ta if k < 4 else tb), (k & 3) * 16384 + q * 4096 + bh * 2048 + u * 128))
            A('s_waitcnt lgkmcnt(8)')
    A.label(LtJ)
    A('s_waitcnt lgkmcnt(0)')
    A('s_barrier')

    def pf_ops():
        o = []
        for eb in range(4):
            so = s_kx if eb < 2 else s_kx2
            o.append('buffer_load_dwordx4 %s, %s, %s, %s offen offset:%d sc1' % (vr(KXA + 4 * eb, 4), vr(va_kx), sr(SRD_WS, 4), sr(so), (eb & 1) * 2048))
            o.append('buffer_load_dwordx4 %s, %s, %s, %s offen offset:%d sc1' % (vr(KXB + 4 * eb, 4), vr(va_kx), sr(SRD_WS, 4), sr(so), (eb & 1) * 2048 + 128))
        for T in range(8):
            eb = T >> 1
            so = s_kx if eb < 2 else s_kx2
            o.append('buffer_load_dwordx4 %s, %s, %s, %s offen offset:%d sc1' % (vr(VXR + 4 * T, 4), vr(va_vx), sr(SRD_WS, 4), sr(so), (eb & 1) * 2048 + (T & 1) * 256))
        return o

    def emit(t):
        A(t)
        if t.startswith('buffer_'):
            nvm[0] += 1

    A('s_mov_b32 %s, 0' % sr(s_step))
    A('s_mov_b32 %s, 0x40404044' % sr(s_kvm))
    A('s_mov_b32 %s, 0x00404040' % sr(s_kvm + 1))
    A('s_mov_b32 %s, 0' % sr(s_slot))
    A('s_mov_b32 %s, 0x20000' % sr(s_slot1))
    A('s_mov_b32 %s, 0x40000' % sr(s_slot2))
    A('s_mov_b32 %s, 0' % sr(s_slotp))
    A('s_mov_b32 %s, 0' % sr(s_kx))
    A('s_mov_b32 %s, 4096' % sr(s_kx2))
    A('s_mov_b32 %s, 0' % sr(s_out))
    A('s_mov_b32 %s, 0x%x' % (sr(s_outp), WS_BYTES))
    A('s_mov_b32 %s, 0' % sr(s_ps))
    A('s_mov_b32 %s, 0x80000' % sr(s_ps2))
    A('s_mov_b32 %s, %d' % (sr(s_kvo), DBG_KV0 * 128))

    def kv_wait(tag):
        Lw, Ld, L0 = A.uid('kvw' + tag), A.uid('kvd' + tag), A.uid('kv0' + tag)
        A('s_mov_b32 %s, 0' % sr(s_cnt))
        A('s_branch ' + L0)
        A.label(Lw)
        A('s_sleep 6')
        A.label(L0)
        A('buffer_load_dword %s, %s, %s, %s offen sc1' % (vr(v_kvf), vr(v_sh), sr(SRD_WS, 4), sr(s_kvo)))
        A('s_add_u32 %s, %s, 1' % (sr(s_cnt), sr(s_cnt)))
        A('s_cmp_gt_u32 %s, %s' % (sr(s_cnt), sr(s_lim)))
        A('s_cbranch_scc1 ' + Ld)
        A('s_waitcnt vmcnt(0)')
        A('v_cmp_gt_u32 vcc, 32, %s' % vr(v_kvf))
        A('s_cbranch_vccnz ' + Lw)
        A.label(Ld)
        A('s_waitcnt vmcnt(0)')
    stamp(7)
    place_check(A, SRD_T, v_lane, v_t[0], v_t[1], s_cnt, POLL_LIMIT, L_restart)
    L_rdy, L_rdy_done, L_rdy0 = A.uid('rdy'), A.uid('rdyd'), A.uid('rdy0')
    A('v_mov_b32 %s, 32' % vr(v_t[0]))
    A('s_mov_b32 %s, 0' % sr(s_cnt))
    A('s_branch ' + L_rdy0)
    A.label(L_rdy)
    A('s_sleep 6')
    A.label(L_rdy0)
    A('buffer_load_dword %s, %s, %s, 0 offen sc1' % (vr(acc1 + 1), vr(v_t[0]), sr(SRD_T, 4)))
    A('s_add_u32 %s, %s, 1' % (sr(s_cnt), sr(s_cnt)))
    A('s_cmp_gt_u32 %s, %s' % (sr(s_cnt), sr(s_lim)))
    A('s_cbranch_scc1 ' + L_rdy_done)
    A('s_waitcnt vmcnt(0)')
    A('v_and_b32 %s, 0xffff, %s' % (vr(acc1), vr(acc1 + 1)))
    A('v_cmp_gt_u32 vcc, 128, %s' % vr(acc1))
    A('s_cbranch_vccnz ' + L_rdy)
    A.label(L_rdy_done)
    A('s_waitcnt vmcnt(0)')
    if TWO:
        A('s_lshr_b32 %s, %s, 1' % (sr(s_t2), sr(s_x)))
        A('s_lshl_b32 %s, %s, 2' % (sr(s_t2), sr(s_t2)))
        A('s_add_u32 %s, %s, 16' % (sr(s_t2), sr(s_t2)))
        A('v_bfe_u32 %s, %s, %s, 4' % (vr(acc1), vr(acc1 + 1), sr(s_t2)))
        A('v_cmp_lt_u32 vcc, 4, %s' % vr(acc1))
    else:
        A('v_lshrrev_b32 %s, 16, %s' % (vr(acc1), vr(acc1 + 1)))
        A('v_cmp_%s_u32 vcc, 16, %s' % ('lt' if NEARX else 'ge', vr(acc1)))
    A('v_mov_b32 %s, 8192' % vr(acc1 + 1))
    A('v_cndmask_b32 %s, 0, %s, vcc' % (vr(acc1), vr(acc1 + 1)))
    A('v_add_u32 %s, %s, %s' % (vr(va_pr), vr(va_pr), vr(acc1)))
    A('v_add_u32 %s, %s, %s' % (vr(va_pw), vr(va_pw), vr(acc1)))
    A('v_mul_u32_u24 %s, 252, %s' % (vr(acc1), vr(v_g)))
    A('v_sub_u32 %s, %s, %s' % (vr(va_pd), vr(va_pw), vr(acc1)))
    A('v_and_b32 %s, 0x%x, %s' % (vr(va_pd), 0xffffffff ^ 16384, vr(va_pd)))
    A('v_lshlrev_b32 %s, 8, %s' % (vr(acc1), vr(v_g)))
    A('v_sub_u32 %s, %s, %s' % (vr(va_pz), vr(va_pw), vr(acc1)))
    A('v_and_b32 %s, 1, %s' % (vr(acc1), vr(v_g)))
    A('v_lshlrev_b32 %s, 14, %s' % (vr(acc1), vr(acc1)))
    A('v_xor_b32 %s, %s, %s' % (vr(va_pz), vr(va_pz), vr(acc1)))
    A('v_lshrrev_b32 %s, 1, %s' % (vr(acc1), vr(v_g)))
    if TWO:
        A('v_lshlrev_b32 %s, 13, %s' % (vr(acc1), vr(acc1)))
        A('v_xor_b32 %s, %s, %s' % (vr(va_pz), vr(acc1), vr(va_pz)))
    else:
        A('v_lshl_add_u32 %s, %s, 28, %s' % (vr(va_pz), vr(acc1), vr(va_pz)))
    A('v_add_u32 %s, 16384, %s' % (vr(va_pw), vr(va_pd)))
    A('v_lshlrev_b32 %s, 2, %s' % (vr(acc1), vr(v_g)))
    A('v_sub_u32 %s, %s, %s' % (vr(va_pg), vr(va_pd), vr(acc1)))
    A('v_lshrrev_b32 %s, 1, %s' % (vr(acc1), vr(v_g)))
    A('v_lshl_add_u32 %s, %s, 14, %s' % (vr(va_pg), vr(acc1), vr(va_pg)))
    A('v_and_b32 %s, 1, %s' % (vr(acc1), vr(v_g)))
    A('v_lshl_add_u32 %s, %s, 28, %s' % (vr(va_pg), vr(acc1), vr(va_pg)))
    A('v_xor_b32 %s, 8192, %s' % (vr(va_pd), vr(va_pg)))
    kv_wait('0')
    stamp(9)
    dbgt(11)

    ool = []

    def poll(n, load, base, tag, on_ok=None, back=0):
        Lk = [A.uid('poll%s%d' % (tag, k)) for k in range(n)]
        Lc = [A.uid('chk%s%d' % (tag, k)) for k in range(n)]
        Lo = [A.uid('ok%s%d' % (tag, k)) for k in range(n)]
        Lfs = [A.uid('pollf%s%d' % (tag, k)) for k in range(n)]

        def issue(m):
            A.label(Lk[m])
            if back:
                A('s_sleep %d' % back)
            for k in range(m, n):
                A(load(k))
            A('s_add_u32 %s, %s, 1' % (sr(s_cnt), sr(s_cnt)))
            A('s_cmp_gt_u32 %s, %s' % (sr(s_cnt), sr(s_lim)))
            A('s_cbranch_scc1 ' + Lfs[m])
        A('s_mov_b32 %s, 0' % sr(s_cnt))
        issue(0)
        for m in range(n):
            A.label(Lc[m])
            A('s_waitcnt vmcnt(%d)' % (n - 1 - m))
            b = base + 4 * m
            A('v_max3_u32 %s, %s, %s, %s' % (vr(v_t[0]), vr(b), vr(b + 1), vr(b + 2)))
            A('v_max_u32 %s, %s, %s' % (vr(v_t[0]), vr(v_t[0]), vr(b + 3)))
            A('v_cmp_eq_u32 vcc, -1, %s' % vr(v_t[0]))
            A('s_cbranch_vccnz ' + Lk[m])
            A.label(Lo[m])
            if on_ok:
                on_ok(m)

        def tail():
            for m in range(1, n):
                issue(m)
                A('s_branch ' + Lc[m])
            for m in range(n):
                A.label(Lfs[m])
                A('s_mov_b32 %s, 0' % sr(s_lim))
                A('s_waitcnt vmcnt(0)')
                A('s_branch ' + Lo[m])
        ool.append(tail)

    def smf(acc, a, w):
        return 'v_smfmac_f32_16x16x64_bf16 %s, %s, %s, %s' % (vr(acc, 4), vr(a, 4), ar(w, 8), vr(v_idx))

    def okA(k):
        for tl in range(4):
            A(smf(AC + 4 * tl, M + 4 * k, W1 + 8 * (k * 4 + tl)))

    def pollA2():
        ld = lambda k: 'buffer_load_dwordx4 %s, %s, %s, %s offen offset:%d sc1' % (vr(M + 4 * k, 4), vr(va_memr), sr(SRD_WS, 4), sr(s_slot), k * 1024)
        Lr = [A.uid('rA%d' % k) for k in range(4)]
        Lo = [A.uid('oA%d' % k) for k in range(4)]

        def chk(k):
            b = M + 4 * k
            return ['s_waitcnt vmcnt(%d)' % (3 - k),
                    'v_max3_u32 %s, %s, %s, %s' % (vr(v_t[0]), vr(b), vr(b + 1), vr(b + 2)),
                    'v_max_u32 %s, %s, %s' % (vr(v_t[0]), vr(v_t[0]), vr(b + 3)),
                    'v_cmp_eq_u32 vcc, -1, %s' % vr(v_t[0])]
        A('s_mov_b32 %s, 1' % sr(s_cnt))
        for k in range(4):
            A(ld(k))
        for t in chk(0):
            A(t)
        for k in range(4):
            A('s_cbranch_vccnz ' + Lr[k])
            A.label(Lo[k])
            c = chk(k + 1) if k < 3 else []
            for tl in range(4):
                A(smf(AC + 4 * tl, M + 4 * k, W1 + 8 * (k * 4 + tl)))
                if c and tl < 3:
                    if tl == 0:
                        A(c.pop(0))
                    A(c.pop(0))

        def tail():
            for k in range(4):
                A.label(Lr[k])
                if A1P and k < 3:
                    Lg = A.uid('gA')
                    A(ld(k))
                    A('s_add_u32 %s, %s, 1' % (sr(s_cnt), sr(s_cnt)))
                    A('s_waitcnt vmcnt(0)')
                    for t in chk(k)[1:]:
                        A(t)
                    A('s_cbranch_vccz ' + Lg)
                    A('s_cmp_le_u32 %s, %s' % (sr(s_cnt), sr(s_lim)))
                    A('s_cbranch_scc1 ' + Lr[k])
                    A('s_mov_b32 %s, 0' % sr(s_lim))
                    A.label(Lg)
                    for m in range(k + 1, 4):
                        A(ld(m))
                    A('s_branch ' + Lo[k])
                    continue
                for m in range(k, 4):
                    A(ld(m))
                A('s_add_u32 %s, %s, 1' % (sr(s_cnt), sr(s_cnt)))
                for t in chk(k):
                    A(t)
                A('s_cbranch_vccz ' + Lo[k])
                A('s_cmp_le_u32 %s, %s' % (sr(s_cnt), sr(s_lim)))
                A('s_cbranch_scc1 ' + Lr[k])
                A('s_mov_b32 %s, 0' % sr(s_lim))
                A('s_branch ' + Lo[k])
        ool.append(tail)

    def advance():
        A('s_add_u32 %s, %s, 1' % (sr(s_step), sr(s_step)))
        A('s_mov_b32 %s, %s' % (sr(s_slotp), sr(s_slot)))
        A('s_mov_b32 %s, %s' % (sr(s_outp), sr(s_out)))
        A('s_mov_b32 %s, %s' % (sr(s_slot), sr(s_slot1)))
        A('s_mov_b32 %s, %s' % (sr(s_slot1), sr(s_slot2)))
        A('s_add_u32 %s, %s, 0x20000' % (sr(s_slot2), sr(s_slot2)))
        A('s_and_b32 %s, %s, 0x7ffff' % (sr(s_slot2), sr(s_slot2)))
        A('s_add_u32 %s, %s, 0x20000' % (sr(s_out), sr(s_out)))
        A('s_lshl_b32 %s, %s, 1' % (sr(s_ps), sr(s_slot)))
        A('s_lshl_b32 %s, %s, 1' % (sr(s_ps2), sr(s_slot2)))
        if stamps:
            A('s_add_u32 %s, %s, 64' % (sr(s_stl), sr(s_stl)))

    def ha_write(tl):
        return ['v_permlane32_swap_b32 %s, %s' % (vr(AC + 4 * tl), vr(AC + 4 * tl + 2)),
                'v_permlane32_swap_b32 %s, %s' % (vr(AC + 4 * tl + 1), vr(AC + 4 * tl + 3)),
                'v_pk_add_f32 %s, %s, %s' % (vr(HA + 2 * tl, 2), vr(AC + 4 * tl, 2), vr(AC + 4 * tl + 2, 2)),
                'ds_write_b64 %s, %s offset:%d' % (vr(va_rw), vr(HA + 2 * tl, 2), tl * 512)]

    def kv_stuff():
        L_kvok, L_kvslow, L_nokv, L_dokv = A.uid('kvok'), A.uid('kvslow'), A.uid('nokv'), A.uid('dokv')
        A('v_cmp_gt_u32 vcc, 32, %s' % vr(v_kvf))
        A('s_cbranch_vccnz ' + L_kvslow)
        A.label(L_kvok)
        A('s_bitcmp1_b64 %s, %s' % (sr(s_kvm, 2), sr(s_step)))
        A('s_cbranch_scc1 ' + L_dokv)
        A.label(L_nokv)

        def t():
            A.label(L_kvslow)
            kv_wait('s')
            A('s_branch ' + L_kvok)
            A.label(L_dokv)
            A('s_add_u32 %s, %s, 2' % (sr(s_kvo), sr(s_step)))
            A('s_lshr_b32 %s, %s, 3' % (sr(s_kvo), sr(s_kvo)))
            A('s_lshl_b32 %s, %s, 9' % (sr(s_kvo), sr(s_kvo)))
            A('s_add_u32 %s, %s, %d' % (sr(s_kvo), sr(s_kvo), DBG_KV * 128))
            A('buffer_load_dword %s, %s, %s, %s offen sc1' % (vr(v_kvf), vr(v_sh), sr(SRD_WS, 4), sr(s_kvo)))
            A('s_branch ' + L_nokv)
        ool.append(t)

    L_lastR, L_lastN, L_fin = name + '_lastR', name + '_lastN', name + '_fin'

    def loop(red, fl):
        tg = ('r' if red else 'n') + ('f' if fl else '')
        ISC = ' sc1' if fl else ''
        nacc = 32 if red else 16
        L_st, L_B = name + '_step' + tg, name + '_B' + tg

        def zero_acc():
            for i in range(nacc):
                A('v_mov_b32 %s, 0' % vr(AC + i))
        A.label(name + '_first' + tg)
        if not red:
            for t in pf_ops():
                A(t)
        zero_acc()
        for k in range(4):
            okA(k)
        A('s_branch ' + L_B)
        A.label(L_st)
        if not (red and ZE):
            zero_acc()
        if A2:
            pollA2()
        else:
            poll(4, lambda k: 'buffer_load_dwordx4 %s, %s, %s, %s offen offset:%d sc1' % (vr(M + 4 * k, 4), vr(va_memr), sr(SRD_WS, 4), sr(s_slot), k * 1024), M, 'A', okA)
        A.label(L_B)
        stamp(0)
        vs = [smf(AC + 16 + 4 * tv, M + 4 * k, W2 + 8 * (k * 4 + tv)) for tv in range(4) for k in range(4)] if red else []
        ne = VS[0]
        for tl in range(4):
            h = ha_write(tl)
            if vs and ne > 0:
                A(vs.pop(0))
                ne -= 1
            A(h[0])
            A(h[1])
            if vs and ne > 3 - tl:
                A(vs.pop(0))
                ne -= 1
            A(h[2])
            A(h[3])
        for _ in range(VS[1]):
            if vs:
                A(vs.pop(0))
        A('s_waitcnt lgkmcnt(0)')
        A('s_barrier')
        A('ds_read_b128 %s, %s' % (vr(RD, 4), vr(va_rr)))
        A('ds_read_b128 %s, %s offset:4096' % (vr(RD + 4, 4), vr(va_rr)))
        for _ in range(VS[2]):
            if vs:
                A(vs.pop(0))
        A('s_waitcnt lgkmcnt(0)')
        A('v_pk_add_f32 %s, %s, %s' % (vr(RD, 2), vr(RD, 2), vr(RD + 4, 2)))
        A('v_pk_add_f32 %s, %s, %s' % (vr(RD + 2, 2), vr(RD + 2, 2), vr(RD + 6, 2)))
        A('v_permlane32_swap_b32 %s, %s' % (vr(RD), vr(RD + 1)))
        A('v_permlane32_swap_b32 %s, %s' % (vr(RD + 2), vr(RD + 3)))
        A('v_add_f32 %s, %s, %s' % (vr(v_t[0]), vr(RD), vr(RD + 1)))
        A('v_add_f32 %s, %s, %s' % (vr(v_t[1]), vr(RD + 2), vr(RD + 3)))
        A('v_cvt_pk_bf16_f32 %s, %s, %s' % (vr(v_t[2]), vr(v_t[0]), vr(v_t[1])))
        A('v_pk_min_u16 %s, %s, %s' % (vr(v_t[2]), vr(v_t[2]), sr(s_fffe)))
        A('buffer_store_dword %s, %s, %s, %s offen%s' % (vr(v_t[2]), vr(va_qks), sr(SRD_WS, 4), sr(s_slot), ISC))
        if red:
            for tv in range(4):
                while vs and len(vs) > 4 * (3 - tv) - 4:
                    A(vs.pop(0))
                for t in ha_write(4 + tv):
                    A(t)
            A('s_waitcnt lgkmcnt(0)')
            A('s_barrier')
            A('ds_read_b128 %s, %s offset:2048' % (vr(RD, 4), vr(va_rr)))
            A('ds_read_b128 %s, %s offset:6144' % (vr(RD + 4, 4), vr(va_rr)))
            A('s_waitcnt lgkmcnt(0)')
            A('v_pk_add_f32 %s, %s, %s' % (vr(RD, 2), vr(RD, 2), vr(RD + 4, 2)))
            A('v_pk_add_f32 %s, %s, %s' % (vr(RD + 2, 2), vr(RD + 2, 2), vr(RD + 6, 2)))
            A('v_permlane32_swap_b32 %s, %s' % (vr(RD), vr(RD + 2)))
            A('v_permlane32_swap_b32 %s, %s' % (vr(RD + 1), vr(RD + 3)))
            A('v_pk_add_f32 %s, %s, %s' % (vr(RD, 2), vr(RD, 2), vr(RD + 2, 2)))
            A('v_cvt_pk_bf16_f32 %s, %s, %s' % (vr(v_t[3]), vr(RD), vr(RD + 1)))
            A('v_pk_min_u16 %s, %s, %s' % (vr(v_t[3]), vr(v_t[3]), sr(s_fffe)))
            A('buffer_store_dword %s, %s, %s, %s offen%s' % (vr(v_t[3]), vr(va_vs), sr(SRD_WS, 4), sr(s_slot), ISC))
            stamp(1)
            A('buffer_load_dwordx4 %s, %s, %s, %s offen sc1' % (vr(RB, 4), vr(va_rb), sr(SRD_WS, 4), sr(s_slotp)))
            A('v_mov_b32 %s, %s' % (vr(v_junk2), sr(s_step)))
            A('s_waitcnt vmcnt(0)')
            A('s_barrier')
            A('buffer_store_dwordx4 %s, %s, %s, %s offen sc1' % (vr(RB, 4), vr(va_cp), sr(SRD_WS, 4), sr(s_outp)))
            A('buffer_store_dword %s, %s, %s, 0 offen sc1' % (vr(v_junk2), vr(va_prog), sr(SRD_WS, 4)))
            A('s_cmp_ge_u32 %s, %d' % (sr(s_step), nsteps - 1))
            A('s_cbranch_scc1 ' + L_lastR)
            A('s_add_u32 %s, %s, 0x40000' % (sr(s_kx), sr(s_kx)))
            kv_stuff()
            A('buffer_load_dword %s, %s, %s, %s offen sc1' % (vr(v_junk), vr(va_warm), sr(SRD_WS, 4), sr(s_kx)))
            A('buffer_store_dwordx4 %s, %s, %s, %s offen sc1' % (vr(v_m1, 4), vr(va_pz), sr(SRD_WS, 4), sr(s_ps2)))
            A('buffer_store_dwordx4 %s, %s, %s, %s offen%s' % (vr(v_m1, 4), vr(va_rb), sr(SRD_WS, 4), sr(s_slot2), ISC))
            A('buffer_store_dword %s, %s, %s, %s offen%s' % (vr(v_m1), vr(va_mems), sr(SRD_WS, 4), sr(s_slot2), ISC))
            codepf(59)
            if ZE:
                zero_acc()
            if DELAY_E:
                A('s_sleep %d ; nothing can arrive before the attention is through: do not poll yet' % DELAY_E)
            if HINT:
                Lh, Lhd = A.uid('h'), A.uid('hd')
                A('s_mov_b32 %s, 0' % sr(s_cnt))
                A.label(Lh)
                A('buffer_load_dword %s, %s, %s, 0 offen sc1' % (vr(v_t[0]), vr(va_flg), sr(SRD_WS, 4)))
                A('s_add_u32 %s, %s, 1' % (sr(s_cnt), sr(s_cnt)))
                A('s_cmp_gt_u32 %s, %s' % (sr(s_cnt), sr(s_lim)))
                A('s_cbranch_scc1 ' + Lhd)
                A('s_waitcnt vmcnt(0)')
                A('v_cmp_ne_u32 vcc, %s, %s' % (sr(s_step), vr(v_t[0])))
                A('s_cbranch_vccnz ' + Lh)
                A.label(Lhd)
                if HINT > 1:
                    A('s_sleep %d ; partials still in flight: a read that comes too early costs a second fabric round trip' % (HINT - 1))

            def okE(k):
                A('v_mfma_f32_16x16x32_bf16 %s, %s, %s, %s' % (vr(LS, 4), vr(PR + 4 * k, 4), vr(v_sel, 4), '0' if k == 0 else vr(LS, 4)))
            poll(2, lambda k: 'buffer_load_dwordx4 %s, %s, %s, %s offen offset:%d sc1' % (vr(PR + 4 * k, 4), vr(va_pr), sr(SRD_WS, 4), sr(s_ps), k * 1024), PR, 'E', okE, back=E_BACK)
            stamp(6)
            advance()
            A('v_cvt_pk_bf16_f32 %s, %s, %s' % (vr(v_t[2]), vr(LS), vr(LS + 1)))
            A('v_cvt_pk_bf16_f32 %s, %s, %s' % (vr(v_t[3]), vr(LS + 2), vr(LS + 3)))
            A('v_cndmask_b32 %s, %s, %s, %s' % (vr(v_t[2]), vr(v_t[2]), vr(v_t[3]), sr(s_hf, 2)))
            A('v_pk_min_u16 %s, %s, %s' % (vr(v_t[2]), vr(v_t[2]), sr(s_fffe)))
            A('buffer_store_dword %s, %s, %s, %s offen%s' % (vr(v_t[2]), vr(va_mems), sr(SRD_WS, 4), sr(s_slot), ISC))
            if RED_SLEEP:
                A('s_sleep %d ; first poll when the other reducers stores can be visible' % RED_SLEEP)
            A('s_branch ' + L_st)
            return
        stamp(1)
        A('s_cmp_ge_u32 %s, %d' % (sr(s_step), nsteps - 1))
        A('s_cbranch_scc1 ' + L_lastN)
        A('s_add_u32 %s, %s, 0x40000' % (sr(s_kx), sr(s_kx)))
        A('s_add_u32 %s, %s, 0x40000' % (sr(s_kx2), sr(s_kx2)))
        for i in range(4):
            A('v_mov_b32 %s, 0' % vr(acc1 + i))
            A('v_mov_b32 %s, 0' % vr(acc2 + i))
        A('v_mov_b32 %s, %s' % (vr(v_junk2), sr(s_step)))
        if DELAY_C:
            A('s_sleep %d ; first poll when the other CUs q/k stores can be visible' % DELAY_C)
        Lc, Lcf, Lcd = A.uid('pC'), A.uid('pCf'), A.uid('pCd')
        A('s_mov_b32 %s, 1' % sr(s_cnt))
        A.label(Lc)
        for k in range(4):
            A('buffer_load_dwordx4 %s, %s, %s, %s offen offset:%d sc1' % (vr(QK + 4 * k, 4), vr(va_qkr), sr(SRD_WS, 4), sr(s_slot), k * 1024))
        for t in range(4):
            A('s_waitcnt vmcnt(%d)' % (3 - t))
            q = QK + 4 * t
            A('v_mfma_f32_16x16x32_bf16 %s, %s, %s, %s' % (vr(SA, 4), vr(KXA + 4 * t, 4), vr(q, 4), vr(v_maskx, 4) if t == 0 else vr(SA, 4)))
            if t == 0:
                A('v_max3_u32 %s, %s, %s, %s' % (vr(v_t[0]), vr(q), vr(q + 1), vr(q + 2)))
            else:
                A('v_max3_u32 %s, %s, %s, %s' % (vr(v_t[0]), vr(v_t[0]), vr(q), vr(q + 1)))
            A('v_mfma_f32_16x16x32_bf16 %s, %s, %s, %s' % (vr(SB, 4), vr(KXB + 4 * t, 4), vr(q, 4), vr(v_maskx, 4) if t == 0 else vr(SB, 4)))
            if t == 0:
                A('v_max_u32 %s, %s, %s' % (vr(v_t[0]), vr(v_t[0]), vr(q + 3)))
            else:
                A('v_max3_u32 %s, %s, %s, %s' % (vr(v_t[0]), vr(v_t[0]), vr(q + 2), vr(q + 3)))
            if t == 3:
                A('v_cmp_eq_u32 vcc, -1, %s' % vr(v_t[0]))
            A('v_mfma_f32_16x16x32_bf16 %s, %s, %s, %s' % (vr(SM, 4), vr(q, 4), vr(q, 4), vr(v_mask, 4) if t == 0 else vr(SM, 4)))
        A('s_cbranch_vccnz ' + Lcf)
        A.label(Lcd)

        def tailC():
            A.label(Lcf)
            A('s_add_u32 %s, %s, 1' % (sr(s_cnt), sr(s_cnt)))
            A('s_cmp_le_u32 %s, %s' % (sr(s_cnt), sr(s_lim)))
            A('s_cbranch_scc1 ' + Lc)
            A('s_mov_b32 %s, 0' % sr(s_lim))
            A('s_branch ' + Lcd)
        ool.append(tailC)
        stamp(2)

        def vload(k):
            return 'buffer_load_dwordx4 %s, %s, %s, %s offen offset:%d sc1' % (vr(VMR + 4 * k, 4), vr(va_vmr), sr(SRD_WS, 4), sr(s_slot), k * 1024)
        side = pf_ops() if not NOPF else []
        s = [SA + i for i in range(12)]
        sm = []
        sm.append('v_max3_f32 %s, %s, %s, %s' % (vr(v_mx), vr(s[0]), vr(s[1]), vr(s[2])))
        sm.append('v_max3_f32 %s, %s, %s, %s' % (vr(v_mx2), vr(s[3]), vr(s[4]), vr(v_bias)))
        sm.append('v_max3_f32 %s, %s, %s, %s' % (vr(v_mx), vr(v_mx), vr(s[5]), vr(s[6])))
        sm.append('v_max3_f32 %s, %s, %s, %s' % (vr(v_mx2), vr(v_mx2), vr(s[7]), vr(s[8])))
        sm.append('v_max3_f32 %s, %s, %s, %s' % (vr(v_mx), vr(v_mx), vr(s[9]), vr(s[10])))
        sm.append('v_max3_f32 %s, %s, %s, %s' % (vr(v_mx), vr(v_mx), vr(v_mx2), vr(s[11])))
        for sw in ('v_permlane32_swap_b32', 'v_permlane16_swap_b32'):
            sm.append('v_mov_b32 %s, %s' % (vr(v_mx2), vr(v_mx)))
            sm.append('%s %s, %s' % (sw, vr(v_mx), vr(v_mx2)))
            sm.append('v_max_f32 %s, %s, %s' % (vr(v_mx), vr(v_mx), vr(v_mx2)))
        sm.append('v_mul_f32 %s, %s, %s' % (vr(v_mx), sr(s_c), vr(v_mx)))
        if PKF:
            for i in range(0, 8, 2):
                sm.append('v_pk_fma_f32 %s, %s, %s, %s op_sel_hi:[1,0,0] neg_lo:[0,0,1] neg_hi:[0,0,1]' % (vr(s[i], 2), vr(s[i], 2), vr(v_cc, 2), vr(v_mx, 2)))
        else:
            for i in range(8):
                sm.append('v_fma_f32 %s, %s, %s, -%s' % (vr(s[i]), vr(s[i]), sr(s_c), vr(v_mx)))
        for i in range(8):
            sm.append('v_exp_f32 %s, %s' % (vr(s[i]), vr(s[i])))
            if i >= 2 and i % 2 == 0:
                sm.append('v_cvt_pk_bf16_f32 %s, %s, %s' % (vr(PX + i // 2 - 1), vr(s[i - 2]), vr(s[i - 1])))
        sm.append('v_fma_f32 %s, %s, %s, -%s' % (vr(s[8]), vr(s[8]), sr(s_c), vr(v_mx)))
        sm.append('v_cvt_pk_bf16_f32 %s, %s, %s' % (vr(PX + 3), vr(s[6]), vr(s[7])))
        sm.append('v_fma_f32 %s, %s, %s, -%s' % (vr(s[9]), vr(s[9]), sr(s_c), vr(v_mx)))
        for i, m in enumerate(sm):
            if PKF:
                if i == 7:
                    A(vload(0))
                    A(vload(1))
            elif i == DELAY_V:
                A(vload(0))
                A(vload(1))
            A(m)
        stamp(3)

        def dpp8(d, srcr):
            return 'v_mov_b32_dpp %s, %s row_shr:8 row_mask:0xf bank_mask:0xf bound_ctrl:0' % (vr(d), vr(srcr))
        t = v_t
        sh = []
        for i in range(10, 12):
            sh.append('v_fma_f32 %s, %s, %s, -%s' % (vr(s[i]), vr(s[i]), sr(s_c), vr(v_mx)))
        for i in range(4):
            sh.append(dpp8(PXH + i, PX + i))
        for i in range(8, 12):
            sh.append('v_exp_f32 %s, %s' % (vr(s[i]), vr(s[i])))
        for i in range(2):
            sh.append('v_cvt_pk_bf16_f32 %s, %s, %s' % (vr(PM + i), vr(s[8 + 2 * i]), vr(s[9 + 2 * i])))
        ls16 = 'v_mfma_f32_16x16x16_bf16 %s, %s, %s, %s' % (vr(LS, 4), vr(v_ones, 2), vr(PM, 2), vr(LS, 4))
        if PV2:
            sh.append(dpp8(PMH, PM))
            sh.append(dpp8(PMH + 1, PM + 1))
            sh.append(ls16)
            sh.append('s_waitcnt vmcnt(0)')
            sh.append('v_max3_u32 %s, %s, %s, %s' % (vr(t[0]), vr(VMR), vr(VMR + 1), vr(VMR + 2)))
            sh.append('v_max3_u32 %s, %s, %s, %s' % (vr(t[1]), vr(VMR + 3), vr(VMR + 4), vr(VMR + 5)))
            sh.append('v_permlane32_swap_b32 %s, %s' % (vr(PMH), vr(PM)))
            sh.append('v_permlane32_swap_b32 %s, %s' % (vr(PMH + 1), vr(PM + 1)))
            sh.append('v_max3_u32 %s, %s, %s, %s' % (vr(t[0]), vr(t[0]), vr(VMR + 6), vr(VMR + 7)))
            sh.append('v_max_u32 %s, %s, %s' % (vr(t[0]), vr(t[0]), vr(t[1])))
            sh.append('v_cmp_eq_u32 vcc, -1, %s' % vr(t[0]))
            sh.append('v_rcp_f32 %s, %s' % (vr(v_l), vr(LS)))
        else:
            sh.append('s_waitcnt vmcnt(0)')
            sh.append('v_max3_u32 %s, %s, %s, %s' % (vr(t[0]), vr(VMR), vr(VMR + 1), vr(VMR + 2)))
            sh.append('v_max3_u32 %s, %s, %s, %s' % (vr(t[1]), vr(VMR + 3), vr(VMR + 4), vr(VMR + 5)))
            sh.append(dpp8(PMH, PM))
            sh.append(dpp8(PMH + 1, PM + 1))
            sh.append('v_max3_u32 %s, %s, %s, %s' % (vr(t[0]), vr(t[0]), vr(VMR + 6), vr(VMR + 7)))
            sh.append('v_max_u32 %s, %s, %s' % (vr(t[0]), vr(t[0]), vr(t[1])))
            sh.append('v_permlane32_swap_b32 %s, %s' % (vr(PMH), vr(PM)))
            sh.append('v_permlane32_swap_b32 %s, %s' % (vr(PMH + 1), vr(PM + 1)))
            sh.append('v_cmp_eq_u32 vcc, -1, %s' % vr(t[0]))
        mf = ['v_mfma_f32_16x16x32_bf16 %s, %s, %s, 0' % (vr(LS, 4), vr(v_ones, 4), vr(PX, 4))]
        for a in range(4):
            mf.append('v_mfma_f32_16x16x32_bf16 %s, %s, %s, 0' % (vr(O + 4 * a, 4), vr(VXR + 4 * a, 4), vr(PX, 4)))
        for a in range(4):
            mf.append('v_mfma_f32_16x16x32_bf16 %s, %s, %s, %s' % (vr(O + 4 * a, 4), vr(VXR + 4 * (a + 4), 4), vr(PXH, 4), vr(O + 4 * a, 4)))
        per = [3, 3, 2, 2, 2, 3, 3, 3, 2] if PV2 else [3, 3, 2, 2, 2, 2, 3, 3, 1]
        for i, m in enumerate(mf):
            A(m)
            for _ in range(per[i]):
                if sh:
                    x = sh.pop(0)
                    if x.startswith('s_waitcnt'):
                        A(x)
                        x = sh.pop(0)
                    A(x)
        assert not sh
        Lv_ok, Lv_slow = A.uid('vok'), A.uid('vslow')
        A('s_cbranch_vccnz ' + Lv_slow)
        A.label(Lv_ok)

        def tailV():
            A.label(Lv_slow)
            poll(2, vload, VMR, 'V')
            A('s_branch ' + Lv_ok)
        ool.append(tailV)
        if not PV2:
            A(ls16)
        for a in range(4):
            A('v_mfma_f32_16x16x16_bf16 %s, %s, %s, %s' % (vr(O + 4 * a, 4), vr(VMR + 2 * a, 2), vr(PM, 2), vr(O + 4 * a, 4)))
            if PV2 and a == 1:
                A('v_mov_b32_dpp %s, %s row_shr:8 row_mask:0xf bank_mask:0xc' % (vr(v_l), vr(v_l)))
        if not PV2:
            A('v_rcp_f32 %s, %s' % (vr(v_l), vr(LS)))
            A('v_mov_b32_dpp %s, %s row_shr:8 row_mask:0xf bank_mask:0xc' % (vr(v_l), vr(v_l)))
        for a in range(4):
            for r in range(0, 4, 2):
                A('v_pk_mul_f32 %s, %s, %s op_sel_hi:[1,0]' % (vr(O + 4 * a + r, 2), vr(O + 4 * a + r, 2), vr(v_l, 2)))
            A('v_cvt_pk_bf16_f32 %s, %s, %s' % (vr(XY + a), vr(O + 4 * a), vr(O + 4 * a + 1)))
            A('v_cvt_pk_bf16_f32 %s, %s, %s' % (vr(XY + 4 + a), vr(O + 4 * a + 2), vr(O + 4 * a + 3)))
        A('ds_write_b128 %s, %s' % (vr(va_ow), vr(XY, 4)))
        A('ds_write_b128 %s, %s offset:128' % (vr(va_ow), vr(XY + 4, 4)))
        A('s_waitcnt lgkmcnt(0)')
        stamp(4)
        A('s_barrier')
        if HINT:
            A('buffer_store_dword %s, %s, %s, 0 offen%s' % (vr(v_junk2), vr(va_flg), sr(SRD_WS, 4), ISC))
        for k in range(8):
            A('ds_read_b128 %s, %s offset:%d' % (vr(G + 4 * k, 4), vr(va_or), k * 1024))
        def epi3(acc, va):
            return ['v_permlane32_swap_b32 %s, %s' % (vr(acc), vr(acc + 2)),
                    'v_permlane32_swap_b32 %s, %s' % (vr(acc + 1), vr(acc + 3)),
                    'v_pk_add_f32 %s, %s, %s' % (vr(acc, 2), vr(acc, 2), vr(acc + 2, 2)),
                    'v_cvt_pk_bf16_f32 %s, %s, %s' % (vr(acc), vr(acc), vr(acc + 1)),
                    'v_pk_min_u16 %s, %s, %s' % (vr(acc), vr(acc), sr(s_fffe)),
                    'buffer_store_dword %s, %s, %s, %s offen sc1' % (vr(acc), vr(va), sr(SRD_WS, 4), sr(s_ps))]
        if S3 == 2:
            D = VMR
            for k in range(8):
                A('s_waitcnt lgkmcnt(%d)' % (7 - k))
                A(smf(acc1, G + 4 * k, W2 + 8 * (2 * k)))
                if k < 2:
                    A(smf(acc2, G + 4 * k, W2 + 8 * (2 * k + 1)))
            e1 = epi3(acc1, va_pd)[:3] + ['v_cvt_pk_bf16_f32 %s, %s, %s' % (vr(D), vr(acc1), vr(acc1 + 1)),
                                          'v_pk_min_u16 %s, %s, %s' % (vr(D), vr(D), sr(s_fffe))]
            for k in range(2, 8):
                A(smf(acc2, G + 4 * k, W2 + 8 * (2 * k + 1)))
                if k >= 4:
                    for _ in range(2):
                        if e1:
                            A(e1.pop(0))
            for t_ in e1 + epi3(acc2, va_pw)[:3]:
                A(t_)
            A('v_cvt_pk_bf16_f32 %s, %s, %s' % (vr(D + 2), vr(acc2), vr(acc2 + 1)))
            A('v_pk_min_u16 %s, %s, %s' % (vr(D + 2), vr(D + 2), sr(s_fffe)))
            A('v_permlane32_swap_b32 %s, %s' % (vr(D), vr(D + 2)))
            A('v_permlane16_swap_b32 %s, %s' % (vr(D), vr(D + 1)))
            A('v_permlane16_swap_b32 %s, %s' % (vr(D + 2), vr(D + 3)))
            if TWO:
                A('buffer_store_dwordx4 %s, %s, %s, %s offen sc1' % (vr(D, 4), vr(va_pd), sr(SRD_WS, 4), sr(s_ps)))
            A('buffer_store_dwordx4 %s, %s, %s, %s offen sc1' % (vr(D, 4), vr(va_pg), sr(SRD_WS, 4), sr(s_ps)))
        elif S3:
            for k in range(8):
                A('s_waitcnt lgkmcnt(%d)' % (7 - k))
                A(smf(acc1, G + 4 * k, W2 + 8 * (2 * k)))
                if k < 2:
                    A(smf(acc2, G + 4 * k, W2 + 8 * (2 * k + 1)))
            e1 = epi3(acc1, va_pd)
            for k in range(2, 8):
                A(smf(acc2, G + 4 * k, W2 + 8 * (2 * k + 1)))
                if k >= 4:
                    for _ in range(2):
                        if e1:
                            A(e1.pop(0))
            for t_ in e1 + epi3(acc2, va_pw):
                A(t_)
        else:
            for k in range(8):
                A('s_waitcnt lgkmcnt(%d)' % (7 - k))
                A(smf(acc1, G + 4 * k, W2 + 8 * (2 * k)))
                A(smf(acc2, G + 4 * k, W2 + 8 * (2 * k + 1)))
            for t_ in epi3(acc1, va_pd) + epi3(acc2, va_pw):
                A(t_)
        stamp(5)
        kv_stuff()
        codepf(59)
        for x in side:
            A(x)
        advance()
        if NOE_SLEEP:
            A('s_sleep %d ; the next memory state needs a cross-XCD exchange first: do not poll yet' % NOE_SLEEP)
        A('s_branch ' + L_st)

    L_safe = A.uid('safe')
    A('s_cmp_lg_u32 s%d, 0' % S_MODE)
    A('s_cbranch_scc1 ' + L_safe)
    for fl in (False, True):
        if fl:
            A.label(L_safe)
        A('s_cmp_lg_u32 %s, 0' % sr(s_red))
        A('s_cbranch_scc1 ' + name + '_firstn' + ('f' if fl else ''))
        loop(True, fl)
        loop(False, fl)
        while ool:
            ool.pop(0)()
    A.label(L_lastN)
    A('s_waitcnt vmcnt(0)')
    A('s_barrier')
    A('s_cmp_lg_u32 %s, 0' % sr(s_w))
    A('s_cbranch_scc1 ' + L_fin)
    A.label(L_lastR)
    A('s_cmp_eq_u32 %s, 2' % sr(s_w))
    A('s_cbranch_scc1 ' + L_fin)
    A('buffer_load_dwordx4 %s, %s, %s, %s offen sc1' % (vr(M, 4), vr(va_rb), sr(SRD_WS, 4), sr(s_slot)))
    A('s_waitcnt vmcnt(0)')
    A('buffer_store_dwordx4 %s, %s, %s, %s offen sc1' % (vr(M, 4), vr(va_cp), sr(SRD_WS, 4), sr(s_out)))
    A.label(L_fin)
    if stamps:
        A('s_waitcnt lgkmcnt(0)')
        A('v_lshlrev_b32 %s, 4, %s' % (vr(v_t[0]), vr(v_lane)))
        A('s_lshl_b32 %s, %s, 12' % (sr(s_t2), sr(s_w)))
        A('s_add_u32 %s, %s, 65536' % (sr(s_t2), sr(s_t2)))
        A('v_add_u32 %s, %s, %s' % (vr(v_t[1]), sr(s_t2), vr(v_t[0])))
        for k in range(4):
            A('ds_read_b128 %s, %s offset:%d' % (vr(F + 4 * k, 4), vr(v_t[1]), k * 1024))
        A('s_waitcnt lgkmcnt(0)')
        for k in range(4):
            A('buffer_store_dwordx4 %s, %s, %s, %s offen offset:%d' % (vr(F + 4 * k, 4), vr(v_t[0]), sr(SRD_WS, 4), sr(s_stamp), k * 1024))
    A('s_waitcnt vmcnt(0) lgkmcnt(0)')
    A('s_barrier')
    A('s_cmp_lg_u32 %s, 0' % sr(s_w))
    A('s_cbranch_scc1 ' + L_work)
    dbgt(12)
    A('s_lshr_b32 %s, %s, 1' % (sr(s_t0), sr(s_x)))
    A('s_lshl_b32 %s, %s, 7' % (sr(s_t0), sr(s_t0)))
    A('s_add_u32 %s, %s, 0x%x' % (sr(s_t0), sr(s_t0), CTR + DBG_FIN * 128))
    A('v_mov_b32 %s, %s' % (vr(v_t[0]), sr(s_t0)))
    A('v_mov_b32 %s, 1' % vr(v_t[1]))
    A('s_mov_b64 exec, 1')
    A('buffer_atomic_add %s, %s, %s, 0 offen sc1' % (vr(v_t[1]), vr(v_t[0]), sr(SRD_WS, 4)))
    A('s_mov_b64 exec, -1')
    A('s_branch ' + L_work)
    A.label(L_exit)
    A('s_endpgm')
    A.label(L_work)
    worker(A, name)
    A.label(name + '_end')
    A('s_endpgm')
    return dict(vgpr=512, accum=256, sgpr=102)
```

```python
from asmlib import *
from layout import *
import struct, os
from kernels import place_check, shift_ptrs


def f32bits(x):
    return struct.unpack('<I', struct.pack('<f', x))[0]


def env(n, d):
    return int(os.environ.get(n, str(d)))


LDS_RED = 131072
LDS_O = LDS_RED + 16384
LDS_ROLE = LDS_O + 8192
NSTEP = env('NSTEP', 64)
POLL_LIMIT = 400000
NEARX = env('NEARX', 1)
DELAY_C = env('DELAY_C', 4)
DELAY_E = env('DELAY_E', 12)
E_BACK = env('E_BACK', 0)
DELAY_V = env('DELAY_V', 6)
RED_SLEEP = env('RED_SLEEP', 4)
NOE_SLEEP = env('NOE_SLEEP', 10)
NOPF = env('NOPF', 0)
FORCE_SAFE = env('FORCE_SAFE', 0)
PFC = env('PFC', 0)
VS = [int(x) for x in os.environ.get('VS', '8,3,5').split(',')]
A2 = env('A2', 1)
S3 = env('S3', 2)
HINT = env('HINT', 6)
DBGT = env('DBGT', 0)
XMAP = int(os.environ.get('XMAP', '0'), 16)
A1P = env('A1P', 0)
ZE = env('ZE', 1)
CODEPF = env('CODEPF', 2)
PV2 = env('PV2', 1)
PKF = env('PKF', 1)
TLBW = env('TLBW', 0)
TWO = env('TWO', 0)
HW0 = env('HW0', 1)
LITE = [int(x) for x in os.environ.get('LITE', '').split(',') if x]


def gen_chain(A, name, stamps=False, nsteps=NSTEP, worker=None):
    S = Regs('s', 16, 100)
    V = Regs('v', 1, 256)
    SRD_WS, SRD_T = 8, 12
    s_ptr = S.alloc(16, 4)
    (s_w, s_x, s_j, s_t0, s_t1, s_t2, s_t3, s_step, s_slot, s_slot1, s_slot2, s_slotp, s_kx, s_kx2, s_out, s_outp, s_fffe, s_c,
     s_lim, s_cnt, s_vote, s_stamp, s_stl, s_red, s_obm, s_kvo, s_ps, s_ps2, s_m0, s_m1) = [S.alloc() for _ in range(30)]
    s_hf = S.alloc(2, 2)
    s_tm = S.alloc(2, 2)
    s_ta = S.alloc(2, 2)
    s_kvm = S.alloc(2, 2)
    SRD_A = S.alloc(4, 4)
    SRD_B = S.alloc(4, 4)
    SRD_D = S.alloc(4, 4)
    v_lane, v_nu, v_g = V.alloc(), V.alloc(), V.alloc()
    v_t = [V.alloc() for _ in range(8)]
    (va_memr, va_mems, va_rw, va_rr, va_qks, va_rb, va_vs, va_cp, va_prog, va_qkr, va_vmr, va_kx, va_vx, va_ow, va_or, va_pw, va_pr,
     va_pz, va_pd, va_warm, v_idx, v_bias, v_junk, v_kvf, v_junk2, v_sh, va_flg, va_pg) = [V.alloc() for _ in range(28)]
    v_cc = V.alloc(2, 2)
    v_m1 = V.alloc(4, 4)
    v_mask = V.alloc(4, 4)
    v_sel = V.alloc(4, 4)
    v_maskx = V.alloc(4, 4)
    v_ones = V.alloc(4, 4)
    acc1 = V.alloc(4, 4)
    acc2 = V.alloc(4, 4)
    KXA = V.alloc(16, 4)
    KXB = V.alloc(16, 4)
    VXR = V.alloc(32, 4)
    F = V.alloc(64, 4)
    VMR = V.alloc(8, 4)
    QK = V.alloc(16, 4)
    M = V.alloc(16, 4)
    assert KXB == KXA + 16 and VXR == KXA + 32 and F == KXA + 64
    LND = KXA
    AC = F
    HA = F + 32
    RD = F + 48
    SA, SB, SM = F, F + 4, F + 8
    PX, PXH = F + 12, F + 16
    PM, PMH = F + 20, F + 22
    O = F + 28
    LS = F + 44
    v_mx, v_mx2, v_l = F + 48, F + 49, F + 50
    XY = QK
    G = F
    PR = KXA
    RB = KXA + 8
    W1, W2 = 0, 128
    L_exit = name + '_exit'
    nvm = [0]

    def stamp(k):
        if not stamps or (LITE and k not in LITE):
            return
        A('%s %s' % ('s_memrealtime' if stamps == 'rt' else 's_memtime', sr(s_tm, 2)))
        A('s_waitcnt lgkmcnt(0)')
        A('v_mov_b32 %s, %s' % (vr(v_t[7]), sr(s_tm)))
        A('v_mov_b32 %s, %s' % (vr(v_t[6]), sr(s_stl)))
        A('ds_write_b32 %s, %s offset:%d' % (vr(v_t[6]), vr(v_t[7]), 4 * k))
        if k in (0, 2, 6):
            A('v_mov_b32 %s, %s' % (vr(v_t[5]), sr(s_cnt)))
            A('ds_write_b32 %s, %s offset:%d' % (vr(v_t[6]), vr(v_t[5]), 4 * (8 + k)))

    def dbgt(word):
        if not DBGT:
            return
        A('s_memrealtime %s' % sr(s_tm, 2))
        A('s_waitcnt lgkmcnt(0)')
        A('v_mov_b32 %s, %s' % (vr(v_t[7]), sr(s_tm)))
        A('v_mov_b32 %s, %d' % (vr(v_t[6]), word * 4))
        A('s_mov_b64 exec, 1')
        A('buffer_atomic_umax %s, %s, %s, 0 offen sc1' % (vr(v_t[7]), vr(v_t[6]), sr(SRD_T, 4)))
        A('s_mov_b64 exec, -1')

    def srd(dst, ptr, nbytes):
        A('s_mov_b32 %s, %s' % (sr(dst), sr(ptr)))
        A('s_and_b32 %s, %s, 0xffff' % (sr(dst + 1), sr(ptr + 1)))
        A('s_mov_b32 %s, 0x%x' % (sr(dst + 2), nbytes))
        A('s_mov_b32 %s, 0x00020000' % sr(dst + 3))

    A.raw('.p2align 8')
    A.label(name)
    A('s_cmp_ge_u32 s2, 256')
    A('s_cbranch_scc1 ' + L_exit)
    A('s_mov_b32 s%d, 0' % S_MODE)
    if CODEPF:
        Lnp = A.uid('nopf')
        A('s_getpc_b64 s[4:5]')
        A.label(name + '_pc')
        A('s_lshr_b32 s6, s2, 3')
        A('s_lshl_b32 s6, s6, 13')
        A('v_and_b32 v250, 63, v0')
        A('v_lshl_add_u32 v250, v250, 7, s6')
        A('v_min_u32 v250, %s_end-%s_pc-4, v250' % (name, name))
        A('v_mov_b32 v253, s5')
        A('v_add_co_u32 v252, vcc, s4, v250')
        A('v_addc_co_u32 v253, vcc, 0, v253, vcc')
        A('v_readfirstlane_b32 s4, v0')
        A('s_lshr_b32 s4, s4, 6')
        A('s_cmp_lg_u32 s4, 1')
        A('s_cbranch_scc1 ' + Lnp)
        A('global_load_dword v251, v[252:253], off')
        A.label(Lnp)

    def codepf(at_step=None):
        if CODEPF < 2:
            return
        Ls = A.uid('cpf')
        if at_step is not None:
            A('s_cmp_lg_u32 %s, %d' % (sr(s_step), at_step))
            A('s_cbranch_scc1 ' + Ls)
        A('s_cmp_lg_u32 %s, 1' % sr(s_w))
        A('s_cbranch_scc1 ' + Ls)
        A('global_load_dword v251, v[252:253], off')
        A.label(Ls)
    L_restart = name + '_restart'
    A.label(L_restart)
    A('s_load_dwordx2 %s, s[0:1], 8' % sr(s_ptr, 2))
    A('s_load_dwordx4 %s, s[0:1], 16' % sr(s_ptr + 4, 4))
    A('s_load_dwordx4 %s, s[0:1], 32' % sr(s_ptr + 8, 4))
    A('s_load_dwordx4 %s, s[0:1], 88' % sr(s_ptr + 12, 4))
    P_MEM0, P_WQ, P_WK, P_WV, P_WO, P_DBG, P_WS = s_ptr, s_ptr + 4, s_ptr + 6, s_ptr + 8, s_ptr + 10, s_ptr + 12, s_ptr + 14
    A('v_and_b32 %s, 63, v0' % vr(v_lane))
    A('v_lshrrev_b32 %s, 6, v0' % vr(v_t[0]))
    A('v_readfirstlane_b32 %s, %s' % (sr(s_w), vr(v_t[0])))
    A('v_and_b32 %s, 15, %s' % (vr(v_nu), vr(v_lane)))
    A('v_lshrrev_b32 %s, 4, %s' % (vr(v_g), vr(v_lane)))
    A('s_waitcnt lgkmcnt(0)')
    shift_ptrs(A, P_WS, P_DBG, s_t0)
    srd(SRD_WS, P_WS, WS_HALF)
    srd(SRD_T, P_DBG, 128)
    L_role = A.uid('role')
    A('s_lshr_b32 %s, s2, 5' % sr(s_x))
    A('s_and_b32 %s, s2, 31' % sr(s_j))
    A('s_cmp_lg_u32 s%d, 0' % S_MODE)
    A('s_cbranch_scc1 ' + L_role)
    A('s_getreg_b32 %s, hwreg(HW_REG_XCC_ID)' % sr(s_x))
    A('s_and_b32 %s, %s, 7' % (sr(s_x), sr(s_x)))
    if XMAP:
        A('s_lshl_b32 %s, %s, 2' % (sr(s_x), sr(s_x)))
        A('s_lshr_b32 %s, 0x%x, %s' % (sr(s_x), XMAP, sr(s_x)))
        A('s_and_b32 %s, %s, 7' % (sr(s_x), sr(s_x)))
    if FORCE_SAFE:
        A('s_cmp_eq_u32 s2, %d' % FORCE_SAFE)
        A('s_cselect_b32 %s, 1, 0' % sr(s_t0))
        A('s_xor_b32 %s, %s, %s' % (sr(s_x), sr(s_x), sr(s_t0)))
    L_norole = A.uid('norole')
    A('s_cmp_lg_u32 %s, 0' % sr(s_w))
    A('s_cbranch_scc1 ' + L_norole)
    A('s_lshl_b32 %s, %s, 2' % (sr(s_t0), sr(s_x)))
    A('v_mov_b32 %s, %s' % (vr(v_t[0]), sr(s_t0)))
    A('v_mov_b32 %s, 1' % vr(v_t[1]))
    A('s_mov_b64 exec, 1')
    A('buffer_atomic_add %s, %s, %s, 0 offen sc0 sc1' % (vr(v_t[1]), vr(v_t[0]), sr(SRD_T, 4)))
    A('s_waitcnt vmcnt(0)')
    A('v_mov_b32 %s, %d' % (vr(v_t[0]), LDS_ROLE))
    A('ds_write_b32 %s, %s' % (vr(v_t[0]), vr(v_t[1])))
    A('s_waitcnt lgkmcnt(0)')
    A('s_mov_b64 exec, -1')
    A.label(L_norole)
    A('s_barrier')
    A('v_mov_b32 %s, %d' % (vr(v_t[0]), LDS_ROLE))
    A('ds_read_b32 %s, %s' % (vr(v_t[1]), vr(v_t[0])))
    A('s_waitcnt lgkmcnt(0)')
    A('v_readfirstlane_b32 %s, %s' % (sr(s_j), vr(v_t[1])))
    A.label(L_role)
    L_work = name + '_worker'
    A('s_mov_b32 s%d, %s' % (S_VX, sr(s_x)))
    A('s_mov_b32 s3, %s' % sr(s_j))
    A('s_cmp_ge_u32 %s, 4' % sr(s_x))
    A('s_cbranch_scc1 ' + L_work)
    A('s_cmp_ge_u32 %s, 32' % sr(s_j))
    A('s_cbranch_scc1 ' + L_work)
    A('s_mov_b32 s3, -1')
    A('s_lshl_b32 %s, %s, 1' % (sr(s_x), sr(s_x)))
    A('s_lshr_b32 %s, %s, 4' % (sr(s_t0), sr(s_j)))
    A('s_add_u32 %s, %s, %s' % (sr(s_x), sr(s_x), sr(s_t0)))
    A('s_and_b32 %s, %s, 15' % (sr(s_j), sr(s_j)))
    A('s_xor_b32 %s, %s, %s' % (sr(s_red), sr(s_x), sr(s_j)))
    A('s_and_b32 %s, %s, 1' % (sr(s_red), sr(s_red)))
    A('s_lshr_b32 %s, %s, 1' % (sr(s_obm), sr(s_x)))
    A('s_lshl_b32 %s, %s, 4' % (sr(s_obm), sr(s_obm)))
    A('s_add_u32 %s, %s, %s' % (sr(s_obm), sr(s_obm), sr(s_j)))
    A('s_lshl_b32 %s, %s, 10' % (sr(s_obm), sr(s_obm)))
    L_noz = A.uid('noz')
    A('s_or_b32 %s, %s, %s' % (sr(s_t0), sr(s_x), sr(s_j)))
    A('s_xor_b32 %s, %s, 1' % (sr(s_t1), sr(s_w)))
    A('s_or_b32 %s, %s, %s' % (sr(s_t0), sr(s_t0), sr(s_t1)))
    A('s_cmp_lg_u32 %s, 0' % sr(s_t0))
    A('s_cbranch_scc1 ' + L_noz)
    A('v_lshlrev_b32 %s, 7, %s' % (vr(v_t[0]), vr(v_lane)))
    A('v_mov_b32 %s, 0' % vr(v_t[1]))
    for i in range(4):
        A('s_mov_b32 %s, 0x%x' % (sr(s_t0), CTR + i * 8192))
        A('buffer_store_dword %s, %s, %s, %s offen sc1' % (vr(v_t[1]), vr(v_t[0]), sr(SRD_WS, 4), sr(s_t0)))
    A('s_waitcnt vmcnt(0)')
    A('v_mov_b32 %s, %d' % (vr(v_t[0]), DBG_INIT))
    A('v_mov_b32 %s, 1' % vr(v_t[1]))
    A('s_mov_b64 exec, 1')
    A('buffer_store_dword %s, %s, %s, 0 offen sc1' % (vr(v_t[1]), vr(v_t[0]), sr(SRD_T, 4)))
    A('s_mov_b64 exec, -1')
    dbgt(10)
    A.label(L_noz)
    for i in range(4):
        A('v_mov_b32 %s, -1' % vr(v_m1 + i))
    l16 = v_t[2]
    A('v_lshlrev_b32 %s, 4, %s' % (vr(l16), vr(v_lane)))
    s_ob = s_t3
    A('s_lshl_b32 %s, %s, 4' % (sr(s_ob), sr(s_x)))
    A('s_add_u32 %s, %s, %s' % (sr(s_ob), sr(s_ob), sr(s_j)))
    A('s_lshl_b32 %s, %s, 10' % (sr(s_ob), sr(s_ob)))

    A('s_lshl_b32 %s, %s, 17' % (sr(s_t0), sr(s_w)))
    A('s_add_u32 %s, %s, %s' % (sr(s_t2), sr(s_t0), sr(s_ob)))
    A('s_add_u32 %s, %s, %s' % (sr(s_t0), sr(s_t0), sr(s_obm)))
    Lf1, Lf2 = A.uid('f1'), A.uid('f2')
    A('s_cmp_lg_u32 s%d, 0' % S_MODE)
    A('s_cbranch_scc1 ' + Lf1)
    for sc in ('', ' sc1'):
        if sc:
            A.label(Lf1)
        for base, so in ((QKI, s_t2), (VMI, s_t2), (MEMI, s_t0)):
            A('s_add_u32 %s, %s, 0x%x' % (sr(s_t1), sr(so), base))
            A('buffer_store_dwordx4 %s, %s, %s, %s offen%s' % (vr(v_m1, 4), vr(l16), sr(SRD_WS, 4), sr(s_t1), sc))
        if not sc:
            A('s_branch ' + Lf2)
    A.label(Lf2)
    A('s_lshl_b32 %s, %s, 14' % (sr(s_t0), sr(s_j)))
    A('s_lshl_b32 %s, %s, 11' % (sr(s_t1), sr(s_w)))
    A('s_add_u32 %s, %s, %s' % (sr(s_t0), sr(s_t0), sr(s_t1)))
    A('s_add_u32 %s, %s, 0x%x' % (sr(s_t0), sr(s_t0), PART))
    A('v_add_u32 %s, %s, %s' % (vr(va_pr), sr(s_t0), vr(l16)))
    A('s_lshl_b32 %s, %s, 8' % (sr(s_t1), sr(s_x)))
    A('v_add_u32 %s, %s, %s' % (vr(va_pw), sr(s_t1), vr(va_pr)))
    A('v_add_u32 %s, 8192, %s' % (vr(va_pz), vr(va_pw)))
    A('s_mov_b64 exec, 0xffff')
    for sl in range(4):
        A('s_mov_b32 %s, 0x%x' % (sr(s_t1), sl * 0x40000))
        A('buffer_store_dwordx4 %s, %s, %s, %s offen sc1' % (vr(v_m1, 4), vr(va_pw), sr(SRD_WS, 4), sr(s_t1)))
        A('buffer_store_dwordx4 %s, %s, %s, %s offen sc1' % (vr(v_m1, 4), vr(va_pz), sr(SRD_WS, 4), sr(s_t1)))
    A('s_mov_b64 exec, -1')
    A('s_lshr_b32 %s, %s, 1' % (sr(s_t0), sr(s_x)))
    A('s_lshl_b32 %s, %s, 8' % (sr(s_t0), sr(s_t0)))
    A('s_add_u32 %s, %s, 0x%x' % (sr(s_t0), sr(s_t0), FLG))
    A('v_lshl_add_u32 %s, %s, 2, %s' % (vr(va_flg), vr(v_nu), sr(s_t0)))
    Lfr = A.uid('fr')
    A('s_cmp_eq_u32 %s, 0' % sr(s_red))
    A('s_cbranch_scc1 ' + Lfr)
    A('s_and_b32 %s, %s, 1' % (sr(s_t1), sr(s_x)))
    A('s_lshl_b32 %s, %s, 5' % (sr(s_t1), sr(s_t1)))
    A('s_add_u32 %s, %s, %s' % (sr(s_t0), sr(s_t0), sr(s_t1)))
    A('s_lshr_b32 %s, %s, 1' % (sr(s_t1), sr(s_j)))
    A('s_lshl_b32 %s, %s, 2' % (sr(s_t1), sr(s_t1)))
    A('s_add_u32 %s, %s, %s' % (sr(s_t0), sr(s_t0), sr(s_t1)))
    A('v_min_u32 %s, 1, v0' % vr(va_flg))
    A('v_lshl_add_u32 %s, %s, 28, %s' % (vr(va_flg), vr(va_flg), sr(s_t0)))
    A('buffer_store_dword %s, %s, %s, 0 offen sc1' % (vr(v_m1), vr(va_flg), sr(SRD_WS, 4)))
    A.label(Lfr)
    L_nocal, L_nocal2 = A.uid('nocal'), A.uid('nocal2')
    A('s_mov_b32 %s, 1' % sr(s_vote))
    A('s_cmp_lt_u32 %s, 8' % sr(s_j))
    A('s_cbranch_scc1 ' + L_nocal2)
    A('s_bitcmp1_b32 %s, 0' % sr(s_x))
    A('s_cbranch_scc1 ' + L_nocal2)
    A('s_waitcnt vmcnt(0)')
    A('s_barrier')
    A('s_cmp_lg_u32 %s, 0' % sr(s_w))
    A('s_cbranch_scc1 ' + L_nocal)
    A('s_mov_b32 %s, -1' % sr(s_m0))
    A('s_mov_b32 %s, -1' % sr(s_m1))
    A('s_mov_b64 exec, 0xffff')
    for rep in range(3):
        for c in range(2):
            A('s_mov_b32 %s, %d' % (sr(s_t1), 0x40000 + rep * 0x40000))
            A('s_memtime %s' % sr(s_ta, 2))
            A('s_waitcnt lgkmcnt(0)')
            A('buffer_store_dwordx4 %s, %s, %s, %s offen sc1' % (vr(v_m1, 4), vr(va_pz if c else va_pw), sr(SRD_WS, 4), sr(s_t1)))
            A('s_waitcnt vmcnt(0)')
            A('s_memtime %s' % sr(s_tm, 2))
            A('s_waitcnt lgkmcnt(0)')
            A('s_sub_u32 %s, %s, %s' % (sr(s_t2), sr(s_tm), sr(s_ta)))
            A('s_min_u32 %s, %s, %s' % (sr(s_m1 if c else s_m0), sr(s_m1 if c else s_m0), sr(s_t2)))
    A('s_cmp_lt_u32 %s, %s' % (sr(s_m1), sr(s_m0)))
    A('s_cselect_b32 %s, 0x10001, 1' % sr(s_vote))
    if TWO:
        A('s_cselect_b32 %s, 0x10000, 0' % sr(s_vote))
        A('s_lshl_b32 %s, %s, 1' % (sr(s_t2), sr(s_x)))
        A('s_lshl_b32 %s, %s, %s' % (sr(s_vote), sr(s_vote), sr(s_t2)))
        A('s_add_u32 %s, %s, 1' % (sr(s_vote), sr(s_vote)))
    A('s_mov_b64 exec, -1')
    A.label(L_nocal)
    A('s_barrier')
    A.label(L_nocal2)

    s_col = s_t2
    A('s_lshr_b32 %s, %s, 4' % (sr(s_col), sr(s_ob)))
    vw = v_t[4]
    A('v_lshrrev_b32 %s, 2, %s' % (vr(vw), vr(v_lane)))
    A('v_lshlrev_b32 %s, 13, %s' % (vr(vw), vr(vw)))
    A('v_and_b32 %s, 3, %s' % (vr(v_t[5]), vr(v_lane)))
    A('v_lshl_add_u32 %s, %s, 4, %s' % (vr(vw), vr(v_t[5]), vr(vw)))
    A('s_lshl_b32 %s, %s, 17' % (sr(s_t0), sr(s_w)))
    A('s_add_u32 %s, %s, %s' % (sr(s_col), sr(s_col), sr(s_t0)))
    A('s_lshl_b32 %s, %s, 10' % (sr(s_t0), sr(s_w)))
    for mi, P in enumerate((P_WQ, P_WK)):
        srd(SRD_A, P, 1024 * 4096 * 2)
        for i in range(16):
            A('s_add_u32 m0, %s, %d' % (sr(s_t0), mi * 65536 + i * 4096))
            A('s_add_u32 %s, %s, %d' % (sr(s_t1), sr(s_col), i * 4 * 131072))
            A('buffer_load_dwordx4 %s, %s, %s offen lds' % (vr(vw), sr(SRD_A, 4), sr(s_t1)))
        if mi == 0:
            A('s_waitcnt vmcnt(16)')
            A('s_barrier')
            L_nord = A.uid('nord')
            A('s_cmp_lg_u32 %s, 0' % sr(s_w))
            A('s_cbranch_scc1 ' + L_nord)
            A('v_mov_b32 %s, 32' % vr(acc2))
            A('v_mov_b32 %s, %s' % (vr(acc2 + 1), sr(s_vote)))
            A('s_mov_b64 exec, 1')
            A('buffer_atomic_add %s, %s, %s, 0 offen sc1' % (vr(acc2 + 1), vr(acc2), sr(SRD_T, 4)))
            A('s_mov_b64 exec, -1')
            A.label(L_nord)
            A('s_nop 4')
    srd(SRD_D, P_MEM0, 8 * 1024 * 2)
    vm0 = v_t[6]
    A('v_and_b32 %s, 7, %s' % (vr(vm0), vr(v_nu)))
    A('v_lshlrev_b32 %s, 11, %s' % (vr(vm0), vr(vm0)))
    A('v_lshl_add_u32 %s, %s, 5, %s' % (vr(vm0), vr(v_g), vr(vm0)))
    A('v_lshrrev_b32 %s, 3, %s' % (vr(v_t[7]), vr(v_nu)))
    A('v_lshl_add_u32 %s, %s, 2, %s' % (vr(vm0), vr(v_t[7]), vr(vm0)))
    A('s_lshl_b32 %s, %s, 9' % (sr(s_t1), sr(s_w)))
    for k in range(4):
        for a in range(4):
            A('buffer_load_dword %s, %s, %s, %s offen offset:%d' % (vr(M + 4 * k + a), vr(vm0), sr(SRD_D, 4), sr(s_t1), k * 128 + a * 8))

    v2 = v_t[5]
    LwN, LwJ = A.uid('wN'), A.uid('wJ')
    A('s_cmp_lg_u32 %s, 0' % sr(s_red))
    A('s_cbranch_scc1 ' + LwN)
    srd(SRD_B, P_WV, 1024 * 4096 * 2)
    A('v_lshrrev_b32 %s, 3, %s' % (vr(v2), vr(v_lane)))
    A('v_lshlrev_b32 %s, 13, %s' % (vr(v2), vr(v2)))
    A('v_and_b32 %s, 7, %s' % (vr(v_t[6]), vr(v_lane)))
    A('v_lshl_add_u32 %s, %s, 4, %s' % (vr(v2), vr(v_t[6]), vr(v2)))
    A('s_lshr_b32 %s, %s, 4' % (sr(s_t2), sr(s_ob)))
    A('s_andn2_b32 %s, %s, 64' % (sr(s_t2), sr(s_t2)))
    A('s_lshl_b32 %s, %s, 16' % (sr(s_t1), sr(s_w)))
    A('s_add_u32 %s, %s, %s' % (sr(s_t2), sr(s_t2), sr(s_t1)))
    A('s_mov_b32 %s, %d' % (sr(s_t0), 4 * 65536))
    A('s_branch ' + LwJ)
    A.label(LwN)
    srd(SRD_B, P_WO, 4096 * 1024 * 2)
    A('v_lshlrev_b32 %s, 11, %s' % (vr(v2), vr(v_g)))
    A('v_lshl_add_u32 %s, %s, 4, %s' % (vr(v2), vr(v_nu), vr(v2)))
    A('s_lshl_b32 %s, %s, 20' % (sr(s_t2), sr(s_x)))
    A('s_lshr_b32 %s, %s, 1' % (sr(s_t1), sr(s_j)))
    A('s_lshl_b32 %s, %s, 8' % (sr(s_t1), sr(s_t1)))
    A('s_add_u32 %s, %s, %s' % (sr(s_t2), sr(s_t2), sr(s_t1)))
    A('s_lshl_b32 %s, %s, 13' % (sr(s_t1), sr(s_w)))
    A('s_add_u32 %s, %s, %s' % (sr(s_t2), sr(s_t2), sr(s_t1)))
    A('s_mov_b32 %s, %d' % (sr(s_t0), 4 * 8192))
    A.label(LwJ)
    A('s_mov_b32 %s, %s' % (sr(s_m0), sr(s_t2)))
    A('s_mov_b32 %s, %s' % (sr(s_m1), sr(s_t0)))
    A('s_mov_b32 %s, 0xfffefffe' % sr(s_fffe))
    A('s_mov_b32 %s, 0x%x' % (sr(s_c), f32bits(128 ** -0.5 * 1.4426950408889634)))
    A('s_mov_b32 %s, %d' % (sr(s_lim), POLL_LIMIT))
    A('v_mov_b32 %s, %s' % (vr(v_cc), sr(s_c)))
    A('v_mov_b32 %s, %s' % (vr(v_cc + 1), sr(s_c)))
    A('s_mov_b32 %s, 0xff00ff00' % sr(s_hf))
    A('s_mov_b32 %s, 0xff00ff00' % sr(s_hf + 1))
    ta, tb, tc = v_t[0], v_t[1], v_t[7]
    A('v_mov_b32 %s, 0x%x' % (vr(ta), f32bits(-1e30)))
    for i in range(4):
        A('v_cndmask_b32 %s, 0, %s, %s' % (vr(v_maskx + i), vr(ta), sr(s_hf, 2)))
    A('v_cmp_gt_u32 vcc, 32, %s' % vr(v_lane))
    for i in range(4):
        A('v_cndmask_b32 %s, %s, %s, vcc' % (vr(v_mask + i), vr(v_maskx), vr(ta)))
    A('v_mov_b32 %s, 0x%x' % (vr(ta), f32bits(-3e38)))
    A('v_cndmask_b32 %s, %s, 0, %s' % (vr(v_bias), vr(ta), sr(s_hf, 2)))
    for i in range(4):
        A('v_mov_b32 %s, 0x3f803f80' % vr(v_ones + i))
    A('v_mov_b32 %s, 0x4444' % vr(ta))
    A('v_mov_b32 %s, 0xeeee' % vr(tb))
    A('v_cndmask_b32 %s, %s, %s, %s' % (vr(v_idx), vr(ta), vr(tb), sr(s_hf, 2)))
    A('v_bfe_u32 %s, %s, 2, 1' % (vr(ta), vr(v_nu)))
    A('v_bfe_u32 %s, %s, 1, 1' % (vr(tb), vr(v_nu)))
    A('v_lshl_add_u32 %s, %s, 1, %s' % (vr(ta), vr(tb), vr(ta)))
    A('v_and_b32 %s, 1, %s' % (vr(tb), vr(v_nu)))
    A('v_lshlrev_b32 %s, 4, %s' % (vr(tb), vr(tb)))
    A('v_mov_b32 %s, 0x3f80' % vr(tc))
    A('v_lshlrev_b32 %s, %s, %s' % (vr(tb), vr(tb), vr(tc)))
    for d in range(4):
        A('v_cmp_eq_u32 vcc, %d, %s' % (d, vr(ta)))
        A('v_cndmask_b32 %s, 0, %s, vcc' % (vr(v_sel + d), vr(tb)))

    s_p, s_wh = s_t0, s_t1
    A('s_and_b32 %s, %s, 1' % (sr(s_p), sr(s_w)))
    A('s_lshr_b32 %s, %s, 1' % (sr(s_wh), sr(s_w)))
    A('s_lshl_b32 %s, %s, 12' % (sr(s_t2), sr(s_w)))
    A('v_add_u32 %s, %s, %s' % (vr(ta), sr(s_t2), vr(l16)))
    A('s_lshr_b32 %s, %s, 1' % (sr(s_t2), sr(s_x)))
    A('s_lshl_b32 %s, %s, 14' % (sr(s_t2), sr(s_t2)))
    A('s_add_u32 %s, %s, 0x%x' % (sr(s_t2), sr(s_t2), MEMI))
    A('v_add_u32 %s, %s, %s' % (vr(va_memr), sr(s_t2), vr(ta)))
    A('s_lshl_b32 %s, %s, 14' % (sr(s_t2), sr(s_x)))
    A('s_add_u32 %s, %s, 0x%x' % (sr(s_t2), sr(s_t2), QKI))
    A('v_add_u32 %s, %s, %s' % (vr(va_qkr), sr(s_t2), vr(ta)))
    A('s_lshl_b32 %s, %s, 12' % (sr(s_cnt), sr(s_w)))
    A('s_add_u32 %s, %s, %s' % (sr(s_t2), sr(s_t2), sr(s_cnt)))
    A('s_add_u32 %s, %s, 0x%x' % (sr(s_t2), sr(s_t2), VMI - QKI))
    A('v_and_b32 %s, 31, %s' % (vr(va_vmr), vr(v_lane)))
    A('v_lshlrev_b32 %s, 4, %s' % (vr(va_vmr), vr(va_vmr)))
    A('v_lshrrev_b32 %s, 5, %s' % (vr(ta), vr(v_lane)))
    A('v_xor_b32 %s, 1, %s' % (vr(ta), vr(ta)))
    A('v_lshl_add_u32 %s, %s, 11, %s' % (vr(va_vmr), vr(ta), vr(va_vmr)))
    A('v_add_u32 %s, %s, %s' % (vr(va_vmr), sr(s_t2), vr(va_vmr)))
    A('s_lshl_b32 %s, %s, 12' % (sr(s_t2), sr(s_w)))
    A('s_add_u32 %s, %s, %d' % (sr(s_t2), sr(s_t2), LDS_RED))
    A('v_lshl_add_u32 %s, %s, 3, %s' % (vr(va_rw), vr(v_lane), sr(s_t2)))
    A('v_lshrrev_b32 %s, 5, %s' % (vr(ta), vr(v_lane)))
    A('v_lshlrev_b32 %s, 13, %s' % (vr(ta), vr(ta)))
    A('v_and_b32 %s, 31, %s' % (vr(tb), vr(v_lane)))
    A('v_lshl_add_u32 %s, %s, 4, %s' % (vr(ta), vr(tb), vr(ta)))
    A('s_lshl_b32 %s, %s, 9' % (sr(s_t2), sr(s_w)))
    A('s_add_u32 %s, %s, %d' % (sr(s_t2), sr(s_t2), LDS_RED))
    A('v_add_u32 %s, %s, %s' % (vr(va_rr), sr(s_t2), vr(ta)))
    vR, vcp, vH = tc, acc1, acc1 + 1
    A('v_bfe_u32 %s, %s, 3, 1' % (vr(ta), vr(v_lane)))
    A('v_bfe_u32 %s, %s, 4, 1' % (vr(tb), vr(v_lane)))
    A('v_lshlrev_b32 %s, 2, %s' % (vr(vR), vr(ta)))
    A('v_lshl_add_u32 %s, %s, 1, %s' % (vr(vR), vr(tb), vr(vR)))
    A('v_and_b32 %s, 7, %s' % (vr(vcp), vr(v_lane)))
    A('v_lshrrev_b32 %s, 5, %s' % (vr(vH), vr(v_lane)))
    A('v_lshlrev_b32 %s, 8, %s' % (vr(va_vs), vr(ta)))
    A('v_lshl_add_u32 %s, %s, 5, %s' % (vr(va_vs), vr(vcp), vr(va_vs)))
    A('v_lshl_add_u32 %s, %s, 4, %s' % (vr(va_vs), vr(vH), vr(va_vs)))
    A('v_lshl_add_u32 %s, %s, 2, %s' % (vr(va_vs), vr(tb), vr(va_vs)))
    A('s_andn2_b32 %s, %s, 1024' % (sr(s_t2), sr(s_ob)))
    A('s_lshl_b32 %s, %s, 10' % (sr(s_cnt), sr(s_wh)))
    A('s_add_u32 %s, %s, %s' % (sr(s_t2), sr(s_t2), sr(s_cnt)))
    A('s_lshl_b32 %s, %s, 3' % (sr(s_cnt), sr(s_p)))
    A('s_add_u32 %s, %s, %s' % (sr(s_t2), sr(s_t2), sr(s_cnt)))
    A('s_add_u32 %s, %s, 0x%x' % (sr(s_t2), sr(s_t2), VMI))
    A('v_add_u32 %s, %s, %s' % (vr(va_vs), sr(s_t2), vr(va_vs)))
    A('v_bfe_u32 %s, %s, 1, 1' % (vr(ta), vr(vcp)))
    A('v_lshlrev_b32 %s, 8, %s' % (vr(va_qks), vr(ta)))
    A('v_add_u32 %s, %s, %s' % (vr(vR), vr(vR), vr(vH)))
    A('v_lshl_add_u32 %s, %s, 4, %s' % (vr(va_qks), vr(vR), vr(va_qks)))
    A('v_lshrrev_b32 %s, 2, %s' % (vr(ta), vr(vcp)))
    A('v_lshl_add_u32 %s, %s, 3, %s' % (vr(va_qks), vr(ta), vr(va_qks)))
    A('v_and_b32 %s, 1, %s' % (vr(ta), vr(vcp)))
    A('v_lshl_add_u32 %s, %s, 2, %s' % (vr(va_qks), vr(ta), vr(va_qks)))
    A('s_lshl_b32 %s, %s, 9' % (sr(s_t2), sr(s_p)))
    A('v_add_u32 %s, %s, %s' % (vr(va_qks), sr(s_t2), vr(va_qks)))
    A('s_lshl_b32 %s, %s, 7' % (sr(s_t2), sr(s_wh)))
    A('s_add_u32 %s, %s, %s' % (sr(s_t2), sr(s_t2), sr(s_ob)))
    A('s_add_u32 %s, %s, 0x%x' % (sr(s_t2), sr(s_t2), QKI))
    A('v_add_u32 %s, %s, %s' % (vr(va_qks), sr(s_t2), vr(va_qks)))
    A('v_lshlrev_b32 %s, 4, %s' % (vr(va_mems), vr(v_nu)))
    A('v_lshl_add_u32 %s, %s, 2, %s' % (vr(va_mems), vr(v_g), vr(va_mems)))
    A('s_lshl_b32 %s, %s, 8' % (sr(s_t2), sr(s_w)))
    A('s_add_u32 %s, %s, %s' % (sr(s_t2), sr(s_t2), sr(s_obm)))
    A('s_add_u32 %s, %s, 0x%x' % (sr(s_t2), sr(s_t2), MEMI))
    A('v_add_u32 %s, %s, %s' % (vr(va_mems), sr(s_t2), vr(va_mems)))
    A('s_lshl_b32 %s, %s, 10' % (sr(s_t2), sr(s_wh)))
    A('s_xor_b32 %s, %s, %s' % (sr(s_kvo), sr(s_t2), sr(s_ob)))
    A('s_lshl_b32 %s, %s, 19' % (sr(s_t2), sr(s_p)))
    A('s_add_u32 %s, %s, %s' % (sr(s_t2), sr(s_t2), sr(s_kvo)))
    A('s_add_u32 %s, %s, 0x%x' % (sr(s_t2), sr(s_t2), QKI))
    A('s_lshl_b32 %s, %s, 23' % (sr(s_cnt), sr(s_p)))
    A('s_add_u32 %s, %s, %s' % (sr(s_cnt), sr(s_cnt), sr(s_kvo)))
    A('s_add_u32 %s, %s, 0x%x' % (sr(s_cnt), sr(s_cnt), KMO))
    assert VMO - KMO == 1 << 23 and VMI - QKI == 1 << 19
    A('v_add_u32 %s, %s, %s' % (vr(va_rb), sr(s_t2), vr(l16)))
    A('v_add_u32 %s, %s, %s' % (vr(va_cp), sr(s_cnt), vr(l16)))
    A('s_or_b32 %s, %s, %s' % (sr(s_t2), sr(s_x), sr(s_j)))
    A('s_xor_b32 %s, %s, 3' % (sr(s_cnt), sr(s_w)))
    A('s_or_b32 %s, %s, %s' % (sr(s_t2), sr(s_t2), sr(s_cnt)))
    A('s_cmp_eq_u32 %s, 0' % sr(s_t2))
    A('s_mov_b32 %s, 0x%x' % (sr(s_cnt), CTR + DBG_PROG * 128))
    A('s_cselect_b32 %s, %s, 0x%x' % (sr(s_t2), sr(s_cnt), WS_BYTES))
    A('v_and_b32 %s, 3, %s' % (vr(v_sh), vr(v_lane)))
    A('v_lshlrev_b32 %s, 7, %s' % (vr(v_sh), vr(v_sh)))
    A('v_add_u32 %s, %s, %s' % (vr(va_prog), sr(s_t2), vr(v_sh)))
    A('v_cmp_lt_u32 vcc, 3, %s' % vr(v_lane))
    A('v_mov_b32 %s, 0x%x' % (vr(ta), WS_BYTES))
    A('v_cndmask_b32 %s, %s, %s, vcc' % (vr(va_prog), vr(va_prog), vr(ta)))
    A('v_add_u32 %s, 0x%x, %s' % (vr(v_sh), CTR, vr(v_sh)))
    s_h = s_t2
    A('s_lshl_b32 %s, %s, 2' % (sr(s_h), sr(s_x)))
    A('s_add_u32 %s, %s, %s' % (sr(s_h), sr(s_h), sr(s_w)))
    A('s_lshl_b32 %s, %s, 13' % (sr(s_h), sr(s_h)))
    A('v_and_b32 %s, 1, %s' % (vr(ta), vr(v_g)))
    A('v_lshrrev_b32 %s, 1, %s' % (vr(tb), vr(v_g)))
    A('v_lshlrev_b32 %s, 9, %s' % (vr(va_kx), vr(ta)))
    A('v_lshl_add_u32 %s, %s, 10, %s' % (vr(va_kx), vr(tb), vr(va_kx)))
    A('v_add_u32 %s, %s, %s' % (vr(va_kx), sr(s_h), vr(va_kx)))
    A('v_lshl_add_u32 %s, %s, 4, %s' % (vr(va_vx), vr(v_nu), vr(va_kx)))
    A('v_add_u32 %s, 0x%x, %s' % (vr(va_vx), VX, vr(va_vx)))
    A('v_lshrrev_b32 %s, 3, %s' % (vr(ta), vr(v_nu)))
    A('v_lshl_add_u32 %s, %s, 8, %s' % (vr(va_kx), vr(ta), vr(va_kx)))
    A('v_and_b32 %s, 7, %s' % (vr(ta), vr(v_nu)))
    A('v_lshl_add_u32 %s, %s, 4, %s' % (vr(va_kx), vr(ta), vr(va_kx)))
    A('v_add_u32 %s, 0x%x, %s' % (vr(va_kx), KX, vr(va_kx)))
    A('s_lshr_b32 %s, %s, 1' % (sr(s_t2), sr(s_j)))
    A('s_lshl_b32 %s, %s, 2' % (sr(s_t2), sr(s_t2)))
    A('s_add_u32 %s, %s, %s' % (sr(s_t2), sr(s_t2), sr(s_w)))
    A('s_and_b32 %s, %s, 15' % (sr(s_cnt), sr(s_t2)))
    A('s_lshl_b32 %s, %s, 11' % (sr(s_cnt), sr(s_cnt)))
    A('s_lshr_b32 %s, %s, 4' % (sr(s_t2), sr(s_t2)))
    A('s_lshl_b32 %s, %s, 24' % (sr(s_t2), sr(s_t2)))
    assert VX - KX == 1 << 24
    A('s_add_u32 %s, %s, %s' % (sr(s_t2), sr(s_t2), sr(s_cnt)))
    A('s_lshl_b32 %s, %s, 15' % (sr(s_cnt), sr(s_x)))
    A('s_add_u32 %s, %s, %s' % (sr(s_t2), sr(s_t2), sr(s_cnt)))
    A('s_add_u32 %s, %s, 0x%x' % (sr(s_t2), sr(s_t2), KX))
    A('v_lshl_add_u32 %s, %s, 5, %s' % (vr(va_warm), vr(v_lane), sr(s_t2)))
    A('v_add_u32 %s, %d, %s' % (vr(va_or), LDS_O, vr(l16)))
    A('v_lshrrev_b32 %s, 3, %s' % (vr(ta), vr(v_nu)))
    A('v_mul_u32_u24 %s, %d, %s' % (vr(ta), 1024 - 128, vr(ta)))
    A('s_lshl_b32 %s, %s, 11' % (sr(s_t2), sr(s_w)))
    A('v_add3_u32 %s, %s, %s, %s' % (vr(va_ow), sr(s_t2), vr(va_or), vr(ta)))
    if stamps:
        A('s_lshl_b32 %s, %s, 4' % (sr(s_stamp), sr(s_ob)))
        A('s_lshl_b32 %s, %s, 12' % (sr(s_t2), sr(s_w)))
        A('s_add_u32 %s, %s, %s' % (sr(s_stamp), sr(s_stamp), sr(s_t2)))
        A('s_add_u32 %s, %s, 0x%x' % (sr(s_stamp), sr(s_stamp), STAMP))
        A('s_add_u32 %s, %s, 65536' % (sr(s_stl), sr(s_t2)))

    vq1, vq2, vr_, vcq = acc1, acc1 + 1, acc1 + 2, acc1 + 3
    A('v_bfe_u32 %s, %s, 2, 2' % (vr(vr_), vr(v_lane)))
    A('v_and_b32 %s, 3, %s' % (vr(vcq), vr(v_lane)))
    A('v_lshl_add_u32 %s, %s, 3, %s' % (vr(vq2), vr(v_g), vr(vr_)))
    A('v_lshlrev_b32 %s, 6, %s' % (vr(vq1), vr(vq2)))
    A('v_lshl_add_u32 %s, %s, 3, %s' % (vr(vq1), vr(vcq), vr(vq1)))
    A('s_lshl_b32 %s, %s, 14' % (sr(s_t2), sr(s_w)))
    A('v_add_u32 %s, %s, %s' % (vr(vq1), sr(s_t2), vr(vq1)))
    A('v_add_u32 %s, 65536, %s' % (vr(tb), vr(vq1)))
    def ld2(i):
        A('buffer_load_dwordx4 %s, %s, %s, %s offen' % (vr(LND + 4 * i, 4), vr(v2), sr(SRD_B, 4), sr(s_m0)))
        A('s_add_u32 %s, %s, %s' % (sr(s_m0), sr(s_m0), sr(s_m1)))
    for i in range(8):
        ld2(i)
    A('s_waitcnt vmcnt(8)')
    A('s_barrier')
    n2 = 8
    for kk in range(4):
        for tl in range(4):
            for bh in range(2):
                for q in range(2):
                    A('ds_read_b64_tr_b16 %s, %s offset:%d' % (ar(W1 + 8 * (kk * 4 + tl) + 4 * bh + 2 * q, 2), vr(tb if tl >= 2 else vq1), kk * 4096 + bh * 2048 + q * 256 + (tl & 1) * 32))
            ld2(n2)
            n2 += 1
            A('s_waitcnt lgkmcnt(8)')
    A('s_waitcnt lgkmcnt(0)')
    A('s_barrier')
    A('s_lshl_b32 %s, %s, 10' % (sr(s_t2), sr(s_w)))
    A('v_add_u32 %s, %s, %s' % (vr(ta), sr(s_t2), vr(l16)))
    A('v_add_u32 %s, 65536, %s' % (vr(tb), vr(ta)))
    for i in range(32):
        if n2 < 32 and i % 2 == 0:
            ld2(n2)
            n2 += 1
        A('s_waitcnt vmcnt(%d)' % (n2 - 1 - i))
        A('ds_write_b128 %s, %s offset:%d' % (vr(ta if i < 16 else tb), vr(LND + 4 * i, 4), (i & 15) * 4096))
        if i & 3 == 3:
            A('s_waitcnt lgkmcnt(8)')
    A('s_waitcnt lgkmcnt(0)')
    A('s_barrier')
    codepf()
    LtN, LtJ = A.uid('tN'), A.uid('tJ')
    A('s_cmp_lg_u32 %s, 0' % sr(s_red))
    A('s_cbranch_scc1 ' + LtN)
    A('v_lshlrev_b32 %s, 7, %s' % (vr(ta), vr(vq2)))
    A('v_lshl_add_u32 %s, %s, 3, %s' % (vr(ta), vr(vcq), vr(ta)))
    A('s_lshl_b32 %s, %s, 15' % (sr(s_t2), sr(s_w)))
    A('v_add_u32 %s, %s, %s' % (vr(ta), sr(s_t2), vr(ta)))
    for kk in range(4):
        for tv in range(4):
            for bh in range(2):
                for q in range(2):
                    A('ds_read_b64_tr_b16 %s, %s offset:%d' % (ar(W2 + 8 * (kk * 4 + tv) + 4 * bh + 2 * q, 2), vr(ta), kk * 8192 + bh * 4096 + q * 512 + tv * 32))
            A('s_waitcnt lgkmcnt(8)')
    A('s_branch ' + LtJ)
    A.label(LtN)
    A('v_and_b32 %s, 1, %s' % (vr(ta), vr(v_g)))
    A('v_lshl_add_u32 %s, %s, 5, %s' % (vr(ta), vr(ta), vr(vr_)))
    A('v_lshrrev_b32 %s, 1, %s' % (vr(tb), vr(v_g)))
    A('v_lshl_add_u32 %s, %s, 2, %s' % (vr(ta), vr(tb), vr(ta)))
    A('v_lshlrev_b32 %s, 8, %s' % (vr(ta), vr(ta)))
    A('v_lshl_add_u32 %s, %s, 3, %s' % (vr(ta), vr(vcq), vr(ta)))
    A('s_lshl_b32 %s, %s, 5' % (sr(s_t2), sr(s_w)))
    A('v_add_u32 %s, %s, %s' % (vr(ta), sr(s_t2), vr(ta)))
    A('v_add_u32 %s, 65536, %s' % (vr(tb), vr(ta)))
    for k in range(8):
        for u in range(2):
            for bh in range(2):
                for q in range(2):
                    A('ds_read_b64_tr_b16 %s, %s offset:%d' % (ar(W2 + 8 * (k * 2 + u) + 4 * bh + 2 * q, 2), vr(ta if k < 4 else tb), (k & 3) * 16384 + q * 4096 + bh * 2048 + u * 128))
            A('s_waitcnt lgkmcnt(8)')
    A.label(LtJ)
    A('s_waitcnt lgkmcnt(0)')
    A('s_barrier')

    def pf_ops():
        o = []
        for eb in range(4):
            so = s_kx if eb < 2 else s_kx2
            o.append('buffer_load_dwordx4 %s, %s, %s, %s offen offset:%d sc1' % (vr(KXA + 4 * eb, 4), vr(va_kx), sr(SRD_WS, 4), sr(so), (eb & 1) * 2048))
            o.append('buffer_load_dwordx4 %s, %s, %s, %s offen offset:%d sc1' % (vr(KXB + 4 * eb, 4), vr(va_kx), sr(SRD_WS, 4), sr(so), (eb & 1) * 2048 + 128))
        for T in range(8):
            eb = T >> 1
            so = s_kx if eb < 2 else s_kx2
            o.append('buffer_load_dwordx4 %s, %s, %s, %s offen offset:%d sc1' % (vr(VXR + 4 * T, 4), vr(va_vx), sr(SRD_WS, 4), sr(so), (eb & 1) * 2048 + (T & 1) * 256))
        return o

    def emit(t):
        A(t)
        if t.startswith('buffer_'):
            nvm[0] += 1

    A('s_mov_b32 %s, 0' % sr(s_step))
    A('s_mov_b32 %s, 0x40404044' % sr(s_kvm))
    A('s_mov_b32 %s, 0x00404040' % sr(s_kvm + 1))
    A('s_mov_b32 %s, 0' % sr(s_slot))
    A('s_mov_b32 %s, 0x20000' % sr(s_slot1))
    A('s_mov_b32 %s, 0x40000' % sr(s_slot2))
    A('s_mov_b32 %s, 0' % sr(s_slotp))
    A('s_mov_b32 %s, 0' % sr(s_kx))
    A('s_mov_b32 %s, 4096' % sr(s_kx2))
    A('s_mov_b32 %s, 0' % sr(s_out))
    A('s_mov_b32 %s, 0x%x' % (sr(s_outp), WS_BYTES))
    A('s_mov_b32 %s, 0' % sr(s_ps))
    A('s_mov_b32 %s, 0x80000' % sr(s_ps2))
    A('s_mov_b32 %s, %d' % (sr(s_kvo), DBG_KV0 * 128))

    def kv_wait(tag):
        Lw, Ld, L0 = A.uid('kvw' + tag), A.uid('kvd' + tag), A.uid('kv0' + tag)
        A('s_mov_b32 %s, 0' % sr(s_cnt))
        A('s_branch ' + L0)
        A.label(Lw)
        A('s_sleep 6')
        A.label(L0)
        A('buffer_load_dword %s, %s, %s, %s offen sc1' % (vr(v_kvf), vr(v_sh), sr(SRD_WS, 4), sr(s_kvo)))
        A('s_add_u32 %s, %s, 1' % (sr(s_cnt), sr(s_cnt)))
        A('s_cmp_gt_u32 %s, %s' % (sr(s_cnt), sr(s_lim)))
        A('s_cbranch_scc1 ' + Ld)
        A('s_waitcnt vmcnt(0)')
        A('v_cmp_gt_u32 vcc, 32, %s' % vr(v_kvf))
        A('s_cbranch_vccnz ' + Lw)
        A.label(Ld)
        A('s_waitcnt vmcnt(0)')
    stamp(7)
    place_check(A, SRD_T, v_lane, v_t[0], v_t[1], s_cnt, POLL_LIMIT, L_restart)
    L_rdy, L_rdy_done, L_rdy0 = A.uid('rdy'), A.uid('rdyd'), A.uid('rdy0')
    A('v_mov_b32 %s, 32' % vr(v_t[0]))
    A('s_mov_b32 %s, 0' % sr(s_cnt))
    A('s_branch ' + L_rdy0)
    A.label(L_rdy)
    A('s_sleep 6')
    A.label(L_rdy0)
    A('buffer_load_dword %s, %s, %s, 0 offen sc1' % (vr(acc1 + 1), vr(v_t[0]), sr(SRD_T, 4)))
    A('s_add_u32 %s, %s, 1' % (sr(s_cnt), sr(s_cnt)))
    A('s_cmp_gt_u32 %s, %s' % (sr(s_cnt), sr(s_lim)))
    A('s_cbranch_scc1 ' + L_rdy_done)
    A('s_waitcnt vmcnt(0)')
    A('v_and_b32 %s, 0xffff, %s' % (vr(acc1), vr(acc1 + 1)))
    A('v_cmp_gt_u32 vcc, 128, %s' % vr(acc1))
    A('s_cbranch_vccnz ' + L_rdy)
    A.label(L_rdy_done)
    A('s_waitcnt vmcnt(0)')
    if TWO:
        A('s_lshr_b32 %s, %s, 1' % (sr(s_t2), sr(s_x)))
        A('s_lshl_b32 %s, %s, 2' % (sr(s_t2), sr(s_t2)))
        A('s_add_u32 %s, %s, 16' % (sr(s_t2), sr(s_t2)))
        A('v_bfe_u32 %s, %s, %s, 4' % (vr(acc1), vr(acc1 + 1), sr(s_t2)))
        A('v_cmp_lt_u32 vcc, 4, %s' % vr(acc1))
    else:
        A('v_lshrrev_b32 %s, 16, %s' % (vr(acc1), vr(acc1 + 1)))
        A('v_cmp_%s_u32 vcc, 16, %s' % ('lt' if NEARX else 'ge', vr(acc1)))
    A('v_mov_b32 %s, 8192' % vr(acc1 + 1))
    A('v_cndmask_b32 %s, 0, %s, vcc' % (vr(acc1), vr(acc1 + 1)))
    A('v_add_u32 %s, %s, %s' % (vr(va_pr), vr(va_pr), vr(acc1)))
    A('v_add_u32 %s, %s, %s' % (vr(va_pw), vr(va_pw), vr(acc1)))
    A('v_mul_u32_u24 %s, 252, %s' % (vr(acc1), vr(v_g)))
    A('v_sub_u32 %s, %s, %s' % (vr(va_pd), vr(va_pw), vr(acc1)))
    A('v_and_b32 %s, 0x%x, %s' % (vr(va_pd), 0xffffffff ^ 16384, vr(va_pd)))
    A('v_lshlrev_b32 %s, 8, %s' % (vr(acc1), vr(v_g)))
    A('v_sub_u32 %s, %s, %s' % (vr(va_pz), vr(va_pw), vr(acc1)))
    A('v_and_b32 %s, 1, %s' % (vr(acc1), vr(v_g)))
    A('v_lshlrev_b32 %s, 14, %s' % (vr(acc1), vr(acc1)))
    A('v_xor_b32 %s, %s, %s' % (vr(va_pz), vr(va_pz), vr(acc1)))
    A('v_lshrrev_b32 %s, 1, %s' % (vr(acc1), vr(v_g)))
    if TWO:
        A('v_lshlrev_b32 %s, 13, %s' % (vr(acc1), vr(acc1)))
        A('v_xor_b32 %s, %s, %s' % (vr(va_pz), vr(acc1), vr(va_pz)))
    else:
        A('v_lshl_add_u32 %s, %s, 28, %s' % (vr(va_pz), vr(acc1), vr(va_pz)))
    A('v_add_u32 %s, 16384, %s' % (vr(va_pw), vr(va_pd)))
    A('v_lshlrev_b32 %s, 2, %s' % (vr(acc1), vr(v_g)))
    A('v_sub_u32 %s, %s, %s' % (vr(va_pg), vr(va_pd), vr(acc1)))
    A('v_lshrrev_b32 %s, 1, %s' % (vr(acc1), vr(v_g)))
    A('v_lshl_add_u32 %s, %s, 14, %s' % (vr(va_pg), vr(acc1), vr(va_pg)))
    A('v_and_b32 %s, 1, %s' % (vr(acc1), vr(v_g)))
    A('v_lshl_add_u32 %s, %s, 28, %s' % (vr(va_pg), vr(acc1), vr(va_pg)))
    A('v_xor_b32 %s, 8192, %s' % (vr(va_pd), vr(va_pg)))
    kv_wait('0')
    stamp(9)
    dbgt(11)

    ool = []

    def poll(n, load, base, tag, on_ok=None, back=0):
        Lk = [A.uid('poll%s%d' % (tag, k)) for k in range(n)]
        Lc = [A.uid('chk%s%d' % (tag, k)) for k in range(n)]
        Lo = [A.uid('ok%s%d' % (tag, k)) for k in range(n)]
        Lfs = [A.uid('pollf%s%d' % (tag, k)) for k in range(n)]

        def issue(m):
            A.label(Lk[m])
            if back:
                A('s_sleep %d' % back)
            for k in range(m, n):
                A(load(k))
            A('s_add_u32 %s, %s, 1' % (sr(s_cnt), sr(s_cnt)))
            A('s_cmp_gt_u32 %s, %s' % (sr(s_cnt), sr(s_lim)))
            A('s_cbranch_scc1 ' + Lfs[m])
        A('s_mov_b32 %s, 0' % sr(s_cnt))
        issue(0)
        for m in range(n):
            A.label(Lc[m])
            A('s_waitcnt vmcnt(%d)' % (n - 1 - m))
            b = base + 4 * m
            A('v_max3_u32 %s, %s, %s, %s' % (vr(v_t[0]), vr(b), vr(b + 1), vr(b + 2)))
            A('v_max_u32 %s, %s, %s' % (vr(v_t[0]), vr(v_t[0]), vr(b + 3)))
            A('v_cmp_eq_u32 vcc, -1, %s' % vr(v_t[0]))
            A('s_cbranch_vccnz ' + Lk[m])
            A.label(Lo[m])
            if on_ok:
                on_ok(m)

        def tail():
            for m in range(1, n):
                issue(m)
                A('s_branch ' + Lc[m])
            for m in range(n):
                A.label(Lfs[m])
                A('s_mov_b32 %s, 0' % sr(s_lim))
                A('s_waitcnt vmcnt(0)')
                A('s_branch ' + Lo[m])
        ool.append(tail)

    def smf(acc, a, w):
        return 'v_smfmac_f32_16x16x64_bf16 %s, %s, %s, %s' % (vr(acc, 4), vr(a, 4), ar(w, 8), vr(v_idx))

    def okA(k):
        for tl in range(4):
            A(smf(AC + 4 * tl, M + 4 * k, W1 + 8 * (k * 4 + tl)))

    def pollA2():
        ld = lambda k: 'buffer_load_dwordx4 %s, %s, %s, %s offen offset:%d sc1' % (vr(M + 4 * k, 4), vr(va_memr), sr(SRD_WS, 4), sr(s_slot), k * 1024)
        Lr = [A.uid('rA%d' % k) for k in range(4)]
        Lo = [A.uid('oA%d' % k) for k in range(4)]

        def chk(k):
            b = M + 4 * k
            return ['s_waitcnt vmcnt(%d)' % (3 - k),
                    'v_max3_u32 %s, %s, %s, %s' % (vr(v_t[0]), vr(b), vr(b + 1), vr(b + 2)),
                    'v_max_u32 %s, %s, %s' % (vr(v_t[0]), vr(v_t[0]), vr(b + 3)),
                    'v_cmp_eq_u32 vcc, -1, %s' % vr(v_t[0])]
        A('s_mov_b32 %s, 1' % sr(s_cnt))
        for k in range(4):
            A(ld(k))
        for t in chk(0):
            A(t)
        for k in range(4):
            A('s_cbranch_vccnz ' + Lr[k])
            A.label(Lo[k])
            c = chk(k + 1) if k < 3 else []
            for tl in range(4):
                A(smf(AC + 4 * tl, M + 4 * k, W1 + 8 * (k * 4 + tl)))
                if c and tl < 3:
                    if tl == 0:
                        A(c.pop(0))
                    A(c.pop(0))

        def tail():
            for k in range(4):
                A.label(Lr[k])
                if A1P and k < 3:
                    Lg = A.uid('gA')
                    A(ld(k))
                    A('s_add_u32 %s, %s, 1' % (sr(s_cnt), sr(s_cnt)))
                    A('s_waitcnt vmcnt(0)')
                    for t in chk(k)[1:]:
                        A(t)
                    A('s_cbranch_vccz ' + Lg)
                    A('s_cmp_le_u32 %s, %s' % (sr(s_cnt), sr(s_lim)))
                    A('s_cbranch_scc1 ' + Lr[k])
                    A('s_mov_b32 %s, 0' % sr(s_lim))
                    A.label(Lg)
                    for m in range(k + 1, 4):
                        A(ld(m))
                    A('s_branch ' + Lo[k])
                    continue
                for m in range(k, 4):
                    A(ld(m))
                A('s_add_u32 %s, %s, 1' % (sr(s_cnt), sr(s_cnt)))
                for t in chk(k):
                    A(t)
                A('s_cbranch_vccz ' + Lo[k])
                A('s_cmp_le_u32 %s, %s' % (sr(s_cnt), sr(s_lim)))
                A('s_cbranch_scc1 ' + Lr[k])
                A('s_mov_b32 %s, 0' % sr(s_lim))
                A('s_branch ' + Lo[k])
        ool.append(tail)

    def advance():
        A('s_add_u32 %s, %s, 1' % (sr(s_step), sr(s_step)))
        A('s_mov_b32 %s, %s' % (sr(s_slotp), sr(s_slot)))
        A('s_mov_b32 %s, %s' % (sr(s_outp), sr(s_out)))
        A('s_mov_b32 %s, %s' % (sr(s_slot), sr(s_slot1)))
        A('s_mov_b32 %s, %s' % (sr(s_slot1), sr(s_slot2)))
        A('s_add_u32 %s, %s, 0x20000' % (sr(s_slot2), sr(s_slot2)))
        A('s_and_b32 %s, %s, 0x7ffff' % (sr(s_slot2), sr(s_slot2)))
        A('s_add_u32 %s, %s, 0x20000' % (sr(s_out), sr(s_out)))
        A('s_lshl_b32 %s, %s, 1' % (sr(s_ps), sr(s_slot)))
        A('s_lshl_b32 %s, %s, 1' % (sr(s_ps2), sr(s_slot2)))
        if stamps:
            A('s_add_u32 %s, %s, 64' % (sr(s_stl), sr(s_stl)))

    def ha_write(tl):
        return ['v_permlane32_swap_b32 %s, %s' % (vr(AC + 4 * tl), vr(AC + 4 * tl + 2)),
                'v_permlane32_swap_b32 %s, %s' % (vr(AC + 4 * tl + 1), vr(AC + 4 * tl + 3)),
                'v_pk_add_f32 %s, %s, %s' % (vr(HA + 2 * tl, 2), vr(AC + 4 * tl, 2), vr(AC + 4 * tl + 2, 2)),
                'ds_write_b64 %s, %s offset:%d' % (vr(va_rw), vr(HA + 2 * tl, 2), tl * 512)]

    def kv_stuff():
        L_kvok, L_kvslow, L_nokv, L_dokv = A.uid('kvok'), A.uid('kvslow'), A.uid('nokv'), A.uid('dokv')
        A('v_cmp_gt_u32 vcc, 32, %s' % vr(v_kvf))
        A('s_cbranch_vccnz ' + L_kvslow)
        A.label(L_kvok)
        A('s_bitcmp1_b64 %s, %s' % (sr(s_kvm, 2), sr(s_step)))
        A('s_cbranch_scc1 ' + L_dokv)
        A.label(L_nokv)

        def t():
            A.label(L_kvslow)
            kv_wait('s')
            A('s_branch ' + L_kvok)
            A.label(L_dokv)
            A('s_add_u32 %s, %s, 2' % (sr(s_kvo), sr(s_step)))
            A('s_lshr_b32 %s, %s, 3' % (sr(s_kvo), sr(s_kvo)))
            A('s_lshl_b32 %s, %s, 9' % (sr(s_kvo), sr(s_kvo)))
            A('s_add_u32 %s, %s, %d' % (sr(s_kvo), sr(s_kvo), DBG_KV * 128))
            A('buffer_load_dword %s, %s, %s, %s offen sc1' % (vr(v_kvf), vr(v_sh), sr(SRD_WS, 4), sr(s_kvo)))
            A('s_branch ' + L_nokv)
        ool.append(t)

    L_lastR, L_lastN, L_fin = name + '_lastR', name + '_lastN', name + '_fin'

    def loop(red, fl):
        tg = ('r' if red else 'n') + ('f' if fl else '')
        ISC = ' sc1' if fl else ''
        nacc = 32 if red else 16
        L_st, L_B = name + '_step' + tg, name + '_B' + tg

        def zero_acc():
            for i in range(nacc):
                A('v_mov_b32 %s, 0' % vr(AC + i))
        A.label(name + '_first' + tg)
        if not red:
            for t in pf_ops():
                A(t)
        zero_acc()
        for k in range(4):
            okA(k)
        A('s_branch ' + L_B)
        A.label(L_st)
        if not (red and ZE):
            zero_acc()
        if A2:
            pollA2()
        else:
            poll(4, lambda k: 'buffer_load_dwordx4 %s, %s, %s, %s offen offset:%d sc1' % (vr(M + 4 * k, 4), vr(va_memr), sr(SRD_WS, 4), sr(s_slot), k * 1024), M, 'A', okA)
        A.label(L_B)
        stamp(0)
        vs = [smf(AC + 16 + 4 * tv, M + 4 * k, W2 + 8 * (k * 4 + tv)) for tv in range(4) for k in range(4)] if red else []
        ne = VS[0]
        for tl in range(4):
            h = ha_write(tl)
            if vs and ne > 0:
                A(vs.pop(0))
                ne -= 1
            A(h[0])
            A(h[1])
            if vs and ne > 3 - tl:
                A(vs.pop(0))
                ne -= 1
            A(h[2])
            A(h[3])
        for _ in range(VS[1]):
            if vs:
                A(vs.pop(0))
        A('s_waitcnt lgkmcnt(0)')
        A('s_barrier')
        A('ds_read_b128 %s, %s' % (vr(RD, 4), vr(va_rr)))
        A('ds_read_b128 %s, %s offset:4096' % (vr(RD + 4, 4), vr(va_rr)))
        for _ in range(VS[2]):
            if vs:
                A(vs.pop(0))
        A('s_waitcnt lgkmcnt(0)')
        A('v_pk_add_f32 %s, %s, %s' % (vr(RD, 2), vr(RD, 2), vr(RD + 4, 2)))
        A('v_pk_add_f32 %s, %s, %s' % (vr(RD + 2, 2), vr(RD + 2, 2), vr(RD + 6, 2)))
        A('v_permlane32_swap_b32 %s, %s' % (vr(RD), vr(RD + 1)))
        A('v_permlane32_swap_b32 %s, %s' % (vr(RD + 2), vr(RD + 3)))
        A('v_add_f32 %s, %s, %s' % (vr(v_t[0]), vr(RD), vr(RD + 1)))
        A('v_add_f32 %s, %s, %s' % (vr(v_t[1]), vr(RD + 2), vr(RD + 3)))
        A('v_cvt_pk_bf16_f32 %s, %s, %s' % (vr(v_t[2]), vr(v_t[0]), vr(v_t[1])))
        A('v_pk_min_u16 %s, %s, %s' % (vr(v_t[2]), vr(v_t[2]), sr(s_fffe)))
        A('buffer_store_dword %s, %s, %s, %s offen%s' % (vr(v_t[2]), vr(va_qks), sr(SRD_WS, 4), sr(s_slot), ISC))
        if red:
            for tv in range(4):
                while vs and len(vs) > 4 * (3 - tv) - 4:
                    A(vs.pop(0))
                for t in ha_write(4 + tv):
                    A(t)
            A('s_waitcnt lgkmcnt(0)')
            A('s_barrier')
            A('ds_read_b128 %s, %s offset:2048' % (vr(RD, 4), vr(va_rr)))
            A('ds_read_b128 %s, %s offset:6144' % (vr(RD + 4, 4), vr(va_rr)))
            A('s_waitcnt lgkmcnt(0)')
            A('v_pk_add_f32 %s, %s, %s' % (vr(RD, 2), vr(RD, 2), vr(RD + 4, 2)))
            A('v_pk_add_f32 %s, %s, %s' % (vr(RD + 2, 2), vr(RD + 2, 2), vr(RD + 6, 2)))
            A('v_permlane32_swap_b32 %s, %s' % (vr(RD), vr(RD + 2)))
            A('v_permlane32_swap_b32 %s, %s' % (vr(RD + 1), vr(RD + 3)))
            A('v_pk_add_f32 %s, %s, %s' % (vr(RD, 2), vr(RD, 2), vr(RD + 2, 2)))
            A('v_cvt_pk_bf16_f32 %s, %s, %s' % (vr(v_t[3]), vr(RD), vr(RD + 1)))
            A('v_pk_min_u16 %s, %s, %s' % (vr(v_t[3]), vr(v_t[3]), sr(s_fffe)))
            A('buffer_store_dword %s, %s, %s, %s offen%s' % (vr(v_t[3]), vr(va_vs), sr(SRD_WS, 4), sr(s_slot), ISC))
            stamp(1)
            A('buffer_load_dwordx4 %s, %s, %s, %s offen sc1' % (vr(RB, 4), vr(va_rb), sr(SRD_WS, 4), sr(s_slotp)))
            A('v_mov_b32 %s, %s' % (vr(v_junk2), sr(s_step)))
            A('s_waitcnt vmcnt(0)')
            A('s_barrier')
            A('buffer_store_dwordx4 %s, %s, %s, %s offen sc1' % (vr(RB, 4), vr(va_cp), sr(SRD_WS, 4), sr(s_outp)))
            A('buffer_store_dword %s, %s, %s, 0 offen sc1' % (vr(v_junk2), vr(va_prog), sr(SRD_WS, 4)))
            A('s_cmp_ge_u32 %s, %d' % (sr(s_step), nsteps - 1))
            A('s_cbranch_scc1 ' + L_lastR)
            A('s_add_u32 %s, %s, 0x40000' % (sr(s_kx), sr(s_kx)))
            kv_stuff()
            A('buffer_load_dword %s, %s, %s, %s offen sc1' % (vr(v_junk), vr(va_warm), sr(SRD_WS, 4), sr(s_kx)))
            A('buffer_store_dwordx4 %s, %s, %s, %s offen sc1' % (vr(v_m1, 4), vr(va_pz), sr(SRD_WS, 4), sr(s_ps2)))
            A('buffer_store_dwordx4 %s, %s, %s, %s offen%s' % (vr(v_m1, 4), vr(va_rb), sr(SRD_WS, 4), sr(s_slot2), ISC))
            A('buffer_store_dword %s, %s, %s, %s offen%s' % (vr(v_m1), vr(va_mems), sr(SRD_WS, 4), sr(s_slot2), ISC))
            codepf(59)
            if ZE:
                zero_acc()
            if DELAY_E:
                A('s_sleep %d ; nothing can arrive before the attention is through: do not poll yet' % DELAY_E)
            if HINT:
                Lh, Lhd = A.uid('h'), A.uid('hd')
                if HW0:
                    A('s_cmp_lg_u32 %s, 0' % sr(s_w))
                    A('s_cbranch_scc1 ' + Lhd)
                A('s_mov_b32 %s, 0' % sr(s_cnt))
                A.label(Lh)
                A('buffer_load_dword %s, %s, %s, 0 offen sc1' % (vr(v_t[0]), vr(va_flg), sr(SRD_WS, 4)))
                A('s_add_u32 %s, %s, 1' % (sr(s_cnt), sr(s_cnt)))
                A('s_cmp_gt_u32 %s, %s' % (sr(s_cnt), sr(s_lim)))
                A('s_cbranch_scc1 ' + Lhd)
                A('s_waitcnt vmcnt(0)')
                A('v_cmp_ne_u32 vcc, %s, %s' % (sr(s_step), vr(v_t[0])))
                A('s_cbranch_vccnz ' + Lh)
                A.label(Lhd)
                if HW0:
                    A('s_barrier')
                if HINT > 1:
                    A('s_sleep %d ; partials still in flight: a read that comes too early costs a second fabric round trip' % (HINT - 1))

            def okE(k):
                A('v_mfma_f32_16x16x32_bf16 %s, %s, %s, %s' % (vr(LS, 4), vr(PR + 4 * k, 4), vr(v_sel, 4), '0' if k == 0 else vr(LS, 4)))
            poll(2, lambda k: 'buffer_load_dwordx4 %s, %s, %s, %s offen offset:%d sc1' % (vr(PR + 4 * k, 4), vr(va_pr), sr(SRD_WS, 4), sr(s_ps), k * 1024), PR, 'E', okE, back=E_BACK)
            stamp(6)
            advance()
            A('v_cvt_pk_bf16_f32 %s, %s, %s' % (vr(v_t[2]), vr(LS), vr(LS + 1)))
            A('v_cvt_pk_bf16_f32 %s, %s, %s' % (vr(v_t[3]), vr(LS + 2), vr(LS + 3)))
            A('v_cndmask_b32 %s, %s, %s, %s' % (vr(v_t[2]), vr(v_t[2]), vr(v_t[3]), sr(s_hf, 2)))
            A('v_pk_min_u16 %s, %s, %s' % (vr(v_t[2]), vr(v_t[2]), sr(s_fffe)))
            A('buffer_store_dword %s, %s, %s, %s offen%s' % (vr(v_t[2]), vr(va_mems), sr(SRD_WS, 4), sr(s_slot), ISC))
            if RED_SLEEP:
                A('s_sleep %d ; first poll when the other reducers stores can be visible' % RED_SLEEP)
            A('s_branch ' + L_st)
            return
        stamp(1)
        A('s_cmp_ge_u32 %s, %d' % (sr(s_step), nsteps - 1))
        A('s_cbranch_scc1 ' + L_lastN)
        A('s_add_u32 %s, %s, 0x40000' % (sr(s_kx), sr(s_kx)))
        A('s_add_u32 %s, %s, 0x40000' % (sr(s_kx2), sr(s_kx2)))
        for i in range(4):
            A('v_mov_b32 %s, 0' % vr(acc1 + i))
            A('v_mov_b32 %s, 0' % vr(acc2 + i))
        A('v_mov_b32 %s, %s' % (vr(v_junk2), sr(s_step)))
        if DELAY_C:
            A('s_sleep %d ; first poll when the other CUs q/k stores can be visible' % DELAY_C)
        Lc, Lcf, Lcd = A.uid('pC'), A.uid('pCf'), A.uid('pCd')
        A('s_mov_b32 %s, 1' % sr(s_cnt))
        A.label(Lc)
        for k in range(4):
            A('buffer_load_dwordx4 %s, %s, %s, %s offen offset:%d sc1' % (vr(QK + 4 * k, 4), vr(va_qkr), sr(SRD_WS, 4), sr(s_slot), k * 1024))
        for t in range(4):
            A('s_waitcnt vmcnt(%d)' % (3 - t))
            q = QK + 4 * t
            A('v_mfma_f32_16x16x32_bf16 %s, %s, %s, %s' % (vr(SA, 4), vr(KXA + 4 * t, 4), vr(q, 4), vr(v_maskx, 4) if t == 0 else vr(SA, 4)))
            if t == 0:
                A('v_max3_u32 %s, %s, %s, %s' % (vr(v_t[0]), vr(q), vr(q + 1), vr(q + 2)))
            else:
                A('v_max3_u32 %s, %s, %s, %s' % (vr(v_t[0]), vr(v_t[0]), vr(q), vr(q + 1)))
            A('v_mfma_f32_16x16x32_bf16 %s, %s, %s, %s' % (vr(SB, 4), vr(KXB + 4 * t, 4), vr(q, 4), vr(v_maskx, 4) if t == 0 else vr(SB, 4)))
            if t == 0:
                A('v_max_u32 %s, %s, %s' % (vr(v_t[0]), vr(v_t[0]), vr(q + 3)))
            else:
                A('v_max3_u32 %s, %s, %s, %s' % (vr(v_t[0]), vr(v_t[0]), vr(q + 2), vr(q + 3)))
            if t == 3:
                A('v_cmp_eq_u32 vcc, -1, %s' % vr(v_t[0]))
            A('v_mfma_f32_16x16x32_bf16 %s, %s, %s, %s' % (vr(SM, 4), vr(q, 4), vr(q, 4), vr(v_mask, 4) if t == 0 else vr(SM, 4)))
        A('s_cbranch_vccnz ' + Lcf)
        A.label(Lcd)

        def tailC():
            A.label(Lcf)
            A('s_add_u32 %s, %s, 1' % (sr(s_cnt), sr(s_cnt)))
            A('s_cmp_le_u32 %s, %s' % (sr(s_cnt), sr(s_lim)))
            A('s_cbranch_scc1 ' + Lc)
            A('s_mov_b32 %s, 0' % sr(s_lim))
            A('s_branch ' + Lcd)
        ool.append(tailC)
        stamp(2)

        def vload(k):
            return 'buffer_load_dwordx4 %s, %s, %s, %s offen offset:%d sc1' % (vr(VMR + 4 * k, 4), vr(va_vmr), sr(SRD_WS, 4), sr(s_slot), k * 1024)
        side = pf_ops() if not NOPF else []
        s = [SA + i for i in range(12)]
        sm = []
        sm.append('v_max3_f32 %s, %s, %s, %s' % (vr(v_mx), vr(s[0]), vr(s[1]), vr(s[2])))
        sm.append('v_max3_f32 %s, %s, %s, %s' % (vr(v_mx2), vr(s[3]), vr(s[4]), vr(v_bias)))
        sm.append('v_max3_f32 %s, %s, %s, %s' % (vr(v_mx), vr(v_mx), vr(s[5]), vr(s[6])))
        sm.append('v_max3_f32 %s, %s, %s, %s' % (vr(v_mx2), vr(v_mx2), vr(s[7]), vr(s[8])))
        sm.append('v_max3_f32 %s, %s, %s, %s' % (vr(v_mx), vr(v_mx), vr(s[9]), vr(s[10])))
        sm.append('v_max3_f32 %s, %s, %s, %s' % (vr(v_mx), vr(v_mx), vr(v_mx2), vr(s[11])))
        for sw in ('v_permlane32_swap_b32', 'v_permlane16_swap_b32'):
            sm.append('v_mov_b32 %s, %s' % (vr(v_mx2), vr(v_mx)))
            sm.append('%s %s, %s' % (sw, vr(v_mx), vr(v_mx2)))
            sm.append('v_max_f32 %s, %s, %s' % (vr(v_mx), vr(v_mx), vr(v_mx2)))
        sm.append('v_mul_f32 %s, %s, %s' % (vr(v_mx), sr(s_c), vr(v_mx)))
        if PKF:
            for i in range(0, 8, 2):
                sm.append('v_pk_fma_f32 %s, %s, %s, %s op_sel_hi:[1,0,0] neg_lo:[0,0,1] neg_hi:[0,0,1]' % (vr(s[i], 2), vr(s[i], 2), vr(v_cc, 2), vr(v_mx, 2)))
        else:
            for i in range(8):
                sm.append('v_fma_f32 %s, %s, %s, -%s' % (vr(s[i]), vr(s[i]), sr(s_c), vr(v_mx)))
        for i in range(8):
            sm.append('v_exp_f32 %s, %s' % (vr(s[i]), vr(s[i])))
            if i >= 2 and i % 2 == 0:
                sm.append('v_cvt_pk_bf16_f32 %s, %s, %s' % (vr(PX + i // 2 - 1), vr(s[i - 2]), vr(s[i - 1])))
        sm.append('v_fma_f32 %s, %s, %s, -%s' % (vr(s[8]), vr(s[8]), sr(s_c), vr(v_mx)))
        sm.append('v_cvt_pk_bf16_f32 %s, %s, %s' % (vr(PX + 3), vr(s[6]), vr(s[7])))
        sm.append('v_fma_f32 %s, %s, %s, -%s' % (vr(s[9]), vr(s[9]), sr(s_c), vr(v_mx)))
        for i, m in enumerate(sm):
            if PKF:
                if i == 7:
                    A(vload(0))
                    A(vload(1))
            elif i == DELAY_V:
                A(vload(0))
                A(vload(1))
            A(m)
        stamp(3)

        def dpp8(d, srcr):
            return 'v_mov_b32_dpp %s, %s row_shr:8 row_mask:0xf bank_mask:0xf bound_ctrl:0' % (vr(d), vr(srcr))
        t = v_t
        sh = []
        for i in range(10, 12):
            sh.append('v_fma_f32 %s, %s, %s, -%s' % (vr(s[i]), vr(s[i]), sr(s_c), vr(v_mx)))
        for i in range(4):
            sh.append(dpp8(PXH + i, PX + i))
        for i in range(8, 12):
            sh.append('v_exp_f32 %s, %s' % (vr(s[i]), vr(s[i])))
        for i in range(2):
            sh.append('v_cvt_pk_bf16_f32 %s, %s, %s' % (vr(PM + i), vr(s[8 + 2 * i]), vr(s[9 + 2 * i])))
        ls16 = 'v_mfma_f32_16x16x16_bf16 %s, %s, %s, %s' % (vr(LS, 4), vr(v_ones, 2), vr(PM, 2), vr(LS, 4))
        if PV2:
            sh.append(dpp8(PMH, PM))
            sh.append(dpp8(PMH + 1, PM + 1))
            sh.append(ls16)
            sh.append('s_waitcnt vmcnt(0)')
            sh.append('v_max3_u32 %s, %s, %s, %s' % (vr(t[0]), vr(VMR), vr(VMR + 1), vr(VMR + 2)))
            sh.append('v_max3_u32 %s, %s, %s, %s' % (vr(t[1]), vr(VMR + 3), vr(VMR + 4), vr(VMR + 5)))
            sh.append('v_permlane32_swap_b32 %s, %s' % (vr(PMH), vr(PM)))
            sh.append('v_permlane32_swap_b32 %s, %s' % (vr(PMH + 1), vr(PM + 1)))
            sh.append('v_max3_u32 %s, %s, %s, %s' % (vr(t[0]), vr(t[0]), vr(VMR + 6), vr(VMR + 7)))
            sh.append('v_max_u32 %s, %s, %s' % (vr(t[0]), vr(t[0]), vr(t[1])))
            sh.append('v_cmp_eq_u32 vcc, -1, %s' % vr(t[0]))
            sh.append('v_rcp_f32 %s, %s' % (vr(v_l), vr(LS)))
        else:
            sh.append('s_waitcnt vmcnt(0)')
            sh.append('v_max3_u32 %s, %s, %s, %s' % (vr(t[0]), vr(VMR), vr(VMR + 1), vr(VMR + 2)))
            sh.append('v_max3_u32 %s, %s, %s, %s' % (vr(t[1]), vr(VMR + 3), vr(VMR + 4), vr(VMR + 5)))
            sh.append(dpp8(PMH, PM))
            sh.append(dpp8(PMH + 1, PM + 1))
            sh.append('v_max3_u32 %s, %s, %s, %s' % (vr(t[0]), vr(t[0]), vr(VMR + 6), vr(VMR + 7)))
            sh.append('v_max_u32 %s, %s, %s' % (vr(t[0]), vr(t[0]), vr(t[1])))
            sh.append('v_permlane32_swap_b32 %s, %s' % (vr(PMH), vr(PM)))
            sh.append('v_permlane32_swap_b32 %s, %s' % (vr(PMH + 1), vr(PM + 1)))
            sh.append('v_cmp_eq_u32 vcc, -1, %s' % vr(t[0]))
        mf = ['v_mfma_f32_16x16x32_bf16 %s, %s, %s, 0' % (vr(LS, 4), vr(v_ones, 4), vr(PX, 4))]
        for a in range(4):
            mf.append('v_mfma_f32_16x16x32_bf16 %s, %s, %s, 0' % (vr(O + 4 * a, 4), vr(VXR + 4 * a, 4), vr(PX, 4)))
        for a in range(4):
            mf.append('v_mfma_f32_16x16x32_bf16 %s, %s, %s, %s' % (vr(O + 4 * a, 4), vr(VXR + 4 * (a + 4), 4), vr(PXH, 4), vr(O + 4 * a, 4)))
        per = [3, 3, 2, 2, 2, 3, 3, 3, 2] if PV2 else [3, 3, 2, 2, 2, 2, 3, 3, 1]
        for i, m in enumerate(mf):
            A(m)
            for _ in range(per[i]):
                if sh:
                    x = sh.pop(0)
                    if x.startswith('s_waitcnt'):
                        A(x)
                        x = sh.pop(0)
                    A(x)
        assert not sh
        Lv_ok, Lv_slow = A.uid('vok'), A.uid('vslow')
        A('s_cbranch_vccnz ' + Lv_slow)
        A.label(Lv_ok)

        def tailV():
            A.label(Lv_slow)
            poll(2, vload, VMR, 'V')
            A('s_branch ' + Lv_ok)
        ool.append(tailV)
        if not PV2:
            A(ls16)
        for a in range(4):
            A('v_mfma_f32_16x16x16_bf16 %s, %s, %s, %s' % (vr(O + 4 * a, 4), vr(VMR + 2 * a, 2), vr(PM, 2), vr(O + 4 * a, 4)))
            if PV2 and a == 1:
                A('v_mov_b32_dpp %s, %s row_shr:8 row_mask:0xf bank_mask:0xc' % (vr(v_l), vr(v_l)))
        if not PV2:
            A('v_rcp_f32 %s, %s' % (vr(v_l), vr(LS)))
            A('v_mov_b32_dpp %s, %s row_shr:8 row_mask:0xf bank_mask:0xc' % (vr(v_l), vr(v_l)))
        for a in range(4):
            for r in range(0, 4, 2):
                A('v_pk_mul_f32 %s, %s, %s op_sel_hi:[1,0]' % (vr(O + 4 * a + r, 2), vr(O + 4 * a + r, 2), vr(v_l, 2)))
            A('v_cvt_pk_bf16_f32 %s, %s, %s' % (vr(XY + a), vr(O + 4 * a), vr(O + 4 * a + 1)))
            A('v_cvt_pk_bf16_f32 %s, %s, %s' % (vr(XY + 4 + a), vr(O + 4 * a + 2), vr(O + 4 * a + 3)))
        A('ds_write_b128 %s, %s' % (vr(va_ow), vr(XY, 4)))
        A('ds_write_b128 %s, %s offset:128' % (vr(va_ow), vr(XY + 4, 4)))
        A('s_waitcnt lgkmcnt(0)')
        stamp(4)
        A('s_barrier')
        if HINT:
            A('buffer_store_dword %s, %s, %s, 0 offen%s' % (vr(v_junk2), vr(va_flg), sr(SRD_WS, 4), ISC))
        for k in range(8):
            A('ds_read_b128 %s, %s offset:%d' % (vr(G + 4 * k, 4), vr(va_or), k * 1024))
        def epi3(acc, va):
            return ['v_permlane32_swap_b32 %s, %s' % (vr(acc), vr(acc + 2)),
                    'v_permlane32_swap_b32 %s, %s' % (vr(acc + 1), vr(acc + 3)),
                    'v_pk_add_f32 %s, %s, %s' % (vr(acc, 2), vr(acc, 2), vr(acc + 2, 2)),
                    'v_cvt_pk_bf16_f32 %s, %s, %s' % (vr(acc), vr(acc), vr(acc + 1)),
                    'v_pk_min_u16 %s, %s, %s' % (vr(acc), vr(acc), sr(s_fffe)),
                    'buffer_store_dword %s, %s, %s, %s offen sc1' % (vr(acc), vr(va), sr(SRD_WS, 4), sr(s_ps))]
        if S3 == 2:
            D = VMR
            for k in range(8):
                A('s_waitcnt lgkmcnt(%d)' % (7 - k))
                A(smf(acc1, G + 4 * k, W2 + 8 * (2 * k)))
                if k < 2:
                    A(smf(acc2, G + 4 * k, W2 + 8 * (2 * k + 1)))
            e1 = epi3(acc1, va_pd)[:3] + ['v_cvt_pk_bf16_f32 %s, %s, %s' % (vr(D), vr(acc1), vr(acc1 + 1)),
                                          'v_pk_min_u16 %s, %s, %s' % (vr(D), vr(D), sr(s_fffe))]
            for k in range(2, 8):
                A(smf(acc2, G + 4 * k, W2 + 8 * (2 * k + 1)))
                if k >= 4:
                    for _ in range(2):
                        if e1:
                            A(e1.pop(0))
            for t_ in e1 + epi3(acc2, va_pw)[:3]:
                A(t_)
            A('v_cvt_pk_bf16_f32 %s, %s, %s' % (vr(D + 2), vr(acc2), vr(acc2 + 1)))
            A('v_pk_min_u16 %s, %s, %s' % (vr(D + 2), vr(D + 2), sr(s_fffe)))
            A('v_permlane32_swap_b32 %s, %s' % (vr(D), vr(D + 2)))
            A('v_permlane16_swap_b32 %s, %s' % (vr(D), vr(D + 1)))
            A('v_permlane16_swap_b32 %s, %s' % (vr(D + 2), vr(D + 3)))
            if TWO:
                A('buffer_store_dwordx4 %s, %s, %s, %s offen sc1' % (vr(D, 4), vr(va_pd), sr(SRD_WS, 4), sr(s_ps)))
            A('buffer_store_dwordx4 %s, %s, %s, %s offen sc1' % (vr(D, 4), vr(va_pg), sr(SRD_WS, 4), sr(s_ps)))
        elif S3:
            for k in range(8):
                A('s_waitcnt lgkmcnt(%d)' % (7 - k))
                A(smf(acc1, G + 4 * k, W2 + 8 * (2 * k)))
                if k < 2:
                    A(smf(acc2, G + 4 * k, W2 + 8 * (2 * k + 1)))
            e1 = epi3(acc1, va_pd)
            for k in range(2, 8):
                A(smf(acc2, G + 4 * k, W2 + 8 * (2 * k + 1)))
                if k >= 4:
                    for _ in range(2):
                        if e1:
                            A(e1.pop(0))
            for t_ in e1 + epi3(acc2, va_pw):
                A(t_)
        else:
            for k in range(8):
                A('s_waitcnt lgkmcnt(%d)' % (7 - k))
                A(smf(acc1, G + 4 * k, W2 + 8 * (2 * k)))
                A(smf(acc2, G + 4 * k, W2 + 8 * (2 * k + 1)))
            for t_ in epi3(acc1, va_pd) + epi3(acc2, va_pw):
                A(t_)
        stamp(5)
        kv_stuff()
        codepf(59)
        for x in side:
            A(x)
        advance()
        if NOE_SLEEP:
            A('s_sleep %d ; the next memory state needs a cross-XCD exchange first: do not poll yet' % NOE_SLEEP)
        A('s_branch ' + L_st)

    L_safe = A.uid('safe')
    A('s_cmp_lg_u32 s%d, 0' % S_MODE)
    A('s_cbranch_scc1 ' + L_safe)
    for fl in (False, True):
        if fl:
            A.label(L_safe)
        A('s_cmp_lg_u32 %s, 0' % sr(s_red))
        A('s_cbranch_scc1 ' + name + '_firstn' + ('f' if fl else ''))
        loop(True, fl)
        loop(False, fl)
        while ool:
            ool.pop(0)()
    A.label(L_lastN)
    A('s_waitcnt vmcnt(0)')
    A('s_barrier')
    A('s_cmp_lg_u32 %s, 0' % sr(s_w))
    A('s_cbranch_scc1 ' + L_fin)
    A.label(L_lastR)
    A('s_cmp_eq_u32 %s, 2' % sr(s_w))
    A('s_cbranch_scc1 ' + L_fin)
    A('buffer_load_dwordx4 %s, %s, %s, %s offen sc1' % (vr(M, 4), vr(va_rb), sr(SRD_WS, 4), sr(s_slot)))
    A('s_waitcnt vmcnt(0)')
    A('buffer_store_dwordx4 %s, %s, %s, %s offen sc1' % (vr(M, 4), vr(va_cp), sr(SRD_WS, 4), sr(s_out)))
    A.label(L_fin)
    if stamps:
        A('s_waitcnt lgkmcnt(0)')
        A('v_lshlrev_b32 %s, 4, %s' % (vr(v_t[0]), vr(v_lane)))
        A('s_lshl_b32 %s, %s, 12' % (sr(s_t2), sr(s_w)))
        A('s_add_u32 %s, %s, 65536' % (sr(s_t2), sr(s_t2)))
        A('v_add_u32 %s, %s, %s' % (vr(v_t[1]), sr(s_t2), vr(v_t[0])))
        for k in range(4):
            A('ds_read_b128 %s, %s offset:%d' % (vr(F + 4 * k, 4), vr(v_t[1]), k * 1024))
        A('s_waitcnt lgkmcnt(0)')
        for k in range(4):
            A('buffer_store_dwordx4 %s, %s, %s, %s offen offset:%d' % (vr(F + 4 * k, 4), vr(v_t[0]), sr(SRD_WS, 4), sr(s_stamp), k * 1024))
    A('s_waitcnt vmcnt(0) lgkmcnt(0)')
    A('s_barrier')
    A('s_cmp_lg_u32 %s, 0' % sr(s_w))
    A('s_cbranch_scc1 ' + L_work)
    dbgt(12)
    A('s_lshr_b32 %s, %s, 1' % (sr(s_t0), sr(s_x)))
    A('s_lshl_b32 %s, %s, 7' % (sr(s_t0), sr(s_t0)))
    A('s_add_u32 %s, %s, 0x%x' % (sr(s_t0), sr(s_t0), CTR + DBG_FIN * 128))
    A('v_mov_b32 %s, %s' % (vr(v_t[0]), sr(s_t0)))
    A('v_mov_b32 %s, 1' % vr(v_t[1]))
    A('s_mov_b64 exec, 1')
    A('buffer_atomic_add %s, %s, %s, 0 offen sc1' % (vr(v_t[1]), vr(v_t[0]), sr(SRD_WS, 4)))
    A('s_mov_b64 exec, -1')
    A('s_branch ' + L_work)
    A.label(L_exit)
    A('s_endpgm')
    A.label(L_work)
    worker(A, name)
    A.label(name + '_end')
    A('s_endpgm')
    return dict(vgpr=512, accum=256, sgpr=102)
```

```python
from asmlib import *
from layout import *
from gemm import Gemm, Gemm16
from kernels import mk_srd, load_ptrs, out_direct, out_direct32, place_check, shift_ptrs
import attn
import os, json

LDS_JOB = 131072 + 64
LIM = 200000
WTOUCH = os.environ.get('WTOUCH', '')
WT_ODD = int(os.environ.get('WT_ODD', '1'))
WT2 = int(os.environ.get('WT2', '1'))
EARLY = int(os.environ.get('EARLY', '1'))
LAG = 2 if os.environ.get('OLDCHAIN') else 3
OVL = int(os.environ.get('OVL', '0'))
M16 = int(os.environ.get('M16', '1'))
PEEK = int(os.environ.get('PEEK', '0'))
SLOWT = int(os.environ.get('SLOWT', '0'))
WCPF = int(os.environ.get('WCPF', '0'))
GSPLIT = int(os.environ.get('GSPLIT', '0'))
TEND = int(os.environ.get('TEND', '0'))
WST = int(os.environ.get('WST', '0'))

BL = int(os.environ.get('BL', '0'))
SEGS = [('skv', 16, 0), ('bkv', 16, 1), ('skv', 16, 1), ('bkv', 32, 3), ('bkv', 8, 7), ('q', 16, 0), ('bq', 24, 0),
        ('aattn', 8, 0), ('q', 8, 4), ('aout', 8, 0), ('q', 8, 6), ('aattn', 8, 2), ('battn', 8, 0), ('aout', 8, 2),
        ('battn', 8, 8), ('aattn', 4, 4), ('battn', 16, 16), ('aout', 4, 4), ('aattn1', 4, 20), ('aattn1', 4, 21),
        ('wot', 16, 0), ('aoutr', 2, 10), ('aattn1', 4, 22), ('wot', 16, 16), ('aattn1', 4, 23), ('bout', 8, 0), ('aoutr', 2, 11),
        ('aattn1', 4, 24), ('aattn1', 4, 25), ('bout', 12, 8), ('aoutr', 2, 12), ('bout', 12, 20), ('aattn1', 4, 26),
        ('aattn1', 4, 27), ('aoutd', 8, 26), ('aattn1', 4, 28), ('aoutd', 8, 27), ('aattn1', 4, 29)]
ORD = os.environ.get('ORD', '2')
if ORD == '1':
    SEGS += [('aoutd', 8, 28), ('aattn1', 4, 30), ('aattn1', 4, 31), ('aoute', 16, 58), ('aoute', 16, 60), ('aoute', 16, 62)]
elif ORD == '0':
    SEGS += [('aattn1', 4, 30), ('aattn1', 4, 31), ('aoutd', 8, 28), ('aoute', 16, 58), ('aoute', 16, 60), ('aoute', 16, 62)]
elif ORD == '2':
    SEGS += [('aoutd', 8, 28), ('aattn1', 4, 30), ('aattn1', 4, 31), ('aoutd', 8, 29), ('aoute', 16, 60), ('aoute', 16, 62)]
elif ORD == '3':
    SEGS += [('aoutd', 8, 28), ('aattn1', 4, 30), ('aoutd', 8, 29), ('aattn1', 4, 31), ('aoute', 16, 62), ('aoute', 16, 60)]
elif ORD == '4':
    SEGS += [('aoutd', 8, 28), ('aattn1', 4, 30), ('aattn1', 4, 31), ('aoute', 16, 62), ('aoute', 16, 60), ('aoute', 16, 58)]
SEGS += [('bout', BL, 32 - BL)]
SEGS = [x for x in SEGS if x[1]]
_seen = set()
SEGS = [x for x in SEGS if not (x in _seen or _seen.add(x))]
if os.environ.get('SEGS'):
    SEGS = [tuple(x) for x in json.loads(os.environ['SEGS'])]


def seg_bounds():
    o, a = [], 0
    for k, n, p in SEGS:
        o.append((a, a + n, '%s%d' % (k, p)))
        a += n
    return o


def gen_worker(A, name):
    S = Regs('s', 4, 100)
    P = load_ptrs(A, S)
    SRD_WS = S.alloc(4, 4)
    SRD_D = S.alloc(4, 4)
    SRD_O = S.alloc(4, 4)
    s_w, s_q, s_qn, s_job, s_cfg, s0, s1, s2_, s3, s_base, s_tbs, s_or, s_ctr, s_inc, s_mt, s_nt, s_it, s_k, s_p = [S.alloc() for _ in range(19)]
    s_pp = S.alloc(2, 2)
    s_tm = S.alloc(2, 2)
    s_sa = S.alloc()

    def wstamp(k):
        if not WST:
            return
        A('s_memrealtime %s' % sr(s_tm, 2))
        A('s_waitcnt lgkmcnt(0)')
        A('v_mov_b32 v4, %s' % sr(s_tm))
        A('v_mov_b32 v5, %s' % sr(s_sa))
        A('s_mov_b64 exec, 1')
        A('buffer_store_dword v4, v5, %s, 0 offen offset:%d' % (sr(SRD_WS, 4), 4 * k))
        if k in (2, 3):
            A('s_memtime %s' % sr(s_tm, 2))
            A('s_waitcnt lgkmcnt(0)')
            A('v_mov_b32 v4, %s' % sr(s_tm))
            A('buffer_store_dword v4, v5, %s, 0 offen offset:%d' % (sr(SRD_WS, 4), 4 * (k + 4)))
        A('s_mov_b64 exec, -1')
    def dbgt(word):
        if not int(os.environ.get('DBGT', '0')):
            return
        Lx = A.uid('dt')
        A('s_cmp_lg_u32 %s, 0' % sr(s_w))
        A('s_cbranch_scc1 ' + Lx)
        A('s_memrealtime %s' % sr(s_tm, 2))
        A('s_waitcnt lgkmcnt(0)')
        A('v_mov_b32 v4, %s' % sr(s_tm))
        A('v_mov_b32 v5, %d' % (word * 4))
        A('s_mov_b64 exec, 1')
        A('buffer_atomic_umax v4, v5, %s, 0 offen sc1' % sr(SRD_D, 4))
        A('s_mov_b64 exec, -1')
        A.label(Lx)
    v_lane, v_l16, v_off, v_a, v_b, v_sh = 1, 2, 3, 4, 5, 6
    s_init = S.alloc()
    s_pe, p_base, p_tbs, p_ctr, p_inc = [S.alloc() for _ in range(5)]
    s_et = S.alloc()
    s_wo = S.alloc()
    s_wo2 = S.alloc()
    smark = S.mark()
    V4 = Regs('v', 8, 256)
    G4 = Gemm16(A, S, V4) if M16 else Gemm(A, S, V4, 4, 4)
    hi = S.mark()
    S.release(smark)
    V2 = Regs('v', 8, 256)
    G2 = Gemm(A, S, V2, 2, 2, xsc=' sc1', nst=4)
    assert (G2.SRD_X, G2.SRD_W, G2.s_xo, G2.s_n) == (G4.SRD_X, G4.SRD_W, G4.s_xo, G4.s_n)
    G = G4
    L_next, L_done = name + '_wnext', name + '_wdone'

    A('v_and_b32 %s, 63, v0' % vr(v_lane))
    A('v_lshrrev_b32 %s, 6, v0' % vr(v_l16))
    A('v_readfirstlane_b32 %s, %s' % (sr(s_w), vr(v_l16)))
    A('v_lshlrev_b32 %s, 4, %s' % (vr(v_l16), vr(v_lane)))
    A('v_and_b32 %s, 31, %s' % (vr(v_off), vr(v_lane)))
    A('v_lshlrev_b32 %s, 12, %s' % (vr(v_off), vr(v_off)))
    A('v_lshrrev_b32 %s, 5, %s' % (vr(v_a), vr(v_lane)))
    A('v_lshl_add_u32 %s, %s, 4, %s' % (vr(v_off), vr(v_a), vr(v_off)))
    A('s_and_b32 %s, s%d, 3' % (sr(s_q), S_VX))
    s_hq = s_qn
    nloc = GSPLIT if GSPLIT else len(SEGS)
    NL = sum(n for _, n, _ in SEGS[:nloc])
    A('s_cmp_eq_u32 s3, -1')
    A('s_cselect_b32 %s, %s, %s' % (sr(s_hq), '4' if GSPLIT else sr(s_q), sr(s_q)))
    A('s_mov_b32 %s, 0' % sr(s_cfg))
    A('s_mov_b32 %s, %d' % (sr(s_ctr), DBG_WT))
    A('s_waitcnt lgkmcnt(0)')
    shift_ptrs(A, P['ws'], P['dbg'], s0)
    mk_srd(A, SRD_WS, P['ws'], WS_HALF)
    mk_srd(A, SRD_D, P['dbg'], 128)
    mk_srd(A, SRD_O, P['out'], 2048 * 2048 * 2)

    A('v_and_b32 %s, 3, %s' % (vr(v_sh), vr(v_lane)))
    A('v_lshlrev_b32 %s, 7, %s' % (vr(v_sh), vr(v_sh)))
    A('v_add_u32 %s, 0x%x, %s' % (vr(v_sh), CTR, vr(v_sh)))
    A('v_mov_b32 v7, 0')
    A('s_mov_b32 %s, 0' % sr(s_init))
    A('s_mov_b32 %s, 0' % sr(s_et))
    A('s_mov_b32 %s, 0' % sr(s_pe))
    A('s_mov_b32 %s, %d' % (sr(p_ctr), DBG_WT))
    A('s_mov_b32 %s, 0' % sr(p_inc))
    v_tk = 7

    def early(nop=True):
        if not EARLY:
            return
        Le = A.uid('et')
        if nop:
            A('s_nop 11')
        A('s_cmp_eq_u32 %s, 0' % sr(s_init))
        A('s_cbranch_scc1 ' + Le)
        A('s_mov_b32 %s, 1' % sr(s_et))
        A('s_cmp_lg_u32 %s, 0' % sr(s_w))
        A('s_cbranch_scc1 ' + Le)
        A('s_lshl_b32 %s, %s, 7' % (sr(s_wo), sr(s_hq)))
        A('s_add_u32 %s, %s, 0x%x' % (sr(s_wo), sr(s_wo), CTR + DBG_Q * 128))
        A('v_mov_b32 %s, %s' % (vr(v_a), sr(s_wo)))
        A('v_mov_b32 %s, 1' % vr(v_tk))
        A('s_mov_b64 exec, 1')
        A('buffer_atomic_add %s, %s, %s, 0 offen sc0 sc1' % (vr(v_tk), vr(v_a), sr(SRD_WS, 4)))
        A('s_mov_b64 exec, -1')
        A.label(Le)

    def wait_init():
        Lw, Ld = A.uid('iw'), A.uid('id')
        A('s_cmp_lg_u32 %s, 0' % sr(s_init))
        A('s_cbranch_scc1 ' + Ld)
        A('s_mov_b32 %s, 1' % sr(s_init))
        A('v_mov_b32 %s, %d' % (vr(v_a), DBG_INIT))
        A('s_mov_b32 %s, 0' % sr(s3))
        A.label(Lw)
        A('buffer_load_dword %s, %s, %s, 0 offen sc1' % (vr(v_b), vr(v_a), sr(SRD_D, 4)))
        A('s_add_u32 %s, %s, 1' % (sr(s3), sr(s3)))
        A('s_waitcnt vmcnt(0)')
        A('v_cmp_ne_u32 vcc, 0, %s' % vr(v_b))
        A('s_cbranch_vccnz ' + Ld)
        A('s_sleep 4')
        A('s_cmp_lt_u32 %s, %d' % (sr(s3), LIM))
        A('s_cbranch_scc1 ' + Lw)
        A.label(Ld)
    L_have = A.uid('havejob')
    L_got = A.uid('gotjob')
    A('s_mov_b32 %s, s3' % sr(s_job))
    SRD_T = S.alloc(4, 4)
    hi = max(hi, S.mark())

    def touch(ptrs_sizes, s_id, per_wave_log2):
        A('s_lshl_b32 %s, %s, %d' % (sr(s0), sr(s_id), per_wave_log2))
        A('v_lshlrev_b32 %s, 7, %s' % (vr(v_a), vr(v_lane)))
        for p, nbytes in ptrs_sizes:
            mk_srd(A, SRD_T, P[p], nbytes)
            for i in range(1 << (per_wave_log2 - 13)):
                A('s_add_u32 %s, %s, %d' % (sr(s1), sr(s0), i * 8192))
                A('buffer_load_dword v7, %s, %s, %s offen' % (vr(v_a), sr(SRD_T, 4), sr(s1)))
            A('s_nop 4')
    L_restart = name + '_restart'
    L_st = A.uid('static')
    A('s_cmp_lt_u32 s3, 32')
    A('s_cbranch_scc1 ' + L_st)
    place_check(A, SRD_D, v_lane, v_a, v_b, s3, LIM, L_restart)
    A('s_branch ' + L_next)
    A.label(L_st)
    A('s_branch ' + L_have)
    A.label(L_next)
    Lnf = A.uid('nofetch')
    A('s_cmp_lg_u32 %s, 0' % sr(s_w))
    A('s_cbranch_scc1 ' + Lnf)
    wait_init()
    A('s_lshl_b32 %s, %s, 7' % (sr(s0), sr(s_hq)))
    A('s_add_u32 %s, %s, 0x%x' % (sr(s0), sr(s0), CTR + DBG_Q * 128))
    A('v_mov_b32 %s, %s' % (vr(v_a), sr(s0)))
    A('v_mov_b32 %s, 1' % vr(v_b))
    A('s_mov_b64 exec, 1')
    A('buffer_atomic_add %s, %s, %s, 0 offen sc0 sc1' % (vr(v_b), vr(v_a), sr(SRD_WS, 4)))
    A('s_waitcnt vmcnt(0)')
    A('v_mov_b32 %s, %d' % (vr(v_a), LDS_JOB))
    A('ds_write_b32 %s, %s' % (vr(v_a), vr(v_b)))
    A('s_waitcnt lgkmcnt(0)')
    A('s_mov_b64 exec, -1')
    A.label(Lnf)
    A('s_barrier')
    A('v_mov_b32 %s, %d' % (vr(v_a), LDS_JOB))
    A('ds_read_b32 %s, %s' % (vr(v_b), vr(v_a)))
    A('s_waitcnt lgkmcnt(0)')
    A('v_readfirstlane_b32 %s, %s' % (sr(s_job), vr(v_b)))
    A('s_barrier')
    A.label(L_got)
    if WCPF:
        Lc = A.uid('wc')
        A('s_cmp_lg_u32 %s, 1' % sr(s_w))
        A('s_cbranch_scc1 ' + Lc)
        A('global_load_dword v251, v[252:253], off')
        A.label(Lc)
    A('s_mov_b32 %s, 1' % sr(s_init))
    if GSPLIT:
        Lgl = A.uid('gl')
        A('s_cmp_eq_u32 %s, 4' % sr(s_hq))
        A('s_cbranch_scc1 ' + Lgl)
        A('s_add_u32 %s, %s, 32' % (sr(s_job), sr(s_job)))
        A('s_cmp_lt_u32 %s, %d' % (sr(s_job), NL))
        A('s_cbranch_scc1 ' + L_have)
        A('s_mov_b32 %s, 4' % sr(s_hq))
        A('s_branch ' + L_next)
        A.label(Lgl)
        A('s_and_b32 %s, %s, 3' % (sr(s_q), sr(s_job)))
        A('s_lshr_b32 %s, %s, 2' % (sr(s_job), sr(s_job)))
        A('s_add_u32 %s, %s, %d' % (sr(s_job), sr(s_job), NL))
    else:
        A('s_add_u32 %s, %s, 32' % (sr(s_job), sr(s_job)))
    A.label(L_have)
    if WST:
        A('s_min_u32 %s, %s, 511' % (sr(s0), sr(s_job)))
        A('s_lshl_b32 %s, %s, 9' % (sr(s_sa), sr(s_q)))
        A('s_add_u32 %s, %s, %s' % (sr(s_sa), sr(s_sa), sr(s0)))
        A('s_lshl_b32 %s, %s, 2' % (sr(s_sa), sr(s_sa)))
        A('s_add_u32 %s, %s, %s' % (sr(s_sa), sr(s_sa), sr(s_w)))
        A('s_lshl_b32 %s, %s, 5' % (sr(s_sa), sr(s_sa)))
        A('s_add_u32 %s, %s, 0x%x' % (sr(s_sa), sr(s_sa), STAMP + 0x400000))
        wstamp(0)
    kinds = ('aoutr', 'aoutj', 'skv', 'bkv', 'bq', 'q', 'battn', 'bout', 'wot', 'aattn', 'aout', 'aattn1', 'aoutd', 'aoute', 'big', 'bigA', 'small', 'outc')
    L = {k: A.uid('job' + k) for k in kinds}
    for k, n, p in SEGS:
        A('s_mov_b32 %s, %d' % (sr(s_p), p))
        A('s_cmp_lt_u32 %s, %d' % (sr(s_job), n))
        A('s_cbranch_scc1 ' + L[k])
        A('s_sub_u32 %s, %s, %d' % (sr(s_job), sr(s_job), n))
    QLEN = sum(n for _, n, _ in SEGS)
    L_peek = name + '_wpeek'
    A.label(L_peek)
    if PEEK:
        A('s_mov_b32 %s, %d' % (sr(s0), DBG_Q * 128))
        A('buffer_load_dword %s, %s, %s, %s offen sc1' % (vr(v_b), vr(v_sh), sr(SRD_WS, 4), sr(s0)))
        A('v_lshlrev_b32 %s, 2, %s' % (vr(v_a), vr(v_lane)))
        A('v_add_u32 %s, %d, %s' % (vr(v_a), LDS_JOB + 64, vr(v_a)))
        A('s_waitcnt vmcnt(0)')
        Lp1 = A.uid('pk')
        A('s_cmp_lg_u32 %s, 0' % sr(s_w))
        A('s_cbranch_scc1 ' + Lp1)
        A('ds_write_b32 %s, %s' % (vr(v_a), vr(v_b)))
        A('s_waitcnt lgkmcnt(0)')
        A.label(Lp1)
        A('s_barrier')
        A('ds_read_b32 %s, %s' % (vr(v_b), vr(v_a)))
        A('s_waitcnt lgkmcnt(0)')
        A('s_barrier')
        for k in range(4):
            A('v_readlane_b32 %s, %s, %d' % (sr(s0), vr(v_b), k))
            A('s_mov_b32 %s, %d' % (sr(s_q), k))
            A('s_cmp_lt_u32 %s, %d' % (sr(s0), QLEN - 32))
            A('s_cbranch_scc1 ' + L_next)
    A('s_endpgm')

    def wait_ctr(s_off, thr, s_shift=None, bits=8, slp=12):
        Lw, Ld = A.uid('dw'), A.uid('dd')
        A('s_cmp_lg_u32 %s, 0' % sr(s_w))
        A('s_cbranch_scc1 ' + Ld)
        A('s_lshl_b32 %s, %s, 7' % (sr(s_wo), sr(s_off) if isinstance(s_off, int) else s_off))
        A('s_mov_b32 %s, 0' % sr(s3))
        A.label(Lw)
        A('buffer_load_dword %s, %s, %s, %s offen sc1' % (vr(v_b), vr(v_sh), sr(SRD_WS, 4), sr(s_wo)))
        A('s_add_u32 %s, %s, 1' % (sr(s3), sr(s3)))
        A('s_waitcnt vmcnt(0)')
        if s_shift is not None:
            A('v_bfe_u32 %s, %s, %s, %d' % (vr(v_b), vr(v_b), sr(s_shift), bits))
        A('v_cmp_gt_u32 vcc, %s, %s' % (thr, vr(v_b)))
        A('s_cbranch_vccz ' + Ld)
        A('s_sleep %d ; poll back-off' % slp)
        A('s_cmp_lt_u32 %s, %d' % (sr(s3), LIM))
        A('s_cbranch_scc1 ' + Lw)
        A.label(Ld)
        A('s_barrier')

    def wait2(off1, thr1, off2, thr2, s_shift=None, bits=8, slp=12):
        Lw, Ld, Ln = A.uid('dw'), A.uid('dd'), A.uid('dn')
        tx = lambda o: sr(o) if isinstance(o, int) else o
        A('s_cmp_lg_u32 %s, 0' % sr(s_w))
        A('s_cbranch_scc1 ' + Ld)
        A('s_lshl_b32 %s, %s, 7' % (sr(s_wo), tx(off1)))
        A('s_lshl_b32 %s, %s, 7' % (sr(s_wo2), tx(off2)))
        A('s_mov_b32 %s, 0' % sr(s3))
        A.label(Lw)
        A('buffer_load_dword %s, %s, %s, %s offen sc1' % (vr(v_a), vr(v_sh), sr(SRD_WS, 4), sr(s_wo)))
        A('buffer_load_dword %s, %s, %s, %s offen sc1' % (vr(v_b), vr(v_sh), sr(SRD_WS, 4), sr(s_wo2)))
        A('s_add_u32 %s, %s, 1' % (sr(s3), sr(s3)))
        A('s_waitcnt vmcnt(0)')
        if s_shift is not None:
            A('v_bfe_u32 %s, %s, %s, %d' % (vr(v_b), vr(v_b), sr(s_shift), bits))
        A('v_cmp_gt_u32 vcc, %s, %s' % (thr1, vr(v_a)))
        A('s_cbranch_vccnz ' + Ln)
        A('v_cmp_gt_u32 vcc, %s, %s' % (thr2, vr(v_b)))
        A('s_cbranch_vccz ' + Ld)
        A.label(Ln)
        A('s_sleep %d ; poll back-off' % slp)
        A('s_cmp_lt_u32 %s, %d' % (sr(s3), LIM))
        A('s_cbranch_scc1 ' + Lw)
        A.label(Ld)
        A('s_barrier')

    def cfg(Gx, cid, *args):
        Ls = A.uid('cfg')
        A('s_cmp_eq_u32 %s, %d' % (sr(s_cfg), cid))
        A('s_cbranch_scc1 ' + Ls)
        Gx.setup(v_lane, s_w, (s0, s1), *args)
        A('s_mov_b32 %s, %d' % (sr(s_cfg), cid))
        A.label(Ls)

    def blk_base(mbk, nbk):
        A('s_lshr_b32 %s, %s, 1' % (sr(s0), sr(s_w)))
        A('s_lshl_b32 %s, %s, 1' % (sr(s1), sr(s_mt)))
        A('s_add_u32 %s, %s, %s' % (sr(s0), sr(s0), sr(s1)))
        A('s_mul_i32 %s, %s, %d' % (sr(s0), sr(s0), mbk))
        A('s_mul_i32 %s, %s, %s' % (sr(s0), sr(s0), sr(s_tbs)))
        A('s_add_u32 %s, %s, %s' % (sr(s_base), sr(s_base), sr(s0)))
        A('s_and_b32 %s, %s, 1' % (sr(s0), sr(s_w)))
        A('s_lshl_b32 %s, %s, 1' % (sr(s1), sr(s_nt)))
        A('s_add_u32 %s, %s, %s' % (sr(s0), sr(s0), sr(s1)))
        A('s_mul_i32 %s, %s, %d' % (sr(s0), sr(s0), nbk * 2048))
        A('s_add_u32 %s, %s, %s' % (sr(s_base), sr(s_base), sr(s0)))

    def sel_kv(thr):
        A('s_cmp_ge_u32 %s, %d' % (sr(s_nt), thr))
        A('s_cselect_b32 %s, 1, 0' % sr(s_or))
        A('s_cselect_b64 %s, %s, %s' % (sr(s_pp, 2), sr(P['A_Wv'], 2), sr(P['A_Wk'], 2)))
        A('s_mov_b32 %s, 0x%x' % (sr(s_base), KX))
        A('s_cselect_b32 %s, 0x%x, %s' % (sr(s_base), VX, sr(s_base)))
        A('s_and_b32 %s, %s, %d' % (sr(s_nt), sr(s_nt), thr - 1))

    def ctr(base, s_idx, inc):
        A('s_lshl_b32 %s, %s, 2' % (sr(s_ctr), sr(s_idx)))
        A('s_add_u32 %s, %s, %d' % (sr(s_ctr), sr(s_ctr), base))
        A('s_mov_b32 %s, %d' % (sr(s_inc), inc))

    def nt_q(mask_bits_shift, mask):
        A('s_lshr_b32 %s, %s, %d' % (sr(s_nt), sr(s_job), mask_bits_shift))
        A('s_and_b32 %s, %s, %d' % (sr(s_nt), sr(s_nt), mask))
        A('s_lshl_b32 %s, %s, 2' % (sr(s_nt), sr(s_nt)))
        A('s_add_u32 %s, %s, %s' % (sr(s_nt), sr(s_nt), sr(s_q)))

    A.label(L['skv'])
    A('s_lshr_b32 %s, %s, 1' % (sr(s0), sr(s_p)))
    ctr(DBG_KV, s0, 1)
    A('s_mov_b32 %s, %s' % (sr(s_mt), sr(s_p)))
    nt_q(0, 15)
    sel_kv(32)
    mk_srd(A, G.SRD_W, s_pp, 1024 * 4096 * 2)
    mk_srd(A, G.SRD_X, P['A_x'], 2048 * 1024 * 2)
    A('s_lshl_b32 %s, %s, 18' % (sr(G.s_xo), sr(s_mt)))
    A('s_mov_b32 %s, 128' % sr(G.s_xs))
    A('s_lshl_b32 %s, %s, 8' % (sr(G.s_wo), sr(s_nt)))
    A('s_mov_b32 %s, %d' % (sr(G.s_ws), 64 * 8192))
    A('s_mov_b32 %s, %d' % (sr(s_tbs), 128 * 2048))
    A('s_mov_b32 %s, 3' % sr(G.s_n))
    blk_base(2, 2)
    cfg(G2, 3, 'nat', 2048, 8192)
    A('s_mov_b32 %s, 0' % sr(s_k))
    A('s_branch ' + L['small'])

    A.label(L['aout'])
    A('s_lshr_b32 %s, %s, 2' % (sr(s_mt), sr(s_job)))
    A('s_add_u32 %s, %s, %s' % (sr(s_mt), sr(s_mt), sr(s_p)))
    A('s_lshl_b32 %s, %s, 1' % (sr(s_mt), sr(s_mt)))
    A('s_lshr_b32 %s, %s, 1' % (sr(s0), sr(s_q)))
    A('s_add_u32 %s, %s, %s' % (sr(s_mt), sr(s_mt), sr(s0)))
    A('s_and_b32 %s, %s, 1' % (sr(s_nt), sr(s_q)))
    A('s_lshl_b32 %s, %s, 2' % (sr(s_nt), sr(s_nt)))
    A('s_and_b32 %s, %s, 3' % (sr(s0), sr(s_job)))
    A('s_add_u32 %s, %s, %s' % (sr(s_nt), sr(s_nt), sr(s0)))
    A('s_mov_b32 %s, 4' % sr(s_tbs))
    A('s_mov_b32 %s, 0' % sr(s_it))
    A('s_branch ' + L['aoutj'])
    A.label(L['aoutr'])
    A('s_mov_b32 %s, %s' % (sr(s_mt), sr(s_p)))
    A('s_lshl_b32 %s, %s, 1' % (sr(s_nt), sr(s_q)))
    A('s_add_u32 %s, %s, %s' % (sr(s_nt), sr(s_nt), sr(s_job)))
    A('s_mov_b32 %s, 0x2222' % sr(s_tbs))
    A('s_and_b32 %s, %s, 1' % (sr(s_it), sr(s_p)))
    A('s_lshl_b32 %s, %s, 4' % (sr(s_it), sr(s_it)))
    A.label(L['aoutj'])
    mk_srd(A, G.SRD_W, P['A_Wo'], 4096 * 1024 * 2)
    A('s_mul_i32 %s, %s, %d' % (sr(G.s_xo), sr(s_mt), 4 * 128 * 2048))
    A('s_add_u32 %s, %s, 0x%x' % (sr(G.s_xo), sr(G.s_xo), OA))
    A('s_mov_b32 %s, 15' % sr(G.s_n))
    A('s_mov_b32 %s, 0' % sr(s_base))
    A('s_mov_b32 %s, %d' % (sr(s2_), DBG_AA))
    cfg(G2, 5, 'blk', 128 * 2048, 2048)
    A('s_branch ' + L['outc'])
    A.label(L['bout'])
    A('s_add_u32 %s, %s, %s' % (sr(s_job), sr(s_job), sr(s_p)))
    A('s_lshr_b32 %s, %s, 1' % (sr(s_mt), sr(s_job)))
    nt_q(0, 1)
    mk_srd(A, G.SRD_W, P['B_wo'], 1024 * 1024 * 2)
    A('s_mul_i32 %s, %s, %d' % (sr(G.s_xo), sr(s_mt), 4 * 32 * 2048))
    A('s_add_u32 %s, %s, 0x%x' % (sr(G.s_xo), sr(G.s_xo), OB))
    A('s_mov_b32 %s, 3' % sr(G.s_n))
    A('s_mov_b32 %s, 2048' % sr(s_base))
    A('s_mov_b32 %s, %d' % (sr(s2_), DBG_BA))
    A('s_mov_b32 %s, 4' % sr(s_tbs))
    A('s_mov_b32 %s, 0' % sr(s_it))
    cfg(G2, 4, 'blk', 32 * 2048, 2048)
    A.label(L['outc'])
    mk_srd(A, G.SRD_X, P['ws'], WS_HALF)
    A('s_mov_b32 %s, 4096' % sr(G.s_xs))
    A('s_lshl_b32 %s, %s, 8' % (sr(G.s_wo), sr(s_nt)))
    A('s_mov_b32 %s, %d' % (sr(G.s_ws), 64 * 2048))
    A('s_mov_b32 %s, 0' % sr(s_or))
    A('s_mov_b32 %s, 0' % sr(s_inc))
    A('s_lshr_b32 %s, %s, 1' % (sr(s0), sr(s_w)))
    A('s_lshl_b32 %s, %s, 18' % (sr(s0), sr(s0)))
    A('s_add_u32 %s, %s, %s' % (sr(s_base), sr(s_base), sr(s0)))
    A('s_lshl_b32 %s, %s, 19' % (sr(s0), sr(s_mt)))
    A('s_add_u32 %s, %s, %s' % (sr(s_base), sr(s_base), sr(s0)))
    A('s_and_b32 %s, %s, 1' % (sr(s0), sr(s_w)))
    A('s_lshl_b32 %s, %s, 7' % (sr(s0), sr(s0)))
    A('s_add_u32 %s, %s, %s' % (sr(s_base), sr(s_base), sr(s0)))
    A('s_add_u32 %s, %s, %s' % (sr(s_base), sr(s_base), sr(G.s_wo)))
    A('s_lshr_b32 %s, %s, 1' % (sr(s0), sr(s_mt)))
    A('s_lshl_b32 %s, %s, 2' % (sr(s0), sr(s0)))
    A('s_add_u32 %s, %s, %s' % (sr(s0), sr(s0), sr(s2_)))
    wait_ctr(s0, sr(s_tbs), s_it, bits=16)
    A('s_mov_b32 %s, 1' % sr(s_k))
    A.label(L['small'])
    wstamp(1)
    G2.prologue()
    wstamp(2)
    LN, LE, LO = A.uid('sN'), A.uid('sE'), A.uid('sO')
    A('s_cmp_eq_u32 %s, 1' % sr(s_or))
    A('s_cbranch_scc1 ' + LN)
    G2.mainloop('T', 'st')
    A('s_nop 15')
    A('s_cmp_eq_u32 %s, 1' % sr(s_k))
    A('s_cbranch_scc1 ' + LO)
    A('s_branch ' + LE)
    A.label(LN)
    G2.mainloop('N', 'sn')
    A.label(LE)
    wstamp(3)
    early()
    G2.epi_blk(SRD_WS, v_l16, s_base, s_tbs, s0, ' sc1')
    A('s_branch ' + L_done)
    A.label(LO)
    wstamp(3)
    early()
    G2.epi_out(SRD_O, v_off, s_base)
    A('s_branch ' + L_done)

    A.label(L['wot'])
    A('s_add_u32 %s, %s, %s' % (sr(s_job), sr(s_job), sr(s_p)))
    nt_q(0, 1)
    A('s_lshr_b32 %s, %s, 1' % (sr(s_mt), sr(s_job)))
    mk_srd(A, G.SRD_W, P['A_Wo'], 4096 * 1024 * 2)
    cfg(G2, 5, 'blk', 128 * 2048, 2048)
    A('s_lshl_b32 %s, %s, 8' % (sr(G.s_wo), sr(s_nt)))
    A('s_lshl_b32 %s, %s, 19' % (sr(s0), sr(s_mt)))
    A('s_add_u32 %s, %s, %s' % (sr(G.s_wo), sr(G.s_wo), sr(s0)))
    A('s_mov_b32 %s, 1' % sr(s_inc))
    A('s_mov_b32 %s, %d' % (sr(s_ctr), DBG_WT))
    wstamp(1)
    for st in range(4):
        for g in G2.dma_ops(st)[G2.nX:]:
            for t in g:
                A(t)
        A('s_add_u32 %s, %s, %d' % (sr(G.s_wo), sr(G.s_wo), 64 * 2048))
    A('s_and_b32 %s, %s, 1' % (sr(s0), sr(s_w)))
    A('s_lshl_b32 %s, %s, 1' % (sr(s0), sr(s0)))
    A('s_lshl_b32 %s, %s, 2' % (sr(s1), sr(s_nt)))
    A('s_add_u32 %s, %s, %s' % (sr(s0), sr(s0), sr(s1)))
    A('s_lshl_b32 %s, %s, 18' % (sr(s_base), sr(s0)))
    A('s_lshl_b32 %s, %s, 14' % (sr(s0), sr(s_mt)))
    A('s_add_u32 %s, %s, %s' % (sr(s_base), sr(s_base), sr(s0)))
    A('s_lshr_b32 %s, %s, 1' % (sr(s0), sr(s_w)))
    A('s_lshl_b32 %s, %s, 13' % (sr(s1), sr(s0)))
    A('s_add_u32 %s, %s, %s' % (sr(s_base), sr(s_base), sr(s1)))
    A('s_add_u32 %s, %s, 0x%x' % (sr(s_base), sr(s_base), WOT))
    A('s_mul_i32 %s, %s, %d' % (sr(s0), sr(s0), 2 * G2.STG))
    T = V2.alloc(64, 4)
    ta = [V2.alloc() for _ in range(4)]
    for i in range(2):
        for q in range(2):
            A('v_add_u32 %s, %s, %s' % (vr(ta[2 * i + q]), sr(s0), vr(G2.rw[0][i][q])))
    early()
    A('s_waitcnt vmcnt(0)')
    A('s_barrier')
    for i in range(2):
        for st in range(2):
            for ks in range(4):
                d = T + 4 * ((i * 2 + st) * 4 + ks)
                for q in range(2):
                    A('ds_read_b64_tr_b16 %s, %s offset:%d' % (vr(d + 2 * q, 2), vr(ta[2 * i + q]), st * G2.STG + ks * 16 * G2.wrow))
            A('s_waitcnt lgkmcnt(0)')
    for i in range(2):
        for st in range(2):
            A('s_add_u32 %s, %s, %d' % (sr(s0), sr(s_base), i * 262144 + st * 4096))
            for ks in range(4):
                d = T + 4 * ((i * 2 + st) * 4 + ks)
                A('buffer_store_dwordx4 %s, %s, %s, %s offen offset:%d' % (vr(d, 4), vr(v_l16), sr(SRD_WS, 4), sr(s0), ks * 1024) + ' sc1')
    A('s_branch ' + L_done)

    def wid16():
        A('s_lshl_b32 %s, %s, 4' % (sr(s0), sr(s_q)))
        A('s_add_u32 %s, %s, %s' % (sr(s2_), sr(s_job), sr(s0)))
        A('s_lshl_b32 %s, %s, 2' % (sr(s2_), sr(s2_)))
        A('s_add_u32 %s, %s, %s' % (sr(s2_), sr(s2_), sr(s_w)))
    A.label(L['bkv'])
    if WT2:
        Lnt = A.uid('nt2')
        A('s_cmp_lg_u32 %s, 1' % sr(s_p))
        A('s_cbranch_scc1 ' + Lnt)
        wid16()
        if WTOUCH:
            touch([(k, 8 << 20) for k in WTOUCH.split(',')], s2_, 15)
        if SLOWT:
            A('v_and_b32 %s, 31, %s' % (vr(v_a), vr(v_lane)))
            A('v_lshlrev_b32 %s, 10, %s' % (vr(v_a), vr(v_a)))
            A('s_lshl_b32 %s, %s, 15' % (sr(s0), sr(s2_)))
            A('s_add_u32 %s, %s, 384' % (sr(s0), sr(s0)))
            for k_ in ('A_Wv', 'A_Wq', 'A_Wk', 'A_Wo'):
                mk_srd(A, SRD_T, P[k_], 8 << 20)
                A('buffer_load_dword v7, %s, %s, %s offen' % (vr(v_a), sr(SRD_T, 4), sr(s0)))
                A('s_nop 4')
        touch([('A_x', 4 << 20)], s2_, 14)
        A.label(Lnt)
    if TEND:
        wid16()
        A('s_cmp_eq_u32 %s, 1' % sr(s_p))
        A('s_cselect_b32 %s, %s, -1' % (sr(s_k), sr(s2_)))
    else:
        A('s_lshl_b32 %s, %s, 3' % (sr(s1), sr(s_p)))
        A('s_add_u32 %s, %s, %s' % (sr(s1), sr(s1), sr(s_job)))
        A('s_sub_u32 %s, %s, 24' % (sr(s1), sr(s1)))
        A('s_lshl_b32 %s, %s, 5' % (sr(s0), sr(s_q)))
        A('s_add_u32 %s, %s, %s' % (sr(s_k), sr(s1), sr(s0)))
        A('s_lshl_b32 %s, %s, 2' % (sr(s_k), sr(s_k)))
        A('s_add_u32 %s, %s, %s' % (sr(s_k), sr(s_k), sr(s_w)))
        A('s_cmp_lt_u32 %s, 32' % sr(s1))
        A('s_cselect_b32 %s, %s, -1' % (sr(s_k), sr(s_k)))
    A('s_lshr_b32 %s, %s, 3' % (sr(s_mt), sr(s_job)))
    A('s_add_u32 %s, %s, %s' % (sr(s_mt), sr(s_mt), sr(s_p)))
    nt_q(0, 7)
    sel_kv(16)
    ctr(DBG_KV, s_mt, 4)
    A('s_branch ' + L['bigA'])
    A.label(L['q'])
    A('s_mov_b32 %s, -1' % sr(s_k))
    A('s_lshr_b32 %s, %s, 2' % (sr(s_mt), sr(s_job)))
    A('s_add_u32 %s, %s, %s' % (sr(s_mt), sr(s_mt), sr(s_p)))
    nt_q(0, 3)
    A('s_mov_b64 %s, %s' % (sr(s_pp, 2), sr(P['A_Wq'], 2)))
    A('s_mov_b32 %s, 0x%x' % (sr(s_base), QX))
    A('s_mov_b32 %s, 0' % sr(s_or))
    ctr(DBG_QR, s_mt, 1)
    A.label(L['bigA'])
    mk_srd(A, G.SRD_W, s_pp, 1024 * 4096 * 2)
    mk_srd(A, G.SRD_X, P['A_x'], 2048 * 1024 * 2)
    A('s_lshl_b32 %s, %s, 9' % (sr(G.s_wo), sr(s_nt)))
    A('s_mov_b32 %s, %d' % (sr(G.s_ws), 64 * 8192))
    A('s_mov_b32 %s, %d' % (sr(s_tbs), 128 * 2048))
    cfg(G4, 1, 'nat', 2048, 8192)
    A('s_branch ' + L['big'])
    A.label(L['bq'])
    A('s_add_u32 %s, %s, %s' % (sr(s_job), sr(s_job), sr(s_p)))
    A('s_mov_b32 %s, -1' % sr(s_k))
    A('s_mul_i32 %s, %s, 43' % (sr(s_mt), sr(s_job)))
    A('s_lshr_b32 %s, %s, 7' % (sr(s_mt), sr(s_mt)))
    A('s_mul_i32 %s, %s, 3' % (sr(s0), sr(s_mt)))
    A('s_sub_u32 %s, %s, %s' % (sr(s0), sr(s_job), sr(s0)))
    A('s_cmp_eq_u32 %s, 2' % sr(s0))
    A('s_cselect_b32 %s, 1, 0' % sr(s_or))
    A('s_lshl_b32 %s, %s, 22' % (sr(s_base), sr(s0)))
    A('s_add_u32 %s, %s, 0x%x' % (sr(s_base), sr(s_base), QB))
    A('s_lshl_b32 %s, %s, 2' % (sr(s0), sr(s0)))
    A('s_add_u32 %s, %s, %s' % (sr(s0), sr(s0), sr(s_q)))
    A('s_lshl_b32 %s, %s, 9' % (sr(G.s_wo), sr(s0)))
    A('s_mov_b32 %s, %s' % (sr(s_nt), sr(s_q)))
    mk_srd(A, G.SRD_W, P['B_wqkv'], 1024 * 3072 * 2)
    mk_srd(A, G.SRD_X, P['B_x'], 2048 * 1024 * 2)
    A('s_mov_b32 %s, %d' % (sr(G.s_ws), 64 * 6144))
    A('s_mov_b32 %s, %d' % (sr(s_tbs), 32 * 2048))
    ctr(DBG_BQ, s_mt, 1)
    cfg(G4, 2, 'nat', 2048, 6144)
    A.label(L['big'])
    A('s_lshl_b32 %s, %s, 19' % (sr(G.s_xo), sr(s_mt)))
    A('s_mov_b32 %s, 128' % sr(G.s_xs))
    A('s_mov_b32 %s, 7' % sr(G.s_n))
    blk_base(4, 4)
    wstamp(1)
    G4.prologue_issue()
    if OVL:
        Lpe, Lpj = A.uid('pe'), A.uid('pj')
        A('s_cmp_lg_u32 %s, 0' % sr(s_pe))
        A('s_cbranch_scc1 ' + Lpe)
        A('s_waitcnt vmcnt(16)')
        A('s_branch ' + Lpj)
        A.label(Lpe)
        G4.epi_blk(SRD_WS, v_l16, p_base, p_tbs, s0, ' sc1')
        A('s_waitcnt vmcnt(48)')
        A.label(Lpj)
    else:
        A('s_waitcnt vmcnt(16)')
    G4.prologue_finish()
    wstamp(2)

    def sig_prev():
        Ls = A.uid('sp')
        A('s_cmp_eq_u32 %s, 0' % sr(s_pe))
        A('s_cbranch_scc1 ' + Ls)
        A('s_mov_b32 %s, 0' % sr(s_pe))
        A('s_cmp_lg_u32 %s, 0' % sr(s_w))
        A('s_cbranch_scc1 ' + Ls)
        A('s_add_u32 %s, %s, %s' % (sr(s0), sr(p_ctr), sr(s_q)))
        A('s_lshl_b32 %s, %s, 7' % (sr(s0), sr(s0)))
        A('s_add_u32 %s, %s, 0x%x' % (sr(s0), sr(s0), CTR))
        A('v_mov_b32 %s, %s' % (vr(v_a), sr(s0)))
        A('v_mov_b32 %s, %s' % (vr(v_b), sr(p_inc)))
        A('s_mov_b64 exec, 1')
        A('buffer_atomic_add %s, %s, %s, 0 offen sc1' % (vr(v_b), vr(v_a), sr(SRD_WS, 4)))
        A('s_mov_b64 exec, -1')
        A.label(Ls)
    ht = (lambda: early(False)) if OVL else None
    def touch_b():
        Lnt3 = A.uid('nt3')
        A('s_cmp_eq_u32 %s, -1' % sr(s_k))
        A('s_cbranch_scc1 ' + Lnt3)
        if TEND:
            touch([('B_x', 4 << 20)], s_k, 14)
            touch([('B_wo', 2 << 20)], s_k, 13)
            touch([('B_wqkv', 6 << 20)], s_k, 15)
        else:
            touch([('B_x', 4 << 20), ('B_wo', 2 << 20)], s_k, 13)
            touch([('B_wqkv', 6 << 20)], s_k, 14)
        A.label(Lnt3)
    if not TEND:
        touch_b()
    LN, LE = A.uid('bN'), A.uid('bE')
    A('s_cmp_eq_u32 %s, 1' % sr(s_or))
    A('s_cbranch_scc1 ' + LN)
    G4.mainloop('T', 'bt', sig_prev if OVL else None, ht)
    A('s_nop 15')
    A('s_branch ' + LE)
    A.label(LN)
    G4.mainloop('N', 'bn', sig_prev if OVL else None, ht)
    A.label(LE)
    wstamp(3)
    if OVL:
        Lno, Lw1, Lyes = A.uid('no'), A.uid('w1'), A.uid('yes')
        A('s_nop 11')
        A('s_cmp_eq_u32 %s, 0' % sr(s_et))
        A('s_cbranch_scc1 ' + Lno)
        A('v_mov_b32 %s, %d' % (vr(v_a), LDS_JOB))
        A('s_cmp_lg_u32 %s, 0' % sr(s_w))
        A('s_cbranch_scc1 ' + Lw1)
        A('s_mov_b64 exec, 1')
        A('ds_write_b32 %s, %s' % (vr(v_a), vr(v_tk)))
        A('s_mov_b64 exec, -1')
        A('s_waitcnt lgkmcnt(0)')
        A.label(Lw1)
        A('s_barrier')
        A('ds_read_b32 %s, %s' % (vr(v_b), vr(v_a)))
        A('s_waitcnt lgkmcnt(0)')
        A('v_readfirstlane_b32 %s, %s' % (sr(s1), vr(v_b)))
        A('s_barrier')
        rng, a0 = [], 0
        for k_, n_, p_ in SEGS:
            if k_ in ('bkv', 'q', 'bq'):
                if rng and rng[-1][1] == a0:
                    rng[-1][1] = a0 + n_
                else:
                    rng.append([a0, a0 + n_])
            a0 += n_
        for lo, hi_ in rng:
            if hi_ <= 32:
                continue
            A('s_sub_u32 %s, %s, %d' % (sr(s0), sr(s1), lo - 32))
            A('s_cmp_lt_u32 %s, %d' % (sr(s0), hi_ - lo))
            A('s_cbranch_scc1 ' + Lyes)
        A('s_branch ' + Lno)
        A.label(Lyes)
        wstamp(4)
        wstamp(5)
        A('s_mov_b32 %s, %s' % (sr(p_base), sr(s_base)))
        A('s_mov_b32 %s, %s' % (sr(p_tbs), sr(s_tbs)))
        A('s_mov_b32 %s, %s' % (sr(p_ctr), sr(s_ctr)))
        A('s_mov_b32 %s, %s' % (sr(p_inc), sr(s_inc)))
        A('s_mov_b32 %s, 1' % sr(s_pe))
        A('s_mov_b32 %s, 0' % sr(s_et))
        A('s_mov_b32 %s, %s' % (sr(s_job), sr(s1)))
        A('s_branch ' + L_got)
        A.label(Lno)
    else:
        early()
    G4.epi_blk(SRD_WS, v_l16, s_base, s_tbs, s0, ' sc1')
    if TEND:
        touch_b()
    A('s_branch ' + L_done)

    def attn_items():
        A('s_mov_b32 %s, 0' % sr(s_cfg))
        A('s_and_b32 %s, %s, 3' % (sr(s0), sr(s_job)))
        A('s_lshl_b32 %s, %s, 2' % (sr(s1), sr(s_q)))
        A('s_add_u32 %s, %s, %s' % (sr(s0), sr(s0), sr(s1)))
        A('s_lshl_b32 %s, %s, 1' % (sr(s0), sr(s0)))
        A('s_and_b32 %s, %s, 1' % (sr(s1), sr(s_w)))
        A('s_add_u32 %s, %s, %s' % (sr(s_it), sr(s0), sr(s1)))
        A('s_lshl_b32 %s, %s, 8' % (sr(s0), sr(s_mt)))
        A('s_add_u32 %s, %s, %s' % (sr(s_it), sr(s_it), sr(s0)))
        A('s_lshr_b32 %s, %s, 1' % (sr(s0), sr(s_w)))
        A('s_lshl_b32 %s, %s, 7' % (sr(s0), sr(s0)))
        A('s_add_u32 %s, %s, %s' % (sr(s_it), sr(s_it), sr(s0)))
        A('s_mov_b32 %s, 4' % sr(s_k))
        wstamp(1)

    def attn_loop(fn, tag):
        Lb = A.uid(tag)
        A.label(Lb)
        fn(A, SRD_WS, s_it, (s0, s1, s2_, s3), v_lane, v_l16, 8, ld=' sc1', stf=' sc1')
        A('s_add_u32 %s, %s, 32' % (sr(s_it), sr(s_it)))
        A('s_sub_u32 %s, %s, 1' % (sr(s_k), sr(s_k)))
        A('s_cmp_lg_u32 %s, 0' % sr(s_k))
        A('s_waitcnt vmcnt(0)')
        A('s_cbranch_scc1 ' + Lb)

    A.label(L['aattn'])
    A('s_lshr_b32 %s, %s, 2' % (sr(s_mt), sr(s_job)))
    A('s_add_u32 %s, %s, %s' % (sr(s_mt), sr(s_mt), sr(s_p)))
    A('s_lshl_b32 %s, %s, 2' % (sr(s_ctr), sr(s_mt)))
    A('s_add_u32 %s, %s, %d' % (sr(s0), sr(s_ctr), DBG_QR))
    A('s_lshl_b32 %s, %s, 3' % (sr(s1), sr(s_mt)))
    A('s_add_u32 %s, %s, %d' % (sr(s1), sr(s1), 7 + LAG))
    wait2(s0, 4, str(DBG_PROG), sr(s1))
    ctr(DBG_AA, s_mt, 1)
    attn_items()
    attn.attn_a_n(A, SRD_WS, s_it, (s0, s1, s2_, s3), v_lane, v_l16, 8, 4, ld=' sc1', stf=' sc1', late=early)
    A('s_branch ' + L_done)

    A.label(L['aattn1'])
    A('s_lshr_b32 %s, %s, 2' % (sr(s_mt), sr(s_p)))
    A('s_lshl_b32 %s, %s, 2' % (sr(s_ctr), sr(s_mt)))
    A('s_lshl_b32 %s, %s, 1' % (sr(s_it), sr(s_p)))
    A('s_lshr_b32 %s, %s, 1' % (sr(s0), sr(s_job)))
    A('s_add_u32 %s, %s, %s' % (sr(s_it), sr(s_it), sr(s0)))
    A('s_add_u32 %s, %s, %d' % (sr(s_tbs), sr(s_it), LAG))
    A('s_mov_b32 %s, %d' % (sr(s_base), DBG_PROG))
    A('s_cmp_gt_u32 %s, 60' % sr(s_it))
    A('s_cselect_b32 %s, 32, %s' % (sr(s_tbs), sr(s_tbs)))
    A('s_cselect_b32 %s, %d, %s' % (sr(s_base), DBG_FIN, sr(s_base)))
    A('s_add_u32 %s, %s, %d' % (sr(s0), sr(s_ctr), DBG_KV))
    A('s_add_u32 %s, %s, %d' % (sr(s1), sr(s_ctr), DBG_QR))
    wait2(s0, 32, s1, 4)
    A('s_add_u32 %s, %s, %d' % (sr(s_ctr), sr(s_ctr), DBG_AA))
    A('s_and_b32 %s, %s, 7' % (sr(s0), sr(s_it)))
    A('s_lshl_b32 %s, %s, 2' % (sr(s0), sr(s0)))
    A('s_lshl_b32 %s, 1, %s' % (sr(s_inc), sr(s0)))
    A('s_lshl_b32 %s, %s, 5' % (sr(s_it), sr(s_it)))
    A('s_lshl_b32 %s, %s, 3' % (sr(s0), sr(s_q)))
    A('s_add_u32 %s, %s, %s' % (sr(s_it), sr(s_it), sr(s0)))
    A('s_and_b32 %s, %s, 1' % (sr(s0), sr(s_job)))
    A('s_lshl_b32 %s, %s, 2' % (sr(s0), sr(s0)))
    A('s_add_u32 %s, %s, %s' % (sr(s_it), sr(s_it), sr(s0)))
    A('s_add_u32 %s, %s, %s' % (sr(s_it), sr(s_it), sr(s_w)))
    A('s_mov_b32 %s, 0' % sr(s_cfg))

    def pw1():
        wait_ctr(s_base, sr(s_tbs), slp=4)
        wstamp(1)
        early()
    attn.attn_a(A, SRD_WS, s_it, (s0, s1, s2_, s3), v_lane, v_l16, 8, ld=' sc1', stf=' sc1', pre_wait=pw1)
    A('s_branch ' + L_done)

    A.label(L['aoute'])
    wait_ctr(str(DBG_WT), 32)
    A('s_lshr_b32 %s, %s, 3' % (sr(s_mt), sr(s_job)))
    A('s_add_u32 %s, %s, %s' % (sr(s_mt), sr(s_mt), sr(s_p)))
    A('s_lshl_b32 %s, %s, 3' % (sr(s_nt), sr(s_q)))
    A('s_and_b32 %s, %s, 7' % (sr(s0), sr(s_job)))
    A('s_add_u32 %s, %s, %s' % (sr(s_nt), sr(s_nt), sr(s0)))
    A('s_mov_b32 %s, 0' % sr(s_inc))
    A('s_mov_b32 %s, 0' % sr(s_cfg))

    def pw2():
        A('s_lshr_b32 %s, %s, 3' % (sr(s0), sr(s_mt)))
        A('s_lshl_b32 %s, %s, 2' % (sr(s0), sr(s0)))
        A('s_add_u32 %s, %s, %d' % (sr(s0), sr(s0), DBG_AA))
        A('s_and_b32 %s, %s, 7' % (sr(s1), sr(s_mt)))
        A('s_lshl_b32 %s, %s, 2' % (sr(s1), sr(s1)))
        wait_ctr(s0, 2, s1, bits=4, slp=4)
        wstamp(1)
        early()
    out_direct32(A, SRD_WS, SRD_O, s_w, s_mt, s_nt, (s_base, s_tbs, s0, s_it, s_k), v_lane, v_l16, 8, ' sc1', pw2)
    A('s_branch ' + L_done)

    A.label(L['aoutd'])
    A('s_lshr_b32 %s, %s, 2' % (sr(s0), sr(s_p)))
    A('s_lshl_b32 %s, %s, 2' % (sr(s0), sr(s0)))
    A('s_add_u32 %s, %s, %d' % (sr(s0), sr(s0), DBG_AA))
    A('s_and_b32 %s, %s, 3' % (sr(s1), sr(s_p)))
    A('s_lshl_b32 %s, %s, 3' % (sr(s1), sr(s1)))
    wait2(str(DBG_WT), 32, s0, '0x22', s1)
    A('s_lshl_b32 %s, %s, 1' % (sr(s_mt), sr(s_p)))
    A('s_lshl_b32 %s, %s, 3' % (sr(s_nt), sr(s_q)))
    A('s_add_u32 %s, %s, %s' % (sr(s_nt), sr(s_nt), sr(s_job)))
    A('s_mov_b32 %s, 0' % sr(s_inc))
    A('s_mov_b32 %s, 0' % sr(s_cfg))
    wstamp(1)
    out_direct(A, SRD_WS, SRD_O, s_w, s_mt, s_nt, (s_base, s_tbs, s_it, s0, s1), v_lane, v_l16, v_off, 8, ld=' sc1', pre=early)
    A('s_branch ' + L_done)

    A.label(L['battn'])
    A('s_add_u32 %s, %s, %s' % (sr(s_job), sr(s_job), sr(s_p)))
    A('s_lshr_b32 %s, %s, 2' % (sr(s_mt), sr(s_job)))
    A('s_lshl_b32 %s, %s, 2' % (sr(s_ctr), sr(s_mt)))
    A('s_add_u32 %s, %s, %d' % (sr(s1), sr(s_ctr), DBG_BQ))
    A('s_add_u32 %s, %s, %d' % (sr(s0), sr(s_ctr), DBG_BQ - 4))
    A('s_max_u32 %s, %s, %d' % (sr(s0), sr(s0), DBG_BQ))
    wait2(s0, 3, s1, 3)
    ctr(DBG_BA, s_mt, 1)
    attn_items()
    attn.attn_b4(A, SRD_WS, s_it, (s0, s1, s2_, s3), v_lane, v_l16, 8, ld=' sc1', stf=' sc1', late=early)

    A.label(L_done)
    wstamp(4)
    Lq0 = A.uid('q0')
    A('s_cmp_lg_u32 %s, 0' % sr(s_init))
    A('s_cbranch_scc1 ' + Lq0)
    A('v_cmp_gt_u32 vcc, 8, %s' % vr(v_lane))
    A('v_lshlrev_b32 %s, 2, %s' % (vr(v_a), vr(v_lane)))
    A('v_mov_b32 %s, %d' % (vr(v_b), DBG_INIT))
    A('v_cndmask_b32 %s, %s, %s, vcc' % (vr(v_a), vr(v_b), vr(v_a)))
    A('buffer_load_dword %s, %s, %s, 0 offen sc1' % (vr(v_b), vr(v_a), sr(SRD_D, 4)))
    A('v_cndmask_b32 %s, 1, 32, vcc' % vr(v_a))
    A('s_waitcnt vmcnt(0)')
    A('v_cmp_ne_u32 vcc, %s, %s' % (vr(v_a), vr(v_b)))
    A('s_cbranch_vccnz ' + Lq0)
    A('s_mov_b32 %s, 1' % sr(s_init))
    A.label(Lq0)
    A('s_waitcnt vmcnt(0)')
    wstamp(5)
    dbgt(14)
    Ld1, Ld2, Lsig = A.uid('d1'), A.uid('d2'), A.uid('sig')
    A('v_mov_b32 %s, %d' % (vr(v_a), LDS_JOB))
    A('s_cmp_lg_u32 %s, 0' % sr(s_w))
    A('s_cbranch_scc1 ' + Ld1)
    A('s_mov_b64 exec, 1')
    A('ds_write_b32 %s, %s' % (vr(v_a), vr(v_tk)))
    A('s_mov_b64 exec, -1')
    A('s_waitcnt lgkmcnt(0)')
    A.label(Ld1)
    A('s_barrier')
    Lck = A.uid('ck')
    A('s_cmp_lg_u32 %s, 0' % sr(s_init))
    A('s_cbranch_scc1 ' + Lck)
    place_check(A, SRD_D, v_lane, v_a, v_b, s3, LIM, L_restart)
    A.label(Lck)
    A('s_cmp_lg_u32 %s, 0' % sr(s_w))
    A('s_cbranch_scc1 ' + Ld2)
    A('s_cmp_lg_u32 %s, 0' % sr(s_inc))
    A('s_cbranch_scc1 ' + Lsig)
    A.label(Ld2)
    A('s_cmp_eq_u32 %s, 0' % sr(s_et))
    A('s_cbranch_scc1 ' + L_next)
    A('s_mov_b32 %s, 0' % sr(s_et))
    A('v_mov_b32 %s, %d' % (vr(v_a), LDS_JOB))
    A('ds_read_b32 %s, %s' % (vr(v_b), vr(v_a)))
    A('s_waitcnt lgkmcnt(0)')
    A('v_readfirstlane_b32 %s, %s' % (sr(s_job), vr(v_b)))
    A('s_barrier')
    A('s_branch ' + L_got)
    A.label(Lsig)
    wait_init()
    A('s_add_u32 %s, %s, %s' % (sr(s0), sr(s_ctr), sr(s_q)))
    A('s_lshl_b32 %s, %s, 7' % (sr(s0), sr(s0)))
    A('s_add_u32 %s, %s, 0x%x' % (sr(s0), sr(s0), CTR))
    A('v_mov_b32 %s, %s' % (vr(v_a), sr(s0)))
    A('v_mov_b32 %s, %s' % (vr(v_b), sr(s_inc)))
    A('s_mov_b64 exec, 1')
    A('buffer_atomic_add %s, %s, %s, 0 offen sc1' % (vr(v_b), vr(v_a), sr(SRD_WS, 4)))
    Lk0 = A.uid('k0')
    A('s_cmp_lg_u32 %s, %d' % (sr(s_ctr), DBG_KV))
    A('s_cbranch_scc1 ' + Lk0)
    A('s_cmp_lg_u32 %s, 0' % sr(s_mt))
    A('s_cbranch_scc1 ' + Lk0)
    A('v_add_u32 %s, %d, %s' % (vr(v_a), (DBG_KV0 - DBG_KV) * 128, vr(v_a)))
    A('v_mov_b32 %s, 2' % vr(v_b))
    A('buffer_atomic_add %s, %s, %s, 0 offen sc1' % (vr(v_b), vr(v_a), sr(SRD_WS, 4)))
    A.label(Lk0)
    A('s_mov_b64 exec, -1')
    A('s_branch ' + Ld2)
    return hi
```
